```python
import torch

def _softmax(x, axis=-1):
    return torch.softmax(x, dim=axis)
def _gelu(x):
    return torch.nn.functional.gelu(x, approximate="tanh")
def _silu(x):
    return torch.nn.functional.silu(x)
def _sigmoid(x):
    return torch.sigmoid(x)
def _layernorm(x, axis=-1, eps=1e-5):
    m = x.mean(dim=axis, keepdim=True)
    v = x.var(dim=axis, keepdim=True, unbiased=False)
    return (x - m) / torch.sqrt(v + eps)
def _scatter_add(tgt, idx, src, axis=0):
    return tgt.clone().index_add_(axis, idx, src)
def _segment_sum(src, seg, n):
    out = torch.zeros((n,) + src.shape[1:], dtype=src.dtype)
    return out.index_add_(0, seg, src)
def _pad(x, pw):
    flat = tuple(v for pair in reversed(pw) for v in pair)
    return torch.nn.functional.pad(x, flat)

kernel_name = 'gated_mix__softmax_full_mha__moe_arch_mod__prompt'

def setup_inputs():

    _w = (lambda a: (lambda t: t.to(torch.bfloat16) if t.is_floating_point() else t)(torch.as_tensor(a)))
    def _A_setup():
        B, S, D = 1, 2048, 448
        return {
            "x": _w((lambda *s: torch.randn(*s, dtype=torch.bfloat16) * 0.05)(B, S, D)),
            "wqkv": _w((lambda *s: torch.randn(*s, dtype=torch.bfloat16) * 1.6)(D, 3 * D)),
            "wo": _w((lambda *s: torch.randn(*s, dtype=torch.bfloat16) * 0.1)(D, D)),
        }
    _A_in = _A_setup()

    def _B_setup():
        B, S, D, F, C = 1, 2048, 448, 1792, 8
        return {
            "x": _w((lambda *s: torch.randn(*s, dtype=torch.bfloat16) * 0.05)(B, S, D)),
            "w_r": _w((lambda *s: torch.randn(*s, dtype=torch.bfloat16) * 3.2)(D)),
            "w_gate": _w((lambda *s: torch.randn(*s, dtype=torch.bfloat16) * 0.4)(D, F)),
            "w_up": _w((lambda *s: torch.randn(*s, dtype=torch.bfloat16) * 0.4)(D, F)),
            "w_down": _w((lambda *s: torch.randn(*s, dtype=torch.bfloat16) * 0.4)(F, D)),
        }
    _B_in = _B_setup()

    return {
        "A_x": _A_in["x"],
        "A_wqkv": _A_in["wqkv"],
        "A_wo": _A_in["wo"],
        "B_x": _B_in["x"],
        "B_w_r": _B_in["w_r"],
        "B_w_gate": _B_in["w_gate"],
        "B_w_up": _B_in["w_up"],
        "B_w_down": _B_in["w_down"],
        "gate_w": _w((lambda *s: torch.randn(*s, dtype=torch.bfloat16) * 0.05)(448) * 16.0),
    }

def reference(A_x, A_wqkv, A_wo, B_x, B_w_r, B_w_gate, B_w_up, B_w_down, gate_w):
    def _A_ref(x, wqkv, wo):
        B, S, D = x.shape
        H = 16; Dh = D // H
        qkv = (lambda x, *d: x.permute(*d))((x @ wqkv).reshape(B, S, 3, H, Dh), 2, 0, 3, 1, 4)
        q, k, v = qkv[0], qkv[1], qkv[2]
        scale = Dh ** -0.5
        scores = torch.einsum("bhqd,bhkd->bhqk", q, k) * scale
        p = _softmax(scores, axis=-1)
        o = torch.einsum("bhqk,bhkd->bhqd", p, v)
        return (lambda x, *d: x.permute(*d))(o, 0, 2, 1, 3).reshape(B, S, D) @ wo

    def _B_ref(x, w_r, w_gate, w_up, w_down):
        B, S, D = x.shape
        C = 8
        r = x @ w_r
        idx = torch.argsort(-r, axis=-1)[:, :C]
        idx_e = (lambda x, n, axis: torch.repeat_interleave(x, n, dim=axis))(idx.reshape(B, C, 1), D, axis=2)
        x_sel = (lambda x, i, axis: torch.take_along_dim(x, i, dim=axis))(x, idx_e, axis=1)
        g = _silu(x_sel @ w_gate)
        u = x_sel @ w_up
        y = (g * u) @ w_down
        r_sel = _sigmoid((lambda x, i, axis: torch.take_along_dim(x, i, dim=axis))(r, idx, axis=1))
        y = y * r_sel.reshape(B, C, 1)
        b_off = (torch.arange(B) * S).reshape(B, 1)
        flat_idx = (idx + b_off).reshape(B * C)
        zero = (x * 0.0).reshape(B * S, D)
        upd = _scatter_add(zero, flat_idx, y.reshape(B * C, D), axis=0)
        return x + upd.reshape(B, S, D)

    x = A_x
    g = _sigmoid((x * gate_w).sum(-1, keepdims=True))
    a = _A_ref(x, A_wqkv, A_wo)
    b = _B_ref(x, B_w_r, B_w_gate, B_w_up, B_w_down)
    return g * a + (1 - g) * b
```

```python
import re

TRANS = ("v_exp_f32", "v_log_f32", "v_rcp_f32", "v_rsq_f32", "v_sqrt_f32", "v_sin_f32", "v_cos_f32",
         "v_rcp_iflag_f32", "v_exp_f16", "v_rcp_f16")

def regs_of(tok):
    tok = tok.strip()
    tok = tok.lstrip('-')
    m = re.fullmatch(r"abs\((.*)\)", tok)
    if m: tok = m.group(1)
    m = re.fullmatch(r"\|(.*)\|", tok)
    if m: tok = m.group(1)
    m = re.fullmatch(r"([vas])(\d+)", tok)
    if m: return [(m.group(1), int(m.group(2)))]
    m = re.fullmatch(r"([vas])\[(\d+):(\d+)\]", tok)
    if m: return [(m.group(1), i) for i in range(int(m.group(2)), int(m.group(3)) + 1)]
    if tok == "vcc": return [("s", "vcc")]
    if tok in ("vcc_lo", "vcc_hi"): return [("s", "vcc")]
    if tok == "exec": return [("s", "exec")]
    if tok == "m0": return [("s", "m0")]
    return []

class Ins:
    def __init__(self, text):
        self.text = text
        t = text.split(";")[0].strip()
        self.is_label = t.endswith(":")
        self.is_dir = t.startswith(".") and not self.is_label
        self.op = ""
        self.dst = []; self.src = []
        self.srcA = []; self.srcC = []
        self.kind = "none"
        if not t or self.is_label or self.is_dir:
            return
        parts = t.split(None, 1)
        self.op = op = parts[0]
        rest = parts[1] if len(parts) > 1 else ""
        ops = []; depth = 0; cur = ""
        for ch in rest:
            if ch == "[": depth += 1
            if ch == "]": depth -= 1
            if ch == "," and depth == 0:
                ops.append(cur); cur = ""
            else:
                cur += ch
        ops.append(cur)
        last = ops[-1].strip().split()
        mods = last[1:] if last else []
        if last: ops[-1] = last[0]
        ops = [o.strip() for o in ops]
        self.mods = " ".join(mods)
        R = [regs_of(o) for o in ops]
        flat = lambda xs: [r for x in xs for r in x]
        self.dpp = "_dpp" in op or "row_" in self.mods or "quad_perm" in self.mods
        if op.startswith("v_mfma"):
            self.kind = "mfma"; self.dst = R[0]; self.srcA = R[1] + R[2]; self.srcC = R[3]
            self.src = self.srcA + self.srcC
            self.passes = 8 if "32x32x16" in op else 4
        elif op.startswith("v_"):
            self.kind = "valu"
            base = op.replace("_e32", "").replace("_e64", "").replace("_dpp", "").replace("_sdwa", "")
            self.base = base
            if base.startswith("v_cmp"):
                self.dst = R[0]; self.src = flat(R[1:])
                if base.startswith("v_cmpx"): self.dst = self.dst + [("s", "exec")]
            elif (base.startswith("v_permlane") and "swap" in base) or base == "v_swap_b32":
                self.dst = R[0] + R[1]; self.src = R[0] + R[1]
            elif base in ("v_add_co_u32", "v_sub_co_u32", "v_subrev_co_u32"):
                self.dst = R[0] + R[1]; self.src = flat(R[2:])
            elif base in ("v_addc_co_u32", "v_subb_co_u32"):
                self.dst = R[0] + R[1]; self.src = flat(R[2:])
            elif base == "v_nop":
                pass
            else:
                self.dst = R[0]; self.src = flat(R[1:])
                if base in ("v_fmac_f32", "v_dot2c_f32_bf16", "v_writelane_b32") or self.dpp or "_sdwa" in op:
                    self.src = self.src + R[0]
            self.trans = base in TRANS
        elif op.startswith("ds_"):
            self.kind = "ds"
            if op.startswith("ds_read") or op.startswith("ds_bpermute") or op.startswith("ds_swizzle") or "_rtn" in op:
                self.dst = R[0]; self.src = flat(R[1:])
            else:
                self.src = flat(R)
        elif op.startswith("buffer_") or op.startswith("global_"):
            self.kind = "vmem"
            lds = " lds" in (" " + self.mods) or "_lds_" in op
            self.lds = lds
            if op in ("buffer_inv", "buffer_wbl2"):
                pass
            elif "load" in op and not lds:
                self.dst = R[0]; self.src = flat(R[1:])
            elif "atomic" in op and "sc0" in self.mods:
                if op.startswith("global"):
                    self.dst = R[0]; self.src = flat(R[1:])
                else:
                    self.dst = R[0]; self.src = flat(R)
            else:
                self.src = flat(R)
            self.wide_store = ("store" in op and ("x3" in op or "x4" in op))
            if self.wide_store:
                self.store_data = R[0] if op.startswith("buffer") else R[1]
        elif op.startswith("s_"):
            self.kind = "salu"
            if op.startswith(("s_cmp", "s_cbranch", "s_branch", "s_waitcnt", "s_nop", "s_barrier", "s_endpgm",
                              "s_setprio", "s_sleep", "s_bitcmp", "s_setpc")):
                self.src = flat(R)
            else:
                self.dst = R[0]; self.src = flat(R[1:])
                if "saveexec" in op: self.dst = self.dst + [("s", "exec")]
    def states(self):
        if self.kind == "none": return 0
        if self.op == "s_nop":
            return int(self.text.split(";")[0].split()[1], 0) + 1
        return 1

def need(prev, cur):
    n = 0
    pd = set(prev.dst); cs = set(cur.src); cd = set(cur.dst)
    vp = lambda S: {r for r in S if r[0] in "va"}
    sp = lambda S: {r for r in S if r[0] == "s"}
    if prev.kind == "mfma":
        p = prev.passes
        if cur.kind == "mfma":
            if pd & set(cur.srcA): n = max(n, p + 4)
            if pd & set(cur.srcC):
                if not (set(cur.srcC) == pd and cur.passes == p): n = max(n, p + 2)
            elif pd & cd:
                n = max(n, p + 2)
        elif cur.kind in ("valu", "ds", "vmem"):
            if pd & (cs | cd): n = max(n, p + 4)
            if cur.kind == "valu" and set(prev.srcC) & cd: n = max(n, p - 1)
    if prev.kind == "valu":
        if cur.kind == "mfma":
            if vp(pd) & cs: n = max(n, 2)
            if ("s", "exec") in pd: n = max(n, 4)
        if cur.kind == "valu":
            if prev.trans and vp(pd) & (cs) and not cur.trans: n = max(n, 1)
            if prev.trans and vp(pd) & cs and cur.trans: n = max(n, 1)
            if cur.dpp and vp(pd) & cs: n = max(n, 2)
            if cur.dpp and ("s", "exec") in pd: n = max(n, 5)
            if cur.base.startswith("v_permlane") and vp(pd) & cs: n = max(n, 2)
            if cur.base in ("v_readlane_b32", "v_readfirstlane_b32") and vp(pd) & cs: n = max(n, 1)
            if sp(pd) & cs:
                n = max(n, 4 if cur.base in ("v_readlane_b32", "v_writelane_b32") else 2)
            if ("s", "exec") in pd and cur.base in ("v_readlane_b32", "v_readfirstlane_b32", "v_writelane_b32"): n = max(n, 4)
            if ("_sdwa" in prev.op or "op_sel" in prev.mods) and vp(pd) & (cs | cd): n = max(n, 1)
            if prev.base.startswith("v_dot") and vp(pd) & (cs | cd):
                if not (cur.base == prev.base): n = max(n, 3)
        if cur.kind == "vmem" and sp(pd) & cs: n = max(n, 5)
        if prev.base.startswith("v_dot") and cur.kind in ("vmem", "ds") and vp(pd) & cs: n = max(n, 3)
        if prev.trans and cur.kind in ("vmem", "ds") and vp(pd) & cs: n = max(n, 1)
    if prev.kind == "salu":
        if ("s", "m0") in pd and cur.kind == "vmem" and cur.lds: n = max(n, 1)
    if prev.kind == "vmem" and getattr(prev, "wide_store", False):
        if set(prev.store_data) & cd: n = max(n, 2)
    return n

def fix_hazards(lines, report=None, wrap_loops=True):
    ins = [Ins(l) for l in lines]
    out = []
    for cur in ins:
        if cur.kind != "none":
            dist = 0; worst = 0; why = None
            for prev in reversed(out):
                if prev.kind == "none": continue
                r = need(prev, cur) - dist
                if r > worst: worst = r; why = prev
                dist += prev.states()
                if dist > 24: break
            if worst > 0:
                if report is not None: report.append(f"nop {worst}: [{why.text.strip()}] -> [{cur.text.strip()}]")
                w = worst
                while w > 0:
                    k = min(w, 16)
                    out.append(Ins(f"    s_nop {k-1}"))
                    w -= k
        out.append(cur)
    labels = {i.text.split(";")[0].strip()[:-1]: k for k, i in enumerate(out) if i.is_label}
    probs = []
    for k, i in enumerate(out):
        if i.op.startswith(("s_cbranch", "s_branch")):
            tgt = i.text.split(";")[0].split()[1]
            if tgt not in labels or tgt.startswith("L_wk"): continue
            before = [x for x in out[max(0, k - 40):k + 1] if x.kind != "none"]
            after = [x for x in out[labels[tgt]:labels[tgt] + 40] if x.kind != "none"]
            d_after = 0
            for c in after:
                dist = d_after
                for p in reversed(before):
                    if need(p, c) > dist:
                        probs.append(f"BRANCH-EDGE hazard via {tgt}: [{p.text.strip()}] -> [{c.text.strip()}] need {need(p,c)} have {dist}")
                    dist += p.states()
                    if dist > 24: break
                d_after += c.states()
                if d_after > 24: break
                if c.op in ("s_branch", "s_endpgm"): break
    return [i.text for i in out], probs

class Asm:
    def __init__(self):
        self.l = []
    def __call__(self, s):
        for line in s.split("\n"):
            line = line.strip()
            if not line: continue
            if line.endswith(":") or line.startswith("."):
                self.l.append(line)
            else:
                self.l.append("    " + line)
    def label(self, s): self.l.append(s + ":")

def vr(b, n=1):
    return f"v{b}" if n == 1 else f"v[{b}:{b+n-1}]"
def sr(b, n=1):
    return f"s{b}" if n == 1 else f"s[{b}:{b+n-1}]"

def kernel_text(name, body_lines, vgpr, sgpr=102, agpr=0, report=None):
    lines, probs = fix_hazards(body_lines, report)
    for p in probs: print("WARNING", name, p)
    acc = (vgpr + 3) // 4 * 4
    nfv = acc + agpr if agpr else vgpr
    t = f".text\n.globl {name}\n.p2align 8\n.type {name},@function\n{name}:\n" + "\n".join(lines) + "\n"
    t += f""".section .rodata,"a"
.p2align 6
.amdhsa_kernel {name}
  .amdhsa_next_free_vgpr {nfv}
  .amdhsa_next_free_sgpr {sgpr}
  .amdhsa_accum_offset {acc}
  .amdhsa_group_segment_fixed_size 0
  .amdhsa_kernarg_size 96
  .amdhsa_user_sgpr_count 2
  .amdhsa_user_sgpr_kernarg_segment_ptr 1
  .amdhsa_system_sgpr_workgroup_id_x 1
  .amdhsa_float_denorm_mode_32 3
.end_amdhsa_kernel
"""
    return t
```

```python
import sys, math, struct
from asmlib import *

NAME = "gated_mix__softmax_full_mha__moe_arch_mod__prompt"
WS_Q = 0
WS_KV = 2 << 20
WS_O = 6 << 20
WS_R = 8 << 20
WS_G = WS_R + 8192
WS_SEL = WS_R + 16384
WS_YP = 9 << 20
NPART = 56

def f32bits(x): return struct.unpack("<I", struct.pack("<f", x))[0]
QSCALE = f32bits(28 ** -0.5 * math.log2(math.e))
LOG2E = f32bits(math.log2(math.e))
NLOG2E = f32bits(-math.log2(math.e))
MF = "v_mfma_f32_32x32x16_bf16"

def srd(a, d, ptr, nbytes):
    a(f"s_mov_b32 s{d}, s{ptr}\ns_mov_b32 s{d+1}, s{ptr+1}\ns_mov_b32 s{d+2}, {nbytes:#x}\ns_mov_b32 s{d+3}, 0x20000")

def split_neg_max(a, m, t0, t1, q6, q7):
    a(f"""v_sub_f32 v{m}, 0, v{m}
    v_cvt_pk_bf16_f32 v{t0}, v{m}, v{m}
    v_lshlrev_b32 v{t0}, 16, v{t0}
    v_sub_f32 v{t0}, v{m}, v{t0}
    v_cvt_pk_bf16_f32 v{t1}, v{m}, v{t0}
    v_and_b32 v{m}, 0xffff0000, v{t1}
    v_sub_f32 v{t0}, v{t0}, v{m}
    s_mov_b32 exec_lo, 0
    v_mov_b32 v{q6}, v{t1}
    v_cvt_pk_bf16_f32 v{q7}, v{t0}, 0
    s_mov_b32 exec_lo, -1""")

def max16(a, dst, S, init=None):
    if init is None:
        a(f"v_max3_f32 v{dst}, v{S}, v{S+1}, v{S+2}")
        for i in range(3, 15, 2):
            a(f"v_max3_f32 v{dst}, v{dst}, v{S+i}, v{S+i+1}")
        a(f"v_max_f32 v{dst}, v{dst}, v{S+15}")
    else:
        for i in range(0, 16, 2):
            a(f"v_max3_f32 v{dst}, v{dst}, v{S+i}, v{S+i+1}")

def cross_half_max(a, m, t):
    a(f"v_mov_b32 v{t}, v{m}\nv_permlane32_swap_b32 v{m}, v{t}\nv_max_f32 v{m}, v{m}, v{t}")

SLOT = 28672
NSLOT = 5
TBL = SLOT * NSLOT
K1_LDS = TBL + 2048

def k1():
    a = Asm()
    a("""s_cmp_ge_u32 s2, 256
    s_cbranch_scc1 L1_end
    s_load_dwordx4 s[4:7], s[0:1], 0
    s_load_dwordx2 s[28:29], s[0:1], 32
    s_load_dwordx2 s[30:31], s[0:1], 64
    s_load_dwordx2 s[32:33], s[0:1], 88
    v_lshrrev_b32 v2, 6, v0
    v_and_b32 v1, 63, v0
    s_and_b32 s36, s2, 7
    s_lshr_b32 s37, s2, 3
    v_readfirstlane_b32 s40, v2
    s_and_b32 s38, s36, 1
    s_lshl_b32 s38, s38, 3
    s_and_b32 s34, s37, 7
    s_add_u32 s38, s38, s34
    s_lshr_b32 s39, s36, 1
    s_lshl_b32 s39, s39, 2
    s_lshr_b32 s34, s37, 3
    s_add_u32 s39, s39, s34
    """)
    H, J, W = 38, 39, 40
    a("""v_lshrrev_b32 v3, 3, v1
    v_mul_u32_u24 v3, 896, v3
    v_and_b32 v4, 7, v1
    v_lshrrev_b32 v5, 4, v1
    v_xor_b32 v4, v4, v5
    v_lshl_add_u32 v10, v4, 4, v3
    v_xor_b32 v4, 4, v4
    v_lshl_add_u32 v11, v4, 4, v3
    """)
    a(f"""v_mul_u32_u24 v3, 192, v2
    v_add_u32 v3, v3, v1""")
    for i in range(3):
        a(f"""v_add_u32 v4, {64*i}, v3
        v_mul_u32_u24 v5, 0x5556, v4
        v_lshrrev_b32 v5, 18, v5
        v_mul_u32_u24 v6, 12, v5
        v_sub_u32 v6, v4, v6
        v_mul_u32_u24 v5, 2688, v5
        v_lshrrev_b32 v7, 2, v6
        v_mul_u32_u24 v7, 896, v7
        v_and_b32 v6, 3, v6
        v_lshlrev_b32 v6, 4, v6
        v_add3_u32 v{12+i}, v5, v7, v6""")
    a("v_lshlrev_b32 v15, 4, v1")
    a("s_waitcnt lgkmcnt(0)")
    srd(a, 8, 4, 2048 * 896)
    srd(a, 12, 6, 448 * 2688)
    srd(a, 16, 32, 1 << 28)
    srd(a, 20, 28, 896)
    srd(a, 24, 30, 896)
    a(f"""s_lshl_b32 s41, s{J}, 2
    s_add_u32 s41, s41, s{W}
    s_mul_i32 s41, s41, {32*896}
    s_mul_i32 s42, s{H}, 56
    s_lshl_b32 s43, s{W}, 12
    s_mul_i32 s44, s{W}, 3072
    s_add_u32 s44, s44, 16384
    s_mov_b32 m0, {TBL}
    s_nop 0
    buffer_load_dwordx4 v15, s[20:23], 0 offen lds
    s_mov_b32 m0, {TBL+1024}
    s_nop 0
    buffer_load_dwordx4 v15, s[24:27], 0 offen lds
    """)
    def dma_chunk(c):
        slot = (c % NSLOT) * SLOT
        for i in range(4):
            a(f"""s_add_u32 m0, s43, {slot + i*1024}
            s_add_u32 s45, s41, {c*128 + i*8*896}
            buffer_load_dwordx4 v{10 + (i&1)}, s[8:11], s45 offen lds""")
        a(f"s_add_u32 s46, s42, {c*64*2688}")
        for i in range(3):
            a(f"""s_add_u32 m0, s44, {slot + i*1024}
            s_nop 0
            buffer_load_dwordx4 v{12+i}, s[12:15], s46 offen lds""")
    for c in range(NSLOT):
        dma_chunk(c)
    a(f"""v_and_b32 v3, 31, v1
    v_lshrrev_b32 v4, 5, v1
    v_lshrrev_b32 v5, 1, v3
    v_and_b32 v5, 7, v5
    v_xor_b32 v5, v5, v4
    v_lshlrev_b32 v5, 4, v5
    v_lshl_add_u32 v5, v3, 7, v5
    v_add_u32 v16, s43, v5
    v_xor_b32 v17, 32, v16
    v_xor_b32 v18, 64, v16
    v_xor_b32 v19, 96, v16
    v_bfe_u32 v5, v1, 2, 2
    v_lshl_add_u32 v5, v4, 3, v5
    v_mul_u32_u24 v5, 192, v5
    v_bfe_u32 v6, v1, 4, 1
    v_lshl_add_u32 v5, v6, 5, v5
    v_and_b32 v6, 3, v1
    v_lshl_add_u32 v5, v6, 3, v5
    v_add_u32 v20, 16384, v5
    v_and_b32 v5, 1, v1
    v_lshlrev_b32 v5, 10, v5
    v_lshl_add_u32 v5, v4, 4, v5
    v_add_u32 v21, {TBL}, v5
    s_mov_b32 s48, 0x30000000
    s_mov_b32 s49, 0x30000000
    """)
    AQ, AK, AV = 64, 80, 96
    FR = 112
    def reads(c, s, base):
        f = FR + 16 * s
        a(f"ds_read_b128 {vr(f,4)}, v{16+s} offset:{base}")
        for p in range(3):
            o = base + 16 * s * 192 + p * 64
            a(f"ds_read_b64_tr_b16 {vr(f+4+4*p,2)}, v20 offset:{o}")
            a(f"ds_read_b64_tr_b16 {vr(f+6+4*p,2)}, v20 offset:{o+768}")
        a(f"""s_mov_b64 exec, s[48:49]
        ds_read_b128 {vr(f+4,4)}, v21 offset:{(4*c+s)*32}
        s_mov_b64 exec, -1""")
    def mfmas(c, s):
        f = FR + 16 * s
        first = (c == 0 and s == 0)
        cq, ck, cv = ("0", "0", "0") if first else (vr(AQ,16), vr(AK,16), vr(AV,16))
        a(f"{MF} {vr(AK,16)}, {vr(f+8,4)}, {vr(f,4)}, {ck}")
        a(f"{MF} {vr(AV,16)}, {vr(f,4)}, {vr(f+12,4)}, {cv}")
        a(f"{MF} {vr(AQ,16)}, {vr(f+4,4)}, {vr(f,4)}, {cq}")
    waits = [28, 21, 21, 21, 14, 7, 0]
    curbase = 0
    for c in range(7):
        slot = (c % NSLOT) * SLOT
        want = (slot // (2 * SLOT)) * (2 * SLOT)
        if want != curbase:
            d = want - curbase
            for r in range(16, 21):
                if d > 0: a(f"v_add_u32 v{r}, {d}, v{r}")
                else: a(f"v_subrev_u32 v{r}, {-d}, v{r}")
            curbase = want
        a(f"s_waitcnt vmcnt({waits[c]})\ns_barrier")
        base = slot - curbase
        reads(c, 0, base)
        if c in (1, 2): dma_chunk(c + 4)
        a("s_waitcnt lgkmcnt(0)")
        for s in range(4):
            if s < 3: reads(c, s + 1, base)
            mfmas(c, s)
            if s < 3: a("s_waitcnt lgkmcnt(0)")
    QP, KP, VP = 112, 120, 128
    a(f"s_mov_b32 s50, {QSCALE:#x}\ns_mov_b32 s51, {QSCALE:#x}")
    for i in range(8): a(f"v_cvt_pk_bf16_f32 v{KP+i}, v{AK+2*i}, v{AK+2*i+1}")
    for i in range(8): a(f"v_cvt_pk_bf16_f32 v{VP+i}, v{AV+2*i}, v{AV+2*i+1}")
    a(f"v_mov_b32 v22, v{AQ+12}\nv_mov_b32 v23, v{AQ+13}")
    for i in range(8): a(f"v_pk_mul_f32 {vr(AQ+2*i,2)}, {vr(AQ+2*i,2)}, s[50:51]")
    for i in range(8): a(f"v_cvt_pk_bf16_f32 v{QP+i}, v{AQ+2*i}, v{AQ+2*i+1}")
    a(f"""s_mov_b32 exec_lo, 0
    v_mov_b32 v{QP+6}, 0
    v_mov_b32 v{QP+7}, 0
    v_mov_b32 v{KP+6}, 0x3f803f80
    v_mov_b32 v{KP+7}, 0x00003f80
    s_mov_b32 exec_lo, 0x10000000
    s_mov_b32 exec_hi, 0x10000000""")
    for i in range(8): a(f"v_mov_b32 v{VP+i}, 0x3f803f80")
    a("s_mov_b64 exec, -1")
    a(f"{MF} {vr(AQ,16)}, {vr(KP,4)}, {vr(QP,4)}, 0")
    a(f"{MF} {vr(AQ,16)}, {vr(KP+4,4)}, {vr(QP+4,4)}, {vr(AQ,16)}")
    a(f"""s_lshl_b32 s52, s{H}, 6
    s_lshl_b32 s53, s{J}, 2
    s_add_u32 s52, s52, s53
    s_add_u32 s52, s52, s{W}
    s_lshl_b32 s53, s52, 12
    s_add_u32 s53, s53, {WS_KV}
    s_lshl_b32 s54, s52, 11
    buffer_store_dwordx4 {vr(KP,4)}, v15, s[16:19], s53 offen
    buffer_store_dwordx4 {vr(KP+4,4)}, v15, s[16:19], s53 offen offset:1024
    buffer_store_dwordx4 {vr(VP,4)}, v15, s[16:19], s53 offen offset:2048
    buffer_store_dwordx4 {vr(VP+4,4)}, v15, s[16:19], s53 offen offset:3072
    buffer_store_dwordx4 {vr(QP,4)}, v15, s[16:19], s54 offen
    """)
    max16(a, 24, AQ)
    cross_half_max(a, 24, 25)
    split_neg_max(a, 24, 25, 26, QP + 6, QP + 7)
    a(f"buffer_store_dwordx4 {vr(QP+4,4)}, v15, s[16:19], s54 offen offset:1024")
    a(f"""s_cmp_lg_u32 s{H}, 0
    s_cbranch_scc1 L1_end
    s_mov_b32 exec_lo, 0
    v_cvt_pk_bf16_f32 v24, v22, v23
    v_and_b32 v25, 0xffff0000, v24
    v_lshlrev_b32 v24, 16, v24
    ; key
    v_ashrrev_i32 v26, 31, v24
    v_or_b32 v26, 0x80000000, v26
    v_xor_b32 v26, v26, v24
    v_and_b32 v26, 0xffff0000, v26
    v_cmp_u_f32 vcc, v24, v24
    v_cndmask_b32 v26, v26, 0, vcc
    s_lshl_b32 s52, s{J}, 2
    s_add_u32 s52, s52, s{W}
    s_lshl_b32 s52, s52, 5
    v_add_u32 v27, s52, v3
    v_sub_u32 v28, 0xffff, v27
    v_or_b32 v26, v26, v28
    v_lshlrev_b32 v27, 2, v27
    v_mul_f32 v25, {NLOG2E:#x}, v25
    v_exp_f32 v25, v25
    v_add_f32 v25, 1.0, v25
    v_rcp_f32 v25, v25
    v_cvt_pk_bf16_f32 v25, v25, v25
    v_lshlrev_b32 v25, 16, v25
    s_mov_b32 s52, {WS_R}
    s_mov_b32 s53, {WS_G}
    buffer_store_dword v26, v27, s[16:19], s52 offen
    buffer_store_dword v25, v27, s[16:19], s53 offen
    L1_end:
    s_endpgm""")
    return a.l

K2_LDS = 65536
def wave_min_u32(a, v, full=True):
    for r in (1, 2, 4, 8):
        a(f"v_min_u32_dpp v{v}, v{v}, v{v} row_ror:{r} row_mask:0xf bank_mask:0xf")
    a(f"v_min_u32_dpp v{v}, v{v}, v{v} row_bcast:15 row_mask:0xa bank_mask:0xf")
    if full:
        a(f"v_min_u32_dpp v{v}, v{v}, v{v} row_bcast:31 row_mask:0xc bank_mask:0xf")

def k2():
    a = Asm()
    Q, O, KV, S, P = 8, 40, 104, 168, 200
    a("""s_cmp_ge_u32 s2, 256
    s_cbranch_scc1 L2_ffn
    s_load_dwordx2 s[4:5], s[0:1], 88
    v_lshrrev_b32 v2, 6, v0
    v_and_b32 v1, 63, v0
    s_and_b32 s36, s2, 7
    s_lshr_b32 s37, s2, 3
    v_readfirstlane_b32 s40, v2
    s_lshl_b32 s38, s36, 1
    s_and_b32 s34, s37, 1
    s_add_u32 s38, s38, s34
    s_lshr_b32 s39, s37, 1
    v_lshlrev_b32 v1, 4, v1
    """)
    H, J, W = 38, 39, 40
    for i in range(8): a(f"v_mov_b32 v{KV+48+8+i}, 0")
    for i in range(8): a(f"v_mov_b32 v{P+8+i}, 0")
    a(f"""s_lshl_b32 s41, s{H}, 2
    s_add_u32 s41, s41, s{W}
    s_lshl_b32 s41, s41, 16
    s_add_u32 s41, s41, {WS_KV}
    s_lshl_b32 s42, s{H}, 6
    s_lshl_b32 s43, s{J}, 2
    s_add_u32 s42, s42, s43
    s_waitcnt lgkmcnt(0)
    s_add_u32 s8, s4, s41
    s_addc_u32 s9, s5, 0
    s_mov_b32 s10, 65536
    s_mov_b32 s11, 0x20000
    """)
    srd(a, 12, 4, 1 << 28)
    def ldK(b, soff, off=0):
        return [f"buffer_load_dwordx4 {vr(KV+16*b,4)}, v1, s[8:11], {soff} offen",
                f"buffer_load_dwordx4 {vr(KV+16*b+4,4)}, v1, s[8:11], {soff} offen offset:1024"]
    def ldV(b, soff):
        return [f"buffer_load_dwordx4 {vr(KV+16*b+8,4)}, v1, s[8:11], {soff} offen offset:2048",
                f"buffer_load_dwordx4 {vr(KV+16*b+12,4)}, v1, s[8:11], {soff} offen offset:3072"]
    for x in ldK(0, 0): a(x)
    for i in range(4):
        a(f"""s_add_u32 s44, s{W}, {i}
        s_and_b32 s44, s44, 3
        s_add_u32 s44, s44, s42
        s_lshl_b32 s44, s44, 11
        buffer_load_dwordx4 {vr(Q+8*i,4)}, v1, s[12:15], s44 offen
        buffer_load_dwordx4 {vr(Q+8*i+4,4)}, v1, s[12:15], s44 offen offset:1024""")
    for x in ldV(0, 0): a(x)
    a("s_mov_b32 s45, 4096\ns_mov_b32 s46, 8192\ns_mov_b32 s47, 12288")
    for x in ldK(1, "s45") + ldV(1, "s45") + ldK(2, "s46") + ldV(2, "s46") + ldK(3, "s47"): a(x)
    for i in range(64): a(f"v_mov_b32 v{O+i}, 0")
    a("s_mov_b32 s48, 4\ns_waitcnt vmcnt(10)")
    def QK(u, m):
        kt, qs = (u >> 2) & 3, u & 3
        s = S + 16 * (u & 1)
        c = "0" if m == 0 else vr(s, 16)
        return f"{MF} {vr(s,16)}, {vr(KV+16*kt+4*m,4)}, {vr(Q+8*qs+4*m,4)}, {c}"
    def PV(u, m):
        kt, qs = (u >> 2) & 3, u & 3
        return f"{MF} {vr(O+16*qs,16)}, {vr(KV+16*kt+8+4*m,4)}, {vr(P+8*(u&1)+4*m,4)}, {vr(O+16*qs,16)}"
    a(QK(0, 0)); a(QK(0, 1))
    a("s_nop 7\ns_nop 3")
    a(".p2align 6")
    a.label("L2_loop")
    for u in range(16):
        kt, qs = u >> 2, u & 3
        s = S + 16 * (u & 1); p = P + 8 * (u & 1)
        e = lambda i: f"v_exp_f32 v{s+i}, v{s+i}"
        c = lambda i: f"v_cvt_pk_bf16_f32 v{p+i}, v{s+2*i}, v{s+2*i+1}"
        ex = [[], [], [], []]
        if qs == 1:
            l = ldV((kt + 3) & 3, "s47")
            ex[0] = [l[0]]; ex[1] = [l[1]]; ex[2] = ["s_add_u32 s47, s47, 4096"]
        if qs == 3:
            a("s_waitcnt vmcnt(8)")
            l = ldK(kt, "s47")
            ex[0] = [l[0]]; ex[1] = [l[1]]
        if u == 15:
            ex[2] = ["s_sub_u32 s48, s48, 1"]; ex[3] = ["s_cmp_lg_u32 s48, 0"]
        seq = [QK(u+1, 0), e(0)] + ex[0] + [e(1), e(2), e(3), c(0), e(4),
               PV(u-1, 0), e(5)] + ex[1] + [c(1), e(6), e(7), c(2), e(8),
               QK(u+1, 1), e(9)] + ex[2] + [c(3), e(10), e(11), c(4), e(12),
               PV(u-1, 1), e(13)] + ex[3] + [c(5), e(14), e(15), c(6), c(7)]
        for x in seq: a(x)
    a("s_cbranch_scc1 L2_loop")
    a(PV(15, 0)); a(PV(15, 1))
    for i in (1, 2, 3):
        a(f"""s_add_u32 s44, s{W}, {i}
        s_and_b32 s44, s44, 3
        s_mul_i32 s44, s44, 12288
        s_add_u32 s44, s44, {(i-1)*4096}
        v_add_u32 v{2+i}, s44, v1""")
    a(f"s_mul_i32 s44, s{W}, 12288\nv_add_u32 v2, s44, v1")
    for i in (1, 2, 3):
        for k in range(4):
            a(f"ds_write_b128 v{2+i}, {vr(O+16*i+4*k,4)} offset:{k*1024}")
    a("s_waitcnt vmcnt(0) lgkmcnt(0)\ns_barrier")
    T = KV
    for k in range(12):
        a(f"ds_read_b128 {vr(T+4*k,4)}, v2 offset:{k*1024}")
    for i in range(3):
        a(f"s_waitcnt lgkmcnt({8-4*i})")
        for k in range(8):
            a(f"v_pk_add_f32 {vr(O+2*k,2)}, {vr(O+2*k,2)}, {vr(T+16*i+2*k,2)}")
    a("s_mov_b32 s49, 0")
    a.label("L2_fin")
    a(f"""v_mov_b32 v3, v{O+12}
    v_mov_b32 v4, v{O+12}
    v_permlane32_swap_b32 v3, v4
    s_mov_b32 exec_lo, 0
    v_mov_b32 v{O+12}, 0
    v_mov_b32 v{O+13}, 0
    v_mov_b32 v{O+14}, 0
    v_mov_b32 v{O+15}, 0
    s_mov_b32 exec_lo, -1
    v_rcp_f32 v6, v4
    s_mov_b32 s50, 0x30800000
    s_mov_b32 s51, 0x4e800000
    v_cmp_nle_f32 s[52:53], s50, v4
    v_cmp_nge_f32 s[54:55], s51, v4
    """)
    for k in range(8):
        a(f"v_pk_mul_f32 {vr(O+2*k,2)}, {vr(O+2*k,2)}, v[6:7] op_sel_hi:[1,0]")
    a(f"v_pk_add_f32 v[4:5], {vr(O,2)}, {vr(O+2,2)}")
    for k in range(2, 8):
        a(f"v_pk_add_f32 v[4:5], v[4:5], {vr(O+2*k,2)}")
    a(f"""v_add_f32 v4, v4, v5
    s_movk_i32 s50, 0x207
    v_cmp_class_f32 vcc, v4, s50
    s_or_b64 s[52:53], s[52:53], s[54:55]
    s_or_b64 s[52:53], s[52:53], vcc
    s_cbranch_scc0 L2_store
    s_cmp_eq_u32 s49, 0
    s_cbranch_scc1 L2_slow
    L2_store:""")
    for k in range(8):
        a(f"v_cvt_pk_bf16_f32 v{P+k}, v{O+2*k}, v{O+2*k+1}")
    a(f"""s_lshl_b32 s44, s{J}, 2
    s_add_u32 s44, s44, s{W}
    s_lshl_b32 s44, s44, 4
    s_add_u32 s44, s44, s{H}
    s_lshl_b32 s44, s44, 11
    s_add_u32 s44, s44, {WS_O}
    buffer_store_dwordx4 {vr(P,4)}, v1, s[12:15], s44 offen
    buffer_store_dwordx4 {vr(P+4,4)}, v1, s[12:15], s44 offen offset:1024
    s_endpgm""")
    a.label("L2_slow")
    a(f"""s_mov_b32 s49, 1
    s_lshl_b32 s44, s{H}, 18
    s_add_u32 s44, s44, {WS_KV}
    s_add_u32 s45, s44, {64*4096}
    s_mov_b32 s46, s44
    s_mov_b32 exec_lo, 0
    v_mov_b32 v{Q+6}, 0
    v_mov_b32 v{Q+7}, 0
    s_mov_b32 exec_lo, -1
    v_mov_b32 v3, 0xff800000
    L2_slow1:
    buffer_load_dwordx4 {vr(KV,4)}, v1, s[12:15], s46 offen
    buffer_load_dwordx4 {vr(KV+4,4)}, v1, s[12:15], s46 offen offset:1024
    s_waitcnt vmcnt(0)
    {MF} {vr(S,16)}, {vr(KV,4)}, {vr(Q,4)}, 0
    {MF} {vr(S,16)}, {vr(KV+4,4)}, {vr(Q+4,4)}, {vr(S,16)}""")
    max16(a, 3, S, init=True)
    a("""s_add_u32 s46, s46, 4096
    s_cmp_lt_u32 s46, s45
    s_cbranch_scc1 L2_slow1""")
    cross_half_max(a, 3, 4)
    split_neg_max(a, 3, 4, 5, Q + 6, Q + 7)
    for i in range(16): a(f"v_mov_b32 v{O+i}, 0")
    a(f"""s_mov_b32 s46, s44
    L2_slow2:
    buffer_load_dwordx4 {vr(KV,4)}, v1, s[12:15], s46 offen
    buffer_load_dwordx4 {vr(KV+4,4)}, v1, s[12:15], s46 offen offset:1024
    buffer_load_dwordx4 {vr(KV+8,4)}, v1, s[12:15], s46 offen offset:2048
    buffer_load_dwordx4 {vr(KV+12,4)}, v1, s[12:15], s46 offen offset:3072
    s_waitcnt vmcnt(0)
    {MF} {vr(S,16)}, {vr(KV,4)}, {vr(Q,4)}, 0
    {MF} {vr(S,16)}, {vr(KV+4,4)}, {vr(Q+4,4)}, {vr(S,16)}""")
    for i in range(16): a(f"v_exp_f32 v{S+i}, v{S+i}")
    for i in range(8): a(f"v_cvt_pk_bf16_f32 v{P+i}, v{S+2*i}, v{S+2*i+1}")
    a(f"""{MF} {vr(O,16)}, {vr(KV+8,4)}, {vr(P,4)}, {vr(O,16)}
    {MF} {vr(O,16)}, {vr(KV+12,4)}, {vr(P+4,4)}, {vr(O,16)}
    s_nop 7
    s_nop 7
    s_add_u32 s46, s46, 4096
    s_cmp_lt_u32 s46, s45
    s_cbranch_scc1 L2_slow2
    s_branch L2_fin""")
    a.label("L2_ffn")
    GI, UI, SC = 0, 28672, 57344
    a(f"""s_sub_u32 s38, s2, 256
    s_cmp_ge_u32 s38, {NPART}
    s_cbranch_scc1 L2_end
    s_setprio 2
    s_load_dwordx2 s[4:5], s[0:1], 88
    s_load_dwordx4 s[24:27], s[0:1], 40
    s_load_dwordx2 s[28:29], s[0:1], 56
    s_load_dwordx2 s[30:31], s[0:1], 0
    v_lshrrev_b32 v2, 6, v0
    v_and_b32 v1, 63, v0
    v_readfirstlane_b32 s40, v2
    v_lshlrev_b32 v3, 5, v0
    v_lshrrev_b32 v4, 2, v1
    v_mul_u32_u24 v4, 3584, v4
    v_and_b32 v5, 3, v1
    v_lshl_add_u32 v4, v5, 4, v4
    v_lshlrev_b32 v5, 4, v0
    s_waitcnt lgkmcnt(0)""")
    srd(a, 12, 4, 1 << 28)
    srd(a, 8, 24, 448 * 3584)
    srd(a, 16, 26, 448 * 3584)
    srd(a, 20, 28, 1792 * 896)
    srd(a, 32, 30, 2048 * 896)
    KEY = 16
    a(f"""s_mov_b32 s44, {WS_R}
    buffer_load_dwordx4 {vr(KEY,4)}, v3, s[12:15], s44 offen
    buffer_load_dwordx4 {vr(KEY+4,4)}, v3, s[12:15], s44 offen offset:16
    s_mul_i32 s41, s40, {112*3584}
    s_lshl_b32 s42, s38, 6
    s_add_u32 s41, s41, s42
    s_mul_i32 s43, s40, {112*64}""")
    for i in range(7):
        a(f"""s_add_u32 m0, s43, {GI + i*1024}
        s_add_u32 s44, s41, {i*16*3584}
        buffer_load_dwordx4 v4, s[8:11], s44 offen lds
        s_add_u32 m0, s43, {UI + i*1024}
        s_nop 0
        buffer_load_dwordx4 v4, s[16:19], s44 offen lds""")
    WD = 100
    a(f"s_mul_i32 s44, s38, {32*896}")
    for i in range(7):
        a(f"buffer_load_dwordx4 {vr(WD+4*i,4)}, v5, s[20:23], s44 offen\ns_add_u32 s44, s44, 4096")
    a("s_waitcnt vmcnt(21)\ns_mov_b32 s50, -1")
    D = 24
    for n in range(8):
        for i in range(8): a(f"v_sub_u32 v{D+i}, s50, v{KEY+i}")
        a(f"""v_min3_u32 v{D}, v{D}, v{D+1}, v{D+2}
        v_min3_u32 v{D+3}, v{D+3}, v{D+4}, v{D+5}
        v_min3_u32 v{D}, v{D}, v{D+6}, v{D+7}
        v_min_u32 v{D}, v{D}, v{D+3}""")
        wave_min_u32(a, D)
        a(f"""v_readlane_b32 s51, v{D}, 63
        s_sub_u32 s51, s50, s51
        s_sub_u32 s50, s51, 1
        v_writelane_b32 v6, s51, {n}""")
    a(f"""s_lshl_b32 s44, s40, 5
    s_add_u32 s44, s44, {SC}
    v_lshl_add_u32 v7, v1, 2, s44
    s_mov_b64 exec, 0xff
    ds_write_b32 v7, v6
    s_mov_b64 exec, -1
    v_and_b32 v8, 31, v1
    v_lshlrev_b32 v7, 2, v8
    s_waitcnt lgkmcnt(0)
    s_barrier
    ds_read_b32 v{KEY}, v7 offset:{SC}
    s_mov_b32 s50, -1
    s_waitcnt lgkmcnt(0)""")
    for n in range(8):
        a(f"v_sub_u32 v{D}, s50, v{KEY}")
        wave_min_u32(a, D, full=False)
        a(f"""v_readlane_b32 s51, v{D}, 31
        s_sub_u32 s51, s50, s51
        s_sub_u32 s50, s51, 1
        v_writelane_b32 v6, s51, {n}""")
    a(f"""v_and_b32 v7, 7, v1
    v_lshlrev_b32 v7, 2, v7
    ds_bpermute_b32 v9, v7, v6
    s_or_b32 s44, s38, s40
    s_cmp_lg_u32 s44, 0
    s_cbranch_scc1 L2_nosel
    s_mov_b64 exec, 0xff
    s_mov_b32 s44, {WS_SEL}
    buffer_store_dword v6, v7, s[12:15], s44 offen
    s_mov_b64 exec, -1
    L2_nosel:
    v_lshrrev_b32 v10, 5, v1
    s_waitcnt lgkmcnt(0)
    v_and_b32 v9, 0xffff, v9
    v_sub_u32 v9, 0xffff, v9
    v_mul_u32_u24 v9, 896, v9
    v_lshl_add_u32 v9, v10, 4, v9
    s_mul_i32 s44, s40, 224""")
    XF = 32
    for s in range(7):
        a(f"buffer_load_dwordx4 {vr(XF+4*s,4)}, v9, s[32:35], s44 offen offset:{32*s}")
    a(f"""v_bfe_u32 v11, v1, 2, 2
    v_lshl_add_u32 v11, v10, 3, v11
    v_bfe_u32 v12, v1, 4, 1
    v_lshlrev_b32 v12, 5, v12
    v_and_b32 v13, 3, v1
    v_lshl_add_u32 v12, v13, 3, v12
    v_lshl_add_u32 v13, v11, 6, v12
    v_add_u32 v13, s43, v13
    v_mul_u32_u24 v14, 896, v11
    v_add_u32 v14, v14, v12
    s_waitcnt vmcnt(0)""")
    AG, AU, WF = 64, 80, 130
    for s in range(7):
        f = WF + 8 * s
        a(f"""ds_read_b64_tr_b16 {vr(f,2)}, v13 offset:{GI + s*1024}
        ds_read_b64_tr_b16 {vr(f+2,2)}, v13 offset:{GI + s*1024 + 256}
        ds_read_b64_tr_b16 {vr(f+4,2)}, v13 offset:{UI + s*1024}
        ds_read_b64_tr_b16 {vr(f+6,2)}, v13 offset:{UI + s*1024 + 256}""")
        if s >= 1:
            a("s_waitcnt lgkmcnt(4)")
            t = s - 1; g = WF + 8 * t
            a(f"{MF} {vr(AG,16)}, {vr(g,4)}, {vr(XF+4*t,4)}, {'0' if t==0 else vr(AG,16)}")
            a(f"{MF} {vr(AU,16)}, {vr(g+4,4)}, {vr(XF+4*t,4)}, {'0' if t==0 else vr(AU,16)}")
    a("s_waitcnt lgkmcnt(0)")
    t = 6; g = WF + 8 * t
    a(f"{MF} {vr(AG,16)}, {vr(g,4)}, {vr(XF+4*t,4)}, {vr(AG,16)}")
    a(f"{MF} {vr(AU,16)}, {vr(g+4,4)}, {vr(XF+4*t,4)}, {vr(AU,16)}")
    a(f"""s_barrier
    s_lshl_b32 s44, s40, 11
    s_add_u32 s44, s44, {SC}
    v_lshlrev_b32 v15, 7, v8
    v_lshl_add_u32 v15, v10, 4, v15
    v_add_u32 v15, s44, v15
    s_mov_b32 exec_lo, 0xff
    s_mov_b32 exec_hi, 0xff""")
    for k in range(4):
        a(f"ds_write_b128 v15, {vr(AG+4*k,4)} offset:{32*k}")
        a(f"ds_write_b128 v15, {vr(AU+4*k,4)} offset:{1024+32*k}")
    a("s_mov_b64 exec, -1")
    for i in range(7):
        a(f"ds_write_b128 v5, {vr(WD+4*i,4)} offset:{4096*i}")
    a(f"""v_lshlrev_b32 v15, 2, v0
    s_waitcnt lgkmcnt(0)
    s_barrier""")
    for k in range(8):
        a(f"ds_read_b32 v{16+k}, v15 offset:{SC + 1024*k}")
    HB = UI
    a(f"""s_waitcnt lgkmcnt(0)
    v_add_f32 v16, v16, v18
    v_add_f32 v17, v17, v19
    v_add_f32 v20, v20, v22
    v_add_f32 v21, v21, v23
    v_add_f32 v16, v16, v20
    v_add_f32 v17, v17, v21
    v_cvt_pk_bf16_f32 v16, v16, v17
    v_and_b32 v17, 0xffff0000, v16
    v_lshlrev_b32 v16, 16, v16
    v_mul_f32 v18, {NLOG2E:#x}, v16
    v_exp_f32 v18, v18
    v_add_f32 v18, 1.0, v18
    v_rcp_f32 v18, v18
    v_mul_f32 v16, v16, v18
    v_cvt_pk_bf16_f32 v16, v16, v16
    v_lshlrev_b32 v16, 16, v16
    v_mul_f32 v16, v16, v17
    v_cvt_pk_bf16_f32 v16, v16, v16
    v_lshlrev_b32 v15, 1, v0
    ds_write_b16 v15, v16 offset:{HB}
    v_and_b32 v15, 7, v1
    v_lshlrev_b32 v15, 6, v15
    v_lshl_add_u32 v15, v10, 4, v15
    s_lshl_b32 s44, s40, 6
    v_add_u32 v14, s44, v14
    s_waitcnt lgkmcnt(0)
    s_barrier
    ds_read_b128 v[16:19], v15 offset:{HB}
    ds_read_b128 v[20:23], v15 offset:{HB+32}
    v_mul_u32_u24 v24, {4*1792}, v10
    v_lshl_add_u32 v24, v8, 2, v24
    v_add_u32 v25, {2*1792}, v24
    s_mul_i32 s45, s38, 14336
    s_lshl_b32 s44, s40, 7
    s_add_u32 s45, s45, s44
    s_add_u32 s45, s45, {WS_YP}""")
    for n in range(4):
        if n == 3:
            a("s_cmp_ge_u32 s40, 2\ns_cbranch_scc1 L2_end")
        f = WF + 8 * n; acc = 32 + 16 * n
        for m in range(2):
            a(f"ds_read_b64_tr_b16 {vr(f+4*m,2)}, v14 offset:{n*256 + m*16*896}")
            a(f"ds_read_b64_tr_b16 {vr(f+4*m+2,2)}, v14 offset:{n*256 + m*16*896 + 4*896}")
        a(f"""s_waitcnt lgkmcnt(0)
        {MF} {vr(acc,16)}, v[16:19], {vr(f,4)}, 0
        {MF} {vr(acc,16)}, v[20:23], {vr(f+4,4)}, {vr(acc,16)}
        buffer_store_dword v{acc}, v24, s[12:15], s45 offen offset:{n*512}
        buffer_store_dword v{acc+1}, v24, s[12:15], s45 offen offset:{n*512+1792}
        buffer_store_dword v{acc+2}, v25, s[12:15], s45 offen offset:{n*512}
        buffer_store_dword v{acc+3}, v25, s[12:15], s45 offen offset:{n*512+1792}""")
    a("L2_end:\ns_endpgm")
    return a.l

K3_LDS = 60 * 1024 + 1024
def k3():
    a = Asm()
    a("""s_cmp_ge_u32 s2, 224
    s_cbranch_scc1 L3_end
    s_load_dwordx2 s[4:5], s[0:1], 88
    s_load_dwordx2 s[6:7], s[0:1], 16
    s_load_dwordx2 s[28:29], s[0:1], 0
    s_load_dwordx2 s[30:31], s[0:1], 72
    v_lshrrev_b32 v2, 6, v0
    v_and_b32 v1, 63, v0
    s_and_b32 s36, s2, 7
    s_lshr_b32 s37, s2, 3
    v_readfirstlane_b32 s40, v2
    s_mul_i32 s38, s37, 37
    s_lshr_b32 s38, s38, 8
    s_mul_i32 s39, s38, 7
    s_sub_u32 s39, s37, s39
    s_lshl_b32 s36, s36, 2
    s_add_u32 s38, s38, s36
    v_lshlrev_b32 v3, 4, v1
    v_lshrrev_b32 v4, 3, v1
    v_mul_u32_u24 v5, 896, v4
    v_and_b32 v4, 2, v4
    v_lshlrev_b32 v4, 1, v4
    v_and_b32 v6, 7, v1
    v_xor_b32 v4, v4, v6
    v_lshl_add_u32 v4, v4, 4, v5
    s_mov_b32 s44, """ + f"{WS_SEL}" + """
    s_waitcnt lgkmcnt(0)
    s_load_dwordx8 s[56:63], s[4:5], s44
    """)
    srd(a, 12, 4, 1 << 28)
    srd(a, 8, 6, 448 * 896)
    srd(a, 16, 28, 2048 * 896)
    srd(a, 20, 30, 2048 * 896)
    a(f"""s_mul_i32 s41, s40, {15*8*896}
    s_lshl_b32 s42, s39, 7
    s_add_u32 s41, s41, s42
    s_mul_i32 s43, s40, {15*1024}""")
    for i in range(15):
        a(f"""s_add_u32 m0, s43, {i*1024}
        s_add_u32 s44, s41, {i*8*896}
        buffer_load_dwordx4 v4, s[8:11], s44 offen lds""")
    OF = 64
    a(f"""s_lshr_b32 s45, s40, 1
    s_lshl_b32 s46, s38, 1
    s_add_u32 s46, s46, s45
    s_lshl_b32 s44, s46, 15
    s_add_u32 s44, s44, {WS_O}""")
    for k in range(32):
        a(f"buffer_load_dwordx4 {vr(OF+4*k,4)}, v3, s[12:15], s44 offen offset:{(k&3)*1024}")
        if (k & 3) == 3 and k < 31: a("s_add_u32 s44, s44, 4096")
    a(f"""v_and_b32 v8, 31, v1
    v_lshrrev_b32 v10, 5, v1
    s_lshl_b32 s47, s46, 5
    v_add_u32 v9, s47, v8
    v_mul_u32_u24 v11, 896, v9
    v_lshl_add_u32 v11, v10, 3, v11
    s_and_b32 s48, s40, 1
    s_lshl_b32 s48, s48, 6
    s_add_u32 s48, s48, s42
    v_lshlrev_b32 v9, 2, v9
    s_mov_b32 s44, {WS_G}
    buffer_load_dword v12, v9, s[12:15], s44 offen""")
    X = 16
    for k in range(4):
        a(f"buffer_load_dwordx2 {vr(X+2*k,2)}, v11, s[16:19], s48 offen offset:{16*k}")
    a(f"""v_bfe_u32 v13, v1, 2, 2
    v_lshl_add_u32 v14, v10, 2, v13
    v_lshlrev_b32 v14, 7, v14
    v_lshrrev_b32 v13, 1, v13
    v_xor_b32 v13, s40, v13
    v_and_b32 v13, 1, v13
    v_lshl_add_u32 v14, v13, 6, v14
    v_bfe_u32 v13, v1, 4, 1
    v_lshl_add_u32 v14, v13, 5, v14
    v_and_b32 v13, 3, v1
    v_lshl_add_u32 v14, v13, 3, v14
    s_waitcnt vmcnt(37) lgkmcnt(0)
    s_barrier""")
    ACC, WF = 32, 192
    def rd(k):
        h, m = k >> 1, k & 1
        f = WF + 4 * (k & 7)
        o = (28 * h + 16 * m) * 128
        a(f"ds_read_b64_tr_b16 {vr(f,2)}, v14 offset:{o}\nds_read_b64_tr_b16 {vr(f+2,2)}, v14 offset:{o+1024}")
    for k in range(6): rd(k)
    for k in range(32):
        nxt = k + 6
        if nxt < 32: rd(nxt)
        pend = min(31, nxt) - k
        a(f"s_waitcnt vmcnt({36-k}) lgkmcnt({2*pend})")
        a(f"{MF} {vr(ACC,16)}, {vr(WF+4*(k&7),4)}, {vr(OF+4*k,4)}, {'0' if k==0 else vr(ACC,16)}")
    B = 48
    a("s_waitcnt vmcnt(0)")
    for k in range(8):
        a(f"v_lshlrev_b32 v{B+2*k}, 16, v{X+k}\nv_and_b32 v{B+2*k+1}, 0xffff0000, v{X+k}")
    SCR = 60 * 1024
    a(f"""s_mov_b32 s50, 0
    L3_sel:
    s_mov_b32 m0, s50
    s_nop 0
    s_movrels_b32 s51, s56
    s_and_b32 s52, s51, 0xffff
    s_sub_u32 s52, 0xffff, s52
    s_lshr_b32 s53, s52, 5
    s_cmp_lg_u32 s53, s46
    s_cbranch_scc1 L3_next
    v_lshrrev_b32 v24, 3, v1
    v_mul_u32_u24 v24, {7*14336}, v24
    v_and_b32 v25, 7, v1
    v_lshl_add_u32 v24, v25, 4, v24
    s_mul_i32 s53, s50, 1792
    s_lshl_b32 s54, s48, 1
    s_add_u32 s53, s53, s54
    s_add_u32 s53, s53, {WS_YP}""")
    Y = 64
    for i in range(7):
        a(f"buffer_load_dwordx4 {vr(Y+4*i,4)}, v24, s[12:15], s53 offen\ns_add_u32 s53, s53, 14336")
    a(f"""s_lshl_b32 s53, s40, 8
    s_add_u32 s53, s53, {SCR}
    v_lshl_add_u32 v26, v25, 4, s53
    v_lshl_add_u32 v27, v10, 4, s53
    ; rsel
    s_lshr_b32 s54, s51, 16
    s_not_b32 s55, s54
    s_and_b32 s53, s54, 0x7fff
    s_bitcmp1_b32 s54, 15
    s_cselect_b32 s54, s53, s55
    s_lshl_b32 s54, s54, 16
    v_mov_b32 v28, {NLOG2E:#x}
    v_mul_f32 v28, s54, v28
    v_exp_f32 v28, v28
    v_add_f32 v28, 1.0, v28
    v_rcp_f32 v28, v28
    v_cvt_pk_bf16_f32 v28, v28, v28
    v_lshlrev_b32 v28, 16, v28
    s_waitcnt vmcnt(0)""")
    for i in range(1, 7):
        a(f"v_pk_add_f32 {vr(Y,2)}, {vr(Y,2)}, {vr(Y+4*i,2)}\nv_pk_add_f32 {vr(Y+2,2)}, {vr(Y+2,2)}, {vr(Y+4*i+2,2)}")
    for k in range(4):
        a(f"v_add_f32_dpp v{Y+k}, v{Y+k}, v{Y+k} row_ror:8 row_mask:0xf bank_mask:0xf")
    for k in range(4):
        a(f"v_mov_b32 v{Y+4+k}, v{Y+k}")
    for k in range(4):
        a(f"v_permlane16_swap_b32 v{Y+k}, v{Y+4+k}")
    for k in range(4):
        a(f"v_add_f32 v{Y+k}, v{Y+k}, v{Y+4+k}\nv_mov_b32 v{Y+4+k}, v{Y+k}")
    for k in range(4):
        a(f"v_permlane32_swap_b32 v{Y+k}, v{Y+4+k}")
    for k in range(4):
        a(f"v_add_f32 v{Y+k}, v{Y+k}, v{Y+4+k}")
    for k in range(0, 4, 2):
        a(f"""v_cvt_pk_bf16_f32 v{Y+k}, v{Y+k}, v{Y+k+1}
        v_and_b32 v{Y+k+1}, 0xffff0000, v{Y+k}
        v_lshlrev_b32 v{Y+k}, 16, v{Y+k}
        v_mul_f32 v{Y+k}, v{Y+k}, v28
        v_mul_f32 v{Y+k+1}, v{Y+k+1}, v28
        v_cvt_pk_bf16_f32 v{Y+k}, v{Y+k}, v{Y+k+1}
        v_and_b32 v{Y+k+1}, 0xffff0000, v{Y+k}
        v_lshlrev_b32 v{Y+k}, 16, v{Y+k}""")
    a(f"""s_mov_b64 exec, 0xff
    ds_write_b128 v26, {vr(Y,4)}
    s_mov_b64 exec, -1
    s_waitcnt lgkmcnt(0)""")
    for k in range(4):
        a(f"ds_read_b128 {vr(Y+8+4*k,4)}, v27 offset:{32*k}")
    a(f"""s_and_b32 s52, s52, 31
    v_cmp_eq_u32 vcc, s52, v8
    s_waitcnt lgkmcnt(0)
    s_mov_b64 exec, vcc""")
    for k in range(8):
        a(f"""v_pk_add_f32 {vr(B+2*k,2)}, {vr(B+2*k,2)}, {vr(Y+8+2*k,2)}
        v_cvt_pk_bf16_f32 v{B+2*k}, v{B+2*k}, v{B+2*k+1}
        v_and_b32 v{B+2*k+1}, 0xffff0000, v{B+2*k}
        v_lshlrev_b32 v{B+2*k}, 16, v{B+2*k}""")
    a(f"""s_mov_b64 exec, -1
    L3_next:
    s_add_u32 s50, s50, 1
    s_cmp_lt_u32 s50, 8
    s_cbranch_scc1 L3_sel
    v_sub_f32 v14, 1.0, v12
    v_cvt_pk_bf16_f32 v14, v14, v14
    v_lshlrev_b32 v14, 16, v14""")
    for k in range(8):
        a(f"v_pk_mul_f32 {vr(B+2*k,2)}, {vr(B+2*k,2)}, v[14:15] op_sel_hi:[1,0]")
    for k in range(8):
        a(f"v_pk_fma_f32 {vr(B+2*k,2)}, {vr(ACC+2*k,2)}, v[12:13], {vr(B+2*k,2)} op_sel_hi:[1,0,1]")
    for k in range(8):
        a(f"v_cvt_pk_bf16_f32 v{X+k}, v{B+2*k}, v{B+2*k+1}")
    for k in range(4):
        a(f"buffer_store_dwordx2 {vr(X+2*k,2)}, v11, s[20:23], s48 offen offset:{16*k}")
    a("L3_end:\ns_endpgm")
    return a.l

def main(out):
    hdr = open("cdna_kernels/" + NAME + ".s.ref").read().split("; Override")[0]
    rep = []
    t = hdr
    t += f"; @launch kernel=qkv_kernel grid=(256,1,1) block=(256,1,1) lds={K1_LDS}\n"
    t += f"; @launch kernel=attn_kernel grid=({256+NPART},1,1) block=(256,1,1) lds={K2_LDS}\n"
    t += f"; @launch kernel=oproj_kernel grid=(224,1,1) block=(256,1,1) lds={K3_LDS}\n"
    t += '.amdgcn_target "amdgcn-amd-amdhsa--gfx950"\n'
    t += kernel_text("qkv_kernel", k1(), 176, report=rep)
    t += kernel_text("attn_kernel", k2(), 216, report=rep)
    t += kernel_text("oproj_kernel", k3(), 224, report=rep)
    open(out, "w").write(t)
    if "-v" in sys.argv:
        print("\n".join(rep))

if __name__ == "__main__":
    main(sys.argv[1])
```

```python
import sys, math, struct
from asmlib import *

NAME = "gated_mix__softmax_full_mha__moe_arch_mod__prompt"
STAMP = "-s" in sys.argv
WS_KV = 0
WS_O = 4 << 20
WS_R = 6 << 20
WS_G = WS_R + 8192
WS_SEL = WS_R + 16384
WS_FL = WS_R + 32768
WS_OFL = WS_FL + 4096
WS_YFL = WS_OFL + 4096
WS_SELF = WS_YFL + 1024
WS_EP = WS_R + 65536
WS_YP = 7 << 20
WS_ST = 16 << 20
NPART = 56
XS = 0; WT = 65536; WQ = 122880; QX = 151552; UPD = 159744; CNT = 163840 - 64
WO = 0; CB = 102400
LDS_BYTES = 163840
C_Q1, C_Q2, C_X, C_L, C_S = 0, 4, 8, 12, 16
UPDI = UPD + 3584

def f32bits(x): return struct.unpack("<I", struct.pack("<f", x))[0]
QSCALE = f32bits(28 ** -0.5 * math.log2(math.e))
NLOG2E = f32bits(-math.log2(math.e))
MF = "v_mfma_f32_32x32x16_bf16"
ROLE = [0, 1, 2, 3, 14, 4, 5, 6, 7, 8, 9, 15, 10, 11, 12, 13]
ROLE_LO = sum(ROLE[i] << (4 * i) for i in range(8))
ROLE_HI = sum(ROLE[8 + i] << (4 * i) for i in range(8))
SPIN_LIMIT = 1 << 20

T, H, J, W, RL = 30, 31, 32, 33, 34
_uid = [0]
def uid(p):
    _uid[0] += 1
    return f"{p}_{_uid[0]}"

def srd(a, d, ptr, nbytes):
    a(f"s_mov_b32 s{d}, s{ptr}\ns_mov_b32 s{d+1}, s{ptr+1}\ns_mov_b32 s{d+2}, {nbytes:#x}\ns_mov_b32 s{d+3}, 0x20000")

NST = 12
def st(a, i):
    if STAMP: a(f"s_memtime s[{72+2*i}:{73+2*i}]")
def st_begin(a):
    if STAMP:
        a("s_memrealtime s[68:69]\ns_memtime s[72:73]")
        for i in range(1, NST): a(f"s_mov_b32 s{72+2*i}, 0")
def st_end(a):
    if not STAMP: return
    a(f"""s_waitcnt vmcnt(0)
    s_memrealtime s[70:71]
    s_memtime s[{72+2*NST}:{73+2*NST}]
    s_getreg_b32 s66, hwreg(HW_REG_HW_ID)
    s_getreg_b32 s67, hwreg(HW_REG_XCC_ID)
    s_mov_b64 exec, -1
    s_lshl_b32 s65, s2, 3
    s_add_u32 s65, s65, s{W}
    s_lshl_b32 s65, s65, 6
    s_add_u32 s65, s65, {WS_ST}
    s_waitcnt lgkmcnt(0)
    v_mov_b32 v4, s68
    v_mov_b32 v5, s70
    v_mov_b32 v6, s66
    v_mov_b32 v7, s67""")
    for i in range(1, NST + 1):
        a(f"s_sub_u32 s64, s{72+2*i}, s72\nv_mov_b32 v{7+i}, s64")
    a("""v_mov_b32 v2, 0
    s_mov_b64 exec, 1""")
    for k in range(4):
        a(f"buffer_store_dwordx4 v[{4+4*k}:{7+4*k}], v2, s[8:11], s65 offen offset:{16*k}")

def poll_global(a, vdst, voff, soff, mask=None, sleep=1):
    l = uid("Lpoll"); d = uid("Lpd")
    a(f"s_mov_b32 s60, {SPIN_LIMIT}")
    if mask is not None: a(f"s_mov_b64 exec, {mask}")
    a(f"""{l}:
    buffer_load_dword v{vdst}, v{voff}, s[8:11], {soff} offen sc1
    s_waitcnt vmcnt(0)
    v_cmp_ne_u32 vcc, s{T}, v{vdst}
    s_cbranch_vccz {d}
    s_sleep {sleep}
    s_sub_u32 s60, s60, 1
    s_cbranch_scc0 {l}
    s_endpgm
    {d}:""")
    if mask is not None: a("s_mov_b64 exec, -1")

def spin_lds(a, vaddr, off, want, vt, sleep=0):
    l = uid("Lsp"); d = uid("Lsd")
    a(f"""s_mov_b32 s60, {SPIN_LIMIT}
    {l}:
    ds_read_b32 v{vt}, v{vaddr} offset:{off}
    s_waitcnt lgkmcnt(0)
    v_readfirstlane_b32 s61, v{vt}
    s_cmp_ge_u32 s61, {want}
    s_cbranch_scc1 {d}""")
    if sleep: a(f"s_sleep {sleep}")
    a(f"""s_sub_u32 s60, s60, 1
    s_cbranch_scc0 {l}
    s_endpgm
    {d}:""")

def lds_inc(a, vaddr, off, vone):
    a(f"s_mov_b64 exec, 1\nds_add_u32 v{vaddr}, v{vone} offset:{off}\ns_mov_b64 exec, -1")

def flag_store(a, vt, vz, soff):
    a(f"v_mov_b32 v{vt}, s{T}\ns_mov_b64 exec, 1\nbuffer_store_dword v{vt}, v{vz}, s[8:11], {soff} offen sc1\ns_mov_b64 exec, -1")

def split_neg_max(a, m, t0, t1, q6, q7):
    a(f"""v_sub_f32 v{m}, 0, v{m}
    v_cvt_pk_bf16_f32 v{t0}, v{m}, v{m}
    v_lshlrev_b32 v{t0}, 16, v{t0}
    v_sub_f32 v{t0}, v{m}, v{t0}
    v_cvt_pk_bf16_f32 v{t1}, v{m}, v{t0}
    v_and_b32 v{m}, 0xffff0000, v{t1}
    v_sub_f32 v{t0}, v{t0}, v{m}
    s_mov_b32 exec_lo, 0
    v_mov_b32 v{q6}, v{t1}
    v_cvt_pk_bf16_f32 v{q7}, v{t0}, 0
    s_mov_b32 exec_lo, -1""")

def max16(a, dst, S, init=False):
    if not init:
        a(f"v_max3_f32 v{dst}, v{S}, v{S+1}, v{S+2}")
        for i in range(3, 15, 2): a(f"v_max3_f32 v{dst}, v{dst}, v{S+i}, v{S+i+1}")
        a(f"v_max_f32 v{dst}, v{dst}, v{S+15}")
    else:
        for i in range(0, 16, 2): a(f"v_max3_f32 v{dst}, v{dst}, v{S+i}, v{S+i+1}")

def wave_min_u32(a, v, full=True):
    for r in (1, 2, 4, 8):
        a(f"v_min_u32_dpp v{v}, v{v}, v{v} row_ror:{r} row_mask:0xf bank_mask:0xf")
    a(f"v_min_u32_dpp v{v}, v{v}, v{v} row_bcast:15 row_mask:0xa bank_mask:0xf")
    if full: a(f"v_min_u32_dpp v{v}, v{v}, v{v} row_bcast:31 row_mask:0xc bank_mask:0xf")

Q, O, KV, S, P = 8, 40, 104, 168, 200
XF = 104; A0, A1, WF = 40, 56, 72
VX = 216
VW = 220
VQ = 222
VC = 223
V1 = 224
VZ = 225
VT = 226
VH = 227
VA = 228
TMP = 236

def prologue(a):
    st_begin(a)
    a(f"""s_cmp_ge_u32 s2, 256
    s_cbranch_scc1 L_exit
    s_load_dwordx4 s[4:7], s[0:1], 0
    s_load_dwordx2 s[36:37], s[0:1], 88
    s_load_dwordx2 s[38:39], s[0:1], 16
    s_load_dwordx8 s[40:47], s[0:1], 32
    s_load_dwordx4 s[48:51], s[0:1], 64
    v_lshrrev_b32 v2, 6, v0
    v_and_b32 v3, 63, v0
    s_and_b32 s24, s2, 7
    s_lshr_b32 s25, s2, 3
    v_readfirstlane_b32 s{W}, v2
    s_and_b32 s{H}, s24, 1
    s_lshl_b32 s{H}, s{H}, 3
    s_and_b32 s26, s25, 7
    s_add_u32 s{H}, s{H}, s26
    s_lshr_b32 s{J}, s24, 1
    s_lshl_b32 s{J}, s{J}, 2
    s_lshr_b32 s27, s25, 3
    s_add_u32 s{J}, s{J}, s27
    s_mov_b32 s28, {ROLE_LO:#x}
    s_mov_b32 s29, {ROLE_HI:#x}
    s_lshl_b32 s27, s{H}, 2
    s_lshr_b64 s[28:29], s[28:29], s27
    s_and_b32 s{RL}, s28, 15
    v_lshlrev_b32 v1, 4, v3
    s_mov_b32 s27, {WS_EP}
    s_cmp_ge_u32 s{W}, 4
    s_cbranch_scc1 L_service
    """)

def tag(a):
    a(f"s_mul_i32 s{T}, s{T}, 0x9e3779b1\ns_add_u32 s{T}, s{T}, 0x7f4a7c15")

def main_wave(a):
    a(f"""s_setprio 1
    v_and_b32 v{VT}, 31, v3
    v_lshrrev_b32 v{VH}, 5, v3
    v_mov_b32 v{V1}, 1
    v_mov_b32 v{VZ}, 0
    v_mov_b32 v{VC}, {CNT}
    v_lshrrev_b32 v5, 1, v{VT}
    v_and_b32 v5, 7, v5
    v_xor_b32 v5, v5, v{VH}
    v_lshlrev_b32 v5, 4, v5
    v_lshl_add_u32 v5, v{VT}, 7, v5
    s_lshl_b32 s26, s{W}, 12
    v_add_u32 v{VX}, s26, v5
    v_xor_b32 v{VX+1}, 32, v{VX}
    v_xor_b32 v{VX+2}, 64, v{VX}
    v_xor_b32 v{VX+3}, 96, v{VX}
    v_bfe_u32 v4, v3, 2, 2
    v_lshl_add_u32 v5, v{VH}, 3, v4
    v_and_b32 v6, 3, v3
    v_and_b32 v7, 1, v3
    v_bfe_u32 v8, v3, 1, 1
    v_lshl_add_u32 v7, v7, 1, v8
    v_bfe_u32 v8, v3, 4, 1
    v_lshl_add_u32 v9, v8, 2, v7
    v_lshl_add_u32 v10, v8, 2, v6
    s_cmp_lt_u32 s{RL}, 7
    s_cselect_b64 vcc, -1, 0
    v_cndmask_b32 v10, v10, v9, vcc
    v_lshlrev_b32 v11, 7, v5
    v_lshl_add_u32 v11, v10, 3, v11
    v_lshrrev_b32 v4, 1, v4
    v_lshl_add_u32 v11, v4, 6, v11
    v_add_u32 v{VW}, {WT}, v11
    v_xor_b32 v{VW+1}, 64, v{VW}
    v_add_u32 v10, 2, v9
    v_sub_u32 v11, 7, v9
    v_cmp_gt_u32 vcc, 6, v9
    v_cndmask_b32 v10, v11, v10, vcc
    s_bitcmp1_b32 s{H}, 0
    s_cselect_b64 vcc, -1, 0
    v_cndmask_b32 v10, v9, v10, vcc
    v_lshlrev_b32 v11, 6, v5
    v_lshl_add_u32 v11, v10, 3, v11
    v_add_u32 v{VQ}, {WQ}, v11
    s_waitcnt lgkmcnt(0)
    s_load_dword s{T}, s[36:37], s27
    """)
    srd(a, 8, 36, 1 << 28)
    a(f"""s_lshl_b32 s35, s{J}, 2
    s_add_u32 s35, s35, s{W}
    s_lshl_b32 s52, s35, 12
    s_cmp_ge_u32 s{RL}, 14
    s_cbranch_scc1 L_roleR
    s_cmp_ge_u32 s{RL}, 7
    s_cbranch_scc1 L_roleV""")

    def gemm(kind):
        def reads(c, s):
            k = 4 * c + s
            a(f"ds_read_b128 {vr(XF+4*k,4)}, v{VX+s} offset:{(c&3)*16384}")
            f = WF + 8 * s
            if kind == "R":
                a(f"ds_read_b128 {vr(f,4)}, v{VW} offset:{k*32}")
            else:
                for n in range(2):
                    a(f"ds_read_b64_tr_b16 {vr(f+4*n,2)}, v{VW+n} offset:{k*2048}")
                    a(f"ds_read_b64_tr_b16 {vr(f+4*n+2,2)}, v{VW+n} offset:{k*2048+512}")
        def mfmas(c, s):
            k = 4 * c + s
            f = WF + 8 * s
            for n in range(1 if kind == "R" else 2):
                acc = (A0, A1)[n]
                cc = "0" if k == 0 else vr(acc, 16)
                if kind == "V": a(f"{MF} {vr(acc,16)}, {vr(XF+4*k,4)}, {vr(f+4*n,4)}, {cc}")
                else:           a(f"{MF} {vr(acc,16)}, {vr(f+4*n,4)}, {vr(XF+4*k,4)}, {cc}")
        per = 2 if kind == "R" else 5
        for c in range(7):
            a("s_barrier")
            if c == 0: st(a, 1)
            if c == 6: st(a, 2)
            if STAMP and c in (0, 6): a("s_waitcnt lgkmcnt(0)")
            reads(c, 0); reads(c, 1)
            for s in range(4):
                if s < 2: reads(c, s + 2)
                left = min(3 - s, 2) * per
                a(f"s_waitcnt lgkmcnt({left})")
                if s == 3 and c == 6: a("s_barrier")
                mfmas(c, s)

    PK = 8
    for i in range(4):
        a(f"""s_lshl_b32 s26, s{RL}, 3
        s_add_u32 s26, s26, {2*i}
        v_add_u32 v4, s26, v{VH}
        v_mul_u32_u24 v5, 37, v4
        v_lshrrev_b32 v5, 8, v5
        v_mul_u32_u24 v6, 7, v5
        v_sub_u32 v6, v4, v6
        v_lshrrev_b32 v7, 2, v6
        v_lshl_add_u32 v5, v5, 1, v7
        v_cmp_eq_u32 s[{54+2*i}:{55+2*i}], 3, v6
        v_and_b32 v6, 3, v6
        v_lshlrev_b32 v5, 18, v5
        v_lshl_add_u32 v5, v6, 9, v5
        v_lshl_add_u32 v{VA+i}, v{VT}, 4, v5""")
    a("s_waitcnt lgkmcnt(0)")
    tag(a)
    gemm("K")
    a(f"v_mov_b32 v{TMP+2}, 0x3f803f80\nv_mov_b32 v{TMP+3}, 0x3f803f80\ns_add_u32 s53, s52, {1<<18}")
    for i in range(4):
        acc = (A0, A1)[i >> 1] + 8 * (i & 1)
        p = PK + 4 * i
        for e in range(4): a(f"v_cvt_pk_bf16_f32 v{p+e}, v{acc+2*e}, v{acc+2*e+1}")
        l = uid("Lnosh")
        a(f"""s_mov_b64 exec, s[{54+2*i}:{55+2*i}]
        s_cbranch_execz {l}
        v_mov_b32 v{TMP}, v{p+2}
        v_mov_b32 v{TMP+1}, v{p+3}
        v_mov_b32 v{p+2}, 0x3f803f80
        v_mov_b32 v{p+3}, 0x3f803f80
        buffer_store_dwordx4 {vr(TMP,4)}, v{VA+i}, s[8:11], s53 offen sc1
        s_nop 1
        {l}:
        s_mov_b64 exec, -1
        buffer_store_dwordx4 {vr(p,4)}, v{VA+i}, s[8:11], s52 offen sc1""")
    a("s_branch L_pub")
    a.label("L_roleV")
    for n in range(2):
        a(f"""s_lshl_b32 s26, s{RL}, 6
        s_sub_u32 s26, s26, {7*64 - 32*n}
        v_add_u32 v4, s26, v{VT}
        v_mul_u32_u24 v5, 2341, v4
        v_lshrrev_b32 v5, 16, v5
        v_mul_u32_u24 v6, 28, v5
        v_sub_u32 v6, v4, v6
        v_cmp_le_u32 s[{54+2*n}:{55+2*n}], 24, v6
        v_cmp_eq_u32 vcc, 24, v6
        v_mov_b32 v7, 0x3f803f80
        v_cndmask_b32 v{TMP+4*n}, 0, v7, vcc
        v_lshlrev_b32 v5, 18, v5
        v_lshl_add_u32 v5, v6, 4, v5
        v_lshl_add_u32 v{VA+n}, v{VH}, 9, v5""")
        for e in range(1, 4): a(f"v_mov_b32 v{TMP+4*n+e}, v{TMP+4*n}")
    for n in range(2):
        l = uid("Lnop")
        a(f"""s_mov_b64 exec, s[{54+2*n}:{55+2*n}]
        s_cbranch_execz {l}
        buffer_store_dwordx4 {vr(TMP+4*n,4)}, v{VA+n}, s[8:11], s52 offen offset:{2048+64} sc1
        buffer_store_dwordx4 {vr(TMP+4*n,4)}, v{VA+n}, s[8:11], s52 offen offset:{3072+64} sc1
        {l}:
        s_mov_b64 exec, -1""")
    a("s_waitcnt lgkmcnt(0)")
    tag(a)
    gemm("V")
    for i in range(4):
        acc = (A0, A1)[i >> 1] + 8 * (i & 1)
        p = PK + 4 * i
        for e in range(4): a(f"v_cvt_pk_bf16_f32 v{p+e}, v{acc+2*e}, v{acc+2*e+1}")
        a(f"buffer_store_dwordx4 {vr(p,4)}, v{VA+(i>>1)}, s[8:11], s52 offen offset:{2048+1024*(i&1)} sc1")
    a("s_branch L_pub")
    a.label("L_roleR")
    a(f"""v_and_b32 v4, 1, v3
    v_lshlrev_b32 v4, 10, v4
    v_lshl_add_u32 v4, v{VH}, 4, v4
    v_add_u32 v{VW}, {WT}, v4
    s_waitcnt lgkmcnt(0)""")
    tag(a)
    gemm("R")
    a(f"""s_cmp_lg_u32 s{RL}, 14
    s_cbranch_scc1 L_pub
    s_mov_b32 exec_hi, 0
    s_nop 7
    s_nop 3
    v_cvt_pk_bf16_f32 v4, v{A0}, v{A0+1}
    v_and_b32 v5, 0xffff0000, v4
    v_lshlrev_b32 v4, 16, v4
    v_ashrrev_i32 v6, 31, v4
    v_or_b32 v6, 0x80000000, v6
    v_xor_b32 v6, v6, v4
    v_and_b32 v6, 0xffff0000, v6
    v_cmp_u_f32 vcc, v4, v4
    v_cndmask_b32 v6, v6, 0, vcc
    s_lshl_b32 s26, s35, 5
    v_add_u32 v7, s26, v{VT}
    v_sub_u32 v8, 0xffff, v7
    v_or_b32 v6, v6, v8
    v_lshlrev_b32 v7, 2, v7
    s_mov_b32 s26, {WS_R}
    buffer_store_dword v6, v7, s[8:11], s26 offen sc1
    v_mul_f32 v5, {NLOG2E:#x}, v5
    v_exp_f32 v5, v5
    v_add_f32 v5, 1.0, v5
    v_rcp_f32 v5, v5
    v_cvt_pk_bf16_f32 v5, v5, v5
    v_lshlrev_b32 v5, 16, v5
    s_mov_b32 s26, {WS_G}
    buffer_store_dword v5, v7, s[8:11], s26 offen sc1
    s_mov_b32 exec_hi, -1
    """)
    a.label("L_pub")
    st(a, 3)
    a(f"""s_lshl_b32 s26, s{RL}, 6
    s_add_u32 s26, s26, s35
    s_lshl_b32 s26, s26, 2
    s_add_u32 s26, s26, {WS_FL}
    s_waitcnt vmcnt(0)""")
    flag_store(a, 4, VZ, "s26")
    st(a, 4)
    def qreads(k):
        f = WF + 4 * (k & 7)
        a(f"ds_read_b64_tr_b16 {vr(f,2)}, v{VQ} offset:{k*1024}\nds_read_b64_tr_b16 {vr(f+2,2)}, v{VQ} offset:{k*1024+256}")
    for lo, hi, cnt in ((0, 16, C_Q1), (16, 28, C_Q2)):
        spin_lds(a, VC, cnt, 4, 4)
        for k in range(lo, lo + 6): qreads(k)
        for k in range(lo, hi):
            if k + 6 < hi: qreads(k + 6)
            a(f"s_waitcnt lgkmcnt({2*(min(hi-1,k+6)-k)})")
            a(f"{MF} {vr(A0,16)}, {vr(WF+4*(k&7),4)}, {vr(XF+4*k,4)}, {'0' if k==0 else vr(A0,16)}")
    a(f"""s_mul_i32 s26, s{H}, 28
    s_add_u32 s27, s26, 27
    s_lshr_b32 s26, s26, 6
    s_lshr_b32 s27, s27, 6
    v_mov_b32 v4, s26
    v_mov_b32 v5, s27
    v_bfe_u32 v6, v3, 4, 1
    v_cmp_eq_u32 vcc, 1, v6
    v_cndmask_b32 v4, v4, v5, vcc
    v_mul_u32_u24 v7, 7, v{VH}
    v_add_u32 v7, v7, v4
    v_and_b32 v6, 15, v3
    v_lshl_add_u32 v7, v7, 6, v6
    s_lshl_b32 s28, s{W}, 4
    v_add_u32 v7, s28, v7
    v_lshlrev_b32 v7, 2, v7
    s_lshl_b32 s28, s{J}, 2
    v_lshl_add_u32 v6, v4, 6, s28
    v_lshlrev_b32 v6, 2, v6
    s_mov_b32 s28, {QSCALE:#x}
    s_mov_b32 s29, {QSCALE:#x}""")
    for i in range(8): a(f"v_pk_mul_f32 {vr(A0+2*i,2)}, {vr(A0+2*i,2)}, s[28:29]")
    for i in range(8): a(f"v_cvt_pk_bf16_f32 v{Q+i}, v{A0+2*i}, v{A0+2*i+1}")
    a(f"""s_mov_b32 exec_lo, 0
    v_mov_b32 v{Q+6}, 0
    v_mov_b32 v{Q+7}, 0
    s_mov_b32 exec_lo, -1
    s_lshl_b32 s28, s{W}, 11
    s_add_u32 s28, s28, {QX}
    v_add_u32 v5, s28, v1
    ds_write_b128 v5, {vr(Q,4)}
    ds_write_b128 v5, {vr(Q+4,4)} offset:1024
    s_waitcnt lgkmcnt(0)""")
    lds_inc(a, VC, C_X, V1)
    st(a, 5)
    a(f"""s_lshl_b32 s53, s{H}, 18
    s_lshl_b32 s28, s{W}, 16
    s_add_u32 s28, s28, s53
    s_add_u32 s16, s36, s28
    s_addc_u32 s17, s37, 0
    s_mov_b32 s18, 65536
    s_mov_b32 s19, 0x20000
    s_mov_b32 s28, {WS_FL}""")
    for i in range(8): a(f"v_mov_b32 v{KV+48+8+i}, 0")
    for i in range(8): a(f"v_mov_b32 v{P+8+i}, 0")
    poll_global(a, 4, 6, "s28")
    def ldK(b, soff):
        return [f"buffer_load_dwordx4 {vr(KV+16*b,4)}, v1, s[16:19], {soff} offen sc1",
                f"buffer_load_dwordx4 {vr(KV+16*b+4,4)}, v1, s[16:19], {soff} offen offset:1024 sc1"]
    def ldV(b, soff):
        return [f"buffer_load_dwordx4 {vr(KV+16*b+8,4)}, v1, s[16:19], {soff} offen offset:2048 sc1",
                f"buffer_load_dwordx4 {vr(KV+16*b+12,4)}, v1, s[16:19], {soff} offen offset:3072 sc1"]
    poll_global(a, 4, 7, "s28")
    st(a, 6)
    a(f"""s_lshl_b32 s29, s{J}, 14
    s_add_u32 s29, s29, s53
    buffer_load_dwordx4 {vr(P,4)}, v1, s[8:11], s29 offen sc1
    buffer_load_dwordx4 {vr(P+4,4)}, v1, s[8:11], s29 offen offset:1024 sc1
    s_mov_b32 s54, 4096
    s_mov_b32 s55, 8192
    s_mov_b32 s56, 12288""")
    for x in ldK(0, 0) + ldV(0, 0) + ldK(1, "s54") + ldV(1, "s54") + ldK(2, "s55") + ldV(2, "s55") + ldK(3, "s56"): a(x)
    spin_lds(a, VC, C_X, 4, 4)
    for i in (1, 2, 3):
        a(f"""s_add_u32 s28, s{W}, {i}
        s_and_b32 s28, s28, 3
        s_lshl_b32 s28, s28, 11
        s_add_u32 s28, s28, {QX}
        v_add_u32 v5, s28, v1
        ds_read_b128 {vr(Q+8*i,4)}, v5
        ds_read_b128 {vr(Q+8*i+4,4)}, v5 offset:1024""")
    lds_inc(a, VC, C_L, V1)
    a("s_waitcnt vmcnt(14) lgkmcnt(0)")
    for i in range(4):
        a(f"{MF} {vr(O+16*i,16)}, {vr(P,4)}, {vr(Q+8*i,4)}, 0")
        a(f"{MF} {vr(O+16*i,16)}, {vr(P+4,4)}, {vr(Q+8*i+4,4)}, {vr(O+16*i,16)}")
    a("s_mov_b32 exec_lo, 0")
    for i in range(4):
        max16(a, 4, O + 16 * i)
        a(f"v_cvt_pk_bf16_f32 v{Q+8*i+6}, -v4, 0")
    a("s_mov_b32 exec_lo, -1\ns_waitcnt vmcnt(10)")
    def QK(u, m):
        kt, qs = (u >> 2) & 3, u & 3
        s = S + 16 * (u & 1)
        c = "0" if m == 0 else vr(s, 16)
        return f"{MF} {vr(s,16)}, {vr(KV+16*kt+4*m,4)}, {vr(Q+8*qs+4*m,4)}, {c}"
    def PV(u, m):
        kt, qs = (u >> 2) & 3, u & 3
        return f"{MF} {vr(O+16*qs,16)}, {vr(KV+16*kt+8+4*m,4)}, {vr(P+8*(u&1)+4*m,4)}, {vr(O+16*qs,16)}"
    a(QK(0, 0)); a(QK(0, 1))
    for i in range(0, 64, 2): a(f"v_pk_mul_f32 {vr(O+i,2)}, {vr(P+8,2)}, {vr(P+8,2)}")
    st(a, 7)
    a("s_mov_b32 s57, 4")
    a(".p2align 6")
    a.label("L_loop")
    for u in range(16):
        kt, qs = u >> 2, u & 3
        s = S + 16 * (u & 1); p = P + 8 * (u & 1)
        e = lambda i: f"v_exp_f32 v{s+i}, v{s+i}"
        c = lambda i: f"v_cvt_pk_bf16_f32 v{p+i}, v{s+2*i}, v{s+2*i+1}"
        ex = [[], [], [], []]
        if qs == 1:
            l = ldV((kt + 3) & 3, "s56")
            ex[0] = [l[0]]; ex[1] = [l[1]]; ex[2] = ["s_add_u32 s56, s56, 4096"]
        if qs == 2: ex[3] = ["s_waitcnt vmcnt(8)"]
        if qs == 3:
            l = ldK(kt, "s56")
            ex[0] = [l[0]]; ex[1] = [l[1]]
        if u == 15:
            ex[2] = ["s_sub_u32 s57, s57, 1"]; ex[3] = ["s_cmp_lg_u32 s57, 0"]
        seq = [QK(u+1, 0)] + ex[0] + [e(0), e(1), e(2), e(3), c(0), e(4),
               PV(u-1, 0)] + ex[1] + [e(5), c(1), e(6), e(7), c(2), e(8),
               QK(u+1, 1)] + ex[2] + [e(9), c(3), e(10), e(11), c(4), e(12),
               PV(u-1, 1)] + ex[3] + [e(13), c(5), e(14), e(15), c(6), c(7)]
        for x in seq: a(x)
    a("s_cbranch_scc1 L_loop")
    st(a, 8)
    a(PV(15, 0)); a(PV(15, 1))
    for i in (1, 2, 3):
        a(f"""s_add_u32 s28, s{W}, {i}
        s_and_b32 s28, s28, 3
        s_mul_i32 s28, s28, 12288
        s_add_u32 s28, s28, {CB + (i-1)*4096}
        v_add_u32 v{3+i}, s28, v1""")
    a(f"s_mul_i32 s28, s{W}, 12288\ns_add_u32 s28, s28, {CB}\nv_add_u32 v2, s28, v1")
    for i in (1, 2, 3):
        for k in range(4): a(f"ds_write_b128 v{3+i}, {vr(O+16*i+4*k,4)} offset:{k*1024}")
    XR, GR = 240, 248
    srd(a, 12, 4, 2048 * 896)
    srd(a, 20, 50, 2048 * 896)
    a(f"""s_lshr_b32 s58, s{H}, 2
    s_lshl_b32 s28, s{J}, 2
    s_add_u32 s58, s58, s28
    s_and_b32 s59, s{H}, 3
    s_lshl_b32 s59, s59, 2
    s_add_u32 s59, s59, s{W}
    s_mul_i32 s59, s59, 56
    s_lshl_b32 s28, s58, 5
    v_add_u32 v{VA}, s28, v{VT}
    v_mul_u32_u24 v{VA+1}, 896, v{VA}
    v_lshl_add_u32 v{VA+1}, v{VH}, 3, v{VA+1}
    v_lshlrev_b32 v{VA}, 2, v{VA}
    s_waitcnt vmcnt(0)""")
    for k in range(4):
        a(f"buffer_load_dwordx2 {vr(XR+2*k,2)}, v{VA+1}, s[12:15], s59 offen offset:{16*k}")
    a("s_waitcnt lgkmcnt(0)\ns_barrier")
    TT = KV
    for k in range(12): a(f"ds_read_b128 {vr(TT+4*k,4)}, v2 offset:{k*1024}")
    a(f"s_mov_b32 s28, {WS_G}\nbuffer_load_dword v{GR}, v{VA}, s[8:11], s28 offen sc1")
    for i in range(3):
        a(f"s_waitcnt lgkmcnt({8-4*i})")
        for k in range(8): a(f"v_pk_add_f32 {vr(O+2*k,2)}, {vr(O+2*k,2)}, {vr(TT+16*i+2*k,2)}")
    a("s_mov_b32 s57, 0")
    a.label("L_fin")
    a(f"""v_mov_b32 v5, v{O+12}
    v_mov_b32 v4, v{O+12}
    s_mov_b32 s28, 0x30800000
    s_mov_b32 s29, 0x4e800000
    v_permlane32_swap_b32 v5, v4
    s_mov_b32 exec_lo, 0
    v_mov_b32 v{O+12}, 0
    v_mov_b32 v{O+13}, 0
    v_mov_b32 v{O+14}, 0
    v_mov_b32 v{O+15}, 0
    s_mov_b32 exec_lo, -1
    v_rcp_f32 v6, v4
    v_cmp_nle_f32 s[54:55], s28, v4
    v_cmp_nge_f32 s[62:63], s29, v4
    """)
    for k in range(8): a(f"v_pk_mul_f32 {vr(O+2*k,2)}, {vr(O+2*k,2)}, v[6:7] op_sel_hi:[1,0]")
    a(f"v_pk_add_f32 v[4:5], {vr(O,2)}, {vr(O+2,2)}")
    for k in range(2, 8): a(f"v_pk_add_f32 v[4:5], v[4:5], {vr(O+2*k,2)}")
    a(f"""v_add_f32 v4, v4, v5
    s_movk_i32 s28, 0x207
    v_cmp_class_f32 vcc, v4, s28
    s_or_b64 s[54:55], s[54:55], s[62:63]
    s_or_b64 s[54:55], s[54:55], vcc
    s_cbranch_scc0 L_store
    s_cmp_eq_u32 s57, 0
    s_cbranch_scc1 L_slow
    L_store:""")
    for k in range(8): a(f"v_cvt_pk_bf16_f32 v{Q+k}, v{O+2*k}, v{O+2*k+1}")
    a(f"""s_lshl_b32 s28, s35, 4
    s_add_u32 s28, s28, s{H}
    s_lshl_b32 s29, s28, 2
    s_add_u32 s29, s29, {WS_OFL}
    s_lshl_b32 s28, s28, 11
    s_add_u32 s28, s28, {WS_O}
    buffer_store_dwordx4 {vr(Q,4)}, v1, s[8:11], s28 offen sc1
    buffer_store_dwordx4 {vr(Q+4,4)}, v1, s[8:11], s28 offen offset:1024 sc1""")
    st(a, 9)
    WOF = 104
    a(f"""v_bfe_u32 v4, v3, 2, 2
    v_lshl_add_u32 v4, v{VH}, 2, v4
    v_mul_u32_u24 v4, 224, v4
    v_bfe_u32 v5, v3, 4, 1
    v_lshl_add_u32 v4, v5, 5, v4
    v_and_b32 v5, 3, v3
    v_lshl_add_u32 v4, v5, 3, v4
    s_mul_i32 s28, s{W}, 56
    v_add_u32 v4, s28, v4
    v_add_u32 v5, {8*28*224}, v4
    v_mov_b32 v16, v{VT}
    v_mov_b32 v17, v{VH}
    v_mov_b32 v18, v{VA+1}
    v_mov_b32 v19, 0""")
    def word(k):
        hd, m = k >> 1, k & 1
        o = (28 * (hd & 7) + 16 * m) * 224
        b = 4 + (hd >> 3)
        a(f"ds_read_b64_tr_b16 {vr(WOF+4*k,2)}, v{b} offset:{o}\nds_read_b64_tr_b16 {vr(WOF+4*k+2,2)}, v{b} offset:{o+8*224}")
    for k in range(12): word(k)
    a("s_waitcnt vmcnt(0)")
    flag_store(a, 6, 19, "s29")
    for k in range(12, 32): word(k)
    B = 24
    for k in range(8):
        a(f"v_lshlrev_b32 v{B+2*k}, 16, v{XR+k}\nv_and_b32 v{B+2*k+1}, 0xffff0000, v{XR+k}")
    a(f"""v_mov_b32 v6, {UPDI}
    ds_read_b128 v[8:11], v6
    ds_read_b128 v[12:15], v6 offset:16
    s_mul_i32 s28, s{W}, 112
    s_add_u32 s28, s28, {UPD}
    v_lshl_add_u32 v7, v17, 4, s28
    s_waitcnt lgkmcnt(0)""")
    U = 40
    for n in range(8):
        l = uid("Lnu")
        a(f"""v_cmp_eq_u32 vcc, v{8+n}, v16
        s_cbranch_vccz {l}
        s_mov_b64 exec, vcc""")
        for k in range(4): a(f"ds_read_b128 {vr(U+4*k,4)}, v7 offset:{n*448+32*k}")
        a("s_waitcnt lgkmcnt(0)")
        for k in range(8):
            a(f"""v_pk_add_f32 {vr(B+2*k,2)}, {vr(B+2*k,2)}, {vr(U+2*k,2)}
            v_cvt_pk_bf16_f32 v{B+2*k}, v{B+2*k}, v{B+2*k+1}
            v_and_b32 v{B+2*k+1}, 0xffff0000, v{B+2*k}
            v_lshlrev_b32 v{B+2*k}, 16, v{B+2*k}""")
        a(f"s_mov_b64 exec, -1\n{l}:")
    a(f"""v_sub_f32 v20, 1.0, v{GR}
    v_cvt_pk_bf16_f32 v20, v20, v20
    v_lshlrev_b32 v20, 16, v20""")
    for k in range(8): a(f"v_pk_mul_f32 {vr(B+2*k,2)}, {vr(B+2*k,2)}, v[20:21] op_sel_hi:[1,0]")
    a(f"""s_lshl_b32 s28, s58, 4
    s_lshl_b32 s29, s{W}, 2
    s_add_u32 s28, s28, s29
    s_lshl_b32 s29, s28, 11
    s_add_u32 s29, s29, {WS_O}
    s_lshl_b32 s28, s28, 2
    s_add_u32 s28, s28, {WS_OFL}
    v_lshrrev_b32 v6, 2, v1""")
    poll_global(a, 7, 6, "s28", mask="15")
    st(a, 10)
    OS = 56
    for k in range(8):
        if k == 4: a("s_add_u32 s29, s29, 4096")
        a(f"buffer_load_dwordx4 {vr(OS+4*k,4)}, v1, s[8:11], s29 offen offset:{(k&3)*1024} sc1")
    for k in range(8):
        a(f"s_waitcnt vmcnt({7-k})\nds_write_b128 v2, {vr(OS+4*k,4)} offset:{k*1024}")
    a(f"v_add_u32 v6, {CB}, v1\ns_waitcnt lgkmcnt(0)\ns_barrier")
    st(a, 11)
    if STAMP: a("s_waitcnt lgkmcnt(0)")
    ACC = 88
    def ord_(k): a(f"ds_read_b128 {vr(OS+4*(k&7),4)}, v6 offset:{(k>>3)*12288+(k&7)*1024}")
    for k in range(6): ord_(k)
    for k in range(32):
        if k + 6 < 32: ord_(k + 6)
        a(f"s_waitcnt lgkmcnt({min(31,k+6)-k})")
        a(f"{MF} {vr(ACC,16)}, {vr(WOF+4*k,4)}, {vr(OS+4*(k&7),4)}, {'0' if k==0 else vr(ACC,16)}")
    for k in range(8):
        a(f"v_pk_fma_f32 {vr(B+2*k,2)}, {vr(ACC+2*k,2)}, {vr(GR,2)}, {vr(B+2*k,2)} op_sel_hi:[1,0,1]")
    for k in range(8): a(f"v_cvt_pk_bf16_f32 v{8+k}, v{B+2*k}, v{B+2*k+1}")
    for k in range(4):
        if k == 3: a("s_mov_b32 exec_hi, 0")
        a(f"buffer_store_dwordx2 {vr(8+2*k,2)}, v18, s[20:23], s59 offen offset:{16*k}")
    st_end(a)
    a("s_endpgm")
    a.label("L_slow")
    a(f"""s_mov_b32 s57, 1
    s_add_u32 s55, s53, {64*4096}
    s_mov_b32 s54, s53
    s_mov_b32 exec_lo, 0
    v_mov_b32 v{Q+6}, 0
    v_mov_b32 v{Q+7}, 0
    s_mov_b32 exec_lo, -1
    v_mov_b32 v4, 0xff800000
    L_slow1:
    buffer_load_dwordx4 {vr(KV,4)}, v1, s[8:11], s54 offen sc1
    buffer_load_dwordx4 {vr(KV+4,4)}, v1, s[8:11], s54 offen offset:1024 sc1
    s_waitcnt vmcnt(0)
    {MF} {vr(S,16)}, {vr(KV,4)}, {vr(Q,4)}, 0
    {MF} {vr(S,16)}, {vr(KV+4,4)}, {vr(Q+4,4)}, {vr(S,16)}""")
    max16(a, 4, S, init=True)
    a("""s_add_u32 s54, s54, 4096
    s_cmp_lt_u32 s54, s55
    s_cbranch_scc1 L_slow1
    v_mov_b32 v5, v4
    v_permlane32_swap_b32 v4, v5
    v_max_f32 v4, v4, v5""")
    split_neg_max(a, 4, 5, 6, Q + 6, Q + 7)
    for i in range(16): a(f"v_mov_b32 v{O+i}, 0")
    a(f"""s_mov_b32 s54, s53
    L_slow2:
    buffer_load_dwordx4 {vr(KV,4)}, v1, s[8:11], s54 offen sc1
    buffer_load_dwordx4 {vr(KV+4,4)}, v1, s[8:11], s54 offen offset:1024 sc1
    buffer_load_dwordx4 {vr(KV+8,4)}, v1, s[8:11], s54 offen offset:2048 sc1
    buffer_load_dwordx4 {vr(KV+12,4)}, v1, s[8:11], s54 offen offset:3072 sc1
    s_waitcnt vmcnt(0)
    {MF} {vr(S,16)}, {vr(KV,4)}, {vr(Q,4)}, 0
    {MF} {vr(S,16)}, {vr(KV+4,4)}, {vr(Q+4,4)}, {vr(S,16)}""")
    for i in range(16): a(f"v_exp_f32 v{S+i}, v{S+i}")
    for i in range(8): a(f"v_cvt_pk_bf16_f32 v{P+i}, v{S+2*i}, v{S+2*i+1}")
    a(f"""{MF} {vr(O,16)}, {vr(KV+8,4)}, {vr(P,4)}, {vr(O,16)}
    {MF} {vr(O,16)}, {vr(KV+12,4)}, {vr(P+4,4)}, {vr(O,16)}
    s_nop 7
    s_nop 7
    s_add_u32 s54, s54, 4096
    s_cmp_lt_u32 s54, s55
    s_cbranch_scc1 L_slow2
    s_branch L_fin""")

def service_wave(a):
    a.label("L_service")
    L = 35
    a(f"""s_sub_u32 s{L}, s{W}, 4
    v_lshrrev_b32 v4, 3, v3
    v_mul_u32_u24 v5, 896, v4
    v_and_b32 v6, 7, v3
    v_lshrrev_b32 v7, 4, v3
    v_xor_b32 v7, v6, v7
    v_lshl_add_u32 v10, v7, 4, v5
    v_xor_b32 v7, 4, v7
    v_lshl_add_u32 v11, v7, 4, v5
    v_mul_u32_u24 v5, 2688, v4
    v_and_b32 v4, 2, v4
    v_lshlrev_b32 v4, 1, v4
    v_xor_b32 v4, v4, v6
    v_lshl_add_u32 v12, v4, 4, v5
    v_lshrrev_b32 v4, 2, v3
    v_mul_u32_u24 v4, 2688, v4
    v_and_b32 v5, 3, v3
    v_lshl_add_u32 v13, v5, 4, v4
    v_mov_b32 v14, {CNT}
    v_mov_b32 v15, 1
    v_mov_b32 v9, 0
    s_lshl_b32 s52, s{J}, 2
    s_add_u32 s52, s52, s{L}
    s_mul_i32 s52, s52, {32*896}
    s_lshl_b32 s53, s{RL}, 7
    s_mul_i32 s26, s{L}, {16*2688}
    s_add_u32 s53, s53, s26
    s_add_u32 s53, s53, 896
    s_lshl_b32 s54, s{L}, 12
    s_lshl_b32 s55, s{L}, 11
    s_add_u32 s55, s55, {WT}
    s_waitcnt lgkmcnt(0)
    s_load_dword s{T}, s[36:37], s27""")
    srd(a, 12, 4, 2048 * 896)
    srd(a, 16, 6, 448 * 2688)
    srd(a, 8, 36, 1 << 28)
    a(f"s_cmp_ge_u32 s{RL}, 14\ns_cbranch_scc1 L_svcR")
    def xdma(c):
        for i in range(4):
            a(f"""s_add_u32 m0, s54, {(c&3)*16384 + i*1024}
            s_add_u32 s26, s52, {c*128 + i*8*896}
            buffer_load_dwordx4 v{10+(i&1)}, s[12:15], s26 offen lds""")
    def wdma(c):
        for i in range(2):
            a(f"""s_add_u32 m0, s55, {c*8192 + i*1024}
            s_add_u32 s26, s53, {(c*64 + i*8)*2688}
            buffer_load_dwordx4 v12, s[16:19], s26 offen lds""")
    def init_lds():
        a(f"""v_lshrrev_b32 v4, 2, v1
        v_add_u32 v4, {UPDI}, v4
        v_mov_b32 v5, -1
        s_mov_b64 exec, 0xff
        ds_write_b32 v4, v5
        ds_write_b32 v4, v9 offset:{CNT-UPDI}
        s_mov_b64 exec, -1""")
    def loader(withW):
        n = 6 if withW else 4
        for c in range(3):
            if withW: wdma(c)
            xdma(c)
        init_lds()
        last = 2
        for c in range(7):
            a(f"s_waitcnt vmcnt({n*(last-c)}) lgkmcnt(0)\ns_barrier")
            if last < 6:
                last += 1
                if withW: wdma(last)
                xdma(last)
    loader(True)
    a("s_branch L_svcQ")
    a.label("L_svcR")
    srd(a, 20, 40, 896)
    a(f"""s_mov_b32 m0, {WT}
    s_nop 0
    buffer_load_dwordx4 v1, s[20:23], 0 offen lds
    s_mov_b32 s20, s48
    s_mov_b32 s21, s49
    s_mov_b32 m0, {WT+1024}
    s_nop 0
    buffer_load_dwordx4 v1, s[20:23], 0 offen lds""")
    loader(False)
    a.label("L_svcQ")
    st(a, 1)
    a(f"""s_mul_i32 s53, s{H}, 56
    s_and_b32 s53, s53, 0xfffffff0
    s_mul_i32 s26, s{L}, {16*2688}
    s_add_u32 s53, s53, s26
    s_lshl_b32 s55, s{L}, 10
    s_add_u32 s55, s55, {WQ}""")
    tag(a)
    for i in range(7):
        a(f"""s_add_u32 m0, s55, {i*4096}
        s_add_u32 s26, s53, {i*64*2688}
        buffer_load_dwordx4 v13, s[16:19], s26 offen lds""")
        if i == 1: a("s_barrier")
    a("s_waitcnt vmcnt(3)")
    lds_inc(a, 14, C_Q1, 15)
    a("s_waitcnt vmcnt(0)")
    lds_inc(a, 14, C_Q2, 15)
    st(a, 2)
    PW = 56
    a(f"""s_cmp_ge_u32 s25, 7
    s_cbranch_scc1 L_svcWo
    s_mul_i32 s{PW}, s24, 7
    s_add_u32 s{PW}, s{PW}, s25""")
    nbar = [0]
    def sbar():
        nbar[0] += 1
        a("s_waitcnt lgkmcnt(0)")
        lds_inc(a, 14, C_S, 15)
        spin_lds(a, 14, C_S, 4 * nbar[0], 8, sleep=1)
    GI, UI, SC = 0, 28672, 57344
    KEY, D = 16, 24
    a(f"""v_lshrrev_b32 v4, 2, v1
    s_lshl_b32 s26, s{L}, 6
    s_add_u32 s26, s26, {WS_FL + 14*256}""")
    poll_global(a, 5, 4, "s26", mask="0xffff", sleep=2)
    a(f"""v_lshlrev_b32 v4, 1, v1
    s_lshl_b32 s26, s{L}, 11
    s_add_u32 s26, s26, {WS_R}
    buffer_load_dwordx4 {vr(KEY,4)}, v4, s[8:11], s26 offen sc1
    buffer_load_dwordx4 {vr(KEY+4,4)}, v4, s[8:11], s26 offen offset:16 sc1
    s_mov_b32 s58, -1
    s_waitcnt vmcnt(0)""")
    st(a, 3)
    a("s_mov_b32 s57, 0\nL_top1:")
    for i in range(8): a(f"v_sub_u32 v{D+i}, s58, v{KEY+i}")
    a(f"""v_min3_u32 v{D}, v{D}, v{D+1}, v{D+2}
    v_min3_u32 v{D+3}, v{D+3}, v{D+4}, v{D+5}
    v_min3_u32 v{D}, v{D}, v{D+6}, v{D+7}
    v_min_u32 v{D}, v{D}, v{D+3}""")
    wave_min_u32(a, D)
    a(f"""v_readlane_b32 s59, v{D}, 63
    s_mov_b32 m0, s57
    s_sub_u32 s59, s58, s59
    s_sub_u32 s58, s59, 1
    v_writelane_b32 v6, s59, m0
    s_add_u32 s57, s57, 1
    s_cmp_lt_u32 s57, 8
    s_cbranch_scc1 L_top1
    s_lshl_b32 s26, s{L}, 5
    s_add_u32 s26, s26, {SC}
    v_lshl_add_u32 v7, v3, 2, s26
    s_mov_b64 exec, 0xff
    ds_write_b32 v7, v6
    s_mov_b64 exec, -1
    v_and_b32 v32, 31, v3
    v_lshrrev_b32 v33, 5, v3
    v_lshlrev_b32 v7, 2, v32""")
    sbar()
    a(f"""ds_read_b32 v{KEY}, v7 offset:{SC}
    s_mov_b32 s58, -1
    s_mov_b32 s57, 0
    s_waitcnt lgkmcnt(0)
    L_top2:
    v_sub_u32 v{D}, s58, v{KEY}""")
    wave_min_u32(a, D, full=False)
    a(f"""v_readlane_b32 s59, v{D}, 31
    s_mov_b32 m0, s57
    s_sub_u32 s59, s58, s59
    s_sub_u32 s58, s59, 1
    v_writelane_b32 v6, s59, m0
    s_add_u32 s57, s57, 1
    s_cmp_lt_u32 s57, 8
    s_cbranch_scc1 L_top2
    v_and_b32 v7, 7, v3
    v_lshlrev_b32 v7, 2, v7
    ds_bpermute_b32 v34, v7, v6
    s_or_b32 s26, s{PW}, s{L}
    s_cmp_lg_u32 s26, 0
    s_cbranch_scc1 L_nosel
    s_mov_b64 exec, 0xff
    s_mov_b32 s26, {WS_SEL}
    buffer_store_dword v6, v7, s[8:11], s26 offen sc1
    s_mov_b64 exec, -1
    s_mov_b32 s26, {WS_SELF}
    s_waitcnt vmcnt(0)""")
    flag_store(a, 5, 9, "s26")
    a(f"""L_nosel:
    s_waitcnt lgkmcnt(0)
    v_and_b32 v34, 0xffff, v34
    v_sub_u32 v34, 0xffff, v34
    v_mul_u32_u24 v34, 896, v34
    v_lshl_add_u32 v34, v33, 4, v34
    v_lshrrev_b32 v4, 2, v3
    v_mul_u32_u24 v4, 3584, v4
    v_and_b32 v5, 3, v3
    v_lshl_add_u32 v35, v5, 4, v4
    v_and_b32 v36, 255, v0
    v_lshlrev_b32 v37, 4, v36
    v_bfe_u32 v4, v3, 2, 2
    v_lshl_add_u32 v4, v33, 3, v4
    v_bfe_u32 v6, v3, 4, 1
    v_lshlrev_b32 v6, 5, v6
    v_lshl_add_u32 v6, v5, 3, v6
    s_mul_i32 s55, s{L}, {112*64}
    v_lshl_add_u32 v38, v4, 6, v6
    v_add_u32 v38, s55, v38
    v_mul_u32_u24 v39, 896, v4
    v_add_u32 v39, v39, v6
    s_lshl_b32 s26, s{L}, 6
    v_add_u32 v39, s26, v39""")
    st(a, 4)
    srd(a, 16, 42, 448 * 3584)
    srd(a, 20, 44, 448 * 3584)
    spin_lds(a, 14, C_L, 4, 8, sleep=2)
    XS_ = 40
    a(f"s_mul_i32 s26, s{L}, 224")
    for s in range(7):
        a(f"buffer_load_dwordx4 {vr(XS_+4*s,4)}, v34, s[12:15], s26 offen offset:{32*s}")
    a(f"""s_mul_i32 s53, s{L}, {112*3584}
    s_lshl_b32 s26, s{PW}, 6
    s_add_u32 s53, s53, s26""")
    for i in range(7):
        a(f"""s_add_u32 m0, s55, {GI + i*1024}
        s_add_u32 s26, s53, {i*16*3584}
        buffer_load_dwordx4 v35, s[16:19], s26 offen lds
        s_add_u32 m0, s55, {UI + i*1024}
        s_nop 0
        buffer_load_dwordx4 v35, s[20:23], s26 offen lds""")
        if i in (1, 3, 5): a("s_waitcnt vmcnt(2)")
    WD = 100
    srd(a, 16, 46, 1792 * 896)
    a(f"s_mul_i32 s26, s{PW}, {32*896}")
    for i in range(7):
        a(f"buffer_load_dwordx4 {vr(WD+4*i,4)}, v37, s[16:19], s26 offen\ns_add_u32 s26, s26, 4096")
    a("s_waitcnt vmcnt(7)")
    st(a, 5)
    if STAMP: a("s_waitcnt lgkmcnt(0)")
    AG, AU, FW = 68, 84, 130
    for s in range(7):
        f = FW + 8 * s
        a(f"""ds_read_b64_tr_b16 {vr(f,2)}, v38 offset:{GI + s*1024}
        ds_read_b64_tr_b16 {vr(f+2,2)}, v38 offset:{GI + s*1024 + 256}
        ds_read_b64_tr_b16 {vr(f+4,2)}, v38 offset:{UI + s*1024}
        ds_read_b64_tr_b16 {vr(f+6,2)}, v38 offset:{UI + s*1024 + 256}""")
        if s >= 1:
            a("s_waitcnt lgkmcnt(4)")
            t = s - 1; g = FW + 8 * t
            a(f"{MF} {vr(AG,16)}, {vr(g,4)}, {vr(XS_+4*t,4)}, {'0' if t==0 else vr(AG,16)}")
            a(f"{MF} {vr(AU,16)}, {vr(g+4,4)}, {vr(XS_+4*t,4)}, {'0' if t==0 else vr(AU,16)}")
    a("s_waitcnt lgkmcnt(0)")
    t = 6; g = FW + 8 * t
    a(f"{MF} {vr(AG,16)}, {vr(g,4)}, {vr(XS_+4*t,4)}, {vr(AG,16)}")
    a(f"{MF} {vr(AU,16)}, {vr(g+4,4)}, {vr(XS_+4*t,4)}, {vr(AU,16)}")
    sbar()
    a(f"""s_lshl_b32 s26, s{L}, 11
    s_add_u32 s26, s26, {SC}
    v_lshlrev_b32 v5, 7, v32
    v_lshl_add_u32 v5, v33, 4, v5
    v_add_u32 v5, s26, v5
    s_mov_b32 exec_lo, 0xff
    s_mov_b32 exec_hi, 0xff""")
    for k in range(4):
        a(f"ds_write_b128 v5, {vr(AG+4*k,4)} offset:{32*k}")
        a(f"ds_write_b128 v5, {vr(AU+4*k,4)} offset:{1024+32*k}")
    a("s_mov_b64 exec, -1\ns_waitcnt vmcnt(0)")
    for i in range(7): a(f"ds_write_b128 v37, {vr(WD+4*i,4)} offset:{4096*i}")
    a("v_lshlrev_b32 v5, 2, v36")
    sbar()
    for k in range(8): a(f"ds_read_b32 v{16+k}, v5 offset:{SC + 1024*k}")
    HB = UI
    a(f"""s_waitcnt lgkmcnt(0)
    v_add_f32 v16, v16, v18
    v_add_f32 v17, v17, v19
    v_add_f32 v20, v20, v22
    v_add_f32 v21, v21, v23
    v_add_f32 v16, v16, v20
    v_add_f32 v17, v17, v21
    v_cvt_pk_bf16_f32 v16, v16, v17
    v_and_b32 v17, 0xffff0000, v16
    v_lshlrev_b32 v16, 16, v16
    v_mul_f32 v18, {NLOG2E:#x}, v16
    v_exp_f32 v18, v18
    v_add_f32 v18, 1.0, v18
    v_rcp_f32 v18, v18
    v_mul_f32 v16, v16, v18
    v_cvt_pk_bf16_f32 v16, v16, v16
    v_lshlrev_b32 v16, 16, v16
    v_mul_f32 v16, v16, v17
    v_cvt_pk_bf16_f32 v16, v16, v16
    v_lshlrev_b32 v5, 1, v36
    ds_write_b16 v5, v16 offset:{HB}
    v_and_b32 v5, 7, v3
    v_lshlrev_b32 v5, 6, v5
    v_lshl_add_u32 v5, v33, 4, v5""")
    sbar()
    a(f"""ds_read_b128 v[16:19], v5 offset:{HB}
    ds_read_b128 v[20:23], v5 offset:{HB+32}
    v_mul_u32_u24 v24, {4*1792}, v33
    v_lshl_add_u32 v24, v32, 2, v24
    v_add_u32 v25, {2*1792}, v24
    s_mul_i32 s53, s{PW}, 14336
    s_lshl_b32 s26, s{L}, 7
    s_add_u32 s53, s53, s26
    s_add_u32 s53, s53, {WS_YP}""")
    for n in range(4):
        if n == 3: a(f"s_cmp_ge_u32 s{L}, 2\ns_cbranch_scc1 L_ffn_done")
        f = FW + 8 * n; acc = 40 + 16 * n
        for m in range(2):
            a(f"ds_read_b64_tr_b16 {vr(f+4*m,2)}, v39 offset:{n*256 + m*16*896}")
            a(f"ds_read_b64_tr_b16 {vr(f+4*m+2,2)}, v39 offset:{n*256 + m*16*896 + 4*896}")
        a(f"""s_waitcnt lgkmcnt(0)
        {MF} {vr(acc,16)}, v[16:19], {vr(f,4)}, 0
        {MF} {vr(acc,16)}, v[20:23], {vr(f+4,4)}, {vr(acc,16)}
        buffer_store_dword v{acc}, v24, s[8:11], s53 offen offset:{n*512} sc1
        buffer_store_dword v{acc+1}, v24, s[8:11], s53 offen offset:{n*512+1792} sc1
        buffer_store_dword v{acc+2}, v25, s[8:11], s53 offen offset:{n*512} sc1
        buffer_store_dword v{acc+3}, v25, s[8:11], s53 offen offset:{n*512+1792} sc1""")
    a(f"""L_ffn_done:
    s_lshl_b32 s26, s{L}, 6
    s_add_u32 s26, s26, s{PW}
    s_lshl_b32 s26, s26, 2
    s_add_u32 s26, s26, {WS_YFL}
    s_waitcnt vmcnt(0)""")
    flag_store(a, 5, 9, "s26")
    sbar()
    st(a, 6)
    a.label("L_svcWo")
    spin_lds(a, 14, C_L, 4, 8, sleep=2)
    srd(a, 16, 38, 448 * 896)
    a(f"""s_and_b32 s53, s{H}, 3
    s_mul_i32 s53, s53, 224
    s_mul_i32 s55, s{L}, {25*1024}
    s_mul_i32 s26, s{L}, {25*64}
    v_add_u32 v4, s26, v3
    s_mov_b32 s57, 0
    s_mov_b32 s58, 0x12492500
    L_wo:
    v_mul_hi_u32 v5, s58, v4
    v_mul_u32_u24 v6, {896-14*16}, v5
    v_lshl_add_u32 v6, v4, 4, v6
    s_mov_b32 m0, s55
    v_add_u32 v4, 64, v4
    buffer_load_dwordx4 v6, s[16:19], s53 offen lds
    s_add_u32 s55, s55, 1024
    s_waitcnt vmcnt(3)
    s_add_u32 s57, s57, 1
    s_cmp_lt_u32 s57, 25
    s_cbranch_scc1 L_wo""")
    st(a, 7)
    a(f"""s_mov_b32 s26, {WS_SELF}""")
    poll_global(a, 5, 9, "s26", mask="1", sleep=4)
    a(f"""s_lshl_b32 s26, s{L}, 3
    s_add_u32 s26, s26, {WS_SEL}
    buffer_load_dwordx2 v[16:17], v9, s[8:11], s26 offen sc1
    s_lshr_b32 s58, s{H}, 2
    s_lshl_b32 s26, s{J}, 2
    s_add_u32 s58, s58, s26
    s_lshl_b32 s57, s{L}, 1
    s_waitcnt vmcnt(0)
    L_upd:
    v_readfirstlane_b32 s52, v16
    v_mov_b32 v16, v17
    s_and_b32 s54, s52, 0xffff
    s_sub_u32 s54, 0xffff, s54
    s_lshr_b32 s26, s54, 5
    s_cmp_lg_u32 s26, s58
    s_cbranch_scc1 L_updn
    v_lshrrev_b32 v4, 2, v1
    s_mov_b32 s62, -1
    s_mov_b32 s63, 0x00ffffff""")
    for k in range(4):
        a(f"s_mov_b32 s26, {WS_YFL + 256*k}")
        poll_global(a, 5, 4, "s26", mask="s[62:63]", sleep=4)
    Y = 40
    a(f"""v_lshrrev_b32 v4, 5, v3
    v_mul_u32_u24 v4, {28*14336}, v4
    v_and_b32 v5, 31, v3
    v_lshl_add_u32 v4, v5, 4, v4
    s_mul_i32 s26, s57, 1792
    s_lshl_b32 s55, s53, 1
    s_add_u32 s26, s26, s55
    s_add_u32 s26, s26, {WS_YP}
    s_mov_b32 exec_lo, 0x0fffffff
    s_mov_b32 exec_hi, 0x0fffffff""")
    for i in range(28):
        a(f"buffer_load_dwordx4 {vr(Y+4*i,4)}, v4, s[8:11], s26 offen sc1\ns_add_u32 s26, s26, 14336")
    a(f"""s_mov_b64 exec, -1
    s_lshr_b32 s26, s52, 16
    s_not_b32 s55, s26
    s_and_b32 s59, s26, 0x7fff
    s_bitcmp1_b32 s26, 15
    s_cselect_b32 s26, s59, s55
    s_lshl_b32 s26, s26, 16
    v_mov_b32 v6, {NLOG2E:#x}
    v_mul_f32 v6, s26, v6
    v_exp_f32 v6, v6
    v_add_f32 v6, 1.0, v6
    v_rcp_f32 v6, v6
    v_cvt_pk_bf16_f32 v6, v6, v6
    v_lshlrev_b32 v6, 16, v6
    s_mul_i32 s26, s57, 448
    s_add_u32 s26, s26, {UPD}
    v_lshl_add_u32 v7, v5, 4, s26
    s_waitcnt vmcnt(0)""")
    for i in range(1, 28):
        a(f"v_pk_add_f32 {vr(Y,2)}, {vr(Y,2)}, {vr(Y+4*i,2)}\nv_pk_add_f32 {vr(Y+2,2)}, {vr(Y+2,2)}, {vr(Y+4*i+2,2)}")
    for k in range(4): a(f"v_mov_b32 v{Y+4+k}, v{Y+k}")
    for k in range(4): a(f"v_permlane32_swap_b32 v{Y+k}, v{Y+4+k}")
    for k in range(4): a(f"v_add_f32 v{Y+k}, v{Y+k}, v{Y+4+k}")
    for k in range(0, 4, 2):
        a(f"""v_cvt_pk_bf16_f32 v{Y+k}, v{Y+k}, v{Y+k+1}
        v_and_b32 v{Y+k+1}, 0xffff0000, v{Y+k}
        v_lshlrev_b32 v{Y+k}, 16, v{Y+k}
        v_mul_f32 v{Y+k}, v{Y+k}, v6
        v_mul_f32 v{Y+k+1}, v{Y+k+1}, v6
        v_cvt_pk_bf16_f32 v{Y+k}, v{Y+k}, v{Y+k+1}
        v_and_b32 v{Y+k+1}, 0xffff0000, v{Y+k}
        v_lshlrev_b32 v{Y+k}, 16, v{Y+k}""")
    a(f"""s_and_b32 s54, s54, 31
    v_mov_b32 v5, s54
    s_lshl_b32 s26, s57, 2
    s_add_u32 s26, s26, {UPDI}
    v_mov_b32 v4, s26
    s_mov_b64 exec, 0x0fffffff
    ds_write_b128 v7, {vr(Y,4)}
    s_mov_b64 exec, 1
    ds_write_b32 v4, v5
    s_mov_b64 exec, -1
    L_updn:
    s_add_u32 s57, s57, 1
    s_bitcmp1_b32 s57, 0
    s_cbranch_scc1 L_upd""")
    st(a, 8)
    a(f"""s_or_b32 s26, s2, s{L}
    s_cmp_lg_u32 s26, 0
    s_cbranch_scc1 L_svc_end
    v_lshrrev_b32 v4, 2, v1
    s_mov_b32 s57, {WS_FL}
    L_ep:""")
    poll_global(a, 5, 4, "s57", sleep=4)
    a(f"""s_add_u32 s57, s57, 256
    s_cmp_lt_u32 s57, {WS_FL+4096}
    s_cbranch_scc1 L_ep
    s_mov_b32 s26, {WS_EP}""")
    flag_store(a, 5, 9, "s26")
    a("L_svc_end:\ns_waitcnt vmcnt(0) lgkmcnt(0)")
    st_end(a)
    a("L_exit:\ns_endpgm")

def main(out):
    hdr = open("cdna_kernels/" + NAME + ".s.ref").read().split("; Override")[0]
    rep = []
    a = Asm()
    prologue(a); main_wave(a); service_wave(a)
    t = hdr
    t += f"; @launch grid=(256,1,1) block=(512,1,1) lds={LDS_BYTES}\n"
    t += '.amdgcn_target "amdgcn-amd-amdhsa--gfx950"\n'
    t += kernel_text(NAME + "_kernel", a.l, 256, report=rep)
    open(out, "w").write(t)
    if "-v" in sys.argv: print("\n".join(rep))

if __name__ == "__main__":
    main(sys.argv[1])
```

```python
import sys, math, struct
from asmlib import *

NAME = "gated_mix__softmax_full_mha__moe_arch_mod__prompt"
STAMP = "-s" in sys.argv
WS_KV = 0
WS_O = 4 << 20
WS_R = 6 << 20
WS_G = WS_R + 16384
WS_SEL = WS_R + 32768
WS_EP = WS_R + 40960
WS_FL = WS_R + 65536
WS_OFL = WS_FL + 131072
WS_YFL = WS_OFL + 131072
WS_YP = 7 << 20
WS_ST = 16 << 20
NPART = 56
XS = 0; WT = 65536; WQ = 122880; QX = 151552; UPD = 159744; CNT = 163840 - 64
WO = 0; CB = 102400
LDS_BYTES = 163840
C_Q1, C_Q2, C_X, C_L, C_S = 0, 4, 8, 12, 16
UPDI = UPD + 3584

def f32bits(x): return struct.unpack("<I", struct.pack("<f", x))[0]
QSCALE = f32bits(28 ** -0.5 * math.log2(math.e))
NLOG2E = f32bits(-math.log2(math.e))
MF = "v_mfma_f32_32x32x16_bf16"
ROLE = [0, 1, 2, 3, 14, 4, 5, 6, 7, 8, 9, 15, 10, 11, 12, 13]
ROLE_LO = sum(ROLE[i] << (4 * i) for i in range(8))
ROLE_HI = sum(ROLE[8 + i] << (4 * i) for i in range(8))
SPIN_LIMIT = 1 << 20

T, H, J, W, RL = 30, 31, 32, 33, 34
_uid = [0]
def uid(p):
    _uid[0] += 1
    return f"{p}_{_uid[0]}"

def srd(a, d, ptr, nbytes):
    a(f"s_mov_b32 s{d}, s{ptr}\ns_mov_b32 s{d+1}, s{ptr+1}\ns_mov_b32 s{d+2}, {nbytes:#x}\ns_mov_b32 s{d+3}, 0x20000")

NST = 12
def st(a, i):
    if STAMP: a(f"s_memtime s[{72+2*i}:{73+2*i}]")
def st_begin(a):
    if STAMP:
        a("s_memrealtime s[68:69]\ns_memtime s[72:73]")
        for i in range(1, NST): a(f"s_mov_b32 s{72+2*i}, 0")
def st_end(a):
    if not STAMP: return
    a(f"""s_waitcnt vmcnt(0)
    s_memrealtime s[70:71]
    s_memtime s[{72+2*NST}:{73+2*NST}]
    s_getreg_b32 s66, hwreg(HW_REG_HW_ID)
    s_getreg_b32 s67, hwreg(HW_REG_XCC_ID)
    s_mov_b64 exec, -1
    s_lshl_b32 s65, s2, 3
    s_add_u32 s65, s65, s{W}
    s_lshl_b32 s65, s65, 6
    s_add_u32 s65, s65, {WS_ST}
    s_waitcnt lgkmcnt(0)
    v_mov_b32 v4, s68
    v_mov_b32 v5, s70
    v_mov_b32 v6, s66
    v_mov_b32 v7, s67""")
    for i in range(1, NST + 1):
        a(f"s_sub_u32 s64, s{72+2*i}, s72\nv_mov_b32 v{7+i}, s64")
    a("""v_mov_b32 v2, 0
    s_mov_b64 exec, 1""")
    for k in range(4):
        a(f"buffer_store_dwordx4 v[{4+4*k}:{7+4*k}], v2, s[8:11], s65 offen offset:{16*k}")

def poll_global(a, vdst, voff, soff, mask=None, sleep=1):
    l = uid("Lpoll"); d = uid("Lpd")
    a(f"s_mov_b32 s60, {SPIN_LIMIT}")
    if mask is not None: a(f"s_mov_b64 exec, {mask}")
    a(f"""{l}:
    buffer_load_dword v{vdst}, v{voff}, s[8:11], {soff} offen sc1
    s_waitcnt vmcnt(0)
    v_cmp_ne_u32 vcc, s{T}, v{vdst}
    s_cbranch_vccz {d}
    s_mov_b64 exec, vcc
    s_sleep {sleep}
    s_sub_u32 s60, s60, 1
    s_cbranch_scc0 {l}
    s_endpgm
    {d}:
    s_mov_b64 exec, -1""")

def spin_lds(a, vaddr, off, want, vt, sleep=0):
    l = uid("Lsp"); d = uid("Lsd")
    a(f"""s_mov_b32 s60, {SPIN_LIMIT}
    {l}:
    ds_read_b32 v{vt}, v{vaddr} offset:{off}
    s_waitcnt lgkmcnt(0)
    v_readfirstlane_b32 s61, v{vt}
    s_cmp_ge_u32 s61, {want}
    s_cbranch_scc1 {d}""")
    if sleep: a(f"s_sleep {sleep}")
    a(f"""s_sub_u32 s60, s60, 1
    s_cbranch_scc0 {l}
    s_endpgm
    {d}:""")

def lds_inc(a, vaddr, off, vone):
    a(f"s_mov_b64 exec, 1\nds_add_u32 v{vaddr}, v{vone} offset:{off}\ns_mov_b64 exec, -1")

def flag_store(a, vt, vz, soff):
    a(f"v_mov_b32 v{vt}, s{T}\ns_mov_b64 exec, 1\nbuffer_store_dword v{vt}, v{vz}, s[8:11], {soff} offen sc1\ns_mov_b64 exec, -1")

def split_neg_max(a, m, t0, t1, q6, q7):
    a(f"""v_sub_f32 v{m}, 0, v{m}
    v_cvt_pk_bf16_f32 v{t0}, v{m}, v{m}
    v_lshlrev_b32 v{t0}, 16, v{t0}
    v_sub_f32 v{t0}, v{m}, v{t0}
    v_cvt_pk_bf16_f32 v{t1}, v{m}, v{t0}
    v_and_b32 v{m}, 0xffff0000, v{t1}
    v_sub_f32 v{t0}, v{t0}, v{m}
    s_mov_b32 exec_lo, 0
    v_mov_b32 v{q6}, v{t1}
    v_cvt_pk_bf16_f32 v{q7}, v{t0}, 0
    s_mov_b32 exec_lo, -1""")

def max16(a, dst, S, init=False):
    if not init:
        a(f"v_max3_f32 v{dst}, v{S}, v{S+1}, v{S+2}")
        for i in range(3, 15, 2): a(f"v_max3_f32 v{dst}, v{dst}, v{S+i}, v{S+i+1}")
        a(f"v_max_f32 v{dst}, v{dst}, v{S+15}")
    else:
        for i in range(0, 16, 2): a(f"v_max3_f32 v{dst}, v{dst}, v{S+i}, v{S+i+1}")

def wave_min_u32(a, v, full=True):
    for r in (1, 2, 4, 8):
        a(f"v_min_u32_dpp v{v}, v{v}, v{v} row_ror:{r} row_mask:0xf bank_mask:0xf")
    a(f"v_min_u32_dpp v{v}, v{v}, v{v} row_bcast:15 row_mask:0xa bank_mask:0xf")
    if full: a(f"v_min_u32_dpp v{v}, v{v}, v{v} row_bcast:31 row_mask:0xc bank_mask:0xf")

Q, O, KV, S, P = 8, 40, 104, 168, 200
XF = 104; A0, A1, WF = 40, 56, 72
VX = 216
VW = 220
VQ = 222
VC = 223
V1 = 224
VZ = 225
VT = 226
VH = 227
VA = 228
TMP = 236
VWQ = 244

def prologue(a):
    st_begin(a)
    a(f"""s_cmp_ge_u32 s2, 256
    s_cbranch_scc1 L_exit
    s_load_dwordx4 s[4:7], s[0:1], 0
    s_load_dwordx2 s[36:37], s[0:1], 88
    s_load_dwordx2 s[38:39], s[0:1], 16
    s_load_dwordx8 s[40:47], s[0:1], 32
    s_load_dwordx4 s[48:51], s[0:1], 64
    v_lshrrev_b32 v2, 6, v0
    v_and_b32 v3, 63, v0
    s_and_b32 s24, s2, 7
    s_lshr_b32 s25, s2, 3
    v_readfirstlane_b32 s{W}, v2
    s_and_b32 s{H}, s24, 1
    s_lshl_b32 s{H}, s{H}, 3
    s_and_b32 s26, s25, 7
    s_add_u32 s{H}, s{H}, s26
    s_lshr_b32 s{J}, s24, 1
    s_lshl_b32 s{J}, s{J}, 2
    s_lshr_b32 s27, s25, 3
    s_add_u32 s{J}, s{J}, s27
    s_mov_b32 s28, {ROLE_LO:#x}
    s_mov_b32 s29, {ROLE_HI:#x}
    s_lshl_b32 s27, s{H}, 2
    s_lshr_b64 s[28:29], s[28:29], s27
    s_and_b32 s{RL}, s28, 15
    v_lshlrev_b32 v1, 4, v3
    s_mov_b32 s27, {WS_EP}
    s_cmp_ge_u32 s{W}, 4
    s_cbranch_scc1 L_service
    """)

def tag(a):
    a(f"s_mul_i32 s{T}, s{T}, 0x9e3779b1\ns_add_u32 s{T}, s{T}, 0x7f4a7c15")

def main_wave(a):
    a(f"""s_setprio 1
    v_and_b32 v{VT}, 31, v3
    v_lshrrev_b32 v{VH}, 5, v3
    v_mov_b32 v{V1}, 1
    v_mov_b32 v{VZ}, 0
    v_mov_b32 v{VC}, {CNT}
    v_lshrrev_b32 v5, 1, v{VT}
    v_and_b32 v5, 7, v5
    v_xor_b32 v5, v5, v{VH}
    v_lshlrev_b32 v5, 4, v5
    v_lshl_add_u32 v5, v{VT}, 7, v5
    s_lshl_b32 s26, s{W}, 12
    v_add_u32 v{VX}, s26, v5
    v_xor_b32 v{VX+1}, 32, v{VX}
    v_xor_b32 v{VX+2}, 64, v{VX}
    v_xor_b32 v{VX+3}, 96, v{VX}
    v_bfe_u32 v4, v3, 2, 2
    v_lshl_add_u32 v5, v{VH}, 3, v4
    v_and_b32 v6, 3, v3
    v_and_b32 v7, 1, v3
    v_bfe_u32 v8, v3, 1, 1
    v_lshl_add_u32 v7, v7, 1, v8
    v_bfe_u32 v8, v3, 4, 1
    v_lshl_add_u32 v9, v8, 2, v7
    v_lshl_add_u32 v10, v8, 2, v6
    s_cmp_lt_u32 s{RL}, 7
    s_cselect_b64 vcc, -1, 0
    v_cndmask_b32 v10, v10, v9, vcc
    v_lshlrev_b32 v11, 7, v5
    v_lshl_add_u32 v11, v10, 3, v11
    v_lshrrev_b32 v4, 1, v4
    v_lshl_add_u32 v11, v4, 6, v11
    v_add_u32 v{VW}, {WT}, v11
    v_xor_b32 v{VW+1}, 64, v{VW}
    v_add_u32 v10, 2, v9
    v_sub_u32 v11, 7, v9
    v_cmp_gt_u32 vcc, 6, v9
    v_cndmask_b32 v10, v11, v10, vcc
    s_bitcmp1_b32 s{H}, 0
    s_cselect_b64 vcc, -1, 0
    v_cndmask_b32 v10, v9, v10, vcc
    v_lshlrev_b32 v11, 6, v5
    v_lshl_add_u32 v11, v10, 3, v11
    v_add_u32 v{VQ}, {WQ}, v11
    s_waitcnt lgkmcnt(0)
    s_load_dword s{T}, s[36:37], s27
    """)
    srd(a, 8, 36, 1 << 28)
    srd(a, 16, 6, 448 * 2688)
    a(f"""v_lshrrev_b32 v4, 2, v3
    v_mul_u32_u24 v4, 2688, v4
    v_lshl_add_u32 v{VWQ}, v6, 4, v4
    s_mul_i32 s62, s{H}, 56
    s_and_b32 s62, s62, 0xfffffff0
    s_mul_i32 s26, s{W}, {16*2688}
    s_add_u32 s62, s62, s26
    s_lshl_b32 s63, s{W}, 10
    s_add_u32 s63, s63, {WQ}""")
    a(f"""s_lshl_b32 s35, s{J}, 2
    s_add_u32 s35, s35, s{W}
    s_lshl_b32 s52, s35, 12
    s_cmp_ge_u32 s{RL}, 14
    s_cbranch_scc1 L_roleR
    s_cmp_ge_u32 s{RL}, 7
    s_cbranch_scc1 L_roleV""")

    def gemm(kind):
        def reads(c, s):
            k = 4 * c + s
            a(f"ds_read_b128 {vr(XF+4*k,4)}, v{VX+s} offset:{(c&3)*16384}")
            f = WF + 8 * s
            if kind == "R":
                a(f"ds_read_b128 {vr(f,4)}, v{VW} offset:{k*32}")
            else:
                for n in range(2):
                    a(f"ds_read_b64_tr_b16 {vr(f+4*n,2)}, v{VW+n} offset:{k*2048}")
                    a(f"ds_read_b64_tr_b16 {vr(f+4*n+2,2)}, v{VW+n} offset:{k*2048+512}")
        def mfmas(c, s):
            k = 4 * c + s
            f = WF + 8 * s
            for n in range(1 if kind == "R" else 2):
                acc = (A0, A1)[n]
                cc = "0" if k == 0 else vr(acc, 16)
                if kind == "V": a(f"{MF} {vr(acc,16)}, {vr(XF+4*k,4)}, {vr(f+4*n,4)}, {cc}")
                else:           a(f"{MF} {vr(acc,16)}, {vr(f+4*n,4)}, {vr(XF+4*k,4)}, {cc}")
        per = 2 if kind == "R" else 5
        for c in range(7):
            a("s_barrier")
            if c == 0: st(a, 1)
            if c == 6: st(a, 2)
            if STAMP and c in (0, 6): a("s_waitcnt lgkmcnt(0)")
            reads(c, 0); reads(c, 1)
            for s in range(4):
                if s < 2: reads(c, s + 2)
                left = min(3 - s, 2) * per
                a(f"s_waitcnt lgkmcnt({left})")
                if s == 3 and c == 6: a("s_barrier")
                mfmas(c, s)

    PK = 8
    for i in range(4):
        a(f"""s_lshl_b32 s26, s{RL}, 3
        s_add_u32 s26, s26, {2*i}
        v_add_u32 v4, s26, v{VH}
        v_mul_u32_u24 v5, 37, v4
        v_lshrrev_b32 v5, 8, v5
        v_mul_u32_u24 v6, 7, v5
        v_sub_u32 v6, v4, v6
        v_lshrrev_b32 v7, 2, v6
        v_lshl_add_u32 v5, v5, 1, v7
        v_cmp_eq_u32 s[{54+2*i}:{55+2*i}], 3, v6
        v_and_b32 v6, 3, v6
        v_lshlrev_b32 v5, 18, v5
        v_lshl_add_u32 v5, v6, 9, v5
        v_lshl_add_u32 v{VA+i}, v{VT}, 4, v5""")
    a("s_waitcnt lgkmcnt(0)")
    tag(a)
    gemm("K")
    a(f"v_mov_b32 v{TMP+2}, 0x3f803f80\nv_mov_b32 v{TMP+3}, 0x3f803f80\ns_add_u32 s53, s52, {1<<18}")
    for i in range(4):
        acc = (A0, A1)[i >> 1] + 8 * (i & 1)
        p = PK + 4 * i
        for e in range(4): a(f"v_cvt_pk_bf16_f32 v{p+e}, v{acc+2*e}, v{acc+2*e+1}")
        l = uid("Lnosh")
        a(f"""s_mov_b64 exec, s[{54+2*i}:{55+2*i}]
        s_cbranch_execz {l}
        v_mov_b32 v{TMP}, v{p+2}
        v_mov_b32 v{TMP+1}, v{p+3}
        v_mov_b32 v{p+2}, 0x3f803f80
        v_mov_b32 v{p+3}, 0x3f803f80
        buffer_store_dwordx4 {vr(TMP,4)}, v{VA+i}, s[8:11], s53 offen sc1
        s_nop 1
        {l}:
        s_mov_b64 exec, -1
        buffer_store_dwordx4 {vr(p,4)}, v{VA+i}, s[8:11], s52 offen sc1""")
    a("s_branch L_pub")
    a.label("L_roleV")
    for n in range(2):
        a(f"""s_lshl_b32 s26, s{RL}, 6
        s_sub_u32 s26, s26, {7*64 - 32*n}
        v_add_u32 v4, s26, v{VT}
        v_mul_u32_u24 v5, 2341, v4
        v_lshrrev_b32 v5, 16, v5
        v_mul_u32_u24 v6, 28, v5
        v_sub_u32 v6, v4, v6
        v_cmp_le_u32 s[{54+2*n}:{55+2*n}], 24, v6
        v_cmp_eq_u32 vcc, 24, v6
        v_mov_b32 v7, 0x3f803f80
        v_cndmask_b32 v{TMP+4*n}, 0, v7, vcc
        v_lshlrev_b32 v5, 18, v5
        v_lshl_add_u32 v5, v6, 4, v5
        v_lshl_add_u32 v{VA+n}, v{VH}, 9, v5""")
        for e in range(1, 4): a(f"v_mov_b32 v{TMP+4*n+e}, v{TMP+4*n}")
    for n in range(2):
        l = uid("Lnop")
        a(f"""s_mov_b64 exec, s[{54+2*n}:{55+2*n}]
        s_cbranch_execz {l}
        buffer_store_dwordx4 {vr(TMP+4*n,4)}, v{VA+n}, s[8:11], s52 offen offset:{2048+64} sc1
        buffer_store_dwordx4 {vr(TMP+4*n,4)}, v{VA+n}, s[8:11], s52 offen offset:{3072+64} sc1
        {l}:
        s_mov_b64 exec, -1""")
    a("s_waitcnt lgkmcnt(0)")
    tag(a)
    gemm("V")
    for i in range(4):
        acc = (A0, A1)[i >> 1] + 8 * (i & 1)
        p = PK + 4 * i
        for e in range(4): a(f"v_cvt_pk_bf16_f32 v{p+e}, v{acc+2*e}, v{acc+2*e+1}")
        a(f"buffer_store_dwordx4 {vr(p,4)}, v{VA+(i>>1)}, s[8:11], s52 offen offset:{2048+1024*(i&1)} sc1")
    a("s_branch L_pub")
    a.label("L_roleR")
    a(f"""v_and_b32 v4, 1, v3
    v_lshlrev_b32 v4, 10, v4
    v_lshl_add_u32 v4, v{VH}, 4, v4
    v_add_u32 v{VW}, {WT}, v4
    s_waitcnt lgkmcnt(0)""")
    tag(a)
    gemm("R")
    a(f"""s_cmp_lg_u32 s{RL}, 14
    s_cbranch_scc1 L_pub
    s_mov_b32 exec_hi, 0
    s_nop 7
    s_nop 3
    v_cvt_pk_bf16_f32 v4, v{A0}, v{A0+1}
    v_and_b32 v5, 0xffff0000, v4
    v_lshlrev_b32 v4, 16, v4
    v_ashrrev_i32 v6, 31, v4
    v_or_b32 v6, 0x80000000, v6
    v_xor_b32 v6, v6, v4
    v_and_b32 v6, 0xffff0000, v6
    v_cmp_u_f32 vcc, v4, v4
    v_cndmask_b32 v6, v6, 0, vcc
    s_lshl_b32 s26, s35, 5
    v_add_u32 v7, s26, v{VT}
    v_sub_u32 v8, 0xffff, v7
    v_or_b32 v6, v6, v8
    v_lshlrev_b32 v9, 3, v7
    v_mov_b32 v7, s{T}
    s_mov_b32 s26, {WS_R}
    buffer_store_dwordx2 v[6:7], v9, s[8:11], s26 offen sc1
    v_mul_f32 v5, {NLOG2E:#x}, v5
    v_exp_f32 v5, v5
    v_add_f32 v5, 1.0, v5
    v_rcp_f32 v5, v5
    v_cvt_pk_bf16_f32 v5, v5, v5
    v_lshlrev_b32 v4, 16, v5
    v_mov_b32 v5, s{T}
    s_mov_b32 s26, {WS_G}
    buffer_store_dwordx2 v[4:5], v9, s[8:11], s26 offen sc1
    s_mov_b32 exec_hi, -1
    """)
    a.label("L_pub")
    st(a, 3)
    for i in range(7):
        a(f"""s_add_u32 m0, s63, {i*4096}
        s_add_u32 s26, s62, {i*64*2688}
        buffer_load_dwordx4 v{VWQ}, s[16:19], s26 offen lds""")
    a(f"""s_lshl_b32 s26, s{RL}, 6
    s_add_u32 s26, s26, s35
    s_lshl_b32 s26, s26, 7
    s_add_u32 s26, s26, {WS_FL}
    s_waitcnt vmcnt(7)""")
    flag_store(a, 4, VZ, "s26")
    st(a, 4)
    a("s_waitcnt vmcnt(4)")
    lds_inc(a, VC, C_Q1, V1)
    def qreads(k):
        f = WF + 4 * (k & 7)
        a(f"ds_read_b64_tr_b16 {vr(f,2)}, v{VQ} offset:{k*1024}\nds_read_b64_tr_b16 {vr(f+2,2)}, v{VQ} offset:{k*1024+256}")
    for lo, hi, cnt in ((0, 16, C_Q1), (16, 28, C_Q2)):
        if lo:
            a("s_waitcnt vmcnt(1)")
            lds_inc(a, VC, C_Q2, V1)
        spin_lds(a, VC, cnt, 4, 4)
        for k in range(lo, lo + 6): qreads(k)
        for k in range(lo, hi):
            if k + 6 < hi: qreads(k + 6)
            a(f"s_waitcnt lgkmcnt({2*(min(hi-1,k+6)-k)})")
            a(f"{MF} {vr(A0,16)}, {vr(WF+4*(k&7),4)}, {vr(XF+4*k,4)}, {'0' if k==0 else vr(A0,16)}")
    a(f"""s_mul_i32 s26, s{H}, 28
    s_add_u32 s27, s26, 27
    s_lshr_b32 s26, s26, 6
    s_lshr_b32 s27, s27, 6
    v_mov_b32 v4, s26
    v_mov_b32 v5, s27
    v_bfe_u32 v6, v3, 4, 1
    v_cmp_eq_u32 vcc, 1, v6
    v_cndmask_b32 v4, v4, v5, vcc
    v_mul_u32_u24 v7, 7, v{VH}
    v_add_u32 v7, v7, v4
    v_and_b32 v6, 15, v3
    v_lshl_add_u32 v7, v7, 6, v6
    s_lshl_b32 s28, s{W}, 4
    v_add_u32 v7, s28, v7
    v_lshlrev_b32 v7, 7, v7
    s_lshl_b32 s28, s{J}, 2
    v_lshl_add_u32 v6, v4, 6, s28
    v_lshlrev_b32 v6, 7, v6
    s_mov_b32 s28, {QSCALE:#x}
    s_mov_b32 s29, {QSCALE:#x}""")
    for i in range(8): a(f"v_pk_mul_f32 {vr(A0+2*i,2)}, {vr(A0+2*i,2)}, s[28:29]")
    for i in range(8): a(f"v_cvt_pk_bf16_f32 v{Q+i}, v{A0+2*i}, v{A0+2*i+1}")
    a(f"""s_mov_b32 exec_lo, 0
    v_mov_b32 v{Q+6}, 0
    v_mov_b32 v{Q+7}, 0
    s_mov_b32 exec_lo, -1
    s_lshl_b32 s28, s{W}, 11
    s_add_u32 s28, s28, {QX}
    v_add_u32 v5, s28, v1
    ds_write_b128 v5, {vr(Q,4)}
    ds_write_b128 v5, {vr(Q+4,4)} offset:1024
    s_waitcnt lgkmcnt(0)""")
    lds_inc(a, VC, C_X, V1)
    st(a, 5)
    a(f"""s_lshl_b32 s53, s{H}, 18
    s_lshl_b32 s28, s{W}, 16
    s_add_u32 s28, s28, s53
    s_add_u32 s16, s36, s28
    s_addc_u32 s17, s37, 0
    s_mov_b32 s18, 65536
    s_mov_b32 s19, 0x20000
    s_mov_b32 s28, {WS_FL}""")
    for i in range(8): a(f"v_mov_b32 v{KV+48+8+i}, 0")
    for i in range(8): a(f"v_mov_b32 v{P+8+i}, 0")
    poll_global(a, 4, 6, "s28", mask="0x10001")
    def ldK(b, soff):
        return [f"buffer_load_dwordx4 {vr(KV+16*b,4)}, v1, s[16:19], {soff} offen sc1",
                f"buffer_load_dwordx4 {vr(KV+16*b+4,4)}, v1, s[16:19], {soff} offen offset:1024 sc1"]
    def ldV(b, soff):
        return [f"buffer_load_dwordx4 {vr(KV+16*b+8,4)}, v1, s[16:19], {soff} offen offset:2048 sc1",
                f"buffer_load_dwordx4 {vr(KV+16*b+12,4)}, v1, s[16:19], {soff} offen offset:3072 sc1"]
    poll_global(a, 4, 7, "s28")
    st(a, 6)
    a(f"""s_lshl_b32 s29, s{J}, 14
    s_add_u32 s29, s29, s53
    buffer_load_dwordx4 {vr(P,4)}, v1, s[8:11], s29 offen sc1
    buffer_load_dwordx4 {vr(P+4,4)}, v1, s[8:11], s29 offen offset:1024 sc1
    s_mov_b32 s54, 4096
    s_mov_b32 s55, 8192
    s_mov_b32 s56, 12288""")
    for x in ldK(0, 0) + ldV(0, 0) + ldK(1, "s54") + ldV(1, "s54") + ldK(2, "s55") + ldV(2, "s55") + ldK(3, "s56"): a(x)
    spin_lds(a, VC, C_X, 4, 4)
    for i in (1, 2, 3):
        a(f"""s_add_u32 s28, s{W}, {i}
        s_and_b32 s28, s28, 3
        s_lshl_b32 s28, s28, 11
        s_add_u32 s28, s28, {QX}
        v_add_u32 v5, s28, v1
        ds_read_b128 {vr(Q+8*i,4)}, v5
        ds_read_b128 {vr(Q+8*i+4,4)}, v5 offset:1024""")
    lds_inc(a, VC, C_L, V1)
    a("s_waitcnt vmcnt(14) lgkmcnt(0)")
    for i in range(4):
        a(f"{MF} {vr(O+16*i,16)}, {vr(P,4)}, {vr(Q+8*i,4)}, 0")
        a(f"{MF} {vr(O+16*i,16)}, {vr(P+4,4)}, {vr(Q+8*i+4,4)}, {vr(O+16*i,16)}")
    a("s_mov_b32 exec_lo, 0")
    for i in range(4):
        max16(a, 4, O + 16 * i)
        a(f"v_cvt_pk_bf16_f32 v{Q+8*i+6}, -v4, 0")
    a("s_mov_b32 exec_lo, -1\ns_waitcnt vmcnt(10)")
    def QK(u, m):
        kt, qs = (u >> 2) & 3, u & 3
        s = S + 16 * (u & 1)
        c = "0" if m == 0 else vr(s, 16)
        return f"{MF} {vr(s,16)}, {vr(KV+16*kt+4*m,4)}, {vr(Q+8*qs+4*m,4)}, {c}"
    def PV(u, m):
        kt, qs = (u >> 2) & 3, u & 3
        return f"{MF} {vr(O+16*qs,16)}, {vr(KV+16*kt+8+4*m,4)}, {vr(P+8*(u&1)+4*m,4)}, {vr(O+16*qs,16)}"
    a(QK(0, 0)); a(QK(0, 1))
    for i in range(0, 64, 2): a(f"v_pk_mul_f32 {vr(O+i,2)}, {vr(P+8,2)}, {vr(P+8,2)}")
    st(a, 7)
    a("s_mov_b32 s57, 4")
    a(".p2align 6")
    a.label("L_loop")
    for u in range(16):
        kt, qs = u >> 2, u & 3
        s = S + 16 * (u & 1); p = P + 8 * (u & 1)
        e = lambda i: f"v_exp_f32 v{s+i}, v{s+i}"
        c = lambda i: f"v_cvt_pk_bf16_f32 v{p+i}, v{s+2*i}, v{s+2*i+1}"
        ex = [[], [], [], []]
        if qs == 1:
            l = ldV((kt + 3) & 3, "s56")
            ex[0] = [l[0]]; ex[1] = [l[1]]; ex[2] = ["s_add_u32 s56, s56, 4096"]
        if qs == 2: ex[3] = ["s_waitcnt vmcnt(8)"]
        if qs == 3:
            l = ldK(kt, "s56")
            ex[0] = [l[0]]; ex[1] = [l[1]]
        if u == 15:
            ex[2] = ["s_sub_u32 s57, s57, 1"]; ex[3] = ["s_cmp_lg_u32 s57, 0"]
        seq = [QK(u+1, 0)] + ex[0] + [e(0), e(1), e(2), e(3), c(0), e(4),
               PV(u-1, 0)] + ex[1] + [e(5), c(1), e(6), e(7), c(2), e(8),
               QK(u+1, 1)] + ex[2] + [e(9), c(3), e(10), e(11), c(4), e(12),
               PV(u-1, 1)] + ex[3] + [e(13), c(5), e(14), e(15), c(6), c(7)]
        for x in seq: a(x)
    a("s_cbranch_scc1 L_loop")
    st(a, 8)
    a(PV(15, 0)); a(PV(15, 1))
    for i in (1, 2, 3):
        a(f"""s_add_u32 s28, s{W}, {i}
        s_and_b32 s28, s28, 3
        s_mul_i32 s28, s28, 12288
        s_add_u32 s28, s28, {CB + (i-1)*4096}
        v_add_u32 v{3+i}, s28, v1""")
    a(f"s_mul_i32 s28, s{W}, 12288\ns_add_u32 s28, s28, {CB}\nv_add_u32 v2, s28, v1")
    for i in (1, 2, 3):
        for k in range(4): a(f"ds_write_b128 v{3+i}, {vr(O+16*i+4*k,4)} offset:{k*1024}")
    XR, GR = 240, 248
    srd(a, 12, 4, 2048 * 896)
    srd(a, 20, 50, 2048 * 896)
    a(f"""s_lshr_b32 s58, s{H}, 2
    s_lshl_b32 s28, s{J}, 2
    s_add_u32 s58, s58, s28
    s_and_b32 s59, s{H}, 3
    s_lshl_b32 s59, s59, 2
    s_add_u32 s59, s59, s{W}
    s_mul_i32 s59, s59, 56
    s_lshl_b32 s28, s58, 5
    v_add_u32 v{VA}, s28, v{VT}
    v_mul_u32_u24 v{VA+1}, 896, v{VA}
    v_lshl_add_u32 v{VA+1}, v{VH}, 3, v{VA+1}
    v_lshlrev_b32 v{VA}, 3, v{VA}
    s_mov_b32 s28, {WS_G}
    L_gate:
    buffer_load_dwordx2 {vr(GR,2)}, v{VA}, s[8:11], s28 offen sc1""")
    for k in range(4):
        a(f"buffer_load_dwordx2 {vr(XR+2*k,2)}, v{VA+1}, s[12:15], s59 offen offset:{16*k}")
    a(f"""s_waitcnt vmcnt(4)
    v_cmp_ne_u32 vcc, s{T}, v{GR+1}
    s_cbranch_vccnz L_gate
    s_waitcnt lgkmcnt(0)
    s_barrier""")
    TT = KV
    for k in range(12): a(f"ds_read_b128 {vr(TT+4*k,4)}, v2 offset:{k*1024}")
    for i in range(3):
        a(f"s_waitcnt lgkmcnt({8-4*i})")
        for k in range(8): a(f"v_pk_add_f32 {vr(O+2*k,2)}, {vr(O+2*k,2)}, {vr(TT+16*i+2*k,2)}")
    a("s_mov_b32 s57, 0")
    a.label("L_fin")
    a(f"""v_mov_b32 v5, v{O+12}
    v_mov_b32 v4, v{O+12}
    s_mov_b32 s28, 0x30800000
    s_mov_b32 s29, 0x4e800000
    v_permlane32_swap_b32 v5, v4
    s_mov_b32 exec_lo, 0
    v_mov_b32 v{O+12}, 0
    v_mov_b32 v{O+13}, 0
    v_mov_b32 v{O+14}, 0
    v_mov_b32 v{O+15}, 0
    s_mov_b32 exec_lo, -1
    v_rcp_f32 v6, v4
    v_cmp_nle_f32 s[54:55], s28, v4
    v_cmp_nge_f32 s[62:63], s29, v4
    """)
    for k in range(8): a(f"v_pk_mul_f32 {vr(O+2*k,2)}, {vr(O+2*k,2)}, v[6:7] op_sel_hi:[1,0]")
    a(f"v_pk_add_f32 v[4:5], {vr(O,2)}, {vr(O+2,2)}")
    for k in range(2, 8): a(f"v_pk_add_f32 v[4:5], v[4:5], {vr(O+2*k,2)}")
    a(f"""v_add_f32 v4, v4, v5
    s_movk_i32 s28, 0x207
    v_cmp_class_f32 vcc, v4, s28
    s_or_b64 s[54:55], s[54:55], s[62:63]
    s_or_b64 s[54:55], s[54:55], vcc
    s_cbranch_scc0 L_store
    s_cmp_eq_u32 s57, 0
    s_cbranch_scc1 L_slow
    L_store:""")
    for k in range(8): a(f"v_cvt_pk_bf16_f32 v{Q+k}, v{O+2*k}, v{O+2*k+1}")
    a(f"""s_lshl_b32 s28, s35, 4
    s_add_u32 s28, s28, s{H}
    s_lshl_b32 s29, s28, 7
    s_add_u32 s29, s29, {WS_OFL}
    s_lshl_b32 s28, s28, 11
    s_add_u32 s28, s28, {WS_O}
    buffer_store_dwordx4 {vr(Q,4)}, v1, s[8:11], s28 offen sc1
    buffer_store_dwordx4 {vr(Q+4,4)}, v1, s[8:11], s28 offen offset:1024 sc1""")
    st(a, 9)
    WOF = 104
    a(f"""v_bfe_u32 v4, v3, 2, 2
    v_lshl_add_u32 v4, v{VH}, 2, v4
    v_mul_u32_u24 v4, 224, v4
    v_bfe_u32 v5, v3, 4, 1
    v_lshl_add_u32 v4, v5, 5, v4
    v_and_b32 v5, 3, v3
    v_lshl_add_u32 v4, v5, 3, v4
    s_mul_i32 s28, s{W}, 56
    v_add_u32 v4, s28, v4
    v_add_u32 v5, {8*28*224}, v4
    v_mov_b32 v16, v{VT}
    v_mov_b32 v17, v{VH}
    v_mov_b32 v18, v{VA+1}
    v_mov_b32 v19, 0""")
    def word(k):
        hd, m = k >> 1, k & 1
        o = (28 * (hd & 7) + 16 * m) * 224
        b = 4 + (hd >> 3)
        a(f"ds_read_b64_tr_b16 {vr(WOF+4*k,2)}, v{b} offset:{o}\nds_read_b64_tr_b16 {vr(WOF+4*k+2,2)}, v{b} offset:{o+8*224}")
    for k in range(12): word(k)
    a("s_waitcnt vmcnt(0)")
    flag_store(a, 6, 19, "s29")
    for k in range(12, 32): word(k)
    B = 24
    for k in range(8):
        a(f"v_lshlrev_b32 v{B+2*k}, 16, v{XR+k}\nv_and_b32 v{B+2*k+1}, 0xffff0000, v{XR+k}")
    a(f"""v_mov_b32 v6, {UPDI}
    ds_read_b128 v[8:11], v6
    ds_read_b128 v[12:15], v6 offset:16
    s_mul_i32 s28, s{W}, 112
    s_add_u32 s28, s28, {UPD}
    v_lshl_add_u32 v7, v17, 4, s28
    s_waitcnt lgkmcnt(0)""")
    U = 40
    for n in range(8):
        l = uid("Lnu")
        a(f"""v_cmp_eq_u32 vcc, v{8+n}, v16
        s_cbranch_vccz {l}
        s_mov_b64 exec, vcc""")
        for k in range(4): a(f"ds_read_b128 {vr(U+4*k,4)}, v7 offset:{n*448+32*k}")
        a("s_waitcnt lgkmcnt(0)")
        for k in range(8):
            a(f"""v_pk_add_f32 {vr(B+2*k,2)}, {vr(B+2*k,2)}, {vr(U+2*k,2)}
            v_cvt_pk_bf16_f32 v{B+2*k}, v{B+2*k}, v{B+2*k+1}
            v_and_b32 v{B+2*k+1}, 0xffff0000, v{B+2*k}
            v_lshlrev_b32 v{B+2*k}, 16, v{B+2*k}""")
        a(f"s_mov_b64 exec, -1\n{l}:")
    a(f"""v_sub_f32 v20, 1.0, v{GR}
    v_cvt_pk_bf16_f32 v20, v20, v20
    v_lshlrev_b32 v20, 16, v20""")
    for k in range(8): a(f"v_pk_mul_f32 {vr(B+2*k,2)}, {vr(B+2*k,2)}, v[20:21] op_sel_hi:[1,0]")
    a(f"""s_lshl_b32 s28, s58, 4
    s_lshl_b32 s29, s{W}, 2
    s_add_u32 s28, s28, s29
    s_lshl_b32 s29, s28, 11
    s_add_u32 s29, s29, {WS_O}
    s_lshl_b32 s28, s28, 7
    s_add_u32 s28, s28, {WS_OFL}
    v_lshlrev_b32 v6, 3, v1""")
    poll_global(a, 7, 6, "s28", mask="15")
    st(a, 10)
    OS = 56
    for k in range(8):
        if k == 4: a("s_add_u32 s29, s29, 4096")
        a(f"buffer_load_dwordx4 {vr(OS+4*k,4)}, v1, s[8:11], s29 offen offset:{(k&3)*1024} sc1")
    for k in range(8):
        a(f"s_waitcnt vmcnt({7-k})\nds_write_b128 v2, {vr(OS+4*k,4)} offset:{k*1024}")
    a(f"v_add_u32 v6, {CB}, v1\ns_waitcnt lgkmcnt(0)\ns_barrier")
    st(a, 11)
    if STAMP: a("s_waitcnt lgkmcnt(0)")
    ACC = 88
    def ord_(k): a(f"ds_read_b128 {vr(OS+4*(k&7),4)}, v6 offset:{(k>>3)*12288+(k&7)*1024}")
    for k in range(6): ord_(k)
    for k in range(32):
        if k + 6 < 32: ord_(k + 6)
        a(f"s_waitcnt lgkmcnt({min(31,k+6)-k})")
        a(f"{MF} {vr(ACC,16)}, {vr(WOF+4*k,4)}, {vr(OS+4*(k&7),4)}, {'0' if k==0 else vr(ACC,16)}")
    for k in range(8):
        a(f"v_pk_fma_f32 {vr(B+2*k,2)}, {vr(ACC+2*k,2)}, {vr(GR,2)}, {vr(B+2*k,2)} op_sel_hi:[1,0,1]")
    for k in range(8): a(f"v_cvt_pk_bf16_f32 v{8+k}, v{B+2*k}, v{B+2*k+1}")
    for k in range(4):
        if k == 3: a("s_mov_b32 exec_hi, 0")
        a(f"buffer_store_dwordx2 {vr(8+2*k,2)}, v18, s[20:23], s59 offen offset:{16*k}")
    st_end(a)
    a("s_endpgm")
    a.label("L_slow")
    a(f"""s_mov_b32 s57, 1
    s_add_u32 s55, s53, {64*4096}
    s_mov_b32 s54, s53
    s_mov_b32 exec_lo, 0
    v_mov_b32 v{Q+6}, 0
    v_mov_b32 v{Q+7}, 0
    s_mov_b32 exec_lo, -1
    v_mov_b32 v4, 0xff800000
    L_slow1:
    buffer_load_dwordx4 {vr(KV,4)}, v1, s[8:11], s54 offen sc1
    buffer_load_dwordx4 {vr(KV+4,4)}, v1, s[8:11], s54 offen offset:1024 sc1
    s_waitcnt vmcnt(0)
    {MF} {vr(S,16)}, {vr(KV,4)}, {vr(Q,4)}, 0
    {MF} {vr(S,16)}, {vr(KV+4,4)}, {vr(Q+4,4)}, {vr(S,16)}""")
    max16(a, 4, S, init=True)
    a("""s_add_u32 s54, s54, 4096
    s_cmp_lt_u32 s54, s55
    s_cbranch_scc1 L_slow1
    v_mov_b32 v5, v4
    v_permlane32_swap_b32 v4, v5
    v_max_f32 v4, v4, v5""")
    split_neg_max(a, 4, 5, 6, Q + 6, Q + 7)
    for i in range(16): a(f"v_mov_b32 v{O+i}, 0")
    a(f"""s_mov_b32 s54, s53
    L_slow2:
    buffer_load_dwordx4 {vr(KV,4)}, v1, s[8:11], s54 offen sc1
    buffer_load_dwordx4 {vr(KV+4,4)}, v1, s[8:11], s54 offen offset:1024 sc1
    buffer_load_dwordx4 {vr(KV+8,4)}, v1, s[8:11], s54 offen offset:2048 sc1
    buffer_load_dwordx4 {vr(KV+12,4)}, v1, s[8:11], s54 offen offset:3072 sc1
    s_waitcnt vmcnt(0)
    {MF} {vr(S,16)}, {vr(KV,4)}, {vr(Q,4)}, 0
    {MF} {vr(S,16)}, {vr(KV+4,4)}, {vr(Q+4,4)}, {vr(S,16)}""")
    for i in range(16): a(f"v_exp_f32 v{S+i}, v{S+i}")
    for i in range(8): a(f"v_cvt_pk_bf16_f32 v{P+i}, v{S+2*i}, v{S+2*i+1}")
    a(f"""{MF} {vr(O,16)}, {vr(KV+8,4)}, {vr(P,4)}, {vr(O,16)}
    {MF} {vr(O,16)}, {vr(KV+12,4)}, {vr(P+4,4)}, {vr(O,16)}
    s_nop 7
    s_nop 7
    s_add_u32 s54, s54, 4096
    s_cmp_lt_u32 s54, s55
    s_cbranch_scc1 L_slow2
    s_branch L_fin""")

def service_wave(a):
    a.label("L_service")
    L = 35
    a(f"""s_setprio 2
    s_sub_u32 s{L}, s{W}, 4
    v_lshrrev_b32 v4, 3, v3
    v_mul_u32_u24 v5, 896, v4
    v_and_b32 v6, 7, v3
    v_lshrrev_b32 v7, 4, v3
    v_xor_b32 v7, v6, v7
    v_lshl_add_u32 v10, v7, 4, v5
    v_xor_b32 v7, 4, v7
    v_lshl_add_u32 v11, v7, 4, v5
    v_mul_u32_u24 v5, 2688, v4
    v_and_b32 v4, 2, v4
    v_lshlrev_b32 v4, 1, v4
    v_xor_b32 v4, v4, v6
    v_lshl_add_u32 v12, v4, 4, v5
    v_mov_b32 v14, {CNT}
    v_mov_b32 v15, 1
    v_mov_b32 v9, 0
    s_lshl_b32 s52, s{J}, 2
    s_add_u32 s52, s52, s{L}
    s_mul_i32 s52, s52, {32*896}
    s_lshl_b32 s53, s{RL}, 7
    s_mul_i32 s26, s{L}, {16*2688}
    s_add_u32 s53, s53, s26
    s_add_u32 s53, s53, 896
    s_lshl_b32 s54, s{L}, 12
    s_lshl_b32 s55, s{L}, 11
    s_add_u32 s55, s55, {WT}
    s_waitcnt lgkmcnt(0)
    s_load_dword s{T}, s[36:37], s27""")
    srd(a, 12, 4, 2048 * 896)
    srd(a, 16, 6, 448 * 2688)
    srd(a, 8, 36, 1 << 28)
    a(f"s_cmp_ge_u32 s{RL}, 14\ns_cbranch_scc1 L_svcR")
    def xdma(c):
        for i in range(4):
            a(f"""s_add_u32 m0, s54, {(c&3)*16384 + i*1024}
            s_add_u32 s26, s52, {c*128 + i*8*896}
            buffer_load_dwordx4 v{10+(i&1)}, s[12:15], s26 offen lds""")
    def wdma(c):
        for i in range(2):
            a(f"""s_add_u32 m0, s55, {c*8192 + i*1024}
            s_add_u32 s26, s53, {(c*64 + i*8)*2688}
            buffer_load_dwordx4 v12, s[16:19], s26 offen lds""")
    def init_lds():
        a(f"""v_lshrrev_b32 v4, 2, v1
        v_add_u32 v4, {UPDI}, v4
        v_mov_b32 v5, -1
        s_mov_b64 exec, 0xff
        ds_write_b32 v4, v5
        ds_write_b32 v4, v9 offset:{CNT-UPDI}
        s_mov_b64 exec, -1""")
        for e in range(7):
            a(f"""v_add_u32 v4, {64*e}, v3
            v_mul_u32_u24 v5, 4682, v4
            v_lshrrev_b32 v5, 16, v5
            v_mul_u32_u24 v5, {896-224}, v5
            v_lshl_add_u32 v{200+e}, v4, 4, v5""")
    def loader(withW):
        n = 6 if withW else 4
        for c in range(3):
            if withW: wdma(c)
            xdma(c)
        init_lds()
        last = 2
        for c in range(7):
            a(f"s_waitcnt vmcnt({n*(last-c)}) lgkmcnt(0)\ns_barrier")
            if last < 6:
                last += 1
                if withW: wdma(last)
                xdma(last)
    loader(True)
    a("s_branch L_svcQ")
    a.label("L_svcR")
    srd(a, 20, 40, 896)
    a(f"""s_mov_b32 m0, {WT}
    s_nop 0
    buffer_load_dwordx4 v1, s[20:23], 0 offen lds
    s_mov_b32 s20, s48
    s_mov_b32 s21, s49
    s_mov_b32 m0, {WT+1024}
    s_nop 0
    buffer_load_dwordx4 v1, s[20:23], 0 offen lds""")
    loader(False)
    a.label("L_svcQ")
    st(a, 1)
    tag(a)
    a("s_barrier")
    st(a, 2)
    PW = 56
    a(f"""s_cmp_ge_u32 s25, 7
    s_cbranch_scc1 L_svcWo
    s_mul_i32 s{PW}, s24, 7
    s_add_u32 s{PW}, s{PW}, s25""")
    nbar = [0]
    def sbar():
        nbar[0] += 1
        a("s_waitcnt lgkmcnt(0)")
        lds_inc(a, 14, C_S, 15)
        spin_lds(a, 14, C_S, 4 * nbar[0], 8, sleep=1)
    GI, UI, SC = 0, 28672, 57344
    KEY, D = 16, 24
    a(f"""s_lshl_b32 s26, s{L}, 12
    s_add_u32 s26, s26, {WS_R}
    s_mov_b32 s60, {SPIN_LIMIT}
    L_keys:""")
    for k in range(4): a(f"buffer_load_dwordx4 {vr(40+4*k,4)}, v1, s[8:11], s26 offen offset:{1024*k} sc1")
    a(f"""s_waitcnt vmcnt(0)
    v_xor_b32 v4, s{T}, v41
    v_xor_b32 v5, s{T}, v43""")
    for k in range(2, 8, 2):
        a(f"v_bitop3_b32 v4, v4, v{41+2*k}, s{T} bitop3:0xf6\nv_bitop3_b32 v5, v5, v{43+2*k}, s{T} bitop3:0xf6")
    a(f"""v_or_b32 v4, v4, v5
    v_cmp_ne_u32 vcc, 0, v4
    s_cbranch_vccz L_keys_ok
    s_sleep 4
    s_sub_u32 s60, s60, 1
    s_cbranch_scc0 L_keys
    s_endpgm
    L_keys_ok:
    s_mov_b32 s58, -1""")
    st(a, 3)
    a("s_mov_b32 s57, 0\nL_top1:")
    for i in range(8): a(f"v_sub_u32 v{D+i}, s58, v{40+2*i}")
    a(f"""v_min3_u32 v{D}, v{D}, v{D+1}, v{D+2}
    v_min3_u32 v{D+3}, v{D+3}, v{D+4}, v{D+5}
    v_min3_u32 v{D}, v{D}, v{D+6}, v{D+7}
    v_min_u32 v{D}, v{D}, v{D+3}""")
    wave_min_u32(a, D)
    a(f"""v_readlane_b32 s59, v{D}, 63
    s_mov_b32 m0, s57
    s_sub_u32 s59, s58, s59
    s_sub_u32 s58, s59, 1
    v_writelane_b32 v6, s59, m0
    s_add_u32 s57, s57, 1
    s_cmp_lt_u32 s57, 8
    s_cbranch_scc1 L_top1
    s_lshl_b32 s26, s{L}, 5
    s_add_u32 s26, s26, {SC}
    v_lshl_add_u32 v7, v3, 2, s26
    s_mov_b64 exec, 0xff
    ds_write_b32 v7, v6
    s_mov_b64 exec, -1
    v_and_b32 v32, 31, v3
    v_lshrrev_b32 v33, 5, v3
    v_lshlrev_b32 v7, 2, v32""")
    sbar()
    a(f"""ds_read_b32 v{KEY}, v7 offset:{SC}
    s_mov_b32 s58, -1
    s_mov_b32 s57, 0
    s_waitcnt lgkmcnt(0)
    L_top2:
    v_sub_u32 v{D}, s58, v{KEY}""")
    wave_min_u32(a, D, full=False)
    a(f"""v_readlane_b32 s59, v{D}, 31
    s_mov_b32 m0, s57
    s_sub_u32 s59, s58, s59
    s_sub_u32 s58, s59, 1
    v_writelane_b32 v6, s59, m0
    s_add_u32 s57, s57, 1
    s_cmp_lt_u32 s57, 8
    s_cbranch_scc1 L_top2
    v_and_b32 v7, 7, v3
    v_lshlrev_b32 v7, 2, v7
    ds_bpermute_b32 v34, v7, v6
    s_or_b32 s26, s{PW}, s{L}
    s_cmp_lg_u32 s26, 0
    s_cbranch_scc1 L_nosel
    v_lshlrev_b32 v5, 1, v7
    v_mov_b32 v16, v6
    v_mov_b32 v17, s{T}
    s_mov_b64 exec, 0xff
    s_mov_b32 s26, {WS_SEL}
    buffer_store_dwordx2 v[16:17], v5, s[8:11], s26 offen sc1
    s_mov_b64 exec, -1
    L_nosel:
    s_waitcnt lgkmcnt(0)
    v_and_b32 v34, 0xffff, v34
    v_sub_u32 v34, 0xffff, v34
    v_mul_u32_u24 v34, 896, v34
    v_lshl_add_u32 v34, v33, 4, v34
    v_lshrrev_b32 v4, 2, v3
    v_mul_u32_u24 v4, 3584, v4
    v_and_b32 v5, 3, v3
    v_lshl_add_u32 v35, v5, 4, v4
    v_and_b32 v36, 255, v0
    v_lshlrev_b32 v37, 4, v36
    v_bfe_u32 v4, v3, 2, 2
    v_lshl_add_u32 v4, v33, 3, v4
    v_bfe_u32 v6, v3, 4, 1
    v_lshlrev_b32 v6, 5, v6
    v_lshl_add_u32 v6, v5, 3, v6
    s_mul_i32 s55, s{L}, {112*64}
    v_lshl_add_u32 v38, v4, 6, v6
    v_add_u32 v38, s55, v38
    v_mul_u32_u24 v39, 896, v4
    v_add_u32 v39, v39, v6
    s_lshl_b32 s26, s{L}, 6
    v_add_u32 v39, s26, v39""")
    st(a, 4)
    srd(a, 16, 42, 448 * 3584)
    srd(a, 20, 44, 448 * 3584)
    spin_lds(a, 14, C_L, 4, 8, sleep=2)
    XS_ = 40
    a(f"s_mul_i32 s26, s{L}, 224")
    for s in range(7):
        a(f"buffer_load_dwordx4 {vr(XS_+4*s,4)}, v34, s[12:15], s26 offen offset:{32*s}")
    a(f"""s_mul_i32 s53, s{L}, {112*3584}
    s_lshl_b32 s26, s{PW}, 6
    s_add_u32 s53, s53, s26""")
    for i in range(7):
        a(f"""s_add_u32 m0, s55, {GI + i*1024}
        s_add_u32 s26, s53, {i*16*3584}
        buffer_load_dwordx4 v35, s[16:19], s26 offen lds
        s_add_u32 m0, s55, {UI + i*1024}
        s_nop 0
        buffer_load_dwordx4 v35, s[20:23], s26 offen lds""")
        if i in (1, 3, 5): a("s_waitcnt vmcnt(2)")
    WD = 100
    srd(a, 16, 46, 1792 * 896)
    a(f"s_mul_i32 s26, s{PW}, {32*896}")
    for i in range(7):
        a(f"buffer_load_dwordx4 {vr(WD+4*i,4)}, v37, s[16:19], s26 offen\ns_add_u32 s26, s26, 4096")
    a("s_waitcnt vmcnt(7)")
    st(a, 5)
    if STAMP: a("s_waitcnt lgkmcnt(0)")
    AG, AU, FW = 68, 84, 130
    for s in range(7):
        f = FW + 8 * s
        a(f"""ds_read_b64_tr_b16 {vr(f,2)}, v38 offset:{GI + s*1024}
        ds_read_b64_tr_b16 {vr(f+2,2)}, v38 offset:{GI + s*1024 + 256}
        ds_read_b64_tr_b16 {vr(f+4,2)}, v38 offset:{UI + s*1024}
        ds_read_b64_tr_b16 {vr(f+6,2)}, v38 offset:{UI + s*1024 + 256}""")
        if s >= 1:
            a("s_waitcnt lgkmcnt(4)")
            t = s - 1; g = FW + 8 * t
            a(f"{MF} {vr(AG,16)}, {vr(g,4)}, {vr(XS_+4*t,4)}, {'0' if t==0 else vr(AG,16)}")
            a(f"{MF} {vr(AU,16)}, {vr(g+4,4)}, {vr(XS_+4*t,4)}, {'0' if t==0 else vr(AU,16)}")
    a("s_waitcnt lgkmcnt(0)")
    t = 6; g = FW + 8 * t
    a(f"{MF} {vr(AG,16)}, {vr(g,4)}, {vr(XS_+4*t,4)}, {vr(AG,16)}")
    a(f"{MF} {vr(AU,16)}, {vr(g+4,4)}, {vr(XS_+4*t,4)}, {vr(AU,16)}")
    sbar()
    a(f"""s_lshl_b32 s26, s{L}, 11
    s_add_u32 s26, s26, {SC}
    v_lshlrev_b32 v5, 7, v32
    v_lshl_add_u32 v5, v33, 4, v5
    v_add_u32 v5, s26, v5
    s_mov_b32 exec_lo, 0xff
    s_mov_b32 exec_hi, 0xff""")
    for k in range(4):
        a(f"ds_write_b128 v5, {vr(AG+4*k,4)} offset:{32*k}")
        a(f"ds_write_b128 v5, {vr(AU+4*k,4)} offset:{1024+32*k}")
    a("s_mov_b64 exec, -1\ns_waitcnt vmcnt(0)")
    for i in range(7): a(f"ds_write_b128 v37, {vr(WD+4*i,4)} offset:{4096*i}")
    a("v_lshlrev_b32 v5, 2, v36")
    sbar()
    for k in range(8): a(f"ds_read_b32 v{16+k}, v5 offset:{SC + 1024*k}")
    HB = UI
    a(f"""s_waitcnt lgkmcnt(0)
    v_add_f32 v16, v16, v18
    v_add_f32 v17, v17, v19
    v_add_f32 v20, v20, v22
    v_add_f32 v21, v21, v23
    v_add_f32 v16, v16, v20
    v_add_f32 v17, v17, v21
    v_cvt_pk_bf16_f32 v16, v16, v17
    v_and_b32 v17, 0xffff0000, v16
    v_lshlrev_b32 v16, 16, v16
    v_mul_f32 v18, {NLOG2E:#x}, v16
    v_exp_f32 v18, v18
    v_add_f32 v18, 1.0, v18
    v_rcp_f32 v18, v18
    v_mul_f32 v16, v16, v18
    v_cvt_pk_bf16_f32 v16, v16, v16
    v_lshlrev_b32 v16, 16, v16
    v_mul_f32 v16, v16, v17
    v_cvt_pk_bf16_f32 v16, v16, v16
    v_lshlrev_b32 v5, 1, v36
    ds_write_b16 v5, v16 offset:{HB}
    v_and_b32 v5, 7, v3
    v_lshlrev_b32 v5, 6, v5
    v_lshl_add_u32 v5, v33, 4, v5""")
    sbar()
    a(f"""ds_read_b128 v[16:19], v5 offset:{HB}
    ds_read_b128 v[20:23], v5 offset:{HB+32}
    v_mul_u32_u24 v24, {4*1792}, v33
    v_lshl_add_u32 v24, v32, 2, v24
    v_add_u32 v25, {2*1792}, v24
    s_mul_i32 s53, s{PW}, 14336
    s_lshl_b32 s26, s{L}, 7
    s_add_u32 s53, s53, s26
    s_add_u32 s53, s53, {WS_YP}""")
    for n in range(4):
        if n == 3: a(f"s_cmp_ge_u32 s{L}, 2\ns_cbranch_scc1 L_ffn_done")
        f = FW + 8 * n; acc = 40 + 16 * n
        for m in range(2):
            a(f"ds_read_b64_tr_b16 {vr(f+4*m,2)}, v39 offset:{n*256 + m*16*896}")
            a(f"ds_read_b64_tr_b16 {vr(f+4*m+2,2)}, v39 offset:{n*256 + m*16*896 + 4*896}")
        a(f"""s_waitcnt lgkmcnt(0)
        {MF} {vr(acc,16)}, v[16:19], {vr(f,4)}, 0
        {MF} {vr(acc,16)}, v[20:23], {vr(f+4,4)}, {vr(acc,16)}
        buffer_store_dword v{acc}, v24, s[8:11], s53 offen offset:{n*512} sc1
        buffer_store_dword v{acc+1}, v24, s[8:11], s53 offen offset:{n*512+1792} sc1
        buffer_store_dword v{acc+2}, v25, s[8:11], s53 offen offset:{n*512} sc1
        buffer_store_dword v{acc+3}, v25, s[8:11], s53 offen offset:{n*512+1792} sc1""")
    a(f"""L_ffn_done:
    s_lshl_b32 s26, s{L}, 6
    s_add_u32 s26, s26, s{PW}
    s_lshl_b32 s26, s26, 7
    s_add_u32 s26, s26, {WS_YFL}
    s_waitcnt vmcnt(0)""")
    flag_store(a, 5, 9, "s26")
    sbar()
    st(a, 6)
    a.label("L_svcWo")
    spin_lds(a, 14, C_L, 4, 8, sleep=2)
    srd(a, 16, 38, 448 * 896)
    a(f"""s_and_b32 s53, s{H}, 3
    s_mul_i32 s53, s53, 224
    s_mul_i32 s55, s{L}, {7*1024}
    s_mul_i32 s57, s{L}, {32*896}
    s_add_u32 s57, s57, s53
    v_mov_b32 v16, 0
    v_mov_b32 v17, 0
    v_mov_b32 v18, 0
    v_mov_b32 v19, 0
    v_add_u32 v4, {448*224}, v1
    ds_write_b128 v4, v[16:19]
    L_wo:""")
    for e in range(7):
        a(f"""s_add_u32 m0, s55, {e*1024}
        s_waitcnt vmcnt(3)
        buffer_load_dwordx4 v{200+e}, s[16:19], s57 offen lds""")
    a(f"""s_add_u32 s55, s55, {28*1024}
    s_add_u32 s57, s57, {128*896}
    s_cmp_lt_u32 s55, {98*1024}
    s_cbranch_scc1 L_wo""")
    st(a, 7)
    a(f"""s_lshl_b32 s26, s{L}, 4
    s_add_u32 s26, s26, {WS_SEL}
    s_mov_b32 s60, {SPIN_LIMIT}
    L_sel:
    buffer_load_dwordx4 v[16:19], v9, s[8:11], s26 offen sc1
    s_waitcnt vmcnt(0)
    v_readfirstlane_b32 s52, v17
    v_readfirstlane_b32 s54, v19
    s_xor_b32 s52, s52, s{T}
    s_xor_b32 s54, s54, s{T}
    s_or_b32 s52, s52, s54
    s_cbranch_scc0 L_sel_ok
    s_sleep 8
    s_sub_u32 s60, s60, 1
    s_cbranch_scc0 L_sel
    s_endpgm
    L_sel_ok:
    s_lshr_b32 s58, s{H}, 2
    s_lshl_b32 s26, s{J}, 2
    s_add_u32 s58, s58, s26
    s_lshl_b32 s57, s{L}, 1
    L_upd:
    v_readfirstlane_b32 s52, v16
    v_mov_b32 v16, v18
    s_and_b32 s54, s52, 0xffff
    s_sub_u32 s54, 0xffff, s54
    s_lshr_b32 s26, s54, 5
    s_cmp_lg_u32 s26, s58
    s_cbranch_scc1 L_updn
    v_lshlrev_b32 v4, 3, v1
    s_mov_b32 s62, -1
    s_mov_b32 s63, 0x00ffffff""")
    for k in range(4):
        a(f"s_mov_b32 s26, {WS_YFL + 8192*k}")
        poll_global(a, 5, 4, "s26", mask="s[62:63]", sleep=8)
    Y = 40
    a(f"""v_lshrrev_b32 v4, 5, v3
    v_mul_u32_u24 v4, {28*14336}, v4
    v_and_b32 v5, 31, v3
    v_lshl_add_u32 v4, v5, 4, v4
    s_mul_i32 s26, s57, 1792
    s_lshl_b32 s55, s53, 1
    s_add_u32 s26, s26, s55
    s_add_u32 s26, s26, {WS_YP}
    s_mov_b32 exec_lo, 0x0fffffff
    s_mov_b32 exec_hi, 0x0fffffff""")
    for i in range(28):
        a(f"buffer_load_dwordx4 {vr(Y+4*i,4)}, v4, s[8:11], s26 offen sc1\ns_add_u32 s26, s26, 14336")
    a(f"""s_mov_b64 exec, -1
    s_lshr_b32 s26, s52, 16
    s_not_b32 s55, s26
    s_and_b32 s59, s26, 0x7fff
    s_bitcmp1_b32 s26, 15
    s_cselect_b32 s26, s59, s55
    s_lshl_b32 s26, s26, 16
    v_mov_b32 v6, {NLOG2E:#x}
    v_mul_f32 v6, s26, v6
    v_exp_f32 v6, v6
    v_add_f32 v6, 1.0, v6
    v_rcp_f32 v6, v6
    v_cvt_pk_bf16_f32 v6, v6, v6
    v_lshlrev_b32 v6, 16, v6
    s_mul_i32 s26, s57, 448
    s_add_u32 s26, s26, {UPD}
    v_lshl_add_u32 v7, v5, 4, s26
    s_waitcnt vmcnt(0)""")
    for i in range(1, 28):
        a(f"v_pk_add_f32 {vr(Y,2)}, {vr(Y,2)}, {vr(Y+4*i,2)}\nv_pk_add_f32 {vr(Y+2,2)}, {vr(Y+2,2)}, {vr(Y+4*i+2,2)}")
    for k in range(4): a(f"v_mov_b32 v{Y+4+k}, v{Y+k}")
    for k in range(4): a(f"v_permlane32_swap_b32 v{Y+k}, v{Y+4+k}")
    for k in range(4): a(f"v_add_f32 v{Y+k}, v{Y+k}, v{Y+4+k}")
    for k in range(0, 4, 2):
        a(f"""v_cvt_pk_bf16_f32 v{Y+k}, v{Y+k}, v{Y+k+1}
        v_and_b32 v{Y+k+1}, 0xffff0000, v{Y+k}
        v_lshlrev_b32 v{Y+k}, 16, v{Y+k}
        v_mul_f32 v{Y+k}, v{Y+k}, v6
        v_mul_f32 v{Y+k+1}, v{Y+k+1}, v6
        v_cvt_pk_bf16_f32 v{Y+k}, v{Y+k}, v{Y+k+1}
        v_and_b32 v{Y+k+1}, 0xffff0000, v{Y+k}
        v_lshlrev_b32 v{Y+k}, 16, v{Y+k}""")
    a(f"""s_and_b32 s54, s54, 31
    v_mov_b32 v5, s54
    s_lshl_b32 s26, s57, 2
    s_add_u32 s26, s26, {UPDI}
    v_mov_b32 v4, s26
    s_mov_b64 exec, 0x0fffffff
    ds_write_b128 v7, {vr(Y,4)}
    s_mov_b64 exec, 1
    ds_write_b32 v4, v5
    s_mov_b64 exec, -1
    L_updn:
    s_add_u32 s57, s57, 1
    s_bitcmp1_b32 s57, 0
    s_cbranch_scc1 L_upd""")
    st(a, 8)
    a(f"""s_or_b32 s26, s2, s{L}
    s_cmp_lg_u32 s26, 0
    s_cbranch_scc1 L_svc_end
    v_lshlrev_b32 v4, 5, v1
    s_mov_b32 s57, {WS_FL}
    L_ep:""")
    poll_global(a, 5, 4, "s57", sleep=4)
    a(f"""s_add_u32 s57, s57, 32768
    s_cmp_lt_u32 s57, {WS_FL+131072}
    s_cbranch_scc1 L_ep
    s_mov_b32 s26, {WS_EP}""")
    flag_store(a, 5, 9, "s26")
    a("L_svc_end:\ns_waitcnt vmcnt(0) lgkmcnt(0)")
    st_end(a)
    a("L_exit:\ns_endpgm")

def main(out):
    hdr = open("cdna_kernels/" + NAME + ".s.ref").read().split("; Override")[0]
    rep = []
    a = Asm()
    prologue(a); main_wave(a); service_wave(a)
    t = hdr
    t += f"; @launch grid=(256,1,1) block=(512,1,1) lds={LDS_BYTES}\n"
    t += '.amdgcn_target "amdgcn-amd-amdhsa--gfx950"\n'
    t += kernel_text(NAME + "_kernel", a.l, 256, report=rep)
    open(out, "w").write(t)
    if "-v" in sys.argv: print("\n".join(rep))

if __name__ == "__main__":
    main(sys.argv[1])
```

```python
import sys, math, struct
from asmlib import *

NAME = "gated_mix__softmax_full_mha__moe_arch_mod__prompt"
STAMP = "-s" in sys.argv
EXP = set(x[2:] for x in sys.argv if x.startswith("-x"))
WS_KV = 0
WS_O = 4 << 20
WS_R = 6 << 20
WS_G = WS_R + 16384
WS_SEL = WS_R + 32768
WS_EP = WS_R + 40960
WS_FL = WS_R + 65536
WS_MB = WS_FL + 32768
WS_OFL = WS_MB + 32768
WS_YFL = WS_OFL + 32768
WS_F1 = WS_YFL + 4096
WS_YP = 7 << 20
WS_GP = 8 << 20
WS_ST = 16 << 20
XS = 0; WT = 65536; WQ = 122880; QX = 151552; UPD = 159744
WO = 0; CB = 102400
UPDI = UPD + 3584
CAND = UPDI + 128
CNT = 163840 - 64
LDS_BYTES = 163840
C_Q1, C_Q2, C_X, C_L, C_S, C_D, C_C, C_O, C_R, C_W, C_E = 0, 4, 8, 12, 16, 20, 24, 28, 32, 48, 52

def f32bits(x): return struct.unpack("<I", struct.pack("<f", x))[0]
QSCALE = f32bits(28 ** -0.5 * math.log2(math.e))
NLOG2E = f32bits(-math.log2(math.e))
MF = "v_mfma_f32_32x32x16_bf16"
ROLE = [0, 1, 2, 3, 14, 4, 5, 6, 7, 8, 9, 15, 10, 11, 12, 13]
ROLE_LO = sum(ROLE[i] << (4 * i) for i in range(8))
ROLE_HI = sum(ROLE[8 + i] << (4 * i) for i in range(8))
SPIN_LIMIT = 1 << 20
PD = 2 if "pd2" in EXP else 4
PG = 6 if "pd2" in EXP else 3
PCD = 1 if "pcd1" in EXP else 4
KVS = 4 if "kvs4" in EXP else (0 if "kvs0" in EXP else 2)
PQ2 = 4 if "pq4" in EXP else (0 if "pq0" in EXP else 1)
PF0 = 2 if "pf2" in EXP else 0
WOP = 1 if "wo1" in EXP else 3
OUTAUX = " sc1" if "outsc1" in EXP else (" nt" if "outnt" in EXP else "")

T, H, J, W, RL, ROT = 30, 31, 32, 33, 34, 3
_uid = [0]
def uid(p):
    _uid[0] += 1
    return f"{p}_{_uid[0]}"

def srd(a, d, ptr, nbytes):
    a(f"s_mov_b32 s{d}, s{ptr}\ns_mov_b32 s{d+1}, s{ptr+1}\ns_mov_b32 s{d+2}, {nbytes:#x}\ns_mov_b32 s{d+3}, 0x20000")

NST = 12
def st(a, i):
    if STAMP: a(f"s_memtime s[{72+2*i}:{73+2*i}]")
def st_begin(a):
    if STAMP: a("s_memrealtime s[68:69]\ns_memtime s[72:73]")
def st_init(a):
    if STAMP:
        for i in range(1, NST): a(f"s_mov_b32 s{72+2*i}, s72")
def st_end(a):
    if not STAMP: return
    a(f"""s_waitcnt vmcnt(0)
    s_memrealtime s[70:71]
    s_memtime s[{72+2*NST}:{73+2*NST}]
    s_getreg_b32 s66, hwreg(HW_REG_HW_ID)
    s_getreg_b32 s67, hwreg(HW_REG_XCC_ID)
    s_mov_b64 exec, -1
    s_lshl_b32 s65, s2, 3
    s_add_u32 s65, s65, s{W}
    s_lshl_b32 s65, s65, 6
    s_add_u32 s65, s65, {WS_ST}
    s_waitcnt lgkmcnt(0)
    v_mov_b32 v4, s68
    v_mov_b32 v5, s70
    v_mov_b32 v6, s66
    v_mov_b32 v7, s67""")
    for i in range(1, NST + 1):
        a(f"s_sub_u32 s64, s{72+2*i}, s72\nv_mov_b32 v{7+i}, s64")
    a("v_mov_b32 v2, 0\ns_mov_b64 exec, 1")
    for k in range(4):
        a(f"buffer_store_dwordx4 v[{4+4*k}:{7+4*k}], v2, s[8:11], s65 offen offset:{16*k}")

def poll_global(a, vdst, voff, soff, mask=None, sleep=1):
    l = uid("Lpoll"); d = uid("Lpd")
    a(f"s_mov_b32 s60, {SPIN_LIMIT}")
    if mask is not None: a(f"s_mov_b64 exec, {mask}")
    a(f"""{l}:
    buffer_load_dword v{vdst}, v{voff}, s[8:11], {soff} offen sc1
    s_waitcnt vmcnt(0)
    v_cmp_ne_u32 vcc, s{T}, v{vdst}
    s_cbranch_vccz {d}
    s_mov_b64 exec, vcc
    s_sleep {sleep}
    s_sub_u32 s60, s60, 1
    s_cbranch_scc0 {l}
    s_endpgm
    {d}:
    s_mov_b64 exec, -1""")

def poll_atomic(a, vdst, voff, soff, mask, sleep):
    l = uid("Lpa"); d = uid("Lpad")
    a(f"""s_mov_b32 s60, {SPIN_LIMIT}
    s_mov_b64 exec, {mask}
    {l}:
    v_mov_b32 v{vdst}, 0
    buffer_atomic_or v{vdst}, v{voff}, s[8:11], {soff} offen sc0 sc1
    s_waitcnt vmcnt(0)
    v_cmp_ne_u32 vcc, s{T}, v{vdst}
    s_cbranch_vccz {d}
    s_sleep {sleep}
    s_sub_u32 s60, s60, 1
    s_cbranch_scc0 {l}
    s_endpgm
    {d}:
    s_mov_b64 exec, -1""")

def poll_pipe(a, v0, voff, soff, mask, D=4, gap=3):
    l = uid("Lpp"); d = uid("Lppd")
    at = lambda r: f"v_mov_b32 v{r}, 0\nbuffer_atomic_or v{r}, v{voff}, s[8:11], {soff} offen sc0 sc1"
    a(f"s_mov_b32 s60, {SPIN_LIMIT}\ns_mov_b64 exec, {mask}")
    for i in range(D - 1): a(at(v0 + i) + f"\ns_sleep {gap}")
    a(f"{l}:")
    for i in range(D):
        a(at(v0 + (i + D - 1) % D))
        a(f"s_waitcnt vmcnt({D-1})\nv_cmp_ne_u32 vcc, s{T}, v{v0+i}\ns_cbranch_vccz {d}")
    a(f"""s_sub_u32 s60, s60, 1
    s_cbranch_scc0 {l}
    s_endpgm
    {d}:
    s_mov_b64 exec, -1""")

def signal(a, vt, voff, soff, mask):
    a(f"v_mov_b32 v{vt}, s{T}\ns_mov_b64 exec, {mask}\nbuffer_atomic_swap v{vt}, v{voff}, s[8:11], {soff} offen sc1\ns_mov_b64 exec, -1")

def spin_lds(a, vaddr, off, want, vt, sleep=0):
    l = uid("Lsp"); d = uid("Lsd")
    a(f"""s_mov_b32 s60, {SPIN_LIMIT}
    {l}:
    ds_read_b32 v{vt}, v{vaddr} offset:{off}
    s_waitcnt lgkmcnt(0)
    v_readfirstlane_b32 s61, v{vt}
    s_cmp_ge_u32 s61, {want}
    s_cbranch_scc1 {d}""")
    if sleep: a(f"s_sleep {sleep}")
    a(f"""s_sub_u32 s60, s60, 1
    s_cbranch_scc0 {l}
    s_endpgm
    {d}:""")

def lds_inc(a, vaddr, off, vone):
    a(f"s_mov_b64 exec, 1\nds_add_u32 v{vaddr}, v{vone} offset:{off}\ns_mov_b64 exec, -1")

def flag_store(a, vt, vz, soff):
    a(f"v_mov_b32 v{vt}, s{T}\ns_mov_b64 exec, 1\nbuffer_store_dword v{vt}, v{vz}, s[8:11], {soff} offen sc1\ns_mov_b64 exec, -1")

def split_neg_max(a, m, t0, t1, q6, q7):
    a(f"""v_sub_f32 v{m}, 0, v{m}
    v_cvt_pk_bf16_f32 v{t0}, v{m}, v{m}
    v_lshlrev_b32 v{t0}, 16, v{t0}
    v_sub_f32 v{t0}, v{m}, v{t0}
    v_cvt_pk_bf16_f32 v{t1}, v{m}, v{t0}
    v_and_b32 v{m}, 0xffff0000, v{t1}
    v_sub_f32 v{t0}, v{t0}, v{m}
    s_mov_b32 exec_lo, 0
    v_mov_b32 v{q6}, v{t1}
    v_cvt_pk_bf16_f32 v{q7}, v{t0}, 0
    s_mov_b32 exec_lo, -1""")

def max16_list(dst, S, init=False):
    if not init:
        return ([f"v_max3_f32 v{dst}, v{S}, v{S+1}, v{S+2}"] +
                [f"v_max3_f32 v{dst}, v{dst}, v{S+i}, v{S+i+1}" for i in range(3, 15, 2)] +
                [f"v_max_f32 v{dst}, v{dst}, v{S+15}"])
    return [f"v_max3_f32 v{dst}, v{dst}, v{S+i}, v{S+i+1}" for i in range(0, 16, 2)]

def wave_min_u32(a, v, full=True):
    for r in (1, 2, 4, 8):
        a(f"v_min_u32_dpp v{v}, v{v}, v{v} row_ror:{r} row_mask:0xf bank_mask:0xf")
    a(f"v_min_u32_dpp v{v}, v{v}, v{v} row_bcast:15 row_mask:0xa bank_mask:0xf")
    if full: a(f"v_min_u32_dpp v{v}, v{v}, v{v} row_bcast:31 row_mask:0xc bank_mask:0xf")

def tag(a):
    a(f"s_mul_i32 s{T}, s{T}, 0x9e3779b1\ns_add_u32 s{T}, s{T}, 0x7f4a7c15")

def next_chunk(a, s):
    a(f"s_add_u32 s{s}, s{s}, 1\ns_cmp_eq_u32 s{s}, 7\ns_cselect_b32 s{s}, 0, s{s}")

Q, O, KV, S, P = 8, 40, 104, 168, 200
XF = 104; A0, A1, WF = 40, 56, 72
VX = 216; VW = 220; VQ = 222; VC = 223; V1 = 224; VZ = 225; VT = 226; VH = 227
VA = 228; TMP = 232; XR = 240; GR = 248; VWQ = 250; VF = 251; VFS = 252; VXO = 253; VGO = 254
OWN = 3
L = 35

def prologue_and_loader(a):
    if "rot7" in EXP:
        ROTCODE = f"s_lshl1_add_u32 s{ROT}, s27, s26\ns_cmp_ge_u32 s{ROT}, 7\ns_cselect_b32 s26, 7, 0\ns_sub_u32 s{ROT}, s{ROT}, s26"
    elif "rot2" not in EXP and "norot" not in EXP and "rot23" not in EXP:
        ROTCODE = f"s_add_u32 s{ROT}, s27, s26\ns_and_b32 s{ROT}, s{ROT}, 3\ns_lshl_b32 s{ROT}, s{ROT}, 1"
    elif "norot" in EXP:
        ROTCODE = f"s_mov_b32 s{ROT}, 0"
    elif "rot23" in EXP:
        ROTCODE = f"s_add_u32 s{ROT}, s27, s26\ns_and_b32 s{ROT}, s{ROT}, 1\ns_mul_i32 s{ROT}, s{ROT}, 3"
    else:
        ROTCODE = f"s_add_u32 s{ROT}, s27, s26\ns_and_b32 s{ROT}, s{ROT}, 1\ns_lshl_b32 s{ROT}, s{ROT}, 2"
    st_begin(a)
    a(f"""s_load_dwordx4 s[4:7], s[0:1], 0
    s_load_dwordx2 s[36:37], s[0:1], 88
    s_load_dwordx2 s[38:39], s[0:1], 16
    s_load_dwordx8 s[40:47], s[0:1], 32
    s_load_dwordx4 s[48:51], s[0:1], 64
    s_cmp_ge_u32 s2, 256
    s_cbranch_scc1 L_exit
    v_lshrrev_b32 v2, 6, v0
    v_and_b32 v3, 63, v0
    s_and_b32 s24, s2, 7
    s_lshr_b32 s25, s2, 3
    v_readfirstlane_b32 s{W}, v2
    s_and_b32 s{H}, s24, 1
    s_lshl_b32 s{H}, s{H}, 3
    s_and_b32 s26, s25, 7
    s_add_u32 s{H}, s{H}, s26
    s_lshr_b32 s27, s25, 3
    s_and_b32 s{J}, s24, 6
    s_lshl1_add_u32 s{J}, s{J}, s27
    {ROTCODE}
    s_mov_b32 s28, {ROLE_LO:#x}
    s_mov_b32 s29, {ROLE_HI:#x}
    s_lshl_b32 s27, s{H}, 2
    s_lshr_b64 s[28:29], s[28:29], s27
    s_and_b32 s{RL}, s28, 15
    v_lshlrev_b32 v1, 4, v3
    s_mov_b32 s27, {WS_EP}
    s_cmp_lt_u32 s{W}, 4
    s_cbranch_scc1 L_main
    """)
    a(f"""s_setprio 2
    s_sub_u32 s{L}, s{W}, 4
    v_lshrrev_b32 v4, 3, v3
    v_mul_u32_u24 v5, 896, v4
    v_and_b32 v6, 7, v3
    v_lshrrev_b32 v7, 4, v3
    v_xor_b32 v7, v6, v7
    v_lshl_add_u32 v10, v7, 4, v5
    v_xor_b32 v11, 64, v10
    v_add_u32 v12, {2*6144}, v10
    v_add_u32 v13, {3*6144}, v11
    v_add_u32 v11, 6144, v11
    v_mul_u32_u24 v5, 2688, v4
    v_and_b32 v4, 2, v4
    v_lshlrev_b32 v4, 1, v4
    v_xor_b32 v4, v4, v6
    v_lshl_add_u32 v14, v4, 4, v5
    v_add_u32 v15, {8*2688-1024}, v14
    s_lshl2_add_u32 s52, s{J}, s{L}
    s_mul_i32 s52, s52, {32*896}
    s_lshl_b32 s53, s{RL}, 7
    s_mul_i32 s26, s{L}, {16*2688}
    s_add_u32 s53, s53, s26
    s_add_u32 s53, s53, 896
    s_lshl_b32 s54, s{L}, 12
    s_lshl_b32 s55, s{L}, 11
    s_add_u32 s55, s55, {WT}
    s_mov_b32 s56, s{ROT}
    s_mov_b32 s57, 0
    s_mov_b32 s14, {2048*896}
    s_mov_b32 s15, 0x20000
    s_cmp_ge_u32 s{RL}, 14
    s_cselect_b32 s18, 0, {448*2688}
    s_mov_b32 s19, 0x20000
    s_waitcnt lgkmcnt(0)
    s_mov_b64 s[12:13], s[4:5]
    s_mov_b64 s[16:17], s[6:7]
    s_load_dword s{T}, s[36:37], s27""")
    st_init(a); st(a, 1)
    a(f"""L_ld:
    s_mul_i32 s26, s56, {64*2688}
    s_mov_b32 m0, s55
    s_add_u32 s26, s26, s53
    s_lshl_b32 s28, s56, 7
    buffer_load_dwordx4 v14, s[16:19], s26 offen lds
    buffer_load_dwordx4 v15, s[16:19], s26 offen offset:1024 lds
    s_mov_b32 m0, s54
    s_add_u32 s28, s28, s52
    buffer_load_dwordx4 v10, s[12:15], s28 offen lds
    buffer_load_dwordx4 v11, s[12:15], s28 offen offset:1024 lds
    buffer_load_dwordx4 v12, s[12:15], s28 offen offset:2048 lds
    buffer_load_dwordx4 v13, s[12:15], s28 offen offset:3072 lds
    s_add_u32 s55, s55, 8192
    s_add_u32 s54, s54, 16384
    s_and_b32 s54, s54, 0xffff""")
    next_chunk(a, 56)
    a(f"""s_add_u32 s57, s57, 1
    s_cmp_lt_u32 s57, 3
    s_cbranch_scc1 L_ld
    s_waitcnt vmcnt(12) lgkmcnt(0)
    s_barrier
    s_cmp_lt_u32 s57, 7
    s_cbranch_scc1 L_ld
    """)
    a(f"""v_lshrrev_b32 v4, 2, v3
    v_mul_u32_u24 v4, 2688, v4
    v_and_b32 v5, 3, v3
    v_lshl_add_u32 v16, v5, 4, v4
    s_mov_b32 s18, {448*2688}
    s_mul_i32 s53, s{H}, 56
    s_and_b32 s53, s53, 0xfffffff0
    s_mul_i32 s26, s{L}, {16*2688}
    s_add_u32 s53, s53, s26
    s_lshl_b32 s55, s{L}, 10
    s_add_u32 s55, s55, {WQ}""")
    for i in range(4):
        a(f"""s_mul_i32 s26, s56, {64*2688}
        s_add_u32 m0, s55, {i*4096}
        s_add_u32 s26, s26, s53
        buffer_load_dwordx4 v16, s[16:19], s26 offen lds""")
        if i < 3: next_chunk(a, 56)
        if i == 1: a("s_waitcnt vmcnt(8)\ns_barrier")
        if i == 3: a("s_waitcnt vmcnt(4)\ns_barrier")
    st(a, 2)
    a("s_branch L_service")

def main_wave(a):
    a.label("L_main")
    if "nocodepf" not in EXP:
        a(f"""s_cmp_lg_u32 s{W}, 0
        s_cbranch_scc1 L_nopf
        s_getpc_b64 s[28:29]
        L_pc:
        s_and_b32 s26, s25, 3
        s_lshl_b32 s26, s26, 13
        v_lshl_add_u32 v4, v3, 7, s26
        v_min_u32 v4, L_code_end-L_pc, v4
        global_load_dword v5, v4, s[28:29]
        L_nopf:""")
    a(f"""s_setprio 1
    v_and_b32 v{VT}, 31, v3
    v_lshrrev_b32 v{VH}, 5, v3
    v_mov_b32 v{V1}, 1
    v_mov_b32 v{VZ}, 0
    v_mov_b32 v{VC}, {CNT}
    v_lshrrev_b32 v4, 2, v1
    v_add_u32 v4, {UPDI}, v4
    v_mov_b32 v6, -1
    s_mov_b32 exec_hi, 0
    ds_write_b32 v4, v6
    s_mov_b32 exec_lo, 0xffff
    ds_write_b32 v4, v{VZ} offset:{CNT-UPDI}
    s_mov_b64 exec, -1
    v_lshrrev_b32 v4, 1, v{VT}
    v_and_b32 v4, 7, v4
    v_xor_b32 v4, v4, v{VH}
    v_lshlrev_b32 v4, 4, v4
    v_lshl_add_u32 v4, v{VT}, 7, v4
    s_lshl_b32 s26, s{W}, 12
    v_add_u32 v{VX}, s26, v4
    v_xor_b32 v{VX+1}, 32, v{VX}
    v_xor_b32 v{VX+2}, 64, v{VX}
    v_xor_b32 v{VX+3}, 96, v{VX}
    v_bfe_u32 v4, v3, 2, 2
    v_lshl_add_u32 v12, v{VH}, 3, v4
    v_and_b32 v6, 3, v3
    v_and_b32 v7, 1, v3
    v_bfe_u32 v8, v3, 1, 1
    v_lshl_add_u32 v7, v7, 1, v8
    v_bfe_u32 v8, v3, 4, 1
    v_lshl_add_u32 v9, v8, 2, v7
    v_lshl_add_u32 v10, v8, 2, v6
    s_cmp_lt_u32 s{RL}, 7
    s_cselect_b64 vcc, -1, 0
    v_cndmask_b32 v10, v10, v9, vcc
    v_lshlrev_b32 v11, 7, v12
    v_lshl_add_u32 v11, v10, 3, v11
    v_lshrrev_b32 v4, 1, v4
    v_lshl_add_u32 v11, v4, 6, v11
    v_add_u32 v{VW}, {WT}, v11
    v_xor_b32 v{VW+1}, 64, v{VW}
    v_add_u32 v10, 2, v9
    v_sub_u32 v11, 7, v9
    v_cmp_gt_u32 vcc, 6, v9
    v_cndmask_b32 v10, v11, v10, vcc
    s_bitcmp1_b32 s{H}, 0
    s_cselect_b64 vcc, -1, 0
    v_cndmask_b32 v10, v9, v10, vcc
    v_lshlrev_b32 v11, 6, v12
    v_lshl_add_u32 v11, v10, 3, v11
    v_add_u32 v{VQ}, {WQ}, v11
    v_lshrrev_b32 v4, 2, v3
    v_mul_u32_u24 v4, 2688, v4
    v_lshl_add_u32 v{VWQ}, v6, 4, v4
    s_cmp_ge_u32 s{RL}, 7
    s_cselect_b32 s26, 7, 0
    s_cselect_b32 s29, 2, 0
    s_sub_u32 s26, s{RL}, s26
    s_mul_i32 s28, s26, {64*2341}
    s_lshr_b32 s28, s28, 16
    v_add_u32 v4, s28, v6
    v_mul_u32_u24 v7, 28, v4
    v_lshrrev_b32 v7, 6, v7
    v_cmp_ge_u32 s[64:65], s26, v7
    v_cmp_ne_u32 vcc, s26, v7
    s_and_b32 s28, s{J}, 3
    s_lshl2_add_u32 s29, s28, s29
    v_mov_b32 v7, s29
    v_addc_co_u32 v7, vcc, 0, v7, vcc
    s_lshr_b32 s28, s{J}, 2
    v_lshl_add_u32 v4, v4, 2, s28
    v_bfe_u32 v8, v3, 2, 2
    v_lshl_add_u32 v4, v4, 2, v8
    v_lshlrev_b32 v4, 7, v4
    v_lshl_add_u32 v{VFS}, v7, 2, v4
    s_and_b32 s64, s64, 0xffff
    s_cmp_ge_u32 s{RL}, 14
    s_cselect_b32 s64, 0, s64
    s_mov_b32 s65, 0
    s_lshl_b32 s28, s{W}, 2
    v_add_u32 v{VF}, s28, v{VC}
    s_lshl_b32 s28, s{J}, 2
    s_lshr_b32 s58, s{H}, 2
    s_add_u32 s58, s58, s28
    s_and_b32 s59, s{H}, 3
    s_lshl2_add_u32 s59, s59, s{W}
    s_mul_i32 s59, s59, 56
    s_lshl_b32 s28, s58, 5
    v_add_u32 v4, s28, v{VT}
    v_mul_u32_u24 v{VXO}, 896, v4
    v_lshl_add_u32 v{VXO}, v{VH}, 4, v{VXO}
    v_lshlrev_b32 v{VGO}, 3, v4
    s_waitcnt lgkmcnt(0)
    s_load_dword s{T}, s[36:37], s27
    """)
    st_init(a)
    srd(a, 8, 36, 1 << 28)
    srd(a, 16, 6, 448 * 2688)
    srd(a, 12, 4, 2048 * 896)
    if "nowqpf" not in EXP:
        a(f"""s_cmp_lg_u32 s{W}, 1
        s_cbranch_scc1 L_nopf2
        v_lshrrev_b32 v4, 2, v3
        v_min_u32 v4, 13, v4
        v_mul_u32_u24 v4, 2688, v4
        v_and_b32 v6, 3, v3
        v_lshl_add_u32 v4, v6, 7, v4
        s_mul_i32 s26, s25, {14*2688}
        s_and_b32 s28, s24, 1
        s_mul_i32 s28, s28, 384
        s_add_u32 s26, s26, s28
        buffer_load_dword v5, v4, s[16:19], s26 offen
        L_nopf2:""")
    a(f"""s_mul_i32 s62, s{H}, 56
    s_and_b32 s62, s62, 0xfffffff0
    s_mul_i32 s26, s{W}, {16*2688}
    s_add_u32 s62, s62, s26
    s_lshl_b32 s63, s{W}, 10
    s_add_u32 s63, s63, {WQ}
    s_lshl2_add_u32 s35, s{J}, s{W}
    s_lshl_b32 s52, s35, 12
    s_cmp_ge_u32 s{RL}, 14
    s_cbranch_scc1 L_roleR
    s_cmp_ge_u32 s{RL}, 7
    s_cbranch_scc1 L_roleV""")

    def gemm(kind):
        def reads(c, s):
            k = 4 * c + s
            a(f"ds_read_b128 {vr(XF+4*k,4)}, v{VX+s} offset:{(c&3)*16384}")
            f = WF + 8 * s
            if kind == "R":
                a(f"ds_read_b128 {vr(f,4)}, v{VW} offset:{k*32}")
            else:
                for n in range(2):
                    a(f"ds_read_b64_tr_b16 {vr(f+4*n,2)}, v{VW+n} offset:{k*2048}")
                    a(f"ds_read_b64_tr_b16 {vr(f+4*n+2,2)}, v{VW+n} offset:{k*2048+512}")
        def mfmas(c, s):
            k = 4 * c + s
            f = WF + 8 * s
            for n in range(1 if kind == "R" else 2):
                acc = (A0, A1)[n]
                cc = "0" if k == 0 else vr(acc, 16)
                if kind == "V": a(f"{MF} {vr(acc,16)}, {vr(XF+4*k,4)}, {vr(f+4*n,4)}, {cc}")
                else:           a(f"{MF} {vr(acc,16)}, {vr(f+4*n,4)}, {vr(XF+4*k,4)}, {cc}")
        per = 2 if kind == "R" else 5
        for c in range(7):
            a("s_barrier")
            if c == 0: st(a, 1)
            if c == 6: st(a, 2)
            if STAMP and c in (0, 6): a("s_waitcnt lgkmcnt(0)")
            reads(c, 0); reads(c, 1)
            for s in range(4):
                if s < 2: reads(c, s + 2)
                a(f"s_waitcnt lgkmcnt({min(3 - s, 2) * per})")
                mfmas(c, s)

    PK = 8
    MS = 20
    for i in range(4):
        a(f"""s_lshl_b32 s28, s{RL}, 3
        s_add_u32 s28, s28, {2*i}
        v_add_u32 v4, s28, v{VH}
        v_mul_u32_u24 v8, 37, v4
        v_lshrrev_b32 v8, 8, v8
        v_mul_u32_u24 v6, 7, v8
        v_sub_u32 v6, v4, v6
        v_lshrrev_b32 v7, 2, v6
        v_lshl_add_u32 v8, v8, 1, v7
        v_cmp_eq_u32 s[{MS+2*i}:{MS+1+2*i}], 3, v6
        v_and_b32 v6, 3, v6
        v_lshlrev_b32 v8, 18, v8
        v_lshl_add_u32 v8, v6, 9, v8
        v_lshl_add_u32 v{VA+i}, v{VT}, 4, v8""")
    a(f"v_mov_b32 v{TMP+2}, 0x3f803f80\nv_mov_b32 v{TMP+3}, 0x3f803f80\ns_add_u32 s53, s52, {1<<18}")
    a("s_waitcnt lgkmcnt(0)")
    tag(a)
    gemm("K")
    for i in range(4):
        acc = (A0, A1)[i >> 1] + 8 * (i & 1)
        p = PK + 4 * i
        for e in range(4): a(f"v_cvt_pk_bf16_f32 v{p+e}, v{acc+2*e}, v{acc+2*e+1}")
        l = uid("Lnosh")
        a(f"""s_mov_b64 exec, s[{MS+2*i}:{MS+1+2*i}]
        s_cbranch_execz {l}
        v_mov_b32 v{TMP}, v{p+2}
        v_mov_b32 v{TMP+1}, v{p+3}
        v_mov_b32 v{p+2}, 0x3f803f80
        v_mov_b32 v{p+3}, 0x3f803f80
        buffer_store_dwordx4 {vr(TMP,4)}, v{VA+i}, s[8:11], s53 offen sc1
        s_nop 1
        {l}:
        s_mov_b64 exec, -1
        buffer_store_dwordx4 {vr(p,4)}, v{VA+i}, s[8:11], s52 offen sc1""")
    a("s_branch L_pub")
    a.label("L_roleR")
    srd(a, 20, 40, 896)
    a(f"""s_lshl_b32 s28, s{ROT}, 7
    v_add_u32 v4, s28, v1
    v_subrev_u32 v6, 896, v4
    v_min_u32 v4, v4, v6
    s_mov_b32 m0, {QX}
    s_nop 0
    buffer_load_dwordx4 v4, s[20:23], 0 offen lds
    s_mov_b32 s20, s48
    s_mov_b32 s21, s49
    s_mov_b32 m0, {QX+1024}
    s_nop 0
    buffer_load_dwordx4 v4, s[20:23], 0 offen lds
    v_and_b32 v4, 1, v3
    v_lshlrev_b32 v4, 10, v4
    v_lshl_add_u32 v4, v{VH}, 4, v4
    v_add_u32 v{VW}, {QX}, v4
    s_waitcnt vmcnt(0) lgkmcnt(0)""")
    tag(a)
    gemm("R")
    a(f"""s_cmp_lg_u32 s{RL}, 14
    s_cbranch_scc1 L_pub
    s_mov_b32 exec_hi, 0
    s_nop 9
    v_cvt_pk_bf16_f32 v4, v{A0}, v{A0+1}
    v_and_b32 v5, 0xffff0000, v4
    v_lshlrev_b32 v4, 16, v4
    v_ashrrev_i32 v6, 31, v4
    v_or_b32 v6, 0x80000000, v6
    v_xor_b32 v6, v6, v4
    v_and_b32 v6, 0xffff0000, v6
    v_cmp_u_f32 vcc, v4, v4
    v_cndmask_b32 v6, v6, 0, vcc
    s_lshl_b32 s26, s35, 5
    v_add_u32 v7, s26, v{VT}
    v_sub_u32 v8, 0xffff, v7
    v_or_b32 v6, v6, v8
    v_lshlrev_b32 v9, 3, v7
    v_mov_b32 v7, s{T}
    s_mov_b32 s26, {WS_R}
    buffer_store_dwordx2 v[6:7], v9, s[8:11], s26 offen sc1
    v_mul_f32 v5, {NLOG2E:#x}, v5
    v_exp_f32 v5, v5
    v_add_f32 v5, 1.0, v5
    v_rcp_f32 v5, v5
    v_cvt_pk_bf16_f32 v5, v5, v5
    v_lshlrev_b32 v4, 16, v5
    v_mov_b32 v5, s{T}
    s_mov_b32 s26, {WS_G}
    buffer_store_dwordx2 v[4:5], v9, s[8:11], s26 offen sc1
    s_mov_b32 exec_hi, -1
    s_branch L_pub
    """)
    a.label("L_roleV")
    for n in range(2):
        a(f"""s_lshl_b32 s28, s{RL}, 6
        s_sub_u32 s28, s28, {7*64 - 32*n}
        v_add_u32 v4, s28, v{VT}
        v_mul_u32_u24 v8, 2341, v4
        v_lshrrev_b32 v8, 16, v8
        v_mul_u32_u24 v6, 28, v8
        v_sub_u32 v6, v4, v6
        v_cmp_le_u32 s[{MS+2*n}:{MS+1+2*n}], 24, v6
        v_cmp_eq_u32 vcc, 24, v6
        v_mov_b32 v7, 0x3f803f80
        v_cndmask_b32 v{TMP+4*n}, 0, v7, vcc
        v_lshlrev_b32 v8, 18, v8
        v_lshl_add_u32 v8, v6, 4, v8
        v_lshl_add_u32 v{VA+n}, v{VH}, 9, v8""")
        for e in range(1, 4): a(f"v_mov_b32 v{TMP+4*n+e}, v{TMP+4*n}")
    for n in range(2):
        l = uid("Lnop")
        a(f"""s_mov_b64 exec, s[{MS+2*n}:{MS+1+2*n}]
        s_cbranch_execz {l}
        buffer_store_dwordx4 {vr(TMP+4*n,4)}, v{VA+n}, s[8:11], s52 offen offset:{2048+64} sc1
        buffer_store_dwordx4 {vr(TMP+4*n,4)}, v{VA+n}, s[8:11], s52 offen offset:{3072+64} sc1
        {l}:
        s_mov_b64 exec, -1""")
    a("s_waitcnt lgkmcnt(0)")
    tag(a)
    gemm("V")
    for i in range(4):
        acc = (A0, A1)[i >> 1] + 8 * (i & 1)
        p = PK + 4 * i
        for e in range(4): a(f"v_cvt_pk_bf16_f32 v{p+e}, v{acc+2*e}, v{acc+2*e+1}")
        a(f"buffer_store_dwordx4 {vr(p,4)}, v{VA+(i>>1)}, s[8:11], s52 offen offset:{2048+1024*(i&1)} sc1")
    a.label("L_pub")
    st(a, 3)
    a(f"s_add_u32 s56, s{ROT}, 4\ns_cmp_ge_u32 s56, 7\ns_cselect_b32 s26, 7, 0\ns_sub_u32 s56, s56, s26")
    for i in range(4, 7):
        a(f"""s_mul_i32 s26, s56, {64*2688}
        s_add_u32 m0, s63, {i*4096}
        s_add_u32 s26, s26, s62
        buffer_load_dwordx4 v{VWQ}, s[16:19], s26 offen lds""")
        if i < 6: next_chunk(a, 56)
    def qreads(k):
        f = WF + 4 * (k & 7)
        a(f"ds_read_b64_tr_b16 {vr(f,2)}, v{VQ} offset:{k*1024}\nds_read_b64_tr_b16 {vr(f+2,2)}, v{VQ} offset:{k*1024+256}")
    for lo, hi, cnt in ((0, 16, C_Q1), (16, 28, C_Q2)):
        if lo:
            a(f"""s_mov_b32 s28, {WS_MB}
            v_mov_b32 v6, s{T}
            s_mov_b64 exec, 1
            s_waitcnt vmcnt(3)""")
            st(a, 4)
            a(f"""ds_add_rtn_u32 v4, v{VC}, v{V1} offset:{C_D}
            s_waitcnt lgkmcnt(0)
            v_cmp_eq_u32 vcc, 3, v4
            s_cbranch_vccz L_notlast
            s_mov_b64 exec, s[64:65]
            s_cbranch_execz L_notlast
            buffer_atomic_swap v6, v{VFS}, s[8:11], s28 offen sc1
            s_waitcnt vmcnt(1)
            s_branch L_published
            L_notlast:
            s_waitcnt vmcnt(0)
            L_published:""")
            lds_inc(a, VC, C_Q2, V1)
        spin_lds(a, VC, cnt, 4, 4)
        for k in range(lo, lo + 6): qreads(k)
        for k in range(lo, hi):
            if k + 6 < hi: qreads(k + 6)
            a(f"s_waitcnt lgkmcnt({2*(min(hi-1,k+6)-k)})")
            a(f"{MF} {vr(A0,16)}, {vr(WF+4*(k&7),4)}, {vr(XF+4*k,4)}, {'0' if k==0 else vr(A0,16)}")
    QO = Q + 8 * OWN
    SK = TMP
    a(f"""s_lshl_b32 s53, s{H}, 18
    s_lshl_b32 s28, s{W}, 16
    s_add_u32 s28, s28, s53
    s_add_u32 s16, s36, s28
    s_addc_u32 s17, s37, 0
    s_mov_b32 s18, 65536
    s_mov_b32 s19, 0x20000
    s_mov_b32 s29, s53
    s_mov_b32 s54, 4096
    s_mov_b32 s55, 8192
    s_mov_b32 s56, 12288""")
    def ldK(b, soff):
        return [f"buffer_load_dwordx4 {vr(KV+16*b,4)}, v1, s[16:19], {soff} offen sc1",
                f"buffer_load_dwordx4 {vr(KV+16*b+4,4)}, v1, s[16:19], {soff} offen offset:1024 sc1"]
    def ldV(b, soff):
        return [f"buffer_load_dwordx4 {vr(KV+16*b+8,4)}, v1, s[16:19], {soff} offen offset:2048 sc1",
                f"buffer_load_dwordx4 {vr(KV+16*b+12,4)}, v1, s[16:19], {soff} offen offset:3072 sc1"]
    def first_loads():
        a(f"""buffer_load_dwordx4 {vr(SK,4)}, v1, s[8:11], s29 offen sc1
        buffer_load_dwordx4 {vr(SK+4,4)}, v1, s[8:11], s29 offen offset:1024 sc1""")
        for x in ldK(0, 0) + ldV(0, 0) + ldK(1, "s54") + ldV(1, "s54"): a(x)
    st(a, 5)
    a(f"""ds_read_b32 v4, v{VF} offset:{C_R}
    ds_read_b32 v5, v{VC} offset:{C_R}
    s_waitcnt lgkmcnt(0)
    v_and_b32 v4, v4, v5
    v_readfirstlane_b32 s57, v4
    s_cmp_eq_u32 s57, 0
    s_cbranch_scc1 L_notready""")
    st(a, 6)
    first_loads()
    a("L_notready:")
    a(f"""s_lshl_b32 s26, s{W}, 11
    s_add_u32 s26, s26, {QX}
    v_add_u32 v5, s26, v1
    s_mov_b32 s62, {QSCALE:#x}
    s_mov_b32 s63, {QSCALE:#x}""")
    for i in range(8): a(f"v_pk_mul_f32 {vr(A0+2*i,2)}, {vr(A0+2*i,2)}, s[62:63]")
    for i in range(8): a(f"v_cvt_pk_bf16_f32 v{QO+i}, v{A0+2*i}, v{A0+2*i+1}")
    a(f"""s_mov_b32 exec_lo, 0
    v_mov_b32 v{QO+6}, 0
    v_mov_b32 v{QO+7}, 0
    s_mov_b32 exec_lo, -1
    ds_write_b128 v5, {vr(QO,4)}
    ds_write_b128 v5, {vr(QO+4,4)} offset:1024""")
    lds_inc(a, VC, C_X, V1)
    for i in range(8): a(f"v_mov_b32 v{P+8+i}, 0")
    for i in range(0, 64, 2): a(f"v_pk_mul_f32 {vr(O+i,2)}, {vr(P+8,2)}, {vr(P+8,2)}")
    spin_lds(a, VC, C_X, 4, 4)
    for i in range(3):
        a(f"""s_add_u32 s26, s{W}, {i+1}
        s_and_b32 s26, s26, 3
        s_lshl_b32 s26, s26, 11
        s_add_u32 s26, s26, {QX}
        v_add_u32 v5, s26, v1
        ds_read_b128 {vr(Q+8*i,4)}, v5
        ds_read_b128 {vr(Q+8*i+4,4)}, v5 offset:1024""")
    a("s_cmp_lg_u32 s57, 0\ns_cbranch_scc1 L_loaded")
    spin_lds(a, VC, C_R, 1, 4)
    spin_lds(a, VF, C_R, 1, 4)
    st(a, 6)
    first_loads()
    a("L_loaded:")
    def QK(u, m):
        kt, qs = (u >> 2) & 3, u & 3
        s = S + 16 * (u & 1)
        c = "0" if m == 0 else vr(s, 16)
        return f"{MF} {vr(s,16)}, {vr(KV+16*kt+4*m,4)}, {vr(Q+8*qs+4*m,4)}, {c}"
    def PV(u, m):
        kt, qs = (u >> 2) & 3, u & 3
        return f"{MF} {vr(O+16*qs,16)}, {vr(KV+16*kt+8+4*m,4)}, {vr(P+8*(u&1)+4*m,4)}, {vr(O+16*qs,16)}"
    SS = [S, S + 16, KV + 32, KV + 48]
    def samp(i, m): return f"{MF} {vr(SS[i],16)}, {vr(SK+4*m,4)}, {vr(Q+8*i+4*m,4)}, {'0' if m == 0 else vr(SS[i],16)}"
    def mx(i):
        for x in max16_list(4, SS[i]): a(x)
        a(f"s_mov_b32 exec_lo, 0\nv_cvt_pk_bf16_f32 v{Q+8*i+6}, -v4, 0\ns_mov_b32 exec_lo, -1")
    a("s_waitcnt vmcnt(8) lgkmcnt(0)")
    for i in range(4): a(samp(i, 0)); a(samp(i, 1))
    mx(0)
    a("s_waitcnt vmcnt(4)")
    a(QK(0, 0)); a(QK(0, 1))
    a(f"""s_mov_b32 s26, {WS_G}
    buffer_load_dwordx2 {vr(GR,2)}, v{VGO}, s[8:11], s26 offen sc1
    buffer_load_dwordx4 {vr(XR,4)}, v{VXO}, s[12:15], s59 offen
    buffer_load_dwordx4 {vr(XR+4,4)}, v{VXO}, s[12:15], s59 offen offset:32""")
    mx(1); mx(2)
    for x in ldK(2, "s55") + ldV(2, "s55"): a(x)
    mx(3)
    for x in ldK(3, "s56"): a(x)
    for i in range(0, 8, 2): a(f"v_pk_mul_f32 {vr(KV+56+i,2)}, {vr(P+8,2)}, {vr(P+8,2)}")
    for i in range(3):
        a(f"""s_add_u32 s26, s{W}, {i+1}
        s_and_b32 s26, s26, 3
        s_mul_i32 s26, s26, 12288
        s_add_u32 s26, s26, {CB + i*4096}
        v_add_u32 v{4+i}, s26, v1""")
    a(f"s_mul_i32 s26, s{W}, 12288\ns_add_u32 s26, s26, {CB}\nv_add_u32 v2, s26, v1")
    lds_inc(a, VC, C_L, V1)
    st(a, 7)
    a("s_mov_b32 s57, 3")
    def substep(u, ex, last=False):
        s = S + 16 * (u & 1); p = P + 8 * (u & 1)
        e = lambda i: f"v_exp_f32 v{s+i}, v{s+i}"
        c = lambda i: f"v_cvt_pk_bf16_f32 v{p+i}, v{s+2*i}, v{s+2*i+1}"
        q0, q1 = ([], []) if last else ([QK(u+1, 0)], [QK(u+1, 1)])
        seq = q0 + ex[0] + [e(0), e(1), e(2), e(3), c(0), e(4),
               PV(u-1, 0)] + ex[1] + [e(5), c(1), e(6), e(7), c(2), e(8)] + q1 + ex[2] + [e(9), c(3), e(10), e(11), c(4), e(12),
               PV(u-1, 1)] + ex[3] + [e(13), c(5), e(14), e(15), c(6), c(7)]
        for x in seq: a(x)
    a(".p2align 6")
    a.label("L_loop")
    for u in range(16):
        kt, qs = u >> 2, u & 3
        ex = [[], [], [], []]
        if qs == 1:
            l = ldV((kt + 3) & 3, "s56")
            ex[0] = [l[0]]; ex[1] = [l[1]]; ex[2] = ["s_add_u32 s56, s56, 4096"]
        if qs == 2: ex[3] = ["s_waitcnt vmcnt(10)"]
        if qs == 0: ex[3] = ["s_waitcnt vmcnt(10)"]
        if qs == 3:
            l = ldK(kt, "s56")
            ex[0] = [l[0]]; ex[1] = [l[1]]
        if u == 13: ex[3] = ["s_sub_u32 s57, s57, 1"]
        if "itst" in EXP and u in (0, 8):
            a("s_waitcnt lgkmcnt(0)")
            for i in range(1, 6): a(f"s_mov_b32 s{72+2*i}, s{72+2*i+2}")
            a("s_memtime s[84:85]")
        substep(u, ex)
        if u == 13: a("s_cbranch_scc1 L_tail")
    a("s_branch L_loop")
    a.label("L_tail")
    st(a, 8)
    wr = lambda i, k: f"ds_write_b128 v{4+i}, {vr(O+16*i+4*k,4)} offset:{k*1024}"
    substep(14, [[], [wr(0, 0)], [wr(0, 1)], [wr(0, 2)]])
    substep(15, [[wr(0, 3)], [wr(1, 0)], [wr(1, 1)], [wr(1, 2)]], last=True)
    a(PV(15, 0)); a(wr(1, 3)); a(PV(15, 1))
    for k in range(4): a(wr(2, k))
    lds_inc(a, VC, C_C, V1)
    srd(a, 20, 50, 2048 * 896)
    TT = S
    OO = O + 16 * OWN
    a(f"""s_lshl_b32 s28, s35, 4
    s_add_u32 s28, s28, s{H}
    s_lshr_b32 s56, s28, 2
    s_lshl_b32 s56, s56, 5
    s_and_b32 s26, s{H}, 3
    s_add_u32 s56, s56, s26
    s_lshl_b32 s56, s56, 2
    s_add_u32 s56, s56, {WS_OFL}
    s_lshl_b32 s52, s28, 11
    s_add_u32 s52, s52, {WS_O}
    s_mov_b32 s57, 0""")
    spin_lds(a, VC, C_C, 4, 7)
    for k in range(12): a(f"ds_read_b128 {vr(TT+4*k,4)}, v2 offset:{k*1024}")
    for i in range(3):
        a(f"s_waitcnt lgkmcnt({8-4*i})")
        for k in range(8): a(f"v_pk_add_f32 {vr(OO+2*k,2)}, {vr(OO+2*k,2)}, {vr(TT+16*i+2*k,2)}")
    a.label("L_fin")
    a(f"""v_mov_b32 v5, v{OO+12}
    v_mov_b32 v4, v{OO+12}
    s_mov_b32 s28, 0x30800000
    s_mov_b32 s29, 0x4e800000
    v_permlane32_swap_b32 v5, v4
    s_mov_b32 exec_lo, 0
    v_mov_b32 v{OO+12}, 0
    v_mov_b32 v{OO+13}, 0
    v_mov_b32 v{OO+14}, 0
    v_mov_b32 v{OO+15}, 0
    s_mov_b32 exec_lo, -1
    v_rcp_f32 v6, v4
    v_cmp_nle_f32 s[54:55], s28, v4
    v_cmp_nge_f32 s[62:63], s29, v4
    """)
    for k in range(8): a(f"v_pk_mul_f32 {vr(OO+2*k,2)}, {vr(OO+2*k,2)}, v[6:7] op_sel_hi:[1,0]")
    for k in range(8): a(f"v_cvt_pk_bf16_f32 v{Q+k}, v{OO+2*k}, v{OO+2*k+1}")
    a(f"""buffer_store_dwordx4 {vr(Q,4)}, v1, s[8:11], s52 offen sc1
    buffer_store_dwordx4 {vr(Q+4,4)}, v1, s[8:11], s52 offen offset:1024 sc1""")
    st(a, 9)
    a(f"v_pk_add_f32 v[4:5], {vr(OO,2)}, {vr(OO+2,2)}")
    for k in range(2, 8): a(f"v_pk_add_f32 v[4:5], v[4:5], {vr(OO+2*k,2)}")
    a(f"""v_add_f32 v4, v4, v5
    s_movk_i32 s28, 0x207
    v_cmp_class_f32 vcc, v4, s28
    s_or_b64 s[54:55], s[54:55], s[62:63]
    s_or_b64 s[54:55], s[54:55], vcc
    s_cbranch_scc0 L_good
    s_cmp_eq_u32 s57, 0
    s_cbranch_scc1 L_slow
    L_good:""")
    WOF = 104
    a(f"""v_bfe_u32 v4, v3, 2, 2
    v_lshl_add_u32 v4, v{VH}, 2, v4
    v_mul_u32_u24 v4, 224, v4
    v_bfe_u32 v5, v3, 4, 1
    v_lshl_add_u32 v4, v5, 5, v4
    v_and_b32 v5, 1, v3
    v_lshl_add_u32 v4, v5, 4, v4
    v_bfe_u32 v5, v3, 1, 1
    v_lshl_add_u32 v4, v5, 3, v4
    s_mul_i32 s28, s{W}, 56
    v_add_u32 v4, s28, v4""")
    for g in range(4):
        a(f"""s_add_u32 s26, s{W}, {g}
        s_and_b32 s26, s26, 3
        s_mul_i32 s28, s26, {4*28*224}
        v_add_u32 v{40+g}, s28, v4
        s_mul_i32 s28, s26, 12288
        s_add_u32 s28, s28, {CB}
        v_add_u32 v{44+g}, s28, v1""")
    B = 24
    a(f"""v_lshlrev_b32 v16, 2, v{VT}
    v_add_u32 v16, {UPDI}, v16
    s_mul_i32 s28, s{W}, 112
    s_add_u32 s28, s28, {UPD}
    v_lshl_add_u32 v17, v{VH}, 5, s28
    v_mov_b32 v19, 0
    v_mov_b32 v22, {CNT}
    v_mov_b32 v23, 1""")
    for k in range(8):
        a(f"v_lshlrev_b32 v{B+2*k}, 16, v{XR+k}\nv_and_b32 v{B+2*k+1}, 0xffff0000, v{XR+k}")
    a(f"""s_lshl_b32 s28, s58, 4
    s_lshl2_add_u32 s28, s{W}, s28
    s_lshl_b32 s29, s28, 11
    s_add_u32 s29, s29, {WS_O}
    s_add_u32 s27, s29, 4096
    s_lshl_b32 s28, s28, 5
    s_add_u32 s28, s28, {WS_OFL}
    v_lshrrev_b32 v7, 2, v1
    s_waitcnt vmcnt(0)""")
    signal(a, 6, 19, "s56", 1)
    a(f"""v_cmp_ne_u32 vcc, s{T}, v{GR+1}
    s_cbranch_vccnz L_gate
    L_gate_ok:
    v_sub_f32 v20, 1.0, v{GR}
    v_cvt_pk_bf16_f32 v20, v20, v20
    v_lshlrev_b32 v20, 16, v20""")
    spin_lds(a, 22, C_W, 4, 6)
    def word(k):
        hd, m = (k >> 1) & 3, k & 1
        o = (28 * hd + 16 * m) * 224
        b = 40 + (k >> 3)
        a(f"ds_read_b64_tr_b16 {vr(WOF+4*k,2)}, v{b} offset:{o}\nds_read_b64_tr_b16 {vr(WOF+4*k+2,2)}, v{b} offset:{o+8*224}")
    for k in range(32): word(k)
    poll_pipe(a, 8, 7, "s28", 15, D=PD, gap=PG)
    st(a, 10)
    OS = 56
    for k in range(8):
        a(f"buffer_load_dwordx4 {vr(OS+4*k,4)}, v1, s[8:11], {'s29' if k < 4 else 's27'} offen offset:{(k&3)*1024} sc1")
    U = 88
    spin_lds(a, 22, C_E, 4, 6)
    a(f"""ds_read_b32 v18, v16
    s_waitcnt lgkmcnt(0)
    v_cmp_le_i32 vcc, 0, v18
    s_cbranch_vccz L_noupd
    s_mov_b64 exec, vcc
    v_mul_u32_u24 v18, 448, v18
    v_add_u32 v17, v17, v18""")
    for k in range(4): a(f"ds_read_b128 {vr(U+4*k,4)}, v17 offset:{64*(k>>1)+16*(k&1)}")
    a("s_waitcnt lgkmcnt(0)")
    for k in range(8):
        a(f"""v_pk_add_f32 {vr(B+2*k,2)}, {vr(B+2*k,2)}, {vr(U+2*k,2)}
        v_cvt_pk_bf16_f32 v{B+2*k}, v{B+2*k}, v{B+2*k+1}
        v_and_b32 v{B+2*k+1}, 0xffff0000, v{B+2*k}
        v_lshlrev_b32 v{B+2*k}, 16, v{B+2*k}""")
    a("s_mov_b64 exec, -1\nL_noupd:")
    for k in range(8): a(f"v_pk_mul_f32 {vr(B+2*k,2)}, {vr(B+2*k,2)}, v[20:21] op_sel_hi:[1,0]")
    ACC = 88
    for k in range(8):
        a(f"s_waitcnt vmcnt({7-k})\nds_write_b128 v2, {vr(OS+4*k,4)} offset:{k*1024}")
    lds_inc(a, 22, C_O, 23)
    for k in range(4):
        a(f"{MF} {vr(ACC,16)}, {vr(WOF+4*k,4)}, {vr(OS+4*k,4)}, {'0' if k==0 else vr(ACC,16)}")
    spin_lds(a, 22, C_O, 4, 6)
    st(a, 11)
    if STAMP: a("s_waitcnt lgkmcnt(0)")
    def ord_(k): a(f"ds_read_b128 {vr(OS+4*(k&7),4)}, v{44+(k>>3)} offset:{(k&7)*1024}")
    for k in range(8, 11): ord_(k)
    for k in range(4, 32):
        if k >= 5 and k + 6 < 32: ord_(k + 6)
        if k >= 8: a(f"s_waitcnt lgkmcnt({min(31,k+6)-k})")
        a(f"{MF} {vr(ACC,16)}, {vr(WOF+4*k,4)}, {vr(OS+4*(k&7),4)}, {vr(ACC,16)}")
    for m in range(2):
        for e in range(4*m, 4*m+4):
            a(f"v_pk_fma_f32 {vr(B+2*e,2)}, {vr(ACC+2*e,2)}, {vr(GR,2)}, {vr(B+2*e,2)} op_sel_hi:[1,0,1]")
        for e in range(4*m, 4*m+4): a(f"v_cvt_pk_bf16_f32 v{8+e}, v{B+2*e}, v{B+2*e+1}")
        if m == 0:
            a(f"buffer_store_dwordx4 v[8:11], v{VXO}, s[20:23], s59 offen{OUTAUX}")
        else:
            a(f"""s_mov_b32 exec_hi, 0
            buffer_store_dwordx4 v[12:15], v{VXO}, s[20:23], s59 offen offset:32{OUTAUX}
            s_mov_b64 exec, 0xffffffff
            s_not_b64 exec, exec
            buffer_store_dwordx2 v[12:13], v{VXO}, s[20:23], s59 offen offset:32{OUTAUX}""")
    st_end(a)
    a("s_endpgm")
    a(f"""L_gate:
    s_mov_b32 s26, {WS_G}
    s_mov_b32 s60, {SPIN_LIMIT}
    L_gate1:
    buffer_load_dwordx2 {vr(GR,2)}, v{VGO}, s[8:11], s26 offen sc1
    s_waitcnt vmcnt(0)
    v_cmp_ne_u32 vcc, s{T}, v{GR+1}
    s_cbranch_vccz L_gate_ok
    s_sub_u32 s60, s60, 1
    s_cbranch_scc0 L_gate1
    s_endpgm""")
    a.label("L_slow")
    a(f"""s_mov_b32 s57, 1
    s_add_u32 s55, s53, {64*4096}
    s_mov_b32 s54, s53
    s_mov_b32 exec_lo, 0
    v_mov_b32 v{QO+6}, 0
    v_mov_b32 v{QO+7}, 0
    s_mov_b32 exec_lo, -1
    v_mov_b32 v4, 0xff800000
    L_slow1:
    buffer_load_dwordx4 {vr(KV,4)}, v1, s[8:11], s54 offen sc1
    buffer_load_dwordx4 {vr(KV+4,4)}, v1, s[8:11], s54 offen offset:1024 sc1
    s_waitcnt vmcnt(0)
    {MF} {vr(S,16)}, {vr(KV,4)}, {vr(QO,4)}, 0
    {MF} {vr(S,16)}, {vr(KV+4,4)}, {vr(QO+4,4)}, {vr(S,16)}""")
    for x in max16_list(4, S, init=True): a(x)
    a("""s_add_u32 s54, s54, 4096
    s_cmp_lt_u32 s54, s55
    s_cbranch_scc1 L_slow1
    v_mov_b32 v5, v4
    v_permlane32_swap_b32 v4, v5
    v_max_f32 v4, v4, v5""")
    split_neg_max(a, 4, 5, 6, QO + 6, QO + 7)
    for i in range(16): a(f"v_mov_b32 v{OO+i}, 0")
    a(f"""s_mov_b32 s54, s53
    L_slow2:
    buffer_load_dwordx4 {vr(KV,4)}, v1, s[8:11], s54 offen sc1
    buffer_load_dwordx4 {vr(KV+4,4)}, v1, s[8:11], s54 offen offset:1024 sc1
    buffer_load_dwordx4 {vr(KV+8,4)}, v1, s[8:11], s54 offen offset:2048 sc1
    buffer_load_dwordx4 {vr(KV+12,4)}, v1, s[8:11], s54 offen offset:3072 sc1
    s_waitcnt vmcnt(0)
    {MF} {vr(S,16)}, {vr(KV,4)}, {vr(QO,4)}, 0
    {MF} {vr(S,16)}, {vr(KV+4,4)}, {vr(QO+4,4)}, {vr(S,16)}""")
    for i in range(16): a(f"v_exp_f32 v{S+i}, v{S+i}")
    for i in range(8): a(f"v_cvt_pk_bf16_f32 v{P+i}, v{S+2*i}, v{S+2*i+1}")
    a(f"""{MF} {vr(OO,16)}, {vr(KV+8,4)}, {vr(P,4)}, {vr(OO,16)}
    {MF} {vr(OO,16)}, {vr(KV+12,4)}, {vr(P+4,4)}, {vr(OO,16)}
    s_nop 7
    s_nop 7
    s_add_u32 s54, s54, 4096
    s_cmp_lt_u32 s54, s55
    s_cbranch_scc1 L_slow2
    s_branch L_fin""")

def service_wave(a):
    a.label("L_service")
    a(f"""v_mov_b32 v14, {CNT}
    v_mov_b32 v15, 1
    v_mov_b32 v9, 0""")
    srd(a, 8, 36, 1 << 28)
    tag(a)
    a("s_waitcnt vmcnt(0)")
    lds_inc(a, 14, C_Q1, 15)
    for e in range(7):
        a(f"""v_add_u32 v4, {64*e}, v3
        v_mul_u32_u24 v5, 4682, v4
        v_lshrrev_b32 v5, 16, v5
        v_mul_u32_u24 v5, {896-224}, v5
        v_lshl_add_u32 v{200+e}, v4, 4, v5""")
    GI = 81920; DI = QX; HB = 101376
    FT, KS = 56, 59
    a(f"""v_mov_b32 v16, 0
    v_mov_b32 v17, 0
    v_mov_b32 v18, 0
    v_mov_b32 v19, 0
    v_add_u32 v209, {448*224}, v1
    v_and_b32 v32, 31, v3
    v_lshrrev_b32 v33, 5, v3
    v_and_b32 v36, 255, v0
    s_mul_i32 s{FT}, s2, 9363
    s_lshr_b32 s{FT}, s{FT}, 16
    s_mul_i32 s26, s{FT}, 7
    s_sub_u32 s{KS}, s2, s26
    v_lshrrev_b32 v4, 3, v3
    v_and_b32 v5, 2, v4
    v_lshlrev_b32 v5, 1, v5
    v_and_b32 v6, 7, v3
    v_xor_b32 v5, v5, v6
    v_mul_u32_u24 v6, 3584, v4
    v_lshl_add_u32 v34, v5, 4, v6
    v_add_u32 v35, {8*3584-1024}, v34
    v_mul_u32_u24 v6, 896, v4
    v_lshl_add_u32 v37, v5, 4, v6
    v_add_u32 v38, {8*896-1024}, v37
    v_bfe_u32 v4, v3, 2, 2
    v_lshl_add_u32 v5, v33, 3, v4
    v_lshlrev_b32 v5, 7, v5
    v_lshrrev_b32 v4, 1, v4
    v_lshl_add_u32 v5, v4, 6, v5
    v_bfe_u32 v4, v3, 4, 1
    v_lshl_add_u32 v5, v4, 5, v5
    v_and_b32 v4, 3, v3
    v_lshl_add_u32 v210, v4, 3, v5
    v_xor_b32 v211, 64, v210
    s_lshr_b32 s26, s{L}, 1
    s_lshl_b32 s26, s26, 13
    s_and_b32 s28, s{L}, 1
    s_lshl_b32 s28, s28, 6
    s_or_b32 s26, s26, s28
    v_xor_b32 v39, s26, v210
    v_add_u32 v39, {GI}, v39
    v_add_u32 v210, {DI}, v210
    v_add_u32 v211, {DI}, v211
    ; partial-sum store offset 4hh*256 + col*4 ; gather offset tid*8 ; h addresses ; y offsets
    v_lshlrev_b32 v212, 10, v33
    v_lshl_add_u32 v212, v32, 2, v212
    v_lshlrev_b32 v213, 3, v36
    v_lshlrev_b32 v214, 2, v36
    v_add_u32 v214, {HB}, v214
    v_and_b32 v4, 7, v3
    v_lshlrev_b32 v217, 3, v4
    v_lshlrev_b32 v4, 7, v4
    v_lshl_add_u32 v4, v33, 4, v4
    v_add_u32 v218, {HB}, v4
    v_mul_u32_u24 v215, {4*1792}, v33
    v_lshl_add_u32 v215, v32, 2, v215
    v_add_u32 v216, {2*1792}, v215
    v_lshlrev_b32 v219, 3, v1
    v_lshrrev_b32 v220, 2, v1
    s_lshl_b32 s28, s{L}, 2
    v_add_u32 v222, s28, v14
    s_cmp_lg_u32 s2, 255
    s_cbranch_scc1 L_svc1""")
    def arrive():
        a("s_waitcnt lgkmcnt(0)")
        lds_inc(a, 14, C_S, 15)
    def sbar(n, sleep=2):
        arrive()
        spin_lds(a, 14, C_S, 4 * n, 8, sleep=sleep)
    KEY, D = 20, 24
    a(f"""s_lshl_b32 s26, s{L}, 12
    s_add_u32 s26, s26, {WS_R}
    s_mov_b32 s60, {SPIN_LIMIT}
    L_keys:""")
    for k in range(4): a(f"buffer_load_dwordx4 {vr(40+4*k,4)}, v1, s[8:11], s26 offen offset:{1024*k} sc1")
    a(f"""s_waitcnt vmcnt(0)
    v_xor_b32 v4, s{T}, v41
    v_xor_b32 v5, s{T}, v43""")
    for k in range(2, 8, 2):
        a(f"v_bitop3_b32 v4, v4, v{41+2*k}, s{T} bitop3:0xf6\nv_bitop3_b32 v5, v5, v{43+2*k}, s{T} bitop3:0xf6")
    a(f"""v_or_b32 v4, v4, v5
    v_cmp_ne_u32 vcc, 0, v4
    s_cbranch_vccz L_keys_ok
    s_sleep 2
    s_sub_u32 s60, s60, 1
    s_cbranch_scc0 L_keys
    s_endpgm
    L_keys_ok:
    s_mov_b32 s58, -1""")
    st(a, 10)
    a("s_mov_b32 s57, 0\nL_top1:")
    for i in range(8): a(f"v_sub_u32 v{D+i}, s58, v{40+2*i}")
    a(f"""v_min3_u32 v{D}, v{D}, v{D+1}, v{D+2}
    v_min3_u32 v{D+3}, v{D+3}, v{D+4}, v{D+5}
    v_min3_u32 v{D}, v{D}, v{D+6}, v{D+7}
    v_min_u32 v{D}, v{D}, v{D+3}""")
    wave_min_u32(a, D)
    a(f"""v_readlane_b32 s29, v{D}, 63
    s_mov_b32 m0, s57
    s_sub_u32 s29, s58, s29
    s_sub_u32 s58, s29, 1
    v_writelane_b32 v6, s29, m0
    s_add_u32 s57, s57, 1
    s_cmp_lt_u32 s57, 8
    s_cbranch_scc1 L_top1
    s_lshl_b32 s26, s{L}, 5
    s_add_u32 s26, s26, {CAND}
    v_lshl_add_u32 v7, v3, 2, s26
    s_mov_b64 exec, 0xff
    ds_write_b32 v7, v6
    s_mov_b64 exec, -1
    v_mov_b32 v6, {CAND}
    v_lshl_add_u32 v7, v32, 2, v6
    v_lshl_add_u32 v6, v33, 6, v6""")
    arrive()
    a.label("L_svc1")
    a(f"""s_mul_i32 s26, s{H}, 28
    s_add_u32 s28, s26, 27
    s_xor_b32 s26, s26, s28
    s_mov_b32 s62, 0x5555
    s_cmp_ge_u32 s26, 64
    s_cselect_b32 s62, 0xffff, s62
    s_mov_b32 s63, 0
    s_lshl2_add_u32 s26, s{H}, s{L}
    s_lshr_b32 s28, s{J}, 2
    s_lshl2_add_u32 s26, s26, s28
    s_lshl_b32 s26, s26, 7
    s_add_u32 s26, s26, {WS_MB}""")
    spin_lds(a, 14, C_D, PCD, 8, sleep=1)
    poll_pipe(a, 28, 220, "s26", "s[62:63]", D=PD, gap=PG)
    lds_inc(a, 222, C_R, 15)
    a(f"s_lshl2_add_u32 s26, s2, s{L}\ns_cmp_lg_u32 s26, {255*4}\ns_cbranch_scc1 L_svc2")
    spin_lds(a, 14, C_S, 4, 8)
    a(f"ds_read_b32 v{KEY}, v7")
    for k in range(4): a(f"ds_read_b128 {vr(40+4*k,4)}, v6 offset:{16*k}")
    a("v_mov_b32 v22, 0\ns_waitcnt lgkmcnt(0)")
    for k in range(16):
        a(f"v_cmp_gt_u32 vcc, v{40+k}, v{KEY}\nv_addc_co_u32 v22, vcc, 0, v22, vcc")
    a(f"""v_mov_b32 v23, v22
    v_mov_b32 v21, s{T}
    s_mov_b32 s26, {WS_SEL}
    v_permlane32_swap_b32 v22, v23
    v_add_u32 v22, v22, v23
    v_cmp_gt_u32 vcc, 8, v22
    v_lshlrev_b32 v22, 3, v22
    s_mov_b32 exec_lo, vcc_lo
    s_mov_b32 exec_hi, 0
    buffer_store_dwordx2 v[20:21], v22, s[8:11], s26 offen sc1
    s_mov_b64 exec, -1""")
    st(a, 11)
    a.label("L_svc2")
    spin_lds(a, 14, C_L, 4, 8, sleep=2)
    st(a, 3)
    a(f"s_cmp_lg_u32 s{L}, 0\ns_cbranch_scc1 L_nofl\ns_lshl_b32 s26, s2, 7\ns_add_u32 s26, s26, {WS_FL}")
    flag_store(a, 5, 9, "s26")
    a("L_nofl:")
    a(f"""s_and_b32 s53, s{H}, 3
    s_mul_i32 s53, s53, 224
    s_mul_i32 s55, s{L}, {7*1024}
    s_mul_i32 s57, s{L}, {32*896}
    s_add_u32 s57, s57, s53
    s_cmp_ge_u32 s2, 196
    s_cbranch_scc1 L_svcWo""")
    def wo_group():
        for e in range(7):
            a(f"""s_add_u32 m0, s55, {e*1024}
            s_waitcnt vmcnt({WOP})
            buffer_load_dwordx4 v{200+e}, s[16:19], s57 offen lds""")
        a(f"s_add_u32 s55, s55, {28*1024}\ns_add_u32 s57, s57, {128*896}")
    def sel_load(lbl):
        a(f"""s_mov_b32 s26, {WS_SEL}
        s_mov_b32 s60, {SPIN_LIMIT}
        {lbl}:
        buffer_load_dwordx2 v[20:21], v217, s[8:11], s26 offen sc1
        s_waitcnt vmcnt(0)
        v_cmp_ne_u32 vcc, s{T}, v21
        s_cbranch_vccz {lbl}_ok
        s_sleep 4
        s_sub_u32 s60, s60, 1
        s_cbranch_scc0 {lbl}
        s_endpgm
        {lbl}_ok:""")
    srd(a, 16, 42, 448 * 3584)
    W1 = "s_waitcnt vmcnt(0)" if "fine" in EXP else ""
    a(f"""s_lshl2_add_u32 s52, s{KS}, s{L}
    s_mul_i32 s52, s52, {16*3584}
    s_lshl_b32 s28, s{FT}, 7
    s_add_u32 s52, s52, s28
    s_lshl_b32 s54, s{L}, 11
    s_add_u32 m0, s54, {GI}
    s_nop 0
    buffer_load_dwordx4 v34, s[16:19], s52 offen lds
    {W1}
    buffer_load_dwordx4 v35, s[16:19], s52 offen offset:1024 lds""")
    sel_load("L_sel1")
    XS_ = 40; FW = 56; DW = 72; AC = 104
    a(f"""s_mov_b64 s[16:17], s[44:45]
    s_add_u32 m0, s54, {GI+8192}
    v_and_b32 v4, 0xffff, v20
    buffer_load_dwordx4 v34, s[16:19], s52 offen lds
    {W1}
    buffer_load_dwordx4 v35, s[16:19], s52 offen offset:1024 lds
    v_sub_u32 v4, 0xffff, v4
    v_mul_u32_u24 v4, 896, v4
    v_lshl_add_u32 v4, v33, 4, v4
    s_lshl_b32 s26, s{KS}, 7
    s_mov_b32 exec_lo, 0xff
    s_mov_b32 exec_hi, 0xff""")
    for k in range(4):
        a(f"buffer_load_dwordx4 {vr(XS_+4*k,4)}, v4, s[12:15], s26 offen offset:{32*k}")
    a("s_mov_b64 exec, -1\ns_waitcnt vmcnt(0)")
    st(a, 4)
    sbar(1, sleep=1)
    for k in range(4):
        a(f"""ds_read_b64_tr_b16 {vr(FW+4*k,2)}, v39 offset:{k*2048}
        ds_read_b64_tr_b16 {vr(FW+4*k+2,2)}, v39 offset:{k*2048+512}
        s_waitcnt lgkmcnt(0)
        {MF} {vr(AC,16)}, {vr(XS_+4*k,4)}, {vr(FW+4*k,4)}, {'0' if k==0 else vr(AC,16)}""")
    a(f"""s_lshr_b32 s26, s{L}, 1
    s_lshl1_add_u32 s26, s2, s26
    s_lshl_b32 s26, s26, 11
    s_and_b32 s28, s{L}, 1
    s_lshl_b32 s28, s28, 7
    s_add_u32 s26, s26, s28
    s_add_u32 s26, s26, {WS_GP}
    s_mov_b64 s[16:17], s[46:47]
    s_lshl2_add_u32 s28, s{FT}, s{L}
    s_mul_i32 s28, s28, {16*896}
    s_lshl_b32 s29, s{KS}, 7
    s_add_u32 s28, s28, s29
    s_add_u32 m0, s54, {DI}""")
    for k in range(4):
        a(f"buffer_store_dword v{AC+k}, v212, s[8:11], s26 offen offset:{256*k} sc1")
    a(f"""buffer_load_dwordx4 v37, s[16:19], s28 offen lds
    buffer_load_dwordx4 v38, s[16:19], s28 offen offset:1024 lds
    ds_write_b128 v209, v[16:19]
    s_lshl2_add_u32 s26, s{KS}, s{L}
    s_lshl_b32 s26, s26, 2
    s_mul_i32 s28, s{FT}, {7*128}
    s_add_u32 s26, s26, s28
    s_add_u32 s26, s26, {WS_F1}
    s_waitcnt vmcnt(2)""")
    signal(a, 5, 219, "s26", "0x7f")
    srd(a, 16, 38, 448 * 896)
    st(a, 5)
    a("L_wo2:")
    wo_group()
    a(f"s_cmp_lt_u32 s55, {56*1024}\ns_cbranch_scc1 L_wo2")
    a(f"""s_lshl_b32 s26, s2, 7
    s_add_u32 s26, s26, {WS_F1}""")
    poll_atomic(a, 5, 220, "s26", "0x0fffffff", 2)
    st(a, 6)
    GP = 40
    a(f"s_mul_i32 s26, s{FT}, {7*4096}\ns_add_u32 s26, s26, {WS_GP}")
    for k in range(7):
        a(f"""buffer_load_dwordx2 {vr(GP+4*k,2)}, v213, s[8:11], s26 offen sc1
        buffer_load_dwordx2 {vr(GP+4*k+2,2)}, v213, s[8:11], s26 offen offset:2048 sc1""")
        if k < 6: a("s_add_u32 s26, s26, 4096")
    a(f"s_mov_b32 s28, {NLOG2E:#x}\ns_mov_b32 s29, {NLOG2E:#x}\ns_waitcnt vmcnt(0)")
    for k in range(1, 7):
        a(f"v_pk_add_f32 {vr(GP,2)}, {vr(GP,2)}, {vr(GP+4*k,2)}\nv_pk_add_f32 {vr(GP+2,2)}, {vr(GP+2,2)}, {vr(GP+4*k+2,2)}")
    a(f"""v_cvt_pk_bf16_f32 v22, v{GP}, v{GP+1}
    v_cvt_pk_bf16_f32 v24, v{GP+2}, v{GP+3}
    v_and_b32 v23, 0xffff0000, v22
    v_lshlrev_b32 v22, 16, v22
    v_pk_mul_f32 v[26:27], v[22:23], s[28:29]
    v_and_b32 v25, 0xffff0000, v24
    v_exp_f32 v26, v26
    v_exp_f32 v27, v27
    v_lshlrev_b32 v24, 16, v24
    v_pk_add_f32 v[26:27], v[26:27], 1.0 op_sel_hi:[1,0]
    v_rcp_f32 v26, v26
    v_rcp_f32 v27, v27
    s_nop 0
    v_pk_mul_f32 v[22:23], v[22:23], v[26:27]
    v_cvt_pk_bf16_f32 v22, v22, v23
    v_and_b32 v23, 0xffff0000, v22
    v_lshlrev_b32 v22, 16, v22
    v_pk_mul_f32 v[22:23], v[22:23], v[24:25]
    v_cvt_pk_bf16_f32 v22, v22, v23
    ds_write_b32 v214, v22""")
    sbar(2, sleep=1)
    a(f"s_cmp_lg_u32 s{L}, 3\ns_cbranch_scc1 L_wo")
    for k in range(4):
        a(f"ds_read_b128 {vr(GP+4*k,4)}, v218 offset:{32*k}")
        for n in range(2):
            a(f"ds_read_b64_tr_b16 {vr(DW+16*n+4*k,2)}, v{210+n} offset:{k*2048}\nds_read_b64_tr_b16 {vr(DW+16*n+4*k+2,2)}, v{210+n} offset:{k*2048+512}")
        a("s_waitcnt lgkmcnt(0)")
        for n in range(2):
            acc = AC + 16 * n
            a(f"{MF} {vr(acc,16)}, {vr(GP+4*k,4)}, {vr(DW+16*n+4*k,4)}, {'0' if k==0 else vr(acc,16)}")
    a(f"""s_mul_i32 s26, s{FT}, 14336
    s_lshl_b32 s28, s{KS}, 8
    s_add_u32 s26, s26, s28
    s_add_u32 s26, s26, {WS_YP}""")
    for n in range(2):
        acc = AC + 16 * n
        a(f"""buffer_store_dword v{acc}, v215, s[8:11], s26 offen offset:{n*128} sc1
        buffer_store_dword v{acc+1}, v215, s[8:11], s26 offen offset:{n*128+1792} sc1
        buffer_store_dword v{acc+2}, v216, s[8:11], s26 offen offset:{n*128} sc1
        buffer_store_dword v{acc+3}, v216, s[8:11], s26 offen offset:{n*128+1792} sc1""")
    a(f"""s_lshl_b32 s26, s{KS}, 5
    s_add_u32 s26, s26, s{FT}
    s_lshl_b32 s26, s26, 2
    s_add_u32 s26, s26, {WS_YFL}
    s_waitcnt vmcnt(0)""")
    signal(a, 5, 9, "s26", 1)
    st(a, 7)
    a("s_branch L_wo")
    a.label("L_svcWo")
    srd(a, 16, 38, 448 * 896)
    a(f"""ds_write_b128 v209, v[16:19]
    s_sub_u32 s26, s2, 196
    s_lshl2_add_u32 s26, s26, s{L}
    s_lshr_b32 s28, s26, 1
    s_lshl_b32 s28, s28, 7
    s_add_u32 s28, s28, {WS_F1}
    s_mul_i32 s26, s26, {14*128}
    s_min_u32 s26, s26, {(3136-14)*128}
    s_mov_b64 exec, 0x3fff
    buffer_load_dword v5, v219, s[16:19], s26 offen
    s_mov_b64 exec, -1""")
    a("s_waitcnt vmcnt(0)")
    poll_atomic(a, 5, 9, "s28", 1, 8)
    a("L_wo:")
    wo_group()
    a(f"s_cmp_lt_u32 s55, {98*1024}\ns_cbranch_scc1 L_wo")
    st(a, 8)
    sel_load("L_sel2")
    lds_inc(a, 14, C_W, 15)
    Y = 40
    a(f"""s_lshr_b32 s58, s{H}, 2
    s_lshl2_add_u32 s58, s{J}, s58
    s_lshl_b32 s57, s{L}, 1
    L_upd:
    v_readlane_b32 s52, v20, s57
    s_and_b32 s54, s52, 0xffff
    s_sub_u32 s54, 0xffff, s54
    s_lshr_b32 s26, s54, 5
    s_cmp_lg_u32 s26, s58
    s_cbranch_scc1 L_updn
    s_lshr_b32 s26, s53, 7
    s_lshl_b32 s26, s26, 7
    s_add_u32 s26, s26, {WS_YFL}
    s_add_u32 s28, s53, {223-128}
    s_lshr_b32 s28, s28, 7
    s_lshl_b32 s28, s28, 7
    s_add_u32 s28, s28, {WS_YFL}
    s_mov_b32 s60, {SPIN_LIMIT}
    s_mov_b32 exec_lo, 0x0fffffff
    s_mov_b32 exec_hi, 0x0fffffff
    L_yfl:
    v_mov_b32 v24, 0
    v_mov_b32 v25, 0
    buffer_atomic_or v24, v220, s[8:11], s26 offen sc0 sc1
    buffer_atomic_or v25, v220, s[8:11], s28 offen sc0 sc1
    s_waitcnt vmcnt(0)
    v_xor_b32 v24, s{T}, v24
    v_bitop3_b32 v24, v24, v25, s{T} bitop3:0xf6
    v_cmp_ne_u32 vcc, 0, v24
    s_cbranch_vccz L_yok
    s_sleep 2
    s_sub_u32 s60, s60, 1
    s_cbranch_scc0 L_yfl
    s_endpgm
    L_yok:
    s_mov_b64 exec, -1
    v_mul_u32_u24 v4, {14*14336}, v33
    v_lshl_add_u32 v4, v32, 4, v4
    s_mul_i32 s26, s57, 1792
    s_lshl1_add_u32 s26, s53, s26
    s_add_u32 s26, s26, {WS_YP}
    s_mov_b32 exec_lo, 0x0fffffff
    s_mov_b32 exec_hi, 0x0fffffff""")
    for i in range(14):
        a(f"buffer_load_dwordx4 {vr(Y+4*i,4)}, v4, s[8:11], s26 offen sc1\ns_add_u32 s26, s26, 14336")
    a(f"""s_mov_b64 exec, -1
    s_lshr_b32 s26, s52, 16
    s_not_b32 s55, s26
    s_and_b32 s29, s26, 0x7fff
    s_bitcmp1_b32 s26, 15
    s_cselect_b32 s26, s29, s55
    s_lshl_b32 s26, s26, 16
    v_mov_b32 v6, {NLOG2E:#x}
    v_mul_f32 v6, s26, v6
    v_exp_f32 v6, v6
    v_add_f32 v6, 1.0, v6
    v_rcp_f32 v6, v6
    v_cvt_pk_bf16_f32 v6, v6, v6
    v_lshlrev_b32 v6, 16, v6
    s_mul_i32 s26, s57, 448
    s_add_u32 s26, s26, {UPD}
    v_lshl_add_u32 v7, v32, 4, s26
    s_waitcnt vmcnt(0)""")
    for i in range(1, 14):
        a(f"v_pk_add_f32 {vr(Y,2)}, {vr(Y,2)}, {vr(Y+4*i,2)}\nv_pk_add_f32 {vr(Y+2,2)}, {vr(Y+2,2)}, {vr(Y+4*i+2,2)}")
    for k in range(4): a(f"v_mov_b32 v{Y+4+k}, v{Y+k}")
    for k in range(4): a(f"v_permlane32_swap_b32 v{Y+k}, v{Y+4+k}")
    for k in range(4): a(f"v_add_f32 v{Y+k}, v{Y+k}, v{Y+4+k}")
    for k in range(0, 4, 2):
        a(f"""v_cvt_pk_bf16_f32 v{Y+k}, v{Y+k}, v{Y+k+1}
        v_and_b32 v{Y+k+1}, 0xffff0000, v{Y+k}
        v_lshlrev_b32 v{Y+k}, 16, v{Y+k}
        v_mul_f32 v{Y+k}, v{Y+k}, v6
        v_mul_f32 v{Y+k+1}, v{Y+k+1}, v6
        v_cvt_pk_bf16_f32 v{Y+k}, v{Y+k}, v{Y+k+1}
        v_and_b32 v{Y+k+1}, 0xffff0000, v{Y+k}
        v_lshlrev_b32 v{Y+k}, 16, v{Y+k}""")
    a(f"""s_and_b32 s54, s54, 31
    v_mov_b32 v5, s57
    s_lshl_b32 s26, s54, 2
    s_add_u32 s26, s26, {UPDI}
    v_mov_b32 v4, s26
    s_mov_b64 exec, 0x0fffffff
    ds_write_b128 v7, {vr(Y,4)}
    s_mov_b64 exec, 1
    ds_write_b32 v4, v5
    s_mov_b64 exec, -1
    L_updn:
    s_add_u32 s57, s57, 1
    s_bitcmp1_b32 s57, 0
    s_cbranch_scc1 L_upd""")
    lds_inc(a, 14, C_E, 15)
    st(a, 9)
    a(f"""s_cmp_lg_u32 s2, 254
    s_cbranch_scc1 L_svc_end
    s_cmp_lg_u32 s{L}, 0
    s_cbranch_scc1 L_svc_end
    s_mov_b32 s57, {WS_FL}
    L_ep:""")
    poll_global(a, 5, 219, "s57", sleep=4)
    a(f"""s_add_u32 s57, s57, 8192
    s_cmp_lt_u32 s57, {WS_FL+32768}
    s_cbranch_scc1 L_ep
    s_mov_b32 s26, {WS_EP}""")
    flag_store(a, 5, 9, "s26")
    a("L_svc_end:\ns_waitcnt vmcnt(0) lgkmcnt(0)")
    st_end(a)
    a("L_exit:\nL_code_end:\ns_endpgm")

def main(out):
    hdr = open("cdna_kernels/" + NAME + ".s.ref").read().split("; Override")[0]
    rep = []
    a = Asm()
    prologue_and_loader(a); main_wave(a); service_wave(a)
    t = hdr
    t += f"; @launch grid=(256,1,1) block=(512,1,1) lds={LDS_BYTES}\n"
    t += '.amdgcn_target "amdgcn-amd-amdhsa--gfx950"\n'
    t += kernel_text(NAME + "_kernel", a.l, 256, report=rep)
    open(out, "w").write(t)
    if "-v" in sys.argv: print("\n".join(rep))

if __name__ == "__main__":
    main(sys.argv[1])
```

```python
import sys, math, struct
from asmlib import *

NAME = "gated_mix__softmax_full_mha__moe_arch_mod__prompt"
STAMP = "-s" in sys.argv
EXP = set(x[2:] for x in sys.argv if x.startswith("-x"))
WS_KV = 0
WS_O = 4 << 20
WS_R = 6 << 20
WS_G = WS_R + 16384
WS_SEL = WS_R + 32768
WS_EP = WS_R + 40960
WS_FL = WS_R + 65536
WS_MB = WS_FL + 32768
WS_OFL = WS_MB + 32768
WS_YFL = WS_OFL + 32768
WS_F1 = WS_YFL + 4096
WS_YP = 7 << 20
WS_GP = 8 << 20
WS_ST = 16 << 20
XS = 0; WT = 65536; WQ = 122880; QX = 151552; UPD = 159744
WO = 0; CB = 102400
UPDI = UPD + 3584
CAND = UPDI + 128
CNT = 163840 - 64
LDS_BYTES = 163840
C_Q1, C_Q2, C_X, C_L, C_S, C_D, C_C, C_O, C_R, C_W, C_E = 0, 4, 8, 12, 16, 20, 24, 28, 32, 48, 52

def f32bits(x): return struct.unpack("<I", struct.pack("<f", x))[0]
QSCALE = f32bits(28 ** -0.5 * math.log2(math.e))
NLOG2E = f32bits(-math.log2(math.e))
MF = "v_mfma_f32_32x32x16_bf16"
ROLE = [0, 1, 2, 3, 14, 4, 5, 6, 7, 8, 9, 15, 10, 11, 12, 13]
ROLE_LO = sum(ROLE[i] << (4 * i) for i in range(8))
ROLE_HI = sum(ROLE[8 + i] << (4 * i) for i in range(8))
SPIN_LIMIT = 1 << 20
PD = 2 if "pd2" in EXP else 4
PG = 6 if "pd2" in EXP else 3
PCD = 1 if "pcd1" in EXP else 4
KVS = 4 if "kvs4" in EXP else (0 if "kvs0" in EXP else 2)
PQ2 = 4 if "pq4" in EXP else (0 if "pq0" in EXP else 1)
PF0 = 2 if "pf2" in EXP else 0
WOP = 1 if "wo1" in EXP else 3
OUTAUX = " sc1" if "outsc1" in EXP else (" nt" if "outnt" in EXP else "")

T, H, J, W, RL, ROT = 30, 31, 32, 33, 34, 3
_uid = [0]
def uid(p):
    _uid[0] += 1
    return f"{p}_{_uid[0]}"

def srd(a, d, ptr, nbytes):
    a(f"s_mov_b32 s{d}, s{ptr}\ns_mov_b32 s{d+1}, s{ptr+1}\ns_mov_b32 s{d+2}, {nbytes:#x}\ns_mov_b32 s{d+3}, 0x20000")

NST = 12
DIAG = [tuple(int(y) for y in x[2:].split("-")) for x in sys.argv if x.startswith("-d")]
def st(a, i):
    if STAMP: a(f"s_memtime s[{72+2*i}:{73+2*i}]")
    if DIAG and i in DIAG[0]: a(f"s_memrealtime s[{72+2*i}:{73+2*i}]\ns_waitcnt lgkmcnt(0)")
def st_begin(a):
    if STAMP: a("s_memrealtime s[68:69]\ns_memtime s[72:73]")
    if DIAG: a("s_memrealtime s[72:73]")
def diag_end(a):
    if not DIAG: return
    p, q = DIAG[0]
    a(f"""s_waitcnt vmcnt(0)
    s_memrealtime s[96:97]
    s_waitcnt lgkmcnt(0)
    s_sub_u32 s70, s{72+2*q}, s{72+2*p}
    s_add_u32 s70, s70, s96
    L_diag:
    s_memrealtime s[68:69]
    s_waitcnt lgkmcnt(0)
    s_sub_u32 s71, s68, s70
    s_cmp_lt_i32 s71, 0
    s_cbranch_scc1 L_diag""")
def st_init(a):
    if STAMP:
        for i in range(1, NST): a(f"s_mov_b32 s{72+2*i}, s72")
def st_end(a):
    if not STAMP: return
    a(f"""s_waitcnt vmcnt(0)
    s_memrealtime s[70:71]
    s_memtime s[{72+2*NST}:{73+2*NST}]
    s_getreg_b32 s66, hwreg(HW_REG_HW_ID)
    s_getreg_b32 s67, hwreg(HW_REG_XCC_ID)
    s_mov_b64 exec, -1
    s_lshl_b32 s65, s2, 3
    s_add_u32 s65, s65, s{W}
    s_lshl_b32 s65, s65, 6
    s_add_u32 s65, s65, {WS_ST}
    s_waitcnt lgkmcnt(0)
    v_mov_b32 v4, s68
    v_mov_b32 v5, s70
    v_mov_b32 v6, s66
    v_mov_b32 v7, s67""")
    for i in range(1, NST + 1):
        a(f"s_sub_u32 s64, s{72+2*i}, s72\nv_mov_b32 v{7+i}, s64")
    a("v_mov_b32 v2, 0\ns_mov_b64 exec, 1")
    for k in range(4):
        a(f"buffer_store_dwordx4 v[{4+4*k}:{7+4*k}], v2, s[8:11], s65 offen offset:{16*k}")

def poll_global(a, vdst, voff, soff, mask=None, sleep=1):
    l = uid("Lpoll"); d = uid("Lpd")
    a(f"s_mov_b32 s60, {SPIN_LIMIT}")
    if mask is not None: a(f"s_mov_b64 exec, {mask}")
    a(f"""{l}:
    buffer_load_dword v{vdst}, v{voff}, s[8:11], {soff} offen sc1
    s_waitcnt vmcnt(0)
    v_cmp_ne_u32 vcc, s{T}, v{vdst}
    s_cbranch_vccz {d}
    s_mov_b64 exec, vcc
    s_sleep {sleep}
    s_sub_u32 s60, s60, 1
    s_cbranch_scc0 {l}
    s_endpgm
    {d}:
    s_mov_b64 exec, -1""")

def poll_atomic(a, vdst, voff, soff, mask, sleep):
    l = uid("Lpa"); d = uid("Lpad")
    a(f"""s_mov_b32 s60, {SPIN_LIMIT}
    s_mov_b64 exec, {mask}
    {l}:
    v_mov_b32 v{vdst}, 0
    buffer_atomic_or v{vdst}, v{voff}, s[8:11], {soff} offen sc0 sc1
    s_waitcnt vmcnt(0)
    v_cmp_ne_u32 vcc, s{T}, v{vdst}
    s_cbranch_vccz {d}
    s_sleep {sleep}
    s_sub_u32 s60, s60, 1
    s_cbranch_scc0 {l}
    s_endpgm
    {d}:
    s_mov_b64 exec, -1""")

def poll_pipe(a, v0, voff, soff, mask, D=4, gap=3):
    l = uid("Lpp"); d = uid("Lppd")
    at = lambda r: f"v_mov_b32 v{r}, 0\nbuffer_atomic_or v{r}, v{voff}, s[8:11], {soff} offen sc0 sc1"
    a(f"s_mov_b32 s60, {SPIN_LIMIT}\ns_mov_b64 exec, {mask}")
    for i in range(D - 1): a(at(v0 + i) + f"\ns_sleep {gap}")
    a(f"{l}:")
    for i in range(D):
        a(at(v0 + (i + D - 1) % D))
        a(f"s_waitcnt vmcnt({D-1})\nv_cmp_ne_u32 vcc, s{T}, v{v0+i}\ns_cbranch_vccz {d}")
    a(f"""s_sub_u32 s60, s60, 1
    s_cbranch_scc0 {l}
    s_endpgm
    {d}:
    s_mov_b64 exec, -1""")

def signal(a, vt, voff, soff, mask):
    a(f"v_mov_b32 v{vt}, s{T}\ns_mov_b64 exec, {mask}\nbuffer_atomic_swap v{vt}, v{voff}, s[8:11], {soff} offen sc1\ns_mov_b64 exec, -1")

def spin_lds(a, vaddr, off, want, vt, sleep=0):
    l = uid("Lsp"); d = uid("Lsd")
    a(f"""s_mov_b32 s60, {SPIN_LIMIT}
    {l}:
    ds_read_b32 v{vt}, v{vaddr} offset:{off}
    s_waitcnt lgkmcnt(0)
    v_readfirstlane_b32 s61, v{vt}
    s_cmp_ge_u32 s61, {want}
    s_cbranch_scc1 {d}""")
    if sleep: a(f"s_sleep {sleep}")
    a(f"""s_sub_u32 s60, s60, 1
    s_cbranch_scc0 {l}
    s_endpgm
    {d}:""")

def lds_inc(a, vaddr, off, vone):
    a(f"s_mov_b64 exec, 1\nds_add_u32 v{vaddr}, v{vone} offset:{off}\ns_mov_b64 exec, -1")

def flag_store(a, vt, vz, soff):
    a(f"v_mov_b32 v{vt}, s{T}\ns_mov_b64 exec, 1\nbuffer_store_dword v{vt}, v{vz}, s[8:11], {soff} offen sc1\ns_mov_b64 exec, -1")

def split_neg_max(a, m, t0, t1, q6, q7):
    a(f"""v_sub_f32 v{m}, 0, v{m}
    v_cvt_pk_bf16_f32 v{t0}, v{m}, v{m}
    v_lshlrev_b32 v{t0}, 16, v{t0}
    v_sub_f32 v{t0}, v{m}, v{t0}
    v_cvt_pk_bf16_f32 v{t1}, v{m}, v{t0}
    v_and_b32 v{m}, 0xffff0000, v{t1}
    v_sub_f32 v{t0}, v{t0}, v{m}
    s_mov_b32 exec_lo, 0
    v_mov_b32 v{q6}, v{t1}
    v_cvt_pk_bf16_f32 v{q7}, v{t0}, 0
    s_mov_b32 exec_lo, -1""")

def max16_list(dst, S, init=False):
    if not init:
        return ([f"v_max3_f32 v{dst}, v{S}, v{S+1}, v{S+2}"] +
                [f"v_max3_f32 v{dst}, v{dst}, v{S+i}, v{S+i+1}" for i in range(3, 15, 2)] +
                [f"v_max_f32 v{dst}, v{dst}, v{S+15}"])
    return [f"v_max3_f32 v{dst}, v{dst}, v{S+i}, v{S+i+1}" for i in range(0, 16, 2)]

def wave_min_u32(a, v, full=True):
    for r in (1, 2, 4, 8):
        a(f"v_min_u32_dpp v{v}, v{v}, v{v} row_ror:{r} row_mask:0xf bank_mask:0xf")
    a(f"v_min_u32_dpp v{v}, v{v}, v{v} row_bcast:15 row_mask:0xa bank_mask:0xf")
    if full: a(f"v_min_u32_dpp v{v}, v{v}, v{v} row_bcast:31 row_mask:0xc bank_mask:0xf")

def tag(a):
    a(f"s_mul_i32 s{T}, s{T}, 0x9e3779b1\ns_add_u32 s{T}, s{T}, 0x7f4a7c15")

def next_chunk(a, s):
    a(f"s_add_u32 s{s}, s{s}, 1\ns_cmp_eq_u32 s{s}, 7\ns_cselect_b32 s{s}, 0, s{s}")

Q, O, KV, S, P = 8, 40, 104, 168, 200
XF = 104; A0, A1, WF = 40, 56, 72
VX = 216; VW = 220; VQ = 222; VC = 223; V1 = 224; VZ = 225; VT = 226; VH = 227
VA = 228; TMP = 232; XR = 240; GR = 248; VWQ = 250; VF = 251; VFS = 252; VXO = 253; VGO = 254
OWN = 3
L = 35

def prologue_and_loader(a):
    if "rot7" in EXP:
        ROTCODE = f"s_lshl1_add_u32 s{ROT}, s27, s26\ns_cmp_ge_u32 s{ROT}, 7\ns_cselect_b32 s26, 7, 0\ns_sub_u32 s{ROT}, s{ROT}, s26"
    elif "rot2" not in EXP and "norot" not in EXP and "rot23" not in EXP:
        ROTCODE = f"s_add_u32 s{ROT}, s27, s26\ns_and_b32 s{ROT}, s{ROT}, 3\ns_lshl_b32 s{ROT}, s{ROT}, 1"
    elif "norot" in EXP:
        ROTCODE = f"s_mov_b32 s{ROT}, 0"
    elif "rot23" in EXP:
        ROTCODE = f"s_add_u32 s{ROT}, s27, s26\ns_and_b32 s{ROT}, s{ROT}, 1\ns_mul_i32 s{ROT}, s{ROT}, 3"
    else:
        ROTCODE = f"s_add_u32 s{ROT}, s27, s26\ns_and_b32 s{ROT}, s{ROT}, 1\ns_lshl_b32 s{ROT}, s{ROT}, 2"
    st_begin(a)
    a(f"""s_load_dwordx4 s[4:7], s[0:1], 0
    s_load_dwordx2 s[36:37], s[0:1], 88
    s_load_dwordx2 s[38:39], s[0:1], 16
    s_load_dwordx8 s[40:47], s[0:1], 32
    s_load_dwordx4 s[48:51], s[0:1], 64
    s_cmp_ge_u32 s2, 256
    s_cbranch_scc1 L_exit
    v_lshrrev_b32 v2, 6, v0
    v_and_b32 v3, 63, v0
    s_and_b32 s24, s2, 7
    s_lshr_b32 s25, s2, 3
    v_readfirstlane_b32 s{W}, v2
    s_and_b32 s{H}, s24, 1
    s_lshl_b32 s{H}, s{H}, 3
    s_and_b32 s26, s25, 7
    s_add_u32 s{H}, s{H}, s26
    s_lshr_b32 s27, s25, 3
    s_and_b32 s{J}, s24, 6
    s_lshl1_add_u32 s{J}, s{J}, s27
    {ROTCODE}
    s_mov_b32 s28, {ROLE_LO:#x}
    s_mov_b32 s29, {ROLE_HI:#x}
    s_lshl_b32 s27, s{H}, 2
    s_lshr_b64 s[28:29], s[28:29], s27
    s_and_b32 s{RL}, s28, 15
    v_lshlrev_b32 v1, 4, v3
    s_mov_b32 s27, {WS_EP}
    s_cmp_lt_u32 s{W}, 4
    s_cbranch_scc1 L_main
    """)
    a(f"""s_setprio 2
    s_sub_u32 s{L}, s{W}, 4
    v_lshrrev_b32 v4, 3, v3
    v_mul_u32_u24 v5, 896, v4
    v_and_b32 v6, 7, v3
    v_lshrrev_b32 v7, 4, v3
    v_xor_b32 v7, v6, v7
    v_lshl_add_u32 v10, v7, 4, v5
    v_xor_b32 v11, 64, v10
    v_add_u32 v12, {2*6144}, v10
    v_add_u32 v13, {3*6144}, v11
    v_add_u32 v11, 6144, v11
    v_mul_u32_u24 v5, 2688, v4
    v_and_b32 v4, 2, v4
    v_lshlrev_b32 v4, 1, v4
    v_xor_b32 v4, v4, v6
    v_lshl_add_u32 v14, v4, 4, v5
    v_add_u32 v15, {8*2688-1024}, v14
    s_lshl2_add_u32 s52, s{J}, s{L}
    s_mul_i32 s52, s52, {32*896}
    s_lshl_b32 s53, s{RL}, 7
    s_mul_i32 s26, s{L}, {16*2688}
    s_add_u32 s53, s53, s26
    s_add_u32 s53, s53, 896
    s_lshl_b32 s54, s{L}, 12
    s_lshl_b32 s55, s{L}, 11
    s_add_u32 s55, s55, {WT}
    s_mov_b32 s56, s{ROT}
    s_mov_b32 s57, 0
    s_mov_b32 s14, {2048*896}
    s_mov_b32 s15, 0x20000
    s_cmp_ge_u32 s{RL}, 14
    s_cselect_b32 s18, 0, {448*2688}
    s_mov_b32 s19, 0x20000
    s_waitcnt lgkmcnt(0)
    s_mov_b64 s[12:13], s[4:5]
    s_mov_b64 s[16:17], s[6:7]
    s_load_dword s{T}, s[36:37], s27""")
    st_init(a); st(a, 1)
    a(f"""L_ld:
    s_mul_i32 s26, s56, {64*2688}
    s_mov_b32 m0, s55
    s_add_u32 s26, s26, s53
    s_lshl_b32 s28, s56, 7
    buffer_load_dwordx4 v14, s[16:19], s26 offen lds
    buffer_load_dwordx4 v15, s[16:19], s26 offen offset:1024 lds
    s_mov_b32 m0, s54
    s_add_u32 s28, s28, s52
    buffer_load_dwordx4 v10, s[12:15], s28 offen lds
    buffer_load_dwordx4 v11, s[12:15], s28 offen offset:1024 lds
    buffer_load_dwordx4 v12, s[12:15], s28 offen offset:2048 lds
    buffer_load_dwordx4 v13, s[12:15], s28 offen offset:3072 lds
    s_add_u32 s55, s55, 8192
    s_add_u32 s54, s54, 16384
    s_and_b32 s54, s54, 0xffff""")
    next_chunk(a, 56)
    a(f"""s_add_u32 s57, s57, 1
    s_cmp_lt_u32 s57, 3
    s_cbranch_scc1 L_ld
    s_waitcnt vmcnt(12) lgkmcnt(0)
    s_barrier
    s_cmp_lt_u32 s57, 7
    s_cbranch_scc1 L_ld
    """)
    a(f"""v_lshrrev_b32 v4, 2, v3
    v_mul_u32_u24 v4, 2688, v4
    v_and_b32 v5, 3, v3
    v_lshl_add_u32 v16, v5, 4, v4
    s_mov_b32 s18, {448*2688}
    s_mul_i32 s53, s{H}, 56
    s_and_b32 s53, s53, 0xfffffff0
    s_mul_i32 s26, s{L}, {16*2688}
    s_add_u32 s53, s53, s26
    s_lshl_b32 s55, s{L}, 10
    s_add_u32 s55, s55, {WQ}""")
    for i in range(4):
        a(f"""s_mul_i32 s26, s56, {64*2688}
        s_add_u32 m0, s55, {i*4096}
        s_add_u32 s26, s26, s53
        buffer_load_dwordx4 v16, s[16:19], s26 offen lds""")
        if i < 3: next_chunk(a, 56)
        if i == 1: a("s_waitcnt vmcnt(8)\ns_barrier")
        if i == 3: a("s_waitcnt vmcnt(4)\ns_barrier")
    st(a, 2)
    a("s_branch L_service")

def main_wave(a):
    a.label("L_main")
    if "nocodepf" not in EXP:
        a(f"""s_cmp_lg_u32 s{W}, 0
        s_cbranch_scc1 L_nopf
        s_getpc_b64 s[28:29]
        L_pc:
        s_and_b32 s26, s25, 3
        s_lshl_b32 s26, s26, 13
        v_lshl_add_u32 v4, v3, 7, s26
        v_min_u32 v4, L_code_end-L_pc, v4
        global_load_dword v5, v4, s[28:29]
        L_nopf:""")
    a(f"""s_setprio 1
    v_and_b32 v{VT}, 31, v3
    v_lshrrev_b32 v{VH}, 5, v3
    v_mov_b32 v{V1}, 1
    v_mov_b32 v{VZ}, 0
    v_mov_b32 v{VC}, {CNT}
    v_lshrrev_b32 v4, 2, v1
    v_add_u32 v4, {UPDI}, v4
    v_mov_b32 v6, -1
    s_mov_b32 exec_hi, 0
    ds_write_b32 v4, v6
    s_mov_b32 exec_lo, 0xffff
    ds_write_b32 v4, v{VZ} offset:{CNT-UPDI}
    s_mov_b64 exec, -1
    v_lshrrev_b32 v4, 1, v{VT}
    v_and_b32 v4, 7, v4
    v_xor_b32 v4, v4, v{VH}
    v_lshlrev_b32 v4, 4, v4
    v_lshl_add_u32 v4, v{VT}, 7, v4
    s_lshl_b32 s26, s{W}, 12
    v_add_u32 v{VX}, s26, v4
    v_xor_b32 v{VX+1}, 32, v{VX}
    v_xor_b32 v{VX+2}, 64, v{VX}
    v_xor_b32 v{VX+3}, 96, v{VX}
    v_bfe_u32 v4, v3, 2, 2
    v_lshl_add_u32 v12, v{VH}, 3, v4
    v_and_b32 v6, 3, v3
    v_and_b32 v7, 1, v3
    v_bfe_u32 v8, v3, 1, 1
    v_lshl_add_u32 v7, v7, 1, v8
    v_bfe_u32 v8, v3, 4, 1
    v_lshl_add_u32 v9, v8, 2, v7
    v_lshl_add_u32 v10, v8, 2, v6
    s_cmp_lt_u32 s{RL}, 7
    s_cselect_b64 vcc, -1, 0
    v_cndmask_b32 v10, v10, v9, vcc
    v_lshlrev_b32 v11, 7, v12
    v_lshl_add_u32 v11, v10, 3, v11
    v_lshrrev_b32 v4, 1, v4
    v_lshl_add_u32 v11, v4, 6, v11
    v_add_u32 v{VW}, {WT}, v11
    v_xor_b32 v{VW+1}, 64, v{VW}
    v_add_u32 v10, 2, v9
    v_sub_u32 v11, 7, v9
    v_cmp_gt_u32 vcc, 6, v9
    v_cndmask_b32 v10, v11, v10, vcc
    s_bitcmp1_b32 s{H}, 0
    s_cselect_b64 vcc, -1, 0
    v_cndmask_b32 v10, v9, v10, vcc
    v_lshlrev_b32 v11, 6, v12
    v_lshl_add_u32 v11, v10, 3, v11
    v_add_u32 v{VQ}, {WQ}, v11
    v_lshrrev_b32 v4, 2, v3
    v_mul_u32_u24 v4, 2688, v4
    v_lshl_add_u32 v{VWQ}, v6, 4, v4
    s_cmp_ge_u32 s{RL}, 7
    s_cselect_b32 s26, 7, 0
    s_cselect_b32 s29, 2, 0
    s_sub_u32 s26, s{RL}, s26
    s_mul_i32 s28, s26, {64*2341}
    s_lshr_b32 s28, s28, 16
    v_add_u32 v4, s28, v6
    v_mul_u32_u24 v7, 28, v4
    v_lshrrev_b32 v7, 6, v7
    v_cmp_ge_u32 s[64:65], s26, v7
    v_cmp_ne_u32 vcc, s26, v7
    s_and_b32 s28, s{J}, 3
    s_lshl2_add_u32 s29, s28, s29
    v_mov_b32 v7, s29
    v_addc_co_u32 v7, vcc, 0, v7, vcc
    s_lshr_b32 s28, s{J}, 2
    v_lshl_add_u32 v4, v4, 2, s28
    v_bfe_u32 v8, v3, 2, 2
    v_lshl_add_u32 v4, v4, 2, v8
    v_lshlrev_b32 v4, 7, v4
    v_lshl_add_u32 v{VFS}, v7, 2, v4
    s_and_b32 s64, s64, 0xffff
    s_cmp_ge_u32 s{RL}, 14
    s_cselect_b32 s64, 0, s64
    s_mov_b32 s65, 0
    s_lshl_b32 s28, s{W}, 2
    v_add_u32 v{VF}, s28, v{VC}
    s_lshl_b32 s28, s{J}, 2
    s_lshr_b32 s58, s{H}, 2
    s_add_u32 s58, s58, s28
    s_and_b32 s59, s{H}, 3
    s_lshl2_add_u32 s59, s59, s{W}
    s_mul_i32 s59, s59, 56
    s_lshl_b32 s28, s58, 5
    v_add_u32 v4, s28, v{VT}
    v_mul_u32_u24 v{VXO}, 896, v4
    v_lshl_add_u32 v{VXO}, v{VH}, 4, v{VXO}
    v_lshlrev_b32 v{VGO}, 3, v4
    s_waitcnt lgkmcnt(0)
    s_load_dword s{T}, s[36:37], s27
    """)
    st_init(a)
    srd(a, 8, 36, 1 << 28)
    srd(a, 16, 6, 448 * 2688)
    srd(a, 12, 4, 2048 * 896)
    if "nowqpf" not in EXP:
        a(f"""s_cmp_lg_u32 s{W}, 1
        s_cbranch_scc1 L_nopf2
        v_lshrrev_b32 v4, 2, v3
        v_min_u32 v4, 13, v4
        v_mul_u32_u24 v4, 2688, v4
        v_and_b32 v6, 3, v3
        v_lshl_add_u32 v4, v6, 7, v4
        s_mul_i32 s26, s25, {14*2688}
        s_and_b32 s28, s24, 1
        s_mul_i32 s28, s28, 384
        s_add_u32 s26, s26, s28
        buffer_load_dword v5, v4, s[16:19], s26 offen
        L_nopf2:""")
    a(f"""s_mul_i32 s62, s{H}, 56
    s_and_b32 s62, s62, 0xfffffff0
    s_mul_i32 s26, s{W}, {16*2688}
    s_add_u32 s62, s62, s26
    s_lshl_b32 s63, s{W}, 10
    s_add_u32 s63, s63, {WQ}
    s_lshl2_add_u32 s35, s{J}, s{W}
    s_lshl_b32 s52, s35, 12
    s_cmp_ge_u32 s{RL}, 14
    s_cbranch_scc1 L_roleR
    s_cmp_ge_u32 s{RL}, 7
    s_cbranch_scc1 L_roleV""")

    def gemm(kind):
        def reads(c, s):
            k = 4 * c + s
            a(f"ds_read_b128 {vr(XF+4*k,4)}, v{VX+s} offset:{(c&3)*16384}")
            f = WF + 8 * s
            if kind == "R":
                a(f"ds_read_b128 {vr(f,4)}, v{VW} offset:{k*32}")
            else:
                for n in range(2):
                    a(f"ds_read_b64_tr_b16 {vr(f+4*n,2)}, v{VW+n} offset:{k*2048}")
                    a(f"ds_read_b64_tr_b16 {vr(f+4*n+2,2)}, v{VW+n} offset:{k*2048+512}")
        def mfmas(c, s):
            k = 4 * c + s
            f = WF + 8 * s
            for n in range(1 if kind == "R" else 2):
                acc = (A0, A1)[n]
                cc = "0" if k == 0 else vr(acc, 16)
                if kind == "V": a(f"{MF} {vr(acc,16)}, {vr(XF+4*k,4)}, {vr(f+4*n,4)}, {cc}")
                else:           a(f"{MF} {vr(acc,16)}, {vr(f+4*n,4)}, {vr(XF+4*k,4)}, {cc}")
        per = 2 if kind == "R" else 5
        for c in range(7):
            a("s_barrier")
            if c == 0: st(a, 1)
            if c == 6: st(a, 2)
            if STAMP and c in (0, 6): a("s_waitcnt lgkmcnt(0)")
            reads(c, 0); reads(c, 1)
            for s in range(4):
                if s < 2: reads(c, s + 2)
                a(f"s_waitcnt lgkmcnt({min(3 - s, 2) * per})")
                mfmas(c, s)

    PK = 8
    MS = 20
    for i in range(4):
        a(f"""s_lshl_b32 s28, s{RL}, 3
        s_add_u32 s28, s28, {2*i}
        v_add_u32 v4, s28, v{VH}
        v_mul_u32_u24 v8, 37, v4
        v_lshrrev_b32 v8, 8, v8
        v_mul_u32_u24 v6, 7, v8
        v_sub_u32 v6, v4, v6
        v_lshrrev_b32 v7, 2, v6
        v_lshl_add_u32 v8, v8, 1, v7
        v_cmp_eq_u32 s[{MS+2*i}:{MS+1+2*i}], 3, v6
        v_and_b32 v6, 3, v6
        v_lshlrev_b32 v8, 18, v8
        v_lshl_add_u32 v8, v6, 9, v8
        v_lshl_add_u32 v{VA+i}, v{VT}, 4, v8""")
    a(f"v_mov_b32 v{TMP+2}, 0x3f803f80\nv_mov_b32 v{TMP+3}, 0x3f803f80\ns_add_u32 s53, s52, {1<<18}")
    a("s_waitcnt lgkmcnt(0)")
    tag(a)
    gemm("K")
    for i in range(4):
        acc = (A0, A1)[i >> 1] + 8 * (i & 1)
        p = PK + 4 * i
        for e in range(4): a(f"v_cvt_pk_bf16_f32 v{p+e}, v{acc+2*e}, v{acc+2*e+1}")
        l = uid("Lnosh")
        a(f"""s_mov_b64 exec, s[{MS+2*i}:{MS+1+2*i}]
        s_cbranch_execz {l}
        v_mov_b32 v{TMP}, v{p+2}
        v_mov_b32 v{TMP+1}, v{p+3}
        v_mov_b32 v{p+2}, 0x3f803f80
        v_mov_b32 v{p+3}, 0x3f803f80
        buffer_store_dwordx4 {vr(TMP,4)}, v{VA+i}, s[8:11], s53 offen sc1
        s_nop 1
        {l}:
        s_mov_b64 exec, -1
        buffer_store_dwordx4 {vr(p,4)}, v{VA+i}, s[8:11], s52 offen sc1""")
    a("s_branch L_pub")
    a.label("L_roleR")
    srd(a, 20, 40, 896)
    a(f"""s_lshl_b32 s28, s{ROT}, 7
    v_add_u32 v4, s28, v1
    v_subrev_u32 v6, 896, v4
    v_min_u32 v4, v4, v6
    s_mov_b32 m0, {QX}
    s_nop 0
    buffer_load_dwordx4 v4, s[20:23], 0 offen lds
    s_mov_b32 s20, s48
    s_mov_b32 s21, s49
    s_mov_b32 m0, {QX+1024}
    s_nop 0
    buffer_load_dwordx4 v4, s[20:23], 0 offen lds
    v_and_b32 v4, 1, v3
    v_lshlrev_b32 v4, 10, v4
    v_lshl_add_u32 v4, v{VH}, 4, v4
    v_add_u32 v{VW}, {QX}, v4
    s_waitcnt vmcnt(0) lgkmcnt(0)""")
    tag(a)
    gemm("R")
    a(f"""s_cmp_lg_u32 s{RL}, 14
    s_cbranch_scc1 L_pub
    s_mov_b32 exec_hi, 0
    s_nop 9
    v_cvt_pk_bf16_f32 v4, v{A0}, v{A0+1}
    v_and_b32 v5, 0xffff0000, v4
    v_lshlrev_b32 v4, 16, v4
    v_ashrrev_i32 v6, 31, v4
    v_or_b32 v6, 0x80000000, v6
    v_xor_b32 v6, v6, v4
    v_and_b32 v6, 0xffff0000, v6
    v_cmp_u_f32 vcc, v4, v4
    v_cndmask_b32 v6, v6, 0, vcc
    s_lshl_b32 s26, s35, 5
    v_add_u32 v7, s26, v{VT}
    v_sub_u32 v8, 0xffff, v7
    v_or_b32 v6, v6, v8
    v_lshlrev_b32 v9, 3, v7
    v_mov_b32 v7, s{T}
    s_mov_b32 s26, {WS_R}
    buffer_store_dwordx2 v[6:7], v9, s[8:11], s26 offen sc1
    v_mul_f32 v5, {NLOG2E:#x}, v5
    v_exp_f32 v5, v5
    v_add_f32 v5, 1.0, v5
    v_rcp_f32 v5, v5
    v_cvt_pk_bf16_f32 v5, v5, v5
    v_lshlrev_b32 v4, 16, v5
    v_mov_b32 v5, s{T}
    s_mov_b32 s26, {WS_G}
    buffer_store_dwordx2 v[4:5], v9, s[8:11], s26 offen sc1
    s_mov_b32 exec_hi, -1
    s_branch L_pub
    """)
    a.label("L_roleV")
    for n in range(2):
        a(f"""s_lshl_b32 s28, s{RL}, 6
        s_sub_u32 s28, s28, {7*64 - 32*n}
        v_add_u32 v4, s28, v{VT}
        v_mul_u32_u24 v8, 2341, v4
        v_lshrrev_b32 v8, 16, v8
        v_mul_u32_u24 v6, 28, v8
        v_sub_u32 v6, v4, v6
        v_cmp_le_u32 s[{MS+2*n}:{MS+1+2*n}], 24, v6
        v_cmp_eq_u32 vcc, 24, v6
        v_mov_b32 v7, 0x3f803f80
        v_cndmask_b32 v{TMP+4*n}, 0, v7, vcc
        v_lshlrev_b32 v8, 18, v8
        v_lshl_add_u32 v8, v6, 4, v8
        v_lshl_add_u32 v{VA+n}, v{VH}, 9, v8""")
        for e in range(1, 4): a(f"v_mov_b32 v{TMP+4*n+e}, v{TMP+4*n}")
    for n in range(2):
        l = uid("Lnop")
        a(f"""s_mov_b64 exec, s[{MS+2*n}:{MS+1+2*n}]
        s_cbranch_execz {l}
        buffer_store_dwordx4 {vr(TMP+4*n,4)}, v{VA+n}, s[8:11], s52 offen offset:{2048+64} sc1
        buffer_store_dwordx4 {vr(TMP+4*n,4)}, v{VA+n}, s[8:11], s52 offen offset:{3072+64} sc1
        {l}:
        s_mov_b64 exec, -1""")
    a("s_waitcnt lgkmcnt(0)")
    tag(a)
    gemm("V")
    for i in range(4):
        acc = (A0, A1)[i >> 1] + 8 * (i & 1)
        p = PK + 4 * i
        for e in range(4): a(f"v_cvt_pk_bf16_f32 v{p+e}, v{acc+2*e}, v{acc+2*e+1}")
        a(f"buffer_store_dwordx4 {vr(p,4)}, v{VA+(i>>1)}, s[8:11], s52 offen offset:{2048+1024*(i&1)} sc1")
    a.label("L_pub")
    st(a, 3)
    a(f"s_add_u32 s56, s{ROT}, 4\ns_cmp_ge_u32 s56, 7\ns_cselect_b32 s26, 7, 0\ns_sub_u32 s56, s56, s26")
    for i in range(4, 7):
        a(f"""s_mul_i32 s26, s56, {64*2688}
        s_add_u32 m0, s63, {i*4096}
        s_add_u32 s26, s26, s62
        buffer_load_dwordx4 v{VWQ}, s[16:19], s26 offen lds""")
        if i < 6: next_chunk(a, 56)
    def qreads(k):
        f = WF + 4 * (k & 7)
        a(f"ds_read_b64_tr_b16 {vr(f,2)}, v{VQ} offset:{k*1024}\nds_read_b64_tr_b16 {vr(f+2,2)}, v{VQ} offset:{k*1024+256}")
    for lo, hi, cnt in ((0, 16, C_Q1), (16, 28, C_Q2)):
        if lo:
            a(f"""s_mov_b32 s28, {WS_MB}
            v_mov_b32 v6, s{T}
            s_mov_b64 exec, 1
            s_waitcnt vmcnt(3)""")
            st(a, 4)
            a(f"""ds_add_rtn_u32 v4, v{VC}, v{V1} offset:{C_D}
            s_waitcnt lgkmcnt(0)
            v_cmp_eq_u32 vcc, 3, v4
            s_cbranch_vccz L_notlast
            s_mov_b64 exec, s[64:65]
            s_cbranch_execz L_notlast
            buffer_atomic_swap v6, v{VFS}, s[8:11], s28 offen sc1
            s_waitcnt vmcnt(1)
            s_branch L_published
            L_notlast:
            s_waitcnt vmcnt(0)
            L_published:""")
            lds_inc(a, VC, C_Q2, V1)
        spin_lds(a, VC, cnt, 4, 4)
        for k in range(lo, lo + 6): qreads(k)
        for k in range(lo, hi):
            if k + 6 < hi: qreads(k + 6)
            a(f"s_waitcnt lgkmcnt({2*(min(hi-1,k+6)-k)})")
            a(f"{MF} {vr(A0,16)}, {vr(WF+4*(k&7),4)}, {vr(XF+4*k,4)}, {'0' if k==0 else vr(A0,16)}")
    QO = Q + 8 * OWN
    SK = TMP
    a(f"""s_lshl_b32 s53, s{H}, 18
    s_lshl_b32 s28, s{W}, 16
    s_add_u32 s28, s28, s53
    s_add_u32 s16, s36, s28
    s_addc_u32 s17, s37, 0
    s_mov_b32 s18, 65536
    s_mov_b32 s19, 0x20000
    s_mov_b32 s29, s53
    s_mov_b32 s54, 4096
    s_mov_b32 s55, 8192
    s_mov_b32 s56, 12288""")
    def ldK(b, soff):
        return [f"buffer_load_dwordx4 {vr(KV+16*b,4)}, v1, s[16:19], {soff} offen sc1",
                f"buffer_load_dwordx4 {vr(KV+16*b+4,4)}, v1, s[16:19], {soff} offen offset:1024 sc1"]
    def ldV(b, soff):
        return [f"buffer_load_dwordx4 {vr(KV+16*b+8,4)}, v1, s[16:19], {soff} offen offset:2048 sc1",
                f"buffer_load_dwordx4 {vr(KV+16*b+12,4)}, v1, s[16:19], {soff} offen offset:3072 sc1"]
    def first_loads():
        a(f"""buffer_load_dwordx4 {vr(SK,4)}, v1, s[8:11], s29 offen sc1
        buffer_load_dwordx4 {vr(SK+4,4)}, v1, s[8:11], s29 offen offset:1024 sc1""")
        for x in ldK(0, 0) + ldV(0, 0) + ldK(1, "s54") + ldV(1, "s54"): a(x)
    st(a, 5)
    a(f"""ds_read_b32 v4, v{VF} offset:{C_R}
    ds_read_b32 v5, v{VC} offset:{C_R}
    s_waitcnt lgkmcnt(0)
    v_and_b32 v4, v4, v5
    v_readfirstlane_b32 s57, v4
    s_cmp_eq_u32 s57, 0
    s_cbranch_scc1 L_notready""")
    st(a, 6)
    first_loads()
    a("L_notready:")
    a(f"""s_lshl_b32 s26, s{W}, 11
    s_add_u32 s26, s26, {QX}
    v_add_u32 v5, s26, v1
    s_mov_b32 s62, {QSCALE:#x}
    s_mov_b32 s63, {QSCALE:#x}""")
    for i in range(8): a(f"v_pk_mul_f32 {vr(A0+2*i,2)}, {vr(A0+2*i,2)}, s[62:63]")
    for i in range(8): a(f"v_cvt_pk_bf16_f32 v{QO+i}, v{A0+2*i}, v{A0+2*i+1}")
    a(f"""s_mov_b32 exec_lo, 0
    v_mov_b32 v{QO+6}, 0
    v_mov_b32 v{QO+7}, 0
    s_mov_b32 exec_lo, -1
    ds_write_b128 v5, {vr(QO,4)}
    ds_write_b128 v5, {vr(QO+4,4)} offset:1024""")
    lds_inc(a, VC, C_X, V1)
    for i in range(8): a(f"v_mov_b32 v{P+8+i}, 0")
    for i in range(0, 64, 2): a(f"v_pk_mul_f32 {vr(O+i,2)}, {vr(P+8,2)}, {vr(P+8,2)}")
    spin_lds(a, VC, C_X, 4, 4)
    for i in range(3):
        a(f"""s_add_u32 s26, s{W}, {i+1}
        s_and_b32 s26, s26, 3
        s_lshl_b32 s26, s26, 11
        s_add_u32 s26, s26, {QX}
        v_add_u32 v5, s26, v1
        ds_read_b128 {vr(Q+8*i,4)}, v5
        ds_read_b128 {vr(Q+8*i+4,4)}, v5 offset:1024""")
    a("s_cmp_lg_u32 s57, 0\ns_cbranch_scc1 L_loaded")
    spin_lds(a, VC, C_R, 1, 4)
    spin_lds(a, VF, C_R, 1, 4)
    st(a, 6)
    first_loads()
    a("L_loaded:")
    def QK(u, m):
        kt, qs = (u >> 2) & 3, u & 3
        s = S + 16 * (u & 1)
        c = "0" if m == 0 else vr(s, 16)
        return f"{MF} {vr(s,16)}, {vr(KV+16*kt+4*m,4)}, {vr(Q+8*qs+4*m,4)}, {c}"
    def PV(u, m):
        kt, qs = (u >> 2) & 3, u & 3
        return f"{MF} {vr(O+16*qs,16)}, {vr(KV+16*kt+8+4*m,4)}, {vr(P+8*(u&1)+4*m,4)}, {vr(O+16*qs,16)}"
    SS = [S, S + 16, KV + 32, KV + 48]
    def samp(i, m): return f"{MF} {vr(SS[i],16)}, {vr(SK+4*m,4)}, {vr(Q+8*i+4*m,4)}, {'0' if m == 0 else vr(SS[i],16)}"
    def mx(i):
        for x in max16_list(4, SS[i]): a(x)
        a(f"s_mov_b32 exec_lo, 0\nv_cvt_pk_bf16_f32 v{Q+8*i+6}, -v4, 0\ns_mov_b32 exec_lo, -1")
    a("s_waitcnt vmcnt(8) lgkmcnt(0)")
    for i in range(4): a(samp(i, 0)); a(samp(i, 1))
    mx(0)
    a("s_waitcnt vmcnt(4)")
    a(QK(0, 0)); a(QK(0, 1))
    a(f"""s_mov_b32 s26, {WS_G}
    buffer_load_dwordx2 {vr(GR,2)}, v{VGO}, s[8:11], s26 offen sc1
    buffer_load_dwordx4 {vr(XR,4)}, v{VXO}, s[12:15], s59 offen
    buffer_load_dwordx4 {vr(XR+4,4)}, v{VXO}, s[12:15], s59 offen offset:32""")
    mx(1); mx(2)
    for x in ldK(2, "s55") + ldV(2, "s55"): a(x)
    mx(3)
    for x in ldK(3, "s56"): a(x)
    for i in range(0, 8, 2): a(f"v_pk_mul_f32 {vr(KV+56+i,2)}, {vr(P+8,2)}, {vr(P+8,2)}")
    for i in range(3):
        a(f"""s_add_u32 s26, s{W}, {i+1}
        s_and_b32 s26, s26, 3
        s_mul_i32 s26, s26, 12288
        s_add_u32 s26, s26, {CB + i*4096}
        v_add_u32 v{4+i}, s26, v1""")
    a(f"s_mul_i32 s26, s{W}, 12288\ns_add_u32 s26, s26, {CB}\nv_add_u32 v2, s26, v1")
    lds_inc(a, VC, C_L, V1)
    st(a, 7)
    a("s_mov_b32 s57, 3")
    def substep(u, ex, last=False):
        s = S + 16 * (u & 1); p = P + 8 * (u & 1)
        e = lambda i: f"v_exp_f32 v{s+i}, v{s+i}"
        c = lambda i: f"v_cvt_pk_bf16_f32 v{p+i}, v{s+2*i}, v{s+2*i+1}"
        q0, q1 = ([], []) if last else ([QK(u+1, 0)], [QK(u+1, 1)])
        seq = q0 + ex[0] + [e(0), e(1), e(2), e(3), c(0), e(4),
               PV(u-1, 0)] + ex[1] + [e(5), c(1), e(6), e(7), c(2), e(8)] + q1 + ex[2] + [e(9), c(3), e(10), e(11), c(4), e(12),
               PV(u-1, 1)] + ex[3] + [e(13), c(5), e(14), e(15), c(6), c(7)]
        for x in seq: a(x)
    a(".p2align 6")
    a.label("L_loop")
    for u in range(16):
        kt, qs = u >> 2, u & 3
        ex = [[], [], [], []]
        if qs == 1:
            l = ldV((kt + 3) & 3, "s56")
            ex[0] = [l[0]]; ex[1] = [l[1]]; ex[2] = ["s_add_u32 s56, s56, 4096"]
        if qs == 2: ex[3] = ["s_waitcnt vmcnt(10)"]
        if qs == 0: ex[3] = ["s_waitcnt vmcnt(10)"]
        if qs == 3:
            l = ldK(kt, "s56")
            ex[0] = [l[0]]; ex[1] = [l[1]]
        if u == 13: ex[3] = ["s_sub_u32 s57, s57, 1"]
        if "itst" in EXP and u in (0, 8):
            a("s_waitcnt lgkmcnt(0)")
            for i in range(1, 6): a(f"s_mov_b32 s{72+2*i}, s{72+2*i+2}")
            a("s_memtime s[84:85]")
        substep(u, ex)
        if u == 13: a("s_cbranch_scc1 L_tail")
    a("s_branch L_loop")
    a.label("L_tail")
    st(a, 8)
    wr = lambda i, k: f"ds_write_b128 v{4+i}, {vr(O+16*i+4*k,4)} offset:{k*1024}"
    substep(14, [[], [wr(0, 0)], [wr(0, 1)], [wr(0, 2)]])
    substep(15, [[wr(0, 3)], [wr(1, 0)], [wr(1, 1)], [wr(1, 2)]], last=True)
    a(PV(15, 0)); a(wr(1, 3)); a(PV(15, 1))
    for k in range(4): a(wr(2, k))
    lds_inc(a, VC, C_C, V1)
    srd(a, 20, 50, 2048 * 896)
    TT = S
    OO = O + 16 * OWN
    a(f"""s_lshl_b32 s28, s35, 4
    s_add_u32 s28, s28, s{H}
    s_lshr_b32 s56, s28, 2
    s_lshl_b32 s56, s56, 5
    s_and_b32 s26, s{H}, 3
    s_add_u32 s56, s56, s26
    s_lshl_b32 s56, s56, 2
    s_add_u32 s56, s56, {WS_OFL}
    s_lshl_b32 s52, s28, 11
    s_add_u32 s52, s52, {WS_O}
    s_mov_b32 s57, 0""")
    spin_lds(a, VC, C_C, 4, 7)
    for k in range(12): a(f"ds_read_b128 {vr(TT+4*k,4)}, v2 offset:{k*1024}")
    for i in range(3):
        a(f"s_waitcnt lgkmcnt({8-4*i})")
        for k in range(8): a(f"v_pk_add_f32 {vr(OO+2*k,2)}, {vr(OO+2*k,2)}, {vr(TT+16*i+2*k,2)}")
    a.label("L_fin")
    a(f"""v_mov_b32 v5, v{OO+12}
    v_mov_b32 v4, v{OO+12}
    s_mov_b32 s28, 0x30800000
    s_mov_b32 s29, 0x4e800000
    v_permlane32_swap_b32 v5, v4
    s_mov_b32 exec_lo, 0
    v_mov_b32 v{OO+12}, 0
    v_mov_b32 v{OO+13}, 0
    v_mov_b32 v{OO+14}, 0
    v_mov_b32 v{OO+15}, 0
    s_mov_b32 exec_lo, -1
    v_rcp_f32 v6, v4
    v_cmp_nle_f32 s[54:55], s28, v4
    v_cmp_nge_f32 s[62:63], s29, v4
    """)
    for k in range(8): a(f"v_pk_mul_f32 {vr(OO+2*k,2)}, {vr(OO+2*k,2)}, v[6:7] op_sel_hi:[1,0]")
    for k in range(8): a(f"v_cvt_pk_bf16_f32 v{Q+k}, v{OO+2*k}, v{OO+2*k+1}")
    a(f"""buffer_store_dwordx4 {vr(Q,4)}, v1, s[8:11], s52 offen sc1
    buffer_store_dwordx4 {vr(Q+4,4)}, v1, s[8:11], s52 offen offset:1024 sc1""")
    st(a, 9)
    a(f"v_pk_add_f32 v[4:5], {vr(OO,2)}, {vr(OO+2,2)}")
    for k in range(2, 8): a(f"v_pk_add_f32 v[4:5], v[4:5], {vr(OO+2*k,2)}")
    a(f"""v_add_f32 v4, v4, v5
    s_movk_i32 s28, 0x207
    v_cmp_class_f32 vcc, v4, s28
    s_or_b64 s[54:55], s[54:55], s[62:63]
    s_or_b64 s[54:55], s[54:55], vcc
    s_cbranch_scc0 L_good
    s_cmp_eq_u32 s57, 0
    s_cbranch_scc1 L_slow
    L_good:""")
    WOF = 104
    a(f"""v_bfe_u32 v4, v3, 2, 2
    v_lshl_add_u32 v4, v{VH}, 2, v4
    v_mul_u32_u24 v4, 224, v4
    v_bfe_u32 v5, v3, 4, 1
    v_lshl_add_u32 v4, v5, 5, v4
    v_and_b32 v5, 1, v3
    v_lshl_add_u32 v4, v5, 4, v4
    v_bfe_u32 v5, v3, 1, 1
    v_lshl_add_u32 v4, v5, 3, v4
    s_mul_i32 s28, s{W}, 56
    v_add_u32 v4, s28, v4""")
    for g in range(4):
        a(f"""s_add_u32 s26, s{W}, {g}
        s_and_b32 s26, s26, 3
        s_mul_i32 s28, s26, {4*28*224}
        v_add_u32 v{40+g}, s28, v4
        s_mul_i32 s28, s26, 12288
        s_add_u32 s28, s28, {CB}
        v_add_u32 v{44+g}, s28, v1""")
    B = 24
    a(f"""v_lshlrev_b32 v16, 2, v{VT}
    v_add_u32 v16, {UPDI}, v16
    s_mul_i32 s28, s{W}, 112
    s_add_u32 s28, s28, {UPD}
    v_lshl_add_u32 v17, v{VH}, 5, s28
    v_mov_b32 v19, 0
    v_mov_b32 v22, {CNT}
    v_mov_b32 v23, 1""")
    for k in range(8):
        a(f"v_lshlrev_b32 v{B+2*k}, 16, v{XR+k}\nv_and_b32 v{B+2*k+1}, 0xffff0000, v{XR+k}")
    a(f"""s_lshl_b32 s28, s58, 4
    s_lshl2_add_u32 s28, s{W}, s28
    s_lshl_b32 s29, s28, 11
    s_add_u32 s29, s29, {WS_O}
    s_add_u32 s27, s29, 4096
    s_lshl_b32 s28, s28, 5
    s_add_u32 s28, s28, {WS_OFL}
    v_lshrrev_b32 v7, 2, v1
    s_waitcnt vmcnt(0)""")
    signal(a, 6, 19, "s56", 1)
    a(f"""v_cmp_ne_u32 vcc, s{T}, v{GR+1}
    s_cbranch_vccnz L_gate
    L_gate_ok:
    v_sub_f32 v20, 1.0, v{GR}
    v_cvt_pk_bf16_f32 v20, v20, v20
    v_lshlrev_b32 v20, 16, v20""")
    spin_lds(a, 22, C_W, 4, 6)
    def word(k):
        hd, m = (k >> 1) & 3, k & 1
        o = (28 * hd + 16 * m) * 224
        b = 40 + (k >> 3)
        a(f"ds_read_b64_tr_b16 {vr(WOF+4*k,2)}, v{b} offset:{o}\nds_read_b64_tr_b16 {vr(WOF+4*k+2,2)}, v{b} offset:{o+8*224}")
    for k in range(32): word(k)
    poll_pipe(a, 8, 7, "s28", 15, D=PD, gap=PG)
    st(a, 10)
    OS = 56
    for k in range(8):
        a(f"buffer_load_dwordx4 {vr(OS+4*k,4)}, v1, s[8:11], {'s29' if k < 4 else 's27'} offen offset:{(k&3)*1024} sc1")
    U = 88
    spin_lds(a, 22, C_E, 4, 6)
    a(f"""ds_read_b32 v18, v16
    s_waitcnt lgkmcnt(0)
    v_cmp_le_i32 vcc, 0, v18
    s_cbranch_vccz L_noupd
    s_mov_b64 exec, vcc
    v_mul_u32_u24 v18, 448, v18
    v_add_u32 v17, v17, v18""")
    for k in range(4): a(f"ds_read_b128 {vr(U+4*k,4)}, v17 offset:{64*(k>>1)+16*(k&1)}")
    a("s_waitcnt lgkmcnt(0)")
    for k in range(8):
        a(f"""v_pk_add_f32 {vr(B+2*k,2)}, {vr(B+2*k,2)}, {vr(U+2*k,2)}
        v_cvt_pk_bf16_f32 v{B+2*k}, v{B+2*k}, v{B+2*k+1}
        v_and_b32 v{B+2*k+1}, 0xffff0000, v{B+2*k}
        v_lshlrev_b32 v{B+2*k}, 16, v{B+2*k}""")
    a("s_mov_b64 exec, -1\nL_noupd:")
    for k in range(8): a(f"v_pk_mul_f32 {vr(B+2*k,2)}, {vr(B+2*k,2)}, v[20:21] op_sel_hi:[1,0]")
    ACC = 88
    for k in range(8):
        a(f"s_waitcnt vmcnt({7-k})\nds_write_b128 v2, {vr(OS+4*k,4)} offset:{k*1024}")
    lds_inc(a, 22, C_O, 23)
    for k in range(4):
        a(f"{MF} {vr(ACC,16)}, {vr(WOF+4*k,4)}, {vr(OS+4*k,4)}, {'0' if k==0 else vr(ACC,16)}")
    spin_lds(a, 22, C_O, 4, 6)
    st(a, 11)
    if STAMP: a("s_waitcnt lgkmcnt(0)")
    def ord_(k): a(f"ds_read_b128 {vr(OS+4*(k&7),4)}, v{44+(k>>3)} offset:{(k&7)*1024}")
    for k in range(8, 11): ord_(k)
    for k in range(4, 32):
        if k >= 5 and k + 6 < 32: ord_(k + 6)
        if k >= 8: a(f"s_waitcnt lgkmcnt({min(31,k+6)-k})")
        a(f"{MF} {vr(ACC,16)}, {vr(WOF+4*k,4)}, {vr(OS+4*(k&7),4)}, {vr(ACC,16)}")
    for m in range(2):
        for e in range(4*m, 4*m+4):
            a(f"v_pk_fma_f32 {vr(B+2*e,2)}, {vr(ACC+2*e,2)}, {vr(GR,2)}, {vr(B+2*e,2)} op_sel_hi:[1,0,1]")
        for e in range(4*m, 4*m+4): a(f"v_cvt_pk_bf16_f32 v{8+e}, v{B+2*e}, v{B+2*e+1}")
        if m == 0:
            a(f"buffer_store_dwordx4 v[8:11], v{VXO}, s[20:23], s59 offen{OUTAUX}")
        else:
            a(f"""s_mov_b32 exec_hi, 0
            buffer_store_dwordx4 v[12:15], v{VXO}, s[20:23], s59 offen offset:32{OUTAUX}
            s_mov_b64 exec, 0xffffffff
            s_not_b64 exec, exec
            buffer_store_dwordx2 v[12:13], v{VXO}, s[20:23], s59 offen offset:32{OUTAUX}""")
    st_end(a)
    diag_end(a)
    a("s_endpgm")
    a(f"""L_gate:
    s_mov_b32 s26, {WS_G}
    s_mov_b32 s60, {SPIN_LIMIT}
    L_gate1:
    buffer_load_dwordx2 {vr(GR,2)}, v{VGO}, s[8:11], s26 offen sc1
    s_waitcnt vmcnt(0)
    v_cmp_ne_u32 vcc, s{T}, v{GR+1}
    s_cbranch_vccz L_gate_ok
    s_sub_u32 s60, s60, 1
    s_cbranch_scc0 L_gate1
    s_endpgm""")
    a.label("L_slow")
    a(f"""s_mov_b32 s57, 1
    s_add_u32 s55, s53, {64*4096}
    s_mov_b32 s54, s53
    s_mov_b32 exec_lo, 0
    v_mov_b32 v{QO+6}, 0
    v_mov_b32 v{QO+7}, 0
    s_mov_b32 exec_lo, -1
    v_mov_b32 v4, 0xff800000
    L_slow1:
    buffer_load_dwordx4 {vr(KV,4)}, v1, s[8:11], s54 offen sc1
    buffer_load_dwordx4 {vr(KV+4,4)}, v1, s[8:11], s54 offen offset:1024 sc1
    s_waitcnt vmcnt(0)
    {MF} {vr(S,16)}, {vr(KV,4)}, {vr(QO,4)}, 0
    {MF} {vr(S,16)}, {vr(KV+4,4)}, {vr(QO+4,4)}, {vr(S,16)}""")
    for x in max16_list(4, S, init=True): a(x)
    a("""s_add_u32 s54, s54, 4096
    s_cmp_lt_u32 s54, s55
    s_cbranch_scc1 L_slow1
    v_mov_b32 v5, v4
    v_permlane32_swap_b32 v4, v5
    v_max_f32 v4, v4, v5""")
    split_neg_max(a, 4, 5, 6, QO + 6, QO + 7)
    for i in range(16): a(f"v_mov_b32 v{OO+i}, 0")
    a(f"""s_mov_b32 s54, s53
    L_slow2:
    buffer_load_dwordx4 {vr(KV,4)}, v1, s[8:11], s54 offen sc1
    buffer_load_dwordx4 {vr(KV+4,4)}, v1, s[8:11], s54 offen offset:1024 sc1
    buffer_load_dwordx4 {vr(KV+8,4)}, v1, s[8:11], s54 offen offset:2048 sc1
    buffer_load_dwordx4 {vr(KV+12,4)}, v1, s[8:11], s54 offen offset:3072 sc1
    s_waitcnt vmcnt(0)
    {MF} {vr(S,16)}, {vr(KV,4)}, {vr(QO,4)}, 0
    {MF} {vr(S,16)}, {vr(KV+4,4)}, {vr(QO+4,4)}, {vr(S,16)}""")
    for i in range(16): a(f"v_exp_f32 v{S+i}, v{S+i}")
    for i in range(8): a(f"v_cvt_pk_bf16_f32 v{P+i}, v{S+2*i}, v{S+2*i+1}")
    a(f"""{MF} {vr(OO,16)}, {vr(KV+8,4)}, {vr(P,4)}, {vr(OO,16)}
    {MF} {vr(OO,16)}, {vr(KV+12,4)}, {vr(P+4,4)}, {vr(OO,16)}
    s_nop 7
    s_nop 7
    s_add_u32 s54, s54, 4096
    s_cmp_lt_u32 s54, s55
    s_cbranch_scc1 L_slow2
    s_branch L_fin""")

def service_wave(a):
    a.label("L_service")
    a(f"""v_mov_b32 v14, {CNT}
    v_mov_b32 v15, 1
    v_mov_b32 v9, 0""")
    srd(a, 8, 36, 1 << 28)
    tag(a)
    a("s_waitcnt vmcnt(0)")
    lds_inc(a, 14, C_Q1, 15)
    for e in range(7):
        a(f"""v_add_u32 v4, {64*e}, v3
        v_mul_u32_u24 v5, 4682, v4
        v_lshrrev_b32 v5, 16, v5
        v_mul_u32_u24 v5, {896-224}, v5
        v_lshl_add_u32 v{200+e}, v4, 4, v5""")
    GI = 81920; DI = QX; HB = 101376
    FT, KS = 56, 59
    a(f"""v_mov_b32 v16, 0
    v_mov_b32 v17, 0
    v_mov_b32 v18, 0
    v_mov_b32 v19, 0
    v_add_u32 v209, {448*224}, v1
    v_and_b32 v32, 31, v3
    v_lshrrev_b32 v33, 5, v3
    v_and_b32 v36, 255, v0
    s_mul_i32 s{FT}, s2, 9363
    s_lshr_b32 s{FT}, s{FT}, 16
    s_mul_i32 s26, s{FT}, 7
    s_sub_u32 s{KS}, s2, s26
    v_lshrrev_b32 v4, 3, v3
    v_and_b32 v5, 2, v4
    v_lshlrev_b32 v5, 1, v5
    v_and_b32 v6, 7, v3
    v_xor_b32 v5, v5, v6
    v_mul_u32_u24 v6, 3584, v4
    v_lshl_add_u32 v34, v5, 4, v6
    v_add_u32 v35, {8*3584-1024}, v34
    v_mul_u32_u24 v6, 896, v4
    v_lshl_add_u32 v37, v5, 4, v6
    v_add_u32 v38, {8*896-1024}, v37
    v_bfe_u32 v4, v3, 2, 2
    v_lshl_add_u32 v5, v33, 3, v4
    v_lshlrev_b32 v5, 7, v5
    v_lshrrev_b32 v4, 1, v4
    v_lshl_add_u32 v5, v4, 6, v5
    v_bfe_u32 v4, v3, 4, 1
    v_lshl_add_u32 v5, v4, 5, v5
    v_and_b32 v4, 3, v3
    v_lshl_add_u32 v210, v4, 3, v5
    v_xor_b32 v211, 64, v210
    s_lshr_b32 s26, s{L}, 1
    s_lshl_b32 s26, s26, 13
    s_and_b32 s28, s{L}, 1
    s_lshl_b32 s28, s28, 6
    s_or_b32 s26, s26, s28
    v_xor_b32 v39, s26, v210
    v_add_u32 v39, {GI}, v39
    v_add_u32 v210, {DI}, v210
    v_add_u32 v211, {DI}, v211
    ; partial-sum store offset 4hh*256 + col*4 ; gather offset tid*8 ; h addresses ; y offsets
    v_lshlrev_b32 v212, 10, v33
    v_lshl_add_u32 v212, v32, 2, v212
    v_lshlrev_b32 v213, 3, v36
    v_lshlrev_b32 v214, 2, v36
    v_add_u32 v214, {HB}, v214
    v_and_b32 v4, 7, v3
    v_lshlrev_b32 v217, 3, v4
    v_lshlrev_b32 v4, 7, v4
    v_lshl_add_u32 v4, v33, 4, v4
    v_add_u32 v218, {HB}, v4
    v_mul_u32_u24 v215, {4*1792}, v33
    v_lshl_add_u32 v215, v32, 2, v215
    v_add_u32 v216, {2*1792}, v215
    v_lshlrev_b32 v219, 3, v1
    v_lshrrev_b32 v220, 2, v1
    s_lshl_b32 s28, s{L}, 2
    v_add_u32 v222, s28, v14
    s_cmp_lg_u32 s2, 255
    s_cbranch_scc1 L_svc1""")
    def arrive():
        a("s_waitcnt lgkmcnt(0)")
        lds_inc(a, 14, C_S, 15)
    def sbar(n, sleep=2):
        arrive()
        spin_lds(a, 14, C_S, 4 * n, 8, sleep=sleep)
    KEY, D = 20, 24
    a(f"""s_lshl_b32 s26, s{L}, 12
    s_add_u32 s26, s26, {WS_R}
    s_mov_b32 s60, {SPIN_LIMIT}
    L_keys:""")
    for k in range(4): a(f"buffer_load_dwordx4 {vr(40+4*k,4)}, v1, s[8:11], s26 offen offset:{1024*k} sc1")
    a(f"""s_waitcnt vmcnt(0)
    v_xor_b32 v4, s{T}, v41
    v_xor_b32 v5, s{T}, v43""")
    for k in range(2, 8, 2):
        a(f"v_bitop3_b32 v4, v4, v{41+2*k}, s{T} bitop3:0xf6\nv_bitop3_b32 v5, v5, v{43+2*k}, s{T} bitop3:0xf6")
    a(f"""v_or_b32 v4, v4, v5
    v_cmp_ne_u32 vcc, 0, v4
    s_cbranch_vccz L_keys_ok
    s_sleep 2
    s_sub_u32 s60, s60, 1
    s_cbranch_scc0 L_keys
    s_endpgm
    L_keys_ok:
    s_mov_b32 s58, -1""")
    st(a, 10)
    a("s_mov_b32 s57, 0\nL_top1:")
    for i in range(8): a(f"v_sub_u32 v{D+i}, s58, v{40+2*i}")
    a(f"""v_min3_u32 v{D}, v{D}, v{D+1}, v{D+2}
    v_min3_u32 v{D+3}, v{D+3}, v{D+4}, v{D+5}
    v_min3_u32 v{D}, v{D}, v{D+6}, v{D+7}
    v_min_u32 v{D}, v{D}, v{D+3}""")
    wave_min_u32(a, D)
    a(f"""v_readlane_b32 s29, v{D}, 63
    s_mov_b32 m0, s57
    s_sub_u32 s29, s58, s29
    s_sub_u32 s58, s29, 1
    v_writelane_b32 v6, s29, m0
    s_add_u32 s57, s57, 1
    s_cmp_lt_u32 s57, 8
    s_cbranch_scc1 L_top1
    s_lshl_b32 s26, s{L}, 5
    s_add_u32 s26, s26, {CAND}
    v_lshl_add_u32 v7, v3, 2, s26
    s_mov_b64 exec, 0xff
    ds_write_b32 v7, v6
    s_mov_b64 exec, -1
    v_mov_b32 v6, {CAND}
    v_lshl_add_u32 v7, v32, 2, v6
    v_lshl_add_u32 v6, v33, 6, v6""")
    arrive()
    a.label("L_svc1")
    a(f"""s_mul_i32 s26, s{H}, 28
    s_add_u32 s28, s26, 27
    s_xor_b32 s26, s26, s28
    s_mov_b32 s62, 0x5555
    s_cmp_ge_u32 s26, 64
    s_cselect_b32 s62, 0xffff, s62
    s_mov_b32 s63, 0
    s_lshl2_add_u32 s26, s{H}, s{L}
    s_lshr_b32 s28, s{J}, 2
    s_lshl2_add_u32 s26, s26, s28
    s_lshl_b32 s26, s26, 7
    s_add_u32 s26, s26, {WS_MB}""")
    spin_lds(a, 14, C_D, PCD, 8, sleep=1)
    poll_pipe(a, 28, 220, "s26", "s[62:63]", D=PD, gap=PG)
    lds_inc(a, 222, C_R, 15)
    a(f"s_lshl2_add_u32 s26, s2, s{L}\ns_cmp_lg_u32 s26, {255*4}\ns_cbranch_scc1 L_svc2")
    spin_lds(a, 14, C_S, 4, 8)
    a(f"ds_read_b32 v{KEY}, v7")
    for k in range(4): a(f"ds_read_b128 {vr(40+4*k,4)}, v6 offset:{16*k}")
    a("v_mov_b32 v22, 0\ns_waitcnt lgkmcnt(0)")
    for k in range(16):
        a(f"v_cmp_gt_u32 vcc, v{40+k}, v{KEY}\nv_addc_co_u32 v22, vcc, 0, v22, vcc")
    a(f"""v_mov_b32 v23, v22
    v_mov_b32 v21, s{T}
    s_mov_b32 s26, {WS_SEL}
    v_permlane32_swap_b32 v22, v23
    v_add_u32 v22, v22, v23
    v_cmp_gt_u32 vcc, 8, v22
    v_lshlrev_b32 v22, 3, v22
    s_mov_b32 exec_lo, vcc_lo
    s_mov_b32 exec_hi, 0
    buffer_store_dwordx2 v[20:21], v22, s[8:11], s26 offen sc1
    s_mov_b64 exec, -1""")
    st(a, 11)
    a.label("L_svc2")
    spin_lds(a, 14, C_L, 4, 8, sleep=2)
    st(a, 3)
    a(f"s_cmp_lg_u32 s{L}, 0\ns_cbranch_scc1 L_nofl\ns_lshl_b32 s26, s2, 7\ns_add_u32 s26, s26, {WS_FL}")
    flag_store(a, 5, 9, "s26")
    a("L_nofl:")
    a(f"""s_and_b32 s53, s{H}, 3
    s_mul_i32 s53, s53, 224
    s_mul_i32 s55, s{L}, {7*1024}
    s_mul_i32 s57, s{L}, {32*896}
    s_add_u32 s57, s57, s53
    s_cmp_ge_u32 s2, 196
    s_cbranch_scc1 L_svcWo""")
    def wo_group():
        for e in range(7):
            a(f"""s_add_u32 m0, s55, {e*1024}
            s_waitcnt vmcnt({WOP})
            buffer_load_dwordx4 v{200+e}, s[16:19], s57 offen lds""")
        a(f"s_add_u32 s55, s55, {28*1024}\ns_add_u32 s57, s57, {128*896}")
    def sel_load(lbl):
        a(f"""s_mov_b32 s26, {WS_SEL}
        s_mov_b32 s60, {SPIN_LIMIT}
        {lbl}:
        buffer_load_dwordx2 v[20:21], v217, s[8:11], s26 offen sc1
        s_waitcnt vmcnt(0)
        v_cmp_ne_u32 vcc, s{T}, v21
        s_cbranch_vccz {lbl}_ok
        s_sleep 4
        s_sub_u32 s60, s60, 1
        s_cbranch_scc0 {lbl}
        s_endpgm
        {lbl}_ok:""")
    srd(a, 16, 42, 448 * 3584)
    W1 = "s_waitcnt vmcnt(0)" if "fine" in EXP else ""
    a(f"""s_lshl2_add_u32 s52, s{KS}, s{L}
    s_mul_i32 s52, s52, {16*3584}
    s_lshl_b32 s28, s{FT}, 7
    s_add_u32 s52, s52, s28
    s_lshl_b32 s54, s{L}, 11
    s_add_u32 m0, s54, {GI}
    s_nop 0
    buffer_load_dwordx4 v34, s[16:19], s52 offen lds
    {W1}
    buffer_load_dwordx4 v35, s[16:19], s52 offen offset:1024 lds""")
    sel_load("L_sel1")
    XS_ = 40; FW = 56; DW = 72; AC = 104
    a(f"""s_mov_b64 s[16:17], s[44:45]
    s_add_u32 m0, s54, {GI+8192}
    v_and_b32 v4, 0xffff, v20
    buffer_load_dwordx4 v34, s[16:19], s52 offen lds
    {W1}
    buffer_load_dwordx4 v35, s[16:19], s52 offen offset:1024 lds
    v_sub_u32 v4, 0xffff, v4
    v_mul_u32_u24 v4, 896, v4
    v_lshl_add_u32 v4, v33, 4, v4
    s_lshl_b32 s26, s{KS}, 7
    s_mov_b32 exec_lo, 0xff
    s_mov_b32 exec_hi, 0xff""")
    for k in range(4):
        a(f"buffer_load_dwordx4 {vr(XS_+4*k,4)}, v4, s[12:15], s26 offen offset:{32*k}")
    a("s_mov_b64 exec, -1\ns_waitcnt vmcnt(0)")
    st(a, 4)
    sbar(1, sleep=1)
    for k in range(4):
        a(f"""ds_read_b64_tr_b16 {vr(FW+4*k,2)}, v39 offset:{k*2048}
        ds_read_b64_tr_b16 {vr(FW+4*k+2,2)}, v39 offset:{k*2048+512}
        s_waitcnt lgkmcnt(0)
        {MF} {vr(AC,16)}, {vr(XS_+4*k,4)}, {vr(FW+4*k,4)}, {'0' if k==0 else vr(AC,16)}""")
    a(f"""s_lshr_b32 s26, s{L}, 1
    s_lshl1_add_u32 s26, s2, s26
    s_lshl_b32 s26, s26, 11
    s_and_b32 s28, s{L}, 1
    s_lshl_b32 s28, s28, 7
    s_add_u32 s26, s26, s28
    s_add_u32 s26, s26, {WS_GP}
    s_mov_b64 s[16:17], s[46:47]
    s_lshl2_add_u32 s28, s{FT}, s{L}
    s_mul_i32 s28, s28, {16*896}
    s_lshl_b32 s29, s{KS}, 7
    s_add_u32 s28, s28, s29
    s_add_u32 m0, s54, {DI}""")
    for k in range(4):
        a(f"buffer_store_dword v{AC+k}, v212, s[8:11], s26 offen offset:{256*k} sc1")
    a(f"""buffer_load_dwordx4 v37, s[16:19], s28 offen lds
    buffer_load_dwordx4 v38, s[16:19], s28 offen offset:1024 lds
    ds_write_b128 v209, v[16:19]
    s_lshl2_add_u32 s26, s{KS}, s{L}
    s_lshl_b32 s26, s26, 2
    s_mul_i32 s28, s{FT}, {7*128}
    s_add_u32 s26, s26, s28
    s_add_u32 s26, s26, {WS_F1}
    s_waitcnt vmcnt(2)""")
    signal(a, 5, 219, "s26", "0x7f")
    srd(a, 16, 38, 448 * 896)
    st(a, 5)
    a("L_wo2:")
    wo_group()
    a(f"s_cmp_lt_u32 s55, {56*1024}\ns_cbranch_scc1 L_wo2")
    a(f"""s_lshl_b32 s26, s2, 7
    s_add_u32 s26, s26, {WS_F1}""")
    poll_atomic(a, 5, 220, "s26", "0x0fffffff", 2)
    st(a, 6)
    GP = 40
    a(f"s_mul_i32 s26, s{FT}, {7*4096}\ns_add_u32 s26, s26, {WS_GP}")
    for k in range(7):
        a(f"""buffer_load_dwordx2 {vr(GP+4*k,2)}, v213, s[8:11], s26 offen sc1
        buffer_load_dwordx2 {vr(GP+4*k+2,2)}, v213, s[8:11], s26 offen offset:2048 sc1""")
        if k < 6: a("s_add_u32 s26, s26, 4096")
    a(f"s_mov_b32 s28, {NLOG2E:#x}\ns_mov_b32 s29, {NLOG2E:#x}\ns_waitcnt vmcnt(0)")
    for k in range(1, 7):
        a(f"v_pk_add_f32 {vr(GP,2)}, {vr(GP,2)}, {vr(GP+4*k,2)}\nv_pk_add_f32 {vr(GP+2,2)}, {vr(GP+2,2)}, {vr(GP+4*k+2,2)}")
    a(f"""v_cvt_pk_bf16_f32 v22, v{GP}, v{GP+1}
    v_cvt_pk_bf16_f32 v24, v{GP+2}, v{GP+3}
    v_and_b32 v23, 0xffff0000, v22
    v_lshlrev_b32 v22, 16, v22
    v_pk_mul_f32 v[26:27], v[22:23], s[28:29]
    v_and_b32 v25, 0xffff0000, v24
    v_exp_f32 v26, v26
    v_exp_f32 v27, v27
    v_lshlrev_b32 v24, 16, v24
    v_pk_add_f32 v[26:27], v[26:27], 1.0 op_sel_hi:[1,0]
    v_rcp_f32 v26, v26
    v_rcp_f32 v27, v27
    s_nop 0
    v_pk_mul_f32 v[22:23], v[22:23], v[26:27]
    v_cvt_pk_bf16_f32 v22, v22, v23
    v_and_b32 v23, 0xffff0000, v22
    v_lshlrev_b32 v22, 16, v22
    v_pk_mul_f32 v[22:23], v[22:23], v[24:25]
    v_cvt_pk_bf16_f32 v22, v22, v23
    ds_write_b32 v214, v22""")
    sbar(2, sleep=1)
    a(f"s_cmp_lg_u32 s{L}, 3\ns_cbranch_scc1 L_wo")
    for k in range(4):
        a(f"ds_read_b128 {vr(GP+4*k,4)}, v218 offset:{32*k}")
        for n in range(2):
            a(f"ds_read_b64_tr_b16 {vr(DW+16*n+4*k,2)}, v{210+n} offset:{k*2048}\nds_read_b64_tr_b16 {vr(DW+16*n+4*k+2,2)}, v{210+n} offset:{k*2048+512}")
        a("s_waitcnt lgkmcnt(0)")
        for n in range(2):
            acc = AC + 16 * n
            a(f"{MF} {vr(acc,16)}, {vr(GP+4*k,4)}, {vr(DW+16*n+4*k,4)}, {'0' if k==0 else vr(acc,16)}")
    a(f"""s_mul_i32 s26, s{FT}, 14336
    s_lshl_b32 s28, s{KS}, 8
    s_add_u32 s26, s26, s28
    s_add_u32 s26, s26, {WS_YP}""")
    for n in range(2):
        acc = AC + 16 * n
        a(f"""buffer_store_dword v{acc}, v215, s[8:11], s26 offen offset:{n*128} sc1
        buffer_store_dword v{acc+1}, v215, s[8:11], s26 offen offset:{n*128+1792} sc1
        buffer_store_dword v{acc+2}, v216, s[8:11], s26 offen offset:{n*128} sc1
        buffer_store_dword v{acc+3}, v216, s[8:11], s26 offen offset:{n*128+1792} sc1""")
    a(f"""s_lshl_b32 s26, s{KS}, 5
    s_add_u32 s26, s26, s{FT}
    s_lshl_b32 s26, s26, 2
    s_add_u32 s26, s26, {WS_YFL}
    s_waitcnt vmcnt(0)""")
    signal(a, 5, 9, "s26", 1)
    st(a, 7)
    a("s_branch L_wo")
    a.label("L_svcWo")
    srd(a, 16, 38, 448 * 896)
    a(f"""ds_write_b128 v209, v[16:19]
    s_sub_u32 s26, s2, 196
    s_lshl2_add_u32 s26, s26, s{L}
    s_lshr_b32 s28, s26, 1
    s_lshl_b32 s28, s28, 7
    s_add_u32 s28, s28, {WS_F1}
    s_mul_i32 s26, s26, {14*128}
    s_min_u32 s26, s26, {(3136-14)*128}
    s_mov_b64 exec, 0x3fff
    buffer_load_dword v5, v219, s[16:19], s26 offen
    s_mov_b64 exec, -1""")
    a("s_waitcnt vmcnt(0)")
    poll_atomic(a, 5, 9, "s28", 1, 8)
    a("L_wo:")
    wo_group()
    a(f"s_cmp_lt_u32 s55, {98*1024}\ns_cbranch_scc1 L_wo")
    st(a, 8)
    sel_load("L_sel2")
    lds_inc(a, 14, C_W, 15)
    Y = 40
    a(f"""s_lshr_b32 s58, s{H}, 2
    s_lshl2_add_u32 s58, s{J}, s58
    s_lshl_b32 s57, s{L}, 1
    L_upd:
    v_readlane_b32 s52, v20, s57
    s_and_b32 s54, s52, 0xffff
    s_sub_u32 s54, 0xffff, s54
    s_lshr_b32 s26, s54, 5
    s_cmp_lg_u32 s26, s58
    s_cbranch_scc1 L_updn
    s_lshr_b32 s26, s53, 7
    s_lshl_b32 s26, s26, 7
    s_add_u32 s26, s26, {WS_YFL}
    s_add_u32 s28, s53, {223-128}
    s_lshr_b32 s28, s28, 7
    s_lshl_b32 s28, s28, 7
    s_add_u32 s28, s28, {WS_YFL}
    s_mov_b32 s60, {SPIN_LIMIT}
    s_mov_b32 exec_lo, 0x0fffffff
    s_mov_b32 exec_hi, 0x0fffffff
    L_yfl:
    v_mov_b32 v24, 0
    v_mov_b32 v25, 0
    buffer_atomic_or v24, v220, s[8:11], s26 offen sc0 sc1
    buffer_atomic_or v25, v220, s[8:11], s28 offen sc0 sc1
    s_waitcnt vmcnt(0)
    v_xor_b32 v24, s{T}, v24
    v_bitop3_b32 v24, v24, v25, s{T} bitop3:0xf6
    v_cmp_ne_u32 vcc, 0, v24
    s_cbranch_vccz L_yok
    s_sleep 2
    s_sub_u32 s60, s60, 1
    s_cbranch_scc0 L_yfl
    s_endpgm
    L_yok:
    s_mov_b64 exec, -1
    v_mul_u32_u24 v4, {14*14336}, v33
    v_lshl_add_u32 v4, v32, 4, v4
    s_mul_i32 s26, s57, 1792
    s_lshl1_add_u32 s26, s53, s26
    s_add_u32 s26, s26, {WS_YP}
    s_mov_b32 exec_lo, 0x0fffffff
    s_mov_b32 exec_hi, 0x0fffffff""")
    for i in range(14):
        a(f"buffer_load_dwordx4 {vr(Y+4*i,4)}, v4, s[8:11], s26 offen sc1\ns_add_u32 s26, s26, 14336")
    a(f"""s_mov_b64 exec, -1
    s_lshr_b32 s26, s52, 16
    s_not_b32 s55, s26
    s_and_b32 s29, s26, 0x7fff
    s_bitcmp1_b32 s26, 15
    s_cselect_b32 s26, s29, s55
    s_lshl_b32 s26, s26, 16
    v_mov_b32 v6, {NLOG2E:#x}
    v_mul_f32 v6, s26, v6
    v_exp_f32 v6, v6
    v_add_f32 v6, 1.0, v6
    v_rcp_f32 v6, v6
    v_cvt_pk_bf16_f32 v6, v6, v6
    v_lshlrev_b32 v6, 16, v6
    s_mul_i32 s26, s57, 448
    s_add_u32 s26, s26, {UPD}
    v_lshl_add_u32 v7, v32, 4, s26
    s_waitcnt vmcnt(0)""")
    for i in range(1, 14):
        a(f"v_pk_add_f32 {vr(Y,2)}, {vr(Y,2)}, {vr(Y+4*i,2)}\nv_pk_add_f32 {vr(Y+2,2)}, {vr(Y+2,2)}, {vr(Y+4*i+2,2)}")
    for k in range(4): a(f"v_mov_b32 v{Y+4+k}, v{Y+k}")
    for k in range(4): a(f"v_permlane32_swap_b32 v{Y+k}, v{Y+4+k}")
    for k in range(4): a(f"v_add_f32 v{Y+k}, v{Y+k}, v{Y+4+k}")
    for k in range(0, 4, 2):
        a(f"""v_cvt_pk_bf16_f32 v{Y+k}, v{Y+k}, v{Y+k+1}
        v_and_b32 v{Y+k+1}, 0xffff0000, v{Y+k}
        v_lshlrev_b32 v{Y+k}, 16, v{Y+k}
        v_mul_f32 v{Y+k}, v{Y+k}, v6
        v_mul_f32 v{Y+k+1}, v{Y+k+1}, v6
        v_cvt_pk_bf16_f32 v{Y+k}, v{Y+k}, v{Y+k+1}
        v_and_b32 v{Y+k+1}, 0xffff0000, v{Y+k}
        v_lshlrev_b32 v{Y+k}, 16, v{Y+k}""")
    a(f"""s_and_b32 s54, s54, 31
    v_mov_b32 v5, s57
    s_lshl_b32 s26, s54, 2
    s_add_u32 s26, s26, {UPDI}
    v_mov_b32 v4, s26
    s_mov_b64 exec, 0x0fffffff
    ds_write_b128 v7, {vr(Y,4)}
    s_mov_b64 exec, 1
    ds_write_b32 v4, v5
    s_mov_b64 exec, -1
    L_updn:
    s_add_u32 s57, s57, 1
    s_bitcmp1_b32 s57, 0
    s_cbranch_scc1 L_upd""")
    lds_inc(a, 14, C_E, 15)
    st(a, 9)
    a(f"""s_cmp_lg_u32 s2, 254
    s_cbranch_scc1 L_svc_end
    s_cmp_lg_u32 s{L}, 0
    s_cbranch_scc1 L_svc_end
    s_mov_b32 s57, {WS_FL}
    L_ep:""")
    poll_global(a, 5, 219, "s57", sleep=4)
    a(f"""s_add_u32 s57, s57, 8192
    s_cmp_lt_u32 s57, {WS_FL+32768}
    s_cbranch_scc1 L_ep
    s_mov_b32 s26, {WS_EP}""")
    flag_store(a, 5, 9, "s26")
    a("L_svc_end:\ns_waitcnt vmcnt(0) lgkmcnt(0)")
    st_end(a)
    a("L_exit:\nL_code_end:\ns_endpgm")

def main(out):
    hdr = open("cdna_kernels/" + NAME + ".s.ref").read().split("; Override")[0]
    rep = []
    a = Asm()
    prologue_and_loader(a); main_wave(a); service_wave(a)
    t = hdr
    t += f"; @launch grid=(256,1,1) block=(512,1,1) lds={LDS_BYTES}\n"
    t += '.amdgcn_target "amdgcn-amd-amdhsa--gfx950"\n'
    t += kernel_text(NAME + "_kernel", a.l, 256, report=rep)
    open(out, "w").write(t)
    if "-v" in sys.argv: print("\n".join(rep))

if __name__ == "__main__":
    main(sys.argv[1])
```

```python
import sys, math, struct
from asmlib import *

NAME = "gated_mix__softmax_full_mha__moe_arch_mod__prompt"
STAMP = "-s" in sys.argv
EXP = set(x[2:] for x in sys.argv if x.startswith("-x"))
WS_KV = 0
WS_O = 4 << 20
WS_R = 6 << 20
WS_G = WS_R + 16384
WS_SEL = WS_R + 32768
WS_EP = WS_R + 40960
WS_FL = WS_R + 65536
WS_MB = WS_FL + 32768
WS_OFL = WS_MB + 32768
WS_YFL = WS_OFL + 32768
WS_F1 = WS_YFL + 4096
WS_YP = 7 << 20
WS_GP = 8 << 20
WS_ST = 16 << 20
XS = 0; WT = 65536; WQ = 122880; QX = 151552; UPD = 159744
WO = 0; CB = 102400
UPDI = UPD + 3584
KEYS = UPD
SELECTOR = 223
CNT = 163840 - 192
LDS_BYTES = 163840
C_Q1, C_Q2, C_X, C_L, C_S, C_D, C_C, C_O, C_W, C_F, C_K, C_P, C_R = 0, 4, 8, 12, 16, 20, 24, 28, 32, 36, 40, 48, 64

def f32bits(x): return struct.unpack("<I", struct.pack("<f", x))[0]
QSCALE = f32bits(28 ** -0.5 * math.log2(math.e))
NLOG2E = f32bits(-math.log2(math.e))
MF = "v_mfma_f32_32x32x16_bf16"
ROLE = [0, 1, 2, 3, 14, 4, 5, 6, 7, 8, 9, 15, 10, 11, 12, 13]
ROLE_LO = sum(ROLE[i] << (4 * i) for i in range(8))
ROLE_HI = sum(ROLE[8 + i] << (4 * i) for i in range(8))
SPIN_LIMIT = 1 << 20
PD = 2 if "pd2" in EXP else 4
PG = 6 if "pd2" in EXP else 3
PCD = 4 if "pcd4" in EXP else (0 if "pcd0" in EXP else 1)
KVS = 4 if "kvs4" in EXP else (0 if "kvs0" in EXP else 2)
PQ2 = 4 if "pq4" in EXP else (0 if "pq0" in EXP else 1)
PF0 = 2 if "pf2" in EXP else 0
WOP = 1 if "wo1" in EXP else (3 if "wo3" in EXP else 2)
OUTAUX = " sc1" if "outsc1" in EXP else (" nt" if "outnt" in EXP else "")

T, H, J, W, RL, ROT = 30, 31, 32, 33, 34, 3
_uid = [0]
def uid(p):
    _uid[0] += 1
    return f"{p}_{_uid[0]}"

def srd(a, d, ptr, nbytes):
    a(f"s_mov_b32 s{d}, s{ptr}\ns_mov_b32 s{d+1}, s{ptr+1}\ns_mov_b32 s{d+2}, {nbytes:#x}\ns_mov_b32 s{d+3}, 0x20000")

NST = 12
DIAG = [tuple(int(y) for y in x[2:].split("-")) for x in sys.argv if x.startswith("-d")]
def st(a, i):
    if STAMP: a(f"s_memtime s[{72+2*i}:{73+2*i}]")
    if DIAG and i in DIAG[0]: a(f"s_memrealtime s[{72+2*i}:{73+2*i}]\ns_waitcnt lgkmcnt(0)")
def st_begin(a):
    if STAMP: a("s_memrealtime s[68:69]\ns_memtime s[72:73]")
    if DIAG: a("s_memrealtime s[72:73]")
def diag_end(a):
    if not DIAG: return
    p, q = DIAG[0]
    a(f"""s_waitcnt vmcnt(0)
    s_memrealtime s[96:97]
    s_waitcnt lgkmcnt(0)
    s_sub_u32 s70, s{72+2*q}, s{72+2*p}
    s_add_u32 s70, s70, s96
    L_diag:
    s_memrealtime s[68:69]
    s_waitcnt lgkmcnt(0)
    s_sub_u32 s71, s68, s70
    s_cmp_lt_i32 s71, 0
    s_cbranch_scc1 L_diag""")
def st_init(a):
    if STAMP:
        for i in range(1, NST): a(f"s_mov_b32 s{72+2*i}, s72")
def st_end(a):
    if not STAMP: return
    a(f"""s_waitcnt vmcnt(0)
    s_memrealtime s[70:71]
    s_memtime s[{72+2*NST}:{73+2*NST}]
    s_getreg_b32 s66, hwreg(HW_REG_HW_ID)
    s_getreg_b32 s67, hwreg(HW_REG_XCC_ID)
    s_mov_b64 exec, -1
    s_lshl_b32 s65, s2, 3
    s_add_u32 s65, s65, s{W}
    s_lshl_b32 s65, s65, 6
    s_add_u32 s65, s65, {WS_ST}
    s_waitcnt lgkmcnt(0)
    v_mov_b32 v4, s68
    v_mov_b32 v5, s70
    v_mov_b32 v6, s66
    v_mov_b32 v7, s67""")
    for i in range(1, NST + 1):
        a(f"s_sub_u32 s64, s{72+2*i}, s72\nv_mov_b32 v{7+i}, s64")
    a("v_mov_b32 v2, 0\ns_mov_b64 exec, 1")
    for k in range(4):
        a(f"buffer_store_dwordx4 v[{4+4*k}:{7+4*k}], v2, s[8:11], s65 offen offset:{16*k}")

def poll_global(a, vdst, voff, soff, mask=None, sleep=1):
    l = uid("Lpoll"); d = uid("Lpd")
    a(f"s_mov_b32 s60, {SPIN_LIMIT}")
    if mask is not None: a(f"s_mov_b64 exec, {mask}")
    a(f"""{l}:
    buffer_load_dword v{vdst}, v{voff}, s[8:11], {soff} offen sc1
    s_waitcnt vmcnt(0)
    v_cmp_ne_u32 vcc, s{T}, v{vdst}
    s_cbranch_vccz {d}
    s_mov_b64 exec, vcc
    s_sleep {sleep}
    s_sub_u32 s60, s60, 1
    s_cbranch_scc0 {l}
    s_endpgm
    {d}:
    s_mov_b64 exec, -1""")

def poll_atomic(a, vdst, voff, soff, mask, sleep):
    l = uid("Lpa"); d = uid("Lpad")
    a(f"""s_mov_b32 s60, {SPIN_LIMIT}
    s_mov_b64 exec, {mask}
    {l}:
    v_mov_b32 v{vdst}, 0
    buffer_atomic_or v{vdst}, v{voff}, s[8:11], {soff} offen sc0 sc1
    s_waitcnt vmcnt(0)
    v_cmp_ne_u32 vcc, s{T}, v{vdst}
    s_cbranch_vccz {d}
    s_sleep {sleep}
    s_sub_u32 s60, s60, 1
    s_cbranch_scc0 {l}
    s_endpgm
    {d}:
    s_mov_b64 exec, -1""")

def poll_pipe(a, v0, voff, soff, mask, D=4, gap=3):
    l = uid("Lpp"); d = uid("Lppd")
    at = lambda r: f"v_mov_b32 v{r}, 0\nbuffer_atomic_or v{r}, v{voff}, s[8:11], {soff} offen sc0 sc1"
    a(f"s_mov_b32 s60, {SPIN_LIMIT}\ns_mov_b64 exec, {mask}")
    for i in range(D - 1): a(at(v0 + i) + f"\ns_sleep {gap}")
    a(f"{l}:")
    for i in range(D):
        a(at(v0 + (i + D - 1) % D))
        a(f"s_waitcnt vmcnt({D-1})\nv_cmp_ne_u32 vcc, s{T}, v{v0+i}\ns_cbranch_vccz {d}")
    a(f"""s_sub_u32 s60, s60, 1
    s_cbranch_scc0 {l}
    s_endpgm
    {d}:
    s_mov_b64 exec, -1""")

def signal(a, vt, voff, soff, mask):
    a(f"v_mov_b32 v{vt}, s{T}\ns_mov_b64 exec, {mask}\nbuffer_atomic_swap v{vt}, v{voff}, s[8:11], {soff} offen sc1\ns_mov_b64 exec, -1")

def spin_lds(a, vaddr, off, want, vt, sleep=0):
    l = uid("Lsp"); d = uid("Lsd")
    a(f"""s_mov_b32 s60, {SPIN_LIMIT}
    {l}:
    ds_read_b32 v{vt}, v{vaddr} offset:{off}
    s_waitcnt lgkmcnt(0)
    v_readfirstlane_b32 s61, v{vt}
    s_cmp_ge_u32 s61, {want}
    s_cbranch_scc1 {d}""")
    if sleep: a(f"s_sleep {sleep}")
    a(f"""s_sub_u32 s60, s60, 1
    s_cbranch_scc0 {l}
    s_endpgm
    {d}:""")

def lds_inc(a, vaddr, off, vone):
    a(f"s_mov_b64 exec, 1\nds_add_u32 v{vaddr}, v{vone} offset:{off}\ns_mov_b64 exec, -1")

def flag_store(a, vt, vz, soff):
    a(f"v_mov_b32 v{vt}, s{T}\ns_mov_b64 exec, 1\nbuffer_store_dword v{vt}, v{vz}, s[8:11], {soff} offen sc1\ns_mov_b64 exec, -1")

def split_neg_max(a, m, t0, t1, q6, q7):
    a(f"""v_sub_f32 v{m}, 0, v{m}
    v_cvt_pk_bf16_f32 v{t0}, v{m}, v{m}
    v_lshlrev_b32 v{t0}, 16, v{t0}
    v_sub_f32 v{t0}, v{m}, v{t0}
    v_cvt_pk_bf16_f32 v{t1}, v{m}, v{t0}
    v_and_b32 v{m}, 0xffff0000, v{t1}
    v_sub_f32 v{t0}, v{t0}, v{m}
    s_mov_b32 exec_lo, 0
    v_mov_b32 v{q6}, v{t1}
    v_cvt_pk_bf16_f32 v{q7}, v{t0}, 0
    s_mov_b32 exec_lo, -1""")

def max16_list(dst, S, init=False):
    if not init:
        return ([f"v_max3_f32 v{dst}, v{S}, v{S+1}, v{S+2}"] +
                [f"v_max3_f32 v{dst}, v{dst}, v{S+i}, v{S+i+1}" for i in range(3, 15, 2)] +
                [f"v_max_f32 v{dst}, v{dst}, v{S+15}"])
    return [f"v_max3_f32 v{dst}, v{dst}, v{S+i}, v{S+i+1}" for i in range(0, 16, 2)]

def wave_min_u32(a, v, full=True):
    for r in (1, 2, 4, 8):
        a(f"v_min_u32_dpp v{v}, v{v}, v{v} row_ror:{r} row_mask:0xf bank_mask:0xf")
    a(f"v_min_u32_dpp v{v}, v{v}, v{v} row_bcast:15 row_mask:0xa bank_mask:0xf")
    if full: a(f"v_min_u32_dpp v{v}, v{v}, v{v} row_bcast:31 row_mask:0xc bank_mask:0xf")

def tag(a):
    a(f"s_mul_i32 s{T}, s{T}, 0x9e3779b1\ns_add_u32 s{T}, s{T}, 0x7f4a7c15")

def next_chunk(a, s):
    a(f"s_add_u32 s{s}, s{s}, 1\ns_cmp_eq_u32 s{s}, 7\ns_cselect_b32 s{s}, 0, s{s}")

Q, O, KV, S, P = 8, 40, 104, 168, 200
XF = 104; A0, A1, WF = 40, 56, 72
VX = 216; VW = 220; VQ = 222; VC = 223; V1 = 224; VZ = 225; VT = 226; VH = 227
VA = 228; TMP = 232; XR = 240; GR = 248; VWQ = 250; VF = 251; VFS = 252; VXO = 253; VGO = 254
OWN = 3
L = 35

def prologue_and_loader(a):
    if "rot7" in EXP:
        ROTCODE = f"s_lshl1_add_u32 s{ROT}, s27, s26\ns_cmp_ge_u32 s{ROT}, 7\ns_cselect_b32 s26, 7, 0\ns_sub_u32 s{ROT}, s{ROT}, s26"
    elif "rot2" not in EXP and "norot" not in EXP and "rot23" not in EXP:
        ROTCODE = f"s_add_u32 s{ROT}, s27, s26\ns_and_b32 s{ROT}, s{ROT}, 3\ns_lshl_b32 s{ROT}, s{ROT}, 1"
    elif "norot" in EXP:
        ROTCODE = f"s_mov_b32 s{ROT}, 0"
    elif "rot23" in EXP:
        ROTCODE = f"s_add_u32 s{ROT}, s27, s26\ns_and_b32 s{ROT}, s{ROT}, 1\ns_mul_i32 s{ROT}, s{ROT}, 3"
    else:
        ROTCODE = f"s_add_u32 s{ROT}, s27, s26\ns_and_b32 s{ROT}, s{ROT}, 1\ns_lshl_b32 s{ROT}, s{ROT}, 2"
    st_begin(a)
    a(f"""s_load_dwordx4 s[4:7], s[0:1], 0
    s_load_dwordx2 s[36:37], s[0:1], 88
    s_load_dwordx2 s[38:39], s[0:1], 16
    s_load_dwordx8 s[40:47], s[0:1], 32
    s_load_dwordx4 s[48:51], s[0:1], 64
    s_cmp_ge_u32 s2, 256
    s_cbranch_scc1 L_exit
    v_lshrrev_b32 v2, 6, v0
    v_and_b32 v3, 63, v0
    s_and_b32 s24, s2, 7
    s_lshr_b32 s25, s2, 3
    v_readfirstlane_b32 s{W}, v2
    s_and_b32 s{H}, s24, 1
    s_lshl_b32 s{H}, s{H}, 3
    s_and_b32 s26, s25, 7
    s_add_u32 s{H}, s{H}, s26
    s_lshr_b32 s27, s25, 3
    s_and_b32 s{J}, s24, 6
    s_lshl1_add_u32 s{J}, s{J}, s27
    {ROTCODE}
    s_mov_b32 s28, {ROLE_LO:#x}
    s_mov_b32 s29, {ROLE_HI:#x}
    s_lshl_b32 s27, s{H}, 2
    s_lshr_b64 s[28:29], s[28:29], s27
    s_and_b32 s{RL}, s28, 15
    v_lshlrev_b32 v1, 4, v3
    s_mov_b32 s27, {WS_EP}
    s_cmp_lt_u32 s{W}, 4
    s_cbranch_scc1 L_main
    """)
    a(f"""s_setprio 2
    s_sub_u32 s{L}, s{W}, 4
    v_lshrrev_b32 v4, 3, v3
    v_mul_u32_u24 v5, 896, v4
    v_and_b32 v6, 7, v3
    v_lshrrev_b32 v7, 4, v3
    v_xor_b32 v7, v6, v7
    v_lshl_add_u32 v10, v7, 4, v5
    v_xor_b32 v11, 64, v10
    v_add_u32 v12, {2*6144}, v10
    v_add_u32 v13, {3*6144}, v11
    v_add_u32 v11, 6144, v11
    v_mul_u32_u24 v5, 2688, v4
    v_and_b32 v4, 2, v4
    v_lshlrev_b32 v4, 1, v4
    v_xor_b32 v4, v4, v6
    v_lshl_add_u32 v14, v4, 4, v5
    v_add_u32 v15, {8*2688-1024}, v14
    s_lshl2_add_u32 s52, s{J}, s{L}
    s_mul_i32 s52, s52, {32*896}
    s_lshl_b32 s53, s{RL}, 7
    s_mul_i32 s26, s{L}, {16*2688}
    s_add_u32 s53, s53, s26
    s_add_u32 s53, s53, 896
    s_lshl_b32 s54, s{L}, 12
    s_lshl_b32 s55, s{L}, 11
    s_add_u32 s55, s55, {WT}
    s_mov_b32 s56, s{ROT}
    s_mov_b32 s57, 0
    s_mov_b32 s14, {2048*896}
    s_mov_b32 s15, 0x20000
    s_cmp_ge_u32 s{RL}, 14
    s_cselect_b32 s18, 0, {448*2688}
    s_mov_b32 s19, 0x20000
    s_waitcnt lgkmcnt(0)
    s_mov_b64 s[12:13], s[4:5]
    s_mov_b64 s[16:17], s[6:7]
    s_load_dword s{T}, s[36:37], s27""")
    st_init(a); st(a, 1)
    a(f"""L_ld:
    s_mul_i32 s26, s56, {64*2688}
    s_mov_b32 m0, s55
    s_add_u32 s26, s26, s53
    s_lshl_b32 s28, s56, 7
    buffer_load_dwordx4 v14, s[16:19], s26 offen lds
    buffer_load_dwordx4 v15, s[16:19], s26 offen offset:1024 lds
    s_mov_b32 m0, s54
    s_add_u32 s28, s28, s52
    buffer_load_dwordx4 v10, s[12:15], s28 offen lds
    buffer_load_dwordx4 v11, s[12:15], s28 offen offset:1024 lds
    buffer_load_dwordx4 v12, s[12:15], s28 offen offset:2048 lds
    buffer_load_dwordx4 v13, s[12:15], s28 offen offset:3072 lds
    s_add_u32 s55, s55, 8192
    s_add_u32 s54, s54, 16384
    s_and_b32 s54, s54, 0xffff""")
    next_chunk(a, 56)
    a(f"""s_add_u32 s57, s57, 1
    s_cmp_lt_u32 s57, 3
    s_cbranch_scc1 L_ld
    s_waitcnt vmcnt(12) lgkmcnt(0)
    s_barrier
    s_cmp_lt_u32 s57, 7
    s_cbranch_scc1 L_ld
    """)
    a(f"""v_lshrrev_b32 v4, 2, v3
    v_mul_u32_u24 v4, 2688, v4
    v_and_b32 v5, 3, v3
    v_lshl_add_u32 v16, v5, 4, v4
    s_mov_b32 s18, {448*2688}
    s_mul_i32 s53, s{H}, 56
    s_and_b32 s53, s53, 0xfffffff0
    s_mul_i32 s26, s{L}, {16*2688}
    s_add_u32 s53, s53, s26
    s_lshl_b32 s55, s{L}, 10
    s_add_u32 s55, s55, {WQ}""")
    for i in range(4):
        a(f"""s_mul_i32 s26, s56, {64*2688}
        s_add_u32 m0, s55, {i*4096}
        s_add_u32 s26, s26, s53
        buffer_load_dwordx4 v16, s[16:19], s26 offen lds""")
        if i < 3: next_chunk(a, 56)
        if i == 1: a("s_waitcnt vmcnt(8)\ns_barrier")
        if i == 3: a("s_waitcnt vmcnt(4)\ns_barrier")
    st(a, 2)
    a("s_branch L_service")

def main_wave(a):
    a.label("L_main")
    if "nocodepf" not in EXP:
        a(f"""s_cmp_lg_u32 s{W}, 0
        s_cbranch_scc1 L_nopf
        s_getpc_b64 s[28:29]
        L_pc:
        s_and_b32 s26, s25, 3
        s_lshl_b32 s26, s26, 13
        v_lshl_add_u32 v4, v3, 7, s26
        v_min_u32 v4, L_code_end-L_pc, v4
        global_load_dword v5, v4, s[28:29]
        L_nopf:""")
    a(f"""s_setprio 1
    v_and_b32 v{VT}, 31, v3
    v_lshrrev_b32 v{VH}, 5, v3
    v_mov_b32 v{V1}, 1
    v_mov_b32 v{VZ}, 0
    v_mov_b32 v{VC}, {CNT}
    v_lshrrev_b32 v4, 2, v1
    v_add_u32 v4, {UPDI}, v4
    v_mov_b32 v6, -1
    s_mov_b32 exec_hi, 0
    ds_write_b32 v4, v6
    v_and_b32 v6, 7, v3
    v_cmp_eq_u32 vcc, 4, v6
    v_mov_b32 v7, {(1<<18)+1}
    v_cndmask_b32 v6, 0, v7, vcc
    ds_write_b32 v4, v6 offset:{CNT-UPDI+C_R}
    s_mov_b32 exec_lo, 0xffff
    ds_write_b32 v4, v{VZ} offset:{CNT-UPDI}
    s_mov_b64 exec, -1
    v_lshrrev_b32 v4, 1, v{VT}
    v_and_b32 v4, 7, v4
    v_xor_b32 v4, v4, v{VH}
    v_lshlrev_b32 v4, 4, v4
    v_lshl_add_u32 v4, v{VT}, 7, v4
    s_lshl_b32 s26, s{W}, 12
    v_add_u32 v{VX}, s26, v4
    v_xor_b32 v{VX+1}, 32, v{VX}
    v_xor_b32 v{VX+2}, 64, v{VX}
    v_xor_b32 v{VX+3}, 96, v{VX}
    v_bfe_u32 v4, v3, 2, 2
    v_lshl_add_u32 v12, v{VH}, 3, v4
    v_and_b32 v6, 3, v3
    v_and_b32 v7, 1, v3
    v_bfe_u32 v8, v3, 1, 1
    v_lshl_add_u32 v7, v7, 1, v8
    v_bfe_u32 v8, v3, 4, 1
    v_lshl_add_u32 v9, v8, 2, v7
    v_lshl_add_u32 v10, v8, 2, v6
    s_cmp_lt_u32 s{RL}, 7
    s_cselect_b64 vcc, -1, 0
    v_cndmask_b32 v10, v10, v9, vcc
    v_lshlrev_b32 v11, 7, v12
    v_lshl_add_u32 v11, v10, 3, v11
    v_lshrrev_b32 v4, 1, v4
    v_lshl_add_u32 v11, v4, 6, v11
    v_add_u32 v{VW}, {WT}, v11
    v_xor_b32 v{VW+1}, 64, v{VW}
    v_add_u32 v10, 2, v9
    v_sub_u32 v11, 7, v9
    v_cmp_gt_u32 vcc, 6, v9
    v_cndmask_b32 v10, v11, v10, vcc
    s_bitcmp1_b32 s{H}, 0
    s_cselect_b64 vcc, -1, 0
    v_cndmask_b32 v10, v9, v10, vcc
    v_lshlrev_b32 v11, 6, v12
    v_lshl_add_u32 v11, v10, 3, v11
    v_add_u32 v{VQ}, {WQ}, v11
    v_lshrrev_b32 v4, 2, v3
    v_mul_u32_u24 v4, 2688, v4
    v_lshl_add_u32 v{VWQ}, v6, 4, v4
    s_cmp_ge_u32 s{RL}, 7
    s_cselect_b32 s26, 7, 0
    s_cselect_b32 s29, 2, 0
    s_sub_u32 s26, s{RL}, s26
    s_mul_i32 s28, s26, {64*2341}
    s_lshr_b32 s28, s28, 16
    v_add_u32 v4, s28, v6
    v_mul_u32_u24 v7, 28, v4
    v_lshrrev_b32 v7, 6, v7
    v_cmp_ge_u32 s[64:65], s26, v7
    v_cmp_ne_u32 vcc, s26, v7
    s_and_b32 s28, s{J}, 12
    s_add_u32 s29, s28, s29
    v_mov_b32 v7, s29
    v_addc_co_u32 v7, vcc, 0, v7, vcc
    s_and_b32 s28, s{J}, 3
    v_lshl_add_u32 v4, v4, 2, s28
    v_bfe_u32 v8, v3, 2, 2
    v_lshl_add_u32 v4, v4, 2, v8
    v_lshlrev_b32 v4, 7, v4
    v_lshl_add_u32 v{VFS}, v7, 2, v4
    s_and_b32 s64, s64, 0xffff
    s_cmp_ge_u32 s{RL}, 14
    s_cselect_b32 s64, 0, s64
    s_mov_b32 s65, 0
    s_lshl_b32 s28, s{W}, 5
    v_add_u32 v{VF}, s28, v{VC}
    s_lshl_b32 s28, s{J}, 2
    s_lshr_b32 s58, s{H}, 2
    s_add_u32 s58, s58, s28
    s_and_b32 s59, s{H}, 3
    s_lshl2_add_u32 s59, s59, s{W}
    s_mul_i32 s59, s59, 56
    s_lshl_b32 s28, s58, 5
    v_add_u32 v4, s28, v{VT}
    v_mul_u32_u24 v{VXO}, 896, v4
    v_lshl_add_u32 v{VXO}, v{VH}, 4, v{VXO}
    v_lshlrev_b32 v{VGO}, 3, v4
    s_waitcnt lgkmcnt(0)
    s_load_dword s{T}, s[36:37], s27
    """)
    st_init(a)
    srd(a, 8, 36, 1 << 28)
    srd(a, 16, 6, 448 * 2688)
    srd(a, 12, 4, 2048 * 896)
    if "nowqpf" not in EXP:
        a(f"""s_cmp_lg_u32 s{W}, 1
        s_cbranch_scc1 L_nopf2
        v_lshrrev_b32 v4, 2, v3
        v_min_u32 v4, 13, v4
        v_mul_u32_u24 v4, 2688, v4
        v_and_b32 v6, 3, v3
        v_lshl_add_u32 v4, v6, 7, v4
        s_mul_i32 s26, s25, {14*2688}
        s_and_b32 s28, s24, 1
        s_mul_i32 s28, s28, 384
        s_add_u32 s26, s26, s28
        buffer_load_dword v5, v4, s[16:19], s26 offen
        L_nopf2:""")
    if "wopfL" not in EXP and "nowopf" not in EXP:
        srd(a, 20, 38, 448 * 896)
        a(f"""s_cmp_lg_u32 s{W}, 2
        s_cbranch_scc1 L_nopf3
        s_mul_i32 s26, s2, {13*128}
        v_lshl_add_u32 v4, v3, 7, s26
        s_mov_b64 exec, 0x1fff
        buffer_load_dword v5, v4, s[20:23], 0 offen
        s_mov_b64 exec, -1
        L_nopf3:""")
    a(f"""s_mul_i32 s62, s{H}, 56
    s_and_b32 s62, s62, 0xfffffff0
    s_mul_i32 s26, s{W}, {16*2688}
    s_add_u32 s62, s62, s26
    s_lshl_b32 s63, s{W}, 10
    s_add_u32 s63, s63, {WQ}
    s_lshl2_add_u32 s35, s{J}, s{W}
    s_lshl_b32 s52, s35, 12
    s_cmp_ge_u32 s{RL}, 14
    s_cbranch_scc1 L_roleR
    s_cmp_ge_u32 s{RL}, 7
    s_cbranch_scc1 L_roleV""")

    def gemm(kind):
        def reads(c, s):
            k = 4 * c + s
            a(f"ds_read_b128 {vr(XF+4*k,4)}, v{VX+s} offset:{(c&3)*16384}")
            f = WF + 8 * s
            if kind == "R":
                a(f"ds_read_b128 {vr(f,4)}, v{VW} offset:{k*32}")
            else:
                for n in range(2):
                    a(f"ds_read_b64_tr_b16 {vr(f+4*n,2)}, v{VW+n} offset:{k*2048}")
                    a(f"ds_read_b64_tr_b16 {vr(f+4*n+2,2)}, v{VW+n} offset:{k*2048+512}")
        def mfmas(c, s):
            k = 4 * c + s
            f = WF + 8 * s
            for n in range(1 if kind == "R" else 2):
                acc = (A0, A1)[n]
                cc = "0" if k == 0 else vr(acc, 16)
                if kind == "V": a(f"{MF} {vr(acc,16)}, {vr(XF+4*k,4)}, {vr(f+4*n,4)}, {cc}")
                else:           a(f"{MF} {vr(acc,16)}, {vr(f+4*n,4)}, {vr(XF+4*k,4)}, {cc}")
        per = 2 if kind == "R" else 5
        for c in range(7):
            a("s_barrier")
            if c == 0: st(a, 1)
            if c == 6: st(a, 2)
            if STAMP and c in (0, 6): a("s_waitcnt lgkmcnt(0)")
            reads(c, 0); reads(c, 1)
            for s in range(4):
                if s < 2: reads(c, s + 2)
                a(f"s_waitcnt lgkmcnt({min(3 - s, 2) * per})")
                mfmas(c, s)

    PK = 8
    MS = 20
    for i in range(4):
        a(f"""s_lshl_b32 s28, s{RL}, 3
        s_add_u32 s28, s28, {2*i}
        v_add_u32 v4, s28, v{VH}
        v_mul_u32_u24 v8, 37, v4
        v_lshrrev_b32 v8, 8, v8
        v_mul_u32_u24 v6, 7, v8
        v_sub_u32 v6, v4, v6
        v_lshrrev_b32 v7, 2, v6
        v_lshl_add_u32 v8, v8, 1, v7
        v_cmp_eq_u32 s[{MS+2*i}:{MS+1+2*i}], 3, v6
        v_and_b32 v6, 3, v6
        v_lshlrev_b32 v8, 18, v8
        v_lshl_add_u32 v8, v6, 9, v8
        v_lshl_add_u32 v{VA+i}, v{VT}, 4, v8""")
    a(f"v_mov_b32 v{TMP+2}, 0x3f803f80\nv_mov_b32 v{TMP+3}, 0x3f803f80\ns_add_u32 s53, s52, {1<<18}")
    a("s_waitcnt lgkmcnt(0)")
    tag(a)
    gemm("K")
    for i in range(4):
        acc = (A0, A1)[i >> 1] + 8 * (i & 1)
        p = PK + 4 * i
        for e in range(4): a(f"v_cvt_pk_bf16_f32 v{p+e}, v{acc+2*e}, v{acc+2*e+1}")
        l = uid("Lnosh")
        a(f"""s_mov_b64 exec, s[{MS+2*i}:{MS+1+2*i}]
        s_cbranch_execz {l}
        v_mov_b32 v{TMP}, v{p+2}
        v_mov_b32 v{TMP+1}, v{p+3}
        v_mov_b32 v{p+2}, 0x3f803f80
        v_mov_b32 v{p+3}, 0x3f803f80
        buffer_store_dwordx4 {vr(TMP,4)}, v{VA+i}, s[8:11], s53 offen sc1
        s_nop 1
        {l}:
        s_mov_b64 exec, -1
        buffer_store_dwordx4 {vr(p,4)}, v{VA+i}, s[8:11], s52 offen sc1""")
    a("s_branch L_pub")
    a.label("L_roleR")
    srd(a, 20, 40, 896)
    a(f"""s_lshl_b32 s28, s{ROT}, 7
    v_add_u32 v4, s28, v1
    v_subrev_u32 v6, 896, v4
    v_min_u32 v4, v4, v6
    s_mov_b32 m0, {QX}
    s_nop 0
    buffer_load_dwordx4 v4, s[20:23], 0 offen lds
    s_mov_b32 s20, s48
    s_mov_b32 s21, s49
    s_mov_b32 m0, {QX+1024}
    s_nop 0
    buffer_load_dwordx4 v4, s[20:23], 0 offen lds
    v_and_b32 v4, 1, v3
    v_lshlrev_b32 v4, 10, v4
    v_lshl_add_u32 v4, v{VH}, 4, v4
    v_add_u32 v{VW}, {QX}, v4
    s_waitcnt vmcnt(0) lgkmcnt(0)""")
    tag(a)
    gemm("R")
    a(f"""s_cmp_lg_u32 s{RL}, 14
    s_cbranch_scc1 L_pub
    s_mov_b32 exec_hi, 0
    s_nop 9
    v_cvt_pk_bf16_f32 v4, v{A0}, v{A0+1}
    v_and_b32 v5, 0xffff0000, v4
    v_lshlrev_b32 v4, 16, v4
    v_ashrrev_i32 v6, 31, v4
    v_or_b32 v6, 0x80000000, v6
    v_xor_b32 v6, v6, v4
    v_and_b32 v6, 0xffff0000, v6
    v_cmp_u_f32 vcc, v4, v4
    v_cndmask_b32 v6, v6, 0, vcc
    s_lshl_b32 s26, s35, 5
    v_add_u32 v7, s26, v{VT}
    v_sub_u32 v8, 0xffff, v7
    v_or_b32 v6, v6, v8
    v_lshlrev_b32 v9, 3, v7
    v_and_b32 v7, 127, v7
    v_lshlrev_b32 v7, 2, v7
    v_add_u32 v7, {KEYS}, v7
    ds_write_b32 v7, v6
    s_mov_b32 exec_lo, 1
    ds_add_u32 v{VC}, v{V1} offset:{C_K}
    s_mov_b32 exec_lo, -1
    v_mul_f32 v5, {NLOG2E:#x}, v5
    v_exp_f32 v5, v5
    v_add_f32 v5, 1.0, v5
    v_rcp_f32 v5, v5
    v_cvt_pk_bf16_f32 v5, v5, v5
    v_lshlrev_b32 v4, 16, v5
    v_mov_b32 v5, s{T}
    s_mov_b32 s26, {WS_G}
    buffer_store_dwordx2 v[4:5], v9, s[8:11], s26 offen sc1
    s_mov_b32 exec_hi, -1
    s_branch L_pub
    """)
    a.label("L_roleV")
    for n in range(2):
        a(f"""s_lshl_b32 s28, s{RL}, 6
        s_sub_u32 s28, s28, {7*64 - 32*n}
        v_add_u32 v4, s28, v{VT}
        v_mul_u32_u24 v8, 2341, v4
        v_lshrrev_b32 v8, 16, v8
        v_mul_u32_u24 v6, 28, v8
        v_sub_u32 v6, v4, v6
        v_cmp_le_u32 s[{MS+2*n}:{MS+1+2*n}], 24, v6
        v_cmp_eq_u32 vcc, 24, v6
        v_mov_b32 v7, 0x3f803f80
        v_cndmask_b32 v{TMP+4*n}, 0, v7, vcc
        v_lshlrev_b32 v8, 18, v8
        v_lshl_add_u32 v8, v6, 4, v8
        v_lshl_add_u32 v{VA+n}, v{VH}, 9, v8""")
        for e in range(1, 4): a(f"v_mov_b32 v{TMP+4*n+e}, v{TMP+4*n}")
    for n in range(2):
        l = uid("Lnop")
        a(f"""s_mov_b64 exec, s[{MS+2*n}:{MS+1+2*n}]
        s_cbranch_execz {l}
        buffer_store_dwordx4 {vr(TMP+4*n,4)}, v{VA+n}, s[8:11], s52 offen offset:{2048+64} sc1
        buffer_store_dwordx4 {vr(TMP+4*n,4)}, v{VA+n}, s[8:11], s52 offen offset:{3072+64} sc1
        {l}:
        s_mov_b64 exec, -1""")
    a("s_waitcnt lgkmcnt(0)")
    tag(a)
    gemm("V")
    for i in range(4):
        acc = (A0, A1)[i >> 1] + 8 * (i & 1)
        p = PK + 4 * i
        for e in range(4): a(f"v_cvt_pk_bf16_f32 v{p+e}, v{acc+2*e}, v{acc+2*e+1}")
        a(f"buffer_store_dwordx4 {vr(p,4)}, v{VA+(i>>1)}, s[8:11], s52 offen offset:{2048+1024*(i&1)} sc1")
    a.label("L_pub")
    st(a, 3)
    a(f"s_add_u32 s56, s{ROT}, 4\ns_cmp_ge_u32 s56, 7\ns_cselect_b32 s26, 7, 0\ns_sub_u32 s56, s56, s26")
    for i in range(4, 7):
        a(f"""s_mul_i32 s26, s56, {64*2688}
        s_add_u32 m0, s63, {i*4096}
        s_add_u32 s26, s26, s62
        buffer_load_dwordx4 v{VWQ}, s[16:19], s26 offen lds""")
        if i < 6: next_chunk(a, 56)
    QO = Q + 8 * OWN
    SK = TMP
    a(f"""s_lshl_b32 s53, s{H}, 18
    s_add_u32 s16, s36, s53
    s_addc_u32 s17, s37, 0
    s_mov_b32 s18, {1<<18}
    s_mov_b32 s19, 0x20000
    s_mov_b32 s57, 0""")
    def ldK(b, soff):
        return [f"buffer_load_dwordx4 {vr(KV+16*b,4)}, v1, s[16:19], {soff} offen sc1",
                f"buffer_load_dwordx4 {vr(KV+16*b+4,4)}, v1, s[16:19], {soff} offen offset:1024 sc1"]
    def ldV(b, soff):
        return [f"buffer_load_dwordx4 {vr(KV+16*b+8,4)}, v1, s[16:19], {soff} offen offset:2048 sc1",
                f"buffer_load_dwordx4 {vr(KV+16*b+12,4)}, v1, s[16:19], {soff} offen offset:3072 sc1"]
    def try_loads(block=False):
        d = uid("Ltl"); l = uid("Ltr")
        a(f"s_cmp_lg_u32 s57, 0\ns_cbranch_scc1 {d}")
        if block: a(f"s_mov_b32 s60, {SPIN_LIMIT}\n{l}:\ns_sub_u32 s60, s60, 1\ns_cbranch_scc1 L_exit")
        a(f"""ds_read_b32 v4, v{VF} offset:{C_R}
        ds_read_b32 v5, v{VC} offset:{C_R}
        s_waitcnt lgkmcnt(0)
        v_readfirstlane_b32 s56, v4
        v_readfirstlane_b32 s29, v5
        s_min_u32 s57, s56, s29
        s_cmp_eq_u32 s57, 0
        s_cbranch_scc1 {l if block else d}
        s_sub_u32 s29, s29, 1
        s_sub_u32 s27, s56, 1
        s_add_u32 s54, s56, 4095
        s_add_u32 s55, s56, 8191
        s_add_u32 s56, s56, 12287""")
        st(a, 6)
        a(f"""buffer_load_dwordx4 {vr(SK,4)}, v1, s[16:19], s29 offen sc1
        buffer_load_dwordx4 {vr(SK+4,4)}, v1, s[16:19], s29 offen offset:1024 sc1""")
        for x in ldK(0, "s27") + ldV(0, "s27") + ldK(1, "s54") + ldV(1, "s54"): a(x)
        a(f"{d}:")
    def qreads(k):
        f = WF + 4 * (k & 7)
        a(f"ds_read_b64_tr_b16 {vr(f,2)}, v{VQ} offset:{k*1024}\nds_read_b64_tr_b16 {vr(f+2,2)}, v{VQ} offset:{k*1024+256}")
    for lo, hi, cnt in ((0, 16, C_Q1), (16, 28, C_Q2)):
        if lo:
            a(f"""s_mov_b32 s28, {WS_MB}
            v_mov_b32 v6, s{T}
            s_mov_b64 exec, 1
            s_waitcnt vmcnt(3)""")
            st(a, 4)
            a(f"""ds_add_rtn_u32 v4, v{VC}, v{V1} offset:{C_D}
            s_waitcnt lgkmcnt(0)
            v_cmp_eq_u32 vcc, 3, v4
            s_cbranch_vccz L_notlast
            s_mov_b64 exec, s[64:65]
            s_cbranch_execz L_notlast
            buffer_atomic_swap v6, v{VFS}, s[8:11], s28 offen sc1
            s_waitcnt vmcnt(1)
            s_branch L_published
            L_notlast:
            s_waitcnt vmcnt(0)
            L_published:""")
            lds_inc(a, VC, C_Q2, V1)
            try_loads()
        spin_lds(a, VC, cnt, 4, 4)
        for k in range(lo, lo + 6): qreads(k)
        for k in range(lo, hi):
            if k + 6 < hi: qreads(k + 6)
            a(f"s_waitcnt lgkmcnt({2*(min(hi-1,k+6)-k)})")
            a(f"{MF} {vr(A0,16)}, {vr(WF+4*(k&7),4)}, {vr(XF+4*k,4)}, {'0' if k==0 else vr(A0,16)}")
    st(a, 5)
    try_loads()
    for i in range(8): a(f"v_mov_b32 v{P+8+i}, 0")
    a(f"""s_lshl_b32 s26, s{W}, 11
    s_add_u32 s26, s26, {QX}
    v_add_u32 v5, s26, v1
    s_mov_b32 s62, {QSCALE:#x}
    s_mov_b32 s63, {QSCALE:#x}""")
    for i in range(8): a(f"v_pk_mul_f32 {vr(A0+2*i,2)}, {vr(A0+2*i,2)}, s[62:63]")
    for i in range(8): a(f"v_cvt_pk_bf16_f32 v{QO+i}, v{A0+2*i}, v{A0+2*i+1}")
    a(f"""s_mov_b32 exec_lo, 0
    v_mov_b32 v{QO+6}, 0
    v_mov_b32 v{QO+7}, 0
    s_mov_b32 exec_lo, -1
    ds_write_b128 v5, {vr(QO,4)}
    ds_write_b128 v5, {vr(QO+4,4)} offset:1024""")
    lds_inc(a, VC, C_X, V1)
    for i in range(0, 64, 2): a(f"v_pk_mul_f32 {vr(O+i,2)}, {vr(P+8,2)}, {vr(P+8,2)}")
    spin_lds(a, VC, C_X, 4, 4)
    for i in range(3):
        a(f"""s_add_u32 s26, s{W}, {i+1}
        s_and_b32 s26, s26, 3
        s_lshl_b32 s26, s26, 11
        s_add_u32 s26, s26, {QX}
        v_add_u32 v5, s26, v1
        ds_read_b128 {vr(Q+8*i,4)}, v5
        ds_read_b128 {vr(Q+8*i+4,4)}, v5 offset:1024""")
    try_loads(block=True)
    def QK(u, m):
        kt, qs = (u >> 2) & 3, u & 3
        s = S + 16 * (u & 1)
        c = "0" if m == 0 else vr(s, 16)
        return f"{MF} {vr(s,16)}, {vr(KV+16*kt+4*m,4)}, {vr(Q+8*qs+4*m,4)}, {c}"
    def PV(u, m):
        kt, qs = (u >> 2) & 3, u & 3
        return f"{MF} {vr(O+16*qs,16)}, {vr(KV+16*kt+8+4*m,4)}, {vr(P+8*(u&1)+4*m,4)}, {vr(O+16*qs,16)}"
    SS = [S, S + 16, KV + 32, KV + 48]
    def samp(i, m): return f"{MF} {vr(SS[i],16)}, {vr(SK+4*m,4)}, {vr(Q+8*i+4*m,4)}, {'0' if m == 0 else vr(SS[i],16)}"
    def mx(i):
        for x in max16_list(4, SS[i]): a(x)
        a(f"s_mov_b32 exec_lo, 0\nv_cvt_pk_bf16_f32 v{Q+8*i+6}, -v4, 0\ns_mov_b32 exec_lo, -1")
    a("s_waitcnt vmcnt(8) lgkmcnt(0)")
    for i in range(4): a(samp(i, 0)); a(samp(i, 1))
    mx(0)
    a("s_waitcnt vmcnt(4)")
    a(QK(0, 0)); a(QK(0, 1))
    mx(1); mx(2)
    for x in ldK(2, "s55") + ldV(2, "s55"): a(x)
    mx(3)
    for x in ldK(3, "s56"): a(x)
    for i in range(0, 8, 2): a(f"v_pk_mul_f32 {vr(KV+56+i,2)}, {vr(P+8,2)}, {vr(P+8,2)}")
    for i in range(3):
        a(f"""s_add_u32 s26, s{W}, {i+1}
        s_and_b32 s26, s26, 3
        s_mul_i32 s26, s26, 12288
        s_add_u32 s26, s26, {CB + i*4096}
        v_add_u32 v{4+i}, s26, v1""")
    a(f"s_mul_i32 s26, s{W}, 12288\ns_add_u32 s26, s26, {CB}\nv_add_u32 v2, s26, v1")
    lds_inc(a, VC, C_L, V1)
    st(a, 7)
    a("s_mov_b32 s57, 3")
    def substep(u, ex, last=False):
        s = S + 16 * (u & 1); p = P + 8 * (u & 1)
        e = lambda i: f"v_exp_f32 v{s+i}, v{s+i}"
        c = lambda i: f"v_cvt_pk_bf16_f32 v{p+i}, v{s+2*i}, v{s+2*i+1}"
        q0, q1 = ([], []) if last else ([QK(u+1, 0)], [QK(u+1, 1)])
        seq = q0 + ex[0] + [e(0), e(1), e(2), e(3), c(0), e(4),
               PV(u-1, 0)] + ex[1] + [e(5), c(1), e(6), e(7), c(2), e(8)] + q1 + ex[2] + [e(9), c(3), e(10), e(11), c(4), e(12),
               PV(u-1, 1)] + ex[3] + [e(13), c(5), e(14), e(15), c(6), c(7)]
        for x in seq: a(x)
    a(".p2align 6")
    a.label("L_loop")
    for u in range(16):
        kt, qs = u >> 2, u & 3
        ex = [[], [], [], []]
        if qs == 1:
            l = ldV((kt + 3) & 3, "s56")
            ex[0] = [l[0]]; ex[1] = [l[1]]; ex[2] = ["s_add_u32 s56, s56, 4096"]
        if u == 0: ex[0] = [f"ds_read_b32 v7, v{VF} offset:{C_R+4}"]
        if u == 1:
            ex[2] = ["s_waitcnt lgkmcnt(0)", "v_readfirstlane_b32 s56, v7"]
            ex[3] = ["s_sub_u32 s56, s56, 1"]
        if u == 2:
            ex[0] = ["s_cbranch_scc1 L_nextwait", "L_nextok:", f"v_add_u32 v{VF}, 4, v{VF}"]
        if qs == 2 and "nowait" not in EXP: ex[3] = ["s_waitcnt vmcnt(10)"]
        if qs == 0 and "nowait" not in EXP: ex[3] = ["s_waitcnt vmcnt(10)"]
        if qs == 3:
            l = ldK(kt, "s56")
            ex[0] = [l[0]]; ex[1] = [l[1]]
        if u == 12: ex[0] = [f"ds_read_b32 v7, v{VC} offset:{C_F}"]
        if u == 13: ex[3] = ["s_sub_u32 s57, s57, 1"]
        if "itst" in EXP and u in (0, 8):
            a("s_waitcnt lgkmcnt(0)")
            for i in range(1, 6): a(f"s_mov_b32 s{72+2*i}, s{72+2*i+2}")
            a("s_memtime s[84:85]")
        if "noload" in EXP: ex = [[y for y in x if "buffer_load" not in y] for x in ex]
        substep(u, ex)
        if u == 13: a("s_cbranch_scc1 L_tail")
    a("s_branch L_loop")
    a.label("L_tail")
    st(a, 8)
    a(f"""s_waitcnt lgkmcnt(0)
    v_cmp_gt_u32 vcc, 4, v7
    s_cbranch_vccnz L_wait_ffn
    L_ffn_free:""")
    wr = lambda i, k: f"ds_write_b128 v{4+i}, {vr(O+16*i+4*k,4)} offset:{k*1024}"
    substep(14, [[], [wr(0, 0)], [wr(0, 1)], [wr(0, 2)]])
    substep(15, [[wr(0, 3)], [wr(1, 0)], [wr(1, 1)], [wr(1, 2)]], last=True)
    a(PV(15, 0)); a(wr(1, 3)); a(PV(15, 1))
    for k in range(4): a(wr(2, k))
    lds_inc(a, VC, C_C, V1)
    srd(a, 20, 50, 2048 * 896)
    TT = S
    OO = O + 16 * OWN
    a(f"""s_lshl_b32 s28, s35, 4
    s_add_u32 s28, s28, s{H}
    s_lshr_b32 s56, s28, 2
    s_lshl_b32 s56, s56, 5
    s_and_b32 s26, s{H}, 3
    s_add_u32 s56, s56, s26
    s_lshl_b32 s56, s56, 2
    s_add_u32 s56, s56, {WS_OFL}
    s_lshl_b32 s52, s28, 11
    s_add_u32 s52, s52, {WS_O}
    s_mov_b32 s57, 0""")
    spin_lds(a, VC, C_C, 4, 7)
    for k in range(12): a(f"ds_read_b128 {vr(TT+4*k,4)}, v2 offset:{k*1024}")
    a(f"s_lshl_b32 s26, s{W}, 2\nv_add_u32 v7, s26, v{VC}\nds_write_b32 v7, v{V1} offset:{C_P}")
    for i in range(3):
        a(f"s_waitcnt lgkmcnt({9-4*i})")
        for k in (6, 7, 0, 1, 2, 3, 4, 5): a(f"v_pk_add_f32 {vr(OO+2*k,2)}, {vr(OO+2*k,2)}, {vr(TT+16*i+2*k,2)}")
    a.label("L_fin")
    a(f"""v_mov_b32 v5, v{OO+12}
    v_mov_b32 v4, v{OO+12}
    s_mov_b32 exec_lo, 0
    v_mov_b32 v{OO+12}, 0
    s_mov_b32 exec_lo, -1
    v_permlane32_swap_b32 v5, v4
    v_rcp_f32 v6, v4
    s_mov_b32 s28, 0x30800000
    s_mov_b32 s29, 0x4e800000
    v_cmp_nle_f32 s[54:55], s28, v4
    v_cmp_nge_f32 s[62:63], s29, v4
    v_pk_add_f32 v[4:5], {vr(OO,2)}, {vr(OO+2,2)}""")
    for k in range(2, 8): a(f"v_pk_add_f32 v[4:5], v[4:5], {vr(OO+2*k,2)}")
    a(f"""v_add_f32 v4, v4, v5
    s_movk_i32 s28, 0x207
    v_cmp_class_f32 vcc, v4, s28
    s_or_b64 s[54:55], s[54:55], s[62:63]""")
    for k in range(8): a(f"v_pk_mul_f32 {vr(OO+2*k,2)}, {vr(OO+2*k,2)}, v[6:7] op_sel_hi:[1,0]")
    for k in range(8): a(f"v_cvt_pk_bf16_f32 v{Q+k}, v{OO+2*k}, v{OO+2*k+1}")
    a(f"""v_mov_b32 v6, s{T}
    s_or_b64 s[54:55], s[54:55], vcc
    s_cbranch_scc1 L_bad
    L_good:
    buffer_store_dwordx4 {vr(Q,4)}, v1, s[8:11], s52 offen sc1
    buffer_store_dwordx4 {vr(Q+4,4)}, v1, s[8:11], s52 offen offset:1024 sc1
    s_mov_b64 exec, 1
    buffer_atomic_swap v6, v{VZ}, s[8:11], s56 offen sc1
    s_mov_b64 exec, -1""")
    st(a, 9)
    a(f"""s_mov_b32 s26, {WS_G}
    buffer_load_dwordx2 {vr(GR,2)}, v{VGO}, s[8:11], s26 offen sc1
    buffer_load_dwordx4 {vr(XR,4)}, v{VXO}, s[12:15], s59 offen
    buffer_load_dwordx4 {vr(XR+4,4)}, v{VXO}, s[12:15], s59 offen offset:32""")
    WOF = 104; B = 232; ACC = 8; U = 40
    OSB = [40, 72]
    a(f"""v_bfe_u32 v4, v3, 2, 2
    v_lshl_add_u32 v4, v{VH}, 2, v4
    v_mul_u32_u24 v4, 224, v4
    v_bfe_u32 v5, v3, 4, 1
    v_lshl_add_u32 v4, v5, 5, v4
    v_and_b32 v5, 1, v3
    v_lshl_add_u32 v4, v5, 4, v4
    v_bfe_u32 v5, v3, 1, 1
    v_lshl_add_u32 v4, v5, 3, v4
    s_mul_i32 s28, s{W}, 56
    v_add_u32 v24, s28, v4
    v_add_u32 v25, {8*28*224}, v24
    v_add_u32 v26, {CB}, v1
    v_lshlrev_b32 v27, 2, v{VT}
    v_add_u32 v27, {UPDI}, v27
    s_mul_i32 s28, s{W}, 112
    s_add_u32 s28, s28, {UPD}
    v_lshl_add_u32 v28, v{VH}, 5, s28
    v_mov_b32 v29, {CNT}
    v_mov_b32 v30, 0
    v_mov_b32 v31, 0
    s_waitcnt vmcnt(6)""")
    spin_lds(a, 29, C_W, 2, 6)
    for k in range(32):
        hd, m = k >> 1, k & 1
        o = (28 * (hd & 7) + 16 * m) * 224
        b = 24 + (hd >> 3)
        a(f"ds_read_b64_tr_b16 {vr(WOF+4*k,2)}, v{b} offset:{o}\nds_read_b64_tr_b16 {vr(WOF+4*k+2,2)}, v{b} offset:{o+8*224}")
    for k in range(8): a(f"v_pk_mul_f32 {vr(ACC+2*k,2)}, v[30:31], v[30:31]")
    a("s_waitcnt vmcnt(0)")
    for k in range(8):
        a(f"v_lshlrev_b32 v{B+2*k}, 16, v{XR+k}\nv_and_b32 v{B+2*k+1}, 0xffff0000, v{XR+k}")
    a(f"""v_cmp_ne_u32 vcc, s{T}, v{GR+1}
    s_cbranch_vccnz L_gate
    L_gate_ok:
    v_sub_f32 v32, 1.0, v{GR}
    v_cvt_pk_bf16_f32 v32, v32, v32
    v_lshlrev_b32 v32, 16, v32
    s_movk_i32 s57, 0x40f
    s_mov_b32 s60, {SPIN_LIMIT}""")
    st(a, 10)
    def rd(p):
        a(f"""s_ff1_i32_b32 s27, s26
        s_bitset0_b32 s57, s27
        s_mul_i32 s28, s27, 12288
        v_add_u32 v7, s28, v26""")
        for k in range(8): a(f"ds_read_b128 {vr(OSB[p]+4*k,4)}, v7 offset:{k*1024}")
    a(f"""L_idle:
    ds_read_b32 v6, v29 offset:{C_O}
    s_sub_u32 s60, s60, 1
    s_cbranch_scc1 L_exit
    s_waitcnt lgkmcnt(0)
    v_readfirstlane_b32 s61, v6
    s_and_b32 s26, s61, s57
    s_cbranch_scc0 L_idle
    s_bitcmp1_b32 s26, 10
    s_cbranch_scc1 L_blkU""")
    rd(0)
    a(f"ds_read_b32 v6, v29 offset:{C_O}")
    for p in range(2):
        a(f"""L_st{p}:
        s_mov_b32 s29, s27
        s_waitcnt lgkmcnt(0)
        v_readfirstlane_b32 s61, v6
        s_and_b32 s26, s61, s57
        s_and_b32 s26, s26, 15
        s_cbranch_scc0 L_mm{p}""")
        rd(1 - p)
        a(f"""ds_read_b32 v6, v29 offset:{C_O}
        L_mm{p}:
        s_cmp_eq_u32 s29, 1
        s_cbranch_scc1 L_m{p}1
        s_cmp_eq_u32 s29, 2
        s_cbranch_scc1 L_m{p}2
        s_cmp_eq_u32 s29, 3
        s_cbranch_scc1 L_m{p}3""")
        for g in range(4):
            a(f"L_m{p}{g}:")
            for k in range(8):
                a(f"{MF} {vr(ACC,16)}, {vr(WOF+32*g+4*k,4)}, {vr(OSB[p]+4*k,4)}, {vr(ACC,16)}")
            if g < 3: a(f"s_branch L_md{p}")
        a(f"""L_md{p}:
        s_cmp_lg_u32 s26, 0
        s_cbranch_scc1 L_st{1-p}""")
        if p == 0: a("s_branch L_next")
    a("L_next:\ns_cmp_lg_u32 s57, 0\ns_cbranch_scc1 L_idle")
    st(a, 11)
    a("s_nop 7")
    for m in range(2):
        for e in range(4*m, 4*m+4):
            a(f"v_pk_fma_f32 {vr(B+2*e,2)}, {vr(ACC+2*e,2)}, {vr(GR,2)}, {vr(B+2*e,2)} op_sel_hi:[1,0,1]")
        for e in range(4*m, 4*m+4): a(f"v_cvt_pk_bf16_f32 v{40+e}, v{B+2*e}, v{B+2*e+1}")
        if m == 0:
            a(f"buffer_store_dwordx4 v[40:43], v{VXO}, s[20:23], s59 offen{OUTAUX}")
        else:
            a(f"""s_mov_b32 exec_hi, 0
            buffer_store_dwordx4 v[44:47], v{VXO}, s[20:23], s59 offen offset:32{OUTAUX}
            s_mov_b64 exec, 0xffffffff
            s_not_b64 exec, exec
            buffer_store_dwordx2 v[44:45], v{VXO}, s[20:23], s59 offen offset:32{OUTAUX}""")
    st_end(a)
    diag_end(a)
    a("s_endpgm")
    a(f"""L_blkU:
    ds_read_b32 v6, v27
    s_bitset0_b32 s57, 10
    s_waitcnt lgkmcnt(0)
    v_cmp_le_i32 vcc, 0, v6
    s_cbranch_vccz L_noupd
    s_mov_b64 exec, vcc
    v_mul_u32_u24 v6, 448, v6
    v_add_u32 v28, v28, v6""")
    for k in range(4): a(f"ds_read_b128 {vr(U+4*k,4)}, v28 offset:{64*(k>>1)+16*(k&1)}")
    a("s_waitcnt lgkmcnt(0)")
    for k in range(8):
        a(f"""v_pk_add_f32 {vr(B+2*k,2)}, {vr(B+2*k,2)}, {vr(U+2*k,2)}
        v_cvt_pk_bf16_f32 v{B+2*k}, v{B+2*k}, v{B+2*k+1}
        v_and_b32 v{B+2*k+1}, 0xffff0000, v{B+2*k}
        v_lshlrev_b32 v{B+2*k}, 16, v{B+2*k}""")
    a("s_mov_b64 exec, -1\nL_noupd:")
    for k in range(8): a(f"v_pk_mul_f32 {vr(B+2*k,2)}, {vr(B+2*k,2)}, v[32:33] op_sel_hi:[1,0]")
    a("s_branch L_next")
    a("L_bad:\ns_cmp_eq_u32 s57, 0\ns_cbranch_scc1 L_slow")
    for k in range(8): a(f"v_min_u32 v{Q+k}, -2, v{Q+k}")
    a("s_branch L_good")
    a.label("L_wait_ffn")
    spin_lds(a, VC, C_F, 4, 7)
    a("s_branch L_ffn_free")
    a.label("L_nextwait")
    spin_lds(a, VF, C_R + 4, 1, 7)
    a("s_sub_u32 s56, s61, 1\ns_branch L_nextok")
    a(f"""L_gate:
    s_mov_b32 s26, {WS_G}
    s_mov_b32 s60, {SPIN_LIMIT}
    L_gate1:
    buffer_load_dwordx2 {vr(GR,2)}, v{VGO}, s[8:11], s26 offen sc1
    s_waitcnt vmcnt(0)
    v_cmp_ne_u32 vcc, s{T}, v{GR+1}
    s_cbranch_vccz L_gate_ok
    s_sub_u32 s60, s60, 1
    s_cbranch_scc0 L_gate1
    s_endpgm""")
    a.label("L_slow")
    a(f"""s_mov_b32 s57, 1
    s_add_u32 s55, s53, {64*4096}
    s_mov_b32 s54, s53
    s_mov_b32 exec_lo, 0
    v_mov_b32 v{QO+6}, 0
    v_mov_b32 v{QO+7}, 0
    s_mov_b32 exec_lo, -1
    v_mov_b32 v4, 0xff800000
    L_slow1:
    buffer_load_dwordx4 {vr(KV,4)}, v1, s[8:11], s54 offen sc1
    buffer_load_dwordx4 {vr(KV+4,4)}, v1, s[8:11], s54 offen offset:1024 sc1
    s_waitcnt vmcnt(0)
    {MF} {vr(S,16)}, {vr(KV,4)}, {vr(QO,4)}, 0
    {MF} {vr(S,16)}, {vr(KV+4,4)}, {vr(QO+4,4)}, {vr(S,16)}""")
    for x in max16_list(4, S, init=True): a(x)
    a("""s_add_u32 s54, s54, 4096
    s_cmp_lt_u32 s54, s55
    s_cbranch_scc1 L_slow1
    v_mov_b32 v5, v4
    v_permlane32_swap_b32 v4, v5
    v_max_f32 v4, v4, v5""")
    split_neg_max(a, 4, 5, 6, QO + 6, QO + 7)
    for i in range(16): a(f"v_mov_b32 v{OO+i}, 0")
    a(f"""s_mov_b32 s54, s53
    L_slow2:
    buffer_load_dwordx4 {vr(KV,4)}, v1, s[8:11], s54 offen sc1
    buffer_load_dwordx4 {vr(KV+4,4)}, v1, s[8:11], s54 offen offset:1024 sc1
    buffer_load_dwordx4 {vr(KV+8,4)}, v1, s[8:11], s54 offen offset:2048 sc1
    buffer_load_dwordx4 {vr(KV+12,4)}, v1, s[8:11], s54 offen offset:3072 sc1
    s_waitcnt vmcnt(0)
    {MF} {vr(S,16)}, {vr(KV,4)}, {vr(QO,4)}, 0
    {MF} {vr(S,16)}, {vr(KV+4,4)}, {vr(QO+4,4)}, {vr(S,16)}""")
    for i in range(16): a(f"v_exp_f32 v{S+i}, v{S+i}")
    for i in range(8): a(f"v_cvt_pk_bf16_f32 v{P+i}, v{S+2*i}, v{S+2*i+1}")
    a(f"""{MF} {vr(OO,16)}, {vr(KV+8,4)}, {vr(P,4)}, {vr(OO,16)}
    {MF} {vr(OO,16)}, {vr(KV+12,4)}, {vr(P+4,4)}, {vr(OO,16)}
    s_nop 7
    s_nop 7
    s_add_u32 s54, s54, 4096
    s_cmp_lt_u32 s54, s55
    s_cbranch_scc1 L_slow2
    s_branch L_fin""")

def service_wave(a):
    a.label("L_service")
    a(f"""v_mov_b32 v14, {CNT}
    v_mov_b32 v15, 1
    v_mov_b32 v9, 0""")
    srd(a, 8, 36, 1 << 28)
    tag(a)
    a("s_waitcnt vmcnt(0)")
    lds_inc(a, 14, C_Q1, 15)
    a(f"""v_and_b32 v32, 31, v3
    v_lshrrev_b32 v33, 5, v3
    v_lshlrev_b32 v219, 3, v1
    v_lshrrev_b32 v220, 2, v1
    v_and_b32 v4, 7, v3
    v_lshlrev_b32 v217, 3, v4
    s_lshr_b32 s58, s{H}, 2
    s_lshl2_add_u32 s58, s{J}, s58
    s_cmp_ge_u32 s{L}, 2
    s_cbranch_scc1 L_svcB""")
    def sel_load(lbl):
        a(f"""s_mov_b32 s26, {WS_SEL}
        s_mov_b32 s60, {SPIN_LIMIT}
        {lbl}:
        buffer_load_dwordx2 v[20:21], v217, s[8:11], s26 offen sc1
        s_waitcnt vmcnt(0)
        v_cmp_ne_u32 vcc, s{T}, v21
        s_cbranch_vccz {lbl}_ok
        s_sleep 4
        s_sub_u32 s60, s60, 1
        s_cbranch_scc0 {lbl}
        s_endpgm
        {lbl}_ok:""")
    a(f"""v_mov_b32 v6, {KEYS}
    s_lshl_b32 s28, s{L}, 8
    v_add3_u32 v7, v220, v6, s28
    s_lshl_b32 s27, s{J}, 6
    s_add_u32 s27, s27, {WS_R}
    s_cmp_eq_u32 s{RL}, 14
    s_cbranch_scc1 L_rank
    s_cmp_lg_u32 s2, {SELECTOR}
    s_cbranch_scc1 L_svcA
    s_lshl_b32 s26, s{L}, 9
    s_add_u32 s26, s26, {WS_R}
    s_mov_b32 s27, {WS_SEL}
    v_lshlrev_b32 v4, 3, v3
    v_mov_b32 v5, 2
    s_mov_b32 s60, {SPIN_LIMIT}
    L_keys:
    v_mov_b32 v20, 0
    v_mov_b32 v21, 0
    buffer_atomic_or_x2 v[20:21], v4, s[8:11], s26 offen sc0 sc1
    s_sub_u32 s60, s60, 1
    s_cbranch_scc1 L_exit
    s_waitcnt vmcnt(0)
    v_cmp_ne_u32 vcc, s{T}, v21
    s_cbranch_vccnz L_keys
    ds_write_b32 v7, v20""")
    lds_inc(a, 14, C_K, 5)
    a.label("L_rank")
    spin_lds(a, 14, C_K, 4, 8)
    st(a, 10)
    if STAMP: a("s_waitcnt lgkmcnt(0)")
    a(f"ds_read_b32 v20, v7\nv_mov_b32 v22, 0\nv_mov_b32 v21, s{T}\ns_mov_b32 s57, 0\nL_rk:")
    for k in range(8): a(f"ds_read_b128 {vr(40+4*k,4)}, v6 offset:{16*k}")
    a("v_add_u32 v6, 128, v6")
    CS = ["s[52:53]", "s[54:55]", "s[62:63]", "s[28:29]"]
    for k in range(8):
        a(f"s_waitcnt lgkmcnt({7-k})")
        for e in range(4): a(f"v_cmp_gt_u32 {CS[e]}, v{40+4*k+e}, v20")
        for e in range(4): a(f"v_addc_co_u32 v22, vcc, 0, v22, {CS[e]}")
    a(f"""s_add_u32 s57, s57, 1
    s_cmp_lt_u32 s57, 4
    s_cbranch_scc1 L_rk
    v_cmp_gt_u32 vcc, 8, v22
    v_lshlrev_b32 v22, 3, v22
    s_mov_b64 exec, vcc
    s_cbranch_execz L_rank_done
    buffer_atomic_swap_x2 v[20:21], v22, s[8:11], s27 offen sc1
    L_rank_done:
    s_mov_b64 exec, -1""")
    st(a, 11)
    a.label("L_svcA")
    GI = CB; DI = QX; HB = 101376
    FT, KS = 56, 59
    a(f"""s_cmp_ge_u32 s2, 196
    s_cbranch_scc1 L_nofn
    s_mul_i32 s{FT}, s2, 9363
    s_lshr_b32 s{FT}, s{FT}, 16
    s_mul_i32 s26, s{FT}, 7
    s_sub_u32 s{KS}, s2, s26
    v_lshrrev_b32 v4, 3, v3
    v_and_b32 v5, 2, v4
    v_lshlrev_b32 v5, 1, v5
    v_and_b32 v6, 7, v3
    v_xor_b32 v5, v5, v6
    v_mul_u32_u24 v6, 3584, v4
    v_lshl_add_u32 v34, v5, 4, v6
    v_add_u32 v35, {8*3584-1024}, v34
    v_add_u32 v36, {2*(8*3584-1024)}, v34
    v_add_u32 v37, {3*(8*3584-1024)}, v34
    v_lshrrev_b32 v6, 2, v3
    v_mul_u32_u24 v6, 896, v6
    v_and_b32 v5, 3, v3
    v_lshl_add_u32 v200, v5, 4, v6
    v_add_u32 v201, {16*896-1024}, v200
    v_add_u32 v202, {2*(16*896-1024)}, v200
    v_add_u32 v203, {3*(16*896-1024)}, v200
    v_bfe_u32 v4, v3, 2, 2
    v_lshl_add_u32 v5, v33, 3, v4
    v_lshlrev_b32 v5, 7, v5
    v_lshrrev_b32 v4, 1, v4
    v_lshl_add_u32 v5, v4, 6, v5
    v_bfe_u32 v4, v3, 4, 1
    v_lshl_add_u32 v5, v4, 5, v5
    v_and_b32 v4, 3, v3
    v_lshl_add_u32 v5, v4, 3, v5
    s_lshl_b32 s54, s{L}, 13
    s_add_u32 s54, s54, {GI}
    v_add_u32 v38, s54, v5
    v_xor_b32 v39, 64, v38
    v_lshrrev_b32 v6, 7, v5
    v_and_b32 v5, 63, v5
    v_lshl_add_u32 v5, v6, 6, v5
    s_lshl_b32 s26, s{L}, 12
    s_add_u32 s26, s26, {DI}
    v_add_u32 v210, s26, v5
    ; partial-sum store offset 4hh*256 + col*4 ; h addresses ; y offsets
    v_lshlrev_b32 v212, 10, v33
    v_lshl_add_u32 v212, v32, 2, v212
    s_lshl_b32 s26, s{L}, 9
    s_add_u32 s26, s26, {HB}
    v_lshl_add_u32 v214, v3, 3, s26
    v_lshlrev_b32 v4, 4, v217
    v_lshl_add_u32 v4, v33, 4, v4
    v_add_u32 v218, {HB}, v4
    v_mul_u32_u24 v215, {4*1792}, v33
    v_lshl_add_u32 v215, v32, 2, v215
    v_add_u32 v216, {2*1792}, v215""")
    srd(a, 16, 42, 448 * 3584)
    a(f"""s_cmp_eq_u32 s{L}, 1
    s_cselect_b64 s[16:17], s[44:45], s[42:43]
    s_mul_i32 s52, s{KS}, {64*3584}
    s_lshl_b32 s28, s{FT}, 7
    s_add_u32 s52, s52, s28""")
    spin_lds(a, 14, C_L, 4, 8, sleep=2)
    st(a, 3)
    NR = 2 if "fine" in EXP else 4
    XS_ = 40; FW = 56; AC = 104
    a("s_mov_b32 m0, s54\ns_nop 0")
    for k in range(8):
        if k == 4: a(f"s_add_u32 s52, s52, {32*3584}\ns_add_u32 m0, s54, 4096")
        if k == 8 - NR: sel_load("L_sel1")
        elif k and k % NR == 0: a("s_waitcnt vmcnt(0)")
        a(f"buffer_load_dwordx4 v{34+(k&3)}, s[16:19], s52 offen offset:{1024*(k&3)} lds")
    a(f"""v_and_b32 v4, 0xffff, v20
    v_sub_u32 v4, 0xffff, v4
    v_mul_u32_u24 v4, 896, v4
    v_lshl_add_u32 v4, v33, 4, v4
    s_lshl_b32 s26, s{KS}, 7
    s_mov_b32 exec_lo, 0xff
    s_mov_b32 exec_hi, 0xff""")
    for k in range(4):
        a(f"buffer_load_dwordx4 {vr(XS_+4*k,4)}, v4, s[12:15], s26 offen offset:{32*k}")
    a("s_mov_b64 exec, -1\ns_waitcnt vmcnt(4)")
    for k in range(4):
        for n in range(2):
            a(f"ds_read_b64_tr_b16 {vr(FW+8*k+4*n,2)}, v{38+n} offset:{k*2048}\nds_read_b64_tr_b16 {vr(FW+8*k+4*n+2,2)}, v{38+n} offset:{k*2048+512}")
    lds_inc(a, 14, C_F, 15)
    a(f"""s_mov_b64 s[16:17], s[46:47]
    s_mul_i32 s28, s{FT}, {64*896}
    s_add_u32 s28, s28, s26
    s_lshl_b32 s29, s{L}, 6
    s_add_u32 s28, s28, s29
    s_lshl_b32 s29, s{L}, 12
    s_add_u32 m0, s29, {DI}
    s_lshl1_add_u32 s26, s2, s{L}
    s_lshl_b32 s26, s26, 11
    s_add_u32 s26, s26, {WS_GP}
    s_waitcnt lgkmcnt(0)""")
    st(a, 4)
    for k in range(4):
        a(f"s_waitcnt vmcnt({3-k})")
        for n in range(2):
            a(f"{MF} {vr(AC+16*n,16)}, {vr(XS_+4*k,4)}, {vr(FW+8*k+4*n,4)}, {'0' if k==0 else vr(AC+16*n,16)}")
    for n in range(2):
        for k in range(4):
            a(f"buffer_store_dword v{AC+16*n+k}, v212, s[8:11], s26 offen offset:{256*k+128*n} sc1")
    for k in range(4): a(f"buffer_load_dwordx4 v{200+k}, s[16:19], s28 offen offset:{1024*k} lds")
    a(f"""s_lshl1_add_u32 s26, s{KS}, s{L}
    s_lshl_b32 s26, s26, 2
    s_mul_i32 s28, s{FT}, {7*128}
    s_add_u32 s26, s26, s28
    s_add_u32 s26, s26, {WS_F1}
    s_waitcnt vmcnt(4)""")
    signal(a, 5, 219, "s26", "0x7f")
    st(a, 5)
    a(f"s_lshl_b32 s26, s2, 7\ns_add_u32 s26, s26, {WS_F1}")
    poll_atomic(a, 5, 220, "s26", "0x3fff", 0)
    st(a, 6)
    GP = 40
    a(f"s_mul_i32 s26, s{FT}, {7*4096}\ns_lshl_b32 s28, s{L}, 10\ns_add_u32 s26, s26, s28\ns_add_u32 s26, s26, {WS_GP}")
    for k in range(7):
        a(f"""buffer_load_dwordx4 {vr(GP+8*k,4)}, v1, s[8:11], s26 offen sc1
        buffer_load_dwordx4 {vr(GP+8*k+4,4)}, v1, s[8:11], s26 offen offset:2048 sc1""")
        if k < 6: a("s_add_u32 s26, s26, 4096")
    DW = 120
    for k in range(4):
        a(f"ds_read_b64_tr_b16 {vr(DW+4*k,2)}, v210 offset:{k*1024}\nds_read_b64_tr_b16 {vr(DW+4*k+2,2)}, v210 offset:{k*1024+256}")
    a(f"s_mov_b32 s28, {NLOG2E:#x}\ns_mov_b32 s29, {NLOG2E:#x}\ns_waitcnt vmcnt(0)")
    for k in range(1, 7):
        for e in range(4):
            a(f"v_pk_add_f32 {vr(GP+2*e,2)}, {vr(GP+2*e,2)}, {vr(GP+8*k+2*e,2)}")
    for e in range(2):
        a(f"""v_cvt_pk_bf16_f32 v22, v{GP+2*e}, v{GP+2*e+1}
        v_cvt_pk_bf16_f32 v24, v{GP+4+2*e}, v{GP+5+2*e}
        v_and_b32 v23, 0xffff0000, v22
        v_lshlrev_b32 v22, 16, v22
        v_pk_mul_f32 v[26:27], v[22:23], s[28:29]
        v_and_b32 v25, 0xffff0000, v24
        v_exp_f32 v26, v26
        v_exp_f32 v27, v27
        v_lshlrev_b32 v24, 16, v24
        v_pk_add_f32 v[26:27], v[26:27], 1.0 op_sel_hi:[1,0]
        v_rcp_f32 v26, v26
        v_rcp_f32 v27, v27
        s_nop 0
        v_pk_mul_f32 v[22:23], v[22:23], v[26:27]
        v_cvt_pk_bf16_f32 v22, v22, v23
        v_and_b32 v23, 0xffff0000, v22
        v_lshlrev_b32 v22, 16, v22
        v_pk_mul_f32 v[22:23], v[22:23], v[24:25]
        v_cvt_pk_bf16_f32 v{28+e}, v22, v23""")
    a("ds_write_b64 v214, v[28:29]")
    lds_inc(a, 14, C_S, 15)
    spin_lds(a, 14, C_S, 2, 8)
    for k in range(4): a(f"ds_read_b128 {vr(GP+4*k,4)}, v218 offset:{32*k}")
    for k in range(4):
        a(f"s_waitcnt lgkmcnt({3-k})\n{MF} {vr(AC,16)}, {vr(GP+4*k,4)}, {vr(DW+4*k,4)}, {'0' if k==0 else vr(AC,16)}")
    a(f"""s_mul_i32 s26, s{FT}, 14336
    s_lshl1_add_u32 s28, s{KS}, s{L}
    s_lshl_b32 s29, s28, 7
    s_add_u32 s26, s26, s29
    s_add_u32 s26, s26, {WS_YP}
    s_lshl2_add_u32 s28, s{FT}, s29
    s_add_u32 s28, s28, {WS_YFL}
    buffer_store_dword v{AC}, v215, s[8:11], s26 offen sc1
    buffer_store_dword v{AC+1}, v215, s[8:11], s26 offen offset:1792 sc1
    buffer_store_dword v{AC+2}, v216, s[8:11], s26 offen sc1
    buffer_store_dword v{AC+3}, v216, s[8:11], s26 offen offset:1792 sc1
    s_waitcnt vmcnt(0)""")
    signal(a, 5, 9, "s28", 1)
    st(a, 7)
    a("s_branch L_updA")
    a.label("L_nofn")
    lds_inc(a, 14, C_F, 15)
    spin_lds(a, 14, C_F, 4, 8, sleep=8)
    sel_load("L_sel2")
    a(f"""s_lshl2_add_u32 s26, s2, s{L}
    s_cmp_lg_u32 s26, {254*4}
    s_cbranch_scc1 L_updA""")
    a(f"s_mov_b32 s60, {SPIN_LIMIT}\nL_ep:")
    for k in range(4):
        a(f"s_mov_b32 s26, {WS_FL+8192*k}\nbuffer_load_dword v{24+k}, v219, s[8:11], s26 offen sc1")
    a(f"""s_sub_u32 s60, s60, 1
    s_cbranch_scc1 L_exit
    s_waitcnt vmcnt(0)
    v_xor_b32 v24, s{T}, v24
    v_bitop3_b32 v24, v24, v25, s{T} bitop3:0xf6
    v_bitop3_b32 v24, v24, v26, s{T} bitop3:0xf6
    v_bitop3_b32 v24, v24, v27, s{T} bitop3:0xf6
    v_cmp_ne_u32 vcc, 0, v24
    s_cbranch_vccnz L_ep
    s_mov_b32 s26, {WS_EP}""")
    flag_store(a, 5, 9, "s26")
    Y = 40
    a(f"""L_updA:
    s_and_b32 s53, s{H}, 3
    s_mul_i32 s53, s53, 224
    s_lshl_b32 s57, s{L}, 2
    s_lshr_b32 s26, s53, 6
    s_lshl_b32 s26, s26, 7
    s_add_u32 s62, s26, {WS_YFL}
    L_upd:
    v_readlane_b32 s52, v20, s57
    s_and_b32 s54, s52, 0xffff
    s_sub_u32 s54, 0xffff, s54
    s_lshr_b32 s26, s54, 5
    s_cmp_lg_u32 s26, s58
    s_cbranch_scc1 L_updn
    s_mov_b32 s60, {SPIN_LIMIT}
    s_mov_b32 exec_lo, 0x0fffffff
    s_mov_b32 exec_hi, 0x0fffffff
    L_yfl:
    v_mov_b32 v24, 0
    v_mov_b32 v25, 0
    buffer_atomic_or v24, v220, s[8:11], s62 offen sc0 sc1
    buffer_atomic_or v25, v220, s[8:11], s62 offen offset:256 sc0 sc1
    s_waitcnt vmcnt(0)
    v_xor_b32 v24, s{T}, v24
    v_bitop3_b32 v24, v24, v25, s{T} bitop3:0xf6
    v_cmp_ne_u32 vcc, 0, v24
    s_cbranch_vccz L_yok
    s_sub_u32 s60, s60, 1
    s_cbranch_scc0 L_yfl
    s_endpgm
    L_yok:
    v_mul_u32_u24 v4, {14*14336}, v33
    v_lshl_add_u32 v4, v32, 4, v4
    s_mul_i32 s26, s57, 1792
    s_lshl1_add_u32 s26, s53, s26
    s_add_u32 s26, s26, {WS_YP}""")
    for i in range(14):
        a(f"buffer_load_dwordx4 {vr(Y+4*i,4)}, v4, s[8:11], s26 offen sc1\ns_add_u32 s26, s26, 14336")
    a(f"""s_mov_b64 exec, -1
    s_lshr_b32 s26, s52, 16
    s_not_b32 s55, s26
    s_and_b32 s29, s26, 0x7fff
    s_bitcmp1_b32 s26, 15
    s_cselect_b32 s26, s29, s55
    s_lshl_b32 s26, s26, 16
    v_mov_b32 v6, {NLOG2E:#x}
    v_mul_f32 v6, s26, v6
    v_exp_f32 v6, v6
    v_add_f32 v6, 1.0, v6
    v_rcp_f32 v6, v6
    v_cvt_pk_bf16_f32 v6, v6, v6
    v_lshlrev_b32 v6, 16, v6
    s_mul_i32 s26, s57, 448
    s_add_u32 s26, s26, {UPD}
    v_lshl_add_u32 v7, v32, 4, s26
    s_waitcnt vmcnt(0)""")
    for i in range(1, 14):
        a(f"v_pk_add_f32 {vr(Y,2)}, {vr(Y,2)}, {vr(Y+4*i,2)}\nv_pk_add_f32 {vr(Y+2,2)}, {vr(Y+2,2)}, {vr(Y+4*i+2,2)}")
    for k in range(4): a(f"v_mov_b32 v{Y+4+k}, v{Y+k}")
    for k in range(4): a(f"v_permlane32_swap_b32 v{Y+k}, v{Y+4+k}")
    for k in range(4): a(f"v_add_f32 v{Y+k}, v{Y+k}, v{Y+4+k}")
    for k in range(0, 4, 2):
        a(f"""v_cvt_pk_bf16_f32 v{Y+k}, v{Y+k}, v{Y+k+1}
        v_and_b32 v{Y+k+1}, 0xffff0000, v{Y+k}
        v_lshlrev_b32 v{Y+k}, 16, v{Y+k}
        v_mul_f32 v{Y+k}, v{Y+k}, v6
        v_mul_f32 v{Y+k+1}, v{Y+k+1}, v6
        v_cvt_pk_bf16_f32 v{Y+k}, v{Y+k}, v{Y+k+1}
        v_and_b32 v{Y+k+1}, 0xffff0000, v{Y+k}
        v_lshlrev_b32 v{Y+k}, 16, v{Y+k}""")
    a(f"""s_and_b32 s54, s54, 31
    v_mov_b32 v5, s57
    s_lshl_b32 s26, s54, 2
    s_add_u32 s26, s26, {UPDI}
    v_mov_b32 v4, s26
    s_mov_b64 exec, 0x0fffffff
    ds_write_b128 v7, {vr(Y,4)}
    s_mov_b64 exec, 1
    ds_write_b32 v4, v5
    s_mov_b64 exec, -1
    L_updn:
    s_add_u32 s57, s57, 1
    s_and_b32 s26, s57, 3
    s_cbranch_scc1 L_upd
    v_mov_b32 v6, 512""")
    lds_inc(a, 14, C_O, 6)
    st(a, 9)
    a("s_branch L_ofetch")
    a.label("L_svcB")
    WOPF = "s_mov_b32 exec_hi, 0x1ffff\nbuffer_load_dword v6, v219, s[16:19], s28 offen\ns_mov_b64 exec, -1" if "wopfL" in EXP else ""
    for e in range(7):
        a(f"""v_add_u32 v4, {64*e}, v3
        v_mul_u32_u24 v5, 4682, v4
        v_lshrrev_b32 v5, 16, v5
        v_mul_u32_u24 v5, {896-224}, v5
        v_lshl_add_u32 v{200+e}, v4, 4, v5""")
    a(f"""v_mov_b32 v16, 0
    v_mov_b32 v17, 0
    v_mov_b32 v18, 0
    v_mov_b32 v19, 0
    v_add_u32 v209, {448*224}, v1
    s_cmp_eq_u32 s{L}, 2
    s_cbranch_scc1 L_svcB2
    v_lshrrev_b32 v4, 4, v3
    v_and_b32 v5, 15, v3
    v_lshlrev_b32 v5, 2, v5
    v_lshl_add_u32 v221, v4, 9, v5
    v_lshl_add_u32 v222, v4, 5, v14
    v_and_b32 v223, 48, v3
    v_and_b32 v5, 15, v3
    v_add_u32 v6, v5, v4
    v_lshl_add_u32 v224, v6, 14, 1
    v_bfm_b32 v225, v5, 0
    s_mul_i32 s26, s{H}, 28
    s_add_u32 s28, s26, 27
    s_xor_b32 s26, s26, s28
    s_mov_b32 s62, 0x55555555
    s_cmp_ge_u32 s26, 64
    s_cselect_b32 s62, -1, s62
    s_mov_b32 s63, s62
    s_lshr_b32 s28, s{J}, 2
    s_lshl4_add_u32 s26, s{H}, s28
    s_lshl_b32 s26, s26, 7
    s_add_u32 s26, s26, {WS_MB}""")
    spin_lds(a, 14, C_D, PCD, 8, sleep=1)
    at = lambda r: f"v_mov_b32 v{r}, 0\nbuffer_atomic_or v{r}, v221, s[8:11], s26 offen sc0 sc1"
    a(f"""s_mov_b32 s60, {SPIN_LIMIT}
    s_mov_b32 s52, 0x11111111
    s_mov_b32 s53, 0x11111111
    s_mov_b64 exec, s[62:63]""")
    for i in range(PD - 1): a(at(28 + i) + f"\ns_sleep {PG}")
    a("L_kv:")
    for i in range(PD):
        a(at(28 + (i + PD - 1) % PD))
        a(f"""s_waitcnt vmcnt({PD-1})
        v_cmp_ne_u32 vcc, s{T}, v{28+i}
        s_lshr_b64 s[28:29], vcc, 1
        s_or_b64 s[28:29], s[28:29], vcc
        s_lshr_b64 s[54:55], s[28:29], 2
        s_or_b64 s[28:29], s[28:29], s[54:55]
        s_andn2_b64 s[28:29], s[52:53], s[28:29]
        s_cbranch_scc0 L_kvn{i}
        s_andn2_b64 s[52:53], s[52:53], s[28:29]
        v_lshrrev_b64 v[4:5], v223, s[28:29]
        v_and_b32 v5, v225, v4
        v_bcnt_u32_b32 v5, v5, 0
        v_lshl_add_u32 v5, v5, 2, v222
        s_mov_b64 exec, s[28:29]
        ds_write_b32 v5, v224 offset:{C_R}
        s_mov_b64 exec, s[62:63]
        v_and_b32 v4, 0xffff, v4
        v_bcnt_u32_b32 v4, v4, 0
        v_lshl_add_u32 v222, v4, 2, v222
        s_cmp_eq_u64 s[52:53], 0
        s_cbranch_scc1 L_kvdone
        L_kvn{i}:""")
    a(f"""s_sub_u32 s60, s60, 1
    s_cbranch_scc0 L_kv
    s_endpgm
    L_kvdone:
    s_mov_b64 exec, -1
    L_svcB2:""")
    srd(a, 16, 38, 448 * 896)
    a(f"""s_and_b32 s53, s{H}, 3
    s_mul_i32 s53, s53, 224
    s_and_b32 s27, s{L}, 1
    s_mul_i32 s55, s27, {7*1024}
    s_mul_i32 s57, s27, {32*896}
    s_add_u32 s57, s57, s53
    s_lshl1_add_u32 s28, s25, s27
    s_mul_i32 s28, s28, {49*128}
    v_mov_b32 v24, -1
    v_mov_b32 v25, -1
    v_mov_b32 v26, -1
    v_mov_b32 v27, -1
    s_lshl_b32 s59, s{J}, 6
    s_add_u32 s59, s59, s{H}
    s_lshl1_add_u32 s59, s59, s27
    s_lshl_b32 s59, s59, 10
    s_add_u32 s59, s59, {WS_O}""")
    spin_lds(a, 14, C_L, 4, 8, sleep=2)
    st(a, 3)
    a(f"""ds_write_b128 v209, v[16:19]
    {WOPF}
    s_cmp_lg_u32 s{L}, 2
    s_cbranch_scc1 L_nofl
    s_lshl_b32 s26, s2, 7
    s_add_u32 s26, s26, {WS_FL}""")
    flag_store(a, 5, 9, "s26")
    a("L_nofl:\ns_waitcnt vmcnt(0)")
    if "wogate" in EXP: spin_lds(a, 14, C_F, 2, 8, sleep=4)
    a("L_wo:")
    for e in range(7):
        a(f"""s_add_u32 m0, s55, {e*1024}
        s_waitcnt vmcnt({WOP})
        buffer_load_dwordx4 v{200+e}, s[16:19], s57 offen lds""")
    a(f"""s_cmp_ge_u32 s55, {56*1024}
    s_cbranch_scc1 L_noclr
    buffer_store_dwordx4 v[24:27], v1, s[8:11], s59 offen sc1
    s_add_u32 s59, s59, {16*2048}
    L_noclr:
    s_sub_u32 s26, s55, {56*1024}
    s_cmp_ge_u32 s26, {14*1024}
    s_cbranch_scc1 L_noinc""")
    lds_inc(a, 14, C_F, 15)
    a(f"""L_noinc:
    s_add_u32 s55, s55, {14*1024}
    s_add_u32 s57, s57, {64*896}
    s_cmp_lt_u32 s55, {98*1024}
    s_cbranch_scc1 L_wo""")
    a("s_waitcnt vmcnt(0)")
    lds_inc(a, 14, C_W, 15)
    st(a, 8)
    a.label("L_ofetch")
    a(f"""s_lshl2_add_u32 s28, s58, s{L}
    s_lshl_b32 s29, s28, 13
    s_add_u32 s29, s29, {WS_O}
    s_add_u32 s27, s29, 4096
    s_lshl_b32 s28, s28, 7
    s_add_u32 s28, s28, {WS_OFL}
    s_mul_i32 s26, s{L}, 12288
    s_add_u32 s26, s26, {CB}
    v_add_u32 v7, s26, v1
    s_lshl_b32 s26, s{L}, 2
    v_add_u32 v6, s26, v14
    s_lshl_b32 s26, 1, s{L}
    v_mov_b32 v5, s26""")
    spin_lds(a, 6, C_P, 1, 8, sleep=4)
    poll_pipe(a, 28, 220, "s28", 15, D=PD, gap=PG)
    a("L_of:\nv_mov_b32 v4, 0")
    for k in range(8):
        a(f"buffer_load_dwordx4 {vr(40+4*k,4)}, v1, s[8:11], {'s29' if k < 4 else 's27'} offen offset:{(k&3)*1024} sc1")
    a("s_sub_u32 s60, s60, 1\ns_cbranch_scc1 L_exit")
    for k in range(8):
        a(f"""s_waitcnt vmcnt({7-k})
        ds_write_b128 v7, {vr(40+4*k,4)} offset:{k*1024}
        v_max3_u32 v4, v4, v{40+4*k}, v{41+4*k}
        v_max3_u32 v4, v4, v{42+4*k}, v{43+4*k}""")
    a("v_cmp_eq_u32 vcc, -1, v4\ns_cbranch_vccnz L_of")
    lds_inc(a, 14, C_O, 5)
    a("s_waitcnt vmcnt(0) lgkmcnt(0)")
    st_end(a)
    a("L_exit:\nL_code_end:\ns_endpgm")

def main(out):
    hdr = open("cdna_kernels/" + NAME + ".s.ref").read().split("; Override")[0]
    rep = []
    a = Asm()
    prologue_and_loader(a); main_wave(a); service_wave(a)
    t = hdr
    t += f"; @launch grid=(256,1,1) block=(512,1,1) lds={LDS_BYTES}\n"
    t += '.amdgcn_target "amdgcn-amd-amdhsa--gfx950"\n'
    t += kernel_text(NAME + "_kernel", a.l, 256, report=rep)
    open(out, "w").write(t)
    if "-v" in sys.argv: print("\n".join(rep))

if __name__ == "__main__":
    main(sys.argv[1])
```

```python
import sys, math, struct
from asmlib import *

NAME = "gated_mix__softmax_full_mha__moe_arch_mod__prompt"
STAMP = "-s" in sys.argv
EXP = set(x[2:] for x in sys.argv if x.startswith("-x"))
WS_KV = 0
WS_O = 4 << 20
WS_R = 6 << 20
WS_G = WS_R + 16384
WS_SEL = WS_R + 32768
WS_EP = WS_R + 40960
WS_FL = WS_R + 65536
WS_MB = WS_FL + 32768
WS_OFL = WS_MB + 32768
WS_YFL = WS_OFL + 32768
WS_F1 = WS_YFL + 4096
WS_YP = 7 << 20
WS_GP = 8 << 20
WS_ST = 16 << 20
XS = 0; WT = 65536; WQ = 122880; QX = 151552; UPD = 159744
WO = 0; CB = 102400
UPDI = UPD + 3584
KEYS = UPD
SELECTOR = 223
CNT = 163840 - 192
LDS_BYTES = 163840
C_Q1, C_Q2, C_X, C_L, C_S, C_D, C_C, C_O, C_W, C_F, C_K, C_P, C_R = 0, 4, 8, 12, 16, 20, 24, 28, 32, 36, 40, 48, 64

def f32bits(x): return struct.unpack("<I", struct.pack("<f", x))[0]
QSCALE = f32bits(28 ** -0.5 * math.log2(math.e))
NLOG2E = f32bits(-math.log2(math.e))
MF = "v_mfma_f32_32x32x16_bf16"
ROLE = [0, 1, 2, 3, 14, 4, 5, 6, 7, 8, 9, 15, 10, 11, 12, 13]
ROLE_LO = sum(ROLE[i] << (4 * i) for i in range(8))
ROLE_HI = sum(ROLE[8 + i] << (4 * i) for i in range(8))
SPIN_LIMIT = 1 << 20
WSBASE = ([int(x[2:]) for x in sys.argv if x.startswith("-w")] + [0])[0] << 20
PD = 4 if "pd4" in EXP else 2
PG = 3 if "pd4" in EXP else 6
PCD = 4 if "pcd4" in EXP else (0 if "pcd0" in EXP else 1)
KVS = 4 if "kvs4" in EXP else (0 if "kvs0" in EXP else 2)
PQ2 = 4 if "pq4" in EXP else (0 if "pq0" in EXP else 1)
PF0 = 2 if "pf2" in EXP else 0
WOP = 1 if "wo1" in EXP else (3 if "wo3" in EXP else 2)
OUTAUX = " sc1" if "outsc1" in EXP else (" nt" if "outnt" in EXP else "")

T, H, J, W, RL, ROT = 30, 31, 32, 33, 34, 3
_uid = [0]
def uid(p):
    _uid[0] += 1
    return f"{p}_{_uid[0]}"

def srd(a, d, ptr, nbytes):
    a(f"s_mov_b32 s{d}, s{ptr}\ns_mov_b32 s{d+1}, s{ptr+1}\ns_mov_b32 s{d+2}, {nbytes:#x}\ns_mov_b32 s{d+3}, 0x20000")

NST = 12
DIAG = [tuple(int(y) for y in x[2:].split("-")) for x in sys.argv if x.startswith("-d")]
def st(a, i):
    if STAMP: a(f"s_memtime s[{72+2*i}:{73+2*i}]")
    if DIAG and i in DIAG[0]: a(f"s_memrealtime s[{72+2*i}:{73+2*i}]\ns_waitcnt lgkmcnt(0)")
def st_begin(a):
    if STAMP: a("s_memrealtime s[68:69]\ns_memtime s[72:73]")
    if DIAG: a("s_memrealtime s[72:73]")
def diag_end(a):
    if not DIAG: return
    p, q = DIAG[0]
    a(f"""s_waitcnt vmcnt(0)
    s_memrealtime s[96:97]
    s_waitcnt lgkmcnt(0)
    s_sub_u32 s70, s{72+2*q}, s{72+2*p}
    s_add_u32 s70, s70, s96
    L_diag:
    s_memrealtime s[68:69]
    s_waitcnt lgkmcnt(0)
    s_sub_u32 s71, s68, s70
    s_cmp_lt_i32 s71, 0
    s_cbranch_scc1 L_diag""")
def st_init(a):
    if STAMP:
        for i in range(1, NST): a(f"s_mov_b32 s{72+2*i}, s72")
def st_end(a):
    if not STAMP: return
    a(f"""s_waitcnt vmcnt(0)
    s_memrealtime s[70:71]
    s_memtime s[{72+2*NST}:{73+2*NST}]
    s_getreg_b32 s66, hwreg(HW_REG_HW_ID)
    s_getreg_b32 s67, hwreg(HW_REG_XCC_ID)
    s_mov_b64 exec, -1
    s_lshl_b32 s65, s2, 3
    s_add_u32 s65, s65, s{W}
    s_lshl_b32 s65, s65, 6
    s_add_u32 s65, s65, {WS_ST}
    s_waitcnt lgkmcnt(0)
    v_mov_b32 v4, s68
    v_mov_b32 v5, s70
    v_mov_b32 v6, s66
    v_mov_b32 v7, s67""")
    for i in range(1, NST + 1):
        a(f"s_sub_u32 s64, s{72+2*i}, s72\nv_mov_b32 v{7+i}, s64")
    a("v_mov_b32 v2, 0\ns_mov_b64 exec, 1")
    for k in range(4):
        a(f"buffer_store_dwordx4 v[{4+4*k}:{7+4*k}], v2, s[8:11], s65 offen offset:{16*k}")

def poll_global(a, vdst, voff, soff, mask=None, sleep=1):
    l = uid("Lpoll"); d = uid("Lpd")
    a(f"s_mov_b32 s60, {SPIN_LIMIT}")
    if mask is not None: a(f"s_mov_b64 exec, {mask}")
    a(f"""{l}:
    buffer_load_dword v{vdst}, v{voff}, s[8:11], {soff} offen sc1
    s_waitcnt vmcnt(0)
    v_cmp_ne_u32 vcc, s{T}, v{vdst}
    s_cbranch_vccz {d}
    s_mov_b64 exec, vcc
    s_sleep {sleep}
    s_sub_u32 s60, s60, 1
    s_cbranch_scc0 {l}
    s_endpgm
    {d}:
    s_mov_b64 exec, -1""")

def poll_atomic(a, vdst, voff, soff, mask, sleep):
    l = uid("Lpa"); d = uid("Lpad")
    a(f"""s_mov_b32 s60, {SPIN_LIMIT}
    s_mov_b64 exec, {mask}
    {l}:
    v_mov_b32 v{vdst}, 0
    buffer_atomic_or v{vdst}, v{voff}, s[8:11], {soff} offen sc0 sc1
    s_waitcnt vmcnt(0)
    v_cmp_ne_u32 vcc, s{T}, v{vdst}
    s_cbranch_vccz {d}
    s_sleep {sleep}
    s_sub_u32 s60, s60, 1
    s_cbranch_scc0 {l}
    s_endpgm
    {d}:
    s_mov_b64 exec, -1""")

def poll_pipe(a, v0, voff, soff, mask, D=4, gap=3):
    l = uid("Lpp"); d = uid("Lppd")
    at = lambda r: f"v_mov_b32 v{r}, 0\nbuffer_atomic_or v{r}, v{voff}, s[8:11], {soff} offen sc0 sc1"
    a(f"s_mov_b32 s60, {SPIN_LIMIT}\ns_mov_b64 exec, {mask}")
    for i in range(D - 1): a(at(v0 + i) + f"\ns_sleep {gap}")
    a(f"{l}:")
    for i in range(D):
        a(at(v0 + (i + D - 1) % D))
        a(f"s_waitcnt vmcnt({D-1})\nv_cmp_ne_u32 vcc, s{T}, v{v0+i}\ns_cbranch_vccz {d}")
    a(f"""s_sub_u32 s60, s60, 1
    s_cbranch_scc0 {l}
    s_endpgm
    {d}:
    s_mov_b64 exec, -1""")

def signal(a, vt, voff, soff, mask):
    a(f"v_mov_b32 v{vt}, s{T}\ns_mov_b64 exec, {mask}\nbuffer_atomic_swap v{vt}, v{voff}, s[8:11], {soff} offen sc1\ns_mov_b64 exec, -1")

def spin_lds(a, vaddr, off, want, vt, sleep=0):
    l = uid("Lsp"); d = uid("Lsd")
    a(f"""s_mov_b32 s60, {SPIN_LIMIT}
    {l}:
    ds_read_b32 v{vt}, v{vaddr} offset:{off}
    s_waitcnt lgkmcnt(0)
    v_readfirstlane_b32 s61, v{vt}
    s_cmp_ge_u32 s61, {want}
    s_cbranch_scc1 {d}""")
    if sleep: a(f"s_sleep {sleep}")
    a(f"""s_sub_u32 s60, s60, 1
    s_cbranch_scc0 {l}
    s_endpgm
    {d}:""")

def lds_inc(a, vaddr, off, vone):
    a(f"s_mov_b64 exec, 1\nds_add_u32 v{vaddr}, v{vone} offset:{off}\ns_mov_b64 exec, -1")

def flag_store(a, vt, vz, soff):
    a(f"v_mov_b32 v{vt}, s{T}\ns_mov_b64 exec, 1\nbuffer_store_dword v{vt}, v{vz}, s[8:11], {soff} offen sc1\ns_mov_b64 exec, -1")

def split_neg_max(a, m, t0, t1, q6, q7):
    a(f"""v_sub_f32 v{m}, 0, v{m}
    v_cvt_pk_bf16_f32 v{t0}, v{m}, v{m}
    v_lshlrev_b32 v{t0}, 16, v{t0}
    v_sub_f32 v{t0}, v{m}, v{t0}
    v_cvt_pk_bf16_f32 v{t1}, v{m}, v{t0}
    v_and_b32 v{m}, 0xffff0000, v{t1}
    v_sub_f32 v{t0}, v{t0}, v{m}
    s_mov_b32 exec_lo, 0
    v_mov_b32 v{q6}, v{t1}
    v_cvt_pk_bf16_f32 v{q7}, v{t0}, 0
    s_mov_b32 exec_lo, -1""")

def max16_list(dst, S, init=False):
    if not init:
        return ([f"v_max3_f32 v{dst}, v{S}, v{S+1}, v{S+2}"] +
                [f"v_max3_f32 v{dst}, v{dst}, v{S+i}, v{S+i+1}" for i in range(3, 15, 2)] +
                [f"v_max_f32 v{dst}, v{dst}, v{S+15}"])
    return [f"v_max3_f32 v{dst}, v{dst}, v{S+i}, v{S+i+1}" for i in range(0, 16, 2)]

def wave_min_u32(a, v, full=True):
    for r in (1, 2, 4, 8):
        a(f"v_min_u32_dpp v{v}, v{v}, v{v} row_ror:{r} row_mask:0xf bank_mask:0xf")
    a(f"v_min_u32_dpp v{v}, v{v}, v{v} row_bcast:15 row_mask:0xa bank_mask:0xf")
    if full: a(f"v_min_u32_dpp v{v}, v{v}, v{v} row_bcast:31 row_mask:0xc bank_mask:0xf")

def tag(a):
    a(f"s_mul_i32 s{T}, s{T}, 0x9e3779b1\ns_add_u32 s{T}, s{T}, 0x7f4a7c15")

def next_chunk(a, s):
    a(f"s_add_u32 s{s}, s{s}, 1\ns_cmp_eq_u32 s{s}, 7\ns_cselect_b32 s{s}, 0, s{s}")

Q, O, KV, S, P = 8, 40, 104, 168, 200
XF = 104; A0, A1, WF = 40, 56, 72
VX = 216; VW = 220; VQ = 222; VC = 223; V1 = 224; VZ = 225; VT = 226; VH = 227
VA = 228; TMP = 232; XR = 240; GR = 248; VWQ = 250; VF = 251; VFS = 252; VXO = 253; VGO = 254
OWN = 3
L = 35

def prologue_and_loader(a):
    if "rot7" in EXP:
        ROTCODE = f"s_lshl1_add_u32 s{ROT}, s27, s26\ns_cmp_ge_u32 s{ROT}, 7\ns_cselect_b32 s26, 7, 0\ns_sub_u32 s{ROT}, s{ROT}, s26"
    elif "rot2" not in EXP and "norot" not in EXP and "rot23" not in EXP:
        ROTCODE = f"s_add_u32 s{ROT}, s27, s26\ns_and_b32 s{ROT}, s{ROT}, 3\ns_lshl_b32 s{ROT}, s{ROT}, 1"
    elif "norot" in EXP:
        ROTCODE = f"s_mov_b32 s{ROT}, 0"
    elif "rot23" in EXP:
        ROTCODE = f"s_add_u32 s{ROT}, s27, s26\ns_and_b32 s{ROT}, s{ROT}, 1\ns_mul_i32 s{ROT}, s{ROT}, 3"
    else:
        ROTCODE = f"s_add_u32 s{ROT}, s27, s26\ns_and_b32 s{ROT}, s{ROT}, 1\ns_lshl_b32 s{ROT}, s{ROT}, 2"
    st_begin(a)
    a(f"""s_load_dwordx4 s[4:7], s[0:1], 0
    s_load_dwordx2 s[36:37], s[0:1], 88
    s_load_dwordx2 s[38:39], s[0:1], 16
    s_load_dwordx8 s[40:47], s[0:1], 32
    s_load_dwordx4 s[48:51], s[0:1], 64
    s_cmp_ge_u32 s2, 256
    s_cbranch_scc1 L_exit
    v_lshrrev_b32 v2, 6, v0
    v_and_b32 v3, 63, v0
    s_and_b32 s24, s2, 7
    s_lshr_b32 s25, s2, 3
    v_readfirstlane_b32 s{W}, v2
    s_and_b32 s{H}, s24, 1
    s_lshl_b32 s{H}, s{H}, 3
    s_and_b32 s26, s25, 7
    s_add_u32 s{H}, s{H}, s26
    s_lshr_b32 s27, s25, 3
    s_and_b32 s{J}, s24, 6
    s_lshl1_add_u32 s{J}, s{J}, s27
    {ROTCODE}
    s_mov_b32 s28, {ROLE_LO:#x}
    s_mov_b32 s29, {ROLE_HI:#x}
    s_lshl_b32 s27, s{H}, 2
    s_lshr_b64 s[28:29], s[28:29], s27
    s_and_b32 s{RL}, s28, 15
    v_lshlrev_b32 v1, 4, v3
    s_mov_b32 s27, {WS_EP}
    s_cmp_lt_u32 s{W}, 4
    s_cbranch_scc1 L_main
    """)
    a(f"""s_setprio 2
    s_sub_u32 s{L}, s{W}, 4
    v_lshrrev_b32 v4, 3, v3
    v_mul_u32_u24 v5, 896, v4
    v_and_b32 v6, 7, v3
    v_lshrrev_b32 v7, 4, v3
    v_xor_b32 v7, v6, v7
    v_lshl_add_u32 v10, v7, 4, v5
    v_xor_b32 v11, 64, v10
    v_add_u32 v12, {2*6144}, v10
    v_add_u32 v13, {3*6144}, v11
    v_add_u32 v11, 6144, v11
    v_mul_u32_u24 v5, 2688, v4
    v_and_b32 v4, 2, v4
    v_lshlrev_b32 v4, 1, v4
    v_xor_b32 v4, v4, v6
    v_lshl_add_u32 v14, v4, 4, v5
    v_add_u32 v15, {8*2688-1024}, v14
    s_lshl2_add_u32 s52, s{J}, s{L}
    s_mul_i32 s52, s52, {32*896}
    s_lshl_b32 s53, s{RL}, 7
    s_mul_i32 s26, s{L}, {16*2688}
    s_add_u32 s53, s53, s26
    s_add_u32 s53, s53, 896
    s_lshl_b32 s54, s{L}, 12
    s_lshl_b32 s55, s{L}, 11
    s_add_u32 s55, s55, {WT}
    s_mov_b32 s56, s{ROT}
    s_mov_b32 s57, 0
    s_mov_b32 s14, {2048*896}
    s_mov_b32 s15, 0x20000
    s_cmp_ge_u32 s{RL}, 14
    s_cselect_b32 s18, 0, {448*2688}
    s_mov_b32 s19, 0x20000
    s_waitcnt lgkmcnt(0)
    s_mov_b64 s[12:13], s[4:5]
    s_mov_b64 s[16:17], s[6:7]
    s_add_u32 s36, s36, {WSBASE}
    s_addc_u32 s37, s37, 0
    s_load_dword s{T}, s[36:37], s27""")
    st_init(a); st(a, 1)
    a(f"""L_ld:
    s_mul_i32 s26, s56, {64*2688}
    s_mov_b32 m0, s55
    s_add_u32 s26, s26, s53
    s_lshl_b32 s28, s56, 7
    buffer_load_dwordx4 v14, s[16:19], s26 offen lds
    buffer_load_dwordx4 v15, s[16:19], s26 offen offset:1024 lds
    s_mov_b32 m0, s54
    s_add_u32 s28, s28, s52
    buffer_load_dwordx4 v10, s[12:15], s28 offen lds
    buffer_load_dwordx4 v11, s[12:15], s28 offen offset:1024 lds
    buffer_load_dwordx4 v12, s[12:15], s28 offen offset:2048 lds
    buffer_load_dwordx4 v13, s[12:15], s28 offen offset:3072 lds
    s_add_u32 s55, s55, 8192
    s_add_u32 s54, s54, 16384
    s_and_b32 s54, s54, 0xffff""")
    next_chunk(a, 56)
    a(f"""s_add_u32 s57, s57, 1
    s_cmp_lt_u32 s57, 3
    s_cbranch_scc1 L_ld
    s_waitcnt vmcnt(12) lgkmcnt(0)
    s_barrier
    s_cmp_lt_u32 s57, 7
    s_cbranch_scc1 L_ld
    """)
    a(f"""v_lshrrev_b32 v4, 2, v3
    v_mul_u32_u24 v4, 2688, v4
    v_and_b32 v5, 3, v3
    v_lshl_add_u32 v16, v5, 4, v4
    s_mov_b32 s18, {448*2688}
    s_mul_i32 s53, s{H}, 56
    s_and_b32 s53, s53, 0xfffffff0
    s_mul_i32 s26, s{L}, {16*2688}
    s_add_u32 s53, s53, s26
    s_lshl_b32 s55, s{L}, 10
    s_add_u32 s55, s55, {WQ}""")
    for i in range(4):
        a(f"""s_mul_i32 s26, s56, {64*2688}
        s_add_u32 m0, s55, {i*4096}
        s_add_u32 s26, s26, s53
        buffer_load_dwordx4 v16, s[16:19], s26 offen lds""")
        if i < 3: next_chunk(a, 56)
        if i == 1: a("s_waitcnt vmcnt(8)\ns_barrier")
        if i == 3: a("s_waitcnt vmcnt(4)\ns_barrier")
    st(a, 2)
    a("s_branch L_service")

def main_wave(a):
    a.label("L_main")
    if "nocodepf" not in EXP:
        a(f"""s_cmp_lg_u32 s{W}, 0
        s_cbranch_scc1 L_nopf
        s_getpc_b64 s[28:29]
        L_pc:
        s_and_b32 s26, s25, 3
        s_lshl_b32 s26, s26, 13
        v_lshl_add_u32 v4, v3, 7, s26
        v_min_u32 v4, L_code_end-L_pc, v4
        global_load_dword v5, v4, s[28:29]
        L_nopf:""")
    a(f"""s_setprio 1
    v_and_b32 v{VT}, 31, v3
    v_lshrrev_b32 v{VH}, 5, v3
    v_mov_b32 v{V1}, 1
    v_mov_b32 v{VZ}, 0
    v_mov_b32 v{VC}, {CNT}
    v_lshrrev_b32 v4, 2, v1
    v_add_u32 v4, {UPDI}, v4
    v_mov_b32 v6, -1
    s_mov_b32 exec_hi, 0
    ds_write_b32 v4, v6
    v_and_b32 v6, 7, v3
    v_cmp_eq_u32 vcc, 4, v6
    v_mov_b32 v7, {(1<<18)+1}
    v_cndmask_b32 v6, 0, v7, vcc
    ds_write_b32 v4, v6 offset:{CNT-UPDI+C_R}
    s_mov_b32 exec_lo, 0xffff
    ds_write_b32 v4, v{VZ} offset:{CNT-UPDI}
    s_mov_b64 exec, -1
    v_lshrrev_b32 v4, 1, v{VT}
    v_and_b32 v4, 7, v4
    v_xor_b32 v4, v4, v{VH}
    v_lshlrev_b32 v4, 4, v4
    v_lshl_add_u32 v4, v{VT}, 7, v4
    s_lshl_b32 s26, s{W}, 12
    v_add_u32 v{VX}, s26, v4
    v_xor_b32 v{VX+1}, 32, v{VX}
    v_xor_b32 v{VX+2}, 64, v{VX}
    v_xor_b32 v{VX+3}, 96, v{VX}
    v_bfe_u32 v4, v3, 2, 2
    v_lshl_add_u32 v12, v{VH}, 3, v4
    v_and_b32 v6, 3, v3
    v_and_b32 v7, 1, v3
    v_bfe_u32 v8, v3, 1, 1
    v_lshl_add_u32 v7, v7, 1, v8
    v_bfe_u32 v8, v3, 4, 1
    v_lshl_add_u32 v9, v8, 2, v7
    v_lshl_add_u32 v10, v8, 2, v6
    s_cmp_lt_u32 s{RL}, 7
    s_cselect_b64 vcc, -1, 0
    v_cndmask_b32 v10, v10, v9, vcc
    v_lshlrev_b32 v11, 7, v12
    v_lshl_add_u32 v11, v10, 3, v11
    v_lshrrev_b32 v4, 1, v4
    v_lshl_add_u32 v11, v4, 6, v11
    v_add_u32 v{VW}, {WT}, v11
    v_xor_b32 v{VW+1}, 64, v{VW}
    v_add_u32 v10, 2, v9
    v_sub_u32 v11, 7, v9
    v_cmp_gt_u32 vcc, 6, v9
    v_cndmask_b32 v10, v11, v10, vcc
    s_bitcmp1_b32 s{H}, 0
    s_cselect_b64 vcc, -1, 0
    v_cndmask_b32 v10, v9, v10, vcc
    v_lshlrev_b32 v11, 6, v12
    v_lshl_add_u32 v11, v10, 3, v11
    v_add_u32 v{VQ}, {WQ}, v11
    v_lshrrev_b32 v4, 2, v3
    v_mul_u32_u24 v4, 2688, v4
    v_lshl_add_u32 v{VWQ}, v6, 4, v4
    s_cmp_ge_u32 s{RL}, 7
    s_cselect_b32 s26, 7, 0
    s_cselect_b32 s29, 2, 0
    s_sub_u32 s26, s{RL}, s26
    s_mul_i32 s28, s26, {64*2341}
    s_lshr_b32 s28, s28, 16
    v_add_u32 v4, s28, v6
    v_mul_u32_u24 v7, 28, v4
    v_lshrrev_b32 v7, 6, v7
    v_cmp_ge_u32 s[64:65], s26, v7
    v_cmp_ne_u32 vcc, s26, v7
    s_and_b32 s28, s{J}, 12
    s_add_u32 s29, s28, s29
    v_mov_b32 v7, s29
    v_addc_co_u32 v7, vcc, 0, v7, vcc
    s_and_b32 s28, s{J}, 3
    v_lshl_add_u32 v4, v4, 2, s28
    v_bfe_u32 v8, v3, 2, 2
    v_lshl_add_u32 v4, v4, 2, v8
    v_lshlrev_b32 v4, 7, v4
    v_lshl_add_u32 v{VFS}, v7, 2, v4
    s_and_b32 s64, s64, 0xffff
    s_cmp_ge_u32 s{RL}, 14
    s_cselect_b32 s64, 0, s64
    s_mov_b32 s65, 0
    s_lshl_b32 s28, s{W}, 5
    v_add_u32 v{VF}, s28, v{VC}
    s_lshl_b32 s28, s{J}, 2
    s_lshr_b32 s58, s{H}, 2
    s_add_u32 s58, s58, s28
    s_and_b32 s59, s{H}, 3
    s_lshl2_add_u32 s59, s59, s{W}
    s_mul_i32 s59, s59, 56
    s_lshl_b32 s28, s58, 5
    v_add_u32 v4, s28, v{VT}
    v_mul_u32_u24 v{VXO}, 896, v4
    v_lshl_add_u32 v{VXO}, v{VH}, 4, v{VXO}
    v_lshlrev_b32 v{VGO}, 3, v4
    s_waitcnt lgkmcnt(0)
    s_add_u32 s36, s36, {WSBASE}
    s_addc_u32 s37, s37, 0
    s_load_dword s{T}, s[36:37], s27
    """)
    st_init(a)
    srd(a, 8, 36, (1 << 28) - WSBASE)
    srd(a, 16, 6, 448 * 2688)
    srd(a, 12, 4, 2048 * 896)
    if "nowqpf" not in EXP:
        a(f"""s_cmp_lg_u32 s{W}, 1
        s_cbranch_scc1 L_nopf2
        v_lshrrev_b32 v4, 2, v3
        v_min_u32 v4, 13, v4
        v_mul_u32_u24 v4, 2688, v4
        v_and_b32 v6, 3, v3
        v_lshl_add_u32 v4, v6, 7, v4
        s_mul_i32 s26, s25, {14*2688}
        s_and_b32 s28, s24, 1
        s_mul_i32 s28, s28, 384
        s_add_u32 s26, s26, s28
        buffer_load_dword v5, v4, s[16:19], s26 offen
        L_nopf2:""")
    if "wopfS" in EXP:
        srd(a, 20, 38, 448 * 896)
        a(f"""s_cmp_lg_u32 s{W}, 2
        s_cbranch_scc1 L_nopf3
        s_mul_i32 s26, s2, {13*128}
        v_lshl_add_u32 v4, v3, 7, s26
        s_mov_b64 exec, 0x1fff
        buffer_load_dword v5, v4, s[20:23], 0 offen
        s_mov_b64 exec, -1
        L_nopf3:""")
    a(f"""s_mul_i32 s62, s{H}, 56
    s_and_b32 s62, s62, 0xfffffff0
    s_mul_i32 s26, s{W}, {16*2688}
    s_add_u32 s62, s62, s26
    s_lshl_b32 s63, s{W}, 10
    s_add_u32 s63, s63, {WQ}
    s_lshl2_add_u32 s35, s{J}, s{W}
    s_lshl_b32 s52, s35, 12
    s_cmp_ge_u32 s{RL}, 14
    s_cbranch_scc1 L_roleR
    s_cmp_ge_u32 s{RL}, 7
    s_cbranch_scc1 L_roleV""")

    def gemm(kind):
        def reads(c, s):
            k = 4 * c + s
            a(f"ds_read_b128 {vr(XF+4*k,4)}, v{VX+s} offset:{(c&3)*16384}")
            f = WF + 8 * s
            if kind == "R":
                a(f"ds_read_b128 {vr(f,4)}, v{VW} offset:{k*32}")
            else:
                for n in range(2):
                    a(f"ds_read_b64_tr_b16 {vr(f+4*n,2)}, v{VW+n} offset:{k*2048}")
                    a(f"ds_read_b64_tr_b16 {vr(f+4*n+2,2)}, v{VW+n} offset:{k*2048+512}")
        def mfmas(c, s):
            k = 4 * c + s
            f = WF + 8 * s
            for n in range(1 if kind == "R" else 2):
                acc = (A0, A1)[n]
                cc = "0" if k == 0 else vr(acc, 16)
                if kind == "V": a(f"{MF} {vr(acc,16)}, {vr(XF+4*k,4)}, {vr(f+4*n,4)}, {cc}")
                else:           a(f"{MF} {vr(acc,16)}, {vr(f+4*n,4)}, {vr(XF+4*k,4)}, {cc}")
        per = 2 if kind == "R" else 5
        for c in range(7):
            a("s_barrier")
            if c == 0: st(a, 1)
            if c == 6: st(a, 2)
            if STAMP and c in (0, 6): a("s_waitcnt lgkmcnt(0)")
            reads(c, 0); reads(c, 1)
            for s in range(4):
                if s < 2: reads(c, s + 2)
                a(f"s_waitcnt lgkmcnt({min(3 - s, 2) * per})")
                mfmas(c, s)

    PK = 8
    MS = 20
    for i in range(4):
        a(f"""s_lshl_b32 s28, s{RL}, 3
        s_add_u32 s28, s28, {2*i}
        v_add_u32 v4, s28, v{VH}
        v_mul_u32_u24 v8, 37, v4
        v_lshrrev_b32 v8, 8, v8
        v_mul_u32_u24 v6, 7, v8
        v_sub_u32 v6, v4, v6
        v_lshrrev_b32 v7, 2, v6
        v_lshl_add_u32 v8, v8, 1, v7
        v_cmp_eq_u32 s[{MS+2*i}:{MS+1+2*i}], 3, v6
        v_and_b32 v6, 3, v6
        v_lshlrev_b32 v8, 18, v8
        v_lshl_add_u32 v8, v6, 9, v8
        v_lshl_add_u32 v{VA+i}, v{VT}, 4, v8""")
    a(f"v_mov_b32 v{TMP+2}, 0x3f803f80\nv_mov_b32 v{TMP+3}, 0x3f803f80\ns_add_u32 s53, s52, {1<<18}")
    if "notouch" not in EXP:
        a("s_mov_b32 s28, 0x01010101\ns_mov_b32 s29, 0x01010101")
        for i in range(4):
            l = uid("Lnt")
            a(f"""s_mov_b64 exec, s[28:29]
            buffer_store_dword v{VZ}, v{VA+i}, s[8:11], s52 offen sc1
            s_and_b64 exec, s[28:29], s[{MS+2*i}:{MS+1+2*i}]
            s_cbranch_execz {l}
            buffer_store_dword v{VZ}, v{VA+i}, s[8:11], s53 offen sc1
            {l}:""")
        a("s_mov_b64 exec, -1")
    a("s_waitcnt lgkmcnt(0)")
    tag(a)
    gemm("K")
    for i in range(4):
        acc = (A0, A1)[i >> 1] + 8 * (i & 1)
        p = PK + 4 * i
        for e in range(4): a(f"v_cvt_pk_bf16_f32 v{p+e}, v{acc+2*e}, v{acc+2*e+1}")
        l = uid("Lnosh")
        a(f"""s_mov_b64 exec, s[{MS+2*i}:{MS+1+2*i}]
        s_cbranch_execz {l}
        v_mov_b32 v{TMP}, v{p+2}
        v_mov_b32 v{TMP+1}, v{p+3}
        v_mov_b32 v{p+2}, 0x3f803f80
        v_mov_b32 v{p+3}, 0x3f803f80
        buffer_store_dwordx4 {vr(TMP,4)}, v{VA+i}, s[8:11], s53 offen sc1
        s_nop 1
        {l}:
        s_mov_b64 exec, -1
        buffer_store_dwordx4 {vr(p,4)}, v{VA+i}, s[8:11], s52 offen sc1""")
    a("s_branch L_pub")
    a.label("L_roleR")
    srd(a, 20, 40, 896)
    a(f"""s_lshl_b32 s28, s{ROT}, 7
    v_add_u32 v4, s28, v1
    v_subrev_u32 v6, 896, v4
    v_min_u32 v4, v4, v6
    s_mov_b32 m0, {QX}
    s_nop 0
    buffer_load_dwordx4 v4, s[20:23], 0 offen lds
    s_mov_b32 s20, s48
    s_mov_b32 s21, s49
    s_mov_b32 m0, {QX+1024}
    s_nop 0
    buffer_load_dwordx4 v4, s[20:23], 0 offen lds
    v_and_b32 v4, 1, v3
    v_lshlrev_b32 v4, 10, v4
    v_lshl_add_u32 v4, v{VH}, 4, v4
    v_add_u32 v{VW}, {QX}, v4
    s_waitcnt vmcnt(0) lgkmcnt(0)""")
    tag(a)
    gemm("R")
    a(f"""s_cmp_lg_u32 s{RL}, 14
    s_cbranch_scc1 L_pub
    s_mov_b32 exec_hi, 0
    s_nop 9
    v_cvt_pk_bf16_f32 v4, v{A0}, v{A0+1}
    v_and_b32 v5, 0xffff0000, v4
    v_lshlrev_b32 v4, 16, v4
    v_ashrrev_i32 v6, 31, v4
    v_or_b32 v6, 0x80000000, v6
    v_xor_b32 v6, v6, v4
    v_and_b32 v6, 0xffff0000, v6
    v_cmp_u_f32 vcc, v4, v4
    v_cndmask_b32 v6, v6, 0, vcc
    s_lshl_b32 s26, s35, 5
    v_add_u32 v7, s26, v{VT}
    v_sub_u32 v8, 0xffff, v7
    v_or_b32 v6, v6, v8
    v_lshlrev_b32 v9, 3, v7
    v_and_b32 v7, 127, v7
    v_lshlrev_b32 v7, 2, v7
    v_add_u32 v7, {KEYS}, v7
    ds_write_b32 v7, v6
    s_mov_b32 exec_lo, 1
    ds_add_u32 v{VC}, v{V1} offset:{C_K}
    s_mov_b32 exec_lo, -1
    v_mul_f32 v5, {NLOG2E:#x}, v5
    v_exp_f32 v5, v5
    v_add_f32 v5, 1.0, v5
    v_rcp_f32 v5, v5
    v_cvt_pk_bf16_f32 v5, v5, v5
    v_lshlrev_b32 v4, 16, v5
    v_mov_b32 v5, s{T}
    s_mov_b32 s26, {WS_G}
    buffer_store_dwordx2 v[4:5], v9, s[8:11], s26 offen sc1
    s_mov_b32 exec_hi, -1
    s_branch L_pub
    """)
    a.label("L_roleV")
    for n in range(2):
        a(f"""s_lshl_b32 s28, s{RL}, 6
        s_sub_u32 s28, s28, {7*64 - 32*n}
        v_add_u32 v4, s28, v{VT}
        v_mul_u32_u24 v8, 2341, v4
        v_lshrrev_b32 v8, 16, v8
        v_mul_u32_u24 v6, 28, v8
        v_sub_u32 v6, v4, v6
        v_cmp_le_u32 s[{MS+2*n}:{MS+1+2*n}], 24, v6
        v_cmp_eq_u32 vcc, 24, v6
        v_mov_b32 v7, 0x3f803f80
        v_cndmask_b32 v{TMP+4*n}, 0, v7, vcc
        v_lshlrev_b32 v8, 18, v8
        v_lshl_add_u32 v8, v6, 4, v8
        v_lshl_add_u32 v{VA+n}, v{VH}, 9, v8""")
        for e in range(1, 4): a(f"v_mov_b32 v{TMP+4*n+e}, v{TMP+4*n}")
        if "notouch" not in EXP:
            a(f"""v_and_b32 v6, 7, v6
            v_cmp_eq_u32 vcc, 0, v6
            s_andn2_b64 exec, vcc, s[{MS+2*n}:{MS+1+2*n}]
            buffer_store_dword v{VZ}, v{VA+n}, s[8:11], s52 offen offset:2048 sc1
            buffer_store_dword v{VZ}, v{VA+n}, s[8:11], s52 offen offset:3072 sc1
            s_mov_b64 exec, -1""")
    for n in range(2):
        l = uid("Lnop")
        a(f"""s_mov_b64 exec, s[{MS+2*n}:{MS+1+2*n}]
        s_cbranch_execz {l}
        buffer_store_dwordx4 {vr(TMP+4*n,4)}, v{VA+n}, s[8:11], s52 offen offset:{2048+64} sc1
        buffer_store_dwordx4 {vr(TMP+4*n,4)}, v{VA+n}, s[8:11], s52 offen offset:{3072+64} sc1
        {l}:
        s_mov_b64 exec, -1""")
    a("s_waitcnt lgkmcnt(0)")
    tag(a)
    gemm("V")
    for i in range(4):
        acc = (A0, A1)[i >> 1] + 8 * (i & 1)
        p = PK + 4 * i
        for e in range(4): a(f"v_cvt_pk_bf16_f32 v{p+e}, v{acc+2*e}, v{acc+2*e+1}")
        a(f"buffer_store_dwordx4 {vr(p,4)}, v{VA+(i>>1)}, s[8:11], s52 offen offset:{2048+1024*(i&1)} sc1")
    a.label("L_pub")
    st(a, 3)
    a(f"s_add_u32 s56, s{ROT}, 4\ns_cmp_ge_u32 s56, 7\ns_cselect_b32 s26, 7, 0\ns_sub_u32 s56, s56, s26")
    for i in range(4, 7):
        a(f"""s_mul_i32 s26, s56, {64*2688}
        s_add_u32 m0, s63, {i*4096}
        s_add_u32 s26, s26, s62
        buffer_load_dwordx4 v{VWQ}, s[16:19], s26 offen lds""")
        if i < 6: next_chunk(a, 56)
    QO = Q + 8 * OWN
    SK = TMP
    a(f"""s_lshl_b32 s53, s{H}, 18
    s_add_u32 s16, s36, s53
    s_addc_u32 s17, s37, 0
    s_mov_b32 s18, {1<<18}
    s_mov_b32 s19, 0x20000
    s_mov_b32 s57, 0""")
    def ldK(b, soff):
        return [f"buffer_load_dwordx4 {vr(KV+16*b,4)}, v1, s[16:19], {soff} offen sc1",
                f"buffer_load_dwordx4 {vr(KV+16*b+4,4)}, v1, s[16:19], {soff} offen offset:1024 sc1"]
    def ldV(b, soff):
        return [f"buffer_load_dwordx4 {vr(KV+16*b+8,4)}, v1, s[16:19], {soff} offen offset:2048 sc1",
                f"buffer_load_dwordx4 {vr(KV+16*b+12,4)}, v1, s[16:19], {soff} offen offset:3072 sc1"]
    def try_loads(block=False):
        d = uid("Ltl"); l = uid("Ltr")
        a(f"s_cmp_lg_u32 s57, 0\ns_cbranch_scc1 {d}")
        if block: a(f"s_mov_b32 s60, {SPIN_LIMIT}\n{l}:\ns_sub_u32 s60, s60, 1\ns_cbranch_scc1 L_exit")
        a(f"""ds_read_b32 v4, v{VF} offset:{C_R}
        ds_read_b32 v5, v{VC} offset:{C_R}
        s_waitcnt lgkmcnt(0)
        v_readfirstlane_b32 s56, v4
        v_readfirstlane_b32 s29, v5
        s_min_u32 s57, s56, s29
        s_cmp_eq_u32 s57, 0
        s_cbranch_scc1 {l if block else d}
        s_sub_u32 s29, s29, 1
        s_sub_u32 s27, s56, 1
        s_add_u32 s54, s56, 4095
        s_add_u32 s55, s56, 8191
        s_add_u32 s56, s56, 12287""")
        st(a, 6)
        a(f"""buffer_load_dwordx4 {vr(SK,4)}, v1, s[16:19], s29 offen sc1
        buffer_load_dwordx4 {vr(SK+4,4)}, v1, s[16:19], s29 offen offset:1024 sc1""")
        for x in ldK(0, "s27") + ldV(0, "s27") + ldK(1, "s54") + ldV(1, "s54"): a(x)
        a(f"{d}:")
    def qreads(k):
        f = WF + 4 * (k & 7)
        a(f"ds_read_b64_tr_b16 {vr(f,2)}, v{VQ} offset:{k*1024}\nds_read_b64_tr_b16 {vr(f+2,2)}, v{VQ} offset:{k*1024+256}")
    for lo, hi, cnt in ((0, 16, C_Q1), (16, 28, C_Q2)):
        if lo:
            a(f"""s_mov_b32 s28, {WS_MB}
            v_mov_b32 v6, s{T}
            s_mov_b64 exec, 1
            s_waitcnt vmcnt(3)""")
            st(a, 4)
            a(f"""ds_add_rtn_u32 v4, v{VC}, v{V1} offset:{C_D}
            s_waitcnt lgkmcnt(0)
            v_cmp_eq_u32 vcc, 3, v4
            s_cbranch_vccz L_notlast
            s_mov_b64 exec, s[64:65]
            s_cbranch_execz L_notlast
            buffer_atomic_swap v6, v{VFS}, s[8:11], s28 offen sc1
            s_waitcnt vmcnt(1)
            s_branch L_published
            L_notlast:
            s_waitcnt vmcnt(0)
            L_published:""")
            lds_inc(a, VC, C_Q2, V1)
            try_loads()
        spin_lds(a, VC, cnt, 4, 4)
        for k in range(lo, lo + 6): qreads(k)
        for k in range(lo, hi):
            if k + 6 < hi: qreads(k + 6)
            a(f"s_waitcnt lgkmcnt({2*(min(hi-1,k+6)-k)})")
            a(f"{MF} {vr(A0,16)}, {vr(WF+4*(k&7),4)}, {vr(XF+4*k,4)}, {'0' if k==0 else vr(A0,16)}")
    st(a, 5)
    try_loads()
    for i in range(8): a(f"v_mov_b32 v{P+8+i}, 0")
    a(f"""s_lshl_b32 s26, s{W}, 11
    s_add_u32 s26, s26, {QX}
    v_add_u32 v5, s26, v1
    s_mov_b32 s62, {QSCALE:#x}
    s_mov_b32 s63, {QSCALE:#x}""")
    for i in range(8): a(f"v_pk_mul_f32 {vr(A0+2*i,2)}, {vr(A0+2*i,2)}, s[62:63]")
    for i in range(8): a(f"v_cvt_pk_bf16_f32 v{QO+i}, v{A0+2*i}, v{A0+2*i+1}")
    a(f"""s_mov_b32 exec_lo, 0
    v_mov_b32 v{QO+6}, 0
    v_mov_b32 v{QO+7}, 0
    s_mov_b32 exec_lo, -1
    ds_write_b128 v5, {vr(QO,4)}
    ds_write_b128 v5, {vr(QO+4,4)} offset:1024""")
    lds_inc(a, VC, C_X, V1)
    for i in range(0, 64, 2): a(f"v_pk_mul_f32 {vr(O+i,2)}, {vr(P+8,2)}, {vr(P+8,2)}")
    spin_lds(a, VC, C_X, 4, 4)
    for i in range(3):
        a(f"""s_add_u32 s26, s{W}, {i+1}
        s_and_b32 s26, s26, 3
        s_lshl_b32 s26, s26, 11
        s_add_u32 s26, s26, {QX}
        v_add_u32 v5, s26, v1
        ds_read_b128 {vr(Q+8*i,4)}, v5
        ds_read_b128 {vr(Q+8*i+4,4)}, v5 offset:1024""")
    try_loads(block=True)
    def QK(u, m):
        kt, qs = (u >> 2) & 3, u & 3
        s = S + 16 * (u & 1)
        c = "0" if m == 0 else vr(s, 16)
        return f"{MF} {vr(s,16)}, {vr(KV+16*kt+4*m,4)}, {vr(Q+8*qs+4*m,4)}, {c}"
    def PV(u, m):
        kt, qs = (u >> 2) & 3, u & 3
        return f"{MF} {vr(O+16*qs,16)}, {vr(KV+16*kt+8+4*m,4)}, {vr(P+8*(u&1)+4*m,4)}, {vr(O+16*qs,16)}"
    SS = [S, S + 16, KV + 32, KV + 48]
    def samp(i, m): return f"{MF} {vr(SS[i],16)}, {vr(SK+4*m,4)}, {vr(Q+8*i+4*m,4)}, {'0' if m == 0 else vr(SS[i],16)}"
    def mx(i):
        for x in max16_list(4, SS[i]): a(x)
        a(f"s_mov_b32 exec_lo, 0\nv_cvt_pk_bf16_f32 v{Q+8*i+6}, -v4, 0\ns_mov_b32 exec_lo, -1")
    a("s_waitcnt vmcnt(8) lgkmcnt(0)")
    for i in range(4): a(samp(i, 0)); a(samp(i, 1))
    mx(0)
    a("s_waitcnt vmcnt(4)")
    a(QK(0, 0)); a(QK(0, 1))
    mx(1); mx(2)
    for x in ldK(2, "s55") + ldV(2, "s55"): a(x)
    mx(3)
    for x in ldK(3, "s56"): a(x)
    for i in range(0, 8, 2): a(f"v_pk_mul_f32 {vr(KV+56+i,2)}, {vr(P+8,2)}, {vr(P+8,2)}")
    for i in range(3):
        a(f"""s_add_u32 s26, s{W}, {i+1}
        s_and_b32 s26, s26, 3
        s_mul_i32 s26, s26, 12288
        s_add_u32 s26, s26, {CB + i*4096}
        v_add_u32 v{4+i}, s26, v1""")
    a(f"s_mul_i32 s26, s{W}, 12288\ns_add_u32 s26, s26, {CB}\nv_add_u32 v2, s26, v1")
    lds_inc(a, VC, C_L, V1)
    st(a, 7)
    a("s_mov_b32 s57, 3")
    def substep(u, ex, last=False):
        s = S + 16 * (u & 1); p = P + 8 * (u & 1)
        e = lambda i: f"v_exp_f32 v{s+i}, v{s+i}"
        c = lambda i: f"v_cvt_pk_bf16_f32 v{p+i}, v{s+2*i}, v{s+2*i+1}"
        q0, q1 = ([], []) if last else ([QK(u+1, 0)], [QK(u+1, 1)])
        seq = q0 + ex[0] + [e(0), e(1), e(2), e(3), c(0), e(4),
               PV(u-1, 0)] + ex[1] + [e(5), c(1), e(6), e(7), c(2), e(8)] + q1 + ex[2] + [e(9), c(3), e(10), e(11), c(4), e(12),
               PV(u-1, 1)] + ex[3] + [e(13), c(5), e(14), e(15), c(6), c(7)]
        for x in seq: a(x)
    a(".p2align 6")
    a.label("L_loop")
    for u in range(16):
        kt, qs = u >> 2, u & 3
        ex = [[], [], [], []]
        if qs == 1:
            l = ldV((kt + 3) & 3, "s56")
            ex[0] = [l[0]]; ex[1] = [l[1]]; ex[2] = ["s_add_u32 s56, s56, 4096"]
        if u == 0: ex[0] = [f"ds_read_b32 v7, v{VF} offset:{C_R+4}"]
        if u == 1:
            ex[2] = ["s_waitcnt lgkmcnt(0)", "v_readfirstlane_b32 s56, v7"]
            ex[3] = ["s_sub_u32 s56, s56, 1"]
        if u == 2:
            ex[0] = ["s_cbranch_scc1 L_nextwait", "L_nextok:", f"v_add_u32 v{VF}, 4, v{VF}"]
        if qs == 2 and "nowait" not in EXP: ex[3] = ["s_waitcnt vmcnt(10)"]
        if qs == 0 and "nowait" not in EXP: ex[3] = ["s_waitcnt vmcnt(10)"]
        if qs == 3:
            l = ldK(kt, "s56")
            ex[0] = [l[0]]; ex[1] = [l[1]]
        if u == 12: ex[0] = [f"ds_read_b32 v7, v{VC} offset:{C_F}"]
        if u == 13: ex[3] = ["s_sub_u32 s57, s57, 1"]
        if "itst" in EXP and u in (0, 8):
            a("s_waitcnt lgkmcnt(0)")
            for i in range(1, 6): a(f"s_mov_b32 s{72+2*i}, s{72+2*i+2}")
            a("s_memtime s[84:85]")
        if "noload" in EXP: ex = [[y for y in x if "buffer_load" not in y] for x in ex]
        substep(u, ex)
        if u == 13: a("s_cbranch_scc1 L_tail")
    a("s_branch L_loop")
    a.label("L_tail")
    st(a, 8)
    a(f"""s_waitcnt lgkmcnt(0)
    v_cmp_gt_u32 vcc, 4, v7
    s_cbranch_vccnz L_wait_ffn
    L_ffn_free:""")
    wr = lambda i, k: f"ds_write_b128 v{4+i}, {vr(O+16*i+4*k,4)} offset:{k*1024}"
    substep(14, [[], [wr(0, 0)], [wr(0, 1)], [wr(0, 2)]])
    substep(15, [[wr(0, 3)], [wr(1, 0)], [wr(1, 1)], [wr(1, 2)]], last=True)
    a(PV(15, 0)); a(wr(1, 3)); a(PV(15, 1))
    for k in range(4): a(wr(2, k))
    lds_inc(a, VC, C_C, V1)
    srd(a, 20, 50, 2048 * 896)
    TT = S
    OO = O + 16 * OWN
    a(f"""s_lshl_b32 s28, s35, 4
    s_add_u32 s28, s28, s{H}
    s_lshr_b32 s56, s28, 2
    s_lshl_b32 s56, s56, 5
    s_and_b32 s26, s{H}, 3
    s_add_u32 s56, s56, s26
    s_lshl_b32 s56, s56, 2
    s_add_u32 s56, s56, {WS_OFL}
    s_lshl_b32 s52, s28, 11
    s_add_u32 s52, s52, {WS_O}
    s_mov_b32 s57, 0""")
    spin_lds(a, VC, C_C, 4, 7)
    for k in range(12): a(f"ds_read_b128 {vr(TT+4*k,4)}, v2 offset:{k*1024}")
    a(f"s_lshl_b32 s26, s{W}, 2\nv_add_u32 v7, s26, v{VC}\nds_write_b32 v7, v{V1} offset:{C_P}")
    for i in range(3):
        a(f"s_waitcnt lgkmcnt({9-4*i})")
        for k in (6, 7, 0, 1, 2, 3, 4, 5): a(f"v_pk_add_f32 {vr(OO+2*k,2)}, {vr(OO+2*k,2)}, {vr(TT+16*i+2*k,2)}")
    a.label("L_fin")
    a(f"""v_mov_b32 v5, v{OO+12}
    v_mov_b32 v4, v{OO+12}
    s_mov_b32 exec_lo, 0
    v_mov_b32 v{OO+12}, 0
    s_mov_b32 exec_lo, -1
    v_permlane32_swap_b32 v5, v4
    v_rcp_f32 v6, v4
    s_mov_b32 s28, 0x30800000
    s_mov_b32 s29, 0x4e800000
    v_cmp_nle_f32 s[54:55], s28, v4
    v_cmp_nge_f32 s[62:63], s29, v4
    v_pk_add_f32 v[4:5], {vr(OO,2)}, {vr(OO+2,2)}""")
    for k in range(2, 8): a(f"v_pk_add_f32 v[4:5], v[4:5], {vr(OO+2*k,2)}")
    a(f"""v_add_f32 v4, v4, v5
    s_movk_i32 s28, 0x207
    v_cmp_class_f32 vcc, v4, s28
    s_or_b64 s[54:55], s[54:55], s[62:63]""")
    for k in range(8): a(f"v_pk_mul_f32 {vr(OO+2*k,2)}, {vr(OO+2*k,2)}, v[6:7] op_sel_hi:[1,0]")
    for k in range(8): a(f"v_cvt_pk_bf16_f32 v{Q+k}, v{OO+2*k}, v{OO+2*k+1}")
    a(f"""v_mov_b32 v6, s{T}
    s_or_b64 s[54:55], s[54:55], vcc
    s_cbranch_scc1 L_bad
    L_good:
    buffer_store_dwordx4 {vr(Q,4)}, v1, s[8:11], s52 offen sc1
    buffer_store_dwordx4 {vr(Q+4,4)}, v1, s[8:11], s52 offen offset:1024 sc1
    s_mov_b64 exec, 1
    buffer_atomic_swap v6, v{VZ}, s[8:11], s56 offen sc1
    s_mov_b64 exec, -1""")
    st(a, 9)
    a(f"""s_mov_b32 s26, {WS_G}
    buffer_load_dwordx2 {vr(GR,2)}, v{VGO}, s[8:11], s26 offen sc1
    buffer_load_dwordx4 {vr(XR,4)}, v{VXO}, s[12:15], s59 offen
    buffer_load_dwordx4 {vr(XR+4,4)}, v{VXO}, s[12:15], s59 offen offset:32""")
    WOF = 104; B = 232; ACC = 8; U = 40
    OSB = [40, 72]
    a(f"""v_bfe_u32 v4, v3, 2, 2
    v_lshl_add_u32 v4, v{VH}, 2, v4
    v_mul_u32_u24 v4, 224, v4
    v_bfe_u32 v5, v3, 4, 1
    v_lshl_add_u32 v4, v5, 5, v4
    v_and_b32 v5, 1, v3
    v_lshl_add_u32 v4, v5, 4, v4
    v_bfe_u32 v5, v3, 1, 1
    v_lshl_add_u32 v4, v5, 3, v4
    s_mul_i32 s28, s{W}, 56
    v_add_u32 v24, s28, v4
    v_add_u32 v25, {8*28*224}, v24
    v_add_u32 v26, {CB}, v1
    v_lshlrev_b32 v27, 2, v{VT}
    v_add_u32 v27, {UPDI}, v27
    s_mul_i32 s28, s{W}, 112
    s_add_u32 s28, s28, {UPD}
    v_lshl_add_u32 v28, v{VH}, 5, s28
    v_mov_b32 v29, {CNT}
    v_mov_b32 v30, 0
    v_mov_b32 v31, 0
    s_waitcnt vmcnt(6)""")
    spin_lds(a, 29, C_W, 2, 6)
    for k in range(32):
        hd, m = k >> 1, k & 1
        o = (28 * (hd & 7) + 16 * m) * 224
        b = 24 + (hd >> 3)
        a(f"ds_read_b64_tr_b16 {vr(WOF+4*k,2)}, v{b} offset:{o}\nds_read_b64_tr_b16 {vr(WOF+4*k+2,2)}, v{b} offset:{o+8*224}")
    for k in range(8): a(f"v_pk_mul_f32 {vr(ACC+2*k,2)}, v[30:31], v[30:31]")
    a("s_waitcnt vmcnt(0)")
    for k in range(8):
        a(f"v_lshlrev_b32 v{B+2*k}, 16, v{XR+k}\nv_and_b32 v{B+2*k+1}, 0xffff0000, v{XR+k}")
    a(f"""v_cmp_ne_u32 vcc, s{T}, v{GR+1}
    s_cbranch_vccnz L_gate
    L_gate_ok:
    v_sub_f32 v32, 1.0, v{GR}
    v_cvt_pk_bf16_f32 v32, v32, v32
    v_lshlrev_b32 v32, 16, v32
    s_movk_i32 s57, 0x40f
    s_mov_b32 s60, {SPIN_LIMIT}""")
    st(a, 10)
    def rd(p):
        a(f"""s_ff1_i32_b32 s27, s26
        s_bitset0_b32 s57, s27
        s_mul_i32 s28, s27, 12288
        v_add_u32 v7, s28, v26""")
        for k in range(8): a(f"ds_read_b128 {vr(OSB[p]+4*k,4)}, v7 offset:{k*1024}")
    a(f"""L_idle:
    ds_read_b32 v6, v29 offset:{C_O}
    s_sub_u32 s60, s60, 1
    s_cbranch_scc1 L_exit
    s_waitcnt lgkmcnt(0)
    v_readfirstlane_b32 s61, v6
    s_and_b32 s26, s61, s57
    s_cbranch_scc0 L_idle
    s_bitcmp1_b32 s26, 10
    s_cbranch_scc1 L_blkU""")
    rd(0)
    a(f"ds_read_b32 v6, v29 offset:{C_O}")
    for p in range(2):
        a(f"""L_st{p}:
        s_mov_b32 s29, s27
        s_waitcnt lgkmcnt(0)
        v_readfirstlane_b32 s61, v6
        s_and_b32 s26, s61, s57
        s_and_b32 s26, s26, 15
        s_cbranch_scc0 L_mm{p}""")
        rd(1 - p)
        a(f"""ds_read_b32 v6, v29 offset:{C_O}
        L_mm{p}:
        s_cmp_eq_u32 s29, 1
        s_cbranch_scc1 L_m{p}1
        s_cmp_eq_u32 s29, 2
        s_cbranch_scc1 L_m{p}2
        s_cmp_eq_u32 s29, 3
        s_cbranch_scc1 L_m{p}3""")
        for g in range(4):
            a(f"L_m{p}{g}:")
            for k in range(8):
                a(f"{MF} {vr(ACC,16)}, {vr(WOF+32*g+4*k,4)}, {vr(OSB[p]+4*k,4)}, {vr(ACC,16)}")
            if g < 3: a(f"s_branch L_md{p}")
        a(f"""L_md{p}:
        s_cmp_lg_u32 s26, 0
        s_cbranch_scc1 L_st{1-p}""")
        if p == 0: a("s_branch L_next")
    a("L_next:\ns_cmp_lg_u32 s57, 0\ns_cbranch_scc1 L_idle")
    st(a, 11)
    a("s_nop 7")
    for m in range(2):
        for e in range(4*m, 4*m+4):
            a(f"v_pk_fma_f32 {vr(B+2*e,2)}, {vr(ACC+2*e,2)}, {vr(GR,2)}, {vr(B+2*e,2)} op_sel_hi:[1,0,1]")
        for e in range(4*m, 4*m+4): a(f"v_cvt_pk_bf16_f32 v{40+e}, v{B+2*e}, v{B+2*e+1}")
        if m == 0:
            a(f"buffer_store_dwordx4 v[40:43], v{VXO}, s[20:23], s59 offen{OUTAUX}")
        else:
            a(f"""s_mov_b32 exec_hi, 0
            buffer_store_dwordx4 v[44:47], v{VXO}, s[20:23], s59 offen offset:32{OUTAUX}
            s_mov_b64 exec, 0xffffffff
            s_not_b64 exec, exec
            buffer_store_dwordx2 v[44:45], v{VXO}, s[20:23], s59 offen offset:32{OUTAUX}""")
    st_end(a)
    diag_end(a)
    a("s_endpgm")
    a(f"""L_blkU:
    ds_read_b32 v6, v27
    s_bitset0_b32 s57, 10
    s_waitcnt lgkmcnt(0)
    v_cmp_le_i32 vcc, 0, v6
    s_cbranch_vccz L_noupd
    s_mov_b64 exec, vcc
    v_mul_u32_u24 v6, 448, v6
    v_add_u32 v28, v28, v6""")
    for k in range(4): a(f"ds_read_b128 {vr(U+4*k,4)}, v28 offset:{64*(k>>1)+16*(k&1)}")
    a("s_waitcnt lgkmcnt(0)")
    for k in range(8):
        a(f"""v_pk_add_f32 {vr(B+2*k,2)}, {vr(B+2*k,2)}, {vr(U+2*k,2)}
        v_cvt_pk_bf16_f32 v{B+2*k}, v{B+2*k}, v{B+2*k+1}
        v_and_b32 v{B+2*k+1}, 0xffff0000, v{B+2*k}
        v_lshlrev_b32 v{B+2*k}, 16, v{B+2*k}""")
    a("s_mov_b64 exec, -1\nL_noupd:")
    for k in range(8): a(f"v_pk_mul_f32 {vr(B+2*k,2)}, {vr(B+2*k,2)}, v[32:33] op_sel_hi:[1,0]")
    a("s_branch L_next")
    a("L_bad:\ns_cmp_eq_u32 s57, 0\ns_cbranch_scc1 L_slow")
    for k in range(8): a(f"v_min_u32 v{Q+k}, -2, v{Q+k}")
    a("s_branch L_good")
    a.label("L_wait_ffn")
    spin_lds(a, VC, C_F, 4, 7)
    a("s_branch L_ffn_free")
    a.label("L_nextwait")
    spin_lds(a, VF, C_R + 4, 1, 7)
    a("s_sub_u32 s56, s61, 1\ns_branch L_nextok")
    a(f"""L_gate:
    s_mov_b32 s26, {WS_G}
    s_mov_b32 s60, {SPIN_LIMIT}
    L_gate1:
    buffer_load_dwordx2 {vr(GR,2)}, v{VGO}, s[8:11], s26 offen sc1
    s_waitcnt vmcnt(0)
    v_cmp_ne_u32 vcc, s{T}, v{GR+1}
    s_cbranch_vccz L_gate_ok
    s_sub_u32 s60, s60, 1
    s_cbranch_scc0 L_gate1
    s_endpgm""")
    a.label("L_slow")
    a(f"""s_mov_b32 s57, 1
    s_add_u32 s55, s53, {64*4096}
    s_mov_b32 s54, s53
    s_mov_b32 exec_lo, 0
    v_mov_b32 v{QO+6}, 0
    v_mov_b32 v{QO+7}, 0
    s_mov_b32 exec_lo, -1
    v_mov_b32 v4, 0xff800000
    L_slow1:
    buffer_load_dwordx4 {vr(KV,4)}, v1, s[8:11], s54 offen sc1
    buffer_load_dwordx4 {vr(KV+4,4)}, v1, s[8:11], s54 offen offset:1024 sc1
    s_waitcnt vmcnt(0)
    {MF} {vr(S,16)}, {vr(KV,4)}, {vr(QO,4)}, 0
    {MF} {vr(S,16)}, {vr(KV+4,4)}, {vr(QO+4,4)}, {vr(S,16)}""")
    for x in max16_list(4, S, init=True): a(x)
    a("""s_add_u32 s54, s54, 4096
    s_cmp_lt_u32 s54, s55
    s_cbranch_scc1 L_slow1
    v_mov_b32 v5, v4
    v_permlane32_swap_b32 v4, v5
    v_max_f32 v4, v4, v5""")
    split_neg_max(a, 4, 5, 6, QO + 6, QO + 7)
    for i in range(16): a(f"v_mov_b32 v{OO+i}, 0")
    a(f"""s_mov_b32 s54, s53
    L_slow2:
    buffer_load_dwordx4 {vr(KV,4)}, v1, s[8:11], s54 offen sc1
    buffer_load_dwordx4 {vr(KV+4,4)}, v1, s[8:11], s54 offen offset:1024 sc1
    buffer_load_dwordx4 {vr(KV+8,4)}, v1, s[8:11], s54 offen offset:2048 sc1
    buffer_load_dwordx4 {vr(KV+12,4)}, v1, s[8:11], s54 offen offset:3072 sc1
    s_waitcnt vmcnt(0)
    {MF} {vr(S,16)}, {vr(KV,4)}, {vr(QO,4)}, 0
    {MF} {vr(S,16)}, {vr(KV+4,4)}, {vr(QO+4,4)}, {vr(S,16)}""")
    for i in range(16): a(f"v_exp_f32 v{S+i}, v{S+i}")
    for i in range(8): a(f"v_cvt_pk_bf16_f32 v{P+i}, v{S+2*i}, v{S+2*i+1}")
    a(f"""{MF} {vr(OO,16)}, {vr(KV+8,4)}, {vr(P,4)}, {vr(OO,16)}
    {MF} {vr(OO,16)}, {vr(KV+12,4)}, {vr(P+4,4)}, {vr(OO,16)}
    s_nop 7
    s_nop 7
    s_add_u32 s54, s54, 4096
    s_cmp_lt_u32 s54, s55
    s_cbranch_scc1 L_slow2
    s_branch L_fin""")

def service_wave(a):
    a.label("L_service")
    a(f"""v_mov_b32 v14, {CNT}
    v_mov_b32 v15, 1
    v_mov_b32 v9, 0""")
    srd(a, 8, 36, (1 << 28) - WSBASE)
    tag(a)
    a("s_waitcnt vmcnt(0)")
    lds_inc(a, 14, C_Q1, 15)
    a(f"""v_and_b32 v32, 31, v3
    v_lshrrev_b32 v33, 5, v3
    v_lshlrev_b32 v219, 3, v1
    v_lshrrev_b32 v220, 2, v1
    v_and_b32 v4, 7, v3
    v_lshlrev_b32 v217, 3, v4
    s_lshr_b32 s58, s{H}, 2
    s_lshl2_add_u32 s58, s{J}, s58
    s_cmp_ge_u32 s{L}, 2
    s_cbranch_scc1 L_svcB""")
    def sel_load(lbl):
        a(f"""s_mov_b32 s26, {WS_SEL}
        s_mov_b32 s60, {SPIN_LIMIT}
        {lbl}:
        buffer_load_dwordx2 v[20:21], v217, s[8:11], s26 offen sc1
        s_waitcnt vmcnt(0)
        v_cmp_ne_u32 vcc, s{T}, v21
        s_cbranch_vccz {lbl}_ok
        s_sleep 4
        s_sub_u32 s60, s60, 1
        s_cbranch_scc0 {lbl}
        s_endpgm
        {lbl}_ok:""")
    a(f"""v_mov_b32 v6, {KEYS}
    s_lshl_b32 s28, s{L}, 8
    v_add3_u32 v7, v220, v6, s28
    s_lshl_b32 s27, s{J}, 6
    s_add_u32 s27, s27, {WS_R}
    s_cmp_eq_u32 s{RL}, 14
    s_cbranch_scc1 L_rank
    s_cmp_lg_u32 s2, {SELECTOR}
    s_cbranch_scc1 L_svcA
    s_lshl_b32 s26, s{L}, 9
    s_add_u32 s26, s26, {WS_R}
    s_mov_b32 s27, {WS_SEL}
    v_lshlrev_b32 v4, 3, v3
    v_mov_b32 v5, 2
    s_mov_b32 s60, {SPIN_LIMIT}
    L_keys:
    v_mov_b32 v20, 0
    v_mov_b32 v21, 0
    buffer_atomic_or_x2 v[20:21], v4, s[8:11], s26 offen sc0 sc1
    s_sub_u32 s60, s60, 1
    s_cbranch_scc1 L_exit
    s_waitcnt vmcnt(0)
    v_cmp_ne_u32 vcc, s{T}, v21
    s_cbranch_vccnz L_keys
    ds_write_b32 v7, v20""")
    lds_inc(a, 14, C_K, 5)
    a.label("L_rank")
    spin_lds(a, 14, C_K, 4, 8)
    st(a, 10)
    if STAMP: a("s_waitcnt lgkmcnt(0)")
    a(f"ds_read_b32 v20, v7\nv_mov_b32 v22, 0\nv_mov_b32 v21, s{T}\ns_mov_b32 s57, 0\nL_rk:")
    for k in range(8): a(f"ds_read_b128 {vr(40+4*k,4)}, v6 offset:{16*k}")
    a("v_add_u32 v6, 128, v6")
    CS = ["s[52:53]", "s[54:55]", "s[62:63]", "s[28:29]"]
    for k in range(8):
        a(f"s_waitcnt lgkmcnt({7-k})")
        for e in range(4): a(f"v_cmp_gt_u32 {CS[e]}, v{40+4*k+e}, v20")
        for e in range(4): a(f"v_addc_co_u32 v22, vcc, 0, v22, {CS[e]}")
    a(f"""s_add_u32 s57, s57, 1
    s_cmp_lt_u32 s57, 4
    s_cbranch_scc1 L_rk
    v_cmp_gt_u32 vcc, 8, v22
    v_lshlrev_b32 v22, 3, v22
    s_mov_b64 exec, vcc
    s_cbranch_execz L_rank_done
    buffer_atomic_swap_x2 v[20:21], v22, s[8:11], s27 offen sc1
    L_rank_done:
    s_mov_b64 exec, -1""")
    st(a, 11)
    a.label("L_svcA")
    GI = CB; DI = QX; HB = 101376
    FT, KS = 56, 59
    a(f"""s_cmp_ge_u32 s2, 196
    s_cbranch_scc1 L_nofn
    s_mul_i32 s{FT}, s2, 9363
    s_lshr_b32 s{FT}, s{FT}, 16
    s_mul_i32 s26, s{FT}, 7
    s_sub_u32 s{KS}, s2, s26
    v_lshrrev_b32 v4, 3, v3
    v_and_b32 v5, 2, v4
    v_lshlrev_b32 v5, 1, v5
    v_and_b32 v6, 7, v3
    v_xor_b32 v5, v5, v6
    v_mul_u32_u24 v6, 3584, v4
    v_lshl_add_u32 v34, v5, 4, v6
    v_add_u32 v35, {8*3584-1024}, v34
    v_add_u32 v36, {2*(8*3584-1024)}, v34
    v_add_u32 v37, {3*(8*3584-1024)}, v34
    v_lshrrev_b32 v6, 2, v3
    v_mul_u32_u24 v6, 896, v6
    v_and_b32 v5, 3, v3
    v_lshl_add_u32 v200, v5, 4, v6
    v_add_u32 v201, {16*896-1024}, v200
    v_add_u32 v202, {2*(16*896-1024)}, v200
    v_add_u32 v203, {3*(16*896-1024)}, v200
    v_bfe_u32 v4, v3, 2, 2
    v_lshl_add_u32 v5, v33, 3, v4
    v_lshlrev_b32 v5, 7, v5
    v_lshrrev_b32 v4, 1, v4
    v_lshl_add_u32 v5, v4, 6, v5
    v_bfe_u32 v4, v3, 4, 1
    v_lshl_add_u32 v5, v4, 5, v5
    v_and_b32 v4, 3, v3
    v_lshl_add_u32 v5, v4, 3, v5
    s_lshl_b32 s54, s{L}, 13
    s_add_u32 s54, s54, {GI}
    v_add_u32 v38, s54, v5
    v_xor_b32 v39, 64, v38
    v_lshrrev_b32 v6, 7, v5
    v_and_b32 v5, 63, v5
    v_lshl_add_u32 v5, v6, 6, v5
    s_lshl_b32 s26, s{L}, 12
    s_add_u32 s26, s26, {DI}
    v_add_u32 v210, s26, v5
    ; partial-sum store offset 4hh*256 + col*4 ; h addresses ; y offsets
    v_lshlrev_b32 v212, 10, v33
    v_lshl_add_u32 v212, v32, 2, v212
    s_lshl_b32 s26, s{L}, 9
    s_add_u32 s26, s26, {HB}
    v_lshl_add_u32 v214, v3, 3, s26
    v_lshlrev_b32 v4, 4, v217
    v_lshl_add_u32 v4, v33, 4, v4
    v_add_u32 v218, {HB}, v4
    v_mul_u32_u24 v215, {4*1792}, v33
    v_lshl_add_u32 v215, v32, 2, v215
    v_add_u32 v216, {2*1792}, v215""")
    srd(a, 16, 42, 448 * 3584)
    a(f"""s_cmp_eq_u32 s{L}, 1
    s_cselect_b64 s[16:17], s[44:45], s[42:43]
    s_mul_i32 s52, s{KS}, {64*3584}
    s_lshl_b32 s28, s{FT}, 7
    s_add_u32 s52, s52, s28""")
    spin_lds(a, 14, C_L, 4, 8, sleep=2)
    st(a, 3)
    NR = 2 if "fine" in EXP else 4
    XS_ = 40; FW = 56; AC = 104
    a("s_mov_b32 m0, s54\ns_nop 0")
    for k in range(8):
        if k == 4: a(f"s_add_u32 s52, s52, {32*3584}\ns_add_u32 m0, s54, 4096")
        if k == 8 - NR: sel_load("L_sel1")
        elif k and k % NR == 0: a("s_waitcnt vmcnt(0)")
        a(f"buffer_load_dwordx4 v{34+(k&3)}, s[16:19], s52 offen offset:{1024*(k&3)} lds")
    a(f"""v_and_b32 v4, 0xffff, v20
    v_sub_u32 v4, 0xffff, v4
    v_mul_u32_u24 v4, 896, v4
    v_lshl_add_u32 v4, v33, 4, v4
    s_lshl_b32 s26, s{KS}, 7
    s_mov_b32 exec_lo, 0xff
    s_mov_b32 exec_hi, 0xff""")
    for k in range(4):
        a(f"buffer_load_dwordx4 {vr(XS_+4*k,4)}, v4, s[12:15], s26 offen offset:{32*k}")
    a("s_mov_b64 exec, -1\ns_waitcnt vmcnt(4)")
    for k in range(4):
        for n in range(2):
            a(f"ds_read_b64_tr_b16 {vr(FW+8*k+4*n,2)}, v{38+n} offset:{k*2048}\nds_read_b64_tr_b16 {vr(FW+8*k+4*n+2,2)}, v{38+n} offset:{k*2048+512}")
    lds_inc(a, 14, C_F, 15)
    a(f"""s_mov_b64 s[16:17], s[46:47]
    s_mul_i32 s28, s{FT}, {64*896}
    s_add_u32 s28, s28, s26
    s_lshl_b32 s29, s{L}, 6
    s_add_u32 s28, s28, s29
    s_lshl_b32 s29, s{L}, 12
    s_add_u32 m0, s29, {DI}
    s_lshl1_add_u32 s26, s2, s{L}
    s_lshl_b32 s26, s26, 11
    s_add_u32 s26, s26, {WS_GP}
    s_waitcnt lgkmcnt(0)""")
    st(a, 4)
    for k in range(4):
        a(f"s_waitcnt vmcnt({3-k})")
        for n in range(2):
            a(f"{MF} {vr(AC+16*n,16)}, {vr(XS_+4*k,4)}, {vr(FW+8*k+4*n,4)}, {'0' if k==0 else vr(AC+16*n,16)}")
    for n in range(2):
        for k in range(4):
            a(f"buffer_store_dword v{AC+16*n+k}, v212, s[8:11], s26 offen offset:{256*k+128*n} sc1")
    for k in range(4): a(f"buffer_load_dwordx4 v{200+k}, s[16:19], s28 offen offset:{1024*k} lds")
    a(f"""s_lshl1_add_u32 s26, s{KS}, s{L}
    s_lshl_b32 s26, s26, 2
    s_mul_i32 s28, s{FT}, {7*128}
    s_add_u32 s26, s26, s28
    s_add_u32 s26, s26, {WS_F1}
    s_waitcnt vmcnt(4)""")
    signal(a, 5, 219, "s26", "0x7f")
    st(a, 5)
    a(f"s_lshl_b32 s26, s2, 7\ns_add_u32 s26, s26, {WS_F1}")
    poll_atomic(a, 5, 220, "s26", "0x3fff", 0)
    st(a, 6)
    GP = 40
    a(f"s_mul_i32 s26, s{FT}, {7*4096}\ns_lshl_b32 s28, s{L}, 10\ns_add_u32 s26, s26, s28\ns_add_u32 s26, s26, {WS_GP}")
    for k in range(7):
        a(f"""buffer_load_dwordx4 {vr(GP+8*k,4)}, v1, s[8:11], s26 offen sc1
        buffer_load_dwordx4 {vr(GP+8*k+4,4)}, v1, s[8:11], s26 offen offset:2048 sc1""")
        if k < 6: a("s_add_u32 s26, s26, 4096")
    DW = 120
    for k in range(4):
        a(f"ds_read_b64_tr_b16 {vr(DW+4*k,2)}, v210 offset:{k*1024}\nds_read_b64_tr_b16 {vr(DW+4*k+2,2)}, v210 offset:{k*1024+256}")
    a(f"s_mov_b32 s28, {NLOG2E:#x}\ns_mov_b32 s29, {NLOG2E:#x}\ns_waitcnt vmcnt(0)")
    for k in range(1, 7):
        for e in range(4):
            a(f"v_pk_add_f32 {vr(GP+2*e,2)}, {vr(GP+2*e,2)}, {vr(GP+8*k+2*e,2)}")
    for e in range(2):
        a(f"""v_cvt_pk_bf16_f32 v22, v{GP+2*e}, v{GP+2*e+1}
        v_cvt_pk_bf16_f32 v24, v{GP+4+2*e}, v{GP+5+2*e}
        v_and_b32 v23, 0xffff0000, v22
        v_lshlrev_b32 v22, 16, v22
        v_pk_mul_f32 v[26:27], v[22:23], s[28:29]
        v_and_b32 v25, 0xffff0000, v24
        v_exp_f32 v26, v26
        v_exp_f32 v27, v27
        v_lshlrev_b32 v24, 16, v24
        v_pk_add_f32 v[26:27], v[26:27], 1.0 op_sel_hi:[1,0]
        v_rcp_f32 v26, v26
        v_rcp_f32 v27, v27
        s_nop 0
        v_pk_mul_f32 v[22:23], v[22:23], v[26:27]
        v_cvt_pk_bf16_f32 v22, v22, v23
        v_and_b32 v23, 0xffff0000, v22
        v_lshlrev_b32 v22, 16, v22
        v_pk_mul_f32 v[22:23], v[22:23], v[24:25]
        v_cvt_pk_bf16_f32 v{28+e}, v22, v23""")
    a("ds_write_b64 v214, v[28:29]")
    lds_inc(a, 14, C_S, 15)
    spin_lds(a, 14, C_S, 2, 8)
    for k in range(4): a(f"ds_read_b128 {vr(GP+4*k,4)}, v218 offset:{32*k}")
    for k in range(4):
        a(f"s_waitcnt lgkmcnt({3-k})\n{MF} {vr(AC,16)}, {vr(GP+4*k,4)}, {vr(DW+4*k,4)}, {'0' if k==0 else vr(AC,16)}")
    a(f"""s_mul_i32 s26, s{FT}, 14336
    s_lshl1_add_u32 s28, s{KS}, s{L}
    s_lshl_b32 s29, s28, 7
    s_add_u32 s26, s26, s29
    s_add_u32 s26, s26, {WS_YP}
    s_lshl2_add_u32 s28, s{FT}, s29
    s_add_u32 s28, s28, {WS_YFL}
    buffer_store_dword v{AC}, v215, s[8:11], s26 offen sc1
    buffer_store_dword v{AC+1}, v215, s[8:11], s26 offen offset:1792 sc1
    buffer_store_dword v{AC+2}, v216, s[8:11], s26 offen sc1
    buffer_store_dword v{AC+3}, v216, s[8:11], s26 offen offset:1792 sc1
    s_waitcnt vmcnt(0)""")
    signal(a, 5, 9, "s28", 1)
    st(a, 7)
    a("s_branch L_updA")
    a.label("L_nofn")
    lds_inc(a, 14, C_F, 15)
    spin_lds(a, 14, C_F, 4, 8, sleep=8)
    sel_load("L_sel2")
    a(f"""s_lshl2_add_u32 s26, s2, s{L}
    s_cmp_lg_u32 s26, {254*4}
    s_cbranch_scc1 L_updA""")
    a(f"s_mov_b32 s60, {SPIN_LIMIT}\nL_ep:")
    for k in range(4):
        a(f"s_mov_b32 s26, {WS_FL+8192*k}\nbuffer_load_dword v{24+k}, v219, s[8:11], s26 offen sc1")
    a(f"""s_sub_u32 s60, s60, 1
    s_cbranch_scc1 L_exit
    s_waitcnt vmcnt(0)
    v_xor_b32 v24, s{T}, v24
    v_bitop3_b32 v24, v24, v25, s{T} bitop3:0xf6
    v_bitop3_b32 v24, v24, v26, s{T} bitop3:0xf6
    v_bitop3_b32 v24, v24, v27, s{T} bitop3:0xf6
    v_cmp_ne_u32 vcc, 0, v24
    s_cbranch_vccnz L_ep
    s_mov_b32 s26, {WS_EP}""")
    flag_store(a, 5, 9, "s26")
    Y = 40
    a(f"""L_updA:
    s_and_b32 s53, s{H}, 3
    s_mul_i32 s53, s53, 224
    s_lshl_b32 s57, s{L}, 2
    s_lshr_b32 s26, s53, 6
    s_lshl_b32 s26, s26, 7
    s_add_u32 s62, s26, {WS_YFL}
    L_upd:
    v_readlane_b32 s52, v20, s57
    s_and_b32 s54, s52, 0xffff
    s_sub_u32 s54, 0xffff, s54
    s_lshr_b32 s26, s54, 5
    s_cmp_lg_u32 s26, s58
    s_cbranch_scc1 L_updn
    s_mov_b32 s60, {SPIN_LIMIT}
    s_mov_b32 exec_lo, 0x0fffffff
    s_mov_b32 exec_hi, 0x0fffffff
    L_yfl:
    v_mov_b32 v24, 0
    v_mov_b32 v25, 0
    buffer_atomic_or v24, v220, s[8:11], s62 offen sc0 sc1
    buffer_atomic_or v25, v220, s[8:11], s62 offen offset:256 sc0 sc1
    s_waitcnt vmcnt(0)
    v_xor_b32 v24, s{T}, v24
    v_bitop3_b32 v24, v24, v25, s{T} bitop3:0xf6
    v_cmp_ne_u32 vcc, 0, v24
    s_cbranch_vccz L_yok
    s_sub_u32 s60, s60, 1
    s_cbranch_scc0 L_yfl
    s_endpgm
    L_yok:
    v_mul_u32_u24 v4, {14*14336}, v33
    v_lshl_add_u32 v4, v32, 4, v4
    s_mul_i32 s26, s57, 1792
    s_lshl1_add_u32 s26, s53, s26
    s_add_u32 s26, s26, {WS_YP}""")
    for i in range(14):
        a(f"buffer_load_dwordx4 {vr(Y+4*i,4)}, v4, s[8:11], s26 offen sc1\ns_add_u32 s26, s26, 14336")
    a(f"""s_mov_b64 exec, -1
    s_lshr_b32 s26, s52, 16
    s_not_b32 s55, s26
    s_and_b32 s29, s26, 0x7fff
    s_bitcmp1_b32 s26, 15
    s_cselect_b32 s26, s29, s55
    s_lshl_b32 s26, s26, 16
    v_mov_b32 v6, {NLOG2E:#x}
    v_mul_f32 v6, s26, v6
    v_exp_f32 v6, v6
    v_add_f32 v6, 1.0, v6
    v_rcp_f32 v6, v6
    v_cvt_pk_bf16_f32 v6, v6, v6
    v_lshlrev_b32 v6, 16, v6
    s_mul_i32 s26, s57, 448
    s_add_u32 s26, s26, {UPD}
    v_lshl_add_u32 v7, v32, 4, s26
    s_waitcnt vmcnt(0)""")
    for i in range(1, 14):
        a(f"v_pk_add_f32 {vr(Y,2)}, {vr(Y,2)}, {vr(Y+4*i,2)}\nv_pk_add_f32 {vr(Y+2,2)}, {vr(Y+2,2)}, {vr(Y+4*i+2,2)}")
    for k in range(4): a(f"v_mov_b32 v{Y+4+k}, v{Y+k}")
    for k in range(4): a(f"v_permlane32_swap_b32 v{Y+k}, v{Y+4+k}")
    for k in range(4): a(f"v_add_f32 v{Y+k}, v{Y+k}, v{Y+4+k}")
    for k in range(0, 4, 2):
        a(f"""v_cvt_pk_bf16_f32 v{Y+k}, v{Y+k}, v{Y+k+1}
        v_and_b32 v{Y+k+1}, 0xffff0000, v{Y+k}
        v_lshlrev_b32 v{Y+k}, 16, v{Y+k}
        v_mul_f32 v{Y+k}, v{Y+k}, v6
        v_mul_f32 v{Y+k+1}, v{Y+k+1}, v6
        v_cvt_pk_bf16_f32 v{Y+k}, v{Y+k}, v{Y+k+1}
        v_and_b32 v{Y+k+1}, 0xffff0000, v{Y+k}
        v_lshlrev_b32 v{Y+k}, 16, v{Y+k}""")
    a(f"""s_and_b32 s54, s54, 31
    v_mov_b32 v5, s57
    s_lshl_b32 s26, s54, 2
    s_add_u32 s26, s26, {UPDI}
    v_mov_b32 v4, s26
    s_mov_b64 exec, 0x0fffffff
    ds_write_b128 v7, {vr(Y,4)}
    s_mov_b64 exec, 1
    ds_write_b32 v4, v5
    s_mov_b64 exec, -1
    L_updn:
    s_add_u32 s57, s57, 1
    s_and_b32 s26, s57, 3
    s_cbranch_scc1 L_upd
    v_mov_b32 v6, 512""")
    lds_inc(a, 14, C_O, 6)
    st(a, 9)
    a("s_branch L_ofetch")
    a.label("L_svcB")
    OUTT = ""
    if "outtouch" in EXP:
        OUTT = f"""s_cmp_lg_u32 s55, {42*1024}
        s_cbranch_scc1 L_noot
        s_mov_b32 s20, s50
        s_mov_b32 s21, s51
        s_mov_b32 s22, {2048*896}
        s_mov_b32 s23, 0x20000
        s_lshl_b32 s26, s58, 5
        v_add_u32 v4, s26, v32
        v_mul_u32_u24 v4, 896, v4
        s_add_u32 s26, s53, 127
        s_and_b32 s26, s26, 0xffffff80
        v_lshl_add_u32 v4, v33, 7, v4
        s_cmp_eq_u32 s53, 672
        s_cselect_b32 exec_hi, 0, -1
        buffer_store_dword v9, v4, s[20:23], s26 offen sc1
        s_mov_b64 exec, -1
        L_noot:"""
    WOPF = "s_mov_b32 exec_hi, 0x1ffff\nbuffer_load_dword v6, v219, s[16:19], s28 offen\ns_mov_b64 exec, -1" if "wopfS" not in EXP else ""
    for e in range(7):
        a(f"""v_add_u32 v4, {64*e}, v3
        v_mul_u32_u24 v5, 4682, v4
        v_lshrrev_b32 v5, 16, v5
        v_mul_u32_u24 v5, {896-224}, v5
        v_lshl_add_u32 v{200+e}, v4, 4, v5""")
    a(f"""v_mov_b32 v16, 0
    v_mov_b32 v17, 0
    v_mov_b32 v18, 0
    v_mov_b32 v19, 0
    v_add_u32 v209, {448*224}, v1
    s_cmp_eq_u32 s{L}, 2
    s_cbranch_scc1 L_svcB2
    v_lshrrev_b32 v4, 4, v3
    v_and_b32 v5, 15, v3
    v_lshlrev_b32 v5, 2, v5
    v_lshl_add_u32 v221, v4, 9, v5
    v_lshl_add_u32 v222, v4, 5, v14
    v_and_b32 v223, 48, v3
    v_and_b32 v5, 15, v3
    v_add_u32 v6, v5, v4
    v_lshl_add_u32 v224, v6, 14, 1
    v_bfm_b32 v225, v5, 0
    s_mul_i32 s26, s{H}, 28
    s_add_u32 s28, s26, 27
    s_xor_b32 s26, s26, s28
    s_mov_b32 s62, 0x55555555
    s_cmp_ge_u32 s26, 64
    s_cselect_b32 s62, -1, s62
    s_mov_b32 s63, s62
    s_lshr_b32 s28, s{J}, 2
    s_lshl4_add_u32 s26, s{H}, s28
    s_lshl_b32 s26, s26, 7
    s_add_u32 s26, s26, {WS_MB}""")
    spin_lds(a, 14, C_D, PCD, 8, sleep=1)
    at = lambda r: f"v_mov_b32 v{r}, 0\nbuffer_atomic_or v{r}, v221, s[8:11], s26 offen sc0 sc1"
    a(f"""s_mov_b32 s60, {SPIN_LIMIT}
    s_mov_b32 s52, 0x11111111
    s_mov_b32 s53, 0x11111111
    s_mov_b64 exec, s[62:63]""")
    for i in range(PD - 1): a(at(28 + i) + f"\ns_sleep {PG}")
    a("L_kv:")
    for i in range(PD):
        a(at(28 + (i + PD - 1) % PD))
        a(f"""s_waitcnt vmcnt({PD-1})
        v_cmp_ne_u32 vcc, s{T}, v{28+i}
        s_lshr_b64 s[28:29], vcc, 1
        s_or_b64 s[28:29], s[28:29], vcc
        s_lshr_b64 s[54:55], s[28:29], 2
        s_or_b64 s[28:29], s[28:29], s[54:55]
        s_andn2_b64 s[28:29], s[52:53], s[28:29]
        s_cbranch_scc0 L_kvn{i}
        s_andn2_b64 s[52:53], s[52:53], s[28:29]
        v_lshrrev_b64 v[4:5], v223, s[28:29]
        v_and_b32 v5, v225, v4
        v_bcnt_u32_b32 v5, v5, 0
        v_lshl_add_u32 v5, v5, 2, v222
        s_mov_b64 exec, s[28:29]
        ds_write_b32 v5, v224 offset:{C_R}
        s_mov_b64 exec, s[62:63]
        v_and_b32 v4, 0xffff, v4
        v_bcnt_u32_b32 v4, v4, 0
        v_lshl_add_u32 v222, v4, 2, v222
        s_cmp_eq_u64 s[52:53], 0
        s_cbranch_scc1 L_kvdone
        L_kvn{i}:""")
    a(f"""s_sub_u32 s60, s60, 1
    s_cbranch_scc0 L_kv
    s_endpgm
    L_kvdone:
    s_mov_b64 exec, -1
    L_svcB2:""")
    srd(a, 16, 38, 448 * 896)
    a(f"""s_and_b32 s53, s{H}, 3
    s_mul_i32 s53, s53, 224
    s_and_b32 s27, s{L}, 1
    s_mul_i32 s55, s27, {7*1024}
    s_mul_i32 s57, s27, {32*896}
    s_add_u32 s57, s57, s53
    s_lshl1_add_u32 s28, s25, s27
    s_mul_i32 s28, s28, {49*128}
    v_mov_b32 v24, -1
    v_mov_b32 v25, -1
    v_mov_b32 v26, -1
    v_mov_b32 v27, -1
    s_lshl_b32 s59, s{J}, 6
    s_add_u32 s59, s59, s{H}
    s_lshl1_add_u32 s59, s59, s27
    s_lshl_b32 s59, s59, 10
    s_add_u32 s59, s59, {WS_O}""")
    spin_lds(a, 14, C_L, 4, 8, sleep=2)
    st(a, 3)
    a(f"""ds_write_b128 v209, v[16:19]
    {WOPF}
    s_cmp_lg_u32 s{L}, 2
    s_cbranch_scc1 L_nofl
    s_lshl_b32 s26, s2, 7
    s_add_u32 s26, s26, {WS_FL}""")
    flag_store(a, 5, 9, "s26")
    a("L_nofl:\ns_waitcnt vmcnt(0)")
    if "wogate" in EXP: spin_lds(a, 14, C_F, 2, 8, sleep=4)
    a("L_wo:")
    for e in range(7):
        a(f"""s_add_u32 m0, s55, {e*1024}
        s_waitcnt vmcnt({WOP})
        buffer_load_dwordx4 v{200+e}, s[16:19], s57 offen lds""")
    a(f"""s_cmp_ge_u32 s55, {56*1024}
    s_cbranch_scc1 L_noclr
    buffer_store_dwordx4 v[24:27], v1, s[8:11], s59 offen sc1
    s_add_u32 s59, s59, {16*2048}
    L_noclr:
    {OUTT}
    s_sub_u32 s26, s55, {56*1024}
    s_cmp_ge_u32 s26, {14*1024}
    s_cbranch_scc1 L_noinc""")
    lds_inc(a, 14, C_F, 15)
    a(f"""L_noinc:
    s_add_u32 s55, s55, {14*1024}
    s_add_u32 s57, s57, {64*896}
    s_cmp_lt_u32 s55, {98*1024}
    s_cbranch_scc1 L_wo""")
    a("s_waitcnt vmcnt(0)")
    lds_inc(a, 14, C_W, 15)
    st(a, 8)
    a.label("L_ofetch")
    a(f"""s_lshl2_add_u32 s28, s58, s{L}
    s_lshl_b32 s29, s28, 13
    s_add_u32 s29, s29, {WS_O}
    s_add_u32 s27, s29, 4096
    s_lshl_b32 s28, s28, 7
    s_add_u32 s28, s28, {WS_OFL}
    s_mul_i32 s26, s{L}, 12288
    s_add_u32 s26, s26, {CB}
    v_add_u32 v7, s26, v1
    s_lshl_b32 s26, s{L}, 2
    v_add_u32 v6, s26, v14
    s_lshl_b32 s26, 1, s{L}
    v_mov_b32 v5, s26""")
    spin_lds(a, 6, C_P, 1, 8, sleep=4)
    poll_pipe(a, 28, 220, "s28", 15, D=PD, gap=PG)
    a("L_of:\nv_mov_b32 v4, 0")
    for k in range(8):
        a(f"buffer_load_dwordx4 {vr(40+4*k,4)}, v1, s[8:11], {'s29' if k < 4 else 's27'} offen offset:{(k&3)*1024} sc1")
    a("s_sub_u32 s60, s60, 1\ns_cbranch_scc1 L_exit")
    for k in range(8):
        a(f"""s_waitcnt vmcnt({7-k})
        ds_write_b128 v7, {vr(40+4*k,4)} offset:{k*1024}
        v_max3_u32 v4, v4, v{40+4*k}, v{41+4*k}
        v_max3_u32 v4, v4, v{42+4*k}, v{43+4*k}""")
    a("v_cmp_eq_u32 vcc, -1, v4\ns_cbranch_vccnz L_of")
    lds_inc(a, 14, C_O, 5)
    a("s_waitcnt vmcnt(0) lgkmcnt(0)")
    st_end(a)
    a("L_exit:\nL_code_end:\ns_endpgm")

def main(out):
    hdr = open("cdna_kernels/" + NAME + ".s.ref").read().split("; Override")[0]
    rep = []
    a = Asm()
    prologue_and_loader(a); main_wave(a); service_wave(a)
    t = hdr
    t += f"; @launch grid=(256,1,1) block=(512,1,1) lds={LDS_BYTES}\n"
    t += '.amdgcn_target "amdgcn-amd-amdhsa--gfx950"\n'
    t += kernel_text(NAME + "_kernel", a.l, 256, report=rep)
    open(out, "w").write(t)
    if "-v" in sys.argv: print("\n".join(rep))

if __name__ == "__main__":
    main(sys.argv[1])
```

```python
import sys, math, struct
from asmlib import *

NAME = "gated_mix__softmax_full_mha__moe_arch_mod__prompt"
STAMP = "-s" in sys.argv
EXP = set(x[2:] for x in sys.argv if x.startswith("-x"))
WS_KV = 0
WS_O = 4 << 20
WS_R = 6 << 20
WS_G = WS_R + 16384
WS_SEL = WS_R + 32768
WS_EP = WS_R + 40960
WS_FL = WS_R + 65536
WS_MB = WS_FL + 32768
WS_OFL = WS_MB + 32768
WS_YFL = WS_OFL + 32768
WS_F1 = WS_YFL + 4096
WS_YP = 7 << 20
WS_GP = 8 << 20
WS_ST = 16 << 20
XS = 0; WT = 65536; WQ = 122880; QX = 151552; UPD = 159744
WO = 0; CB = 102400
UPDI = UPD + 3584
KEYS = UPD
SELECTOR = 223
CNT = 163840 - 192
LDS_BYTES = 163840
C_Q1, C_Q2, C_X, C_L, C_S, C_D, C_C, C_O, C_W, C_F, C_K, C_P, C_R = 0, 4, 8, 12, 16, 20, 24, 28, 32, 36, 40, 48, 64

def f32bits(x): return struct.unpack("<I", struct.pack("<f", x))[0]
QSCALE = f32bits(28 ** -0.5 * math.log2(math.e))
NLOG2E = f32bits(-math.log2(math.e))
MF = "v_mfma_f32_32x32x16_bf16"
ROLE = [0, 1, 2, 3, 14, 4, 5, 6, 7, 8, 9, 15, 10, 11, 12, 13]
ROLE_LO = sum(ROLE[i] << (4 * i) for i in range(8))
ROLE_HI = sum(ROLE[8 + i] << (4 * i) for i in range(8))
SPIN_LIMIT = 1 << 20
WSBASE = ([int(x[2:]) for x in sys.argv if x.startswith("-w")] + [0])[0] << 20
PD = 4 if "pd4" in EXP else 2
PG = 3 if "pd4" in EXP else 6
PCD = 4 if "pcd4" in EXP else (0 if "pcd0" in EXP else 1)
KVS = 4 if "kvs4" in EXP else (0 if "kvs0" in EXP else 2)
PQ2 = 4 if "pq4" in EXP else (0 if "pq0" in EXP else 1)
PF0 = 2 if "pf2" in EXP else 0
WOP = 1 if "wo1" in EXP else (3 if "wo3" in EXP else 2)
OUTAUX = " sc1" if "outsc1" in EXP else (" nt" if "outnt" in EXP else "")

T, H, J, W, RL, ROT = 30, 31, 32, 33, 34, 3
_uid = [0]
def uid(p):
    _uid[0] += 1
    return f"{p}_{_uid[0]}"

def srd(a, d, ptr, nbytes):
    a(f"s_mov_b32 s{d}, s{ptr}\ns_mov_b32 s{d+1}, s{ptr+1}\ns_mov_b32 s{d+2}, {nbytes:#x}\ns_mov_b32 s{d+3}, 0x20000")

NST = 12
DIAG = [tuple(int(y) for y in x[2:].split("-")) for x in sys.argv if x.startswith("-d")]
def st(a, i):
    if STAMP: a(f"s_memtime s[{72+2*i}:{73+2*i}]")
    if DIAG and i in DIAG[0]: a(f"s_memrealtime s[{72+2*i}:{73+2*i}]\ns_waitcnt lgkmcnt(0)")
def st_begin(a):
    if STAMP: a("s_memrealtime s[68:69]\ns_memtime s[72:73]")
    if DIAG: a("s_memrealtime s[72:73]")
def diag_end(a):
    if not DIAG: return
    p, q = DIAG[0]
    a(f"""s_waitcnt vmcnt(0)
    s_memrealtime s[96:97]
    s_waitcnt lgkmcnt(0)
    s_sub_u32 s70, s{72+2*q}, s{72+2*p}
    s_add_u32 s70, s70, s96
    L_diag:
    s_memrealtime s[68:69]
    s_waitcnt lgkmcnt(0)
    s_sub_u32 s71, s68, s70
    s_cmp_lt_i32 s71, 0
    s_cbranch_scc1 L_diag""")
def st_init(a):
    if STAMP:
        for i in range(1, NST): a(f"s_mov_b32 s{72+2*i}, s72")
def st_end(a):
    if not STAMP: return
    a(f"""s_waitcnt vmcnt(0)
    s_memrealtime s[70:71]
    s_memtime s[{72+2*NST}:{73+2*NST}]
    s_getreg_b32 s66, hwreg(HW_REG_HW_ID)
    s_getreg_b32 s67, hwreg(HW_REG_XCC_ID)
    s_mov_b64 exec, -1
    s_lshl_b32 s65, s2, 3
    s_add_u32 s65, s65, s{W}
    s_lshl_b32 s65, s65, 6
    s_add_u32 s65, s65, {WS_ST}
    s_waitcnt lgkmcnt(0)
    v_mov_b32 v4, s68
    v_mov_b32 v5, s70
    v_mov_b32 v6, s66
    v_mov_b32 v7, s67""")
    for i in range(1, NST + 1):
        a(f"s_sub_u32 s64, s{72+2*i}, s72\nv_mov_b32 v{7+i}, s64")
    a("v_mov_b32 v2, 0\ns_mov_b64 exec, 1")
    for k in range(4):
        a(f"buffer_store_dwordx4 v[{4+4*k}:{7+4*k}], v2, s[8:11], s65 offen offset:{16*k}")

def poll_global(a, vdst, voff, soff, mask=None, sleep=1):
    l = uid("Lpoll"); d = uid("Lpd")
    a(f"s_mov_b32 s60, {SPIN_LIMIT}")
    if mask is not None: a(f"s_mov_b64 exec, {mask}")
    a(f"""{l}:
    buffer_load_dword v{vdst}, v{voff}, s[8:11], {soff} offen sc1
    s_waitcnt vmcnt(0)
    v_cmp_ne_u32 vcc, s{T}, v{vdst}
    s_cbranch_vccz {d}
    s_mov_b64 exec, vcc
    s_sleep {sleep}
    s_sub_u32 s60, s60, 1
    s_cbranch_scc0 {l}
    s_endpgm
    {d}:
    s_mov_b64 exec, -1""")

def poll_atomic(a, vdst, voff, soff, mask, sleep):
    l = uid("Lpa"); d = uid("Lpad")
    a(f"""s_mov_b32 s60, {SPIN_LIMIT}
    s_mov_b64 exec, {mask}
    {l}:
    v_mov_b32 v{vdst}, 0
    buffer_atomic_or v{vdst}, v{voff}, s[8:11], {soff} offen sc0 sc1
    s_waitcnt vmcnt(0)
    v_cmp_ne_u32 vcc, s{T}, v{vdst}
    s_cbranch_vccz {d}
    s_sleep {sleep}
    s_sub_u32 s60, s60, 1
    s_cbranch_scc0 {l}
    s_endpgm
    {d}:
    s_mov_b64 exec, -1""")

def poll_pipe(a, v0, voff, soff, mask, D=4, gap=3):
    l = uid("Lpp"); d = uid("Lppd")
    at = lambda r: f"v_mov_b32 v{r}, 0\nbuffer_atomic_or v{r}, v{voff}, s[8:11], {soff} offen sc0 sc1"
    a(f"s_mov_b32 s60, {SPIN_LIMIT}\ns_mov_b64 exec, {mask}")
    for i in range(D - 1): a(at(v0 + i) + f"\ns_sleep {gap}")
    a(f"{l}:")
    for i in range(D):
        a(at(v0 + (i + D - 1) % D))
        a(f"s_waitcnt vmcnt({D-1})\nv_cmp_ne_u32 vcc, s{T}, v{v0+i}\ns_cbranch_vccz {d}")
    a(f"""s_sub_u32 s60, s60, 1
    s_cbranch_scc0 {l}
    s_endpgm
    {d}:
    s_mov_b64 exec, -1""")

def signal(a, vt, voff, soff, mask):
    a(f"v_mov_b32 v{vt}, s{T}\ns_mov_b64 exec, {mask}\nbuffer_atomic_swap v{vt}, v{voff}, s[8:11], {soff} offen sc1\ns_mov_b64 exec, -1")

def spin_lds(a, vaddr, off, want, vt, sleep=0):
    l = uid("Lsp"); d = uid("Lsd")
    a(f"""s_mov_b32 s60, {SPIN_LIMIT}
    {l}:
    ds_read_b32 v{vt}, v{vaddr} offset:{off}
    s_waitcnt lgkmcnt(0)
    v_readfirstlane_b32 s61, v{vt}
    s_cmp_ge_u32 s61, {want}
    s_cbranch_scc1 {d}""")
    if sleep: a(f"s_sleep {sleep}")
    a(f"""s_sub_u32 s60, s60, 1
    s_cbranch_scc0 {l}
    s_endpgm
    {d}:""")

def lds_inc(a, vaddr, off, vone):
    a(f"s_mov_b64 exec, 1\nds_add_u32 v{vaddr}, v{vone} offset:{off}\ns_mov_b64 exec, -1")

def flag_store(a, vt, vz, soff):
    a(f"v_mov_b32 v{vt}, s{T}\ns_mov_b64 exec, 1\nbuffer_store_dword v{vt}, v{vz}, s[8:11], {soff} offen sc1\ns_mov_b64 exec, -1")

def split_neg_max(a, m, t0, t1, q6, q7):
    a(f"""v_sub_f32 v{m}, 0, v{m}
    v_cvt_pk_bf16_f32 v{t0}, v{m}, v{m}
    v_lshlrev_b32 v{t0}, 16, v{t0}
    v_sub_f32 v{t0}, v{m}, v{t0}
    v_cvt_pk_bf16_f32 v{t1}, v{m}, v{t0}
    v_and_b32 v{m}, 0xffff0000, v{t1}
    v_sub_f32 v{t0}, v{t0}, v{m}
    s_mov_b32 exec_lo, 0
    v_mov_b32 v{q6}, v{t1}
    v_cvt_pk_bf16_f32 v{q7}, v{t0}, 0
    s_mov_b32 exec_lo, -1""")

def max16_list(dst, S, init=False):
    if not init:
        return ([f"v_max3_f32 v{dst}, v{S}, v{S+1}, v{S+2}"] +
                [f"v_max3_f32 v{dst}, v{dst}, v{S+i}, v{S+i+1}" for i in range(3, 15, 2)] +
                [f"v_max_f32 v{dst}, v{dst}, v{S+15}"])
    return [f"v_max3_f32 v{dst}, v{dst}, v{S+i}, v{S+i+1}" for i in range(0, 16, 2)]

def wave_min_u32(a, v, full=True):
    for r in (1, 2, 4, 8):
        a(f"v_min_u32_dpp v{v}, v{v}, v{v} row_ror:{r} row_mask:0xf bank_mask:0xf")
    a(f"v_min_u32_dpp v{v}, v{v}, v{v} row_bcast:15 row_mask:0xa bank_mask:0xf")
    if full: a(f"v_min_u32_dpp v{v}, v{v}, v{v} row_bcast:31 row_mask:0xc bank_mask:0xf")

def tag(a):
    a(f"s_mul_i32 s{T}, s{T}, 0x9e3779b1\ns_add_u32 s{T}, s{T}, 0x7f4a7c15")

def next_chunk(a, s):
    a(f"s_add_u32 s{s}, s{s}, 1\ns_cmp_eq_u32 s{s}, 7\ns_cselect_b32 s{s}, 0, s{s}")

Q, O, KV, S, P = 8, 40, 104, 168, 200
XF = 104; A0, A1, WF = 40, 56, 72
VX = 216; VW = 220; VQ = 222; VC = 223; V1 = 224; VZ = 225; VT = 226; VH = 227
VA = 228; TMP = 232; XR = 240; GR = 248; VWQ = 250; VF = 251; VFS = 252; VXO = 253; VGO = 254
OWN = 3
L = 35

def prologue_and_loader(a):
    if "rot7" in EXP:
        ROTCODE = f"s_lshl1_add_u32 s{ROT}, s27, s26\ns_cmp_ge_u32 s{ROT}, 7\ns_cselect_b32 s26, 7, 0\ns_sub_u32 s{ROT}, s{ROT}, s26"
    elif "rot2" not in EXP and "norot" not in EXP and "rot23" not in EXP:
        ROTCODE = f"s_add_u32 s{ROT}, s27, s26\ns_and_b32 s{ROT}, s{ROT}, 3\ns_lshl_b32 s{ROT}, s{ROT}, 1"
    elif "norot" in EXP:
        ROTCODE = f"s_mov_b32 s{ROT}, 0"
    elif "rot23" in EXP:
        ROTCODE = f"s_add_u32 s{ROT}, s27, s26\ns_and_b32 s{ROT}, s{ROT}, 1\ns_mul_i32 s{ROT}, s{ROT}, 3"
    else:
        ROTCODE = f"s_add_u32 s{ROT}, s27, s26\ns_and_b32 s{ROT}, s{ROT}, 1\ns_lshl_b32 s{ROT}, s{ROT}, 2"
    st_begin(a)
    a(f"""s_load_dwordx4 s[4:7], s[0:1], 0
    s_load_dwordx2 s[36:37], s[0:1], 88
    s_load_dwordx2 s[38:39], s[0:1], 16
    s_load_dwordx8 s[40:47], s[0:1], 32
    s_load_dwordx4 s[48:51], s[0:1], 64
    s_cmp_ge_u32 s2, 256
    s_cbranch_scc1 L_exit
    v_lshrrev_b32 v2, 6, v0
    v_and_b32 v3, 63, v0
    s_and_b32 s24, s2, 7
    s_lshr_b32 s25, s2, 3
    v_readfirstlane_b32 s{W}, v2
    s_and_b32 s{H}, s24, 1
    s_lshl_b32 s{H}, s{H}, 3
    s_and_b32 s26, s25, 7
    s_add_u32 s{H}, s{H}, s26
    s_lshr_b32 s27, s25, 3
    s_and_b32 s{J}, s24, 6
    s_lshl1_add_u32 s{J}, s{J}, s27
    {ROTCODE}
    s_mov_b32 s28, {ROLE_LO:#x}
    s_mov_b32 s29, {ROLE_HI:#x}
    s_lshl_b32 s27, s{H}, 2
    s_lshr_b64 s[28:29], s[28:29], s27
    s_and_b32 s{RL}, s28, 15
    v_lshlrev_b32 v1, 4, v3
    s_mov_b32 s27, {WS_EP}
    s_cmp_lt_u32 s{W}, 4
    s_cbranch_scc1 L_main
    """)
    a(f"""s_setprio 2
    s_sub_u32 s{L}, s{W}, 4
    v_lshrrev_b32 v4, 3, v3
    v_mul_u32_u24 v5, 896, v4
    v_and_b32 v6, 7, v3
    v_lshrrev_b32 v7, 4, v3
    v_xor_b32 v7, v6, v7
    v_lshl_add_u32 v10, v7, 4, v5
    v_xor_b32 v11, 64, v10
    v_add_u32 v12, {2*6144}, v10
    v_add_u32 v13, {3*6144}, v11
    v_add_u32 v11, 6144, v11
    v_mul_u32_u24 v5, 2688, v4
    v_and_b32 v4, 2, v4
    v_lshlrev_b32 v4, 1, v4
    v_xor_b32 v4, v4, v6
    v_lshl_add_u32 v14, v4, 4, v5
    v_add_u32 v15, {8*2688-1024}, v14
    s_lshl2_add_u32 s52, s{J}, s{L}
    s_mul_i32 s52, s52, {32*896}
    s_lshl_b32 s53, s{RL}, 7
    s_mul_i32 s26, s{L}, {16*2688}
    s_add_u32 s53, s53, s26
    s_add_u32 s53, s53, 896
    s_lshl_b32 s54, s{L}, 12
    s_lshl_b32 s55, s{L}, 11
    s_add_u32 s55, s55, {WT}
    s_mov_b32 s56, s{ROT}
    s_mov_b32 s57, 0
    s_mov_b32 s14, {2048*896}
    s_mov_b32 s15, 0x20000
    s_cmp_ge_u32 s{RL}, 14
    s_cselect_b32 s18, 0, {448*2688}
    s_mov_b32 s19, 0x20000
    s_waitcnt lgkmcnt(0)
    s_mov_b64 s[12:13], s[4:5]
    s_mov_b64 s[16:17], s[6:7]
    s_add_u32 s36, s36, {WSBASE}
    s_addc_u32 s37, s37, 0
    s_load_dword s{T}, s[36:37], s27""")
    st_init(a); st(a, 1)
    a(f"""L_ld:
    s_mul_i32 s26, s56, {64*2688}
    s_mov_b32 m0, s55
    s_add_u32 s26, s26, s53
    s_lshl_b32 s28, s56, 7
    buffer_load_dwordx4 v14, s[16:19], s26 offen lds
    buffer_load_dwordx4 v15, s[16:19], s26 offen offset:1024 lds
    s_mov_b32 m0, s54
    s_add_u32 s28, s28, s52
    buffer_load_dwordx4 v10, s[12:15], s28 offen lds
    buffer_load_dwordx4 v11, s[12:15], s28 offen offset:1024 lds
    buffer_load_dwordx4 v12, s[12:15], s28 offen offset:2048 lds
    buffer_load_dwordx4 v13, s[12:15], s28 offen offset:3072 lds
    s_add_u32 s55, s55, 8192
    s_add_u32 s54, s54, 16384
    s_and_b32 s54, s54, 0xffff""")
    next_chunk(a, 56)
    a(f"""s_add_u32 s57, s57, 1
    s_cmp_lt_u32 s57, 3
    s_cbranch_scc1 L_ld
    s_waitcnt vmcnt(12) lgkmcnt(0)
    s_barrier
    s_cmp_lt_u32 s57, 7
    s_cbranch_scc1 L_ld
    """)
    a(f"""v_lshrrev_b32 v4, 2, v3
    v_mul_u32_u24 v4, 2688, v4
    v_and_b32 v5, 3, v3
    v_lshl_add_u32 v16, v5, 4, v4
    s_mov_b32 s18, {448*2688}
    s_mul_i32 s53, s{H}, 56
    s_and_b32 s53, s53, 0xfffffff0
    s_mul_i32 s26, s{L}, {16*2688}
    s_add_u32 s53, s53, s26
    s_lshl_b32 s55, s{L}, 10
    s_add_u32 s55, s55, {WQ}""")
    for i in range(4):
        a(f"""s_mul_i32 s26, s56, {64*2688}
        s_add_u32 m0, s55, {i*4096}
        s_add_u32 s26, s26, s53
        buffer_load_dwordx4 v16, s[16:19], s26 offen lds""")
        if i < 3: next_chunk(a, 56)
        if i == 1: a("s_waitcnt vmcnt(8)\ns_barrier")
        if i == 3: a("s_waitcnt vmcnt(4)\ns_barrier")
    st(a, 2)
    a("s_branch L_service")

def main_wave(a):
    a.label("L_main")
    if "nocodepf" not in EXP:
        a(f"""s_cmp_lg_u32 s{W}, 0
        s_cbranch_scc1 L_nopf
        s_getpc_b64 s[28:29]
        L_pc:
        s_and_b32 s26, s25, 3
        s_lshl_b32 s26, s26, 13
        v_lshl_add_u32 v4, v3, 7, s26
        v_min_u32 v4, L_code_end-L_pc, v4
        global_load_dword v5, v4, s[28:29]
        L_nopf:""")
    a(f"""s_setprio 1
    v_and_b32 v{VT}, 31, v3
    v_lshrrev_b32 v{VH}, 5, v3
    v_mov_b32 v{V1}, 1
    v_mov_b32 v{VZ}, 0
    v_mov_b32 v{VC}, {CNT}
    v_lshrrev_b32 v4, 2, v1
    v_add_u32 v4, {UPDI}, v4
    v_mov_b32 v6, -1
    s_mov_b32 exec_hi, 0
    ds_write_b32 v4, v6
    v_and_b32 v6, 7, v3
    v_cmp_eq_u32 vcc, 4, v6
    v_mov_b32 v7, {(1<<18)+1}
    v_cndmask_b32 v6, 0, v7, vcc
    ds_write_b32 v4, v6 offset:{CNT-UPDI+C_R}
    s_mov_b32 exec_lo, 0xffff
    ds_write_b32 v4, v{VZ} offset:{CNT-UPDI}
    s_mov_b64 exec, -1
    v_lshrrev_b32 v4, 1, v{VT}
    v_and_b32 v4, 7, v4
    v_xor_b32 v4, v4, v{VH}
    v_lshlrev_b32 v4, 4, v4
    v_lshl_add_u32 v4, v{VT}, 7, v4
    s_lshl_b32 s26, s{W}, 12
    v_add_u32 v{VX}, s26, v4
    v_xor_b32 v{VX+1}, 32, v{VX}
    v_xor_b32 v{VX+2}, 64, v{VX}
    v_xor_b32 v{VX+3}, 96, v{VX}
    v_bfe_u32 v4, v3, 2, 2
    v_lshl_add_u32 v12, v{VH}, 3, v4
    v_and_b32 v6, 3, v3
    v_and_b32 v7, 1, v3
    v_bfe_u32 v8, v3, 1, 1
    v_lshl_add_u32 v7, v7, 1, v8
    v_bfe_u32 v8, v3, 4, 1
    v_lshl_add_u32 v9, v8, 2, v7
    v_lshl_add_u32 v10, v8, 2, v6
    s_cmp_lt_u32 s{RL}, 7
    s_cselect_b64 vcc, -1, 0
    v_cndmask_b32 v10, v10, v9, vcc
    v_lshlrev_b32 v11, 7, v12
    v_lshl_add_u32 v11, v10, 3, v11
    v_lshrrev_b32 v4, 1, v4
    v_lshl_add_u32 v11, v4, 6, v11
    v_add_u32 v{VW}, {WT}, v11
    v_xor_b32 v{VW+1}, 64, v{VW}
    v_add_u32 v10, 2, v9
    v_sub_u32 v11, 7, v9
    v_cmp_gt_u32 vcc, 6, v9
    v_cndmask_b32 v10, v11, v10, vcc
    s_bitcmp1_b32 s{H}, 0
    s_cselect_b64 vcc, -1, 0
    v_cndmask_b32 v10, v9, v10, vcc
    v_lshlrev_b32 v11, 6, v12
    v_lshl_add_u32 v11, v10, 3, v11
    v_add_u32 v{VQ}, {WQ}, v11
    v_lshrrev_b32 v4, 2, v3
    v_mul_u32_u24 v4, 2688, v4
    v_lshl_add_u32 v{VWQ}, v6, 4, v4
    s_cmp_ge_u32 s{RL}, 7
    s_cselect_b32 s26, 7, 0
    s_cselect_b32 s29, 2, 0
    s_sub_u32 s26, s{RL}, s26
    s_mul_i32 s28, s26, {64*2341}
    s_lshr_b32 s28, s28, 16
    v_add_u32 v4, s28, v6
    v_mul_u32_u24 v7, 28, v4
    v_lshrrev_b32 v7, 6, v7
    v_cmp_ge_u32 s[64:65], s26, v7
    v_cmp_ne_u32 vcc, s26, v7
    s_and_b32 s28, s{J}, 12
    s_add_u32 s29, s28, s29
    v_mov_b32 v7, s29
    v_addc_co_u32 v7, vcc, 0, v7, vcc
    s_and_b32 s28, s{J}, 3
    v_lshl_add_u32 v4, v4, 2, s28
    v_bfe_u32 v8, v3, 2, 2
    v_lshl_add_u32 v4, v4, 2, v8
    v_lshlrev_b32 v4, 7, v4
    v_lshl_add_u32 v{VFS}, v7, 2, v4
    s_and_b32 s64, s64, 0xffff
    s_cmp_ge_u32 s{RL}, 14
    s_cselect_b32 s64, 0, s64
    s_mov_b32 s65, 0
    s_lshl_b32 s28, s{W}, 5
    v_add_u32 v{VF}, s28, v{VC}
    s_lshl_b32 s28, s{J}, 2
    s_lshr_b32 s58, s{H}, 2
    s_add_u32 s58, s58, s28
    s_and_b32 s59, s{H}, 3
    s_lshl2_add_u32 s59, s59, s{W}
    s_mul_i32 s59, s59, 56
    s_lshl_b32 s28, s58, 5
    v_add_u32 v4, s28, v{VT}
    v_mul_u32_u24 v{VXO}, 896, v4
    v_lshl_add_u32 v{VXO}, v{VH}, 4, v{VXO}
    v_lshlrev_b32 v{VGO}, 3, v4
    s_waitcnt lgkmcnt(0)
    s_add_u32 s36, s36, {WSBASE}
    s_addc_u32 s37, s37, 0
    s_load_dword s{T}, s[36:37], s27
    """)
    st_init(a)
    srd(a, 8, 36, (1 << 28) - WSBASE)
    srd(a, 16, 6, 448 * 2688)
    srd(a, 12, 4, 2048 * 896)
    if "pgtouch" in EXP:
        a(f"""v_lshlrev_b32 v4, 16, v3
        s_lshl_b32 s26, s{W}, 22
        s_add_u32 s26, s26, {4096-64}
        s_cmp_eq_u32 s{W}, 3
        s_cbranch_scc1 L_nopg
        buffer_load_dword v5, v4, s[8:11], s26 offen
        L_nopg:""")
    if "nowqpf" not in EXP:
        a(f"""s_cmp_lg_u32 s{W}, 1
        s_cbranch_scc1 L_nopf2
        v_lshrrev_b32 v4, 2, v3
        v_min_u32 v4, 13, v4
        v_mul_u32_u24 v4, 2688, v4
        v_and_b32 v6, 3, v3
        v_lshl_add_u32 v4, v6, 7, v4
        s_mul_i32 s26, s25, {14*2688}
        s_and_b32 s28, s24, 1
        s_mul_i32 s28, s28, 384
        s_add_u32 s26, s26, s28
        buffer_load_dword v5, v4, s[16:19], s26 offen
        L_nopf2:""")
    if "wopfS" in EXP:
        srd(a, 20, 38, 448 * 896)
        a(f"""s_cmp_lg_u32 s{W}, 2
        s_cbranch_scc1 L_nopf3
        s_mul_i32 s26, s2, {13*128}
        v_lshl_add_u32 v4, v3, 7, s26
        s_mov_b64 exec, 0x1fff
        buffer_load_dword v5, v4, s[20:23], 0 offen
        s_mov_b64 exec, -1
        L_nopf3:""")
    a(f"""s_mul_i32 s62, s{H}, 56
    s_and_b32 s62, s62, 0xfffffff0
    s_mul_i32 s26, s{W}, {16*2688}
    s_add_u32 s62, s62, s26
    s_lshl_b32 s63, s{W}, 10
    s_add_u32 s63, s63, {WQ}
    s_lshl2_add_u32 s35, s{J}, s{W}
    s_lshl_b32 s52, s35, 12
    s_cmp_ge_u32 s{RL}, 14
    s_cbranch_scc1 L_roleR
    s_cmp_ge_u32 s{RL}, 7
    s_cbranch_scc1 L_roleV""")

    def gemm(kind):
        if "twait" in EXP:
            st(a, 10); a("s_waitcnt vmcnt(0)"); st(a, 11)
        def reads(c, s):
            k = 4 * c + s
            a(f"ds_read_b128 {vr(XF+4*k,4)}, v{VX+s} offset:{(c&3)*16384}")
            f = WF + 8 * s
            if kind == "R":
                a(f"ds_read_b128 {vr(f,4)}, v{VW} offset:{k*32}")
            else:
                for n in range(2):
                    a(f"ds_read_b64_tr_b16 {vr(f+4*n,2)}, v{VW+n} offset:{k*2048}")
                    a(f"ds_read_b64_tr_b16 {vr(f+4*n+2,2)}, v{VW+n} offset:{k*2048+512}")
        def mfmas(c, s):
            k = 4 * c + s
            f = WF + 8 * s
            for n in range(1 if kind == "R" else 2):
                acc = (A0, A1)[n]
                cc = "0" if k == 0 else vr(acc, 16)
                if kind == "V": a(f"{MF} {vr(acc,16)}, {vr(XF+4*k,4)}, {vr(f+4*n,4)}, {cc}")
                else:           a(f"{MF} {vr(acc,16)}, {vr(f+4*n,4)}, {vr(XF+4*k,4)}, {cc}")
        per = 2 if kind == "R" else 5
        for c in range(7):
            a("s_barrier")
            if c == 0: st(a, 1)
            if c == 6: st(a, 2)
            if STAMP and c in (0, 6): a("s_waitcnt lgkmcnt(0)")
            reads(c, 0); reads(c, 1)
            for s in range(4):
                if s < 2: reads(c, s + 2)
                a(f"s_waitcnt lgkmcnt({min(3 - s, 2) * per})")
                mfmas(c, s)

    PK = 8
    MS = 20
    for i in range(4):
        a(f"""s_lshl_b32 s28, s{RL}, 3
        s_add_u32 s28, s28, {2*i}
        v_add_u32 v4, s28, v{VH}
        v_mul_u32_u24 v8, 37, v4
        v_lshrrev_b32 v8, 8, v8
        v_mul_u32_u24 v6, 7, v8
        v_sub_u32 v6, v4, v6
        v_lshrrev_b32 v7, 2, v6
        v_lshl_add_u32 v8, v8, 1, v7
        v_cmp_eq_u32 s[{MS+2*i}:{MS+1+2*i}], 3, v6
        v_and_b32 v6, 3, v6
        v_lshlrev_b32 v8, 18, v8
        v_lshl_add_u32 v8, v6, 9, v8
        v_lshl_add_u32 v{VA+i}, v{VT}, 4, v8""")
    a(f"v_mov_b32 v{TMP+2}, 0x3f803f80\nv_mov_b32 v{TMP+3}, 0x3f803f80\ns_add_u32 s53, s52, {1<<18}")
    if "notouch" not in EXP:
        a("s_mov_b32 s28, 0x01010101\ns_mov_b32 s29, 0x01010101")
        for i in range(4):
            l = uid("Lnt")
            a(f"""s_mov_b64 exec, s[28:29]
            buffer_store_dword v{VZ}, v{VA+i}, s[8:11], s52 offen sc1
            s_and_b64 exec, s[28:29], s[{MS+2*i}:{MS+1+2*i}]
            s_cbranch_execz {l}
            buffer_store_dword v{VZ}, v{VA+i}, s[8:11], s53 offen sc1
            {l}:""")
        a("s_mov_b64 exec, -1")
    a("s_waitcnt lgkmcnt(0)")
    tag(a)
    gemm("K")
    for i in range(4):
        acc = (A0, A1)[i >> 1] + 8 * (i & 1)
        p = PK + 4 * i
        for e in range(4): a(f"v_cvt_pk_bf16_f32 v{p+e}, v{acc+2*e}, v{acc+2*e+1}")
        l = uid("Lnosh")
        a(f"""s_mov_b64 exec, s[{MS+2*i}:{MS+1+2*i}]
        s_cbranch_execz {l}
        v_mov_b32 v{TMP}, v{p+2}
        v_mov_b32 v{TMP+1}, v{p+3}
        v_mov_b32 v{p+2}, 0x3f803f80
        v_mov_b32 v{p+3}, 0x3f803f80
        buffer_store_dwordx4 {vr(TMP,4)}, v{VA+i}, s[8:11], s53 offen sc1
        s_nop 1
        {l}:
        s_mov_b64 exec, -1
        buffer_store_dwordx4 {vr(p,4)}, v{VA+i}, s[8:11], s52 offen sc1""")
    a("s_branch L_pub")
    a.label("L_roleR")
    srd(a, 20, 40, 896)
    a(f"""s_lshl_b32 s28, s{ROT}, 7
    v_add_u32 v4, s28, v1
    v_subrev_u32 v6, 896, v4
    v_min_u32 v4, v4, v6
    s_mov_b32 m0, {QX}
    s_nop 0
    buffer_load_dwordx4 v4, s[20:23], 0 offen lds
    s_mov_b32 s20, s48
    s_mov_b32 s21, s49
    s_mov_b32 m0, {QX+1024}
    s_nop 0
    buffer_load_dwordx4 v4, s[20:23], 0 offen lds
    v_and_b32 v4, 1, v3
    v_lshlrev_b32 v4, 10, v4
    v_lshl_add_u32 v4, v{VH}, 4, v4
    v_add_u32 v{VW}, {QX}, v4
    s_waitcnt vmcnt(0) lgkmcnt(0)""")
    tag(a)
    gemm("R")
    a(f"""s_cmp_lg_u32 s{RL}, 14
    s_cbranch_scc1 L_pub
    s_mov_b32 exec_hi, 0
    s_nop 9
    v_cvt_pk_bf16_f32 v4, v{A0}, v{A0+1}
    v_and_b32 v5, 0xffff0000, v4
    v_lshlrev_b32 v4, 16, v4
    v_ashrrev_i32 v6, 31, v4
    v_or_b32 v6, 0x80000000, v6
    v_xor_b32 v6, v6, v4
    v_and_b32 v6, 0xffff0000, v6
    v_cmp_u_f32 vcc, v4, v4
    v_cndmask_b32 v6, v6, 0, vcc
    s_lshl_b32 s26, s35, 5
    v_add_u32 v7, s26, v{VT}
    v_sub_u32 v8, 0xffff, v7
    v_or_b32 v6, v6, v8
    v_lshlrev_b32 v9, 3, v7
    v_and_b32 v7, 127, v7
    v_lshlrev_b32 v7, 2, v7
    v_add_u32 v7, {KEYS}, v7
    ds_write_b32 v7, v6
    s_mov_b32 exec_lo, 1
    ds_add_u32 v{VC}, v{V1} offset:{C_K}
    s_mov_b32 exec_lo, -1
    v_mul_f32 v5, {NLOG2E:#x}, v5
    v_exp_f32 v5, v5
    v_add_f32 v5, 1.0, v5
    v_rcp_f32 v5, v5
    v_cvt_pk_bf16_f32 v5, v5, v5
    v_lshlrev_b32 v4, 16, v5
    v_mov_b32 v5, s{T}
    s_mov_b32 s26, {WS_G}
    buffer_store_dwordx2 v[4:5], v9, s[8:11], s26 offen sc1
    s_mov_b32 exec_hi, -1
    s_branch L_pub
    """)
    a.label("L_roleV")
    for n in range(2):
        a(f"""s_lshl_b32 s28, s{RL}, 6
        s_sub_u32 s28, s28, {7*64 - 32*n}
        v_add_u32 v4, s28, v{VT}
        v_mul_u32_u24 v8, 2341, v4
        v_lshrrev_b32 v8, 16, v8
        v_mul_u32_u24 v6, 28, v8
        v_sub_u32 v6, v4, v6
        v_cmp_le_u32 s[{MS+2*n}:{MS+1+2*n}], 24, v6
        v_cmp_eq_u32 vcc, 24, v6
        v_mov_b32 v7, 0x3f803f80
        v_cndmask_b32 v{TMP+4*n}, 0, v7, vcc
        v_lshlrev_b32 v8, 18, v8
        v_lshl_add_u32 v8, v6, 4, v8
        v_lshl_add_u32 v{VA+n}, v{VH}, 9, v8""")
        for e in range(1, 4): a(f"v_mov_b32 v{TMP+4*n+e}, v{TMP+4*n}")
        if "notouch" not in EXP:
            a(f"""v_and_b32 v6, 7, v6
            v_cmp_eq_u32 vcc, 0, v6
            s_andn2_b64 exec, vcc, s[{MS+2*n}:{MS+1+2*n}]
            buffer_store_dword v{VZ}, v{VA+n}, s[8:11], s52 offen offset:2048 sc1
            buffer_store_dword v{VZ}, v{VA+n}, s[8:11], s52 offen offset:3072 sc1
            s_mov_b64 exec, -1""")
    for n in range(2):
        l = uid("Lnop")
        a(f"""s_mov_b64 exec, s[{MS+2*n}:{MS+1+2*n}]
        s_cbranch_execz {l}
        buffer_store_dwordx4 {vr(TMP+4*n,4)}, v{VA+n}, s[8:11], s52 offen offset:{2048+64} sc1
        buffer_store_dwordx4 {vr(TMP+4*n,4)}, v{VA+n}, s[8:11], s52 offen offset:{3072+64} sc1
        {l}:
        s_mov_b64 exec, -1""")
    a("s_waitcnt lgkmcnt(0)")
    tag(a)
    gemm("V")
    for i in range(4):
        acc = (A0, A1)[i >> 1] + 8 * (i & 1)
        p = PK + 4 * i
        for e in range(4): a(f"v_cvt_pk_bf16_f32 v{p+e}, v{acc+2*e}, v{acc+2*e+1}")
        a(f"buffer_store_dwordx4 {vr(p,4)}, v{VA+(i>>1)}, s[8:11], s52 offen offset:{2048+1024*(i&1)} sc1")
    a.label("L_pub")
    st(a, 3)
    a(f"s_add_u32 s56, s{ROT}, 4\ns_cmp_ge_u32 s56, 7\ns_cselect_b32 s26, 7, 0\ns_sub_u32 s56, s56, s26")
    for i in range(4, 7):
        a(f"""s_mul_i32 s26, s56, {64*2688}
        s_add_u32 m0, s63, {i*4096}
        s_add_u32 s26, s26, s62
        buffer_load_dwordx4 v{VWQ}, s[16:19], s26 offen lds""")
        if i < 6: next_chunk(a, 56)
    QO = Q + 8 * OWN
    SK = TMP
    a(f"""s_lshl_b32 s53, s{H}, 18
    s_add_u32 s16, s36, s53
    s_addc_u32 s17, s37, 0
    s_mov_b32 s18, {1<<18}
    s_mov_b32 s19, 0x20000
    s_mov_b32 s57, 0""")
    def ldK(b, soff):
        return [f"buffer_load_dwordx4 {vr(KV+16*b,4)}, v1, s[16:19], {soff} offen sc1",
                f"buffer_load_dwordx4 {vr(KV+16*b+4,4)}, v1, s[16:19], {soff} offen offset:1024 sc1"]
    def ldV(b, soff):
        return [f"buffer_load_dwordx4 {vr(KV+16*b+8,4)}, v1, s[16:19], {soff} offen offset:2048 sc1",
                f"buffer_load_dwordx4 {vr(KV+16*b+12,4)}, v1, s[16:19], {soff} offen offset:3072 sc1"]
    def try_loads(block=False):
        d = uid("Ltl"); l = uid("Ltr")
        a(f"s_cmp_lg_u32 s57, 0\ns_cbranch_scc1 {d}")
        if block: a(f"s_mov_b32 s60, {SPIN_LIMIT}\n{l}:\ns_sub_u32 s60, s60, 1\ns_cbranch_scc1 L_exit")
        a(f"""ds_read_b32 v4, v{VF} offset:{C_R}
        ds_read_b32 v5, v{VC} offset:{C_R}
        s_waitcnt lgkmcnt(0)
        v_readfirstlane_b32 s56, v4
        v_readfirstlane_b32 s29, v5
        s_min_u32 s57, s56, s29
        s_cmp_eq_u32 s57, 0
        s_cbranch_scc1 {l if block else d}
        s_sub_u32 s29, s29, 1
        s_sub_u32 s27, s56, 1
        s_add_u32 s54, s56, 4095
        s_add_u32 s55, s56, 8191
        s_add_u32 s56, s56, 12287""")
        st(a, 6)
        a(f"""buffer_load_dwordx4 {vr(SK,4)}, v1, s[16:19], s29 offen sc1
        buffer_load_dwordx4 {vr(SK+4,4)}, v1, s[16:19], s29 offen offset:1024 sc1""")
        for x in ldK(0, "s27") + ldV(0, "s27") + ldK(1, "s54") + ldV(1, "s54"): a(x)
        a(f"{d}:")
    def qreads(k):
        f = WF + 4 * (k & 7)
        a(f"ds_read_b64_tr_b16 {vr(f,2)}, v{VQ} offset:{k*1024}\nds_read_b64_tr_b16 {vr(f+2,2)}, v{VQ} offset:{k*1024+256}")
    for lo, hi, cnt in ((0, 16, C_Q1), (16, 28, C_Q2)):
        if lo:
            a(f"""s_mov_b32 s28, {WS_MB}
            v_mov_b32 v6, s{T}
            s_mov_b64 exec, 1
            s_waitcnt vmcnt(3)""")
            st(a, 4)
            a(f"""ds_add_rtn_u32 v4, v{VC}, v{V1} offset:{C_D}
            s_waitcnt lgkmcnt(0)
            v_cmp_eq_u32 vcc, 3, v4
            s_cbranch_vccz L_notlast
            s_mov_b64 exec, s[64:65]
            s_cbranch_execz L_notlast
            buffer_atomic_swap v6, v{VFS}, s[8:11], s28 offen sc1
            s_waitcnt vmcnt(1)
            s_branch L_published
            L_notlast:
            s_waitcnt vmcnt(0)
            L_published:""")
            lds_inc(a, VC, C_Q2, V1)
            try_loads()
        spin_lds(a, VC, cnt, 4, 4)
        for k in range(lo, lo + 6): qreads(k)
        for k in range(lo, hi):
            if k + 6 < hi: qreads(k + 6)
            a(f"s_waitcnt lgkmcnt({2*(min(hi-1,k+6)-k)})")
            a(f"{MF} {vr(A0,16)}, {vr(WF+4*(k&7),4)}, {vr(XF+4*k,4)}, {'0' if k==0 else vr(A0,16)}")
    st(a, 5)
    try_loads()
    for i in range(8): a(f"v_mov_b32 v{P+8+i}, 0")
    a(f"""s_lshl_b32 s26, s{W}, 11
    s_add_u32 s26, s26, {QX}
    v_add_u32 v5, s26, v1
    s_mov_b32 s62, {QSCALE:#x}
    s_mov_b32 s63, {QSCALE:#x}""")
    for i in range(8): a(f"v_pk_mul_f32 {vr(A0+2*i,2)}, {vr(A0+2*i,2)}, s[62:63]")
    for i in range(8): a(f"v_cvt_pk_bf16_f32 v{QO+i}, v{A0+2*i}, v{A0+2*i+1}")
    a(f"""s_mov_b32 exec_lo, 0
    v_mov_b32 v{QO+6}, 0
    v_mov_b32 v{QO+7}, 0
    s_mov_b32 exec_lo, -1
    ds_write_b128 v5, {vr(QO,4)}
    ds_write_b128 v5, {vr(QO+4,4)} offset:1024""")
    lds_inc(a, VC, C_X, V1)
    for i in range(0, 64, 2): a(f"v_pk_mul_f32 {vr(O+i,2)}, {vr(P+8,2)}, {vr(P+8,2)}")
    spin_lds(a, VC, C_X, 4, 4)
    for i in range(3):
        a(f"""s_add_u32 s26, s{W}, {i+1}
        s_and_b32 s26, s26, 3
        s_lshl_b32 s26, s26, 11
        s_add_u32 s26, s26, {QX}
        v_add_u32 v5, s26, v1
        ds_read_b128 {vr(Q+8*i,4)}, v5
        ds_read_b128 {vr(Q+8*i+4,4)}, v5 offset:1024""")
    try_loads(block=True)
    def QK(u, m):
        kt, qs = (u >> 2) & 3, u & 3
        s = S + 16 * (u & 1)
        c = "0" if m == 0 else vr(s, 16)
        return f"{MF} {vr(s,16)}, {vr(KV+16*kt+4*m,4)}, {vr(Q+8*qs+4*m,4)}, {c}"
    def PV(u, m):
        kt, qs = (u >> 2) & 3, u & 3
        return f"{MF} {vr(O+16*qs,16)}, {vr(KV+16*kt+8+4*m,4)}, {vr(P+8*(u&1)+4*m,4)}, {vr(O+16*qs,16)}"
    SS = [S, S + 16, KV + 32, KV + 48]
    def samp(i, m): return f"{MF} {vr(SS[i],16)}, {vr(SK+4*m,4)}, {vr(Q+8*i+4*m,4)}, {'0' if m == 0 else vr(SS[i],16)}"
    def mx(i):
        for x in max16_list(4, SS[i]): a(x)
        a(f"s_mov_b32 exec_lo, 0\nv_cvt_pk_bf16_f32 v{Q+8*i+6}, -v4, 0\ns_mov_b32 exec_lo, -1")
    a("s_waitcnt vmcnt(8) lgkmcnt(0)")
    for i in range(4): a(samp(i, 0)); a(samp(i, 1))
    mx(0)
    a("s_waitcnt vmcnt(4)")
    a(QK(0, 0)); a(QK(0, 1))
    mx(1); mx(2)
    for x in ldK(2, "s55") + ldV(2, "s55"): a(x)
    mx(3)
    for x in ldK(3, "s56"): a(x)
    for i in range(0, 8, 2): a(f"v_pk_mul_f32 {vr(KV+56+i,2)}, {vr(P+8,2)}, {vr(P+8,2)}")
    for i in range(3):
        a(f"""s_add_u32 s26, s{W}, {i+1}
        s_and_b32 s26, s26, 3
        s_mul_i32 s26, s26, 12288
        s_add_u32 s26, s26, {CB + i*4096}
        v_add_u32 v{4+i}, s26, v1""")
    a(f"s_mul_i32 s26, s{W}, 12288\ns_add_u32 s26, s26, {CB}\nv_add_u32 v2, s26, v1")
    lds_inc(a, VC, C_L, V1)
    st(a, 7)
    a("s_mov_b32 s57, 3")
    def substep(u, ex, last=False):
        s = S + 16 * (u & 1); p = P + 8 * (u & 1)
        e = lambda i: f"v_exp_f32 v{s+i}, v{s+i}"
        c = lambda i: f"v_cvt_pk_bf16_f32 v{p+i}, v{s+2*i}, v{s+2*i+1}"
        q0, q1 = ([], []) if last else ([QK(u+1, 0)], [QK(u+1, 1)])
        seq = q0 + ex[0] + [e(0), e(1), e(2), e(3), c(0), e(4),
               PV(u-1, 0)] + ex[1] + [e(5), c(1), e(6), e(7), c(2), e(8)] + q1 + ex[2] + [e(9), c(3), e(10), e(11), c(4), e(12),
               PV(u-1, 1)] + ex[3] + [e(13), c(5), e(14), e(15), c(6), c(7)]
        for x in seq: a(x)
    a(".p2align 6")
    a.label("L_loop")
    for u in range(16):
        kt, qs = u >> 2, u & 3
        ex = [[], [], [], []]
        if qs == 1:
            l = ldV((kt + 3) & 3, "s56")
            ex[0] = [l[0]]; ex[1] = [l[1]]; ex[2] = ["s_add_u32 s56, s56, 4096"]
        if u == 0: ex[0] = [f"ds_read_b32 v7, v{VF} offset:{C_R+4}"]
        if u == 1:
            ex[2] = ["s_waitcnt lgkmcnt(0)", "v_readfirstlane_b32 s56, v7"]
            ex[3] = ["s_sub_u32 s56, s56, 1"]
        if u == 2:
            ex[0] = ["s_cbranch_scc1 L_nextwait", "L_nextok:", f"v_add_u32 v{VF}, 4, v{VF}"]
        if qs == 2 and "nowait" not in EXP: ex[3] = ["s_waitcnt vmcnt(10)"]
        if qs == 0 and "nowait" not in EXP: ex[3] = ["s_waitcnt vmcnt(10)"]
        if qs == 3:
            l = ldK(kt, "s56")
            ex[0] = [l[0]]; ex[1] = [l[1]]
        if u == 12: ex[0] = [f"ds_read_b32 v7, v{VC} offset:{C_F}"]
        if u == 13: ex[3] = ["s_sub_u32 s57, s57, 1"]
        if "itst" in EXP and u in (0, 8):
            a("s_waitcnt lgkmcnt(0)")
            for i in range(1, 6): a(f"s_mov_b32 s{72+2*i}, s{72+2*i+2}")
            a("s_memtime s[84:85]")
        if "noload" in EXP: ex = [[y for y in x if "buffer_load" not in y] for x in ex]
        substep(u, ex)
        if u == 13: a("s_cbranch_scc1 L_tail")
    a("s_branch L_loop")
    a.label("L_tail")
    st(a, 8)
    a(f"""s_waitcnt lgkmcnt(0)
    v_cmp_gt_u32 vcc, 4, v7
    s_cbranch_vccnz L_wait_ffn
    L_ffn_free:""")
    wr = lambda i, k: f"ds_write_b128 v{4+i}, {vr(O+16*i+4*k,4)} offset:{k*1024}"
    substep(14, [[], [wr(0, 0)], [wr(0, 1)], [wr(0, 2)]])
    substep(15, [[wr(0, 3)], [wr(1, 0)], [wr(1, 1)], [wr(1, 2)]], last=True)
    a(PV(15, 0)); a(wr(1, 3)); a(PV(15, 1))
    for k in range(4): a(wr(2, k))
    lds_inc(a, VC, C_C, V1)
    srd(a, 20, 50, 2048 * 896)
    TT = S
    OO = O + 16 * OWN
    a(f"""s_lshl_b32 s28, s35, 4
    s_add_u32 s28, s28, s{H}
    s_lshr_b32 s56, s28, 2
    s_lshl_b32 s56, s56, 5
    s_and_b32 s26, s{H}, 3
    s_add_u32 s56, s56, s26
    s_lshl_b32 s56, s56, 2
    s_add_u32 s56, s56, {WS_OFL}
    s_lshl_b32 s52, s28, 11
    s_add_u32 s52, s52, {WS_O}
    s_mov_b32 s57, 0""")
    spin_lds(a, VC, C_C, 4, 7)
    for k in range(12): a(f"ds_read_b128 {vr(TT+4*k,4)}, v2 offset:{k*1024}")
    a(f"s_lshl_b32 s26, s{W}, 2\nv_add_u32 v7, s26, v{VC}\nds_write_b32 v7, v{V1} offset:{C_P}")
    for i in range(3):
        a(f"s_waitcnt lgkmcnt({9-4*i})")
        for k in (6, 7, 0, 1, 2, 3, 4, 5): a(f"v_pk_add_f32 {vr(OO+2*k,2)}, {vr(OO+2*k,2)}, {vr(TT+16*i+2*k,2)}")
    a.label("L_fin")
    a(f"""v_mov_b32 v5, v{OO+12}
    v_mov_b32 v4, v{OO+12}
    s_mov_b32 exec_lo, 0
    v_mov_b32 v{OO+12}, 0
    s_mov_b32 exec_lo, -1
    v_permlane32_swap_b32 v5, v4
    v_rcp_f32 v6, v4
    s_mov_b32 s28, 0x30800000
    s_mov_b32 s29, 0x4e800000
    v_cmp_nle_f32 s[54:55], s28, v4
    v_cmp_nge_f32 s[62:63], s29, v4
    v_pk_add_f32 v[4:5], {vr(OO,2)}, {vr(OO+2,2)}""")
    for k in range(2, 8): a(f"v_pk_add_f32 v[4:5], v[4:5], {vr(OO+2*k,2)}")
    a(f"""v_add_f32 v4, v4, v5
    s_movk_i32 s28, 0x207
    v_cmp_class_f32 vcc, v4, s28
    s_or_b64 s[54:55], s[54:55], s[62:63]""")
    for k in range(8): a(f"v_pk_mul_f32 {vr(OO+2*k,2)}, {vr(OO+2*k,2)}, v[6:7] op_sel_hi:[1,0]")
    for k in range(8): a(f"v_cvt_pk_bf16_f32 v{Q+k}, v{OO+2*k}, v{OO+2*k+1}")
    a(f"""v_mov_b32 v6, s{T}
    s_or_b64 s[54:55], s[54:55], vcc
    s_cbranch_scc1 L_bad
    L_good:
    buffer_store_dwordx4 {vr(Q,4)}, v1, s[8:11], s52 offen sc1
    buffer_store_dwordx4 {vr(Q+4,4)}, v1, s[8:11], s52 offen offset:1024 sc1
    s_mov_b64 exec, 1
    buffer_atomic_swap v6, v{VZ}, s[8:11], s56 offen sc1
    s_mov_b64 exec, -1""")
    st(a, 9)
    a(f"""s_mov_b32 s26, {WS_G}
    buffer_load_dwordx2 {vr(GR,2)}, v{VGO}, s[8:11], s26 offen sc1
    buffer_load_dwordx4 {vr(XR,4)}, v{VXO}, s[12:15], s59 offen
    buffer_load_dwordx4 {vr(XR+4,4)}, v{VXO}, s[12:15], s59 offen offset:32""")
    WOF = 104; B = 232; ACC = 8; U = 40
    OSB = [40, 72]
    a(f"""v_bfe_u32 v4, v3, 2, 2
    v_lshl_add_u32 v4, v{VH}, 2, v4
    v_mul_u32_u24 v4, 224, v4
    v_bfe_u32 v5, v3, 4, 1
    v_lshl_add_u32 v4, v5, 5, v4
    v_and_b32 v5, 1, v3
    v_lshl_add_u32 v4, v5, 4, v4
    v_bfe_u32 v5, v3, 1, 1
    v_lshl_add_u32 v4, v5, 3, v4
    s_mul_i32 s28, s{W}, 56
    v_add_u32 v24, s28, v4
    v_add_u32 v25, {8*28*224}, v24
    v_add_u32 v26, {CB}, v1
    v_lshlrev_b32 v27, 2, v{VT}
    v_add_u32 v27, {UPDI}, v27
    s_mul_i32 s28, s{W}, 112
    s_add_u32 s28, s28, {UPD}
    v_lshl_add_u32 v28, v{VH}, 5, s28
    v_mov_b32 v29, {CNT}
    v_mov_b32 v30, 0
    v_mov_b32 v31, 0
    s_waitcnt vmcnt(6)""")
    spin_lds(a, 29, C_W, 2, 6)
    for k in range(32):
        hd, m = k >> 1, k & 1
        o = (28 * (hd & 7) + 16 * m) * 224
        b = 24 + (hd >> 3)
        a(f"ds_read_b64_tr_b16 {vr(WOF+4*k,2)}, v{b} offset:{o}\nds_read_b64_tr_b16 {vr(WOF+4*k+2,2)}, v{b} offset:{o+8*224}")
    for k in range(8): a(f"v_pk_mul_f32 {vr(ACC+2*k,2)}, v[30:31], v[30:31]")
    a("s_waitcnt vmcnt(0)")
    for k in range(8):
        a(f"v_lshlrev_b32 v{B+2*k}, 16, v{XR+k}\nv_and_b32 v{B+2*k+1}, 0xffff0000, v{XR+k}")
    a(f"""v_cmp_ne_u32 vcc, s{T}, v{GR+1}
    s_cbranch_vccnz L_gate
    L_gate_ok:
    v_sub_f32 v32, 1.0, v{GR}
    v_cvt_pk_bf16_f32 v32, v32, v32
    v_lshlrev_b32 v32, 16, v32
    s_movk_i32 s57, 0x40f
    s_mov_b32 s60, {SPIN_LIMIT}""")
    if "twait" not in EXP: st(a, 10)
    def rd(p):
        a(f"""s_ff1_i32_b32 s27, s26
        s_bitset0_b32 s57, s27
        s_mul_i32 s28, s27, 12288
        v_add_u32 v7, s28, v26""")
        for k in range(8): a(f"ds_read_b128 {vr(OSB[p]+4*k,4)}, v7 offset:{k*1024}")
    a(f"""L_idle:
    ds_read_b32 v6, v29 offset:{C_O}
    s_sub_u32 s60, s60, 1
    s_cbranch_scc1 L_exit
    s_waitcnt lgkmcnt(0)
    v_readfirstlane_b32 s61, v6
    s_and_b32 s26, s61, s57
    s_cbranch_scc0 L_idle
    s_bitcmp1_b32 s26, 10
    s_cbranch_scc1 L_blkU""")
    rd(0)
    a(f"ds_read_b32 v6, v29 offset:{C_O}")
    for p in range(2):
        a(f"""L_st{p}:
        s_mov_b32 s29, s27
        s_waitcnt lgkmcnt(0)
        v_readfirstlane_b32 s61, v6
        s_and_b32 s26, s61, s57
        s_and_b32 s26, s26, 15
        s_cbranch_scc0 L_mm{p}""")
        rd(1 - p)
        a(f"""ds_read_b32 v6, v29 offset:{C_O}
        L_mm{p}:
        s_cmp_eq_u32 s29, 1
        s_cbranch_scc1 L_m{p}1
        s_cmp_eq_u32 s29, 2
        s_cbranch_scc1 L_m{p}2
        s_cmp_eq_u32 s29, 3
        s_cbranch_scc1 L_m{p}3""")
        for g in range(4):
            a(f"L_m{p}{g}:")
            for k in range(8):
                a(f"{MF} {vr(ACC,16)}, {vr(WOF+32*g+4*k,4)}, {vr(OSB[p]+4*k,4)}, {vr(ACC,16)}")
            if g < 3: a(f"s_branch L_md{p}")
        a(f"""L_md{p}:
        s_cmp_lg_u32 s26, 0
        s_cbranch_scc1 L_st{1-p}""")
        if p == 0: a("s_branch L_next")
    a("L_next:\ns_cmp_lg_u32 s57, 0\ns_cbranch_scc1 L_idle")
    if "twait" not in EXP: st(a, 11)
    a("s_nop 7")
    for m in range(2):
        for e in range(4*m, 4*m+4):
            a(f"v_pk_fma_f32 {vr(B+2*e,2)}, {vr(ACC+2*e,2)}, {vr(GR,2)}, {vr(B+2*e,2)} op_sel_hi:[1,0,1]")
        for e in range(4*m, 4*m+4): a(f"v_cvt_pk_bf16_f32 v{40+e}, v{B+2*e}, v{B+2*e+1}")
        if m == 0:
            a(f"buffer_store_dwordx4 v[40:43], v{VXO}, s[20:23], s59 offen{OUTAUX}")
        else:
            a(f"""s_mov_b32 exec_hi, 0
            buffer_store_dwordx4 v[44:47], v{VXO}, s[20:23], s59 offen offset:32{OUTAUX}
            s_mov_b64 exec, 0xffffffff
            s_not_b64 exec, exec
            buffer_store_dwordx2 v[44:45], v{VXO}, s[20:23], s59 offen offset:32{OUTAUX}""")
    st_end(a)
    diag_end(a)
    a("s_endpgm")
    a(f"""L_blkU:
    ds_read_b32 v6, v27
    s_bitset0_b32 s57, 10
    s_waitcnt lgkmcnt(0)
    v_cmp_le_i32 vcc, 0, v6
    s_cbranch_vccz L_noupd
    s_mov_b64 exec, vcc
    v_mul_u32_u24 v6, 448, v6
    v_add_u32 v28, v28, v6""")
    for k in range(4): a(f"ds_read_b128 {vr(U+4*k,4)}, v28 offset:{64*(k>>1)+16*(k&1)}")
    a("s_waitcnt lgkmcnt(0)")
    for k in range(8):
        a(f"""v_pk_add_f32 {vr(B+2*k,2)}, {vr(B+2*k,2)}, {vr(U+2*k,2)}
        v_cvt_pk_bf16_f32 v{B+2*k}, v{B+2*k}, v{B+2*k+1}
        v_and_b32 v{B+2*k+1}, 0xffff0000, v{B+2*k}
        v_lshlrev_b32 v{B+2*k}, 16, v{B+2*k}""")
    a("s_mov_b64 exec, -1\nL_noupd:")
    for k in range(8): a(f"v_pk_mul_f32 {vr(B+2*k,2)}, {vr(B+2*k,2)}, v[32:33] op_sel_hi:[1,0]")
    a("s_branch L_next")
    a("L_bad:\ns_cmp_eq_u32 s57, 0\ns_cbranch_scc1 L_slow")
    for k in range(8): a(f"v_min_u32 v{Q+k}, -2, v{Q+k}")
    a("s_branch L_good")
    a.label("L_wait_ffn")
    spin_lds(a, VC, C_F, 4, 7)
    a("s_branch L_ffn_free")
    a.label("L_nextwait")
    spin_lds(a, VF, C_R + 4, 1, 7)
    a("s_sub_u32 s56, s61, 1\ns_branch L_nextok")
    a(f"""L_gate:
    s_mov_b32 s26, {WS_G}
    s_mov_b32 s60, {SPIN_LIMIT}
    L_gate1:
    buffer_load_dwordx2 {vr(GR,2)}, v{VGO}, s[8:11], s26 offen sc1
    s_waitcnt vmcnt(0)
    v_cmp_ne_u32 vcc, s{T}, v{GR+1}
    s_cbranch_vccz L_gate_ok
    s_sub_u32 s60, s60, 1
    s_cbranch_scc0 L_gate1
    s_endpgm""")
    a.label("L_slow")
    a(f"""s_mov_b32 s57, 1
    s_add_u32 s55, s53, {64*4096}
    s_mov_b32 s54, s53
    s_mov_b32 exec_lo, 0
    v_mov_b32 v{QO+6}, 0
    v_mov_b32 v{QO+7}, 0
    s_mov_b32 exec_lo, -1
    v_mov_b32 v4, 0xff800000
    L_slow1:
    buffer_load_dwordx4 {vr(KV,4)}, v1, s[8:11], s54 offen sc1
    buffer_load_dwordx4 {vr(KV+4,4)}, v1, s[8:11], s54 offen offset:1024 sc1
    s_waitcnt vmcnt(0)
    {MF} {vr(S,16)}, {vr(KV,4)}, {vr(QO,4)}, 0
    {MF} {vr(S,16)}, {vr(KV+4,4)}, {vr(QO+4,4)}, {vr(S,16)}""")
    for x in max16_list(4, S, init=True): a(x)
    a("""s_add_u32 s54, s54, 4096
    s_cmp_lt_u32 s54, s55
    s_cbranch_scc1 L_slow1
    v_mov_b32 v5, v4
    v_permlane32_swap_b32 v4, v5
    v_max_f32 v4, v4, v5""")
    split_neg_max(a, 4, 5, 6, QO + 6, QO + 7)
    for i in range(16): a(f"v_mov_b32 v{OO+i}, 0")
    a(f"""s_mov_b32 s54, s53
    L_slow2:
    buffer_load_dwordx4 {vr(KV,4)}, v1, s[8:11], s54 offen sc1
    buffer_load_dwordx4 {vr(KV+4,4)}, v1, s[8:11], s54 offen offset:1024 sc1
    buffer_load_dwordx4 {vr(KV+8,4)}, v1, s[8:11], s54 offen offset:2048 sc1
    buffer_load_dwordx4 {vr(KV+12,4)}, v1, s[8:11], s54 offen offset:3072 sc1
    s_waitcnt vmcnt(0)
    {MF} {vr(S,16)}, {vr(KV,4)}, {vr(QO,4)}, 0
    {MF} {vr(S,16)}, {vr(KV+4,4)}, {vr(QO+4,4)}, {vr(S,16)}""")
    for i in range(16): a(f"v_exp_f32 v{S+i}, v{S+i}")
    for i in range(8): a(f"v_cvt_pk_bf16_f32 v{P+i}, v{S+2*i}, v{S+2*i+1}")
    a(f"""{MF} {vr(OO,16)}, {vr(KV+8,4)}, {vr(P,4)}, {vr(OO,16)}
    {MF} {vr(OO,16)}, {vr(KV+12,4)}, {vr(P+4,4)}, {vr(OO,16)}
    s_nop 7
    s_nop 7
    s_add_u32 s54, s54, 4096
    s_cmp_lt_u32 s54, s55
    s_cbranch_scc1 L_slow2
    s_branch L_fin""")

def service_wave(a):
    a.label("L_service")
    a(f"""v_mov_b32 v14, {CNT}
    v_mov_b32 v15, 1
    v_mov_b32 v9, 0""")
    srd(a, 8, 36, (1 << 28) - WSBASE)
    tag(a)
    a("s_waitcnt vmcnt(0)")
    lds_inc(a, 14, C_Q1, 15)
    a(f"""v_and_b32 v32, 31, v3
    v_lshrrev_b32 v33, 5, v3
    v_lshlrev_b32 v219, 3, v1
    v_lshrrev_b32 v220, 2, v1
    v_and_b32 v4, 7, v3
    v_lshlrev_b32 v217, 3, v4
    s_lshr_b32 s58, s{H}, 2
    s_lshl2_add_u32 s58, s{J}, s58
    s_cmp_ge_u32 s{L}, 2
    s_cbranch_scc1 L_svcB""")
    def sel_load(lbl):
        a(f"""s_mov_b32 s26, {WS_SEL}
        s_mov_b32 s60, {SPIN_LIMIT}
        {lbl}:
        buffer_load_dwordx2 v[20:21], v217, s[8:11], s26 offen sc1
        s_waitcnt vmcnt(0)
        v_cmp_ne_u32 vcc, s{T}, v21
        s_cbranch_vccz {lbl}_ok
        s_sleep 4
        s_sub_u32 s60, s60, 1
        s_cbranch_scc0 {lbl}
        s_endpgm
        {lbl}_ok:""")
    a(f"""v_mov_b32 v6, {KEYS}
    s_lshl_b32 s28, s{L}, 8
    v_add3_u32 v7, v220, v6, s28
    s_lshl_b32 s27, s{J}, 6
    s_add_u32 s27, s27, {WS_R}
    s_cmp_eq_u32 s{RL}, 14
    s_cbranch_scc1 L_rank
    s_cmp_lg_u32 s2, {SELECTOR}
    s_cbranch_scc1 L_svcA
    s_lshl_b32 s26, s{L}, 9
    s_add_u32 s26, s26, {WS_R}
    s_mov_b32 s27, {WS_SEL}
    v_lshlrev_b32 v4, 3, v3
    v_mov_b32 v5, 2
    s_mov_b32 s60, {SPIN_LIMIT}
    L_keys:
    v_mov_b32 v20, 0
    v_mov_b32 v21, 0
    buffer_atomic_or_x2 v[20:21], v4, s[8:11], s26 offen sc0 sc1
    s_sub_u32 s60, s60, 1
    s_cbranch_scc1 L_exit
    s_waitcnt vmcnt(0)
    v_cmp_ne_u32 vcc, s{T}, v21
    s_cbranch_vccnz L_keys
    ds_write_b32 v7, v20""")
    lds_inc(a, 14, C_K, 5)
    a.label("L_rank")
    spin_lds(a, 14, C_K, 4, 8)
    st(a, 10)
    if STAMP: a("s_waitcnt lgkmcnt(0)")
    a(f"ds_read_b32 v20, v7\nv_mov_b32 v22, 0\nv_mov_b32 v21, s{T}\ns_mov_b32 s57, 0\nL_rk:")
    for k in range(8): a(f"ds_read_b128 {vr(40+4*k,4)}, v6 offset:{16*k}")
    a("v_add_u32 v6, 128, v6")
    CS = ["s[52:53]", "s[54:55]", "s[62:63]", "s[28:29]"]
    for k in range(8):
        a(f"s_waitcnt lgkmcnt({7-k})")
        for e in range(4): a(f"v_cmp_gt_u32 {CS[e]}, v{40+4*k+e}, v20")
        for e in range(4): a(f"v_addc_co_u32 v22, vcc, 0, v22, {CS[e]}")
    a(f"""s_add_u32 s57, s57, 1
    s_cmp_lt_u32 s57, 4
    s_cbranch_scc1 L_rk
    v_cmp_gt_u32 vcc, 8, v22
    v_lshlrev_b32 v22, 3, v22
    s_mov_b64 exec, vcc
    s_cbranch_execz L_rank_done
    buffer_atomic_swap_x2 v[20:21], v22, s[8:11], s27 offen sc1
    L_rank_done:
    s_mov_b64 exec, -1""")
    st(a, 11)
    a.label("L_svcA")
    GI = CB; DI = QX; HB = 101376
    FT, KS = 56, 59
    a(f"""s_cmp_ge_u32 s2, 196
    s_cbranch_scc1 L_nofn
    s_mul_i32 s{FT}, s2, 9363
    s_lshr_b32 s{FT}, s{FT}, 16
    s_mul_i32 s26, s{FT}, 7
    s_sub_u32 s{KS}, s2, s26
    v_lshrrev_b32 v4, 3, v3
    v_and_b32 v5, 2, v4
    v_lshlrev_b32 v5, 1, v5
    v_and_b32 v6, 7, v3
    v_xor_b32 v5, v5, v6
    v_mul_u32_u24 v6, 3584, v4
    v_lshl_add_u32 v34, v5, 4, v6
    v_add_u32 v35, {8*3584-1024}, v34
    v_add_u32 v36, {2*(8*3584-1024)}, v34
    v_add_u32 v37, {3*(8*3584-1024)}, v34
    v_lshrrev_b32 v6, 2, v3
    v_mul_u32_u24 v6, 896, v6
    v_and_b32 v5, 3, v3
    v_lshl_add_u32 v200, v5, 4, v6
    v_add_u32 v201, {16*896-1024}, v200
    v_add_u32 v202, {2*(16*896-1024)}, v200
    v_add_u32 v203, {3*(16*896-1024)}, v200
    v_bfe_u32 v4, v3, 2, 2
    v_lshl_add_u32 v5, v33, 3, v4
    v_lshlrev_b32 v5, 7, v5
    v_lshrrev_b32 v4, 1, v4
    v_lshl_add_u32 v5, v4, 6, v5
    v_bfe_u32 v4, v3, 4, 1
    v_lshl_add_u32 v5, v4, 5, v5
    v_and_b32 v4, 3, v3
    v_lshl_add_u32 v5, v4, 3, v5
    s_lshl_b32 s54, s{L}, 13
    s_add_u32 s54, s54, {GI}
    v_add_u32 v38, s54, v5
    v_xor_b32 v39, 64, v38
    v_lshrrev_b32 v6, 7, v5
    v_and_b32 v5, 63, v5
    v_lshl_add_u32 v5, v6, 6, v5
    s_lshl_b32 s26, s{L}, 12
    s_add_u32 s26, s26, {DI}
    v_add_u32 v210, s26, v5
    ; partial-sum store offset 4hh*256 + col*4 ; h addresses ; y offsets
    v_lshlrev_b32 v212, 10, v33
    v_lshl_add_u32 v212, v32, 2, v212
    s_lshl_b32 s26, s{L}, 9
    s_add_u32 s26, s26, {HB}
    v_lshl_add_u32 v214, v3, 3, s26
    v_lshlrev_b32 v4, 4, v217
    v_lshl_add_u32 v4, v33, 4, v4
    v_add_u32 v218, {HB}, v4
    v_mul_u32_u24 v215, {4*1792}, v33
    v_lshl_add_u32 v215, v32, 2, v215
    v_add_u32 v216, {2*1792}, v215""")
    srd(a, 16, 42, 448 * 3584)
    a(f"""s_cmp_eq_u32 s{L}, 1
    s_cselect_b64 s[16:17], s[44:45], s[42:43]
    s_mul_i32 s52, s{KS}, {64*3584}
    s_lshl_b32 s28, s{FT}, 7
    s_add_u32 s52, s52, s28""")
    spin_lds(a, 14, C_L, 4, 8, sleep=2)
    st(a, 3)
    NR = 2 if "fine" in EXP else 4
    XS_ = 40; FW = 56; AC = 104
    a("s_mov_b32 m0, s54\ns_nop 0")
    for k in range(8):
        if k == 4: a(f"s_add_u32 s52, s52, {32*3584}\ns_add_u32 m0, s54, 4096")
        if k == 8 - NR: sel_load("L_sel1")
        elif k and k % NR == 0: a("s_waitcnt vmcnt(0)")
        a(f"buffer_load_dwordx4 v{34+(k&3)}, s[16:19], s52 offen offset:{1024*(k&3)} lds")
    a(f"""v_and_b32 v4, 0xffff, v20
    v_sub_u32 v4, 0xffff, v4
    v_mul_u32_u24 v4, 896, v4
    v_lshl_add_u32 v4, v33, 4, v4
    s_lshl_b32 s26, s{KS}, 7
    s_mov_b32 exec_lo, 0xff
    s_mov_b32 exec_hi, 0xff""")
    for k in range(4):
        a(f"buffer_load_dwordx4 {vr(XS_+4*k,4)}, v4, s[12:15], s26 offen offset:{32*k}")
    a("s_mov_b64 exec, -1\ns_waitcnt vmcnt(4)")
    for k in range(4):
        for n in range(2):
            a(f"ds_read_b64_tr_b16 {vr(FW+8*k+4*n,2)}, v{38+n} offset:{k*2048}\nds_read_b64_tr_b16 {vr(FW+8*k+4*n+2,2)}, v{38+n} offset:{k*2048+512}")
    lds_inc(a, 14, C_F, 15)
    a(f"""s_mov_b64 s[16:17], s[46:47]
    s_mul_i32 s28, s{FT}, {64*896}
    s_add_u32 s28, s28, s26
    s_lshl_b32 s29, s{L}, 6
    s_add_u32 s28, s28, s29
    s_lshl_b32 s29, s{L}, 12
    s_add_u32 m0, s29, {DI}
    s_lshl1_add_u32 s26, s2, s{L}
    s_lshl_b32 s26, s26, 11
    s_add_u32 s26, s26, {WS_GP}
    s_waitcnt lgkmcnt(0)""")
    st(a, 4)
    for k in range(4):
        a(f"s_waitcnt vmcnt({3-k})")
        for n in range(2):
            a(f"{MF} {vr(AC+16*n,16)}, {vr(XS_+4*k,4)}, {vr(FW+8*k+4*n,4)}, {'0' if k==0 else vr(AC+16*n,16)}")
    for n in range(2):
        for k in range(4):
            a(f"buffer_store_dword v{AC+16*n+k}, v212, s[8:11], s26 offen offset:{256*k+128*n} sc1")
    for k in range(4): a(f"buffer_load_dwordx4 v{200+k}, s[16:19], s28 offen offset:{1024*k} lds")
    a(f"""s_lshl1_add_u32 s26, s{KS}, s{L}
    s_lshl_b32 s26, s26, 2
    s_mul_i32 s28, s{FT}, {7*128}
    s_add_u32 s26, s26, s28
    s_add_u32 s26, s26, {WS_F1}
    s_waitcnt vmcnt(4)""")
    signal(a, 5, 219, "s26", "0x7f")
    st(a, 5)
    a(f"s_lshl_b32 s26, s2, 7\ns_add_u32 s26, s26, {WS_F1}")
    poll_atomic(a, 5, 220, "s26", "0x3fff", 0)
    st(a, 6)
    GP = 40
    a(f"s_mul_i32 s26, s{FT}, {7*4096}\ns_lshl_b32 s28, s{L}, 10\ns_add_u32 s26, s26, s28\ns_add_u32 s26, s26, {WS_GP}")
    for k in range(7):
        a(f"""buffer_load_dwordx4 {vr(GP+8*k,4)}, v1, s[8:11], s26 offen sc1
        buffer_load_dwordx4 {vr(GP+8*k+4,4)}, v1, s[8:11], s26 offen offset:2048 sc1""")
        if k < 6: a("s_add_u32 s26, s26, 4096")
    DW = 120
    for k in range(4):
        a(f"ds_read_b64_tr_b16 {vr(DW+4*k,2)}, v210 offset:{k*1024}\nds_read_b64_tr_b16 {vr(DW+4*k+2,2)}, v210 offset:{k*1024+256}")
    a(f"s_mov_b32 s28, {NLOG2E:#x}\ns_mov_b32 s29, {NLOG2E:#x}\ns_waitcnt vmcnt(0)")
    for k in range(1, 7):
        for e in range(4):
            a(f"v_pk_add_f32 {vr(GP+2*e,2)}, {vr(GP+2*e,2)}, {vr(GP+8*k+2*e,2)}")
    for e in range(2):
        a(f"""v_cvt_pk_bf16_f32 v22, v{GP+2*e}, v{GP+2*e+1}
        v_cvt_pk_bf16_f32 v24, v{GP+4+2*e}, v{GP+5+2*e}
        v_and_b32 v23, 0xffff0000, v22
        v_lshlrev_b32 v22, 16, v22
        v_pk_mul_f32 v[26:27], v[22:23], s[28:29]
        v_and_b32 v25, 0xffff0000, v24
        v_exp_f32 v26, v26
        v_exp_f32 v27, v27
        v_lshlrev_b32 v24, 16, v24
        v_pk_add_f32 v[26:27], v[26:27], 1.0 op_sel_hi:[1,0]
        v_rcp_f32 v26, v26
        v_rcp_f32 v27, v27
        s_nop 0
        v_pk_mul_f32 v[22:23], v[22:23], v[26:27]
        v_cvt_pk_bf16_f32 v22, v22, v23
        v_and_b32 v23, 0xffff0000, v22
        v_lshlrev_b32 v22, 16, v22
        v_pk_mul_f32 v[22:23], v[22:23], v[24:25]
        v_cvt_pk_bf16_f32 v{28+e}, v22, v23""")
    a("ds_write_b64 v214, v[28:29]")
    lds_inc(a, 14, C_S, 15)
    spin_lds(a, 14, C_S, 2, 8)
    for k in range(4): a(f"ds_read_b128 {vr(GP+4*k,4)}, v218 offset:{32*k}")
    for k in range(4):
        a(f"s_waitcnt lgkmcnt({3-k})\n{MF} {vr(AC,16)}, {vr(GP+4*k,4)}, {vr(DW+4*k,4)}, {'0' if k==0 else vr(AC,16)}")
    a(f"""s_mul_i32 s26, s{FT}, 14336
    s_lshl1_add_u32 s28, s{KS}, s{L}
    s_lshl_b32 s29, s28, 7
    s_add_u32 s26, s26, s29
    s_add_u32 s26, s26, {WS_YP}
    s_lshl2_add_u32 s28, s{FT}, s29
    s_add_u32 s28, s28, {WS_YFL}
    buffer_store_dword v{AC}, v215, s[8:11], s26 offen sc1
    buffer_store_dword v{AC+1}, v215, s[8:11], s26 offen offset:1792 sc1
    buffer_store_dword v{AC+2}, v216, s[8:11], s26 offen sc1
    buffer_store_dword v{AC+3}, v216, s[8:11], s26 offen offset:1792 sc1
    s_waitcnt vmcnt(0)""")
    signal(a, 5, 9, "s28", 1)
    st(a, 7)
    a("s_branch L_updA")
    a.label("L_nofn")
    lds_inc(a, 14, C_F, 15)
    spin_lds(a, 14, C_F, 4, 8, sleep=8)
    sel_load("L_sel2")
    a(f"""s_lshl2_add_u32 s26, s2, s{L}
    s_cmp_lg_u32 s26, {254*4}
    s_cbranch_scc1 L_updA""")
    a(f"s_mov_b32 s60, {SPIN_LIMIT}\nL_ep:")
    for k in range(4):
        a(f"s_mov_b32 s26, {WS_FL+8192*k}\nbuffer_load_dword v{24+k}, v219, s[8:11], s26 offen sc1")
    a(f"""s_sub_u32 s60, s60, 1
    s_cbranch_scc1 L_exit
    s_waitcnt vmcnt(0)
    v_xor_b32 v24, s{T}, v24
    v_bitop3_b32 v24, v24, v25, s{T} bitop3:0xf6
    v_bitop3_b32 v24, v24, v26, s{T} bitop3:0xf6
    v_bitop3_b32 v24, v24, v27, s{T} bitop3:0xf6
    v_cmp_ne_u32 vcc, 0, v24
    s_cbranch_vccnz L_ep
    s_mov_b32 s26, {WS_EP}""")
    flag_store(a, 5, 9, "s26")
    Y = 40
    a(f"""L_updA:
    s_and_b32 s53, s{H}, 3
    s_mul_i32 s53, s53, 224
    s_lshl_b32 s57, s{L}, 2
    s_lshr_b32 s26, s53, 6
    s_lshl_b32 s26, s26, 7
    s_add_u32 s62, s26, {WS_YFL}
    L_upd:
    v_readlane_b32 s52, v20, s57
    s_and_b32 s54, s52, 0xffff
    s_sub_u32 s54, 0xffff, s54
    s_lshr_b32 s26, s54, 5
    s_cmp_lg_u32 s26, s58
    s_cbranch_scc1 L_updn
    s_mov_b32 s60, {SPIN_LIMIT}
    s_mov_b32 exec_lo, 0x0fffffff
    s_mov_b32 exec_hi, 0x0fffffff
    L_yfl:
    v_mov_b32 v24, 0
    v_mov_b32 v25, 0
    buffer_atomic_or v24, v220, s[8:11], s62 offen sc0 sc1
    buffer_atomic_or v25, v220, s[8:11], s62 offen offset:256 sc0 sc1
    s_waitcnt vmcnt(0)
    v_xor_b32 v24, s{T}, v24
    v_bitop3_b32 v24, v24, v25, s{T} bitop3:0xf6
    v_cmp_ne_u32 vcc, 0, v24
    s_cbranch_vccz L_yok
    s_sub_u32 s60, s60, 1
    s_cbranch_scc0 L_yfl
    s_endpgm
    L_yok:
    v_mul_u32_u24 v4, {14*14336}, v33
    v_lshl_add_u32 v4, v32, 4, v4
    s_mul_i32 s26, s57, 1792
    s_lshl1_add_u32 s26, s53, s26
    s_add_u32 s26, s26, {WS_YP}""")
    for i in range(14):
        a(f"buffer_load_dwordx4 {vr(Y+4*i,4)}, v4, s[8:11], s26 offen sc1\ns_add_u32 s26, s26, 14336")
    a(f"""s_mov_b64 exec, -1
    s_lshr_b32 s26, s52, 16
    s_not_b32 s55, s26
    s_and_b32 s29, s26, 0x7fff
    s_bitcmp1_b32 s26, 15
    s_cselect_b32 s26, s29, s55
    s_lshl_b32 s26, s26, 16
    v_mov_b32 v6, {NLOG2E:#x}
    v_mul_f32 v6, s26, v6
    v_exp_f32 v6, v6
    v_add_f32 v6, 1.0, v6
    v_rcp_f32 v6, v6
    v_cvt_pk_bf16_f32 v6, v6, v6
    v_lshlrev_b32 v6, 16, v6
    s_mul_i32 s26, s57, 448
    s_add_u32 s26, s26, {UPD}
    v_lshl_add_u32 v7, v32, 4, s26
    s_waitcnt vmcnt(0)""")
    for i in range(1, 14):
        a(f"v_pk_add_f32 {vr(Y,2)}, {vr(Y,2)}, {vr(Y+4*i,2)}\nv_pk_add_f32 {vr(Y+2,2)}, {vr(Y+2,2)}, {vr(Y+4*i+2,2)}")
    for k in range(4): a(f"v_mov_b32 v{Y+4+k}, v{Y+k}")
    for k in range(4): a(f"v_permlane32_swap_b32 v{Y+k}, v{Y+4+k}")
    for k in range(4): a(f"v_add_f32 v{Y+k}, v{Y+k}, v{Y+4+k}")
    for k in range(0, 4, 2):
        a(f"""v_cvt_pk_bf16_f32 v{Y+k}, v{Y+k}, v{Y+k+1}
        v_and_b32 v{Y+k+1}, 0xffff0000, v{Y+k}
        v_lshlrev_b32 v{Y+k}, 16, v{Y+k}
        v_mul_f32 v{Y+k}, v{Y+k}, v6
        v_mul_f32 v{Y+k+1}, v{Y+k+1}, v6
        v_cvt_pk_bf16_f32 v{Y+k}, v{Y+k}, v{Y+k+1}
        v_and_b32 v{Y+k+1}, 0xffff0000, v{Y+k}
        v_lshlrev_b32 v{Y+k}, 16, v{Y+k}""")
    a(f"""s_and_b32 s54, s54, 31
    v_mov_b32 v5, s57
    s_lshl_b32 s26, s54, 2
    s_add_u32 s26, s26, {UPDI}
    v_mov_b32 v4, s26
    s_mov_b64 exec, 0x0fffffff
    ds_write_b128 v7, {vr(Y,4)}
    s_mov_b64 exec, 1
    ds_write_b32 v4, v5
    s_mov_b64 exec, -1
    L_updn:
    s_add_u32 s57, s57, 1
    s_and_b32 s26, s57, 3
    s_cbranch_scc1 L_upd
    v_mov_b32 v6, 512""")
    lds_inc(a, 14, C_O, 6)
    st(a, 9)
    a("s_branch L_ofetch")
    a.label("L_svcB")
    OUTT = ""
    if "outtouch" in EXP:
        OUTT = f"""s_cmp_lg_u32 s55, {42*1024}
        s_cbranch_scc1 L_noot
        s_mov_b32 s20, s50
        s_mov_b32 s21, s51
        s_mov_b32 s22, {2048*896}
        s_mov_b32 s23, 0x20000
        s_lshl_b32 s26, s58, 5
        v_add_u32 v4, s26, v32
        v_mul_u32_u24 v4, 896, v4
        s_add_u32 s26, s53, 127
        s_and_b32 s26, s26, 0xffffff80
        v_lshl_add_u32 v4, v33, 7, v4
        s_cmp_eq_u32 s53, 672
        s_cselect_b32 exec_hi, 0, -1
        buffer_store_dword v9, v4, s[20:23], s26 offen sc1
        s_mov_b64 exec, -1
        L_noot:"""
    WOPF = "s_mov_b32 exec_hi, 0x1ffff\nbuffer_load_dword v6, v219, s[16:19], s28 offen\ns_mov_b64 exec, -1" if "wopfS" not in EXP else ""
    for e in range(7):
        a(f"""v_add_u32 v4, {64*e}, v3
        v_mul_u32_u24 v5, 4682, v4
        v_lshrrev_b32 v5, 16, v5
        v_mul_u32_u24 v5, {896-224}, v5
        v_lshl_add_u32 v{200+e}, v4, 4, v5""")
    a(f"""v_mov_b32 v16, 0
    v_mov_b32 v17, 0
    v_mov_b32 v18, 0
    v_mov_b32 v19, 0
    v_add_u32 v209, {448*224}, v1
    s_cmp_eq_u32 s{L}, 2
    s_cbranch_scc1 L_svcB2
    v_lshrrev_b32 v4, 4, v3
    v_and_b32 v5, 15, v3
    v_lshlrev_b32 v5, 2, v5
    v_lshl_add_u32 v221, v4, 9, v5
    v_lshl_add_u32 v222, v4, 5, v14
    v_and_b32 v223, 48, v3
    v_and_b32 v5, 15, v3
    v_add_u32 v6, v5, v4
    v_lshl_add_u32 v224, v6, 14, 1
    v_bfm_b32 v225, v5, 0
    s_mul_i32 s26, s{H}, 28
    s_add_u32 s28, s26, 27
    s_xor_b32 s26, s26, s28
    s_mov_b32 s62, 0x55555555
    s_cmp_ge_u32 s26, 64
    s_cselect_b32 s62, -1, s62
    s_mov_b32 s63, s62
    s_lshr_b32 s28, s{J}, 2
    s_lshl4_add_u32 s26, s{H}, s28
    s_lshl_b32 s26, s26, 7
    s_add_u32 s26, s26, {WS_MB}""")
    spin_lds(a, 14, C_D, PCD, 8, sleep=1)
    at = lambda r: f"v_mov_b32 v{r}, 0\nbuffer_atomic_or v{r}, v221, s[8:11], s26 offen sc0 sc1"
    a(f"""s_mov_b32 s60, {SPIN_LIMIT}
    s_mov_b32 s52, 0x11111111
    s_mov_b32 s53, 0x11111111
    s_mov_b64 exec, s[62:63]""")
    for i in range(PD - 1): a(at(28 + i) + f"\ns_sleep {PG}")
    a("L_kv:")
    for i in range(PD):
        a(at(28 + (i + PD - 1) % PD))
        a(f"""s_waitcnt vmcnt({PD-1})
        v_cmp_ne_u32 vcc, s{T}, v{28+i}
        s_lshr_b64 s[28:29], vcc, 1
        s_or_b64 s[28:29], s[28:29], vcc
        s_lshr_b64 s[54:55], s[28:29], 2
        s_or_b64 s[28:29], s[28:29], s[54:55]
        s_andn2_b64 s[28:29], s[52:53], s[28:29]
        s_cbranch_scc0 L_kvn{i}
        s_andn2_b64 s[52:53], s[52:53], s[28:29]
        v_lshrrev_b64 v[4:5], v223, s[28:29]
        v_and_b32 v5, v225, v4
        v_bcnt_u32_b32 v5, v5, 0
        v_lshl_add_u32 v5, v5, 2, v222
        s_mov_b64 exec, s[28:29]
        ds_write_b32 v5, v224 offset:{C_R}
        s_mov_b64 exec, s[62:63]
        v_and_b32 v4, 0xffff, v4
        v_bcnt_u32_b32 v4, v4, 0
        v_lshl_add_u32 v222, v4, 2, v222
        s_cmp_eq_u64 s[52:53], 0
        s_cbranch_scc1 L_kvdone
        L_kvn{i}:""")
    a(f"""s_sub_u32 s60, s60, 1
    s_cbranch_scc0 L_kv
    s_endpgm
    L_kvdone:
    s_mov_b64 exec, -1
    L_svcB2:""")
    srd(a, 16, 38, 448 * 896)
    a(f"""s_and_b32 s53, s{H}, 3
    s_mul_i32 s53, s53, 224
    s_and_b32 s27, s{L}, 1
    s_mul_i32 s55, s27, {7*1024}
    s_mul_i32 s57, s27, {32*896}
    s_add_u32 s57, s57, s53
    s_lshl1_add_u32 s28, s25, s27
    s_mul_i32 s28, s28, {49*128}
    v_mov_b32 v24, -1
    v_mov_b32 v25, -1
    v_mov_b32 v26, -1
    v_mov_b32 v27, -1
    s_lshl_b32 s59, s{J}, 6
    s_add_u32 s59, s59, s{H}
    s_lshl1_add_u32 s59, s59, s27
    s_lshl_b32 s59, s59, 10
    s_add_u32 s59, s59, {WS_O}""")
    spin_lds(a, 14, C_L, 4, 8, sleep=2)
    st(a, 3)
    a(f"""ds_write_b128 v209, v[16:19]
    {WOPF}
    s_cmp_lg_u32 s{L}, 2
    s_cbranch_scc1 L_nofl
    s_lshl_b32 s26, s2, 7
    s_add_u32 s26, s26, {WS_FL}""")
    flag_store(a, 5, 9, "s26")
    a("L_nofl:\ns_waitcnt vmcnt(0)")
    if "wogate" in EXP: spin_lds(a, 14, C_F, 2, 8, sleep=4)
    a("L_wo:")
    for e in range(7):
        a(f"""s_add_u32 m0, s55, {e*1024}
        s_waitcnt vmcnt({WOP})
        buffer_load_dwordx4 v{200+e}, s[16:19], s57 offen lds""")
    a(f"""s_cmp_ge_u32 s55, {56*1024}
    s_cbranch_scc1 L_noclr
    buffer_store_dwordx4 v[24:27], v1, s[8:11], s59 offen sc1
    s_add_u32 s59, s59, {16*2048}
    L_noclr:
    {OUTT}
    s_sub_u32 s26, s55, {56*1024}
    s_cmp_ge_u32 s26, {14*1024}
    s_cbranch_scc1 L_noinc""")
    lds_inc(a, 14, C_F, 15)
    a(f"""L_noinc:
    s_add_u32 s55, s55, {14*1024}
    s_add_u32 s57, s57, {64*896}
    s_cmp_lt_u32 s55, {98*1024}
    s_cbranch_scc1 L_wo""")
    a("s_waitcnt vmcnt(0)")
    lds_inc(a, 14, C_W, 15)
    st(a, 8)
    a.label("L_ofetch")
    a(f"""s_lshl2_add_u32 s28, s58, s{L}
    s_lshl_b32 s29, s28, 13
    s_add_u32 s29, s29, {WS_O}
    s_add_u32 s27, s29, 4096
    s_lshl_b32 s28, s28, 7
    s_add_u32 s28, s28, {WS_OFL}
    s_mul_i32 s26, s{L}, 12288
    s_add_u32 s26, s26, {CB}
    v_add_u32 v7, s26, v1
    s_lshl_b32 s26, s{L}, 2
    v_add_u32 v6, s26, v14
    s_lshl_b32 s26, 1, s{L}
    v_mov_b32 v5, s26""")
    spin_lds(a, 6, C_P, 1, 8, sleep=4)
    poll_pipe(a, 28, 220, "s28", 15, D=PD, gap=PG)
    a("L_of:\nv_mov_b32 v4, 0")
    for k in range(8):
        a(f"buffer_load_dwordx4 {vr(40+4*k,4)}, v1, s[8:11], {'s29' if k < 4 else 's27'} offen offset:{(k&3)*1024} sc1")
    a("s_sub_u32 s60, s60, 1\ns_cbranch_scc1 L_exit")
    for k in range(8):
        a(f"""s_waitcnt vmcnt({7-k})
        ds_write_b128 v7, {vr(40+4*k,4)} offset:{k*1024}
        v_max3_u32 v4, v4, v{40+4*k}, v{41+4*k}
        v_max3_u32 v4, v4, v{42+4*k}, v{43+4*k}""")
    a("v_cmp_eq_u32 vcc, -1, v4\ns_cbranch_vccnz L_of")
    lds_inc(a, 14, C_O, 5)
    a("s_waitcnt vmcnt(0) lgkmcnt(0)")
    st_end(a)
    a("L_exit:\nL_code_end:\ns_endpgm")

def main(out):
    hdr = open("cdna_kernels/" + NAME + ".s.ref").read().split("; Override")[0]
    rep = []
    a = Asm()
    prologue_and_loader(a); main_wave(a); service_wave(a)
    t = hdr
    t += f"; @launch grid=(256,1,1) block=(512,1,1) lds={LDS_BYTES}\n"
    t += '.amdgcn_target "amdgcn-amd-amdhsa--gfx950"\n'
    t += kernel_text(NAME + "_kernel", a.l, 256, report=rep)
    open(out, "w").write(t)
    if "-v" in sys.argv: print("\n".join(rep))

if __name__ == "__main__":
    main(sys.argv[1])
```

```python
import sys, math, struct
from asmlib import *

NAME = "gated_mix__softmax_full_mha__moe_arch_mod__prompt"
STAMP = "-s" in sys.argv
EXP = set(x[2:] for x in sys.argv if x.startswith("-x"))
WS_KV = 0
WS_O = 4 << 20
WS_R = 6 << 20
WS_G = WS_R + 16384
WS_SEL = WS_R + 32768
WS_EP = WS_R + 40960
WS_FL = WS_R + 65536
WS_MB = WS_FL + 32768
WS_OFL = WS_MB + 32768
WS_YFL = WS_OFL + 32768
WS_F1 = WS_YFL + 4096
WS_YP = 7 << 20
WS_GP = 8 << 20
WS_ST = 16 << 20
XS = 0; WT = 65536; WQ = 122880; QX = 151552; UPD = 159744
WO = 0; CB = 102400
UPDI = UPD + 3584
KEYS = UPD
SELECTOR = 223
CNT = 163840 - 192
LDS_BYTES = 163840
C_Q1, C_Q2, C_X, C_L, C_S, C_D, C_C, C_O, C_W, C_F, C_K, C_P, C_R = 0, 4, 8, 12, 16, 20, 24, 28, 32, 36, 40, 48, 64

def f32bits(x): return struct.unpack("<I", struct.pack("<f", x))[0]
QSCALE = f32bits(28 ** -0.5 * math.log2(math.e))
NLOG2E = f32bits(-math.log2(math.e))
MF = "v_mfma_f32_32x32x16_bf16"
ROLE = [0, 1, 2, 3, 14, 4, 5, 6, 7, 8, 9, 15, 10, 11, 12, 13]
ROLE_LO = sum(ROLE[i] << (4 * i) for i in range(8))
ROLE_HI = sum(ROLE[8 + i] << (4 * i) for i in range(8))
SPIN_LIMIT = 1 << 20
WSBASE = ([int(x[2:]) for x in sys.argv if x.startswith("-w")] + [0])[0] << 20
PD = 4 if "pd4" in EXP else 2
PG = 3 if "pd4" in EXP else 6
PCD = 4 if "pcd4" in EXP else (0 if "pcd0" in EXP else 1)
KVS = 4 if "kvs4" in EXP else (0 if "kvs0" in EXP else 2)
PQ2 = 4 if "pq4" in EXP else (0 if "pq0" in EXP else 1)
PF0 = 2 if "pf2" in EXP else 0
WOP = 1 if "wo1" in EXP else (3 if "wo3" in EXP else 2)
OUTAUX = " sc1" if "outsc1" in EXP else (" nt" if "outnt" in EXP else "")

T, H, J, W, RL, ROT = 30, 31, 32, 33, 34, 3
_uid = [0]
def uid(p):
    _uid[0] += 1
    return f"{p}_{_uid[0]}"

def srd(a, d, ptr, nbytes):
    a(f"s_mov_b32 s{d}, s{ptr}\ns_mov_b32 s{d+1}, s{ptr+1}\ns_mov_b32 s{d+2}, {nbytes:#x}\ns_mov_b32 s{d+3}, 0x20000")

NST = 12
DIAG = [tuple(int(y) for y in x[2:].split("-")) for x in sys.argv if x.startswith("-d")]
def st(a, i):
    if STAMP: a(f"s_memtime s[{72+2*i}:{73+2*i}]")
    if DIAG and i in DIAG[0]: a(f"s_memrealtime s[{72+2*i}:{73+2*i}]\ns_waitcnt lgkmcnt(0)")
def st_begin(a):
    if STAMP: a("s_memrealtime s[68:69]\ns_memtime s[72:73]")
    if DIAG: a("s_memrealtime s[72:73]")
def diag_end(a):
    if not DIAG: return
    p, q = DIAG[0]
    a(f"""s_waitcnt vmcnt(0)
    s_memrealtime s[96:97]
    s_waitcnt lgkmcnt(0)
    s_sub_u32 s70, s{72+2*q}, s{72+2*p}
    s_add_u32 s70, s70, s96
    L_diag:
    s_memrealtime s[68:69]
    s_waitcnt lgkmcnt(0)
    s_sub_u32 s71, s68, s70
    s_cmp_lt_i32 s71, 0
    s_cbranch_scc1 L_diag""")
def st_init(a):
    if STAMP:
        for i in range(1, NST): a(f"s_mov_b32 s{72+2*i}, s72")
def st_end(a):
    if not STAMP: return
    a(f"""s_waitcnt vmcnt(0)
    s_memrealtime s[70:71]
    s_memtime s[{72+2*NST}:{73+2*NST}]
    s_getreg_b32 s66, hwreg(HW_REG_HW_ID)
    s_getreg_b32 s67, hwreg(HW_REG_XCC_ID)
    s_mov_b64 exec, -1
    s_lshl_b32 s65, s2, 3
    s_add_u32 s65, s65, s{W}
    s_lshl_b32 s65, s65, 6
    s_add_u32 s65, s65, {WS_ST}
    s_waitcnt lgkmcnt(0)
    v_mov_b32 v4, s68
    v_mov_b32 v5, s70
    v_mov_b32 v6, s66
    v_mov_b32 v7, s67""")
    for i in range(1, NST + 1):
        a(f"s_sub_u32 s64, s{72+2*i}, s72\nv_mov_b32 v{7+i}, s64")
    a("v_mov_b32 v2, 0\ns_mov_b64 exec, 1")
    for k in range(4):
        a(f"buffer_store_dwordx4 v[{4+4*k}:{7+4*k}], v2, s[8:11], s65 offen offset:{16*k}")

def poll_global(a, vdst, voff, soff, mask=None, sleep=1):
    l = uid("Lpoll"); d = uid("Lpd")
    a(f"s_mov_b32 s60, {SPIN_LIMIT}")
    if mask is not None: a(f"s_mov_b64 exec, {mask}")
    a(f"""{l}:
    buffer_load_dword v{vdst}, v{voff}, s[8:11], {soff} offen sc1
    s_waitcnt vmcnt(0)
    v_cmp_ne_u32 vcc, s{T}, v{vdst}
    s_cbranch_vccz {d}
    s_mov_b64 exec, vcc
    s_sleep {sleep}
    s_sub_u32 s60, s60, 1
    s_cbranch_scc0 {l}
    s_endpgm
    {d}:
    s_mov_b64 exec, -1""")

def poll_atomic(a, vdst, voff, soff, mask, sleep):
    l = uid("Lpa"); d = uid("Lpad")
    a(f"""s_mov_b32 s60, {SPIN_LIMIT}
    s_mov_b64 exec, {mask}
    {l}:
    v_mov_b32 v{vdst}, 0
    buffer_atomic_or v{vdst}, v{voff}, s[8:11], {soff} offen sc0 sc1
    s_waitcnt vmcnt(0)
    v_cmp_ne_u32 vcc, s{T}, v{vdst}
    s_cbranch_vccz {d}
    s_sleep {sleep}
    s_sub_u32 s60, s60, 1
    s_cbranch_scc0 {l}
    s_endpgm
    {d}:
    s_mov_b64 exec, -1""")

def poll_pipe(a, v0, voff, soff, mask, D=4, gap=3):
    l = uid("Lpp"); d = uid("Lppd")
    at = lambda r: f"v_mov_b32 v{r}, 0\nbuffer_atomic_or v{r}, v{voff}, s[8:11], {soff} offen sc0 sc1"
    a(f"s_mov_b32 s60, {SPIN_LIMIT}\ns_mov_b64 exec, {mask}")
    for i in range(D - 1): a(at(v0 + i) + f"\ns_sleep {gap}")
    a(f"{l}:")
    for i in range(D):
        a(at(v0 + (i + D - 1) % D))
        a(f"s_waitcnt vmcnt({D-1})\nv_cmp_ne_u32 vcc, s{T}, v{v0+i}\ns_cbranch_vccz {d}")
    a(f"""s_sub_u32 s60, s60, 1
    s_cbranch_scc0 {l}
    s_endpgm
    {d}:
    s_mov_b64 exec, -1""")

def signal(a, vt, voff, soff, mask):
    a(f"v_mov_b32 v{vt}, s{T}\ns_mov_b64 exec, {mask}\nbuffer_atomic_swap v{vt}, v{voff}, s[8:11], {soff} offen sc1\ns_mov_b64 exec, -1")

def spin_lds(a, vaddr, off, want, vt, sleep=0):
    l = uid("Lsp"); d = uid("Lsd")
    a(f"""s_mov_b32 s60, {SPIN_LIMIT}
    {l}:
    ds_read_b32 v{vt}, v{vaddr} offset:{off}
    s_waitcnt lgkmcnt(0)
    v_readfirstlane_b32 s61, v{vt}
    s_cmp_ge_u32 s61, {want}
    s_cbranch_scc1 {d}""")
    if sleep: a(f"s_sleep {sleep}")
    a(f"""s_sub_u32 s60, s60, 1
    s_cbranch_scc0 {l}
    s_endpgm
    {d}:""")

def lds_inc(a, vaddr, off, vone):
    a(f"s_mov_b64 exec, 1\nds_add_u32 v{vaddr}, v{vone} offset:{off}\ns_mov_b64 exec, -1")

def flag_store(a, vt, vz, soff):
    a(f"v_mov_b32 v{vt}, s{T}\ns_mov_b64 exec, 1\nbuffer_store_dword v{vt}, v{vz}, s[8:11], {soff} offen sc1\ns_mov_b64 exec, -1")

def split_neg_max(a, m, t0, t1, q6, q7):
    a(f"""v_sub_f32 v{m}, 0, v{m}
    v_cvt_pk_bf16_f32 v{t0}, v{m}, v{m}
    v_lshlrev_b32 v{t0}, 16, v{t0}
    v_sub_f32 v{t0}, v{m}, v{t0}
    v_cvt_pk_bf16_f32 v{t1}, v{m}, v{t0}
    v_and_b32 v{m}, 0xffff0000, v{t1}
    v_sub_f32 v{t0}, v{t0}, v{m}
    s_mov_b32 exec_lo, 0
    v_mov_b32 v{q6}, v{t1}
    v_cvt_pk_bf16_f32 v{q7}, v{t0}, 0
    s_mov_b32 exec_lo, -1""")

def max16_list(dst, S, init=False):
    if not init:
        return ([f"v_max3_f32 v{dst}, v{S}, v{S+1}, v{S+2}"] +
                [f"v_max3_f32 v{dst}, v{dst}, v{S+i}, v{S+i+1}" for i in range(3, 15, 2)] +
                [f"v_max_f32 v{dst}, v{dst}, v{S+15}"])
    return [f"v_max3_f32 v{dst}, v{dst}, v{S+i}, v{S+i+1}" for i in range(0, 16, 2)]

def wave_min_u32(a, v, full=True):
    for r in (1, 2, 4, 8):
        a(f"v_min_u32_dpp v{v}, v{v}, v{v} row_ror:{r} row_mask:0xf bank_mask:0xf")
    a(f"v_min_u32_dpp v{v}, v{v}, v{v} row_bcast:15 row_mask:0xa bank_mask:0xf")
    if full: a(f"v_min_u32_dpp v{v}, v{v}, v{v} row_bcast:31 row_mask:0xc bank_mask:0xf")

def tag(a):
    a(f"s_mul_i32 s{T}, s{T}, 0x9e3779b1\ns_add_u32 s{T}, s{T}, 0x7f4a7c15")

def next_chunk(a, s):
    a(f"s_add_u32 s{s}, s{s}, 1\ns_cmp_eq_u32 s{s}, 7\ns_cselect_b32 s{s}, 0, s{s}")

Q, O, KV, S, P = 8, 40, 104, 168, 200
XF = 104; A0, A1, WF = 40, 56, 72
VX = 216; VW = 220; VQ = 222; VC = 223; V1 = 224; VZ = 225; VT = 226; VH = 227
VA = 228; TMP = 232; XR = 240; GR = 248; VWQ = 250; VF = 251; VFS = 252; VXO = 253; VGO = 254
OWN = 3
L = 35

def prologue_and_loader(a):
    if "rot7" in EXP:
        ROTCODE = f"s_lshl1_add_u32 s{ROT}, s27, s26\ns_cmp_ge_u32 s{ROT}, 7\ns_cselect_b32 s26, 7, 0\ns_sub_u32 s{ROT}, s{ROT}, s26"
    elif "rot2" not in EXP and "norot" not in EXP and "rot23" not in EXP:
        ROTCODE = f"s_add_u32 s{ROT}, s27, s26\ns_and_b32 s{ROT}, s{ROT}, 3\ns_lshl_b32 s{ROT}, s{ROT}, 1"
    elif "norot" in EXP:
        ROTCODE = f"s_mov_b32 s{ROT}, 0"
    elif "rot23" in EXP:
        ROTCODE = f"s_add_u32 s{ROT}, s27, s26\ns_and_b32 s{ROT}, s{ROT}, 1\ns_mul_i32 s{ROT}, s{ROT}, 3"
    else:
        ROTCODE = f"s_add_u32 s{ROT}, s27, s26\ns_and_b32 s{ROT}, s{ROT}, 1\ns_lshl_b32 s{ROT}, s{ROT}, 2"
    st_begin(a)
    a(f"""s_load_dwordx4 s[4:7], s[0:1], 0
    s_load_dwordx2 s[36:37], s[0:1], 88
    s_load_dwordx2 s[38:39], s[0:1], 16
    s_load_dwordx8 s[40:47], s[0:1], 32
    s_load_dwordx4 s[48:51], s[0:1], 64
    s_cmp_ge_u32 s2, 256
    s_cbranch_scc1 L_exit
    v_lshrrev_b32 v2, 6, v0
    v_and_b32 v3, 63, v0
    s_and_b32 s24, s2, 7
    s_lshr_b32 s25, s2, 3
    v_readfirstlane_b32 s{W}, v2
    s_and_b32 s{H}, s24, 1
    s_lshl_b32 s{H}, s{H}, 3
    s_and_b32 s26, s25, 7
    s_add_u32 s{H}, s{H}, s26
    s_lshr_b32 s27, s25, 3
    s_and_b32 s{J}, s24, 6
    s_lshl1_add_u32 s{J}, s{J}, s27
    {ROTCODE}
    s_mov_b32 s28, {ROLE_LO:#x}
    s_mov_b32 s29, {ROLE_HI:#x}
    s_lshl_b32 s27, s{H}, 2
    s_lshr_b64 s[28:29], s[28:29], s27
    s_and_b32 s{RL}, s28, 15
    v_lshlrev_b32 v1, 4, v3
    s_mov_b32 s27, {WS_EP}
    s_cmp_lt_u32 s{W}, 4
    s_cbranch_scc1 L_main
    """)
    a(f"""s_setprio 2
    s_sub_u32 s{L}, s{W}, 4
    v_lshrrev_b32 v4, 3, v3
    v_mul_u32_u24 v5, 896, v4
    v_and_b32 v6, 7, v3
    v_lshrrev_b32 v7, 4, v3
    v_xor_b32 v7, v6, v7
    v_lshl_add_u32 v10, v7, 4, v5
    v_xor_b32 v11, 64, v10
    v_add_u32 v12, {2*6144}, v10
    v_add_u32 v13, {3*6144}, v11
    v_add_u32 v11, 6144, v11
    v_mul_u32_u24 v5, 2688, v4
    v_and_b32 v4, 2, v4
    v_lshlrev_b32 v4, 1, v4
    v_xor_b32 v4, v4, v6
    v_lshl_add_u32 v14, v4, 4, v5
    v_add_u32 v15, {8*2688-1024}, v14
    s_lshl2_add_u32 s52, s{J}, s{L}
    s_mul_i32 s52, s52, {32*896}
    s_lshl_b32 s53, s{RL}, 7
    s_mul_i32 s26, s{L}, {16*2688}
    s_add_u32 s53, s53, s26
    s_add_u32 s53, s53, 896
    s_lshl_b32 s54, s{L}, 12
    s_lshl_b32 s55, s{L}, 11
    s_add_u32 s55, s55, {WT}
    s_mov_b32 s56, s{ROT}
    s_mov_b32 s57, 0
    s_mov_b32 s14, {2048*896}
    s_mov_b32 s15, 0x20000
    s_cmp_ge_u32 s{RL}, 14
    s_cselect_b32 s18, 0, {448*2688}
    s_mov_b32 s19, 0x20000
    s_waitcnt lgkmcnt(0)
    s_mov_b64 s[12:13], s[4:5]
    s_mov_b64 s[16:17], s[6:7]
    s_add_u32 s36, s36, {WSBASE}
    s_addc_u32 s37, s37, 0
    s_load_dword s{T}, s[36:37], s27""")
    st_init(a); st(a, 1)
    a(f"""L_ld:
    s_mul_i32 s26, s56, {64*2688}
    s_mov_b32 m0, s55
    s_add_u32 s26, s26, s53
    s_lshl_b32 s28, s56, 7
    buffer_load_dwordx4 v14, s[16:19], s26 offen lds
    buffer_load_dwordx4 v15, s[16:19], s26 offen offset:1024 lds
    s_mov_b32 m0, s54
    s_add_u32 s28, s28, s52
    buffer_load_dwordx4 v10, s[12:15], s28 offen lds
    buffer_load_dwordx4 v11, s[12:15], s28 offen offset:1024 lds
    buffer_load_dwordx4 v12, s[12:15], s28 offen offset:2048 lds
    buffer_load_dwordx4 v13, s[12:15], s28 offen offset:3072 lds
    s_add_u32 s55, s55, 8192
    s_add_u32 s54, s54, 16384
    s_and_b32 s54, s54, 0xffff""")
    next_chunk(a, 56)
    a(f"""s_add_u32 s57, s57, 1
    s_cmp_lt_u32 s57, 3
    s_cbranch_scc1 L_ld
    s_waitcnt vmcnt(12) lgkmcnt(0)
    s_barrier
    s_cmp_lt_u32 s57, 7
    s_cbranch_scc1 L_ld
    """)
    a(f"""v_lshrrev_b32 v4, 2, v3
    v_mul_u32_u24 v4, 2688, v4
    v_and_b32 v5, 3, v3
    v_lshl_add_u32 v16, v5, 4, v4
    s_mov_b32 s18, {448*2688}
    s_mul_i32 s53, s{H}, 56
    s_and_b32 s53, s53, 0xfffffff0
    s_mul_i32 s26, s{L}, {16*2688}
    s_add_u32 s53, s53, s26
    s_lshl_b32 s55, s{L}, 10
    s_add_u32 s55, s55, {WQ}""")
    for i in range(4):
        a(f"""s_mul_i32 s26, s56, {64*2688}
        s_add_u32 m0, s55, {i*4096}
        s_add_u32 s26, s26, s53
        buffer_load_dwordx4 v16, s[16:19], s26 offen lds""")
        if i < 3: next_chunk(a, 56)
        if i == 1: a("s_waitcnt vmcnt(8)\ns_barrier")
        if i == 3: a("s_waitcnt vmcnt(4)\ns_barrier")
    st(a, 2)
    a("s_branch L_service")

def main_wave(a):
    a.label("L_main")
    if "nocodepf" not in EXP:
        a(f"""s_cmp_lg_u32 s{W}, 0
        s_cbranch_scc1 L_nopf
        s_getpc_b64 s[28:29]
        L_pc:
        s_and_b32 s26, s25, 3
        s_lshl_b32 s26, s26, 13
        v_lshl_add_u32 v4, v3, 7, s26
        v_min_u32 v4, L_code_end-L_pc, v4
        global_load_dword v5, v4, s[28:29]
        L_nopf:""")
    a(f"""s_setprio 1
    v_and_b32 v{VT}, 31, v3
    v_lshrrev_b32 v{VH}, 5, v3
    v_mov_b32 v{V1}, 1
    v_mov_b32 v{VZ}, 0
    v_mov_b32 v{VC}, {CNT}
    v_lshrrev_b32 v4, 2, v1
    v_add_u32 v4, {UPDI}, v4
    v_mov_b32 v6, -1
    s_mov_b32 exec_hi, 0
    ds_write_b32 v4, v6
    v_and_b32 v6, 7, v3
    v_cmp_eq_u32 vcc, 4, v6
    v_mov_b32 v7, {(1<<18)+1}
    v_cndmask_b32 v6, 0, v7, vcc
    ds_write_b32 v4, v6 offset:{CNT-UPDI+C_R}
    s_mov_b32 exec_lo, 0xffff
    ds_write_b32 v4, v{VZ} offset:{CNT-UPDI}
    s_mov_b64 exec, -1
    v_lshrrev_b32 v4, 1, v{VT}
    v_and_b32 v4, 7, v4
    v_xor_b32 v4, v4, v{VH}
    v_lshlrev_b32 v4, 4, v4
    v_lshl_add_u32 v4, v{VT}, 7, v4
    s_lshl_b32 s26, s{W}, 12
    v_add_u32 v{VX}, s26, v4
    v_xor_b32 v{VX+1}, 32, v{VX}
    v_xor_b32 v{VX+2}, 64, v{VX}
    v_xor_b32 v{VX+3}, 96, v{VX}
    v_bfe_u32 v4, v3, 2, 2
    v_lshl_add_u32 v12, v{VH}, 3, v4
    v_and_b32 v6, 3, v3
    v_and_b32 v7, 1, v3
    v_bfe_u32 v8, v3, 1, 1
    v_lshl_add_u32 v7, v7, 1, v8
    v_bfe_u32 v8, v3, 4, 1
    v_lshl_add_u32 v9, v8, 2, v7
    v_lshl_add_u32 v10, v8, 2, v6
    s_cmp_lt_u32 s{RL}, 7
    s_cselect_b64 vcc, -1, 0
    v_cndmask_b32 v10, v10, v9, vcc
    v_lshlrev_b32 v11, 7, v12
    v_lshl_add_u32 v11, v10, 3, v11
    v_lshrrev_b32 v4, 1, v4
    v_lshl_add_u32 v11, v4, 6, v11
    v_add_u32 v{VW}, {WT}, v11
    v_xor_b32 v{VW+1}, 64, v{VW}
    v_add_u32 v10, 2, v9
    v_sub_u32 v11, 7, v9
    v_cmp_gt_u32 vcc, 6, v9
    v_cndmask_b32 v10, v11, v10, vcc
    s_bitcmp1_b32 s{H}, 0
    s_cselect_b64 vcc, -1, 0
    v_cndmask_b32 v10, v9, v10, vcc
    v_lshlrev_b32 v11, 6, v12
    v_lshl_add_u32 v11, v10, 3, v11
    v_add_u32 v{VQ}, {WQ}, v11
    v_lshrrev_b32 v4, 2, v3
    v_mul_u32_u24 v4, 2688, v4
    v_lshl_add_u32 v{VWQ}, v6, 4, v4
    s_cmp_ge_u32 s{RL}, 7
    s_cselect_b32 s26, 7, 0
    s_cselect_b32 s29, 2, 0
    s_sub_u32 s26, s{RL}, s26
    s_mul_i32 s28, s26, {64*2341}
    s_lshr_b32 s28, s28, 16
    v_add_u32 v4, s28, v6
    v_mul_u32_u24 v7, 28, v4
    v_lshrrev_b32 v7, 6, v7
    v_cmp_ge_u32 s[64:65], s26, v7
    v_cmp_ne_u32 vcc, s26, v7
    s_and_b32 s28, s{J}, 12
    s_add_u32 s29, s28, s29
    v_mov_b32 v7, s29
    v_addc_co_u32 v7, vcc, 0, v7, vcc
    s_and_b32 s28, s{J}, 3
    v_lshl_add_u32 v4, v4, 2, s28
    v_bfe_u32 v8, v3, 2, 2
    v_lshl_add_u32 v4, v4, 2, v8
    v_lshlrev_b32 v4, 7, v4
    v_lshl_add_u32 v{VFS}, v7, 2, v4
    s_and_b32 s64, s64, 0xffff
    s_cmp_ge_u32 s{RL}, 14
    s_cselect_b32 s64, 0, s64
    s_mov_b32 s65, 0
    s_lshl_b32 s28, s{W}, 5
    v_add_u32 v{VF}, s28, v{VC}
    s_lshl_b32 s28, s{J}, 2
    s_lshr_b32 s58, s{H}, 2
    s_add_u32 s58, s58, s28
    s_and_b32 s59, s{H}, 3
    s_lshl2_add_u32 s59, s59, s{W}
    s_mul_i32 s59, s59, 56
    s_lshl_b32 s28, s58, 5
    v_add_u32 v4, s28, v{VT}
    v_mul_u32_u24 v{VXO}, 896, v4
    v_lshl_add_u32 v{VXO}, v{VH}, 4, v{VXO}
    v_lshlrev_b32 v{VGO}, 3, v4
    s_waitcnt lgkmcnt(0)
    s_add_u32 s36, s36, {WSBASE}
    s_addc_u32 s37, s37, 0
    s_load_dword s{T}, s[36:37], s27
    """)
    if "stlb" in EXP or "stlbR" in EXP:
        a(f"s_cmp_lg_u32 s{W}, 3\ns_cbranch_scc1 L_notlb")
        if "stlbR" in EXP: a(f"s_cmp_lt_u32 s{RL}, 14\ns_cbranch_scc1 L_notlb")
        for off in (0, 2 << 20, 4 << 20, 8 << 20):
            a(f"s_mov_b32 s26, {off + 4032}\ns_load_dword s66, s[36:37], s26")
        for p in (50, 38, 42, 44, 46):
            a(f"s_load_dword s66, s[{p}:{p+1}], 0")
        a("L_notlb:")
    st_init(a)
    srd(a, 8, 36, (1 << 28) - WSBASE)
    srd(a, 16, 6, 448 * 2688)
    srd(a, 12, 4, 2048 * 896)
    if "vtlb" in EXP or "vtlbR" in EXP:
        a(f"s_cmp_lg_u32 s{W}, 3\ns_cbranch_scc1 L_notlb")
        if "vtlbR" in EXP: a(f"s_cmp_lt_u32 s{RL}, 14\ns_cbranch_scc1 L_notlb")
        a(f"""v_lshlrev_b32 v4, 21, v3
        s_mov_b64 exec, 0x1f
        buffer_load_dword v5, v4, s[8:11], 0 offen offset:4032
        s_mov_b64 exec, 1""")
        for p in (50, 38, 42, 44, 46):
            a(f"global_load_dword v5, v{VZ}, s[{p}:{p+1}]")
        a("s_mov_b64 exec, -1\nL_notlb:")
    if "pgtouch" in EXP:
        a(f"""v_lshlrev_b32 v4, 16, v3
        s_lshl_b32 s26, s{W}, 22
        s_add_u32 s26, s26, {4096-64}
        s_cmp_eq_u32 s{W}, 3
        s_cbranch_scc1 L_nopg
        buffer_load_dword v5, v4, s[8:11], s26 offen
        L_nopg:""")
    if "nowqpf" not in EXP:
        a(f"""s_cmp_lg_u32 s{W}, 1
        s_cbranch_scc1 L_nopf2
        v_lshrrev_b32 v4, 2, v3
        v_min_u32 v4, 13, v4
        v_mul_u32_u24 v4, 2688, v4
        v_and_b32 v6, 3, v3
        v_lshl_add_u32 v4, v6, 7, v4
        s_mul_i32 s26, s25, {14*2688}
        s_and_b32 s28, s24, 1
        s_mul_i32 s28, s28, 384
        s_add_u32 s26, s26, s28
        buffer_load_dword v5, v4, s[16:19], s26 offen
        L_nopf2:""")
    if "wopfS" in EXP:
        srd(a, 20, 38, 448 * 896)
        a(f"""s_cmp_lg_u32 s{W}, 2
        s_cbranch_scc1 L_nopf3
        s_mul_i32 s26, s2, {13*128}
        v_lshl_add_u32 v4, v3, 7, s26
        s_mov_b64 exec, 0x1fff
        buffer_load_dword v5, v4, s[20:23], 0 offen
        s_mov_b64 exec, -1
        L_nopf3:""")
    a(f"""s_mul_i32 s62, s{H}, 56
    s_and_b32 s62, s62, 0xfffffff0
    s_mul_i32 s26, s{W}, {16*2688}
    s_add_u32 s62, s62, s26
    s_lshl_b32 s63, s{W}, 10
    s_add_u32 s63, s63, {WQ}
    s_lshl2_add_u32 s35, s{J}, s{W}
    s_lshl_b32 s52, s35, 12
    s_cmp_ge_u32 s{RL}, 14
    s_cbranch_scc1 L_roleR
    s_cmp_ge_u32 s{RL}, 7
    s_cbranch_scc1 L_roleV""")

    def gemm(kind):
        if "twait" in EXP:
            st(a, 10); a("s_waitcnt vmcnt(0)"); st(a, 11)
        def reads(c, s):
            k = 4 * c + s
            a(f"ds_read_b128 {vr(XF+4*k,4)}, v{VX+s} offset:{(c&3)*16384}")
            f = WF + 8 * s
            if kind == "R":
                a(f"ds_read_b128 {vr(f,4)}, v{VW} offset:{k*32}")
            else:
                for n in range(2):
                    a(f"ds_read_b64_tr_b16 {vr(f+4*n,2)}, v{VW+n} offset:{k*2048}")
                    a(f"ds_read_b64_tr_b16 {vr(f+4*n+2,2)}, v{VW+n} offset:{k*2048+512}")
        def mfmas(c, s):
            k = 4 * c + s
            f = WF + 8 * s
            for n in range(1 if kind == "R" else 2):
                acc = (A0, A1)[n]
                cc = "0" if k == 0 else vr(acc, 16)
                if kind == "V": a(f"{MF} {vr(acc,16)}, {vr(XF+4*k,4)}, {vr(f+4*n,4)}, {cc}")
                else:           a(f"{MF} {vr(acc,16)}, {vr(f+4*n,4)}, {vr(XF+4*k,4)}, {cc}")
        per = 2 if kind == "R" else 5
        for c in range(7):
            a("s_barrier")
            if c == 0: st(a, 1)
            if c == 6: st(a, 2)
            if STAMP and c in (0, 6): a("s_waitcnt lgkmcnt(0)")
            reads(c, 0); reads(c, 1)
            for s in range(4):
                if s < 2: reads(c, s + 2)
                a(f"s_waitcnt lgkmcnt({min(3 - s, 2) * per})")
                mfmas(c, s)

    PK = 8
    MS = 20
    for i in range(4):
        a(f"""s_lshl_b32 s28, s{RL}, 3
        s_add_u32 s28, s28, {2*i}
        v_add_u32 v4, s28, v{VH}
        v_mul_u32_u24 v8, 37, v4
        v_lshrrev_b32 v8, 8, v8
        v_mul_u32_u24 v6, 7, v8
        v_sub_u32 v6, v4, v6
        v_lshrrev_b32 v7, 2, v6
        v_lshl_add_u32 v8, v8, 1, v7
        v_cmp_eq_u32 s[{MS+2*i}:{MS+1+2*i}], 3, v6
        v_and_b32 v6, 3, v6
        v_lshlrev_b32 v8, 18, v8
        v_lshl_add_u32 v8, v6, 9, v8
        v_lshl_add_u32 v{VA+i}, v{VT}, 4, v8""")
    a(f"v_mov_b32 v{TMP+2}, 0x3f803f80\nv_mov_b32 v{TMP+3}, 0x3f803f80\ns_add_u32 s53, s52, {1<<18}")
    if "touch" in EXP:
        a("s_mov_b32 s28, 0x01010101\ns_mov_b32 s29, 0x01010101")
        for i in range(4):
            l = uid("Lnt")
            a(f"""s_mov_b64 exec, s[28:29]
            buffer_store_dword v{VZ}, v{VA+i}, s[8:11], s52 offen sc1
            s_and_b64 exec, s[28:29], s[{MS+2*i}:{MS+1+2*i}]
            s_cbranch_execz {l}
            buffer_store_dword v{VZ}, v{VA+i}, s[8:11], s53 offen sc1
            {l}:""")
        a("s_mov_b64 exec, -1")
    a("s_waitcnt lgkmcnt(0)")
    tag(a)
    gemm("K")
    for i in range(4):
        acc = (A0, A1)[i >> 1] + 8 * (i & 1)
        p = PK + 4 * i
        for e in range(4): a(f"v_cvt_pk_bf16_f32 v{p+e}, v{acc+2*e}, v{acc+2*e+1}")
        l = uid("Lnosh")
        a(f"""s_mov_b64 exec, s[{MS+2*i}:{MS+1+2*i}]
        s_cbranch_execz {l}
        v_mov_b32 v{TMP}, v{p+2}
        v_mov_b32 v{TMP+1}, v{p+3}
        v_mov_b32 v{p+2}, 0x3f803f80
        v_mov_b32 v{p+3}, 0x3f803f80
        buffer_store_dwordx4 {vr(TMP,4)}, v{VA+i}, s[8:11], s53 offen sc1
        s_nop 1
        {l}:
        s_mov_b64 exec, -1
        buffer_store_dwordx4 {vr(p,4)}, v{VA+i}, s[8:11], s52 offen sc1""")
    a("s_branch L_pub")
    a.label("L_roleR")
    srd(a, 20, 40, 896)
    a(f"""s_lshl_b32 s28, s{ROT}, 7
    v_add_u32 v4, s28, v1
    v_subrev_u32 v6, 896, v4
    v_min_u32 v4, v4, v6
    s_mov_b32 m0, {QX}
    s_nop 0
    buffer_load_dwordx4 v4, s[20:23], 0 offen lds
    s_mov_b32 s20, s48
    s_mov_b32 s21, s49
    s_mov_b32 m0, {QX+1024}
    s_nop 0
    buffer_load_dwordx4 v4, s[20:23], 0 offen lds
    v_and_b32 v4, 1, v3
    v_lshlrev_b32 v4, 10, v4
    v_lshl_add_u32 v4, v{VH}, 4, v4
    v_add_u32 v{VW}, {QX}, v4
    s_waitcnt vmcnt(0) lgkmcnt(0)""")
    tag(a)
    gemm("R")
    a(f"""s_cmp_lg_u32 s{RL}, 14
    s_cbranch_scc1 L_pub
    s_mov_b32 exec_hi, 0
    s_nop 9
    v_cvt_pk_bf16_f32 v4, v{A0}, v{A0+1}
    v_and_b32 v5, 0xffff0000, v4
    v_lshlrev_b32 v4, 16, v4
    v_ashrrev_i32 v6, 31, v4
    v_or_b32 v6, 0x80000000, v6
    v_xor_b32 v6, v6, v4
    v_and_b32 v6, 0xffff0000, v6
    v_cmp_u_f32 vcc, v4, v4
    v_cndmask_b32 v6, v6, 0, vcc
    s_lshl_b32 s26, s35, 5
    v_add_u32 v7, s26, v{VT}
    v_sub_u32 v8, 0xffff, v7
    v_or_b32 v6, v6, v8
    v_lshlrev_b32 v9, 3, v7
    v_and_b32 v7, 127, v7
    v_lshlrev_b32 v7, 2, v7
    v_add_u32 v7, {KEYS}, v7
    ds_write_b32 v7, v6
    s_mov_b32 exec_lo, 1
    ds_add_u32 v{VC}, v{V1} offset:{C_K}
    s_mov_b32 exec_lo, -1
    v_mul_f32 v5, {NLOG2E:#x}, v5
    v_exp_f32 v5, v5
    v_add_f32 v5, 1.0, v5
    v_rcp_f32 v5, v5
    v_cvt_pk_bf16_f32 v5, v5, v5
    v_lshlrev_b32 v4, 16, v5
    v_mov_b32 v5, s{T}
    s_mov_b32 s26, {WS_G}
    buffer_store_dwordx2 v[4:5], v9, s[8:11], s26 offen sc1
    s_mov_b32 exec_hi, -1
    s_branch L_pub
    """)
    a.label("L_roleV")
    for n in range(2):
        a(f"""s_lshl_b32 s28, s{RL}, 6
        s_sub_u32 s28, s28, {7*64 - 32*n}
        v_add_u32 v4, s28, v{VT}
        v_mul_u32_u24 v8, 2341, v4
        v_lshrrev_b32 v8, 16, v8
        v_mul_u32_u24 v6, 28, v8
        v_sub_u32 v6, v4, v6
        v_cmp_le_u32 s[{MS+2*n}:{MS+1+2*n}], 24, v6
        v_cmp_eq_u32 vcc, 24, v6
        v_mov_b32 v7, 0x3f803f80
        v_cndmask_b32 v{TMP+4*n}, 0, v7, vcc
        v_lshlrev_b32 v8, 18, v8
        v_lshl_add_u32 v8, v6, 4, v8
        v_lshl_add_u32 v{VA+n}, v{VH}, 9, v8""")
        for e in range(1, 4): a(f"v_mov_b32 v{TMP+4*n+e}, v{TMP+4*n}")
        if "touch" in EXP:
            a(f"""v_and_b32 v6, 7, v6
            v_cmp_eq_u32 vcc, 0, v6
            s_andn2_b64 exec, vcc, s[{MS+2*n}:{MS+1+2*n}]
            buffer_store_dword v{VZ}, v{VA+n}, s[8:11], s52 offen offset:2048 sc1
            buffer_store_dword v{VZ}, v{VA+n}, s[8:11], s52 offen offset:3072 sc1
            s_mov_b64 exec, -1""")
    for n in range(2):
        l = uid("Lnop")
        a(f"""s_mov_b64 exec, s[{MS+2*n}:{MS+1+2*n}]
        s_cbranch_execz {l}
        buffer_store_dwordx4 {vr(TMP+4*n,4)}, v{VA+n}, s[8:11], s52 offen offset:{2048+64} sc1
        buffer_store_dwordx4 {vr(TMP+4*n,4)}, v{VA+n}, s[8:11], s52 offen offset:{3072+64} sc1
        {l}:
        s_mov_b64 exec, -1""")
    a("s_waitcnt lgkmcnt(0)")
    tag(a)
    gemm("V")
    for i in range(4):
        acc = (A0, A1)[i >> 1] + 8 * (i & 1)
        p = PK + 4 * i
        for e in range(4): a(f"v_cvt_pk_bf16_f32 v{p+e}, v{acc+2*e}, v{acc+2*e+1}")
        a(f"buffer_store_dwordx4 {vr(p,4)}, v{VA+(i>>1)}, s[8:11], s52 offen offset:{2048+1024*(i&1)} sc1")
    a.label("L_pub")
    st(a, 3)
    a(f"s_add_u32 s56, s{ROT}, 4\ns_cmp_ge_u32 s56, 7\ns_cselect_b32 s26, 7, 0\ns_sub_u32 s56, s56, s26")
    for i in range(4, 7):
        a(f"""s_mul_i32 s26, s56, {64*2688}
        s_add_u32 m0, s63, {i*4096}
        s_add_u32 s26, s26, s62
        buffer_load_dwordx4 v{VWQ}, s[16:19], s26 offen lds""")
        if i < 6: next_chunk(a, 56)
    QO = Q + 8 * OWN
    SK = TMP
    a(f"""s_lshl_b32 s53, s{H}, 18
    s_add_u32 s16, s36, s53
    s_addc_u32 s17, s37, 0
    s_mov_b32 s18, {1<<18}
    s_mov_b32 s19, 0x20000
    s_mov_b32 s57, 0""")
    def ldK(b, soff):
        return [f"buffer_load_dwordx4 {vr(KV+16*b,4)}, v1, s[16:19], {soff} offen sc1",
                f"buffer_load_dwordx4 {vr(KV+16*b+4,4)}, v1, s[16:19], {soff} offen offset:1024 sc1"]
    def ldV(b, soff):
        return [f"buffer_load_dwordx4 {vr(KV+16*b+8,4)}, v1, s[16:19], {soff} offen offset:2048 sc1",
                f"buffer_load_dwordx4 {vr(KV+16*b+12,4)}, v1, s[16:19], {soff} offen offset:3072 sc1"]
    def try_loads(block=False):
        d = uid("Ltl"); l = uid("Ltr")
        a(f"s_cmp_lg_u32 s57, 0\ns_cbranch_scc1 {d}")
        if block: a(f"s_mov_b32 s60, {SPIN_LIMIT}\n{l}:\ns_sub_u32 s60, s60, 1\ns_cbranch_scc1 L_exit")
        a(f"""ds_read_b32 v4, v{VF} offset:{C_R}
        ds_read_b32 v5, v{VC} offset:{C_R}
        s_waitcnt lgkmcnt(0)
        v_readfirstlane_b32 s56, v4
        v_readfirstlane_b32 s29, v5
        s_min_u32 s57, s56, s29
        s_cmp_eq_u32 s57, 0
        s_cbranch_scc1 {l if block else d}
        s_sub_u32 s29, s29, 1
        s_sub_u32 s27, s56, 1
        s_add_u32 s54, s56, 4095
        s_add_u32 s55, s56, 8191
        s_add_u32 s56, s56, 12287""")
        st(a, 6)
        a(f"""buffer_load_dwordx4 {vr(SK,4)}, v1, s[16:19], s29 offen sc1
        buffer_load_dwordx4 {vr(SK+4,4)}, v1, s[16:19], s29 offen offset:1024 sc1""")
        for x in ldK(0, "s27") + ldV(0, "s27") + ldK(1, "s54") + ldV(1, "s54"): a(x)
        a(f"{d}:")
    def qreads(k):
        f = WF + 4 * (k & 7)
        a(f"ds_read_b64_tr_b16 {vr(f,2)}, v{VQ} offset:{k*1024}\nds_read_b64_tr_b16 {vr(f+2,2)}, v{VQ} offset:{k*1024+256}")
    for lo, hi, cnt in ((0, 16, C_Q1), (16, 28, C_Q2)):
        if lo:
            a(f"""s_mov_b32 s28, {WS_MB}
            v_mov_b32 v6, s{T}
            s_mov_b64 exec, 1
            s_waitcnt vmcnt(3)""")
            st(a, 4)
            a(f"""ds_add_rtn_u32 v4, v{VC}, v{V1} offset:{C_D}
            s_waitcnt lgkmcnt(0)
            v_cmp_eq_u32 vcc, 3, v4
            s_cbranch_vccz L_notlast
            s_mov_b64 exec, s[64:65]
            s_cbranch_execz L_notlast
            buffer_atomic_swap v6, v{VFS}, s[8:11], s28 offen sc1
            s_waitcnt vmcnt(1)
            s_branch L_published
            L_notlast:
            s_waitcnt vmcnt(0)
            L_published:""")
            lds_inc(a, VC, C_Q2, V1)
            try_loads()
        spin_lds(a, VC, cnt, 4, 4)
        for k in range(lo, lo + 6): qreads(k)
        for k in range(lo, hi):
            if k + 6 < hi: qreads(k + 6)
            a(f"s_waitcnt lgkmcnt({2*(min(hi-1,k+6)-k)})")
            a(f"{MF} {vr(A0,16)}, {vr(WF+4*(k&7),4)}, {vr(XF+4*k,4)}, {'0' if k==0 else vr(A0,16)}")
    st(a, 5)
    try_loads()
    for i in range(8): a(f"v_mov_b32 v{P+8+i}, 0")
    a(f"""s_lshl_b32 s26, s{W}, 11
    s_add_u32 s26, s26, {QX}
    v_add_u32 v5, s26, v1
    s_mov_b32 s62, {QSCALE:#x}
    s_mov_b32 s63, {QSCALE:#x}""")
    for i in range(8): a(f"v_pk_mul_f32 {vr(A0+2*i,2)}, {vr(A0+2*i,2)}, s[62:63]")
    for i in range(8): a(f"v_cvt_pk_bf16_f32 v{QO+i}, v{A0+2*i}, v{A0+2*i+1}")
    a(f"""s_mov_b32 exec_lo, 0
    v_mov_b32 v{QO+6}, 0
    v_mov_b32 v{QO+7}, 0
    s_mov_b32 exec_lo, -1
    ds_write_b128 v5, {vr(QO,4)}
    ds_write_b128 v5, {vr(QO+4,4)} offset:1024""")
    lds_inc(a, VC, C_X, V1)
    for i in range(0, 64, 2): a(f"v_pk_mul_f32 {vr(O+i,2)}, {vr(P+8,2)}, {vr(P+8,2)}")
    spin_lds(a, VC, C_X, 4, 4)
    for i in range(3):
        a(f"""s_add_u32 s26, s{W}, {i+1}
        s_and_b32 s26, s26, 3
        s_lshl_b32 s26, s26, 11
        s_add_u32 s26, s26, {QX}
        v_add_u32 v5, s26, v1
        ds_read_b128 {vr(Q+8*i,4)}, v5
        ds_read_b128 {vr(Q+8*i+4,4)}, v5 offset:1024""")
    try_loads(block=True)
    def QK(u, m):
        kt, qs = (u >> 2) & 3, u & 3
        s = S + 16 * (u & 1)
        c = "0" if m == 0 else vr(s, 16)
        return f"{MF} {vr(s,16)}, {vr(KV+16*kt+4*m,4)}, {vr(Q+8*qs+4*m,4)}, {c}"
    def PV(u, m):
        kt, qs = (u >> 2) & 3, u & 3
        return f"{MF} {vr(O+16*qs,16)}, {vr(KV+16*kt+8+4*m,4)}, {vr(P+8*(u&1)+4*m,4)}, {vr(O+16*qs,16)}"
    SS = [S, S + 16, KV + 32, KV + 48]
    def samp(i, m): return f"{MF} {vr(SS[i],16)}, {vr(SK+4*m,4)}, {vr(Q+8*i+4*m,4)}, {'0' if m == 0 else vr(SS[i],16)}"
    def mx(i):
        for x in max16_list(4, SS[i]): a(x)
        a(f"s_mov_b32 exec_lo, 0\nv_cvt_pk_bf16_f32 v{Q+8*i+6}, -v4, 0\ns_mov_b32 exec_lo, -1")
    a("s_waitcnt vmcnt(8) lgkmcnt(0)")
    for i in range(4): a(samp(i, 0)); a(samp(i, 1))
    mx(0)
    a("s_waitcnt vmcnt(4)")
    a(QK(0, 0)); a(QK(0, 1))
    mx(1); mx(2)
    for x in ldK(2, "s55") + ldV(2, "s55"): a(x)
    mx(3)
    for x in ldK(3, "s56"): a(x)
    for i in range(0, 8, 2): a(f"v_pk_mul_f32 {vr(KV+56+i,2)}, {vr(P+8,2)}, {vr(P+8,2)}")
    for i in range(3):
        a(f"""s_add_u32 s26, s{W}, {i+1}
        s_and_b32 s26, s26, 3
        s_mul_i32 s26, s26, 12288
        s_add_u32 s26, s26, {CB + i*4096}
        v_add_u32 v{4+i}, s26, v1""")
    a(f"s_mul_i32 s26, s{W}, 12288\ns_add_u32 s26, s26, {CB}\nv_add_u32 v2, s26, v1")
    lds_inc(a, VC, C_L, V1)
    st(a, 7)
    a("s_mov_b32 s57, 3")
    def substep(u, ex, last=False):
        s = S + 16 * (u & 1); p = P + 8 * (u & 1)
        e = lambda i: f"v_exp_f32 v{s+i}, v{s+i}"
        c = lambda i: f"v_cvt_pk_bf16_f32 v{p+i}, v{s+2*i}, v{s+2*i+1}"
        q0, q1 = ([], []) if last else ([QK(u+1, 0)], [QK(u+1, 1)])
        seq = q0 + ex[0] + [e(0), e(1), e(2), e(3), c(0), e(4),
               PV(u-1, 0)] + ex[1] + [e(5), c(1), e(6), e(7), c(2), e(8)] + q1 + ex[2] + [e(9), c(3), e(10), e(11), c(4), e(12),
               PV(u-1, 1)] + ex[3] + [e(13), c(5), e(14), e(15), c(6), c(7)]
        for x in seq: a(x)
    a(".p2align 6")
    a.label("L_loop")
    for u in range(16):
        kt, qs = u >> 2, u & 3
        ex = [[], [], [], []]
        if qs == 1:
            l = ldV((kt + 3) & 3, "s56")
            ex[0] = [l[0]]; ex[1] = [l[1]]; ex[2] = ["s_add_u32 s56, s56, 4096"]
        if u == 0: ex[0] = [f"ds_read_b32 v7, v{VF} offset:{C_R+4}"]
        if u == 1:
            ex[2] = ["s_waitcnt lgkmcnt(0)", "v_readfirstlane_b32 s56, v7"]
            ex[3] = ["s_sub_u32 s56, s56, 1"]
        if u == 2:
            ex[0] = ["s_cbranch_scc1 L_nextwait", "L_nextok:", f"v_add_u32 v{VF}, 4, v{VF}"]
        if qs == 2 and "nowait" not in EXP: ex[3] = ["s_waitcnt vmcnt(10)"]
        if qs == 0 and "nowait" not in EXP: ex[3] = ["s_waitcnt vmcnt(10)"]
        if qs == 3:
            l = ldK(kt, "s56")
            ex[0] = [l[0]]; ex[1] = [l[1]]
        if u == 12: ex[0] = [f"ds_read_b32 v7, v{VC} offset:{C_F}"]
        if u == 13: ex[3] = ["s_sub_u32 s57, s57, 1"]
        if "itst" in EXP and u in (0, 8):
            a("s_waitcnt lgkmcnt(0)")
            for i in range(1, 6): a(f"s_mov_b32 s{72+2*i}, s{72+2*i+2}")
            a("s_memtime s[84:85]")
        if "noload" in EXP: ex = [[y for y in x if "buffer_load" not in y] for x in ex]
        substep(u, ex)
        if u == 13: a("s_cbranch_scc1 L_tail")
    a("s_branch L_loop")
    a.label("L_tail")
    st(a, 8)
    a(f"""s_waitcnt lgkmcnt(0)
    v_cmp_gt_u32 vcc, 4, v7
    s_cbranch_vccnz L_wait_ffn
    L_ffn_free:""")
    wr = lambda i, k: f"ds_write_b128 v{4+i}, {vr(O+16*i+4*k,4)} offset:{k*1024}"
    substep(14, [[], [wr(0, 0)], [wr(0, 1)], [wr(0, 2)]])
    substep(15, [[wr(0, 3)], [wr(1, 0)], [wr(1, 1)], [wr(1, 2)]], last=True)
    a(PV(15, 0)); a(wr(1, 3)); a(PV(15, 1))
    for k in range(4): a(wr(2, k))
    lds_inc(a, VC, C_C, V1)
    srd(a, 20, 50, 2048 * 896)
    TT = S
    OO = O + 16 * OWN
    a(f"""s_lshl_b32 s28, s35, 4
    s_add_u32 s28, s28, s{H}
    s_lshr_b32 s56, s28, 2
    s_lshl_b32 s56, s56, 5
    s_and_b32 s26, s{H}, 3
    s_add_u32 s56, s56, s26
    s_lshl_b32 s56, s56, 2
    s_add_u32 s56, s56, {WS_OFL}
    s_lshl_b32 s52, s28, 11
    s_add_u32 s52, s52, {WS_O}
    s_mov_b32 s57, 0""")
    spin_lds(a, VC, C_C, 4, 7)
    for k in range(12): a(f"ds_read_b128 {vr(TT+4*k,4)}, v2 offset:{k*1024}")
    a(f"s_lshl_b32 s26, s{W}, 2\nv_add_u32 v7, s26, v{VC}\nds_write_b32 v7, v{V1} offset:{C_P}")
    for i in range(3):
        a(f"s_waitcnt lgkmcnt({9-4*i})")
        for k in (6, 7, 0, 1, 2, 3, 4, 5): a(f"v_pk_add_f32 {vr(OO+2*k,2)}, {vr(OO+2*k,2)}, {vr(TT+16*i+2*k,2)}")
    a.label("L_fin")
    a(f"""v_mov_b32 v5, v{OO+12}
    v_mov_b32 v4, v{OO+12}
    s_mov_b32 exec_lo, 0
    v_mov_b32 v{OO+12}, 0
    s_mov_b32 exec_lo, -1
    v_permlane32_swap_b32 v5, v4
    v_rcp_f32 v6, v4
    s_mov_b32 s28, 0x30800000
    s_mov_b32 s29, 0x4e800000
    v_cmp_nle_f32 s[54:55], s28, v4
    v_cmp_nge_f32 s[62:63], s29, v4
    v_pk_add_f32 v[4:5], {vr(OO,2)}, {vr(OO+2,2)}""")
    for k in range(2, 8): a(f"v_pk_add_f32 v[4:5], v[4:5], {vr(OO+2*k,2)}")
    a(f"""v_add_f32 v4, v4, v5
    s_movk_i32 s28, 0x207
    v_cmp_class_f32 vcc, v4, s28
    s_or_b64 s[54:55], s[54:55], s[62:63]""")
    for k in range(8): a(f"v_pk_mul_f32 {vr(OO+2*k,2)}, {vr(OO+2*k,2)}, v[6:7] op_sel_hi:[1,0]")
    for k in range(8): a(f"v_cvt_pk_bf16_f32 v{Q+k}, v{OO+2*k}, v{OO+2*k+1}")
    a(f"""v_mov_b32 v6, s{T}
    s_or_b64 s[54:55], s[54:55], vcc
    s_cbranch_scc1 L_bad
    L_good:
    buffer_store_dwordx4 {vr(Q,4)}, v1, s[8:11], s52 offen sc1
    buffer_store_dwordx4 {vr(Q+4,4)}, v1, s[8:11], s52 offen offset:1024 sc1
    s_mov_b64 exec, 1
    buffer_atomic_swap v6, v{VZ}, s[8:11], s56 offen sc1
    s_mov_b64 exec, -1""")
    st(a, 9)
    a(f"""s_mov_b32 s26, {WS_G}
    buffer_load_dwordx2 {vr(GR,2)}, v{VGO}, s[8:11], s26 offen sc1
    buffer_load_dwordx4 {vr(XR,4)}, v{VXO}, s[12:15], s59 offen
    buffer_load_dwordx4 {vr(XR+4,4)}, v{VXO}, s[12:15], s59 offen offset:32""")
    WOF = 104; B = 232; ACC = 8; U = 40
    OSB = [40, 72]
    a(f"""v_bfe_u32 v4, v3, 2, 2
    v_lshl_add_u32 v4, v{VH}, 2, v4
    v_mul_u32_u24 v4, 224, v4
    v_bfe_u32 v5, v3, 4, 1
    v_lshl_add_u32 v4, v5, 5, v4
    v_and_b32 v5, 1, v3
    v_lshl_add_u32 v4, v5, 4, v4
    v_bfe_u32 v5, v3, 1, 1
    v_lshl_add_u32 v4, v5, 3, v4
    s_mul_i32 s28, s{W}, 56
    v_add_u32 v24, s28, v4
    v_add_u32 v25, {8*28*224}, v24
    v_add_u32 v26, {CB}, v1
    v_lshlrev_b32 v27, 2, v{VT}
    v_add_u32 v27, {UPDI}, v27
    s_mul_i32 s28, s{W}, 112
    s_add_u32 s28, s28, {UPD}
    v_lshl_add_u32 v28, v{VH}, 5, s28
    v_mov_b32 v29, {CNT}
    v_mov_b32 v30, 0
    v_mov_b32 v31, 0
    s_waitcnt vmcnt(6)""")
    spin_lds(a, 29, C_W, 2, 6)
    for k in range(32):
        hd, m = k >> 1, k & 1
        o = (28 * (hd & 7) + 16 * m) * 224
        b = 24 + (hd >> 3)
        a(f"ds_read_b64_tr_b16 {vr(WOF+4*k,2)}, v{b} offset:{o}\nds_read_b64_tr_b16 {vr(WOF+4*k+2,2)}, v{b} offset:{o+8*224}")
    for k in range(8): a(f"v_pk_mul_f32 {vr(ACC+2*k,2)}, v[30:31], v[30:31]")
    a("s_waitcnt vmcnt(0)")
    for k in range(8):
        a(f"v_lshlrev_b32 v{B+2*k}, 16, v{XR+k}\nv_and_b32 v{B+2*k+1}, 0xffff0000, v{XR+k}")
    a(f"""v_cmp_ne_u32 vcc, s{T}, v{GR+1}
    s_cbranch_vccnz L_gate
    L_gate_ok:
    v_sub_f32 v32, 1.0, v{GR}
    v_cvt_pk_bf16_f32 v32, v32, v32
    v_lshlrev_b32 v32, 16, v32
    s_movk_i32 s57, 0x40f
    s_mov_b32 s60, {SPIN_LIMIT}""")
    if "twait" not in EXP: st(a, 10)
    def rd(p):
        a(f"""s_ff1_i32_b32 s27, s26
        s_bitset0_b32 s57, s27
        s_mul_i32 s28, s27, 12288
        v_add_u32 v7, s28, v26""")
        for k in range(8): a(f"ds_read_b128 {vr(OSB[p]+4*k,4)}, v7 offset:{k*1024}")
    a(f"""L_idle:
    ds_read_b32 v6, v29 offset:{C_O}
    s_sub_u32 s60, s60, 1
    s_cbranch_scc1 L_exit
    s_waitcnt lgkmcnt(0)
    v_readfirstlane_b32 s61, v6
    s_and_b32 s26, s61, s57
    s_cbranch_scc0 L_idle
    s_bitcmp1_b32 s26, 10
    s_cbranch_scc1 L_blkU""")
    rd(0)
    a(f"ds_read_b32 v6, v29 offset:{C_O}")
    for p in range(2):
        a(f"""L_st{p}:
        s_mov_b32 s29, s27
        s_waitcnt lgkmcnt(0)
        v_readfirstlane_b32 s61, v6
        s_and_b32 s26, s61, s57
        s_and_b32 s26, s26, 15
        s_cbranch_scc0 L_mm{p}""")
        rd(1 - p)
        a(f"""ds_read_b32 v6, v29 offset:{C_O}
        L_mm{p}:
        s_cmp_eq_u32 s29, 1
        s_cbranch_scc1 L_m{p}1
        s_cmp_eq_u32 s29, 2
        s_cbranch_scc1 L_m{p}2
        s_cmp_eq_u32 s29, 3
        s_cbranch_scc1 L_m{p}3""")
        for g in range(4):
            a(f"L_m{p}{g}:")
            for k in range(8):
                a(f"{MF} {vr(ACC,16)}, {vr(WOF+32*g+4*k,4)}, {vr(OSB[p]+4*k,4)}, {vr(ACC,16)}")
            if g < 3: a(f"s_branch L_md{p}")
        a(f"""L_md{p}:
        s_cmp_lg_u32 s26, 0
        s_cbranch_scc1 L_st{1-p}""")
        if p == 0: a("s_branch L_next")
    a("L_next:\ns_cmp_lg_u32 s57, 0\ns_cbranch_scc1 L_idle")
    if "twait" not in EXP: st(a, 11)
    a("s_nop 7")
    for m in range(2):
        for e in range(4*m, 4*m+4):
            a(f"v_pk_fma_f32 {vr(B+2*e,2)}, {vr(ACC+2*e,2)}, {vr(GR,2)}, {vr(B+2*e,2)} op_sel_hi:[1,0,1]")
        for e in range(4*m, 4*m+4): a(f"v_cvt_pk_bf16_f32 v{40+e}, v{B+2*e}, v{B+2*e+1}")
        if m == 0:
            a(f"buffer_store_dwordx4 v[40:43], v{VXO}, s[20:23], s59 offen{OUTAUX}")
        else:
            a(f"""s_mov_b32 exec_hi, 0
            buffer_store_dwordx4 v[44:47], v{VXO}, s[20:23], s59 offen offset:32{OUTAUX}
            s_mov_b64 exec, 0xffffffff
            s_not_b64 exec, exec
            buffer_store_dwordx2 v[44:45], v{VXO}, s[20:23], s59 offen offset:32{OUTAUX}""")
    st_end(a)
    diag_end(a)
    a("s_endpgm")
    a(f"""L_blkU:
    ds_read_b32 v6, v27
    s_bitset0_b32 s57, 10
    s_waitcnt lgkmcnt(0)
    v_cmp_le_i32 vcc, 0, v6
    s_cbranch_vccz L_noupd
    s_mov_b64 exec, vcc
    v_mul_u32_u24 v6, 448, v6
    v_add_u32 v28, v28, v6""")
    for k in range(4): a(f"ds_read_b128 {vr(U+4*k,4)}, v28 offset:{64*(k>>1)+16*(k&1)}")
    a("s_waitcnt lgkmcnt(0)")
    for k in range(8):
        a(f"""v_pk_add_f32 {vr(B+2*k,2)}, {vr(B+2*k,2)}, {vr(U+2*k,2)}
        v_cvt_pk_bf16_f32 v{B+2*k}, v{B+2*k}, v{B+2*k+1}
        v_and_b32 v{B+2*k+1}, 0xffff0000, v{B+2*k}
        v_lshlrev_b32 v{B+2*k}, 16, v{B+2*k}""")
    a("s_mov_b64 exec, -1\nL_noupd:")
    for k in range(8): a(f"v_pk_mul_f32 {vr(B+2*k,2)}, {vr(B+2*k,2)}, v[32:33] op_sel_hi:[1,0]")
    a("s_branch L_next")
    a("L_bad:\ns_cmp_eq_u32 s57, 0\ns_cbranch_scc1 L_slow")
    for k in range(8): a(f"v_min_u32 v{Q+k}, -2, v{Q+k}")
    a("s_branch L_good")
    a.label("L_wait_ffn")
    spin_lds(a, VC, C_F, 4, 7)
    a("s_branch L_ffn_free")
    a.label("L_nextwait")
    spin_lds(a, VF, C_R + 4, 1, 7)
    a("s_sub_u32 s56, s61, 1\ns_branch L_nextok")
    a(f"""L_gate:
    s_mov_b32 s26, {WS_G}
    s_mov_b32 s60, {SPIN_LIMIT}
    L_gate1:
    buffer_load_dwordx2 {vr(GR,2)}, v{VGO}, s[8:11], s26 offen sc1
    s_waitcnt vmcnt(0)
    v_cmp_ne_u32 vcc, s{T}, v{GR+1}
    s_cbranch_vccz L_gate_ok
    s_sub_u32 s60, s60, 1
    s_cbranch_scc0 L_gate1
    s_endpgm""")
    a.label("L_slow")
    a(f"""s_mov_b32 s57, 1
    s_add_u32 s55, s53, {64*4096}
    s_mov_b32 s54, s53
    s_mov_b32 exec_lo, 0
    v_mov_b32 v{QO+6}, 0
    v_mov_b32 v{QO+7}, 0
    s_mov_b32 exec_lo, -1
    v_mov_b32 v4, 0xff800000
    L_slow1:
    buffer_load_dwordx4 {vr(KV,4)}, v1, s[8:11], s54 offen sc1
    buffer_load_dwordx4 {vr(KV+4,4)}, v1, s[8:11], s54 offen offset:1024 sc1
    s_waitcnt vmcnt(0)
    {MF} {vr(S,16)}, {vr(KV,4)}, {vr(QO,4)}, 0
    {MF} {vr(S,16)}, {vr(KV+4,4)}, {vr(QO+4,4)}, {vr(S,16)}""")
    for x in max16_list(4, S, init=True): a(x)
    a("""s_add_u32 s54, s54, 4096
    s_cmp_lt_u32 s54, s55
    s_cbranch_scc1 L_slow1
    v_mov_b32 v5, v4
    v_permlane32_swap_b32 v4, v5
    v_max_f32 v4, v4, v5""")
    split_neg_max(a, 4, 5, 6, QO + 6, QO + 7)
    for i in range(16): a(f"v_mov_b32 v{OO+i}, 0")
    a(f"""s_mov_b32 s54, s53
    L_slow2:
    buffer_load_dwordx4 {vr(KV,4)}, v1, s[8:11], s54 offen sc1
    buffer_load_dwordx4 {vr(KV+4,4)}, v1, s[8:11], s54 offen offset:1024 sc1
    buffer_load_dwordx4 {vr(KV+8,4)}, v1, s[8:11], s54 offen offset:2048 sc1
    buffer_load_dwordx4 {vr(KV+12,4)}, v1, s[8:11], s54 offen offset:3072 sc1
    s_waitcnt vmcnt(0)
    {MF} {vr(S,16)}, {vr(KV,4)}, {vr(QO,4)}, 0
    {MF} {vr(S,16)}, {vr(KV+4,4)}, {vr(QO+4,4)}, {vr(S,16)}""")
    for i in range(16): a(f"v_exp_f32 v{S+i}, v{S+i}")
    for i in range(8): a(f"v_cvt_pk_bf16_f32 v{P+i}, v{S+2*i}, v{S+2*i+1}")
    a(f"""{MF} {vr(OO,16)}, {vr(KV+8,4)}, {vr(P,4)}, {vr(OO,16)}
    {MF} {vr(OO,16)}, {vr(KV+12,4)}, {vr(P+4,4)}, {vr(OO,16)}
    s_nop 7
    s_nop 7
    s_add_u32 s54, s54, 4096
    s_cmp_lt_u32 s54, s55
    s_cbranch_scc1 L_slow2
    s_branch L_fin""")

def service_wave(a):
    a.label("L_service")
    a(f"""v_mov_b32 v14, {CNT}
    v_mov_b32 v15, 1
    v_mov_b32 v9, 0""")
    srd(a, 8, 36, (1 << 28) - WSBASE)
    tag(a)
    a("s_waitcnt vmcnt(0)")
    lds_inc(a, 14, C_Q1, 15)
    a(f"""v_and_b32 v32, 31, v3
    v_lshrrev_b32 v33, 5, v3
    v_lshlrev_b32 v219, 3, v1
    v_lshrrev_b32 v220, 2, v1
    v_and_b32 v4, 7, v3
    v_lshlrev_b32 v217, 3, v4
    s_lshr_b32 s58, s{H}, 2
    s_lshl2_add_u32 s58, s{J}, s58
    s_cmp_ge_u32 s{L}, 2
    s_cbranch_scc1 L_svcB""")
    def sel_load(lbl):
        a(f"""s_mov_b32 s26, {WS_SEL}
        s_mov_b32 s60, {SPIN_LIMIT}
        {lbl}:
        buffer_load_dwordx2 v[20:21], v217, s[8:11], s26 offen sc1
        s_waitcnt vmcnt(0)
        v_cmp_ne_u32 vcc, s{T}, v21
        s_cbranch_vccz {lbl}_ok
        s_sleep 4
        s_sub_u32 s60, s60, 1
        s_cbranch_scc0 {lbl}
        s_endpgm
        {lbl}_ok:""")
    a(f"""v_mov_b32 v6, {KEYS}
    s_lshl_b32 s28, s{L}, 8
    v_add3_u32 v7, v220, v6, s28
    s_lshl_b32 s27, s{J}, 6
    s_add_u32 s27, s27, {WS_R}
    s_cmp_eq_u32 s{RL}, 14
    s_cbranch_scc1 L_rank
    s_cmp_lg_u32 s2, {SELECTOR}
    s_cbranch_scc1 L_svcA
    s_lshl_b32 s26, s{L}, 9
    s_add_u32 s26, s26, {WS_R}
    s_mov_b32 s27, {WS_SEL}
    v_lshlrev_b32 v4, 3, v3
    v_mov_b32 v5, 2
    s_mov_b32 s60, {SPIN_LIMIT}
    L_keys:
    v_mov_b32 v20, 0
    v_mov_b32 v21, 0
    buffer_atomic_or_x2 v[20:21], v4, s[8:11], s26 offen sc0 sc1
    s_sub_u32 s60, s60, 1
    s_cbranch_scc1 L_exit
    s_waitcnt vmcnt(0)
    v_cmp_ne_u32 vcc, s{T}, v21
    s_cbranch_vccnz L_keys
    ds_write_b32 v7, v20""")
    lds_inc(a, 14, C_K, 5)
    a.label("L_rank")
    spin_lds(a, 14, C_K, 4, 8)
    st(a, 10)
    if STAMP: a("s_waitcnt lgkmcnt(0)")
    a(f"ds_read_b32 v20, v7\nv_mov_b32 v22, 0\nv_mov_b32 v21, s{T}\ns_mov_b32 s57, 0\nL_rk:")
    for k in range(8): a(f"ds_read_b128 {vr(40+4*k,4)}, v6 offset:{16*k}")
    a("v_add_u32 v6, 128, v6")
    CS = ["s[52:53]", "s[54:55]", "s[62:63]", "s[28:29]"]
    for k in range(8):
        a(f"s_waitcnt lgkmcnt({7-k})")
        for e in range(4): a(f"v_cmp_gt_u32 {CS[e]}, v{40+4*k+e}, v20")
        for e in range(4): a(f"v_addc_co_u32 v22, vcc, 0, v22, {CS[e]}")
    a(f"""s_add_u32 s57, s57, 1
    s_cmp_lt_u32 s57, 4
    s_cbranch_scc1 L_rk
    v_cmp_gt_u32 vcc, 8, v22
    v_lshlrev_b32 v22, 3, v22
    s_mov_b64 exec, vcc
    s_cbranch_execz L_rank_done
    buffer_atomic_swap_x2 v[20:21], v22, s[8:11], s27 offen sc1
    L_rank_done:
    s_mov_b64 exec, -1""")
    st(a, 11)
    a.label("L_svcA")
    GI = CB; DI = QX; HB = 101376
    FT, KS = 56, 59
    a(f"""s_cmp_ge_u32 s2, 196
    s_cbranch_scc1 L_nofn
    s_mul_i32 s{FT}, s2, 9363
    s_lshr_b32 s{FT}, s{FT}, 16
    s_mul_i32 s26, s{FT}, 7
    s_sub_u32 s{KS}, s2, s26
    v_lshrrev_b32 v4, 3, v3
    v_and_b32 v5, 2, v4
    v_lshlrev_b32 v5, 1, v5
    v_and_b32 v6, 7, v3
    v_xor_b32 v5, v5, v6
    v_mul_u32_u24 v6, 3584, v4
    v_lshl_add_u32 v34, v5, 4, v6
    v_add_u32 v35, {8*3584-1024}, v34
    v_add_u32 v36, {2*(8*3584-1024)}, v34
    v_add_u32 v37, {3*(8*3584-1024)}, v34
    v_lshrrev_b32 v6, 2, v3
    v_mul_u32_u24 v6, 896, v6
    v_and_b32 v5, 3, v3
    v_lshl_add_u32 v200, v5, 4, v6
    v_add_u32 v201, {16*896-1024}, v200
    v_add_u32 v202, {2*(16*896-1024)}, v200
    v_add_u32 v203, {3*(16*896-1024)}, v200
    v_bfe_u32 v4, v3, 2, 2
    v_lshl_add_u32 v5, v33, 3, v4
    v_lshlrev_b32 v5, 7, v5
    v_lshrrev_b32 v4, 1, v4
    v_lshl_add_u32 v5, v4, 6, v5
    v_bfe_u32 v4, v3, 4, 1
    v_lshl_add_u32 v5, v4, 5, v5
    v_and_b32 v4, 3, v3
    v_lshl_add_u32 v5, v4, 3, v5
    s_lshl_b32 s54, s{L}, 13
    s_add_u32 s54, s54, {GI}
    v_add_u32 v38, s54, v5
    v_xor_b32 v39, 64, v38
    v_lshrrev_b32 v6, 7, v5
    v_and_b32 v5, 63, v5
    v_lshl_add_u32 v5, v6, 6, v5
    s_lshl_b32 s26, s{L}, 12
    s_add_u32 s26, s26, {DI}
    v_add_u32 v210, s26, v5
    ; partial-sum store offset 4hh*256 + col*4 ; h addresses ; y offsets
    v_lshlrev_b32 v212, 10, v33
    v_lshl_add_u32 v212, v32, 2, v212
    s_lshl_b32 s26, s{L}, 9
    s_add_u32 s26, s26, {HB}
    v_lshl_add_u32 v214, v3, 3, s26
    v_lshlrev_b32 v4, 4, v217
    v_lshl_add_u32 v4, v33, 4, v4
    v_add_u32 v218, {HB}, v4
    v_mul_u32_u24 v215, {4*1792}, v33
    v_lshl_add_u32 v215, v32, 2, v215
    v_add_u32 v216, {2*1792}, v215""")
    srd(a, 16, 42, 448 * 3584)
    a(f"""s_cmp_eq_u32 s{L}, 1
    s_cselect_b64 s[16:17], s[44:45], s[42:43]
    s_mul_i32 s52, s{KS}, {64*3584}
    s_lshl_b32 s28, s{FT}, 7
    s_add_u32 s52, s52, s28""")
    spin_lds(a, 14, C_L, 4, 8, sleep=2)
    st(a, 3)
    NR = 2 if "fine" in EXP else 4
    XS_ = 40; FW = 56; AC = 104
    a("s_mov_b32 m0, s54\ns_nop 0")
    for k in range(8):
        if k == 4: a(f"s_add_u32 s52, s52, {32*3584}\ns_add_u32 m0, s54, 4096")
        if k == 8 - NR: sel_load("L_sel1")
        elif k and k % NR == 0: a("s_waitcnt vmcnt(0)")
        a(f"buffer_load_dwordx4 v{34+(k&3)}, s[16:19], s52 offen offset:{1024*(k&3)} lds")
    a(f"""v_and_b32 v4, 0xffff, v20
    v_sub_u32 v4, 0xffff, v4
    v_mul_u32_u24 v4, 896, v4
    v_lshl_add_u32 v4, v33, 4, v4
    s_lshl_b32 s26, s{KS}, 7
    s_mov_b32 exec_lo, 0xff
    s_mov_b32 exec_hi, 0xff""")
    for k in range(4):
        a(f"buffer_load_dwordx4 {vr(XS_+4*k,4)}, v4, s[12:15], s26 offen offset:{32*k}")
    a("s_mov_b64 exec, -1\ns_waitcnt vmcnt(4)")
    for k in range(4):
        for n in range(2):
            a(f"ds_read_b64_tr_b16 {vr(FW+8*k+4*n,2)}, v{38+n} offset:{k*2048}\nds_read_b64_tr_b16 {vr(FW+8*k+4*n+2,2)}, v{38+n} offset:{k*2048+512}")
    lds_inc(a, 14, C_F, 15)
    a(f"""s_mov_b64 s[16:17], s[46:47]
    s_mul_i32 s28, s{FT}, {64*896}
    s_add_u32 s28, s28, s26
    s_lshl_b32 s29, s{L}, 6
    s_add_u32 s28, s28, s29
    s_lshl_b32 s29, s{L}, 12
    s_add_u32 m0, s29, {DI}
    s_lshl1_add_u32 s26, s2, s{L}
    s_lshl_b32 s26, s26, 11
    s_add_u32 s26, s26, {WS_GP}
    s_waitcnt lgkmcnt(0)""")
    st(a, 4)
    for k in range(4):
        a(f"s_waitcnt vmcnt({3-k})")
        for n in range(2):
            a(f"{MF} {vr(AC+16*n,16)}, {vr(XS_+4*k,4)}, {vr(FW+8*k+4*n,4)}, {'0' if k==0 else vr(AC+16*n,16)}")
    for n in range(2):
        for k in range(4):
            a(f"buffer_store_dword v{AC+16*n+k}, v212, s[8:11], s26 offen offset:{256*k+128*n} sc1")
    for k in range(4): a(f"buffer_load_dwordx4 v{200+k}, s[16:19], s28 offen offset:{1024*k} lds")
    a(f"""s_lshl1_add_u32 s26, s{KS}, s{L}
    s_lshl_b32 s26, s26, 2
    s_mul_i32 s28, s{FT}, {7*128}
    s_add_u32 s26, s26, s28
    s_add_u32 s26, s26, {WS_F1}
    s_waitcnt vmcnt(4)""")
    signal(a, 5, 219, "s26", "0x7f")
    st(a, 5)
    a(f"s_lshl_b32 s26, s2, 7\ns_add_u32 s26, s26, {WS_F1}")
    poll_atomic(a, 5, 220, "s26", "0x3fff", 0)
    st(a, 6)
    GP = 40
    a(f"s_mul_i32 s26, s{FT}, {7*4096}\ns_lshl_b32 s28, s{L}, 10\ns_add_u32 s26, s26, s28\ns_add_u32 s26, s26, {WS_GP}")
    for k in range(7):
        a(f"""buffer_load_dwordx4 {vr(GP+8*k,4)}, v1, s[8:11], s26 offen sc1
        buffer_load_dwordx4 {vr(GP+8*k+4,4)}, v1, s[8:11], s26 offen offset:2048 sc1""")
        if k < 6: a("s_add_u32 s26, s26, 4096")
    DW = 120
    for k in range(4):
        a(f"ds_read_b64_tr_b16 {vr(DW+4*k,2)}, v210 offset:{k*1024}\nds_read_b64_tr_b16 {vr(DW+4*k+2,2)}, v210 offset:{k*1024+256}")
    a(f"s_mov_b32 s28, {NLOG2E:#x}\ns_mov_b32 s29, {NLOG2E:#x}\ns_waitcnt vmcnt(0)")
    for k in range(1, 7):
        for e in range(4):
            a(f"v_pk_add_f32 {vr(GP+2*e,2)}, {vr(GP+2*e,2)}, {vr(GP+8*k+2*e,2)}")
    for e in range(2):
        a(f"""v_cvt_pk_bf16_f32 v22, v{GP+2*e}, v{GP+2*e+1}
        v_cvt_pk_bf16_f32 v24, v{GP+4+2*e}, v{GP+5+2*e}
        v_and_b32 v23, 0xffff0000, v22
        v_lshlrev_b32 v22, 16, v22
        v_pk_mul_f32 v[26:27], v[22:23], s[28:29]
        v_and_b32 v25, 0xffff0000, v24
        v_exp_f32 v26, v26
        v_exp_f32 v27, v27
        v_lshlrev_b32 v24, 16, v24
        v_pk_add_f32 v[26:27], v[26:27], 1.0 op_sel_hi:[1,0]
        v_rcp_f32 v26, v26
        v_rcp_f32 v27, v27
        s_nop 0
        v_pk_mul_f32 v[22:23], v[22:23], v[26:27]
        v_cvt_pk_bf16_f32 v22, v22, v23
        v_and_b32 v23, 0xffff0000, v22
        v_lshlrev_b32 v22, 16, v22
        v_pk_mul_f32 v[22:23], v[22:23], v[24:25]
        v_cvt_pk_bf16_f32 v{28+e}, v22, v23""")
    a("ds_write_b64 v214, v[28:29]")
    lds_inc(a, 14, C_S, 15)
    spin_lds(a, 14, C_S, 2, 8)
    for k in range(4): a(f"ds_read_b128 {vr(GP+4*k,4)}, v218 offset:{32*k}")
    for k in range(4):
        a(f"s_waitcnt lgkmcnt({3-k})\n{MF} {vr(AC,16)}, {vr(GP+4*k,4)}, {vr(DW+4*k,4)}, {'0' if k==0 else vr(AC,16)}")
    a(f"""s_mul_i32 s26, s{FT}, 14336
    s_lshl1_add_u32 s28, s{KS}, s{L}
    s_lshl_b32 s29, s28, 7
    s_add_u32 s26, s26, s29
    s_add_u32 s26, s26, {WS_YP}
    s_lshl2_add_u32 s28, s{FT}, s29
    s_add_u32 s28, s28, {WS_YFL}
    buffer_store_dword v{AC}, v215, s[8:11], s26 offen sc1
    buffer_store_dword v{AC+1}, v215, s[8:11], s26 offen offset:1792 sc1
    buffer_store_dword v{AC+2}, v216, s[8:11], s26 offen sc1
    buffer_store_dword v{AC+3}, v216, s[8:11], s26 offen offset:1792 sc1
    s_waitcnt vmcnt(0)""")
    signal(a, 5, 9, "s28", 1)
    st(a, 7)
    a("s_branch L_updA")
    a.label("L_nofn")
    lds_inc(a, 14, C_F, 15)
    spin_lds(a, 14, C_F, 4, 8, sleep=8)
    sel_load("L_sel2")
    a(f"""s_lshl2_add_u32 s26, s2, s{L}
    s_cmp_lg_u32 s26, {254*4}
    s_cbranch_scc1 L_updA""")
    a(f"s_mov_b32 s60, {SPIN_LIMIT}\nL_ep:")
    for k in range(4):
        a(f"s_mov_b32 s26, {WS_FL+8192*k}\nbuffer_load_dword v{24+k}, v219, s[8:11], s26 offen sc1")
    a(f"""s_sub_u32 s60, s60, 1
    s_cbranch_scc1 L_exit
    s_waitcnt vmcnt(0)
    v_xor_b32 v24, s{T}, v24
    v_bitop3_b32 v24, v24, v25, s{T} bitop3:0xf6
    v_bitop3_b32 v24, v24, v26, s{T} bitop3:0xf6
    v_bitop3_b32 v24, v24, v27, s{T} bitop3:0xf6
    v_cmp_ne_u32 vcc, 0, v24
    s_cbranch_vccnz L_ep
    s_mov_b32 s26, {WS_EP}""")
    flag_store(a, 5, 9, "s26")
    Y = 40
    a(f"""L_updA:
    s_and_b32 s53, s{H}, 3
    s_mul_i32 s53, s53, 224
    s_lshl_b32 s57, s{L}, 2
    s_lshr_b32 s26, s53, 6
    s_lshl_b32 s26, s26, 7
    s_add_u32 s62, s26, {WS_YFL}
    L_upd:
    v_readlane_b32 s52, v20, s57
    s_and_b32 s54, s52, 0xffff
    s_sub_u32 s54, 0xffff, s54
    s_lshr_b32 s26, s54, 5
    s_cmp_lg_u32 s26, s58
    s_cbranch_scc1 L_updn
    s_mov_b32 s60, {SPIN_LIMIT}
    s_mov_b32 exec_lo, 0x0fffffff
    s_mov_b32 exec_hi, 0x0fffffff
    L_yfl:
    v_mov_b32 v24, 0
    v_mov_b32 v25, 0
    buffer_atomic_or v24, v220, s[8:11], s62 offen sc0 sc1
    buffer_atomic_or v25, v220, s[8:11], s62 offen offset:256 sc0 sc1
    s_waitcnt vmcnt(0)
    v_xor_b32 v24, s{T}, v24
    v_bitop3_b32 v24, v24, v25, s{T} bitop3:0xf6
    v_cmp_ne_u32 vcc, 0, v24
    s_cbranch_vccz L_yok
    s_sub_u32 s60, s60, 1
    s_cbranch_scc0 L_yfl
    s_endpgm
    L_yok:
    v_mul_u32_u24 v4, {14*14336}, v33
    v_lshl_add_u32 v4, v32, 4, v4
    s_mul_i32 s26, s57, 1792
    s_lshl1_add_u32 s26, s53, s26
    s_add_u32 s26, s26, {WS_YP}""")
    for i in range(14):
        a(f"buffer_load_dwordx4 {vr(Y+4*i,4)}, v4, s[8:11], s26 offen sc1\ns_add_u32 s26, s26, 14336")
    a(f"""s_mov_b64 exec, -1
    s_lshr_b32 s26, s52, 16
    s_not_b32 s55, s26
    s_and_b32 s29, s26, 0x7fff
    s_bitcmp1_b32 s26, 15
    s_cselect_b32 s26, s29, s55
    s_lshl_b32 s26, s26, 16
    v_mov_b32 v6, {NLOG2E:#x}
    v_mul_f32 v6, s26, v6
    v_exp_f32 v6, v6
    v_add_f32 v6, 1.0, v6
    v_rcp_f32 v6, v6
    v_cvt_pk_bf16_f32 v6, v6, v6
    v_lshlrev_b32 v6, 16, v6
    s_mul_i32 s26, s57, 448
    s_add_u32 s26, s26, {UPD}
    v_lshl_add_u32 v7, v32, 4, s26
    s_waitcnt vmcnt(0)""")
    for i in range(1, 14):
        a(f"v_pk_add_f32 {vr(Y,2)}, {vr(Y,2)}, {vr(Y+4*i,2)}\nv_pk_add_f32 {vr(Y+2,2)}, {vr(Y+2,2)}, {vr(Y+4*i+2,2)}")
    for k in range(4): a(f"v_mov_b32 v{Y+4+k}, v{Y+k}")
    for k in range(4): a(f"v_permlane32_swap_b32 v{Y+k}, v{Y+4+k}")
    for k in range(4): a(f"v_add_f32 v{Y+k}, v{Y+k}, v{Y+4+k}")
    for k in range(0, 4, 2):
        a(f"""v_cvt_pk_bf16_f32 v{Y+k}, v{Y+k}, v{Y+k+1}
        v_and_b32 v{Y+k+1}, 0xffff0000, v{Y+k}
        v_lshlrev_b32 v{Y+k}, 16, v{Y+k}
        v_mul_f32 v{Y+k}, v{Y+k}, v6
        v_mul_f32 v{Y+k+1}, v{Y+k+1}, v6
        v_cvt_pk_bf16_f32 v{Y+k}, v{Y+k}, v{Y+k+1}
        v_and_b32 v{Y+k+1}, 0xffff0000, v{Y+k}
        v_lshlrev_b32 v{Y+k}, 16, v{Y+k}""")
    a(f"""s_and_b32 s54, s54, 31
    v_mov_b32 v5, s57
    s_lshl_b32 s26, s54, 2
    s_add_u32 s26, s26, {UPDI}
    v_mov_b32 v4, s26
    s_mov_b64 exec, 0x0fffffff
    ds_write_b128 v7, {vr(Y,4)}
    s_mov_b64 exec, 1
    ds_write_b32 v4, v5
    s_mov_b64 exec, -1
    L_updn:
    s_add_u32 s57, s57, 1
    s_and_b32 s26, s57, 3
    s_cbranch_scc1 L_upd
    v_mov_b32 v6, 512""")
    lds_inc(a, 14, C_O, 6)
    st(a, 9)
    a("s_branch L_ofetch")
    a.label("L_svcB")
    OUTT = ""
    if "outtouch" in EXP:
        OUTT = f"""s_cmp_lg_u32 s55, {42*1024}
        s_cbranch_scc1 L_noot
        s_mov_b32 s20, s50
        s_mov_b32 s21, s51
        s_mov_b32 s22, {2048*896}
        s_mov_b32 s23, 0x20000
        s_lshl_b32 s26, s58, 5
        v_add_u32 v4, s26, v32
        v_mul_u32_u24 v4, 896, v4
        s_add_u32 s26, s53, 127
        s_and_b32 s26, s26, 0xffffff80
        v_lshl_add_u32 v4, v33, 7, v4
        s_cmp_eq_u32 s53, 672
        s_cselect_b32 exec_hi, 0, -1
        buffer_store_dword v9, v4, s[20:23], s26 offen sc1
        s_mov_b64 exec, -1
        L_noot:"""
    WOPF = "s_mov_b32 exec_hi, 0x1ffff\nbuffer_load_dword v6, v219, s[16:19], s28 offen\ns_mov_b64 exec, -1" if "wopfS" not in EXP else ""
    for e in range(7):
        a(f"""v_add_u32 v4, {64*e}, v3
        v_mul_u32_u24 v5, 4682, v4
        v_lshrrev_b32 v5, 16, v5
        v_mul_u32_u24 v5, {896-224}, v5
        v_lshl_add_u32 v{200+e}, v4, 4, v5""")
    a(f"""v_mov_b32 v16, 0
    v_mov_b32 v17, 0
    v_mov_b32 v18, 0
    v_mov_b32 v19, 0
    v_add_u32 v209, {448*224}, v1
    s_cmp_eq_u32 s{L}, 2
    s_cbranch_scc1 L_svcB2
    v_lshrrev_b32 v4, 4, v3
    v_and_b32 v5, 15, v3
    v_lshlrev_b32 v5, 2, v5
    v_lshl_add_u32 v221, v4, 9, v5
    v_lshl_add_u32 v222, v4, 5, v14
    v_and_b32 v223, 48, v3
    v_and_b32 v5, 15, v3
    v_add_u32 v6, v5, v4
    v_lshl_add_u32 v224, v6, 14, 1
    v_bfm_b32 v225, v5, 0
    s_mul_i32 s26, s{H}, 28
    s_add_u32 s28, s26, 27
    s_xor_b32 s26, s26, s28
    s_mov_b32 s62, 0x55555555
    s_cmp_ge_u32 s26, 64
    s_cselect_b32 s62, -1, s62
    s_mov_b32 s63, s62
    s_lshr_b32 s28, s{J}, 2
    s_lshl4_add_u32 s26, s{H}, s28
    s_lshl_b32 s26, s26, 7
    s_add_u32 s26, s26, {WS_MB}""")
    spin_lds(a, 14, C_D, PCD, 8, sleep=1)
    at = lambda r: f"v_mov_b32 v{r}, 0\nbuffer_atomic_or v{r}, v221, s[8:11], s26 offen sc0 sc1"
    a(f"""s_mov_b32 s60, {SPIN_LIMIT}
    s_mov_b32 s52, 0x11111111
    s_mov_b32 s53, 0x11111111
    s_mov_b64 exec, s[62:63]""")
    for i in range(PD - 1): a(at(28 + i) + f"\ns_sleep {PG}")
    a("L_kv:")
    for i in range(PD):
        a(at(28 + (i + PD - 1) % PD))
        a(f"""s_waitcnt vmcnt({PD-1})
        v_cmp_ne_u32 vcc, s{T}, v{28+i}
        s_lshr_b64 s[28:29], vcc, 1
        s_or_b64 s[28:29], s[28:29], vcc
        s_lshr_b64 s[54:55], s[28:29], 2
        s_or_b64 s[28:29], s[28:29], s[54:55]
        s_andn2_b64 s[28:29], s[52:53], s[28:29]
        s_cbranch_scc0 L_kvn{i}
        s_andn2_b64 s[52:53], s[52:53], s[28:29]
        v_lshrrev_b64 v[4:5], v223, s[28:29]
        v_and_b32 v5, v225, v4
        v_bcnt_u32_b32 v5, v5, 0
        v_lshl_add_u32 v5, v5, 2, v222
        s_mov_b64 exec, s[28:29]
        ds_write_b32 v5, v224 offset:{C_R}
        s_mov_b64 exec, s[62:63]
        v_and_b32 v4, 0xffff, v4
        v_bcnt_u32_b32 v4, v4, 0
        v_lshl_add_u32 v222, v4, 2, v222
        s_cmp_eq_u64 s[52:53], 0
        s_cbranch_scc1 L_kvdone
        L_kvn{i}:""")
    a(f"""s_sub_u32 s60, s60, 1
    s_cbranch_scc0 L_kv
    s_endpgm
    L_kvdone:
    s_mov_b64 exec, -1
    L_svcB2:""")
    srd(a, 16, 38, 448 * 896)
    a(f"""s_and_b32 s53, s{H}, 3
    s_mul_i32 s53, s53, 224
    s_and_b32 s27, s{L}, 1
    s_mul_i32 s55, s27, {7*1024}
    s_mul_i32 s57, s27, {32*896}
    s_add_u32 s57, s57, s53
    s_lshl1_add_u32 s28, s25, s27
    s_mul_i32 s28, s28, {49*128}
    v_mov_b32 v24, -1
    v_mov_b32 v25, -1
    v_mov_b32 v26, -1
    v_mov_b32 v27, -1
    s_lshl_b32 s59, s{J}, 6
    s_add_u32 s59, s59, s{H}
    s_lshl1_add_u32 s59, s59, s27
    s_lshl_b32 s59, s59, 10
    s_add_u32 s59, s59, {WS_O}""")
    spin_lds(a, 14, C_L, 4, 8, sleep=2)
    st(a, 3)
    a(f"""ds_write_b128 v209, v[16:19]
    {WOPF}
    s_cmp_lg_u32 s{L}, 2
    s_cbranch_scc1 L_nofl
    s_lshl_b32 s26, s2, 7
    s_add_u32 s26, s26, {WS_FL}""")
    flag_store(a, 5, 9, "s26")
    a("L_nofl:\ns_waitcnt vmcnt(0)")
    if "wogate" in EXP: spin_lds(a, 14, C_F, 2, 8, sleep=4)
    a("L_wo:")
    for e in range(7):
        a(f"""s_add_u32 m0, s55, {e*1024}
        s_waitcnt vmcnt({WOP})
        buffer_load_dwordx4 v{200+e}, s[16:19], s57 offen lds""")
    a(f"""s_cmp_ge_u32 s55, {56*1024}
    s_cbranch_scc1 L_noclr
    buffer_store_dwordx4 v[24:27], v1, s[8:11], s59 offen sc1
    s_add_u32 s59, s59, {16*2048}
    L_noclr:
    {OUTT}
    s_sub_u32 s26, s55, {56*1024}
    s_cmp_ge_u32 s26, {14*1024}
    s_cbranch_scc1 L_noinc""")
    lds_inc(a, 14, C_F, 15)
    a(f"""L_noinc:
    s_add_u32 s55, s55, {14*1024}
    s_add_u32 s57, s57, {64*896}
    s_cmp_lt_u32 s55, {98*1024}
    s_cbranch_scc1 L_wo""")
    a("s_waitcnt vmcnt(0)")
    lds_inc(a, 14, C_W, 15)
    st(a, 8)
    a.label("L_ofetch")
    a(f"""s_lshl2_add_u32 s28, s58, s{L}
    s_lshl_b32 s29, s28, 13
    s_add_u32 s29, s29, {WS_O}
    s_add_u32 s27, s29, 4096
    s_lshl_b32 s28, s28, 7
    s_add_u32 s28, s28, {WS_OFL}
    s_mul_i32 s26, s{L}, 12288
    s_add_u32 s26, s26, {CB}
    v_add_u32 v7, s26, v1
    s_lshl_b32 s26, s{L}, 2
    v_add_u32 v6, s26, v14
    s_lshl_b32 s26, 1, s{L}
    v_mov_b32 v5, s26""")
    spin_lds(a, 6, C_P, 1, 8, sleep=4)
    poll_pipe(a, 28, 220, "s28", 15, D=PD, gap=PG)
    a("L_of:\nv_mov_b32 v4, 0")
    for k in range(8):
        a(f"buffer_load_dwordx4 {vr(40+4*k,4)}, v1, s[8:11], {'s29' if k < 4 else 's27'} offen offset:{(k&3)*1024} sc1")
    a("s_sub_u32 s60, s60, 1\ns_cbranch_scc1 L_exit")
    for k in range(8):
        a(f"""s_waitcnt vmcnt({7-k})
        ds_write_b128 v7, {vr(40+4*k,4)} offset:{k*1024}
        v_max3_u32 v4, v4, v{40+4*k}, v{41+4*k}
        v_max3_u32 v4, v4, v{42+4*k}, v{43+4*k}""")
    a("v_cmp_eq_u32 vcc, -1, v4\ns_cbranch_vccnz L_of")
    lds_inc(a, 14, C_O, 5)
    a("s_waitcnt vmcnt(0) lgkmcnt(0)")
    st_end(a)
    a("L_exit:\nL_code_end:\ns_endpgm")

def main(out):
    hdr = open("cdna_kernels/" + NAME + ".s.ref").read().split("; Override")[0]
    rep = []
    a = Asm()
    prologue_and_loader(a); main_wave(a); service_wave(a)
    t = hdr
    t += f"; @launch grid=(256,1,1) block=(512,1,1) lds={LDS_BYTES}\n"
    t += '.amdgcn_target "amdgcn-amd-amdhsa--gfx950"\n'
    t += kernel_text(NAME + "_kernel", a.l, 256, report=rep)
    open(out, "w").write(t)
    if "-v" in sys.argv: print("\n".join(rep))

if __name__ == "__main__":
    main(sys.argv[1])
```

```python
import sys, math, struct
from asmlib import *

NAME = "gated_mix__softmax_full_mha__moe_arch_mod__prompt"
STAMP = "-s" in sys.argv
EXP = set(x[2:] for x in sys.argv if x.startswith("-x"))
WS_KV = 0
WS_O = 4 << 20
WS_R = 6 << 20
WS_G = WS_R + 16384
WS_SEL = WS_R + 32768
WS_EP = WS_R + 40960
WS_FL = WS_R + 65536
WS_MB = WS_FL + 32768
WS_OFL = WS_MB + 32768
WS_YFL = WS_OFL + 32768
WS_F1 = WS_YFL + 4096
WS_YP = WS_R + (1 << 18)
WS_GP = 7 << 20
WS_ST = 16 << 20
XS = 0; WT = 65536; WQ = 122880; QX = 151552; UPD = 159744
WO = 0; CB = 102400
UPDI = UPD + 3584
KEYS = UPD
SELECTOR = 223
CNT = 163840 - 192
LDS_BYTES = 163840
C_Q1, C_Q2, C_X, C_L, C_S, C_D, C_C, C_O, C_W, C_F, C_K, C_T, C_P, C_R = 0, 4, 8, 12, 16, 20, 24, 28, 32, 36, 40, 44, 48, 64

def f32bits(x): return struct.unpack("<I", struct.pack("<f", x))[0]
QSCALE = f32bits(28 ** -0.5 * math.log2(math.e))
NLOG2E = f32bits(-math.log2(math.e))
MF = "v_mfma_f32_32x32x16_bf16"
ROLE = [0, 1, 2, 3, 14, 4, 5, 6, 7, 8, 9, 15, 10, 11, 12, 13]
ROLE_LO = sum(ROLE[i] << (4 * i) for i in range(8))
ROLE_HI = sum(ROLE[8 + i] << (4 * i) for i in range(8))
SPIN_LIMIT = 1 << 20
WSBASE = ([int(x[2:]) for x in sys.argv if x.startswith("-w")] + [0])[0] << 20
PD = 4 if "pd4" in EXP else 2
PG = 3 if "pd4" in EXP else 6
PCD = 4 if "pcd4" in EXP else (0 if "pcd0" in EXP else 1)
KVS = 4 if "kvs4" in EXP else (0 if "kvs0" in EXP else 2)
PQ2 = 4 if "pq4" in EXP else (0 if "pq0" in EXP else 1)
PF0 = 2 if "pf2" in EXP else 0
WOP = 1 if "wo1" in EXP else (3 if "wo3" in EXP else 2)
OUTAUX = " sc1" if "outsc1" in EXP else (" nt" if "outnt" in EXP else "")

T, H, J, W, RL, ROT = 30, 31, 32, 33, 34, 3
_uid = [0]
def uid(p):
    _uid[0] += 1
    return f"{p}_{_uid[0]}"

def srd(a, d, ptr, nbytes):
    a(f"s_mov_b32 s{d}, s{ptr}\ns_mov_b32 s{d+1}, s{ptr+1}\ns_mov_b32 s{d+2}, {nbytes:#x}\ns_mov_b32 s{d+3}, 0x20000")

NST = 12
DIAG = [tuple(int(y) for y in x[2:].split("-")) for x in sys.argv if x.startswith("-d")]
def st(a, i):
    if STAMP: a(f"s_memtime s[{72+2*i}:{73+2*i}]")
    if DIAG and i in DIAG[0]: a(f"s_memrealtime s[{72+2*i}:{73+2*i}]\ns_waitcnt lgkmcnt(0)")
def st_begin(a):
    if STAMP: a("s_memrealtime s[68:69]\ns_memtime s[72:73]")
    if DIAG: a("s_memrealtime s[72:73]")
ABS = [x[2:] for x in sys.argv if x.startswith("-a")]
if ABS:
    DIAG = [(0, 0 if ABS[0] == "z" else int(ABS[0].lstrip("m")))]
def diag_start(a):
    if not ABS: return
    a(f"""s_load_dwordx2 s[98:99], s[0:1], 80
    s_waitcnt lgkmcnt(0)
    s_cmp_ge_u32 s2, 8
    s_cbranch_scc1 L_dg0
    s_cmp_lg_u32 s{W}, 0
    s_cbranch_scc1 L_dg0
    s_lshl_b32 s70, s2, 2
    v_mov_b32 v4, s70
    v_mov_b32 v6, s72
    global_store_dword v4, v6, s[98:99] sc1
    L_dg0:""")
def diag_end(a):
    if not DIAG: return
    p, q = DIAG[0]
    if ABS:
        a(f"""s_waitcnt vmcnt(0)
        s_memrealtime s[96:97]
        s_mov_b64 exec, -1
        v_mov_b32 v4, 0
        global_load_dwordx4 v[8:11], v4, s[98:99] sc1
        global_load_dwordx4 v[12:15], v4, s[98:99] offset:16 sc1
        s_waitcnt vmcnt(0) lgkmcnt(0)
        v_min3_u32 v8, v8, v9, v10
        v_min3_u32 v8, v8, v11, v12
        v_min3_u32 v8, v8, v13, v14
        v_min_u32 v8, v8, v15
        s_nop 1
        v_readfirstlane_b32 s69, v8
        s_sub_u32 s70, s{72+2*q}, s69""")
        if ABS[0] == "z": a("s_mov_b32 s70, 0")
        if ABS[0].startswith("m"): a("s_sub_u32 s70, 2500, s70")
        a("s_add_u32 s70, s70, s69\ns_add_u32 s70, s70, 2500")
    else:
        a(f"""s_waitcnt vmcnt(0)
        s_memrealtime s[96:97]
        s_waitcnt lgkmcnt(0)
        s_sub_u32 s70, s{72+2*q}, s{72+2*p}
        s_add_u32 s70, s70, s96""")
    a(f"""L_diag:
    s_memrealtime s[68:69]
    s_waitcnt lgkmcnt(0)
    s_sub_u32 s71, s68, s70
    s_cmp_lt_i32 s71, 0
    s_cbranch_scc1 L_diag""")
def st_init(a):
    if STAMP:
        for i in range(1, NST): a(f"s_mov_b32 s{72+2*i}, s72")
def st_end(a):
    if not STAMP: return
    a(f"""s_waitcnt vmcnt(0)
    s_memrealtime s[70:71]
    s_memtime s[{72+2*NST}:{73+2*NST}]
    s_getreg_b32 s66, hwreg(HW_REG_HW_ID)
    s_getreg_b32 s67, hwreg(HW_REG_XCC_ID)
    s_mov_b64 exec, -1
    s_lshl_b32 s65, s2, 3
    s_add_u32 s65, s65, s{W}
    s_lshl_b32 s65, s65, 6
    s_add_u32 s65, s65, {WS_ST}
    s_waitcnt lgkmcnt(0)
    v_mov_b32 v4, s68
    v_mov_b32 v5, s70
    v_mov_b32 v6, s66
    v_mov_b32 v7, s67""")
    for i in range(1, NST + 1):
        a(f"s_sub_u32 s64, s{72+2*i}, s72\nv_mov_b32 v{7+i}, s64")
    a("v_mov_b32 v2, 0\ns_mov_b64 exec, 1")
    for k in range(4):
        a(f"buffer_store_dwordx4 v[{4+4*k}:{7+4*k}], v2, s[8:11], s65 offen offset:{16*k}")

def poll_global(a, vdst, voff, soff, mask=None, sleep=1):
    l = uid("Lpoll"); d = uid("Lpd")
    a(f"s_mov_b32 s60, {SPIN_LIMIT}")
    if mask is not None: a(f"s_mov_b64 exec, {mask}")
    a(f"""{l}:
    buffer_load_dword v{vdst}, v{voff}, s[8:11], {soff} offen sc1
    s_waitcnt vmcnt(0)
    v_cmp_ne_u32 vcc, s{T}, v{vdst}
    s_cbranch_vccz {d}
    s_mov_b64 exec, vcc
    s_sleep {sleep}
    s_sub_u32 s60, s60, 1
    s_cbranch_scc0 {l}
    s_endpgm
    {d}:
    s_mov_b64 exec, -1""")

def poll_atomic(a, vdst, voff, soff, mask, sleep):
    l = uid("Lpa"); d = uid("Lpad")
    a(f"""s_mov_b32 s60, {SPIN_LIMIT}
    s_mov_b64 exec, {mask}
    {l}:
    v_mov_b32 v{vdst}, 0
    buffer_atomic_or v{vdst}, v{voff}, s[8:11], {soff} offen sc0 sc1
    s_waitcnt vmcnt(0)
    v_cmp_ne_u32 vcc, s{T}, v{vdst}
    s_cbranch_vccz {d}
    s_sleep {sleep}
    s_sub_u32 s60, s60, 1
    s_cbranch_scc0 {l}
    s_endpgm
    {d}:
    s_mov_b64 exec, -1""")

def poll_pipe(a, v0, voff, soff, mask, D=4, gap=3):
    l = uid("Lpp"); d = uid("Lppd")
    at = lambda r: f"v_mov_b32 v{r}, 0\nbuffer_atomic_or v{r}, v{voff}, s[8:11], {soff} offen sc0 sc1"
    a(f"s_mov_b32 s60, {SPIN_LIMIT}\ns_mov_b64 exec, {mask}")
    for i in range(D - 1): a(at(v0 + i) + f"\ns_sleep {gap}")
    a(f"{l}:")
    for i in range(D):
        a(at(v0 + (i + D - 1) % D))
        a(f"s_waitcnt vmcnt({D-1})\nv_cmp_ne_u32 vcc, s{T}, v{v0+i}\ns_cbranch_vccz {d}")
    a(f"""s_sub_u32 s60, s60, 1
    s_cbranch_scc0 {l}
    s_endpgm
    {d}:
    s_mov_b64 exec, -1""")

def signal(a, vt, voff, soff, mask):
    a(f"v_mov_b32 v{vt}, s{T}\ns_mov_b64 exec, {mask}\nbuffer_atomic_swap v{vt}, v{voff}, s[8:11], {soff} offen sc1\ns_mov_b64 exec, -1")

def spin_lds(a, vaddr, off, want, vt, sleep=0):
    l = uid("Lsp"); d = uid("Lsd")
    a(f"""s_mov_b32 s60, {SPIN_LIMIT}
    {l}:
    ds_read_b32 v{vt}, v{vaddr} offset:{off}
    s_waitcnt lgkmcnt(0)
    v_readfirstlane_b32 s61, v{vt}
    s_cmp_ge_u32 s61, {want}
    s_cbranch_scc1 {d}""")
    if sleep: a(f"s_sleep {sleep}")
    a(f"""s_sub_u32 s60, s60, 1
    s_cbranch_scc0 {l}
    s_endpgm
    {d}:""")

def lds_inc(a, vaddr, off, vone):
    a(f"s_mov_b64 exec, 1\nds_add_u32 v{vaddr}, v{vone} offset:{off}\ns_mov_b64 exec, -1")

def flag_store(a, vt, vz, soff):
    a(f"v_mov_b32 v{vt}, s{T}\ns_mov_b64 exec, 1\nbuffer_store_dword v{vt}, v{vz}, s[8:11], {soff} offen sc1\ns_mov_b64 exec, -1")

def split_neg_max(a, m, t0, t1, q6, q7):
    a(f"""v_sub_f32 v{m}, 0, v{m}
    v_cvt_pk_bf16_f32 v{t0}, v{m}, v{m}
    v_lshlrev_b32 v{t0}, 16, v{t0}
    v_sub_f32 v{t0}, v{m}, v{t0}
    v_cvt_pk_bf16_f32 v{t1}, v{m}, v{t0}
    v_and_b32 v{m}, 0xffff0000, v{t1}
    v_sub_f32 v{t0}, v{t0}, v{m}
    s_mov_b32 exec_lo, 0
    v_mov_b32 v{q6}, v{t1}
    v_cvt_pk_bf16_f32 v{q7}, v{t0}, 0
    s_mov_b32 exec_lo, -1""")

def max16_list(dst, S, init=False):
    if not init:
        return ([f"v_max3_f32 v{dst}, v{S}, v{S+1}, v{S+2}"] +
                [f"v_max3_f32 v{dst}, v{dst}, v{S+i}, v{S+i+1}" for i in range(3, 15, 2)] +
                [f"v_max_f32 v{dst}, v{dst}, v{S+15}"])
    return [f"v_max3_f32 v{dst}, v{dst}, v{S+i}, v{S+i+1}" for i in range(0, 16, 2)]

def wave_min_u32(a, v, full=True):
    for r in (1, 2, 4, 8):
        a(f"v_min_u32_dpp v{v}, v{v}, v{v} row_ror:{r} row_mask:0xf bank_mask:0xf")
    a(f"v_min_u32_dpp v{v}, v{v}, v{v} row_bcast:15 row_mask:0xa bank_mask:0xf")
    if full: a(f"v_min_u32_dpp v{v}, v{v}, v{v} row_bcast:31 row_mask:0xc bank_mask:0xf")

def tag(a):
    a(f"s_mul_i32 s{T}, s{T}, 0x9e3779b1\ns_add_u32 s{T}, s{T}, 0x7f4a7c15")

def next_chunk(a, s):
    a(f"s_add_u32 s{s}, s{s}, 1\ns_cmp_eq_u32 s{s}, 7\ns_cselect_b32 s{s}, 0, s{s}")

Q, O, KV, S, P = 8, 40, 104, 168, 200
XF = 104; A0, A1, WF = 40, 56, 72
VX = 216; VW = 220; VQ = 222; VC = 223; V1 = 224; VZ = 225; VT = 226; VH = 227
VA = 228; TMP = 232; XR = 240; GR = 248; VWQ = 250; VF = 251; VFS = 252; VXO = 253; VGO = 254
OWN = 3
L = 35

def prologue_and_loader(a):
    if "rot7" in EXP:
        ROTCODE = f"s_lshl1_add_u32 s{ROT}, s27, s26\ns_cmp_ge_u32 s{ROT}, 7\ns_cselect_b32 s26, 7, 0\ns_sub_u32 s{ROT}, s{ROT}, s26"
    elif "rot2" not in EXP and "norot" not in EXP and "rot23" not in EXP:
        ROTCODE = f"s_add_u32 s{ROT}, s27, s26\ns_and_b32 s{ROT}, s{ROT}, 3\ns_lshl_b32 s{ROT}, s{ROT}, 1"
    elif "norot" in EXP:
        ROTCODE = f"s_mov_b32 s{ROT}, 0"
    elif "rot23" in EXP:
        ROTCODE = f"s_add_u32 s{ROT}, s27, s26\ns_and_b32 s{ROT}, s{ROT}, 1\ns_mul_i32 s{ROT}, s{ROT}, 3"
    else:
        ROTCODE = f"s_add_u32 s{ROT}, s27, s26\ns_and_b32 s{ROT}, s{ROT}, 1\ns_lshl_b32 s{ROT}, s{ROT}, 2"
    st_begin(a)
    a(f"""s_load_dwordx4 s[4:7], s[0:1], 0
    s_load_dwordx2 s[36:37], s[0:1], 88
    s_load_dwordx2 s[38:39], s[0:1], 16
    s_load_dwordx8 s[40:47], s[0:1], 32
    s_load_dwordx4 s[48:51], s[0:1], 64
    s_cmp_ge_u32 s2, 256
    s_cbranch_scc1 L_exit
    v_lshrrev_b32 v2, 6, v0
    v_and_b32 v3, 63, v0
    s_and_b32 s24, s2, 7
    s_lshr_b32 s25, s2, 3
    v_readfirstlane_b32 s{W}, v2
    s_and_b32 s{H}, s24, 1
    s_lshl_b32 s{H}, s{H}, 3
    s_and_b32 s26, s25, 7
    s_add_u32 s{H}, s{H}, s26
    s_lshr_b32 s27, s25, 3
    s_and_b32 s{J}, s24, 6
    s_lshl1_add_u32 s{J}, s{J}, s27
    {ROTCODE}
    s_mov_b32 s28, {ROLE_LO:#x}
    s_mov_b32 s29, {ROLE_HI:#x}
    s_lshl_b32 s27, s{H}, 2
    s_lshr_b64 s[28:29], s[28:29], s27
    s_and_b32 s{RL}, s28, 15
    v_lshlrev_b32 v1, 4, v3
    s_mov_b32 s27, {WS_EP}
    s_cmp_lt_u32 s{W}, 4
    s_cbranch_scc1 L_main
    """)
    a(f"""s_setprio 2
    s_sub_u32 s{L}, s{W}, 4
    v_lshrrev_b32 v4, 3, v3
    v_mul_u32_u24 v5, 896, v4
    v_and_b32 v6, 7, v3
    v_lshrrev_b32 v7, 4, v3
    v_xor_b32 v7, v6, v7
    v_lshl_add_u32 v10, v7, 4, v5
    v_xor_b32 v11, 64, v10
    v_add_u32 v12, {2*6144}, v10
    v_add_u32 v13, {3*6144}, v11
    v_add_u32 v11, 6144, v11
    v_mul_u32_u24 v5, 2688, v4
    v_and_b32 v4, 2, v4
    v_lshlrev_b32 v4, 1, v4
    v_xor_b32 v4, v4, v6
    v_lshl_add_u32 v14, v4, 4, v5
    v_add_u32 v15, {8*2688-1024}, v14
    s_lshl2_add_u32 s52, s{J}, s{L}
    s_mul_i32 s52, s52, {32*896}
    s_lshl_b32 s53, s{RL}, 7
    s_mul_i32 s26, s{L}, {16*2688}
    s_add_u32 s53, s53, s26
    s_add_u32 s53, s53, 896
    s_lshl_b32 s54, s{L}, 12
    s_lshl_b32 s55, s{L}, 11
    s_add_u32 s55, s55, {WT}
    s_mov_b32 s56, s{ROT}
    s_mov_b32 s57, 0
    s_mov_b32 s14, {2048*896}
    s_mov_b32 s15, 0x20000
    s_cmp_ge_u32 s{RL}, 14
    s_cselect_b32 s18, 0, {448*2688}
    s_mov_b32 s19, 0x20000
    s_waitcnt lgkmcnt(0)
    s_mov_b64 s[12:13], s[4:5]
    s_mov_b64 s[16:17], s[6:7]
    s_add_u32 s36, s36, {WSBASE}
    s_addc_u32 s37, s37, 0
    s_load_dword s{T}, s[36:37], s27""")
    if "notlb" not in EXP:
        a(f"s_cmp_lg_u32 s{L}, 0\ns_cbranch_scc1 L_notlb")
        if "tlball" not in EXP: a(f"s_cmp_lt_u32 s{RL}, 14\ns_cbranch_scc1 L_notlb")
        for off in (0, 2 << 20, 4 << 20):
            a(f"s_mov_b32 s26, {off + 4032}\ns_load_dword s66, s[36:37], s26")
        for p in (42, 44, 38, 46, 50):
            a(f"s_load_dword s66, s[{p}:{p+1}], 0")
        a("L_notlb:")
    st_init(a); st(a, 1)
    a(f"""L_ld:
    s_mul_i32 s26, s56, {64*2688}
    s_mov_b32 m0, s55
    s_add_u32 s26, s26, s53
    s_lshl_b32 s28, s56, 7
    buffer_load_dwordx4 v14, s[16:19], s26 offen lds
    buffer_load_dwordx4 v15, s[16:19], s26 offen offset:1024 lds
    s_mov_b32 m0, s54
    s_add_u32 s28, s28, s52
    buffer_load_dwordx4 v10, s[12:15], s28 offen lds
    buffer_load_dwordx4 v11, s[12:15], s28 offen offset:1024 lds
    buffer_load_dwordx4 v12, s[12:15], s28 offen offset:2048 lds
    buffer_load_dwordx4 v13, s[12:15], s28 offen offset:3072 lds
    s_add_u32 s55, s55, 8192
    s_add_u32 s54, s54, 16384
    s_and_b32 s54, s54, 0xffff""")
    next_chunk(a, 56)
    a(f"""s_add_u32 s57, s57, 1
    s_cmp_lt_u32 s57, 3
    s_cbranch_scc1 L_ld
    s_waitcnt vmcnt(12)
    s_barrier
    s_cmp_lt_u32 s57, 7
    s_cbranch_scc1 L_ld
    """)
    a(f"""v_lshrrev_b32 v4, 2, v3
    v_mul_u32_u24 v4, 2688, v4
    v_and_b32 v5, 3, v3
    v_lshl_add_u32 v16, v5, 4, v4
    s_mov_b32 s18, {448*2688}
    s_mul_i32 s53, s{H}, 56
    s_and_b32 s53, s53, 0xfffffff0
    s_mul_i32 s26, s{L}, {16*2688}
    s_add_u32 s53, s53, s26
    s_lshl_b32 s55, s{L}, 10
    s_add_u32 s55, s55, {WQ}""")
    for i in range(4):
        a(f"""s_mul_i32 s26, s56, {64*2688}
        s_add_u32 m0, s55, {i*4096}
        s_add_u32 s26, s26, s53
        buffer_load_dwordx4 v16, s[16:19], s26 offen lds""")
        if i < 3: next_chunk(a, 56)
        if i == 1: a("s_waitcnt vmcnt(8)\ns_barrier")
        if i == 3: a("s_waitcnt vmcnt(4)\ns_barrier")
    st(a, 2)
    a("s_branch L_service")

def main_wave(a):
    a.label("L_main")
    diag_start(a)
    if "nocodepf" not in EXP:
        a(f"""s_cmp_lg_u32 s{W}, 0
        s_cbranch_scc1 L_nopf
        s_getpc_b64 s[28:29]
        L_pc:
        s_and_b32 s26, s25, 3
        s_lshl_b32 s26, s26, 13
        v_lshl_add_u32 v4, v3, 7, s26
        v_min_u32 v4, L_code_end-L_pc, v4
        global_load_dword v5, v4, s[28:29]
        L_nopf:""")
    a(f"""s_setprio 1
    v_and_b32 v{VT}, 31, v3
    v_lshrrev_b32 v{VH}, 5, v3
    v_mov_b32 v{V1}, 1
    v_mov_b32 v{VZ}, 0
    v_mov_b32 v{VC}, {CNT}
    v_lshrrev_b32 v4, 2, v1
    v_add_u32 v4, {UPDI}, v4
    v_mov_b32 v6, -1
    s_mov_b32 exec_hi, 0
    ds_write_b32 v4, v6
    v_and_b32 v6, 7, v3
    v_cmp_eq_u32 vcc, 4, v6
    v_mov_b32 v7, {(1<<18)+1}
    v_cndmask_b32 v6, 0, v7, vcc
    ds_write_b32 v4, v6 offset:{CNT-UPDI+C_R}
    s_mov_b32 exec_lo, 0xffff
    ds_write_b32 v4, v{VZ} offset:{CNT-UPDI}
    s_mov_b64 exec, -1
    v_lshrrev_b32 v4, 1, v{VT}
    v_and_b32 v4, 7, v4
    v_xor_b32 v4, v4, v{VH}
    v_lshlrev_b32 v4, 4, v4
    v_lshl_add_u32 v4, v{VT}, 7, v4
    s_lshl_b32 s26, s{W}, 12
    v_add_u32 v{VX}, s26, v4
    v_xor_b32 v{VX+1}, 32, v{VX}
    v_xor_b32 v{VX+2}, 64, v{VX}
    v_xor_b32 v{VX+3}, 96, v{VX}
    v_bfe_u32 v4, v3, 2, 2
    v_lshl_add_u32 v12, v{VH}, 3, v4
    v_and_b32 v6, 3, v3
    v_and_b32 v7, 1, v3
    v_bfe_u32 v8, v3, 1, 1
    v_lshl_add_u32 v7, v7, 1, v8
    v_bfe_u32 v8, v3, 4, 1
    v_lshl_add_u32 v9, v8, 2, v7
    v_lshl_add_u32 v10, v8, 2, v6
    s_cmp_lt_u32 s{RL}, 7
    s_cselect_b64 vcc, -1, 0
    v_cndmask_b32 v10, v10, v9, vcc
    v_lshlrev_b32 v11, 7, v12
    v_lshl_add_u32 v11, v10, 3, v11
    v_lshrrev_b32 v4, 1, v4
    v_lshl_add_u32 v11, v4, 6, v11
    v_add_u32 v{VW}, {WT}, v11
    v_xor_b32 v{VW+1}, 64, v{VW}
    v_add_u32 v10, 2, v9
    v_sub_u32 v11, 7, v9
    v_cmp_gt_u32 vcc, 6, v9
    v_cndmask_b32 v10, v11, v10, vcc
    s_bitcmp1_b32 s{H}, 0
    s_cselect_b64 vcc, -1, 0
    v_cndmask_b32 v10, v9, v10, vcc
    v_lshlrev_b32 v11, 6, v12
    v_lshl_add_u32 v11, v10, 3, v11
    v_add_u32 v{VQ}, {WQ}, v11
    v_lshrrev_b32 v4, 2, v3
    v_mul_u32_u24 v4, 2688, v4
    v_lshl_add_u32 v{VWQ}, v6, 4, v4
    s_cmp_ge_u32 s{RL}, 7
    s_cselect_b32 s26, 7, 0
    s_cselect_b32 s29, 2, 0
    s_sub_u32 s26, s{RL}, s26
    s_mul_i32 s28, s26, {64*2341}
    s_lshr_b32 s28, s28, 16
    v_add_u32 v4, s28, v6
    v_mul_u32_u24 v7, 28, v4
    v_lshrrev_b32 v7, 6, v7
    v_cmp_ge_u32 s[64:65], s26, v7
    v_cmp_ne_u32 vcc, s26, v7
    s_and_b32 s28, s{J}, 12
    s_add_u32 s29, s28, s29
    v_mov_b32 v7, s29
    v_addc_co_u32 v7, vcc, 0, v7, vcc
    s_and_b32 s28, s{J}, 3
    v_lshl_add_u32 v4, v4, 2, s28
    v_bfe_u32 v8, v3, 2, 2
    v_lshl_add_u32 v4, v4, 2, v8
    v_lshlrev_b32 v4, 7, v4
    v_lshl_add_u32 v{VFS}, v7, 2, v4
    s_and_b32 s64, s64, 0xffff
    s_cmp_ge_u32 s{RL}, 14
    s_cselect_b32 s64, 0, s64
    s_mov_b32 s65, 0
    s_lshl_b32 s28, s{W}, 5
    v_add_u32 v{VF}, s28, v{VC}
    s_lshl_b32 s28, s{J}, 2
    s_lshr_b32 s58, s{H}, 2
    s_add_u32 s58, s58, s28
    s_and_b32 s59, s{H}, 3
    s_lshl2_add_u32 s59, s59, s{W}
    s_mul_i32 s59, s59, 56
    s_lshl_b32 s28, s58, 5
    v_add_u32 v4, s28, v{VT}
    v_mul_u32_u24 v{VXO}, 896, v4
    v_lshl_add_u32 v{VXO}, v{VH}, 4, v{VXO}
    v_lshlrev_b32 v{VGO}, 3, v4
    s_waitcnt lgkmcnt(0)
    s_add_u32 s36, s36, {WSBASE}
    s_addc_u32 s37, s37, 0
    """)
    st_init(a)
    srd(a, 8, 36, (1 << 28) - WSBASE)
    srd(a, 16, 6, 448 * 2688)
    srd(a, 12, 4, 2048 * 896)
    if "nowqpf" not in EXP:
        a(f"""s_cmp_lg_u32 s{W}, 1
        s_cbranch_scc1 L_nopf2
        v_lshrrev_b32 v4, 2, v3
        v_min_u32 v4, 13, v4
        v_mul_u32_u24 v4, 2688, v4
        v_and_b32 v6, 3, v3
        v_lshl_add_u32 v4, v6, 7, v4
        s_mul_i32 s26, s25, {14*2688}
        s_and_b32 s28, s24, 1
        s_mul_i32 s28, s28, 384
        s_add_u32 s26, s26, s28
        buffer_load_dword v5, v4, s[16:19], s26 offen
        L_nopf2:""")
    if "wopfS" in EXP:
        srd(a, 20, 38, 448 * 896)
        a(f"""s_cmp_lg_u32 s{W}, 2
        s_cbranch_scc1 L_nopf3
        s_mul_i32 s26, s2, {13*128}
        v_lshl_add_u32 v4, v3, 7, s26
        s_mov_b64 exec, 0x1fff
        buffer_load_dword v5, v4, s[20:23], 0 offen
        s_mov_b64 exec, -1
        L_nopf3:""")
    a(f"""s_mul_i32 s62, s{H}, 56
    s_and_b32 s62, s62, 0xfffffff0
    s_mul_i32 s26, s{W}, {16*2688}
    s_add_u32 s62, s62, s26
    s_lshl_b32 s63, s{W}, 10
    s_add_u32 s63, s63, {WQ}
    s_lshl2_add_u32 s35, s{J}, s{W}
    s_lshl_b32 s52, s35, 12
    s_cmp_ge_u32 s{RL}, 14
    s_cbranch_scc1 L_roleR
    s_cmp_ge_u32 s{RL}, 7
    s_cbranch_scc1 L_roleV""")

    def gemm(kind):
        if "twait" in EXP:
            st(a, 10); a("s_waitcnt vmcnt(0)"); st(a, 11)
        def reads(c, s):
            k = 4 * c + s
            a(f"ds_read_b128 {vr(XF+4*k,4)}, v{VX+s} offset:{(c&3)*16384}")
            f = WF + 8 * s
            if kind == "R":
                a(f"ds_read_b128 {vr(f,4)}, v{VW} offset:{k*32}")
            else:
                for n in range(2):
                    a(f"ds_read_b64_tr_b16 {vr(f+4*n,2)}, v{VW+n} offset:{k*2048}")
                    a(f"ds_read_b64_tr_b16 {vr(f+4*n+2,2)}, v{VW+n} offset:{k*2048+512}")
        def mfmas(c, s):
            k = 4 * c + s
            f = WF + 8 * s
            for n in range(1 if kind == "R" else 2):
                acc = (A0, A1)[n]
                cc = "0" if k == 0 else vr(acc, 16)
                if kind == "V": a(f"{MF} {vr(acc,16)}, {vr(XF+4*k,4)}, {vr(f+4*n,4)}, {cc}")
                else:           a(f"{MF} {vr(acc,16)}, {vr(f+4*n,4)}, {vr(XF+4*k,4)}, {cc}")
        per = 2 if kind == "R" else 5
        for c in range(7):
            a("s_barrier")
            if c == 0: st(a, 1)
            if c == 6: st(a, 2)
            if STAMP and c in (0, 6): a("s_waitcnt lgkmcnt(0)")
            reads(c, 0); reads(c, 1)
            for s in range(4):
                if s < 2: reads(c, s + 2)
                a(f"s_waitcnt lgkmcnt({min(3 - s, 2) * per})")
                mfmas(c, s)

    PK = 8
    MS = 20
    for i in range(4):
        a(f"""s_lshl_b32 s28, s{RL}, 3
        s_add_u32 s28, s28, {2*i}
        v_add_u32 v4, s28, v{VH}
        v_mul_u32_u24 v8, 37, v4
        v_lshrrev_b32 v8, 8, v8
        v_mul_u32_u24 v6, 7, v8
        v_sub_u32 v6, v4, v6
        v_lshrrev_b32 v7, 2, v6
        v_lshl_add_u32 v8, v8, 1, v7
        v_cmp_eq_u32 s[{MS+2*i}:{MS+1+2*i}], 3, v6
        v_and_b32 v6, 3, v6
        v_lshlrev_b32 v8, 18, v8
        v_lshl_add_u32 v8, v6, 9, v8
        v_lshl_add_u32 v{VA+i}, v{VT}, 4, v8""")
    a(f"v_mov_b32 v{TMP+2}, 0x3f803f80\nv_mov_b32 v{TMP+3}, 0x3f803f80\ns_add_u32 s53, s52, {1<<18}")
    if "touch" in EXP:
        a("s_mov_b32 s28, 0x01010101\ns_mov_b32 s29, 0x01010101")
        for i in range(4):
            l = uid("Lnt")
            a(f"""s_mov_b64 exec, s[28:29]
            buffer_store_dword v{VZ}, v{VA+i}, s[8:11], s52 offen sc1
            s_and_b64 exec, s[28:29], s[{MS+2*i}:{MS+1+2*i}]
            s_cbranch_execz {l}
            buffer_store_dword v{VZ}, v{VA+i}, s[8:11], s53 offen sc1
            {l}:""")
        a("s_mov_b64 exec, -1")
    gemm("K")
    for i in range(4):
        acc = (A0, A1)[i >> 1] + 8 * (i & 1)
        p = PK + 4 * i
        for e in range(4): a(f"v_cvt_pk_bf16_f32 v{p+e}, v{acc+2*e}, v{acc+2*e+1}")
        l = uid("Lnosh")
        a(f"""s_mov_b64 exec, s[{MS+2*i}:{MS+1+2*i}]
        s_cbranch_execz {l}
        v_mov_b32 v{TMP}, v{p+2}
        v_mov_b32 v{TMP+1}, v{p+3}
        v_mov_b32 v{p+2}, 0x3f803f80
        v_mov_b32 v{p+3}, 0x3f803f80
        buffer_store_dwordx4 {vr(TMP,4)}, v{VA+i}, s[8:11], s53 offen sc1
        s_nop 1
        {l}:
        s_mov_b64 exec, -1
        buffer_store_dwordx4 {vr(p,4)}, v{VA+i}, s[8:11], s52 offen sc1""")
    a("s_branch L_pub")
    a.label("L_roleR")
    srd(a, 20, 40, 896)
    a(f"""s_lshl_b32 s28, s{ROT}, 7
    v_add_u32 v4, s28, v1
    v_subrev_u32 v6, 896, v4
    v_min_u32 v4, v4, v6
    s_mov_b32 m0, {QX}
    s_nop 0
    buffer_load_dwordx4 v4, s[20:23], 0 offen lds
    s_mov_b32 s20, s48
    s_mov_b32 s21, s49
    s_mov_b32 m0, {QX+1024}
    s_nop 0
    buffer_load_dwordx4 v4, s[20:23], 0 offen lds
    v_and_b32 v4, 1, v3
    v_lshlrev_b32 v4, 10, v4
    v_lshl_add_u32 v4, v{VH}, 4, v4
    v_add_u32 v{VW}, {QX}, v4
    s_waitcnt vmcnt(0)""")
    gemm("R")
    a(f"""s_cmp_lg_u32 s{RL}, 14
    s_cbranch_scc1 L_pub
    s_mov_b32 exec_hi, 0
    s_nop 9
    v_cvt_pk_bf16_f32 v4, v{A0}, v{A0+1}
    v_and_b32 v5, 0xffff0000, v4
    v_lshlrev_b32 v4, 16, v4
    v_ashrrev_i32 v6, 31, v4
    v_or_b32 v6, 0x80000000, v6
    v_xor_b32 v6, v6, v4
    v_and_b32 v6, 0xffff0000, v6
    v_cmp_u_f32 vcc, v4, v4
    v_cndmask_b32 v6, v6, 0, vcc
    s_lshl_b32 s26, s35, 5
    v_add_u32 v7, s26, v{VT}
    v_sub_u32 v8, 0xffff, v7
    v_or_b32 v6, v6, v8
    v_lshlrev_b32 v9, 3, v7
    v_and_b32 v7, 127, v7
    v_lshlrev_b32 v7, 2, v7
    v_add_u32 v7, {KEYS}, v7
    ds_write_b32 v7, v6
    s_mov_b32 exec_lo, 1
    ds_add_u32 v{VC}, v{V1} offset:{C_K}
    s_mov_b32 exec_lo, -1
    v_mul_f32 v5, {NLOG2E:#x}, v5
    v_exp_f32 v5, v5
    v_add_f32 v5, 1.0, v5
    v_rcp_f32 v5, v5
    v_cvt_pk_bf16_f32 v5, v5, v5
    v_lshlrev_b32 v10, 16, v5
    s_mov_b32 exec_hi, -1
    s_branch L_pub
    """)
    a.label("L_roleV")
    for n in range(2):
        a(f"""s_lshl_b32 s28, s{RL}, 6
        s_sub_u32 s28, s28, {7*64 - 32*n}
        v_add_u32 v4, s28, v{VT}
        v_mul_u32_u24 v8, 2341, v4
        v_lshrrev_b32 v8, 16, v8
        v_mul_u32_u24 v6, 28, v8
        v_sub_u32 v6, v4, v6
        v_cmp_le_u32 s[{MS+2*n}:{MS+1+2*n}], 24, v6
        v_cmp_eq_u32 vcc, 24, v6
        v_mov_b32 v7, 0x3f803f80
        v_cndmask_b32 v{TMP+4*n}, 0, v7, vcc
        v_lshlrev_b32 v8, 18, v8
        v_lshl_add_u32 v8, v6, 4, v8
        v_lshl_add_u32 v{VA+n}, v{VH}, 9, v8""")
        for e in range(1, 4): a(f"v_mov_b32 v{TMP+4*n+e}, v{TMP+4*n}")
        if "touch" in EXP:
            a(f"""v_and_b32 v6, 7, v6
            v_cmp_eq_u32 vcc, 0, v6
            s_andn2_b64 exec, vcc, s[{MS+2*n}:{MS+1+2*n}]
            buffer_store_dword v{VZ}, v{VA+n}, s[8:11], s52 offen offset:2048 sc1
            buffer_store_dword v{VZ}, v{VA+n}, s[8:11], s52 offen offset:3072 sc1
            s_mov_b64 exec, -1""")
    for n in range(2):
        l = uid("Lnop")
        a(f"""s_mov_b64 exec, s[{MS+2*n}:{MS+1+2*n}]
        s_cbranch_execz {l}
        buffer_store_dwordx4 {vr(TMP+4*n,4)}, v{VA+n}, s[8:11], s52 offen offset:{2048+64} sc1
        buffer_store_dwordx4 {vr(TMP+4*n,4)}, v{VA+n}, s[8:11], s52 offen offset:{3072+64} sc1
        {l}:
        s_mov_b64 exec, -1""")
    gemm("V")
    for i in range(4):
        acc = (A0, A1)[i >> 1] + 8 * (i & 1)
        p = PK + 4 * i
        for e in range(4): a(f"v_cvt_pk_bf16_f32 v{p+e}, v{acc+2*e}, v{acc+2*e+1}")
        a(f"buffer_store_dwordx4 {vr(p,4)}, v{VA+(i>>1)}, s[8:11], s52 offen offset:{2048+1024*(i&1)} sc1")
    a.label("L_pub")
    st(a, 3)
    a(f"s_add_u32 s56, s{ROT}, 4\ns_cmp_ge_u32 s56, 7\ns_cselect_b32 s26, 7, 0\ns_sub_u32 s56, s56, s26")
    for i in range(4, 7):
        a(f"""s_mul_i32 s26, s56, {64*2688}
        s_add_u32 m0, s63, {i*4096}
        s_add_u32 s26, s26, s62
        buffer_load_dwordx4 v{VWQ}, s[16:19], s26 offen lds""")
        if i < 6: next_chunk(a, 56)
    QO = Q + 8 * OWN
    SK = TMP
    a(f"""s_lshl_b32 s53, s{H}, 18
    s_add_u32 s16, s36, s53
    s_addc_u32 s17, s37, 0
    s_mov_b32 s18, {1<<18}
    s_mov_b32 s19, 0x20000
    s_mov_b32 s57, 0""")
    def ldK(b, soff):
        return [f"buffer_load_dwordx4 {vr(KV+16*b,4)}, v1, s[16:19], {soff} offen sc1",
                f"buffer_load_dwordx4 {vr(KV+16*b+4,4)}, v1, s[16:19], {soff} offen offset:1024 sc1"]
    def ldV(b, soff):
        return [f"buffer_load_dwordx4 {vr(KV+16*b+8,4)}, v1, s[16:19], {soff} offen offset:2048 sc1",
                f"buffer_load_dwordx4 {vr(KV+16*b+12,4)}, v1, s[16:19], {soff} offen offset:3072 sc1"]
    def try_loads(block=False):
        d = uid("Ltl"); l = uid("Ltr")
        a(f"s_cmp_lg_u32 s57, 0\ns_cbranch_scc1 {d}")
        if block: a(f"s_mov_b32 s60, {SPIN_LIMIT}\n{l}:\ns_sub_u32 s60, s60, 1\ns_cbranch_scc1 L_exit")
        a(f"""ds_read_b32 v4, v{VF} offset:{C_R}
        ds_read_b32 v5, v{VC} offset:{C_R}
        s_waitcnt lgkmcnt(0)
        v_readfirstlane_b32 s56, v4
        v_readfirstlane_b32 s29, v5
        s_min_u32 s57, s56, s29
        s_cmp_eq_u32 s57, 0
        s_cbranch_scc1 {l if block else d}
        s_sub_u32 s29, s29, 1
        s_sub_u32 s27, s56, 1
        s_add_u32 s54, s56, 4095
        s_add_u32 s55, s56, 8191
        s_add_u32 s56, s56, 12287""")
        st(a, 6)
        a(f"""buffer_load_dwordx4 {vr(SK,4)}, v1, s[16:19], s29 offen sc1
        buffer_load_dwordx4 {vr(SK+4,4)}, v1, s[16:19], s29 offen offset:1024 sc1""")
        for x in ldK(0, "s27") + ldV(0, "s27") + ldK(1, "s54") + ldV(1, "s54"): a(x)
        a(f"{d}:")
    def qreads(k):
        f = WF + 4 * (k & 7)
        a(f"ds_read_b64_tr_b16 {vr(f,2)}, v{VQ} offset:{k*1024}\nds_read_b64_tr_b16 {vr(f+2,2)}, v{VQ} offset:{k*1024+256}")
    for lo, hi, cnt in ((0, 16, C_Q1), (16, 28, C_Q2)):
        if lo:
            a(f"""s_mov_b32 s28, {WS_MB}
            v_readfirstlane_b32 s{T}, v11
            v_mov_b32 v6, v11
            s_mov_b64 exec, 1
            s_waitcnt vmcnt(3)""")
            st(a, 4)
            a(f"""ds_add_rtn_u32 v4, v{VC}, v{V1} offset:{C_D}
            s_waitcnt lgkmcnt(0)
            v_cmp_eq_u32 vcc, 3, v4
            s_cbranch_vccz L_notlast
            s_mov_b64 exec, s[64:65]
            s_cbranch_execz L_notlast
            buffer_atomic_swap v6, v{VFS}, s[8:11], s28 offen sc1
            s_waitcnt vmcnt(1)
            s_branch L_published
            L_notlast:
            s_waitcnt vmcnt(0)
            s_cmp_lg_u32 s{RL}, 14
            s_cbranch_scc1 L_published
            s_mov_b32 s26, {WS_G}
            s_mov_b32 exec_lo, -1
            buffer_store_dwordx2 v[10:11], v9, s[8:11], s26 offen sc1
            L_published:""")
            lds_inc(a, VC, C_Q2, V1)
            try_loads()
        spin_lds(a, VC, cnt, 4, 4)
        if not lo: a(f"ds_read_b32 v11, v{VC} offset:{C_T}")
        for k in range(lo, lo + 6): qreads(k)
        for k in range(lo, hi):
            if k + 6 < hi: qreads(k + 6)
            a(f"s_waitcnt lgkmcnt({2*(min(hi-1,k+6)-k)})")
            a(f"{MF} {vr(A0,16)}, {vr(WF+4*(k&7),4)}, {vr(XF+4*k,4)}, {'0' if k==0 else vr(A0,16)}")
    st(a, 5)
    try_loads()
    for i in range(8): a(f"v_mov_b32 v{P+8+i}, 0")
    a(f"""s_lshl_b32 s26, s{W}, 11
    s_add_u32 s26, s26, {QX}
    v_add_u32 v5, s26, v1
    s_mov_b32 s62, {QSCALE:#x}
    s_mov_b32 s63, {QSCALE:#x}""")
    for i in range(8): a(f"v_pk_mul_f32 {vr(A0+2*i,2)}, {vr(A0+2*i,2)}, s[62:63]")
    for i in range(8): a(f"v_cvt_pk_bf16_f32 v{QO+i}, v{A0+2*i}, v{A0+2*i+1}")
    a(f"""s_mov_b32 exec_lo, 0
    v_mov_b32 v{QO+6}, 0
    v_mov_b32 v{QO+7}, 0
    s_mov_b32 exec_lo, -1
    ds_write_b128 v5, {vr(QO,4)}
    ds_write_b128 v5, {vr(QO+4,4)} offset:1024""")
    lds_inc(a, VC, C_X, V1)
    for i in range(0, 64, 2): a(f"v_pk_mul_f32 {vr(O+i,2)}, {vr(P+8,2)}, {vr(P+8,2)}")
    spin_lds(a, VC, C_X, 4, 4)
    for i in range(3):
        a(f"""s_add_u32 s26, s{W}, {i+1}
        s_and_b32 s26, s26, 3
        s_lshl_b32 s26, s26, 11
        s_add_u32 s26, s26, {QX}
        v_add_u32 v5, s26, v1
        ds_read_b128 {vr(Q+8*i,4)}, v5
        ds_read_b128 {vr(Q+8*i+4,4)}, v5 offset:1024""")
    try_loads(block=True)
    def QK(u, m):
        kt, qs = (u >> 2) & 3, u & 3
        s = S + 16 * (u & 1)
        c = "0" if m == 0 else vr(s, 16)
        return f"{MF} {vr(s,16)}, {vr(KV+16*kt+4*m,4)}, {vr(Q+8*qs+4*m,4)}, {c}"
    def PV(u, m):
        kt, qs = (u >> 2) & 3, u & 3
        return f"{MF} {vr(O+16*qs,16)}, {vr(KV+16*kt+8+4*m,4)}, {vr(P+8*(u&1)+4*m,4)}, {vr(O+16*qs,16)}"
    SS = [S, S + 16, KV + 32, KV + 48]
    def samp(i, m): return f"{MF} {vr(SS[i],16)}, {vr(SK+4*m,4)}, {vr(Q+8*i+4*m,4)}, {'0' if m == 0 else vr(SS[i],16)}"
    def mx(i):
        for x in max16_list(4, SS[i]): a(x)
        a(f"s_mov_b32 exec_lo, 0\nv_cvt_pk_bf16_f32 v{Q+8*i+6}, -v4, 0\ns_mov_b32 exec_lo, -1")
    a("s_waitcnt vmcnt(8) lgkmcnt(0)")
    for i in range(4): a(samp(i, 0)); a(samp(i, 1))
    mx(0)
    a("s_waitcnt vmcnt(4)")
    a(QK(0, 0)); a(QK(0, 1))
    mx(1); mx(2)
    for x in ldK(2, "s55") + ldV(2, "s55"): a(x)
    mx(3)
    for x in ldK(3, "s56"): a(x)
    for i in range(0, 8, 2): a(f"v_pk_mul_f32 {vr(KV+56+i,2)}, {vr(P+8,2)}, {vr(P+8,2)}")
    for i in range(3):
        a(f"""s_add_u32 s26, s{W}, {i+1}
        s_and_b32 s26, s26, 3
        s_mul_i32 s26, s26, 12288
        s_add_u32 s26, s26, {CB + i*4096}
        v_add_u32 v{4+i}, s26, v1""")
    a(f"s_mul_i32 s26, s{W}, 12288\ns_add_u32 s26, s26, {CB}\nv_add_u32 v2, s26, v1")
    lds_inc(a, VC, C_L, V1)
    st(a, 7)
    a("s_mov_b32 s57, 3")
    def substep(u, ex, last=False):
        s = S + 16 * (u & 1); p = P + 8 * (u & 1)
        e = lambda i: f"v_exp_f32 v{s+i}, v{s+i}"
        c = lambda i: f"v_cvt_pk_bf16_f32 v{p+i}, v{s+2*i}, v{s+2*i+1}"
        q0, q1 = ([], []) if last else ([QK(u+1, 0)], [QK(u+1, 1)])
        seq = q0 + ex[0] + [e(0), e(1), e(2), e(3), c(0), e(4),
               PV(u-1, 0)] + ex[1] + [e(5), c(1), e(6), e(7), c(2), e(8)] + q1 + ex[2] + [e(9), c(3), e(10), e(11), c(4), e(12),
               PV(u-1, 1)] + ex[3] + [e(13), c(5), e(14), e(15), c(6), c(7)]
        for x in seq: a(x)
    a(".p2align 6")
    a.label("L_loop")
    for u in range(16):
        kt, qs = u >> 2, u & 3
        ex = [[], [], [], []]
        if qs == 1:
            l = ldV((kt + 3) & 3, "s56")
            ex[0] = [l[0]]; ex[1] = [l[1]]; ex[2] = ["s_add_u32 s56, s56, 4096"]
        if u == 0: ex[0] = [f"ds_read_b32 v7, v{VF} offset:{C_R+4}"]
        if u == 1:
            ex[2] = ["s_waitcnt lgkmcnt(0)", "v_readfirstlane_b32 s56, v7"]
            ex[3] = ["s_sub_u32 s56, s56, 1"]
        if u == 2:
            ex[0] = ["s_cbranch_scc1 L_nextwait", "L_nextok:", f"v_add_u32 v{VF}, 4, v{VF}"]
        if qs == 2 and "nowait" not in EXP: ex[3] = ["s_waitcnt vmcnt(10)"]
        if qs == 0 and "nowait" not in EXP: ex[3] = ["s_waitcnt vmcnt(10)"]
        if qs == 3:
            l = ldK(kt, "s56")
            ex[0] = [l[0]]; ex[1] = [l[1]]
        if u == 12: ex[0] = [f"ds_read_b32 v7, v{VC} offset:{C_F}"]
        if u == 13: ex[3] = ["s_sub_u32 s57, s57, 1"]
        if "itst" in EXP and u in (0, 8):
            a("s_waitcnt lgkmcnt(0)")
            for i in range(1, 6): a(f"s_mov_b32 s{72+2*i}, s{72+2*i+2}")
            a("s_memtime s[84:85]")
        if "noload" in EXP: ex = [[y for y in x if "buffer_load" not in y] for x in ex]
        substep(u, ex)
        if u == 13: a("s_cbranch_scc1 L_tail")
    a("s_branch L_loop")
    a.label("L_tail")
    st(a, 8)
    a(f"""s_waitcnt lgkmcnt(0)
    v_cmp_gt_u32 vcc, 4, v7
    s_cbranch_vccnz L_wait_ffn
    L_ffn_free:""")
    wr = lambda i, k: f"ds_write_b128 v{4+i}, {vr(O+16*i+4*k,4)} offset:{k*1024}"
    substep(14, [[], [wr(0, 0)], [wr(0, 1)], [wr(0, 2)]])
    substep(15, [[wr(0, 3)], [wr(1, 0)], [wr(1, 1)], [wr(1, 2)]], last=True)
    a(PV(15, 0)); a(wr(1, 3)); a(PV(15, 1))
    for k in range(4): a(wr(2, k))
    lds_inc(a, VC, C_C, V1)
    srd(a, 20, 50, 2048 * 896)
    TT = S
    OO = O + 16 * OWN
    a(f"""s_lshl_b32 s28, s35, 4
    s_add_u32 s28, s28, s{H}
    s_lshr_b32 s56, s28, 2
    s_lshl_b32 s56, s56, 5
    s_and_b32 s26, s{H}, 3
    s_add_u32 s56, s56, s26
    s_lshl_b32 s56, s56, 2
    s_add_u32 s56, s56, {WS_OFL}
    s_lshl_b32 s52, s28, 11
    s_add_u32 s52, s52, {WS_O}
    s_mov_b32 s57, 0""")
    spin_lds(a, VC, C_C, 4, 7)
    for k in range(12): a(f"ds_read_b128 {vr(TT+4*k,4)}, v2 offset:{k*1024}")
    a(f"s_lshl_b32 s26, s{W}, 2\nv_add_u32 v7, s26, v{VC}\nds_write_b32 v7, v{V1} offset:{C_P}")
    for i in range(3):
        a(f"s_waitcnt lgkmcnt({9-4*i})")
        for k in (6, 7, 0, 1, 2, 3, 4, 5): a(f"v_pk_add_f32 {vr(OO+2*k,2)}, {vr(OO+2*k,2)}, {vr(TT+16*i+2*k,2)}")
    a.label("L_fin")
    a(f"""v_mov_b32 v5, v{OO+12}
    v_mov_b32 v4, v{OO+12}
    s_mov_b32 exec_lo, 0
    v_mov_b32 v{OO+12}, 0
    s_mov_b32 exec_lo, -1
    v_permlane32_swap_b32 v5, v4
    v_rcp_f32 v6, v4
    s_mov_b32 s28, 0x30800000
    s_mov_b32 s29, 0x4e800000
    v_cmp_nle_f32 s[54:55], s28, v4
    v_cmp_nge_f32 s[62:63], s29, v4
    v_pk_add_f32 v[4:5], {vr(OO,2)}, {vr(OO+2,2)}""")
    for k in range(2, 8): a(f"v_pk_add_f32 v[4:5], v[4:5], {vr(OO+2*k,2)}")
    a(f"""v_add_f32 v4, v4, v5
    s_movk_i32 s28, 0x207
    v_cmp_class_f32 vcc, v4, s28
    s_or_b64 s[54:55], s[54:55], s[62:63]""")
    for k in range(8): a(f"v_pk_mul_f32 {vr(OO+2*k,2)}, {vr(OO+2*k,2)}, v[6:7] op_sel_hi:[1,0]")
    for k in range(8): a(f"v_cvt_pk_bf16_f32 v{Q+k}, v{OO+2*k}, v{OO+2*k+1}")
    a(f"""v_mov_b32 v6, s{T}
    s_or_b64 s[54:55], s[54:55], vcc
    s_cbranch_scc1 L_bad
    L_good:
    buffer_store_dwordx4 {vr(Q,4)}, v1, s[8:11], s52 offen sc1
    buffer_store_dwordx4 {vr(Q+4,4)}, v1, s[8:11], s52 offen offset:1024 sc1
    s_mov_b64 exec, 1
    buffer_atomic_swap v6, v{VZ}, s[8:11], s56 offen sc1
    s_mov_b64 exec, -1""")
    st(a, 9)
    a(f"""s_mov_b32 s26, {WS_G}
    buffer_load_dwordx2 {vr(GR,2)}, v{VGO}, s[8:11], s26 offen sc1
    buffer_load_dwordx4 {vr(XR,4)}, v{VXO}, s[12:15], s59 offen
    buffer_load_dwordx4 {vr(XR+4,4)}, v{VXO}, s[12:15], s59 offen offset:32""")
    WOF = 104; B = 232; ACC = 8; U = 40
    OSB = [40, 72]
    a(f"""v_bfe_u32 v4, v3, 2, 2
    v_lshl_add_u32 v4, v{VH}, 2, v4
    v_mul_u32_u24 v4, 224, v4
    v_bfe_u32 v5, v3, 4, 1
    v_lshl_add_u32 v4, v5, 5, v4
    v_and_b32 v5, 1, v3
    v_lshl_add_u32 v4, v5, 4, v4
    v_bfe_u32 v5, v3, 1, 1
    v_lshl_add_u32 v4, v5, 3, v4
    s_mul_i32 s28, s{W}, 56
    v_add_u32 v24, s28, v4
    v_add_u32 v25, {8*28*224}, v24
    v_add_u32 v26, {CB}, v1
    v_lshlrev_b32 v27, 2, v{VT}
    v_add_u32 v27, {UPDI}, v27
    s_mul_i32 s28, s{W}, 112
    s_add_u32 s28, s28, {UPD}
    v_lshl_add_u32 v28, v{VH}, 5, s28
    v_mov_b32 v29, {CNT}
    v_mov_b32 v30, 0
    v_mov_b32 v31, 0
    s_waitcnt vmcnt(6)""")
    spin_lds(a, 29, C_W, 2, 6)
    for k in range(32):
        hd, m = k >> 1, k & 1
        o = (28 * (hd & 7) + 16 * m) * 224
        b = 24 + (hd >> 3)
        a(f"ds_read_b64_tr_b16 {vr(WOF+4*k,2)}, v{b} offset:{o}\nds_read_b64_tr_b16 {vr(WOF+4*k+2,2)}, v{b} offset:{o+8*224}")
    for k in range(8): a(f"v_pk_mul_f32 {vr(ACC+2*k,2)}, v[30:31], v[30:31]")
    a("s_waitcnt vmcnt(0)")
    for k in range(8):
        a(f"v_lshlrev_b32 v{B+2*k}, 16, v{XR+k}\nv_and_b32 v{B+2*k+1}, 0xffff0000, v{XR+k}")
    a(f"""v_cmp_ne_u32 vcc, s{T}, v{GR+1}
    s_cbranch_vccnz L_gate
    L_gate_ok:
    v_sub_f32 v32, 1.0, v{GR}
    v_cvt_pk_bf16_f32 v32, v32, v32
    v_lshlrev_b32 v32, 16, v32
    s_movk_i32 s57, 0x40f
    s_mov_b32 s60, {SPIN_LIMIT}""")
    if "twait" not in EXP: st(a, 10)
    def rd(p):
        a(f"""s_ff1_i32_b32 s27, s26
        s_bitset0_b32 s57, s27
        s_mul_i32 s28, s27, 12288
        v_add_u32 v7, s28, v26""")
        for k in range(8): a(f"ds_read_b128 {vr(OSB[p]+4*k,4)}, v7 offset:{k*1024}")
    a(f"""L_idle:
    ds_read_b32 v6, v29 offset:{C_O}
    s_sub_u32 s60, s60, 1
    s_cbranch_scc1 L_exit
    s_waitcnt lgkmcnt(0)
    v_readfirstlane_b32 s61, v6
    s_and_b32 s26, s61, s57
    s_cbranch_scc0 L_idle
    s_bitcmp1_b32 s26, 10
    s_cbranch_scc1 L_blkU""")
    rd(0)
    a(f"ds_read_b32 v6, v29 offset:{C_O}")
    for p in range(2):
        a(f"""L_st{p}:
        s_mov_b32 s29, s27
        s_waitcnt lgkmcnt(0)
        v_readfirstlane_b32 s61, v6
        s_and_b32 s26, s61, s57
        s_and_b32 s26, s26, 15
        s_cbranch_scc0 L_mm{p}""")
        rd(1 - p)
        a(f"""ds_read_b32 v6, v29 offset:{C_O}
        L_mm{p}:
        s_cmp_eq_u32 s29, 1
        s_cbranch_scc1 L_m{p}1
        s_cmp_eq_u32 s29, 2
        s_cbranch_scc1 L_m{p}2
        s_cmp_eq_u32 s29, 3
        s_cbranch_scc1 L_m{p}3""")
        for g in range(4):
            a(f"L_m{p}{g}:")
            for k in range(8):
                a(f"{MF} {vr(ACC,16)}, {vr(WOF+32*g+4*k,4)}, {vr(OSB[p]+4*k,4)}, {vr(ACC,16)}")
            if g < 3: a(f"s_branch L_md{p}")
        a(f"""L_md{p}:
        s_cmp_lg_u32 s26, 0
        s_cbranch_scc1 L_st{1-p}""")
        if p == 0: a("s_branch L_next")
    a("L_next:\ns_cmp_lg_u32 s57, 0\ns_cbranch_scc1 L_idle")
    if "twait" not in EXP: st(a, 11)
    a("s_nop 7")
    for m in range(2):
        for e in range(4*m, 4*m+4):
            a(f"v_pk_fma_f32 {vr(B+2*e,2)}, {vr(ACC+2*e,2)}, {vr(GR,2)}, {vr(B+2*e,2)} op_sel_hi:[1,0,1]")
        for e in range(4*m, 4*m+4): a(f"v_cvt_pk_bf16_f32 v{40+e}, v{B+2*e}, v{B+2*e+1}")
        if m == 0:
            a(f"buffer_store_dwordx4 v[40:43], v{VXO}, s[20:23], s59 offen{OUTAUX}")
        else:
            a(f"""s_mov_b32 exec_hi, 0
            buffer_store_dwordx4 v[44:47], v{VXO}, s[20:23], s59 offen offset:32{OUTAUX}
            s_mov_b64 exec, 0xffffffff
            s_not_b64 exec, exec
            buffer_store_dwordx2 v[44:45], v{VXO}, s[20:23], s59 offen offset:32{OUTAUX}""")
    st_end(a)
    diag_end(a)
    a("s_endpgm")
    a(f"""L_blkU:
    ds_read_b32 v6, v27
    s_bitset0_b32 s57, 10
    s_waitcnt lgkmcnt(0)
    v_cmp_le_i32 vcc, 0, v6
    s_cbranch_vccz L_noupd
    s_mov_b64 exec, vcc
    v_mul_u32_u24 v6, 448, v6
    v_add_u32 v28, v28, v6""")
    for k in range(4): a(f"ds_read_b128 {vr(U+4*k,4)}, v28 offset:{64*(k>>1)+16*(k&1)}")
    a("s_waitcnt lgkmcnt(0)")
    for k in range(8):
        a(f"""v_pk_add_f32 {vr(B+2*k,2)}, {vr(B+2*k,2)}, {vr(U+2*k,2)}
        v_cvt_pk_bf16_f32 v{B+2*k}, v{B+2*k}, v{B+2*k+1}
        v_and_b32 v{B+2*k+1}, 0xffff0000, v{B+2*k}
        v_lshlrev_b32 v{B+2*k}, 16, v{B+2*k}""")
    a("s_mov_b64 exec, -1\nL_noupd:")
    for k in range(8): a(f"v_pk_mul_f32 {vr(B+2*k,2)}, {vr(B+2*k,2)}, v[32:33] op_sel_hi:[1,0]")
    a("s_branch L_next")
    a("L_bad:\ns_cmp_eq_u32 s57, 0\ns_cbranch_scc1 L_slow")
    for k in range(8): a(f"v_min_u32 v{Q+k}, -2, v{Q+k}")
    a("s_branch L_good")
    a.label("L_wait_ffn")
    spin_lds(a, VC, C_F, 4, 7)
    a("s_branch L_ffn_free")
    a.label("L_nextwait")
    spin_lds(a, VF, C_R + 4, 1, 7)
    a("s_sub_u32 s56, s61, 1\ns_branch L_nextok")
    a(f"""L_gate:
    s_mov_b32 s26, {WS_G}
    s_mov_b32 s60, {SPIN_LIMIT}
    L_gate1:
    buffer_load_dwordx2 {vr(GR,2)}, v{VGO}, s[8:11], s26 offen sc1
    s_waitcnt vmcnt(0)
    v_cmp_ne_u32 vcc, s{T}, v{GR+1}
    s_cbranch_vccz L_gate_ok
    s_sub_u32 s60, s60, 1
    s_cbranch_scc0 L_gate1
    s_endpgm""")
    a.label("L_slow")
    a(f"""s_mov_b32 s57, 1
    s_add_u32 s55, s53, {64*4096}
    s_mov_b32 s54, s53
    s_mov_b32 exec_lo, 0
    v_mov_b32 v{QO+6}, 0
    v_mov_b32 v{QO+7}, 0
    s_mov_b32 exec_lo, -1
    v_mov_b32 v4, 0xff800000
    L_slow1:
    buffer_load_dwordx4 {vr(KV,4)}, v1, s[8:11], s54 offen sc1
    buffer_load_dwordx4 {vr(KV+4,4)}, v1, s[8:11], s54 offen offset:1024 sc1
    s_waitcnt vmcnt(0)
    {MF} {vr(S,16)}, {vr(KV,4)}, {vr(QO,4)}, 0
    {MF} {vr(S,16)}, {vr(KV+4,4)}, {vr(QO+4,4)}, {vr(S,16)}""")
    for x in max16_list(4, S, init=True): a(x)
    a("""s_add_u32 s54, s54, 4096
    s_cmp_lt_u32 s54, s55
    s_cbranch_scc1 L_slow1
    v_mov_b32 v5, v4
    v_permlane32_swap_b32 v4, v5
    v_max_f32 v4, v4, v5""")
    split_neg_max(a, 4, 5, 6, QO + 6, QO + 7)
    for i in range(16): a(f"v_mov_b32 v{OO+i}, 0")
    a(f"""s_mov_b32 s54, s53
    L_slow2:
    buffer_load_dwordx4 {vr(KV,4)}, v1, s[8:11], s54 offen sc1
    buffer_load_dwordx4 {vr(KV+4,4)}, v1, s[8:11], s54 offen offset:1024 sc1
    buffer_load_dwordx4 {vr(KV+8,4)}, v1, s[8:11], s54 offen offset:2048 sc1
    buffer_load_dwordx4 {vr(KV+12,4)}, v1, s[8:11], s54 offen offset:3072 sc1
    s_waitcnt vmcnt(0)
    {MF} {vr(S,16)}, {vr(KV,4)}, {vr(QO,4)}, 0
    {MF} {vr(S,16)}, {vr(KV+4,4)}, {vr(QO+4,4)}, {vr(S,16)}""")
    for i in range(16): a(f"v_exp_f32 v{S+i}, v{S+i}")
    for i in range(8): a(f"v_cvt_pk_bf16_f32 v{P+i}, v{S+2*i}, v{S+2*i+1}")
    a(f"""{MF} {vr(OO,16)}, {vr(KV+8,4)}, {vr(P,4)}, {vr(OO,16)}
    {MF} {vr(OO,16)}, {vr(KV+12,4)}, {vr(P+4,4)}, {vr(OO,16)}
    s_nop 7
    s_nop 7
    s_add_u32 s54, s54, 4096
    s_cmp_lt_u32 s54, s55
    s_cbranch_scc1 L_slow2
    s_branch L_fin""")

def service_wave(a):
    a.label("L_service")
    a(f"""v_mov_b32 v14, {CNT}
    v_mov_b32 v15, 1
    v_mov_b32 v9, 0""")
    srd(a, 8, 36, (1 << 28) - WSBASE)
    a("s_waitcnt lgkmcnt(0)")
    tag(a)
    a(f"v_mov_b32 v4, s{T}\nds_write_b32 v14, v4 offset:{C_T}\ns_waitcnt vmcnt(0)")
    lds_inc(a, 14, C_Q1, 15)
    a(f"""v_and_b32 v32, 31, v3
    v_lshrrev_b32 v33, 5, v3
    v_lshlrev_b32 v219, 3, v1
    v_lshrrev_b32 v220, 2, v1
    v_and_b32 v4, 7, v3
    v_lshlrev_b32 v217, 3, v4
    s_lshr_b32 s58, s{H}, 2
    s_lshl2_add_u32 s58, s{J}, s58
    s_cmp_ge_u32 s{L}, 2
    s_cbranch_scc1 L_svcB""")
    def sel_load(lbl):
        a(f"""s_mov_b32 s26, {WS_SEL}
        s_mov_b32 s60, {SPIN_LIMIT}
        {lbl}:
        buffer_load_dwordx2 v[20:21], v217, s[8:11], s26 offen sc1
        s_waitcnt vmcnt(0)
        v_cmp_ne_u32 vcc, s{T}, v21
        s_cbranch_vccz {lbl}_ok
        s_sleep 4
        s_sub_u32 s60, s60, 1
        s_cbranch_scc0 {lbl}
        s_endpgm
        {lbl}_ok:""")
    a(f"""v_mov_b32 v6, {KEYS}
    s_lshl_b32 s28, s{L}, 8
    v_add3_u32 v7, v220, v6, s28
    s_lshl_b32 s27, s{J}, 6
    s_add_u32 s27, s27, {WS_R}
    s_cmp_eq_u32 s{RL}, 14
    s_cbranch_scc1 L_rank
    s_cmp_lg_u32 s2, {SELECTOR}
    s_cbranch_scc1 L_svcA
    s_lshl_b32 s26, s{L}, 9
    s_add_u32 s26, s26, {WS_R}
    s_mov_b32 s27, {WS_SEL}
    v_lshlrev_b32 v4, 3, v3
    v_mov_b32 v5, 2
    s_mov_b32 s60, {SPIN_LIMIT}
    L_keys:
    v_mov_b32 v20, 0
    v_mov_b32 v21, 0
    buffer_atomic_or_x2 v[20:21], v4, s[8:11], s26 offen sc0 sc1
    s_sub_u32 s60, s60, 1
    s_cbranch_scc1 L_exit
    s_waitcnt vmcnt(0)
    v_cmp_ne_u32 vcc, s{T}, v21
    s_cbranch_vccnz L_keys
    ds_write_b32 v7, v20""")
    lds_inc(a, 14, C_K, 5)
    a.label("L_rank")
    spin_lds(a, 14, C_K, 4, 8)
    st(a, 10)
    if STAMP: a("s_waitcnt lgkmcnt(0)")
    a(f"ds_read_b32 v20, v7\nv_mov_b32 v22, 0\nv_mov_b32 v21, s{T}\ns_mov_b32 s57, 0\nL_rk:")
    for k in range(8): a(f"ds_read_b128 {vr(40+4*k,4)}, v6 offset:{16*k}")
    a("v_add_u32 v6, 128, v6")
    CS = ["s[52:53]", "s[54:55]", "s[62:63]", "s[28:29]"]
    for k in range(8):
        a(f"s_waitcnt lgkmcnt({7-k})")
        for e in range(4): a(f"v_cmp_gt_u32 {CS[e]}, v{40+4*k+e}, v20")
        for e in range(4): a(f"v_addc_co_u32 v22, vcc, 0, v22, {CS[e]}")
    a(f"""s_add_u32 s57, s57, 1
    s_cmp_lt_u32 s57, 4
    s_cbranch_scc1 L_rk
    v_cmp_gt_u32 vcc, 8, v22
    v_lshlrev_b32 v22, 3, v22
    s_mov_b64 exec, vcc
    s_cbranch_execz L_rank_done
    buffer_atomic_swap_x2 v[20:21], v22, s[8:11], s27 offen sc1
    L_rank_done:
    s_mov_b64 exec, -1""")
    st(a, 11)
    a.label("L_svcA")
    GI = CB; DI = QX; HB = 101376
    FT, KS = 56, 59
    a(f"""s_cmp_ge_u32 s2, 196
    s_cbranch_scc1 L_nofn
    s_mul_i32 s{FT}, s2, 9363
    s_lshr_b32 s{FT}, s{FT}, 16
    s_mul_i32 s26, s{FT}, 7
    s_sub_u32 s{KS}, s2, s26
    v_lshrrev_b32 v4, 3, v3
    v_and_b32 v5, 2, v4
    v_lshlrev_b32 v5, 1, v5
    v_and_b32 v6, 7, v3
    v_xor_b32 v5, v5, v6
    v_mul_u32_u24 v6, 3584, v4
    v_lshl_add_u32 v34, v5, 4, v6
    v_add_u32 v35, {8*3584-1024}, v34
    v_add_u32 v36, {2*(8*3584-1024)}, v34
    v_add_u32 v37, {3*(8*3584-1024)}, v34
    v_lshrrev_b32 v6, 2, v3
    v_mul_u32_u24 v6, 896, v6
    v_and_b32 v5, 3, v3
    v_lshl_add_u32 v200, v5, 4, v6
    v_add_u32 v201, {16*896-1024}, v200
    v_add_u32 v202, {2*(16*896-1024)}, v200
    v_add_u32 v203, {3*(16*896-1024)}, v200
    v_bfe_u32 v4, v3, 2, 2
    v_lshl_add_u32 v5, v33, 3, v4
    v_lshlrev_b32 v5, 7, v5
    v_lshrrev_b32 v4, 1, v4
    v_lshl_add_u32 v5, v4, 6, v5
    v_bfe_u32 v4, v3, 4, 1
    v_lshl_add_u32 v5, v4, 5, v5
    v_and_b32 v4, 3, v3
    v_lshl_add_u32 v5, v4, 3, v5
    s_lshl_b32 s54, s{L}, 13
    s_add_u32 s54, s54, {GI}
    v_add_u32 v38, s54, v5
    v_xor_b32 v39, 64, v38
    v_lshrrev_b32 v6, 7, v5
    v_and_b32 v5, 63, v5
    v_lshl_add_u32 v5, v6, 6, v5
    s_lshl_b32 s26, s{L}, 12
    s_add_u32 s26, s26, {DI}
    v_add_u32 v210, s26, v5
    ; partial-sum store offset 4hh*256 + col*4 ; h addresses ; y offsets
    v_lshlrev_b32 v212, 10, v33
    v_lshl_add_u32 v212, v32, 2, v212
    s_lshl_b32 s26, s{L}, 9
    s_add_u32 s26, s26, {HB}
    v_lshl_add_u32 v214, v3, 3, s26
    v_lshlrev_b32 v4, 4, v217
    v_lshl_add_u32 v4, v33, 4, v4
    v_add_u32 v218, {HB}, v4
    v_mul_u32_u24 v215, {4*1792}, v33
    v_lshl_add_u32 v215, v32, 2, v215
    v_add_u32 v216, {2*1792}, v215""")
    srd(a, 16, 42, 448 * 3584)
    a(f"""s_cmp_eq_u32 s{L}, 1
    s_cselect_b64 s[16:17], s[44:45], s[42:43]
    s_mul_i32 s52, s{KS}, {64*3584}
    s_lshl_b32 s28, s{FT}, 7
    s_add_u32 s52, s52, s28""")
    spin_lds(a, 14, C_L, 4, 8, sleep=2)
    st(a, 3)
    NR = 2 if "fine" in EXP else 4
    XS_ = 40; FW = 56; AC = 104
    a("s_mov_b32 m0, s54\ns_nop 0")
    for k in range(8):
        if k == 4: a(f"s_add_u32 s52, s52, {32*3584}\ns_add_u32 m0, s54, 4096")
        if k == 8 - NR: sel_load("L_sel1")
        elif k and k % NR == 0: a("s_waitcnt vmcnt(0)")
        a(f"buffer_load_dwordx4 v{34+(k&3)}, s[16:19], s52 offen offset:{1024*(k&3)} lds")
    a(f"""v_and_b32 v4, 0xffff, v20
    v_sub_u32 v4, 0xffff, v4
    v_mul_u32_u24 v4, 896, v4
    v_lshl_add_u32 v4, v33, 4, v4
    s_lshl_b32 s26, s{KS}, 7
    s_mov_b32 exec_lo, 0xff
    s_mov_b32 exec_hi, 0xff""")
    for k in range(4):
        a(f"buffer_load_dwordx4 {vr(XS_+4*k,4)}, v4, s[12:15], s26 offen offset:{32*k}")
    a("s_mov_b64 exec, -1\ns_waitcnt vmcnt(4)")
    for k in range(4):
        for n in range(2):
            a(f"ds_read_b64_tr_b16 {vr(FW+8*k+4*n,2)}, v{38+n} offset:{k*2048}\nds_read_b64_tr_b16 {vr(FW+8*k+4*n+2,2)}, v{38+n} offset:{k*2048+512}")
    lds_inc(a, 14, C_F, 15)
    a(f"""s_mov_b64 s[16:17], s[46:47]
    s_mul_i32 s28, s{FT}, {64*896}
    s_add_u32 s28, s28, s26
    s_lshl_b32 s29, s{L}, 6
    s_add_u32 s28, s28, s29
    s_lshl_b32 s29, s{L}, 12
    s_add_u32 m0, s29, {DI}
    s_lshl1_add_u32 s26, s2, s{L}
    s_lshl_b32 s26, s26, 11
    s_add_u32 s26, s26, {WS_GP}
    s_waitcnt lgkmcnt(0)""")
    st(a, 4)
    for k in range(4):
        a(f"s_waitcnt vmcnt({3-k})")
        for n in range(2):
            a(f"{MF} {vr(AC+16*n,16)}, {vr(XS_+4*k,4)}, {vr(FW+8*k+4*n,4)}, {'0' if k==0 else vr(AC+16*n,16)}")
    for n in range(2):
        for k in range(4):
            a(f"buffer_store_dword v{AC+16*n+k}, v212, s[8:11], s26 offen offset:{256*k+128*n} sc1")
    for k in range(4): a(f"buffer_load_dwordx4 v{200+k}, s[16:19], s28 offen offset:{1024*k} lds")
    a(f"""s_lshl1_add_u32 s26, s{KS}, s{L}
    s_lshl_b32 s26, s26, 2
    s_mul_i32 s28, s{FT}, {7*128}
    s_add_u32 s26, s26, s28
    s_add_u32 s26, s26, {WS_F1}
    s_waitcnt vmcnt(4)""")
    signal(a, 5, 219, "s26", "0x7f")
    st(a, 5)
    a(f"s_lshl_b32 s26, s2, 7\ns_add_u32 s26, s26, {WS_F1}")
    poll_atomic(a, 5, 220, "s26", "0x3fff", 0)
    st(a, 6)
    GP = 40
    a(f"s_mul_i32 s26, s{FT}, {7*4096}\ns_lshl_b32 s28, s{L}, 10\ns_add_u32 s26, s26, s28\ns_add_u32 s26, s26, {WS_GP}")
    for k in range(7):
        a(f"""buffer_load_dwordx4 {vr(GP+8*k,4)}, v1, s[8:11], s26 offen sc1
        buffer_load_dwordx4 {vr(GP+8*k+4,4)}, v1, s[8:11], s26 offen offset:2048 sc1""")
        if k < 6: a("s_add_u32 s26, s26, 4096")
    DW = 120
    for k in range(4):
        a(f"ds_read_b64_tr_b16 {vr(DW+4*k,2)}, v210 offset:{k*1024}\nds_read_b64_tr_b16 {vr(DW+4*k+2,2)}, v210 offset:{k*1024+256}")
    a(f"s_mov_b32 s28, {NLOG2E:#x}\ns_mov_b32 s29, {NLOG2E:#x}\ns_waitcnt vmcnt(0)")
    for k in range(1, 7):
        for e in range(4):
            a(f"v_pk_add_f32 {vr(GP+2*e,2)}, {vr(GP+2*e,2)}, {vr(GP+8*k+2*e,2)}")
    for e in range(2):
        a(f"""v_cvt_pk_bf16_f32 v22, v{GP+2*e}, v{GP+2*e+1}
        v_cvt_pk_bf16_f32 v24, v{GP+4+2*e}, v{GP+5+2*e}
        v_and_b32 v23, 0xffff0000, v22
        v_lshlrev_b32 v22, 16, v22
        v_pk_mul_f32 v[26:27], v[22:23], s[28:29]
        v_and_b32 v25, 0xffff0000, v24
        v_exp_f32 v26, v26
        v_exp_f32 v27, v27
        v_lshlrev_b32 v24, 16, v24
        v_pk_add_f32 v[26:27], v[26:27], 1.0 op_sel_hi:[1,0]
        v_rcp_f32 v26, v26
        v_rcp_f32 v27, v27
        s_nop 0
        v_pk_mul_f32 v[22:23], v[22:23], v[26:27]
        v_cvt_pk_bf16_f32 v22, v22, v23
        v_and_b32 v23, 0xffff0000, v22
        v_lshlrev_b32 v22, 16, v22
        v_pk_mul_f32 v[22:23], v[22:23], v[24:25]
        v_cvt_pk_bf16_f32 v{28+e}, v22, v23""")
    a("ds_write_b64 v214, v[28:29]")
    lds_inc(a, 14, C_S, 15)
    spin_lds(a, 14, C_S, 2, 8)
    for k in range(4): a(f"ds_read_b128 {vr(GP+4*k,4)}, v218 offset:{32*k}")
    for k in range(4):
        a(f"s_waitcnt lgkmcnt({3-k})\n{MF} {vr(AC,16)}, {vr(GP+4*k,4)}, {vr(DW+4*k,4)}, {'0' if k==0 else vr(AC,16)}")
    a(f"""s_mul_i32 s26, s{FT}, 14336
    s_lshl1_add_u32 s28, s{KS}, s{L}
    s_lshl_b32 s29, s28, 7
    s_add_u32 s26, s26, s29
    s_add_u32 s26, s26, {WS_YP}
    s_lshl2_add_u32 s28, s{FT}, s29
    s_add_u32 s28, s28, {WS_YFL}
    buffer_store_dword v{AC}, v215, s[8:11], s26 offen sc1
    buffer_store_dword v{AC+1}, v215, s[8:11], s26 offen offset:1792 sc1
    buffer_store_dword v{AC+2}, v216, s[8:11], s26 offen sc1
    buffer_store_dword v{AC+3}, v216, s[8:11], s26 offen offset:1792 sc1
    s_waitcnt vmcnt(0)""")
    signal(a, 5, 9, "s28", 1)
    st(a, 7)
    a("s_branch L_updA")
    a.label("L_nofn")
    lds_inc(a, 14, C_F, 15)
    spin_lds(a, 14, C_F, 4, 8, sleep=8)
    sel_load("L_sel2")
    a(f"""s_lshl2_add_u32 s26, s2, s{L}
    s_cmp_lg_u32 s26, {254*4}
    s_cbranch_scc1 L_updA""")
    a(f"s_mov_b32 s60, {SPIN_LIMIT}\nL_ep:")
    for k in range(4):
        a(f"s_mov_b32 s26, {WS_FL+8192*k}\nbuffer_load_dword v{24+k}, v219, s[8:11], s26 offen sc1")
    a(f"""s_sub_u32 s60, s60, 1
    s_cbranch_scc1 L_exit
    s_waitcnt vmcnt(0)
    v_xor_b32 v24, s{T}, v24
    v_bitop3_b32 v24, v24, v25, s{T} bitop3:0xf6
    v_bitop3_b32 v24, v24, v26, s{T} bitop3:0xf6
    v_bitop3_b32 v24, v24, v27, s{T} bitop3:0xf6
    v_cmp_ne_u32 vcc, 0, v24
    s_cbranch_vccnz L_ep
    s_mov_b32 s26, {WS_EP}""")
    flag_store(a, 5, 9, "s26")
    Y = 40
    a(f"""L_updA:
    s_and_b32 s53, s{H}, 3
    s_mul_i32 s53, s53, 224
    s_lshl_b32 s57, s{L}, 2
    s_lshr_b32 s26, s53, 6
    s_lshl_b32 s26, s26, 7
    s_add_u32 s62, s26, {WS_YFL}
    L_upd:
    v_readlane_b32 s52, v20, s57
    s_and_b32 s54, s52, 0xffff
    s_sub_u32 s54, 0xffff, s54
    s_lshr_b32 s26, s54, 5
    s_cmp_lg_u32 s26, s58
    s_cbranch_scc1 L_updn
    s_mov_b32 s60, {SPIN_LIMIT}
    s_mov_b32 exec_lo, 0x0fffffff
    s_mov_b32 exec_hi, 0x0fffffff
    L_yfl:
    v_mov_b32 v24, 0
    v_mov_b32 v25, 0
    buffer_atomic_or v24, v220, s[8:11], s62 offen sc0 sc1
    buffer_atomic_or v25, v220, s[8:11], s62 offen offset:256 sc0 sc1
    s_waitcnt vmcnt(0)
    v_xor_b32 v24, s{T}, v24
    v_bitop3_b32 v24, v24, v25, s{T} bitop3:0xf6
    v_cmp_ne_u32 vcc, 0, v24
    s_cbranch_vccz L_yok
    s_sub_u32 s60, s60, 1
    s_cbranch_scc0 L_yfl
    s_endpgm
    L_yok:
    v_mul_u32_u24 v4, {14*14336}, v33
    v_lshl_add_u32 v4, v32, 4, v4
    s_mul_i32 s26, s57, 1792
    s_lshl1_add_u32 s26, s53, s26
    s_add_u32 s26, s26, {WS_YP}""")
    for i in range(14):
        a(f"buffer_load_dwordx4 {vr(Y+4*i,4)}, v4, s[8:11], s26 offen sc1\ns_add_u32 s26, s26, 14336")
    a(f"""s_mov_b64 exec, -1
    s_lshr_b32 s26, s52, 16
    s_not_b32 s55, s26
    s_and_b32 s29, s26, 0x7fff
    s_bitcmp1_b32 s26, 15
    s_cselect_b32 s26, s29, s55
    s_lshl_b32 s26, s26, 16
    v_mov_b32 v6, {NLOG2E:#x}
    v_mul_f32 v6, s26, v6
    v_exp_f32 v6, v6
    v_add_f32 v6, 1.0, v6
    v_rcp_f32 v6, v6
    v_cvt_pk_bf16_f32 v6, v6, v6
    v_lshlrev_b32 v6, 16, v6
    s_mul_i32 s26, s57, 448
    s_add_u32 s26, s26, {UPD}
    v_lshl_add_u32 v7, v32, 4, s26
    s_waitcnt vmcnt(0)""")
    for i in range(1, 14):
        a(f"v_pk_add_f32 {vr(Y,2)}, {vr(Y,2)}, {vr(Y+4*i,2)}\nv_pk_add_f32 {vr(Y+2,2)}, {vr(Y+2,2)}, {vr(Y+4*i+2,2)}")
    for k in range(4): a(f"v_mov_b32 v{Y+4+k}, v{Y+k}")
    for k in range(4): a(f"v_permlane32_swap_b32 v{Y+k}, v{Y+4+k}")
    for k in range(4): a(f"v_add_f32 v{Y+k}, v{Y+k}, v{Y+4+k}")
    for k in range(0, 4, 2):
        a(f"""v_cvt_pk_bf16_f32 v{Y+k}, v{Y+k}, v{Y+k+1}
        v_and_b32 v{Y+k+1}, 0xffff0000, v{Y+k}
        v_lshlrev_b32 v{Y+k}, 16, v{Y+k}
        v_mul_f32 v{Y+k}, v{Y+k}, v6
        v_mul_f32 v{Y+k+1}, v{Y+k+1}, v6
        v_cvt_pk_bf16_f32 v{Y+k}, v{Y+k}, v{Y+k+1}
        v_and_b32 v{Y+k+1}, 0xffff0000, v{Y+k}
        v_lshlrev_b32 v{Y+k}, 16, v{Y+k}""")
    a(f"""s_and_b32 s54, s54, 31
    v_mov_b32 v5, s57
    s_lshl_b32 s26, s54, 2
    s_add_u32 s26, s26, {UPDI}
    v_mov_b32 v4, s26
    s_mov_b64 exec, 0x0fffffff
    ds_write_b128 v7, {vr(Y,4)}
    s_mov_b64 exec, 1
    ds_write_b32 v4, v5
    s_mov_b64 exec, -1
    L_updn:
    s_add_u32 s57, s57, 1
    s_and_b32 s26, s57, 3
    s_cbranch_scc1 L_upd
    v_mov_b32 v6, 512""")
    lds_inc(a, 14, C_O, 6)
    st(a, 9)
    a("s_branch L_ofetch")
    a.label("L_svcB")
    OUTT = ""
    if "outtouch" in EXP:
        OUTT = f"""s_cmp_lg_u32 s55, {42*1024}
        s_cbranch_scc1 L_noot
        s_mov_b32 s20, s50
        s_mov_b32 s21, s51
        s_mov_b32 s22, {2048*896}
        s_mov_b32 s23, 0x20000
        s_lshl_b32 s26, s58, 5
        v_add_u32 v4, s26, v32
        v_mul_u32_u24 v4, 896, v4
        s_add_u32 s26, s53, 127
        s_and_b32 s26, s26, 0xffffff80
        v_lshl_add_u32 v4, v33, 7, v4
        s_cmp_eq_u32 s53, 672
        s_cselect_b32 exec_hi, 0, -1
        buffer_store_dword v9, v4, s[20:23], s26 offen sc1
        s_mov_b64 exec, -1
        L_noot:"""
    WOPF = "s_mov_b32 exec_hi, 0x1ffff\nbuffer_load_dword v6, v219, s[16:19], s28 offen\ns_mov_b64 exec, -1" if "wopfS" not in EXP else ""
    for e in range(7):
        a(f"""v_add_u32 v4, {64*e}, v3
        v_mul_u32_u24 v5, 4682, v4
        v_lshrrev_b32 v5, 16, v5
        v_mul_u32_u24 v5, {896-224}, v5
        v_lshl_add_u32 v{200+e}, v4, 4, v5""")
    a(f"""v_mov_b32 v16, 0
    v_mov_b32 v17, 0
    v_mov_b32 v18, 0
    v_mov_b32 v19, 0
    v_add_u32 v209, {448*224}, v1
    s_cmp_eq_u32 s{L}, 2
    s_cbranch_scc1 L_svcB2
    v_lshrrev_b32 v4, 4, v3
    v_and_b32 v5, 15, v3
    v_lshlrev_b32 v5, 2, v5
    v_lshl_add_u32 v221, v4, 9, v5
    v_lshl_add_u32 v222, v4, 5, v14
    v_and_b32 v223, 48, v3
    v_and_b32 v5, 15, v3
    v_add_u32 v6, v5, v4
    v_lshl_add_u32 v224, v6, 14, 1
    v_bfm_b32 v225, v5, 0
    s_mul_i32 s26, s{H}, 28
    s_add_u32 s28, s26, 27
    s_xor_b32 s26, s26, s28
    s_mov_b32 s62, 0x55555555
    s_cmp_ge_u32 s26, 64
    s_cselect_b32 s62, -1, s62
    s_mov_b32 s63, s62
    s_lshr_b32 s28, s{J}, 2
    s_lshl4_add_u32 s26, s{H}, s28
    s_lshl_b32 s26, s26, 7
    s_add_u32 s26, s26, {WS_MB}""")
    spin_lds(a, 14, C_D, PCD, 8, sleep=1)
    at = lambda r: f"v_mov_b32 v{r}, 0\nbuffer_atomic_or v{r}, v221, s[8:11], s26 offen sc0 sc1"
    a(f"""s_mov_b32 s60, {SPIN_LIMIT}
    s_mov_b32 s52, 0x11111111
    s_mov_b32 s53, 0x11111111
    s_mov_b64 exec, s[62:63]""")
    for i in range(PD - 1): a(at(28 + i) + f"\ns_sleep {PG}")
    a("L_kv:")
    for i in range(PD):
        a(at(28 + (i + PD - 1) % PD))
        a(f"""s_waitcnt vmcnt({PD-1})
        v_cmp_ne_u32 vcc, s{T}, v{28+i}
        s_lshr_b64 s[28:29], vcc, 1
        s_or_b64 s[28:29], s[28:29], vcc
        s_lshr_b64 s[54:55], s[28:29], 2
        s_or_b64 s[28:29], s[28:29], s[54:55]
        s_andn2_b64 s[28:29], s[52:53], s[28:29]
        s_cbranch_scc0 L_kvn{i}
        s_andn2_b64 s[52:53], s[52:53], s[28:29]
        v_lshrrev_b64 v[4:5], v223, s[28:29]
        v_and_b32 v5, v225, v4
        v_bcnt_u32_b32 v5, v5, 0
        v_lshl_add_u32 v5, v5, 2, v222
        s_mov_b64 exec, s[28:29]
        ds_write_b32 v5, v224 offset:{C_R}
        s_mov_b64 exec, s[62:63]
        v_and_b32 v4, 0xffff, v4
        v_bcnt_u32_b32 v4, v4, 0
        v_lshl_add_u32 v222, v4, 2, v222
        s_cmp_eq_u64 s[52:53], 0
        s_cbranch_scc1 L_kvdone
        L_kvn{i}:""")
    a(f"""s_sub_u32 s60, s60, 1
    s_cbranch_scc0 L_kv
    s_endpgm
    L_kvdone:
    s_mov_b64 exec, -1
    L_svcB2:""")
    srd(a, 16, 38, 448 * 896)
    a(f"""s_and_b32 s53, s{H}, 3
    s_mul_i32 s53, s53, 224
    s_and_b32 s27, s{L}, 1
    s_mul_i32 s55, s27, {7*1024}
    s_mul_i32 s57, s27, {32*896}
    s_add_u32 s57, s57, s53
    s_lshl1_add_u32 s28, s25, s27
    s_mul_i32 s28, s28, {49*128}
    v_mov_b32 v24, -1
    v_mov_b32 v25, -1
    v_mov_b32 v26, -1
    v_mov_b32 v27, -1
    s_lshl_b32 s59, s{J}, 6
    s_add_u32 s59, s59, s{H}
    s_lshl1_add_u32 s59, s59, s27
    s_lshl_b32 s59, s59, 10
    s_add_u32 s59, s59, {WS_O}""")
    spin_lds(a, 14, C_L, 4, 8, sleep=2)
    st(a, 3)
    a(f"""ds_write_b128 v209, v[16:19]
    {WOPF}
    s_cmp_lg_u32 s{L}, 2
    s_cbranch_scc1 L_nofl
    s_lshl_b32 s26, s2, 7
    s_add_u32 s26, s26, {WS_FL}""")
    flag_store(a, 5, 9, "s26")
    a("L_nofl:\ns_waitcnt vmcnt(0)")
    if "wogate" in EXP: spin_lds(a, 14, C_F, 2, 8, sleep=4)
    a("L_wo:")
    for e in range(7):
        a(f"""s_add_u32 m0, s55, {e*1024}
        s_waitcnt vmcnt({WOP})
        buffer_load_dwordx4 v{200+e}, s[16:19], s57 offen lds""")
    a(f"""s_cmp_ge_u32 s55, {56*1024}
    s_cbranch_scc1 L_noclr
    buffer_store_dwordx4 v[24:27], v1, s[8:11], s59 offen sc1
    s_add_u32 s59, s59, {16*2048}
    L_noclr:
    {OUTT}
    s_sub_u32 s26, s55, {56*1024}
    s_cmp_ge_u32 s26, {14*1024}
    s_cbranch_scc1 L_noinc""")
    lds_inc(a, 14, C_F, 15)
    a(f"""L_noinc:
    s_add_u32 s55, s55, {14*1024}
    s_add_u32 s57, s57, {64*896}
    s_cmp_lt_u32 s55, {98*1024}
    s_cbranch_scc1 L_wo""")
    a("s_waitcnt vmcnt(0)")
    lds_inc(a, 14, C_W, 15)
    st(a, 8)
    a.label("L_ofetch")
    a(f"""s_lshl2_add_u32 s28, s58, s{L}
    s_lshl_b32 s29, s28, 13
    s_add_u32 s29, s29, {WS_O}
    s_add_u32 s27, s29, 4096
    s_lshl_b32 s28, s28, 7
    s_add_u32 s28, s28, {WS_OFL}
    s_mul_i32 s26, s{L}, 12288
    s_add_u32 s26, s26, {CB}
    v_add_u32 v7, s26, v1
    s_lshl_b32 s26, s{L}, 2
    v_add_u32 v6, s26, v14
    s_lshl_b32 s26, 1, s{L}
    v_mov_b32 v5, s26""")
    spin_lds(a, 6, C_P, 1, 8, sleep=4)
    poll_pipe(a, 28, 220, "s28", 15, D=PD, gap=PG)
    a("L_of:\nv_mov_b32 v4, 0")
    for k in range(8):
        a(f"buffer_load_dwordx4 {vr(40+4*k,4)}, v1, s[8:11], {'s29' if k < 4 else 's27'} offen offset:{(k&3)*1024} sc1")
    a("s_sub_u32 s60, s60, 1\ns_cbranch_scc1 L_exit")
    for k in range(8):
        a(f"""s_waitcnt vmcnt({7-k})
        ds_write_b128 v7, {vr(40+4*k,4)} offset:{k*1024}
        v_max3_u32 v4, v4, v{40+4*k}, v{41+4*k}
        v_max3_u32 v4, v4, v{42+4*k}, v{43+4*k}""")
    a("v_cmp_eq_u32 vcc, -1, v4\ns_cbranch_vccnz L_of")
    lds_inc(a, 14, C_O, 5)
    a("s_waitcnt vmcnt(0) lgkmcnt(0)")
    st_end(a)
    a("L_exit:\nL_code_end:\ns_endpgm")

def main(out):
    hdr = open("cdna_kernels/" + NAME + ".s.ref").read().split("; Override")[0]
    rep = []
    a = Asm()
    prologue_and_loader(a); main_wave(a); service_wave(a)
    t = hdr
    t += f"; @launch grid=(256,1,1) block=(512,1,1) lds={LDS_BYTES}\n"
    t += '.amdgcn_target "amdgcn-amd-amdhsa--gfx950"\n'
    t += kernel_text(NAME + "_kernel", a.l, 256, report=rep)
    open(out, "w").write(t)
    if "-v" in sys.argv: print("\n".join(rep))

if __name__ == "__main__":
    main(sys.argv[1])
```

```python
import sys, math, struct
from asmlib import *

NAME = "gated_mix__softmax_full_mha__moe_arch_mod__prompt"
STAMP = "-s" in sys.argv
EXP = set(x[2:] for x in sys.argv if x.startswith("-x"))
WS_KV = 0
WS_O = 4 << 20
WS_R = 6 << 20
WS_G = WS_R + 16384
WS_SEL = WS_R + 32768
WS_EP = WS_R + 40960
WS_FL = WS_R + 65536
WS_MB = WS_FL + 32768
WS_OFL = WS_MB + 32768
WS_YFL = WS_OFL + 32768
WS_F1 = WS_YFL + 4096
WS_YP = WS_R + (1 << 18)
WS_GP = 7 << 20
WS_ST = 16 << 20
XS = 0; WT = 65536; WQ = 122880; QX = 151552; UPD = 159744
WO = 0; CB = 102400
UPDI = UPD + 3584
KEYS = UPD
SELECTOR = 223
CNT = 163840 - 192
LDS_BYTES = 163840
C_Q1, C_Q2, C_X, C_L, C_S, C_D, C_C, C_O, C_W, C_F, C_K, C_T, C_P, C_R = 0, 4, 8, 12, 16, 20, 24, 28, 32, 36, 40, 44, 48, 64

def f32bits(x): return struct.unpack("<I", struct.pack("<f", x))[0]
QSCALE = f32bits(28 ** -0.5 * math.log2(math.e))
NLOG2E = f32bits(-math.log2(math.e))
MF = "v_mfma_f32_32x32x16_bf16"
ROLE = [0, 1, 2, 3, 14, 4, 5, 6, 7, 8, 9, 15, 10, 11, 12, 13]
ROLE_LO = sum(ROLE[i] << (4 * i) for i in range(8))
ROLE_HI = sum(ROLE[8 + i] << (4 * i) for i in range(8))
SPIN_LIMIT = 1 << 20
WSBASE = ([int(x[2:]) for x in sys.argv if x.startswith("-w")] + [0])[0] << 20
PD = 4 if "pd4" in EXP else 2
PG = 3 if "pd4" in EXP else 6
PCD = 4 if "pcd4" in EXP else (0 if "pcd0" in EXP else 1)
KVS = 4 if "kvs4" in EXP else (0 if "kvs0" in EXP else 2)
PQ2 = 4 if "pq4" in EXP else (0 if "pq0" in EXP else 1)
PF0 = 2 if "pf2" in EXP else 0
WOP = 1 if "wo1" in EXP else (3 if "wo3" in EXP else 2)
OUTAUX = " sc1" if "outsc1" in EXP else (" nt" if "outnt" in EXP else "")

T, H, J, W, RL, ROT = 30, 31, 32, 33, 34, 3
_uid = [0]
def uid(p):
    _uid[0] += 1
    return f"{p}_{_uid[0]}"

def srd(a, d, ptr, nbytes):
    a(f"s_mov_b32 s{d}, s{ptr}\ns_mov_b32 s{d+1}, s{ptr+1}\ns_mov_b32 s{d+2}, {nbytes:#x}\ns_mov_b32 s{d+3}, 0x20000")

NST = 12
DIAG = [tuple(int(y) for y in x[2:].split("-")) for x in sys.argv if x.startswith("-d")]
def st(a, i):
    if STAMP: a(f"s_memtime s[{72+2*i}:{73+2*i}]")
    if DIAG and i in DIAG[0]: a(f"s_memrealtime s[{72+2*i}:{73+2*i}]\ns_waitcnt lgkmcnt(0)")
def st_begin(a):
    if STAMP: a("s_memrealtime s[68:69]\ns_memtime s[72:73]")
    if DIAG: a("s_memrealtime s[72:73]")
ABS = [x[2:] for x in sys.argv if x.startswith("-a")]
REL = [tuple(int(y) for y in x[2:].split("-")) for x in sys.argv if x.startswith("-r")]
if ABS:
    DIAG = [(0, 0 if ABS[0] == "z" else int(ABS[0].lstrip("m")))]
if REL:
    ABS = ["r"]; DIAG = REL
def diag_start(a):
    if not ABS: return
    a(f"""s_load_dwordx2 s[98:99], s[0:1], 80
    s_waitcnt lgkmcnt(0)
    s_cmp_ge_u32 s2, 8
    s_cbranch_scc1 L_dg0
    s_cmp_lg_u32 s{W}, 0
    s_cbranch_scc1 L_dg0
    s_lshl_b32 s70, s2, 2
    v_mov_b32 v4, s70
    v_mov_b32 v6, s72
    global_store_dword v4, v6, s[98:99] sc1
    L_dg0:""")
def diag_end(a):
    if not DIAG: return
    p, q = DIAG[0]
    if ABS:
        a(f"""s_waitcnt vmcnt(0)
        s_memrealtime s[96:97]
        s_mov_b64 exec, -1
        v_mov_b32 v4, 0
        global_load_dwordx4 v[8:11], v4, s[98:99] sc1
        global_load_dwordx4 v[12:15], v4, s[98:99] offset:16 sc1
        s_waitcnt vmcnt(0) lgkmcnt(0)
        v_min3_u32 v8, v8, v9, v10
        v_min3_u32 v8, v8, v11, v12
        v_min3_u32 v8, v8, v13, v14
        v_min_u32 v8, v8, v15
        s_nop 1
        v_readfirstlane_b32 s69, v8
        s_sub_u32 s70, s{72+2*q}, s69""")
        if ABS[0] == "z": a("s_mov_b32 s70, 0")
        if REL: a(f"s_sub_u32 s70, s{72+2*q}, s{72+2*p}\ns_lshl_b32 s70, s70, 2")
        if ABS[0].startswith("m"): a("s_sub_u32 s70, 2500, s70")
        a("s_add_u32 s70, s70, s69\ns_add_u32 s70, s70, 2500")
    else:
        a(f"""s_waitcnt vmcnt(0)
        s_memrealtime s[96:97]
        s_waitcnt lgkmcnt(0)
        s_sub_u32 s70, s{72+2*q}, s{72+2*p}
        s_add_u32 s70, s70, s96""")
    a(f"""L_diag:
    s_memrealtime s[68:69]
    s_waitcnt lgkmcnt(0)
    s_sub_u32 s71, s68, s70
    s_cmp_lt_i32 s71, 0
    s_cbranch_scc1 L_diag""")
def st_init(a):
    if STAMP:
        for i in range(1, NST): a(f"s_mov_b32 s{72+2*i}, s72")
def st_end(a):
    if not STAMP: return
    a(f"""s_waitcnt vmcnt(0)
    s_memrealtime s[70:71]
    s_memtime s[{72+2*NST}:{73+2*NST}]
    s_getreg_b32 s66, hwreg(HW_REG_HW_ID)
    s_getreg_b32 s67, hwreg(HW_REG_XCC_ID)
    s_mov_b64 exec, -1
    s_lshl_b32 s65, s2, 3
    s_add_u32 s65, s65, s{W}
    s_lshl_b32 s65, s65, 6
    s_add_u32 s65, s65, {WS_ST}
    s_waitcnt lgkmcnt(0)
    v_mov_b32 v4, s68
    v_mov_b32 v5, s70
    v_mov_b32 v6, s66
    v_mov_b32 v7, s67""")
    for i in range(1, NST + 1):
        a(f"s_sub_u32 s64, s{72+2*i}, s72\nv_mov_b32 v{7+i}, s64")
    a("v_mov_b32 v2, 0\ns_mov_b64 exec, 1")
    for k in range(4):
        a(f"buffer_store_dwordx4 v[{4+4*k}:{7+4*k}], v2, s[8:11], s65 offen offset:{16*k}")

def poll_global(a, vdst, voff, soff, mask=None, sleep=1):
    l = uid("Lpoll"); d = uid("Lpd")
    a(f"s_mov_b32 s60, {SPIN_LIMIT}")
    if mask is not None: a(f"s_mov_b64 exec, {mask}")
    a(f"""{l}:
    buffer_load_dword v{vdst}, v{voff}, s[8:11], {soff} offen sc1
    s_waitcnt vmcnt(0)
    v_cmp_ne_u32 vcc, s{T}, v{vdst}
    s_cbranch_vccz {d}
    s_mov_b64 exec, vcc
    s_sleep {sleep}
    s_sub_u32 s60, s60, 1
    s_cbranch_scc0 {l}
    s_endpgm
    {d}:
    s_mov_b64 exec, -1""")

def poll_atomic(a, vdst, voff, soff, mask, sleep):
    l = uid("Lpa"); d = uid("Lpad")
    a(f"""s_mov_b32 s60, {SPIN_LIMIT}
    s_mov_b64 exec, {mask}
    {l}:
    v_mov_b32 v{vdst}, 0
    buffer_atomic_or v{vdst}, v{voff}, s[8:11], {soff} offen sc0 sc1
    s_waitcnt vmcnt(0)
    v_cmp_ne_u32 vcc, s{T}, v{vdst}
    s_cbranch_vccz {d}
    s_sleep {sleep}
    s_sub_u32 s60, s60, 1
    s_cbranch_scc0 {l}
    s_endpgm
    {d}:
    s_mov_b64 exec, -1""")

def poll_pipe(a, v0, voff, soff, mask, D=4, gap=3):
    l = uid("Lpp"); d = uid("Lppd")
    at = lambda r: f"v_mov_b32 v{r}, 0\nbuffer_atomic_or v{r}, v{voff}, s[8:11], {soff} offen sc0 sc1"
    a(f"s_mov_b32 s60, {SPIN_LIMIT}\ns_mov_b64 exec, {mask}")
    for i in range(D - 1): a(at(v0 + i) + f"\ns_sleep {gap}")
    a(f"{l}:")
    for i in range(D):
        a(at(v0 + (i + D - 1) % D))
        a(f"s_waitcnt vmcnt({D-1})\nv_cmp_ne_u32 vcc, s{T}, v{v0+i}\ns_cbranch_vccz {d}")
    a(f"""s_sub_u32 s60, s60, 1
    s_cbranch_scc0 {l}
    s_endpgm
    {d}:
    s_mov_b64 exec, -1""")

def signal(a, vt, voff, soff, mask):
    a(f"v_mov_b32 v{vt}, s{T}\ns_mov_b64 exec, {mask}\nbuffer_atomic_swap v{vt}, v{voff}, s[8:11], {soff} offen sc1\ns_mov_b64 exec, -1")

def spin_lds(a, vaddr, off, want, vt, sleep=0):
    l = uid("Lsp"); d = uid("Lsd")
    a(f"""s_mov_b32 s60, {SPIN_LIMIT}
    {l}:
    ds_read_b32 v{vt}, v{vaddr} offset:{off}
    s_waitcnt lgkmcnt(0)
    v_readfirstlane_b32 s61, v{vt}
    s_cmp_ge_u32 s61, {want}
    s_cbranch_scc1 {d}""")
    if sleep: a(f"s_sleep {sleep}")
    a(f"""s_sub_u32 s60, s60, 1
    s_cbranch_scc0 {l}
    s_endpgm
    {d}:""")

def lds_inc(a, vaddr, off, vone):
    a(f"s_mov_b64 exec, 1\nds_add_u32 v{vaddr}, v{vone} offset:{off}\ns_mov_b64 exec, -1")

def flag_store(a, vt, vz, soff):
    a(f"v_mov_b32 v{vt}, s{T}\ns_mov_b64 exec, 1\nbuffer_store_dword v{vt}, v{vz}, s[8:11], {soff} offen sc1\ns_mov_b64 exec, -1")

def split_neg_max(a, m, t0, t1, q6, q7):
    a(f"""v_sub_f32 v{m}, 0, v{m}
    v_cvt_pk_bf16_f32 v{t0}, v{m}, v{m}
    v_lshlrev_b32 v{t0}, 16, v{t0}
    v_sub_f32 v{t0}, v{m}, v{t0}
    v_cvt_pk_bf16_f32 v{t1}, v{m}, v{t0}
    v_and_b32 v{m}, 0xffff0000, v{t1}
    v_sub_f32 v{t0}, v{t0}, v{m}
    s_mov_b32 exec_lo, 0
    v_mov_b32 v{q6}, v{t1}
    v_cvt_pk_bf16_f32 v{q7}, v{t0}, 0
    s_mov_b32 exec_lo, -1""")

def max16_list(dst, S, init=False):
    if not init:
        return ([f"v_max3_f32 v{dst}, v{S}, v{S+1}, v{S+2}"] +
                [f"v_max3_f32 v{dst}, v{dst}, v{S+i}, v{S+i+1}" for i in range(3, 15, 2)] +
                [f"v_max_f32 v{dst}, v{dst}, v{S+15}"])
    return [f"v_max3_f32 v{dst}, v{dst}, v{S+i}, v{S+i+1}" for i in range(0, 16, 2)]

def wave_min_u32(a, v, full=True):
    for r in (1, 2, 4, 8):
        a(f"v_min_u32_dpp v{v}, v{v}, v{v} row_ror:{r} row_mask:0xf bank_mask:0xf")
    a(f"v_min_u32_dpp v{v}, v{v}, v{v} row_bcast:15 row_mask:0xa bank_mask:0xf")
    if full: a(f"v_min_u32_dpp v{v}, v{v}, v{v} row_bcast:31 row_mask:0xc bank_mask:0xf")

def tag(a):
    a(f"s_mul_i32 s{T}, s{T}, 0x9e3779b1\ns_add_u32 s{T}, s{T}, 0x7f4a7c15")

def next_chunk(a, s):
    a(f"s_add_u32 s{s}, s{s}, 1\ns_cmp_eq_u32 s{s}, 7\ns_cselect_b32 s{s}, 0, s{s}")

Q, O, KV, S, P = 8, 40, 104, 168, 200
XF = 104; A0, A1, WF = 40, 56, 72
VX = 216; VW = 220; VQ = 222; VC = 223; V1 = 224; VZ = 225; VT = 226; VH = 227
VA = 228; TMP = 232; XR = 240; GR = 248; VWQ = 250; VF = 251; VFS = 252; VXO = 253; VGO = 254
OWN = 3
L = 35

def prologue_and_loader(a):
    if "rot7" in EXP:
        ROTCODE = f"s_lshl1_add_u32 s{ROT}, s27, s26\ns_cmp_ge_u32 s{ROT}, 7\ns_cselect_b32 s26, 7, 0\ns_sub_u32 s{ROT}, s{ROT}, s26"
    elif "rot2" not in EXP and "norot" not in EXP and "rot23" not in EXP:
        ROTCODE = f"s_add_u32 s{ROT}, s27, s26\ns_and_b32 s{ROT}, s{ROT}, 3\ns_lshl_b32 s{ROT}, s{ROT}, 1"
    elif "norot" in EXP:
        ROTCODE = f"s_mov_b32 s{ROT}, 0"
    elif "rot23" in EXP:
        ROTCODE = f"s_add_u32 s{ROT}, s27, s26\ns_and_b32 s{ROT}, s{ROT}, 1\ns_mul_i32 s{ROT}, s{ROT}, 3"
    else:
        ROTCODE = f"s_add_u32 s{ROT}, s27, s26\ns_and_b32 s{ROT}, s{ROT}, 1\ns_lshl_b32 s{ROT}, s{ROT}, 2"
    st_begin(a)
    a(f"""s_load_dwordx4 s[4:7], s[0:1], 0
    s_load_dwordx2 s[36:37], s[0:1], 88
    s_load_dwordx2 s[38:39], s[0:1], 16
    s_load_dwordx8 s[40:47], s[0:1], 32
    s_load_dwordx4 s[48:51], s[0:1], 64
    s_cmp_ge_u32 s2, 256
    s_cbranch_scc1 L_exit
    v_lshrrev_b32 v2, 6, v0
    v_and_b32 v3, 63, v0
    s_and_b32 s24, s2, 7
    s_lshr_b32 s25, s2, 3
    v_readfirstlane_b32 s{W}, v2
    s_and_b32 s{H}, s24, 1
    s_lshl_b32 s{H}, s{H}, 3
    s_and_b32 s26, s25, 7
    s_add_u32 s{H}, s{H}, s26
    s_lshr_b32 s27, s25, 3
    s_and_b32 s{J}, s24, 6
    s_lshl1_add_u32 s{J}, s{J}, s27
    {ROTCODE}
    s_mov_b32 s28, {ROLE_LO:#x}
    s_mov_b32 s29, {ROLE_HI:#x}
    s_lshl_b32 s27, s{H}, 2
    s_lshr_b64 s[28:29], s[28:29], s27
    s_and_b32 s{RL}, s28, 15
    v_lshlrev_b32 v1, 4, v3
    s_mov_b32 s27, {WS_EP}
    s_cmp_lt_u32 s{W}, 4
    s_cbranch_scc1 L_main
    """)
    a(f"""s_setprio 2
    s_sub_u32 s{L}, s{W}, 4
    v_lshrrev_b32 v4, 3, v3
    v_mul_u32_u24 v5, 896, v4
    v_and_b32 v6, 7, v3
    v_lshrrev_b32 v7, 4, v3
    v_xor_b32 v7, v6, v7
    v_lshl_add_u32 v10, v7, 4, v5
    v_xor_b32 v11, 64, v10
    v_add_u32 v12, {2*6144}, v10
    v_add_u32 v13, {3*6144}, v11
    v_add_u32 v11, 6144, v11
    v_mul_u32_u24 v5, 2688, v4
    v_and_b32 v4, 2, v4
    v_lshlrev_b32 v4, 1, v4
    v_xor_b32 v4, v4, v6
    v_lshl_add_u32 v14, v4, 4, v5
    v_add_u32 v15, {8*2688-1024}, v14
    s_lshl2_add_u32 s52, s{J}, s{L}
    s_mul_i32 s52, s52, {32*896}
    s_lshl_b32 s53, s{RL}, 7
    s_mul_i32 s26, s{L}, {16*2688}
    s_add_u32 s53, s53, s26
    s_add_u32 s53, s53, 896
    s_lshl_b32 s54, s{L}, 12
    s_lshl_b32 s55, s{L}, 11
    s_add_u32 s55, s55, {WT}
    s_mov_b32 s56, s{ROT}
    s_mov_b32 s57, 0
    s_mov_b32 s14, {2048*896}
    s_mov_b32 s15, 0x20000
    s_cmp_ge_u32 s{RL}, 14
    s_cselect_b32 s18, 0, {448*2688}
    s_mov_b32 s19, 0x20000
    s_waitcnt lgkmcnt(0)
    s_mov_b64 s[12:13], s[4:5]
    s_mov_b64 s[16:17], s[6:7]
    s_add_u32 s36, s36, {WSBASE}
    s_addc_u32 s37, s37, 0
    s_load_dword s{T}, s[36:37], s27""")
    st_init(a); st(a, 1)
    a(f"""L_ld:
    s_mul_i32 s26, s56, {64*2688}
    s_mov_b32 m0, s55
    s_add_u32 s26, s26, s53
    s_lshl_b32 s28, s56, 7
    buffer_load_dwordx4 v14, s[16:19], s26 offen lds
    buffer_load_dwordx4 v15, s[16:19], s26 offen offset:1024 lds
    s_mov_b32 m0, s54
    s_add_u32 s28, s28, s52
    buffer_load_dwordx4 v10, s[12:15], s28 offen lds
    buffer_load_dwordx4 v11, s[12:15], s28 offen offset:1024 lds
    buffer_load_dwordx4 v12, s[12:15], s28 offen offset:2048 lds
    buffer_load_dwordx4 v13, s[12:15], s28 offen offset:3072 lds
    s_add_u32 s55, s55, 8192
    s_add_u32 s54, s54, 16384
    s_and_b32 s54, s54, 0xffff""")
    next_chunk(a, 56)
    if "notlb" not in EXP:
        a(f"s_or_b32 s26, s57, s{L}\ns_cbranch_scc0 L_tlb\nL_tlb_done:")
    a(f"""s_add_u32 s57, s57, 1
    s_cmp_lt_u32 s57, 3
    s_cbranch_scc1 L_ld
    s_waitcnt vmcnt(12)
    s_barrier
    s_cmp_lt_u32 s57, 7
    s_cbranch_scc1 L_ld
    """)
    a(f"""v_lshrrev_b32 v4, 2, v3
    v_mul_u32_u24 v4, 2688, v4
    v_and_b32 v5, 3, v3
    v_lshl_add_u32 v16, v5, 4, v4
    s_mov_b32 s18, {448*2688}
    s_mul_i32 s53, s{H}, 56
    s_and_b32 s53, s53, 0xfffffff0
    s_mul_i32 s26, s{L}, {16*2688}
    s_add_u32 s53, s53, s26
    s_lshl_b32 s55, s{L}, 10
    s_add_u32 s55, s55, {WQ}""")
    for i in range(4):
        a(f"""s_mul_i32 s26, s56, {64*2688}
        s_add_u32 m0, s55, {i*4096}
        s_add_u32 s26, s26, s53
        buffer_load_dwordx4 v16, s[16:19], s26 offen lds""")
        if i < 3: next_chunk(a, 56)
        if i == 1: a("s_waitcnt vmcnt(8)\ns_barrier")
        if i == 3: a("s_waitcnt vmcnt(4)\ns_barrier")
    st(a, 2)
    a("s_branch L_service")
    if "notlb" not in EXP:
        a("L_tlb:")
        if "tlbR" in EXP: a(f"s_cmp_lt_u32 s{RL}, 14\ns_cbranch_scc1 L_tlb_done")
        for off in (0, 2 << 20, 4 << 20):
            a(f"s_mov_b32 s26, {off + 4032}\ns_load_dword s66, s[36:37], s26")
        for p in (42, 44, 38, 46, 50):
            a(f"s_load_dword s66, s[{p}:{p+1}], 0")
        a("s_branch L_tlb_done")

def main_wave(a):
    a.label("L_main")
    diag_start(a)
    if "nocodepf" not in EXP:
        a(f"""s_cmp_lg_u32 s{W}, 0
        s_cbranch_scc1 L_nopf
        s_getpc_b64 s[28:29]
        L_pc:
        s_and_b32 s26, s25, 3
        s_lshl_b32 s26, s26, 13
        v_lshl_add_u32 v4, v3, 7, s26
        v_min_u32 v4, L_code_end-L_pc, v4
        global_load_dword v5, v4, s[28:29]
        L_nopf:""")
    a(f"""s_setprio 1
    v_and_b32 v{VT}, 31, v3
    v_lshrrev_b32 v{VH}, 5, v3
    v_mov_b32 v{V1}, 1
    v_mov_b32 v{VZ}, 0
    v_mov_b32 v{VC}, {CNT}
    v_lshrrev_b32 v4, 2, v1
    v_add_u32 v4, {UPDI}, v4
    v_mov_b32 v6, -1
    s_mov_b32 exec_hi, 0
    ds_write_b32 v4, v6
    v_and_b32 v6, 7, v3
    v_cmp_eq_u32 vcc, 4, v6
    v_mov_b32 v7, {(1<<18)+1}
    v_cndmask_b32 v6, 0, v7, vcc
    ds_write_b32 v4, v6 offset:{CNT-UPDI+C_R}
    s_mov_b32 exec_lo, 0xffff
    ds_write_b32 v4, v{VZ} offset:{CNT-UPDI}
    s_mov_b64 exec, -1
    v_lshrrev_b32 v4, 1, v{VT}
    v_and_b32 v4, 7, v4
    v_xor_b32 v4, v4, v{VH}
    v_lshlrev_b32 v4, 4, v4
    v_lshl_add_u32 v4, v{VT}, 7, v4
    s_lshl_b32 s26, s{W}, 12
    v_add_u32 v{VX}, s26, v4
    v_xor_b32 v{VX+1}, 32, v{VX}
    v_xor_b32 v{VX+2}, 64, v{VX}
    v_xor_b32 v{VX+3}, 96, v{VX}
    v_bfe_u32 v4, v3, 2, 2
    v_lshl_add_u32 v12, v{VH}, 3, v4
    v_and_b32 v6, 3, v3
    v_and_b32 v7, 1, v3
    v_bfe_u32 v8, v3, 1, 1
    v_lshl_add_u32 v7, v7, 1, v8
    v_bfe_u32 v8, v3, 4, 1
    v_lshl_add_u32 v9, v8, 2, v7
    v_lshl_add_u32 v10, v8, 2, v6
    s_cmp_lt_u32 s{RL}, 7
    s_cselect_b64 vcc, -1, 0
    v_cndmask_b32 v10, v10, v9, vcc
    v_lshlrev_b32 v11, 7, v12
    v_lshl_add_u32 v11, v10, 3, v11
    v_lshrrev_b32 v4, 1, v4
    v_lshl_add_u32 v11, v4, 6, v11
    v_add_u32 v{VW}, {WT}, v11
    v_xor_b32 v{VW+1}, 64, v{VW}
    v_add_u32 v10, 2, v9
    v_sub_u32 v11, 7, v9
    v_cmp_gt_u32 vcc, 6, v9
    v_cndmask_b32 v10, v11, v10, vcc
    s_bitcmp1_b32 s{H}, 0
    s_cselect_b64 vcc, -1, 0
    v_cndmask_b32 v10, v9, v10, vcc
    v_lshlrev_b32 v11, 6, v12
    v_lshl_add_u32 v11, v10, 3, v11
    v_add_u32 v{VQ}, {WQ}, v11
    v_lshrrev_b32 v4, 2, v3
    v_mul_u32_u24 v4, 2688, v4
    v_lshl_add_u32 v{VWQ}, v6, 4, v4
    s_cmp_ge_u32 s{RL}, 7
    s_cselect_b32 s26, 7, 0
    s_cselect_b32 s29, 2, 0
    s_sub_u32 s26, s{RL}, s26
    s_mul_i32 s28, s26, {64*2341}
    s_lshr_b32 s28, s28, 16
    v_add_u32 v4, s28, v6
    v_mul_u32_u24 v7, 28, v4
    v_lshrrev_b32 v7, 6, v7
    v_cmp_ge_u32 s[64:65], s26, v7
    v_cmp_ne_u32 vcc, s26, v7
    s_and_b32 s28, s{J}, 12
    s_add_u32 s29, s28, s29
    v_mov_b32 v7, s29
    v_addc_co_u32 v7, vcc, 0, v7, vcc
    s_and_b32 s28, s{J}, 3
    v_lshl_add_u32 v4, v4, 2, s28
    v_bfe_u32 v8, v3, 2, 2
    v_lshl_add_u32 v4, v4, 2, v8
    v_lshlrev_b32 v4, 7, v4
    v_lshl_add_u32 v{VFS}, v7, 2, v4
    s_and_b32 s64, s64, 0xffff
    s_cmp_ge_u32 s{RL}, 14
    s_cselect_b32 s64, 0, s64
    s_mov_b32 s65, 0
    s_lshl_b32 s28, s{W}, 5
    v_add_u32 v{VF}, s28, v{VC}
    s_lshl_b32 s28, s{J}, 2
    s_lshr_b32 s58, s{H}, 2
    s_add_u32 s58, s58, s28
    s_and_b32 s59, s{H}, 3
    s_lshl2_add_u32 s59, s59, s{W}
    s_mul_i32 s59, s59, 56
    s_lshl_b32 s28, s58, 5
    v_add_u32 v4, s28, v{VT}
    v_mul_u32_u24 v{VXO}, 896, v4
    v_lshl_add_u32 v{VXO}, v{VH}, 4, v{VXO}
    v_lshlrev_b32 v{VGO}, 3, v4
    s_waitcnt lgkmcnt(0)
    s_add_u32 s36, s36, {WSBASE}
    s_addc_u32 s37, s37, 0
    """)
    st_init(a)
    srd(a, 8, 36, (1 << 28) - WSBASE)
    srd(a, 16, 6, 448 * 2688)
    srd(a, 12, 4, 2048 * 896)
    if "nowqpf" not in EXP:
        a(f"""s_cmp_lg_u32 s{W}, 1
        s_cbranch_scc1 L_nopf2
        v_lshrrev_b32 v4, 2, v3
        v_min_u32 v4, 13, v4
        v_mul_u32_u24 v4, 2688, v4
        v_and_b32 v6, 3, v3
        v_lshl_add_u32 v4, v6, 7, v4
        s_mul_i32 s26, s25, {14*2688}
        s_and_b32 s28, s24, 1
        s_mul_i32 s28, s28, 384
        s_add_u32 s26, s26, s28
        buffer_load_dword v5, v4, s[16:19], s26 offen
        L_nopf2:""")
    if "wopfS" in EXP:
        srd(a, 20, 38, 448 * 896)
        a(f"""s_cmp_lg_u32 s{W}, 2
        s_cbranch_scc1 L_nopf3
        s_mul_i32 s26, s2, {13*128}
        v_lshl_add_u32 v4, v3, 7, s26
        s_mov_b64 exec, 0x1fff
        buffer_load_dword v5, v4, s[20:23], 0 offen
        s_mov_b64 exec, -1
        L_nopf3:""")
    a(f"""s_mul_i32 s62, s{H}, 56
    s_and_b32 s62, s62, 0xfffffff0
    s_mul_i32 s26, s{W}, {16*2688}
    s_add_u32 s62, s62, s26
    s_lshl_b32 s63, s{W}, 10
    s_add_u32 s63, s63, {WQ}
    s_lshl2_add_u32 s35, s{J}, s{W}
    s_lshl_b32 s52, s35, 12
    s_cmp_ge_u32 s{RL}, 14
    s_cbranch_scc1 L_roleR
    s_cmp_ge_u32 s{RL}, 7
    s_cbranch_scc1 L_roleV""")

    def gemm(kind):
        if "twait" in EXP:
            st(a, 10); a("s_waitcnt vmcnt(0)"); st(a, 11)
        def reads(c, s):
            k = 4 * c + s
            a(f"ds_read_b128 {vr(XF+4*k,4)}, v{VX+s} offset:{(c&3)*16384}")
            f = WF + 8 * s
            if kind == "R":
                a(f"ds_read_b128 {vr(f,4)}, v{VW} offset:{k*32}")
            else:
                for n in range(2):
                    a(f"ds_read_b64_tr_b16 {vr(f+4*n,2)}, v{VW+n} offset:{k*2048}")
                    a(f"ds_read_b64_tr_b16 {vr(f+4*n+2,2)}, v{VW+n} offset:{k*2048+512}")
        def mfmas(c, s):
            k = 4 * c + s
            f = WF + 8 * s
            for n in range(1 if kind == "R" else 2):
                acc = (A0, A1)[n]
                cc = "0" if k == 0 else vr(acc, 16)
                if kind == "V": a(f"{MF} {vr(acc,16)}, {vr(XF+4*k,4)}, {vr(f+4*n,4)}, {cc}")
                else:           a(f"{MF} {vr(acc,16)}, {vr(f+4*n,4)}, {vr(XF+4*k,4)}, {cc}")
        per = 2 if kind == "R" else 5
        for c in range(7):
            a("s_barrier")
            if c == 0: st(a, 1)
            if c == 6: st(a, 2)
            if STAMP and c in (0, 6): a("s_waitcnt lgkmcnt(0)")
            reads(c, 0); reads(c, 1)
            for s in range(4):
                if s < 2: reads(c, s + 2)
                a(f"s_waitcnt lgkmcnt({min(3 - s, 2) * per})")
                mfmas(c, s)

    PK = 8
    MS = 20
    for i in range(4):
        a(f"""s_lshl_b32 s28, s{RL}, 3
        s_add_u32 s28, s28, {2*i}
        v_add_u32 v4, s28, v{VH}
        v_mul_u32_u24 v8, 37, v4
        v_lshrrev_b32 v8, 8, v8
        v_mul_u32_u24 v6, 7, v8
        v_sub_u32 v6, v4, v6
        v_lshrrev_b32 v7, 2, v6
        v_lshl_add_u32 v8, v8, 1, v7
        v_cmp_eq_u32 s[{MS+2*i}:{MS+1+2*i}], 3, v6
        v_and_b32 v6, 3, v6
        v_lshlrev_b32 v8, 18, v8
        v_lshl_add_u32 v8, v6, 9, v8
        v_lshl_add_u32 v{VA+i}, v{VT}, 4, v8""")
    a(f"v_mov_b32 v{TMP+2}, 0x3f803f80\nv_mov_b32 v{TMP+3}, 0x3f803f80\ns_add_u32 s53, s52, {1<<18}")
    if "touch" in EXP:
        a("s_mov_b32 s28, 0x01010101\ns_mov_b32 s29, 0x01010101")
        for i in range(4):
            l = uid("Lnt")
            a(f"""s_mov_b64 exec, s[28:29]
            buffer_store_dword v{VZ}, v{VA+i}, s[8:11], s52 offen sc1
            s_and_b64 exec, s[28:29], s[{MS+2*i}:{MS+1+2*i}]
            s_cbranch_execz {l}
            buffer_store_dword v{VZ}, v{VA+i}, s[8:11], s53 offen sc1
            {l}:""")
        a("s_mov_b64 exec, -1")
    gemm("K")
    for i in range(4):
        acc = (A0, A1)[i >> 1] + 8 * (i & 1)
        p = PK + 4 * i
        for e in range(4): a(f"v_cvt_pk_bf16_f32 v{p+e}, v{acc+2*e}, v{acc+2*e+1}")
        l = uid("Lnosh")
        a(f"""s_mov_b64 exec, s[{MS+2*i}:{MS+1+2*i}]
        s_cbranch_execz {l}
        v_mov_b32 v{TMP}, v{p+2}
        v_mov_b32 v{TMP+1}, v{p+3}
        v_mov_b32 v{p+2}, 0x3f803f80
        v_mov_b32 v{p+3}, 0x3f803f80
        buffer_store_dwordx4 {vr(TMP,4)}, v{VA+i}, s[8:11], s53 offen sc1
        s_nop 1
        {l}:
        s_mov_b64 exec, -1
        buffer_store_dwordx4 {vr(p,4)}, v{VA+i}, s[8:11], s52 offen sc1""")
    a("s_branch L_pub")
    a.label("L_roleR")
    srd(a, 20, 40, 896)
    a(f"""s_lshl_b32 s28, s{ROT}, 7
    v_add_u32 v4, s28, v1
    v_subrev_u32 v6, 896, v4
    v_min_u32 v4, v4, v6
    s_mov_b32 m0, {QX}
    s_nop 0
    buffer_load_dwordx4 v4, s[20:23], 0 offen lds
    s_mov_b32 s20, s48
    s_mov_b32 s21, s49
    s_mov_b32 m0, {QX+1024}
    s_nop 0
    buffer_load_dwordx4 v4, s[20:23], 0 offen lds
    v_and_b32 v4, 1, v3
    v_lshlrev_b32 v4, 10, v4
    v_lshl_add_u32 v4, v{VH}, 4, v4
    v_add_u32 v{VW}, {QX}, v4
    s_waitcnt vmcnt(0)""")
    gemm("R")
    a(f"""s_cmp_lg_u32 s{RL}, 14
    s_cbranch_scc1 L_pub
    s_mov_b32 exec_hi, 0
    s_nop 9
    v_cvt_pk_bf16_f32 v4, v{A0}, v{A0+1}
    v_and_b32 v5, 0xffff0000, v4
    v_lshlrev_b32 v4, 16, v4
    v_ashrrev_i32 v6, 31, v4
    v_or_b32 v6, 0x80000000, v6
    v_xor_b32 v6, v6, v4
    v_and_b32 v6, 0xffff0000, v6
    v_cmp_u_f32 vcc, v4, v4
    v_cndmask_b32 v6, v6, 0, vcc
    s_lshl_b32 s26, s35, 5
    v_add_u32 v7, s26, v{VT}
    v_sub_u32 v8, 0xffff, v7
    v_or_b32 v6, v6, v8
    v_lshlrev_b32 v9, 3, v7
    v_and_b32 v7, 127, v7
    v_lshlrev_b32 v7, 2, v7
    v_add_u32 v7, {KEYS}, v7
    ds_write_b32 v7, v6
    s_mov_b32 exec_lo, 1
    ds_add_u32 v{VC}, v{V1} offset:{C_K}
    s_mov_b32 exec_lo, -1
    v_mul_f32 v5, {NLOG2E:#x}, v5
    v_exp_f32 v5, v5
    v_add_f32 v5, 1.0, v5
    v_rcp_f32 v5, v5
    v_cvt_pk_bf16_f32 v5, v5, v5
    v_lshlrev_b32 v10, 16, v5
    s_mov_b32 exec_hi, -1
    s_branch L_pub
    """)
    a.label("L_roleV")
    for n in range(2):
        a(f"""s_lshl_b32 s28, s{RL}, 6
        s_sub_u32 s28, s28, {7*64 - 32*n}
        v_add_u32 v4, s28, v{VT}
        v_mul_u32_u24 v8, 2341, v4
        v_lshrrev_b32 v8, 16, v8
        v_mul_u32_u24 v6, 28, v8
        v_sub_u32 v6, v4, v6
        v_cmp_le_u32 s[{MS+2*n}:{MS+1+2*n}], 24, v6
        v_cmp_eq_u32 vcc, 24, v6
        v_mov_b32 v7, 0x3f803f80
        v_cndmask_b32 v{TMP+4*n}, 0, v7, vcc
        v_lshlrev_b32 v8, 18, v8
        v_lshl_add_u32 v8, v6, 4, v8
        v_lshl_add_u32 v{VA+n}, v{VH}, 9, v8""")
        for e in range(1, 4): a(f"v_mov_b32 v{TMP+4*n+e}, v{TMP+4*n}")
        if "touch" in EXP:
            a(f"""v_and_b32 v6, 7, v6
            v_cmp_eq_u32 vcc, 0, v6
            s_andn2_b64 exec, vcc, s[{MS+2*n}:{MS+1+2*n}]
            buffer_store_dword v{VZ}, v{VA+n}, s[8:11], s52 offen offset:2048 sc1
            buffer_store_dword v{VZ}, v{VA+n}, s[8:11], s52 offen offset:3072 sc1
            s_mov_b64 exec, -1""")
    for n in range(2):
        l = uid("Lnop")
        a(f"""s_mov_b64 exec, s[{MS+2*n}:{MS+1+2*n}]
        s_cbranch_execz {l}
        buffer_store_dwordx4 {vr(TMP+4*n,4)}, v{VA+n}, s[8:11], s52 offen offset:{2048+64} sc1
        buffer_store_dwordx4 {vr(TMP+4*n,4)}, v{VA+n}, s[8:11], s52 offen offset:{3072+64} sc1
        {l}:
        s_mov_b64 exec, -1""")
    gemm("V")
    for i in range(4):
        acc = (A0, A1)[i >> 1] + 8 * (i & 1)
        p = PK + 4 * i
        for e in range(4): a(f"v_cvt_pk_bf16_f32 v{p+e}, v{acc+2*e}, v{acc+2*e+1}")
        a(f"buffer_store_dwordx4 {vr(p,4)}, v{VA+(i>>1)}, s[8:11], s52 offen offset:{2048+1024*(i&1)} sc1")
    a.label("L_pub")
    st(a, 3)
    a(f"s_add_u32 s56, s{ROT}, 4\ns_cmp_ge_u32 s56, 7\ns_cselect_b32 s26, 7, 0\ns_sub_u32 s56, s56, s26")
    for i in range(4, 7):
        a(f"""s_mul_i32 s26, s56, {64*2688}
        s_add_u32 m0, s63, {i*4096}
        s_add_u32 s26, s26, s62
        buffer_load_dwordx4 v{VWQ}, s[16:19], s26 offen lds""")
        if i < 6: next_chunk(a, 56)
    QO = Q + 8 * OWN
    SK = TMP
    a(f"""s_lshl_b32 s53, s{H}, 18
    s_add_u32 s16, s36, s53
    s_addc_u32 s17, s37, 0
    s_mov_b32 s18, {1<<18}
    s_mov_b32 s19, 0x20000
    s_mov_b32 s57, 0""")
    def ldK(b, soff):
        return [f"buffer_load_dwordx4 {vr(KV+16*b,4)}, v1, s[16:19], {soff} offen sc1",
                f"buffer_load_dwordx4 {vr(KV+16*b+4,4)}, v1, s[16:19], {soff} offen offset:1024 sc1"]
    def ldV(b, soff):
        return [f"buffer_load_dwordx4 {vr(KV+16*b+8,4)}, v1, s[16:19], {soff} offen offset:2048 sc1",
                f"buffer_load_dwordx4 {vr(KV+16*b+12,4)}, v1, s[16:19], {soff} offen offset:3072 sc1"]
    def try_loads(block=False):
        d = uid("Ltl"); l = uid("Ltr")
        a(f"s_cmp_lg_u32 s57, 0\ns_cbranch_scc1 {d}")
        if block: a(f"s_mov_b32 s60, {SPIN_LIMIT}\n{l}:\ns_sub_u32 s60, s60, 1\ns_cbranch_scc1 L_exit")
        a(f"""ds_read_b32 v4, v{VF} offset:{C_R}
        ds_read_b32 v5, v{VC} offset:{C_R}
        s_waitcnt lgkmcnt(0)
        v_readfirstlane_b32 s56, v4
        v_readfirstlane_b32 s29, v5
        s_min_u32 s57, s56, s29
        s_cmp_eq_u32 s57, 0
        s_cbranch_scc1 {l if block else d}
        s_sub_u32 s29, s29, 1
        s_sub_u32 s27, s56, 1
        s_add_u32 s54, s56, 4095
        s_add_u32 s55, s56, 8191
        s_add_u32 s56, s56, 12287""")
        st(a, 6)
        a(f"""buffer_load_dwordx4 {vr(SK,4)}, v1, s[16:19], s29 offen sc1
        buffer_load_dwordx4 {vr(SK+4,4)}, v1, s[16:19], s29 offen offset:1024 sc1""")
        for x in ldK(0, "s27") + ldV(0, "s27") + ldK(1, "s54") + ldV(1, "s54"): a(x)
        a(f"{d}:")
    def qreads(k):
        f = WF + 4 * (k & 7)
        a(f"ds_read_b64_tr_b16 {vr(f,2)}, v{VQ} offset:{k*1024}\nds_read_b64_tr_b16 {vr(f+2,2)}, v{VQ} offset:{k*1024+256}")
    for lo, hi, cnt in ((0, 16, C_Q1), (16, 28, C_Q2)):
        if lo:
            a(f"""s_mov_b32 s28, {WS_MB}
            v_readfirstlane_b32 s{T}, v11
            v_mov_b32 v6, v11
            s_mov_b64 exec, 1
            s_waitcnt vmcnt(3)""")
            st(a, 4)
            a(f"""ds_add_rtn_u32 v4, v{VC}, v{V1} offset:{C_D}
            s_waitcnt lgkmcnt(0)
            v_cmp_eq_u32 vcc, 3, v4
            s_cbranch_vccz L_notlast
            s_mov_b64 exec, s[64:65]
            s_cbranch_execz L_notlast
            buffer_atomic_swap v6, v{VFS}, s[8:11], s28 offen sc1
            s_waitcnt vmcnt(1)
            s_branch L_published
            L_notlast:
            s_waitcnt vmcnt(0)
            s_cmp_lg_u32 s{RL}, 14
            s_cbranch_scc1 L_published
            s_mov_b32 s26, {WS_G}
            s_mov_b32 exec_lo, -1
            buffer_store_dwordx2 v[10:11], v9, s[8:11], s26 offen sc1
            L_published:""")
            lds_inc(a, VC, C_Q2, V1)
            try_loads()
        spin_lds(a, VC, cnt, 4, 4)
        if not lo: a(f"ds_read_b32 v11, v{VC} offset:{C_T}")
        for k in range(lo, lo + 6): qreads(k)
        for k in range(lo, hi):
            if k + 6 < hi: qreads(k + 6)
            a(f"s_waitcnt lgkmcnt({2*(min(hi-1,k+6)-k)})")
            a(f"{MF} {vr(A0,16)}, {vr(WF+4*(k&7),4)}, {vr(XF+4*k,4)}, {'0' if k==0 else vr(A0,16)}")
    st(a, 5)
    try_loads()
    for i in range(8): a(f"v_mov_b32 v{P+8+i}, 0")
    a(f"""s_lshl_b32 s26, s{W}, 11
    s_add_u32 s26, s26, {QX}
    v_add_u32 v5, s26, v1
    s_mov_b32 s62, {QSCALE:#x}
    s_mov_b32 s63, {QSCALE:#x}""")
    for i in range(8): a(f"v_pk_mul_f32 {vr(A0+2*i,2)}, {vr(A0+2*i,2)}, s[62:63]")
    for i in range(8): a(f"v_cvt_pk_bf16_f32 v{QO+i}, v{A0+2*i}, v{A0+2*i+1}")
    a(f"""s_mov_b32 exec_lo, 0
    v_mov_b32 v{QO+6}, 0
    v_mov_b32 v{QO+7}, 0
    s_mov_b32 exec_lo, -1
    ds_write_b128 v5, {vr(QO,4)}
    ds_write_b128 v5, {vr(QO+4,4)} offset:1024""")
    lds_inc(a, VC, C_X, V1)
    for i in range(0, 64, 2): a(f"v_pk_mul_f32 {vr(O+i,2)}, {vr(P+8,2)}, {vr(P+8,2)}")
    spin_lds(a, VC, C_X, 4, 4)
    for i in range(3):
        a(f"""s_add_u32 s26, s{W}, {i+1}
        s_and_b32 s26, s26, 3
        s_lshl_b32 s26, s26, 11
        s_add_u32 s26, s26, {QX}
        v_add_u32 v5, s26, v1
        ds_read_b128 {vr(Q+8*i,4)}, v5
        ds_read_b128 {vr(Q+8*i+4,4)}, v5 offset:1024""")
    try_loads(block=True)
    def QK(u, m):
        kt, qs = (u >> 2) & 3, u & 3
        s = S + 16 * (u & 1)
        c = "0" if m == 0 else vr(s, 16)
        return f"{MF} {vr(s,16)}, {vr(KV+16*kt+4*m,4)}, {vr(Q+8*qs+4*m,4)}, {c}"
    def PV(u, m):
        kt, qs = (u >> 2) & 3, u & 3
        return f"{MF} {vr(O+16*qs,16)}, {vr(KV+16*kt+8+4*m,4)}, {vr(P+8*(u&1)+4*m,4)}, {vr(O+16*qs,16)}"
    SS = [S, S + 16, KV + 32, KV + 48]
    def samp(i, m): return f"{MF} {vr(SS[i],16)}, {vr(SK+4*m,4)}, {vr(Q+8*i+4*m,4)}, {'0' if m == 0 else vr(SS[i],16)}"
    def mx(i):
        for x in max16_list(4, SS[i]): a(x)
        a(f"s_mov_b32 exec_lo, 0\nv_cvt_pk_bf16_f32 v{Q+8*i+6}, -v4, 0\ns_mov_b32 exec_lo, -1")
    a("s_waitcnt vmcnt(8) lgkmcnt(0)")
    for i in range(4): a(samp(i, 0)); a(samp(i, 1))
    mx(0)
    a("s_waitcnt vmcnt(4)")
    a(QK(0, 0)); a(QK(0, 1))
    mx(1); mx(2)
    for x in ldK(2, "s55") + ldV(2, "s55"): a(x)
    mx(3)
    for x in ldK(3, "s56"): a(x)
    for i in range(0, 8, 2): a(f"v_pk_mul_f32 {vr(KV+56+i,2)}, {vr(P+8,2)}, {vr(P+8,2)}")
    for i in range(3):
        a(f"""s_add_u32 s26, s{W}, {i+1}
        s_and_b32 s26, s26, 3
        s_mul_i32 s26, s26, 12288
        s_add_u32 s26, s26, {CB + i*4096}
        v_add_u32 v{4+i}, s26, v1""")
    a(f"s_mul_i32 s26, s{W}, 12288\ns_add_u32 s26, s26, {CB}\nv_add_u32 v2, s26, v1")
    lds_inc(a, VC, C_L, V1)
    st(a, 7)
    a("s_mov_b32 s57, 3")
    def substep(u, ex, last=False):
        s = S + 16 * (u & 1); p = P + 8 * (u & 1)
        e = lambda i: f"v_exp_f32 v{s+i}, v{s+i}"
        c = lambda i: f"v_cvt_pk_bf16_f32 v{p+i}, v{s+2*i}, v{s+2*i+1}"
        q0, q1 = ([], []) if last else ([QK(u+1, 0)], [QK(u+1, 1)])
        seq = q0 + ex[0] + [e(0), e(1), e(2), e(3), c(0), e(4),
               PV(u-1, 0)] + ex[1] + [e(5), c(1), e(6), e(7), c(2), e(8)] + q1 + ex[2] + [e(9), c(3), e(10), e(11), c(4), e(12),
               PV(u-1, 1)] + ex[3] + [e(13), c(5), e(14), e(15), c(6), c(7)]
        for x in seq: a(x)
    a(".p2align 6")
    a.label("L_loop")
    for u in range(16):
        kt, qs = u >> 2, u & 3
        ex = [[], [], [], []]
        if qs == 1:
            l = ldV((kt + 3) & 3, "s56")
            ex[0] = [l[0]]; ex[1] = [l[1]]; ex[2] = ["s_add_u32 s56, s56, 4096"]
        if u == 0: ex[0] = [f"ds_read_b32 v7, v{VF} offset:{C_R+4}"]
        if u == 1:
            ex[2] = ["s_waitcnt lgkmcnt(0)", "v_readfirstlane_b32 s56, v7"]
            ex[3] = ["s_sub_u32 s56, s56, 1"]
        if u == 2:
            ex[0] = ["s_cbranch_scc1 L_nextwait", "L_nextok:", f"v_add_u32 v{VF}, 4, v{VF}"]
        if qs == 2 and "nowait" not in EXP: ex[3] = ["s_waitcnt vmcnt(10)"]
        if qs == 0 and "nowait" not in EXP: ex[3] = ["s_waitcnt vmcnt(10)"]
        if qs == 3:
            l = ldK(kt, "s56")
            ex[0] = [l[0]]; ex[1] = [l[1]]
        if u == 12: ex[0] = [f"ds_read_b32 v7, v{VC} offset:{C_F}"]
        if u == 13: ex[3] = ["s_sub_u32 s57, s57, 1"]
        if "itst" in EXP and u in (0, 8):
            a("s_waitcnt lgkmcnt(0)")
            for i in range(1, 6): a(f"s_mov_b32 s{72+2*i}, s{72+2*i+2}")
            a("s_memtime s[84:85]")
        if "noload" in EXP: ex = [[y for y in x if "buffer_load" not in y] for x in ex]
        substep(u, ex)
        if u == 13: a("s_cbranch_scc1 L_tail")
    a("s_branch L_loop")
    a.label("L_tail")
    st(a, 8)
    a(f"""s_waitcnt lgkmcnt(0)
    v_cmp_gt_u32 vcc, 4, v7
    s_cbranch_vccnz L_wait_ffn
    L_ffn_free:""")
    wr = lambda i, k: f"ds_write_b128 v{4+i}, {vr(O+16*i+4*k,4)} offset:{k*1024}"
    substep(14, [[], [wr(0, 0)], [wr(0, 1)], [wr(0, 2)]])
    substep(15, [[wr(0, 3)], [wr(1, 0)], [wr(1, 1)], [wr(1, 2)]], last=True)
    a(PV(15, 0)); a(wr(1, 3)); a(PV(15, 1))
    for k in range(4): a(wr(2, k))
    lds_inc(a, VC, C_C, V1)
    srd(a, 20, 50, 2048 * 896)
    TT = S
    OO = O + 16 * OWN
    a(f"""s_lshl_b32 s28, s35, 4
    s_add_u32 s28, s28, s{H}
    s_lshr_b32 s56, s28, 2
    s_lshl_b32 s56, s56, 5
    s_and_b32 s26, s{H}, 3
    s_add_u32 s56, s56, s26
    s_lshl_b32 s56, s56, 2
    s_add_u32 s56, s56, {WS_OFL}
    s_lshl_b32 s52, s28, 11
    s_add_u32 s52, s52, {WS_O}
    s_mov_b32 s57, 0""")
    spin_lds(a, VC, C_C, 4, 7)
    for k in range(12): a(f"ds_read_b128 {vr(TT+4*k,4)}, v2 offset:{k*1024}")
    a(f"s_lshl_b32 s26, s{W}, 2\nv_add_u32 v7, s26, v{VC}\nds_write_b32 v7, v{V1} offset:{C_P}")
    for i in range(3):
        a(f"s_waitcnt lgkmcnt({9-4*i})")
        for k in (6, 7, 0, 1, 2, 3, 4, 5): a(f"v_pk_add_f32 {vr(OO+2*k,2)}, {vr(OO+2*k,2)}, {vr(TT+16*i+2*k,2)}")
    a.label("L_fin")
    a(f"""v_mov_b32 v5, v{OO+12}
    v_mov_b32 v4, v{OO+12}
    s_mov_b32 exec_lo, 0
    v_mov_b32 v{OO+12}, 0
    s_mov_b32 exec_lo, -1
    v_permlane32_swap_b32 v5, v4
    v_rcp_f32 v6, v4
    s_mov_b32 s28, 0x30800000
    s_mov_b32 s29, 0x4e800000
    v_cmp_nle_f32 s[54:55], s28, v4
    v_cmp_nge_f32 s[62:63], s29, v4
    v_pk_add_f32 v[4:5], {vr(OO,2)}, {vr(OO+2,2)}""")
    for k in range(2, 8): a(f"v_pk_add_f32 v[4:5], v[4:5], {vr(OO+2*k,2)}")
    a(f"""v_add_f32 v4, v4, v5
    s_movk_i32 s28, 0x207
    v_cmp_class_f32 vcc, v4, s28
    s_or_b64 s[54:55], s[54:55], s[62:63]""")
    for k in range(8): a(f"v_pk_mul_f32 {vr(OO+2*k,2)}, {vr(OO+2*k,2)}, v[6:7] op_sel_hi:[1,0]")
    for k in range(8): a(f"v_cvt_pk_bf16_f32 v{Q+k}, v{OO+2*k}, v{OO+2*k+1}")
    a(f"""v_mov_b32 v6, s{T}
    s_or_b64 s[54:55], s[54:55], vcc
    s_cbranch_scc1 L_bad
    L_good:
    buffer_store_dwordx4 {vr(Q,4)}, v1, s[8:11], s52 offen sc1
    buffer_store_dwordx4 {vr(Q+4,4)}, v1, s[8:11], s52 offen offset:1024 sc1
    s_mov_b64 exec, 1
    buffer_atomic_swap v6, v{VZ}, s[8:11], s56 offen sc1
    s_mov_b64 exec, -1""")
    st(a, 9)
    a(f"""s_mov_b32 s26, {WS_G}
    buffer_load_dwordx2 {vr(GR,2)}, v{VGO}, s[8:11], s26 offen sc1
    buffer_load_dwordx4 {vr(XR,4)}, v{VXO}, s[12:15], s59 offen
    buffer_load_dwordx4 {vr(XR+4,4)}, v{VXO}, s[12:15], s59 offen offset:32""")
    WOF = 104; B = 232; ACC = 8; U = 40
    OSB = [40, 72]
    a(f"""v_bfe_u32 v4, v3, 2, 2
    v_lshl_add_u32 v4, v{VH}, 2, v4
    v_mul_u32_u24 v4, 224, v4
    v_bfe_u32 v5, v3, 4, 1
    v_lshl_add_u32 v4, v5, 5, v4
    v_and_b32 v5, 1, v3
    v_lshl_add_u32 v4, v5, 4, v4
    v_bfe_u32 v5, v3, 1, 1
    v_lshl_add_u32 v4, v5, 3, v4
    s_mul_i32 s28, s{W}, 56
    v_add_u32 v24, s28, v4
    v_add_u32 v25, {8*28*224}, v24
    v_add_u32 v26, {CB}, v1
    v_lshlrev_b32 v27, 2, v{VT}
    v_add_u32 v27, {UPDI}, v27
    s_mul_i32 s28, s{W}, 112
    s_add_u32 s28, s28, {UPD}
    v_lshl_add_u32 v28, v{VH}, 5, s28
    v_mov_b32 v29, {CNT}
    v_mov_b32 v30, 0
    v_mov_b32 v31, 0
    s_waitcnt vmcnt(6)""")
    spin_lds(a, 29, C_W, 2, 6)
    for k in range(32):
        hd, m = k >> 1, k & 1
        o = (28 * (hd & 7) + 16 * m) * 224
        b = 24 + (hd >> 3)
        a(f"ds_read_b64_tr_b16 {vr(WOF+4*k,2)}, v{b} offset:{o}\nds_read_b64_tr_b16 {vr(WOF+4*k+2,2)}, v{b} offset:{o+8*224}")
    for k in range(8): a(f"v_pk_mul_f32 {vr(ACC+2*k,2)}, v[30:31], v[30:31]")
    a("s_waitcnt vmcnt(0)")
    for k in range(8):
        a(f"v_lshlrev_b32 v{B+2*k}, 16, v{XR+k}\nv_and_b32 v{B+2*k+1}, 0xffff0000, v{XR+k}")
    a(f"""v_cmp_ne_u32 vcc, s{T}, v{GR+1}
    s_cbranch_vccnz L_gate
    L_gate_ok:
    v_sub_f32 v32, 1.0, v{GR}
    v_cvt_pk_bf16_f32 v32, v32, v32
    v_lshlrev_b32 v32, 16, v32
    s_movk_i32 s57, 0x40f
    s_mov_b32 s60, {SPIN_LIMIT}""")
    if "twait" not in EXP: st(a, 10)
    def rd(p):
        a(f"""s_ff1_i32_b32 s27, s26
        s_bitset0_b32 s57, s27
        s_mul_i32 s28, s27, 12288
        v_add_u32 v7, s28, v26""")
        for k in range(8): a(f"ds_read_b128 {vr(OSB[p]+4*k,4)}, v7 offset:{k*1024}")
    a(f"""L_idle:
    ds_read_b32 v6, v29 offset:{C_O}
    s_sub_u32 s60, s60, 1
    s_cbranch_scc1 L_exit
    s_waitcnt lgkmcnt(0)
    v_readfirstlane_b32 s61, v6
    s_and_b32 s26, s61, s57
    s_cbranch_scc0 L_idle
    s_bitcmp1_b32 s26, 10
    s_cbranch_scc1 L_blkU""")
    rd(0)
    a(f"ds_read_b32 v6, v29 offset:{C_O}")
    for p in range(2):
        a(f"""L_st{p}:
        s_mov_b32 s29, s27
        s_waitcnt lgkmcnt(0)
        v_readfirstlane_b32 s61, v6
        s_and_b32 s26, s61, s57
        s_and_b32 s26, s26, 15
        s_cbranch_scc0 L_mm{p}""")
        rd(1 - p)
        a(f"""ds_read_b32 v6, v29 offset:{C_O}
        L_mm{p}:
        s_cmp_eq_u32 s29, 1
        s_cbranch_scc1 L_m{p}1
        s_cmp_eq_u32 s29, 2
        s_cbranch_scc1 L_m{p}2
        s_cmp_eq_u32 s29, 3
        s_cbranch_scc1 L_m{p}3""")
        for g in range(4):
            a(f"L_m{p}{g}:")
            for k in range(8):
                a(f"{MF} {vr(ACC,16)}, {vr(WOF+32*g+4*k,4)}, {vr(OSB[p]+4*k,4)}, {vr(ACC,16)}")
            if g < 3: a(f"s_branch L_md{p}")
        a(f"""L_md{p}:
        s_cmp_lg_u32 s26, 0
        s_cbranch_scc1 L_st{1-p}""")
        if p == 0: a("s_branch L_next")
    a("L_next:\ns_cmp_lg_u32 s57, 0\ns_cbranch_scc1 L_idle")
    if "twait" not in EXP: st(a, 11)
    a("s_nop 7")
    for m in range(2):
        for e in range(4*m, 4*m+4):
            a(f"v_pk_fma_f32 {vr(B+2*e,2)}, {vr(ACC+2*e,2)}, {vr(GR,2)}, {vr(B+2*e,2)} op_sel_hi:[1,0,1]")
        for e in range(4*m, 4*m+4): a(f"v_cvt_pk_bf16_f32 v{40+e}, v{B+2*e}, v{B+2*e+1}")
        if m == 0:
            a(f"buffer_store_dwordx4 v[40:43], v{VXO}, s[20:23], s59 offen{OUTAUX}")
        else:
            a(f"""s_mov_b32 exec_hi, 0
            buffer_store_dwordx4 v[44:47], v{VXO}, s[20:23], s59 offen offset:32{OUTAUX}
            s_mov_b64 exec, 0xffffffff
            s_not_b64 exec, exec
            buffer_store_dwordx2 v[44:45], v{VXO}, s[20:23], s59 offen offset:32{OUTAUX}""")
    st_end(a)
    diag_end(a)
    a("s_endpgm")
    a(f"""L_blkU:
    ds_read_b32 v6, v27
    s_bitset0_b32 s57, 10
    s_waitcnt lgkmcnt(0)
    v_cmp_le_i32 vcc, 0, v6
    s_cbranch_vccz L_noupd
    s_mov_b64 exec, vcc
    v_mul_u32_u24 v6, 448, v6
    v_add_u32 v28, v28, v6""")
    for k in range(4): a(f"ds_read_b128 {vr(U+4*k,4)}, v28 offset:{64*(k>>1)+16*(k&1)}")
    a("s_waitcnt lgkmcnt(0)")
    for k in range(8):
        a(f"""v_pk_add_f32 {vr(B+2*k,2)}, {vr(B+2*k,2)}, {vr(U+2*k,2)}
        v_cvt_pk_bf16_f32 v{B+2*k}, v{B+2*k}, v{B+2*k+1}
        v_and_b32 v{B+2*k+1}, 0xffff0000, v{B+2*k}
        v_lshlrev_b32 v{B+2*k}, 16, v{B+2*k}""")
    a("s_mov_b64 exec, -1\nL_noupd:")
    for k in range(8): a(f"v_pk_mul_f32 {vr(B+2*k,2)}, {vr(B+2*k,2)}, v[32:33] op_sel_hi:[1,0]")
    a("s_branch L_next")
    a("L_bad:\ns_cmp_eq_u32 s57, 0\ns_cbranch_scc1 L_slow")
    for k in range(8): a(f"v_min_u32 v{Q+k}, -2, v{Q+k}")
    a("s_branch L_good")
    a.label("L_wait_ffn")
    spin_lds(a, VC, C_F, 4, 7)
    a("s_branch L_ffn_free")
    a.label("L_nextwait")
    spin_lds(a, VF, C_R + 4, 1, 7)
    a("s_sub_u32 s56, s61, 1\ns_branch L_nextok")
    a(f"""L_gate:
    s_mov_b32 s26, {WS_G}
    s_mov_b32 s60, {SPIN_LIMIT}
    L_gate1:
    buffer_load_dwordx2 {vr(GR,2)}, v{VGO}, s[8:11], s26 offen sc1
    s_waitcnt vmcnt(0)
    v_cmp_ne_u32 vcc, s{T}, v{GR+1}
    s_cbranch_vccz L_gate_ok
    s_sub_u32 s60, s60, 1
    s_cbranch_scc0 L_gate1
    s_endpgm""")
    a.label("L_slow")
    a(f"""s_mov_b32 s57, 1
    s_add_u32 s55, s53, {64*4096}
    s_mov_b32 s54, s53
    s_mov_b32 exec_lo, 0
    v_mov_b32 v{QO+6}, 0
    v_mov_b32 v{QO+7}, 0
    s_mov_b32 exec_lo, -1
    v_mov_b32 v4, 0xff800000
    L_slow1:
    buffer_load_dwordx4 {vr(KV,4)}, v1, s[8:11], s54 offen sc1
    buffer_load_dwordx4 {vr(KV+4,4)}, v1, s[8:11], s54 offen offset:1024 sc1
    s_waitcnt vmcnt(0)
    {MF} {vr(S,16)}, {vr(KV,4)}, {vr(QO,4)}, 0
    {MF} {vr(S,16)}, {vr(KV+4,4)}, {vr(QO+4,4)}, {vr(S,16)}""")
    for x in max16_list(4, S, init=True): a(x)
    a("""s_add_u32 s54, s54, 4096
    s_cmp_lt_u32 s54, s55
    s_cbranch_scc1 L_slow1
    v_mov_b32 v5, v4
    v_permlane32_swap_b32 v4, v5
    v_max_f32 v4, v4, v5""")
    split_neg_max(a, 4, 5, 6, QO + 6, QO + 7)
    for i in range(16): a(f"v_mov_b32 v{OO+i}, 0")
    a(f"""s_mov_b32 s54, s53
    L_slow2:
    buffer_load_dwordx4 {vr(KV,4)}, v1, s[8:11], s54 offen sc1
    buffer_load_dwordx4 {vr(KV+4,4)}, v1, s[8:11], s54 offen offset:1024 sc1
    buffer_load_dwordx4 {vr(KV+8,4)}, v1, s[8:11], s54 offen offset:2048 sc1
    buffer_load_dwordx4 {vr(KV+12,4)}, v1, s[8:11], s54 offen offset:3072 sc1
    s_waitcnt vmcnt(0)
    {MF} {vr(S,16)}, {vr(KV,4)}, {vr(QO,4)}, 0
    {MF} {vr(S,16)}, {vr(KV+4,4)}, {vr(QO+4,4)}, {vr(S,16)}""")
    for i in range(16): a(f"v_exp_f32 v{S+i}, v{S+i}")
    for i in range(8): a(f"v_cvt_pk_bf16_f32 v{P+i}, v{S+2*i}, v{S+2*i+1}")
    a(f"""{MF} {vr(OO,16)}, {vr(KV+8,4)}, {vr(P,4)}, {vr(OO,16)}
    {MF} {vr(OO,16)}, {vr(KV+12,4)}, {vr(P+4,4)}, {vr(OO,16)}
    s_nop 7
    s_nop 7
    s_add_u32 s54, s54, 4096
    s_cmp_lt_u32 s54, s55
    s_cbranch_scc1 L_slow2
    s_branch L_fin""")

def service_wave(a):
    a.label("L_service")
    a(f"""v_mov_b32 v14, {CNT}
    v_mov_b32 v15, 1
    v_mov_b32 v9, 0""")
    srd(a, 8, 36, (1 << 28) - WSBASE)
    a("s_waitcnt lgkmcnt(0)")
    tag(a)
    a(f"v_mov_b32 v4, s{T}\nds_write_b32 v14, v4 offset:{C_T}\ns_waitcnt vmcnt(0)")
    lds_inc(a, 14, C_Q1, 15)
    a(f"""v_and_b32 v32, 31, v3
    v_lshrrev_b32 v33, 5, v3
    v_lshlrev_b32 v219, 3, v1
    v_lshrrev_b32 v220, 2, v1
    v_and_b32 v4, 7, v3
    v_lshlrev_b32 v217, 3, v4
    s_lshr_b32 s58, s{H}, 2
    s_lshl2_add_u32 s58, s{J}, s58
    s_cmp_ge_u32 s{L}, 2
    s_cbranch_scc1 L_svcB""")
    def sel_load(lbl):
        a(f"""s_mov_b32 s26, {WS_SEL}
        s_mov_b32 s60, {SPIN_LIMIT}
        {lbl}:
        buffer_load_dwordx2 v[20:21], v217, s[8:11], s26 offen sc1
        s_waitcnt vmcnt(0)
        v_cmp_ne_u32 vcc, s{T}, v21
        s_cbranch_vccz {lbl}_ok
        s_sleep 4
        s_sub_u32 s60, s60, 1
        s_cbranch_scc0 {lbl}
        s_endpgm
        {lbl}_ok:""")
    a(f"""v_mov_b32 v6, {KEYS}
    s_lshl_b32 s28, s{L}, 8
    v_add3_u32 v7, v220, v6, s28
    s_lshl_b32 s27, s{J}, 6
    s_add_u32 s27, s27, {WS_R}
    s_cmp_eq_u32 s{RL}, 14
    s_cbranch_scc1 L_rank
    s_cmp_lg_u32 s2, {SELECTOR}
    s_cbranch_scc1 L_svcA
    s_lshl_b32 s26, s{L}, 9
    s_add_u32 s26, s26, {WS_R}
    s_mov_b32 s27, {WS_SEL}
    v_lshlrev_b32 v4, 3, v3
    v_mov_b32 v5, 2
    s_mov_b32 s60, {SPIN_LIMIT}
    L_keys:
    v_mov_b32 v20, 0
    v_mov_b32 v21, 0
    buffer_atomic_or_x2 v[20:21], v4, s[8:11], s26 offen sc0 sc1
    s_sub_u32 s60, s60, 1
    s_cbranch_scc1 L_exit
    s_waitcnt vmcnt(0)
    v_cmp_ne_u32 vcc, s{T}, v21
    s_cbranch_vccnz L_keys
    ds_write_b32 v7, v20""")
    lds_inc(a, 14, C_K, 5)
    a.label("L_rank")
    spin_lds(a, 14, C_K, 4, 8)
    st(a, 10)
    if STAMP: a("s_waitcnt lgkmcnt(0)")
    a(f"ds_read_b32 v20, v7\nv_mov_b32 v22, 0\nv_mov_b32 v21, s{T}\ns_mov_b32 s57, 0\nL_rk:")
    for k in range(8): a(f"ds_read_b128 {vr(40+4*k,4)}, v6 offset:{16*k}")
    a("v_add_u32 v6, 128, v6")
    CS = ["s[52:53]", "s[54:55]", "s[62:63]", "s[28:29]"]
    for k in range(8):
        a(f"s_waitcnt lgkmcnt({7-k})")
        for e in range(4): a(f"v_cmp_gt_u32 {CS[e]}, v{40+4*k+e}, v20")
        for e in range(4): a(f"v_addc_co_u32 v22, vcc, 0, v22, {CS[e]}")
    a(f"""s_add_u32 s57, s57, 1
    s_cmp_lt_u32 s57, 4
    s_cbranch_scc1 L_rk
    v_cmp_gt_u32 vcc, 8, v22
    v_lshlrev_b32 v22, 3, v22
    s_mov_b64 exec, vcc
    s_cbranch_execz L_rank_done
    buffer_atomic_swap_x2 v[20:21], v22, s[8:11], s27 offen sc1
    L_rank_done:
    s_mov_b64 exec, -1""")
    st(a, 11)
    a.label("L_svcA")
    GI = CB; DI = QX; HB = 101376
    FT, KS = 56, 59
    a(f"""s_cmp_ge_u32 s2, 196
    s_cbranch_scc1 L_nofn
    s_mul_i32 s{FT}, s2, 9363
    s_lshr_b32 s{FT}, s{FT}, 16
    s_mul_i32 s26, s{FT}, 7
    s_sub_u32 s{KS}, s2, s26
    v_lshrrev_b32 v4, 3, v3
    v_and_b32 v5, 2, v4
    v_lshlrev_b32 v5, 1, v5
    v_and_b32 v6, 7, v3
    v_xor_b32 v5, v5, v6
    v_mul_u32_u24 v6, 3584, v4
    v_lshl_add_u32 v34, v5, 4, v6
    v_add_u32 v35, {8*3584-1024}, v34
    v_add_u32 v36, {2*(8*3584-1024)}, v34
    v_add_u32 v37, {3*(8*3584-1024)}, v34
    v_lshrrev_b32 v6, 2, v3
    v_mul_u32_u24 v6, 896, v6
    v_and_b32 v5, 3, v3
    v_lshl_add_u32 v200, v5, 4, v6
    v_add_u32 v201, {16*896-1024}, v200
    v_add_u32 v202, {2*(16*896-1024)}, v200
    v_add_u32 v203, {3*(16*896-1024)}, v200
    ; transposing-read base: (8hh + r)*128 + ((r>>1)&1)*64 + colhalf*32 + c*8
    v_bfe_u32 v4, v3, 2, 2
    v_lshl_add_u32 v5, v33, 3, v4
    v_lshlrev_b32 v5, 7, v5
    v_lshrrev_b32 v4, 1, v4
    v_lshl_add_u32 v5, v4, 6, v5
    v_bfe_u32 v4, v3, 4, 1
    v_lshl_add_u32 v5, v4, 5, v5
    v_and_b32 v4, 3, v3
    v_lshl_add_u32 v5, v4, 3, v5
    s_lshl_b32 s54, s{L}, 13
    s_add_u32 s54, s54, {GI}
    v_add_u32 v38, s54, v5
    v_xor_b32 v39, 64, v38
    v_lshrrev_b32 v6, 7, v5
    v_and_b32 v5, 63, v5
    v_lshl_add_u32 v5, v6, 6, v5
    s_lshl_b32 s26, s{L}, 12
    s_add_u32 s26, s26, {DI}
    v_add_u32 v210, s26, v5
    ; partial-sum store offset 4hh*256 + col*4 ; h addresses ; y offsets
    v_lshlrev_b32 v212, 10, v33
    v_lshl_add_u32 v212, v32, 2, v212
    s_lshl_b32 s26, s{L}, 9
    s_add_u32 s26, s26, {HB}
    v_lshl_add_u32 v214, v3, 3, s26
    v_lshlrev_b32 v4, 4, v217
    v_lshl_add_u32 v4, v33, 4, v4
    v_add_u32 v218, {HB}, v4
    v_mul_u32_u24 v215, {4*1792}, v33
    v_lshl_add_u32 v215, v32, 2, v215
    v_add_u32 v216, {2*1792}, v215""")
    srd(a, 16, 42, 448 * 3584)
    a(f"""s_cmp_eq_u32 s{L}, 1
    s_cselect_b64 s[16:17], s[44:45], s[42:43]
    s_mul_i32 s52, s{KS}, {64*3584}
    s_lshl_b32 s28, s{FT}, 7
    s_add_u32 s52, s52, s28""")
    spin_lds(a, 14, C_L, 4, 8, sleep=2)
    st(a, 3)
    NR = 2 if "fine" in EXP else 4
    XS_ = 40; FW = 56; AC = 104
    a("s_mov_b32 m0, s54\ns_nop 0")
    for k in range(8):
        if k == 4: a(f"s_add_u32 s52, s52, {32*3584}\ns_add_u32 m0, s54, 4096")
        if k == 8 - NR: sel_load("L_sel1")
        elif k and k % NR == 0: a("s_waitcnt vmcnt(0)")
        a(f"buffer_load_dwordx4 v{34+(k&3)}, s[16:19], s52 offen offset:{1024*(k&3)} lds")
    a(f"""v_and_b32 v4, 0xffff, v20
    v_sub_u32 v4, 0xffff, v4
    v_mul_u32_u24 v4, 896, v4
    v_lshl_add_u32 v4, v33, 4, v4
    s_lshl_b32 s26, s{KS}, 7
    s_mov_b32 exec_lo, 0xff
    s_mov_b32 exec_hi, 0xff""")
    for k in range(4):
        a(f"buffer_load_dwordx4 {vr(XS_+4*k,4)}, v4, s[12:15], s26 offen offset:{32*k}")
    a("s_mov_b64 exec, -1\ns_waitcnt vmcnt(4)")
    for k in range(4):
        for n in range(2):
            a(f"ds_read_b64_tr_b16 {vr(FW+8*k+4*n,2)}, v{38+n} offset:{k*2048}\nds_read_b64_tr_b16 {vr(FW+8*k+4*n+2,2)}, v{38+n} offset:{k*2048+512}")
    lds_inc(a, 14, C_F, 15)
    a(f"""s_mov_b64 s[16:17], s[46:47]
    s_mul_i32 s28, s{FT}, {64*896}
    s_add_u32 s28, s28, s26
    s_lshl_b32 s29, s{L}, 6
    s_add_u32 s28, s28, s29
    s_lshl_b32 s29, s{L}, 12
    s_add_u32 m0, s29, {DI}
    s_lshl1_add_u32 s26, s2, s{L}
    s_lshl_b32 s26, s26, 11
    s_add_u32 s26, s26, {WS_GP}
    s_waitcnt lgkmcnt(0)""")
    st(a, 4)
    for k in range(4):
        a(f"s_waitcnt vmcnt({3-k})")
        for n in range(2):
            a(f"{MF} {vr(AC+16*n,16)}, {vr(XS_+4*k,4)}, {vr(FW+8*k+4*n,4)}, {'0' if k==0 else vr(AC+16*n,16)}")
    for n in range(2):
        for k in range(4):
            a(f"buffer_store_dword v{AC+16*n+k}, v212, s[8:11], s26 offen offset:{256*k+128*n} sc1")
    for k in range(4): a(f"buffer_load_dwordx4 v{200+k}, s[16:19], s28 offen offset:{1024*k} lds")
    a(f"""s_lshl1_add_u32 s26, s{KS}, s{L}
    s_lshl_b32 s26, s26, 2
    s_mul_i32 s28, s{FT}, {7*128}
    s_add_u32 s26, s26, s28
    s_add_u32 s26, s26, {WS_F1}
    s_waitcnt vmcnt(4)""")
    signal(a, 5, 219, "s26", "0x7f")
    st(a, 5)
    a(f"s_lshl_b32 s26, s2, 7\ns_add_u32 s26, s26, {WS_F1}")
    poll_atomic(a, 5, 220, "s26", "0x3fff", 0)
    st(a, 6)
    GP = 40
    a(f"s_mul_i32 s26, s{FT}, {7*4096}\ns_lshl_b32 s28, s{L}, 10\ns_add_u32 s26, s26, s28\ns_add_u32 s26, s26, {WS_GP}")
    for k in range(7):
        a(f"""buffer_load_dwordx4 {vr(GP+8*k,4)}, v1, s[8:11], s26 offen sc1
        buffer_load_dwordx4 {vr(GP+8*k+4,4)}, v1, s[8:11], s26 offen offset:2048 sc1""")
        if k < 6: a("s_add_u32 s26, s26, 4096")
    DW = 120
    for k in range(4):
        a(f"ds_read_b64_tr_b16 {vr(DW+4*k,2)}, v210 offset:{k*1024}\nds_read_b64_tr_b16 {vr(DW+4*k+2,2)}, v210 offset:{k*1024+256}")
    a(f"s_mov_b32 s28, {NLOG2E:#x}\ns_mov_b32 s29, {NLOG2E:#x}\ns_waitcnt vmcnt(0)")
    for k in range(1, 7):
        for e in range(4):
            a(f"v_pk_add_f32 {vr(GP+2*e,2)}, {vr(GP+2*e,2)}, {vr(GP+8*k+2*e,2)}")
    for e in range(2):
        a(f"""v_cvt_pk_bf16_f32 v22, v{GP+2*e}, v{GP+2*e+1}
        v_cvt_pk_bf16_f32 v24, v{GP+4+2*e}, v{GP+5+2*e}
        v_and_b32 v23, 0xffff0000, v22
        v_lshlrev_b32 v22, 16, v22
        v_pk_mul_f32 v[26:27], v[22:23], s[28:29]
        v_and_b32 v25, 0xffff0000, v24
        v_exp_f32 v26, v26
        v_exp_f32 v27, v27
        v_lshlrev_b32 v24, 16, v24
        v_pk_add_f32 v[26:27], v[26:27], 1.0 op_sel_hi:[1,0]
        v_rcp_f32 v26, v26
        v_rcp_f32 v27, v27
        s_nop 0
        v_pk_mul_f32 v[22:23], v[22:23], v[26:27]
        v_cvt_pk_bf16_f32 v22, v22, v23
        v_and_b32 v23, 0xffff0000, v22
        v_lshlrev_b32 v22, 16, v22
        v_pk_mul_f32 v[22:23], v[22:23], v[24:25]
        v_cvt_pk_bf16_f32 v{28+e}, v22, v23""")
    a("ds_write_b64 v214, v[28:29]")
    lds_inc(a, 14, C_S, 15)
    spin_lds(a, 14, C_S, 2, 8)
    for k in range(4): a(f"ds_read_b128 {vr(GP+4*k,4)}, v218 offset:{32*k}")
    for k in range(4):
        a(f"s_waitcnt lgkmcnt({3-k})\n{MF} {vr(AC,16)}, {vr(GP+4*k,4)}, {vr(DW+4*k,4)}, {'0' if k==0 else vr(AC,16)}")
    a(f"""s_mul_i32 s26, s{FT}, 14336
    s_lshl1_add_u32 s28, s{KS}, s{L}
    s_lshl_b32 s29, s28, 7
    s_add_u32 s26, s26, s29
    s_add_u32 s26, s26, {WS_YP}
    s_lshl2_add_u32 s28, s{FT}, s29
    s_add_u32 s28, s28, {WS_YFL}
    buffer_store_dword v{AC}, v215, s[8:11], s26 offen sc1
    buffer_store_dword v{AC+1}, v215, s[8:11], s26 offen offset:1792 sc1
    buffer_store_dword v{AC+2}, v216, s[8:11], s26 offen sc1
    buffer_store_dword v{AC+3}, v216, s[8:11], s26 offen offset:1792 sc1
    s_waitcnt vmcnt(0)""")
    signal(a, 5, 9, "s28", 1)
    st(a, 7)
    a("s_branch L_updA")
    a.label("L_nofn")
    lds_inc(a, 14, C_F, 15)
    spin_lds(a, 14, C_F, 4, 8, sleep=8)
    sel_load("L_sel2")
    a(f"""s_lshl2_add_u32 s26, s2, s{L}
    s_cmp_lg_u32 s26, {254*4}
    s_cbranch_scc1 L_updA""")
    a(f"s_mov_b32 s60, {SPIN_LIMIT}\nL_ep:")
    for k in range(4):
        a(f"s_mov_b32 s26, {WS_FL+8192*k}\nbuffer_load_dword v{24+k}, v219, s[8:11], s26 offen sc1")
    a(f"""s_sub_u32 s60, s60, 1
    s_cbranch_scc1 L_exit
    s_waitcnt vmcnt(0)
    v_xor_b32 v24, s{T}, v24
    v_bitop3_b32 v24, v24, v25, s{T} bitop3:0xf6
    v_bitop3_b32 v24, v24, v26, s{T} bitop3:0xf6
    v_bitop3_b32 v24, v24, v27, s{T} bitop3:0xf6
    v_cmp_ne_u32 vcc, 0, v24
    s_cbranch_vccnz L_ep
    s_mov_b32 s26, {WS_EP}""")
    flag_store(a, 5, 9, "s26")
    Y = 40
    a(f"""L_updA:
    s_and_b32 s53, s{H}, 3
    s_mul_i32 s53, s53, 224
    s_lshl_b32 s57, s{L}, 2
    s_lshr_b32 s26, s53, 6
    s_lshl_b32 s26, s26, 7
    s_add_u32 s62, s26, {WS_YFL}
    L_upd:
    v_readlane_b32 s52, v20, s57
    s_and_b32 s54, s52, 0xffff
    s_sub_u32 s54, 0xffff, s54
    s_lshr_b32 s26, s54, 5
    s_cmp_lg_u32 s26, s58
    s_cbranch_scc1 L_updn
    s_mov_b32 s60, {SPIN_LIMIT}
    s_mov_b32 exec_lo, 0x0fffffff
    s_mov_b32 exec_hi, 0x0fffffff
    L_yfl:
    v_mov_b32 v24, 0
    v_mov_b32 v25, 0
    buffer_atomic_or v24, v220, s[8:11], s62 offen sc0 sc1
    buffer_atomic_or v25, v220, s[8:11], s62 offen offset:256 sc0 sc1
    s_waitcnt vmcnt(0)
    v_xor_b32 v24, s{T}, v24
    v_bitop3_b32 v24, v24, v25, s{T} bitop3:0xf6
    v_cmp_ne_u32 vcc, 0, v24
    s_cbranch_vccz L_yok
    s_sub_u32 s60, s60, 1
    s_cbranch_scc0 L_yfl
    s_endpgm
    L_yok:
    v_mul_u32_u24 v4, {14*14336}, v33
    v_lshl_add_u32 v4, v32, 4, v4
    s_mul_i32 s26, s57, 1792
    s_lshl1_add_u32 s26, s53, s26
    s_add_u32 s26, s26, {WS_YP}""")
    for i in range(14):
        a(f"buffer_load_dwordx4 {vr(Y+4*i,4)}, v4, s[8:11], s26 offen sc1\ns_add_u32 s26, s26, 14336")
    a(f"""s_mov_b64 exec, -1
    s_lshr_b32 s26, s52, 16
    s_not_b32 s55, s26
    s_and_b32 s29, s26, 0x7fff
    s_bitcmp1_b32 s26, 15
    s_cselect_b32 s26, s29, s55
    s_lshl_b32 s26, s26, 16
    v_mov_b32 v6, {NLOG2E:#x}
    v_mul_f32 v6, s26, v6
    v_exp_f32 v6, v6
    v_add_f32 v6, 1.0, v6
    v_rcp_f32 v6, v6
    v_cvt_pk_bf16_f32 v6, v6, v6
    v_lshlrev_b32 v6, 16, v6
    s_mul_i32 s26, s57, 448
    s_add_u32 s26, s26, {UPD}
    v_lshl_add_u32 v7, v32, 4, s26
    s_waitcnt vmcnt(0)""")
    for i in range(1, 14):
        a(f"v_pk_add_f32 {vr(Y,2)}, {vr(Y,2)}, {vr(Y+4*i,2)}\nv_pk_add_f32 {vr(Y+2,2)}, {vr(Y+2,2)}, {vr(Y+4*i+2,2)}")
    for k in range(4): a(f"v_mov_b32 v{Y+4+k}, v{Y+k}")
    for k in range(4): a(f"v_permlane32_swap_b32 v{Y+k}, v{Y+4+k}")
    for k in range(4): a(f"v_add_f32 v{Y+k}, v{Y+k}, v{Y+4+k}")
    for k in range(0, 4, 2):
        a(f"""v_cvt_pk_bf16_f32 v{Y+k}, v{Y+k}, v{Y+k+1}
        v_and_b32 v{Y+k+1}, 0xffff0000, v{Y+k}
        v_lshlrev_b32 v{Y+k}, 16, v{Y+k}
        v_mul_f32 v{Y+k}, v{Y+k}, v6
        v_mul_f32 v{Y+k+1}, v{Y+k+1}, v6
        v_cvt_pk_bf16_f32 v{Y+k}, v{Y+k}, v{Y+k+1}
        v_and_b32 v{Y+k+1}, 0xffff0000, v{Y+k}
        v_lshlrev_b32 v{Y+k}, 16, v{Y+k}""")
    a(f"""s_and_b32 s54, s54, 31
    v_mov_b32 v5, s57
    s_lshl_b32 s26, s54, 2
    s_add_u32 s26, s26, {UPDI}
    v_mov_b32 v4, s26
    s_mov_b64 exec, 0x0fffffff
    ds_write_b128 v7, {vr(Y,4)}
    s_mov_b64 exec, 1
    ds_write_b32 v4, v5
    s_mov_b64 exec, -1
    L_updn:
    s_add_u32 s57, s57, 1
    s_and_b32 s26, s57, 3
    s_cbranch_scc1 L_upd
    v_mov_b32 v6, 512""")
    lds_inc(a, 14, C_O, 6)
    st(a, 9)
    a("s_branch L_ofetch")
    a.label("L_svcB")
    OUTT = ""
    if "outtouch" in EXP:
        OUTT = f"""s_cmp_lg_u32 s55, {42*1024}
        s_cbranch_scc1 L_noot
        s_mov_b32 s20, s50
        s_mov_b32 s21, s51
        s_mov_b32 s22, {2048*896}
        s_mov_b32 s23, 0x20000
        s_lshl_b32 s26, s58, 5
        v_add_u32 v4, s26, v32
        v_mul_u32_u24 v4, 896, v4
        s_add_u32 s26, s53, 127
        s_and_b32 s26, s26, 0xffffff80
        v_lshl_add_u32 v4, v33, 7, v4
        s_cmp_eq_u32 s53, 672
        s_cselect_b32 exec_hi, 0, -1
        buffer_store_dword v9, v4, s[20:23], s26 offen sc1
        s_mov_b64 exec, -1
        L_noot:"""
    WOPF = "s_mov_b32 exec_hi, 0x1ffff\nbuffer_load_dword v6, v219, s[16:19], s28 offen\ns_mov_b64 exec, -1" if "wopfS" not in EXP else ""
    for e in range(7):
        a(f"""v_add_u32 v4, {64*e}, v3
        v_mul_u32_u24 v5, 4682, v4
        v_lshrrev_b32 v5, 16, v5
        v_mul_u32_u24 v5, {896-224}, v5
        v_lshl_add_u32 v{200+e}, v4, 4, v5""")
    a(f"""v_mov_b32 v16, 0
    v_mov_b32 v17, 0
    v_mov_b32 v18, 0
    v_mov_b32 v19, 0
    v_add_u32 v209, {448*224}, v1
    s_cmp_eq_u32 s{L}, 2
    s_cbranch_scc1 L_svcB2
    v_lshrrev_b32 v4, 4, v3
    v_and_b32 v5, 15, v3
    v_lshlrev_b32 v5, 2, v5
    v_lshl_add_u32 v221, v4, 9, v5
    v_lshl_add_u32 v222, v4, 5, v14
    v_and_b32 v223, 48, v3
    v_and_b32 v5, 15, v3
    v_add_u32 v6, v5, v4
    v_lshl_add_u32 v224, v6, 14, 1
    v_bfm_b32 v225, v5, 0
    s_mul_i32 s26, s{H}, 28
    s_add_u32 s28, s26, 27
    s_xor_b32 s26, s26, s28
    s_mov_b32 s62, 0x55555555
    s_cmp_ge_u32 s26, 64
    s_cselect_b32 s62, -1, s62
    s_mov_b32 s63, s62
    s_lshr_b32 s28, s{J}, 2
    s_lshl4_add_u32 s26, s{H}, s28
    s_lshl_b32 s26, s26, 7
    s_add_u32 s26, s26, {WS_MB}""")
    spin_lds(a, 14, C_D, PCD, 8, sleep=1)
    at = lambda r: f"v_mov_b32 v{r}, 0\nbuffer_atomic_or v{r}, v221, s[8:11], s26 offen sc0 sc1"
    a(f"""s_mov_b32 s60, {SPIN_LIMIT}
    s_mov_b32 s52, 0x11111111
    s_mov_b32 s53, 0x11111111
    s_mov_b64 exec, s[62:63]""")
    for i in range(PD - 1): a(at(28 + i) + f"\ns_sleep {PG}")
    a("L_kv:")
    for i in range(PD):
        a(at(28 + (i + PD - 1) % PD))
        a(f"""s_waitcnt vmcnt({PD-1})
        v_cmp_ne_u32 vcc, s{T}, v{28+i}
        s_lshr_b64 s[28:29], vcc, 1
        s_or_b64 s[28:29], s[28:29], vcc
        s_lshr_b64 s[54:55], s[28:29], 2
        s_or_b64 s[28:29], s[28:29], s[54:55]
        s_andn2_b64 s[28:29], s[52:53], s[28:29]
        s_cbranch_scc0 L_kvn{i}
        s_andn2_b64 s[52:53], s[52:53], s[28:29]
        v_lshrrev_b64 v[4:5], v223, s[28:29]
        v_and_b32 v5, v225, v4
        v_bcnt_u32_b32 v5, v5, 0
        v_lshl_add_u32 v5, v5, 2, v222
        s_mov_b64 exec, s[28:29]
        ds_write_b32 v5, v224 offset:{C_R}
        s_mov_b64 exec, s[62:63]
        v_and_b32 v4, 0xffff, v4
        v_bcnt_u32_b32 v4, v4, 0
        v_lshl_add_u32 v222, v4, 2, v222
        s_cmp_eq_u64 s[52:53], 0
        s_cbranch_scc1 L_kvdone
        L_kvn{i}:""")
    a(f"""s_sub_u32 s60, s60, 1
    s_cbranch_scc0 L_kv
    s_endpgm
    L_kvdone:
    s_mov_b64 exec, -1
    L_svcB2:""")
    srd(a, 16, 38, 448 * 896)
    a(f"""s_and_b32 s53, s{H}, 3
    s_mul_i32 s53, s53, 224
    s_and_b32 s27, s{L}, 1
    s_mul_i32 s55, s27, {7*1024}
    s_mul_i32 s57, s27, {32*896}
    s_add_u32 s57, s57, s53
    s_lshl1_add_u32 s28, s25, s27
    s_mul_i32 s28, s28, {49*128}
    v_mov_b32 v24, -1
    v_mov_b32 v25, -1
    v_mov_b32 v26, -1
    v_mov_b32 v27, -1
    s_lshl_b32 s59, s{J}, 6
    s_add_u32 s59, s59, s{H}
    s_lshl1_add_u32 s59, s59, s27
    s_lshl_b32 s59, s59, 10
    s_add_u32 s59, s59, {WS_O}""")
    spin_lds(a, 14, C_L, 4, 8, sleep=2)
    st(a, 3)
    a(f"""ds_write_b128 v209, v[16:19]
    {WOPF}
    s_cmp_lg_u32 s{L}, 2
    s_cbranch_scc1 L_nofl
    s_lshl_b32 s26, s2, 7
    s_add_u32 s26, s26, {WS_FL}""")
    flag_store(a, 5, 9, "s26")
    a("L_nofl:\ns_waitcnt vmcnt(0)")
    if "wogate" in EXP: spin_lds(a, 14, C_F, 2, 8, sleep=4)
    a("L_wo:")
    for e in range(7):
        a(f"""s_add_u32 m0, s55, {e*1024}
        s_waitcnt vmcnt({WOP})
        buffer_load_dwordx4 v{200+e}, s[16:19], s57 offen lds""")
    a(f"""s_cmp_ge_u32 s55, {56*1024}
    s_cbranch_scc1 L_noclr
    buffer_store_dwordx4 v[24:27], v1, s[8:11], s59 offen sc1
    s_add_u32 s59, s59, {16*2048}
    L_noclr:
    {OUTT}
    s_sub_u32 s26, s55, {56*1024}
    s_cmp_ge_u32 s26, {14*1024}
    s_cbranch_scc1 L_noinc""")
    lds_inc(a, 14, C_F, 15)
    a(f"""L_noinc:
    s_add_u32 s55, s55, {14*1024}
    s_add_u32 s57, s57, {64*896}
    s_cmp_lt_u32 s55, {98*1024}
    s_cbranch_scc1 L_wo""")
    a("s_waitcnt vmcnt(0)")
    lds_inc(a, 14, C_W, 15)
    st(a, 8)
    a.label("L_ofetch")
    a(f"""s_lshl2_add_u32 s28, s58, s{L}
    s_lshl_b32 s29, s28, 13
    s_add_u32 s29, s29, {WS_O}
    s_add_u32 s27, s29, 4096
    s_lshl_b32 s28, s28, 7
    s_add_u32 s28, s28, {WS_OFL}
    s_mul_i32 s26, s{L}, 12288
    s_add_u32 s26, s26, {CB}
    v_add_u32 v7, s26, v1
    s_lshl_b32 s26, s{L}, 2
    v_add_u32 v6, s26, v14
    s_lshl_b32 s26, 1, s{L}
    v_mov_b32 v5, s26""")
    spin_lds(a, 6, C_P, 1, 8, sleep=4)
    poll_pipe(a, 28, 220, "s28", 15, D=PD, gap=PG)
    a("L_of:\nv_mov_b32 v4, 0")
    for k in range(8):
        a(f"buffer_load_dwordx4 {vr(40+4*k,4)}, v1, s[8:11], {'s29' if k < 4 else 's27'} offen offset:{(k&3)*1024} sc1")
    a("s_sub_u32 s60, s60, 1\ns_cbranch_scc1 L_exit")
    for k in range(8):
        a(f"""s_waitcnt vmcnt({7-k})
        ds_write_b128 v7, {vr(40+4*k,4)} offset:{k*1024}
        v_max3_u32 v4, v4, v{40+4*k}, v{41+4*k}
        v_max3_u32 v4, v4, v{42+4*k}, v{43+4*k}""")
    a("v_cmp_eq_u32 vcc, -1, v4\ns_cbranch_vccnz L_of")
    lds_inc(a, 14, C_O, 5)
    a("s_waitcnt vmcnt(0) lgkmcnt(0)")
    st_end(a)
    a("L_exit:\nL_code_end:\ns_endpgm")

def main(out):
    hdr = open("cdna_kernels/" + NAME + ".s.ref").read().split("; Override")[0]
    rep = []
    a = Asm()
    prologue_and_loader(a); main_wave(a); service_wave(a)
    t = hdr
    t += f"; @launch grid=(256,1,1) block=(512,1,1) lds={LDS_BYTES}\n"
    t += '.amdgcn_target "amdgcn-amd-amdhsa--gfx950"\n'
    t += kernel_text(NAME + "_kernel", a.l, 256, report=rep)
    open(out, "w").write(t)
    if "-v" in sys.argv: print("\n".join(rep))

if __name__ == "__main__":
    main(sys.argv[1])
```

```python
import sys, math, struct
from asmlib import *

NAME = "gated_mix__softmax_full_mha__moe_arch_mod__prompt"
STAMP = "-s" in sys.argv
EXP = set(x[2:] for x in sys.argv if x.startswith("-x"))
WS_KV = 0
BLK = 5120; TS = 14 * BLK; KVB = 64 * TS
WS_O = 0x480000
WS_R = 0x680000
WS_G = WS_R + 16384
WS_SEL = WS_R + 32768
WS_EP = WS_R + 40960
WS_FL = WS_R + 65536
WS_MB = WS_FL + 32768
WS_OFL = WS_MB + 32768
WS_YFL = WS_OFL + 32768
WS_F1 = WS_YFL + 4096
WS_YP = WS_R + (1 << 18)
WS_GP = 0x730000
WS_ST = 16 << 20
XS = 0; WT = 65536; WQ = 122880; QX = 151552; UPD = 159744
WO = 0; CB = 102400
UPDI = UPD + 3584
KEYS = UPD
SELECTOR = 223
CNT = 163840 - 192
LDS_BYTES = 163840
C_Q1, C_Q2, C_X, C_L, C_S, C_D, C_C, C_O, C_W, C_F, C_K, C_T, C_P, C_R = 0, 4, 8, 12, 16, 20, 24, 28, 32, 36, 40, 44, 48, 64

def f32bits(x): return struct.unpack("<I", struct.pack("<f", x))[0]
QSCALE = f32bits(28 ** -0.5 * math.log2(math.e))
NLOG2E = f32bits(-math.log2(math.e))
MF = "v_mfma_f32_32x32x16_bf16"
ROLE = [0, 1, 2, 3, 14, 4, 5, 6, 7, 8, 9, 15, 10, 11, 12, 13]
ROLE_LO = sum(ROLE[i] << (4 * i) for i in range(8))
ROLE_HI = sum(ROLE[8 + i] << (4 * i) for i in range(8))
SPIN_LIMIT = 1 << 20
WSBASE = ([int(x[2:]) for x in sys.argv if x.startswith("-w")] + [0])[0] << 20
PD = 4 if "pd4" in EXP else 2
PG = 3 if "pd4" in EXP else 6
PCD = 4 if "pcd4" in EXP else (0 if "pcd0" in EXP else 1)
KVS = 4 if "kvs4" in EXP else (0 if "kvs0" in EXP else 2)
PQ2 = 4 if "pq4" in EXP else (0 if "pq0" in EXP else 1)
PF0 = 2 if "pf2" in EXP else 0
WOP = 1 if "wo1" in EXP else (3 if "wo3" in EXP else 2)
OUTAUX = " sc1" if "outsc1" in EXP else (" nt" if "outnt" in EXP else "")

T, H, J, W, RL, ROT = 30, 31, 32, 33, 34, 3
_uid = [0]
def uid(p):
    _uid[0] += 1
    return f"{p}_{_uid[0]}"

def srd(a, d, ptr, nbytes):
    a(f"s_mov_b32 s{d}, s{ptr}\ns_mov_b32 s{d+1}, s{ptr+1}\ns_mov_b32 s{d+2}, {nbytes:#x}\ns_mov_b32 s{d+3}, 0x20000")

NST = 12
DIAG = [tuple(int(y) for y in x[2:].split("-")) for x in sys.argv if x.startswith("-d")]
def st(a, i):
    if STAMP: a(f"s_memtime s[{72+2*i}:{73+2*i}]")
    if DIAG and i in DIAG[0]: a(f"s_memrealtime s[{72+2*i}:{73+2*i}]\ns_waitcnt lgkmcnt(0)")
def st_begin(a):
    if STAMP: a("s_memrealtime s[68:69]\ns_memtime s[72:73]")
    if DIAG: a("s_memrealtime s[72:73]")
ABS = [x[2:] for x in sys.argv if x.startswith("-a")]
REL = [tuple(int(y) for y in x[2:].split("-")) for x in sys.argv if x.startswith("-r")]
if ABS:
    DIAG = [(0, 0 if ABS[0] == "z" else int(ABS[0].lstrip("m")))]
if REL:
    ABS = ["r"]; DIAG = REL
def diag_start(a):
    if not ABS: return
    a(f"""s_load_dwordx2 s[98:99], s[0:1], 80
    s_waitcnt lgkmcnt(0)
    s_cmp_ge_u32 s2, 8
    s_cbranch_scc1 L_dg0
    s_cmp_lg_u32 s{W}, 0
    s_cbranch_scc1 L_dg0
    s_lshl_b32 s70, s2, 2
    v_mov_b32 v4, s70
    v_mov_b32 v6, s72
    global_store_dword v4, v6, s[98:99] sc1
    L_dg0:""")
def diag_end(a):
    if not DIAG: return
    p, q = DIAG[0]
    if ABS:
        a(f"""s_waitcnt vmcnt(0)
        s_memrealtime s[96:97]
        s_mov_b64 exec, -1
        v_mov_b32 v4, 0
        global_load_dwordx4 v[8:11], v4, s[98:99] sc1
        global_load_dwordx4 v[12:15], v4, s[98:99] offset:16 sc1
        s_waitcnt vmcnt(0) lgkmcnt(0)
        v_min3_u32 v8, v8, v9, v10
        v_min3_u32 v8, v8, v11, v12
        v_min3_u32 v8, v8, v13, v14
        v_min_u32 v8, v8, v15
        s_nop 1
        v_readfirstlane_b32 s69, v8
        s_sub_u32 s70, s{72+2*q}, s69""")
        if ABS[0] == "z": a("s_mov_b32 s70, 0")
        if REL: a(f"s_sub_u32 s70, s{72+2*q}, s{72+2*p}\ns_lshl_b32 s70, s70, 2")
        if ABS[0].startswith("m"): a("s_sub_u32 s70, 2500, s70")
        a("s_add_u32 s70, s70, s69\ns_add_u32 s70, s70, 2500")
    else:
        a(f"""s_waitcnt vmcnt(0)
        s_memrealtime s[96:97]
        s_waitcnt lgkmcnt(0)
        s_sub_u32 s70, s{72+2*q}, s{72+2*p}
        s_add_u32 s70, s70, s96""")
    a(f"""L_diag:
    s_memrealtime s[68:69]
    s_waitcnt lgkmcnt(0)
    s_sub_u32 s71, s68, s70
    s_cmp_lt_i32 s71, 0
    s_cbranch_scc1 L_diag""")
def st_init(a):
    if STAMP:
        for i in range(1, NST): a(f"s_mov_b32 s{72+2*i}, s72")
def st_end(a):
    if not STAMP: return
    a(f"""s_waitcnt vmcnt(0)
    s_memrealtime s[70:71]
    s_memtime s[{72+2*NST}:{73+2*NST}]
    s_getreg_b32 s66, hwreg(HW_REG_HW_ID)
    s_getreg_b32 s67, hwreg(HW_REG_XCC_ID)
    s_mov_b64 exec, -1
    s_lshl_b32 s65, s2, 3
    s_add_u32 s65, s65, s{W}
    s_lshl_b32 s65, s65, 6
    s_add_u32 s65, s65, {WS_ST}
    s_waitcnt lgkmcnt(0)
    v_mov_b32 v4, s68
    v_mov_b32 v5, s70
    v_mov_b32 v6, s66
    v_mov_b32 v7, s67""")
    for i in range(1, NST + 1):
        a(f"s_sub_u32 s64, s{72+2*i}, s72\nv_mov_b32 v{7+i}, s64")
    a("v_mov_b32 v2, 0\ns_mov_b64 exec, 1")
    for k in range(4):
        a(f"buffer_store_dwordx4 v[{4+4*k}:{7+4*k}], v2, s[8:11], s65 offen offset:{16*k}")

def poll_global(a, vdst, voff, soff, mask=None, sleep=1):
    l = uid("Lpoll"); d = uid("Lpd")
    a(f"s_mov_b32 s60, {SPIN_LIMIT}")
    if mask is not None: a(f"s_mov_b64 exec, {mask}")
    a(f"""{l}:
    buffer_load_dword v{vdst}, v{voff}, s[8:11], {soff} offen sc1
    s_waitcnt vmcnt(0)
    v_cmp_ne_u32 vcc, s{T}, v{vdst}
    s_cbranch_vccz {d}
    s_mov_b64 exec, vcc
    s_sleep {sleep}
    s_sub_u32 s60, s60, 1
    s_cbranch_scc0 {l}
    s_endpgm
    {d}:
    s_mov_b64 exec, -1""")

def poll_atomic(a, vdst, voff, soff, mask, sleep):
    l = uid("Lpa"); d = uid("Lpad")
    a(f"""s_mov_b32 s60, {SPIN_LIMIT}
    s_mov_b64 exec, {mask}
    {l}:
    v_mov_b32 v{vdst}, 0
    buffer_atomic_or v{vdst}, v{voff}, s[8:11], {soff} offen sc0 sc1
    s_waitcnt vmcnt(0)
    v_cmp_ne_u32 vcc, s{T}, v{vdst}
    s_cbranch_vccz {d}
    s_sleep {sleep}
    s_sub_u32 s60, s60, 1
    s_cbranch_scc0 {l}
    s_endpgm
    {d}:
    s_mov_b64 exec, -1""")

def poll_pipe(a, v0, voff, soff, mask, D=4, gap=3):
    l = uid("Lpp"); d = uid("Lppd")
    at = lambda r: f"v_mov_b32 v{r}, 0\nbuffer_atomic_or v{r}, v{voff}, s[8:11], {soff} offen sc0 sc1"
    a(f"s_mov_b32 s60, {SPIN_LIMIT}\ns_mov_b64 exec, {mask}")
    for i in range(D - 1): a(at(v0 + i) + f"\ns_sleep {gap}")
    a(f"{l}:")
    for i in range(D):
        a(at(v0 + (i + D - 1) % D))
        a(f"s_waitcnt vmcnt({D-1})\nv_cmp_ne_u32 vcc, s{T}, v{v0+i}\ns_cbranch_vccz {d}")
    a(f"""s_sub_u32 s60, s60, 1
    s_cbranch_scc0 {l}
    s_endpgm
    {d}:
    s_mov_b64 exec, -1""")

def signal(a, vt, voff, soff, mask):
    a(f"v_mov_b32 v{vt}, s{T}\ns_mov_b64 exec, {mask}\nbuffer_atomic_swap v{vt}, v{voff}, s[8:11], {soff} offen sc1\ns_mov_b64 exec, -1")

def spin_lds(a, vaddr, off, want, vt, sleep=0):
    l = uid("Lsp"); d = uid("Lsd")
    a(f"""s_mov_b32 s60, {SPIN_LIMIT}
    {l}:
    ds_read_b32 v{vt}, v{vaddr} offset:{off}
    s_waitcnt lgkmcnt(0)
    v_readfirstlane_b32 s61, v{vt}
    s_cmp_ge_u32 s61, {want}
    s_cbranch_scc1 {d}""")
    if sleep: a(f"s_sleep {sleep}")
    a(f"""s_sub_u32 s60, s60, 1
    s_cbranch_scc0 {l}
    s_endpgm
    {d}:""")

def lds_inc(a, vaddr, off, vone):
    a(f"s_mov_b64 exec, 1\nds_add_u32 v{vaddr}, v{vone} offset:{off}\ns_mov_b64 exec, -1")

def flag_store(a, vt, vz, soff):
    a(f"v_mov_b32 v{vt}, s{T}\ns_mov_b64 exec, 1\nbuffer_store_dword v{vt}, v{vz}, s[8:11], {soff} offen sc1\ns_mov_b64 exec, -1")

def split_neg_max(a, m, t0, t1, q6, q7):
    a(f"""v_sub_f32 v{m}, 0, v{m}
    v_cvt_pk_bf16_f32 v{t0}, v{m}, v{m}
    v_lshlrev_b32 v{t0}, 16, v{t0}
    v_sub_f32 v{t0}, v{m}, v{t0}
    v_cvt_pk_bf16_f32 v{t1}, v{m}, v{t0}
    v_and_b32 v{m}, 0xffff0000, v{t1}
    v_sub_f32 v{t0}, v{t0}, v{m}
    s_mov_b32 exec_lo, 0
    v_mov_b32 v{q6}, v{t1}
    v_cvt_pk_bf16_f32 v{q7}, v{t0}, 0
    s_mov_b32 exec_lo, -1""")

def max16_list(dst, S, init=False):
    if not init:
        return ([f"v_max3_f32 v{dst}, v{S}, v{S+1}, v{S+2}"] +
                [f"v_max3_f32 v{dst}, v{dst}, v{S+i}, v{S+i+1}" for i in range(3, 15, 2)] +
                [f"v_max_f32 v{dst}, v{dst}, v{S+15}"])
    return [f"v_max3_f32 v{dst}, v{dst}, v{S+i}, v{S+i+1}" for i in range(0, 16, 2)]

def wave_min_u32(a, v, full=True):
    for r in (1, 2, 4, 8):
        a(f"v_min_u32_dpp v{v}, v{v}, v{v} row_ror:{r} row_mask:0xf bank_mask:0xf")
    a(f"v_min_u32_dpp v{v}, v{v}, v{v} row_bcast:15 row_mask:0xa bank_mask:0xf")
    if full: a(f"v_min_u32_dpp v{v}, v{v}, v{v} row_bcast:31 row_mask:0xc bank_mask:0xf")

def tag(a):
    a(f"s_mul_i32 s{T}, s{T}, 0x9e3779b1\ns_add_u32 s{T}, s{T}, 0x7f4a7c15")

def next_chunk(a, s):
    a(f"s_add_u32 s{s}, s{s}, 1\ns_cmp_eq_u32 s{s}, 7\ns_cselect_b32 s{s}, 0, s{s}")

Q, O, KV, S, P = 8, 40, 104, 168, 200
XF = 104; A0, A1, WF = 40, 56, 72
VX = 216; VW = 220; VQ = 222; VC = 223; V1 = 224; VZ = 225; VT = 226; VH = 227
VA = 228; TMP = 232; XR = 240; GR = 248; VWQ = 250; VF = 251; VFS = 252; VXO = 253; VGO = 254
OWN = 3
L = 35

def prologue_and_loader(a):
    TADDR = "v_lshl_add_u32 v8, v3, 7, s58"
    if "t64" in EXP: TADDR = "v_and_b32 v8, 60, v3\nv_lshl_add_u32 v8, v8, 4, s58\nv_add_u32 v8, v8, v1"
    if "rot7" in EXP:
        ROTCODE = f"s_lshl1_add_u32 s{ROT}, s27, s26\ns_cmp_ge_u32 s{ROT}, 7\ns_cselect_b32 s26, 7, 0\ns_sub_u32 s{ROT}, s{ROT}, s26"
    elif "rot2" not in EXP and "norot" not in EXP and "rot23" not in EXP:
        ROTCODE = f"s_add_u32 s{ROT}, s27, s26\ns_and_b32 s{ROT}, s{ROT}, 3\ns_lshl_b32 s{ROT}, s{ROT}, 1"
    elif "norot" in EXP:
        ROTCODE = f"s_mov_b32 s{ROT}, 0"
    elif "rot23" in EXP:
        ROTCODE = f"s_add_u32 s{ROT}, s27, s26\ns_and_b32 s{ROT}, s{ROT}, 1\ns_mul_i32 s{ROT}, s{ROT}, 3"
    else:
        ROTCODE = f"s_add_u32 s{ROT}, s27, s26\ns_and_b32 s{ROT}, s{ROT}, 1\ns_lshl_b32 s{ROT}, s{ROT}, 2"
    st_begin(a)
    a(f"""s_load_dwordx4 s[4:7], s[0:1], 0
    s_load_dwordx2 s[36:37], s[0:1], 88
    s_load_dwordx2 s[38:39], s[0:1], 16
    s_load_dwordx8 s[40:47], s[0:1], 32
    s_load_dwordx4 s[48:51], s[0:1], 64
    s_cmp_ge_u32 s2, 256
    s_cbranch_scc1 L_exit
    v_lshrrev_b32 v2, 6, v0
    v_and_b32 v3, 63, v0
    s_and_b32 s24, s2, 7
    s_lshr_b32 s25, s2, 3
    v_readfirstlane_b32 s{W}, v2
    s_and_b32 s{H}, s24, 1
    s_lshl_b32 s{H}, s{H}, 3
    s_and_b32 s26, s25, 7
    s_add_u32 s{H}, s{H}, s26
    s_lshr_b32 s27, s25, 3
    s_and_b32 s{J}, s24, 6
    s_lshl1_add_u32 s{J}, s{J}, s27
    {ROTCODE}
    s_mov_b32 s28, {ROLE_LO:#x}
    s_mov_b32 s29, {ROLE_HI:#x}
    s_lshl_b32 s27, s{H}, 2
    s_lshr_b64 s[28:29], s[28:29], s27
    s_and_b32 s{RL}, s28, 15
    v_lshlrev_b32 v1, 4, v3
    s_mov_b32 s27, {WS_EP}
    s_cmp_lt_u32 s{W}, 4
    s_cbranch_scc1 L_main
    """)
    a(f"""s_setprio 2
    s_sub_u32 s{L}, s{W}, 4
    v_lshrrev_b32 v4, 3, v3
    v_mul_u32_u24 v5, 896, v4
    v_and_b32 v6, 7, v3
    v_lshrrev_b32 v7, 4, v3
    v_xor_b32 v7, v6, v7
    v_lshl_add_u32 v10, v7, 4, v5
    v_xor_b32 v11, 64, v10
    v_add_u32 v12, {2*6144}, v10
    v_add_u32 v13, {3*6144}, v11
    v_add_u32 v11, 6144, v11
    v_mul_u32_u24 v5, 2688, v4
    v_and_b32 v4, 2, v4
    v_lshlrev_b32 v4, 1, v4
    v_xor_b32 v4, v4, v6
    v_lshl_add_u32 v14, v4, 4, v5
    v_add_u32 v15, {8*2688-1024}, v14
    s_lshl2_add_u32 s52, s{J}, s{L}
    s_mul_i32 s58, s52, 14
    s_add_u32 s58, s58, s{RL}
    s_mul_i32 s58, s58, {BLK}
    {TADDR}
    s_mul_i32 s52, s52, {32*896}
    s_lshl_b32 s53, s{RL}, 7
    s_mul_i32 s26, s{L}, {16*2688}
    s_add_u32 s53, s53, s26
    s_add_u32 s53, s53, 896
    s_lshl_b32 s54, s{L}, 12
    s_lshl_b32 s55, s{L}, 11
    s_add_u32 s55, s55, {WT}
    s_mov_b32 s56, s{ROT}
    s_mov_b32 s57, 0
    s_mov_b32 s14, {2048*896}
    s_mov_b32 s15, 0x20000
    s_cmp_ge_u32 s{RL}, 14
    s_cselect_b32 s18, 0, {448*2688}
    s_mov_b32 s19, 0x20000
    s_waitcnt lgkmcnt(0)
    s_mov_b64 s[12:13], s[4:5]
    s_mov_b64 s[16:17], s[6:7]
    s_load_dword s{T}, s[36:37], s27""")
    st_init(a); st(a, 1)
    if "notouch" not in EXP:
        if "t64" in EXP:
            a(f"""s_cbranch_scc1 L_ld
            global_store_dwordx4 v8, v[10:13], s[36:37] sc1
            global_store_dwordx4 v8, v[10:13], s[36:37] offset:2048 sc1""")
        else: a(f"""s_cbranch_scc1 L_ld
        s_cmp_ge_u32 s{RL}, 7
        s_cselect_b32 exec_hi, 1, 0xff
        global_store_dword v8, v8, s[36:37] sc1
        s_mov_b32 exec_hi, -1""")
    a(f"""L_ld:
    s_mul_i32 s26, s56, {64*2688}
    s_mov_b32 m0, s55
    s_add_u32 s26, s26, s53
    s_lshl_b32 s28, s56, 7
    buffer_load_dwordx4 v14, s[16:19], s26 offen lds
    buffer_load_dwordx4 v15, s[16:19], s26 offen offset:1024 lds
    s_mov_b32 m0, s54
    s_add_u32 s28, s28, s52
    buffer_load_dwordx4 v10, s[12:15], s28 offen lds
    buffer_load_dwordx4 v11, s[12:15], s28 offen offset:1024 lds
    buffer_load_dwordx4 v12, s[12:15], s28 offen offset:2048 lds
    buffer_load_dwordx4 v13, s[12:15], s28 offen offset:3072 lds
    s_add_u32 s55, s55, 8192
    s_add_u32 s54, s54, 16384
    s_and_b32 s54, s54, 0xffff""")
    next_chunk(a, 56)
    if "tlb" in EXP:
        a(f"s_or_b32 s26, s57, s{L}\ns_cbranch_scc0 L_tlb\nL_tlb_done:")
    a(f"""s_add_u32 s57, s57, 1
    s_cmp_lt_u32 s57, 3
    s_cbranch_scc1 L_ld
    s_waitcnt vmcnt(12)
    s_barrier
    s_cmp_lt_u32 s57, 7
    s_cbranch_scc1 L_ld
    """)
    a(f"""v_lshrrev_b32 v4, 2, v3
    v_mul_u32_u24 v4, 2688, v4
    v_and_b32 v5, 3, v3
    v_lshl_add_u32 v16, v5, 4, v4
    s_mov_b32 s18, {448*2688}
    s_mul_i32 s53, s{H}, 56
    s_and_b32 s53, s53, 0xfffffff0
    s_mul_i32 s26, s{L}, {16*2688}
    s_add_u32 s53, s53, s26
    s_lshl_b32 s55, s{L}, 10
    s_add_u32 s55, s55, {WQ}""")
    for i in range(4):
        a(f"""s_mul_i32 s26, s56, {64*2688}
        s_add_u32 m0, s55, {i*4096}
        s_add_u32 s26, s26, s53
        buffer_load_dwordx4 v16, s[16:19], s26 offen lds""")
        if i < 3: next_chunk(a, 56)
        if i == 1: a("s_waitcnt vmcnt(8)\ns_barrier")
        if i == 3: a("s_waitcnt vmcnt(4)\ns_barrier")
    st(a, 2)
    a("s_branch L_service")
    if "tlb" in EXP:
        a("L_tlb:")
        if "tlbR" in EXP: a(f"s_cmp_lt_u32 s{RL}, 14\ns_cbranch_scc1 L_tlb_done")
        for off in (0, 2 << 20, 4 << 20):
            a(f"s_mov_b32 s26, {off + 4032}\ns_load_dword s66, s[36:37], s26")
        for p in (42, 44, 38, 46, 50):
            a(f"s_load_dword s66, s[{p}:{p+1}], 0")
        a("s_branch L_tlb_done")

def main_wave(a):
    a.label("L_main")
    diag_start(a)
    if "nocodepf" not in EXP:
        a(f"""s_cmp_lg_u32 s{W}, 0
        s_cbranch_scc1 L_nopf
        s_getpc_b64 s[28:29]
        L_pc:
        s_and_b32 s26, s25, 3
        s_lshl_b32 s26, s26, 13
        v_lshl_add_u32 v4, v3, 7, s26
        v_min_u32 v4, L_code_end-L_pc, v4
        global_load_dword v5, v4, s[28:29]
        L_nopf:""")
    a(f"""s_setprio 1
    v_and_b32 v{VT}, 31, v3
    v_lshrrev_b32 v{VH}, 5, v3
    v_mov_b32 v{V1}, 1
    v_mov_b32 v{VZ}, 0
    v_mov_b32 v{VC}, {CNT}
    v_lshrrev_b32 v4, 2, v1
    v_add_u32 v4, {UPDI}, v4
    v_mov_b32 v6, -1
    s_mov_b32 exec_hi, 0
    ds_write_b32 v4, v6
    v_and_b32 v6, 7, v3
    v_cmp_eq_u32 vcc, 4, v6
    v_mov_b32 v7, {KVB+1}
    v_cndmask_b32 v6, 0, v7, vcc
    ds_write_b32 v4, v6 offset:{CNT-UPDI+C_R}
    s_mov_b32 exec_lo, 0xffff
    ds_write_b32 v4, v{VZ} offset:{CNT-UPDI}
    s_mov_b64 exec, -1
    v_lshrrev_b32 v4, 1, v{VT}
    v_and_b32 v4, 7, v4
    v_xor_b32 v4, v4, v{VH}
    v_lshlrev_b32 v4, 4, v4
    v_lshl_add_u32 v4, v{VT}, 7, v4
    s_lshl_b32 s26, s{W}, 12
    v_add_u32 v{VX}, s26, v4
    v_xor_b32 v{VX+1}, 32, v{VX}
    v_xor_b32 v{VX+2}, 64, v{VX}
    v_xor_b32 v{VX+3}, 96, v{VX}
    v_bfe_u32 v4, v3, 2, 2
    v_lshl_add_u32 v12, v{VH}, 3, v4
    v_and_b32 v6, 3, v3
    v_and_b32 v7, 1, v3
    v_bfe_u32 v8, v3, 1, 1
    v_lshl_add_u32 v7, v7, 1, v8
    v_bfe_u32 v8, v3, 4, 1
    v_lshl_add_u32 v9, v8, 2, v7
    v_lshl_add_u32 v10, v8, 2, v6
    s_cmp_lt_u32 s{RL}, 7
    s_cselect_b64 vcc, -1, 0
    v_cndmask_b32 v10, v10, v9, vcc
    v_lshlrev_b32 v11, 7, v12
    v_lshl_add_u32 v11, v10, 3, v11
    v_lshrrev_b32 v4, 1, v4
    v_lshl_add_u32 v11, v4, 6, v11
    v_add_u32 v{VW}, {WT}, v11
    v_xor_b32 v{VW+1}, 64, v{VW}
    v_add_u32 v10, 2, v9
    v_sub_u32 v11, 7, v9
    v_cmp_gt_u32 vcc, 6, v9
    v_cndmask_b32 v10, v11, v10, vcc
    s_bitcmp1_b32 s{H}, 0
    s_cselect_b64 vcc, -1, 0
    v_cndmask_b32 v10, v9, v10, vcc
    v_lshlrev_b32 v11, 6, v12
    v_lshl_add_u32 v11, v10, 3, v11
    v_add_u32 v{VQ}, {WQ}, v11
    v_lshrrev_b32 v4, 2, v3
    v_mul_u32_u24 v4, 2688, v4
    v_lshl_add_u32 v{VWQ}, v6, 4, v4
    s_cmp_ge_u32 s{RL}, 7
    s_cselect_b32 s26, 7, 0
    s_cselect_b32 s29, 2, 0
    s_sub_u32 s26, s{RL}, s26
    s_mul_i32 s28, s26, {64*2341}
    s_lshr_b32 s28, s28, 16
    v_add_u32 v4, s28, v6
    v_mul_u32_u24 v7, 28, v4
    v_lshrrev_b32 v7, 6, v7
    v_cmp_ge_u32 s[64:65], s26, v7
    v_cmp_ne_u32 vcc, s26, v7
    s_and_b32 s28, s{J}, 12
    s_add_u32 s29, s28, s29
    v_mov_b32 v7, s29
    v_addc_co_u32 v7, vcc, 0, v7, vcc
    s_and_b32 s28, s{J}, 3
    v_lshl_add_u32 v4, v4, 2, s28
    v_bfe_u32 v8, v3, 2, 2
    v_lshl_add_u32 v4, v4, 2, v8
    v_lshlrev_b32 v4, 7, v4
    v_lshl_add_u32 v{VFS}, v7, 2, v4
    s_and_b32 s64, s64, 0xffff
    s_cmp_ge_u32 s{RL}, 14
    s_cselect_b32 s64, 0, s64
    s_mov_b32 s65, 0
    s_lshl_b32 s28, s{W}, 5
    v_add_u32 v{VF}, s28, v{VC}
    s_lshl_b32 s28, s{J}, 2
    s_lshr_b32 s58, s{H}, 2
    s_add_u32 s58, s58, s28
    s_and_b32 s59, s{H}, 3
    s_lshl2_add_u32 s59, s59, s{W}
    s_mul_i32 s59, s59, 56
    s_lshl_b32 s28, s58, 5
    v_add_u32 v4, s28, v{VT}
    v_mul_u32_u24 v{VXO}, 896, v4
    v_lshl_add_u32 v{VXO}, v{VH}, 4, v{VXO}
    v_lshlrev_b32 v{VGO}, 3, v4
    s_waitcnt lgkmcnt(0)
    """)
    st_init(a)
    srd(a, 8, 36, (1 << 28) - WSBASE)
    srd(a, 16, 6, 448 * 2688)
    srd(a, 12, 4, 2048 * 896)
    if "nowqpf" not in EXP:
        a(f"""s_cmp_lg_u32 s{W}, 1
        s_cbranch_scc1 L_nopf2
        v_lshrrev_b32 v4, 2, v3
        v_min_u32 v4, 13, v4
        v_mul_u32_u24 v4, 2688, v4
        v_and_b32 v6, 3, v3
        v_lshl_add_u32 v4, v6, 7, v4
        s_mul_i32 s26, s25, {14*2688}
        s_and_b32 s28, s24, 1
        s_mul_i32 s28, s28, 384
        s_add_u32 s26, s26, s28
        buffer_load_dword v5, v4, s[16:19], s26 offen
        L_nopf2:""")
    if "wopfS" in EXP:
        srd(a, 20, 38, 448 * 896)
        a(f"""s_cmp_lg_u32 s{W}, 2
        s_cbranch_scc1 L_nopf3
        s_mul_i32 s26, s2, {13*128}
        v_lshl_add_u32 v4, v3, 7, s26
        s_mov_b64 exec, 0x1fff
        buffer_load_dword v5, v4, s[20:23], 0 offen
        s_mov_b64 exec, -1
        L_nopf3:""")
    a(f"""s_mul_i32 s62, s{H}, 56
    s_and_b32 s62, s62, 0xfffffff0
    s_mul_i32 s26, s{W}, {16*2688}
    s_add_u32 s62, s62, s26
    s_lshl_b32 s63, s{W}, 10
    s_add_u32 s63, s63, {WQ}
    s_lshl2_add_u32 s35, s{J}, s{W}
    s_mul_i32 s52, s35, 14
    s_add_u32 s52, s52, s{RL}
    s_mul_i32 s52, s52, {BLK}
    s_add_u32 s53, s52, 4096
    s_lshr_b32 s26, s{H}, 1
    s_mul_i32 s26, s26, 7
    s_and_b32 s28, s{H}, 1
    s_lshl2_add_u32 s29, s28, s26
    v_add_u32 v4, s29, v{VH}
    v_lshrrev_b32 v6, 3, v4
    v_mul_u32_u24 v6, {BLK-4096}, v6
    v_lshl_add_u32 v6, v4, 9, v6
    v_lshl_add_u32 v{VA}, v{VT}, 4, v6
    v_add_u32 v4, 2, v4
    v_lshrrev_b32 v6, 3, v4
    v_mul_u32_u24 v6, {BLK-4096}, v6
    v_lshl_add_u32 v6, v4, 9, v6
    s_add_u32 s26, s26, 3
    s_lshr_b32 s29, s26, 3
    s_mul_i32 s29, s29, {BLK}
    s_and_b32 s26, s26, 1
    s_lshl_b32 s26, s26, 9
    s_add_u32 s29, s29, s26
    s_add_u32 s29, s29, 4096
    v_mov_b32 v7, s29
    v_and_b32 v4, s28, v{VH}
    v_cmp_eq_u32 vcc, 1, v4
    v_cndmask_b32 v6, v6, v7, vcc
    v_lshl_add_u32 v{VA+1}, v{VT}, 4, v6
    s_mul_i32 s26, s{H}, 28
    v_add_u32 v4, s26, v{VT}
    v_lshrrev_b32 v6, 6, v4
    v_mul_u32_u24 v6, {BLK}, v6
    v_bfe_u32 v7, v4, 5, 1
    v_lshl_add_u32 v6, v7, 11, v6
    v_and_b32 v4, 31, v4
    v_lshl_add_u32 v6, v4, 4, v6
    v_lshl_add_u32 v6, v{VH}, 9, v6
    v_add_u32 v6, {7*BLK}, v6
    v_add_u32 v8, 1024, v6
    s_lshr_b32 s26, s26, 6
    s_mul_i32 s26, s26, {BLK}
    s_add_u32 s26, s26, {7*BLK + 4096 - 28*16}
    v_lshl_add_u32 v7, v{VT}, 4, s26
    v_cmp_le_u32 vcc, 28, v{VT}
    v_cndmask_b32 v{VA+2}, v6, v7, vcc
    v_cndmask_b32 v{VA+3}, v8, v7, vcc
    s_cmp_ge_u32 s{RL}, 14
    s_cbranch_scc1 L_roleR
    s_cmp_ge_u32 s{RL}, 7
    s_cbranch_scc1 L_roleV""")

    def gemm(kind):
        if "twait" in EXP:
            st(a, 10); a("s_waitcnt vmcnt(0)"); st(a, 11)
        def reads(c, s):
            k = 4 * c + s
            a(f"ds_read_b128 {vr(XF+4*k,4)}, v{VX+s} offset:{(c&3)*16384}")
            f = WF + 8 * s
            if kind == "R":
                a(f"ds_read_b128 {vr(f,4)}, v{VW} offset:{k*32}")
            else:
                for n in range(2):
                    a(f"ds_read_b64_tr_b16 {vr(f+4*n,2)}, v{VW+n} offset:{k*2048}")
                    a(f"ds_read_b64_tr_b16 {vr(f+4*n+2,2)}, v{VW+n} offset:{k*2048+512}")
        def mfmas(c, s):
            k = 4 * c + s
            f = WF + 8 * s
            for n in range(1 if kind == "R" else 2):
                acc = (A0, A1)[n]
                cc = "0" if k == 0 else vr(acc, 16)
                if kind == "V": a(f"{MF} {vr(acc,16)}, {vr(XF+4*k,4)}, {vr(f+4*n,4)}, {cc}")
                else:           a(f"{MF} {vr(acc,16)}, {vr(f+4*n,4)}, {vr(XF+4*k,4)}, {cc}")
        per = 2 if kind == "R" else 5
        for c in range(7):
            a("s_barrier")
            if c == 0: st(a, 1)
            if c == 6: st(a, 2)
            if STAMP and c in (0, 6): a("s_waitcnt lgkmcnt(0)")
            reads(c, 0); reads(c, 1)
            for s in range(4):
                if s < 2: reads(c, s + 2)
                a(f"s_waitcnt lgkmcnt({min(3 - s, 2) * per})")
                mfmas(c, s)

    PK = 8
    MS = 20
    a(f"""v_add_u32 v4, s{RL}, v{VH}""")
    for i in range(4):
        a(f"""v_cmp_eq_u32 vcc, {3-2*i}, v4
        v_cmp_eq_u32 s[{MS+2*i}:{MS+1+2*i}], {10-2*i}, v4
        s_or_b64 s[{MS+2*i}:{MS+1+2*i}], s[{MS+2*i}:{MS+1+2*i}], vcc""")
    a(f"v_mov_b32 v{TMP+2}, 0x3f803f80\nv_mov_b32 v{TMP+3}, 0x3f803f80")
    gemm("K")
    for i in range(4):
        acc = (A0, A1)[i >> 1] + 8 * (i & 1)
        p = PK + 4 * i
        for e in range(4): a(f"v_cvt_pk_bf16_f32 v{p+e}, v{acc+2*e}, v{acc+2*e+1}")
        l = uid("Lnosh")
        a(f"""s_mov_b64 exec, s[{MS+2*i}:{MS+1+2*i}]
        s_cbranch_execz {l}
        v_mov_b32 v{TMP}, v{p+2}
        v_mov_b32 v{TMP+1}, v{p+3}
        v_mov_b32 v{p+2}, 0x3f803f80
        v_mov_b32 v{p+3}, 0x3f803f80
        buffer_store_dwordx4 {vr(TMP,4)}, v1, s[8:11], s53 offen sc1
        s_nop 1
        {l}:
        s_mov_b64 exec, -1
        buffer_store_dwordx4 {vr(p,4)}, v1, s[8:11], s52 offen offset:{1024*i} sc1""")
    a("s_branch L_pub")
    a.label("L_roleR")
    srd(a, 20, 40, 896)
    a(f"""s_lshl_b32 s28, s{ROT}, 7
    v_add_u32 v4, s28, v1
    v_subrev_u32 v6, 896, v4
    v_min_u32 v4, v4, v6
    s_mov_b32 m0, {QX}
    s_nop 0
    buffer_load_dwordx4 v4, s[20:23], 0 offen lds
    s_mov_b32 s20, s48
    s_mov_b32 s21, s49
    s_mov_b32 m0, {QX+1024}
    s_nop 0
    buffer_load_dwordx4 v4, s[20:23], 0 offen lds
    v_and_b32 v4, 1, v3
    v_lshlrev_b32 v4, 10, v4
    v_lshl_add_u32 v4, v{VH}, 4, v4
    v_add_u32 v{VW}, {QX}, v4
    s_waitcnt vmcnt(0)""")
    gemm("R")
    a(f"""s_cmp_lg_u32 s{RL}, 14
    s_cbranch_scc1 L_pub
    s_mov_b32 exec_hi, 0
    s_nop 9
    v_cvt_pk_bf16_f32 v4, v{A0}, v{A0+1}
    v_and_b32 v5, 0xffff0000, v4
    v_lshlrev_b32 v4, 16, v4
    v_ashrrev_i32 v6, 31, v4
    v_or_b32 v6, 0x80000000, v6
    v_xor_b32 v6, v6, v4
    v_and_b32 v6, 0xffff0000, v6
    v_cmp_u_f32 vcc, v4, v4
    v_cndmask_b32 v6, v6, 0, vcc
    s_lshl_b32 s26, s35, 5
    v_add_u32 v7, s26, v{VT}
    v_sub_u32 v8, 0xffff, v7
    v_or_b32 v6, v6, v8
    v_lshlrev_b32 v9, 3, v7
    v_and_b32 v7, 127, v7
    v_lshlrev_b32 v7, 2, v7
    v_add_u32 v7, {KEYS}, v7
    ds_write_b32 v7, v6
    s_mov_b32 exec_lo, 1
    ds_add_u32 v{VC}, v{V1} offset:{C_K}
    s_mov_b32 exec_lo, -1
    v_mul_f32 v5, {NLOG2E:#x}, v5
    v_exp_f32 v5, v5
    v_add_f32 v5, 1.0, v5
    v_rcp_f32 v5, v5
    v_cvt_pk_bf16_f32 v5, v5, v5
    v_lshlrev_b32 v10, 16, v5
    s_mov_b32 exec_hi, -1
    s_branch L_pub
    """)
    a.label("L_roleV")
    a(f"""v_cmp_eq_u32 vcc, 0, v3
    v_mov_b32 v7, 0x3f803f80
    v_cndmask_b32 v{TMP}, 0, v7, vcc""")
    for e in range(1, 4): a(f"v_mov_b32 v{TMP+e}, v{TMP}")
    gemm("V")
    a(f"s_mov_b64 exec, 0xff\nbuffer_store_dwordx4 {vr(TMP,4)}, v1, s[8:11], s53 offen sc1\ns_mov_b64 exec, -1")
    for i in range(4):
        acc = (A0, A1)[i >> 1] + 8 * (i & 1)
        p = PK + 4 * i
        for e in range(4): a(f"v_cvt_pk_bf16_f32 v{p+e}, v{acc+2*e}, v{acc+2*e+1}")
        a(f"buffer_store_dwordx4 {vr(p,4)}, v1, s[8:11], s52 offen offset:{1024*i} sc1")
    a.label("L_pub")
    st(a, 3)
    a(f"s_add_u32 s56, s{ROT}, 4\ns_cmp_ge_u32 s56, 7\ns_cselect_b32 s26, 7, 0\ns_sub_u32 s56, s56, s26")
    for i in range(4, 7):
        a(f"""s_mul_i32 s26, s56, {64*2688}
        s_add_u32 m0, s63, {i*4096}
        s_add_u32 s26, s26, s62
        buffer_load_dwordx4 v{VWQ}, s[16:19], s26 offen lds""")
        if i < 6: next_chunk(a, 56)
    QO = Q + 8 * OWN
    SK = TMP
    a(f"""s_mov_b64 s[16:17], s[36:37]
    s_mov_b32 s18, {KVB}
    s_mov_b32 s57, 0""")
    def ldK(b, soff, base=None):
        r = KV + 16 * b if base is None else base
        return [f"buffer_load_dwordx4 {vr(r,4)}, v{VA}, s[16:19], {soff} offen sc1",
                f"buffer_load_dwordx4 {vr(r+4,4)}, v{VA+1}, s[16:19], {soff} offen sc1"]
    def ldV(b, soff):
        return [f"buffer_load_dwordx4 {vr(KV+16*b+8,4)}, v{VA+2}, s[16:19], {soff} offen sc1",
                f"buffer_load_dwordx4 {vr(KV+16*b+12,4)}, v{VA+3}, s[16:19], {soff} offen sc1"]
    def try_loads(block=False):
        d = uid("Ltl"); l = uid("Ltr")
        a(f"s_cmp_lg_u32 s57, 0\ns_cbranch_scc1 {d}")
        if block: a(f"s_mov_b32 s60, {SPIN_LIMIT}\n{l}:\ns_sub_u32 s60, s60, 1\ns_cbranch_scc1 L_exit")
        a(f"""ds_read_b32 v4, v{VF} offset:{C_R}
        ds_read_b32 v5, v{VC} offset:{C_R}
        s_waitcnt lgkmcnt(0)
        v_readfirstlane_b32 s56, v4
        v_readfirstlane_b32 s29, v5
        s_min_u32 s57, s56, s29
        s_cmp_eq_u32 s57, 0
        s_cbranch_scc1 {l if block else d}
        s_sub_u32 s29, s29, 1
        s_sub_u32 s27, s56, 1
        s_add_u32 s54, s56, {TS-1}
        s_add_u32 s55, s56, {2*TS-1}
        s_add_u32 s56, s56, {3*TS-1}""")
        st(a, 6)
        for x in ldK(0, "s29", SK) + ldK(0, "s27") + ldV(0, "s27") + ldK(1, "s54") + ldV(1, "s54"): a(x)
        a(f"{d}:")
    def qreads(k):
        f = WF + 4 * (k & 7)
        a(f"ds_read_b64_tr_b16 {vr(f,2)}, v{VQ} offset:{k*1024}\nds_read_b64_tr_b16 {vr(f+2,2)}, v{VQ} offset:{k*1024+256}")
    for lo, hi, cnt in ((0, 16, C_Q1), (16, 28, C_Q2)):
        if lo:
            a(f"""s_mov_b32 s28, {WS_MB}
            v_readfirstlane_b32 s{T}, v11
            v_mov_b32 v6, v11
            s_mov_b64 exec, 1
            s_waitcnt vmcnt(3)""")
            st(a, 4)
            a(f"""ds_add_rtn_u32 v4, v{VC}, v{V1} offset:{C_D}
            s_waitcnt lgkmcnt(0)
            v_cmp_eq_u32 vcc, 3, v4
            s_cbranch_vccz L_notlast
            s_mov_b64 exec, s[64:65]
            s_cbranch_execz L_notlast
            buffer_atomic_swap v6, v{VFS}, s[8:11], s28 offen sc1
            s_waitcnt vmcnt(1)
            s_branch L_published
            L_notlast:
            s_waitcnt vmcnt(0)
            s_cmp_lg_u32 s{RL}, 14
            s_cbranch_scc1 L_published
            s_mov_b32 s26, {WS_G}
            s_mov_b32 exec_lo, -1
            buffer_store_dwordx2 v[10:11], v9, s[8:11], s26 offen sc1
            L_published:""")
            lds_inc(a, VC, C_Q2, V1)
            try_loads()
        spin_lds(a, VC, cnt, 4, 4)
        if not lo: a(f"ds_read_b32 v11, v{VC} offset:{C_T}")
        for k in range(lo, lo + 6): qreads(k)
        for k in range(lo, hi):
            if k + 6 < hi: qreads(k + 6)
            a(f"s_waitcnt lgkmcnt({2*(min(hi-1,k+6)-k)})")
            a(f"{MF} {vr(A0,16)}, {vr(WF+4*(k&7),4)}, {vr(XF+4*k,4)}, {'0' if k==0 else vr(A0,16)}")
    st(a, 5)
    try_loads()
    for i in range(8): a(f"v_mov_b32 v{P+8+i}, 0")
    a(f"""s_lshl_b32 s26, s{W}, 11
    s_add_u32 s26, s26, {QX}
    v_add_u32 v5, s26, v1
    s_mov_b32 s62, {QSCALE:#x}
    s_mov_b32 s63, {QSCALE:#x}""")
    for i in range(8): a(f"v_pk_mul_f32 {vr(A0+2*i,2)}, {vr(A0+2*i,2)}, s[62:63]")
    for i in range(8): a(f"v_cvt_pk_bf16_f32 v{QO+i}, v{A0+2*i}, v{A0+2*i+1}")
    a(f"""s_mov_b32 exec_lo, 0
    v_mov_b32 v{QO+6}, 0
    v_mov_b32 v{QO+7}, 0
    s_mov_b32 exec_lo, -1
    ds_write_b128 v5, {vr(QO,4)}
    ds_write_b128 v5, {vr(QO+4,4)} offset:1024""")
    lds_inc(a, VC, C_X, V1)
    for i in range(0, 64, 2): a(f"v_pk_mul_f32 {vr(O+i,2)}, {vr(P+8,2)}, {vr(P+8,2)}")
    spin_lds(a, VC, C_X, 4, 4)
    for i in range(3):
        a(f"""s_add_u32 s26, s{W}, {i+1}
        s_and_b32 s26, s26, 3
        s_lshl_b32 s26, s26, 11
        s_add_u32 s26, s26, {QX}
        v_add_u32 v5, s26, v1
        ds_read_b128 {vr(Q+8*i,4)}, v5
        ds_read_b128 {vr(Q+8*i+4,4)}, v5 offset:1024""")
    try_loads(block=True)
    def QK(u, m):
        kt, qs = (u >> 2) & 3, u & 3
        s = S + 16 * (u & 1)
        c = "0" if m == 0 else vr(s, 16)
        return f"{MF} {vr(s,16)}, {vr(KV+16*kt+4*m,4)}, {vr(Q+8*qs+4*m,4)}, {c}"
    def PV(u, m):
        kt, qs = (u >> 2) & 3, u & 3
        return f"{MF} {vr(O+16*qs,16)}, {vr(KV+16*kt+8+4*m,4)}, {vr(P+8*(u&1)+4*m,4)}, {vr(O+16*qs,16)}"
    SS = [S, S + 16, KV + 32, KV + 48]
    def samp(i, m): return f"{MF} {vr(SS[i],16)}, {vr(SK+4*m,4)}, {vr(Q+8*i+4*m,4)}, {'0' if m == 0 else vr(SS[i],16)}"
    def mx(i):
        for x in max16_list(4, SS[i]): a(x)
        a(f"s_mov_b32 exec_lo, 0\nv_cvt_pk_bf16_f32 v{Q+8*i+6}, -v4, 0\ns_mov_b32 exec_lo, -1")
    a("s_waitcnt vmcnt(8) lgkmcnt(0)")
    for i in range(4): a(samp(i, 0)); a(samp(i, 1))
    mx(0)
    a("s_waitcnt vmcnt(4)")
    a(QK(0, 0)); a(QK(0, 1))
    mx(1); mx(2)
    for x in ldK(2, "s55") + ldV(2, "s55"): a(x)
    mx(3)
    for x in ldK(3, "s56"): a(x)
    for i in range(0, 8, 2): a(f"v_pk_mul_f32 {vr(KV+56+i,2)}, {vr(P+8,2)}, {vr(P+8,2)}")
    for i in range(3):
        a(f"""s_add_u32 s26, s{W}, {i+1}
        s_and_b32 s26, s26, 3
        s_mul_i32 s26, s26, 12288
        s_add_u32 s26, s26, {CB + i*4096}
        v_add_u32 v{4+i}, s26, v1""")
    a(f"s_mul_i32 s26, s{W}, 12288\ns_add_u32 s26, s26, {CB}\nv_add_u32 v2, s26, v1")
    lds_inc(a, VC, C_L, V1)
    st(a, 7)
    a("s_mov_b32 s57, 3")
    def substep(u, ex, last=False):
        s = S + 16 * (u & 1); p = P + 8 * (u & 1)
        e = lambda i: f"v_exp_f32 v{s+i}, v{s+i}"
        c = lambda i: f"v_cvt_pk_bf16_f32 v{p+i}, v{s+2*i}, v{s+2*i+1}"
        q0, q1 = ([], []) if last else ([QK(u+1, 0)], [QK(u+1, 1)])
        seq = q0 + ex[0] + [e(0), e(1), e(2), e(3), c(0), e(4),
               PV(u-1, 0)] + ex[1] + [e(5), c(1), e(6), e(7), c(2), e(8)] + q1 + ex[2] + [e(9), c(3), e(10), e(11), c(4), e(12),
               PV(u-1, 1)] + ex[3] + [e(13), c(5), e(14), e(15), c(6), c(7)]
        for x in seq: a(x)
    a(".p2align 6")
    a.label("L_loop")
    for u in range(16):
        kt, qs = u >> 2, u & 3
        ex = [[], [], [], []]
        if qs == 1:
            l = ldV((kt + 3) & 3, "s56")
            ex[0] = [l[0]]; ex[1] = [l[1]]; ex[2] = [f"s_add_u32 s56, s56, {TS}"]
        if u == 0: ex[0] = [f"ds_read_b32 v7, v{VF} offset:{C_R+4}"]
        if u == 1:
            ex[2] = ["s_waitcnt lgkmcnt(0)", "v_readfirstlane_b32 s56, v7"]
            ex[3] = ["s_sub_u32 s56, s56, 1"]
        if u == 2:
            ex[0] = ["s_cbranch_scc1 L_nextwait", "L_nextok:", f"v_add_u32 v{VF}, 4, v{VF}"]
        if qs == 2 and "nowait" not in EXP: ex[3] = ["s_waitcnt vmcnt(10)"]
        if qs == 0 and "nowait" not in EXP: ex[3] = ["s_waitcnt vmcnt(10)"]
        if qs == 3:
            l = ldK(kt, "s56")
            ex[0] = [l[0]]; ex[1] = [l[1]]
        if u == 12: ex[0] = [f"ds_read_b32 v7, v{VC} offset:{C_F}"]
        if u == 13: ex[3] = ["s_sub_u32 s57, s57, 1"]
        if "itst" in EXP and u in (0, 8):
            a("s_waitcnt lgkmcnt(0)")
            for i in range(1, 6): a(f"s_mov_b32 s{72+2*i}, s{72+2*i+2}")
            a("s_memtime s[84:85]")
        if "noload" in EXP: ex = [[y for y in x if "buffer_load" not in y] for x in ex]
        substep(u, ex)
        if u == 13: a("s_cbranch_scc1 L_tail")
    a("s_branch L_loop")
    a.label("L_tail")
    st(a, 8)
    a(f"""s_waitcnt lgkmcnt(0)
    v_cmp_gt_u32 vcc, 4, v7
    s_cbranch_vccnz L_wait_ffn
    L_ffn_free:""")
    wr = lambda i, k: f"ds_write_b128 v{4+i}, {vr(O+16*i+4*k,4)} offset:{k*1024}"
    substep(14, [[], [wr(0, 0)], [wr(0, 1)], [wr(0, 2)]])
    substep(15, [[wr(0, 3)], [wr(1, 0)], [wr(1, 1)], [wr(1, 2)]], last=True)
    a(PV(15, 0)); a(wr(1, 3)); a(PV(15, 1))
    for k in range(4): a(wr(2, k))
    lds_inc(a, VC, C_C, V1)
    srd(a, 20, 50, 2048 * 896)
    TT = S
    OO = O + 16 * OWN
    a(f"""s_lshl_b32 s28, s35, 4
    s_add_u32 s28, s28, s{H}
    s_lshr_b32 s56, s28, 2
    s_lshl_b32 s56, s56, 5
    s_and_b32 s26, s{H}, 3
    s_add_u32 s56, s56, s26
    s_lshl_b32 s56, s56, 2
    s_add_u32 s56, s56, {WS_OFL}
    s_lshl_b32 s52, s28, 11
    s_add_u32 s52, s52, {WS_O}
    s_mov_b32 s57, 0""")
    spin_lds(a, VC, C_C, 4, 7)
    for k in range(12): a(f"ds_read_b128 {vr(TT+4*k,4)}, v2 offset:{k*1024}")
    a(f"s_lshl_b32 s26, s{W}, 2\nv_add_u32 v7, s26, v{VC}\nds_write_b32 v7, v{V1} offset:{C_P}")
    for i in range(3):
        a(f"s_waitcnt lgkmcnt({9-4*i})")
        for k in (6, 7, 0, 1, 2, 3, 4, 5): a(f"v_pk_add_f32 {vr(OO+2*k,2)}, {vr(OO+2*k,2)}, {vr(TT+16*i+2*k,2)}")
    a.label("L_fin")
    a(f"""v_mov_b32 v5, v{OO+12}
    v_mov_b32 v4, v{OO+12}
    s_mov_b32 exec_lo, 0
    v_mov_b32 v{OO+12}, 0
    s_mov_b32 exec_lo, -1
    v_permlane32_swap_b32 v5, v4
    v_rcp_f32 v6, v4
    s_mov_b32 s28, 0x30800000
    s_mov_b32 s29, 0x4e800000
    v_cmp_nle_f32 s[54:55], s28, v4
    v_cmp_nge_f32 s[62:63], s29, v4
    v_pk_add_f32 v[4:5], {vr(OO,2)}, {vr(OO+2,2)}""")
    for k in range(2, 8): a(f"v_pk_add_f32 v[4:5], v[4:5], {vr(OO+2*k,2)}")
    a(f"""v_add_f32 v4, v4, v5
    s_movk_i32 s28, 0x207
    v_cmp_class_f32 vcc, v4, s28
    s_or_b64 s[54:55], s[54:55], s[62:63]""")
    for k in range(8): a(f"v_pk_mul_f32 {vr(OO+2*k,2)}, {vr(OO+2*k,2)}, v[6:7] op_sel_hi:[1,0]")
    for k in range(8): a(f"v_cvt_pk_bf16_f32 v{Q+k}, v{OO+2*k}, v{OO+2*k+1}")
    a(f"""v_mov_b32 v6, s{T}
    s_or_b64 s[54:55], s[54:55], vcc
    s_cbranch_scc1 L_bad
    L_good:
    buffer_store_dwordx4 {vr(Q,4)}, v1, s[8:11], s52 offen sc1
    buffer_store_dwordx4 {vr(Q+4,4)}, v1, s[8:11], s52 offen offset:1024 sc1
    s_mov_b64 exec, 1
    buffer_atomic_swap v6, v{VZ}, s[8:11], s56 offen sc1
    s_mov_b64 exec, -1""")
    st(a, 9)
    a(f"""s_mov_b32 s26, {WS_G}
    buffer_load_dwordx2 {vr(GR,2)}, v{VGO}, s[8:11], s26 offen sc1
    buffer_load_dwordx4 {vr(XR,4)}, v{VXO}, s[12:15], s59 offen
    buffer_load_dwordx4 {vr(XR+4,4)}, v{VXO}, s[12:15], s59 offen offset:32""")
    WOF = 104; B = 232; ACC = 8; U = 40
    OSB = [40, 72]
    a(f"""v_bfe_u32 v4, v3, 2, 2
    v_lshl_add_u32 v4, v{VH}, 2, v4
    v_mul_u32_u24 v4, 224, v4
    v_bfe_u32 v5, v3, 4, 1
    v_lshl_add_u32 v4, v5, 5, v4
    v_and_b32 v5, 1, v3
    v_lshl_add_u32 v4, v5, 4, v4
    v_bfe_u32 v5, v3, 1, 1
    v_lshl_add_u32 v4, v5, 3, v4
    s_mul_i32 s28, s{W}, 56
    v_add_u32 v24, s28, v4
    v_add_u32 v25, {8*28*224}, v24
    v_add_u32 v26, {CB}, v1
    v_lshlrev_b32 v27, 2, v{VT}
    v_add_u32 v27, {UPDI}, v27
    s_mul_i32 s28, s{W}, 112
    s_add_u32 s28, s28, {UPD}
    v_lshl_add_u32 v28, v{VH}, 5, s28
    v_mov_b32 v29, {CNT}
    v_mov_b32 v30, 0
    v_mov_b32 v31, 0
    s_waitcnt vmcnt(6)""")
    spin_lds(a, 29, C_W, 2, 6)
    for k in range(32):
        hd, m = k >> 1, k & 1
        o = (28 * (hd & 7) + 16 * m) * 224
        b = 24 + (hd >> 3)
        a(f"ds_read_b64_tr_b16 {vr(WOF+4*k,2)}, v{b} offset:{o}\nds_read_b64_tr_b16 {vr(WOF+4*k+2,2)}, v{b} offset:{o+8*224}")
    for k in range(8): a(f"v_pk_mul_f32 {vr(ACC+2*k,2)}, v[30:31], v[30:31]")
    a("s_waitcnt vmcnt(0)")
    for k in range(8):
        a(f"v_lshlrev_b32 v{B+2*k}, 16, v{XR+k}\nv_and_b32 v{B+2*k+1}, 0xffff0000, v{XR+k}")
    a(f"""v_cmp_ne_u32 vcc, s{T}, v{GR+1}
    s_cbranch_vccnz L_gate
    L_gate_ok:
    v_sub_f32 v32, 1.0, v{GR}
    v_cvt_pk_bf16_f32 v32, v32, v32
    v_lshlrev_b32 v32, 16, v32
    s_movk_i32 s57, 0x40f
    s_mov_b32 s60, {SPIN_LIMIT}""")
    if "twait" not in EXP: st(a, 10)
    def rd(p):
        a(f"""s_ff1_i32_b32 s27, s26
        s_bitset0_b32 s57, s27
        s_mul_i32 s28, s27, 12288
        v_add_u32 v7, s28, v26""")
        for k in range(8): a(f"ds_read_b128 {vr(OSB[p]+4*k,4)}, v7 offset:{k*1024}")
    a(f"""L_idle:
    ds_read_b32 v6, v29 offset:{C_O}
    s_sub_u32 s60, s60, 1
    s_cbranch_scc1 L_exit
    s_waitcnt lgkmcnt(0)
    v_readfirstlane_b32 s61, v6
    s_and_b32 s26, s61, s57
    s_cbranch_scc0 L_idle
    s_bitcmp1_b32 s26, 10
    s_cbranch_scc1 L_blkU""")
    rd(0)
    a(f"ds_read_b32 v6, v29 offset:{C_O}")
    for p in range(2):
        a(f"""L_st{p}:
        s_mov_b32 s29, s27
        s_waitcnt lgkmcnt(0)
        v_readfirstlane_b32 s61, v6
        s_and_b32 s26, s61, s57
        s_and_b32 s26, s26, 15
        s_cbranch_scc0 L_mm{p}""")
        rd(1 - p)
        a(f"""ds_read_b32 v6, v29 offset:{C_O}
        L_mm{p}:
        s_cmp_eq_u32 s29, 1
        s_cbranch_scc1 L_m{p}1
        s_cmp_eq_u32 s29, 2
        s_cbranch_scc1 L_m{p}2
        s_cmp_eq_u32 s29, 3
        s_cbranch_scc1 L_m{p}3""")
        for g in range(4):
            a(f"L_m{p}{g}:")
            for k in range(8):
                a(f"{MF} {vr(ACC,16)}, {vr(WOF+32*g+4*k,4)}, {vr(OSB[p]+4*k,4)}, {vr(ACC,16)}")
            if g < 3: a(f"s_branch L_md{p}")
        a(f"""L_md{p}:
        s_cmp_lg_u32 s26, 0
        s_cbranch_scc1 L_st{1-p}""")
        if p == 0: a("s_branch L_next")
    a("L_next:\ns_cmp_lg_u32 s57, 0\ns_cbranch_scc1 L_idle")
    if "twait" not in EXP: st(a, 11)
    a("s_nop 7")
    for m in range(2):
        for e in range(4*m, 4*m+4):
            a(f"v_pk_fma_f32 {vr(B+2*e,2)}, {vr(ACC+2*e,2)}, {vr(GR,2)}, {vr(B+2*e,2)} op_sel_hi:[1,0,1]")
        for e in range(4*m, 4*m+4): a(f"v_cvt_pk_bf16_f32 v{40+e}, v{B+2*e}, v{B+2*e+1}")
        if m == 0:
            a(f"buffer_store_dwordx4 v[40:43], v{VXO}, s[20:23], s59 offen{OUTAUX}")
        else:
            a(f"""s_mov_b32 exec_hi, 0
            buffer_store_dwordx4 v[44:47], v{VXO}, s[20:23], s59 offen offset:32{OUTAUX}
            s_mov_b64 exec, 0xffffffff
            s_not_b64 exec, exec
            buffer_store_dwordx2 v[44:45], v{VXO}, s[20:23], s59 offen offset:32{OUTAUX}""")
    st_end(a)
    diag_end(a)
    a("s_endpgm")
    a(f"""L_blkU:
    ds_read_b32 v6, v27
    s_bitset0_b32 s57, 10
    s_waitcnt lgkmcnt(0)
    v_cmp_le_i32 vcc, 0, v6
    s_cbranch_vccz L_noupd
    s_mov_b64 exec, vcc
    v_mul_u32_u24 v6, 448, v6
    v_add_u32 v28, v28, v6""")
    for k in range(4): a(f"ds_read_b128 {vr(U+4*k,4)}, v28 offset:{64*(k>>1)+16*(k&1)}")
    a("s_waitcnt lgkmcnt(0)")
    for k in range(8):
        a(f"""v_pk_add_f32 {vr(B+2*k,2)}, {vr(B+2*k,2)}, {vr(U+2*k,2)}
        v_cvt_pk_bf16_f32 v{B+2*k}, v{B+2*k}, v{B+2*k+1}
        v_and_b32 v{B+2*k+1}, 0xffff0000, v{B+2*k}
        v_lshlrev_b32 v{B+2*k}, 16, v{B+2*k}""")
    a("s_mov_b64 exec, -1\nL_noupd:")
    for k in range(8): a(f"v_pk_mul_f32 {vr(B+2*k,2)}, {vr(B+2*k,2)}, v[32:33] op_sel_hi:[1,0]")
    a("s_branch L_next")
    a("L_bad:\ns_cmp_eq_u32 s57, 0\ns_cbranch_scc1 L_slow")
    for k in range(8): a(f"v_min_u32 v{Q+k}, -2, v{Q+k}")
    a("s_branch L_good")
    a.label("L_wait_ffn")
    spin_lds(a, VC, C_F, 4, 7)
    a("s_branch L_ffn_free")
    a.label("L_nextwait")
    spin_lds(a, VF, C_R + 4, 1, 7)
    a("s_sub_u32 s56, s61, 1\ns_branch L_nextok")
    a(f"""L_gate:
    s_mov_b32 s26, {WS_G}
    s_mov_b32 s60, {SPIN_LIMIT}
    L_gate1:
    buffer_load_dwordx2 {vr(GR,2)}, v{VGO}, s[8:11], s26 offen sc1
    s_waitcnt vmcnt(0)
    v_cmp_ne_u32 vcc, s{T}, v{GR+1}
    s_cbranch_vccz L_gate_ok
    s_sub_u32 s60, s60, 1
    s_cbranch_scc0 L_gate1
    s_endpgm""")
    a.label("L_slow")
    a(f"""s_mov_b32 s57, 1
    s_mov_b32 s55, {KVB}
    s_mov_b32 s54, 0
    s_mov_b32 exec_lo, 0
    v_mov_b32 v{QO+6}, 0
    v_mov_b32 v{QO+7}, 0
    s_mov_b32 exec_lo, -1
    v_mov_b32 v4, 0xff800000
    L_slow1:
    {ldK(0, "s54")[0]}
    {ldK(0, "s54")[1]}
    s_waitcnt vmcnt(0)
    {MF} {vr(S,16)}, {vr(KV,4)}, {vr(QO,4)}, 0
    {MF} {vr(S,16)}, {vr(KV+4,4)}, {vr(QO+4,4)}, {vr(S,16)}""")
    for x in max16_list(4, S, init=True): a(x)
    a(f"""s_add_u32 s54, s54, {TS}
    s_cmp_lt_u32 s54, s55
    s_cbranch_scc1 L_slow1
    v_mov_b32 v5, v4
    v_permlane32_swap_b32 v4, v5
    v_max_f32 v4, v4, v5""")
    split_neg_max(a, 4, 5, 6, QO + 6, QO + 7)
    for i in range(16): a(f"v_mov_b32 v{OO+i}, 0")
    a(f"""s_mov_b32 s54, 0
    L_slow2:
    {ldK(0, "s54")[0]}
    {ldK(0, "s54")[1]}
    {ldV(0, "s54")[0]}
    {ldV(0, "s54")[1]}
    s_waitcnt vmcnt(0)
    {MF} {vr(S,16)}, {vr(KV,4)}, {vr(QO,4)}, 0
    {MF} {vr(S,16)}, {vr(KV+4,4)}, {vr(QO+4,4)}, {vr(S,16)}""")
    for i in range(16): a(f"v_exp_f32 v{S+i}, v{S+i}")
    for i in range(8): a(f"v_cvt_pk_bf16_f32 v{P+i}, v{S+2*i}, v{S+2*i+1}")
    a(f"""{MF} {vr(OO,16)}, {vr(KV+8,4)}, {vr(P,4)}, {vr(OO,16)}
    {MF} {vr(OO,16)}, {vr(KV+12,4)}, {vr(P+4,4)}, {vr(OO,16)}
    s_nop 7
    s_nop 7
    s_add_u32 s54, s54, {TS}
    s_cmp_lt_u32 s54, s55
    s_cbranch_scc1 L_slow2
    s_branch L_fin""")

def service_wave(a):
    a.label("L_service")
    a(f"""v_mov_b32 v14, {CNT}
    v_mov_b32 v15, 1
    v_mov_b32 v9, 0""")
    srd(a, 8, 36, (1 << 28) - WSBASE)
    a("s_waitcnt lgkmcnt(0)")
    tag(a)
    a(f"v_mov_b32 v4, s{T}\nds_write_b32 v14, v4 offset:{C_T}\ns_waitcnt vmcnt(0)")
    lds_inc(a, 14, C_Q1, 15)
    a(f"""v_and_b32 v32, 31, v3
    v_lshrrev_b32 v33, 5, v3
    v_lshlrev_b32 v219, 3, v1
    v_lshrrev_b32 v220, 2, v1
    v_and_b32 v4, 7, v3
    v_lshlrev_b32 v217, 3, v4
    s_lshr_b32 s58, s{H}, 2
    s_lshl2_add_u32 s58, s{J}, s58
    s_cmp_ge_u32 s{L}, 2
    s_cbranch_scc1 L_svcB""")
    def sel_load(lbl):
        a(f"""s_mov_b32 s26, {WS_SEL}
        s_mov_b32 s60, {SPIN_LIMIT}
        {lbl}:
        buffer_load_dwordx2 v[20:21], v217, s[8:11], s26 offen sc1
        s_waitcnt vmcnt(0)
        v_cmp_ne_u32 vcc, s{T}, v21
        s_cbranch_vccz {lbl}_ok
        s_sleep 4
        s_sub_u32 s60, s60, 1
        s_cbranch_scc0 {lbl}
        s_endpgm
        {lbl}_ok:""")
    a(f"""v_mov_b32 v6, {KEYS}
    s_lshl_b32 s28, s{L}, 8
    v_add3_u32 v7, v220, v6, s28
    s_lshl_b32 s27, s{J}, 6
    s_add_u32 s27, s27, {WS_R}
    s_cmp_eq_u32 s{RL}, 14
    s_cbranch_scc1 L_rank
    s_cmp_lg_u32 s2, {SELECTOR}
    s_cbranch_scc1 L_svcA
    s_lshl_b32 s26, s{L}, 9
    s_add_u32 s26, s26, {WS_R}
    s_mov_b32 s27, {WS_SEL}
    v_lshlrev_b32 v4, 3, v3
    v_mov_b32 v5, 2
    s_mov_b32 s60, {SPIN_LIMIT}
    L_keys:
    v_mov_b32 v20, 0
    v_mov_b32 v21, 0
    buffer_atomic_or_x2 v[20:21], v4, s[8:11], s26 offen sc0 sc1
    s_sub_u32 s60, s60, 1
    s_cbranch_scc1 L_exit
    s_waitcnt vmcnt(0)
    v_cmp_ne_u32 vcc, s{T}, v21
    s_cbranch_vccnz L_keys
    ds_write_b32 v7, v20""")
    lds_inc(a, 14, C_K, 5)
    a.label("L_rank")
    spin_lds(a, 14, C_K, 4, 8)
    st(a, 10)
    if STAMP: a("s_waitcnt lgkmcnt(0)")
    a(f"ds_read_b32 v20, v7\nv_mov_b32 v22, 0\nv_mov_b32 v21, s{T}\ns_mov_b32 s57, 0\nL_rk:")
    for k in range(8): a(f"ds_read_b128 {vr(40+4*k,4)}, v6 offset:{16*k}")
    a("v_add_u32 v6, 128, v6")
    CS = ["s[52:53]", "s[54:55]", "s[62:63]", "s[28:29]"]
    for k in range(8):
        a(f"s_waitcnt lgkmcnt({7-k})")
        for e in range(4): a(f"v_cmp_gt_u32 {CS[e]}, v{40+4*k+e}, v20")
        for e in range(4): a(f"v_addc_co_u32 v22, vcc, 0, v22, {CS[e]}")
    a(f"""s_add_u32 s57, s57, 1
    s_cmp_lt_u32 s57, 4
    s_cbranch_scc1 L_rk
    v_cmp_gt_u32 vcc, 8, v22
    v_lshlrev_b32 v22, 3, v22
    s_mov_b64 exec, vcc
    s_cbranch_execz L_rank_done
    buffer_atomic_swap_x2 v[20:21], v22, s[8:11], s27 offen sc1
    L_rank_done:
    s_mov_b64 exec, -1""")
    st(a, 11)
    a.label("L_svcA")
    GI = CB; DI = QX; HB = 101376
    FT, KS = 56, 59
    a(f"""s_cmp_ge_u32 s2, 196
    s_cbranch_scc1 L_nofn
    s_mul_i32 s{FT}, s2, 9363
    s_lshr_b32 s{FT}, s{FT}, 16
    s_mul_i32 s26, s{FT}, 7
    s_sub_u32 s{KS}, s2, s26
    v_lshrrev_b32 v4, 3, v3
    v_and_b32 v5, 2, v4
    v_lshlrev_b32 v5, 1, v5
    v_and_b32 v6, 7, v3
    v_xor_b32 v5, v5, v6
    v_mul_u32_u24 v6, 3584, v4
    v_lshl_add_u32 v34, v5, 4, v6
    v_add_u32 v35, {8*3584-1024}, v34
    v_add_u32 v36, {2*(8*3584-1024)}, v34
    v_add_u32 v37, {3*(8*3584-1024)}, v34
    v_lshrrev_b32 v6, 2, v3
    v_mul_u32_u24 v6, 896, v6
    v_and_b32 v5, 3, v3
    v_lshl_add_u32 v200, v5, 4, v6
    v_add_u32 v201, {16*896-1024}, v200
    v_add_u32 v202, {2*(16*896-1024)}, v200
    v_add_u32 v203, {3*(16*896-1024)}, v200
    ; transposing-read base: (8hh + r)*128 + ((r>>1)&1)*64 + colhalf*32 + c*8
    v_bfe_u32 v4, v3, 2, 2
    v_lshl_add_u32 v5, v33, 3, v4
    v_lshlrev_b32 v5, 7, v5
    v_lshrrev_b32 v4, 1, v4
    v_lshl_add_u32 v5, v4, 6, v5
    v_bfe_u32 v4, v3, 4, 1
    v_lshl_add_u32 v5, v4, 5, v5
    v_and_b32 v4, 3, v3
    v_lshl_add_u32 v5, v4, 3, v5
    s_lshl_b32 s54, s{L}, 13
    s_add_u32 s54, s54, {GI}
    v_add_u32 v38, s54, v5
    v_xor_b32 v39, 64, v38
    v_lshrrev_b32 v6, 7, v5
    v_and_b32 v5, 63, v5
    v_lshl_add_u32 v5, v6, 6, v5
    s_lshl_b32 s26, s{L}, 12
    s_add_u32 s26, s26, {DI}
    v_add_u32 v210, s26, v5
    ; partial-sum store offset 4hh*256 + col*4 ; h addresses ; y offsets
    v_lshlrev_b32 v212, 10, v33
    v_lshl_add_u32 v212, v32, 2, v212
    s_lshl_b32 s26, s{L}, 9
    s_add_u32 s26, s26, {HB}
    v_lshl_add_u32 v214, v3, 3, s26
    v_lshlrev_b32 v4, 4, v217
    v_lshl_add_u32 v4, v33, 4, v4
    v_add_u32 v218, {HB}, v4
    v_mul_u32_u24 v215, {4*1792}, v33
    v_lshl_add_u32 v215, v32, 2, v215
    v_add_u32 v216, {2*1792}, v215""")
    srd(a, 16, 42, 448 * 3584)
    a(f"""s_cmp_eq_u32 s{L}, 1
    s_cselect_b64 s[16:17], s[44:45], s[42:43]
    s_mul_i32 s52, s{KS}, {64*3584}
    s_lshl_b32 s28, s{FT}, 7
    s_add_u32 s52, s52, s28""")
    spin_lds(a, 14, C_L, 4, 8, sleep=2)
    st(a, 3)
    NR = 2 if "fine" in EXP else 4
    XS_ = 40; FW = 56; AC = 104
    a("s_mov_b32 m0, s54\ns_nop 0")
    for k in range(8):
        if k == 4: a(f"s_add_u32 s52, s52, {32*3584}\ns_add_u32 m0, s54, 4096")
        if k == 8 - NR: sel_load("L_sel1")
        elif k and k % NR == 0: a("s_waitcnt vmcnt(0)")
        a(f"buffer_load_dwordx4 v{34+(k&3)}, s[16:19], s52 offen offset:{1024*(k&3)} lds")
    a(f"""v_and_b32 v4, 0xffff, v20
    v_sub_u32 v4, 0xffff, v4
    v_mul_u32_u24 v4, 896, v4
    v_lshl_add_u32 v4, v33, 4, v4
    s_lshl_b32 s26, s{KS}, 7
    s_mov_b32 exec_lo, 0xff
    s_mov_b32 exec_hi, 0xff""")
    for k in range(4):
        a(f"buffer_load_dwordx4 {vr(XS_+4*k,4)}, v4, s[12:15], s26 offen offset:{32*k}")
    a("s_mov_b64 exec, -1\ns_waitcnt vmcnt(4)")
    for k in range(4):
        for n in range(2):
            a(f"ds_read_b64_tr_b16 {vr(FW+8*k+4*n,2)}, v{38+n} offset:{k*2048}\nds_read_b64_tr_b16 {vr(FW+8*k+4*n+2,2)}, v{38+n} offset:{k*2048+512}")
    lds_inc(a, 14, C_F, 15)
    a(f"""s_mov_b64 s[16:17], s[46:47]
    s_mul_i32 s28, s{FT}, {64*896}
    s_add_u32 s28, s28, s26
    s_lshl_b32 s29, s{L}, 6
    s_add_u32 s28, s28, s29
    s_lshl_b32 s29, s{L}, 12
    s_add_u32 m0, s29, {DI}
    s_lshl1_add_u32 s26, s2, s{L}
    s_lshl_b32 s26, s26, 11
    s_add_u32 s26, s26, {WS_GP}
    s_waitcnt lgkmcnt(0)""")
    st(a, 4)
    for k in range(4):
        a(f"s_waitcnt vmcnt({3-k})")
        for n in range(2):
            a(f"{MF} {vr(AC+16*n,16)}, {vr(XS_+4*k,4)}, {vr(FW+8*k+4*n,4)}, {'0' if k==0 else vr(AC+16*n,16)}")
    for n in range(2):
        for k in range(4):
            a(f"buffer_store_dword v{AC+16*n+k}, v212, s[8:11], s26 offen offset:{256*k+128*n} sc1")
    for k in range(4): a(f"buffer_load_dwordx4 v{200+k}, s[16:19], s28 offen offset:{1024*k} lds")
    a(f"""s_lshl1_add_u32 s26, s{KS}, s{L}
    s_lshl_b32 s26, s26, 2
    s_mul_i32 s28, s{FT}, {7*128}
    s_add_u32 s26, s26, s28
    s_add_u32 s26, s26, {WS_F1}
    s_waitcnt vmcnt(4)""")
    signal(a, 5, 219, "s26", "0x7f")
    st(a, 5)
    a(f"s_lshl_b32 s26, s2, 7\ns_add_u32 s26, s26, {WS_F1}")
    poll_atomic(a, 5, 220, "s26", "0x3fff", 0)
    st(a, 6)
    GP = 40
    a(f"s_mul_i32 s26, s{FT}, {7*4096}\ns_lshl_b32 s28, s{L}, 10\ns_add_u32 s26, s26, s28\ns_add_u32 s26, s26, {WS_GP}")
    for k in range(7):
        a(f"""buffer_load_dwordx4 {vr(GP+8*k,4)}, v1, s[8:11], s26 offen sc1
        buffer_load_dwordx4 {vr(GP+8*k+4,4)}, v1, s[8:11], s26 offen offset:2048 sc1""")
        if k < 6: a("s_add_u32 s26, s26, 4096")
    DW = 120
    for k in range(4):
        a(f"ds_read_b64_tr_b16 {vr(DW+4*k,2)}, v210 offset:{k*1024}\nds_read_b64_tr_b16 {vr(DW+4*k+2,2)}, v210 offset:{k*1024+256}")
    a(f"s_mov_b32 s28, {NLOG2E:#x}\ns_mov_b32 s29, {NLOG2E:#x}\ns_waitcnt vmcnt(0)")
    for k in range(1, 7):
        for e in range(4):
            a(f"v_pk_add_f32 {vr(GP+2*e,2)}, {vr(GP+2*e,2)}, {vr(GP+8*k+2*e,2)}")
    for e in range(2):
        a(f"""v_cvt_pk_bf16_f32 v22, v{GP+2*e}, v{GP+2*e+1}
        v_cvt_pk_bf16_f32 v24, v{GP+4+2*e}, v{GP+5+2*e}
        v_and_b32 v23, 0xffff0000, v22
        v_lshlrev_b32 v22, 16, v22
        v_pk_mul_f32 v[26:27], v[22:23], s[28:29]
        v_and_b32 v25, 0xffff0000, v24
        v_exp_f32 v26, v26
        v_exp_f32 v27, v27
        v_lshlrev_b32 v24, 16, v24
        v_pk_add_f32 v[26:27], v[26:27], 1.0 op_sel_hi:[1,0]
        v_rcp_f32 v26, v26
        v_rcp_f32 v27, v27
        s_nop 0
        v_pk_mul_f32 v[22:23], v[22:23], v[26:27]
        v_cvt_pk_bf16_f32 v22, v22, v23
        v_and_b32 v23, 0xffff0000, v22
        v_lshlrev_b32 v22, 16, v22
        v_pk_mul_f32 v[22:23], v[22:23], v[24:25]
        v_cvt_pk_bf16_f32 v{28+e}, v22, v23""")
    a("ds_write_b64 v214, v[28:29]")
    lds_inc(a, 14, C_S, 15)
    spin_lds(a, 14, C_S, 2, 8)
    for k in range(4): a(f"ds_read_b128 {vr(GP+4*k,4)}, v218 offset:{32*k}")
    for k in range(4):
        a(f"s_waitcnt lgkmcnt({3-k})\n{MF} {vr(AC,16)}, {vr(GP+4*k,4)}, {vr(DW+4*k,4)}, {'0' if k==0 else vr(AC,16)}")
    a(f"""s_mul_i32 s26, s{FT}, 14336
    s_lshl1_add_u32 s28, s{KS}, s{L}
    s_lshl_b32 s29, s28, 7
    s_add_u32 s26, s26, s29
    s_add_u32 s26, s26, {WS_YP}
    s_lshl2_add_u32 s28, s{FT}, s29
    s_add_u32 s28, s28, {WS_YFL}
    buffer_store_dword v{AC}, v215, s[8:11], s26 offen sc1
    buffer_store_dword v{AC+1}, v215, s[8:11], s26 offen offset:1792 sc1
    buffer_store_dword v{AC+2}, v216, s[8:11], s26 offen sc1
    buffer_store_dword v{AC+3}, v216, s[8:11], s26 offen offset:1792 sc1
    s_waitcnt vmcnt(0)""")
    signal(a, 5, 9, "s28", 1)
    st(a, 7)
    a("s_branch L_updA")
    a.label("L_nofn")
    lds_inc(a, 14, C_F, 15)
    spin_lds(a, 14, C_F, 4, 8, sleep=8)
    sel_load("L_sel2")
    a(f"""s_lshl2_add_u32 s26, s2, s{L}
    s_cmp_lg_u32 s26, {254*4}
    s_cbranch_scc1 L_updA""")
    a(f"s_mov_b32 s60, {SPIN_LIMIT}\nL_ep:")
    for k in range(4):
        a(f"s_mov_b32 s26, {WS_FL+8192*k}\nbuffer_load_dword v{24+k}, v219, s[8:11], s26 offen sc1")
    a(f"""s_sub_u32 s60, s60, 1
    s_cbranch_scc1 L_exit
    s_waitcnt vmcnt(0)
    v_xor_b32 v24, s{T}, v24
    v_bitop3_b32 v24, v24, v25, s{T} bitop3:0xf6
    v_bitop3_b32 v24, v24, v26, s{T} bitop3:0xf6
    v_bitop3_b32 v24, v24, v27, s{T} bitop3:0xf6
    v_cmp_ne_u32 vcc, 0, v24
    s_cbranch_vccnz L_ep
    s_mov_b32 s26, {WS_EP}""")
    flag_store(a, 5, 9, "s26")
    Y = 40
    a(f"""L_updA:
    s_and_b32 s53, s{H}, 3
    s_mul_i32 s53, s53, 224
    s_lshl_b32 s57, s{L}, 2
    s_lshr_b32 s26, s53, 6
    s_lshl_b32 s26, s26, 7
    s_add_u32 s62, s26, {WS_YFL}
    L_upd:
    v_readlane_b32 s52, v20, s57
    s_and_b32 s54, s52, 0xffff
    s_sub_u32 s54, 0xffff, s54
    s_lshr_b32 s26, s54, 5
    s_cmp_lg_u32 s26, s58
    s_cbranch_scc1 L_updn
    s_mov_b32 s60, {SPIN_LIMIT}
    s_mov_b32 exec_lo, 0x0fffffff
    s_mov_b32 exec_hi, 0x0fffffff
    L_yfl:
    v_mov_b32 v24, 0
    v_mov_b32 v25, 0
    buffer_atomic_or v24, v220, s[8:11], s62 offen sc0 sc1
    buffer_atomic_or v25, v220, s[8:11], s62 offen offset:256 sc0 sc1
    s_waitcnt vmcnt(0)
    v_xor_b32 v24, s{T}, v24
    v_bitop3_b32 v24, v24, v25, s{T} bitop3:0xf6
    v_cmp_ne_u32 vcc, 0, v24
    s_cbranch_vccz L_yok
    s_sub_u32 s60, s60, 1
    s_cbranch_scc0 L_yfl
    s_endpgm
    L_yok:
    v_mul_u32_u24 v4, {14*14336}, v33
    v_lshl_add_u32 v4, v32, 4, v4
    s_mul_i32 s26, s57, 1792
    s_lshl1_add_u32 s26, s53, s26
    s_add_u32 s26, s26, {WS_YP}""")
    for i in range(14):
        a(f"buffer_load_dwordx4 {vr(Y+4*i,4)}, v4, s[8:11], s26 offen sc1\ns_add_u32 s26, s26, 14336")
    a(f"""s_mov_b64 exec, -1
    s_lshr_b32 s26, s52, 16
    s_not_b32 s55, s26
    s_and_b32 s29, s26, 0x7fff
    s_bitcmp1_b32 s26, 15
    s_cselect_b32 s26, s29, s55
    s_lshl_b32 s26, s26, 16
    v_mov_b32 v6, {NLOG2E:#x}
    v_mul_f32 v6, s26, v6
    v_exp_f32 v6, v6
    v_add_f32 v6, 1.0, v6
    v_rcp_f32 v6, v6
    v_cvt_pk_bf16_f32 v6, v6, v6
    v_lshlrev_b32 v6, 16, v6
    s_mul_i32 s26, s57, 448
    s_add_u32 s26, s26, {UPD}
    v_lshl_add_u32 v7, v32, 4, s26
    s_waitcnt vmcnt(0)""")
    for i in range(1, 14):
        a(f"v_pk_add_f32 {vr(Y,2)}, {vr(Y,2)}, {vr(Y+4*i,2)}\nv_pk_add_f32 {vr(Y+2,2)}, {vr(Y+2,2)}, {vr(Y+4*i+2,2)}")
    for k in range(4): a(f"v_mov_b32 v{Y+4+k}, v{Y+k}")
    for k in range(4): a(f"v_permlane32_swap_b32 v{Y+k}, v{Y+4+k}")
    for k in range(4): a(f"v_add_f32 v{Y+k}, v{Y+k}, v{Y+4+k}")
    for k in range(0, 4, 2):
        a(f"""v_cvt_pk_bf16_f32 v{Y+k}, v{Y+k}, v{Y+k+1}
        v_and_b32 v{Y+k+1}, 0xffff0000, v{Y+k}
        v_lshlrev_b32 v{Y+k}, 16, v{Y+k}
        v_mul_f32 v{Y+k}, v{Y+k}, v6
        v_mul_f32 v{Y+k+1}, v{Y+k+1}, v6
        v_cvt_pk_bf16_f32 v{Y+k}, v{Y+k}, v{Y+k+1}
        v_and_b32 v{Y+k+1}, 0xffff0000, v{Y+k}
        v_lshlrev_b32 v{Y+k}, 16, v{Y+k}""")
    a(f"""s_and_b32 s54, s54, 31
    v_mov_b32 v5, s57
    s_lshl_b32 s26, s54, 2
    s_add_u32 s26, s26, {UPDI}
    v_mov_b32 v4, s26
    s_mov_b64 exec, 0x0fffffff
    ds_write_b128 v7, {vr(Y,4)}
    s_mov_b64 exec, 1
    ds_write_b32 v4, v5
    s_mov_b64 exec, -1
    L_updn:
    s_add_u32 s57, s57, 1
    s_and_b32 s26, s57, 3
    s_cbranch_scc1 L_upd
    v_mov_b32 v6, 512""")
    lds_inc(a, 14, C_O, 6)
    st(a, 9)
    a("s_branch L_ofetch")
    a.label("L_svcB")
    OUTT = ""
    if "outtouch" in EXP:
        OUTT = f"""s_cmp_lg_u32 s55, {42*1024}
        s_cbranch_scc1 L_noot
        s_mov_b32 s20, s50
        s_mov_b32 s21, s51
        s_mov_b32 s22, {2048*896}
        s_mov_b32 s23, 0x20000
        s_lshl_b32 s26, s58, 5
        v_add_u32 v4, s26, v32
        v_mul_u32_u24 v4, 896, v4
        s_add_u32 s26, s53, 127
        s_and_b32 s26, s26, 0xffffff80
        v_lshl_add_u32 v4, v33, 7, v4
        s_cmp_eq_u32 s53, 672
        s_cselect_b32 exec_hi, 0, -1
        buffer_store_dword v9, v4, s[20:23], s26 offen sc1
        s_mov_b64 exec, -1
        L_noot:"""
    WOPF = "s_mov_b32 exec_hi, 0x1ffff\nbuffer_load_dword v6, v219, s[16:19], s28 offen\ns_mov_b64 exec, -1" if "wopfS" not in EXP else ""
    for e in range(7):
        a(f"""v_add_u32 v4, {64*e}, v3
        v_mul_u32_u24 v5, 4682, v4
        v_lshrrev_b32 v5, 16, v5
        v_mul_u32_u24 v5, {896-224}, v5
        v_lshl_add_u32 v{200+e}, v4, 4, v5""")
    a(f"""v_mov_b32 v16, 0
    v_mov_b32 v17, 0
    v_mov_b32 v18, 0
    v_mov_b32 v19, 0
    v_add_u32 v209, {448*224}, v1
    s_cmp_eq_u32 s{L}, 2
    s_cbranch_scc1 L_svcB2
    v_lshrrev_b32 v4, 4, v3
    v_and_b32 v5, 15, v3
    v_lshlrev_b32 v5, 2, v5
    v_lshl_add_u32 v221, v4, 9, v5
    v_lshl_add_u32 v222, v4, 5, v14
    v_and_b32 v223, 48, v3
    v_and_b32 v5, 15, v3
    v_add_u32 v6, v5, v4
    v_mul_u32_u24 v224, {4*TS}, v6
    v_add_u32 v224, 1, v224
    v_bfm_b32 v225, v5, 0
    s_mul_i32 s26, s{H}, 28
    s_add_u32 s28, s26, 27
    s_xor_b32 s26, s26, s28
    s_mov_b32 s62, 0x55555555
    s_cmp_ge_u32 s26, 64
    s_cselect_b32 s62, -1, s62
    s_mov_b32 s63, s62
    s_lshr_b32 s28, s{J}, 2
    s_lshl4_add_u32 s26, s{H}, s28
    s_lshl_b32 s26, s26, 7
    s_add_u32 s26, s26, {WS_MB}""")
    spin_lds(a, 14, C_D, PCD, 8, sleep=1)
    at = lambda r: f"v_mov_b32 v{r}, 0\nbuffer_atomic_or v{r}, v221, s[8:11], s26 offen sc0 sc1"
    a(f"""s_mov_b32 s60, {SPIN_LIMIT}
    s_mov_b32 s52, 0x11111111
    s_mov_b32 s53, 0x11111111
    s_mov_b64 exec, s[62:63]""")
    for i in range(PD - 1): a(at(28 + i) + f"\ns_sleep {PG}")
    a("L_kv:")
    for i in range(PD):
        a(at(28 + (i + PD - 1) % PD))
        a(f"""s_waitcnt vmcnt({PD-1})
        v_cmp_ne_u32 vcc, s{T}, v{28+i}
        s_lshr_b64 s[28:29], vcc, 1
        s_or_b64 s[28:29], s[28:29], vcc
        s_lshr_b64 s[54:55], s[28:29], 2
        s_or_b64 s[28:29], s[28:29], s[54:55]
        s_andn2_b64 s[28:29], s[52:53], s[28:29]
        s_cbranch_scc0 L_kvn{i}
        s_andn2_b64 s[52:53], s[52:53], s[28:29]
        v_lshrrev_b64 v[4:5], v223, s[28:29]
        v_and_b32 v5, v225, v4
        v_bcnt_u32_b32 v5, v5, 0
        v_lshl_add_u32 v5, v5, 2, v222
        s_mov_b64 exec, s[28:29]
        ds_write_b32 v5, v224 offset:{C_R}
        s_mov_b64 exec, s[62:63]
        v_and_b32 v4, 0xffff, v4
        v_bcnt_u32_b32 v4, v4, 0
        v_lshl_add_u32 v222, v4, 2, v222
        s_cmp_eq_u64 s[52:53], 0
        s_cbranch_scc1 L_kvdone
        L_kvn{i}:""")
    a(f"""s_sub_u32 s60, s60, 1
    s_cbranch_scc0 L_kv
    s_endpgm
    L_kvdone:
    s_mov_b64 exec, -1
    L_svcB2:""")
    srd(a, 16, 38, 448 * 896)
    a(f"""s_and_b32 s53, s{H}, 3
    s_mul_i32 s53, s53, 224
    s_and_b32 s27, s{L}, 1
    s_mul_i32 s55, s27, {7*1024}
    s_mul_i32 s57, s27, {32*896}
    s_add_u32 s57, s57, s53
    s_lshl1_add_u32 s28, s25, s27
    s_mul_i32 s28, s28, {49*128}
    v_mov_b32 v24, -1
    v_mov_b32 v25, -1
    v_mov_b32 v26, -1
    v_mov_b32 v27, -1
    s_lshl_b32 s59, s{J}, 6
    s_add_u32 s59, s59, s{H}
    s_lshl1_add_u32 s59, s59, s27
    s_lshl_b32 s59, s59, 10
    s_add_u32 s59, s59, {WS_O}""")
    spin_lds(a, 14, C_L, 4, 8, sleep=2)
    st(a, 3)
    a(f"""ds_write_b128 v209, v[16:19]
    {WOPF}
    s_cmp_lg_u32 s{L}, 2
    s_cbranch_scc1 L_nofl
    s_lshl_b32 s26, s2, 7
    s_add_u32 s26, s26, {WS_FL}""")
    flag_store(a, 5, 9, "s26")
    a("L_nofl:\ns_waitcnt vmcnt(0)")
    if "wogate" in EXP: spin_lds(a, 14, C_F, 2, 8, sleep=4)
    a("L_wo:")
    for e in range(7):
        a(f"""s_add_u32 m0, s55, {e*1024}
        s_waitcnt vmcnt({WOP})
        buffer_load_dwordx4 v{200+e}, s[16:19], s57 offen lds""")
    a(f"""s_cmp_ge_u32 s55, {56*1024}
    s_cbranch_scc1 L_noclr
    buffer_store_dwordx4 v[24:27], v1, s[8:11], s59 offen sc1
    s_add_u32 s59, s59, {16*2048}
    L_noclr:
    {OUTT}
    s_sub_u32 s26, s55, {56*1024}
    s_cmp_ge_u32 s26, {14*1024}
    s_cbranch_scc1 L_noinc""")
    lds_inc(a, 14, C_F, 15)
    a(f"""L_noinc:
    s_add_u32 s55, s55, {14*1024}
    s_add_u32 s57, s57, {64*896}
    s_cmp_lt_u32 s55, {98*1024}
    s_cbranch_scc1 L_wo""")
    a("s_waitcnt vmcnt(0)")
    lds_inc(a, 14, C_W, 15)
    st(a, 8)
    a.label("L_ofetch")
    a(f"""s_lshl2_add_u32 s28, s58, s{L}
    s_lshl_b32 s29, s28, 13
    s_add_u32 s29, s29, {WS_O}
    s_add_u32 s27, s29, 4096
    s_lshl_b32 s28, s28, 7
    s_add_u32 s28, s28, {WS_OFL}
    s_mul_i32 s26, s{L}, 12288
    s_add_u32 s26, s26, {CB}
    v_add_u32 v7, s26, v1
    s_lshl_b32 s26, s{L}, 2
    v_add_u32 v6, s26, v14
    s_lshl_b32 s26, 1, s{L}
    v_mov_b32 v5, s26""")
    spin_lds(a, 6, C_P, 1, 8, sleep=4)
    poll_pipe(a, 28, 220, "s28", 15, D=PD, gap=PG)
    a("L_of:\nv_mov_b32 v4, 0")
    for k in range(8):
        a(f"buffer_load_dwordx4 {vr(40+4*k,4)}, v1, s[8:11], {'s29' if k < 4 else 's27'} offen offset:{(k&3)*1024} sc1")
    a("s_sub_u32 s60, s60, 1\ns_cbranch_scc1 L_exit")
    for k in range(8):
        a(f"""s_waitcnt vmcnt({7-k})
        ds_write_b128 v7, {vr(40+4*k,4)} offset:{k*1024}
        v_max3_u32 v4, v4, v{40+4*k}, v{41+4*k}
        v_max3_u32 v4, v4, v{42+4*k}, v{43+4*k}""")
    a("v_cmp_eq_u32 vcc, -1, v4\ns_cbranch_vccnz L_of")
    lds_inc(a, 14, C_O, 5)
    a("s_waitcnt vmcnt(0) lgkmcnt(0)")
    st_end(a)
    a("L_exit:\nL_code_end:\ns_endpgm")

def main(out):
    hdr = open("cdna_kernels/" + NAME + ".s.ref").read().split("; Override")[0]
    rep = []
    a = Asm()
    prologue_and_loader(a); main_wave(a); service_wave(a)
    t = hdr
    t += f"; @launch grid=(256,1,1) block=(512,1,1) lds={LDS_BYTES}\n"
    t += '.amdgcn_target "amdgcn-amd-amdhsa--gfx950"\n'
    t += kernel_text(NAME + "_kernel", a.l, 256, report=rep)
    open(out, "w").write(t)
    if "-v" in sys.argv: print("\n".join(rep))

if __name__ == "__main__":
    main(sys.argv[1])
```

```python
import sys, math, struct
from asmlib import *

NAME = "gated_mix__softmax_full_mha__moe_arch_mod__prompt"
STAMP = "-s" in sys.argv
EXP = set(x[2:] for x in sys.argv if x.startswith("-x"))
WS_KV = 0
BLK = 5120; TS = 14 * BLK; KVB = 64 * TS
WS_O = 0x480000
WS_R = 0x680000
WS_G = WS_R + 16384
WS_SEL = WS_R + 32768
WS_EP = WS_R + 40960
WS_FL = WS_R + 65536
WS_MB = WS_FL + 32768
WS_OFL = WS_MB + 32768
WS_YFL = WS_OFL + 32768
WS_F1 = WS_YFL + 4096
WS_YP = WS_R + (1 << 18)
WS_GP = 0x730000
WS_ST = 16 << 20
XS = 0; WT = 65536; WQ = 122880; QX = 151552; UPD = 159744
WO = 0; CB = 102400
UPDI = UPD + 3584
KEYS = UPD
RT = UPD + 1024
SELECTOR = 223
CNT = 163840 - 192
LDS_BYTES = 163840
C_Q1, C_Q2, C_X, C_L, C_S, C_D, C_C, C_O, C_W, C_F, C_K, C_T, C_P, C_R = 0, 4, 8, 12, 16, 20, 24, 28, 32, 36, 40, 44, 48, 64

def f32bits(x): return struct.unpack("<I", struct.pack("<f", x))[0]
QSCALE = f32bits(28 ** -0.5 * math.log2(math.e))
NLOG2E = f32bits(-math.log2(math.e))
MF = "v_mfma_f32_32x32x16_bf16"
ROLE = [0, 1, 2, 3, 14, 4, 5, 6, 7, 8, 9, 15, 10, 11, 12, 13]
ROLE_LO = sum(ROLE[i] << (4 * i) for i in range(8))
ROLE_HI = sum(ROLE[8 + i] << (4 * i) for i in range(8))
SPIN_LIMIT = 1 << 20
NQ1 = ([int(x[2:]) for x in EXP if x.startswith("nq")] + [4])[0]
WSBASE = ([int(x[2:]) for x in sys.argv if x.startswith("-w")] + [0])[0] << 20
PD = 4 if "pd4" in EXP else 2
PG = 3 if "pd4" in EXP else 6
PCD = 4 if "pcd4" in EXP else (0 if "pcd0" in EXP else 1)
KVS = 4 if "kvs4" in EXP else (0 if "kvs0" in EXP else 2)
PQ2 = 4 if "pq4" in EXP else (0 if "pq0" in EXP else 1)
PF0 = 2 if "pf2" in EXP else 0
WOP = 1 if "wo1" in EXP else (3 if "wo3" in EXP else 2)
OUTAUX = " sc1" if "outsc1" in EXP else (" nt" if "outnt" in EXP else "")

T, H, J, W, RL, ROT = 30, 31, 32, 33, 34, 3
_uid = [0]
def uid(p):
    _uid[0] += 1
    return f"{p}_{_uid[0]}"

def srd(a, d, ptr, nbytes):
    a(f"s_mov_b32 s{d}, s{ptr}\ns_mov_b32 s{d+1}, s{ptr+1}\ns_mov_b32 s{d+2}, {nbytes:#x}\ns_mov_b32 s{d+3}, 0x20000")

NST = 12
DIAG = [tuple(int(y) for y in x[2:].split("-")) for x in sys.argv if x.startswith("-d")]
def st(a, i):
    if STAMP: a(f"s_memtime s[{72+2*i}:{73+2*i}]")
    if DIAG and i in DIAG[0]: a(f"s_memrealtime s[{72+2*i}:{73+2*i}]\ns_waitcnt lgkmcnt(0)")
def st_begin(a):
    if STAMP: a("s_memrealtime s[68:69]\ns_memtime s[72:73]")
    if DIAG: a("s_memrealtime s[72:73]")
ABS = [x[2:] for x in sys.argv if x.startswith("-a")]
REL = [tuple(int(y) for y in x[2:].split("-")) for x in sys.argv if x.startswith("-r")]
if ABS:
    DIAG = [(0, 0 if ABS[0] == "z" else int(ABS[0].lstrip("m")))]
if REL:
    ABS = ["r"]; DIAG = REL
def diag_start(a):
    if not ABS: return
    a(f"""s_load_dwordx2 s[98:99], s[0:1], 80
    s_waitcnt lgkmcnt(0)
    s_cmp_ge_u32 s2, 8
    s_cbranch_scc1 L_dg0
    s_cmp_lg_u32 s{W}, 0
    s_cbranch_scc1 L_dg0
    s_lshl_b32 s70, s2, 2
    v_mov_b32 v4, s70
    v_mov_b32 v6, s72
    global_store_dword v4, v6, s[98:99] sc1
    L_dg0:""")
def diag_end(a):
    if not DIAG: return
    p, q = DIAG[0]
    if ABS:
        a(f"""s_waitcnt vmcnt(0)
        s_memrealtime s[96:97]
        s_mov_b64 exec, -1
        v_mov_b32 v4, 0
        global_load_dwordx4 v[8:11], v4, s[98:99] sc1
        global_load_dwordx4 v[12:15], v4, s[98:99] offset:16 sc1
        s_waitcnt vmcnt(0) lgkmcnt(0)
        v_min3_u32 v8, v8, v9, v10
        v_min3_u32 v8, v8, v11, v12
        v_min3_u32 v8, v8, v13, v14
        v_min_u32 v8, v8, v15
        s_nop 1
        v_readfirstlane_b32 s69, v8
        s_sub_u32 s70, s{72+2*q}, s69""")
        if ABS[0] == "z": a("s_mov_b32 s70, 0")
        if REL: a(f"s_sub_u32 s70, s{72+2*q}, s{72+2*p}\ns_lshl_b32 s70, s70, 2")
        if ABS[0].startswith("m"): a("s_sub_u32 s70, 2500, s70")
        a("s_add_u32 s70, s70, s69\ns_add_u32 s70, s70, 2500")
    else:
        a(f"""s_waitcnt vmcnt(0)
        s_memrealtime s[96:97]
        s_waitcnt lgkmcnt(0)
        s_sub_u32 s70, s{72+2*q}, s{72+2*p}
        s_add_u32 s70, s70, s96""")
    a(f"""L_diag:
    s_memrealtime s[68:69]
    s_waitcnt lgkmcnt(0)
    s_sub_u32 s71, s68, s70
    s_cmp_lt_i32 s71, 0
    s_cbranch_scc1 L_diag""")
def st_init(a):
    if STAMP:
        for i in range(1, NST): a(f"s_mov_b32 s{72+2*i}, s72")
def st_end(a):
    if not STAMP: return
    a(f"""s_waitcnt vmcnt(0)
    s_memrealtime s[70:71]
    s_memtime s[{72+2*NST}:{73+2*NST}]
    s_getreg_b32 s66, hwreg(HW_REG_HW_ID)
    s_getreg_b32 s67, hwreg(HW_REG_XCC_ID)
    s_mov_b64 exec, -1
    s_lshl_b32 s65, s2, 3
    s_add_u32 s65, s65, s{W}
    s_lshl_b32 s65, s65, 6
    s_add_u32 s65, s65, {WS_ST}
    s_waitcnt lgkmcnt(0)
    v_mov_b32 v4, s68
    v_mov_b32 v5, s70
    v_mov_b32 v6, s66
    v_mov_b32 v7, s67""")
    for i in range(1, NST + 1):
        a(f"s_sub_u32 s64, s{72+2*i}, s72\nv_mov_b32 v{7+i}, s64")
    a("v_mov_b32 v2, 0\ns_mov_b64 exec, 1")
    for k in range(4):
        a(f"buffer_store_dwordx4 v[{4+4*k}:{7+4*k}], v2, s[8:11], s65 offen offset:{16*k}")

def poll_global(a, vdst, voff, soff, mask=None, sleep=1):
    l = uid("Lpoll"); d = uid("Lpd")
    a(f"s_mov_b32 s60, {SPIN_LIMIT}")
    if mask is not None: a(f"s_mov_b64 exec, {mask}")
    a(f"""{l}:
    buffer_load_dword v{vdst}, v{voff}, s[8:11], {soff} offen sc1
    s_waitcnt vmcnt(0)
    v_cmp_ne_u32 vcc, s{T}, v{vdst}
    s_cbranch_vccz {d}
    s_mov_b64 exec, vcc
    s_sleep {sleep}
    s_sub_u32 s60, s60, 1
    s_cbranch_scc0 {l}
    s_endpgm
    {d}:
    s_mov_b64 exec, -1""")

def poll_atomic(a, vdst, voff, soff, mask, sleep):
    l = uid("Lpa"); d = uid("Lpad")
    a(f"""s_mov_b32 s60, {SPIN_LIMIT}
    s_mov_b64 exec, {mask}
    {l}:
    v_mov_b32 v{vdst}, 0
    buffer_atomic_or v{vdst}, v{voff}, s[8:11], {soff} offen sc0 sc1
    s_waitcnt vmcnt(0)
    v_cmp_ne_u32 vcc, s{T}, v{vdst}
    s_cbranch_vccz {d}
    s_sleep {sleep}
    s_sub_u32 s60, s60, 1
    s_cbranch_scc0 {l}
    s_endpgm
    {d}:
    s_mov_b64 exec, -1""")

def poll_pipe(a, v0, voff, soff, mask, D=4, gap=3):
    l = uid("Lpp"); d = uid("Lppd")
    at = lambda r: f"v_mov_b32 v{r}, 0\nbuffer_atomic_or v{r}, v{voff}, s[8:11], {soff} offen sc0 sc1"
    a(f"s_mov_b32 s60, {SPIN_LIMIT}\ns_mov_b64 exec, {mask}")
    for i in range(D - 1): a(at(v0 + i) + f"\ns_sleep {gap}")
    a(f"{l}:")
    for i in range(D):
        a(at(v0 + (i + D - 1) % D))
        a(f"s_waitcnt vmcnt({D-1})\nv_cmp_ne_u32 vcc, s{T}, v{v0+i}\ns_cbranch_vccz {d}")
    a(f"""s_sub_u32 s60, s60, 1
    s_cbranch_scc0 {l}
    s_endpgm
    {d}:
    s_mov_b64 exec, -1""")

def signal(a, vt, voff, soff, mask):
    a(f"v_mov_b32 v{vt}, s{T}\ns_mov_b64 exec, {mask}\nbuffer_atomic_swap v{vt}, v{voff}, s[8:11], {soff} offen sc1\ns_mov_b64 exec, -1")

def spin_lds(a, vaddr, off, want, vt, sleep=0):
    l = uid("Lsp"); d = uid("Lsd")
    a(f"""s_mov_b32 s60, {SPIN_LIMIT}
    {l}:
    ds_read_b32 v{vt}, v{vaddr} offset:{off}
    s_waitcnt lgkmcnt(0)
    v_readfirstlane_b32 s61, v{vt}
    s_cmp_ge_u32 s61, {want}
    s_cbranch_scc1 {d}""")
    if sleep: a(f"s_sleep {sleep}")
    a(f"""s_sub_u32 s60, s60, 1
    s_cbranch_scc0 {l}
    s_endpgm
    {d}:""")

def lds_inc(a, vaddr, off, vone):
    a(f"s_mov_b64 exec, 1\nds_add_u32 v{vaddr}, v{vone} offset:{off}\ns_mov_b64 exec, -1")

def flag_store(a, vt, vz, soff):
    a(f"v_mov_b32 v{vt}, s{T}\ns_mov_b64 exec, 1\nbuffer_store_dword v{vt}, v{vz}, s[8:11], {soff} offen sc1\ns_mov_b64 exec, -1")

def split_neg_max(a, m, t0, t1, q6, q7):
    a(f"""v_sub_f32 v{m}, 0, v{m}
    v_cvt_pk_bf16_f32 v{t0}, v{m}, v{m}
    v_lshlrev_b32 v{t0}, 16, v{t0}
    v_sub_f32 v{t0}, v{m}, v{t0}
    v_cvt_pk_bf16_f32 v{t1}, v{m}, v{t0}
    v_and_b32 v{m}, 0xffff0000, v{t1}
    v_sub_f32 v{t0}, v{t0}, v{m}
    s_mov_b32 exec_lo, 0
    v_mov_b32 v{q6}, v{t1}
    v_cvt_pk_bf16_f32 v{q7}, v{t0}, 0
    s_mov_b32 exec_lo, -1""")

def max16_list(dst, S, init=False):
    if not init:
        return ([f"v_max3_f32 v{dst}, v{S}, v{S+1}, v{S+2}"] +
                [f"v_max3_f32 v{dst}, v{dst}, v{S+i}, v{S+i+1}" for i in range(3, 15, 2)] +
                [f"v_max_f32 v{dst}, v{dst}, v{S+15}"])
    return [f"v_max3_f32 v{dst}, v{dst}, v{S+i}, v{S+i+1}" for i in range(0, 16, 2)]

def wave_min_u32(a, v, full=True):
    for r in (1, 2, 4, 8):
        a(f"v_min_u32_dpp v{v}, v{v}, v{v} row_ror:{r} row_mask:0xf bank_mask:0xf")
    a(f"v_min_u32_dpp v{v}, v{v}, v{v} row_bcast:15 row_mask:0xa bank_mask:0xf")
    if full: a(f"v_min_u32_dpp v{v}, v{v}, v{v} row_bcast:31 row_mask:0xc bank_mask:0xf")

def tag(a):
    a(f"s_mul_i32 s{T}, s{T}, 0x9e3779b1\ns_add_u32 s{T}, s{T}, 0x7f4a7c15")

def next_chunk(a, s):
    a(f"s_add_u32 s{s}, s{s}, 1\ns_cmp_eq_u32 s{s}, 7\ns_cselect_b32 s{s}, 0, s{s}")

Q, O, KV, S, P = 8, 40, 104, 168, 200
XF = 104; A0, A1, WF = 40, 56, 72
VX = 216; VW = 220; VQ = 222; VC = 223; V1 = 224; VZ = 225; VT = 226; VH = 227
VA = 228; TMP = 232; XR = 240; GR = 248; VWQ = 250; VF = 251; VFS = 252; VXO = 253; VGO = 254
OWN = 3
L = 35

def prologue_and_loader(a):
    TADDR = "v_lshl_add_u32 v8, v3, 7, s58"
    if "t64" in EXP: TADDR = "v_and_b32 v8, 60, v3\nv_lshl_add_u32 v8, v8, 4, s58\nv_add_u32 v8, v8, v1"
    if "rot7" in EXP:
        ROTCODE = f"s_lshl1_add_u32 s{ROT}, s27, s26\ns_cmp_ge_u32 s{ROT}, 7\ns_cselect_b32 s26, 7, 0\ns_sub_u32 s{ROT}, s{ROT}, s26"
    elif "rot2" not in EXP and "norot" not in EXP and "rot23" not in EXP:
        ROTCODE = f"s_add_u32 s{ROT}, s27, s26\ns_and_b32 s{ROT}, s{ROT}, 3\ns_lshl_b32 s{ROT}, s{ROT}, 1"
    elif "norot" in EXP:
        ROTCODE = f"s_mov_b32 s{ROT}, 0"
    elif "rot23" in EXP:
        ROTCODE = f"s_add_u32 s{ROT}, s27, s26\ns_and_b32 s{ROT}, s{ROT}, 1\ns_mul_i32 s{ROT}, s{ROT}, 3"
    else:
        ROTCODE = f"s_add_u32 s{ROT}, s27, s26\ns_and_b32 s{ROT}, s{ROT}, 1\ns_lshl_b32 s{ROT}, s{ROT}, 2"
    st_begin(a)
    a(f"""s_load_dwordx4 s[4:7], s[0:1], 0
    s_load_dwordx2 s[36:37], s[0:1], 88
    s_load_dwordx2 s[38:39], s[0:1], 16
    s_load_dwordx8 s[40:47], s[0:1], 32
    s_load_dwordx4 s[48:51], s[0:1], 64
    s_cmp_ge_u32 s2, 256
    s_cbranch_scc1 L_exit
    v_lshrrev_b32 v2, 6, v0
    v_and_b32 v3, 63, v0
    s_and_b32 s24, s2, 7
    s_lshr_b32 s25, s2, 3
    v_readfirstlane_b32 s{W}, v2
    s_and_b32 s{H}, s24, 1
    s_lshl_b32 s{H}, s{H}, 3
    s_and_b32 s26, s25, 7
    s_add_u32 s{H}, s{H}, s26
    s_lshr_b32 s27, s25, 3
    s_and_b32 s{J}, s24, 6
    s_lshl1_add_u32 s{J}, s{J}, s27
    {ROTCODE}
    s_mov_b32 s28, {ROLE_LO:#x}
    s_mov_b32 s29, {ROLE_HI:#x}
    s_lshl_b32 s27, s{H}, 2
    s_lshr_b64 s[28:29], s[28:29], s27
    s_and_b32 s{RL}, s28, 15
    v_lshlrev_b32 v1, 4, v3
    s_mov_b32 s27, {WS_EP}
    s_cmp_lt_u32 s{W}, 4
    s_cbranch_scc1 L_main
    """)
    a(f"""s_setprio 2
    s_sub_u32 s{L}, s{W}, 4
    v_lshrrev_b32 v4, 3, v3
    v_mul_u32_u24 v5, 896, v4
    v_and_b32 v6, 7, v3
    v_lshrrev_b32 v7, 4, v3
    v_xor_b32 v7, v6, v7
    v_lshl_add_u32 v10, v7, 4, v5
    v_xor_b32 v11, 64, v10
    v_add_u32 v12, {2*6144}, v10
    v_add_u32 v13, {3*6144}, v11
    v_add_u32 v11, 6144, v11
    v_mul_u32_u24 v5, 2688, v4
    v_and_b32 v4, 2, v4
    v_lshlrev_b32 v4, 1, v4
    v_xor_b32 v4, v4, v6
    v_lshl_add_u32 v14, v4, 4, v5
    v_add_u32 v15, {8*2688-1024}, v14
    s_lshl2_add_u32 s52, s{J}, s{L}
    s_mul_i32 s58, s52, 14
    s_add_u32 s58, s58, s{RL}
    s_mul_i32 s58, s58, {BLK}
    {TADDR}
    s_mul_i32 s52, s52, {32*896}
    s_lshl_b32 s53, s{RL}, 7
    s_mul_i32 s26, s{L}, {16*2688}
    s_add_u32 s53, s53, s26
    s_add_u32 s53, s53, 896
    s_lshl_b32 s54, s{L}, 12
    s_lshl_b32 s55, s{L}, 11
    s_add_u32 s55, s55, {WT}
    s_mov_b32 s56, s{ROT}
    s_mov_b32 s57, 0
    s_mov_b32 s14, {2048*896}
    s_mov_b32 s15, 0x20000
    s_cmp_ge_u32 s{RL}, 14
    s_cselect_b32 s18, 0, {448*2688}
    s_mov_b32 s19, 0x20000
    s_waitcnt lgkmcnt(0)
    s_mov_b64 s[12:13], s[4:5]
    s_mov_b64 s[16:17], s[6:7]
    s_load_dword s{T}, s[36:37], s27""")
    st_init(a); st(a, 1)
    if "notouch" not in EXP:
        if "t64" in EXP:
            a(f"""s_cbranch_scc1 L_ld
            global_store_dwordx4 v8, v[10:13], s[36:37] sc1
            global_store_dwordx4 v8, v[10:13], s[36:37] offset:2048 sc1""")
        else: a(f"""s_cbranch_scc1 L_ld
        s_cmp_ge_u32 s{RL}, 7
        s_cselect_b32 exec_hi, 1, 0xff
        global_store_dword v8, v8, s[36:37] sc1
        s_mov_b32 exec_hi, -1""")
    a(f"""L_ld:
    s_mul_i32 s26, s56, {64*2688}
    s_mov_b32 m0, s55
    s_add_u32 s26, s26, s53
    s_lshl_b32 s28, s56, 7
    buffer_load_dwordx4 v14, s[16:19], s26 offen lds
    buffer_load_dwordx4 v15, s[16:19], s26 offen offset:1024 lds
    s_mov_b32 m0, s54
    s_add_u32 s28, s28, s52
    buffer_load_dwordx4 v10, s[12:15], s28 offen lds
    buffer_load_dwordx4 v11, s[12:15], s28 offen offset:1024 lds
    buffer_load_dwordx4 v12, s[12:15], s28 offen offset:2048 lds
    buffer_load_dwordx4 v13, s[12:15], s28 offen offset:3072 lds
    s_add_u32 s55, s55, 8192
    s_add_u32 s54, s54, 16384
    s_and_b32 s54, s54, 0xffff""")
    next_chunk(a, 56)
    if "tlb" in EXP:
        a(f"s_or_b32 s26, s57, s{L}\ns_cbranch_scc0 L_tlb\nL_tlb_done:")
    a(f"""s_add_u32 s57, s57, 1
    s_cmp_lt_u32 s57, 3
    s_cbranch_scc1 L_ld
    s_waitcnt vmcnt(12)
    s_barrier
    s_cmp_lt_u32 s57, 7
    s_cbranch_scc1 L_ld
    """)
    a(f"""v_lshrrev_b32 v4, 2, v3
    v_mul_u32_u24 v4, 2688, v4
    v_and_b32 v5, 3, v3
    v_lshl_add_u32 v16, v5, 4, v4
    s_mov_b32 s18, {448*2688}
    s_mul_i32 s53, s{H}, 56
    s_and_b32 s53, s53, 0xfffffff0
    s_mul_i32 s26, s{L}, {16*2688}
    s_add_u32 s53, s53, s26
    s_lshl_b32 s55, s{L}, 10
    s_add_u32 s55, s55, {WQ}""")
    for i in range(NQ1):
        a(f"""s_mul_i32 s26, s56, {64*2688}
        s_add_u32 m0, s55, {i*4096}
        s_add_u32 s26, s26, s53
        buffer_load_dwordx4 v16, s[16:19], s26 offen lds""")
        if i < NQ1 - 1: next_chunk(a, 56)
        if i == 1: a("s_waitcnt vmcnt(8)\ns_barrier")
        if i == 3: a("s_waitcnt vmcnt(4)\ns_barrier")
    st(a, 2)
    a("s_branch L_service")
    if "tlb" in EXP:
        a("L_tlb:")
        if "tlbR" in EXP: a(f"s_cmp_lt_u32 s{RL}, 14\ns_cbranch_scc1 L_tlb_done")
        for off in (0, 2 << 20, 4 << 20):
            a(f"s_mov_b32 s26, {off + 4032}\ns_load_dword s66, s[36:37], s26")
        for p in (42, 44, 38, 46, 50):
            a(f"s_load_dword s66, s[{p}:{p+1}], 0")
        a("s_branch L_tlb_done")

def main_wave(a):
    a.label("L_main")
    diag_start(a)
    if "nocodepf" not in EXP:
        a(f"""s_cmp_lg_u32 s{W}, 0
        s_cbranch_scc1 L_nopf
        s_getpc_b64 s[28:29]
        L_pc:
        s_and_b32 s26, s25, 3
        s_lshl_b32 s26, s26, 13
        v_lshl_add_u32 v4, v3, 7, s26
        v_min_u32 v4, L_code_end-L_pc, v4
        global_load_dword v5, v4, s[28:29]
        L_nopf:""")
    a(f"""s_setprio 1
    v_and_b32 v{VT}, 31, v3
    v_lshrrev_b32 v{VH}, 5, v3
    v_mov_b32 v{V1}, 1
    v_mov_b32 v{VZ}, 0
    v_mov_b32 v{VC}, {CNT}
    v_lshrrev_b32 v4, 2, v1
    v_add_u32 v4, {UPDI}, v4
    v_mov_b32 v6, -1
    s_mov_b32 exec_hi, 0
    ds_write_b32 v4, v6
    v_and_b32 v6, 7, v3
    v_cmp_eq_u32 vcc, 4, v6
    v_mov_b32 v7, {KVB+1}
    v_cndmask_b32 v6, 0, v7, vcc
    ds_write_b32 v4, v6 offset:{CNT-UPDI+C_R}
    s_mov_b32 exec_lo, 0xffff
    ds_write_b32 v4, v{VZ} offset:{CNT-UPDI}
    s_mov_b64 exec, -1
    v_lshrrev_b32 v4, 1, v{VT}
    v_and_b32 v4, 7, v4
    v_xor_b32 v4, v4, v{VH}
    v_lshlrev_b32 v4, 4, v4
    v_lshl_add_u32 v4, v{VT}, 7, v4
    s_lshl_b32 s26, s{W}, 12
    v_add_u32 v{VX}, s26, v4
    v_xor_b32 v{VX+1}, 32, v{VX}
    v_xor_b32 v{VX+2}, 64, v{VX}
    v_xor_b32 v{VX+3}, 96, v{VX}
    v_bfe_u32 v4, v3, 2, 2
    v_lshl_add_u32 v12, v{VH}, 3, v4
    v_and_b32 v6, 3, v3
    v_and_b32 v7, 1, v3
    v_bfe_u32 v8, v3, 1, 1
    v_lshl_add_u32 v7, v7, 1, v8
    v_bfe_u32 v8, v3, 4, 1
    v_lshl_add_u32 v9, v8, 2, v7
    v_lshl_add_u32 v10, v8, 2, v6
    s_cmp_lt_u32 s{RL}, 7
    s_cselect_b64 vcc, -1, 0
    v_cndmask_b32 v10, v10, v9, vcc
    v_lshlrev_b32 v11, 7, v12
    v_lshl_add_u32 v11, v10, 3, v11
    v_lshrrev_b32 v4, 1, v4
    v_lshl_add_u32 v11, v4, 6, v11
    v_add_u32 v{VW}, {WT}, v11
    v_xor_b32 v{VW+1}, 64, v{VW}
    v_add_u32 v10, 2, v9
    v_sub_u32 v11, 7, v9
    v_cmp_gt_u32 vcc, 6, v9
    v_cndmask_b32 v10, v11, v10, vcc
    s_bitcmp1_b32 s{H}, 0
    s_cselect_b64 vcc, -1, 0
    v_cndmask_b32 v10, v9, v10, vcc
    v_lshlrev_b32 v11, 6, v12
    v_lshl_add_u32 v11, v10, 3, v11
    v_add_u32 v{VQ}, {WQ}, v11
    v_lshrrev_b32 v4, 2, v3
    v_mul_u32_u24 v4, 2688, v4
    v_lshl_add_u32 v{VWQ}, v6, 4, v4
    s_cmp_ge_u32 s{RL}, 7
    s_cselect_b32 s26, 7, 0
    s_cselect_b32 s29, 2, 0
    s_sub_u32 s26, s{RL}, s26
    s_mul_i32 s28, s26, {64*2341}
    s_lshr_b32 s28, s28, 16
    v_add_u32 v4, s28, v6
    v_mul_u32_u24 v7, 28, v4
    v_lshrrev_b32 v7, 6, v7
    v_cmp_ge_u32 s[64:65], s26, v7
    v_cmp_ne_u32 vcc, s26, v7
    s_and_b32 s28, s{J}, 12
    s_add_u32 s29, s28, s29
    v_mov_b32 v7, s29
    v_addc_co_u32 v7, vcc, 0, v7, vcc
    s_and_b32 s28, s{J}, 3
    v_lshl_add_u32 v4, v4, 2, s28
    v_bfe_u32 v8, v3, 2, 2
    v_lshl_add_u32 v4, v4, 2, v8
    v_lshlrev_b32 v4, 7, v4
    v_lshl_add_u32 v{VFS}, v7, 2, v4
    s_and_b32 s64, s64, 0xffff
    s_cmp_ge_u32 s{RL}, 14
    s_cselect_b32 s64, 0, s64
    s_mov_b32 s65, 0
    s_lshl_b32 s28, s{W}, 5
    v_add_u32 v{VF}, s28, v{VC}
    s_lshl_b32 s28, s{J}, 2
    s_lshr_b32 s58, s{H}, 2
    s_add_u32 s58, s58, s28
    s_and_b32 s59, s{H}, 3
    s_lshl2_add_u32 s59, s59, s{W}
    s_mul_i32 s59, s59, 56
    s_lshl_b32 s28, s58, 5
    v_add_u32 v4, s28, v{VT}
    v_mul_u32_u24 v{VXO}, 896, v4
    v_lshl_add_u32 v{VXO}, v{VH}, 4, v{VXO}
    v_lshlrev_b32 v{VGO}, 3, v4
    s_waitcnt lgkmcnt(0)
    """)
    st_init(a)
    srd(a, 8, 36, (1 << 28) - WSBASE)
    srd(a, 16, 6, 448 * 2688)
    srd(a, 12, 4, 2048 * 896)
    if "nowqpf" not in EXP:
        a(f"""s_cmp_lg_u32 s{W}, 1
        s_cbranch_scc1 L_nopf2
        v_lshrrev_b32 v4, 2, v3
        v_min_u32 v4, 13, v4
        v_mul_u32_u24 v4, 2688, v4
        v_and_b32 v6, 3, v3
        v_lshl_add_u32 v4, v6, 7, v4
        s_mul_i32 s26, s25, {14*2688}
        s_and_b32 s28, s24, 1
        s_mul_i32 s28, s28, 384
        s_add_u32 s26, s26, s28
        buffer_load_dword v5, v4, s[16:19], s26 offen
        L_nopf2:""")
    if "wopfS" in EXP:
        srd(a, 20, 38, 448 * 896)
        a(f"""s_cmp_lg_u32 s{W}, 2
        s_cbranch_scc1 L_nopf3
        s_mul_i32 s26, s2, {13*128}
        v_lshl_add_u32 v4, v3, 7, s26
        s_mov_b64 exec, 0x1fff
        buffer_load_dword v5, v4, s[20:23], 0 offen
        s_mov_b64 exec, -1
        L_nopf3:""")
    a(f"""s_mul_i32 s62, s{H}, 56
    s_and_b32 s62, s62, 0xfffffff0
    s_mul_i32 s26, s{W}, {16*2688}
    s_add_u32 s62, s62, s26
    s_lshl_b32 s63, s{W}, 10
    s_add_u32 s63, s63, {WQ}
    s_lshl2_add_u32 s35, s{J}, s{W}
    s_mul_i32 s52, s35, 14
    s_add_u32 s52, s52, s{RL}
    s_mul_i32 s52, s52, {BLK}
    s_add_u32 s53, s52, 4096
    s_lshr_b32 s26, s{H}, 1
    s_mul_i32 s26, s26, 7
    s_and_b32 s28, s{H}, 1
    s_lshl2_add_u32 s29, s28, s26
    v_add_u32 v4, s29, v{VH}
    v_lshrrev_b32 v6, 3, v4
    v_mul_u32_u24 v6, {BLK-4096}, v6
    v_lshl_add_u32 v6, v4, 9, v6
    v_lshl_add_u32 v{VA}, v{VT}, 4, v6
    v_add_u32 v4, 2, v4
    v_lshrrev_b32 v6, 3, v4
    v_mul_u32_u24 v6, {BLK-4096}, v6
    v_lshl_add_u32 v6, v4, 9, v6
    s_add_u32 s26, s26, 3
    s_lshr_b32 s29, s26, 3
    s_mul_i32 s29, s29, {BLK}
    s_and_b32 s26, s26, 1
    s_lshl_b32 s26, s26, 9
    s_add_u32 s29, s29, s26
    s_add_u32 s29, s29, 4096
    v_mov_b32 v7, s29
    v_and_b32 v4, s28, v{VH}
    v_cmp_eq_u32 vcc, 1, v4
    v_cndmask_b32 v6, v6, v7, vcc
    v_lshl_add_u32 v{VA+1}, v{VT}, 4, v6
    s_mul_i32 s26, s{H}, 28
    v_add_u32 v4, s26, v{VT}
    v_lshrrev_b32 v6, 6, v4
    v_mul_u32_u24 v6, {BLK}, v6
    v_bfe_u32 v7, v4, 5, 1
    v_lshl_add_u32 v6, v7, 11, v6
    v_and_b32 v4, 31, v4
    v_lshl_add_u32 v6, v4, 4, v6
    v_lshl_add_u32 v6, v{VH}, 9, v6
    v_add_u32 v6, {7*BLK}, v6
    v_add_u32 v8, 1024, v6
    s_lshr_b32 s26, s26, 6
    s_mul_i32 s26, s26, {BLK}
    s_add_u32 s26, s26, {7*BLK + 4096 - 28*16}
    v_lshl_add_u32 v7, v{VT}, 4, s26
    v_cmp_le_u32 vcc, 28, v{VT}
    v_cndmask_b32 v{VA+2}, v6, v7, vcc
    v_cndmask_b32 v{VA+3}, v8, v7, vcc
    s_cmp_ge_u32 s{RL}, 14
    s_cbranch_scc1 L_roleR
    s_cmp_ge_u32 s{RL}, 7
    s_cbranch_scc1 L_roleV""")

    def gemm(kind):
        if "twait" in EXP:
            st(a, 10); a("s_waitcnt vmcnt(0)"); st(a, 11)
        def reads(c, s):
            k = 4 * c + s
            a(f"ds_read_b128 {vr(XF+4*k,4)}, v{VX+s} offset:{(c&3)*16384}")
            f = WF + 8 * s
            if kind == "R":
                a(f"ds_read_b128 {vr(f,4)}, v{VW} offset:{k*32}")
            else:
                for n in range(2):
                    a(f"ds_read_b64_tr_b16 {vr(f+4*n,2)}, v{VW+n} offset:{k*2048}")
                    a(f"ds_read_b64_tr_b16 {vr(f+4*n+2,2)}, v{VW+n} offset:{k*2048+512}")
        def mfmas(c, s):
            k = 4 * c + s
            f = WF + 8 * s
            for n in range(1 if kind == "R" else 2):
                acc = (A0, A1)[n]
                cc = "0" if k == 0 else vr(acc, 16)
                if kind == "V": a(f"{MF} {vr(acc,16)}, {vr(XF+4*k,4)}, {vr(f+4*n,4)}, {cc}")
                else:           a(f"{MF} {vr(acc,16)}, {vr(f+4*n,4)}, {vr(XF+4*k,4)}, {cc}")
        per = 2 if kind == "R" else 5
        for c in range(7):
            a("s_barrier")
            if c == 0: st(a, 1)
            if c == 6: st(a, 2)
            if STAMP and c in (0, 6): a("s_waitcnt lgkmcnt(0)")
            reads(c, 0); reads(c, 1)
            for s in range(4):
                if s < 2: reads(c, s + 2)
                a(f"s_waitcnt lgkmcnt({min(3 - s, 2) * per})")
                mfmas(c, s)

    PK = 8
    MS = 20
    a(f"""v_add_u32 v4, s{RL}, v{VH}""")
    for i in range(4):
        a(f"""v_cmp_eq_u32 vcc, {3-2*i}, v4
        v_cmp_eq_u32 s[{MS+2*i}:{MS+1+2*i}], {10-2*i}, v4
        s_or_b64 s[{MS+2*i}:{MS+1+2*i}], s[{MS+2*i}:{MS+1+2*i}], vcc""")
    a(f"v_mov_b32 v{TMP+2}, 0x3f803f80\nv_mov_b32 v{TMP+3}, 0x3f803f80")
    gemm("K")
    for i in range(4):
        acc = (A0, A1)[i >> 1] + 8 * (i & 1)
        p = PK + 4 * i
        for e in range(4): a(f"v_cvt_pk_bf16_f32 v{p+e}, v{acc+2*e}, v{acc+2*e+1}")
        l = uid("Lnosh")
        a(f"""s_mov_b64 exec, s[{MS+2*i}:{MS+1+2*i}]
        s_cbranch_execz {l}
        v_mov_b32 v{TMP}, v{p+2}
        v_mov_b32 v{TMP+1}, v{p+3}
        v_mov_b32 v{p+2}, 0x3f803f80
        v_mov_b32 v{p+3}, 0x3f803f80
        buffer_store_dwordx4 {vr(TMP,4)}, v1, s[8:11], s53 offen sc1
        s_nop 1
        {l}:
        s_mov_b64 exec, -1
        buffer_store_dwordx4 {vr(p,4)}, v1, s[8:11], s52 offen offset:{1024*i} sc1""")
    a("s_branch L_pub")
    a.label("L_roleR")
    srd(a, 20, 40, 896)
    a(f"""s_lshl_b32 s28, s{ROT}, 7
    v_add_u32 v4, s28, v1
    v_subrev_u32 v6, 896, v4
    v_min_u32 v4, v4, v6
    s_mov_b32 m0, {RT}
    s_nop 0
    buffer_load_dwordx4 v4, s[20:23], 0 offen lds
    s_mov_b32 s20, s48
    s_mov_b32 s21, s49
    s_mov_b32 m0, {RT+1024}
    s_nop 0
    buffer_load_dwordx4 v4, s[20:23], 0 offen lds
    v_and_b32 v4, 1, v3
    v_lshlrev_b32 v4, 10, v4
    v_lshl_add_u32 v4, v{VH}, 4, v4
    v_add_u32 v{VW}, {RT}, v4
    s_waitcnt vmcnt(0)""")
    gemm("R")
    a(f"""s_cmp_lg_u32 s{RL}, 14
    s_cbranch_scc1 L_pub
    s_mov_b32 exec_hi, 0
    s_nop 9
    v_cvt_pk_bf16_f32 v4, v{A0}, v{A0+1}
    v_and_b32 v5, 0xffff0000, v4
    v_lshlrev_b32 v4, 16, v4
    v_ashrrev_i32 v6, 31, v4
    v_or_b32 v6, 0x80000000, v6
    v_xor_b32 v6, v6, v4
    v_and_b32 v6, 0xffff0000, v6
    v_cmp_u_f32 vcc, v4, v4
    v_cndmask_b32 v6, v6, 0, vcc
    s_lshl_b32 s26, s35, 5
    v_add_u32 v7, s26, v{VT}
    v_sub_u32 v8, 0xffff, v7
    v_or_b32 v6, v6, v8
    v_lshlrev_b32 v9, 3, v7
    v_and_b32 v7, 127, v7
    v_lshlrev_b32 v7, 2, v7
    v_add_u32 v7, {KEYS}, v7
    ds_write_b32 v7, v6
    s_mov_b32 exec_lo, 1
    ds_add_u32 v{VC}, v{V1} offset:{C_K}
    s_mov_b32 exec_lo, -1
    v_mul_f32 v5, {NLOG2E:#x}, v5
    v_exp_f32 v5, v5
    v_add_f32 v5, 1.0, v5
    v_rcp_f32 v5, v5
    v_cvt_pk_bf16_f32 v5, v5, v5
    v_lshlrev_b32 v10, 16, v5
    s_mov_b32 exec_hi, -1
    s_branch L_pub
    """)
    a.label("L_roleV")
    a(f"""v_cmp_eq_u32 vcc, 0, v3
    v_mov_b32 v7, 0x3f803f80
    v_cndmask_b32 v{TMP}, 0, v7, vcc""")
    for e in range(1, 4): a(f"v_mov_b32 v{TMP+e}, v{TMP}")
    gemm("V")
    a(f"s_mov_b64 exec, 0xff\nbuffer_store_dwordx4 {vr(TMP,4)}, v1, s[8:11], s53 offen sc1\ns_mov_b64 exec, -1")
    for i in range(4):
        acc = (A0, A1)[i >> 1] + 8 * (i & 1)
        p = PK + 4 * i
        for e in range(4): a(f"v_cvt_pk_bf16_f32 v{p+e}, v{acc+2*e}, v{acc+2*e+1}")
        a(f"buffer_store_dwordx4 {vr(p,4)}, v1, s[8:11], s52 offen offset:{1024*i} sc1")
    a.label("L_pub")
    st(a, 3)
    a(f"s_add_u32 s56, s{ROT}, {NQ1}\ns_cmp_ge_u32 s56, 7\ns_cselect_b32 s26, 7, 0\ns_sub_u32 s56, s56, s26")
    for i in range(NQ1, 7):
        a(f"""s_mul_i32 s26, s56, {64*2688}
        s_add_u32 m0, s63, {i*4096}
        s_add_u32 s26, s26, s62
        buffer_load_dwordx4 v{VWQ}, s[16:19], s26 offen lds""")
        if i < 6: next_chunk(a, 56)
    QO = Q + 8 * OWN
    SK = TMP
    a(f"""s_mov_b64 s[16:17], s[36:37]
    s_mov_b32 s18, {KVB}
    s_mov_b32 s57, 0""")
    def ldK(b, soff, base=None):
        r = KV + 16 * b if base is None else base
        return [f"buffer_load_dwordx4 {vr(r,4)}, v{VA}, s[16:19], {soff} offen sc1",
                f"buffer_load_dwordx4 {vr(r+4,4)}, v{VA+1}, s[16:19], {soff} offen sc1"]
    def ldV(b, soff):
        return [f"buffer_load_dwordx4 {vr(KV+16*b+8,4)}, v{VA+2}, s[16:19], {soff} offen sc1",
                f"buffer_load_dwordx4 {vr(KV+16*b+12,4)}, v{VA+3}, s[16:19], {soff} offen sc1"]
    def try_loads(block=False):
        d = uid("Ltl"); l = uid("Ltr")
        a(f"s_cmp_lg_u32 s57, 0\ns_cbranch_scc1 {d}")
        if block: a(f"s_mov_b32 s60, {SPIN_LIMIT}\n{l}:\ns_sub_u32 s60, s60, 1\ns_cbranch_scc1 L_exit")
        a(f"""ds_read_b32 v4, v{VF} offset:{C_R}
        ds_read_b32 v5, v{VC} offset:{C_R}
        s_waitcnt lgkmcnt(0)
        v_readfirstlane_b32 s56, v4
        v_readfirstlane_b32 s29, v5
        s_min_u32 s57, s56, s29
        s_cmp_eq_u32 s57, 0
        s_cbranch_scc1 {l if block else d}
        s_sub_u32 s29, s29, 1
        s_sub_u32 s27, s56, 1
        s_add_u32 s54, s56, {TS-1}
        s_add_u32 s55, s56, {2*TS-1}
        s_add_u32 s56, s56, {3*TS-1}""")
        st(a, 6)
        for x in ldK(0, "s29", SK) + ldK(0, "s27") + ldV(0, "s27") + ldK(1, "s54") + ldV(1, "s54"): a(x)
        a(f"{d}:")
    def qreads(k):
        f = WF + 4 * (k & 7)
        a(f"ds_read_b64_tr_b16 {vr(f,2)}, v{VQ} offset:{k*1024}\nds_read_b64_tr_b16 {vr(f+2,2)}, v{VQ} offset:{k*1024+256}")
    def publish():
        a(f"""s_mov_b32 s28, {WS_MB}
        v_readfirstlane_b32 s{T}, v11
        v_mov_b32 v6, v11
        s_mov_b64 exec, 1
        s_waitcnt vmcnt({7-NQ1})""")
        st(a, 4)
        a(f"""ds_add_rtn_u32 v4, v{VC}, v{V1} offset:{C_D}
        s_waitcnt lgkmcnt(0)
        v_cmp_eq_u32 vcc, 3, v4
        s_cbranch_vccz L_notlast
        s_mov_b64 exec, s[64:65]
        s_cbranch_execz L_notlast
        buffer_atomic_swap v6, v{VFS}, s[8:11], s28 offen sc1
        s_waitcnt vmcnt(1)
        s_branch L_published
        L_notlast:
        s_waitcnt vmcnt(0)
        s_cmp_lg_u32 s{RL}, 14
        s_cbranch_scc1 L_published
        s_mov_b32 s26, {WS_G}
        s_mov_b32 exec_lo, -1
        buffer_store_dwordx2 v[10:11], v9, s[8:11], s26 offen sc1
        L_published:""")
        a("s_mov_b64 exec, -1")
    def qgemm(lo, hi, cnt):
        spin_lds(a, VC, cnt, 4, 4)
        if not lo: a(f"ds_read_b32 v11, v{VC} offset:{C_T}")
        for k in range(lo, min(hi, lo + 6)): qreads(k)
        for k in range(lo, hi):
            if k + 6 < hi: qreads(k + 6)
            a(f"s_waitcnt lgkmcnt({2*(min(hi-1,k+6)-k)})")
            a(f"{MF} {vr(A0,16)}, {vr(WF+4*(k&7),4)}, {vr(XF+4*k,4)}, {'0' if k==0 else vr(A0,16)}")
    def qepi():
        for i in range(8): a(f"v_mov_b32 v{P+8+i}, 0")
        a(f"""s_lshl_b32 s26, s{W}, 11
        s_add_u32 s26, s26, {QX}
        v_add_u32 v5, s26, v1
        s_mov_b32 s62, {QSCALE:#x}
        s_mov_b32 s63, {QSCALE:#x}""")
        for i in range(8): a(f"v_pk_mul_f32 {vr(A0+2*i,2)}, {vr(A0+2*i,2)}, s[62:63]")
        for i in range(8): a(f"v_cvt_pk_bf16_f32 v{QO+i}, v{A0+2*i}, v{A0+2*i+1}")
        a(f"""s_mov_b32 exec_lo, 0
        v_mov_b32 v{QO+6}, 0
        v_mov_b32 v{QO+7}, 0
        s_mov_b32 exec_lo, -1
        ds_write_b128 v5, {vr(QO,4)}
        ds_write_b128 v5, {vr(QO+4,4)} offset:1024""")
        lds_inc(a, VC, C_X, V1)
        for i in range(0, 64, 2): a(f"v_pk_mul_f32 {vr(O+i,2)}, {vr(P+8,2)}, {vr(P+8,2)}")
    qgemm(0, 4 * NQ1, C_Q1)
    if NQ1 == 7 and "qfirst" in EXP:
        st(a, 5)
        qepi(); publish(); try_loads()
    elif NQ1 == 7:
        st(a, 5)
        publish(); try_loads(); qepi()
    else:
        publish()
        lds_inc(a, VC, C_Q2, V1)
        try_loads()
        qgemm(4 * NQ1, 28, C_Q2)
        st(a, 5)
        try_loads()
        qepi()
    spin_lds(a, VC, C_X, 4, 4)
    for i in range(3):
        a(f"""s_add_u32 s26, s{W}, {i+1}
        s_and_b32 s26, s26, 3
        s_lshl_b32 s26, s26, 11
        s_add_u32 s26, s26, {QX}
        v_add_u32 v5, s26, v1
        ds_read_b128 {vr(Q+8*i,4)}, v5
        ds_read_b128 {vr(Q+8*i+4,4)}, v5 offset:1024""")
    try_loads(block=True)
    def QK(u, m):
        kt, qs = (u >> 2) & 3, u & 3
        s = S + 16 * (u & 1)
        c = "0" if m == 0 else vr(s, 16)
        return f"{MF} {vr(s,16)}, {vr(KV+16*kt+4*m,4)}, {vr(Q+8*qs+4*m,4)}, {c}"
    def PV(u, m):
        kt, qs = (u >> 2) & 3, u & 3
        return f"{MF} {vr(O+16*qs,16)}, {vr(KV+16*kt+8+4*m,4)}, {vr(P+8*(u&1)+4*m,4)}, {vr(O+16*qs,16)}"
    SS = [S, S + 16, KV + 32, KV + 48]
    def samp(i, m): return f"{MF} {vr(SS[i],16)}, {vr(SK+4*m,4)}, {vr(Q+8*i+4*m,4)}, {'0' if m == 0 else vr(SS[i],16)}"
    def mx(i):
        for x in max16_list(4, SS[i]): a(x)
        a(f"s_mov_b32 exec_lo, 0\nv_cvt_pk_bf16_f32 v{Q+8*i+6}, -v4, 0\ns_mov_b32 exec_lo, -1")
    a("s_waitcnt vmcnt(8) lgkmcnt(0)")
    for i in range(4): a(samp(i, 0)); a(samp(i, 1))
    mx(0)
    a("s_waitcnt vmcnt(4)")
    a(QK(0, 0)); a(QK(0, 1))
    mx(1); mx(2)
    for x in ldK(2, "s55") + ldV(2, "s55"): a(x)
    mx(3)
    for x in ldK(3, "s56"): a(x)
    for i in range(0, 8, 2): a(f"v_pk_mul_f32 {vr(KV+56+i,2)}, {vr(P+8,2)}, {vr(P+8,2)}")
    for i in range(3):
        a(f"""s_add_u32 s26, s{W}, {i+1}
        s_and_b32 s26, s26, 3
        s_mul_i32 s26, s26, 12288
        s_add_u32 s26, s26, {CB + i*4096}
        v_add_u32 v{4+i}, s26, v1""")
    a(f"s_mul_i32 s26, s{W}, 12288\ns_add_u32 s26, s26, {CB}\nv_add_u32 v2, s26, v1")
    lds_inc(a, VC, C_L, V1)
    st(a, 7)
    a("s_mov_b32 s57, 3")
    def substep(u, ex, last=False):
        s = S + 16 * (u & 1); p = P + 8 * (u & 1)
        e = lambda i: f"v_exp_f32 v{s+i}, v{s+i}"
        c = lambda i: f"v_cvt_pk_bf16_f32 v{p+i}, v{s+2*i}, v{s+2*i+1}"
        q0, q1 = ([], []) if last else ([QK(u+1, 0)], [QK(u+1, 1)])
        seq = q0 + ex[0] + [e(0), e(1), e(2), e(3), c(0), e(4),
               PV(u-1, 0)] + ex[1] + [e(5), c(1), e(6), e(7), c(2), e(8)] + q1 + ex[2] + [e(9), c(3), e(10), e(11), c(4), e(12),
               PV(u-1, 1)] + ex[3] + [e(13), c(5), e(14), e(15), c(6), c(7)]
        for x in seq: a(x)
    a(".p2align 6")
    a.label("L_loop")
    for u in range(16):
        kt, qs = u >> 2, u & 3
        ex = [[], [], [], []]
        if qs == 1:
            l = ldV((kt + 3) & 3, "s56")
            ex[0] = [l[0]]; ex[1] = [l[1]]; ex[2] = [f"s_add_u32 s56, s56, {TS}"]
        if u == 0: ex[0] = [f"ds_read_b32 v7, v{VF} offset:{C_R+4}"]
        if u == 1:
            ex[2] = ["s_waitcnt lgkmcnt(0)", "v_readfirstlane_b32 s56, v7"]
            ex[3] = ["s_sub_u32 s56, s56, 1"]
        if u == 2:
            ex[0] = ["s_cbranch_scc1 L_nextwait", "L_nextok:", f"v_add_u32 v{VF}, 4, v{VF}"]
        if qs == 2 and "nowait" not in EXP: ex[3] = ["s_waitcnt vmcnt(10)"]
        if qs == 0 and "nowait" not in EXP: ex[3] = ["s_waitcnt vmcnt(10)"]
        if qs == 3:
            l = ldK(kt, "s56")
            ex[0] = [l[0]]; ex[1] = [l[1]]
        if u == 12: ex[0] = [f"ds_read_b32 v7, v{VC} offset:{C_F}"]
        if u == 13: ex[3] = ["s_sub_u32 s57, s57, 1"]
        if "itst" in EXP and u in (0, 8):
            a("s_waitcnt lgkmcnt(0)")
            for i in range(1, 6): a(f"s_mov_b32 s{72+2*i}, s{72+2*i+2}")
            a("s_memtime s[84:85]")
        if "noload" in EXP: ex = [[y for y in x if "buffer_load" not in y] for x in ex]
        substep(u, ex)
        if u == 13: a("s_cbranch_scc1 L_tail")
    a("s_branch L_loop")
    a.label("L_tail")
    st(a, 8)
    a(f"""s_waitcnt lgkmcnt(0)
    v_cmp_gt_u32 vcc, 4, v7
    s_cbranch_vccnz L_wait_ffn
    L_ffn_free:""")
    wr = lambda i, k: f"ds_write_b128 v{4+i}, {vr(O+16*i+4*k,4)} offset:{k*1024}"
    substep(14, [[], [wr(0, 0)], [wr(0, 1)], [wr(0, 2)]])
    substep(15, [[wr(0, 3)], [wr(1, 0)], [wr(1, 1)], [wr(1, 2)]], last=True)
    a(PV(15, 0)); a(wr(1, 3)); a(PV(15, 1))
    for k in range(4): a(wr(2, k))
    lds_inc(a, VC, C_C, V1)
    srd(a, 20, 50, 2048 * 896)
    TT = S
    OO = O + 16 * OWN
    a(f"""s_lshl_b32 s28, s35, 4
    s_add_u32 s28, s28, s{H}
    s_lshr_b32 s56, s28, 2
    s_lshl_b32 s56, s56, 5
    s_and_b32 s26, s{H}, 3
    s_add_u32 s56, s56, s26
    s_lshl_b32 s56, s56, 2
    s_add_u32 s56, s56, {WS_OFL}
    s_lshl_b32 s52, s28, 11
    s_add_u32 s52, s52, {WS_O}
    s_mov_b32 s57, 0""")
    spin_lds(a, VC, C_C, 4, 7)
    for k in range(12): a(f"ds_read_b128 {vr(TT+4*k,4)}, v2 offset:{k*1024}")
    a(f"s_lshl_b32 s26, s{W}, 2\nv_add_u32 v7, s26, v{VC}\nds_write_b32 v7, v{V1} offset:{C_P}")
    for i in range(3):
        a(f"s_waitcnt lgkmcnt({9-4*i})")
        for k in (6, 7, 0, 1, 2, 3, 4, 5): a(f"v_pk_add_f32 {vr(OO+2*k,2)}, {vr(OO+2*k,2)}, {vr(TT+16*i+2*k,2)}")
    a.label("L_fin")
    a(f"""v_mov_b32 v5, v{OO+12}
    v_mov_b32 v4, v{OO+12}
    s_mov_b32 exec_lo, 0
    v_mov_b32 v{OO+12}, 0
    s_mov_b32 exec_lo, -1
    v_permlane32_swap_b32 v5, v4
    v_rcp_f32 v6, v4
    s_mov_b32 s28, 0x30800000
    s_mov_b32 s29, 0x4e800000
    v_cmp_nle_f32 s[54:55], s28, v4
    v_cmp_nge_f32 s[62:63], s29, v4
    v_pk_add_f32 v[4:5], {vr(OO,2)}, {vr(OO+2,2)}""")
    for k in range(2, 8): a(f"v_pk_add_f32 v[4:5], v[4:5], {vr(OO+2*k,2)}")
    a(f"""v_add_f32 v4, v4, v5
    s_movk_i32 s28, 0x207
    v_cmp_class_f32 vcc, v4, s28
    s_or_b64 s[54:55], s[54:55], s[62:63]""")
    for k in range(8): a(f"v_pk_mul_f32 {vr(OO+2*k,2)}, {vr(OO+2*k,2)}, v[6:7] op_sel_hi:[1,0]")
    for k in range(8): a(f"v_cvt_pk_bf16_f32 v{Q+k}, v{OO+2*k}, v{OO+2*k+1}")
    a(f"""v_mov_b32 v6, s{T}
    s_or_b64 s[54:55], s[54:55], vcc
    s_cbranch_scc1 L_bad
    L_good:
    buffer_store_dwordx4 {vr(Q,4)}, v1, s[8:11], s52 offen sc1
    buffer_store_dwordx4 {vr(Q+4,4)}, v1, s[8:11], s52 offen offset:1024 sc1
    s_mov_b64 exec, 1
    buffer_atomic_swap v6, v{VZ}, s[8:11], s56 offen sc1
    s_mov_b64 exec, -1""")
    st(a, 9)
    a(f"""s_mov_b32 s26, {WS_G}
    buffer_load_dwordx2 {vr(GR,2)}, v{VGO}, s[8:11], s26 offen sc1
    buffer_load_dwordx4 {vr(XR,4)}, v{VXO}, s[12:15], s59 offen
    buffer_load_dwordx4 {vr(XR+4,4)}, v{VXO}, s[12:15], s59 offen offset:32""")
    WOF = 104; B = 232; ACC = 8; U = 40
    OSB = [40, 72]
    a(f"""v_bfe_u32 v4, v3, 2, 2
    v_lshl_add_u32 v4, v{VH}, 2, v4
    v_mul_u32_u24 v4, 224, v4
    v_bfe_u32 v5, v3, 4, 1
    v_lshl_add_u32 v4, v5, 5, v4
    v_and_b32 v5, 1, v3
    v_lshl_add_u32 v4, v5, 4, v4
    v_bfe_u32 v5, v3, 1, 1
    v_lshl_add_u32 v4, v5, 3, v4
    s_mul_i32 s28, s{W}, 56
    v_add_u32 v24, s28, v4
    v_add_u32 v25, {8*28*224}, v24
    v_add_u32 v26, {CB}, v1
    v_lshlrev_b32 v27, 2, v{VT}
    v_add_u32 v27, {UPDI}, v27
    s_mul_i32 s28, s{W}, 112
    s_add_u32 s28, s28, {UPD}
    v_lshl_add_u32 v28, v{VH}, 5, s28
    v_mov_b32 v29, {CNT}
    v_mov_b32 v30, 0
    v_mov_b32 v31, 0
    s_waitcnt vmcnt(6)""")
    spin_lds(a, 29, C_W, 2, 6)
    for k in range(32):
        hd, m = k >> 1, k & 1
        o = (28 * (hd & 7) + 16 * m) * 224
        b = 24 + (hd >> 3)
        a(f"ds_read_b64_tr_b16 {vr(WOF+4*k,2)}, v{b} offset:{o}\nds_read_b64_tr_b16 {vr(WOF+4*k+2,2)}, v{b} offset:{o+8*224}")
    for k in range(8): a(f"v_pk_mul_f32 {vr(ACC+2*k,2)}, v[30:31], v[30:31]")
    a("s_waitcnt vmcnt(0)")
    for k in range(8):
        a(f"v_lshlrev_b32 v{B+2*k}, 16, v{XR+k}\nv_and_b32 v{B+2*k+1}, 0xffff0000, v{XR+k}")
    a(f"""v_cmp_ne_u32 vcc, s{T}, v{GR+1}
    s_cbranch_vccnz L_gate
    L_gate_ok:
    v_sub_f32 v32, 1.0, v{GR}
    v_cvt_pk_bf16_f32 v32, v32, v32
    v_lshlrev_b32 v32, 16, v32
    s_movk_i32 s57, 0x40f
    s_mov_b32 s60, {SPIN_LIMIT}""")
    if "twait" not in EXP: st(a, 10)
    def rd(p):
        a(f"""s_ff1_i32_b32 s27, s26
        s_bitset0_b32 s57, s27
        s_mul_i32 s28, s27, 12288
        v_add_u32 v7, s28, v26""")
        for k in range(8): a(f"ds_read_b128 {vr(OSB[p]+4*k,4)}, v7 offset:{k*1024}")
    a(f"""L_idle:
    ds_read_b32 v6, v29 offset:{C_O}
    s_sub_u32 s60, s60, 1
    s_cbranch_scc1 L_exit
    s_waitcnt lgkmcnt(0)
    v_readfirstlane_b32 s61, v6
    s_and_b32 s26, s61, s57
    s_cbranch_scc0 L_idle
    s_bitcmp1_b32 s26, 10
    s_cbranch_scc1 L_blkU""")
    rd(0)
    a(f"ds_read_b32 v6, v29 offset:{C_O}")
    for p in range(2):
        a(f"""L_st{p}:
        s_mov_b32 s29, s27
        s_waitcnt lgkmcnt(0)
        v_readfirstlane_b32 s61, v6
        s_and_b32 s26, s61, s57
        s_and_b32 s26, s26, 15
        s_cbranch_scc0 L_mm{p}""")
        rd(1 - p)
        a(f"""ds_read_b32 v6, v29 offset:{C_O}
        L_mm{p}:
        s_cmp_eq_u32 s29, 1
        s_cbranch_scc1 L_m{p}1
        s_cmp_eq_u32 s29, 2
        s_cbranch_scc1 L_m{p}2
        s_cmp_eq_u32 s29, 3
        s_cbranch_scc1 L_m{p}3""")
        for g in range(4):
            a(f"L_m{p}{g}:")
            for k in range(8):
                a(f"{MF} {vr(ACC,16)}, {vr(WOF+32*g+4*k,4)}, {vr(OSB[p]+4*k,4)}, {vr(ACC,16)}")
            if g < 3: a(f"s_branch L_md{p}")
        a(f"""L_md{p}:
        s_cmp_lg_u32 s26, 0
        s_cbranch_scc1 L_st{1-p}""")
        if p == 0: a("s_branch L_next")
    a("L_next:\ns_cmp_lg_u32 s57, 0\ns_cbranch_scc1 L_idle")
    if "twait" not in EXP: st(a, 11)
    a("s_nop 7")
    for m in range(2):
        for e in range(4*m, 4*m+4):
            a(f"v_pk_fma_f32 {vr(B+2*e,2)}, {vr(ACC+2*e,2)}, {vr(GR,2)}, {vr(B+2*e,2)} op_sel_hi:[1,0,1]")
        for e in range(4*m, 4*m+4): a(f"v_cvt_pk_bf16_f32 v{40+e}, v{B+2*e}, v{B+2*e+1}")
        if m == 0:
            a(f"buffer_store_dwordx4 v[40:43], v{VXO}, s[20:23], s59 offen{OUTAUX}")
        else:
            a(f"""s_mov_b32 exec_hi, 0
            buffer_store_dwordx4 v[44:47], v{VXO}, s[20:23], s59 offen offset:32{OUTAUX}
            s_mov_b64 exec, 0xffffffff
            s_not_b64 exec, exec
            buffer_store_dwordx2 v[44:45], v{VXO}, s[20:23], s59 offen offset:32{OUTAUX}""")
    st_end(a)
    diag_end(a)
    a("s_endpgm")
    a(f"""L_blkU:
    ds_read_b32 v6, v27
    s_bitset0_b32 s57, 10
    s_waitcnt lgkmcnt(0)
    v_cmp_le_i32 vcc, 0, v6
    s_cbranch_vccz L_noupd
    s_mov_b64 exec, vcc
    v_mul_u32_u24 v6, 448, v6
    v_add_u32 v28, v28, v6""")
    for k in range(4): a(f"ds_read_b128 {vr(U+4*k,4)}, v28 offset:{64*(k>>1)+16*(k&1)}")
    a("s_waitcnt lgkmcnt(0)")
    for k in range(8):
        a(f"""v_pk_add_f32 {vr(B+2*k,2)}, {vr(B+2*k,2)}, {vr(U+2*k,2)}
        v_cvt_pk_bf16_f32 v{B+2*k}, v{B+2*k}, v{B+2*k+1}
        v_and_b32 v{B+2*k+1}, 0xffff0000, v{B+2*k}
        v_lshlrev_b32 v{B+2*k}, 16, v{B+2*k}""")
    a("s_mov_b64 exec, -1\nL_noupd:")
    for k in range(8): a(f"v_pk_mul_f32 {vr(B+2*k,2)}, {vr(B+2*k,2)}, v[32:33] op_sel_hi:[1,0]")
    a("s_branch L_next")
    a("L_bad:\ns_cmp_eq_u32 s57, 0\ns_cbranch_scc1 L_slow")
    for k in range(8): a(f"v_min_u32 v{Q+k}, -2, v{Q+k}")
    a("s_branch L_good")
    a.label("L_wait_ffn")
    spin_lds(a, VC, C_F, 4, 7)
    a("s_branch L_ffn_free")
    a.label("L_nextwait")
    spin_lds(a, VF, C_R + 4, 1, 7)
    a("s_sub_u32 s56, s61, 1\ns_branch L_nextok")
    a(f"""L_gate:
    s_mov_b32 s26, {WS_G}
    s_mov_b32 s60, {SPIN_LIMIT}
    L_gate1:
    buffer_load_dwordx2 {vr(GR,2)}, v{VGO}, s[8:11], s26 offen sc1
    s_waitcnt vmcnt(0)
    v_cmp_ne_u32 vcc, s{T}, v{GR+1}
    s_cbranch_vccz L_gate_ok
    s_sub_u32 s60, s60, 1
    s_cbranch_scc0 L_gate1
    s_endpgm""")
    a.label("L_slow")
    a(f"""s_mov_b32 s57, 1
    s_mov_b32 s55, {KVB}
    s_mov_b32 s54, 0
    s_mov_b32 exec_lo, 0
    v_mov_b32 v{QO+6}, 0
    v_mov_b32 v{QO+7}, 0
    s_mov_b32 exec_lo, -1
    v_mov_b32 v4, 0xff800000
    L_slow1:
    {ldK(0, "s54")[0]}
    {ldK(0, "s54")[1]}
    s_waitcnt vmcnt(0)
    {MF} {vr(S,16)}, {vr(KV,4)}, {vr(QO,4)}, 0
    {MF} {vr(S,16)}, {vr(KV+4,4)}, {vr(QO+4,4)}, {vr(S,16)}""")
    for x in max16_list(4, S, init=True): a(x)
    a(f"""s_add_u32 s54, s54, {TS}
    s_cmp_lt_u32 s54, s55
    s_cbranch_scc1 L_slow1
    v_mov_b32 v5, v4
    v_permlane32_swap_b32 v4, v5
    v_max_f32 v4, v4, v5""")
    split_neg_max(a, 4, 5, 6, QO + 6, QO + 7)
    for i in range(16): a(f"v_mov_b32 v{OO+i}, 0")
    a(f"""s_mov_b32 s54, 0
    L_slow2:
    {ldK(0, "s54")[0]}
    {ldK(0, "s54")[1]}
    {ldV(0, "s54")[0]}
    {ldV(0, "s54")[1]}
    s_waitcnt vmcnt(0)
    {MF} {vr(S,16)}, {vr(KV,4)}, {vr(QO,4)}, 0
    {MF} {vr(S,16)}, {vr(KV+4,4)}, {vr(QO+4,4)}, {vr(S,16)}""")
    for i in range(16): a(f"v_exp_f32 v{S+i}, v{S+i}")
    for i in range(8): a(f"v_cvt_pk_bf16_f32 v{P+i}, v{S+2*i}, v{S+2*i+1}")
    a(f"""{MF} {vr(OO,16)}, {vr(KV+8,4)}, {vr(P,4)}, {vr(OO,16)}
    {MF} {vr(OO,16)}, {vr(KV+12,4)}, {vr(P+4,4)}, {vr(OO,16)}
    s_nop 7
    s_nop 7
    s_add_u32 s54, s54, {TS}
    s_cmp_lt_u32 s54, s55
    s_cbranch_scc1 L_slow2
    s_branch L_fin""")

def service_wave(a):
    a.label("L_service")
    a(f"""v_mov_b32 v14, {CNT}
    v_mov_b32 v15, 1
    v_mov_b32 v9, 0""")
    srd(a, 8, 36, (1 << 28) - WSBASE)
    a("s_waitcnt lgkmcnt(0)")
    tag(a)
    a(f"v_mov_b32 v4, s{T}\nds_write_b32 v14, v4 offset:{C_T}\ns_waitcnt vmcnt(0)")
    lds_inc(a, 14, C_Q1, 15)
    a(f"""v_and_b32 v32, 31, v3
    v_lshrrev_b32 v33, 5, v3
    v_lshlrev_b32 v219, 3, v1
    v_lshrrev_b32 v220, 2, v1
    v_and_b32 v4, 7, v3
    v_lshlrev_b32 v217, 3, v4
    s_lshr_b32 s58, s{H}, 2
    s_lshl2_add_u32 s58, s{J}, s58
    s_cmp_ge_u32 s{L}, 2
    s_cbranch_scc1 L_svcB""")
    def sel_load(lbl):
        a(f"""s_mov_b32 s26, {WS_SEL}
        s_mov_b32 s60, {SPIN_LIMIT}
        {lbl}:
        buffer_load_dwordx2 v[20:21], v217, s[8:11], s26 offen sc1
        s_waitcnt vmcnt(0)
        v_cmp_ne_u32 vcc, s{T}, v21
        s_cbranch_vccz {lbl}_ok
        s_sleep 4
        s_sub_u32 s60, s60, 1
        s_cbranch_scc0 {lbl}
        s_endpgm
        {lbl}_ok:""")
    a(f"""v_mov_b32 v6, {KEYS}
    s_lshl_b32 s28, s{L}, 8
    v_add3_u32 v7, v220, v6, s28
    s_lshl_b32 s27, s{J}, 6
    s_add_u32 s27, s27, {WS_R}
    s_cmp_eq_u32 s{RL}, 14
    s_cbranch_scc1 L_rank
    s_cmp_lg_u32 s2, {SELECTOR}
    s_cbranch_scc1 L_svcA
    s_lshl_b32 s26, s{L}, 9
    s_add_u32 s26, s26, {WS_R}
    s_mov_b32 s27, {WS_SEL}
    v_lshlrev_b32 v4, 3, v3
    v_mov_b32 v5, 2
    s_mov_b32 s60, {SPIN_LIMIT}
    L_keys:
    v_mov_b32 v20, 0
    v_mov_b32 v21, 0
    buffer_atomic_or_x2 v[20:21], v4, s[8:11], s26 offen sc0 sc1
    s_sub_u32 s60, s60, 1
    s_cbranch_scc1 L_exit
    s_waitcnt vmcnt(0)
    v_cmp_ne_u32 vcc, s{T}, v21
    s_cbranch_vccnz L_keys
    ds_write_b32 v7, v20""")
    lds_inc(a, 14, C_K, 5)
    a.label("L_rank")
    spin_lds(a, 14, C_K, 4, 8)
    st(a, 10)
    if STAMP: a("s_waitcnt lgkmcnt(0)")
    a(f"ds_read_b32 v20, v7\nv_mov_b32 v22, 0\nv_mov_b32 v21, s{T}\ns_mov_b32 s57, 0\nL_rk:")
    for k in range(8): a(f"ds_read_b128 {vr(40+4*k,4)}, v6 offset:{16*k}")
    a("v_add_u32 v6, 128, v6")
    CS = ["s[52:53]", "s[54:55]", "s[62:63]", "s[28:29]"]
    for k in range(8):
        a(f"s_waitcnt lgkmcnt({7-k})")
        for e in range(4): a(f"v_cmp_gt_u32 {CS[e]}, v{40+4*k+e}, v20")
        for e in range(4): a(f"v_addc_co_u32 v22, vcc, 0, v22, {CS[e]}")
    a(f"""s_add_u32 s57, s57, 1
    s_cmp_lt_u32 s57, 4
    s_cbranch_scc1 L_rk
    v_cmp_gt_u32 vcc, 8, v22
    v_lshlrev_b32 v22, 3, v22
    s_mov_b64 exec, vcc
    s_cbranch_execz L_rank_done
    buffer_atomic_swap_x2 v[20:21], v22, s[8:11], s27 offen sc1
    L_rank_done:
    s_mov_b64 exec, -1""")
    st(a, 11)
    a.label("L_svcA")
    GI = CB; DI = QX; HB = 101376
    FT, KS = 56, 59
    a(f"""s_cmp_ge_u32 s2, 196
    s_cbranch_scc1 L_nofn
    s_mul_i32 s{FT}, s2, 9363
    s_lshr_b32 s{FT}, s{FT}, 16
    s_mul_i32 s26, s{FT}, 7
    s_sub_u32 s{KS}, s2, s26
    v_lshrrev_b32 v4, 3, v3
    v_and_b32 v5, 2, v4
    v_lshlrev_b32 v5, 1, v5
    v_and_b32 v6, 7, v3
    v_xor_b32 v5, v5, v6
    v_mul_u32_u24 v6, 3584, v4
    v_lshl_add_u32 v34, v5, 4, v6
    v_add_u32 v35, {8*3584-1024}, v34
    v_add_u32 v36, {2*(8*3584-1024)}, v34
    v_add_u32 v37, {3*(8*3584-1024)}, v34
    v_lshrrev_b32 v6, 2, v3
    v_mul_u32_u24 v6, 896, v6
    v_and_b32 v5, 3, v3
    v_lshl_add_u32 v200, v5, 4, v6
    v_add_u32 v201, {16*896-1024}, v200
    v_add_u32 v202, {2*(16*896-1024)}, v200
    v_add_u32 v203, {3*(16*896-1024)}, v200
    ; transposing-read base: (8hh + r)*128 + ((r>>1)&1)*64 + colhalf*32 + c*8
    v_bfe_u32 v4, v3, 2, 2
    v_lshl_add_u32 v5, v33, 3, v4
    v_lshlrev_b32 v5, 7, v5
    v_lshrrev_b32 v4, 1, v4
    v_lshl_add_u32 v5, v4, 6, v5
    v_bfe_u32 v4, v3, 4, 1
    v_lshl_add_u32 v5, v4, 5, v5
    v_and_b32 v4, 3, v3
    v_lshl_add_u32 v5, v4, 3, v5
    s_lshl_b32 s54, s{L}, 13
    s_add_u32 s54, s54, {GI}
    v_add_u32 v38, s54, v5
    v_xor_b32 v39, 64, v38
    v_lshrrev_b32 v6, 7, v5
    v_and_b32 v5, 63, v5
    v_lshl_add_u32 v5, v6, 6, v5
    s_lshl_b32 s26, s{L}, 12
    s_add_u32 s26, s26, {DI}
    v_add_u32 v210, s26, v5
    ; partial-sum store offset 4hh*256 + col*4 ; h addresses ; y offsets
    v_lshlrev_b32 v212, 10, v33
    v_lshl_add_u32 v212, v32, 2, v212
    s_lshl_b32 s26, s{L}, 9
    s_add_u32 s26, s26, {HB}
    v_lshl_add_u32 v214, v3, 3, s26
    v_lshlrev_b32 v4, 4, v217
    v_lshl_add_u32 v4, v33, 4, v4
    v_add_u32 v218, {HB}, v4
    v_mul_u32_u24 v215, {4*1792}, v33
    v_lshl_add_u32 v215, v32, 2, v215
    v_add_u32 v216, {2*1792}, v215""")
    srd(a, 16, 42, 448 * 3584)
    a(f"""s_cmp_eq_u32 s{L}, 1
    s_cselect_b64 s[16:17], s[44:45], s[42:43]
    s_mul_i32 s52, s{KS}, {64*3584}
    s_lshl_b32 s28, s{FT}, 7
    s_add_u32 s52, s52, s28""")
    spin_lds(a, 14, C_L, 4, 8, sleep=2)
    st(a, 3)
    NR = 2 if "fine" in EXP else 4
    XS_ = 40; FW = 56; AC = 104
    a("s_mov_b32 m0, s54\ns_nop 0")
    for k in range(8):
        if k == 4: a(f"s_add_u32 s52, s52, {32*3584}\ns_add_u32 m0, s54, 4096")
        if k == 8 - NR: sel_load("L_sel1")
        elif k and k % NR == 0: a("s_waitcnt vmcnt(0)")
        a(f"buffer_load_dwordx4 v{34+(k&3)}, s[16:19], s52 offen offset:{1024*(k&3)} lds")
    a(f"""v_and_b32 v4, 0xffff, v20
    v_sub_u32 v4, 0xffff, v4
    v_mul_u32_u24 v4, 896, v4
    v_lshl_add_u32 v4, v33, 4, v4
    s_lshl_b32 s26, s{KS}, 7
    s_mov_b32 exec_lo, 0xff
    s_mov_b32 exec_hi, 0xff""")
    for k in range(4):
        a(f"buffer_load_dwordx4 {vr(XS_+4*k,4)}, v4, s[12:15], s26 offen offset:{32*k}")
    a("s_mov_b64 exec, -1\ns_waitcnt vmcnt(4)")
    for k in range(4):
        for n in range(2):
            a(f"ds_read_b64_tr_b16 {vr(FW+8*k+4*n,2)}, v{38+n} offset:{k*2048}\nds_read_b64_tr_b16 {vr(FW+8*k+4*n+2,2)}, v{38+n} offset:{k*2048+512}")
    lds_inc(a, 14, C_F, 15)
    a(f"""s_mov_b64 s[16:17], s[46:47]
    s_mul_i32 s28, s{FT}, {64*896}
    s_add_u32 s28, s28, s26
    s_lshl_b32 s29, s{L}, 6
    s_add_u32 s28, s28, s29
    s_lshl_b32 s29, s{L}, 12
    s_add_u32 m0, s29, {DI}
    s_lshl1_add_u32 s26, s2, s{L}
    s_lshl_b32 s26, s26, 11
    s_add_u32 s26, s26, {WS_GP}
    s_waitcnt lgkmcnt(0)""")
    st(a, 4)
    for k in range(4):
        a(f"s_waitcnt vmcnt({3-k})")
        for n in range(2):
            a(f"{MF} {vr(AC+16*n,16)}, {vr(XS_+4*k,4)}, {vr(FW+8*k+4*n,4)}, {'0' if k==0 else vr(AC+16*n,16)}")
    for n in range(2):
        for k in range(4):
            a(f"buffer_store_dword v{AC+16*n+k}, v212, s[8:11], s26 offen offset:{256*k+128*n} sc1")
    for k in range(4): a(f"buffer_load_dwordx4 v{200+k}, s[16:19], s28 offen offset:{1024*k} lds")
    a(f"""s_lshl1_add_u32 s26, s{KS}, s{L}
    s_lshl_b32 s26, s26, 2
    s_mul_i32 s28, s{FT}, {7*128}
    s_add_u32 s26, s26, s28
    s_add_u32 s26, s26, {WS_F1}
    s_waitcnt vmcnt(4)""")
    signal(a, 5, 219, "s26", "0x7f")
    st(a, 5)
    a(f"s_lshl_b32 s26, s2, 7\ns_add_u32 s26, s26, {WS_F1}")
    poll_atomic(a, 5, 220, "s26", "0x3fff", 0)
    st(a, 6)
    GP = 40
    a(f"s_mul_i32 s26, s{FT}, {7*4096}\ns_lshl_b32 s28, s{L}, 10\ns_add_u32 s26, s26, s28\ns_add_u32 s26, s26, {WS_GP}")
    for k in range(7):
        a(f"""buffer_load_dwordx4 {vr(GP+8*k,4)}, v1, s[8:11], s26 offen sc1
        buffer_load_dwordx4 {vr(GP+8*k+4,4)}, v1, s[8:11], s26 offen offset:2048 sc1""")
        if k < 6: a("s_add_u32 s26, s26, 4096")
    DW = 120
    for k in range(4):
        a(f"ds_read_b64_tr_b16 {vr(DW+4*k,2)}, v210 offset:{k*1024}\nds_read_b64_tr_b16 {vr(DW+4*k+2,2)}, v210 offset:{k*1024+256}")
    a(f"s_mov_b32 s28, {NLOG2E:#x}\ns_mov_b32 s29, {NLOG2E:#x}\ns_waitcnt vmcnt(0)")
    for k in range(1, 7):
        for e in range(4):
            a(f"v_pk_add_f32 {vr(GP+2*e,2)}, {vr(GP+2*e,2)}, {vr(GP+8*k+2*e,2)}")
    for e in range(2):
        a(f"""v_cvt_pk_bf16_f32 v22, v{GP+2*e}, v{GP+2*e+1}
        v_cvt_pk_bf16_f32 v24, v{GP+4+2*e}, v{GP+5+2*e}
        v_and_b32 v23, 0xffff0000, v22
        v_lshlrev_b32 v22, 16, v22
        v_pk_mul_f32 v[26:27], v[22:23], s[28:29]
        v_and_b32 v25, 0xffff0000, v24
        v_exp_f32 v26, v26
        v_exp_f32 v27, v27
        v_lshlrev_b32 v24, 16, v24
        v_pk_add_f32 v[26:27], v[26:27], 1.0 op_sel_hi:[1,0]
        v_rcp_f32 v26, v26
        v_rcp_f32 v27, v27
        s_nop 0
        v_pk_mul_f32 v[22:23], v[22:23], v[26:27]
        v_cvt_pk_bf16_f32 v22, v22, v23
        v_and_b32 v23, 0xffff0000, v22
        v_lshlrev_b32 v22, 16, v22
        v_pk_mul_f32 v[22:23], v[22:23], v[24:25]
        v_cvt_pk_bf16_f32 v{28+e}, v22, v23""")
    a("ds_write_b64 v214, v[28:29]")
    lds_inc(a, 14, C_S, 15)
    spin_lds(a, 14, C_S, 2, 8)
    for k in range(4): a(f"ds_read_b128 {vr(GP+4*k,4)}, v218 offset:{32*k}")
    for k in range(4):
        a(f"s_waitcnt lgkmcnt({3-k})\n{MF} {vr(AC,16)}, {vr(GP+4*k,4)}, {vr(DW+4*k,4)}, {'0' if k==0 else vr(AC,16)}")
    a(f"""s_mul_i32 s26, s{FT}, 14336
    s_lshl1_add_u32 s28, s{KS}, s{L}
    s_lshl_b32 s29, s28, 7
    s_add_u32 s26, s26, s29
    s_add_u32 s26, s26, {WS_YP}
    s_lshl2_add_u32 s28, s{FT}, s29
    s_add_u32 s28, s28, {WS_YFL}
    buffer_store_dword v{AC}, v215, s[8:11], s26 offen sc1
    buffer_store_dword v{AC+1}, v215, s[8:11], s26 offen offset:1792 sc1
    buffer_store_dword v{AC+2}, v216, s[8:11], s26 offen sc1
    buffer_store_dword v{AC+3}, v216, s[8:11], s26 offen offset:1792 sc1
    s_waitcnt vmcnt(0)""")
    signal(a, 5, 9, "s28", 1)
    st(a, 7)
    a("s_branch L_updA")
    a.label("L_nofn")
    lds_inc(a, 14, C_F, 15)
    spin_lds(a, 14, C_F, 4, 8, sleep=8)
    sel_load("L_sel2")
    a(f"""s_lshl2_add_u32 s26, s2, s{L}
    s_cmp_lg_u32 s26, {254*4}
    s_cbranch_scc1 L_updA""")
    a(f"s_mov_b32 s60, {SPIN_LIMIT}\nL_ep:")
    for k in range(4):
        a(f"s_mov_b32 s26, {WS_FL+8192*k}\nbuffer_load_dword v{24+k}, v219, s[8:11], s26 offen sc1")
    a(f"""s_sub_u32 s60, s60, 1
    s_cbranch_scc1 L_exit
    s_waitcnt vmcnt(0)
    v_xor_b32 v24, s{T}, v24
    v_bitop3_b32 v24, v24, v25, s{T} bitop3:0xf6
    v_bitop3_b32 v24, v24, v26, s{T} bitop3:0xf6
    v_bitop3_b32 v24, v24, v27, s{T} bitop3:0xf6
    v_cmp_ne_u32 vcc, 0, v24
    s_cbranch_vccnz L_ep
    s_mov_b32 s26, {WS_EP}""")
    flag_store(a, 5, 9, "s26")
    Y = 40
    a(f"""L_updA:
    s_and_b32 s53, s{H}, 3
    s_mul_i32 s53, s53, 224
    s_lshl_b32 s57, s{L}, 2
    s_lshr_b32 s26, s53, 6
    s_lshl_b32 s26, s26, 7
    s_add_u32 s62, s26, {WS_YFL}
    L_upd:
    v_readlane_b32 s52, v20, s57
    s_and_b32 s54, s52, 0xffff
    s_sub_u32 s54, 0xffff, s54
    s_lshr_b32 s26, s54, 5
    s_cmp_lg_u32 s26, s58
    s_cbranch_scc1 L_updn
    s_mov_b32 s60, {SPIN_LIMIT}
    s_mov_b32 exec_lo, 0x0fffffff
    s_mov_b32 exec_hi, 0x0fffffff
    L_yfl:
    v_mov_b32 v24, 0
    v_mov_b32 v25, 0
    buffer_atomic_or v24, v220, s[8:11], s62 offen sc0 sc1
    buffer_atomic_or v25, v220, s[8:11], s62 offen offset:256 sc0 sc1
    s_waitcnt vmcnt(0)
    v_xor_b32 v24, s{T}, v24
    v_bitop3_b32 v24, v24, v25, s{T} bitop3:0xf6
    v_cmp_ne_u32 vcc, 0, v24
    s_cbranch_vccz L_yok
    s_sub_u32 s60, s60, 1
    s_cbranch_scc0 L_yfl
    s_endpgm
    L_yok:
    v_mul_u32_u24 v4, {14*14336}, v33
    v_lshl_add_u32 v4, v32, 4, v4
    s_mul_i32 s26, s57, 1792
    s_lshl1_add_u32 s26, s53, s26
    s_add_u32 s26, s26, {WS_YP}""")
    for i in range(14):
        a(f"buffer_load_dwordx4 {vr(Y+4*i,4)}, v4, s[8:11], s26 offen sc1\ns_add_u32 s26, s26, 14336")
    a(f"""s_mov_b64 exec, -1
    s_lshr_b32 s26, s52, 16
    s_not_b32 s55, s26
    s_and_b32 s29, s26, 0x7fff
    s_bitcmp1_b32 s26, 15
    s_cselect_b32 s26, s29, s55
    s_lshl_b32 s26, s26, 16
    v_mov_b32 v6, {NLOG2E:#x}
    v_mul_f32 v6, s26, v6
    v_exp_f32 v6, v6
    v_add_f32 v6, 1.0, v6
    v_rcp_f32 v6, v6
    v_cvt_pk_bf16_f32 v6, v6, v6
    v_lshlrev_b32 v6, 16, v6
    s_mul_i32 s26, s57, 448
    s_add_u32 s26, s26, {UPD}
    v_lshl_add_u32 v7, v32, 4, s26
    s_waitcnt vmcnt(0)""")
    for i in range(1, 14):
        a(f"v_pk_add_f32 {vr(Y,2)}, {vr(Y,2)}, {vr(Y+4*i,2)}\nv_pk_add_f32 {vr(Y+2,2)}, {vr(Y+2,2)}, {vr(Y+4*i+2,2)}")
    for k in range(4): a(f"v_mov_b32 v{Y+4+k}, v{Y+k}")
    for k in range(4): a(f"v_permlane32_swap_b32 v{Y+k}, v{Y+4+k}")
    for k in range(4): a(f"v_add_f32 v{Y+k}, v{Y+k}, v{Y+4+k}")
    for k in range(0, 4, 2):
        a(f"""v_cvt_pk_bf16_f32 v{Y+k}, v{Y+k}, v{Y+k+1}
        v_and_b32 v{Y+k+1}, 0xffff0000, v{Y+k}
        v_lshlrev_b32 v{Y+k}, 16, v{Y+k}
        v_mul_f32 v{Y+k}, v{Y+k}, v6
        v_mul_f32 v{Y+k+1}, v{Y+k+1}, v6
        v_cvt_pk_bf16_f32 v{Y+k}, v{Y+k}, v{Y+k+1}
        v_and_b32 v{Y+k+1}, 0xffff0000, v{Y+k}
        v_lshlrev_b32 v{Y+k}, 16, v{Y+k}""")
    a(f"""s_and_b32 s54, s54, 31
    v_mov_b32 v5, s57
    s_lshl_b32 s26, s54, 2
    s_add_u32 s26, s26, {UPDI}
    v_mov_b32 v4, s26
    s_mov_b64 exec, 0x0fffffff
    ds_write_b128 v7, {vr(Y,4)}
    s_mov_b64 exec, 1
    ds_write_b32 v4, v5
    s_mov_b64 exec, -1
    L_updn:
    s_add_u32 s57, s57, 1
    s_and_b32 s26, s57, 3
    s_cbranch_scc1 L_upd
    v_mov_b32 v6, 512""")
    lds_inc(a, 14, C_O, 6)
    st(a, 9)
    a("s_branch L_ofetch")
    a.label("L_svcB")
    OUTT = ""
    if "outtouch" in EXP:
        OUTT = f"""s_cmp_lg_u32 s55, {42*1024}
        s_cbranch_scc1 L_noot
        s_mov_b32 s20, s50
        s_mov_b32 s21, s51
        s_mov_b32 s22, {2048*896}
        s_mov_b32 s23, 0x20000
        s_lshl_b32 s26, s58, 5
        v_add_u32 v4, s26, v32
        v_mul_u32_u24 v4, 896, v4
        s_add_u32 s26, s53, 127
        s_and_b32 s26, s26, 0xffffff80
        v_lshl_add_u32 v4, v33, 7, v4
        s_cmp_eq_u32 s53, 672
        s_cselect_b32 exec_hi, 0, -1
        buffer_store_dword v9, v4, s[20:23], s26 offen sc1
        s_mov_b64 exec, -1
        L_noot:"""
    WOPF = "s_mov_b32 exec_hi, 0x1ffff\nbuffer_load_dword v6, v219, s[16:19], s28 offen\ns_mov_b64 exec, -1" if "wopfS" not in EXP else ""
    for e in range(7):
        a(f"""v_add_u32 v4, {64*e}, v3
        v_mul_u32_u24 v5, 4682, v4
        v_lshrrev_b32 v5, 16, v5
        v_mul_u32_u24 v5, {896-224}, v5
        v_lshl_add_u32 v{200+e}, v4, 4, v5""")
    a(f"""v_mov_b32 v16, 0
    v_mov_b32 v17, 0
    v_mov_b32 v18, 0
    v_mov_b32 v19, 0
    v_add_u32 v209, {448*224}, v1
    s_cmp_eq_u32 s{L}, 2
    s_cbranch_scc1 L_svcB2
    v_lshrrev_b32 v4, 4, v3
    v_and_b32 v5, 15, v3
    v_lshlrev_b32 v5, 2, v5
    v_lshl_add_u32 v221, v4, 9, v5
    v_lshl_add_u32 v222, v4, 5, v14
    v_and_b32 v223, 48, v3
    v_and_b32 v5, 15, v3
    v_add_u32 v6, v5, v4
    v_mul_u32_u24 v224, {4*TS}, v6
    v_add_u32 v224, 1, v224
    v_bfm_b32 v225, v5, 0
    s_mul_i32 s26, s{H}, 28
    s_add_u32 s28, s26, 27
    s_xor_b32 s26, s26, s28
    s_mov_b32 s62, 0x55555555
    s_cmp_ge_u32 s26, 64
    s_cselect_b32 s62, -1, s62
    s_mov_b32 s63, s62
    s_lshr_b32 s28, s{J}, 2
    s_lshl4_add_u32 s26, s{H}, s28
    s_lshl_b32 s26, s26, 7
    s_add_u32 s26, s26, {WS_MB}""")
    spin_lds(a, 14, C_D, PCD, 8, sleep=1)
    at = lambda r: f"v_mov_b32 v{r}, 0\nbuffer_atomic_or v{r}, v221, s[8:11], s26 offen sc0 sc1"
    a(f"""s_mov_b32 s60, {SPIN_LIMIT}
    s_mov_b32 s52, 0x11111111
    s_mov_b32 s53, 0x11111111
    s_mov_b64 exec, s[62:63]""")
    for i in range(PD - 1): a(at(28 + i) + f"\ns_sleep {PG}")
    a("L_kv:")
    for i in range(PD):
        a(at(28 + (i + PD - 1) % PD))
        a(f"""s_waitcnt vmcnt({PD-1})
        v_cmp_ne_u32 vcc, s{T}, v{28+i}
        s_lshr_b64 s[28:29], vcc, 1
        s_or_b64 s[28:29], s[28:29], vcc
        s_lshr_b64 s[54:55], s[28:29], 2
        s_or_b64 s[28:29], s[28:29], s[54:55]
        s_andn2_b64 s[28:29], s[52:53], s[28:29]
        s_cbranch_scc0 L_kvn{i}
        s_andn2_b64 s[52:53], s[52:53], s[28:29]
        v_lshrrev_b64 v[4:5], v223, s[28:29]
        v_and_b32 v5, v225, v4
        v_bcnt_u32_b32 v5, v5, 0
        v_lshl_add_u32 v5, v5, 2, v222
        s_mov_b64 exec, s[28:29]
        ds_write_b32 v5, v224 offset:{C_R}
        s_mov_b64 exec, s[62:63]
        v_and_b32 v4, 0xffff, v4
        v_bcnt_u32_b32 v4, v4, 0
        v_lshl_add_u32 v222, v4, 2, v222
        s_cmp_eq_u64 s[52:53], 0
        s_cbranch_scc1 L_kvdone
        L_kvn{i}:""")
    a(f"""s_sub_u32 s60, s60, 1
    s_cbranch_scc0 L_kv
    s_endpgm
    L_kvdone:
    s_mov_b64 exec, -1
    L_svcB2:""")
    srd(a, 16, 38, 448 * 896)
    a(f"""s_and_b32 s53, s{H}, 3
    s_mul_i32 s53, s53, 224
    s_and_b32 s27, s{L}, 1
    s_mul_i32 s55, s27, {7*1024}
    s_mul_i32 s57, s27, {32*896}
    s_add_u32 s57, s57, s53
    s_lshl1_add_u32 s28, s25, s27
    s_mul_i32 s28, s28, {49*128}
    v_mov_b32 v24, -1
    v_mov_b32 v25, -1
    v_mov_b32 v26, -1
    v_mov_b32 v27, -1
    s_lshl_b32 s59, s{J}, 6
    s_add_u32 s59, s59, s{H}
    s_lshl1_add_u32 s59, s59, s27
    s_lshl_b32 s59, s59, 10
    s_add_u32 s59, s59, {WS_O}""")
    spin_lds(a, 14, C_L, 4, 8, sleep=2)
    st(a, 3)
    a(f"""ds_write_b128 v209, v[16:19]
    {WOPF}
    s_cmp_lg_u32 s{L}, 2
    s_cbranch_scc1 L_nofl
    s_lshl_b32 s26, s2, 7
    s_add_u32 s26, s26, {WS_FL}""")
    flag_store(a, 5, 9, "s26")
    a("L_nofl:\ns_waitcnt vmcnt(0)")
    if "wogate" in EXP: spin_lds(a, 14, C_F, 2, 8, sleep=4)
    a("L_wo:")
    for e in range(7):
        a(f"""s_add_u32 m0, s55, {e*1024}
        s_waitcnt vmcnt({WOP})
        buffer_load_dwordx4 v{200+e}, s[16:19], s57 offen lds""")
    a(f"""s_cmp_ge_u32 s55, {56*1024}
    s_cbranch_scc1 L_noclr
    buffer_store_dwordx4 v[24:27], v1, s[8:11], s59 offen sc1
    s_add_u32 s59, s59, {16*2048}
    L_noclr:
    {OUTT}
    s_sub_u32 s26, s55, {56*1024}
    s_cmp_ge_u32 s26, {14*1024}
    s_cbranch_scc1 L_noinc""")
    lds_inc(a, 14, C_F, 15)
    a(f"""L_noinc:
    s_add_u32 s55, s55, {14*1024}
    s_add_u32 s57, s57, {64*896}
    s_cmp_lt_u32 s55, {98*1024}
    s_cbranch_scc1 L_wo""")
    a("s_waitcnt vmcnt(0)")
    lds_inc(a, 14, C_W, 15)
    st(a, 8)
    a.label("L_ofetch")
    a(f"""s_lshl2_add_u32 s28, s58, s{L}
    s_lshl_b32 s29, s28, 13
    s_add_u32 s29, s29, {WS_O}
    s_add_u32 s27, s29, 4096
    s_lshl_b32 s28, s28, 7
    s_add_u32 s28, s28, {WS_OFL}
    s_mul_i32 s26, s{L}, 12288
    s_add_u32 s26, s26, {CB}
    v_add_u32 v7, s26, v1
    s_lshl_b32 s26, s{L}, 2
    v_add_u32 v6, s26, v14
    s_lshl_b32 s26, 1, s{L}
    v_mov_b32 v5, s26""")
    spin_lds(a, 6, C_P, 1, 8, sleep=4)
    poll_pipe(a, 28, 220, "s28", 15, D=PD, gap=PG)
    a("L_of:\nv_mov_b32 v4, 0")
    for k in range(8):
        a(f"buffer_load_dwordx4 {vr(40+4*k,4)}, v1, s[8:11], {'s29' if k < 4 else 's27'} offen offset:{(k&3)*1024} sc1")
    a("s_sub_u32 s60, s60, 1\ns_cbranch_scc1 L_exit")
    for k in range(8):
        a(f"""s_waitcnt vmcnt({7-k})
        ds_write_b128 v7, {vr(40+4*k,4)} offset:{k*1024}
        v_max3_u32 v4, v4, v{40+4*k}, v{41+4*k}
        v_max3_u32 v4, v4, v{42+4*k}, v{43+4*k}""")
    a("v_cmp_eq_u32 vcc, -1, v4\ns_cbranch_vccnz L_of")
    lds_inc(a, 14, C_O, 5)
    a("s_waitcnt vmcnt(0) lgkmcnt(0)")
    st_end(a)
    a("L_exit:\nL_code_end:\ns_endpgm")

def main(out):
    hdr = open("cdna_kernels/" + NAME + ".s.ref").read().split("; Override")[0]
    rep = []
    a = Asm()
    prologue_and_loader(a); main_wave(a); service_wave(a)
    t = hdr
    t += f"; @launch grid=(256,1,1) block=(512,1,1) lds={LDS_BYTES}\n"
    t += '.amdgcn_target "amdgcn-amd-amdhsa--gfx950"\n'
    t += kernel_text(NAME + "_kernel", a.l, 256, report=rep)
    open(out, "w").write(t)
    if "-v" in sys.argv: print("\n".join(rep))

if __name__ == "__main__":
    main(sys.argv[1])
```

```python
import sys, math, struct
from asmlib import *

NAME = "gated_mix__softmax_full_mha__moe_arch_mod__prompt"
STAMP = "-s" in sys.argv
EXP = set(x[2:] for x in sys.argv if x.startswith("-x"))
WS_KV = 0
BLK = 5120; TS = 14 * BLK; KVB = 64 * TS
WS_O = 0x480000
WS_R = 0x680000
WS_G = WS_R + 16384
WS_SEL = WS_R + 32768
WS_EP = WS_R + 40960
WS_FL = WS_R + 65536
WS_MB = WS_FL + 32768
WS_OFL = WS_MB + 32768
WS_YFL = WS_OFL + 32768
WS_F1 = WS_YFL + 4096
WS_YP = WS_R + (1 << 18)
WS_GP = 0x730000
WS_ST = 16 << 20
XS = 0; WT = 65536; WQ = 122880; QX = 151552; UPD = 159744
WO = 0; CB = 102400
UPDI = UPD + 3584
KEYS = UPD
RT = UPD + 1024
SELECTOR = 223
CNT = 163840 - 192
LDS_BYTES = 163840
C_Q1, C_Q2, C_X, C_L, C_S, C_D, C_C, C_O, C_W, C_F, C_K, C_T, C_P, C_R = 0, 4, 8, 12, 16, 20, 24, 28, 32, 36, 40, 44, 48, 64

def f32bits(x): return struct.unpack("<I", struct.pack("<f", x))[0]
QSCALE = f32bits(28 ** -0.5 * math.log2(math.e))
NLOG2E = f32bits(-math.log2(math.e))
MF = "v_mfma_f32_32x32x16_bf16"
ROLE = [0, 1, 2, 3, 14, 4, 5, 6, 7, 8, 9, 15, 10, 11, 12, 13]
ROLE_LO = sum(ROLE[i] << (4 * i) for i in range(8))
ROLE_HI = sum(ROLE[8 + i] << (4 * i) for i in range(8))
SPIN_LIMIT = 1 << 20
NQ1 = ([int(x[2:]) for x in EXP if x.startswith("nq")] + [4])[0]
WSBASE = ([int(x[2:]) for x in sys.argv if x.startswith("-w")] + [0])[0] << 20
PD = 4 if "pd4" in EXP else 2
PG = 3 if "pd4" in EXP else 6
PCD = 4 if "pcd4" in EXP else (0 if "pcd0" in EXP else 1)
KVS = 4 if "kvs4" in EXP else (0 if "kvs0" in EXP else 2)
PQ2 = 4 if "pq4" in EXP else (0 if "pq0" in EXP else 1)
PF0 = 2 if "pf2" in EXP else 0
WOP = 1 if "wo1" in EXP else (3 if "wo3" in EXP else 2)
OUTAUX = " sc1" if "outsc1" in EXP else (" nt" if "outnt" in EXP else "")

T, H, J, W, RL, ROT = 30, 31, 32, 33, 34, 3
_uid = [0]
def uid(p):
    _uid[0] += 1
    return f"{p}_{_uid[0]}"

def srd(a, d, ptr, nbytes):
    a(f"s_mov_b32 s{d}, s{ptr}\ns_mov_b32 s{d+1}, s{ptr+1}\ns_mov_b32 s{d+2}, {nbytes:#x}\ns_mov_b32 s{d+3}, 0x20000")

NST = 12
DIAG = [tuple(int(y) for y in x[2:].split("-")) for x in sys.argv if x.startswith("-d")]
def st(a, i):
    if STAMP: a(f"s_memtime s[{72+2*i}:{73+2*i}]")
    if DIAG and i in DIAG[0]: a(f"s_memrealtime s[{72+2*i}:{73+2*i}]\ns_waitcnt lgkmcnt(0)")
def st_begin(a):
    if STAMP: a("s_memrealtime s[68:69]\ns_memtime s[72:73]")
    if DIAG: a("s_memrealtime s[72:73]")
ABS = [x[2:] for x in sys.argv if x.startswith("-a")]
REL = [tuple(int(y) for y in x[2:].split("-")) for x in sys.argv if x.startswith("-r")]
if ABS:
    DIAG = [(0, 0 if ABS[0] == "z" else int(ABS[0].lstrip("m")))]
if REL:
    ABS = ["r"]; DIAG = REL
def diag_start(a):
    if not ABS: return
    a(f"""s_load_dwordx2 s[98:99], s[0:1], 80
    s_waitcnt lgkmcnt(0)
    s_cmp_ge_u32 s2, 8
    s_cbranch_scc1 L_dg0
    s_cmp_lg_u32 s{W}, 0
    s_cbranch_scc1 L_dg0
    s_lshl_b32 s70, s2, 2
    v_mov_b32 v4, s70
    v_mov_b32 v6, s72
    global_store_dword v4, v6, s[98:99] sc1
    L_dg0:""")
def diag_end(a):
    if not DIAG: return
    p, q = DIAG[0]
    if ABS:
        a(f"""s_waitcnt vmcnt(0)
        s_memrealtime s[96:97]
        s_mov_b64 exec, -1
        v_mov_b32 v4, 0
        global_load_dwordx4 v[8:11], v4, s[98:99] sc1
        global_load_dwordx4 v[12:15], v4, s[98:99] offset:16 sc1
        s_waitcnt vmcnt(0) lgkmcnt(0)
        v_min3_u32 v8, v8, v9, v10
        v_min3_u32 v8, v8, v11, v12
        v_min3_u32 v8, v8, v13, v14
        v_min_u32 v8, v8, v15
        s_nop 1
        v_readfirstlane_b32 s69, v8
        s_sub_u32 s70, s{72+2*q}, s69""")
        if ABS[0] == "z": a("s_mov_b32 s70, 0")
        if REL: a(f"s_sub_u32 s70, s{72+2*q}, s{72+2*p}\ns_lshl_b32 s70, s70, 2")
        if ABS[0].startswith("m"): a("s_sub_u32 s70, 2500, s70")
        a("s_add_u32 s70, s70, s69\ns_add_u32 s70, s70, 2500")
    else:
        a(f"""s_waitcnt vmcnt(0)
        s_memrealtime s[96:97]
        s_waitcnt lgkmcnt(0)
        s_sub_u32 s70, s{72+2*q}, s{72+2*p}
        s_add_u32 s70, s70, s96""")
    a(f"""L_diag:
    s_memrealtime s[68:69]
    s_waitcnt lgkmcnt(0)
    s_sub_u32 s71, s68, s70
    s_cmp_lt_i32 s71, 0
    s_cbranch_scc1 L_diag""")
def st_init(a):
    if STAMP:
        for i in range(1, NST): a(f"s_mov_b32 s{72+2*i}, s72")
def st_end(a):
    if not STAMP: return
    a(f"""s_waitcnt vmcnt(0)
    s_memrealtime s[70:71]
    s_memtime s[{72+2*NST}:{73+2*NST}]
    s_getreg_b32 s66, hwreg(HW_REG_HW_ID)
    s_getreg_b32 s67, hwreg(HW_REG_XCC_ID)
    s_mov_b64 exec, -1
    s_lshl_b32 s65, s2, 3
    s_add_u32 s65, s65, s{W}
    s_lshl_b32 s65, s65, 6
    s_add_u32 s65, s65, {WS_ST}
    s_waitcnt lgkmcnt(0)
    v_mov_b32 v4, s68
    v_mov_b32 v5, s70
    v_mov_b32 v6, s66
    v_mov_b32 v7, s67""")
    for i in range(1, NST + 1):
        a(f"s_sub_u32 s64, s{72+2*i}, s72\nv_mov_b32 v{7+i}, s64")
    a("v_mov_b32 v2, 0\ns_mov_b64 exec, 1")
    for k in range(4):
        a(f"buffer_store_dwordx4 v[{4+4*k}:{7+4*k}], v2, s[8:11], s65 offen offset:{16*k}")

def poll_global(a, vdst, voff, soff, mask=None, sleep=1):
    l = uid("Lpoll"); d = uid("Lpd")
    a(f"s_mov_b32 s60, {SPIN_LIMIT}")
    if mask is not None: a(f"s_mov_b64 exec, {mask}")
    a(f"""{l}:
    buffer_load_dword v{vdst}, v{voff}, s[8:11], {soff} offen sc1
    s_waitcnt vmcnt(0)
    v_cmp_ne_u32 vcc, s{T}, v{vdst}
    s_cbranch_vccz {d}
    s_mov_b64 exec, vcc
    s_sleep {sleep}
    s_sub_u32 s60, s60, 1
    s_cbranch_scc0 {l}
    s_endpgm
    {d}:
    s_mov_b64 exec, -1""")

def poll_atomic(a, vdst, voff, soff, mask, sleep):
    l = uid("Lpa"); d = uid("Lpad")
    a(f"""s_mov_b32 s60, {SPIN_LIMIT}
    s_mov_b64 exec, {mask}
    {l}:
    v_mov_b32 v{vdst}, 0
    buffer_atomic_or v{vdst}, v{voff}, s[8:11], {soff} offen sc0 sc1
    s_waitcnt vmcnt(0)
    v_cmp_ne_u32 vcc, s{T}, v{vdst}
    s_cbranch_vccz {d}
    s_sleep {sleep}
    s_sub_u32 s60, s60, 1
    s_cbranch_scc0 {l}
    s_endpgm
    {d}:
    s_mov_b64 exec, -1""")

def poll_pipe(a, v0, voff, soff, mask, D=4, gap=3):
    l = uid("Lpp"); d = uid("Lppd")
    at = lambda r: f"v_mov_b32 v{r}, 0\nbuffer_atomic_or v{r}, v{voff}, s[8:11], {soff} offen sc0 sc1"
    a(f"s_mov_b32 s60, {SPIN_LIMIT}\ns_mov_b64 exec, {mask}")
    for i in range(D - 1): a(at(v0 + i) + f"\ns_sleep {gap}")
    a(f"{l}:")
    for i in range(D):
        a(at(v0 + (i + D - 1) % D))
        a(f"s_waitcnt vmcnt({D-1})\nv_cmp_ne_u32 vcc, s{T}, v{v0+i}\ns_cbranch_vccz {d}")
    a(f"""s_sub_u32 s60, s60, 1
    s_cbranch_scc0 {l}
    s_endpgm
    {d}:
    s_mov_b64 exec, -1""")

def signal(a, vt, voff, soff, mask):
    a(f"v_mov_b32 v{vt}, s{T}\ns_mov_b64 exec, {mask}\nbuffer_atomic_swap v{vt}, v{voff}, s[8:11], {soff} offen sc1\ns_mov_b64 exec, -1")

def spin_lds(a, vaddr, off, want, vt, sleep=0):
    l = uid("Lsp"); d = uid("Lsd")
    a(f"""s_mov_b32 s60, {SPIN_LIMIT}
    {l}:
    ds_read_b32 v{vt}, v{vaddr} offset:{off}
    s_waitcnt lgkmcnt(0)
    v_readfirstlane_b32 s61, v{vt}
    s_cmp_ge_u32 s61, {want}
    s_cbranch_scc1 {d}""")
    if sleep: a(f"s_sleep {sleep}")
    a(f"""s_sub_u32 s60, s60, 1
    s_cbranch_scc0 {l}
    s_endpgm
    {d}:""")

def lds_inc(a, vaddr, off, vone):
    a(f"s_mov_b64 exec, 1\nds_add_u32 v{vaddr}, v{vone} offset:{off}\ns_mov_b64 exec, -1")

def flag_store(a, vt, vz, soff):
    a(f"v_mov_b32 v{vt}, s{T}\ns_mov_b64 exec, 1\nbuffer_store_dword v{vt}, v{vz}, s[8:11], {soff} offen sc1\ns_mov_b64 exec, -1")

def split_neg_max(a, m, t0, t1, q6, q7):
    a(f"""v_sub_f32 v{m}, 0, v{m}
    v_cvt_pk_bf16_f32 v{t0}, v{m}, v{m}
    v_lshlrev_b32 v{t0}, 16, v{t0}
    v_sub_f32 v{t0}, v{m}, v{t0}
    v_cvt_pk_bf16_f32 v{t1}, v{m}, v{t0}
    v_and_b32 v{m}, 0xffff0000, v{t1}
    v_sub_f32 v{t0}, v{t0}, v{m}
    s_mov_b32 exec_lo, 0
    v_mov_b32 v{q6}, v{t1}
    v_cvt_pk_bf16_f32 v{q7}, v{t0}, 0
    s_mov_b32 exec_lo, -1""")

def max16_list(dst, S, init=False):
    if not init:
        return ([f"v_max3_f32 v{dst}, v{S}, v{S+1}, v{S+2}"] +
                [f"v_max3_f32 v{dst}, v{dst}, v{S+i}, v{S+i+1}" for i in range(3, 15, 2)] +
                [f"v_max_f32 v{dst}, v{dst}, v{S+15}"])
    return [f"v_max3_f32 v{dst}, v{dst}, v{S+i}, v{S+i+1}" for i in range(0, 16, 2)]

def wave_min_u32(a, v, full=True):
    for r in (1, 2, 4, 8):
        a(f"v_min_u32_dpp v{v}, v{v}, v{v} row_ror:{r} row_mask:0xf bank_mask:0xf")
    a(f"v_min_u32_dpp v{v}, v{v}, v{v} row_bcast:15 row_mask:0xa bank_mask:0xf")
    if full: a(f"v_min_u32_dpp v{v}, v{v}, v{v} row_bcast:31 row_mask:0xc bank_mask:0xf")

def tag(a):
    a(f"s_mul_i32 s{T}, s{T}, 0x9e3779b1\ns_add_u32 s{T}, s{T}, 0x7f4a7c15")

def next_chunk(a, s):
    a(f"s_add_u32 s{s}, s{s}, 1\ns_cmp_eq_u32 s{s}, 7\ns_cselect_b32 s{s}, 0, s{s}")

Q, O, KV, S, P = 8, 40, 104, 168, 200
XF = 104; A0, A1, WF = 40, 56, 72
VX = 216; VW = 220; VQ = 222; VC = 223; V1 = 224; VZ = 225; VT = 226; VH = 227
VA = 228; TMP = 232; XR = 240; GR = 248; VWQ = 250; VF = 251; VFS = 252; VXO = 253; VGO = 254
OWN = 3
L = 35

def prologue_and_loader(a):
    MAPCODE = ""
    if "map2" in EXP:
        MAPCODE = f"s_and_b32 s26, s25, 1\ns_lshl1_add_u32 s{H}, s24, s26\ns_lshr_b32 s{J}, s25, 1\ns_lshl1_add_u32 s{ROT}, s26, s{J}\ns_add_u32 s{ROT}, s{ROT}, s24\ns_and_b32 s{ROT}, s{ROT}, 3\ns_lshl_b32 s{ROT}, s{ROT}, 1"
        if "norot" in EXP: MAPCODE += f"\ns_mov_b32 s{ROT}, 0"
    TADDR = "v_lshl_add_u32 v8, v3, 7, s58"
    if "t64" in EXP: TADDR = "v_and_b32 v8, 60, v3\nv_lshl_add_u32 v8, v8, 4, s58\nv_add_u32 v8, v8, v1"
    if "rot7" in EXP:
        ROTCODE = f"s_lshl1_add_u32 s{ROT}, s27, s26\ns_cmp_ge_u32 s{ROT}, 7\ns_cselect_b32 s26, 7, 0\ns_sub_u32 s{ROT}, s{ROT}, s26"
    elif "rot2" not in EXP and "norot" not in EXP and "rot23" not in EXP:
        ROTCODE = f"s_add_u32 s{ROT}, s27, s26\ns_and_b32 s{ROT}, s{ROT}, 3\ns_lshl_b32 s{ROT}, s{ROT}, 1"
    elif "norot" in EXP:
        ROTCODE = f"s_mov_b32 s{ROT}, 0"
    elif "rot23" in EXP:
        ROTCODE = f"s_add_u32 s{ROT}, s27, s26\ns_and_b32 s{ROT}, s{ROT}, 1\ns_mul_i32 s{ROT}, s{ROT}, 3"
    else:
        ROTCODE = f"s_add_u32 s{ROT}, s27, s26\ns_and_b32 s{ROT}, s{ROT}, 1\ns_lshl_b32 s{ROT}, s{ROT}, 2"
    st_begin(a)
    a(f"""s_load_dwordx4 s[4:7], s[0:1], 0
    s_load_dwordx2 s[36:37], s[0:1], 88
    s_load_dwordx2 s[38:39], s[0:1], 16
    s_load_dwordx8 s[40:47], s[0:1], 32
    s_load_dwordx4 s[48:51], s[0:1], 64
    s_cmp_ge_u32 s2, 256
    s_cbranch_scc1 L_exit
    v_lshrrev_b32 v2, 6, v0
    v_and_b32 v3, 63, v0
    s_and_b32 s24, s2, 7
    s_lshr_b32 s25, s2, 3
    v_readfirstlane_b32 s{W}, v2
    s_and_b32 s{H}, s24, 1
    s_lshl_b32 s{H}, s{H}, 3
    s_and_b32 s26, s25, 7
    s_add_u32 s{H}, s{H}, s26
    s_lshr_b32 s27, s25, 3
    s_and_b32 s{J}, s24, 6
    s_lshl1_add_u32 s{J}, s{J}, s27
    {ROTCODE}
    {MAPCODE}
    s_mov_b32 s28, {ROLE_LO:#x}
    s_mov_b32 s29, {ROLE_HI:#x}
    s_lshl_b32 s27, s{H}, 2
    s_lshr_b64 s[28:29], s[28:29], s27
    s_and_b32 s{RL}, s28, 15
    v_lshlrev_b32 v1, 4, v3
    s_mov_b32 s27, {WS_EP}
    s_cmp_lt_u32 s{W}, 4
    s_cbranch_scc1 L_main
    """)
    a(f"""s_setprio 2
    s_sub_u32 s{L}, s{W}, 4
    v_lshrrev_b32 v4, 3, v3
    v_mul_u32_u24 v5, 896, v4
    v_and_b32 v6, 7, v3
    v_lshrrev_b32 v7, 4, v3
    v_xor_b32 v7, v6, v7
    v_lshl_add_u32 v10, v7, 4, v5
    v_xor_b32 v11, 64, v10
    v_add_u32 v12, {2*6144}, v10
    v_add_u32 v13, {3*6144}, v11
    v_add_u32 v11, 6144, v11
    v_mul_u32_u24 v5, 2688, v4
    v_and_b32 v4, 2, v4
    v_lshlrev_b32 v4, 1, v4
    v_xor_b32 v4, v4, v6
    v_lshl_add_u32 v14, v4, 4, v5
    v_add_u32 v15, {8*2688-1024}, v14
    s_lshl2_add_u32 s52, s{J}, s{L}
    s_mul_i32 s58, s52, 14
    s_add_u32 s58, s58, s{RL}
    s_mul_i32 s58, s58, {BLK}
    {TADDR}
    s_mul_i32 s52, s52, {32*896}
    s_lshl_b32 s53, s{RL}, 7
    s_mul_i32 s26, s{L}, {16*2688}
    s_add_u32 s53, s53, s26
    s_add_u32 s53, s53, 896
    s_lshl_b32 s54, s{L}, 12
    s_lshl_b32 s55, s{L}, 11
    s_add_u32 s55, s55, {WT}
    s_mov_b32 s56, s{ROT}
    s_mov_b32 s57, 0
    s_mov_b32 s14, {2048*896}
    s_mov_b32 s15, 0x20000
    s_cmp_ge_u32 s{RL}, 14
    s_cselect_b32 s18, 0, {448*2688}
    s_mov_b32 s19, 0x20000
    s_waitcnt lgkmcnt(0)
    s_mov_b64 s[12:13], s[4:5]
    s_mov_b64 s[16:17], s[6:7]
    s_load_dword s{T}, s[36:37], s27""")
    st_init(a); st(a, 1)
    if "t64" in EXP:
        if "t64" in EXP:
            a(f"""s_cbranch_scc1 L_ld
            global_store_dwordx4 v8, v[10:13], s[36:37] sc1
            global_store_dwordx4 v8, v[10:13], s[36:37] offset:2048 sc1""")
        else: a(f"""s_cbranch_scc1 L_ld
        s_cmp_ge_u32 s{RL}, 7
        s_cselect_b32 exec_hi, 1, 0xff
        global_store_dword v8, v8, s[36:37] sc1
        s_mov_b32 exec_hi, -1""")
    a(f"""L_ld:
    s_mul_i32 s26, s56, {64*2688}
    s_mov_b32 m0, s55
    s_add_u32 s26, s26, s53
    s_lshl_b32 s28, s56, 7
    buffer_load_dwordx4 v14, s[16:19], s26 offen lds
    buffer_load_dwordx4 v15, s[16:19], s26 offen offset:1024 lds
    s_mov_b32 m0, s54
    s_add_u32 s28, s28, s52
    buffer_load_dwordx4 v10, s[12:15], s28 offen lds
    buffer_load_dwordx4 v11, s[12:15], s28 offen offset:1024 lds
    buffer_load_dwordx4 v12, s[12:15], s28 offen offset:2048 lds
    buffer_load_dwordx4 v13, s[12:15], s28 offen offset:3072 lds
    s_add_u32 s55, s55, 8192
    s_add_u32 s54, s54, 16384
    s_and_b32 s54, s54, 0xffff""")
    next_chunk(a, 56)
    if "tlb" in EXP:
        a(f"s_or_b32 s26, s57, s{L}\ns_cbranch_scc0 L_tlb\nL_tlb_done:")
    a(f"""s_add_u32 s57, s57, 1
    s_cmp_lt_u32 s57, 3
    s_cbranch_scc1 L_ld
    s_waitcnt vmcnt(12)
    s_barrier
    s_cmp_lt_u32 s57, 7
    s_cbranch_scc1 L_ld
    """)
    a(f"""v_lshrrev_b32 v4, 2, v3
    v_mul_u32_u24 v4, 2688, v4
    v_and_b32 v5, 3, v3
    v_lshl_add_u32 v16, v5, 4, v4
    s_mov_b32 s18, {448*2688}
    s_mul_i32 s53, s{H}, 56
    s_and_b32 s53, s53, 0xfffffff0
    s_mul_i32 s26, s{L}, {16*2688}
    s_add_u32 s53, s53, s26
    s_lshl_b32 s55, s{L}, 10
    s_add_u32 s55, s55, {WQ}""")
    for i in range(NQ1):
        a(f"""s_mul_i32 s26, s56, {64*2688}
        s_add_u32 m0, s55, {i*4096}
        s_add_u32 s26, s26, s53
        buffer_load_dwordx4 v16, s[16:19], s26 offen lds""")
        if i < NQ1 - 1: next_chunk(a, 56)
        if i == 1: a("s_waitcnt vmcnt(8)\ns_barrier")
        if i == 3: a("s_waitcnt vmcnt(4)\ns_barrier")
    st(a, 2)
    a("s_branch L_service")
    if "tlb" in EXP:
        a("L_tlb:")
        if "tlbR" in EXP: a(f"s_cmp_lt_u32 s{RL}, 14\ns_cbranch_scc1 L_tlb_done")
        for off in (0, 2 << 20, 4 << 20):
            a(f"s_mov_b32 s26, {off + 4032}\ns_load_dword s66, s[36:37], s26")
        for p in (42, 44, 38, 46, 50):
            a(f"s_load_dword s66, s[{p}:{p+1}], 0")
        a("s_branch L_tlb_done")

def main_wave(a):
    a.label("L_main")
    diag_start(a)
    if "nocodepf" not in EXP:
        a(f"""s_cmp_lg_u32 s{W}, 0
        s_cbranch_scc1 L_nopf
        s_getpc_b64 s[28:29]
        L_pc:
        s_and_b32 s26, s25, 3
        s_lshl_b32 s26, s26, 13
        v_lshl_add_u32 v4, v3, 7, s26
        v_min_u32 v4, L_code_end-L_pc, v4
        global_load_dword v5, v4, s[28:29]
        L_nopf:""")
    a(f"""s_setprio 1
    v_and_b32 v{VT}, 31, v3
    v_lshrrev_b32 v{VH}, 5, v3
    v_mov_b32 v{V1}, 1
    v_mov_b32 v{VZ}, 0
    v_mov_b32 v{VC}, {CNT}
    v_lshrrev_b32 v4, 2, v1
    v_add_u32 v4, {UPDI}, v4
    v_mov_b32 v6, -1
    s_mov_b32 exec_hi, 0
    ds_write_b32 v4, v6
    v_and_b32 v6, 7, v3
    v_cmp_eq_u32 vcc, 4, v6
    v_mov_b32 v7, {KVB+1}
    v_cndmask_b32 v6, 0, v7, vcc
    ds_write_b32 v4, v6 offset:{CNT-UPDI+C_R}
    s_mov_b32 exec_lo, 0xffff
    ds_write_b32 v4, v{VZ} offset:{CNT-UPDI}
    s_mov_b64 exec, -1
    v_lshrrev_b32 v4, 1, v{VT}
    v_and_b32 v4, 7, v4
    v_xor_b32 v4, v4, v{VH}
    v_lshlrev_b32 v4, 4, v4
    v_lshl_add_u32 v4, v{VT}, 7, v4
    s_lshl_b32 s26, s{W}, 12
    v_add_u32 v{VX}, s26, v4
    v_xor_b32 v{VX+1}, 32, v{VX}
    v_xor_b32 v{VX+2}, 64, v{VX}
    v_xor_b32 v{VX+3}, 96, v{VX}
    v_bfe_u32 v4, v3, 2, 2
    v_lshl_add_u32 v12, v{VH}, 3, v4
    v_and_b32 v6, 3, v3
    v_and_b32 v7, 1, v3
    v_bfe_u32 v8, v3, 1, 1
    v_lshl_add_u32 v7, v7, 1, v8
    v_bfe_u32 v8, v3, 4, 1
    v_lshl_add_u32 v9, v8, 2, v7
    v_lshl_add_u32 v10, v8, 2, v6
    s_cmp_lt_u32 s{RL}, 7
    s_cselect_b64 vcc, -1, 0
    v_cndmask_b32 v10, v10, v9, vcc
    v_lshlrev_b32 v11, 7, v12
    v_lshl_add_u32 v11, v10, 3, v11
    v_lshrrev_b32 v4, 1, v4
    v_lshl_add_u32 v11, v4, 6, v11
    v_add_u32 v{VW}, {WT}, v11
    v_xor_b32 v{VW+1}, 64, v{VW}
    v_add_u32 v10, 2, v9
    v_sub_u32 v11, 7, v9
    v_cmp_gt_u32 vcc, 6, v9
    v_cndmask_b32 v10, v11, v10, vcc
    s_bitcmp1_b32 s{H}, 0
    s_cselect_b64 vcc, -1, 0
    v_cndmask_b32 v10, v9, v10, vcc
    v_lshlrev_b32 v11, 6, v12
    v_lshl_add_u32 v11, v10, 3, v11
    v_add_u32 v{VQ}, {WQ}, v11
    v_lshrrev_b32 v4, 2, v3
    v_mul_u32_u24 v4, 2688, v4
    v_lshl_add_u32 v{VWQ}, v6, 4, v4
    s_cmp_ge_u32 s{RL}, 7
    s_cselect_b32 s26, 7, 0
    s_cselect_b32 s29, 2, 0
    s_sub_u32 s26, s{RL}, s26
    s_mul_i32 s28, s26, {64*2341}
    s_lshr_b32 s28, s28, 16
    v_add_u32 v4, s28, v6
    v_mul_u32_u24 v7, 28, v4
    v_lshrrev_b32 v7, 6, v7
    v_cmp_ge_u32 s[64:65], s26, v7
    v_cmp_ne_u32 vcc, s26, v7
    s_and_b32 s28, s{J}, 12
    s_add_u32 s29, s28, s29
    v_mov_b32 v7, s29
    v_addc_co_u32 v7, vcc, 0, v7, vcc
    s_and_b32 s28, s{J}, 3
    v_lshl_add_u32 v4, v4, 2, s28
    v_bfe_u32 v8, v3, 2, 2
    v_lshl_add_u32 v4, v4, 2, v8
    v_lshlrev_b32 v4, 7, v4
    v_lshl_add_u32 v{VFS}, v7, 2, v4
    s_and_b32 s64, s64, 0xffff
    s_cmp_ge_u32 s{RL}, 14
    s_cselect_b32 s64, 0, s64
    s_mov_b32 s65, 0
    s_lshl_b32 s28, s{W}, 5
    v_add_u32 v{VF}, s28, v{VC}
    s_lshl_b32 s28, s{J}, 2
    s_lshr_b32 s58, s{H}, 2
    s_add_u32 s58, s58, s28
    s_and_b32 s59, s{H}, 3
    s_lshl2_add_u32 s59, s59, s{W}
    s_mul_i32 s59, s59, 56
    s_lshl_b32 s28, s58, 5
    v_add_u32 v4, s28, v{VT}
    v_mul_u32_u24 v{VXO}, 896, v4
    v_lshl_add_u32 v{VXO}, v{VH}, 4, v{VXO}
    v_lshlrev_b32 v{VGO}, 3, v4
    s_waitcnt lgkmcnt(0)
    """)
    st_init(a)
    srd(a, 8, 36, (1 << 28) - WSBASE)
    srd(a, 16, 6, 448 * 2688)
    srd(a, 12, 4, 2048 * 896)
    if "wqpf" in EXP:
        a(f"""s_cmp_lg_u32 s{W}, 1
        s_cbranch_scc1 L_nopf2
        v_lshrrev_b32 v4, 2, v3
        v_min_u32 v4, 13, v4
        v_mul_u32_u24 v4, 2688, v4
        v_and_b32 v6, 3, v3
        v_lshl_add_u32 v4, v6, 7, v4
        s_mul_i32 s26, s25, {14*2688}
        s_and_b32 s28, s24, 1
        s_mul_i32 s28, s28, 384
        s_add_u32 s26, s26, s28
        buffer_load_dword v5, v4, s[16:19], s26 offen
        L_nopf2:""")
    if "wopfS" in EXP:
        srd(a, 20, 38, 448 * 896)
        a(f"""s_cmp_lg_u32 s{W}, 2
        s_cbranch_scc1 L_nopf3
        s_mul_i32 s26, s2, {13*128}
        v_lshl_add_u32 v4, v3, 7, s26
        s_mov_b64 exec, 0x1fff
        buffer_load_dword v5, v4, s[20:23], 0 offen
        s_mov_b64 exec, -1
        L_nopf3:""")
    a(f"""s_mul_i32 s62, s{H}, 56
    s_and_b32 s62, s62, 0xfffffff0
    s_mul_i32 s26, s{W}, {16*2688}
    s_add_u32 s62, s62, s26
    s_lshl_b32 s63, s{W}, 10
    s_add_u32 s63, s63, {WQ}
    s_lshl2_add_u32 s35, s{J}, s{W}
    s_mul_i32 s52, s35, 14
    s_add_u32 s52, s52, s{RL}
    s_mul_i32 s52, s52, {BLK}
    s_add_u32 s53, s52, 4096
    s_lshr_b32 s26, s{H}, 1
    s_mul_i32 s26, s26, 7
    s_and_b32 s28, s{H}, 1
    s_lshl2_add_u32 s29, s28, s26
    v_add_u32 v4, s29, v{VH}
    v_lshrrev_b32 v6, 3, v4
    v_mul_u32_u24 v6, {BLK-4096}, v6
    v_lshl_add_u32 v6, v4, 9, v6
    v_lshl_add_u32 v{VA}, v{VT}, 4, v6
    v_add_u32 v4, 2, v4
    v_lshrrev_b32 v6, 3, v4
    v_mul_u32_u24 v6, {BLK-4096}, v6
    v_lshl_add_u32 v6, v4, 9, v6
    s_add_u32 s26, s26, 3
    s_lshr_b32 s29, s26, 3
    s_mul_i32 s29, s29, {BLK}
    s_and_b32 s26, s26, 1
    s_lshl_b32 s26, s26, 9
    s_add_u32 s29, s29, s26
    s_add_u32 s29, s29, 4096
    v_mov_b32 v7, s29
    v_and_b32 v4, s28, v{VH}
    v_cmp_eq_u32 vcc, 1, v4
    v_cndmask_b32 v6, v6, v7, vcc
    v_lshl_add_u32 v{VA+1}, v{VT}, 4, v6
    s_mul_i32 s26, s{H}, 28
    v_add_u32 v4, s26, v{VT}
    v_lshrrev_b32 v6, 6, v4
    v_mul_u32_u24 v6, {BLK}, v6
    v_bfe_u32 v7, v4, 5, 1
    v_lshl_add_u32 v6, v7, 11, v6
    v_and_b32 v4, 31, v4
    v_lshl_add_u32 v6, v4, 4, v6
    v_lshl_add_u32 v6, v{VH}, 9, v6
    v_add_u32 v6, {7*BLK}, v6
    v_add_u32 v8, 1024, v6
    s_lshr_b32 s26, s26, 6
    s_mul_i32 s26, s26, {BLK}
    s_add_u32 s26, s26, {7*BLK + 4096 - 28*16}
    v_lshl_add_u32 v7, v{VT}, 4, s26
    v_cmp_le_u32 vcc, 28, v{VT}
    v_cndmask_b32 v{VA+2}, v6, v7, vcc
    v_cndmask_b32 v{VA+3}, v8, v7, vcc
    s_cmp_ge_u32 s{RL}, 14
    s_cbranch_scc1 L_roleR
    s_cmp_ge_u32 s{RL}, 7
    s_cbranch_scc1 L_roleV""")

    def gemm(kind):
        if "twait" in EXP:
            st(a, 10); a("s_waitcnt vmcnt(0)"); st(a, 11)
        def reads(c, s):
            k = 4 * c + s
            a(f"ds_read_b128 {vr(XF+4*k,4)}, v{VX+s} offset:{(c&3)*16384}")
            f = WF + 8 * s
            if kind == "R":
                a(f"ds_read_b128 {vr(f,4)}, v{VW} offset:{k*32}")
            else:
                for n in range(2):
                    a(f"ds_read_b64_tr_b16 {vr(f+4*n,2)}, v{VW+n} offset:{k*2048}")
                    a(f"ds_read_b64_tr_b16 {vr(f+4*n+2,2)}, v{VW+n} offset:{k*2048+512}")
        def mfmas(c, s):
            k = 4 * c + s
            f = WF + 8 * s
            for n in range(1 if kind == "R" else 2):
                acc = (A0, A1)[n]
                cc = "0" if k == 0 else vr(acc, 16)
                if kind == "V": a(f"{MF} {vr(acc,16)}, {vr(XF+4*k,4)}, {vr(f+4*n,4)}, {cc}")
                else:           a(f"{MF} {vr(acc,16)}, {vr(f+4*n,4)}, {vr(XF+4*k,4)}, {cc}")
        per = 2 if kind == "R" else 5
        for c in range(7):
            a("s_barrier")
            if c == 0: st(a, 1)
            if c == 6: st(a, 2)
            if STAMP and c in (0, 6): a("s_waitcnt lgkmcnt(0)")
            reads(c, 0); reads(c, 1)
            for s in range(4):
                if s < 2: reads(c, s + 2)
                a(f"s_waitcnt lgkmcnt({min(3 - s, 2) * per})")
                mfmas(c, s)

    PK = 8
    MS = 20
    a(f"""v_add_u32 v4, s{RL}, v{VH}""")
    for i in range(4):
        a(f"""v_cmp_eq_u32 vcc, {3-2*i}, v4
        v_cmp_eq_u32 s[{MS+2*i}:{MS+1+2*i}], {10-2*i}, v4
        s_or_b64 s[{MS+2*i}:{MS+1+2*i}], s[{MS+2*i}:{MS+1+2*i}], vcc""")
    a(f"v_mov_b32 v{TMP+2}, 0x3f803f80\nv_mov_b32 v{TMP+3}, 0x3f803f80")
    gemm("K")
    for i in range(4):
        acc = (A0, A1)[i >> 1] + 8 * (i & 1)
        p = PK + 4 * i
        for e in range(4): a(f"v_cvt_pk_bf16_f32 v{p+e}, v{acc+2*e}, v{acc+2*e+1}")
        l = uid("Lnosh")
        a(f"""s_mov_b64 exec, s[{MS+2*i}:{MS+1+2*i}]
        s_cbranch_execz {l}
        v_mov_b32 v{TMP}, v{p+2}
        v_mov_b32 v{TMP+1}, v{p+3}
        v_mov_b32 v{p+2}, 0x3f803f80
        v_mov_b32 v{p+3}, 0x3f803f80
        buffer_store_dwordx4 {vr(TMP,4)}, v1, s[8:11], s53 offen sc1
        s_nop 1
        {l}:
        s_mov_b64 exec, -1
        buffer_store_dwordx4 {vr(p,4)}, v1, s[8:11], s52 offen offset:{1024*i} sc1""")
    a("s_branch L_pub")
    a.label("L_roleR")
    if "pfx" in EXP:
        C0 = 1 if "pf1" in EXP else 2
        a(f"""v_mul_u32_u24 v4, 896, v{VT}
        v_lshl_add_u32 v4, v{VH}, 7, v4
        s_mul_i32 s26, s35, {32*896}
        v_lshrrev_b32 v6, 3, v{VT}
        v_mul_u32_u24 v6, 2688, v6
        v_and_b32 v7, 7, v3
        v_min_u32 v7, 6, v7
        v_lshl_add_u32 v6, v7, 7, v6
        v_mul_u32_u24 v7, {64*2688}, v{VH}
        v_add_u32 v6, v6, v7
        s_and_b32 s28, s35, 15
        s_mul_i32 s28, s28, {4*2688}
        s_and_b32 s29, s24, 1
        s_mul_i32 s29, s29, 896
        s_add_u32 s28, s28, s29
        s_add_u32 s28, s28, {896 + C0*64*2688}""")
        for c in range(C0, 7, 2):
            if c == 6: a("s_mov_b32 exec_hi, 0")
            a(f"""buffer_load_dword v5, v4, s[12:15], s26 offen offset:{128*c}
            buffer_load_dword v5, v6, s[16:19], s28 offen
            s_add_u32 s28, s28, {128*2688}""")
        a("s_mov_b64 exec, -1")
    srd(a, 20, 40, 896)
    a(f"""s_lshl_b32 s28, s{ROT}, 7
    v_add_u32 v4, s28, v1
    v_subrev_u32 v6, 896, v4
    v_min_u32 v4, v4, v6
    s_mov_b32 m0, {RT}
    s_nop 0
    buffer_load_dwordx4 v4, s[20:23], 0 offen lds
    s_mov_b32 s20, s48
    s_mov_b32 s21, s49
    s_mov_b32 m0, {RT+1024}
    s_nop 0
    buffer_load_dwordx4 v4, s[20:23], 0 offen lds
    v_and_b32 v4, 1, v3
    v_lshlrev_b32 v4, 10, v4
    v_lshl_add_u32 v4, v{VH}, 4, v4
    v_add_u32 v{VW}, {RT}, v4
    s_waitcnt vmcnt(0)""")
    gemm("R")
    a(f"""s_cmp_lg_u32 s{RL}, 14
    s_cbranch_scc1 L_pub
    s_mov_b32 exec_hi, 0
    s_nop 9
    v_cvt_pk_bf16_f32 v4, v{A0}, v{A0+1}
    v_and_b32 v5, 0xffff0000, v4
    v_lshlrev_b32 v4, 16, v4
    v_ashrrev_i32 v6, 31, v4
    v_or_b32 v6, 0x80000000, v6
    v_xor_b32 v6, v6, v4
    v_and_b32 v6, 0xffff0000, v6
    v_cmp_u_f32 vcc, v4, v4
    v_cndmask_b32 v6, v6, 0, vcc
    s_lshl_b32 s26, s35, 5
    v_add_u32 v7, s26, v{VT}
    v_sub_u32 v8, 0xffff, v7
    v_or_b32 v6, v6, v8
    v_lshlrev_b32 v9, 3, v7
    v_and_b32 v7, 127, v7
    v_lshlrev_b32 v7, 2, v7
    v_add_u32 v7, {KEYS}, v7
    ds_write_b32 v7, v6
    s_mov_b32 exec_lo, 1
    ds_add_u32 v{VC}, v{V1} offset:{C_K}
    s_mov_b32 exec_lo, -1
    v_mul_f32 v5, {NLOG2E:#x}, v5
    v_exp_f32 v5, v5
    v_add_f32 v5, 1.0, v5
    v_rcp_f32 v5, v5
    v_cvt_pk_bf16_f32 v5, v5, v5
    v_lshlrev_b32 v10, 16, v5
    s_mov_b32 exec_hi, -1
    s_branch L_pub
    """)
    a.label("L_roleV")
    a(f"""v_cmp_eq_u32 vcc, 0, v3
    v_mov_b32 v7, 0x3f803f80
    v_cndmask_b32 v{TMP}, 0, v7, vcc""")
    for e in range(1, 4): a(f"v_mov_b32 v{TMP+e}, v{TMP}")
    gemm("V")
    a(f"s_mov_b64 exec, 0xff\nbuffer_store_dwordx4 {vr(TMP,4)}, v1, s[8:11], s53 offen sc1\ns_mov_b64 exec, -1")
    for i in range(4):
        acc = (A0, A1)[i >> 1] + 8 * (i & 1)
        p = PK + 4 * i
        for e in range(4): a(f"v_cvt_pk_bf16_f32 v{p+e}, v{acc+2*e}, v{acc+2*e+1}")
        a(f"buffer_store_dwordx4 {vr(p,4)}, v1, s[8:11], s52 offen offset:{1024*i} sc1")
    a.label("L_pub")
    st(a, 3)
    a(f"s_add_u32 s56, s{ROT}, {NQ1}\ns_cmp_ge_u32 s56, 7\ns_cselect_b32 s26, 7, 0\ns_sub_u32 s56, s56, s26")
    for i in range(NQ1, 7):
        a(f"""s_mul_i32 s26, s56, {64*2688}
        s_add_u32 m0, s63, {i*4096}
        s_add_u32 s26, s26, s62
        buffer_load_dwordx4 v{VWQ}, s[16:19], s26 offen lds""")
        if i < 6: next_chunk(a, 56)
    QO = Q + 8 * OWN
    SK = TMP
    a(f"""s_mov_b64 s[16:17], s[36:37]
    s_mov_b32 s18, {KVB}
    s_mov_b32 s57, 0""")
    def ldK(b, soff, base=None):
        r = KV + 16 * b if base is None else base
        return [f"buffer_load_dwordx4 {vr(r,4)}, v{VA}, s[16:19], {soff} offen sc1",
                f"buffer_load_dwordx4 {vr(r+4,4)}, v{VA+1}, s[16:19], {soff} offen sc1"]
    def ldV(b, soff):
        return [f"buffer_load_dwordx4 {vr(KV+16*b+8,4)}, v{VA+2}, s[16:19], {soff} offen sc1",
                f"buffer_load_dwordx4 {vr(KV+16*b+12,4)}, v{VA+3}, s[16:19], {soff} offen sc1"]
    def try_loads(block=False):
        d = uid("Ltl"); l = uid("Ltr")
        a(f"s_cmp_lg_u32 s57, 0\ns_cbranch_scc1 {d}")
        if block: a(f"s_mov_b32 s60, {SPIN_LIMIT}\n{l}:\ns_sub_u32 s60, s60, 1\ns_cbranch_scc1 L_exit")
        a(f"""ds_read_b32 v4, v{VF} offset:{C_R}
        ds_read_b32 v5, v{VC} offset:{C_R}
        s_waitcnt lgkmcnt(0)
        v_readfirstlane_b32 s56, v4
        v_readfirstlane_b32 s29, v5
        s_min_u32 s57, s56, s29
        s_cmp_eq_u32 s57, 0
        s_cbranch_scc1 {l if block else d}
        s_sub_u32 s29, s29, 1
        s_sub_u32 s27, s56, 1
        s_add_u32 s54, s56, {TS-1}
        s_add_u32 s55, s56, {2*TS-1}
        s_add_u32 s56, s56, {3*TS-1}""")
        st(a, 6)
        for x in ldK(0, "s29", SK) + ldK(0, "s27") + ldV(0, "s27") + ldK(1, "s54") + ldV(1, "s54"): a(x)
        a(f"{d}:")
    def qreads(k):
        f = WF + 4 * (k & 7)
        a(f"ds_read_b64_tr_b16 {vr(f,2)}, v{VQ} offset:{k*1024}\nds_read_b64_tr_b16 {vr(f+2,2)}, v{VQ} offset:{k*1024+256}")
    def publish():
        a(f"""s_mov_b32 s28, {WS_MB}
        v_readfirstlane_b32 s{T}, v11
        v_mov_b32 v6, v11
        s_mov_b64 exec, 1
        s_waitcnt vmcnt({7-NQ1})""")
        st(a, 4)
        a(f"""ds_add_rtn_u32 v4, v{VC}, v{V1} offset:{C_D}
        s_waitcnt lgkmcnt(0)
        v_cmp_eq_u32 vcc, 3, v4
        s_cbranch_vccz L_notlast
        s_mov_b64 exec, s[64:65]
        s_cbranch_execz L_notlast
        buffer_atomic_swap v6, v{VFS}, s[8:11], s28 offen sc1
        s_waitcnt vmcnt(1)
        s_branch L_published
        L_notlast:
        s_waitcnt vmcnt(0)
        s_cmp_lg_u32 s{RL}, 14
        s_cbranch_scc1 L_published
        s_mov_b32 s26, {WS_G}
        s_mov_b32 exec_lo, -1
        buffer_store_dwordx2 v[10:11], v9, s[8:11], s26 offen sc1
        L_published:""")
        a("s_mov_b64 exec, -1")
    def qgemm(lo, hi, cnt):
        spin_lds(a, VC, cnt, 4, 4)
        if not lo: a(f"ds_read_b32 v11, v{VC} offset:{C_T}")
        for k in range(lo, min(hi, lo + 6)): qreads(k)
        for k in range(lo, hi):
            if k + 6 < hi: qreads(k + 6)
            a(f"s_waitcnt lgkmcnt({2*(min(hi-1,k+6)-k)})")
            a(f"{MF} {vr(A0,16)}, {vr(WF+4*(k&7),4)}, {vr(XF+4*k,4)}, {'0' if k==0 else vr(A0,16)}")
    def qepi():
        for i in range(8): a(f"v_mov_b32 v{P+8+i}, 0")
        a(f"""s_lshl_b32 s26, s{W}, 11
        s_add_u32 s26, s26, {QX}
        v_add_u32 v5, s26, v1
        s_mov_b32 s62, {QSCALE:#x}
        s_mov_b32 s63, {QSCALE:#x}""")
        for i in range(8): a(f"v_pk_mul_f32 {vr(A0+2*i,2)}, {vr(A0+2*i,2)}, s[62:63]")
        for i in range(8): a(f"v_cvt_pk_bf16_f32 v{QO+i}, v{A0+2*i}, v{A0+2*i+1}")
        a(f"""s_mov_b32 exec_lo, 0
        v_mov_b32 v{QO+6}, 0
        v_mov_b32 v{QO+7}, 0
        s_mov_b32 exec_lo, -1
        ds_write_b128 v5, {vr(QO,4)}
        ds_write_b128 v5, {vr(QO+4,4)} offset:1024""")
        lds_inc(a, VC, C_X, V1)
        for i in range(0, 64, 2): a(f"v_pk_mul_f32 {vr(O+i,2)}, {vr(P+8,2)}, {vr(P+8,2)}")
    qgemm(0, 4 * NQ1, C_Q1)
    if NQ1 == 7 and "qfirst" in EXP:
        st(a, 5)
        qepi(); publish(); try_loads()
    elif NQ1 == 7:
        st(a, 5)
        publish(); try_loads(); qepi()
    else:
        publish()
        lds_inc(a, VC, C_Q2, V1)
        try_loads()
        qgemm(4 * NQ1, 28, C_Q2)
        st(a, 5)
        try_loads()
        qepi()
    spin_lds(a, VC, C_X, 4, 4)
    for i in range(3):
        a(f"""s_add_u32 s26, s{W}, {i+1}
        s_and_b32 s26, s26, 3
        s_lshl_b32 s26, s26, 11
        s_add_u32 s26, s26, {QX}
        v_add_u32 v5, s26, v1
        ds_read_b128 {vr(Q+8*i,4)}, v5
        ds_read_b128 {vr(Q+8*i+4,4)}, v5 offset:1024""")
    try_loads(block=True)
    def QK(u, m):
        kt, qs = (u >> 2) & 3, u & 3
        s = S + 16 * (u & 1)
        c = "0" if m == 0 else vr(s, 16)
        return f"{MF} {vr(s,16)}, {vr(KV+16*kt+4*m,4)}, {vr(Q+8*qs+4*m,4)}, {c}"
    def PV(u, m):
        kt, qs = (u >> 2) & 3, u & 3
        return f"{MF} {vr(O+16*qs,16)}, {vr(KV+16*kt+8+4*m,4)}, {vr(P+8*(u&1)+4*m,4)}, {vr(O+16*qs,16)}"
    SS = [S, S + 16, KV + 32, KV + 48]
    def samp(i, m): return f"{MF} {vr(SS[i],16)}, {vr(SK+4*m,4)}, {vr(Q+8*i+4*m,4)}, {'0' if m == 0 else vr(SS[i],16)}"
    def mx(i):
        for x in max16_list(4, SS[i]): a(x)
        a(f"s_mov_b32 exec_lo, 0\nv_cvt_pk_bf16_f32 v{Q+8*i+6}, -v4, 0\ns_mov_b32 exec_lo, -1")
    a("s_waitcnt vmcnt(8) lgkmcnt(0)")
    for i in range(4): a(samp(i, 0)); a(samp(i, 1))
    mx(0)
    a("s_waitcnt vmcnt(4)")
    a(QK(0, 0)); a(QK(0, 1))
    mx(1); mx(2)
    for x in ldK(2, "s55") + ldV(2, "s55"): a(x)
    mx(3)
    for x in ldK(3, "s56"): a(x)
    for i in range(0, 8, 2): a(f"v_pk_mul_f32 {vr(KV+56+i,2)}, {vr(P+8,2)}, {vr(P+8,2)}")
    for i in range(3):
        a(f"""s_add_u32 s26, s{W}, {i+1}
        s_and_b32 s26, s26, 3
        s_mul_i32 s26, s26, 12288
        s_add_u32 s26, s26, {CB + i*4096}
        v_add_u32 v{4+i}, s26, v1""")
    a(f"s_mul_i32 s26, s{W}, 12288\ns_add_u32 s26, s26, {CB}\nv_add_u32 v2, s26, v1")
    lds_inc(a, VC, C_L, V1)
    st(a, 7)
    a("s_mov_b32 s57, 3")
    def substep(u, ex, last=False):
        s = S + 16 * (u & 1); p = P + 8 * (u & 1)
        e = lambda i: f"v_exp_f32 v{s+i}, v{s+i}"
        c = lambda i: f"v_cvt_pk_bf16_f32 v{p+i}, v{s+2*i}, v{s+2*i+1}"
        q0, q1 = ([], []) if last else ([QK(u+1, 0)], [QK(u+1, 1)])
        seq = q0 + ex[0] + [e(0), e(1), e(2), e(3), c(0), e(4),
               PV(u-1, 0)] + ex[1] + [e(5), c(1), e(6), e(7), c(2), e(8)] + q1 + ex[2] + [e(9), c(3), e(10), e(11), c(4), e(12),
               PV(u-1, 1)] + ex[3] + [e(13), c(5), e(14), e(15), c(6), c(7)]
        for x in seq: a(x)
    a(".p2align 6")
    a.label("L_loop")
    for u in range(16):
        kt, qs = u >> 2, u & 3
        ex = [[], [], [], []]
        if qs == 1:
            l = ldV((kt + 3) & 3, "s56")
            ex[0] = [l[0]]; ex[1] = [l[1]]; ex[2] = [f"s_add_u32 s56, s56, {TS}"]
        if u == 0: ex[0] = [f"ds_read_b32 v7, v{VF} offset:{C_R+4}"]
        if u == 1:
            ex[2] = ["s_waitcnt lgkmcnt(0)", "v_readfirstlane_b32 s56, v7"]
            ex[3] = ["s_sub_u32 s56, s56, 1"]
        if u == 2:
            ex[0] = ["s_cbranch_scc1 L_nextwait", "L_nextok:", f"v_add_u32 v{VF}, 4, v{VF}"]
        if qs == 2 and "nowait" not in EXP: ex[3] = ["s_waitcnt vmcnt(10)"]
        if qs == 0 and "nowait" not in EXP: ex[3] = ["s_waitcnt vmcnt(10)"]
        if qs == 3:
            l = ldK(kt, "s56")
            ex[0] = [l[0]]; ex[1] = [l[1]]
        if u == 12: ex[0] = [f"ds_read_b32 v7, v{VC} offset:{C_F}"]
        if u == 13: ex[3] = ["s_sub_u32 s57, s57, 1"]
        if "itst" in EXP and u in (0, 8):
            a("s_waitcnt lgkmcnt(0)")
            for i in range(1, 6): a(f"s_mov_b32 s{72+2*i}, s{72+2*i+2}")
            a("s_memtime s[84:85]")
        if "noload" in EXP: ex = [[y for y in x if "buffer_load" not in y] for x in ex]
        substep(u, ex)
        if u == 13: a("s_cbranch_scc1 L_tail")
    a("s_branch L_loop")
    a.label("L_tail")
    st(a, 8)
    a(f"""s_waitcnt lgkmcnt(0)
    v_cmp_gt_u32 vcc, 4, v7
    s_cbranch_vccnz L_wait_ffn
    L_ffn_free:""")
    wr = lambda i, k: f"ds_write_b128 v{4+i}, {vr(O+16*i+4*k,4)} offset:{k*1024}"
    substep(14, [[], [wr(0, 0)], [wr(0, 1)], [wr(0, 2)]])
    substep(15, [[wr(0, 3)], [wr(1, 0)], [wr(1, 1)], [wr(1, 2)]], last=True)
    a(PV(15, 0)); a(wr(1, 3)); a(PV(15, 1))
    for k in range(4): a(wr(2, k))
    lds_inc(a, VC, C_C, V1)
    srd(a, 20, 50, 2048 * 896)
    TT = S
    OO = O + 16 * OWN
    a(f"""s_lshl_b32 s28, s35, 4
    s_add_u32 s28, s28, s{H}
    s_lshr_b32 s56, s28, 2
    s_lshl_b32 s56, s56, 5
    s_and_b32 s26, s{H}, 3
    s_add_u32 s56, s56, s26
    s_lshl_b32 s56, s56, 2
    s_add_u32 s56, s56, {WS_OFL}
    s_lshl_b32 s52, s28, 11
    s_add_u32 s52, s52, {WS_O}
    s_mov_b32 s57, 0""")
    spin_lds(a, VC, C_C, 4, 7)
    for k in range(12): a(f"ds_read_b128 {vr(TT+4*k,4)}, v2 offset:{k*1024}")
    a(f"s_lshl_b32 s26, s{W}, 2\nv_add_u32 v7, s26, v{VC}\nds_write_b32 v7, v{V1} offset:{C_P}")
    for i in range(3):
        a(f"s_waitcnt lgkmcnt({9-4*i})")
        for k in (6, 7, 0, 1, 2, 3, 4, 5): a(f"v_pk_add_f32 {vr(OO+2*k,2)}, {vr(OO+2*k,2)}, {vr(TT+16*i+2*k,2)}")
    a.label("L_fin")
    a(f"""v_mov_b32 v5, v{OO+12}
    v_mov_b32 v4, v{OO+12}
    s_mov_b32 exec_lo, 0
    v_mov_b32 v{OO+12}, 0
    s_mov_b32 exec_lo, -1
    v_permlane32_swap_b32 v5, v4
    v_rcp_f32 v6, v4
    s_mov_b32 s28, 0x30800000
    s_mov_b32 s29, 0x4e800000
    v_cmp_nle_f32 s[54:55], s28, v4
    v_cmp_nge_f32 s[62:63], s29, v4
    v_pk_add_f32 v[4:5], {vr(OO,2)}, {vr(OO+2,2)}""")
    for k in range(2, 8): a(f"v_pk_add_f32 v[4:5], v[4:5], {vr(OO+2*k,2)}")
    a(f"""v_add_f32 v4, v4, v5
    s_movk_i32 s28, 0x207
    v_cmp_class_f32 vcc, v4, s28
    s_or_b64 s[54:55], s[54:55], s[62:63]""")
    for k in range(8): a(f"v_pk_mul_f32 {vr(OO+2*k,2)}, {vr(OO+2*k,2)}, v[6:7] op_sel_hi:[1,0]")
    for k in range(8): a(f"v_cvt_pk_bf16_f32 v{Q+k}, v{OO+2*k}, v{OO+2*k+1}")
    a(f"""v_mov_b32 v6, s{T}
    s_or_b64 s[54:55], s[54:55], vcc
    s_cbranch_scc1 L_bad
    L_good:
    buffer_store_dwordx4 {vr(Q,4)}, v1, s[8:11], s52 offen sc1
    buffer_store_dwordx4 {vr(Q+4,4)}, v1, s[8:11], s52 offen offset:1024 sc1
    s_mov_b64 exec, 1
    buffer_atomic_swap v6, v{VZ}, s[8:11], s56 offen sc1
    s_mov_b64 exec, -1""")
    st(a, 9)
    a(f"""s_mov_b32 s26, {WS_G}
    buffer_load_dwordx2 {vr(GR,2)}, v{VGO}, s[8:11], s26 offen sc1
    buffer_load_dwordx4 {vr(XR,4)}, v{VXO}, s[12:15], s59 offen
    buffer_load_dwordx4 {vr(XR+4,4)}, v{VXO}, s[12:15], s59 offen offset:32""")
    WOF = 104; B = 232; ACC = 8; U = 40
    OSB = [40, 72]
    a(f"""v_bfe_u32 v4, v3, 2, 2
    v_lshl_add_u32 v4, v{VH}, 2, v4
    v_mul_u32_u24 v4, 224, v4
    v_bfe_u32 v5, v3, 4, 1
    v_lshl_add_u32 v4, v5, 5, v4
    v_and_b32 v5, 1, v3
    v_lshl_add_u32 v4, v5, 4, v4
    v_bfe_u32 v5, v3, 1, 1
    v_lshl_add_u32 v4, v5, 3, v4
    s_mul_i32 s28, s{W}, 56
    v_add_u32 v24, s28, v4
    v_add_u32 v25, {8*28*224}, v24
    v_add_u32 v26, {CB}, v1
    v_lshlrev_b32 v27, 2, v{VT}
    v_add_u32 v27, {UPDI}, v27
    s_mul_i32 s28, s{W}, 112
    s_add_u32 s28, s28, {UPD}
    v_lshl_add_u32 v28, v{VH}, 5, s28
    v_mov_b32 v29, {CNT}
    v_mov_b32 v30, 0
    v_mov_b32 v31, 0
    s_waitcnt vmcnt(6)""")
    spin_lds(a, 29, C_W, 2, 6)
    for k in range(32):
        hd, m = k >> 1, k & 1
        o = (28 * (hd & 7) + 16 * m) * 224
        b = 24 + (hd >> 3)
        a(f"ds_read_b64_tr_b16 {vr(WOF+4*k,2)}, v{b} offset:{o}\nds_read_b64_tr_b16 {vr(WOF+4*k+2,2)}, v{b} offset:{o+8*224}")
    for k in range(8): a(f"v_pk_mul_f32 {vr(ACC+2*k,2)}, v[30:31], v[30:31]")
    a("s_waitcnt vmcnt(0)")
    for k in range(8):
        a(f"v_lshlrev_b32 v{B+2*k}, 16, v{XR+k}\nv_and_b32 v{B+2*k+1}, 0xffff0000, v{XR+k}")
    a(f"""v_cmp_ne_u32 vcc, s{T}, v{GR+1}
    s_cbranch_vccnz L_gate
    L_gate_ok:
    v_sub_f32 v32, 1.0, v{GR}
    v_cvt_pk_bf16_f32 v32, v32, v32
    v_lshlrev_b32 v32, 16, v32
    s_mov_b32 s60, {SPIN_LIMIT}""")
    if "twait" not in EXP: st(a, 10)
    def stub(): pass
    def need(bit):
        l = uid("Lnd"); d = uid("Lndd")
        a(f"""s_bitcmp1_b32 s61, {bit}
        s_cbranch_scc1 {d}
        {l}:
        ds_read_b32 v6, v29 offset:{C_O}
        s_sub_u32 s60, s60, 1
        s_cbranch_scc1 L_exit
        s_waitcnt lgkmcnt(0)
        v_readfirstlane_b32 s61, v6
        s_bitcmp1_b32 s61, {bit}
        s_cbranch_scc0 {l}
        {d}:""")
    def rd(g):
        for k in range(8): a(f"ds_read_b128 {vr(OSB[g&1]+4*k,4)}, v26 offset:{g*12288+k*1024}")
    def mm(g, lo, hi):
        for k in range(lo, hi):
            a(f"{MF} {vr(ACC,16)}, {vr(WOF+32*g+4*k,4)}, {vr(OSB[g&1]+4*k,4)}, {vr(ACC,16)}")
    a(f"""ds_read_b32 v6, v29 offset:{C_O}
    s_mov_b32 s57, 0
    s_waitcnt lgkmcnt(0)
    v_readfirstlane_b32 s61, v6
    s_bitcmp1_b32 s61, 10
    s_cbranch_scc1 L_blkU
    s_mov_b32 s57, 1
    L_next0:""")
    need(0); rd(0)
    for g in range(4):
        if g < 3: a(f"ds_read_b32 v6, v29 offset:{C_O}")
        a("s_waitcnt lgkmcnt(0)")
        mm(g, 0, 2)
        if g < 3:
            a(f"v_readfirstlane_b32 s61, v6\ns_bitcmp1_b32 s61, {g+1}\ns_cbranch_scc0 L_late{g}")
            rd(g + 1)
        mm(g, 2, 8)
        a(f"L_back{g}:")
    a("s_cmp_lg_u32 s57, 0\ns_cbranch_scc1 L_lateU\nL_next1:")
    if "twait" not in EXP: st(a, 11)
    a("s_nop 9")
    for m in range(2):
        for e in range(4*m, 4*m+4):
            a(f"v_pk_fma_f32 {vr(B+2*e,2)}, {vr(ACC+2*e,2)}, {vr(GR,2)}, {vr(B+2*e,2)} op_sel_hi:[1,0,1]")
        for e in range(4*m, 4*m+4): a(f"v_cvt_pk_bf16_f32 v{40+e}, v{B+2*e}, v{B+2*e+1}")
        if m == 0:
            a(f"buffer_store_dwordx4 v[40:43], v{VXO}, s[20:23], s59 offen{OUTAUX}")
            stub()
        else:
            a(f"""s_mov_b32 exec_hi, 0
            buffer_store_dwordx4 v[44:47], v{VXO}, s[20:23], s59 offen offset:32{OUTAUX}
            s_mov_b64 exec, 0xffffffff
            s_not_b64 exec, exec
            buffer_store_dwordx2 v[44:45], v{VXO}, s[20:23], s59 offen offset:32{OUTAUX}""")
    st_end(a)
    diag_end(a)
    a("s_endpgm")
    for g in range(3):
        a(f"L_late{g}:")
        mm(g, 2, 8)
        need(g + 1); rd(g + 1)
        a(f"s_branch L_back{g}")
    a("L_lateU:")
    need(10)
    a(f"""L_blkU:
    ds_read_b32 v6, v27
    s_waitcnt lgkmcnt(0)
    v_cmp_le_i32 vcc, 0, v6
    s_cbranch_vccz L_noupd
    s_mov_b64 exec, vcc
    v_mul_u32_u24 v6, 448, v6
    v_add_u32 v28, v28, v6""")
    for k in range(4): a(f"ds_read_b128 {vr(U+4*k,4)}, v28 offset:{64*(k>>1)+16*(k&1)}")
    a("s_waitcnt lgkmcnt(0)")
    for k in range(8):
        a(f"""v_pk_add_f32 {vr(B+2*k,2)}, {vr(B+2*k,2)}, {vr(U+2*k,2)}
        v_cvt_pk_bf16_f32 v{B+2*k}, v{B+2*k}, v{B+2*k+1}
        v_and_b32 v{B+2*k+1}, 0xffff0000, v{B+2*k}
        v_lshlrev_b32 v{B+2*k}, 16, v{B+2*k}""")
    a("s_mov_b64 exec, -1\nL_noupd:")
    stub()
    for k in range(8): a(f"v_pk_mul_f32 {vr(B+2*k,2)}, {vr(B+2*k,2)}, v[32:33] op_sel_hi:[1,0]")
    a("s_cmp_lg_u32 s57, 0\ns_cbranch_scc1 L_next1\ns_branch L_next0")
    a("L_bad:\ns_cmp_eq_u32 s57, 0\ns_cbranch_scc1 L_slow")
    for k in range(8): a(f"v_min_u32 v{Q+k}, -2, v{Q+k}")
    a("s_branch L_good")
    a.label("L_wait_ffn")
    spin_lds(a, VC, C_F, 4, 7)
    a("s_branch L_ffn_free")
    a.label("L_nextwait")
    spin_lds(a, VF, C_R + 4, 1, 7)
    a("s_sub_u32 s56, s61, 1\ns_branch L_nextok")
    a(f"""L_gate:
    s_mov_b32 s26, {WS_G}
    s_mov_b32 s60, {SPIN_LIMIT}
    L_gate1:
    buffer_load_dwordx2 {vr(GR,2)}, v{VGO}, s[8:11], s26 offen sc1
    s_waitcnt vmcnt(0)
    v_cmp_ne_u32 vcc, s{T}, v{GR+1}
    s_cbranch_vccz L_gate_ok
    s_sub_u32 s60, s60, 1
    s_cbranch_scc0 L_gate1
    s_endpgm""")
    a.label("L_slow")
    a(f"""s_mov_b32 s57, 1
    s_mov_b32 s55, {KVB}
    s_mov_b32 s54, 0
    s_mov_b32 exec_lo, 0
    v_mov_b32 v{QO+6}, 0
    v_mov_b32 v{QO+7}, 0
    s_mov_b32 exec_lo, -1
    v_mov_b32 v4, 0xff800000
    L_slow1:
    {ldK(0, "s54")[0]}
    {ldK(0, "s54")[1]}
    s_waitcnt vmcnt(0)
    {MF} {vr(S,16)}, {vr(KV,4)}, {vr(QO,4)}, 0
    {MF} {vr(S,16)}, {vr(KV+4,4)}, {vr(QO+4,4)}, {vr(S,16)}""")
    for x in max16_list(4, S, init=True): a(x)
    a(f"""s_add_u32 s54, s54, {TS}
    s_cmp_lt_u32 s54, s55
    s_cbranch_scc1 L_slow1
    v_mov_b32 v5, v4
    v_permlane32_swap_b32 v4, v5
    v_max_f32 v4, v4, v5""")
    split_neg_max(a, 4, 5, 6, QO + 6, QO + 7)
    for i in range(16): a(f"v_mov_b32 v{OO+i}, 0")
    a(f"""s_mov_b32 s54, 0
    L_slow2:
    {ldK(0, "s54")[0]}
    {ldK(0, "s54")[1]}
    {ldV(0, "s54")[0]}
    {ldV(0, "s54")[1]}
    s_waitcnt vmcnt(0)
    {MF} {vr(S,16)}, {vr(KV,4)}, {vr(QO,4)}, 0
    {MF} {vr(S,16)}, {vr(KV+4,4)}, {vr(QO+4,4)}, {vr(S,16)}""")
    for i in range(16): a(f"v_exp_f32 v{S+i}, v{S+i}")
    for i in range(8): a(f"v_cvt_pk_bf16_f32 v{P+i}, v{S+2*i}, v{S+2*i+1}")
    a(f"""{MF} {vr(OO,16)}, {vr(KV+8,4)}, {vr(P,4)}, {vr(OO,16)}
    {MF} {vr(OO,16)}, {vr(KV+12,4)}, {vr(P+4,4)}, {vr(OO,16)}
    s_nop 7
    s_nop 7
    s_add_u32 s54, s54, {TS}
    s_cmp_lt_u32 s54, s55
    s_cbranch_scc1 L_slow2
    s_branch L_fin""")

def service_wave(a):
    a.label("L_service")
    a(f"""v_mov_b32 v14, {CNT}
    v_mov_b32 v15, 1
    v_mov_b32 v9, 0""")
    srd(a, 8, 36, (1 << 28) - WSBASE)
    a("s_waitcnt lgkmcnt(0)")
    tag(a)
    a(f"v_mov_b32 v4, s{T}\nds_write_b32 v14, v4 offset:{C_T}\ns_waitcnt vmcnt(0)")
    lds_inc(a, 14, C_Q1, 15)
    a(f"""v_and_b32 v32, 31, v3
    v_lshrrev_b32 v33, 5, v3
    v_lshlrev_b32 v219, 3, v1
    v_lshrrev_b32 v220, 2, v1
    v_and_b32 v4, 7, v3
    v_lshlrev_b32 v217, 3, v4
    s_lshr_b32 s58, s{H}, 2
    s_lshl2_add_u32 s58, s{J}, s58
    s_cmp_ge_u32 s{L}, 2
    s_cbranch_scc1 L_svcB""")
    def sel_load(lbl):
        a(f"""s_mov_b32 s26, {WS_SEL}
        s_mov_b32 s60, {SPIN_LIMIT}
        {lbl}:
        buffer_load_dwordx2 v[20:21], v217, s[8:11], s26 offen sc1
        s_waitcnt vmcnt(0)
        v_cmp_ne_u32 vcc, s{T}, v21
        s_cbranch_vccz {lbl}_ok
        s_sleep 4
        s_sub_u32 s60, s60, 1
        s_cbranch_scc0 {lbl}
        s_endpgm
        {lbl}_ok:""")
    a(f"""v_mov_b32 v6, {KEYS}
    s_lshl_b32 s28, s{L}, 8
    v_add3_u32 v7, v220, v6, s28
    s_lshl_b32 s27, s{J}, 6
    s_add_u32 s27, s27, {WS_R}
    s_cmp_eq_u32 s{RL}, 14
    s_cbranch_scc1 L_rank
    s_cmp_lg_u32 s2, {SELECTOR}
    s_cbranch_scc1 L_svcA
    s_lshl_b32 s26, s{L}, 9
    s_add_u32 s26, s26, {WS_R}
    s_mov_b32 s27, {WS_SEL}
    v_lshlrev_b32 v4, 3, v3
    v_mov_b32 v5, 2
    s_mov_b32 s60, {SPIN_LIMIT}
    L_keys:
    v_mov_b32 v20, 0
    v_mov_b32 v21, 0
    buffer_atomic_or_x2 v[20:21], v4, s[8:11], s26 offen sc0 sc1
    s_sub_u32 s60, s60, 1
    s_cbranch_scc1 L_exit
    s_waitcnt vmcnt(0)
    v_cmp_ne_u32 vcc, s{T}, v21
    s_cbranch_vccnz L_keys
    ds_write_b32 v7, v20""")
    lds_inc(a, 14, C_K, 5)
    a.label("L_rank")
    spin_lds(a, 14, C_K, 4, 8)
    st(a, 10)
    if STAMP: a("s_waitcnt lgkmcnt(0)")
    a(f"ds_read_b32 v20, v7\nv_mov_b32 v22, 0\nv_mov_b32 v21, s{T}\ns_mov_b32 s57, 0\nL_rk:")
    for k in range(8): a(f"ds_read_b128 {vr(40+4*k,4)}, v6 offset:{16*k}")
    a("v_add_u32 v6, 128, v6")
    CS = ["s[52:53]", "s[54:55]", "s[62:63]", "s[28:29]"]
    for k in range(8):
        a(f"s_waitcnt lgkmcnt({7-k})")
        for e in range(4): a(f"v_cmp_gt_u32 {CS[e]}, v{40+4*k+e}, v20")
        for e in range(4): a(f"v_addc_co_u32 v22, vcc, 0, v22, {CS[e]}")
    a(f"""s_add_u32 s57, s57, 1
    s_cmp_lt_u32 s57, 4
    s_cbranch_scc1 L_rk
    v_cmp_gt_u32 vcc, 8, v22
    v_lshlrev_b32 v22, 3, v22
    s_mov_b64 exec, vcc
    s_cbranch_execz L_rank_done
    buffer_atomic_swap_x2 v[20:21], v22, s[8:11], s27 offen sc1
    L_rank_done:
    s_mov_b64 exec, -1""")
    st(a, 11)
    a.label("L_svcA")
    GI = CB; DI = QX; HB = 101376
    FT, KS = 56, 59
    a(f"""s_cmp_ge_u32 s2, 196
    s_cbranch_scc1 L_nofn
    s_mul_i32 s{FT}, s2, 9363
    s_lshr_b32 s{FT}, s{FT}, 16
    s_mul_i32 s26, s{FT}, 7
    s_sub_u32 s{KS}, s2, s26
    v_lshrrev_b32 v4, 3, v3
    v_and_b32 v5, 2, v4
    v_lshlrev_b32 v5, 1, v5
    v_and_b32 v6, 7, v3
    v_xor_b32 v5, v5, v6
    v_mul_u32_u24 v6, 3584, v4
    v_lshl_add_u32 v34, v5, 4, v6
    v_add_u32 v35, {8*3584-1024}, v34
    v_add_u32 v36, {2*(8*3584-1024)}, v34
    v_add_u32 v37, {3*(8*3584-1024)}, v34
    v_lshrrev_b32 v6, 2, v3
    v_mul_u32_u24 v6, 896, v6
    v_and_b32 v5, 3, v3
    v_lshl_add_u32 v200, v5, 4, v6
    v_add_u32 v201, {16*896-1024}, v200
    v_add_u32 v202, {2*(16*896-1024)}, v200
    v_add_u32 v203, {3*(16*896-1024)}, v200
    ; transposing-read base: (8hh + r)*128 + ((r>>1)&1)*64 + colhalf*32 + c*8
    v_bfe_u32 v4, v3, 2, 2
    v_lshl_add_u32 v5, v33, 3, v4
    v_lshlrev_b32 v5, 7, v5
    v_lshrrev_b32 v4, 1, v4
    v_lshl_add_u32 v5, v4, 6, v5
    v_bfe_u32 v4, v3, 4, 1
    v_lshl_add_u32 v5, v4, 5, v5
    v_and_b32 v4, 3, v3
    v_lshl_add_u32 v5, v4, 3, v5
    s_lshl_b32 s54, s{L}, 13
    s_add_u32 s54, s54, {GI}
    v_lshrrev_b32 v6, 4, v3
    v_bfe_u32 v7, v3, 2, 2
    v_lshl_add_u32 v8, v6, 3, v7
    v_lshlrev_b32 v8, 7, v8
    v_lshrrev_b32 v7, 1, v7
    v_lshl_add_u32 v8, v7, 6, v8
    v_lshl_add_u32 v8, v4, 3, v8
    v_add_u32 v38, s54, v8
    v_xor_b32 v39, 64, v38
    v_lshlrev_b32 v213, 4, v6
    v_lshrrev_b32 v6, 7, v5
    v_and_b32 v5, 63, v5
    v_lshl_add_u32 v5, v6, 6, v5
    s_lshl_b32 s26, s{L}, 12
    s_add_u32 s26, s26, {DI}
    v_add_u32 v210, s26, v5
    ; partial-sum store offset 4hh*256 + col*4 ; h addresses ; y offsets
    v_lshlrev_b32 v212, 3, v213
    v_lshl_add_u32 v212, v217, 1, v212
    s_lshl_b32 s26, s{L}, 6
    s_add_u32 s26, s26, {HB}
    v_and_b32 v4, 56, v3
    v_lshl_add_u32 v214, v217, 4, s26
    v_add_u32 v214, v214, v4
    v_lshlrev_b32 v4, 4, v217
    v_lshl_add_u32 v4, v33, 4, v4
    v_add_u32 v218, {HB}, v4
    v_mul_u32_u24 v215, {4*1792}, v33
    v_lshl_add_u32 v215, v32, 2, v215
    v_add_u32 v216, {2*1792}, v215""")
    srd(a, 16, 42, 448 * 3584)
    a(f"""s_cmp_eq_u32 s{L}, 1
    s_cselect_b64 s[16:17], s[44:45], s[42:43]
    s_mul_i32 s52, s{KS}, {64*3584}
    s_lshl_b32 s28, s{FT}, 7
    s_add_u32 s52, s52, s28
    s_movk_i32 s29, 896""")
    spin_lds(a, 14, C_L, 4, 8, sleep=2)
    st(a, 3)
    NR = 4 if "coarse" in EXP else 2
    XS_ = 40; FW = 56; AC = 104
    a("s_mov_b32 m0, s54\ns_nop 0")
    for k in range(8):
        if k == 4: a(f"s_add_u32 s52, s52, {32*3584}\ns_add_u32 m0, s54, 4096")
        if k and k % NR == 0: a("s_waitcnt vmcnt(0)")
        a(f"buffer_load_dwordx4 v{34+(k&3)}, s[16:19], s52 offen offset:{1024*(k&3)} lds")
    sel_load("L_sel1")
    a(f"""v_and_b32 v4, 0xffff, v20
    v_sub_u32 v4, 0xffff, v4
    v_mad_u32_u24 v4, v4, s29, v213
    s_lshl_b32 s26, s{KS}, 7
    s_mov_b32 exec_lo, 0x00ff00ff
    s_mov_b32 exec_hi, 0x00ff00ff
    buffer_load_dwordx4 {vr(XS_,4)}, v4, s[12:15], s26 offen
    buffer_load_dwordx4 {vr(XS_+4,4)}, v4, s[12:15], s26 offen offset:64
    s_mov_b64 exec, -1""")
    for k in range(2):
        for n in range(4):
            o = k * 4096 + (n & 1) * 32
            a(f"ds_read_b64_tr_b16 {vr(FW+16*k+4*n,2)}, v{38+(n>>1)} offset:{o}\nds_read_b64_tr_b16 {vr(FW+16*k+4*n+2,2)}, v{38+(n>>1)} offset:{o+512}")
    lds_inc(a, 14, C_F, 15)
    a(f"""s_mov_b64 s[16:17], s[46:47]
    s_mul_i32 s28, s{FT}, {64*896}
    s_add_u32 s28, s28, s26
    s_lshl_b32 s29, s{L}, 6
    s_add_u32 s28, s28, s29
    s_lshl_b32 s29, s{L}, 12
    s_add_u32 m0, s29, {DI}
    s_lshl1_add_u32 s26, s2, s{L}
    s_lshl_b32 s26, s26, 11
    s_add_u32 s26, s26, {WS_GP}
    s_waitcnt vmcnt(0) lgkmcnt(0)""")
    st(a, 4)
    for k in range(2):
        for n in range(4):
            a(f"v_mfma_f32_16x16x32_bf16 {vr(AC+4*n,4)}, {vr(FW+16*k+4*n,4)}, {vr(XS_+4*k,4)}, {'0' if k==0 else vr(AC+4*n,4)}")
    a("s_mov_b32 exec_lo, 0x00ff00ff\ns_mov_b32 exec_hi, 0x00ff00ff")
    for n in range(4):
        a(f"buffer_store_dwordx4 {vr(AC+4*n,4)}, v212, s[8:11], s26 offen offset:{512*n} sc1")
    a("s_mov_b64 exec, -1")
    for k in range(4): a(f"buffer_load_dwordx4 v{200+k}, s[16:19], s28 offen offset:{1024*k} lds")
    a(f"""s_lshl1_add_u32 s26, s{KS}, s{L}
    s_lshl_b32 s26, s26, 2
    s_mul_i32 s28, s{FT}, {7*128}
    s_add_u32 s26, s26, s28
    s_add_u32 s26, s26, {WS_F1}
    s_waitcnt vmcnt(4)""")
    signal(a, 5, 219, "s26", "0x7f")
    st(a, 5)
    a(f"s_lshl_b32 s26, s2, 7\ns_add_u32 s26, s26, {WS_F1}")
    poll_atomic(a, 5, 220, "s26", "0x3fff", 2)
    st(a, 6)
    GP = 40
    a(f"s_mul_i32 s26, s{FT}, {7*4096}\ns_lshl_b32 s28, s{L}, 10\ns_add_u32 s26, s26, s28\ns_add_u32 s26, s26, {WS_GP}")
    for k in range(7):
        a(f"""buffer_load_dwordx4 {vr(GP+8*k,4)}, v1, s[8:11], s26 offen sc1
        buffer_load_dwordx4 {vr(GP+8*k+4,4)}, v1, s[8:11], s26 offen offset:2048 sc1""")
        if k < 6: a("s_add_u32 s26, s26, 4096")
    DW = 120
    for k in range(4):
        a(f"ds_read_b64_tr_b16 {vr(DW+4*k,2)}, v210 offset:{k*1024}\nds_read_b64_tr_b16 {vr(DW+4*k+2,2)}, v210 offset:{k*1024+256}")
    a(f"s_mov_b32 s28, {NLOG2E:#x}\ns_mov_b32 s29, {NLOG2E:#x}\ns_waitcnt vmcnt(0)")
    for k in range(1, 7):
        for e in range(4):
            a(f"v_pk_add_f32 {vr(GP+2*e,2)}, {vr(GP+2*e,2)}, {vr(GP+8*k+2*e,2)}")
    for e in range(2): a(f"v_pk_mul_f32 {vr(22+2*e,2)}, {vr(GP+2*e,2)}, s[28:29]")
    for e in range(4): a(f"v_exp_f32 v{22+e}, v{22+e}")
    for e in range(2): a(f"v_pk_add_f32 {vr(22+2*e,2)}, {vr(22+2*e,2)}, 1.0 op_sel_hi:[1,0]")
    for e in range(4): a(f"v_rcp_f32 v{22+e}, v{22+e}")
    for e in range(2): a(f"v_pk_mul_f32 {vr(22+2*e,2)}, {vr(22+2*e,2)}, {vr(GP+2*e,2)}")
    for e in range(2): a(f"v_pk_mul_f32 {vr(22+2*e,2)}, {vr(22+2*e,2)}, {vr(GP+4+2*e,2)}")
    for e in range(2): a(f"v_cvt_pk_bf16_f32 v{28+e}, v{22+2*e}, v{23+2*e}")
    a("ds_write_b64 v214, v[28:29]")
    lds_inc(a, 14, C_S, 15)
    spin_lds(a, 14, C_S, 2, 8, sleep=1)
    for k in range(4):
        a(f"ds_read_b128 {vr(GP+4*k,4)}, v218 offset:{32*k}\ns_waitcnt lgkmcnt(0)\n{MF} {vr(AC,16)}, {vr(GP+4*k,4)}, {vr(DW+4*k,4)}, {'0' if k==0 else vr(AC,16)}")
    a(f"""s_mul_i32 s26, s{FT}, 14336
    s_lshl1_add_u32 s28, s{KS}, s{L}
    s_lshl_b32 s29, s28, 7
    s_add_u32 s26, s26, s29
    s_add_u32 s26, s26, {WS_YP}
    s_lshl2_add_u32 s28, s{FT}, s29
    s_add_u32 s28, s28, {WS_YFL}
    buffer_store_dword v{AC}, v215, s[8:11], s26 offen sc1
    buffer_store_dword v{AC+1}, v215, s[8:11], s26 offen offset:1792 sc1
    buffer_store_dword v{AC+2}, v216, s[8:11], s26 offen sc1
    buffer_store_dword v{AC+3}, v216, s[8:11], s26 offen offset:1792 sc1
    s_waitcnt vmcnt(0)""")
    signal(a, 5, 9, "s28", 1)
    st(a, 7)
    a("s_branch L_updA")
    a.label("L_nofn")
    lds_inc(a, 14, C_F, 15)
    spin_lds(a, 14, C_F, 4, 8, sleep=8)
    sel_load("L_sel2")
    a(f"""s_lshl2_add_u32 s26, s2, s{L}
    s_cmp_lg_u32 s26, {254*4}
    s_cbranch_scc1 L_updA""")
    a(f"s_mov_b32 s60, {SPIN_LIMIT}\nL_ep:")
    for k in range(4):
        a(f"s_mov_b32 s26, {WS_FL+8192*k}\nbuffer_load_dword v{24+k}, v219, s[8:11], s26 offen sc1")
    a(f"""s_sub_u32 s60, s60, 1
    s_cbranch_scc1 L_exit
    s_waitcnt vmcnt(0)
    v_xor_b32 v24, s{T}, v24
    v_bitop3_b32 v24, v24, v25, s{T} bitop3:0xf6
    v_bitop3_b32 v24, v24, v26, s{T} bitop3:0xf6
    v_bitop3_b32 v24, v24, v27, s{T} bitop3:0xf6
    v_cmp_ne_u32 vcc, 0, v24
    s_cbranch_vccnz L_ep
    s_mov_b32 s26, {WS_EP}""")
    flag_store(a, 5, 9, "s26")
    Y = 40
    a(f"""L_updA:
    s_and_b32 s53, s{H}, 3
    s_mul_i32 s53, s53, 224
    s_lshl_b32 s57, s{L}, 2
    s_lshr_b32 s26, s53, 6
    s_lshl_b32 s26, s26, 7
    s_add_u32 s62, s26, {WS_YFL}
    L_upd:
    v_readlane_b32 s52, v20, s57
    s_and_b32 s54, s52, 0xffff
    s_sub_u32 s54, 0xffff, s54
    s_lshr_b32 s26, s54, 5
    s_cmp_lg_u32 s26, s58
    s_cbranch_scc1 L_updn
    s_mov_b32 s60, {SPIN_LIMIT}
    s_mov_b32 exec_lo, 0x0fffffff
    s_mov_b32 exec_hi, 0x0fffffff
    L_yfl:
    v_mov_b32 v24, 0
    v_mov_b32 v25, 0
    buffer_atomic_or v24, v220, s[8:11], s62 offen sc0 sc1
    buffer_atomic_or v25, v220, s[8:11], s62 offen offset:256 sc0 sc1
    s_waitcnt vmcnt(0)
    v_xor_b32 v24, s{T}, v24
    v_bitop3_b32 v24, v24, v25, s{T} bitop3:0xf6
    v_cmp_ne_u32 vcc, 0, v24
    s_cbranch_vccz L_yok
    s_sub_u32 s60, s60, 1
    s_cbranch_scc0 L_yfl
    s_endpgm
    L_yok:
    v_mul_u32_u24 v4, {14*14336}, v33
    v_lshl_add_u32 v4, v32, 4, v4
    s_mul_i32 s26, s57, 1792
    s_lshl1_add_u32 s26, s53, s26
    s_add_u32 s26, s26, {WS_YP}""")
    for i in range(14):
        a(f"buffer_load_dwordx4 {vr(Y+4*i,4)}, v4, s[8:11], s26 offen sc1\ns_add_u32 s26, s26, 14336")
    a(f"""s_mov_b64 exec, -1
    s_lshr_b32 s26, s52, 16
    s_not_b32 s55, s26
    s_and_b32 s29, s26, 0x7fff
    s_bitcmp1_b32 s26, 15
    s_cselect_b32 s26, s29, s55
    s_lshl_b32 s26, s26, 16
    v_mov_b32 v6, {NLOG2E:#x}
    v_mul_f32 v6, s26, v6
    v_exp_f32 v6, v6
    v_add_f32 v6, 1.0, v6
    v_rcp_f32 v6, v6
    v_cvt_pk_bf16_f32 v6, v6, v6
    v_lshlrev_b32 v6, 16, v6
    s_mul_i32 s26, s57, 448
    s_add_u32 s26, s26, {UPD}
    v_lshl_add_u32 v7, v32, 4, s26
    s_waitcnt vmcnt(0)""")
    for i in range(1, 14):
        a(f"v_pk_add_f32 {vr(Y,2)}, {vr(Y,2)}, {vr(Y+4*i,2)}\nv_pk_add_f32 {vr(Y+2,2)}, {vr(Y+2,2)}, {vr(Y+4*i+2,2)}")
    for k in range(4): a(f"v_mov_b32 v{Y+4+k}, v{Y+k}")
    for k in range(4): a(f"v_permlane32_swap_b32 v{Y+k}, v{Y+4+k}")
    for k in range(4): a(f"v_add_f32 v{Y+k}, v{Y+k}, v{Y+4+k}")
    for k in range(0, 4, 2):
        a(f"""v_cvt_pk_bf16_f32 v{Y+k}, v{Y+k}, v{Y+k+1}
        v_and_b32 v{Y+k+1}, 0xffff0000, v{Y+k}
        v_lshlrev_b32 v{Y+k}, 16, v{Y+k}
        v_mul_f32 v{Y+k}, v{Y+k}, v6
        v_mul_f32 v{Y+k+1}, v{Y+k+1}, v6
        v_cvt_pk_bf16_f32 v{Y+k}, v{Y+k}, v{Y+k+1}
        v_and_b32 v{Y+k+1}, 0xffff0000, v{Y+k}
        v_lshlrev_b32 v{Y+k}, 16, v{Y+k}""")
    a(f"""s_and_b32 s54, s54, 31
    v_mov_b32 v5, s57
    s_lshl_b32 s26, s54, 2
    s_add_u32 s26, s26, {UPDI}
    v_mov_b32 v4, s26
    s_mov_b64 exec, 0x0fffffff
    ds_write_b128 v7, {vr(Y,4)}
    s_mov_b64 exec, 1
    ds_write_b32 v4, v5
    s_mov_b64 exec, -1
    L_updn:
    s_add_u32 s57, s57, 1
    s_and_b32 s26, s57, 3
    s_cbranch_scc1 L_upd
    v_mov_b32 v6, 512""")
    lds_inc(a, 14, C_O, 6)
    st(a, 9)
    a("s_branch L_ofetch")
    a.label("L_svcB")
    OUTT = ""
    if "outtouch" in EXP:
        OUTT = f"""s_cmp_lg_u32 s55, {42*1024}
        s_cbranch_scc1 L_noot
        s_mov_b32 s20, s50
        s_mov_b32 s21, s51
        s_mov_b32 s22, {2048*896}
        s_mov_b32 s23, 0x20000
        s_lshl_b32 s26, s58, 5
        v_add_u32 v4, s26, v32
        v_mul_u32_u24 v4, 896, v4
        s_add_u32 s26, s53, 127
        s_and_b32 s26, s26, 0xffffff80
        v_lshl_add_u32 v4, v33, 7, v4
        s_cmp_eq_u32 s53, 672
        s_cselect_b32 exec_hi, 0, -1
        buffer_store_dword v9, v4, s[20:23], s26 offen sc1
        s_mov_b64 exec, -1
        L_noot:"""
    WOPF = "s_mov_b32 exec_hi, 0x1ffff\nbuffer_load_dword v6, v219, s[16:19], s28 offen\ns_mov_b64 exec, -1" if "wopfS" not in EXP else ""
    for e in range(7):
        a(f"""v_add_u32 v4, {64*e}, v3
        v_mul_u32_u24 v5, 4682, v4
        v_lshrrev_b32 v5, 16, v5
        v_mul_u32_u24 v5, {896-224}, v5
        v_lshl_add_u32 v{200+e}, v4, 4, v5""")
    a(f"""v_mov_b32 v16, 0
    v_mov_b32 v17, 0
    v_mov_b32 v18, 0
    v_mov_b32 v19, 0
    v_add_u32 v209, {448*224}, v1
    s_cmp_eq_u32 s{L}, 2
    s_cbranch_scc1 L_svcB2
    v_lshrrev_b32 v4, 4, v3
    v_and_b32 v5, 15, v3
    v_lshlrev_b32 v5, 2, v5
    v_lshl_add_u32 v221, v4, 9, v5
    v_lshl_add_u32 v222, v4, 5, v14
    v_and_b32 v223, 48, v3
    v_and_b32 v5, 15, v3
    v_add_u32 v6, v5, v4
    v_mul_u32_u24 v224, {4*TS}, v6
    v_add_u32 v224, 1, v224
    v_bfm_b32 v225, v5, 0
    s_mul_i32 s26, s{H}, 28
    s_add_u32 s28, s26, 27
    s_xor_b32 s26, s26, s28
    s_mov_b32 s62, 0x55555555
    s_cmp_ge_u32 s26, 64
    s_cselect_b32 s62, -1, s62
    s_mov_b32 s63, s62
    s_lshr_b32 s28, s{J}, 2
    s_lshl4_add_u32 s26, s{H}, s28
    s_lshl_b32 s26, s26, 7
    s_add_u32 s26, s26, {WS_MB}""")
    spin_lds(a, 14, C_D, PCD, 8, sleep=1)
    at = lambda r: f"v_mov_b32 v{r}, 0\nbuffer_atomic_or v{r}, v221, s[8:11], s26 offen sc0 sc1"
    a(f"""s_mov_b32 s60, {SPIN_LIMIT}
    s_mov_b32 s52, 0x11111111
    s_mov_b32 s53, 0x11111111
    s_mov_b64 exec, s[62:63]""")
    for i in range(PD - 1): a(at(28 + i) + f"\ns_sleep {PG}")
    a("L_kv:")
    for i in range(PD):
        a(at(28 + (i + PD - 1) % PD))
        a(f"""s_waitcnt vmcnt({PD-1})
        v_cmp_ne_u32 vcc, s{T}, v{28+i}
        s_lshr_b64 s[28:29], vcc, 1
        s_or_b64 s[28:29], s[28:29], vcc
        s_lshr_b64 s[54:55], s[28:29], 2
        s_or_b64 s[28:29], s[28:29], s[54:55]
        s_andn2_b64 s[28:29], s[52:53], s[28:29]
        s_cbranch_scc0 L_kvn{i}
        s_andn2_b64 s[52:53], s[52:53], s[28:29]
        v_lshrrev_b64 v[4:5], v223, s[28:29]
        v_and_b32 v5, v225, v4
        v_bcnt_u32_b32 v5, v5, 0
        v_lshl_add_u32 v5, v5, 2, v222
        s_mov_b64 exec, s[28:29]
        ds_write_b32 v5, v224 offset:{C_R}
        s_mov_b64 exec, s[62:63]
        v_and_b32 v4, 0xffff, v4
        v_bcnt_u32_b32 v4, v4, 0
        v_lshl_add_u32 v222, v4, 2, v222
        s_cmp_eq_u64 s[52:53], 0
        s_cbranch_scc1 L_kvdone
        L_kvn{i}:""")
    a(f"""s_sub_u32 s60, s60, 1
    s_cbranch_scc0 L_kv
    s_endpgm
    L_kvdone:
    s_mov_b64 exec, -1
    L_svcB2:""")
    srd(a, 16, 38, 448 * 896)
    a(f"""s_and_b32 s53, s{H}, 3
    s_mul_i32 s53, s53, 224
    s_and_b32 s27, s{L}, 1
    s_mul_i32 s55, s27, {7*1024}
    s_mul_i32 s57, s27, {32*896}
    s_add_u32 s57, s57, s53
    s_lshl1_add_u32 s28, s25, s27
    s_mul_i32 s28, s28, {49*128}
    v_mov_b32 v24, -1
    v_mov_b32 v25, -1
    v_mov_b32 v26, -1
    v_mov_b32 v27, -1
    s_lshl_b32 s59, s{J}, 6
    s_add_u32 s59, s59, s{H}
    s_lshl1_add_u32 s59, s59, s27
    s_lshl_b32 s59, s59, 10
    s_add_u32 s59, s59, {WS_O}""")
    spin_lds(a, 14, C_L, 4, 8, sleep=2)
    st(a, 3)
    a(f"""ds_write_b128 v209, v[16:19]
    {WOPF}
    s_cmp_lg_u32 s{L}, 2
    s_cbranch_scc1 L_nofl
    s_lshl_b32 s26, s2, 7
    s_add_u32 s26, s26, {WS_FL}""")
    flag_store(a, 5, 9, "s26")
    a("L_nofl:\ns_waitcnt vmcnt(0)")
    if "wogate" in EXP: spin_lds(a, 14, C_F, 2, 8, sleep=4)
    a("L_wo:")
    for e in range(7):
        a(f"""s_add_u32 m0, s55, {e*1024}
        s_waitcnt vmcnt({WOP})
        buffer_load_dwordx4 v{200+e}, s[16:19], s57 offen lds""")
    a(f"""s_cmp_ge_u32 s55, {56*1024}
    s_cbranch_scc1 L_noclr
    buffer_store_dwordx4 v[24:27], v1, s[8:11], s59 offen sc1
    s_add_u32 s59, s59, {16*2048}
    L_noclr:
    {OUTT}
    s_sub_u32 s26, s55, {56*1024}
    s_cmp_ge_u32 s26, {14*1024}
    s_cbranch_scc1 L_noinc""")
    lds_inc(a, 14, C_F, 15)
    a(f"""L_noinc:
    s_add_u32 s55, s55, {14*1024}
    s_add_u32 s57, s57, {64*896}
    s_cmp_lt_u32 s55, {98*1024}
    s_cbranch_scc1 L_wo""")
    a("s_waitcnt vmcnt(0)")
    lds_inc(a, 14, C_W, 15)
    st(a, 8)
    a.label("L_ofetch")
    a(f"""s_lshl2_add_u32 s28, s58, s{L}
    s_lshl_b32 s29, s28, 13
    s_add_u32 s29, s29, {WS_O}
    s_add_u32 s27, s29, 4096
    s_lshl_b32 s28, s28, 7
    s_add_u32 s28, s28, {WS_OFL}
    s_mul_i32 s26, s{L}, 12288
    s_add_u32 s26, s26, {CB}
    v_add_u32 v7, s26, v1
    s_lshl_b32 s26, s{L}, 2
    v_add_u32 v6, s26, v14
    s_lshl_b32 s26, 1, s{L}
    v_mov_b32 v5, s26""")
    if False:
        a(f"s_cmp_lg_u32 s{L}, 1\ns_cbranch_scc1 L_walked\ns_mov_b64 exec, 0\ns_branch L_wk0\nL_walked:\ns_mov_b64 exec, -1")
    spin_lds(a, 6, C_P, 1, 8, sleep=4)
    poll_pipe(a, 28, 220, "s28", 15, D=PD, gap=PG)
    a("L_of:\nv_mov_b32 v4, 0")
    for k in range(8):
        a(f"buffer_load_dwordx4 {vr(40+4*k,4)}, v1, s[8:11], {'s29' if k < 4 else 's27'} offen offset:{(k&3)*1024} sc1")
    a("s_sub_u32 s60, s60, 1\ns_cbranch_scc1 L_exit")
    for k in range(8):
        a(f"""s_waitcnt vmcnt({7-k})
        ds_write_b128 v7, {vr(40+4*k,4)} offset:{k*1024}
        v_max3_u32 v4, v4, v{40+4*k}, v{41+4*k}
        v_max3_u32 v4, v4, v{42+4*k}, v{43+4*k}""")
    a("v_cmp_eq_u32 vcc, -1, v4\ns_cbranch_vccnz L_of")
    lds_inc(a, 14, C_O, 5)
    a("s_waitcnt vmcnt(0) lgkmcnt(0)")
    st_end(a)
    a("L_exit:\nL_code_end:\ns_endpgm")

def main(out):
    hdr = open("cdna_kernels/" + NAME + ".s.ref").read().split("; Override")[0]
    rep = []
    a = Asm()
    prologue_and_loader(a); main_wave(a); service_wave(a)
    t = hdr
    t += f"; @launch grid=(256,1,1) block=(512,1,1) lds={LDS_BYTES}\n"
    t += '.amdgcn_target "amdgcn-amd-amdhsa--gfx950"\n'
    t += kernel_text(NAME + "_kernel", a.l, 256, report=rep)
    open(out, "w").write(t)
    if "-v" in sys.argv: print("\n".join(rep))

if __name__ == "__main__":
    main(sys.argv[1])
```

```python
import sys, math, struct
from asmlib import *

NAME = "gated_mix__softmax_full_mha__moe_arch_mod__prompt"
STAMP = "-s" in sys.argv
EXP = set(x[2:] for x in sys.argv if x.startswith("-x"))
WS_KV = 0
BLK = 5120; TS = 14 * BLK; KVB = 64 * TS
WS_O = 0x480000
WS_R = 0x680000
WS_G = WS_R + 16384
WS_SEL = WS_R + 32768
WS_EP = WS_R + 40960
WS_FL = WS_R + 65536
WS_MB = WS_FL + 32768
WS_OFL = WS_MB + 32768
WS_YFL = WS_OFL + 32768
WS_F1 = WS_YFL + 4096
WS_YP = WS_R + (1 << 18)
WS_GP = 0x730000
WS_ST = 16 << 20
XS = 0; WT = 65536; WQ = 122880; QX = 151552; UPD = 159744
WO = 0; CB = 102400
UPDI = UPD + 3584
KEYS = UPD
RT = UPD + 1024
SELECTOR = 223
CNT = 163840 - 192
LDS_BYTES = 163840
C_Q1, C_Q2, C_X, C_L, C_S, C_D, C_C, C_O, C_W, C_F, C_K, C_T, C_P, C_R = 0, 4, 8, 12, 16, 20, 24, 28, 32, 36, 40, 44, 48, 64

def f32bits(x): return struct.unpack("<I", struct.pack("<f", x))[0]
QSCALE = f32bits(28 ** -0.5 * math.log2(math.e))
NLOG2E = f32bits(-math.log2(math.e))
MF = "v_mfma_f32_32x32x16_bf16"
ROLE = [0, 1, 2, 3, 14, 4, 5, 6, 7, 8, 9, 15, 10, 11, 12, 13]
ROLE_LO = sum(ROLE[i] << (4 * i) for i in range(8))
ROLE_HI = sum(ROLE[8 + i] << (4 * i) for i in range(8))
SPIN_LIMIT = 1 << 20
NQ1 = ([int(x[2:]) for x in EXP if x.startswith("nq")] + [4])[0]
WSBASE = ([int(x[2:]) for x in sys.argv if x.startswith("-w")] + [0])[0] << 20
PD = 4 if "pd4" in EXP else 2
PG = 3 if "pd4" in EXP else 6
PCD = 4 if "pcd4" in EXP else (0 if "pcd0" in EXP else 1)
KVS = 4 if "kvs4" in EXP else (0 if "kvs0" in EXP else 2)
PQ2 = 4 if "pq4" in EXP else (0 if "pq0" in EXP else 1)
PF0 = 2 if "pf2" in EXP else 0
WOP = 1 if "wo1" in EXP else (3 if "wo3" in EXP else 2)
OUTAUX = " sc1" if "outsc1" in EXP else (" nt" if "outnt" in EXP else "")

T, H, J, W, RL, ROT = 30, 31, 32, 33, 34, 3
_uid = [0]
def uid(p):
    _uid[0] += 1
    return f"{p}_{_uid[0]}"

def srd(a, d, ptr, nbytes):
    a(f"s_mov_b32 s{d}, s{ptr}\ns_mov_b32 s{d+1}, s{ptr+1}\ns_mov_b32 s{d+2}, {nbytes:#x}\ns_mov_b32 s{d+3}, 0x20000")

NST = 12
DIAG = [tuple(int(y) for y in x[2:].split("-")) for x in sys.argv if x.startswith("-d")]
def st(a, i):
    if STAMP: a(f"s_memtime s[{72+2*i}:{73+2*i}]")
    if DIAG and i in DIAG[0]: a(f"s_memrealtime s[{72+2*i}:{73+2*i}]\ns_waitcnt lgkmcnt(0)")
def st_begin(a):
    if STAMP: a("s_memrealtime s[68:69]\ns_memtime s[72:73]")
    if DIAG: a("s_memrealtime s[72:73]")
ABS = [x[2:] for x in sys.argv if x.startswith("-a")]
REL = [tuple(int(y) for y in x[2:].split("-")) for x in sys.argv if x.startswith("-r")]
if ABS:
    DIAG = [(0, 0 if ABS[0] == "z" else int(ABS[0].lstrip("m")))]
if REL:
    ABS = ["r"]; DIAG = REL
def diag_start(a):
    if not ABS: return
    a(f"""s_load_dwordx2 s[98:99], s[0:1], 80
    s_waitcnt lgkmcnt(0)
    s_cmp_ge_u32 s2, 8
    s_cbranch_scc1 L_dg0
    s_cmp_lg_u32 s{W}, 0
    s_cbranch_scc1 L_dg0
    s_lshl_b32 s70, s2, 2
    v_mov_b32 v4, s70
    v_mov_b32 v6, s72
    global_store_dword v4, v6, s[98:99] sc1
    L_dg0:""")
def diag_end(a):
    if not DIAG: return
    p, q = DIAG[0]
    if ABS:
        a(f"""s_waitcnt vmcnt(0)
        s_memrealtime s[96:97]
        s_mov_b64 exec, -1
        v_mov_b32 v4, 0
        global_load_dwordx4 v[8:11], v4, s[98:99] sc1
        global_load_dwordx4 v[12:15], v4, s[98:99] offset:16 sc1
        s_waitcnt vmcnt(0) lgkmcnt(0)
        v_min3_u32 v8, v8, v9, v10
        v_min3_u32 v8, v8, v11, v12
        v_min3_u32 v8, v8, v13, v14
        v_min_u32 v8, v8, v15
        s_nop 1
        v_readfirstlane_b32 s69, v8
        s_sub_u32 s70, s{72+2*q}, s69""")
        if ABS[0] == "z": a("s_mov_b32 s70, 0")
        if REL: a(f"s_sub_u32 s70, s{72+2*q}, s{72+2*p}\ns_lshl_b32 s70, s70, 2")
        if ABS[0].startswith("m"): a("s_sub_u32 s70, 2500, s70")
        a("s_add_u32 s70, s70, s69\ns_add_u32 s70, s70, 2500")
    else:
        a(f"""s_waitcnt vmcnt(0)
        s_memrealtime s[96:97]
        s_waitcnt lgkmcnt(0)
        s_sub_u32 s70, s{72+2*q}, s{72+2*p}
        s_add_u32 s70, s70, s96""")
    a(f"""L_diag:
    s_memrealtime s[68:69]
    s_waitcnt lgkmcnt(0)
    s_sub_u32 s71, s68, s70
    s_cmp_lt_i32 s71, 0
    s_cbranch_scc1 L_diag""")
def st_init(a):
    if STAMP:
        for i in range(1, NST): a(f"s_mov_b32 s{72+2*i}, s72")
def st_end(a):
    if not STAMP: return
    a(f"""s_waitcnt vmcnt(0)
    s_memrealtime s[70:71]
    s_memtime s[{72+2*NST}:{73+2*NST}]
    s_getreg_b32 s66, hwreg(HW_REG_HW_ID)
    s_getreg_b32 s67, hwreg(HW_REG_XCC_ID)
    s_mov_b64 exec, -1
    s_lshl_b32 s65, s2, 3
    s_add_u32 s65, s65, s{W}
    s_lshl_b32 s65, s65, 6
    s_add_u32 s65, s65, {WS_ST}
    s_waitcnt lgkmcnt(0)
    v_mov_b32 v4, s68
    v_mov_b32 v5, s70
    v_mov_b32 v6, s66
    v_mov_b32 v7, s67""")
    for i in range(1, NST + 1):
        a(f"s_sub_u32 s64, s{72+2*i}, s72\nv_mov_b32 v{7+i}, s64")
    a("v_mov_b32 v2, 0\ns_mov_b64 exec, 1")
    for k in range(4):
        a(f"buffer_store_dwordx4 v[{4+4*k}:{7+4*k}], v2, s[8:11], s65 offen offset:{16*k}")

def poll_global(a, vdst, voff, soff, mask=None, sleep=1):
    l = uid("Lpoll"); d = uid("Lpd")
    a(f"s_mov_b32 s60, {SPIN_LIMIT}")
    if mask is not None: a(f"s_mov_b64 exec, {mask}")
    a(f"""{l}:
    buffer_load_dword v{vdst}, v{voff}, s[8:11], {soff} offen sc1
    s_waitcnt vmcnt(0)
    v_cmp_ne_u32 vcc, s{T}, v{vdst}
    s_cbranch_vccz {d}
    s_mov_b64 exec, vcc
    s_sleep {sleep}
    s_sub_u32 s60, s60, 1
    s_cbranch_scc0 {l}
    s_endpgm
    {d}:
    s_mov_b64 exec, -1""")

def poll_atomic(a, vdst, voff, soff, mask, sleep):
    l = uid("Lpa"); d = uid("Lpad")
    a(f"""s_mov_b32 s60, {SPIN_LIMIT}
    s_mov_b64 exec, {mask}
    {l}:
    v_mov_b32 v{vdst}, 0
    buffer_atomic_or v{vdst}, v{voff}, s[8:11], {soff} offen sc0 sc1
    s_waitcnt vmcnt(0)
    v_cmp_ne_u32 vcc, s{T}, v{vdst}
    s_cbranch_vccz {d}
    s_sleep {sleep}
    s_sub_u32 s60, s60, 1
    s_cbranch_scc0 {l}
    s_endpgm
    {d}:
    s_mov_b64 exec, -1""")

def poll_pipe(a, v0, voff, soff, mask, D=4, gap=3):
    l = uid("Lpp"); d = uid("Lppd")
    at = lambda r: f"v_mov_b32 v{r}, 0\nbuffer_atomic_or v{r}, v{voff}, s[8:11], {soff} offen sc0 sc1"
    a(f"s_mov_b32 s60, {SPIN_LIMIT}\ns_mov_b64 exec, {mask}")
    for i in range(D - 1): a(at(v0 + i) + f"\ns_sleep {gap}")
    a(f"{l}:")
    for i in range(D):
        a(at(v0 + (i + D - 1) % D))
        a(f"s_waitcnt vmcnt({D-1})\nv_cmp_ne_u32 vcc, s{T}, v{v0+i}\ns_cbranch_vccz {d}")
    a(f"""s_sub_u32 s60, s60, 1
    s_cbranch_scc0 {l}
    s_endpgm
    {d}:
    s_mov_b64 exec, -1""")

def signal(a, vt, voff, soff, mask):
    a(f"v_mov_b32 v{vt}, s{T}\ns_mov_b64 exec, {mask}\nbuffer_atomic_swap v{vt}, v{voff}, s[8:11], {soff} offen sc1\ns_mov_b64 exec, -1")

def spin_lds(a, vaddr, off, want, vt, sleep=0):
    l = uid("Lsp"); d = uid("Lsd")
    a(f"""s_mov_b32 s60, {SPIN_LIMIT}
    {l}:
    ds_read_b32 v{vt}, v{vaddr} offset:{off}
    s_waitcnt lgkmcnt(0)
    v_readfirstlane_b32 s61, v{vt}
    s_cmp_ge_u32 s61, {want}
    s_cbranch_scc1 {d}""")
    if sleep: a(f"s_sleep {sleep}")
    a(f"""s_sub_u32 s60, s60, 1
    s_cbranch_scc0 {l}
    s_endpgm
    {d}:""")

def lds_inc(a, vaddr, off, vone):
    a(f"s_mov_b64 exec, 1\nds_add_u32 v{vaddr}, v{vone} offset:{off}\ns_mov_b64 exec, -1")

def flag_store(a, vt, vz, soff):
    a(f"v_mov_b32 v{vt}, s{T}\ns_mov_b64 exec, 1\nbuffer_store_dword v{vt}, v{vz}, s[8:11], {soff} offen sc1\ns_mov_b64 exec, -1")

def split_neg_max(a, m, t0, t1, q6, q7):
    a(f"""v_sub_f32 v{m}, 0, v{m}
    v_cvt_pk_bf16_f32 v{t0}, v{m}, v{m}
    v_lshlrev_b32 v{t0}, 16, v{t0}
    v_sub_f32 v{t0}, v{m}, v{t0}
    v_cvt_pk_bf16_f32 v{t1}, v{m}, v{t0}
    v_and_b32 v{m}, 0xffff0000, v{t1}
    v_sub_f32 v{t0}, v{t0}, v{m}
    s_mov_b32 exec_lo, 0
    v_mov_b32 v{q6}, v{t1}
    v_cvt_pk_bf16_f32 v{q7}, v{t0}, 0
    s_mov_b32 exec_lo, -1""")

def max16_list(dst, S, init=False):
    if not init:
        return ([f"v_max3_f32 v{dst}, v{S}, v{S+1}, v{S+2}"] +
                [f"v_max3_f32 v{dst}, v{dst}, v{S+i}, v{S+i+1}" for i in range(3, 15, 2)] +
                [f"v_max_f32 v{dst}, v{dst}, v{S+15}"])
    return [f"v_max3_f32 v{dst}, v{dst}, v{S+i}, v{S+i+1}" for i in range(0, 16, 2)]

def wave_min_u32(a, v, full=True):
    for r in (1, 2, 4, 8):
        a(f"v_min_u32_dpp v{v}, v{v}, v{v} row_ror:{r} row_mask:0xf bank_mask:0xf")
    a(f"v_min_u32_dpp v{v}, v{v}, v{v} row_bcast:15 row_mask:0xa bank_mask:0xf")
    if full: a(f"v_min_u32_dpp v{v}, v{v}, v{v} row_bcast:31 row_mask:0xc bank_mask:0xf")

def tag(a):
    a(f"s_mul_i32 s{T}, s{T}, 0x9e3779b1\ns_add_u32 s{T}, s{T}, 0x7f4a7c15")

def next_chunk(a, s):
    a(f"s_add_u32 s{s}, s{s}, 1\ns_cmp_eq_u32 s{s}, 7\ns_cselect_b32 s{s}, 0, s{s}")

Q, O, KV, S, P = 8, 40, 104, 168, 200
XF = 104; A0, A1, WF = 40, 56, 72
VX = 216; VW = 220; VQ = 222; VC = 223; V1 = 224; VZ = 225; VT = 226; VH = 227
VA = 228; TMP = 232; XR = 240; GR = 248; VWQ = 250; VF = 251; VFS = 252; VXO = 253; VGO = 254
OWN = 3
L = 35

def prologue_and_loader(a):
    MAPCODE = ""
    if "map2" in EXP:
        MAPCODE = f"s_and_b32 s26, s25, 1\ns_lshl1_add_u32 s{H}, s24, s26\ns_lshr_b32 s{J}, s25, 1\ns_lshl1_add_u32 s{ROT}, s26, s{J}\ns_add_u32 s{ROT}, s{ROT}, s24\ns_and_b32 s{ROT}, s{ROT}, 3\ns_lshl_b32 s{ROT}, s{ROT}, 1"
        if "norot" in EXP: MAPCODE += f"\ns_mov_b32 s{ROT}, 0"
    TADDR = "v_lshl_add_u32 v8, v3, 7, s58"
    if "t64" in EXP: TADDR = "v_and_b32 v8, 60, v3\nv_lshl_add_u32 v8, v8, 4, s58\nv_add_u32 v8, v8, v1"
    if "rot7" in EXP:
        ROTCODE = f"s_lshl1_add_u32 s{ROT}, s27, s26\ns_cmp_ge_u32 s{ROT}, 7\ns_cselect_b32 s26, 7, 0\ns_sub_u32 s{ROT}, s{ROT}, s26"
    elif "rot2" not in EXP and "norot" not in EXP and "rot23" not in EXP:
        ROTCODE = f"s_add_u32 s{ROT}, s27, s26\ns_and_b32 s{ROT}, s{ROT}, 3\ns_lshl_b32 s{ROT}, s{ROT}, 1"
    elif "norot" in EXP:
        ROTCODE = f"s_mov_b32 s{ROT}, 0"
    elif "rot23" in EXP:
        ROTCODE = f"s_add_u32 s{ROT}, s27, s26\ns_and_b32 s{ROT}, s{ROT}, 1\ns_mul_i32 s{ROT}, s{ROT}, 3"
    else:
        ROTCODE = f"s_add_u32 s{ROT}, s27, s26\ns_and_b32 s{ROT}, s{ROT}, 1\ns_lshl_b32 s{ROT}, s{ROT}, 2"
    st_begin(a)
    a(f"""s_load_dwordx4 s[4:7], s[0:1], 0
    s_load_dwordx2 s[36:37], s[0:1], 88
    s_load_dwordx2 s[38:39], s[0:1], 16
    s_load_dwordx8 s[40:47], s[0:1], 32
    s_load_dwordx4 s[48:51], s[0:1], 64
    s_cmp_ge_u32 s2, 256
    s_cbranch_scc1 L_exit
    v_lshrrev_b32 v2, 6, v0
    v_and_b32 v3, 63, v0
    s_and_b32 s24, s2, 7
    s_lshr_b32 s25, s2, 3
    v_readfirstlane_b32 s{W}, v2
    s_and_b32 s{H}, s24, 1
    s_lshl_b32 s{H}, s{H}, 3
    s_and_b32 s26, s25, 7
    s_add_u32 s{H}, s{H}, s26
    s_lshr_b32 s27, s25, 3
    s_and_b32 s{J}, s24, 6
    s_lshl1_add_u32 s{J}, s{J}, s27
    {ROTCODE}
    {MAPCODE}
    s_mov_b32 s28, {ROLE_LO:#x}
    s_mov_b32 s29, {ROLE_HI:#x}
    s_lshl_b32 s27, s{H}, 2
    s_lshr_b64 s[28:29], s[28:29], s27
    s_and_b32 s{RL}, s28, 15
    v_lshlrev_b32 v1, 4, v3
    s_mov_b32 s27, {WS_EP}
    s_cmp_lt_u32 s{W}, 4
    s_cbranch_scc1 L_main
    """)
    a(f"""s_setprio 2
    s_sub_u32 s{L}, s{W}, 4
    v_lshrrev_b32 v4, 3, v3
    v_mul_u32_u24 v5, 896, v4
    v_and_b32 v6, 7, v3
    v_lshrrev_b32 v7, 4, v3
    v_xor_b32 v7, v6, v7
    v_lshl_add_u32 v10, v7, 4, v5
    v_xor_b32 v11, 64, v10
    v_add_u32 v12, {2*6144}, v10
    v_add_u32 v13, {3*6144}, v11
    v_add_u32 v11, 6144, v11
    v_mul_u32_u24 v5, 2688, v4
    v_and_b32 v4, 2, v4
    v_lshlrev_b32 v4, 1, v4
    v_xor_b32 v4, v4, v6
    v_lshl_add_u32 v14, v4, 4, v5
    v_add_u32 v15, {8*2688-1024}, v14
    s_lshl2_add_u32 s52, s{J}, s{L}
    s_mul_i32 s58, s52, 14
    s_add_u32 s58, s58, s{RL}
    s_mul_i32 s58, s58, {BLK}
    {TADDR}
    s_mul_i32 s52, s52, {32*896}
    s_lshl_b32 s53, s{RL}, 7
    s_mul_i32 s26, s{L}, {16*2688}
    s_add_u32 s53, s53, s26
    s_add_u32 s53, s53, 896
    s_lshl_b32 s54, s{L}, 12
    s_lshl_b32 s55, s{L}, 11
    s_add_u32 s55, s55, {WT}
    s_mov_b32 s56, s{ROT}
    s_mov_b32 s57, 0
    s_mov_b32 s14, {2048*896}
    s_mov_b32 s15, 0x20000
    s_cmp_ge_u32 s{RL}, 14
    s_cselect_b32 s18, 0, {448*2688}
    s_mov_b32 s19, 0x20000
    s_waitcnt lgkmcnt(0)
    s_mov_b64 s[12:13], s[4:5]
    s_mov_b64 s[16:17], s[6:7]
    s_load_dword s{T}, s[36:37], s27""")
    st_init(a); st(a, 1)
    if "notouch" not in EXP:
        if "t64" in EXP:
            a(f"""s_cbranch_scc1 L_ld
            global_store_dwordx4 v8, v[10:13], s[36:37] sc1
            global_store_dwordx4 v8, v[10:13], s[36:37] offset:2048 sc1""")
        else: a(f"""s_cbranch_scc1 L_ld
        s_cmp_ge_u32 s{RL}, 7
        s_cselect_b32 exec_hi, 1, 0xff
        global_store_dword v8, v8, s[36:37] sc1
        s_mov_b32 exec_hi, -1""")
    a(f"""L_ld:
    s_mul_i32 s26, s56, {64*2688}
    s_mov_b32 m0, s55
    s_add_u32 s26, s26, s53
    s_lshl_b32 s28, s56, 7
    buffer_load_dwordx4 v14, s[16:19], s26 offen lds
    buffer_load_dwordx4 v15, s[16:19], s26 offen offset:1024 lds
    s_mov_b32 m0, s54
    s_add_u32 s28, s28, s52
    buffer_load_dwordx4 v10, s[12:15], s28 offen lds
    buffer_load_dwordx4 v11, s[12:15], s28 offen offset:1024 lds
    buffer_load_dwordx4 v12, s[12:15], s28 offen offset:2048 lds
    buffer_load_dwordx4 v13, s[12:15], s28 offen offset:3072 lds
    s_add_u32 s55, s55, 8192
    s_add_u32 s54, s54, 16384
    s_and_b32 s54, s54, 0xffff""")
    next_chunk(a, 56)
    if "tlb" in EXP:
        a(f"s_or_b32 s26, s57, s{L}\ns_cbranch_scc0 L_tlb\nL_tlb_done:")
    a(f"""s_add_u32 s57, s57, 1
    s_cmp_lt_u32 s57, 3
    s_cbranch_scc1 L_ld
    s_waitcnt vmcnt(12)
    s_barrier
    s_cmp_lt_u32 s57, 7
    s_cbranch_scc1 L_ld
    """)
    a(f"""v_lshrrev_b32 v4, 2, v3
    v_mul_u32_u24 v4, 2688, v4
    v_and_b32 v5, 3, v3
    v_lshl_add_u32 v16, v5, 4, v4
    s_mov_b32 s18, {448*2688}
    s_mul_i32 s53, s{H}, 56
    s_and_b32 s53, s53, 0xfffffff0
    s_mul_i32 s26, s{L}, {16*2688}
    s_add_u32 s53, s53, s26
    s_lshl_b32 s55, s{L}, 10
    s_add_u32 s55, s55, {WQ}""")
    for i in range(NQ1):
        a(f"""s_mul_i32 s26, s56, {64*2688}
        s_add_u32 m0, s55, {i*4096}
        s_add_u32 s26, s26, s53
        buffer_load_dwordx4 v16, s[16:19], s26 offen lds""")
        if i < NQ1 - 1: next_chunk(a, 56)
        if i == 1: a("s_waitcnt vmcnt(8)\ns_barrier")
        if i == 3: a("s_waitcnt vmcnt(4)\ns_barrier")
    st(a, 2)
    a("s_branch L_service")
    if "tlb" in EXP:
        a("L_tlb:")
        if "tlbR" in EXP: a(f"s_cmp_lt_u32 s{RL}, 14\ns_cbranch_scc1 L_tlb_done")
        for off in (0, 2 << 20, 4 << 20):
            a(f"s_mov_b32 s26, {off + 4032}\ns_load_dword s66, s[36:37], s26")
        for p in (42, 44, 38, 46, 50):
            a(f"s_load_dword s66, s[{p}:{p+1}], 0")
        a("s_branch L_tlb_done")

def main_wave(a):
    a.label("L_main")
    diag_start(a)
    if "nocodepf" not in EXP:
        a(f"""s_cmp_lg_u32 s{W}, 0
        s_cbranch_scc1 L_nopf
        s_getpc_b64 s[28:29]
        L_pc:
        s_and_b32 s26, s25, 3
        s_lshl_b32 s26, s26, 13
        v_lshl_add_u32 v4, v3, 7, s26
        v_min_u32 v4, L_code_end-L_pc, v4
        global_load_dword v5, v4, s[28:29]
        L_nopf:""")
    a(f"""s_setprio 1
    v_and_b32 v{VT}, 31, v3
    v_lshrrev_b32 v{VH}, 5, v3
    v_mov_b32 v{V1}, 1
    v_mov_b32 v{VZ}, 0
    v_mov_b32 v{VC}, {CNT}
    v_lshrrev_b32 v4, 2, v1
    v_add_u32 v4, {UPDI}, v4
    v_mov_b32 v6, -1
    s_mov_b32 exec_hi, 0
    ds_write_b32 v4, v6
    v_and_b32 v6, 7, v3
    v_cmp_eq_u32 vcc, 4, v6
    v_mov_b32 v7, {KVB+1}
    v_cndmask_b32 v6, 0, v7, vcc
    ds_write_b32 v4, v6 offset:{CNT-UPDI+C_R}
    s_mov_b32 exec_lo, 0xffff
    ds_write_b32 v4, v{VZ} offset:{CNT-UPDI}
    s_mov_b64 exec, -1
    v_lshrrev_b32 v4, 1, v{VT}
    v_and_b32 v4, 7, v4
    v_xor_b32 v4, v4, v{VH}
    v_lshlrev_b32 v4, 4, v4
    v_lshl_add_u32 v4, v{VT}, 7, v4
    s_lshl_b32 s26, s{W}, 12
    v_add_u32 v{VX}, s26, v4
    v_xor_b32 v{VX+1}, 32, v{VX}
    v_xor_b32 v{VX+2}, 64, v{VX}
    v_xor_b32 v{VX+3}, 96, v{VX}
    v_bfe_u32 v4, v3, 2, 2
    v_lshl_add_u32 v12, v{VH}, 3, v4
    v_and_b32 v6, 3, v3
    v_and_b32 v7, 1, v3
    v_bfe_u32 v8, v3, 1, 1
    v_lshl_add_u32 v7, v7, 1, v8
    v_bfe_u32 v8, v3, 4, 1
    v_lshl_add_u32 v9, v8, 2, v7
    v_lshl_add_u32 v10, v8, 2, v6
    s_cmp_lt_u32 s{RL}, 7
    s_cselect_b64 vcc, -1, 0
    v_cndmask_b32 v10, v10, v9, vcc
    v_lshlrev_b32 v11, 7, v12
    v_lshl_add_u32 v11, v10, 3, v11
    v_lshrrev_b32 v4, 1, v4
    v_lshl_add_u32 v11, v4, 6, v11
    v_add_u32 v{VW}, {WT}, v11
    v_xor_b32 v{VW+1}, 64, v{VW}
    v_add_u32 v10, 2, v9
    v_sub_u32 v11, 7, v9
    v_cmp_gt_u32 vcc, 6, v9
    v_cndmask_b32 v10, v11, v10, vcc
    s_bitcmp1_b32 s{H}, 0
    s_cselect_b64 vcc, -1, 0
    v_cndmask_b32 v10, v9, v10, vcc
    v_lshlrev_b32 v11, 6, v12
    v_lshl_add_u32 v11, v10, 3, v11
    v_add_u32 v{VQ}, {WQ}, v11
    v_lshrrev_b32 v4, 2, v3
    v_mul_u32_u24 v4, 2688, v4
    v_lshl_add_u32 v{VWQ}, v6, 4, v4
    s_cmp_ge_u32 s{RL}, 7
    s_cselect_b32 s26, 7, 0
    s_cselect_b32 s29, 2, 0
    s_sub_u32 s26, s{RL}, s26
    s_mul_i32 s28, s26, {64*2341}
    s_lshr_b32 s28, s28, 16
    v_add_u32 v4, s28, v6
    v_mul_u32_u24 v7, 28, v4
    v_lshrrev_b32 v7, 6, v7
    v_cmp_ge_u32 s[64:65], s26, v7
    v_cmp_ne_u32 vcc, s26, v7
    s_and_b32 s28, s{J}, 12
    s_add_u32 s29, s28, s29
    v_mov_b32 v7, s29
    v_addc_co_u32 v7, vcc, 0, v7, vcc
    s_and_b32 s28, s{J}, 3
    v_lshl_add_u32 v4, v4, 2, s28
    v_bfe_u32 v8, v3, 2, 2
    v_lshl_add_u32 v4, v4, 2, v8
    v_lshlrev_b32 v4, 7, v4
    v_lshl_add_u32 v{VFS}, v7, 2, v4
    s_and_b32 s64, s64, 0xffff
    s_cmp_ge_u32 s{RL}, 14
    s_cselect_b32 s64, 0, s64
    s_mov_b32 s65, 0
    s_lshl_b32 s28, s{W}, 5
    v_add_u32 v{VF}, s28, v{VC}
    s_lshl_b32 s28, s{J}, 2
    s_lshr_b32 s58, s{H}, 2
    s_add_u32 s58, s58, s28
    s_and_b32 s59, s{H}, 3
    s_lshl2_add_u32 s59, s59, s{W}
    s_mul_i32 s59, s59, 56
    s_lshl_b32 s28, s58, 5
    v_add_u32 v4, s28, v{VT}
    v_mul_u32_u24 v{VXO}, 896, v4
    v_lshl_add_u32 v{VXO}, v{VH}, 4, v{VXO}
    v_lshlrev_b32 v{VGO}, 3, v4
    s_waitcnt lgkmcnt(0)
    """)
    st_init(a)
    srd(a, 8, 36, (1 << 28) - WSBASE)
    srd(a, 16, 6, 448 * 2688)
    srd(a, 12, 4, 2048 * 896)
    if "nowqpf" not in EXP:
        a(f"""s_cmp_lg_u32 s{W}, 1
        s_cbranch_scc1 L_nopf2
        v_lshrrev_b32 v4, 2, v3
        v_min_u32 v4, 13, v4
        v_mul_u32_u24 v4, 2688, v4
        v_and_b32 v6, 3, v3
        v_lshl_add_u32 v4, v6, 7, v4
        s_mul_i32 s26, s25, {14*2688}
        s_and_b32 s28, s24, 1
        s_mul_i32 s28, s28, 384
        s_add_u32 s26, s26, s28
        buffer_load_dword v5, v4, s[16:19], s26 offen
        L_nopf2:""")
    if "wopfS" in EXP:
        srd(a, 20, 38, 448 * 896)
        a(f"""s_cmp_lg_u32 s{W}, 2
        s_cbranch_scc1 L_nopf3
        s_mul_i32 s26, s2, {13*128}
        v_lshl_add_u32 v4, v3, 7, s26
        s_mov_b64 exec, 0x1fff
        buffer_load_dword v5, v4, s[20:23], 0 offen
        s_mov_b64 exec, -1
        L_nopf3:""")
    a(f"""s_mul_i32 s62, s{H}, 56
    s_and_b32 s62, s62, 0xfffffff0
    s_mul_i32 s26, s{W}, {16*2688}
    s_add_u32 s62, s62, s26
    s_lshl_b32 s63, s{W}, 10
    s_add_u32 s63, s63, {WQ}
    s_lshl2_add_u32 s35, s{J}, s{W}
    s_mul_i32 s52, s35, 14
    s_add_u32 s52, s52, s{RL}
    s_mul_i32 s52, s52, {BLK}
    s_add_u32 s53, s52, 4096
    s_lshr_b32 s26, s{H}, 1
    s_mul_i32 s26, s26, 7
    s_and_b32 s28, s{H}, 1
    s_lshl2_add_u32 s29, s28, s26
    v_add_u32 v4, s29, v{VH}
    v_lshrrev_b32 v6, 3, v4
    v_mul_u32_u24 v6, {BLK-4096}, v6
    v_lshl_add_u32 v6, v4, 9, v6
    v_lshl_add_u32 v{VA}, v{VT}, 4, v6
    v_add_u32 v4, 2, v4
    v_lshrrev_b32 v6, 3, v4
    v_mul_u32_u24 v6, {BLK-4096}, v6
    v_lshl_add_u32 v6, v4, 9, v6
    s_add_u32 s26, s26, 3
    s_lshr_b32 s29, s26, 3
    s_mul_i32 s29, s29, {BLK}
    s_and_b32 s26, s26, 1
    s_lshl_b32 s26, s26, 9
    s_add_u32 s29, s29, s26
    s_add_u32 s29, s29, 4096
    v_mov_b32 v7, s29
    v_and_b32 v4, s28, v{VH}
    v_cmp_eq_u32 vcc, 1, v4
    v_cndmask_b32 v6, v6, v7, vcc
    v_lshl_add_u32 v{VA+1}, v{VT}, 4, v6
    s_mul_i32 s26, s{H}, 28
    v_add_u32 v4, s26, v{VT}
    v_lshrrev_b32 v6, 6, v4
    v_mul_u32_u24 v6, {BLK}, v6
    v_bfe_u32 v7, v4, 5, 1
    v_lshl_add_u32 v6, v7, 11, v6
    v_and_b32 v4, 31, v4
    v_lshl_add_u32 v6, v4, 4, v6
    v_lshl_add_u32 v6, v{VH}, 9, v6
    v_add_u32 v6, {7*BLK}, v6
    v_add_u32 v8, 1024, v6
    s_lshr_b32 s26, s26, 6
    s_mul_i32 s26, s26, {BLK}
    s_add_u32 s26, s26, {7*BLK + 4096 - 28*16}
    v_lshl_add_u32 v7, v{VT}, 4, s26
    v_cmp_le_u32 vcc, 28, v{VT}
    v_cndmask_b32 v{VA+2}, v6, v7, vcc
    v_cndmask_b32 v{VA+3}, v8, v7, vcc
    s_cmp_ge_u32 s{RL}, 14
    s_cbranch_scc1 L_roleR
    s_cmp_ge_u32 s{RL}, 7
    s_cbranch_scc1 L_roleV""")

    def gemm(kind):
        if "twait" in EXP:
            st(a, 10); a("s_waitcnt vmcnt(0)"); st(a, 11)
        def reads(c, s):
            k = 4 * c + s
            a(f"ds_read_b128 {vr(XF+4*k,4)}, v{VX+s} offset:{(c&3)*16384}")
            f = WF + 8 * s
            if kind == "R":
                a(f"ds_read_b128 {vr(f,4)}, v{VW} offset:{k*32}")
            else:
                for n in range(2):
                    a(f"ds_read_b64_tr_b16 {vr(f+4*n,2)}, v{VW+n} offset:{k*2048}")
                    a(f"ds_read_b64_tr_b16 {vr(f+4*n+2,2)}, v{VW+n} offset:{k*2048+512}")
        def mfmas(c, s):
            k = 4 * c + s
            f = WF + 8 * s
            for n in range(1 if kind == "R" else 2):
                acc = (A0, A1)[n]
                cc = "0" if k == 0 else vr(acc, 16)
                if kind == "V": a(f"{MF} {vr(acc,16)}, {vr(XF+4*k,4)}, {vr(f+4*n,4)}, {cc}")
                else:           a(f"{MF} {vr(acc,16)}, {vr(f+4*n,4)}, {vr(XF+4*k,4)}, {cc}")
        per = 2 if kind == "R" else 5
        for c in range(7):
            a("s_barrier")
            if c == 0: st(a, 1)
            if c == 6: st(a, 2)
            if STAMP and c in (0, 6): a("s_waitcnt lgkmcnt(0)")
            reads(c, 0); reads(c, 1)
            for s in range(4):
                if s < 2: reads(c, s + 2)
                a(f"s_waitcnt lgkmcnt({min(3 - s, 2) * per})")
                mfmas(c, s)

    PK = 8
    MS = 20
    a(f"""v_add_u32 v4, s{RL}, v{VH}""")
    for i in range(4):
        a(f"""v_cmp_eq_u32 vcc, {3-2*i}, v4
        v_cmp_eq_u32 s[{MS+2*i}:{MS+1+2*i}], {10-2*i}, v4
        s_or_b64 s[{MS+2*i}:{MS+1+2*i}], s[{MS+2*i}:{MS+1+2*i}], vcc""")
    a(f"v_mov_b32 v{TMP+2}, 0x3f803f80\nv_mov_b32 v{TMP+3}, 0x3f803f80")
    gemm("K")
    for i in range(4):
        acc = (A0, A1)[i >> 1] + 8 * (i & 1)
        p = PK + 4 * i
        for e in range(4): a(f"v_cvt_pk_bf16_f32 v{p+e}, v{acc+2*e}, v{acc+2*e+1}")
        l = uid("Lnosh")
        a(f"""s_mov_b64 exec, s[{MS+2*i}:{MS+1+2*i}]
        s_cbranch_execz {l}
        v_mov_b32 v{TMP}, v{p+2}
        v_mov_b32 v{TMP+1}, v{p+3}
        v_mov_b32 v{p+2}, 0x3f803f80
        v_mov_b32 v{p+3}, 0x3f803f80
        buffer_store_dwordx4 {vr(TMP,4)}, v1, s[8:11], s53 offen sc1
        s_nop 1
        {l}:
        s_mov_b64 exec, -1
        buffer_store_dwordx4 {vr(p,4)}, v1, s[8:11], s52 offen offset:{1024*i} sc1""")
    a("s_branch L_pub")
    a.label("L_roleR")
    if "pfx" in EXP:
        C0 = 1 if "pf1" in EXP else 2
        a(f"""v_mul_u32_u24 v4, 896, v{VT}
        v_lshl_add_u32 v4, v{VH}, 7, v4
        s_mul_i32 s26, s35, {32*896}
        v_lshrrev_b32 v6, 3, v{VT}
        v_mul_u32_u24 v6, 2688, v6
        v_and_b32 v7, 7, v3
        v_min_u32 v7, 6, v7
        v_lshl_add_u32 v6, v7, 7, v6
        v_mul_u32_u24 v7, {64*2688}, v{VH}
        v_add_u32 v6, v6, v7
        s_and_b32 s28, s35, 15
        s_mul_i32 s28, s28, {4*2688}
        s_and_b32 s29, s24, 1
        s_mul_i32 s29, s29, 896
        s_add_u32 s28, s28, s29
        s_add_u32 s28, s28, {896 + C0*64*2688}""")
        for c in range(C0, 7, 2):
            if c == 6: a("s_mov_b32 exec_hi, 0")
            a(f"""buffer_load_dword v5, v4, s[12:15], s26 offen offset:{128*c}
            buffer_load_dword v5, v6, s[16:19], s28 offen
            s_add_u32 s28, s28, {128*2688}""")
        a("s_mov_b64 exec, -1")
    srd(a, 20, 40, 896)
    a(f"""s_lshl_b32 s28, s{ROT}, 7
    v_add_u32 v4, s28, v1
    v_subrev_u32 v6, 896, v4
    v_min_u32 v4, v4, v6
    s_mov_b32 m0, {RT}
    s_nop 0
    buffer_load_dwordx4 v4, s[20:23], 0 offen lds
    s_mov_b32 s20, s48
    s_mov_b32 s21, s49
    s_mov_b32 m0, {RT+1024}
    s_nop 0
    buffer_load_dwordx4 v4, s[20:23], 0 offen lds
    v_and_b32 v4, 1, v3
    v_lshlrev_b32 v4, 10, v4
    v_lshl_add_u32 v4, v{VH}, 4, v4
    v_add_u32 v{VW}, {RT}, v4
    s_waitcnt vmcnt(0)""")
    gemm("R")
    a(f"""s_cmp_lg_u32 s{RL}, 14
    s_cbranch_scc1 L_pub
    s_mov_b32 exec_hi, 0
    s_nop 9
    v_cvt_pk_bf16_f32 v4, v{A0}, v{A0+1}
    v_and_b32 v5, 0xffff0000, v4
    v_lshlrev_b32 v4, 16, v4
    v_ashrrev_i32 v6, 31, v4
    v_or_b32 v6, 0x80000000, v6
    v_xor_b32 v6, v6, v4
    v_and_b32 v6, 0xffff0000, v6
    v_cmp_u_f32 vcc, v4, v4
    v_cndmask_b32 v6, v6, 0, vcc
    s_lshl_b32 s26, s35, 5
    v_add_u32 v7, s26, v{VT}
    v_sub_u32 v8, 0xffff, v7
    v_or_b32 v6, v6, v8
    v_lshlrev_b32 v9, 3, v7
    v_and_b32 v7, 127, v7
    v_lshlrev_b32 v7, 2, v7
    v_add_u32 v7, {KEYS}, v7
    ds_write_b32 v7, v6
    s_mov_b32 exec_lo, 1
    ds_add_u32 v{VC}, v{V1} offset:{C_K}
    s_mov_b32 exec_lo, -1
    v_mul_f32 v5, {NLOG2E:#x}, v5
    v_exp_f32 v5, v5
    v_add_f32 v5, 1.0, v5
    v_rcp_f32 v5, v5
    v_cvt_pk_bf16_f32 v5, v5, v5
    v_lshlrev_b32 v10, 16, v5
    s_mov_b32 exec_hi, -1
    s_branch L_pub
    """)
    a.label("L_roleV")
    a(f"""v_cmp_eq_u32 vcc, 0, v3
    v_mov_b32 v7, 0x3f803f80
    v_cndmask_b32 v{TMP}, 0, v7, vcc""")
    for e in range(1, 4): a(f"v_mov_b32 v{TMP+e}, v{TMP}")
    gemm("V")
    a(f"s_mov_b64 exec, 0xff\nbuffer_store_dwordx4 {vr(TMP,4)}, v1, s[8:11], s53 offen sc1\ns_mov_b64 exec, -1")
    for i in range(4):
        acc = (A0, A1)[i >> 1] + 8 * (i & 1)
        p = PK + 4 * i
        for e in range(4): a(f"v_cvt_pk_bf16_f32 v{p+e}, v{acc+2*e}, v{acc+2*e+1}")
        a(f"buffer_store_dwordx4 {vr(p,4)}, v1, s[8:11], s52 offen offset:{1024*i} sc1")
    a.label("L_pub")
    st(a, 3)
    a(f"s_add_u32 s56, s{ROT}, {NQ1}\ns_cmp_ge_u32 s56, 7\ns_cselect_b32 s26, 7, 0\ns_sub_u32 s56, s56, s26")
    for i in range(NQ1, 7):
        a(f"""s_mul_i32 s26, s56, {64*2688}
        s_add_u32 m0, s63, {i*4096}
        s_add_u32 s26, s26, s62
        buffer_load_dwordx4 v{VWQ}, s[16:19], s26 offen lds""")
        if i < 6: next_chunk(a, 56)
    QO = Q + 8 * OWN
    SK = TMP
    a(f"""s_mov_b64 s[16:17], s[36:37]
    s_mov_b32 s18, {KVB}
    s_mov_b32 s57, 0""")
    def ldK(b, soff, base=None):
        r = KV + 16 * b if base is None else base
        return [f"buffer_load_dwordx4 {vr(r,4)}, v{VA}, s[16:19], {soff} offen sc1",
                f"buffer_load_dwordx4 {vr(r+4,4)}, v{VA+1}, s[16:19], {soff} offen sc1"]
    def ldV(b, soff):
        return [f"buffer_load_dwordx4 {vr(KV+16*b+8,4)}, v{VA+2}, s[16:19], {soff} offen sc1",
                f"buffer_load_dwordx4 {vr(KV+16*b+12,4)}, v{VA+3}, s[16:19], {soff} offen sc1"]
    def try_loads(block=False):
        d = uid("Ltl"); l = uid("Ltr")
        a(f"s_cmp_lg_u32 s57, 0\ns_cbranch_scc1 {d}")
        if block: a(f"s_mov_b32 s60, {SPIN_LIMIT}\n{l}:\ns_sub_u32 s60, s60, 1\ns_cbranch_scc1 L_exit")
        a(f"""ds_read_b32 v4, v{VF} offset:{C_R}
        ds_read_b32 v5, v{VC} offset:{C_R}
        s_waitcnt lgkmcnt(0)
        v_readfirstlane_b32 s56, v4
        v_readfirstlane_b32 s29, v5
        s_min_u32 s57, s56, s29
        s_cmp_eq_u32 s57, 0
        s_cbranch_scc1 {l if block else d}
        s_sub_u32 s29, s29, 1
        s_sub_u32 s27, s56, 1
        s_add_u32 s54, s56, {TS-1}
        s_add_u32 s55, s56, {2*TS-1}
        s_add_u32 s56, s56, {3*TS-1}""")
        st(a, 6)
        for x in ldK(0, "s29", SK) + ldK(0, "s27") + ldV(0, "s27") + ldK(1, "s54") + ldV(1, "s54"): a(x)
        a(f"{d}:")
    def qreads(k):
        f = WF + 4 * (k & 7)
        a(f"ds_read_b64_tr_b16 {vr(f,2)}, v{VQ} offset:{k*1024}\nds_read_b64_tr_b16 {vr(f+2,2)}, v{VQ} offset:{k*1024+256}")
    def publish():
        a(f"""s_mov_b32 s28, {WS_MB}
        v_readfirstlane_b32 s{T}, v11
        v_mov_b32 v6, v11
        s_mov_b64 exec, 1
        s_waitcnt vmcnt({7-NQ1})""")
        st(a, 4)
        a(f"""ds_add_rtn_u32 v4, v{VC}, v{V1} offset:{C_D}
        s_waitcnt lgkmcnt(0)
        v_cmp_eq_u32 vcc, 3, v4
        s_cbranch_vccz L_notlast
        s_mov_b64 exec, s[64:65]
        s_cbranch_execz L_notlast
        buffer_atomic_swap v6, v{VFS}, s[8:11], s28 offen sc1
        s_waitcnt vmcnt(1)
        s_branch L_published
        L_notlast:
        s_waitcnt vmcnt(0)
        s_cmp_lg_u32 s{RL}, 14
        s_cbranch_scc1 L_published
        s_mov_b32 s26, {WS_G}
        s_mov_b32 exec_lo, -1
        buffer_store_dwordx2 v[10:11], v9, s[8:11], s26 offen sc1
        L_published:""")
        a("s_mov_b64 exec, -1")
    def qgemm(lo, hi, cnt):
        spin_lds(a, VC, cnt, 4, 4)
        if not lo: a(f"ds_read_b32 v11, v{VC} offset:{C_T}")
        for k in range(lo, min(hi, lo + 6)): qreads(k)
        for k in range(lo, hi):
            if k + 6 < hi: qreads(k + 6)
            a(f"s_waitcnt lgkmcnt({2*(min(hi-1,k+6)-k)})")
            a(f"{MF} {vr(A0,16)}, {vr(WF+4*(k&7),4)}, {vr(XF+4*k,4)}, {'0' if k==0 else vr(A0,16)}")
    def qepi():
        for i in range(8): a(f"v_mov_b32 v{P+8+i}, 0")
        a(f"""s_lshl_b32 s26, s{W}, 11
        s_add_u32 s26, s26, {QX}
        v_add_u32 v5, s26, v1
        s_mov_b32 s62, {QSCALE:#x}
        s_mov_b32 s63, {QSCALE:#x}""")
        for i in range(8): a(f"v_pk_mul_f32 {vr(A0+2*i,2)}, {vr(A0+2*i,2)}, s[62:63]")
        for i in range(8): a(f"v_cvt_pk_bf16_f32 v{QO+i}, v{A0+2*i}, v{A0+2*i+1}")
        a(f"""s_mov_b32 exec_lo, 0
        v_mov_b32 v{QO+6}, 0
        v_mov_b32 v{QO+7}, 0
        s_mov_b32 exec_lo, -1
        ds_write_b128 v5, {vr(QO,4)}
        ds_write_b128 v5, {vr(QO+4,4)} offset:1024""")
        lds_inc(a, VC, C_X, V1)
        for i in range(0, 64, 2): a(f"v_pk_mul_f32 {vr(O+i,2)}, {vr(P+8,2)}, {vr(P+8,2)}")
    qgemm(0, 4 * NQ1, C_Q1)
    if NQ1 == 7 and "qfirst" in EXP:
        st(a, 5)
        qepi(); publish(); try_loads()
    elif NQ1 == 7:
        st(a, 5)
        publish(); try_loads(); qepi()
    else:
        publish()
        lds_inc(a, VC, C_Q2, V1)
        try_loads()
        qgemm(4 * NQ1, 28, C_Q2)
        st(a, 5)
        try_loads()
        qepi()
    spin_lds(a, VC, C_X, 4, 4)
    for i in range(3):
        a(f"""s_add_u32 s26, s{W}, {i+1}
        s_and_b32 s26, s26, 3
        s_lshl_b32 s26, s26, 11
        s_add_u32 s26, s26, {QX}
        v_add_u32 v5, s26, v1
        ds_read_b128 {vr(Q+8*i,4)}, v5
        ds_read_b128 {vr(Q+8*i+4,4)}, v5 offset:1024""")
    try_loads(block=True)
    def QK(u, m):
        kt, qs = (u >> 2) & 3, u & 3
        s = S + 16 * (u & 1)
        c = "0" if m == 0 else vr(s, 16)
        return f"{MF} {vr(s,16)}, {vr(KV+16*kt+4*m,4)}, {vr(Q+8*qs+4*m,4)}, {c}"
    def PV(u, m):
        kt, qs = (u >> 2) & 3, u & 3
        return f"{MF} {vr(O+16*qs,16)}, {vr(KV+16*kt+8+4*m,4)}, {vr(P+8*(u&1)+4*m,4)}, {vr(O+16*qs,16)}"
    SS = [S, S + 16, KV + 32, KV + 48]
    def samp(i, m): return f"{MF} {vr(SS[i],16)}, {vr(SK+4*m,4)}, {vr(Q+8*i+4*m,4)}, {'0' if m == 0 else vr(SS[i],16)}"
    def mx(i):
        for x in max16_list(4, SS[i]): a(x)
        a(f"s_mov_b32 exec_lo, 0\nv_cvt_pk_bf16_f32 v{Q+8*i+6}, -v4, 0\ns_mov_b32 exec_lo, -1")
    a("s_waitcnt vmcnt(8) lgkmcnt(0)")
    for i in range(4): a(samp(i, 0)); a(samp(i, 1))
    mx(0)
    a("s_waitcnt vmcnt(4)")
    a(QK(0, 0)); a(QK(0, 1))
    mx(1); mx(2)
    for x in ldK(2, "s55") + ldV(2, "s55"): a(x)
    mx(3)
    for x in ldK(3, "s56"): a(x)
    for i in range(0, 8, 2): a(f"v_pk_mul_f32 {vr(KV+56+i,2)}, {vr(P+8,2)}, {vr(P+8,2)}")
    for i in range(3):
        a(f"""s_add_u32 s26, s{W}, {i+1}
        s_and_b32 s26, s26, 3
        s_mul_i32 s26, s26, 12288
        s_add_u32 s26, s26, {CB + i*4096}
        v_add_u32 v{4+i}, s26, v1""")
    a(f"s_mul_i32 s26, s{W}, 12288\ns_add_u32 s26, s26, {CB}\nv_add_u32 v2, s26, v1")
    lds_inc(a, VC, C_L, V1)
    st(a, 7)
    a("s_mov_b32 s57, 3")
    def substep(u, ex, last=False):
        s = S + 16 * (u & 1); p = P + 8 * (u & 1)
        e = lambda i: f"v_exp_f32 v{s+i}, v{s+i}"
        c = lambda i: f"v_cvt_pk_bf16_f32 v{p+i}, v{s+2*i}, v{s+2*i+1}"
        q0, q1 = ([], []) if last else ([QK(u+1, 0)], [QK(u+1, 1)])
        seq = q0 + ex[0] + [e(0), e(1), e(2), e(3), c(0), e(4),
               PV(u-1, 0)] + ex[1] + [e(5), c(1), e(6), e(7), c(2), e(8)] + q1 + ex[2] + [e(9), c(3), e(10), e(11), c(4), e(12),
               PV(u-1, 1)] + ex[3] + [e(13), c(5), e(14), e(15), c(6), c(7)]
        for x in seq: a(x)
    a(".p2align 6")
    a.label("L_loop")
    for u in range(16):
        kt, qs = u >> 2, u & 3
        ex = [[], [], [], []]
        if qs == 1:
            l = ldV((kt + 3) & 3, "s56")
            ex[0] = [l[0]]; ex[1] = [l[1]]; ex[2] = [f"s_add_u32 s56, s56, {TS}"]
        if u == 0: ex[0] = [f"ds_read_b32 v7, v{VF} offset:{C_R+4}"]
        if u == 1:
            ex[2] = ["s_waitcnt lgkmcnt(0)", "v_readfirstlane_b32 s56, v7"]
            ex[3] = ["s_sub_u32 s56, s56, 1"]
        if u == 2:
            ex[0] = ["s_cbranch_scc1 L_nextwait", "L_nextok:", f"v_add_u32 v{VF}, 4, v{VF}"]
        if qs == 2 and "nowait" not in EXP: ex[3] = ["s_waitcnt vmcnt(10)"]
        if qs == 0 and "nowait" not in EXP: ex[3] = ["s_waitcnt vmcnt(10)"]
        if qs == 3:
            l = ldK(kt, "s56")
            ex[0] = [l[0]]; ex[1] = [l[1]]
        if u == 12: ex[0] = [f"ds_read_b32 v7, v{VC} offset:{C_F}"]
        if u == 13: ex[3] = ["s_sub_u32 s57, s57, 1"]
        if "itst" in EXP and u in (0, 8):
            a("s_waitcnt lgkmcnt(0)")
            for i in range(1, 6): a(f"s_mov_b32 s{72+2*i}, s{72+2*i+2}")
            a("s_memtime s[84:85]")
        if "noload" in EXP: ex = [[y for y in x if "buffer_load" not in y] for x in ex]
        substep(u, ex)
        if u == 13: a("s_cbranch_scc1 L_tail")
    a("s_branch L_loop")
    a.label("L_tail")
    st(a, 8)
    a(f"""s_waitcnt lgkmcnt(0)
    v_cmp_gt_u32 vcc, 4, v7
    s_cbranch_vccnz L_wait_ffn
    L_ffn_free:""")
    wr = lambda i, k: f"ds_write_b128 v{4+i}, {vr(O+16*i+4*k,4)} offset:{k*1024}"
    substep(14, [[], [wr(0, 0)], [wr(0, 1)], [wr(0, 2)]])
    substep(15, [[wr(0, 3)], [wr(1, 0)], [wr(1, 1)], [wr(1, 2)]], last=True)
    a(PV(15, 0)); a(wr(1, 3)); a(PV(15, 1))
    for k in range(4): a(wr(2, k))
    lds_inc(a, VC, C_C, V1)
    srd(a, 20, 50, 2048 * 896)
    TT = S
    OO = O + 16 * OWN
    a(f"""s_lshl_b32 s28, s35, 4
    s_add_u32 s28, s28, s{H}
    s_lshr_b32 s56, s28, 2
    s_lshl_b32 s56, s56, 5
    s_and_b32 s26, s{H}, 3
    s_add_u32 s56, s56, s26
    s_lshl_b32 s56, s56, 2
    s_add_u32 s56, s56, {WS_OFL}
    s_lshl_b32 s52, s28, 11
    s_add_u32 s52, s52, {WS_O}
    s_mov_b32 s57, 0""")
    spin_lds(a, VC, C_C, 4, 7)
    for k in range(12): a(f"ds_read_b128 {vr(TT+4*k,4)}, v2 offset:{k*1024}")
    a(f"s_lshl_b32 s26, s{W}, 2\nv_add_u32 v7, s26, v{VC}\nds_write_b32 v7, v{V1} offset:{C_P}")
    for i in range(3):
        a(f"s_waitcnt lgkmcnt({9-4*i})")
        for k in (6, 7, 0, 1, 2, 3, 4, 5): a(f"v_pk_add_f32 {vr(OO+2*k,2)}, {vr(OO+2*k,2)}, {vr(TT+16*i+2*k,2)}")
    a.label("L_fin")
    a(f"""v_mov_b32 v5, v{OO+12}
    v_mov_b32 v4, v{OO+12}
    s_mov_b32 exec_lo, 0
    v_mov_b32 v{OO+12}, 0
    s_mov_b32 exec_lo, -1
    v_permlane32_swap_b32 v5, v4
    v_rcp_f32 v6, v4
    s_mov_b32 s28, 0x30800000
    s_mov_b32 s29, 0x4e800000
    v_cmp_nle_f32 s[54:55], s28, v4
    v_cmp_nge_f32 s[62:63], s29, v4
    v_pk_add_f32 v[4:5], {vr(OO,2)}, {vr(OO+2,2)}""")
    for k in range(2, 8): a(f"v_pk_add_f32 v[4:5], v[4:5], {vr(OO+2*k,2)}")
    a(f"""v_add_f32 v4, v4, v5
    s_movk_i32 s28, 0x207
    v_cmp_class_f32 vcc, v4, s28
    s_or_b64 s[54:55], s[54:55], s[62:63]""")
    for k in range(8): a(f"v_pk_mul_f32 {vr(OO+2*k,2)}, {vr(OO+2*k,2)}, v[6:7] op_sel_hi:[1,0]")
    for k in range(8): a(f"v_cvt_pk_bf16_f32 v{Q+k}, v{OO+2*k}, v{OO+2*k+1}")
    a(f"""v_mov_b32 v6, s{T}
    s_or_b64 s[54:55], s[54:55], vcc
    s_cbranch_scc1 L_bad
    L_good:
    buffer_store_dwordx4 {vr(Q,4)}, v1, s[8:11], s52 offen sc1
    buffer_store_dwordx4 {vr(Q+4,4)}, v1, s[8:11], s52 offen offset:1024 sc1
    s_mov_b64 exec, 1
    buffer_atomic_swap v6, v{VZ}, s[8:11], s56 offen sc1
    s_mov_b64 exec, -1""")
    st(a, 9)
    a(f"""s_mov_b32 s26, {WS_G}
    buffer_load_dwordx2 {vr(GR,2)}, v{VGO}, s[8:11], s26 offen sc1
    buffer_load_dwordx4 {vr(XR,4)}, v{VXO}, s[12:15], s59 offen
    buffer_load_dwordx4 {vr(XR+4,4)}, v{VXO}, s[12:15], s59 offen offset:32""")
    WOF = 104; B = 232; ACC = 8; U = 40
    OSB = [40, 72]
    a(f"""v_bfe_u32 v4, v3, 2, 2
    v_lshl_add_u32 v4, v{VH}, 2, v4
    v_mul_u32_u24 v4, 224, v4
    v_bfe_u32 v5, v3, 4, 1
    v_lshl_add_u32 v4, v5, 5, v4
    v_and_b32 v5, 1, v3
    v_lshl_add_u32 v4, v5, 4, v4
    v_bfe_u32 v5, v3, 1, 1
    v_lshl_add_u32 v4, v5, 3, v4
    s_mul_i32 s28, s{W}, 56
    v_add_u32 v24, s28, v4
    v_add_u32 v25, {8*28*224}, v24
    v_add_u32 v26, {CB}, v1
    v_lshlrev_b32 v27, 2, v{VT}
    v_add_u32 v27, {UPDI}, v27
    s_mul_i32 s28, s{W}, 112
    s_add_u32 s28, s28, {UPD}
    v_lshl_add_u32 v28, v{VH}, 5, s28
    v_mov_b32 v29, {CNT}
    v_mov_b32 v30, 0
    v_mov_b32 v31, 0
    s_waitcnt vmcnt(6)""")
    spin_lds(a, 29, C_W, 2, 6)
    for k in range(32):
        hd, m = k >> 1, k & 1
        o = (28 * (hd & 7) + 16 * m) * 224
        b = 24 + (hd >> 3)
        a(f"ds_read_b64_tr_b16 {vr(WOF+4*k,2)}, v{b} offset:{o}\nds_read_b64_tr_b16 {vr(WOF+4*k+2,2)}, v{b} offset:{o+8*224}")
    for k in range(8): a(f"v_pk_mul_f32 {vr(ACC+2*k,2)}, v[30:31], v[30:31]")
    a("s_waitcnt vmcnt(0)")
    for k in range(8):
        a(f"v_lshlrev_b32 v{B+2*k}, 16, v{XR+k}\nv_and_b32 v{B+2*k+1}, 0xffff0000, v{XR+k}")
    a(f"""v_cmp_ne_u32 vcc, s{T}, v{GR+1}
    s_cbranch_vccnz L_gate
    L_gate_ok:
    v_sub_f32 v32, 1.0, v{GR}
    v_cvt_pk_bf16_f32 v32, v32, v32
    v_lshlrev_b32 v32, 16, v32
    s_movk_i32 s57, 0x40f
    s_mov_b32 s60, {SPIN_LIMIT}""")
    if "twait" not in EXP: st(a, 10)
    def rd(p):
        a(f"""s_ff1_i32_b32 s27, s26
        s_bitset0_b32 s57, s27
        s_mul_i32 s28, s27, 12288
        v_add_u32 v7, s28, v26""")
        for k in range(8): a(f"ds_read_b128 {vr(OSB[p]+4*k,4)}, v7 offset:{k*1024}")
    a(f"""L_idle:
    ds_read_b32 v6, v29 offset:{C_O}
    s_sub_u32 s60, s60, 1
    s_cbranch_scc1 L_exit
    s_waitcnt lgkmcnt(0)
    v_readfirstlane_b32 s61, v6
    s_and_b32 s26, s61, s57
    s_cbranch_scc0 L_idle
    s_bitcmp1_b32 s26, 10
    s_cbranch_scc1 L_blkU""")
    rd(0)
    a(f"ds_read_b32 v6, v29 offset:{C_O}")
    for p in range(2):
        a(f"""L_st{p}:
        s_mov_b32 s29, s27
        s_waitcnt lgkmcnt(0)
        v_readfirstlane_b32 s61, v6
        s_and_b32 s26, s61, s57
        s_and_b32 s26, s26, 15
        s_cbranch_scc0 L_mm{p}""")
        rd(1 - p)
        a(f"""ds_read_b32 v6, v29 offset:{C_O}
        L_mm{p}:
        s_cmp_eq_u32 s29, 1
        s_cbranch_scc1 L_m{p}1
        s_cmp_eq_u32 s29, 2
        s_cbranch_scc1 L_m{p}2
        s_cmp_eq_u32 s29, 3
        s_cbranch_scc1 L_m{p}3""")
        for g in range(4):
            a(f"L_m{p}{g}:")
            for k in range(8):
                a(f"{MF} {vr(ACC,16)}, {vr(WOF+32*g+4*k,4)}, {vr(OSB[p]+4*k,4)}, {vr(ACC,16)}")
            if g < 3: a(f"s_branch L_md{p}")
        a(f"""L_md{p}:
        s_cmp_lg_u32 s26, 0
        s_cbranch_scc1 L_st{1-p}""")
        if p == 0: a("s_branch L_next")
    a("L_next:\ns_cmp_lg_u32 s57, 0\ns_cbranch_scc1 L_idle")
    if "twait" not in EXP: st(a, 11)
    a("s_nop 7")
    for m in range(2):
        for e in range(4*m, 4*m+4):
            a(f"v_pk_fma_f32 {vr(B+2*e,2)}, {vr(ACC+2*e,2)}, {vr(GR,2)}, {vr(B+2*e,2)} op_sel_hi:[1,0,1]")
        for e in range(4*m, 4*m+4): a(f"v_cvt_pk_bf16_f32 v{40+e}, v{B+2*e}, v{B+2*e+1}")
        if m == 0:
            a(f"buffer_store_dwordx4 v[40:43], v{VXO}, s[20:23], s59 offen{OUTAUX}")
        else:
            a(f"""s_mov_b32 exec_hi, 0
            buffer_store_dwordx4 v[44:47], v{VXO}, s[20:23], s59 offen offset:32{OUTAUX}
            s_mov_b64 exec, 0xffffffff
            s_not_b64 exec, exec
            buffer_store_dwordx2 v[44:45], v{VXO}, s[20:23], s59 offen offset:32{OUTAUX}""")
    st_end(a)
    diag_end(a)
    a("s_endpgm")
    a(f"""L_blkU:
    ds_read_b32 v6, v27
    s_bitset0_b32 s57, 10
    s_waitcnt lgkmcnt(0)
    v_cmp_le_i32 vcc, 0, v6
    s_cbranch_vccz L_noupd
    s_mov_b64 exec, vcc
    v_mul_u32_u24 v6, 448, v6
    v_add_u32 v28, v28, v6""")
    for k in range(4): a(f"ds_read_b128 {vr(U+4*k,4)}, v28 offset:{64*(k>>1)+16*(k&1)}")
    a("s_waitcnt lgkmcnt(0)")
    for k in range(8):
        a(f"""v_pk_add_f32 {vr(B+2*k,2)}, {vr(B+2*k,2)}, {vr(U+2*k,2)}
        v_cvt_pk_bf16_f32 v{B+2*k}, v{B+2*k}, v{B+2*k+1}
        v_and_b32 v{B+2*k+1}, 0xffff0000, v{B+2*k}
        v_lshlrev_b32 v{B+2*k}, 16, v{B+2*k}""")
    a("s_mov_b64 exec, -1\nL_noupd:")
    for k in range(8): a(f"v_pk_mul_f32 {vr(B+2*k,2)}, {vr(B+2*k,2)}, v[32:33] op_sel_hi:[1,0]")
    a("s_branch L_next")
    a("L_bad:\ns_cmp_eq_u32 s57, 0\ns_cbranch_scc1 L_slow")
    for k in range(8): a(f"v_min_u32 v{Q+k}, -2, v{Q+k}")
    a("s_branch L_good")
    a.label("L_wait_ffn")
    spin_lds(a, VC, C_F, 4, 7)
    a("s_branch L_ffn_free")
    a.label("L_nextwait")
    spin_lds(a, VF, C_R + 4, 1, 7)
    a("s_sub_u32 s56, s61, 1\ns_branch L_nextok")
    a(f"""L_gate:
    s_mov_b32 s26, {WS_G}
    s_mov_b32 s60, {SPIN_LIMIT}
    L_gate1:
    buffer_load_dwordx2 {vr(GR,2)}, v{VGO}, s[8:11], s26 offen sc1
    s_waitcnt vmcnt(0)
    v_cmp_ne_u32 vcc, s{T}, v{GR+1}
    s_cbranch_vccz L_gate_ok
    s_sub_u32 s60, s60, 1
    s_cbranch_scc0 L_gate1
    s_endpgm""")
    a.label("L_slow")
    a(f"""s_mov_b32 s57, 1
    s_mov_b32 s55, {KVB}
    s_mov_b32 s54, 0
    s_mov_b32 exec_lo, 0
    v_mov_b32 v{QO+6}, 0
    v_mov_b32 v{QO+7}, 0
    s_mov_b32 exec_lo, -1
    v_mov_b32 v4, 0xff800000
    L_slow1:
    {ldK(0, "s54")[0]}
    {ldK(0, "s54")[1]}
    s_waitcnt vmcnt(0)
    {MF} {vr(S,16)}, {vr(KV,4)}, {vr(QO,4)}, 0
    {MF} {vr(S,16)}, {vr(KV+4,4)}, {vr(QO+4,4)}, {vr(S,16)}""")
    for x in max16_list(4, S, init=True): a(x)
    a(f"""s_add_u32 s54, s54, {TS}
    s_cmp_lt_u32 s54, s55
    s_cbranch_scc1 L_slow1
    v_mov_b32 v5, v4
    v_permlane32_swap_b32 v4, v5
    v_max_f32 v4, v4, v5""")
    split_neg_max(a, 4, 5, 6, QO + 6, QO + 7)
    for i in range(16): a(f"v_mov_b32 v{OO+i}, 0")
    a(f"""s_mov_b32 s54, 0
    L_slow2:
    {ldK(0, "s54")[0]}
    {ldK(0, "s54")[1]}
    {ldV(0, "s54")[0]}
    {ldV(0, "s54")[1]}
    s_waitcnt vmcnt(0)
    {MF} {vr(S,16)}, {vr(KV,4)}, {vr(QO,4)}, 0
    {MF} {vr(S,16)}, {vr(KV+4,4)}, {vr(QO+4,4)}, {vr(S,16)}""")
    for i in range(16): a(f"v_exp_f32 v{S+i}, v{S+i}")
    for i in range(8): a(f"v_cvt_pk_bf16_f32 v{P+i}, v{S+2*i}, v{S+2*i+1}")
    a(f"""{MF} {vr(OO,16)}, {vr(KV+8,4)}, {vr(P,4)}, {vr(OO,16)}
    {MF} {vr(OO,16)}, {vr(KV+12,4)}, {vr(P+4,4)}, {vr(OO,16)}
    s_nop 7
    s_nop 7
    s_add_u32 s54, s54, {TS}
    s_cmp_lt_u32 s54, s55
    s_cbranch_scc1 L_slow2
    s_branch L_fin""")

def service_wave(a):
    a.label("L_service")
    a(f"""v_mov_b32 v14, {CNT}
    v_mov_b32 v15, 1
    v_mov_b32 v9, 0""")
    srd(a, 8, 36, (1 << 28) - WSBASE)
    a("s_waitcnt lgkmcnt(0)")
    tag(a)
    a(f"v_mov_b32 v4, s{T}\nds_write_b32 v14, v4 offset:{C_T}\ns_waitcnt vmcnt(0)")
    lds_inc(a, 14, C_Q1, 15)
    a(f"""v_and_b32 v32, 31, v3
    v_lshrrev_b32 v33, 5, v3
    v_lshlrev_b32 v219, 3, v1
    v_lshrrev_b32 v220, 2, v1
    v_and_b32 v4, 7, v3
    v_lshlrev_b32 v217, 3, v4
    s_lshr_b32 s58, s{H}, 2
    s_lshl2_add_u32 s58, s{J}, s58
    s_cmp_ge_u32 s{L}, 2
    s_cbranch_scc1 L_svcB""")
    def sel_load(lbl):
        a(f"""s_mov_b32 s26, {WS_SEL}
        s_mov_b32 s60, {SPIN_LIMIT}
        {lbl}:
        buffer_load_dwordx2 v[20:21], v217, s[8:11], s26 offen sc1
        s_waitcnt vmcnt(0)
        v_cmp_ne_u32 vcc, s{T}, v21
        s_cbranch_vccz {lbl}_ok
        s_sleep 4
        s_sub_u32 s60, s60, 1
        s_cbranch_scc0 {lbl}
        s_endpgm
        {lbl}_ok:""")
    a(f"""v_mov_b32 v6, {KEYS}
    s_lshl_b32 s28, s{L}, 8
    v_add3_u32 v7, v220, v6, s28
    s_lshl_b32 s27, s{J}, 6
    s_add_u32 s27, s27, {WS_R}
    s_cmp_eq_u32 s{RL}, 14
    s_cbranch_scc1 L_rank
    s_cmp_lg_u32 s2, {SELECTOR}
    s_cbranch_scc1 L_svcA
    s_lshl_b32 s26, s{L}, 9
    s_add_u32 s26, s26, {WS_R}
    s_mov_b32 s27, {WS_SEL}
    v_lshlrev_b32 v4, 3, v3
    v_mov_b32 v5, 2
    s_mov_b32 s60, {SPIN_LIMIT}
    L_keys:
    v_mov_b32 v20, 0
    v_mov_b32 v21, 0
    buffer_atomic_or_x2 v[20:21], v4, s[8:11], s26 offen sc0 sc1
    s_sub_u32 s60, s60, 1
    s_cbranch_scc1 L_exit
    s_waitcnt vmcnt(0)
    v_cmp_ne_u32 vcc, s{T}, v21
    s_cbranch_vccnz L_keys
    ds_write_b32 v7, v20""")
    lds_inc(a, 14, C_K, 5)
    a.label("L_rank")
    spin_lds(a, 14, C_K, 4, 8)
    st(a, 10)
    if STAMP: a("s_waitcnt lgkmcnt(0)")
    a(f"ds_read_b32 v20, v7\nv_mov_b32 v22, 0\nv_mov_b32 v21, s{T}\ns_mov_b32 s57, 0\nL_rk:")
    for k in range(8): a(f"ds_read_b128 {vr(40+4*k,4)}, v6 offset:{16*k}")
    a("v_add_u32 v6, 128, v6")
    CS = ["s[52:53]", "s[54:55]", "s[62:63]", "s[28:29]"]
    for k in range(8):
        a(f"s_waitcnt lgkmcnt({7-k})")
        for e in range(4): a(f"v_cmp_gt_u32 {CS[e]}, v{40+4*k+e}, v20")
        for e in range(4): a(f"v_addc_co_u32 v22, vcc, 0, v22, {CS[e]}")
    a(f"""s_add_u32 s57, s57, 1
    s_cmp_lt_u32 s57, 4
    s_cbranch_scc1 L_rk
    v_cmp_gt_u32 vcc, 8, v22
    v_lshlrev_b32 v22, 3, v22
    s_mov_b64 exec, vcc
    s_cbranch_execz L_rank_done
    buffer_atomic_swap_x2 v[20:21], v22, s[8:11], s27 offen sc1
    L_rank_done:
    s_mov_b64 exec, -1""")
    st(a, 11)
    a.label("L_svcA")
    GI = CB; DI = QX; HB = 101376
    FT, KS = 56, 59
    a(f"""s_cmp_ge_u32 s2, 196
    s_cbranch_scc1 L_nofn
    s_mul_i32 s{FT}, s2, 9363
    s_lshr_b32 s{FT}, s{FT}, 16
    s_mul_i32 s26, s{FT}, 7
    s_sub_u32 s{KS}, s2, s26
    v_lshrrev_b32 v4, 3, v3
    v_and_b32 v5, 2, v4
    v_lshlrev_b32 v5, 1, v5
    v_and_b32 v6, 7, v3
    v_xor_b32 v5, v5, v6
    v_mul_u32_u24 v6, 3584, v4
    v_lshl_add_u32 v34, v5, 4, v6
    v_add_u32 v35, {8*3584-1024}, v34
    v_add_u32 v36, {2*(8*3584-1024)}, v34
    v_add_u32 v37, {3*(8*3584-1024)}, v34
    v_lshrrev_b32 v6, 2, v3
    v_mul_u32_u24 v6, 896, v6
    v_and_b32 v5, 3, v3
    v_lshl_add_u32 v200, v5, 4, v6
    v_add_u32 v201, {16*896-1024}, v200
    v_add_u32 v202, {2*(16*896-1024)}, v200
    v_add_u32 v203, {3*(16*896-1024)}, v200
    ; transposing-read base: (8hh + r)*128 + ((r>>1)&1)*64 + colhalf*32 + c*8
    v_bfe_u32 v4, v3, 2, 2
    v_lshl_add_u32 v5, v33, 3, v4
    v_lshlrev_b32 v5, 7, v5
    v_lshrrev_b32 v4, 1, v4
    v_lshl_add_u32 v5, v4, 6, v5
    v_bfe_u32 v4, v3, 4, 1
    v_lshl_add_u32 v5, v4, 5, v5
    v_and_b32 v4, 3, v3
    v_lshl_add_u32 v5, v4, 3, v5
    s_lshl_b32 s54, s{L}, 13
    s_add_u32 s54, s54, {GI}
    v_add_u32 v38, s54, v5
    v_xor_b32 v39, 64, v38
    v_lshrrev_b32 v6, 7, v5
    v_and_b32 v5, 63, v5
    v_lshl_add_u32 v5, v6, 6, v5
    s_lshl_b32 s26, s{L}, 12
    s_add_u32 s26, s26, {DI}
    v_add_u32 v210, s26, v5
    ; partial-sum store offset 4hh*256 + col*4 ; h addresses ; y offsets
    v_lshlrev_b32 v212, 10, v33
    v_lshl_add_u32 v212, v32, 2, v212
    s_lshl_b32 s26, s{L}, 9
    s_add_u32 s26, s26, {HB}
    v_lshl_add_u32 v214, v3, 3, s26
    v_lshlrev_b32 v4, 4, v217
    v_lshl_add_u32 v4, v33, 4, v4
    v_add_u32 v218, {HB}, v4
    v_mul_u32_u24 v215, {4*1792}, v33
    v_lshl_add_u32 v215, v32, 2, v215
    v_add_u32 v216, {2*1792}, v215""")
    srd(a, 16, 42, 448 * 3584)
    a(f"""s_cmp_eq_u32 s{L}, 1
    s_cselect_b64 s[16:17], s[44:45], s[42:43]
    s_mul_i32 s52, s{KS}, {64*3584}
    s_lshl_b32 s28, s{FT}, 7
    s_add_u32 s52, s52, s28""")
    spin_lds(a, 14, C_L, 4, 8, sleep=2)
    st(a, 3)
    NR = 2 if "fine" in EXP else 4
    XS_ = 40; FW = 56; AC = 104
    a("s_mov_b32 m0, s54\ns_nop 0")
    for k in range(8):
        if k == 4: a(f"s_add_u32 s52, s52, {32*3584}\ns_add_u32 m0, s54, 4096")
        if k == 8 - NR: sel_load("L_sel1")
        elif k and k % NR == 0: a("s_waitcnt vmcnt(0)")
        a(f"buffer_load_dwordx4 v{34+(k&3)}, s[16:19], s52 offen offset:{1024*(k&3)} lds")
    a(f"""v_and_b32 v4, 0xffff, v20
    v_sub_u32 v4, 0xffff, v4
    v_mul_u32_u24 v4, 896, v4
    v_lshl_add_u32 v4, v33, 4, v4
    s_lshl_b32 s26, s{KS}, 7
    s_mov_b32 exec_lo, 0xff
    s_mov_b32 exec_hi, 0xff""")
    for k in range(4):
        a(f"buffer_load_dwordx4 {vr(XS_+4*k,4)}, v4, s[12:15], s26 offen offset:{32*k}")
    a("s_mov_b64 exec, -1\ns_waitcnt vmcnt(4)")
    for k in range(4):
        for n in range(2):
            a(f"ds_read_b64_tr_b16 {vr(FW+8*k+4*n,2)}, v{38+n} offset:{k*2048}\nds_read_b64_tr_b16 {vr(FW+8*k+4*n+2,2)}, v{38+n} offset:{k*2048+512}")
    lds_inc(a, 14, C_F, 15)
    a(f"""s_mov_b64 s[16:17], s[46:47]
    s_mul_i32 s28, s{FT}, {64*896}
    s_add_u32 s28, s28, s26
    s_lshl_b32 s29, s{L}, 6
    s_add_u32 s28, s28, s29
    s_lshl_b32 s29, s{L}, 12
    s_add_u32 m0, s29, {DI}
    s_lshl1_add_u32 s26, s2, s{L}
    s_lshl_b32 s26, s26, 11
    s_add_u32 s26, s26, {WS_GP}
    s_waitcnt lgkmcnt(0)""")
    st(a, 4)
    for k in range(4):
        a(f"s_waitcnt vmcnt({3-k})")
        for n in range(2):
            a(f"{MF} {vr(AC+16*n,16)}, {vr(XS_+4*k,4)}, {vr(FW+8*k+4*n,4)}, {'0' if k==0 else vr(AC+16*n,16)}")
    for n in range(2):
        for k in range(4):
            a(f"buffer_store_dword v{AC+16*n+k}, v212, s[8:11], s26 offen offset:{256*k+128*n} sc1")
    for k in range(4): a(f"buffer_load_dwordx4 v{200+k}, s[16:19], s28 offen offset:{1024*k} lds")
    a(f"""s_lshl1_add_u32 s26, s{KS}, s{L}
    s_lshl_b32 s26, s26, 2
    s_mul_i32 s28, s{FT}, {7*128}
    s_add_u32 s26, s26, s28
    s_add_u32 s26, s26, {WS_F1}
    s_waitcnt vmcnt(4)""")
    signal(a, 5, 219, "s26", "0x7f")
    st(a, 5)
    a(f"s_lshl_b32 s26, s2, 7\ns_add_u32 s26, s26, {WS_F1}")
    poll_atomic(a, 5, 220, "s26", "0x3fff", 0)
    st(a, 6)
    GP = 40
    a(f"s_mul_i32 s26, s{FT}, {7*4096}\ns_lshl_b32 s28, s{L}, 10\ns_add_u32 s26, s26, s28\ns_add_u32 s26, s26, {WS_GP}")
    for k in range(7):
        a(f"""buffer_load_dwordx4 {vr(GP+8*k,4)}, v1, s[8:11], s26 offen sc1
        buffer_load_dwordx4 {vr(GP+8*k+4,4)}, v1, s[8:11], s26 offen offset:2048 sc1""")
        if k < 6: a("s_add_u32 s26, s26, 4096")
    DW = 120
    for k in range(4):
        a(f"ds_read_b64_tr_b16 {vr(DW+4*k,2)}, v210 offset:{k*1024}\nds_read_b64_tr_b16 {vr(DW+4*k+2,2)}, v210 offset:{k*1024+256}")
    a(f"s_mov_b32 s28, {NLOG2E:#x}\ns_mov_b32 s29, {NLOG2E:#x}\ns_waitcnt vmcnt(0)")
    for k in range(1, 7):
        for e in range(4):
            a(f"v_pk_add_f32 {vr(GP+2*e,2)}, {vr(GP+2*e,2)}, {vr(GP+8*k+2*e,2)}")
    for e in range(2):
        a(f"""v_cvt_pk_bf16_f32 v22, v{GP+2*e}, v{GP+2*e+1}
        v_cvt_pk_bf16_f32 v24, v{GP+4+2*e}, v{GP+5+2*e}
        v_and_b32 v23, 0xffff0000, v22
        v_lshlrev_b32 v22, 16, v22
        v_pk_mul_f32 v[26:27], v[22:23], s[28:29]
        v_and_b32 v25, 0xffff0000, v24
        v_exp_f32 v26, v26
        v_exp_f32 v27, v27
        v_lshlrev_b32 v24, 16, v24
        v_pk_add_f32 v[26:27], v[26:27], 1.0 op_sel_hi:[1,0]
        v_rcp_f32 v26, v26
        v_rcp_f32 v27, v27
        s_nop 0
        v_pk_mul_f32 v[22:23], v[22:23], v[26:27]
        v_cvt_pk_bf16_f32 v22, v22, v23
        v_and_b32 v23, 0xffff0000, v22
        v_lshlrev_b32 v22, 16, v22
        v_pk_mul_f32 v[22:23], v[22:23], v[24:25]
        v_cvt_pk_bf16_f32 v{28+e}, v22, v23""")
    a("ds_write_b64 v214, v[28:29]")
    lds_inc(a, 14, C_S, 15)
    spin_lds(a, 14, C_S, 2, 8)
    for k in range(4): a(f"ds_read_b128 {vr(GP+4*k,4)}, v218 offset:{32*k}")
    for k in range(4):
        a(f"s_waitcnt lgkmcnt({3-k})\n{MF} {vr(AC,16)}, {vr(GP+4*k,4)}, {vr(DW+4*k,4)}, {'0' if k==0 else vr(AC,16)}")
    a(f"""s_mul_i32 s26, s{FT}, 14336
    s_lshl1_add_u32 s28, s{KS}, s{L}
    s_lshl_b32 s29, s28, 7
    s_add_u32 s26, s26, s29
    s_add_u32 s26, s26, {WS_YP}
    s_lshl2_add_u32 s28, s{FT}, s29
    s_add_u32 s28, s28, {WS_YFL}
    buffer_store_dword v{AC}, v215, s[8:11], s26 offen sc1
    buffer_store_dword v{AC+1}, v215, s[8:11], s26 offen offset:1792 sc1
    buffer_store_dword v{AC+2}, v216, s[8:11], s26 offen sc1
    buffer_store_dword v{AC+3}, v216, s[8:11], s26 offen offset:1792 sc1
    s_waitcnt vmcnt(0)""")
    signal(a, 5, 9, "s28", 1)
    st(a, 7)
    a("s_branch L_updA")
    a.label("L_nofn")
    lds_inc(a, 14, C_F, 15)
    spin_lds(a, 14, C_F, 4, 8, sleep=8)
    sel_load("L_sel2")
    a(f"""s_lshl2_add_u32 s26, s2, s{L}
    s_cmp_lg_u32 s26, {254*4}
    s_cbranch_scc1 L_updA""")
    a(f"s_mov_b32 s60, {SPIN_LIMIT}\nL_ep:")
    for k in range(4):
        a(f"s_mov_b32 s26, {WS_FL+8192*k}\nbuffer_load_dword v{24+k}, v219, s[8:11], s26 offen sc1")
    a(f"""s_sub_u32 s60, s60, 1
    s_cbranch_scc1 L_exit
    s_waitcnt vmcnt(0)
    v_xor_b32 v24, s{T}, v24
    v_bitop3_b32 v24, v24, v25, s{T} bitop3:0xf6
    v_bitop3_b32 v24, v24, v26, s{T} bitop3:0xf6
    v_bitop3_b32 v24, v24, v27, s{T} bitop3:0xf6
    v_cmp_ne_u32 vcc, 0, v24
    s_cbranch_vccnz L_ep
    s_mov_b32 s26, {WS_EP}""")
    flag_store(a, 5, 9, "s26")
    Y = 40
    a(f"""L_updA:
    s_and_b32 s53, s{H}, 3
    s_mul_i32 s53, s53, 224
    s_lshl_b32 s57, s{L}, 2
    s_lshr_b32 s26, s53, 6
    s_lshl_b32 s26, s26, 7
    s_add_u32 s62, s26, {WS_YFL}
    L_upd:
    v_readlane_b32 s52, v20, s57
    s_and_b32 s54, s52, 0xffff
    s_sub_u32 s54, 0xffff, s54
    s_lshr_b32 s26, s54, 5
    s_cmp_lg_u32 s26, s58
    s_cbranch_scc1 L_updn
    s_mov_b32 s60, {SPIN_LIMIT}
    s_mov_b32 exec_lo, 0x0fffffff
    s_mov_b32 exec_hi, 0x0fffffff
    L_yfl:
    v_mov_b32 v24, 0
    v_mov_b32 v25, 0
    buffer_atomic_or v24, v220, s[8:11], s62 offen sc0 sc1
    buffer_atomic_or v25, v220, s[8:11], s62 offen offset:256 sc0 sc1
    s_waitcnt vmcnt(0)
    v_xor_b32 v24, s{T}, v24
    v_bitop3_b32 v24, v24, v25, s{T} bitop3:0xf6
    v_cmp_ne_u32 vcc, 0, v24
    s_cbranch_vccz L_yok
    s_sub_u32 s60, s60, 1
    s_cbranch_scc0 L_yfl
    s_endpgm
    L_yok:
    v_mul_u32_u24 v4, {14*14336}, v33
    v_lshl_add_u32 v4, v32, 4, v4
    s_mul_i32 s26, s57, 1792
    s_lshl1_add_u32 s26, s53, s26
    s_add_u32 s26, s26, {WS_YP}""")
    for i in range(14):
        a(f"buffer_load_dwordx4 {vr(Y+4*i,4)}, v4, s[8:11], s26 offen sc1\ns_add_u32 s26, s26, 14336")
    a(f"""s_mov_b64 exec, -1
    s_lshr_b32 s26, s52, 16
    s_not_b32 s55, s26
    s_and_b32 s29, s26, 0x7fff
    s_bitcmp1_b32 s26, 15
    s_cselect_b32 s26, s29, s55
    s_lshl_b32 s26, s26, 16
    v_mov_b32 v6, {NLOG2E:#x}
    v_mul_f32 v6, s26, v6
    v_exp_f32 v6, v6
    v_add_f32 v6, 1.0, v6
    v_rcp_f32 v6, v6
    v_cvt_pk_bf16_f32 v6, v6, v6
    v_lshlrev_b32 v6, 16, v6
    s_mul_i32 s26, s57, 448
    s_add_u32 s26, s26, {UPD}
    v_lshl_add_u32 v7, v32, 4, s26
    s_waitcnt vmcnt(0)""")
    for i in range(1, 14):
        a(f"v_pk_add_f32 {vr(Y,2)}, {vr(Y,2)}, {vr(Y+4*i,2)}\nv_pk_add_f32 {vr(Y+2,2)}, {vr(Y+2,2)}, {vr(Y+4*i+2,2)}")
    for k in range(4): a(f"v_mov_b32 v{Y+4+k}, v{Y+k}")
    for k in range(4): a(f"v_permlane32_swap_b32 v{Y+k}, v{Y+4+k}")
    for k in range(4): a(f"v_add_f32 v{Y+k}, v{Y+k}, v{Y+4+k}")
    for k in range(0, 4, 2):
        a(f"""v_cvt_pk_bf16_f32 v{Y+k}, v{Y+k}, v{Y+k+1}
        v_and_b32 v{Y+k+1}, 0xffff0000, v{Y+k}
        v_lshlrev_b32 v{Y+k}, 16, v{Y+k}
        v_mul_f32 v{Y+k}, v{Y+k}, v6
        v_mul_f32 v{Y+k+1}, v{Y+k+1}, v6
        v_cvt_pk_bf16_f32 v{Y+k}, v{Y+k}, v{Y+k+1}
        v_and_b32 v{Y+k+1}, 0xffff0000, v{Y+k}
        v_lshlrev_b32 v{Y+k}, 16, v{Y+k}""")
    a(f"""s_and_b32 s54, s54, 31
    v_mov_b32 v5, s57
    s_lshl_b32 s26, s54, 2
    s_add_u32 s26, s26, {UPDI}
    v_mov_b32 v4, s26
    s_mov_b64 exec, 0x0fffffff
    ds_write_b128 v7, {vr(Y,4)}
    s_mov_b64 exec, 1
    ds_write_b32 v4, v5
    s_mov_b64 exec, -1
    L_updn:
    s_add_u32 s57, s57, 1
    s_and_b32 s26, s57, 3
    s_cbranch_scc1 L_upd
    v_mov_b32 v6, 512""")
    lds_inc(a, 14, C_O, 6)
    st(a, 9)
    a("s_branch L_ofetch")
    a.label("L_svcB")
    OUTT = ""
    if "outtouch" in EXP:
        OUTT = f"""s_cmp_lg_u32 s55, {42*1024}
        s_cbranch_scc1 L_noot
        s_mov_b32 s20, s50
        s_mov_b32 s21, s51
        s_mov_b32 s22, {2048*896}
        s_mov_b32 s23, 0x20000
        s_lshl_b32 s26, s58, 5
        v_add_u32 v4, s26, v32
        v_mul_u32_u24 v4, 896, v4
        s_add_u32 s26, s53, 127
        s_and_b32 s26, s26, 0xffffff80
        v_lshl_add_u32 v4, v33, 7, v4
        s_cmp_eq_u32 s53, 672
        s_cselect_b32 exec_hi, 0, -1
        buffer_store_dword v9, v4, s[20:23], s26 offen sc1
        s_mov_b64 exec, -1
        L_noot:"""
    WOPF = "s_mov_b32 exec_hi, 0x1ffff\nbuffer_load_dword v6, v219, s[16:19], s28 offen\ns_mov_b64 exec, -1" if "wopfS" not in EXP else ""
    for e in range(7):
        a(f"""v_add_u32 v4, {64*e}, v3
        v_mul_u32_u24 v5, 4682, v4
        v_lshrrev_b32 v5, 16, v5
        v_mul_u32_u24 v5, {896-224}, v5
        v_lshl_add_u32 v{200+e}, v4, 4, v5""")
    a(f"""v_mov_b32 v16, 0
    v_mov_b32 v17, 0
    v_mov_b32 v18, 0
    v_mov_b32 v19, 0
    v_add_u32 v209, {448*224}, v1
    s_cmp_eq_u32 s{L}, 2
    s_cbranch_scc1 L_svcB2
    v_lshrrev_b32 v4, 4, v3
    v_and_b32 v5, 15, v3
    v_lshlrev_b32 v5, 2, v5
    v_lshl_add_u32 v221, v4, 9, v5
    v_lshl_add_u32 v222, v4, 5, v14
    v_and_b32 v223, 48, v3
    v_and_b32 v5, 15, v3
    v_add_u32 v6, v5, v4
    v_mul_u32_u24 v224, {4*TS}, v6
    v_add_u32 v224, 1, v224
    v_bfm_b32 v225, v5, 0
    s_mul_i32 s26, s{H}, 28
    s_add_u32 s28, s26, 27
    s_xor_b32 s26, s26, s28
    s_mov_b32 s62, 0x55555555
    s_cmp_ge_u32 s26, 64
    s_cselect_b32 s62, -1, s62
    s_mov_b32 s63, s62
    s_lshr_b32 s28, s{J}, 2
    s_lshl4_add_u32 s26, s{H}, s28
    s_lshl_b32 s26, s26, 7
    s_add_u32 s26, s26, {WS_MB}""")
    spin_lds(a, 14, C_D, PCD, 8, sleep=1)
    at = lambda r: f"v_mov_b32 v{r}, 0\nbuffer_atomic_or v{r}, v221, s[8:11], s26 offen sc0 sc1"
    a(f"""s_mov_b32 s60, {SPIN_LIMIT}
    s_mov_b32 s52, 0x11111111
    s_mov_b32 s53, 0x11111111
    s_mov_b64 exec, s[62:63]""")
    for i in range(PD - 1): a(at(28 + i) + f"\ns_sleep {PG}")
    a("L_kv:")
    for i in range(PD):
        a(at(28 + (i + PD - 1) % PD))
        a(f"""s_waitcnt vmcnt({PD-1})
        v_cmp_ne_u32 vcc, s{T}, v{28+i}
        s_lshr_b64 s[28:29], vcc, 1
        s_or_b64 s[28:29], s[28:29], vcc
        s_lshr_b64 s[54:55], s[28:29], 2
        s_or_b64 s[28:29], s[28:29], s[54:55]
        s_andn2_b64 s[28:29], s[52:53], s[28:29]
        s_cbranch_scc0 L_kvn{i}
        s_andn2_b64 s[52:53], s[52:53], s[28:29]
        v_lshrrev_b64 v[4:5], v223, s[28:29]
        v_and_b32 v5, v225, v4
        v_bcnt_u32_b32 v5, v5, 0
        v_lshl_add_u32 v5, v5, 2, v222
        s_mov_b64 exec, s[28:29]
        ds_write_b32 v5, v224 offset:{C_R}
        s_mov_b64 exec, s[62:63]
        v_and_b32 v4, 0xffff, v4
        v_bcnt_u32_b32 v4, v4, 0
        v_lshl_add_u32 v222, v4, 2, v222
        s_cmp_eq_u64 s[52:53], 0
        s_cbranch_scc1 L_kvdone
        L_kvn{i}:""")
    a(f"""s_sub_u32 s60, s60, 1
    s_cbranch_scc0 L_kv
    s_endpgm
    L_kvdone:
    s_mov_b64 exec, -1
    L_svcB2:""")
    srd(a, 16, 38, 448 * 896)
    a(f"""s_and_b32 s53, s{H}, 3
    s_mul_i32 s53, s53, 224
    s_and_b32 s27, s{L}, 1
    s_mul_i32 s55, s27, {7*1024}
    s_mul_i32 s57, s27, {32*896}
    s_add_u32 s57, s57, s53
    s_lshl1_add_u32 s28, s25, s27
    s_mul_i32 s28, s28, {49*128}
    v_mov_b32 v24, -1
    v_mov_b32 v25, -1
    v_mov_b32 v26, -1
    v_mov_b32 v27, -1
    s_lshl_b32 s59, s{J}, 6
    s_add_u32 s59, s59, s{H}
    s_lshl1_add_u32 s59, s59, s27
    s_lshl_b32 s59, s59, 10
    s_add_u32 s59, s59, {WS_O}""")
    spin_lds(a, 14, C_L, 4, 8, sleep=2)
    st(a, 3)
    a(f"""ds_write_b128 v209, v[16:19]
    {WOPF}
    s_cmp_lg_u32 s{L}, 2
    s_cbranch_scc1 L_nofl
    s_lshl_b32 s26, s2, 7
    s_add_u32 s26, s26, {WS_FL}""")
    flag_store(a, 5, 9, "s26")
    a("L_nofl:\ns_waitcnt vmcnt(0)")
    if "wogate" in EXP: spin_lds(a, 14, C_F, 2, 8, sleep=4)
    a("L_wo:")
    for e in range(7):
        a(f"""s_add_u32 m0, s55, {e*1024}
        s_waitcnt vmcnt({WOP})
        buffer_load_dwordx4 v{200+e}, s[16:19], s57 offen lds""")
    a(f"""s_cmp_ge_u32 s55, {56*1024}
    s_cbranch_scc1 L_noclr
    buffer_store_dwordx4 v[24:27], v1, s[8:11], s59 offen sc1
    s_add_u32 s59, s59, {16*2048}
    L_noclr:
    {OUTT}
    s_sub_u32 s26, s55, {56*1024}
    s_cmp_ge_u32 s26, {14*1024}
    s_cbranch_scc1 L_noinc""")
    lds_inc(a, 14, C_F, 15)
    a(f"""L_noinc:
    s_add_u32 s55, s55, {14*1024}
    s_add_u32 s57, s57, {64*896}
    s_cmp_lt_u32 s55, {98*1024}
    s_cbranch_scc1 L_wo""")
    a("s_waitcnt vmcnt(0)")
    lds_inc(a, 14, C_W, 15)
    st(a, 8)
    a.label("L_ofetch")
    a(f"""s_lshl2_add_u32 s28, s58, s{L}
    s_lshl_b32 s29, s28, 13
    s_add_u32 s29, s29, {WS_O}
    s_add_u32 s27, s29, 4096
    s_lshl_b32 s28, s28, 7
    s_add_u32 s28, s28, {WS_OFL}
    s_mul_i32 s26, s{L}, 12288
    s_add_u32 s26, s26, {CB}
    v_add_u32 v7, s26, v1
    s_lshl_b32 s26, s{L}, 2
    v_add_u32 v6, s26, v14
    s_lshl_b32 s26, 1, s{L}
    v_mov_b32 v5, s26""")
    spin_lds(a, 6, C_P, 1, 8, sleep=4)
    poll_pipe(a, 28, 220, "s28", 15, D=PD, gap=PG)
    a("L_of:\nv_mov_b32 v4, 0")
    for k in range(8):
        a(f"buffer_load_dwordx4 {vr(40+4*k,4)}, v1, s[8:11], {'s29' if k < 4 else 's27'} offen offset:{(k&3)*1024} sc1")
    a("s_sub_u32 s60, s60, 1\ns_cbranch_scc1 L_exit")
    for k in range(8):
        a(f"""s_waitcnt vmcnt({7-k})
        ds_write_b128 v7, {vr(40+4*k,4)} offset:{k*1024}
        v_max3_u32 v4, v4, v{40+4*k}, v{41+4*k}
        v_max3_u32 v4, v4, v{42+4*k}, v{43+4*k}""")
    a("v_cmp_eq_u32 vcc, -1, v4\ns_cbranch_vccnz L_of")
    lds_inc(a, 14, C_O, 5)
    a("s_waitcnt vmcnt(0) lgkmcnt(0)")
    st_end(a)
    a("L_exit:\nL_code_end:\ns_endpgm")

def main(out):
    hdr = open("cdna_kernels/" + NAME + ".s.ref").read().split("; Override")[0]
    rep = []
    a = Asm()
    prologue_and_loader(a); main_wave(a); service_wave(a)
    t = hdr
    t += f"; @launch grid=(256,1,1) block=(512,1,1) lds={LDS_BYTES}\n"
    t += '.amdgcn_target "amdgcn-amd-amdhsa--gfx950"\n'
    t += kernel_text(NAME + "_kernel", a.l, 256, report=rep)
    open(out, "w").write(t)
    if "-v" in sys.argv: print("\n".join(rep))

if __name__ == "__main__":
    main(sys.argv[1])
```

```python
import sys, math, struct
from asmlib import *

NAME = "gated_mix__softmax_full_mha__moe_arch_mod__prompt"
STAMP = "-s" in sys.argv
EXP = set(x[2:] for x in sys.argv if x.startswith("-x"))
WS_KV = 0
BLK = 5120; TS = 14 * BLK; KVB = 64 * TS
WS_O = 0x480000
WS_R = 0x680000
WS_G = WS_R + 16384
WS_SEL = WS_R + 32768
WS_EP = WS_R + 40960
WS_FL = WS_R + 65536
WS_MB = WS_FL + 32768
WS_OFL = WS_MB + 32768
WS_YFL = WS_OFL + 32768
WS_F1 = WS_YFL + 4096
WS_YP = WS_R + (1 << 18)
WS_GP = 0x730000
WS_ST = 16 << 20
XS = 0; WT = 65536; WQ = 122880; QX = 151552; UPD = 159744
WO = 0; CB = 102400
UPDI = UPD + 3584
KEYS = UPD
RT = UPD + 1024
SELECTOR = 223
CNT = 163840 - 192
C_I = 60
LDS_BYTES = 163840
C_Q1, C_Q2, C_X, C_L, C_S, C_D, C_C, C_O, C_W, C_F, C_K, C_T, C_P, C_R = 0, 4, 8, 12, 16, 20, 24, 28, 32, 36, 40, 44, 84, 64

def f32bits(x): return struct.unpack("<I", struct.pack("<f", x))[0]
QSCALE = f32bits(28 ** -0.5 * math.log2(math.e))
NLOG2E = f32bits(-math.log2(math.e))
MF = "v_mfma_f32_32x32x16_bf16"
ROLE = [0, 1, 2, 3, 14, 4, 5, 6, 7, 8, 9, 15, 10, 11, 12, 13]
ROLE_LO = sum(ROLE[i] << (4 * i) for i in range(8))
ROLE_HI = sum(ROLE[8 + i] << (4 * i) for i in range(8))
SPIN_LIMIT = 1 << 20
NQ1 = ([int(x[2:]) for x in EXP if x.startswith("nq")] + [4])[0]
WSBASE = ([int(x[2:]) for x in sys.argv if x.startswith("-w")] + [0])[0] << 20
PD = 4 if "pd4" in EXP else 2
PG = 3 if "pd4" in EXP else 6
PCD = 4 if "pcd4" in EXP else (0 if "pcd0" in EXP else 1)
KVS = 4 if "kvs4" in EXP else (0 if "kvs0" in EXP else 2)
PQ2 = 4 if "pq4" in EXP else (0 if "pq0" in EXP else 1)
PF0 = 2 if "pf2" in EXP else 0
WOP = 1 if "wo1" in EXP else (3 if "wo3" in EXP else 2)
OUTAUX = " sc1" if "outsc1" in EXP else (" nt" if "outnt" in EXP else "")

T, H, J, W, RL, ROT = 30, 31, 32, 33, 34, 3
_uid = [0]
def uid(p):
    _uid[0] += 1
    return f"{p}_{_uid[0]}"

def srd(a, d, ptr, nbytes):
    a(f"s_mov_b32 s{d}, s{ptr}\ns_mov_b32 s{d+1}, s{ptr+1}\ns_mov_b32 s{d+2}, {nbytes:#x}\ns_mov_b32 s{d+3}, 0x20000")

NST = 12
DIAG = [tuple(int(y) for y in x[2:].split("-")) for x in sys.argv if x.startswith("-d")]
def st(a, i):
    if STAMP: a(f"s_{'memrealtime' if 'rt' in EXP else 'memtime'} s[{72+2*i}:{73+2*i}]")
    if DIAG and i in DIAG[0]: a(f"s_memrealtime s[{72+2*i}:{73+2*i}]\ns_waitcnt lgkmcnt(0)")
def st_begin(a):
    if STAMP: a("s_memrealtime s[68:69]\ns_memtime s[72:73]" if "rt" not in EXP else "s_memrealtime s[68:69]\ns_memrealtime s[72:73]")
    if DIAG: a("s_memrealtime s[72:73]")
ABS = [x[2:] for x in sys.argv if x.startswith("-a")]
REL = [tuple(int(y) for y in x[2:].split("-")) for x in sys.argv if x.startswith("-r")]
if ABS:
    DIAG = [(0, 0 if ABS[0] == "z" else int(ABS[0].lstrip("m")))]
if REL:
    ABS = ["r"]; DIAG = REL
def diag_start(a):
    if not ABS: return
    a(f"""s_load_dwordx2 s[98:99], s[0:1], 80
    s_waitcnt lgkmcnt(0)
    s_cmp_ge_u32 s2, 8
    s_cbranch_scc1 L_dg0
    s_cmp_lg_u32 s{W}, 0
    s_cbranch_scc1 L_dg0
    s_lshl_b32 s70, s2, 2
    v_mov_b32 v4, s70
    v_mov_b32 v6, s72
    global_store_dword v4, v6, s[98:99] sc1
    L_dg0:""")
def diag_end(a):
    if not DIAG: return
    p, q = DIAG[0]
    if ABS:
        a(f"""s_waitcnt vmcnt(0)
        s_memrealtime s[96:97]
        s_mov_b64 exec, -1
        v_mov_b32 v4, 0
        global_load_dwordx4 v[8:11], v4, s[98:99] sc1
        global_load_dwordx4 v[12:15], v4, s[98:99] offset:16 sc1
        s_waitcnt vmcnt(0) lgkmcnt(0)
        v_min3_u32 v8, v8, v9, v10
        v_min3_u32 v8, v8, v11, v12
        v_min3_u32 v8, v8, v13, v14
        v_min_u32 v8, v8, v15
        s_nop 1
        v_readfirstlane_b32 s69, v8
        s_sub_u32 s70, s{72+2*q}, s69""")
        if ABS[0] == "z": a("s_mov_b32 s70, 0")
        if REL: a(f"s_sub_u32 s70, s{72+2*q}, s{72+2*p}\ns_lshl_b32 s70, s70, {0 if 'k1' in EXP else 2}")
        if "onlynw" in EXP: a("s_cmp_ge_u32 s2, 196\ns_cselect_b32 s70, s70, 0")
        if "only23" in EXP: a(f"s_cmp_ge_u32 s{W}, 2\ns_cselect_b32 s70, s70, 0")
        if ABS[0].startswith("m"): a("s_sub_u32 s70, 2500, s70")
        a("s_add_u32 s70, s70, s69\ns_add_u32 s70, s70, 2500")
    else:
        a(f"""s_waitcnt vmcnt(0)
        s_memrealtime s[96:97]
        s_waitcnt lgkmcnt(0)
        s_sub_u32 s70, s{72+2*q}, s{72+2*p}
        s_add_u32 s70, s70, s96""")
    a(f"""L_diag:
    s_memrealtime s[68:69]
    s_waitcnt lgkmcnt(0)
    s_sub_u32 s71, s68, s70
    s_cmp_lt_i32 s71, 0
    s_cbranch_scc1 L_diag""")
def st_init(a):
    if STAMP:
        for i in range(1, NST): a(f"s_mov_b32 s{72+2*i}, s72")
def st_end(a):
    if not STAMP: return
    a(f"""s_waitcnt vmcnt(0)
    s_memrealtime s[70:71]
    s_{'memrealtime' if 'rt' in EXP else 'memtime'} s[{72+2*NST}:{73+2*NST}]
    s_getreg_b32 s66, hwreg(HW_REG_HW_ID)
    s_getreg_b32 s67, hwreg(HW_REG_XCC_ID)
    s_mov_b64 exec, -1
    s_lshl_b32 s65, s2, 3
    s_add_u32 s65, s65, s{W}
    s_lshl_b32 s65, s65, 6
    s_add_u32 s65, s65, {WS_ST}
    s_waitcnt lgkmcnt(0)
    v_mov_b32 v4, s68
    v_mov_b32 v5, s70
    v_mov_b32 v6, s66
    v_mov_b32 v7, s67""")
    for i in range(1, NST + 1):
        a(f"s_sub_u32 s64, s{72+2*i}, s72\nv_mov_b32 v{7+i}, s64")
    a("v_mov_b32 v2, 0\ns_mov_b64 exec, 1")
    for k in range(4):
        a(f"buffer_store_dwordx4 v[{4+4*k}:{7+4*k}], v2, s[8:11], s65 offen offset:{16*k}")

def poll_global(a, vdst, voff, soff, mask=None, sleep=1):
    l = uid("Lpoll"); d = uid("Lpd")
    a(f"s_mov_b32 s60, {SPIN_LIMIT}")
    if mask is not None: a(f"s_mov_b64 exec, {mask}")
    a(f"""{l}:
    buffer_load_dword v{vdst}, v{voff}, s[8:11], {soff} offen sc1
    s_waitcnt vmcnt(0)
    v_cmp_ne_u32 vcc, s{T}, v{vdst}
    s_cbranch_vccz {d}
    s_mov_b64 exec, vcc
    s_sleep {sleep}
    s_sub_u32 s60, s60, 1
    s_cbranch_scc0 {l}
    s_endpgm
    {d}:
    s_mov_b64 exec, -1""")

def poll_atomic(a, vdst, voff, soff, mask, sleep):
    l = uid("Lpa"); d = uid("Lpad")
    a(f"""s_mov_b32 s60, {SPIN_LIMIT}
    s_mov_b64 exec, {mask}
    {l}:
    v_mov_b32 v{vdst}, 0
    buffer_atomic_or v{vdst}, v{voff}, s[8:11], {soff} offen sc0 sc1
    s_waitcnt vmcnt(0)
    v_cmp_ne_u32 vcc, s{T}, v{vdst}
    s_cbranch_vccz {d}
    s_sleep {sleep}
    s_sub_u32 s60, s60, 1
    s_cbranch_scc0 {l}
    s_endpgm
    {d}:
    s_mov_b64 exec, -1""")

def poll_pipe(a, v0, voff, soff, mask, D=4, gap=3):
    l = uid("Lpp"); d = uid("Lppd")
    at = lambda r: f"v_mov_b32 v{r}, 0\nbuffer_atomic_or v{r}, v{voff}, s[8:11], {soff} offen sc0 sc1"
    a(f"s_mov_b32 s60, {SPIN_LIMIT}\ns_mov_b64 exec, {mask}")
    for i in range(D - 1): a(at(v0 + i) + f"\ns_sleep {gap}")
    a(f"{l}:")
    for i in range(D):
        a(at(v0 + (i + D - 1) % D))
        a(f"s_waitcnt vmcnt({D-1})\nv_cmp_ne_u32 vcc, s{T}, v{v0+i}\ns_cbranch_vccz {d}")
    a(f"""s_sub_u32 s60, s60, 1
    s_cbranch_scc0 {l}
    s_endpgm
    {d}:
    s_mov_b64 exec, -1""")

def signal(a, vt, voff, soff, mask):
    a(f"v_mov_b32 v{vt}, s{T}\ns_mov_b64 exec, {mask}\nbuffer_atomic_swap v{vt}, v{voff}, s[8:11], {soff} offen sc1\ns_mov_b64 exec, -1")

def spin_lds(a, vaddr, off, want, vt, sleep=0):
    l = uid("Lsp"); d = uid("Lsd")
    a(f"""s_mov_b32 s60, {SPIN_LIMIT}
    {l}:
    ds_read_b32 v{vt}, v{vaddr} offset:{off}
    s_waitcnt lgkmcnt(0)
    v_readfirstlane_b32 s61, v{vt}
    s_cmp_ge_u32 s61, {want}
    s_cbranch_scc1 {d}""")
    if sleep: a(f"s_sleep {sleep}")
    a(f"""s_sub_u32 s60, s60, 1
    s_cbranch_scc0 {l}
    s_endpgm
    {d}:""")

def lds_inc(a, vaddr, off, vone):
    a(f"s_mov_b64 exec, 1\nds_add_u32 v{vaddr}, v{vone} offset:{off}\ns_mov_b64 exec, -1")

def flag_store(a, vt, vz, soff):
    a(f"v_mov_b32 v{vt}, s{T}\ns_mov_b64 exec, 1\nbuffer_store_dword v{vt}, v{vz}, s[8:11], {soff} offen sc1\ns_mov_b64 exec, -1")

def split_neg_max(a, m, t0, t1, q6, q7):
    a(f"""v_sub_f32 v{m}, 0, v{m}
    v_cvt_pk_bf16_f32 v{t0}, v{m}, v{m}
    v_lshlrev_b32 v{t0}, 16, v{t0}
    v_sub_f32 v{t0}, v{m}, v{t0}
    v_cvt_pk_bf16_f32 v{t1}, v{m}, v{t0}
    v_and_b32 v{m}, 0xffff0000, v{t1}
    v_sub_f32 v{t0}, v{t0}, v{m}
    s_mov_b32 exec_lo, 0
    v_mov_b32 v{q6}, v{t1}
    v_cvt_pk_bf16_f32 v{q7}, v{t0}, 0
    s_mov_b32 exec_lo, -1""")

def max16_list(dst, S, init=False):
    if not init:
        return ([f"v_max3_f32 v{dst}, v{S}, v{S+1}, v{S+2}"] +
                [f"v_max3_f32 v{dst}, v{dst}, v{S+i}, v{S+i+1}" for i in range(3, 15, 2)] +
                [f"v_max_f32 v{dst}, v{dst}, v{S+15}"])
    return [f"v_max3_f32 v{dst}, v{dst}, v{S+i}, v{S+i+1}" for i in range(0, 16, 2)]

def wave_min_u32(a, v, full=True):
    for r in (1, 2, 4, 8):
        a(f"v_min_u32_dpp v{v}, v{v}, v{v} row_ror:{r} row_mask:0xf bank_mask:0xf")
    a(f"v_min_u32_dpp v{v}, v{v}, v{v} row_bcast:15 row_mask:0xa bank_mask:0xf")
    if full: a(f"v_min_u32_dpp v{v}, v{v}, v{v} row_bcast:31 row_mask:0xc bank_mask:0xf")

def tag(a):
    a(f"s_mul_i32 s{T}, s{T}, 0x9e3779b1\ns_add_u32 s{T}, s{T}, 0x7f4a7c15")

def next_chunk(a, s):
    a(f"s_add_u32 s{s}, s{s}, 1\ns_cmp_eq_u32 s{s}, 7\ns_cselect_b32 s{s}, 0, s{s}")

Q, O, KV, S, P = 8, 40, 104, 168, 200
XF = 104; A0, A1, WF = 40, 56, 72
VX = 216; VW = 220; VQ = 222; VC = 223; V1 = 224; VZ = 225; VT = 226; VH = 227
VA = 228; TMP = 232; XR = 240; GR = 248; VWQ = 250; VF = 251; VFS = 252; VXO = 253; VGO = 254
OWN = 3
L = 35
FT, KS = 66, 59
GI = 49152

NE0 = 0 if "e0" in EXP else (8 if "e8" in EXP else 4)
def gu(a, lo, hi, pace):
    for k in range(lo, hi):
        if k % 4 == 0: a(f"s_add_u32 m0, s67, {1024*k}\ns_add_u32 s26, s52, {8*k*3584}")
        if pace and k > lo and k % 2 == 0: a("s_waitcnt vmcnt(0)")
        a(f"buffer_load_dwordx4 v{34+(k&3)}, s[20:23], s26 offen offset:{1024*(k&3)} lds")

def prologue_and_loader(a):
    MAPCODE = ""
    if "map2" in EXP:
        MAPCODE = f"s_and_b32 s26, s25, 1\ns_lshl1_add_u32 s{H}, s24, s26\ns_lshr_b32 s{J}, s25, 1\ns_lshl1_add_u32 s{ROT}, s26, s{J}\ns_add_u32 s{ROT}, s{ROT}, s24\ns_and_b32 s{ROT}, s{ROT}, 3\ns_lshl_b32 s{ROT}, s{ROT}, 1"
        if "norot" in EXP: MAPCODE += f"\ns_mov_b32 s{ROT}, 0"
    TADDR = "v_lshl_add_u32 v8, v3, 7, s58"
    if "t64" in EXP: TADDR = "v_and_b32 v8, 60, v3\nv_lshl_add_u32 v8, v8, 4, s58\nv_add_u32 v8, v8, v1"
    if "rot7" in EXP:
        ROTCODE = f"s_lshl1_add_u32 s{ROT}, s27, s26\ns_cmp_ge_u32 s{ROT}, 7\ns_cselect_b32 s26, 7, 0\ns_sub_u32 s{ROT}, s{ROT}, s26"
    elif "rot2" not in EXP and "norot" not in EXP and "rot23" not in EXP:
        ROTCODE = f"s_add_u32 s{ROT}, s27, s26\ns_and_b32 s{ROT}, s{ROT}, 3\ns_lshl_b32 s{ROT}, s{ROT}, 1"
    elif "norot" in EXP:
        ROTCODE = f"s_mov_b32 s{ROT}, 0"
    elif "rot23" in EXP:
        ROTCODE = f"s_add_u32 s{ROT}, s27, s26\ns_and_b32 s{ROT}, s{ROT}, 1\ns_mul_i32 s{ROT}, s{ROT}, 3"
    else:
        ROTCODE = f"s_add_u32 s{ROT}, s27, s26\ns_and_b32 s{ROT}, s{ROT}, 1\ns_lshl_b32 s{ROT}, s{ROT}, 2"
    st_begin(a)
    a(f"""s_load_dwordx4 s[4:7], s[0:1], 0
    s_load_dwordx2 s[36:37], s[0:1], 88
    s_load_dwordx2 s[38:39], s[0:1], 16
    s_load_dwordx8 s[40:47], s[0:1], 32
    s_load_dwordx4 s[48:51], s[0:1], 64
    s_cmp_ge_u32 s2, 256
    s_cbranch_scc1 L_exit
    v_lshrrev_b32 v2, 6, v0
    v_and_b32 v3, 63, v0
    s_and_b32 s24, s2, 7
    s_lshr_b32 s25, s2, 3
    v_readfirstlane_b32 s{W}, v2
    s_and_b32 s{H}, s24, 1
    s_lshl_b32 s{H}, s{H}, 3
    s_and_b32 s26, s25, 7
    s_add_u32 s{H}, s{H}, s26
    s_lshr_b32 s27, s25, 3
    s_and_b32 s{J}, s24, 6
    s_lshl1_add_u32 s{J}, s{J}, s27
    {ROTCODE}
    {MAPCODE}
    s_mov_b32 s28, {ROLE_LO:#x}
    s_mov_b32 s29, {ROLE_HI:#x}
    s_lshl_b32 s27, s{H}, 2
    s_lshr_b64 s[28:29], s[28:29], s27
    s_and_b32 s{RL}, s28, 15
    v_lshlrev_b32 v1, 4, v3
    s_mov_b32 s27, {WS_EP}
    s_cmp_lt_u32 s{W}, 4
    s_cbranch_scc1 L_main
    """)
    a(f"""s_setprio 2
    s_sub_u32 s{L}, s{W}, 4
    v_lshrrev_b32 v4, 3, v3
    v_mul_u32_u24 v5, 896, v4
    v_and_b32 v6, 7, v3
    v_lshrrev_b32 v7, 4, v3
    v_xor_b32 v7, v6, v7
    v_lshl_add_u32 v10, v7, 4, v5
    v_xor_b32 v11, 64, v10
    v_add_u32 v12, {2*6144}, v10
    v_add_u32 v13, {3*6144}, v11
    v_add_u32 v11, 6144, v11
    v_mul_u32_u24 v5, 2688, v4
    v_and_b32 v4, 2, v4
    v_lshlrev_b32 v4, 1, v4
    v_xor_b32 v4, v4, v6
    v_lshl_add_u32 v14, v4, 4, v5
    v_add_u32 v15, {8*2688-1024}, v14
    s_lshl2_add_u32 s52, s{J}, s{L}
    s_mul_i32 s58, s52, 14
    s_add_u32 s58, s58, s{RL}
    s_mul_i32 s58, s58, {BLK}
    {TADDR}
    s_mul_i32 s52, s52, {32*896}
    s_lshl_b32 s53, s{RL}, 7
    s_mul_i32 s26, s{L}, {16*2688}
    s_add_u32 s53, s53, s26
    s_add_u32 s53, s53, 896
    s_lshl_b32 s54, s{L}, 12
    s_lshl_b32 s55, s{L}, 11
    s_add_u32 s55, s55, {WT}
    s_mov_b32 s56, s{ROT}
    s_mov_b32 s57, 0
    s_mov_b32 s14, {2048*896}
    s_mov_b32 s15, 0x20000
    s_cmp_ge_u32 s{RL}, 14
    s_cselect_b32 s18, 0, {448*2688}
    s_mov_b32 s19, 0x20000
    s_waitcnt lgkmcnt(0)
    s_mov_b64 s[12:13], s[4:5]
    s_mov_b64 s[16:17], s[6:7]
    s_load_dword s{T}, s[36:37], s27""")
    st_init(a); st(a, 1)
    if "t64" in EXP:
        if "t64" in EXP:
            a(f"""s_cbranch_scc1 L_ld
            global_store_dwordx4 v8, v[10:13], s[36:37] sc1
            global_store_dwordx4 v8, v[10:13], s[36:37] offset:2048 sc1""")
        else: a(f"""s_cbranch_scc1 L_ld
        s_cmp_ge_u32 s{RL}, 7
        s_cselect_b32 exec_hi, 1, 0xff
        global_store_dword v8, v8, s[36:37] sc1
        s_mov_b32 exec_hi, -1""")
    a(f"""L_ld:
    s_mul_i32 s26, s56, {64*2688}
    s_mov_b32 m0, s55
    s_add_u32 s26, s26, s53
    s_lshl_b32 s28, s56, 7
    buffer_load_dwordx4 v14, s[16:19], s26 offen lds
    buffer_load_dwordx4 v15, s[16:19], s26 offen offset:1024 lds
    s_mov_b32 m0, s54
    s_add_u32 s28, s28, s52
    buffer_load_dwordx4 v10, s[12:15], s28 offen lds
    buffer_load_dwordx4 v11, s[12:15], s28 offen offset:1024 lds
    buffer_load_dwordx4 v12, s[12:15], s28 offen offset:2048 lds
    buffer_load_dwordx4 v13, s[12:15], s28 offen offset:3072 lds
    s_add_u32 s55, s55, 8192
    s_add_u32 s54, s54, 16384
    s_and_b32 s54, s54, 0xffff""")
    next_chunk(a, 56)
    if "tlb" in EXP:
        a(f"s_or_b32 s26, s57, s{L}\ns_cbranch_scc0 L_tlb\nL_tlb_done:")
    a(f"""s_add_u32 s57, s57, 1
    s_cmp_lt_u32 s57, 3
    s_cbranch_scc1 L_ld
    s_waitcnt vmcnt(12)
    s_barrier
    s_cmp_lt_u32 s57, 7
    s_cbranch_scc1 L_ld
    """)
    a(f"""v_lshrrev_b32 v4, 2, v3
    v_mul_u32_u24 v4, 2688, v4
    v_and_b32 v5, 3, v3
    v_lshl_add_u32 v16, v5, 4, v4
    s_mov_b32 s18, {448*2688}
    s_mul_i32 s53, s{H}, 56
    s_and_b32 s53, s53, 0xfffffff0
    s_mul_i32 s26, s{L}, {16*2688}
    s_add_u32 s53, s53, s26
    s_lshl_b32 s55, s{L}, 10
    s_add_u32 s55, s55, {WQ}""")
    for i in range(NQ1):
        a(f"""s_mul_i32 s26, s56, {64*2688}
        s_add_u32 m0, s55, {i*4096}
        s_add_u32 s26, s26, s53
        buffer_load_dwordx4 v16, s[16:19], s26 offen lds""")
        if i < NQ1 - 1: next_chunk(a, 56)
        if i == 1:
            a(f"""s_mul_i32 s{FT}, s2, 9363
            s_lshr_b32 s{FT}, s{FT}, 16
            s_mul_i32 s26, s{FT}, 7
            s_sub_u32 s{KS}, s2, s26
            v_lshrrev_b32 v4, 3, v3
            v_and_b32 v5, 2, v4
            v_lshlrev_b32 v5, 1, v5
            v_and_b32 v6, 7, v3
            v_xor_b32 v5, v5, v6
            v_mul_u32_u24 v6, 3584, v4
            v_lshl_add_u32 v34, v5, 4, v6
            v_add_u32 v35, {8*3584-1024}, v34
            v_add_u32 v36, {2*(8*3584-1024)}, v34
            v_add_u32 v37, {3*(8*3584-1024)}, v34
            s_lshl_b32 s67, s{L}, 13
            s_add_u32 s67, s67, {GI}
            s_cmp_eq_u32 s{L}, 1
            s_cselect_b64 s[20:21], s[44:45], s[42:43]
            s_mov_b32 s23, 0x20000
            s_mul_i32 s52, s{KS}, {64*3584}
            s_lshl_b32 s28, s{FT}, 7
            s_add_u32 s52, s52, s28
            s_lshr_b32 s28, s{L}, 1
            s_cmp_ge_u32 s2, 196
            s_cselect_b32 s28, 1, s28
            s_cmp_eq_u32 s28, 0
            s_cselect_b32 s22, {448*3584}, 0""")
            a("s_waitcnt vmcnt(8)\ns_barrier")
        if i == 3: a("s_waitcnt vmcnt(4)\ns_barrier")
    st(a, 2)
    a("s_cmp_eq_u32 s22, 0\ns_cbranch_scc1 L_service0")
    gu(a, 0, NE0, False)
    a(f"s_waitcnt vmcnt({NE0})\ns_branch L_service")
    if "tlb" in EXP:
        a("L_tlb:")
        if "tlbR" in EXP: a(f"s_cmp_lt_u32 s{RL}, 14\ns_cbranch_scc1 L_tlb_done")
        for off in (0, 2 << 20, 4 << 20):
            a(f"s_mov_b32 s26, {off + 4032}\ns_load_dword s66, s[36:37], s26")
        for p in (42, 44, 38, 46, 50):
            a(f"s_load_dword s66, s[{p}:{p+1}], 0")
        a("s_branch L_tlb_done")

def main_wave(a):
    a.label("L_main")
    diag_start(a)
    if "nocodepf" not in EXP:
        a(f"""s_cmp_lg_u32 s{W}, 0
        s_cbranch_scc1 L_nopf
        s_getpc_b64 s[28:29]
        L_pc:
        s_and_b32 s26, s25, 3
        s_lshl_b32 s26, s26, 13
        v_lshl_add_u32 v4, v3, 7, s26
        v_min_u32 v4, L_code_end-L_pc, v4
        global_load_dword v5, v4, s[28:29]
        L_nopf:""")
    a(f"""s_setprio 1
    v_and_b32 v{VT}, 31, v3
    v_lshrrev_b32 v{VH}, 5, v3
    v_mov_b32 v{V1}, 1
    v_mov_b32 v{VZ}, 0
    v_mov_b32 v{VC}, {CNT}
    v_lshrrev_b32 v4, 2, v1
    v_add_u32 v4, {UPDI}, v4
    v_mov_b32 v6, -1
    s_mov_b32 exec_hi, 0
    ds_write_b32 v4, v6
    v_and_b32 v6, 7, v3
    v_cmp_eq_u32 vcc, 4, v6
    v_mov_b32 v7, {KVB+1}
    v_cndmask_b32 v6, 0, v7, vcc
    ds_write_b32 v4, v6 offset:{CNT-UPDI+C_R}
    s_mov_b32 exec_lo, 0xffff
    ds_write_b32 v4, v{VZ} offset:{CNT-UPDI}
    s_mov_b64 exec, -1
    v_lshrrev_b32 v4, 1, v{VT}
    v_and_b32 v4, 7, v4
    v_xor_b32 v4, v4, v{VH}
    v_lshlrev_b32 v4, 4, v4
    v_lshl_add_u32 v4, v{VT}, 7, v4
    s_lshl_b32 s26, s{W}, 12
    v_add_u32 v{VX}, s26, v4
    v_xor_b32 v{VX+1}, 32, v{VX}
    v_xor_b32 v{VX+2}, 64, v{VX}
    v_xor_b32 v{VX+3}, 96, v{VX}
    v_bfe_u32 v4, v3, 2, 2
    v_lshl_add_u32 v12, v{VH}, 3, v4
    v_and_b32 v6, 3, v3
    v_and_b32 v7, 1, v3
    v_bfe_u32 v8, v3, 1, 1
    v_lshl_add_u32 v7, v7, 1, v8
    v_bfe_u32 v8, v3, 4, 1
    v_lshl_add_u32 v9, v8, 2, v7
    v_lshl_add_u32 v10, v8, 2, v6
    s_cmp_lt_u32 s{RL}, 7
    s_cselect_b64 vcc, -1, 0
    v_cndmask_b32 v10, v10, v9, vcc
    v_lshlrev_b32 v11, 7, v12
    v_lshl_add_u32 v11, v10, 3, v11
    v_lshrrev_b32 v4, 1, v4
    v_lshl_add_u32 v11, v4, 6, v11
    v_add_u32 v{VW}, {WT}, v11
    v_xor_b32 v{VW+1}, 64, v{VW}
    v_add_u32 v10, 2, v9
    v_sub_u32 v11, 7, v9
    v_cmp_gt_u32 vcc, 6, v9
    v_cndmask_b32 v10, v11, v10, vcc
    s_bitcmp1_b32 s{H}, 0
    s_cselect_b64 vcc, -1, 0
    v_cndmask_b32 v10, v9, v10, vcc
    v_lshlrev_b32 v11, 6, v12
    v_lshl_add_u32 v11, v10, 3, v11
    v_add_u32 v{VQ}, {WQ}, v11
    v_lshrrev_b32 v4, 2, v3
    v_mul_u32_u24 v4, 2688, v4
    v_lshl_add_u32 v{VWQ}, v6, 4, v4
    s_cmp_ge_u32 s{RL}, 7
    s_cselect_b32 s26, 7, 0
    s_cselect_b32 s29, 2, 0
    s_sub_u32 s26, s{RL}, s26
    s_mul_i32 s28, s26, {64*2341}
    s_lshr_b32 s28, s28, 16
    v_add_u32 v4, s28, v6
    v_mul_u32_u24 v7, 28, v4
    v_lshrrev_b32 v7, 6, v7
    v_cmp_ge_u32 s[64:65], s26, v7
    v_cmp_ne_u32 vcc, s26, v7
    s_and_b32 s28, s{J}, 12
    s_add_u32 s29, s28, s29
    v_mov_b32 v7, s29
    v_addc_co_u32 v7, vcc, 0, v7, vcc
    s_and_b32 s28, s{J}, 3
    v_lshl_add_u32 v4, v4, 2, s28
    v_bfe_u32 v8, v3, 2, 2
    v_lshl_add_u32 v4, v4, 2, v8
    v_lshlrev_b32 v4, 7, v4
    v_lshl_add_u32 v{VFS}, v7, 2, v4
    s_and_b32 s64, s64, 0xffff
    s_cmp_ge_u32 s{RL}, 14
    s_cselect_b32 s64, 0, s64
    s_mov_b32 s65, 0
    s_lshl_b32 s28, s{W}, 5
    v_add_u32 v{VF}, s28, v{VC}
    s_lshl_b32 s28, s{J}, 2
    s_lshr_b32 s58, s{H}, 2
    s_add_u32 s58, s58, s28
    s_and_b32 s59, s{H}, 3
    s_lshl2_add_u32 s59, s59, s{W}
    s_mul_i32 s59, s59, 56
    s_lshl_b32 s28, s58, 5
    v_add_u32 v4, s28, v{VT}
    v_mul_u32_u24 v{VXO}, 896, v4
    v_lshl_add_u32 v{VXO}, v{VH}, 4, v{VXO}
    v_lshlrev_b32 v{VGO}, 3, v4
    s_waitcnt lgkmcnt(0)
    """)
    st_init(a)
    srd(a, 8, 36, (1 << 28) - WSBASE)
    srd(a, 16, 6, 448 * 2688)
    srd(a, 12, 4, 2048 * 896)
    if "wqpf" in EXP:
        a(f"""s_cmp_lg_u32 s{W}, 1
        s_cbranch_scc1 L_nopf2
        v_lshrrev_b32 v4, 2, v3
        v_min_u32 v4, 13, v4
        v_mul_u32_u24 v4, 2688, v4
        v_and_b32 v6, 3, v3
        v_lshl_add_u32 v4, v6, 7, v4
        s_mul_i32 s26, s25, {14*2688}
        s_and_b32 s28, s24, 1
        s_mul_i32 s28, s28, 384
        s_add_u32 s26, s26, s28
        buffer_load_dword v5, v4, s[16:19], s26 offen
        L_nopf2:""")
    if "wopfS" in EXP:
        srd(a, 20, 38, 448 * 896)
        a(f"""s_cmp_lg_u32 s{W}, 2
        s_cbranch_scc1 L_nopf3
        s_mul_i32 s26, s2, {13*128}
        v_lshl_add_u32 v4, v3, 7, s26
        s_mov_b64 exec, 0x1fff
        buffer_load_dword v5, v4, s[20:23], 0 offen
        s_mov_b64 exec, -1
        L_nopf3:""")
    a(f"""s_mul_i32 s62, s{H}, 56
    s_and_b32 s62, s62, 0xfffffff0
    s_mul_i32 s26, s{W}, {16*2688}
    s_add_u32 s62, s62, s26
    s_lshl_b32 s63, s{W}, 10
    s_add_u32 s63, s63, {WQ}
    s_lshl2_add_u32 s35, s{J}, s{W}
    s_mul_i32 s52, s35, 14
    s_add_u32 s52, s52, s{RL}
    s_mul_i32 s52, s52, {BLK}
    s_add_u32 s53, s52, 4096
    s_lshr_b32 s26, s{H}, 1
    s_mul_i32 s26, s26, 7
    s_and_b32 s28, s{H}, 1
    s_lshl2_add_u32 s29, s28, s26
    v_add_u32 v4, s29, v{VH}
    v_lshrrev_b32 v6, 3, v4
    v_mul_u32_u24 v6, {BLK-4096}, v6
    v_lshl_add_u32 v6, v4, 9, v6
    v_lshl_add_u32 v{VA}, v{VT}, 4, v6
    v_add_u32 v4, 2, v4
    v_lshrrev_b32 v6, 3, v4
    v_mul_u32_u24 v6, {BLK-4096}, v6
    v_lshl_add_u32 v6, v4, 9, v6
    s_add_u32 s26, s26, 3
    s_lshr_b32 s29, s26, 3
    s_mul_i32 s29, s29, {BLK}
    s_and_b32 s26, s26, 1
    s_lshl_b32 s26, s26, 9
    s_add_u32 s29, s29, s26
    s_add_u32 s29, s29, 4096
    v_mov_b32 v7, s29
    v_and_b32 v4, s28, v{VH}
    v_cmp_eq_u32 vcc, 1, v4
    v_cndmask_b32 v6, v6, v7, vcc
    v_lshl_add_u32 v{VA+1}, v{VT}, 4, v6
    s_mul_i32 s26, s{H}, 28
    v_add_u32 v4, s26, v{VT}
    v_lshrrev_b32 v6, 6, v4
    v_mul_u32_u24 v6, {BLK}, v6
    v_bfe_u32 v7, v4, 5, 1
    v_lshl_add_u32 v6, v7, 11, v6
    v_and_b32 v4, 31, v4
    v_lshl_add_u32 v6, v4, 4, v6
    v_lshl_add_u32 v6, v{VH}, 9, v6
    v_add_u32 v6, {7*BLK}, v6
    v_add_u32 v8, 1024, v6
    s_lshr_b32 s26, s26, 6
    s_mul_i32 s26, s26, {BLK}
    s_add_u32 s26, s26, {7*BLK + 4096 - 28*16}
    v_lshl_add_u32 v7, v{VT}, 4, s26
    v_cmp_le_u32 vcc, 28, v{VT}
    v_cndmask_b32 v{VA+2}, v6, v7, vcc
    v_cndmask_b32 v{VA+3}, v8, v7, vcc
    s_cmp_ge_u32 s{RL}, 14
    s_cbranch_scc1 L_roleR
    s_cmp_ge_u32 s{RL}, 7
    s_cbranch_scc1 L_roleV""")

    def gemm(kind):
        if "twait" in EXP:
            st(a, 10); a("s_waitcnt vmcnt(0)"); st(a, 11)
        def reads(c, s):
            k = 4 * c + s
            a(f"ds_read_b128 {vr(XF+4*k,4)}, v{VX+s} offset:{(c&3)*16384}")
            f = WF + 8 * s
            if kind == "R":
                a(f"ds_read_b128 {vr(f,4)}, v{VW} offset:{k*32}")
            else:
                for n in range(2):
                    a(f"ds_read_b64_tr_b16 {vr(f+4*n,2)}, v{VW+n} offset:{k*2048}")
                    a(f"ds_read_b64_tr_b16 {vr(f+4*n+2,2)}, v{VW+n} offset:{k*2048+512}")
        def mfmas(c, s):
            k = 4 * c + s
            f = WF + 8 * s
            for n in range(1 if kind == "R" else 2):
                acc = (A0, A1)[n]
                cc = "0" if k == 0 else vr(acc, 16)
                if kind == "V": a(f"{MF} {vr(acc,16)}, {vr(XF+4*k,4)}, {vr(f+4*n,4)}, {cc}")
                else:           a(f"{MF} {vr(acc,16)}, {vr(f+4*n,4)}, {vr(XF+4*k,4)}, {cc}")
        per = 2 if kind == "R" else 5
        for c in range(7):
            a("s_barrier")
            if c == 0: st(a, 1)
            if c == 6: st(a, 2)
            if STAMP and c in (0, 6): a("s_waitcnt lgkmcnt(0)")
            reads(c, 0); reads(c, 1)
            for s in range(4):
                if s < 2: reads(c, s + 2)
                a(f"s_waitcnt lgkmcnt({min(3 - s, 2) * per})")
                mfmas(c, s)

    PK = 8
    MS = 20
    a(f"""v_add_u32 v4, s{RL}, v{VH}""")
    for i in range(4):
        a(f"""v_cmp_eq_u32 vcc, {3-2*i}, v4
        v_cmp_eq_u32 s[{MS+2*i}:{MS+1+2*i}], {10-2*i}, v4
        s_or_b64 s[{MS+2*i}:{MS+1+2*i}], s[{MS+2*i}:{MS+1+2*i}], vcc""")
    a(f"v_mov_b32 v{TMP+2}, 0x3f803f80\nv_mov_b32 v{TMP+3}, 0x3f803f80")
    gemm("K")
    for i in range(4):
        acc = (A0, A1)[i >> 1] + 8 * (i & 1)
        p = PK + 4 * i
        for e in range(4): a(f"v_cvt_pk_bf16_f32 v{p+e}, v{acc+2*e}, v{acc+2*e+1}")
        l = uid("Lnosh")
        a(f"""s_mov_b64 exec, s[{MS+2*i}:{MS+1+2*i}]
        s_cbranch_execz {l}
        v_mov_b32 v{TMP}, v{p+2}
        v_mov_b32 v{TMP+1}, v{p+3}
        v_mov_b32 v{p+2}, 0x3f803f80
        v_mov_b32 v{p+3}, 0x3f803f80
        buffer_store_dwordx4 {vr(TMP,4)}, v1, s[8:11], s53 offen sc1
        s_nop 1
        {l}:
        s_mov_b64 exec, -1
        buffer_store_dwordx4 {vr(p,4)}, v1, s[8:11], s52 offen offset:{1024*i} sc1""")
    a("s_branch L_pub")
    a.label("L_roleR")
    if "pfx" in EXP:
        C0 = 1 if "pf1" in EXP else 2
        a(f"""v_mul_u32_u24 v4, 896, v{VT}
        v_lshl_add_u32 v4, v{VH}, 7, v4
        s_mul_i32 s26, s35, {32*896}
        v_lshrrev_b32 v6, 3, v{VT}
        v_mul_u32_u24 v6, 2688, v6
        v_and_b32 v7, 7, v3
        v_min_u32 v7, 6, v7
        v_lshl_add_u32 v6, v7, 7, v6
        v_mul_u32_u24 v7, {64*2688}, v{VH}
        v_add_u32 v6, v6, v7
        s_and_b32 s28, s35, 15
        s_mul_i32 s28, s28, {4*2688}
        s_and_b32 s29, s24, 1
        s_mul_i32 s29, s29, 896
        s_add_u32 s28, s28, s29
        s_add_u32 s28, s28, {896 + C0*64*2688}""")
        for c in range(C0, 7, 2):
            if c == 6: a("s_mov_b32 exec_hi, 0")
            a(f"""buffer_load_dword v5, v4, s[12:15], s26 offen offset:{128*c}
            buffer_load_dword v5, v6, s[16:19], s28 offen
            s_add_u32 s28, s28, {128*2688}""")
        a("s_mov_b64 exec, -1")
    srd(a, 20, 40, 896)
    a(f"""s_lshl_b32 s28, s{ROT}, 7
    v_add_u32 v4, s28, v1
    v_subrev_u32 v6, 896, v4
    v_min_u32 v4, v4, v6
    s_mov_b32 m0, {RT}
    s_nop 0
    buffer_load_dwordx4 v4, s[20:23], 0 offen lds
    s_mov_b32 s20, s48
    s_mov_b32 s21, s49
    s_mov_b32 m0, {RT+1024}
    s_nop 0
    buffer_load_dwordx4 v4, s[20:23], 0 offen lds
    v_and_b32 v4, 1, v3
    v_lshlrev_b32 v4, 10, v4
    v_lshl_add_u32 v4, v{VH}, 4, v4
    v_add_u32 v{VW}, {RT}, v4
    s_waitcnt vmcnt(0)""")
    gemm("R")
    a(f"""s_cmp_lg_u32 s{RL}, 14
    s_cbranch_scc1 L_pub
    s_mov_b32 exec_hi, 0
    s_nop 9
    v_cvt_pk_bf16_f32 v4, v{A0}, v{A0+1}
    v_and_b32 v5, 0xffff0000, v4
    v_lshlrev_b32 v4, 16, v4
    v_ashrrev_i32 v6, 31, v4
    v_or_b32 v6, 0x80000000, v6
    v_xor_b32 v6, v6, v4
    v_and_b32 v6, 0xffff0000, v6
    v_cmp_u_f32 vcc, v4, v4
    v_cndmask_b32 v6, v6, 0, vcc
    s_lshl_b32 s26, s35, 5
    v_add_u32 v7, s26, v{VT}
    v_sub_u32 v8, 0xffff, v7
    v_or_b32 v6, v6, v8
    v_lshlrev_b32 v9, 3, v7
    v_and_b32 v7, 127, v7
    v_lshlrev_b32 v7, 2, v7
    v_add_u32 v7, {KEYS}, v7
    ds_write_b32 v7, v6
    s_mov_b32 exec_lo, 1
    ds_add_u32 v{VC}, v{V1} offset:{C_K}
    s_mov_b32 exec_lo, -1
    v_mul_f32 v5, {NLOG2E:#x}, v5
    v_exp_f32 v5, v5
    v_add_f32 v5, 1.0, v5
    v_rcp_f32 v5, v5
    v_cvt_pk_bf16_f32 v5, v5, v5
    v_lshlrev_b32 v10, 16, v5
    s_mov_b32 exec_hi, -1
    s_branch L_pub
    """)
    a.label("L_roleV")
    a(f"""v_cmp_eq_u32 vcc, 0, v3
    v_mov_b32 v7, 0x3f803f80
    v_cndmask_b32 v{TMP}, 0, v7, vcc""")
    for e in range(1, 4): a(f"v_mov_b32 v{TMP+e}, v{TMP}")
    gemm("V")
    a(f"s_mov_b64 exec, 0xff\nbuffer_store_dwordx4 {vr(TMP,4)}, v1, s[8:11], s53 offen sc1\ns_mov_b64 exec, -1")
    for i in range(4):
        acc = (A0, A1)[i >> 1] + 8 * (i & 1)
        p = PK + 4 * i
        for e in range(4): a(f"v_cvt_pk_bf16_f32 v{p+e}, v{acc+2*e}, v{acc+2*e+1}")
        a(f"buffer_store_dwordx4 {vr(p,4)}, v1, s[8:11], s52 offen offset:{1024*i} sc1")
    a.label("L_pub")
    st(a, 3)
    a(f"s_add_u32 s56, s{ROT}, {NQ1}\ns_cmp_ge_u32 s56, 7\ns_cselect_b32 s26, 7, 0\ns_sub_u32 s56, s56, s26")
    for i in range(NQ1, 7):
        a(f"""s_mul_i32 s26, s56, {64*2688}
        s_add_u32 m0, s63, {i*4096}
        s_add_u32 s26, s26, s62
        buffer_load_dwordx4 v{VWQ}, s[16:19], s26 offen lds""")
        if i < 6: next_chunk(a, 56)
    lds_inc(a, VC, C_I, V1)
    QO = Q + 8 * OWN
    SK = TMP
    a(f"""s_mov_b64 s[16:17], s[36:37]
    s_mov_b32 s18, {KVB}
    s_mov_b32 s57, 0""")
    def ldK(b, soff, base=None):
        r = KV + 16 * b if base is None else base
        return [f"buffer_load_dwordx4 {vr(r,4)}, v{VA}, s[16:19], {soff} offen sc1",
                f"buffer_load_dwordx4 {vr(r+4,4)}, v{VA+1}, s[16:19], {soff} offen sc1"]
    def ldV(b, soff):
        return [f"buffer_load_dwordx4 {vr(KV+16*b+8,4)}, v{VA+2}, s[16:19], {soff} offen sc1",
                f"buffer_load_dwordx4 {vr(KV+16*b+12,4)}, v{VA+3}, s[16:19], {soff} offen sc1"]
    def try_loads(block=False):
        d = uid("Ltl"); l = uid("Ltr")
        a(f"s_cmp_lg_u32 s57, 0\ns_cbranch_scc1 {d}")
        if block: a(f"s_mov_b32 s60, {SPIN_LIMIT}\n{l}:\ns_sub_u32 s60, s60, 1\ns_cbranch_scc1 L_exit")
        a(f"""ds_read_b32 v4, v{VF} offset:{C_R}
        ds_read_b32 v5, v{VC} offset:{C_R}
        s_waitcnt lgkmcnt(0)
        v_readfirstlane_b32 s56, v4
        v_readfirstlane_b32 s29, v5
        s_min_u32 s57, s56, s29
        s_cmp_eq_u32 s57, 0
        s_cbranch_scc1 {l if block else d}
        s_sub_u32 s29, s29, 1
        s_sub_u32 s27, s56, 1
        s_add_u32 s54, s56, {TS-1}
        s_add_u32 s55, s56, {2*TS-1}
        s_add_u32 s56, s56, {3*TS-1}""")
        st(a, 6)
        for x in ldK(0, "s29", SK) + ldK(0, "s27") + ldV(0, "s27") + ldK(1, "s54") + ldV(1, "s54"): a(x)
        a(f"{d}:")
    def qreads(k):
        f = WF + 4 * (k & 7)
        a(f"ds_read_b64_tr_b16 {vr(f,2)}, v{VQ} offset:{k*1024}\nds_read_b64_tr_b16 {vr(f+2,2)}, v{VQ} offset:{k*1024+256}")
    def publish():
        a(f"""s_mov_b32 s28, {WS_MB}
        v_readfirstlane_b32 s{T}, v11
        v_mov_b32 v6, v11
        s_mov_b64 exec, 1
        s_waitcnt vmcnt({7-NQ1})""")
        st(a, 4)
        a(f"""ds_add_rtn_u32 v4, v{VC}, v{V1} offset:{C_D}
        s_waitcnt lgkmcnt(0)
        v_cmp_eq_u32 vcc, 3, v4
        s_cbranch_vccz L_notlast
        s_mov_b64 exec, s[64:65]
        s_cbranch_execz L_notlast
        buffer_atomic_swap v6, v{VFS}, s[8:11], s28 offen sc1
        s_waitcnt vmcnt(1)
        s_branch L_published
        L_notlast:
        s_waitcnt vmcnt(0)
        s_cmp_lg_u32 s{RL}, 14
        s_cbranch_scc1 L_published
        s_mov_b32 s26, {WS_G}
        s_mov_b32 exec_lo, -1
        buffer_store_dwordx2 v[10:11], v9, s[8:11], s26 offen sc1
        L_published:""")
        a("s_mov_b64 exec, -1")
    def qgemm(lo, hi, cnt):
        spin_lds(a, VC, cnt, 4, 4)
        if not lo: a(f"ds_read_b32 v11, v{VC} offset:{C_T}")
        for k in range(lo, min(hi, lo + 6)): qreads(k)
        for k in range(lo, hi):
            if k + 6 < hi: qreads(k + 6)
            a(f"s_waitcnt lgkmcnt({2*(min(hi-1,k+6)-k)})")
            a(f"{MF} {vr(A0,16)}, {vr(WF+4*(k&7),4)}, {vr(XF+4*k,4)}, {'0' if k==0 else vr(A0,16)}")
    def qepi():
        for i in range(8): a(f"v_mov_b32 v{P+8+i}, 0")
        a(f"""s_lshl_b32 s26, s{W}, 11
        s_add_u32 s26, s26, {QX}
        v_add_u32 v5, s26, v1
        s_mov_b32 s62, {QSCALE:#x}
        s_mov_b32 s63, {QSCALE:#x}""")
        for i in range(8): a(f"v_pk_mul_f32 {vr(A0+2*i,2)}, {vr(A0+2*i,2)}, s[62:63]")
        for i in range(8): a(f"v_cvt_pk_bf16_f32 v{QO+i}, v{A0+2*i}, v{A0+2*i+1}")
        a(f"""s_mov_b32 exec_lo, 0
        v_mov_b32 v{QO+6}, 0
        v_mov_b32 v{QO+7}, 0
        s_mov_b32 exec_lo, -1
        ds_write_b128 v5, {vr(QO,4)}
        ds_write_b128 v5, {vr(QO+4,4)} offset:1024""")
        lds_inc(a, VC, C_X, V1)
        for i in range(0, 64, 2): a(f"v_pk_mul_f32 {vr(O+i,2)}, {vr(P+8,2)}, {vr(P+8,2)}")
    qgemm(0, 4 * NQ1, C_Q1)
    if NQ1 == 7 and "qfirst" in EXP:
        st(a, 5)
        qepi(); publish(); try_loads()
    elif NQ1 == 7:
        st(a, 5)
        publish(); try_loads(); qepi()
    else:
        publish()
        lds_inc(a, VC, C_Q2, V1)
        try_loads()
        qgemm(4 * NQ1, 28, C_Q2)
        st(a, 5)
        try_loads()
        qepi()
    spin_lds(a, VC, C_X, 4, 4)
    for i in range(3):
        a(f"""s_add_u32 s26, s{W}, {i+1}
        s_and_b32 s26, s26, 3
        s_lshl_b32 s26, s26, 11
        s_add_u32 s26, s26, {QX}
        v_add_u32 v5, s26, v1
        ds_read_b128 {vr(Q+8*i,4)}, v5
        ds_read_b128 {vr(Q+8*i+4,4)}, v5 offset:1024""")
    try_loads(block=True)
    def QK(u, m):
        kt, qs = (u >> 2) & 3, u & 3
        s = S + 16 * (u & 1)
        c = "0" if m == 0 else vr(s, 16)
        return f"{MF} {vr(s,16)}, {vr(KV+16*kt+4*m,4)}, {vr(Q+8*qs+4*m,4)}, {c}"
    def PV(u, m):
        kt, qs = (u >> 2) & 3, u & 3
        return f"{MF} {vr(O+16*qs,16)}, {vr(KV+16*kt+8+4*m,4)}, {vr(P+8*(u&1)+4*m,4)}, {vr(O+16*qs,16)}"
    SS = [S, S + 16, KV + 32, KV + 48]
    def samp(i, m): return f"{MF} {vr(SS[i],16)}, {vr(SK+4*m,4)}, {vr(Q+8*i+4*m,4)}, {'0' if m == 0 else vr(SS[i],16)}"
    def mx(i):
        for x in max16_list(4, SS[i]): a(x)
        a(f"s_mov_b32 exec_lo, 0\nv_cvt_pk_bf16_f32 v{Q+8*i+6}, -v4, 0\ns_mov_b32 exec_lo, -1")
    a("s_waitcnt vmcnt(8) lgkmcnt(0)")
    for i in range(4): a(samp(i, 0)); a(samp(i, 1))
    mx(0)
    a("s_waitcnt vmcnt(4)")
    a(QK(0, 0)); a(QK(0, 1))
    mx(1); mx(2)
    for x in ldK(2, "s55") + ldV(2, "s55"): a(x)
    mx(3)
    for x in ldK(3, "s56"): a(x)
    for i in range(0, 8, 2): a(f"v_pk_mul_f32 {vr(KV+56+i,2)}, {vr(P+8,2)}, {vr(P+8,2)}")
    for i in range(3):
        a(f"""s_add_u32 s26, s{W}, {i+1}
        s_and_b32 s26, s26, 3
        s_mul_i32 s26, s26, 12288
        s_add_u32 s26, s26, {CB + i*4096}
        v_add_u32 v{4+i}, s26, v1""")
    a(f"s_mul_i32 s26, s{W}, 12288\ns_add_u32 s26, s26, {CB}\nv_add_u32 v2, s26, v1")
    lds_inc(a, VC, C_L, V1)
    st(a, 7)
    a("s_mov_b32 s57, 3")
    def substep(u, ex, last=False):
        s = S + 16 * (u & 1); p = P + 8 * (u & 1)
        e = lambda i: f"v_exp_f32 v{s+i}, v{s+i}"
        c = lambda i: f"v_cvt_pk_bf16_f32 v{p+i}, v{s+2*i}, v{s+2*i+1}"
        q0, q1 = ([], []) if last else ([QK(u+1, 0)], [QK(u+1, 1)])
        seq = q0 + ex[0] + [e(0), e(1), e(2), e(3), c(0), e(4),
               PV(u-1, 0)] + ex[1] + [e(5), c(1), e(6), e(7), c(2), e(8)] + q1 + ex[2] + [e(9), c(3), e(10), e(11), c(4), e(12),
               PV(u-1, 1)] + ex[3] + [e(13), c(5), e(14), e(15), c(6), c(7)]
        for x in seq: a(x)
    a(".p2align 6")
    a.label("L_loop")
    for u in range(16):
        kt, qs = u >> 2, u & 3
        ex = [[], [], [], []]
        if qs == 1:
            l = ldV((kt + 3) & 3, "s56")
            ex[0] = [l[0]]; ex[1] = [l[1]]; ex[2] = [f"s_add_u32 s56, s56, {TS}"]
        if u == 0: ex[0] = [f"ds_read_b32 v7, v{VF} offset:{C_R+4}"]
        if u == 1:
            ex[2] = ["s_waitcnt lgkmcnt(0)", "v_readfirstlane_b32 s56, v7"]
            ex[3] = ["s_sub_u32 s56, s56, 1"]
        if u == 2:
            ex[0] = ["s_cbranch_scc1 L_nextwait", "L_nextok:", f"v_add_u32 v{VF}, 4, v{VF}"]
        if qs == 2 and "nowait" not in EXP: ex[3] = ["s_waitcnt vmcnt(10)"]
        if qs == 0 and "nowait" not in EXP: ex[3] = ["s_waitcnt vmcnt(10)"]
        if qs == 3:
            l = ldK(kt, "s56")
            ex[0] = [l[0]]; ex[1] = [l[1]]
        if u == 12: ex[0] = [f"ds_read_b32 v7, v{VC} offset:{C_F}"]
        if u == 13: ex[3] = ["s_sub_u32 s57, s57, 1"]
        if "itst" in EXP and u in (0, 8):
            a("s_waitcnt lgkmcnt(0)")
            for i in range(1, 6): a(f"s_mov_b32 s{72+2*i}, s{72+2*i+2}")
            a("s_memtime s[84:85]")
        if "noload" in EXP: ex = [[y for y in x if "buffer_load" not in y] for x in ex]
        substep(u, ex)
        if u == 13: a("s_cbranch_scc1 L_tail")
    a("s_branch L_loop")
    a.label("L_tail")
    st(a, 8)
    a(f"""s_waitcnt lgkmcnt(0)
    v_cmp_gt_u32 vcc, 4, v7
    s_cbranch_vccnz L_wait_ffn
    L_ffn_free:""")
    wr = lambda i, k: f"ds_write_b128 v{4+i}, {vr(O+16*i+4*k,4)} offset:{k*1024}"
    substep(14, [[], [wr(0, 0)], [wr(0, 1)], [wr(0, 2)]])
    substep(15, [[wr(0, 3)], [wr(1, 0)], [wr(1, 1)], [wr(1, 2)]], last=True)
    a(PV(15, 0)); a(wr(1, 3)); a(PV(15, 1))
    for k in range(4): a(wr(2, k))
    lds_inc(a, VC, C_C, V1)
    srd(a, 20, 50, 2048 * 896)
    TT = S
    OO = O + 16 * OWN
    a(f"""s_lshl_b32 s28, s35, 4
    s_add_u32 s28, s28, s{H}
    s_lshr_b32 s56, s28, 2
    s_lshl_b32 s56, s56, 5
    s_and_b32 s26, s{H}, 3
    s_add_u32 s56, s56, s26
    s_lshl_b32 s56, s56, 2
    s_add_u32 s56, s56, {WS_OFL}
    s_lshl_b32 s52, s28, 11
    s_add_u32 s52, s52, {WS_O}
    s_mov_b32 s57, 0""")
    spin_lds(a, VC, C_C, 4, 7)
    for k in range(12): a(f"ds_read_b128 {vr(TT+4*k,4)}, v2 offset:{k*1024}")
    a(f"s_lshl_b32 s26, s{W}, 5\nv_add_u32 v7, s26, v{VC}\nds_write_b32 v7, v{V1} offset:{C_P}")
    for i in range(3):
        a(f"s_waitcnt lgkmcnt({9-4*i})")
        for k in (6, 7, 0, 1, 2, 3, 4, 5): a(f"v_pk_add_f32 {vr(OO+2*k,2)}, {vr(OO+2*k,2)}, {vr(TT+16*i+2*k,2)}")
    a.label("L_fin")
    a(f"""v_mov_b32 v5, v{OO+12}
    v_mov_b32 v4, v{OO+12}
    s_mov_b32 exec_lo, 0
    v_mov_b32 v{OO+12}, 0
    s_mov_b32 exec_lo, -1
    v_permlane32_swap_b32 v5, v4
    v_rcp_f32 v6, v4
    s_mov_b32 s28, 0x30800000
    s_mov_b32 s29, 0x4e800000
    v_cmp_nle_f32 s[54:55], s28, v4
    v_cmp_nge_f32 s[62:63], s29, v4
    v_pk_add_f32 v[4:5], {vr(OO,2)}, {vr(OO+2,2)}""")
    for k in range(2, 8): a(f"v_pk_add_f32 v[4:5], v[4:5], {vr(OO+2*k,2)}")
    a(f"""v_add_f32 v4, v4, v5
    s_movk_i32 s28, 0x207
    v_cmp_class_f32 vcc, v4, s28
    s_or_b64 s[54:55], s[54:55], s[62:63]""")
    for k in range(8): a(f"v_pk_mul_f32 {vr(OO+2*k,2)}, {vr(OO+2*k,2)}, v[6:7] op_sel_hi:[1,0]")
    for k in range(8): a(f"v_cvt_pk_bf16_f32 v{Q+k}, v{OO+2*k}, v{OO+2*k+1}")
    a(f"""v_mov_b32 v6, s{T}
    s_or_b64 s[54:55], s[54:55], vcc
    s_cbranch_scc1 L_bad
    L_good:
    buffer_store_dwordx4 {vr(Q,4)}, v1, s[8:11], s52 offen sc1
    buffer_store_dwordx4 {vr(Q+4,4)}, v1, s[8:11], s52 offen offset:1024 sc1
    s_mov_b64 exec, 1
    buffer_atomic_swap v6, v{VZ}, s[8:11], s56 offen sc1
    s_mov_b64 exec, -1""")
    st(a, 9)
    a(f"""s_mov_b32 s26, {WS_G}
    buffer_load_dwordx2 {vr(GR,2)}, v{VGO}, s[8:11], s26 offen sc1
    buffer_load_dwordx4 {vr(XR,4)}, v{VXO}, s[12:15], s59 offen
    buffer_load_dwordx4 {vr(XR+4,4)}, v{VXO}, s[12:15], s59 offen offset:32""")
    WOF = 104; B = 232; ACC = 8; U = 40
    OSB = [40, 72]
    a(f"""v_bfe_u32 v4, v3, 2, 2
    v_lshl_add_u32 v4, v{VH}, 2, v4
    v_mul_u32_u24 v4, 224, v4
    v_bfe_u32 v5, v3, 4, 1
    v_lshl_add_u32 v4, v5, 5, v4
    v_and_b32 v5, 1, v3
    v_lshl_add_u32 v4, v5, 4, v4
    v_bfe_u32 v5, v3, 1, 1
    v_lshl_add_u32 v4, v5, 3, v4
    s_mul_i32 s28, s{W}, 56
    v_add_u32 v24, s28, v4
    v_add_u32 v25, {8*28*224}, v24
    v_add_u32 v26, {CB}, v1
    v_lshlrev_b32 v27, 2, v{VT}
    v_add_u32 v27, {UPDI}, v27
    s_mul_i32 s28, s{W}, 112
    s_add_u32 s28, s28, {UPD}
    v_lshl_add_u32 v28, v{VH}, 5, s28
    v_mov_b32 v29, {CNT}
    v_mov_b32 v30, 0
    v_mov_b32 v31, 0
    s_waitcnt vmcnt(6)""")
    spin_lds(a, 29, C_W, 2, 6)
    for k in range(32):
        hd, m = k >> 1, k & 1
        o = (28 * (hd & 7) + 16 * m) * 224
        b = 24 + (hd >> 3)
        a(f"ds_read_b64_tr_b16 {vr(WOF+4*k,2)}, v{b} offset:{o}\nds_read_b64_tr_b16 {vr(WOF+4*k+2,2)}, v{b} offset:{o+8*224}")
    for k in range(8): a(f"v_pk_mul_f32 {vr(ACC+2*k,2)}, v[30:31], v[30:31]")
    a("s_waitcnt vmcnt(0)")
    for k in range(8):
        a(f"v_lshlrev_b32 v{B+2*k}, 16, v{XR+k}\nv_and_b32 v{B+2*k+1}, 0xffff0000, v{XR+k}")
    a(f"""v_cmp_ne_u32 vcc, s{T}, v{GR+1}
    s_cbranch_vccnz L_gate
    L_gate_ok:
    v_sub_f32 v32, 1.0, v{GR}
    v_cvt_pk_bf16_f32 v32, v32, v32
    v_lshlrev_b32 v32, 16, v32
    s_mov_b32 s60, {SPIN_LIMIT}""")
    if "twait" not in EXP: st(a, 10)
    def stub(): pass
    def need(bit):
        l = uid("Lnd"); d = uid("Lndd")
        a(f"""s_bitcmp1_b32 s61, {bit}
        s_cbranch_scc1 {d}
        {l}:
        ds_read_b32 v6, v29 offset:{C_O}
        s_sub_u32 s60, s60, 1
        s_cbranch_scc1 L_exit
        s_waitcnt lgkmcnt(0)
        v_readfirstlane_b32 s61, v6
        s_bitcmp1_b32 s61, {bit}
        s_cbranch_scc0 {l}
        {d}:""")
    def rd(g):
        for k in range(8): a(f"ds_read_b128 {vr(OSB[g&1]+4*k,4)}, v26 offset:{g*12288+k*1024}")
    def mm(g, lo, hi):
        for k in range(lo, hi):
            a(f"{MF} {vr(ACC,16)}, {vr(WOF+32*g+4*k,4)}, {vr(OSB[g&1]+4*k,4)}, {vr(ACC,16)}")
    a(f"""ds_read_b32 v6, v29 offset:{C_O}
    s_mov_b32 s57, 0
    s_waitcnt lgkmcnt(0)
    v_readfirstlane_b32 s61, v6
    s_bitcmp1_b32 s61, 10
    s_cbranch_scc1 L_blkU
    s_mov_b32 s57, 1
    L_next0:""")
    need(0); rd(0)
    for g in range(4):
        if g < 3: a(f"ds_read_b32 v6, v29 offset:{C_O}")
        a("s_waitcnt lgkmcnt(0)")
        mm(g, 0, 2)
        if g < 3:
            a(f"v_readfirstlane_b32 s61, v6\ns_bitcmp1_b32 s61, {g+1}\ns_cbranch_scc0 L_late{g}")
            rd(g + 1)
        mm(g, 2, 8)
        a(f"L_back{g}:")
    a("s_cmp_lg_u32 s57, 0\ns_cbranch_scc1 L_lateU\nL_next1:")
    if "twait" not in EXP: st(a, 11)
    a("s_nop 9")
    for m in range(2):
        for e in range(4*m, 4*m+4):
            a(f"v_pk_fma_f32 {vr(B+2*e,2)}, {vr(ACC+2*e,2)}, {vr(GR,2)}, {vr(B+2*e,2)} op_sel_hi:[1,0,1]")
        for e in range(4*m, 4*m+4): a(f"v_cvt_pk_bf16_f32 v{40+e}, v{B+2*e}, v{B+2*e+1}")
        if m == 0:
            a(f"buffer_store_dwordx4 v[40:43], v{VXO}, s[20:23], s59 offen{OUTAUX}")
            stub()
        else:
            a(f"""s_mov_b32 exec_hi, 0
            buffer_store_dwordx4 v[44:47], v{VXO}, s[20:23], s59 offen offset:32{OUTAUX}
            s_mov_b64 exec, 0xffffffff
            s_not_b64 exec, exec
            buffer_store_dwordx2 v[44:45], v{VXO}, s[20:23], s59 offen offset:32{OUTAUX}""")
    st_end(a)
    diag_end(a)
    a("s_endpgm")
    for g in range(3):
        a(f"L_late{g}:")
        mm(g, 2, 8)
        need(g + 1); rd(g + 1)
        a(f"s_branch L_back{g}")
    a("L_lateU:")
    need(10)
    a(f"""L_blkU:
    ds_read_b32 v6, v27
    s_waitcnt lgkmcnt(0)
    v_cmp_le_i32 vcc, 0, v6
    s_cbranch_vccz L_noupd
    s_mov_b64 exec, vcc
    v_mul_u32_u24 v6, 448, v6
    v_add_u32 v28, v28, v6""")
    for k in range(4): a(f"ds_read_b128 {vr(U+4*k,4)}, v28 offset:{64*(k>>1)+16*(k&1)}")
    a("s_waitcnt lgkmcnt(0)")
    for k in range(8):
        a(f"""v_pk_add_f32 {vr(B+2*k,2)}, {vr(B+2*k,2)}, {vr(U+2*k,2)}
        v_cvt_pk_bf16_f32 v{B+2*k}, v{B+2*k}, v{B+2*k+1}
        v_and_b32 v{B+2*k+1}, 0xffff0000, v{B+2*k}
        v_lshlrev_b32 v{B+2*k}, 16, v{B+2*k}""")
    a("s_mov_b64 exec, -1\nL_noupd:")
    stub()
    for k in range(8): a(f"v_pk_mul_f32 {vr(B+2*k,2)}, {vr(B+2*k,2)}, v[32:33] op_sel_hi:[1,0]")
    a("s_cmp_lg_u32 s57, 0\ns_cbranch_scc1 L_next1\ns_branch L_next0")
    a("L_bad:\ns_cmp_eq_u32 s57, 0\ns_cbranch_scc1 L_slow")
    for k in range(8): a(f"v_min_u32 v{Q+k}, -2, v{Q+k}")
    a("s_branch L_good")
    a.label("L_wait_ffn")
    spin_lds(a, VC, C_F, 4, 7)
    a("s_branch L_ffn_free")
    a.label("L_nextwait")
    spin_lds(a, VF, C_R + 4, 1, 7)
    a("s_sub_u32 s56, s61, 1\ns_branch L_nextok")
    a(f"""L_gate:
    s_mov_b32 s26, {WS_G}
    s_mov_b32 s60, {SPIN_LIMIT}
    L_gate1:
    buffer_load_dwordx2 {vr(GR,2)}, v{VGO}, s[8:11], s26 offen sc1
    s_waitcnt vmcnt(0)
    v_cmp_ne_u32 vcc, s{T}, v{GR+1}
    s_cbranch_vccz L_gate_ok
    s_sub_u32 s60, s60, 1
    s_cbranch_scc0 L_gate1
    s_endpgm""")
    a.label("L_slow")
    a(f"""s_mov_b32 s57, 1
    s_mov_b32 s55, {KVB}
    s_mov_b32 s54, 0
    s_mov_b32 exec_lo, 0
    v_mov_b32 v{QO+6}, 0
    v_mov_b32 v{QO+7}, 0
    s_mov_b32 exec_lo, -1
    v_mov_b32 v4, 0xff800000
    L_slow1:
    {ldK(0, "s54")[0]}
    {ldK(0, "s54")[1]}
    s_waitcnt vmcnt(0)
    {MF} {vr(S,16)}, {vr(KV,4)}, {vr(QO,4)}, 0
    {MF} {vr(S,16)}, {vr(KV+4,4)}, {vr(QO+4,4)}, {vr(S,16)}""")
    for x in max16_list(4, S, init=True): a(x)
    a(f"""s_add_u32 s54, s54, {TS}
    s_cmp_lt_u32 s54, s55
    s_cbranch_scc1 L_slow1
    v_mov_b32 v5, v4
    v_permlane32_swap_b32 v4, v5
    v_max_f32 v4, v4, v5""")
    split_neg_max(a, 4, 5, 6, QO + 6, QO + 7)
    for i in range(16): a(f"v_mov_b32 v{OO+i}, 0")
    a(f"""s_mov_b32 s54, 0
    L_slow2:
    {ldK(0, "s54")[0]}
    {ldK(0, "s54")[1]}
    {ldV(0, "s54")[0]}
    {ldV(0, "s54")[1]}
    s_waitcnt vmcnt(0)
    {MF} {vr(S,16)}, {vr(KV,4)}, {vr(QO,4)}, 0
    {MF} {vr(S,16)}, {vr(KV+4,4)}, {vr(QO+4,4)}, {vr(S,16)}""")
    for i in range(16): a(f"v_exp_f32 v{S+i}, v{S+i}")
    for i in range(8): a(f"v_cvt_pk_bf16_f32 v{P+i}, v{S+2*i}, v{S+2*i+1}")
    a(f"""{MF} {vr(OO,16)}, {vr(KV+8,4)}, {vr(P,4)}, {vr(OO,16)}
    {MF} {vr(OO,16)}, {vr(KV+12,4)}, {vr(P+4,4)}, {vr(OO,16)}
    s_nop 7
    s_nop 7
    s_add_u32 s54, s54, {TS}
    s_cmp_lt_u32 s54, s55
    s_cbranch_scc1 L_slow2
    s_branch L_fin""")

def service_wave(a):
    a("L_service0:\ns_waitcnt vmcnt(0)")
    a.label("L_service")
    a(f"""v_mov_b32 v14, {CNT}
    v_mov_b32 v15, 1
    v_mov_b32 v9, 0""")
    srd(a, 8, 36, (1 << 28) - WSBASE)
    a("s_waitcnt lgkmcnt(0)")
    tag(a)
    a(f"v_mov_b32 v4, s{T}\nds_write_b32 v14, v4 offset:{C_T}")
    lds_inc(a, 14, C_Q1, 15)
    a(f"""v_and_b32 v32, 31, v3
    v_lshrrev_b32 v33, 5, v3
    v_lshlrev_b32 v219, 3, v1
    v_lshrrev_b32 v220, 2, v1
    v_and_b32 v4, 7, v3
    v_lshlrev_b32 v217, 3, v4
    s_lshr_b32 s58, s{H}, 2
    s_lshl2_add_u32 s58, s{J}, s58
    s_cmp_ge_u32 s{L}, 2
    s_cbranch_scc1 L_svcB""")
    def sel_load(lbl):
        a(f"""s_mov_b32 s26, {WS_SEL}
        s_mov_b32 s60, {SPIN_LIMIT}
        {lbl}:
        buffer_load_dwordx2 v[20:21], v217, s[8:11], s26 offen sc1
        s_waitcnt vmcnt(0)
        v_cmp_ne_u32 vcc, s{T}, v21
        s_cbranch_vccz {lbl}_ok
        s_sleep 4
        s_sub_u32 s60, s60, 1
        s_cbranch_scc0 {lbl}
        s_endpgm
        {lbl}_ok:""")
    DI = QX; HB = 101376
    a(f"""v_lshrrev_b32 v6, 2, v3
    v_mul_u32_u24 v6, 896, v6
    v_and_b32 v5, 3, v3
    v_lshl_add_u32 v200, v5, 4, v6
    v_add_u32 v201, {16*896-1024}, v200
    v_add_u32 v202, {2*(16*896-1024)}, v200
    v_add_u32 v203, {3*(16*896-1024)}, v200
    ; transposing-read base: (8hh + r)*128 + ((r>>1)&1)*64 + colhalf*32 + c*8
    v_bfe_u32 v4, v3, 2, 2
    v_lshl_add_u32 v5, v33, 3, v4
    v_lshlrev_b32 v5, 7, v5
    v_lshrrev_b32 v4, 1, v4
    v_lshl_add_u32 v5, v4, 6, v5
    v_bfe_u32 v4, v3, 4, 1
    v_lshl_add_u32 v5, v4, 5, v5
    v_and_b32 v4, 3, v3
    v_lshl_add_u32 v5, v4, 3, v5
    v_lshrrev_b32 v6, 4, v3
    v_bfe_u32 v7, v3, 2, 2
    v_lshl_add_u32 v8, v6, 3, v7
    v_lshlrev_b32 v8, 7, v8
    v_lshrrev_b32 v7, 1, v7
    v_lshl_add_u32 v8, v7, 6, v8
    v_lshl_add_u32 v8, v4, 3, v8
    v_add_u32 v38, s67, v8
    v_xor_b32 v39, 64, v38
    v_lshlrev_b32 v213, 4, v6
    v_lshrrev_b32 v6, 7, v5
    v_and_b32 v5, 63, v5
    v_lshl_add_u32 v5, v6, 6, v5
    s_lshl_b32 s26, s{L}, 12
    s_add_u32 s26, s26, {DI}
    v_add_u32 v210, s26, v5
    ; partial-sum store offset 4hh*256 + col*4 ; h addresses ; y offsets
    v_lshlrev_b32 v212, 3, v213
    v_lshl_add_u32 v212, v217, 1, v212
    s_lshl_b32 s26, s{L}, 6
    s_add_u32 s26, s26, {HB}
    v_and_b32 v4, 56, v3
    v_lshl_add_u32 v214, v217, 4, s26
    v_add_u32 v214, v214, v4
    v_lshlrev_b32 v4, 4, v217
    v_lshl_add_u32 v4, v33, 4, v4
    v_add_u32 v218, {HB}, v4
    v_mul_u32_u24 v215, {4*1792}, v33
    v_lshl_add_u32 v215, v32, 2, v215
    v_add_u32 v216, {2*1792}, v215""")
    XS_ = 40; FW = 72; AC = 104
    if NE0 < 8:
        a("s_cmp_ge_u32 s2, 196\ns_cbranch_scc1 L_topk")
        spin_lds(a, 14, C_I, 4, 8)
        gu(a, NE0, 8, False)
    a.label("L_topk")
    a(f"""v_mov_b32 v6, {KEYS}
    s_lshl_b32 s28, s{L}, 8
    v_add3_u32 v7, v220, v6, s28
    s_lshl_b32 s27, s{J}, 6
    s_add_u32 s27, s27, {WS_R}
    s_cmp_eq_u32 s{RL}, 14
    s_cbranch_scc1 L_rank
    s_cmp_lg_u32 s2, {SELECTOR}
    s_cbranch_scc1 L_svcA
    s_lshl_b32 s26, s{L}, 9
    s_add_u32 s26, s26, {WS_R}
    s_mov_b32 s27, {WS_SEL}
    v_lshlrev_b32 v4, 3, v3
    v_mov_b32 v5, 2
    s_mov_b32 s60, {SPIN_LIMIT}
    L_keys:
    v_mov_b32 v20, 0
    v_mov_b32 v21, 0
    buffer_atomic_or_x2 v[20:21], v4, s[8:11], s26 offen sc0 sc1
    s_sub_u32 s60, s60, 1
    s_cbranch_scc1 L_exit
    s_waitcnt vmcnt(0)
    v_cmp_ne_u32 vcc, s{T}, v21
    s_cbranch_vccnz L_keys
    ds_write_b32 v7, v20""")
    lds_inc(a, 14, C_K, 5)
    a.label("L_rank")
    spin_lds(a, 14, C_K, 4, 8)
    st(a, 10)
    if STAMP: a("s_waitcnt lgkmcnt(0)")
    a(f"ds_read_b32 v20, v7\nv_mov_b32 v22, 0\nv_mov_b32 v21, s{T}\ns_mov_b32 s57, 0\nL_rk:")
    for k in range(8): a(f"ds_read_b128 {vr(40+4*k,4)}, v6 offset:{16*k}")
    a("v_add_u32 v6, 128, v6")
    CS = ["s[52:53]", "s[54:55]", "s[62:63]", "s[28:29]"]
    for k in range(8):
        a(f"s_waitcnt lgkmcnt({7-k})")
        for e in range(4): a(f"v_cmp_gt_u32 {CS[e]}, v{40+4*k+e}, v20")
        for e in range(4): a(f"v_addc_co_u32 v22, vcc, 0, v22, {CS[e]}")
    a(f"""s_add_u32 s57, s57, 1
    s_cmp_lt_u32 s57, 4
    s_cbranch_scc1 L_rk
    v_cmp_gt_u32 vcc, 8, v22
    v_lshlrev_b32 v22, 3, v22
    s_mov_b64 exec, vcc
    s_cbranch_execz L_rank_done
    buffer_atomic_swap_x2 v[20:21], v22, s[8:11], s27 offen sc1
    L_rank_done:
    s_mov_b64 exec, -1""")
    st(a, 11)
    a.label("L_svcA")
    a("s_cmp_ge_u32 s2, 196\ns_cbranch_scc1 L_nofn\ns_waitcnt vmcnt(0)")
    for k in range(2):
        for n in range(4):
            o = k * 4096 + (n & 1) * 32
            a(f"ds_read_b64_tr_b16 {vr(FW+16*k+4*n,2)}, v{38+(n>>1)} offset:{o}\nds_read_b64_tr_b16 {vr(FW+16*k+4*n+2,2)}, v{38+(n>>1)} offset:{o+512}")
    lds_inc(a, 14, C_F, 15)
    srd(a, 16, 46, 1792 * 896)
    a(f"""s_mul_i32 s28, s{FT}, {64*896}
    s_lshl1_add_u32 s26, s{KS}, s{L}
    s_lshl_b32 s26, s26, 6
    s_add_u32 s28, s28, s26
    s_lshl_b32 s29, s{L}, 12
    s_add_u32 m0, s29, {DI}""")
    spin_lds(a, 14, C_L, 4, 8, sleep=2)
    st(a, 3)
    for k in range(4):
        if k == 2 or ("wd1" in EXP and k): a("s_waitcnt vmcnt(0)")
        a(f"buffer_load_dwordx4 v{200+k}, s[16:19], s28 offen offset:{1024*k} lds")
    sel_load("L_sel1")
    a(f"""s_movk_i32 s29, 896
    v_and_b32 v4, 0xffff, v20
    v_sub_u32 v4, 0xffff, v4
    v_mad_u32_u24 v4, v4, s29, v213
    s_lshl_b32 s26, s{KS}, 7
    s_mov_b32 exec_lo, 0x00ff00ff
    s_mov_b32 exec_hi, 0x00ff00ff
    buffer_load_dwordx4 {vr(XS_,4)}, v4, s[12:15], s26 offen
    buffer_load_dwordx4 {vr(XS_+4,4)}, v4, s[12:15], s26 offen offset:64
    s_mov_b64 exec, -1
    s_lshl1_add_u32 s26, s2, s{L}
    s_lshl_b32 s26, s26, 11
    s_add_u32 s26, s26, {WS_GP}
    s_waitcnt vmcnt(0) lgkmcnt(0)""")
    st(a, 4)
    for k in range(2):
        for n in range(4):
            a(f"v_mfma_f32_16x16x32_bf16 {vr(AC+4*n,4)}, {vr(FW+16*k+4*n,4)}, {vr(XS_+4*k,4)}, {'0' if k==0 else vr(AC+4*n,4)}")
    a("s_mov_b32 exec_lo, 0x00ff00ff\ns_mov_b32 exec_hi, 0x00ff00ff")
    for n in range(4):
        a(f"buffer_store_dwordx4 {vr(AC+4*n,4)}, v212, s[8:11], s26 offen offset:{512*n} sc1")
    a("s_mov_b64 exec, -1")
    a(f"""s_lshl1_add_u32 s26, s{KS}, s{L}
    s_lshl_b32 s26, s26, 2
    s_mul_i32 s28, s{FT}, {7*128}
    s_add_u32 s26, s26, s28
    s_add_u32 s26, s26, {WS_F1}
    s_waitcnt vmcnt(0)""")
    signal(a, 5, 219, "s26", "0x7f")
    st(a, 5)
    a(f"s_lshl_b32 s26, s2, 7\ns_add_u32 s26, s26, {WS_F1}")
    poll_atomic(a, 5, 220, "s26", "0x3fff", 2)
    st(a, 6)
    GP = 40
    a(f"s_mul_i32 s26, s{FT}, {7*4096}\ns_lshl_b32 s28, s{L}, 10\ns_add_u32 s26, s26, s28\ns_add_u32 s26, s26, {WS_GP}")
    for k in range(7):
        a(f"""buffer_load_dwordx4 {vr(GP+8*k,4)}, v1, s[8:11], s26 offen sc1
        buffer_load_dwordx4 {vr(GP+8*k+4,4)}, v1, s[8:11], s26 offen offset:2048 sc1""")
        if k < 6: a("s_add_u32 s26, s26, 4096")
    DW = 120
    for k in range(4):
        a(f"ds_read_b64_tr_b16 {vr(DW+4*k,2)}, v210 offset:{k*1024}\nds_read_b64_tr_b16 {vr(DW+4*k+2,2)}, v210 offset:{k*1024+256}")
    a(f"s_mov_b32 s28, {NLOG2E:#x}\ns_mov_b32 s29, {NLOG2E:#x}\ns_waitcnt vmcnt(0)")
    for k in range(1, 7):
        for e in range(4):
            a(f"v_pk_add_f32 {vr(GP+2*e,2)}, {vr(GP+2*e,2)}, {vr(GP+8*k+2*e,2)}")
    for e in range(2): a(f"v_pk_mul_f32 {vr(22+2*e,2)}, {vr(GP+2*e,2)}, s[28:29]")
    for e in range(4): a(f"v_exp_f32 v{22+e}, v{22+e}")
    for e in range(2): a(f"v_pk_add_f32 {vr(22+2*e,2)}, {vr(22+2*e,2)}, 1.0 op_sel_hi:[1,0]")
    for e in range(4): a(f"v_rcp_f32 v{22+e}, v{22+e}")
    for e in range(2): a(f"v_pk_mul_f32 {vr(22+2*e,2)}, {vr(22+2*e,2)}, {vr(GP+2*e,2)}")
    for e in range(2): a(f"v_pk_mul_f32 {vr(22+2*e,2)}, {vr(22+2*e,2)}, {vr(GP+4+2*e,2)}")
    for e in range(2): a(f"v_cvt_pk_bf16_f32 v{28+e}, v{22+2*e}, v{23+2*e}")
    a("ds_write_b64 v214, v[28:29]")
    lds_inc(a, 14, C_S, 15)
    spin_lds(a, 14, C_S, 2, 8, sleep=1)
    for k in range(4):
        a(f"ds_read_b128 {vr(GP+4*k,4)}, v218 offset:{32*k}\ns_waitcnt lgkmcnt(0)\n{MF} {vr(AC,16)}, {vr(GP+4*k,4)}, {vr(DW+4*k,4)}, {'0' if k==0 else vr(AC,16)}")
    a(f"""s_mul_i32 s26, s{FT}, 14336
    s_lshl1_add_u32 s28, s{KS}, s{L}
    s_lshl_b32 s29, s28, 7
    s_add_u32 s26, s26, s29
    s_add_u32 s26, s26, {WS_YP}
    s_lshl2_add_u32 s28, s{FT}, s29
    s_add_u32 s28, s28, {WS_YFL}
    buffer_store_dword v{AC}, v215, s[8:11], s26 offen sc1
    buffer_store_dword v{AC+1}, v215, s[8:11], s26 offen offset:1792 sc1
    buffer_store_dword v{AC+2}, v216, s[8:11], s26 offen sc1
    buffer_store_dword v{AC+3}, v216, s[8:11], s26 offen offset:1792 sc1
    s_waitcnt vmcnt(0)""")
    signal(a, 5, 9, "s28", 1)
    st(a, 7)
    a("s_branch L_updA")
    a.label("L_nofn")
    lds_inc(a, 14, C_F, 15)
    spin_lds(a, 14, C_F, 4, 8, sleep=8)
    sel_load("L_sel2")
    a(f"""s_lshl2_add_u32 s26, s2, s{L}
    s_cmp_lg_u32 s26, {254*4}
    s_cbranch_scc1 L_updA""")
    a(f"s_mov_b32 s60, {SPIN_LIMIT}\nL_ep:")
    for k in range(4):
        a(f"s_mov_b32 s26, {WS_FL+8192*k}\nbuffer_load_dword v{24+k}, v219, s[8:11], s26 offen sc1")
    a(f"""s_sub_u32 s60, s60, 1
    s_cbranch_scc1 L_exit
    s_waitcnt vmcnt(0)
    v_xor_b32 v24, s{T}, v24
    v_bitop3_b32 v24, v24, v25, s{T} bitop3:0xf6
    v_bitop3_b32 v24, v24, v26, s{T} bitop3:0xf6
    v_bitop3_b32 v24, v24, v27, s{T} bitop3:0xf6
    v_cmp_ne_u32 vcc, 0, v24
    s_cbranch_vccnz L_ep
    s_mov_b32 s26, {WS_EP}""")
    flag_store(a, 5, 9, "s26")
    Y = 40
    a(f"""L_updA:
    s_and_b32 s53, s{H}, 3
    s_mul_i32 s53, s53, 224
    s_lshl_b32 s57, s{L}, 2
    s_lshr_b32 s26, s53, 6
    s_lshl_b32 s26, s26, 7
    s_add_u32 s62, s26, {WS_YFL}
    L_upd:
    v_readlane_b32 s52, v20, s57
    s_and_b32 s54, s52, 0xffff
    s_sub_u32 s54, 0xffff, s54
    s_lshr_b32 s26, s54, 5
    s_cmp_lg_u32 s26, s58
    s_cbranch_scc1 L_updn
    s_mov_b32 s60, {SPIN_LIMIT}
    s_mov_b32 exec_lo, 0x0fffffff
    s_mov_b32 exec_hi, 0x0fffffff
    L_yfl:
    v_mov_b32 v24, 0
    v_mov_b32 v25, 0
    buffer_atomic_or v24, v220, s[8:11], s62 offen sc0 sc1
    buffer_atomic_or v25, v220, s[8:11], s62 offen offset:256 sc0 sc1
    s_waitcnt vmcnt(0)
    v_xor_b32 v24, s{T}, v24
    v_bitop3_b32 v24, v24, v25, s{T} bitop3:0xf6
    v_cmp_ne_u32 vcc, 0, v24
    s_cbranch_vccz L_yok
    s_sub_u32 s60, s60, 1
    s_cbranch_scc0 L_yfl
    s_endpgm
    L_yok:
    v_mul_u32_u24 v4, {14*14336}, v33
    v_lshl_add_u32 v4, v32, 4, v4
    s_mul_i32 s26, s57, 1792
    s_lshl1_add_u32 s26, s53, s26
    s_add_u32 s26, s26, {WS_YP}""")
    for i in range(14):
        a(f"buffer_load_dwordx4 {vr(Y+4*i,4)}, v4, s[8:11], s26 offen sc1\ns_add_u32 s26, s26, 14336")
    a(f"""s_mov_b64 exec, -1
    s_lshr_b32 s26, s52, 16
    s_not_b32 s55, s26
    s_and_b32 s29, s26, 0x7fff
    s_bitcmp1_b32 s26, 15
    s_cselect_b32 s26, s29, s55
    s_lshl_b32 s26, s26, 16
    v_mov_b32 v6, {NLOG2E:#x}
    v_mul_f32 v6, s26, v6
    v_exp_f32 v6, v6
    v_add_f32 v6, 1.0, v6
    v_rcp_f32 v6, v6
    v_cvt_pk_bf16_f32 v6, v6, v6
    v_lshlrev_b32 v6, 16, v6
    s_mul_i32 s26, s57, 448
    s_add_u32 s26, s26, {UPD}
    v_lshl_add_u32 v7, v32, 4, s26
    s_waitcnt vmcnt(0)""")
    for i in range(1, 14):
        a(f"v_pk_add_f32 {vr(Y,2)}, {vr(Y,2)}, {vr(Y+4*i,2)}\nv_pk_add_f32 {vr(Y+2,2)}, {vr(Y+2,2)}, {vr(Y+4*i+2,2)}")
    for k in range(4): a(f"v_mov_b32 v{Y+4+k}, v{Y+k}")
    for k in range(4): a(f"v_permlane32_swap_b32 v{Y+k}, v{Y+4+k}")
    for k in range(4): a(f"v_add_f32 v{Y+k}, v{Y+k}, v{Y+4+k}")
    for k in range(0, 4, 2):
        a(f"""v_cvt_pk_bf16_f32 v{Y+k}, v{Y+k}, v{Y+k+1}
        v_and_b32 v{Y+k+1}, 0xffff0000, v{Y+k}
        v_lshlrev_b32 v{Y+k}, 16, v{Y+k}
        v_mul_f32 v{Y+k}, v{Y+k}, v6
        v_mul_f32 v{Y+k+1}, v{Y+k+1}, v6
        v_cvt_pk_bf16_f32 v{Y+k}, v{Y+k}, v{Y+k+1}
        v_and_b32 v{Y+k+1}, 0xffff0000, v{Y+k}
        v_lshlrev_b32 v{Y+k}, 16, v{Y+k}""")
    a(f"""s_and_b32 s54, s54, 31
    v_mov_b32 v5, s57
    s_lshl_b32 s26, s54, 2
    s_add_u32 s26, s26, {UPDI}
    v_mov_b32 v4, s26
    s_mov_b64 exec, 0x0fffffff
    ds_write_b128 v7, {vr(Y,4)}
    s_mov_b64 exec, 1
    ds_write_b32 v4, v5
    s_mov_b64 exec, -1
    L_updn:
    s_add_u32 s57, s57, 1
    s_and_b32 s26, s57, 3
    s_cbranch_scc1 L_upd
    v_mov_b32 v6, 512""")
    lds_inc(a, 14, C_O, 6)
    st(a, 9)
    a("s_branch L_ofetch")
    a.label("L_svcB")
    OUTT = ""
    if "outtouch" in EXP:
        OUTT = f"""s_cmp_lg_u32 s55, {42*1024}
        s_cbranch_scc1 L_noot
        s_mov_b32 s20, s50
        s_mov_b32 s21, s51
        s_mov_b32 s22, {2048*896}
        s_mov_b32 s23, 0x20000
        s_lshl_b32 s26, s58, 5
        v_add_u32 v4, s26, v32
        v_mul_u32_u24 v4, 896, v4
        s_add_u32 s26, s53, 127
        s_and_b32 s26, s26, 0xffffff80
        v_lshl_add_u32 v4, v33, 7, v4
        s_cmp_eq_u32 s53, 672
        s_cselect_b32 exec_hi, 0, -1
        buffer_store_dword v9, v4, s[20:23], s26 offen sc1
        s_mov_b64 exec, -1
        L_noot:"""
    WOPF = "s_mov_b32 exec_hi, 0x1ffff\nbuffer_load_dword v6, v219, s[16:19], s28 offen\ns_mov_b64 exec, -1" if "wopfS" not in EXP else ""
    for e in range(7):
        a(f"""v_add_u32 v4, {64*e}, v3
        v_mul_u32_u24 v5, 4682, v4
        v_lshrrev_b32 v5, 16, v5
        v_mul_u32_u24 v5, {896-224}, v5
        v_lshl_add_u32 v{200+e}, v4, 4, v5""")
    a(f"""v_mov_b32 v16, 0
    v_mov_b32 v17, 0
    v_mov_b32 v18, 0
    v_mov_b32 v19, 0
    v_add_u32 v209, {448*224}, v1
    s_cmp_eq_u32 s{L}, 2
    s_cbranch_scc1 L_svcB2
    v_lshrrev_b32 v4, 4, v3
    v_and_b32 v5, 15, v3
    v_lshlrev_b32 v5, 2, v5
    v_lshl_add_u32 v221, v4, 9, v5
    v_lshl_add_u32 v222, v4, 5, v14
    v_and_b32 v223, 48, v3
    v_and_b32 v5, 15, v3
    v_add_u32 v6, v5, v4
    v_mul_u32_u24 v224, {4*TS}, v6
    v_add_u32 v224, 1, v224
    v_bfm_b32 v225, v5, 0
    s_mul_i32 s26, s{H}, 28
    s_add_u32 s28, s26, 27
    s_xor_b32 s26, s26, s28
    s_mov_b32 s62, 0x55555555
    s_cmp_ge_u32 s26, 64
    s_cselect_b32 s62, -1, s62
    s_mov_b32 s63, s62
    s_lshr_b32 s28, s{J}, 2
    s_lshl4_add_u32 s26, s{H}, s28
    s_lshl_b32 s26, s26, 7
    s_add_u32 s26, s26, {WS_MB}""")
    spin_lds(a, 14, C_D, PCD, 8, sleep=1)
    at = lambda r: f"v_mov_b32 v{r}, 0\nbuffer_atomic_or v{r}, v221, s[8:11], s26 offen sc0 sc1"
    a(f"""s_mov_b32 s60, {SPIN_LIMIT}
    s_mov_b32 s52, 0x11111111
    s_mov_b32 s53, 0x11111111
    s_mov_b64 exec, s[62:63]""")
    for i in range(PD - 1): a(at(28 + i) + f"\ns_sleep {PG}")
    a("L_kv:")
    for i in range(PD):
        a(at(28 + (i + PD - 1) % PD))
        a(f"""s_waitcnt vmcnt({PD-1})
        v_cmp_ne_u32 vcc, s{T}, v{28+i}
        s_lshr_b64 s[28:29], vcc, 1
        s_or_b64 s[28:29], s[28:29], vcc
        s_lshr_b64 s[54:55], s[28:29], 2
        s_or_b64 s[28:29], s[28:29], s[54:55]
        s_andn2_b64 s[28:29], s[52:53], s[28:29]
        s_cbranch_scc0 L_kvn{i}
        s_andn2_b64 s[52:53], s[52:53], s[28:29]
        v_lshrrev_b64 v[4:5], v223, s[28:29]
        v_and_b32 v5, v225, v4
        v_bcnt_u32_b32 v5, v5, 0
        v_lshl_add_u32 v5, v5, 2, v222
        s_mov_b64 exec, s[28:29]
        ds_write_b32 v5, v224 offset:{C_R}
        s_mov_b64 exec, s[62:63]
        v_and_b32 v4, 0xffff, v4
        v_bcnt_u32_b32 v4, v4, 0
        v_lshl_add_u32 v222, v4, 2, v222
        s_cmp_eq_u64 s[52:53], 0
        s_cbranch_scc1 L_kvdone
        L_kvn{i}:""")
    a(f"""s_sub_u32 s60, s60, 1
    s_cbranch_scc0 L_kv
    s_endpgm
    L_kvdone:
    s_mov_b64 exec, -1
    L_svcB2:""")
    srd(a, 16, 38, 448 * 896)
    a(f"""s_and_b32 s53, s{H}, 3
    s_mul_i32 s53, s53, 224
    s_and_b32 s27, s{L}, 1
    s_mul_i32 s55, s27, {7*1024}
    s_mul_i32 s57, s27, {32*896}
    s_add_u32 s57, s57, s53
    s_lshl1_add_u32 s28, s25, s27
    s_mul_i32 s28, s28, {49*128}
    v_mov_b32 v24, -1
    v_mov_b32 v25, -1
    v_mov_b32 v26, -1
    v_mov_b32 v27, -1
    s_lshl_b32 s59, s{J}, 6
    s_add_u32 s59, s59, s{H}
    s_lshl1_add_u32 s59, s59, s27
    s_lshl_b32 s59, s59, 10
    s_add_u32 s59, s59, {WS_O}""")
    spin_lds(a, 14, C_L, 4, 8, sleep=2)
    st(a, 3)
    a(f"""ds_write_b128 v209, v[16:19]
    {WOPF}
    s_cmp_lg_u32 s{L}, 2
    s_cbranch_scc1 L_nofl
    s_lshl_b32 s26, s2, 7
    s_add_u32 s26, s26, {WS_FL}""")
    flag_store(a, 5, 9, "s26")
    a("L_nofl:\ns_waitcnt vmcnt(0)")
    spin_lds(a, 14, C_F, 2, 8, sleep=4)
    a("L_wo:")
    for e in range(7):
        a(f"""s_add_u32 m0, s55, {e*1024}
        s_waitcnt vmcnt({WOP})
        buffer_load_dwordx4 v{200+e}, s[16:19], s57 offen lds""")
    a(f"""s_cmp_ge_u32 s55, {56*1024}
    s_cbranch_scc1 L_noclr
    buffer_store_dwordx4 v[24:27], v1, s[8:11], s59 offen sc1
    s_add_u32 s59, s59, {16*2048}
    L_noclr:
    {OUTT}
    s_sub_u32 s26, s55, {56*1024}
    s_cmp_ge_u32 s26, {14*1024}
    s_cbranch_scc1 L_noinc""")
    lds_inc(a, 14, C_F, 15)
    a(f"""L_noinc:
    s_add_u32 s55, s55, {14*1024}
    s_add_u32 s57, s57, {64*896}
    s_cmp_lt_u32 s55, {98*1024}
    s_cbranch_scc1 L_wo""")
    a("s_waitcnt vmcnt(0)")
    lds_inc(a, 14, C_W, 15)
    st(a, 8)
    a.label("L_ofetch")
    a(f"""s_lshl2_add_u32 s28, s58, s{L}
    s_lshl_b32 s29, s28, 13
    s_add_u32 s29, s29, {WS_O}
    s_add_u32 s27, s29, 4096
    s_lshl_b32 s28, s28, 7
    s_add_u32 s28, s28, {WS_OFL}
    s_mul_i32 s26, s{L}, 12288
    s_add_u32 s26, s26, {CB}
    v_add_u32 v7, s26, v1
    s_lshl_b32 s26, s{L}, 5
    v_add_u32 v6, s26, v14
    s_lshl_b32 s26, 1, s{L}
    v_mov_b32 v5, s26""")
    if False:
        a(f"s_cmp_lg_u32 s{L}, 1\ns_cbranch_scc1 L_walked\ns_mov_b64 exec, 0\ns_branch L_wk0\nL_walked:\ns_mov_b64 exec, -1")
    spin_lds(a, 6, C_P, 1, 8, sleep=4)
    poll_pipe(a, 28, 220, "s28", 15, D=PD, gap=PG)
    a("L_of:\nv_mov_b32 v4, 0")
    for k in range(8):
        a(f"buffer_load_dwordx4 {vr(40+4*k,4)}, v1, s[8:11], {'s29' if k < 4 else 's27'} offen offset:{(k&3)*1024} sc1")
    a("s_sub_u32 s60, s60, 1\ns_cbranch_scc1 L_exit")
    for k in range(8):
        a(f"""s_waitcnt vmcnt({7-k})
        ds_write_b128 v7, {vr(40+4*k,4)} offset:{k*1024}
        v_max3_u32 v4, v4, v{40+4*k}, v{41+4*k}
        v_max3_u32 v4, v4, v{42+4*k}, v{43+4*k}""")
    a("v_cmp_eq_u32 vcc, -1, v4\ns_cbranch_vccnz L_of")
    lds_inc(a, 14, C_O, 5)
    a("s_waitcnt vmcnt(0) lgkmcnt(0)")
    st_end(a)
    a("L_exit:\nL_code_end:\ns_endpgm")

def main(out):
    hdr = open("cdna_kernels/" + NAME + ".s.ref").read().split("; Override")[0]
    rep = []
    a = Asm()
    prologue_and_loader(a); main_wave(a); service_wave(a)
    t = hdr
    t += f"; @launch grid=(256,1,1) block=(512,1,1) lds={LDS_BYTES}\n"
    t += '.amdgcn_target "amdgcn-amd-amdhsa--gfx950"\n'
    t += kernel_text(NAME + "_kernel", a.l, 256, report=rep)
    open(out, "w").write(t)
    if "-v" in sys.argv: print("\n".join(rep))

if __name__ == "__main__":
    main(sys.argv[1])
```

```python
import sys, math, struct
from asmlib import *

NAME = "gated_mix__softmax_full_mha__moe_arch_mod__prompt"
STAMP = "-s" in sys.argv
EXP = set(x[2:] for x in sys.argv if x.startswith("-x"))
WS_KV = 0
BLK = 5120; TS = 14 * BLK; KVB = 64 * TS
WS_O = 0x480000
WS_R = 0x680000
WS_G = WS_R + 16384
WS_SEL = WS_R + 32768
WS_EP = WS_R + 40960
WS_FL = WS_R + 65536
WS_MB = WS_FL + 32768
WS_OFL = WS_MB + 32768
WS_YFL = WS_OFL + 32768
WS_F1 = WS_YFL + 4096
WS_YP = WS_R + (1 << 18)
WS_GP = 0x730000
WS_ST = 16 << 20
XS = 0; WT = 65536; WQ = 122880; QX = 151552; UPD = 159744
WO = 0; CB = 102400
UPDI = UPD + 3584
KEYS = UPD
RT = UPD + 1024
SELECTOR = 223
CNT = 163840 - 192
LDS_BYTES = 163840
C_Q1, C_Q2, C_X, C_L, C_S, C_D, C_C, C_O, C_W, C_F, C_K, C_T, C_P, C_R = 0, 4, 8, 12, 16, 20, 24, 28, 32, 36, 40, 44, 48, 64

def f32bits(x): return struct.unpack("<I", struct.pack("<f", x))[0]
QSCALE = f32bits(28 ** -0.5 * math.log2(math.e))
NLOG2E = f32bits(-math.log2(math.e))
MF = "v_mfma_f32_32x32x16_bf16"
ROLE = [0, 1, 2, 3, 14, 4, 5, 6, 7, 8, 9, 15, 10, 11, 12, 13]
ROLE_LO = sum(ROLE[i] << (4 * i) for i in range(8))
ROLE_HI = sum(ROLE[8 + i] << (4 * i) for i in range(8))
SPIN_LIMIT = 1 << 20
NQ1 = ([int(x[2:]) for x in EXP if x.startswith("nq")] + [4])[0]
WSBASE = ([int(x[2:]) for x in sys.argv if x.startswith("-w")] + [0])[0] << 20
PD = 4 if "pd4" in EXP else 2
PG = 3 if "pd4" in EXP else 6
PCD = 4 if "pcd4" in EXP else (0 if "pcd0" in EXP else 1)
KVS = 4 if "kvs4" in EXP else (0 if "kvs0" in EXP else 2)
PQ2 = 4 if "pq4" in EXP else (0 if "pq0" in EXP else 1)
PF0 = 2 if "pf2" in EXP else 0
WOP = 1 if "wo1" in EXP else (3 if "wo3" in EXP else 2)
OUTAUX = " sc1" if "outsc1" in EXP else (" nt" if "outnt" in EXP else "")

T, H, J, W, RL, ROT = 30, 31, 32, 33, 34, 3
_uid = [0]
def uid(p):
    _uid[0] += 1
    return f"{p}_{_uid[0]}"

def srd(a, d, ptr, nbytes):
    a(f"s_mov_b32 s{d}, s{ptr}\ns_mov_b32 s{d+1}, s{ptr+1}\ns_mov_b32 s{d+2}, {nbytes:#x}\ns_mov_b32 s{d+3}, 0x20000")

NST = 12
DIAG = [tuple(int(y) for y in x[2:].split("-")) for x in sys.argv if x.startswith("-d")]
def st(a, i):
    if STAMP: a(f"s_{'memrealtime' if 'rt' in EXP else 'memtime'} s[{72+2*i}:{73+2*i}]")
    if DIAG and i in DIAG[0]: a(f"s_memrealtime s[{72+2*i}:{73+2*i}]\ns_waitcnt lgkmcnt(0)")
def st_begin(a):
    if STAMP: a("s_memrealtime s[68:69]\ns_memtime s[72:73]" if "rt" not in EXP else "s_memrealtime s[68:69]\ns_memrealtime s[72:73]")
    if DIAG: a("s_memrealtime s[72:73]")
ABS = [x[2:] for x in sys.argv if x.startswith("-a")]
REL = [tuple(int(y) for y in x[2:].split("-")) for x in sys.argv if x.startswith("-r")]
if ABS:
    DIAG = [(0, 0 if ABS[0] == "z" else int(ABS[0].lstrip("m")))]
if REL:
    ABS = ["r"]; DIAG = REL
def diag_start(a):
    if not ABS: return
    a(f"""s_load_dwordx2 s[98:99], s[0:1], 80
    s_waitcnt lgkmcnt(0)
    s_cmp_ge_u32 s2, 8
    s_cbranch_scc1 L_dg0
    s_cmp_lg_u32 s{W}, 0
    s_cbranch_scc1 L_dg0
    s_lshl_b32 s70, s2, 2
    v_mov_b32 v4, s70
    v_mov_b32 v6, s72
    global_store_dword v4, v6, s[98:99] sc1
    L_dg0:""")
def diag_end(a):
    if not DIAG: return
    p, q = DIAG[0]
    if ABS:
        a(f"""s_waitcnt vmcnt(0)
        s_memrealtime s[96:97]
        s_mov_b64 exec, -1
        v_mov_b32 v4, 0
        global_load_dwordx4 v[8:11], v4, s[98:99] sc1
        global_load_dwordx4 v[12:15], v4, s[98:99] offset:16 sc1
        s_waitcnt vmcnt(0) lgkmcnt(0)
        v_min3_u32 v8, v8, v9, v10
        v_min3_u32 v8, v8, v11, v12
        v_min3_u32 v8, v8, v13, v14
        v_min_u32 v8, v8, v15
        s_nop 1
        v_readfirstlane_b32 s69, v8
        s_sub_u32 s70, s{72+2*q}, s69""")
        if ABS[0] == "z": a("s_mov_b32 s70, 0")
        if REL: a(f"s_sub_u32 s70, s{72+2*q}, s{72+2*p}\ns_lshl_b32 s70, s70, {0 if 'k1' in EXP else 2}")
        if "onlynw" in EXP: a("s_cmp_ge_u32 s2, 196\ns_cselect_b32 s70, s70, 0")
        if "only23" in EXP: a(f"s_cmp_ge_u32 s{W}, 2\ns_cselect_b32 s70, s70, 0")
        if ABS[0].startswith("m"): a("s_sub_u32 s70, 2500, s70")
        a("s_add_u32 s70, s70, s69\ns_add_u32 s70, s70, 2500")
    else:
        a(f"""s_waitcnt vmcnt(0)
        s_memrealtime s[96:97]
        s_waitcnt lgkmcnt(0)
        s_sub_u32 s70, s{72+2*q}, s{72+2*p}
        s_add_u32 s70, s70, s96""")
    a(f"""L_diag:
    s_memrealtime s[68:69]
    s_waitcnt lgkmcnt(0)
    s_sub_u32 s71, s68, s70
    s_cmp_lt_i32 s71, 0
    s_cbranch_scc1 L_diag""")
def st_init(a):
    if STAMP:
        for i in range(1, NST): a(f"s_mov_b32 s{72+2*i}, s72")
def st_end(a):
    if not STAMP: return
    a(f"""s_waitcnt vmcnt(0)
    s_memrealtime s[70:71]
    s_{'memrealtime' if 'rt' in EXP else 'memtime'} s[{72+2*NST}:{73+2*NST}]
    s_getreg_b32 s66, hwreg(HW_REG_HW_ID)
    s_getreg_b32 s67, hwreg(HW_REG_XCC_ID)
    s_mov_b64 exec, -1
    s_lshl_b32 s65, s2, 3
    s_add_u32 s65, s65, s{W}
    s_lshl_b32 s65, s65, 6
    s_add_u32 s65, s65, {WS_ST}
    s_waitcnt lgkmcnt(0)
    v_mov_b32 v4, s68
    v_mov_b32 v5, s70
    v_mov_b32 v6, s66
    v_mov_b32 v7, s67""")
    for i in range(1, NST + 1):
        a(f"s_sub_u32 s64, s{72+2*i}, s72\nv_mov_b32 v{7+i}, s64")
    a("v_mov_b32 v2, 0\ns_mov_b64 exec, 1")
    for k in range(4):
        a(f"buffer_store_dwordx4 v[{4+4*k}:{7+4*k}], v2, s[8:11], s65 offen offset:{16*k}")

def poll_global(a, vdst, voff, soff, mask=None, sleep=1):
    l = uid("Lpoll"); d = uid("Lpd")
    a(f"s_mov_b32 s60, {SPIN_LIMIT}")
    if mask is not None: a(f"s_mov_b64 exec, {mask}")
    a(f"""{l}:
    buffer_load_dword v{vdst}, v{voff}, s[8:11], {soff} offen sc1
    s_waitcnt vmcnt(0)
    v_cmp_ne_u32 vcc, s{T}, v{vdst}
    s_cbranch_vccz {d}
    s_mov_b64 exec, vcc
    s_sleep {sleep}
    s_sub_u32 s60, s60, 1
    s_cbranch_scc0 {l}
    s_endpgm
    {d}:
    s_mov_b64 exec, -1""")

def poll_atomic(a, vdst, voff, soff, mask, sleep):
    l = uid("Lpa"); d = uid("Lpad")
    a(f"""s_mov_b32 s60, {SPIN_LIMIT}
    s_mov_b64 exec, {mask}
    {l}:
    v_mov_b32 v{vdst}, 0
    buffer_atomic_or v{vdst}, v{voff}, s[8:11], {soff} offen sc0 sc1
    s_waitcnt vmcnt(0)
    v_cmp_ne_u32 vcc, s{T}, v{vdst}
    s_cbranch_vccz {d}
    s_sleep {sleep}
    s_sub_u32 s60, s60, 1
    s_cbranch_scc0 {l}
    s_endpgm
    {d}:
    s_mov_b64 exec, -1""")

def poll_pipe(a, v0, voff, soff, mask, D=4, gap=3):
    l = uid("Lpp"); d = uid("Lppd")
    at = lambda r: f"v_mov_b32 v{r}, 0\nbuffer_atomic_or v{r}, v{voff}, s[8:11], {soff} offen sc0 sc1"
    a(f"s_mov_b32 s60, {SPIN_LIMIT}\ns_mov_b64 exec, {mask}")
    for i in range(D - 1): a(at(v0 + i) + f"\ns_sleep {gap}")
    a(f"{l}:")
    for i in range(D):
        a(at(v0 + (i + D - 1) % D))
        a(f"s_waitcnt vmcnt({D-1})\nv_cmp_ne_u32 vcc, s{T}, v{v0+i}\ns_cbranch_vccz {d}")
    a(f"""s_sub_u32 s60, s60, 1
    s_cbranch_scc0 {l}
    s_endpgm
    {d}:
    s_mov_b64 exec, -1""")

def signal(a, vt, voff, soff, mask):
    a(f"v_mov_b32 v{vt}, s{T}\ns_mov_b64 exec, {mask}\nbuffer_atomic_swap v{vt}, v{voff}, s[8:11], {soff} offen sc1\ns_mov_b64 exec, -1")

def spin_lds(a, vaddr, off, want, vt, sleep=0):
    l = uid("Lsp"); d = uid("Lsd")
    a(f"""s_mov_b32 s60, {SPIN_LIMIT}
    {l}:
    ds_read_b32 v{vt}, v{vaddr} offset:{off}
    s_waitcnt lgkmcnt(0)
    v_readfirstlane_b32 s61, v{vt}
    s_cmp_ge_u32 s61, {want}
    s_cbranch_scc1 {d}""")
    if sleep: a(f"s_sleep {sleep}")
    a(f"""s_sub_u32 s60, s60, 1
    s_cbranch_scc0 {l}
    s_endpgm
    {d}:""")

def lds_inc(a, vaddr, off, vone):
    a(f"s_mov_b64 exec, 1\nds_add_u32 v{vaddr}, v{vone} offset:{off}\ns_mov_b64 exec, -1")

def flag_store(a, vt, vz, soff):
    a(f"v_mov_b32 v{vt}, s{T}\ns_mov_b64 exec, 1\nbuffer_store_dword v{vt}, v{vz}, s[8:11], {soff} offen sc1\ns_mov_b64 exec, -1")

def split_neg_max(a, m, t0, t1, q6, q7):
    a(f"""v_sub_f32 v{m}, 0, v{m}
    v_cvt_pk_bf16_f32 v{t0}, v{m}, v{m}
    v_lshlrev_b32 v{t0}, 16, v{t0}
    v_sub_f32 v{t0}, v{m}, v{t0}
    v_cvt_pk_bf16_f32 v{t1}, v{m}, v{t0}
    v_and_b32 v{m}, 0xffff0000, v{t1}
    v_sub_f32 v{t0}, v{t0}, v{m}
    s_mov_b32 exec_lo, 0
    v_mov_b32 v{q6}, v{t1}
    v_cvt_pk_bf16_f32 v{q7}, v{t0}, 0
    s_mov_b32 exec_lo, -1""")

def max16_list(dst, S, init=False):
    if not init:
        return ([f"v_max3_f32 v{dst}, v{S}, v{S+1}, v{S+2}"] +
                [f"v_max3_f32 v{dst}, v{dst}, v{S+i}, v{S+i+1}" for i in range(3, 15, 2)] +
                [f"v_max_f32 v{dst}, v{dst}, v{S+15}"])
    return [f"v_max3_f32 v{dst}, v{dst}, v{S+i}, v{S+i+1}" for i in range(0, 16, 2)]

def wave_min_u32(a, v, full=True):
    for r in (1, 2, 4, 8):
        a(f"v_min_u32_dpp v{v}, v{v}, v{v} row_ror:{r} row_mask:0xf bank_mask:0xf")
    a(f"v_min_u32_dpp v{v}, v{v}, v{v} row_bcast:15 row_mask:0xa bank_mask:0xf")
    if full: a(f"v_min_u32_dpp v{v}, v{v}, v{v} row_bcast:31 row_mask:0xc bank_mask:0xf")

def tag(a):
    a(f"s_mul_i32 s{T}, s{T}, 0x9e3779b1\ns_add_u32 s{T}, s{T}, 0x7f4a7c15")

def next_chunk(a, s):
    a(f"s_add_u32 s{s}, s{s}, 1\ns_cmp_eq_u32 s{s}, 7\ns_cselect_b32 s{s}, 0, s{s}")

Q, O, KV, S, P = 8, 40, 104, 168, 200
XF = 104; A0, A1, WF = 40, 56, 72
VX = 216; VW = 220; VQ = 222; VC = 223; V1 = 224; VZ = 225; VT = 226; VH = 227
VA = 228; TMP = 232; XR = 240; GR = 248; VWQ = 250; VF = 251; VFS = 252; VXO = 253; VGO = 254
OWN = 3
L = 35

def prologue_and_loader(a):
    MAPCODE = ""
    if "map2" in EXP:
        MAPCODE = f"s_and_b32 s26, s25, 1\ns_lshl1_add_u32 s{H}, s24, s26\ns_lshr_b32 s{J}, s25, 1\ns_lshl1_add_u32 s{ROT}, s26, s{J}\ns_add_u32 s{ROT}, s{ROT}, s24\ns_and_b32 s{ROT}, s{ROT}, 3\ns_lshl_b32 s{ROT}, s{ROT}, 1"
        if "norot" in EXP: MAPCODE += f"\ns_mov_b32 s{ROT}, 0"
    TADDR = "v_lshl_add_u32 v8, v3, 7, s58"
    if "t64" in EXP: TADDR = "v_and_b32 v8, 60, v3\nv_lshl_add_u32 v8, v8, 4, s58\nv_add_u32 v8, v8, v1"
    if "rot7" in EXP:
        ROTCODE = f"s_lshl1_add_u32 s{ROT}, s27, s26\ns_cmp_ge_u32 s{ROT}, 7\ns_cselect_b32 s26, 7, 0\ns_sub_u32 s{ROT}, s{ROT}, s26"
    elif "rot2" not in EXP and "norot" not in EXP and "rot23" not in EXP:
        ROTCODE = f"s_add_u32 s{ROT}, s27, s26\ns_and_b32 s{ROT}, s{ROT}, 3\ns_lshl_b32 s{ROT}, s{ROT}, 1"
    elif "norot" in EXP:
        ROTCODE = f"s_mov_b32 s{ROT}, 0"
    elif "rot23" in EXP:
        ROTCODE = f"s_add_u32 s{ROT}, s27, s26\ns_and_b32 s{ROT}, s{ROT}, 1\ns_mul_i32 s{ROT}, s{ROT}, 3"
    else:
        ROTCODE = f"s_add_u32 s{ROT}, s27, s26\ns_and_b32 s{ROT}, s{ROT}, 1\ns_lshl_b32 s{ROT}, s{ROT}, 2"
    st_begin(a)
    a(f"""s_load_dwordx4 s[4:7], s[0:1], 0
    s_load_dwordx2 s[36:37], s[0:1], 88
    s_load_dwordx2 s[38:39], s[0:1], 16
    s_load_dwordx8 s[40:47], s[0:1], 32
    s_load_dwordx4 s[48:51], s[0:1], 64
    s_cmp_ge_u32 s2, 256
    s_cbranch_scc1 L_exit
    v_lshrrev_b32 v2, 6, v0
    v_and_b32 v3, 63, v0
    s_and_b32 s24, s2, 7
    s_lshr_b32 s25, s2, 3
    v_readfirstlane_b32 s{W}, v2
    s_and_b32 s{H}, s24, 1
    s_lshl_b32 s{H}, s{H}, 3
    s_and_b32 s26, s25, 7
    s_add_u32 s{H}, s{H}, s26
    s_lshr_b32 s27, s25, 3
    s_and_b32 s{J}, s24, 6
    s_lshl1_add_u32 s{J}, s{J}, s27
    {ROTCODE}
    {MAPCODE}
    s_mov_b32 s28, {ROLE_LO:#x}
    s_mov_b32 s29, {ROLE_HI:#x}
    s_lshl_b32 s27, s{H}, 2
    s_lshr_b64 s[28:29], s[28:29], s27
    s_and_b32 s{RL}, s28, 15
    v_lshlrev_b32 v1, 4, v3
    s_mov_b32 s27, {WS_EP}
    s_cmp_lt_u32 s{W}, 4
    s_cbranch_scc1 L_main
    """)
    a(f"""s_setprio 2
    s_sub_u32 s{L}, s{W}, 4
    v_lshrrev_b32 v4, 3, v3
    v_mul_u32_u24 v5, 896, v4
    v_and_b32 v6, 7, v3
    v_lshrrev_b32 v7, 4, v3
    v_xor_b32 v7, v6, v7
    v_lshl_add_u32 v10, v7, 4, v5
    v_xor_b32 v11, 64, v10
    v_add_u32 v12, {2*6144}, v10
    v_add_u32 v13, {3*6144}, v11
    v_add_u32 v11, 6144, v11
    v_mul_u32_u24 v5, 2688, v4
    v_and_b32 v4, 2, v4
    v_lshlrev_b32 v4, 1, v4
    v_xor_b32 v4, v4, v6
    v_lshl_add_u32 v14, v4, 4, v5
    v_add_u32 v15, {8*2688-1024}, v14
    s_lshl2_add_u32 s52, s{J}, s{L}
    s_mul_i32 s58, s52, 14
    s_add_u32 s58, s58, s{RL}
    s_mul_i32 s58, s58, {BLK}
    {TADDR}
    s_mul_i32 s52, s52, {32*896}
    s_lshl_b32 s53, s{RL}, 7
    s_mul_i32 s26, s{L}, {16*2688}
    s_add_u32 s53, s53, s26
    s_add_u32 s53, s53, 896
    s_lshl_b32 s54, s{L}, 12
    s_lshl_b32 s55, s{L}, 11
    s_add_u32 s55, s55, {WT}
    s_mov_b32 s56, s{ROT}
    s_mov_b32 s57, 0
    s_mov_b32 s14, {2048*896}
    s_mov_b32 s15, 0x20000
    s_cmp_ge_u32 s{RL}, 14
    s_cselect_b32 s18, 0, {448*2688}
    s_mov_b32 s19, 0x20000
    s_waitcnt lgkmcnt(0)
    s_mov_b64 s[12:13], s[4:5]
    s_mov_b64 s[16:17], s[6:7]
    s_load_dword s{T}, s[36:37], s27""")
    st_init(a); st(a, 1)
    if "t64" in EXP:
        if "t64" in EXP:
            a(f"""s_cbranch_scc1 L_ld
            global_store_dwordx4 v8, v[10:13], s[36:37] sc1
            global_store_dwordx4 v8, v[10:13], s[36:37] offset:2048 sc1""")
        else: a(f"""s_cbranch_scc1 L_ld
        s_cmp_ge_u32 s{RL}, 7
        s_cselect_b32 exec_hi, 1, 0xff
        global_store_dword v8, v8, s[36:37] sc1
        s_mov_b32 exec_hi, -1""")
    a(f"""L_ld:
    s_mul_i32 s26, s56, {64*2688}
    s_mov_b32 m0, s55
    s_add_u32 s26, s26, s53
    s_lshl_b32 s28, s56, 7
    buffer_load_dwordx4 v14, s[16:19], s26 offen lds
    buffer_load_dwordx4 v15, s[16:19], s26 offen offset:1024 lds
    s_mov_b32 m0, s54
    s_add_u32 s28, s28, s52
    buffer_load_dwordx4 v10, s[12:15], s28 offen lds
    buffer_load_dwordx4 v11, s[12:15], s28 offen offset:1024 lds
    buffer_load_dwordx4 v12, s[12:15], s28 offen offset:2048 lds
    buffer_load_dwordx4 v13, s[12:15], s28 offen offset:3072 lds
    s_add_u32 s55, s55, 8192
    s_add_u32 s54, s54, 16384
    s_and_b32 s54, s54, 0xffff""")
    next_chunk(a, 56)
    if "tlb" in EXP:
        a(f"s_or_b32 s26, s57, s{L}\ns_cbranch_scc0 L_tlb\nL_tlb_done:")
    a(f"""s_add_u32 s57, s57, 1
    s_cmp_lt_u32 s57, 3
    s_cbranch_scc1 L_ld
    s_waitcnt vmcnt(12)
    s_barrier
    s_cmp_lt_u32 s57, 7
    s_cbranch_scc1 L_ld
    """)
    a(f"""v_lshrrev_b32 v4, 2, v3
    v_mul_u32_u24 v4, 2688, v4
    v_and_b32 v5, 3, v3
    v_lshl_add_u32 v16, v5, 4, v4
    s_mov_b32 s18, {448*2688}
    s_mul_i32 s53, s{H}, 56
    s_and_b32 s53, s53, 0xfffffff0
    s_mul_i32 s26, s{L}, {16*2688}
    s_add_u32 s53, s53, s26
    s_lshl_b32 s55, s{L}, 10
    s_add_u32 s55, s55, {WQ}""")
    for i in range(NQ1):
        a(f"""s_mul_i32 s26, s56, {64*2688}
        s_add_u32 m0, s55, {i*4096}
        s_add_u32 s26, s26, s53
        buffer_load_dwordx4 v16, s[16:19], s26 offen lds""")
        if i < NQ1 - 1: next_chunk(a, 56)
        if i == 1: a("s_waitcnt vmcnt(8)\ns_barrier")
        if i == 3: a("s_waitcnt vmcnt(4)\ns_barrier")
    st(a, 2)
    a("s_branch L_service")
    if "tlb" in EXP:
        a("L_tlb:")
        if "tlbR" in EXP: a(f"s_cmp_lt_u32 s{RL}, 14\ns_cbranch_scc1 L_tlb_done")
        for off in (0, 2 << 20, 4 << 20):
            a(f"s_mov_b32 s26, {off + 4032}\ns_load_dword s66, s[36:37], s26")
        for p in (42, 44, 38, 46, 50):
            a(f"s_load_dword s66, s[{p}:{p+1}], 0")
        a("s_branch L_tlb_done")

def main_wave(a):
    a.label("L_main")
    diag_start(a)
    if "nocodepf" not in EXP:
        a(f"""s_cmp_lg_u32 s{W}, 0
        s_cbranch_scc1 L_nopf
        s_getpc_b64 s[28:29]
        L_pc:
        s_and_b32 s26, s25, 3
        s_lshl_b32 s26, s26, 13
        v_lshl_add_u32 v4, v3, 7, s26
        v_min_u32 v4, L_code_end-L_pc, v4
        global_load_dword v5, v4, s[28:29]
        L_nopf:""")
    a(f"""s_setprio 1
    v_and_b32 v{VT}, 31, v3
    v_lshrrev_b32 v{VH}, 5, v3
    v_mov_b32 v{V1}, 1
    v_mov_b32 v{VZ}, 0
    v_mov_b32 v{VC}, {CNT}
    v_lshrrev_b32 v4, 2, v1
    v_add_u32 v4, {UPDI}, v4
    v_mov_b32 v6, -1
    s_mov_b32 exec_hi, 0
    ds_write_b32 v4, v6
    v_and_b32 v6, 7, v3
    v_cmp_eq_u32 vcc, 4, v6
    v_mov_b32 v7, {KVB+1}
    v_cndmask_b32 v6, 0, v7, vcc
    ds_write_b32 v4, v6 offset:{CNT-UPDI+C_R}
    s_mov_b32 exec_lo, 0xffff
    ds_write_b32 v4, v{VZ} offset:{CNT-UPDI}
    s_mov_b64 exec, -1
    v_lshrrev_b32 v4, 1, v{VT}
    v_and_b32 v4, 7, v4
    v_xor_b32 v4, v4, v{VH}
    v_lshlrev_b32 v4, 4, v4
    v_lshl_add_u32 v4, v{VT}, 7, v4
    s_lshl_b32 s26, s{W}, 12
    v_add_u32 v{VX}, s26, v4
    v_xor_b32 v{VX+1}, 32, v{VX}
    v_xor_b32 v{VX+2}, 64, v{VX}
    v_xor_b32 v{VX+3}, 96, v{VX}
    v_bfe_u32 v4, v3, 2, 2
    v_lshl_add_u32 v12, v{VH}, 3, v4
    v_and_b32 v6, 3, v3
    v_and_b32 v7, 1, v3
    v_bfe_u32 v8, v3, 1, 1
    v_lshl_add_u32 v7, v7, 1, v8
    v_bfe_u32 v8, v3, 4, 1
    v_lshl_add_u32 v9, v8, 2, v7
    v_lshl_add_u32 v10, v8, 2, v6
    s_cmp_lt_u32 s{RL}, 7
    s_cselect_b64 vcc, -1, 0
    v_cndmask_b32 v10, v10, v9, vcc
    v_lshlrev_b32 v11, 7, v12
    v_lshl_add_u32 v11, v10, 3, v11
    v_lshrrev_b32 v4, 1, v4
    v_lshl_add_u32 v11, v4, 6, v11
    v_add_u32 v{VW}, {WT}, v11
    v_xor_b32 v{VW+1}, 64, v{VW}
    v_add_u32 v10, 2, v9
    v_sub_u32 v11, 7, v9
    v_cmp_gt_u32 vcc, 6, v9
    v_cndmask_b32 v10, v11, v10, vcc
    s_bitcmp1_b32 s{H}, 0
    s_cselect_b64 vcc, -1, 0
    v_cndmask_b32 v10, v9, v10, vcc
    v_lshlrev_b32 v11, 6, v12
    v_lshl_add_u32 v11, v10, 3, v11
    v_add_u32 v{VQ}, {WQ}, v11
    v_lshrrev_b32 v4, 2, v3
    v_mul_u32_u24 v4, 2688, v4
    v_lshl_add_u32 v{VWQ}, v6, 4, v4
    s_cmp_ge_u32 s{RL}, 7
    s_cselect_b32 s26, 7, 0
    s_cselect_b32 s29, 2, 0
    s_sub_u32 s26, s{RL}, s26
    s_mul_i32 s28, s26, {64*2341}
    s_lshr_b32 s28, s28, 16
    v_add_u32 v4, s28, v6
    v_mul_u32_u24 v7, 28, v4
    v_lshrrev_b32 v7, 6, v7
    v_cmp_ge_u32 s[64:65], s26, v7
    v_cmp_ne_u32 vcc, s26, v7
    s_and_b32 s28, s{J}, 12
    s_add_u32 s29, s28, s29
    v_mov_b32 v7, s29
    v_addc_co_u32 v7, vcc, 0, v7, vcc
    s_and_b32 s28, s{J}, 3
    v_lshl_add_u32 v4, v4, 2, s28
    v_bfe_u32 v8, v3, 2, 2
    v_lshl_add_u32 v4, v4, 2, v8
    v_lshlrev_b32 v4, 7, v4
    v_lshl_add_u32 v{VFS}, v7, 2, v4
    s_and_b32 s64, s64, 0xffff
    s_cmp_ge_u32 s{RL}, 14
    s_cselect_b32 s64, 0, s64
    s_mov_b32 s65, 0
    s_lshl_b32 s28, s{W}, 5
    v_add_u32 v{VF}, s28, v{VC}
    s_lshl_b32 s28, s{J}, 2
    s_lshr_b32 s58, s{H}, 2
    s_add_u32 s58, s58, s28
    s_and_b32 s59, s{H}, 3
    s_lshl2_add_u32 s59, s59, s{W}
    s_mul_i32 s59, s59, 56
    s_lshl_b32 s28, s58, 5
    v_add_u32 v4, s28, v{VT}
    v_mul_u32_u24 v{VXO}, 896, v4
    v_lshl_add_u32 v{VXO}, v{VH}, 4, v{VXO}
    v_lshlrev_b32 v{VGO}, 3, v4
    s_waitcnt lgkmcnt(0)
    """)
    st_init(a)
    srd(a, 8, 36, (1 << 28) - WSBASE)
    srd(a, 16, 6, 448 * 2688)
    srd(a, 12, 4, 2048 * 896)
    if "wqpf" in EXP:
        a(f"""s_cmp_lg_u32 s{W}, 1
        s_cbranch_scc1 L_nopf2
        v_lshrrev_b32 v4, 2, v3
        v_min_u32 v4, 13, v4
        v_mul_u32_u24 v4, 2688, v4
        v_and_b32 v6, 3, v3
        v_lshl_add_u32 v4, v6, 7, v4
        s_mul_i32 s26, s25, {14*2688}
        s_and_b32 s28, s24, 1
        s_mul_i32 s28, s28, 384
        s_add_u32 s26, s26, s28
        buffer_load_dword v5, v4, s[16:19], s26 offen
        L_nopf2:""")
    if "wopfS" in EXP:
        srd(a, 20, 38, 448 * 896)
        a(f"""s_cmp_lg_u32 s{W}, 2
        s_cbranch_scc1 L_nopf3
        s_mul_i32 s26, s2, {13*128}
        v_lshl_add_u32 v4, v3, 7, s26
        s_mov_b64 exec, 0x1fff
        buffer_load_dword v5, v4, s[20:23], 0 offen
        s_mov_b64 exec, -1
        L_nopf3:""")
    a(f"""s_mul_i32 s62, s{H}, 56
    s_and_b32 s62, s62, 0xfffffff0
    s_mul_i32 s26, s{W}, {16*2688}
    s_add_u32 s62, s62, s26
    s_lshl_b32 s63, s{W}, 10
    s_add_u32 s63, s63, {WQ}
    s_lshl2_add_u32 s35, s{J}, s{W}
    s_mul_i32 s52, s35, 14
    s_add_u32 s52, s52, s{RL}
    s_mul_i32 s52, s52, {BLK}
    s_add_u32 s53, s52, 4096
    s_lshr_b32 s26, s{H}, 1
    s_mul_i32 s26, s26, 7
    s_and_b32 s28, s{H}, 1
    s_lshl2_add_u32 s29, s28, s26
    v_add_u32 v4, s29, v{VH}
    v_lshrrev_b32 v6, 3, v4
    v_mul_u32_u24 v6, {BLK-4096}, v6
    v_lshl_add_u32 v6, v4, 9, v6
    v_lshl_add_u32 v{VA}, v{VT}, 4, v6
    v_add_u32 v4, 2, v4
    v_lshrrev_b32 v6, 3, v4
    v_mul_u32_u24 v6, {BLK-4096}, v6
    v_lshl_add_u32 v6, v4, 9, v6
    s_add_u32 s26, s26, 3
    s_lshr_b32 s29, s26, 3
    s_mul_i32 s29, s29, {BLK}
    s_and_b32 s26, s26, 1
    s_lshl_b32 s26, s26, 9
    s_add_u32 s29, s29, s26
    s_add_u32 s29, s29, 4096
    v_mov_b32 v7, s29
    v_and_b32 v4, s28, v{VH}
    v_cmp_eq_u32 vcc, 1, v4
    v_cndmask_b32 v6, v6, v7, vcc
    v_lshl_add_u32 v{VA+1}, v{VT}, 4, v6
    s_mul_i32 s26, s{H}, 28
    v_add_u32 v4, s26, v{VT}
    v_lshrrev_b32 v6, 6, v4
    v_mul_u32_u24 v6, {BLK}, v6
    v_bfe_u32 v7, v4, 5, 1
    v_lshl_add_u32 v6, v7, 11, v6
    v_and_b32 v4, 31, v4
    v_lshl_add_u32 v6, v4, 4, v6
    v_lshl_add_u32 v6, v{VH}, 9, v6
    v_add_u32 v6, {7*BLK}, v6
    v_add_u32 v8, 1024, v6
    s_lshr_b32 s26, s26, 6
    s_mul_i32 s26, s26, {BLK}
    s_add_u32 s26, s26, {7*BLK + 4096 - 28*16}
    v_lshl_add_u32 v7, v{VT}, 4, s26
    v_cmp_le_u32 vcc, 28, v{VT}
    v_cndmask_b32 v{VA+2}, v6, v7, vcc
    v_cndmask_b32 v{VA+3}, v8, v7, vcc
    s_cmp_ge_u32 s{RL}, 14
    s_cbranch_scc1 L_roleR
    s_cmp_ge_u32 s{RL}, 7
    s_cbranch_scc1 L_roleV""")

    def gemm(kind):
        if "twait" in EXP:
            st(a, 10); a("s_waitcnt vmcnt(0)"); st(a, 11)
        def reads(c, s):
            k = 4 * c + s
            a(f"ds_read_b128 {vr(XF+4*k,4)}, v{VX+s} offset:{(c&3)*16384}")
            f = WF + 8 * s
            if kind == "R":
                a(f"ds_read_b128 {vr(f,4)}, v{VW} offset:{k*32}")
            else:
                for n in range(2):
                    a(f"ds_read_b64_tr_b16 {vr(f+4*n,2)}, v{VW+n} offset:{k*2048}")
                    a(f"ds_read_b64_tr_b16 {vr(f+4*n+2,2)}, v{VW+n} offset:{k*2048+512}")
        def mfmas(c, s):
            k = 4 * c + s
            f = WF + 8 * s
            for n in range(1 if kind == "R" else 2):
                acc = (A0, A1)[n]
                cc = "0" if k == 0 else vr(acc, 16)
                if kind == "V": a(f"{MF} {vr(acc,16)}, {vr(XF+4*k,4)}, {vr(f+4*n,4)}, {cc}")
                else:           a(f"{MF} {vr(acc,16)}, {vr(f+4*n,4)}, {vr(XF+4*k,4)}, {cc}")
        per = 2 if kind == "R" else 5
        for c in range(7):
            a("s_barrier")
            if c == 0: st(a, 1)
            if c == 6: st(a, 2)
            if STAMP and c in (0, 6): a("s_waitcnt lgkmcnt(0)")
            reads(c, 0); reads(c, 1)
            for s in range(4):
                if s < 2: reads(c, s + 2)
                a(f"s_waitcnt lgkmcnt({min(3 - s, 2) * per})")
                mfmas(c, s)

    PK = 8
    MS = 20
    a(f"""v_add_u32 v4, s{RL}, v{VH}""")
    for i in range(4):
        a(f"""v_cmp_eq_u32 vcc, {3-2*i}, v4
        v_cmp_eq_u32 s[{MS+2*i}:{MS+1+2*i}], {10-2*i}, v4
        s_or_b64 s[{MS+2*i}:{MS+1+2*i}], s[{MS+2*i}:{MS+1+2*i}], vcc""")
    a(f"v_mov_b32 v{TMP+2}, 0x3f803f80\nv_mov_b32 v{TMP+3}, 0x3f803f80")
    gemm("K")
    for i in range(4):
        acc = (A0, A1)[i >> 1] + 8 * (i & 1)
        p = PK + 4 * i
        for e in range(4): a(f"v_cvt_pk_bf16_f32 v{p+e}, v{acc+2*e}, v{acc+2*e+1}")
        l = uid("Lnosh")
        a(f"""s_mov_b64 exec, s[{MS+2*i}:{MS+1+2*i}]
        s_cbranch_execz {l}
        v_mov_b32 v{TMP}, v{p+2}
        v_mov_b32 v{TMP+1}, v{p+3}
        v_mov_b32 v{p+2}, 0x3f803f80
        v_mov_b32 v{p+3}, 0x3f803f80
        buffer_store_dwordx4 {vr(TMP,4)}, v1, s[8:11], s53 offen sc1
        s_nop 1
        {l}:
        s_mov_b64 exec, -1
        buffer_store_dwordx4 {vr(p,4)}, v1, s[8:11], s52 offen offset:{1024*i} sc1""")
    a("s_branch L_pub")
    a.label("L_roleR")
    if "pfx" in EXP:
        C0 = 1 if "pf1" in EXP else 2
        a(f"""v_mul_u32_u24 v4, 896, v{VT}
        v_lshl_add_u32 v4, v{VH}, 7, v4
        s_mul_i32 s26, s35, {32*896}
        v_lshrrev_b32 v6, 3, v{VT}
        v_mul_u32_u24 v6, 2688, v6
        v_and_b32 v7, 7, v3
        v_min_u32 v7, 6, v7
        v_lshl_add_u32 v6, v7, 7, v6
        v_mul_u32_u24 v7, {64*2688}, v{VH}
        v_add_u32 v6, v6, v7
        s_and_b32 s28, s35, 15
        s_mul_i32 s28, s28, {4*2688}
        s_and_b32 s29, s24, 1
        s_mul_i32 s29, s29, 896
        s_add_u32 s28, s28, s29
        s_add_u32 s28, s28, {896 + C0*64*2688}""")
        for c in range(C0, 7, 2):
            if c == 6: a("s_mov_b32 exec_hi, 0")
            a(f"""buffer_load_dword v5, v4, s[12:15], s26 offen offset:{128*c}
            buffer_load_dword v5, v6, s[16:19], s28 offen
            s_add_u32 s28, s28, {128*2688}""")
        a("s_mov_b64 exec, -1")
    srd(a, 20, 40, 896)
    a(f"""s_lshl_b32 s28, s{ROT}, 7
    v_add_u32 v4, s28, v1
    v_subrev_u32 v6, 896, v4
    v_min_u32 v4, v4, v6
    s_mov_b32 m0, {RT}
    s_nop 0
    buffer_load_dwordx4 v4, s[20:23], 0 offen lds
    s_mov_b32 s20, s48
    s_mov_b32 s21, s49
    s_mov_b32 m0, {RT+1024}
    s_nop 0
    buffer_load_dwordx4 v4, s[20:23], 0 offen lds
    v_and_b32 v4, 1, v3
    v_lshlrev_b32 v4, 10, v4
    v_lshl_add_u32 v4, v{VH}, 4, v4
    v_add_u32 v{VW}, {RT}, v4
    s_waitcnt vmcnt(0)""")
    gemm("R")
    a(f"""s_cmp_lg_u32 s{RL}, 14
    s_cbranch_scc1 L_pub
    s_mov_b32 exec_hi, 0
    s_nop 9
    v_cvt_pk_bf16_f32 v4, v{A0}, v{A0+1}
    v_and_b32 v5, 0xffff0000, v4
    v_lshlrev_b32 v4, 16, v4
    v_ashrrev_i32 v6, 31, v4
    v_or_b32 v6, 0x80000000, v6
    v_xor_b32 v6, v6, v4
    v_and_b32 v6, 0xffff0000, v6
    v_cmp_u_f32 vcc, v4, v4
    v_cndmask_b32 v6, v6, 0, vcc
    s_lshl_b32 s26, s35, 5
    v_add_u32 v7, s26, v{VT}
    v_sub_u32 v8, 0xffff, v7
    v_or_b32 v6, v6, v8
    v_lshlrev_b32 v9, 3, v7
    v_and_b32 v7, 127, v7
    v_lshlrev_b32 v7, 2, v7
    v_add_u32 v7, {KEYS}, v7
    ds_write_b32 v7, v6
    s_mov_b32 exec_lo, 1
    ds_add_u32 v{VC}, v{V1} offset:{C_K}
    s_mov_b32 exec_lo, -1
    v_mul_f32 v5, {NLOG2E:#x}, v5
    v_exp_f32 v5, v5
    v_add_f32 v5, 1.0, v5
    v_rcp_f32 v5, v5
    v_cvt_pk_bf16_f32 v5, v5, v5
    v_lshlrev_b32 v10, 16, v5
    s_mov_b32 exec_hi, -1
    s_branch L_pub
    """)
    a.label("L_roleV")
    a(f"""v_cmp_eq_u32 vcc, 0, v3
    v_mov_b32 v7, 0x3f803f80
    v_cndmask_b32 v{TMP}, 0, v7, vcc""")
    for e in range(1, 4): a(f"v_mov_b32 v{TMP+e}, v{TMP}")
    gemm("V")
    a(f"s_mov_b64 exec, 0xff\nbuffer_store_dwordx4 {vr(TMP,4)}, v1, s[8:11], s53 offen sc1\ns_mov_b64 exec, -1")
    for i in range(4):
        acc = (A0, A1)[i >> 1] + 8 * (i & 1)
        p = PK + 4 * i
        for e in range(4): a(f"v_cvt_pk_bf16_f32 v{p+e}, v{acc+2*e}, v{acc+2*e+1}")
        a(f"buffer_store_dwordx4 {vr(p,4)}, v1, s[8:11], s52 offen offset:{1024*i} sc1")
    a.label("L_pub")
    st(a, 3)
    a(f"s_add_u32 s56, s{ROT}, {NQ1}\ns_cmp_ge_u32 s56, 7\ns_cselect_b32 s26, 7, 0\ns_sub_u32 s56, s56, s26")
    for i in range(NQ1, 7):
        a(f"""s_mul_i32 s26, s56, {64*2688}
        s_add_u32 m0, s63, {i*4096}
        s_add_u32 s26, s26, s62
        buffer_load_dwordx4 v{VWQ}, s[16:19], s26 offen lds""")
        if i < 6: next_chunk(a, 56)
    QO = Q + 8 * OWN
    SK = TMP
    a(f"""s_mov_b64 s[16:17], s[36:37]
    s_mov_b32 s18, {KVB}
    s_mov_b32 s57, 0""")
    def ldK(b, soff, base=None):
        r = KV + 16 * b if base is None else base
        return [f"buffer_load_dwordx4 {vr(r,4)}, v{VA}, s[16:19], {soff} offen sc1",
                f"buffer_load_dwordx4 {vr(r+4,4)}, v{VA+1}, s[16:19], {soff} offen sc1"]
    def ldV(b, soff):
        return [f"buffer_load_dwordx4 {vr(KV+16*b+8,4)}, v{VA+2}, s[16:19], {soff} offen sc1",
                f"buffer_load_dwordx4 {vr(KV+16*b+12,4)}, v{VA+3}, s[16:19], {soff} offen sc1"]
    def try_loads(block=False):
        d = uid("Ltl"); l = uid("Ltr")
        a(f"s_cmp_lg_u32 s57, 0\ns_cbranch_scc1 {d}")
        if block: a(f"s_mov_b32 s60, {SPIN_LIMIT}\n{l}:\ns_sub_u32 s60, s60, 1\ns_cbranch_scc1 L_exit")
        a(f"""ds_read_b32 v4, v{VF} offset:{C_R}
        ds_read_b32 v5, v{VC} offset:{C_R}
        s_waitcnt lgkmcnt(0)
        v_readfirstlane_b32 s56, v4
        v_readfirstlane_b32 s29, v5
        s_min_u32 s57, s56, s29
        s_cmp_eq_u32 s57, 0
        s_cbranch_scc1 {l if block else d}
        s_sub_u32 s29, s29, 1
        s_sub_u32 s27, s56, 1
        s_add_u32 s54, s56, {TS-1}
        s_add_u32 s55, s56, {2*TS-1}
        s_add_u32 s56, s56, {3*TS-1}""")
        st(a, 6)
        for x in ldK(0, "s29", SK) + ldK(0, "s27") + ldV(0, "s27") + ldK(1, "s54") + ldV(1, "s54"): a(x)
        a(f"{d}:")
    def qreads(k):
        f = WF + 4 * (k & 7)
        a(f"ds_read_b64_tr_b16 {vr(f,2)}, v{VQ} offset:{k*1024}\nds_read_b64_tr_b16 {vr(f+2,2)}, v{VQ} offset:{k*1024+256}")
    def publish():
        a(f"""s_mov_b32 s28, {WS_MB}
        v_readfirstlane_b32 s{T}, v11
        v_mov_b32 v6, v11
        s_mov_b64 exec, 1
        s_waitcnt vmcnt({7-NQ1})""")
        st(a, 4)
        a(f"""ds_add_rtn_u32 v4, v{VC}, v{V1} offset:{C_D}
        s_waitcnt lgkmcnt(0)
        v_cmp_eq_u32 vcc, 3, v4
        s_cbranch_vccz L_notlast
        s_mov_b64 exec, s[64:65]
        s_cbranch_execz L_notlast
        buffer_atomic_swap v6, v{VFS}, s[8:11], s28 offen sc1
        s_waitcnt vmcnt(1)
        s_branch L_published
        L_notlast:
        s_waitcnt vmcnt(0)
        s_cmp_lg_u32 s{RL}, 14
        s_cbranch_scc1 L_published
        s_mov_b32 s26, {WS_G}
        s_mov_b32 exec_lo, -1
        buffer_store_dwordx2 v[10:11], v9, s[8:11], s26 offen sc1
        L_published:""")
        a("s_mov_b64 exec, -1")
    def qgemm(lo, hi, cnt):
        spin_lds(a, VC, cnt, 4, 4)
        if not lo: a(f"ds_read_b32 v11, v{VC} offset:{C_T}")
        for k in range(lo, min(hi, lo + 6)): qreads(k)
        for k in range(lo, hi):
            if k + 6 < hi: qreads(k + 6)
            a(f"s_waitcnt lgkmcnt({2*(min(hi-1,k+6)-k)})")
            a(f"{MF} {vr(A0,16)}, {vr(WF+4*(k&7),4)}, {vr(XF+4*k,4)}, {'0' if k==0 else vr(A0,16)}")
    def qepi():
        for i in range(8): a(f"v_mov_b32 v{P+8+i}, 0")
        a(f"""s_lshl_b32 s26, s{W}, 11
        s_add_u32 s26, s26, {QX}
        v_add_u32 v5, s26, v1
        s_mov_b32 s62, {QSCALE:#x}
        s_mov_b32 s63, {QSCALE:#x}""")
        for i in range(8): a(f"v_pk_mul_f32 {vr(A0+2*i,2)}, {vr(A0+2*i,2)}, s[62:63]")
        for i in range(8): a(f"v_cvt_pk_bf16_f32 v{QO+i}, v{A0+2*i}, v{A0+2*i+1}")
        a(f"""s_mov_b32 exec_lo, 0
        v_mov_b32 v{QO+6}, 0
        v_mov_b32 v{QO+7}, 0
        s_mov_b32 exec_lo, -1
        ds_write_b128 v5, {vr(QO,4)}
        ds_write_b128 v5, {vr(QO+4,4)} offset:1024""")
        lds_inc(a, VC, C_X, V1)
        for i in range(0, 64, 2): a(f"v_pk_mul_f32 {vr(O+i,2)}, {vr(P+8,2)}, {vr(P+8,2)}")
    qgemm(0, 4 * NQ1, C_Q1)
    if NQ1 == 7 and "qfirst" in EXP:
        st(a, 5)
        qepi(); publish(); try_loads()
    elif NQ1 == 7:
        st(a, 5)
        publish(); try_loads(); qepi()
    else:
        publish()
        lds_inc(a, VC, C_Q2, V1)
        try_loads()
        qgemm(4 * NQ1, 28, C_Q2)
        st(a, 5)
        try_loads()
        qepi()
    spin_lds(a, VC, C_X, 4, 4)
    for i in range(3):
        a(f"""s_add_u32 s26, s{W}, {i+1}
        s_and_b32 s26, s26, 3
        s_lshl_b32 s26, s26, 11
        s_add_u32 s26, s26, {QX}
        v_add_u32 v5, s26, v1
        ds_read_b128 {vr(Q+8*i,4)}, v5
        ds_read_b128 {vr(Q+8*i+4,4)}, v5 offset:1024""")
    try_loads(block=True)
    def QK(u, m):
        kt, qs = (u >> 2) & 3, u & 3
        s = S + 16 * (u & 1)
        c = "0" if m == 0 else vr(s, 16)
        return f"{MF} {vr(s,16)}, {vr(KV+16*kt+4*m,4)}, {vr(Q+8*qs+4*m,4)}, {c}"
    def PV(u, m):
        kt, qs = (u >> 2) & 3, u & 3
        return f"{MF} {vr(O+16*qs,16)}, {vr(KV+16*kt+8+4*m,4)}, {vr(P+8*(u&1)+4*m,4)}, {vr(O+16*qs,16)}"
    SS = [S, S + 16, KV + 32, KV + 48]
    def samp(i, m): return f"{MF} {vr(SS[i],16)}, {vr(SK+4*m,4)}, {vr(Q+8*i+4*m,4)}, {'0' if m == 0 else vr(SS[i],16)}"
    def mx(i):
        for x in max16_list(4, SS[i]): a(x)
        a(f"s_mov_b32 exec_lo, 0\nv_cvt_pk_bf16_f32 v{Q+8*i+6}, -v4, 0\ns_mov_b32 exec_lo, -1")
    a("s_waitcnt vmcnt(8) lgkmcnt(0)")
    for i in range(4): a(samp(i, 0)); a(samp(i, 1))
    mx(0)
    a("s_waitcnt vmcnt(4)")
    a(QK(0, 0)); a(QK(0, 1))
    mx(1); mx(2)
    for x in ldK(2, "s55") + ldV(2, "s55"): a(x)
    mx(3)
    for x in ldK(3, "s56"): a(x)
    for i in range(0, 8, 2): a(f"v_pk_mul_f32 {vr(KV+56+i,2)}, {vr(P+8,2)}, {vr(P+8,2)}")
    for i in range(3):
        a(f"""s_add_u32 s26, s{W}, {i+1}
        s_and_b32 s26, s26, 3
        s_mul_i32 s26, s26, 12288
        s_add_u32 s26, s26, {CB + i*4096}
        v_add_u32 v{4+i}, s26, v1""")
    a(f"s_mul_i32 s26, s{W}, 12288\ns_add_u32 s26, s26, {CB}\nv_add_u32 v2, s26, v1")
    lds_inc(a, VC, C_L, V1)
    st(a, 7)
    a("s_mov_b32 s57, 3")
    def substep(u, ex, last=False):
        s = S + 16 * (u & 1); p = P + 8 * (u & 1)
        e = lambda i: f"v_exp_f32 v{s+i}, v{s+i}"
        c = lambda i: f"v_cvt_pk_bf16_f32 v{p+i}, v{s+2*i}, v{s+2*i+1}"
        q0, q1 = ([], []) if last else ([QK(u+1, 0)], [QK(u+1, 1)])
        seq = q0 + ex[0] + [e(0), e(1), e(2), e(3), c(0), e(4),
               PV(u-1, 0)] + ex[1] + [e(5), c(1), e(6), e(7), c(2), e(8)] + q1 + ex[2] + [e(9), c(3), e(10), e(11), c(4), e(12),
               PV(u-1, 1)] + ex[3] + [e(13), c(5), e(14), e(15), c(6), c(7)]
        for x in seq: a(x)
    a(".p2align 6")
    a.label("L_loop")
    for u in range(16):
        kt, qs = u >> 2, u & 3
        ex = [[], [], [], []]
        if qs == 1:
            l = ldV((kt + 3) & 3, "s56")
            ex[0] = [l[0]]; ex[1] = [l[1]]; ex[2] = [f"s_add_u32 s56, s56, {TS}"]
        if u == 0: ex[0] = [f"ds_read_b32 v7, v{VF} offset:{C_R+4}"]
        if u == 1:
            ex[2] = ["s_waitcnt lgkmcnt(0)", "v_readfirstlane_b32 s56, v7"]
            ex[3] = ["s_sub_u32 s56, s56, 1"]
        if u == 2:
            ex[0] = ["s_cbranch_scc1 L_nextwait", "L_nextok:", f"v_add_u32 v{VF}, 4, v{VF}"]
        if qs == 2 and "nowait" not in EXP: ex[3] = ["s_waitcnt vmcnt(10)"]
        if qs == 0 and "nowait" not in EXP: ex[3] = ["s_waitcnt vmcnt(10)"]
        if qs == 3:
            l = ldK(kt, "s56")
            ex[0] = [l[0]]; ex[1] = [l[1]]
        if u == 12: ex[0] = [f"ds_read_b32 v7, v{VC} offset:{C_F}"]
        if u == 13: ex[3] = ["s_sub_u32 s57, s57, 1"]
        if "itst" in EXP and u in (0, 8):
            a("s_waitcnt lgkmcnt(0)")
            for i in range(1, 6): a(f"s_mov_b32 s{72+2*i}, s{72+2*i+2}")
            a("s_memtime s[84:85]")
        if "noload" in EXP: ex = [[y for y in x if "buffer_load" not in y] for x in ex]
        substep(u, ex)
        if u == 13: a("s_cbranch_scc1 L_tail")
    a("s_branch L_loop")
    a.label("L_tail")
    st(a, 8)
    a(f"""s_waitcnt lgkmcnt(0)
    v_cmp_gt_u32 vcc, 4, v7
    s_cbranch_vccnz L_wait_ffn
    L_ffn_free:""")
    wr = lambda i, k: f"ds_write_b128 v{4+i}, {vr(O+16*i+4*k,4)} offset:{k*1024}"
    substep(14, [[], [wr(0, 0)], [wr(0, 1)], [wr(0, 2)]])
    substep(15, [[wr(0, 3)], [wr(1, 0)], [wr(1, 1)], [wr(1, 2)]], last=True)
    a(PV(15, 0)); a(wr(1, 3)); a(PV(15, 1))
    for k in range(4): a(wr(2, k))
    lds_inc(a, VC, C_C, V1)
    srd(a, 20, 50, 2048 * 896)
    TT = S
    OO = O + 16 * OWN
    a(f"""s_lshl_b32 s28, s35, 4
    s_add_u32 s28, s28, s{H}
    s_lshr_b32 s56, s28, 2
    s_lshl_b32 s56, s56, 5
    s_and_b32 s26, s{H}, 3
    s_add_u32 s56, s56, s26
    s_lshl_b32 s56, s56, 2
    s_add_u32 s56, s56, {WS_OFL}
    s_lshl_b32 s52, s28, 11
    s_add_u32 s52, s52, {WS_O}
    s_mov_b32 s57, 0""")
    spin_lds(a, VC, C_C, 4, 7)
    for k in range(12): a(f"ds_read_b128 {vr(TT+4*k,4)}, v2 offset:{k*1024}")
    a(f"s_lshl_b32 s26, s{W}, 2\nv_add_u32 v7, s26, v{VC}\nds_write_b32 v7, v{V1} offset:{C_P}")
    for i in range(3):
        a(f"s_waitcnt lgkmcnt({9-4*i})")
        for k in (6, 7, 0, 1, 2, 3, 4, 5): a(f"v_pk_add_f32 {vr(OO+2*k,2)}, {vr(OO+2*k,2)}, {vr(TT+16*i+2*k,2)}")
    a.label("L_fin")
    a(f"""v_mov_b32 v5, v{OO+12}
    v_mov_b32 v4, v{OO+12}
    s_mov_b32 exec_lo, 0
    v_mov_b32 v{OO+12}, 0
    s_mov_b32 exec_lo, -1
    v_permlane32_swap_b32 v5, v4
    v_rcp_f32 v6, v4
    s_mov_b32 s28, 0x30800000
    s_mov_b32 s29, 0x4e800000
    v_cmp_nle_f32 s[54:55], s28, v4
    v_cmp_nge_f32 s[62:63], s29, v4
    v_pk_add_f32 v[4:5], {vr(OO,2)}, {vr(OO+2,2)}""")
    for k in range(2, 8): a(f"v_pk_add_f32 v[4:5], v[4:5], {vr(OO+2*k,2)}")
    a(f"""v_add_f32 v4, v4, v5
    s_movk_i32 s28, 0x207
    v_cmp_class_f32 vcc, v4, s28
    s_or_b64 s[54:55], s[54:55], s[62:63]""")
    for k in range(8): a(f"v_pk_mul_f32 {vr(OO+2*k,2)}, {vr(OO+2*k,2)}, v[6:7] op_sel_hi:[1,0]")
    for k in range(8): a(f"v_cvt_pk_bf16_f32 v{Q+k}, v{OO+2*k}, v{OO+2*k+1}")
    a(f"""v_mov_b32 v6, s{T}
    s_or_b64 s[54:55], s[54:55], vcc
    s_cbranch_scc1 L_bad
    L_good:
    buffer_store_dwordx4 {vr(Q,4)}, v1, s[8:11], s52 offen sc1
    buffer_store_dwordx4 {vr(Q+4,4)}, v1, s[8:11], s52 offen offset:1024 sc1
    s_mov_b64 exec, 1
    {"s_waitcnt vmcnt(0)" if ("noclr" in EXP or "otouch" in EXP) else ""}
    buffer_atomic_swap v6, v{VZ}, s[8:11], s56 offen sc1
    s_mov_b64 exec, -1""")
    st(a, 9)
    a(f"""s_mov_b32 s26, {WS_G}
    buffer_load_dwordx2 {vr(GR,2)}, v{VGO}, s[8:11], s26 offen sc1
    buffer_load_dwordx4 {vr(XR,4)}, v{VXO}, s[12:15], s59 offen
    buffer_load_dwordx4 {vr(XR+4,4)}, v{VXO}, s[12:15], s59 offen offset:32""")
    WOF = 104; B = 232; ACC = 8; U = 40
    OSB = [40, 72]
    a(f"""v_bfe_u32 v4, v3, 2, 2
    v_lshl_add_u32 v4, v{VH}, 2, v4
    v_mul_u32_u24 v4, 224, v4
    v_bfe_u32 v5, v3, 4, 1
    v_lshl_add_u32 v4, v5, 5, v4
    v_and_b32 v5, 1, v3
    v_lshl_add_u32 v4, v5, 4, v4
    v_bfe_u32 v5, v3, 1, 1
    v_lshl_add_u32 v4, v5, 3, v4
    s_mul_i32 s28, s{W}, 56
    v_add_u32 v24, s28, v4
    v_add_u32 v25, {8*28*224}, v24
    v_add_u32 v26, {CB}, v1
    v_lshlrev_b32 v27, 2, v{VT}
    v_add_u32 v27, {UPDI}, v27
    s_mul_i32 s28, s{W}, 112
    s_add_u32 s28, s28, {UPD}
    v_lshl_add_u32 v28, v{VH}, 5, s28
    v_mov_b32 v29, {CNT}
    v_mov_b32 v30, 0
    v_mov_b32 v31, 0
    s_waitcnt vmcnt(6)""")
    spin_lds(a, 29, C_W, 2, 6)
    for k in range(32):
        hd, m = k >> 1, k & 1
        o = (28 * (hd & 7) + 16 * m) * 224
        b = 24 + (hd >> 3)
        a(f"ds_read_b64_tr_b16 {vr(WOF+4*k,2)}, v{b} offset:{o}\nds_read_b64_tr_b16 {vr(WOF+4*k+2,2)}, v{b} offset:{o+8*224}")
    for k in range(8): a(f"v_pk_mul_f32 {vr(ACC+2*k,2)}, v[30:31], v[30:31]")
    a("s_waitcnt vmcnt(0)")
    for k in range(8):
        a(f"v_lshlrev_b32 v{B+2*k}, 16, v{XR+k}\nv_and_b32 v{B+2*k+1}, 0xffff0000, v{XR+k}")
    a(f"""v_cmp_ne_u32 vcc, s{T}, v{GR+1}
    s_cbranch_vccnz L_gate
    L_gate_ok:
    v_sub_f32 v32, 1.0, v{GR}
    v_cvt_pk_bf16_f32 v32, v32, v32
    v_lshlrev_b32 v32, 16, v32
    s_mov_b32 s60, {SPIN_LIMIT}""")
    if "twait" not in EXP: st(a, 10)
    def stub(): pass
    def need(bit):
        l = uid("Lnd"); d = uid("Lndd")
        a(f"""s_bitcmp1_b32 s61, {bit}
        s_cbranch_scc1 {d}
        {l}:
        ds_read_b32 v6, v29 offset:{C_O}
        s_sub_u32 s60, s60, 1
        s_cbranch_scc1 L_exit
        s_waitcnt lgkmcnt(0)
        v_readfirstlane_b32 s61, v6
        s_bitcmp1_b32 s61, {bit}
        s_cbranch_scc0 {l}
        {d}:""")
    def rd(g):
        for k in range(8): a(f"ds_read_b128 {vr(OSB[g&1]+4*k,4)}, v26 offset:{g*12288+k*1024}")
    def mm(g, lo, hi):
        for k in range(lo, hi):
            a(f"{MF} {vr(ACC,16)}, {vr(WOF+32*g+4*k,4)}, {vr(OSB[g&1]+4*k,4)}, {vr(ACC,16)}")
    a(f"""ds_read_b32 v6, v29 offset:{C_O}
    s_mov_b32 s57, 0
    s_waitcnt lgkmcnt(0)
    v_readfirstlane_b32 s61, v6
    s_bitcmp1_b32 s61, 10
    s_cbranch_scc1 L_blkU
    s_mov_b32 s57, 1
    L_next0:""")
    need(0); rd(0)
    for g in range(4):
        if g < 3: a(f"ds_read_b32 v6, v29 offset:{C_O}")
        a("s_waitcnt lgkmcnt(0)")
        mm(g, 0, 2)
        if g < 3:
            a(f"v_readfirstlane_b32 s61, v6\ns_bitcmp1_b32 s61, {g+1}\ns_cbranch_scc0 L_late{g}")
            rd(g + 1)
        mm(g, 2, 8)
        a(f"L_back{g}:")
    a("s_cmp_lg_u32 s57, 0\ns_cbranch_scc1 L_lateU\nL_next1:")
    if "twait" not in EXP: st(a, 11)
    a("s_nop 9")
    for m in range(2):
        for e in range(4*m, 4*m+4):
            a(f"v_pk_fma_f32 {vr(B+2*e,2)}, {vr(ACC+2*e,2)}, {vr(GR,2)}, {vr(B+2*e,2)} op_sel_hi:[1,0,1]")
        for e in range(4*m, 4*m+4): a(f"v_cvt_pk_bf16_f32 v{40+e}, v{B+2*e}, v{B+2*e+1}")
        if m == 0:
            a(f"buffer_store_dwordx4 v[40:43], v{VXO}, s[20:23], s59 offen{OUTAUX}")
            stub()
        else:
            a(f"""s_mov_b32 exec_hi, 0
            buffer_store_dwordx4 v[44:47], v{VXO}, s[20:23], s59 offen offset:32{OUTAUX}
            s_mov_b64 exec, 0xffffffff
            s_not_b64 exec, exec
            buffer_store_dwordx2 v[44:45], v{VXO}, s[20:23], s59 offen offset:32{OUTAUX}""")
    st_end(a)
    diag_end(a)
    a("s_endpgm")
    for g in range(3):
        a(f"L_late{g}:")
        mm(g, 2, 8)
        need(g + 1); rd(g + 1)
        a(f"s_branch L_back{g}")
    a("L_lateU:")
    need(10)
    a(f"""L_blkU:
    ds_read_b32 v6, v27
    s_waitcnt lgkmcnt(0)
    v_cmp_le_i32 vcc, 0, v6
    s_cbranch_vccz L_noupd
    s_mov_b64 exec, vcc
    v_mul_u32_u24 v6, 448, v6
    v_add_u32 v28, v28, v6""")
    for k in range(4): a(f"ds_read_b128 {vr(U+4*k,4)}, v28 offset:{64*(k>>1)+16*(k&1)}")
    a("s_waitcnt lgkmcnt(0)")
    for k in range(8):
        a(f"""v_pk_add_f32 {vr(B+2*k,2)}, {vr(B+2*k,2)}, {vr(U+2*k,2)}
        v_cvt_pk_bf16_f32 v{B+2*k}, v{B+2*k}, v{B+2*k+1}
        v_and_b32 v{B+2*k+1}, 0xffff0000, v{B+2*k}
        v_lshlrev_b32 v{B+2*k}, 16, v{B+2*k}""")
    a("s_mov_b64 exec, -1\nL_noupd:")
    stub()
    for k in range(8): a(f"v_pk_mul_f32 {vr(B+2*k,2)}, {vr(B+2*k,2)}, v[32:33] op_sel_hi:[1,0]")
    a("s_cmp_lg_u32 s57, 0\ns_cbranch_scc1 L_next1\ns_branch L_next0")
    a("L_bad:\ns_cmp_eq_u32 s57, 0\ns_cbranch_scc1 L_slow")
    for k in range(8): a(f"v_min_u32 v{Q+k}, -2, v{Q+k}")
    a("s_branch L_good")
    a.label("L_wait_ffn")
    spin_lds(a, VC, C_F, 4, 7)
    a("s_branch L_ffn_free")
    a.label("L_nextwait")
    spin_lds(a, VF, C_R + 4, 1, 7)
    a("s_sub_u32 s56, s61, 1\ns_branch L_nextok")
    a(f"""L_gate:
    s_mov_b32 s26, {WS_G}
    s_mov_b32 s60, {SPIN_LIMIT}
    L_gate1:
    buffer_load_dwordx2 {vr(GR,2)}, v{VGO}, s[8:11], s26 offen sc1
    s_waitcnt vmcnt(0)
    v_cmp_ne_u32 vcc, s{T}, v{GR+1}
    s_cbranch_vccz L_gate_ok
    s_sub_u32 s60, s60, 1
    s_cbranch_scc0 L_gate1
    s_endpgm""")
    a.label("L_slow")
    a(f"""s_mov_b32 s57, 1
    s_mov_b32 s55, {KVB}
    s_mov_b32 s54, 0
    s_mov_b32 exec_lo, 0
    v_mov_b32 v{QO+6}, 0
    v_mov_b32 v{QO+7}, 0
    s_mov_b32 exec_lo, -1
    v_mov_b32 v4, 0xff800000
    L_slow1:
    {ldK(0, "s54")[0]}
    {ldK(0, "s54")[1]}
    s_waitcnt vmcnt(0)
    {MF} {vr(S,16)}, {vr(KV,4)}, {vr(QO,4)}, 0
    {MF} {vr(S,16)}, {vr(KV+4,4)}, {vr(QO+4,4)}, {vr(S,16)}""")
    for x in max16_list(4, S, init=True): a(x)
    a(f"""s_add_u32 s54, s54, {TS}
    s_cmp_lt_u32 s54, s55
    s_cbranch_scc1 L_slow1
    v_mov_b32 v5, v4
    v_permlane32_swap_b32 v4, v5
    v_max_f32 v4, v4, v5""")
    split_neg_max(a, 4, 5, 6, QO + 6, QO + 7)
    for i in range(16): a(f"v_mov_b32 v{OO+i}, 0")
    a(f"""s_mov_b32 s54, 0
    L_slow2:
    {ldK(0, "s54")[0]}
    {ldK(0, "s54")[1]}
    {ldV(0, "s54")[0]}
    {ldV(0, "s54")[1]}
    s_waitcnt vmcnt(0)
    {MF} {vr(S,16)}, {vr(KV,4)}, {vr(QO,4)}, 0
    {MF} {vr(S,16)}, {vr(KV+4,4)}, {vr(QO+4,4)}, {vr(S,16)}""")
    for i in range(16): a(f"v_exp_f32 v{S+i}, v{S+i}")
    for i in range(8): a(f"v_cvt_pk_bf16_f32 v{P+i}, v{S+2*i}, v{S+2*i+1}")
    a(f"""{MF} {vr(OO,16)}, {vr(KV+8,4)}, {vr(P,4)}, {vr(OO,16)}
    {MF} {vr(OO,16)}, {vr(KV+12,4)}, {vr(P+4,4)}, {vr(OO,16)}
    s_nop 7
    s_nop 7
    s_add_u32 s54, s54, {TS}
    s_cmp_lt_u32 s54, s55
    s_cbranch_scc1 L_slow2
    s_branch L_fin""")

def service_wave(a):
    a.label("L_service")
    a(f"""v_mov_b32 v14, {CNT}
    v_mov_b32 v15, 1
    v_mov_b32 v9, 0""")
    srd(a, 8, 36, (1 << 28) - WSBASE)
    a("s_waitcnt lgkmcnt(0)")
    tag(a)
    a(f"v_mov_b32 v4, s{T}\nds_write_b32 v14, v4 offset:{C_T}\ns_waitcnt vmcnt(0)")
    lds_inc(a, 14, C_Q1, 15)
    a(f"""v_and_b32 v32, 31, v3
    v_lshrrev_b32 v33, 5, v3
    v_lshlrev_b32 v219, 3, v1
    v_lshrrev_b32 v220, 2, v1
    v_and_b32 v4, 7, v3
    v_lshlrev_b32 v217, 3, v4
    s_lshr_b32 s58, s{H}, 2
    s_lshl2_add_u32 s58, s{J}, s58
    s_cmp_ge_u32 s{L}, 2
    s_cbranch_scc1 L_svcB""")
    def sel_load(lbl):
        a(f"""s_mov_b32 s26, {WS_SEL}
        s_mov_b32 s60, {SPIN_LIMIT}
        {lbl}:
        buffer_load_dwordx2 v[20:21], v217, s[8:11], s26 offen sc1
        s_waitcnt vmcnt(0)
        v_cmp_ne_u32 vcc, s{T}, v21
        s_cbranch_vccz {lbl}_ok
        s_sleep 4
        s_sub_u32 s60, s60, 1
        s_cbranch_scc0 {lbl}
        s_endpgm
        {lbl}_ok:""")
    a(f"""v_mov_b32 v6, {KEYS}
    s_lshl_b32 s28, s{L}, 8
    v_add3_u32 v7, v220, v6, s28
    s_lshl_b32 s27, s{J}, 6
    s_add_u32 s27, s27, {WS_R}
    s_cmp_eq_u32 s{RL}, 14
    s_cbranch_scc1 L_rank
    s_cmp_lg_u32 s2, {SELECTOR}
    s_cbranch_scc1 L_svcA
    s_lshl_b32 s26, s{L}, 9
    s_add_u32 s26, s26, {WS_R}
    s_mov_b32 s27, {WS_SEL}
    v_lshlrev_b32 v4, 3, v3
    v_mov_b32 v5, 2
    s_mov_b32 s60, {SPIN_LIMIT}
    L_keys:
    v_mov_b32 v20, 0
    v_mov_b32 v21, 0
    buffer_atomic_or_x2 v[20:21], v4, s[8:11], s26 offen sc0 sc1
    s_sub_u32 s60, s60, 1
    s_cbranch_scc1 L_exit
    s_waitcnt vmcnt(0)
    v_cmp_ne_u32 vcc, s{T}, v21
    s_cbranch_vccnz L_keys
    ds_write_b32 v7, v20""")
    lds_inc(a, 14, C_K, 5)
    a.label("L_rank")
    spin_lds(a, 14, C_K, 4, 8)
    st(a, 10)
    if STAMP: a("s_waitcnt lgkmcnt(0)")
    a(f"ds_read_b32 v20, v7\nv_mov_b32 v22, 0\nv_mov_b32 v21, s{T}\ns_mov_b32 s57, 0\nL_rk:")
    for k in range(8): a(f"ds_read_b128 {vr(40+4*k,4)}, v6 offset:{16*k}")
    a("v_add_u32 v6, 128, v6")
    CS = ["s[52:53]", "s[54:55]", "s[62:63]", "s[28:29]"]
    for k in range(8):
        a(f"s_waitcnt lgkmcnt({7-k})")
        for e in range(4): a(f"v_cmp_gt_u32 {CS[e]}, v{40+4*k+e}, v20")
        for e in range(4): a(f"v_addc_co_u32 v22, vcc, 0, v22, {CS[e]}")
    a(f"""s_add_u32 s57, s57, 1
    s_cmp_lt_u32 s57, 4
    s_cbranch_scc1 L_rk
    v_cmp_gt_u32 vcc, 8, v22
    v_lshlrev_b32 v22, 3, v22
    s_mov_b64 exec, vcc
    s_cbranch_execz L_rank_done
    buffer_atomic_swap_x2 v[20:21], v22, s[8:11], s27 offen sc1
    L_rank_done:
    s_mov_b64 exec, -1""")
    st(a, 11)
    a.label("L_svcA")
    GI = CB; DI = QX; HB = 101376
    FT, KS = 56, 59
    a(f"""s_cmp_ge_u32 s2, 196
    s_cbranch_scc1 L_nofn
    s_mul_i32 s{FT}, s2, 9363
    s_lshr_b32 s{FT}, s{FT}, 16
    s_mul_i32 s26, s{FT}, 7
    s_sub_u32 s{KS}, s2, s26
    v_lshrrev_b32 v4, 3, v3
    v_and_b32 v5, 2, v4
    v_lshlrev_b32 v5, 1, v5
    v_and_b32 v6, 7, v3
    v_xor_b32 v5, v5, v6
    v_mul_u32_u24 v6, 3584, v4
    v_lshl_add_u32 v34, v5, 4, v6
    v_add_u32 v35, {8*3584-1024}, v34
    v_add_u32 v36, {2*(8*3584-1024)}, v34
    v_add_u32 v37, {3*(8*3584-1024)}, v34
    v_lshrrev_b32 v6, 2, v3
    v_mul_u32_u24 v6, 896, v6
    v_and_b32 v5, 3, v3
    v_lshl_add_u32 v200, v5, 4, v6
    v_add_u32 v201, {16*896-1024}, v200
    v_add_u32 v202, {2*(16*896-1024)}, v200
    v_add_u32 v203, {3*(16*896-1024)}, v200
    ; transposing-read base: (8hh + r)*128 + ((r>>1)&1)*64 + colhalf*32 + c*8
    v_bfe_u32 v4, v3, 2, 2
    v_lshl_add_u32 v5, v33, 3, v4
    v_lshlrev_b32 v5, 7, v5
    v_lshrrev_b32 v4, 1, v4
    v_lshl_add_u32 v5, v4, 6, v5
    v_bfe_u32 v4, v3, 4, 1
    v_lshl_add_u32 v5, v4, 5, v5
    v_and_b32 v4, 3, v3
    v_lshl_add_u32 v5, v4, 3, v5
    s_lshl_b32 s54, s{L}, 13
    s_add_u32 s54, s54, {GI}
    v_lshrrev_b32 v6, 4, v3
    v_bfe_u32 v7, v3, 2, 2
    v_lshl_add_u32 v8, v6, 3, v7
    v_lshlrev_b32 v8, 7, v8
    v_lshrrev_b32 v7, 1, v7
    v_lshl_add_u32 v8, v7, 6, v8
    v_lshl_add_u32 v8, v4, 3, v8
    v_add_u32 v38, s54, v8
    v_xor_b32 v39, 64, v38
    v_lshlrev_b32 v213, 4, v6
    v_lshrrev_b32 v6, 7, v5
    v_and_b32 v5, 63, v5
    v_lshl_add_u32 v5, v6, 6, v5
    s_lshl_b32 s26, s{L}, 12
    s_add_u32 s26, s26, {DI}
    v_add_u32 v210, s26, v5
    ; partial-sum store offset 4hh*256 + col*4 ; h addresses ; y offsets
    v_lshlrev_b32 v212, 3, v213
    v_lshl_add_u32 v212, v217, 1, v212
    s_lshl_b32 s26, s{L}, 6
    s_add_u32 s26, s26, {HB}
    v_and_b32 v4, 56, v3
    v_lshl_add_u32 v214, v217, 4, s26
    v_add_u32 v214, v214, v4
    v_lshlrev_b32 v4, 4, v217
    v_lshl_add_u32 v4, v33, 4, v4
    v_add_u32 v218, {HB}, v4
    v_mul_u32_u24 v215, {4*1792}, v33
    v_lshl_add_u32 v215, v32, 2, v215
    v_add_u32 v216, {2*1792}, v215""")
    srd(a, 16, 42, 448 * 3584)
    a(f"""s_cmp_eq_u32 s{L}, 1
    s_cselect_b64 s[16:17], s[44:45], s[42:43]
    s_mul_i32 s52, s{KS}, {64*3584}
    s_lshl_b32 s28, s{FT}, 7
    s_add_u32 s52, s52, s28
    s_movk_i32 s29, 896""")
    spin_lds(a, 14, C_L, 4, 8, sleep=2)
    st(a, 3)
    NR = 4 if "coarse" in EXP else 2
    XS_ = 40; FW = 56; AC = 104
    a("s_mov_b32 m0, s54\ns_nop 0")
    for k in range(8):
        if k == 4: a(f"s_add_u32 s52, s52, {32*3584}\ns_add_u32 m0, s54, 4096")
        if k and k % NR == 0: a("s_waitcnt vmcnt(0)")
        a(f"buffer_load_dwordx4 v{34+(k&3)}, s[16:19], s52 offen offset:{1024*(k&3)} lds")
    sel_load("L_sel1")
    a(f"""v_and_b32 v4, 0xffff, v20
    v_sub_u32 v4, 0xffff, v4
    v_mad_u32_u24 v4, v4, s29, v213
    s_lshl_b32 s26, s{KS}, 7
    s_mov_b32 exec_lo, 0x00ff00ff
    s_mov_b32 exec_hi, 0x00ff00ff
    buffer_load_dwordx4 {vr(XS_,4)}, v4, s[12:15], s26 offen
    buffer_load_dwordx4 {vr(XS_+4,4)}, v4, s[12:15], s26 offen offset:64
    s_mov_b64 exec, -1""")
    for k in range(2):
        for n in range(4):
            o = k * 4096 + (n & 1) * 32
            a(f"ds_read_b64_tr_b16 {vr(FW+16*k+4*n,2)}, v{38+(n>>1)} offset:{o}\nds_read_b64_tr_b16 {vr(FW+16*k+4*n+2,2)}, v{38+(n>>1)} offset:{o+512}")
    lds_inc(a, 14, C_F, 15)
    a(f"""s_mov_b64 s[16:17], s[46:47]
    s_mul_i32 s28, s{FT}, {64*896}
    s_add_u32 s28, s28, s26
    s_lshl_b32 s29, s{L}, 6
    s_add_u32 s28, s28, s29
    s_lshl_b32 s29, s{L}, 12
    s_add_u32 m0, s29, {DI}
    s_lshl1_add_u32 s26, s2, s{L}
    s_lshl_b32 s26, s26, 11
    s_add_u32 s26, s26, {WS_GP}
    s_waitcnt vmcnt(0) lgkmcnt(0)""")
    st(a, 4)
    for k in range(2):
        for n in range(4):
            a(f"v_mfma_f32_16x16x32_bf16 {vr(AC+4*n,4)}, {vr(FW+16*k+4*n,4)}, {vr(XS_+4*k,4)}, {'0' if k==0 else vr(AC+4*n,4)}")
    a("s_mov_b32 exec_lo, 0x00ff00ff\ns_mov_b32 exec_hi, 0x00ff00ff")
    for n in range(4):
        a(f"buffer_store_dwordx4 {vr(AC+4*n,4)}, v212, s[8:11], s26 offen offset:{512*n} sc1")
    a("s_mov_b64 exec, -1")
    for k in range(4): a(f"buffer_load_dwordx4 v{200+k}, s[16:19], s28 offen offset:{1024*k} lds")
    a(f"""s_lshl1_add_u32 s26, s{KS}, s{L}
    s_lshl_b32 s26, s26, 2
    s_mul_i32 s28, s{FT}, {7*128}
    s_add_u32 s26, s26, s28
    s_add_u32 s26, s26, {WS_F1}
    s_waitcnt vmcnt(4)""")
    signal(a, 5, 219, "s26", "0x7f")
    st(a, 5)
    a(f"s_lshl_b32 s26, s2, 7\ns_add_u32 s26, s26, {WS_F1}")
    poll_atomic(a, 5, 220, "s26", "0x3fff", 2)
    st(a, 6)
    GP = 40
    a(f"s_mul_i32 s26, s{FT}, {7*4096}\ns_lshl_b32 s28, s{L}, 10\ns_add_u32 s26, s26, s28\ns_add_u32 s26, s26, {WS_GP}")
    for k in range(7):
        a(f"""buffer_load_dwordx4 {vr(GP+8*k,4)}, v1, s[8:11], s26 offen sc1
        buffer_load_dwordx4 {vr(GP+8*k+4,4)}, v1, s[8:11], s26 offen offset:2048 sc1""")
        if k < 6: a("s_add_u32 s26, s26, 4096")
    DW = 120
    for k in range(4):
        a(f"ds_read_b64_tr_b16 {vr(DW+4*k,2)}, v210 offset:{k*1024}\nds_read_b64_tr_b16 {vr(DW+4*k+2,2)}, v210 offset:{k*1024+256}")
    a(f"s_mov_b32 s28, {NLOG2E:#x}\ns_mov_b32 s29, {NLOG2E:#x}\ns_waitcnt vmcnt(0)")
    for k in range(1, 7):
        for e in range(4):
            a(f"v_pk_add_f32 {vr(GP+2*e,2)}, {vr(GP+2*e,2)}, {vr(GP+8*k+2*e,2)}")
    for e in range(2): a(f"v_pk_mul_f32 {vr(22+2*e,2)}, {vr(GP+2*e,2)}, s[28:29]")
    for e in range(4): a(f"v_exp_f32 v{22+e}, v{22+e}")
    for e in range(2): a(f"v_pk_add_f32 {vr(22+2*e,2)}, {vr(22+2*e,2)}, 1.0 op_sel_hi:[1,0]")
    for e in range(4): a(f"v_rcp_f32 v{22+e}, v{22+e}")
    for e in range(2): a(f"v_pk_mul_f32 {vr(22+2*e,2)}, {vr(22+2*e,2)}, {vr(GP+2*e,2)}")
    for e in range(2): a(f"v_pk_mul_f32 {vr(22+2*e,2)}, {vr(22+2*e,2)}, {vr(GP+4+2*e,2)}")
    for e in range(2): a(f"v_cvt_pk_bf16_f32 v{28+e}, v{22+2*e}, v{23+2*e}")
    a("ds_write_b64 v214, v[28:29]")
    lds_inc(a, 14, C_S, 15)
    spin_lds(a, 14, C_S, 2, 8, sleep=1)
    for k in range(4):
        a(f"ds_read_b128 {vr(GP+4*k,4)}, v218 offset:{32*k}\ns_waitcnt lgkmcnt(0)\n{MF} {vr(AC,16)}, {vr(GP+4*k,4)}, {vr(DW+4*k,4)}, {'0' if k==0 else vr(AC,16)}")
    a(f"""s_mul_i32 s26, s{FT}, 14336
    s_lshl1_add_u32 s28, s{KS}, s{L}
    s_lshl_b32 s29, s28, 7
    s_add_u32 s26, s26, s29
    s_add_u32 s26, s26, {WS_YP}
    s_lshl2_add_u32 s28, s{FT}, s29
    s_add_u32 s28, s28, {WS_YFL}
    buffer_store_dword v{AC}, v215, s[8:11], s26 offen sc1
    buffer_store_dword v{AC+1}, v215, s[8:11], s26 offen offset:1792 sc1
    buffer_store_dword v{AC+2}, v216, s[8:11], s26 offen sc1
    buffer_store_dword v{AC+3}, v216, s[8:11], s26 offen offset:1792 sc1
    s_waitcnt vmcnt(0)""")
    signal(a, 5, 9, "s28", 1)
    st(a, 7)
    a("s_branch L_updA")
    a.label("L_nofn")
    lds_inc(a, 14, C_F, 15)
    spin_lds(a, 14, C_F, 4, 8, sleep=8)
    sel_load("L_sel2")
    a(f"""s_lshl2_add_u32 s26, s2, s{L}
    s_cmp_lg_u32 s26, {254*4}
    s_cbranch_scc1 L_updA""")
    a(f"s_mov_b32 s60, {SPIN_LIMIT}\nL_ep:")
    for k in range(4):
        a(f"s_mov_b32 s26, {WS_FL+8192*k}\nbuffer_load_dword v{24+k}, v219, s[8:11], s26 offen sc1")
    a(f"""s_sub_u32 s60, s60, 1
    s_cbranch_scc1 L_exit
    s_waitcnt vmcnt(0)
    v_xor_b32 v24, s{T}, v24
    v_bitop3_b32 v24, v24, v25, s{T} bitop3:0xf6
    v_bitop3_b32 v24, v24, v26, s{T} bitop3:0xf6
    v_bitop3_b32 v24, v24, v27, s{T} bitop3:0xf6
    v_cmp_ne_u32 vcc, 0, v24
    s_cbranch_vccnz L_ep
    s_mov_b32 s26, {WS_EP}""")
    flag_store(a, 5, 9, "s26")
    Y = 40
    a(f"""L_updA:
    s_and_b32 s53, s{H}, 3
    s_mul_i32 s53, s53, 224
    s_lshl_b32 s57, s{L}, 2
    s_lshr_b32 s26, s53, 6
    s_lshl_b32 s26, s26, 7
    s_add_u32 s62, s26, {WS_YFL}
    L_upd:
    v_readlane_b32 s52, v20, s57
    s_and_b32 s54, s52, 0xffff
    s_sub_u32 s54, 0xffff, s54
    s_lshr_b32 s26, s54, 5
    s_cmp_lg_u32 s26, s58
    s_cbranch_scc1 L_updn
    s_mov_b32 s60, {SPIN_LIMIT}
    s_mov_b32 exec_lo, 0x0fffffff
    s_mov_b32 exec_hi, 0x0fffffff
    L_yfl:
    v_mov_b32 v24, 0
    v_mov_b32 v25, 0
    buffer_atomic_or v24, v220, s[8:11], s62 offen sc0 sc1
    buffer_atomic_or v25, v220, s[8:11], s62 offen offset:256 sc0 sc1
    s_waitcnt vmcnt(0)
    v_xor_b32 v24, s{T}, v24
    v_bitop3_b32 v24, v24, v25, s{T} bitop3:0xf6
    v_cmp_ne_u32 vcc, 0, v24
    s_cbranch_vccz L_yok
    s_sub_u32 s60, s60, 1
    s_cbranch_scc0 L_yfl
    s_endpgm
    L_yok:
    v_mul_u32_u24 v4, {14*14336}, v33
    v_lshl_add_u32 v4, v32, 4, v4
    s_mul_i32 s26, s57, 1792
    s_lshl1_add_u32 s26, s53, s26
    s_add_u32 s26, s26, {WS_YP}""")
    for i in range(14):
        a(f"buffer_load_dwordx4 {vr(Y+4*i,4)}, v4, s[8:11], s26 offen sc1\ns_add_u32 s26, s26, 14336")
    a(f"""s_mov_b64 exec, -1
    s_lshr_b32 s26, s52, 16
    s_not_b32 s55, s26
    s_and_b32 s29, s26, 0x7fff
    s_bitcmp1_b32 s26, 15
    s_cselect_b32 s26, s29, s55
    s_lshl_b32 s26, s26, 16
    v_mov_b32 v6, {NLOG2E:#x}
    v_mul_f32 v6, s26, v6
    v_exp_f32 v6, v6
    v_add_f32 v6, 1.0, v6
    v_rcp_f32 v6, v6
    v_cvt_pk_bf16_f32 v6, v6, v6
    v_lshlrev_b32 v6, 16, v6
    s_mul_i32 s26, s57, 448
    s_add_u32 s26, s26, {UPD}
    v_lshl_add_u32 v7, v32, 4, s26
    s_waitcnt vmcnt(0)""")
    for i in range(1, 14):
        a(f"v_pk_add_f32 {vr(Y,2)}, {vr(Y,2)}, {vr(Y+4*i,2)}\nv_pk_add_f32 {vr(Y+2,2)}, {vr(Y+2,2)}, {vr(Y+4*i+2,2)}")
    for k in range(4): a(f"v_mov_b32 v{Y+4+k}, v{Y+k}")
    for k in range(4): a(f"v_permlane32_swap_b32 v{Y+k}, v{Y+4+k}")
    for k in range(4): a(f"v_add_f32 v{Y+k}, v{Y+k}, v{Y+4+k}")
    for k in range(0, 4, 2):
        a(f"""v_cvt_pk_bf16_f32 v{Y+k}, v{Y+k}, v{Y+k+1}
        v_and_b32 v{Y+k+1}, 0xffff0000, v{Y+k}
        v_lshlrev_b32 v{Y+k}, 16, v{Y+k}
        v_mul_f32 v{Y+k}, v{Y+k}, v6
        v_mul_f32 v{Y+k+1}, v{Y+k+1}, v6
        v_cvt_pk_bf16_f32 v{Y+k}, v{Y+k}, v{Y+k+1}
        v_and_b32 v{Y+k+1}, 0xffff0000, v{Y+k}
        v_lshlrev_b32 v{Y+k}, 16, v{Y+k}""")
    a(f"""s_and_b32 s54, s54, 31
    v_mov_b32 v5, s57
    s_lshl_b32 s26, s54, 2
    s_add_u32 s26, s26, {UPDI}
    v_mov_b32 v4, s26
    s_mov_b64 exec, 0x0fffffff
    ds_write_b128 v7, {vr(Y,4)}
    s_mov_b64 exec, 1
    ds_write_b32 v4, v5
    s_mov_b64 exec, -1
    L_updn:
    s_add_u32 s57, s57, 1
    s_and_b32 s26, s57, 3
    s_cbranch_scc1 L_upd
    v_mov_b32 v6, 512""")
    lds_inc(a, 14, C_O, 6)
    st(a, 9)
    a("s_branch L_ofetch")
    a.label("L_svcB")
    CLR = "buffer_store_dwordx4 v[24:27], v1, s[8:11], s59 offen sc1"
    if "noclr" in EXP: CLR = ""
    if "otouch" in EXP: CLR = "s_mov_b32 exec_lo, 0x0f0f0f0f\ns_mov_b32 exec_hi, 0x0f0f0f0f\nbuffer_store_dwordx4 v[24:27], v1, s[8:11], s59 offen sc1\ns_mov_b64 exec, -1"
    OUTT = ""
    if "outtouch" in EXP:
        OUTT = f"""s_cmp_lg_u32 s55, {42*1024}
        s_cbranch_scc1 L_noot
        s_mov_b32 s20, s50
        s_mov_b32 s21, s51
        s_mov_b32 s22, {2048*896}
        s_mov_b32 s23, 0x20000
        s_lshl_b32 s26, s58, 5
        v_add_u32 v4, s26, v32
        v_mul_u32_u24 v4, 896, v4
        s_add_u32 s26, s53, 127
        s_and_b32 s26, s26, 0xffffff80
        v_lshl_add_u32 v4, v33, 7, v4
        s_cmp_eq_u32 s53, 672
        s_cselect_b32 exec_hi, 0, -1
        buffer_store_dword v9, v4, s[20:23], s26 offen sc1
        s_mov_b64 exec, -1
        L_noot:"""
    WOPF = "s_mov_b32 exec_hi, 0x1ffff\nbuffer_load_dword v6, v219, s[16:19], s28 offen\ns_mov_b64 exec, -1" if "wopfS" not in EXP else ""
    for e in range(7):
        a(f"""v_add_u32 v4, {64*e}, v3
        v_mul_u32_u24 v5, 4682, v4
        v_lshrrev_b32 v5, 16, v5
        v_mul_u32_u24 v5, {896-224}, v5
        v_lshl_add_u32 v{200+e}, v4, 4, v5""")
    a(f"""v_mov_b32 v16, 0
    v_mov_b32 v17, 0
    v_mov_b32 v18, 0
    v_mov_b32 v19, 0
    v_add_u32 v209, {448*224}, v1
    s_cmp_eq_u32 s{L}, 2
    s_cbranch_scc1 L_svcB2
    v_lshrrev_b32 v4, 4, v3
    v_and_b32 v5, 15, v3
    v_lshlrev_b32 v5, 2, v5
    v_lshl_add_u32 v221, v4, 9, v5
    v_lshl_add_u32 v222, v4, 5, v14
    v_and_b32 v223, 48, v3
    v_and_b32 v5, 15, v3
    v_add_u32 v6, v5, v4
    v_mul_u32_u24 v224, {4*TS}, v6
    v_add_u32 v224, 1, v224
    v_bfm_b32 v225, v5, 0
    s_mul_i32 s26, s{H}, 28
    s_add_u32 s28, s26, 27
    s_xor_b32 s26, s26, s28
    s_mov_b32 s62, 0x55555555
    s_cmp_ge_u32 s26, 64
    s_cselect_b32 s62, -1, s62
    s_mov_b32 s63, s62
    s_lshr_b32 s28, s{J}, 2
    s_lshl4_add_u32 s26, s{H}, s28
    s_lshl_b32 s26, s26, 7
    s_add_u32 s26, s26, {WS_MB}""")
    spin_lds(a, 14, C_D, PCD, 8, sleep=1)
    at = lambda r: f"v_mov_b32 v{r}, 0\nbuffer_atomic_or v{r}, v221, s[8:11], s26 offen sc0 sc1"
    a(f"""s_mov_b32 s60, {SPIN_LIMIT}
    s_mov_b32 s52, 0x11111111
    s_mov_b32 s53, 0x11111111
    s_mov_b64 exec, s[62:63]""")
    for i in range(PD - 1): a(at(28 + i) + f"\ns_sleep {PG}")
    a("L_kv:")
    for i in range(PD):
        a(at(28 + (i + PD - 1) % PD))
        a(f"""s_waitcnt vmcnt({PD-1})
        v_cmp_ne_u32 vcc, s{T}, v{28+i}
        s_lshr_b64 s[28:29], vcc, 1
        s_or_b64 s[28:29], s[28:29], vcc
        s_lshr_b64 s[54:55], s[28:29], 2
        s_or_b64 s[28:29], s[28:29], s[54:55]
        s_andn2_b64 s[28:29], s[52:53], s[28:29]
        s_cbranch_scc0 L_kvn{i}
        s_andn2_b64 s[52:53], s[52:53], s[28:29]
        v_lshrrev_b64 v[4:5], v223, s[28:29]
        v_and_b32 v5, v225, v4
        v_bcnt_u32_b32 v5, v5, 0
        v_lshl_add_u32 v5, v5, 2, v222
        s_mov_b64 exec, s[28:29]
        ds_write_b32 v5, v224 offset:{C_R}
        s_mov_b64 exec, s[62:63]
        v_and_b32 v4, 0xffff, v4
        v_bcnt_u32_b32 v4, v4, 0
        v_lshl_add_u32 v222, v4, 2, v222
        s_cmp_eq_u64 s[52:53], 0
        s_cbranch_scc1 L_kvdone
        L_kvn{i}:""")
    a(f"""s_sub_u32 s60, s60, 1
    s_cbranch_scc0 L_kv
    s_endpgm
    L_kvdone:
    s_mov_b64 exec, -1
    L_svcB2:""")
    srd(a, 16, 38, 448 * 896)
    a(f"""s_and_b32 s53, s{H}, 3
    s_mul_i32 s53, s53, 224
    s_and_b32 s27, s{L}, 1
    s_mul_i32 s55, s27, {7*1024}
    s_mul_i32 s57, s27, {32*896}
    s_add_u32 s57, s57, s53
    s_lshl1_add_u32 s28, s25, s27
    s_mul_i32 s28, s28, {49*128}
    v_mov_b32 v24, -1
    v_mov_b32 v25, -1
    v_mov_b32 v26, -1
    v_mov_b32 v27, -1
    s_lshl_b32 s59, s{J}, 6
    s_add_u32 s59, s59, s{H}
    s_lshl1_add_u32 s59, s59, s27
    s_lshl_b32 s59, s59, 10
    s_add_u32 s59, s59, {WS_O}""")
    spin_lds(a, 14, C_L, 4, 8, sleep=2)
    st(a, 3)
    a(f"""ds_write_b128 v209, v[16:19]
    {WOPF}
    s_cmp_lg_u32 s{L}, 2
    s_cbranch_scc1 L_nofl
    s_lshl_b32 s26, s2, 7
    s_add_u32 s26, s26, {WS_FL}""")
    flag_store(a, 5, 9, "s26")
    a("L_nofl:\ns_waitcnt vmcnt(0)")
    if "wogate" in EXP: spin_lds(a, 14, C_F, 2, 8, sleep=4)
    a("L_wo:")
    for e in range(7):
        a(f"""s_add_u32 m0, s55, {e*1024}
        s_waitcnt vmcnt({WOP})
        buffer_load_dwordx4 v{200+e}, s[16:19], s57 offen lds""")
    a(f"""s_cmp_ge_u32 s55, {56*1024}
    s_cbranch_scc1 L_noclr
    {CLR}
    s_add_u32 s59, s59, {16*2048}
    L_noclr:
    {OUTT}
    s_sub_u32 s26, s55, {56*1024}
    s_cmp_ge_u32 s26, {14*1024}
    s_cbranch_scc1 L_noinc""")
    lds_inc(a, 14, C_F, 15)
    a(f"""L_noinc:
    s_add_u32 s55, s55, {14*1024}
    s_add_u32 s57, s57, {64*896}
    s_cmp_lt_u32 s55, {98*1024}
    s_cbranch_scc1 L_wo""")
    a("s_waitcnt vmcnt(0)")
    lds_inc(a, 14, C_W, 15)
    st(a, 8)
    a.label("L_ofetch")
    a(f"""s_lshl2_add_u32 s28, s58, s{L}
    s_lshl_b32 s29, s28, 13
    s_add_u32 s29, s29, {WS_O}
    s_add_u32 s27, s29, 4096
    s_lshl_b32 s28, s28, 7
    s_add_u32 s28, s28, {WS_OFL}
    s_mul_i32 s26, s{L}, 12288
    s_add_u32 s26, s26, {CB}
    v_add_u32 v7, s26, v1
    s_lshl_b32 s26, s{L}, 2
    v_add_u32 v6, s26, v14
    s_lshl_b32 s26, 1, s{L}
    v_mov_b32 v5, s26""")
    if False:
        a(f"s_cmp_lg_u32 s{L}, 1\ns_cbranch_scc1 L_walked\ns_mov_b64 exec, 0\ns_branch L_wk0\nL_walked:\ns_mov_b64 exec, -1")
    spin_lds(a, 6, C_P, 1, 8, sleep=4)
    poll_pipe(a, 28, 220, "s28", 15, D=PD, gap=PG)
    a("L_of:\nv_mov_b32 v4, 0")
    for k in range(8):
        a(f"buffer_load_dwordx4 {vr(40+4*k,4)}, v1, s[8:11], {'s29' if k < 4 else 's27'} offen offset:{(k&3)*1024} sc1")
    a("s_sub_u32 s60, s60, 1\ns_cbranch_scc1 L_exit")
    for k in range(8):
        a(f"""s_waitcnt vmcnt({7-k})
        ds_write_b128 v7, {vr(40+4*k,4)} offset:{k*1024}
        v_max3_u32 v4, v4, v{40+4*k}, v{41+4*k}
        v_max3_u32 v4, v4, v{42+4*k}, v{43+4*k}""")
    a("v_cmp_eq_u32 vcc, -1, v4\ns_cbranch_vccnz L_of")
    lds_inc(a, 14, C_O, 5)
    a("s_waitcnt vmcnt(0) lgkmcnt(0)")
    st_end(a)
    a("L_exit:\nL_code_end:\ns_endpgm")

def main(out):
    hdr = open("cdna_kernels/" + NAME + ".s.ref").read().split("; Override")[0]
    rep = []
    a = Asm()
    prologue_and_loader(a); main_wave(a); service_wave(a)
    t = hdr
    t += f"; @launch grid=(256,1,1) block=(512,1,1) lds={LDS_BYTES}\n"
    t += '.amdgcn_target "amdgcn-amd-amdhsa--gfx950"\n'
    t += kernel_text(NAME + "_kernel", a.l, 256, report=rep)
    open(out, "w").write(t)
    if "-v" in sys.argv: print("\n".join(rep))

if __name__ == "__main__":
    main(sys.argv[1])
```

```python
import sys, math, struct
from asmlib import *

NAME = "gated_mix__softmax_full_mha__moe_arch_mod__prompt"
STAMP = "-s" in sys.argv
EXP = set(x[2:] for x in sys.argv if x.startswith("-x"))
WS_KV = 0
BLK = 5120; TS = 14 * BLK; KVB = 64 * TS
WS_O = 0x480000
WS_R = 0x680000
WS_G = WS_R + 16384
WS_SEL = WS_R + 32768
WS_EP = WS_R + 40960
WS_FL = WS_R + 65536
WS_MB = WS_FL + 32768
WS_OFL = WS_MB + 32768
WS_YFL = WS_OFL + 32768
WS_F1 = WS_YFL + 4096
WS_YP = WS_R + (1 << 18)
WS_GP = 0x730000
WS_ST = 16 << 20
XS = 0; WT = 65536; WQ = 122880; QX = 151552; UPD = 159744
WO = 0; CB = 102400
UPDI = UPD + 3584
KEYS = UPD
RT = UPD + 1024
SELECTOR = 223
CNT = 163840 - 192
C_M = 88
LDS_BYTES = 163840
C_Q1, C_Q2, C_X, C_L, C_S, C_D, C_C, C_O, C_W, C_F, C_K, C_T, C_P, C_R = 0, 4, 8, 12, 16, 20, 24, 28, 32, 36, 40, 44, 48, 64

def f32bits(x): return struct.unpack("<I", struct.pack("<f", x))[0]
QSCALE = f32bits(28 ** -0.5 * math.log2(math.e))
NLOG2E = f32bits(-math.log2(math.e))
MF = "v_mfma_f32_32x32x16_bf16"
ROLE = [0, 1, 2, 3, 14, 4, 5, 6, 7, 8, 9, 15, 10, 11, 12, 13]
ROLE_LO = sum(ROLE[i] << (4 * i) for i in range(8))
ROLE_HI = sum(ROLE[8 + i] << (4 * i) for i in range(8))
SPIN_LIMIT = 1 << 20
NQ1 = ([int(x[2:]) for x in EXP if x.startswith("nq")] + [4])[0]
WSBASE = ([int(x[2:]) for x in sys.argv if x.startswith("-w")] + [0])[0] << 20
PD = 2 if "pd2" in EXP else 4
PG = 6 if "pd2" in EXP else 3
PCD = 4 if "pcd4" in EXP else (0 if "pcd0" in EXP else 1)
KVS = 4 if "kvs4" in EXP else (0 if "kvs0" in EXP else 2)
PQ2 = 4 if "pq4" in EXP else (0 if "pq0" in EXP else 1)
PF0 = 2 if "pf2" in EXP else 0
WOP = 1 if "wo1" in EXP else (3 if "wo3" in EXP else 2)
OUTAUX = " sc1" if "outsc1" in EXP else (" nt" if "outnt" in EXP else "")

T, H, J, W, RL, ROT = 30, 31, 32, 33, 34, 3
_uid = [0]
def uid(p):
    _uid[0] += 1
    return f"{p}_{_uid[0]}"

def srd(a, d, ptr, nbytes):
    a(f"s_mov_b32 s{d}, s{ptr}\ns_mov_b32 s{d+1}, s{ptr+1}\ns_mov_b32 s{d+2}, {nbytes:#x}\ns_mov_b32 s{d+3}, 0x20000")

NST = 12
DIAG = [tuple(int(y) for y in x[2:].split("-")) for x in sys.argv if x.startswith("-d")]
def st(a, i):
    if STAMP: a(f"s_{'memrealtime' if 'rt' in EXP else 'memtime'} s[{72+2*i}:{73+2*i}]")
    if DIAG and i in DIAG[0]: a(f"s_memrealtime s[{72+2*i}:{73+2*i}]\ns_waitcnt lgkmcnt(0)")
def st_begin(a):
    if STAMP: a("s_memrealtime s[68:69]\ns_memtime s[72:73]" if "rt" not in EXP else "s_memrealtime s[68:69]\ns_memrealtime s[72:73]")
    if DIAG: a("s_memrealtime s[72:73]")
ABS = [x[2:] for x in sys.argv if x.startswith("-a")]
REL = [tuple(int(y) for y in x[2:].split("-")) for x in sys.argv if x.startswith("-r")]
if ABS:
    DIAG = [(0, 0 if ABS[0] == "z" else int(ABS[0].lstrip("m")))]
if REL:
    ABS = ["r"]; DIAG = REL
def diag_start(a):
    if not ABS: return
    a(f"""s_load_dwordx2 s[98:99], s[0:1], 80
    s_waitcnt lgkmcnt(0)
    s_cmp_ge_u32 s2, 8
    s_cbranch_scc1 L_dg0
    s_cmp_lg_u32 s{W}, 0
    s_cbranch_scc1 L_dg0
    s_lshl_b32 s70, s2, 2
    v_mov_b32 v4, s70
    v_mov_b32 v6, s72
    global_store_dword v4, v6, s[98:99] sc1
    L_dg0:""")
def diag_end(a):
    if not DIAG: return
    p, q = DIAG[0]
    if ABS:
        a(f"""s_waitcnt vmcnt(0)
        s_memrealtime s[96:97]
        s_mov_b64 exec, -1
        v_mov_b32 v4, 0
        global_load_dwordx4 v[8:11], v4, s[98:99] sc1
        global_load_dwordx4 v[12:15], v4, s[98:99] offset:16 sc1
        s_waitcnt vmcnt(0) lgkmcnt(0)
        v_min3_u32 v8, v8, v9, v10
        v_min3_u32 v8, v8, v11, v12
        v_min3_u32 v8, v8, v13, v14
        v_min_u32 v8, v8, v15
        s_nop 1
        v_readfirstlane_b32 s69, v8
        s_sub_u32 s70, s{72+2*q}, s69""")
        if ABS[0] == "z": a("s_mov_b32 s70, 0")
        if REL: a(f"s_sub_u32 s70, s{72+2*q}, s{72+2*p}\ns_lshl_b32 s70, s70, {0 if 'k1' in EXP else 2}")
        if "onlynw" in EXP: a("s_cmp_ge_u32 s2, 196\ns_cselect_b32 s70, s70, 0")
        if "only23" in EXP: a(f"s_cmp_ge_u32 s{W}, 2\ns_cselect_b32 s70, s70, 0")
        if ABS[0].startswith("m"): a("s_sub_u32 s70, 2500, s70")
        a("s_add_u32 s70, s70, s69\ns_add_u32 s70, s70, 3500")
    else:
        a(f"""s_waitcnt vmcnt(0)
        s_memrealtime s[96:97]
        s_waitcnt lgkmcnt(0)
        s_sub_u32 s70, s{72+2*q}, s{72+2*p}
        s_add_u32 s70, s70, s96""")
    a(f"""L_diag:
    s_memrealtime s[68:69]
    s_waitcnt lgkmcnt(0)
    s_sub_u32 s71, s68, s70
    s_cmp_lt_i32 s71, 0
    s_cbranch_scc1 L_diag""")
def st_init(a):
    if STAMP:
        for i in range(1, NST): a(f"s_mov_b32 s{72+2*i}, s72")
def st_end(a):
    if not STAMP: return
    a(f"""s_waitcnt vmcnt(0)
    s_memrealtime s[70:71]
    s_{'memrealtime' if 'rt' in EXP else 'memtime'} s[{72+2*NST}:{73+2*NST}]
    s_getreg_b32 s66, hwreg(HW_REG_HW_ID)
    s_getreg_b32 s67, hwreg(HW_REG_XCC_ID)
    s_mov_b64 exec, -1
    s_lshl_b32 s65, s2, 3
    s_add_u32 s65, s65, s{W}
    s_lshl_b32 s65, s65, 6
    s_add_u32 s65, s65, {WS_ST}
    s_waitcnt lgkmcnt(0)
    v_mov_b32 v4, s68
    v_mov_b32 v5, s70
    v_mov_b32 v6, s66
    v_mov_b32 v7, s67""")
    for i in range(1, NST + 1):
        a(f"s_sub_u32 s64, s{72+2*i}, s72\nv_mov_b32 v{7+i}, s64")
    a("v_mov_b32 v2, 0\ns_mov_b64 exec, 1")
    for k in range(4):
        a(f"buffer_store_dwordx4 v[{4+4*k}:{7+4*k}], v2, s[8:11], s65 offen offset:{16*k}")

def poll_global(a, vdst, voff, soff, mask=None, sleep=1):
    l = uid("Lpoll"); d = uid("Lpd")
    a(f"s_mov_b32 s60, {SPIN_LIMIT}")
    if mask is not None: a(f"s_mov_b64 exec, {mask}")
    a(f"""{l}:
    buffer_load_dword v{vdst}, v{voff}, s[8:11], {soff} offen sc1
    s_waitcnt vmcnt(0)
    v_cmp_ne_u32 vcc, s{T}, v{vdst}
    s_cbranch_vccz {d}
    s_mov_b64 exec, vcc
    s_sleep {sleep}
    s_sub_u32 s60, s60, 1
    s_cbranch_scc0 {l}
    s_endpgm
    {d}:
    s_mov_b64 exec, -1""")

def poll_atomic(a, vdst, voff, soff, mask, sleep):
    l = uid("Lpa"); d = uid("Lpad")
    a(f"""s_mov_b32 s60, {SPIN_LIMIT}
    s_mov_b64 exec, {mask}
    {l}:
    v_mov_b32 v{vdst}, 0
    buffer_atomic_or v{vdst}, v{voff}, s[8:11], {soff} offen sc0 sc1
    s_waitcnt vmcnt(0)
    v_cmp_ne_u32 vcc, s{T}, v{vdst}
    s_cbranch_vccz {d}
    s_sleep {sleep}
    s_sub_u32 s60, s60, 1
    s_cbranch_scc0 {l}
    s_endpgm
    {d}:
    s_mov_b64 exec, -1""")

def poll_pipe(a, v0, voff, soff, mask, D=4, gap=3):
    l = uid("Lpp"); d = uid("Lppd")
    at = lambda r: f"v_mov_b32 v{r}, 0\nbuffer_atomic_or v{r}, v{voff}, s[8:11], {soff} offen sc0 sc1"
    a(f"s_mov_b32 s60, {SPIN_LIMIT}\ns_mov_b64 exec, {mask}")
    for i in range(D - 1): a(at(v0 + i) + f"\ns_sleep {gap}")
    a(f"{l}:")
    for i in range(D):
        a(at(v0 + (i + D - 1) % D))
        a(f"s_waitcnt vmcnt({D-1})\nv_cmp_ne_u32 vcc, s{T}, v{v0+i}\ns_cbranch_vccz {d}")
    a(f"""s_sub_u32 s60, s60, 1
    s_cbranch_scc0 {l}
    s_endpgm
    {d}:
    s_mov_b64 exec, -1""")

def signal(a, vt, voff, soff, mask):
    a(f"v_mov_b32 v{vt}, s{T}\ns_mov_b64 exec, {mask}\nbuffer_atomic_swap v{vt}, v{voff}, s[8:11], {soff} offen sc1\ns_mov_b64 exec, -1")

def spin_lds(a, vaddr, off, want, vt, sleep=0):
    l = uid("Lsp"); d = uid("Lsd")
    if not sleep:
        a(f"""s_mov_b32 s60, {SPIN_LIMIT}
        {l}:
        ds_read_b32 v{vt}, v{vaddr} offset:{off}
        s_sub_u32 s60, s60, 1
        s_cbranch_scc1 L_exit
        s_waitcnt lgkmcnt(0)
        v_readfirstlane_b32 s61, v{vt}
        s_cmp_ge_u32 s61, {want}
        s_cbranch_scc0 {l}""")
        return
    a(f"""s_mov_b32 s60, {SPIN_LIMIT}
    {l}:
    ds_read_b32 v{vt}, v{vaddr} offset:{off}
    s_waitcnt lgkmcnt(0)
    v_readfirstlane_b32 s61, v{vt}
    s_cmp_ge_u32 s61, {want}
    s_cbranch_scc1 {d}""")
    if sleep: a(f"s_sleep {sleep}")
    a(f"""s_sub_u32 s60, s60, 1
    s_cbranch_scc0 {l}
    s_endpgm
    {d}:""")

def lds_inc(a, vaddr, off, vone):
    a(f"s_mov_b64 exec, 1\nds_add_u32 v{vaddr}, v{vone} offset:{off}\ns_mov_b64 exec, -1")

def flag_store(a, vt, vz, soff):
    a(f"v_mov_b32 v{vt}, s{T}\ns_mov_b64 exec, 1\nbuffer_store_dword v{vt}, v{vz}, s[8:11], {soff} offen sc1\ns_mov_b64 exec, -1")

def split_neg_max(a, m, t0, t1, q6, q7):
    a(f"""v_sub_f32 v{m}, 0, v{m}
    v_cvt_pk_bf16_f32 v{t0}, v{m}, v{m}
    v_lshlrev_b32 v{t0}, 16, v{t0}
    v_sub_f32 v{t0}, v{m}, v{t0}
    v_cvt_pk_bf16_f32 v{t1}, v{m}, v{t0}
    v_and_b32 v{m}, 0xffff0000, v{t1}
    v_sub_f32 v{t0}, v{t0}, v{m}
    s_mov_b32 exec_lo, 0
    v_mov_b32 v{q6}, v{t1}
    v_cvt_pk_bf16_f32 v{q7}, v{t0}, 0
    s_mov_b32 exec_lo, -1""")

def max16_list(dst, S, init=False):
    if not init:
        return ([f"v_max3_f32 v{dst}, v{S}, v{S+1}, v{S+2}"] +
                [f"v_max3_f32 v{dst}, v{dst}, v{S+i}, v{S+i+1}" for i in range(3, 15, 2)] +
                [f"v_max_f32 v{dst}, v{dst}, v{S+15}"])
    return [f"v_max3_f32 v{dst}, v{dst}, v{S+i}, v{S+i+1}" for i in range(0, 16, 2)]

def wave_min_u32(a, v, full=True):
    for r in (1, 2, 4, 8):
        a(f"v_min_u32_dpp v{v}, v{v}, v{v} row_ror:{r} row_mask:0xf bank_mask:0xf")
    a(f"v_min_u32_dpp v{v}, v{v}, v{v} row_bcast:15 row_mask:0xa bank_mask:0xf")
    if full: a(f"v_min_u32_dpp v{v}, v{v}, v{v} row_bcast:31 row_mask:0xc bank_mask:0xf")

def tag(a):
    a(f"s_mul_i32 s{T}, s{T}, 0x9e3779b1\ns_add_u32 s{T}, s{T}, 0x7f4a7c15")

def next_chunk(a, s):
    a(f"s_add_u32 s{s}, s{s}, 1\ns_cmp_eq_u32 s{s}, 7\ns_cselect_b32 s{s}, 0, s{s}")

Q, O, KV, S, P = 8, 40, 104, 168, 200
XF = 104; A0, A1, WF = 40, 56, 72
VX = 216; VW = 220; VQ = 222; VC = 223; V1 = 224; VZ = 225; VT = 226; VH = 227
VA = 228; TMP = 232; XR = 240; GR = 248; VWQ = 250; VF = 251; VFS = 252; VXO = 253; VGO = 254
OWN = 3
L = 35

def prologue_and_loader(a):
    MAPCODE = ""
    if "map2" in EXP:
        MAPCODE = f"s_and_b32 s26, s25, 1\ns_lshl1_add_u32 s{H}, s24, s26\ns_lshr_b32 s{J}, s25, 1\ns_lshl1_add_u32 s{ROT}, s26, s{J}\ns_add_u32 s{ROT}, s{ROT}, s24\ns_and_b32 s{ROT}, s{ROT}, 3\ns_lshl_b32 s{ROT}, s{ROT}, 1"
        if "norot" in EXP: MAPCODE += f"\ns_mov_b32 s{ROT}, 0"
    TADDR = "v_lshl_add_u32 v8, v3, 7, s58"
    if "notouch" not in EXP: TADDR = "v_and_b32 v8, 60, v3\nv_lshl_add_u32 v8, v8, 4, s58\nv_add_u32 v8, v8, v1"
    if "rot7" in EXP:
        ROTCODE = f"s_lshl1_add_u32 s{ROT}, s27, s26\ns_cmp_ge_u32 s{ROT}, 7\ns_cselect_b32 s26, 7, 0\ns_sub_u32 s{ROT}, s{ROT}, s26"
    elif "rot2" not in EXP and "norot" not in EXP and "rot23" not in EXP:
        ROTCODE = f"s_add_u32 s{ROT}, s27, s26\ns_and_b32 s{ROT}, s{ROT}, 3\ns_lshl_b32 s{ROT}, s{ROT}, 1"
    elif "norot" in EXP:
        ROTCODE = f"s_mov_b32 s{ROT}, 0"
    elif "rot23" in EXP:
        ROTCODE = f"s_add_u32 s{ROT}, s27, s26\ns_and_b32 s{ROT}, s{ROT}, 1\ns_mul_i32 s{ROT}, s{ROT}, 3"
    else:
        ROTCODE = f"s_add_u32 s{ROT}, s27, s26\ns_and_b32 s{ROT}, s{ROT}, 1\ns_lshl_b32 s{ROT}, s{ROT}, 2"
    st_begin(a)
    a(f"""s_load_dwordx4 s[4:7], s[0:1], 0
    s_load_dwordx2 s[36:37], s[0:1], 88
    s_load_dwordx2 s[38:39], s[0:1], 16
    s_load_dwordx8 s[40:47], s[0:1], 32
    s_load_dwordx4 s[48:51], s[0:1], 64
    s_cmp_ge_u32 s2, 256
    s_cbranch_scc1 L_exit
    v_lshrrev_b32 v2, 6, v0
    v_and_b32 v3, 63, v0
    s_and_b32 s24, s2, 7
    s_lshr_b32 s25, s2, 3
    v_readfirstlane_b32 s{W}, v2
    s_and_b32 s{H}, s24, 1
    s_lshl_b32 s{H}, s{H}, 3
    s_and_b32 s26, s25, 7
    s_add_u32 s{H}, s{H}, s26
    s_lshr_b32 s27, s25, 3
    s_and_b32 s{J}, s24, 6
    s_lshl1_add_u32 s{J}, s{J}, s27
    {ROTCODE}
    {MAPCODE}
    s_mov_b32 s28, {ROLE_LO:#x}
    s_mov_b32 s29, {ROLE_HI:#x}
    s_lshl_b32 s27, s{H}, 2
    s_lshr_b64 s[28:29], s[28:29], s27
    s_and_b32 s{RL}, s28, 15
    v_lshlrev_b32 v1, 4, v3
    s_mov_b32 s27, {WS_EP}
    s_cmp_lt_u32 s{W}, 4
    s_cbranch_scc1 L_main
    """)
    a(f"""s_setprio 2
    s_sub_u32 s{L}, s{W}, 4
    v_lshrrev_b32 v4, 3, v3
    v_mul_u32_u24 v5, 896, v4
    v_and_b32 v6, 7, v3
    v_lshrrev_b32 v7, 4, v3
    v_xor_b32 v7, v6, v7
    v_lshl_add_u32 v10, v7, 4, v5
    v_xor_b32 v11, 64, v10
    v_add_u32 v12, {2*6144}, v10
    v_add_u32 v13, {3*6144}, v11
    v_add_u32 v11, 6144, v11
    v_mul_u32_u24 v5, 2688, v4
    v_and_b32 v4, 2, v4
    v_lshlrev_b32 v4, 1, v4
    v_xor_b32 v4, v4, v6
    v_lshl_add_u32 v14, v4, 4, v5
    v_add_u32 v15, {8*2688-1024}, v14
    s_lshl2_add_u32 s52, s{J}, s{L}
    s_mul_i32 s58, s52, 14
    s_add_u32 s58, s58, s{RL}
    s_mul_i32 s58, s58, {BLK}
    {TADDR}
    s_mul_i32 s52, s52, {32*896}
    s_lshl_b32 s53, s{RL}, 7
    s_mul_i32 s26, s{L}, {16*2688}
    s_add_u32 s53, s53, s26
    s_add_u32 s53, s53, 896
    s_lshl_b32 s54, s{L}, 12
    s_lshl_b32 s55, s{L}, 11
    s_add_u32 s55, s55, {WT}
    s_mov_b32 s56, s{ROT}
    s_mov_b32 s57, 0
    s_mov_b32 s14, {2048*896}
    s_mov_b32 s15, 0x20000
    s_cmp_ge_u32 s{RL}, 14
    s_cselect_b32 s18, 0, {448*2688}
    s_mov_b32 s19, 0x20000
    s_waitcnt lgkmcnt(0)
    s_mov_b64 s[12:13], s[4:5]
    s_mov_b64 s[16:17], s[6:7]
    s_load_dword s{T}, s[36:37], s27""")
    st_init(a); st(a, 1)
    if "notouch" not in EXP:
        if "notouch" not in EXP:
            a(f"""s_cbranch_scc1 L_tbl
            global_store_dwordx4 v8, v[10:13], s[36:37] sc1
            global_store_dwordx4 v8, v[10:13], s[36:37] offset:2048 sc1""")
        else: a(f"""s_cbranch_scc1 L_ld
        s_cmp_ge_u32 s{RL}, 7
        s_cselect_b32 exec_hi, 1, 0xff
        global_store_dword v8, v8, s[36:37] sc1
        s_mov_b32 exec_hi, -1""")
    a(f"""L_ld:
    s_mul_i32 s26, s56, {64*2688}
    s_mov_b32 m0, s55
    s_add_u32 s26, s26, s53
    s_lshl_b32 s28, s56, 7
    buffer_load_dwordx4 v14, s[16:19], s26 offen lds
    buffer_load_dwordx4 v15, s[16:19], s26 offen offset:1024 lds
    s_mov_b32 m0, s54
    s_add_u32 s28, s28, s52
    buffer_load_dwordx4 v10, s[12:15], s28 offen lds
    buffer_load_dwordx4 v11, s[12:15], s28 offen offset:1024 lds
    buffer_load_dwordx4 v12, s[12:15], s28 offen offset:2048 lds
    buffer_load_dwordx4 v13, s[12:15], s28 offen offset:3072 lds
    s_add_u32 s55, s55, 8192
    s_add_u32 s54, s54, 16384
    s_and_b32 s54, s54, 0xffff""")
    next_chunk(a, 56)
    if "tlb" in EXP:
        a(f"s_or_b32 s26, s57, s{L}\ns_cbranch_scc0 L_tlb\nL_tlb_done:")
    a(f"""s_add_u32 s57, s57, 1
    s_cmp_lt_u32 s57, 3
    s_cbranch_scc1 L_ld
    s_waitcnt vmcnt(12)
    s_barrier
    s_cmp_lt_u32 s57, 7
    s_cbranch_scc1 L_ld
    """)
    a(f"""v_lshrrev_b32 v4, 2, v3
    v_mul_u32_u24 v4, 2688, v4
    v_and_b32 v5, 3, v3
    v_lshl_add_u32 v16, v5, 4, v4
    s_mov_b32 s18, {448*2688}
    s_mul_i32 s53, s{H}, 56
    s_and_b32 s53, s53, 0xfffffff0
    s_mul_i32 s26, s{L}, {16*2688}
    s_add_u32 s53, s53, s26
    s_lshl_b32 s55, s{L}, 10
    s_add_u32 s55, s55, {WQ}""")
    for i in range(NQ1):
        a(f"""s_mul_i32 s26, s56, {64*2688}
        s_add_u32 m0, s55, {i*4096}
        s_add_u32 s26, s26, s53
        buffer_load_dwordx4 v16, s[16:19], s26 offen lds""")
        if i < NQ1 - 1: next_chunk(a, 56)
        if i == 1: a("s_waitcnt vmcnt(8)\ns_barrier")
        if i == 3: a("s_waitcnt vmcnt(4)\ns_barrier")
    st(a, 2)
    a("s_branch L_service")
    a(f"""L_tbl:
    s_bitcmp1_b32 s{L}, 0
    s_cselect_b64 s[20:21], s[48:49], s[40:41]
    s_cselect_b32 s26, 1024, 0
    s_movk_i32 s22, 896
    s_mov_b32 s23, 0x20000
    s_add_u32 m0, s26, {RT}
    s_lshl_b32 s28, s{ROT}, 7
    v_add_u32 v4, s28, v1
    v_subrev_u32 v6, 896, v4
    v_min_u32 v4, v4, v6
    buffer_load_dwordx4 v4, s[20:23], 0 offen lds
    s_branch L_ld""")
    if "tlb" in EXP:
        a("L_tlb:")
        if "tlbR" in EXP: a(f"s_cmp_lt_u32 s{RL}, 14\ns_cbranch_scc1 L_tlb_done")
        for off in (0, 2 << 20, 4 << 20):
            a(f"s_mov_b32 s26, {off + 4032}\ns_load_dword s66, s[36:37], s26")
        for p in (42, 44, 38, 46, 50):
            a(f"s_load_dword s66, s[{p}:{p+1}], 0")
        a("s_branch L_tlb_done")

def main_wave(a):
    a.label("L_main")
    diag_start(a)
    if "nocodepf" not in EXP:
        a(f"""s_cmp_lg_u32 s{W}, 0
        s_cbranch_scc1 L_nopf
        s_getpc_b64 s[28:29]
        L_pc:
        s_and_b32 s26, s25, 3
        s_lshl_b32 s26, s26, 13
        v_lshl_add_u32 v4, v3, 7, s26
        v_min_u32 v4, L_code_end-L_pc, v4
        global_load_dword v5, v4, s[28:29]
        L_nopf:""")
    a(f"""s_setprio 1
    v_and_b32 v{VT}, 31, v3
    v_lshrrev_b32 v{VH}, 5, v3
    v_mov_b32 v{V1}, 1
    v_mov_b32 v{VZ}, 0
    v_mov_b32 v{VC}, {CNT}
    v_lshrrev_b32 v4, 2, v1
    v_add_u32 v4, {UPDI}, v4
    v_mov_b32 v6, -1
    s_mov_b32 exec_hi, 0
    ds_write_b32 v4, v6
    v_and_b32 v6, 7, v3
    v_cmp_eq_u32 vcc, 4, v6
    v_mov_b32 v7, {KVB+1}
    v_cndmask_b32 v6, 0, v7, vcc
    ds_write_b32 v4, v6 offset:{CNT-UPDI+C_R}
    s_mov_b32 exec_lo, 0xffff
    ds_write_b32 v4, v{VZ} offset:{CNT-UPDI}
    s_mov_b64 exec, -1
    v_lshrrev_b32 v4, 1, v{VT}
    v_and_b32 v4, 7, v4
    v_xor_b32 v4, v4, v{VH}
    v_lshlrev_b32 v4, 4, v4
    v_lshl_add_u32 v4, v{VT}, 7, v4
    s_lshl_b32 s26, s{W}, 12
    v_add_u32 v{VX}, s26, v4
    v_xor_b32 v{VX+1}, 32, v{VX}
    v_xor_b32 v{VX+2}, 64, v{VX}
    v_xor_b32 v{VX+3}, 96, v{VX}
    v_bfe_u32 v4, v3, 2, 2
    v_lshl_add_u32 v12, v{VH}, 3, v4
    v_and_b32 v6, 3, v3
    v_and_b32 v7, 1, v3
    v_bfe_u32 v8, v3, 1, 1
    v_lshl_add_u32 v7, v7, 1, v8
    v_bfe_u32 v8, v3, 4, 1
    v_lshl_add_u32 v9, v8, 2, v7
    v_lshl_add_u32 v10, v8, 2, v6
    s_cmp_lt_u32 s{RL}, 7
    s_cselect_b64 vcc, -1, 0
    v_cndmask_b32 v10, v10, v9, vcc
    v_lshlrev_b32 v11, 7, v12
    v_lshl_add_u32 v11, v10, 3, v11
    v_lshrrev_b32 v4, 1, v4
    v_lshl_add_u32 v11, v4, 6, v11
    v_add_u32 v{VW}, {WT}, v11
    v_xor_b32 v{VW+1}, 64, v{VW}
    v_add_u32 v10, 2, v9
    v_sub_u32 v11, 7, v9
    v_cmp_gt_u32 vcc, 6, v9
    v_cndmask_b32 v10, v11, v10, vcc
    s_bitcmp1_b32 s{H}, 0
    s_cselect_b64 vcc, -1, 0
    v_cndmask_b32 v10, v9, v10, vcc
    v_lshlrev_b32 v11, 6, v12
    v_lshl_add_u32 v11, v10, 3, v11
    v_add_u32 v{VQ}, {WQ}, v11
    v_lshrrev_b32 v4, 2, v3
    v_mul_u32_u24 v4, 2688, v4
    v_lshl_add_u32 v{VWQ}, v6, 4, v4
    s_cmp_ge_u32 s{RL}, 7
    s_cselect_b32 s26, 7, 0
    s_cselect_b32 s29, 2, 0
    s_sub_u32 s26, s{RL}, s26
    s_mul_i32 s28, s26, {64*2341}
    s_lshr_b32 s28, s28, 16
    v_add_u32 v4, s28, v6
    v_mul_u32_u24 v7, 28, v4
    v_lshrrev_b32 v7, 6, v7
    v_cmp_ge_u32 s[64:65], s26, v7
    v_cmp_ne_u32 vcc, s26, v7
    s_and_b32 s28, s{J}, 12
    s_add_u32 s29, s28, s29
    v_mov_b32 v7, s29
    v_addc_co_u32 v7, vcc, 0, v7, vcc
    s_and_b32 s28, s{J}, 3
    v_lshl_add_u32 v4, v4, 2, s28
    v_bfe_u32 v8, v3, 2, 2
    v_lshl_add_u32 v4, v4, 2, v8
    v_lshlrev_b32 v4, 7, v4
    v_lshl_add_u32 v{VFS}, v7, 2, v4
    s_and_b32 s64, s64, 0xffff
    s_cmp_ge_u32 s{RL}, 14
    s_cselect_b32 s64, 0, s64
    s_mov_b32 s65, 0
    s_lshl_b32 s28, s{W}, 5
    v_add_u32 v{VF}, s28, v{VC}
    s_lshl_b32 s28, s{J}, 2
    s_lshr_b32 s58, s{H}, 2
    s_add_u32 s58, s58, s28
    s_and_b32 s59, s{H}, 3
    s_lshl2_add_u32 s59, s59, s{W}
    s_mul_i32 s59, s59, 56
    s_lshl_b32 s28, s58, 5
    v_add_u32 v4, s28, v{VT}
    v_mul_u32_u24 v{VXO}, 896, v4
    v_lshl_add_u32 v{VXO}, v{VH}, 4, v{VXO}
    v_lshlrev_b32 v{VGO}, 3, v4
    s_waitcnt lgkmcnt(0)
    """)
    st_init(a)
    srd(a, 8, 36, (1 << 28) - WSBASE)
    srd(a, 16, 6, 448 * 2688)
    srd(a, 12, 4, 2048 * 896)
    if "wqpf" in EXP:
        a(f"""s_cmp_lg_u32 s{W}, 1
        s_cbranch_scc1 L_nopf2
        v_lshrrev_b32 v4, 2, v3
        v_min_u32 v4, 13, v4
        v_mul_u32_u24 v4, 2688, v4
        v_and_b32 v6, 3, v3
        v_lshl_add_u32 v4, v6, 7, v4
        s_mul_i32 s26, s25, {14*2688}
        s_and_b32 s28, s24, 1
        s_mul_i32 s28, s28, 384
        s_add_u32 s26, s26, s28
        buffer_load_dword v5, v4, s[16:19], s26 offen
        L_nopf2:""")
    if "wopfS" in EXP:
        srd(a, 20, 38, 448 * 896)
        a(f"""s_cmp_lg_u32 s{W}, 2
        s_cbranch_scc1 L_nopf3
        s_mul_i32 s26, s2, {13*128}
        v_lshl_add_u32 v4, v3, 7, s26
        s_mov_b64 exec, 0x1fff
        buffer_load_dword v5, v4, s[20:23], 0 offen
        s_mov_b64 exec, -1
        L_nopf3:""")
    a(f"""s_mul_i32 s62, s{H}, 56
    s_and_b32 s62, s62, 0xfffffff0
    s_mul_i32 s26, s{W}, {16*2688}
    s_add_u32 s62, s62, s26
    s_lshl_b32 s63, s{W}, 10
    s_add_u32 s63, s63, {WQ}
    s_lshl2_add_u32 s35, s{J}, s{W}
    s_mul_i32 s52, s35, 14
    s_add_u32 s52, s52, s{RL}
    s_mul_i32 s52, s52, {BLK}
    s_add_u32 s53, s52, 4096
    s_lshr_b32 s26, s{H}, 1
    s_mul_i32 s26, s26, 7
    s_and_b32 s28, s{H}, 1
    s_lshl2_add_u32 s29, s28, s26
    v_add_u32 v4, s29, v{VH}
    v_lshrrev_b32 v6, 3, v4
    v_mul_u32_u24 v6, {BLK-4096}, v6
    v_lshl_add_u32 v6, v4, 9, v6
    v_lshl_add_u32 v{VA}, v{VT}, 4, v6
    v_add_u32 v4, 2, v4
    v_lshrrev_b32 v6, 3, v4
    v_mul_u32_u24 v6, {BLK-4096}, v6
    v_lshl_add_u32 v6, v4, 9, v6
    s_add_u32 s26, s26, 3
    s_lshr_b32 s29, s26, 3
    s_mul_i32 s29, s29, {BLK}
    s_and_b32 s26, s26, 1
    s_lshl_b32 s26, s26, 9
    s_add_u32 s29, s29, s26
    s_add_u32 s29, s29, 4096
    v_mov_b32 v7, s29
    v_and_b32 v4, s28, v{VH}
    v_cmp_eq_u32 vcc, 1, v4
    v_cndmask_b32 v6, v6, v7, vcc
    v_lshl_add_u32 v{VA+1}, v{VT}, 4, v6
    s_mul_i32 s26, s{H}, 28
    v_add_u32 v4, s26, v{VT}
    v_lshrrev_b32 v6, 6, v4
    v_mul_u32_u24 v6, {BLK}, v6
    v_bfe_u32 v7, v4, 5, 1
    v_lshl_add_u32 v6, v7, 11, v6
    v_and_b32 v4, 31, v4
    v_lshl_add_u32 v6, v4, 4, v6
    v_lshl_add_u32 v6, v{VH}, 9, v6
    v_add_u32 v6, {7*BLK}, v6
    v_add_u32 v8, 1024, v6
    s_lshr_b32 s26, s26, 6
    s_mul_i32 s26, s26, {BLK}
    s_add_u32 s26, s26, {7*BLK + 4096 - 28*16}
    v_lshl_add_u32 v7, v{VT}, 4, s26
    v_cmp_le_u32 vcc, 28, v{VT}
    v_cndmask_b32 v{VA+2}, v6, v7, vcc
    v_cndmask_b32 v{VA+3}, v8, v7, vcc
    s_cmp_ge_u32 s{RL}, 14
    s_cbranch_scc1 L_roleR
    s_cmp_ge_u32 s{RL}, 7
    s_cbranch_scc1 L_roleV""")

    def gemm(kind):
        if "twait" in EXP:
            st(a, 10); a("s_waitcnt vmcnt(0)"); st(a, 11)
        def reads(c, s):
            k = 4 * c + s
            a(f"ds_read_b128 {vr(XF+4*k,4)}, v{VX+s} offset:{(c&3)*16384}")
            f = WF + 8 * s
            if kind == "R":
                a(f"ds_read_b128 {vr(f,4)}, v{VW} offset:{k*32}")
            else:
                for n in range(2):
                    a(f"ds_read_b64_tr_b16 {vr(f+4*n,2)}, v{VW+n} offset:{k*2048}")
                    a(f"ds_read_b64_tr_b16 {vr(f+4*n+2,2)}, v{VW+n} offset:{k*2048+512}")
        def mfmas(c, s, ns=None):
            k = 4 * c + s
            f = WF + 8 * s
            for n in (ns or range(1 if kind == "R" else 2)):
                acc = (A0, A1)[n]
                cc = "0" if k == 0 else vr(acc, 16)
                if kind == "V": a(f"{MF} {vr(acc,16)}, {vr(XF+4*k,4)}, {vr(f+4*n,4)}, {cc}")
                else:           a(f"{MF} {vr(acc,16)}, {vr(f+4*n,4)}, {vr(XF+4*k,4)}, {cc}")
        per = 2 if kind == "R" else 5
        for c in range(7):
            a("s_barrier")
            if c == 0: st(a, 1)
            if c == 6: st(a, 2)
            if STAMP and c in (0, 6): a("s_waitcnt lgkmcnt(0)")
            reads(c, 0); reads(c, 1)
            for s in range(4):
                if s < 2: reads(c, s + 2)
                a(f"s_waitcnt lgkmcnt({min(3 - s, 2) * per})")
                if c == 6 and kind != "R" and s >= 2: mfmas(c, s, (0,))
                else: mfmas(c, s)
            if c == 6 and kind != "R":
                mfmas(c, 2, (1,)); mfmas(c, 3, (1,))

    PK = 8
    MS = 20
    a(f"""v_add_u32 v4, s{RL}, v{VH}""")
    for i in range(4):
        a(f"""v_cmp_eq_u32 vcc, {3-2*i}, v4
        v_cmp_eq_u32 s[{MS+2*i}:{MS+1+2*i}], {10-2*i}, v4
        s_or_b64 s[{MS+2*i}:{MS+1+2*i}], s[{MS+2*i}:{MS+1+2*i}], vcc""")
    for e in range(4): a(f"v_mov_b32 v{TMP+e}, 0x3f803f80")
    a(f"""s_or_b64 s[28:29], s[{MS}:{MS+1}], s[{MS+2}:{MS+3}]
    s_or_b64 s[54:55], s[{MS+4}:{MS+5}], s[{MS+6}:{MS+7}]
    s_or_b64 s[54:55], s[54:55], s[28:29]
    s_mov_b64 exec, 0
    s_branch L_epi
    L_backK:
    s_mov_b64 exec, -1""")
    gemm("K")
    a("s_branch L_epi")
    a.label("L_roleR")
    if "pfx" in EXP:
        C0 = 1 if "pf1" in EXP else 2
        a(f"""v_mul_u32_u24 v4, 896, v{VT}
        v_lshl_add_u32 v4, v{VH}, 7, v4
        s_mul_i32 s26, s35, {32*896}
        v_lshrrev_b32 v6, 3, v{VT}
        v_mul_u32_u24 v6, 2688, v6
        v_and_b32 v7, 7, v3
        v_min_u32 v7, 6, v7
        v_lshl_add_u32 v6, v7, 7, v6
        v_mul_u32_u24 v7, {64*2688}, v{VH}
        v_add_u32 v6, v6, v7
        s_and_b32 s28, s35, 15
        s_mul_i32 s28, s28, {4*2688}
        s_and_b32 s29, s24, 1
        s_mul_i32 s29, s29, 896
        s_add_u32 s28, s28, s29
        s_add_u32 s28, s28, {896 + C0*64*2688}""")
        for c in range(C0, 7, 2):
            if c == 6: a("s_mov_b32 exec_hi, 0")
            a(f"""buffer_load_dword v5, v4, s[12:15], s26 offen offset:{128*c}
            buffer_load_dword v5, v6, s[16:19], s28 offen
            s_add_u32 s28, s28, {128*2688}""")
        a("s_mov_b64 exec, -1")
    a(f"""v_and_b32 v4, 1, v3
    v_lshlrev_b32 v4, 10, v4
    v_lshl_add_u32 v4, v{VH}, 4, v4
    v_add_u32 v{VW}, {RT}, v4""")
    gemm("R")
    a(f"""s_cmp_lg_u32 s{RL}, 14
    s_cbranch_scc1 L_pub
    s_mov_b32 exec_hi, 0
    s_nop 9
    v_cvt_pk_bf16_f32 v4, v{A0}, v{A0+1}
    v_and_b32 v5, 0xffff0000, v4
    v_lshlrev_b32 v4, 16, v4
    v_ashrrev_i32 v6, 31, v4
    v_or_b32 v6, 0x80000000, v6
    v_xor_b32 v6, v6, v4
    v_and_b32 v6, 0xffff0000, v6
    v_cmp_u_f32 vcc, v4, v4
    v_cndmask_b32 v6, v6, 0, vcc
    s_lshl_b32 s26, s35, 5
    v_add_u32 v7, s26, v{VT}
    v_sub_u32 v8, 0xffff, v7
    v_or_b32 v6, v6, v8
    v_lshlrev_b32 v9, 3, v7
    v_and_b32 v7, 127, v7
    v_lshlrev_b32 v7, 2, v7
    v_add_u32 v7, {KEYS}, v7
    ds_write_b32 v7, v6
    s_mov_b32 exec_lo, 1
    ds_add_u32 v{VC}, v{V1} offset:{C_K}
    s_mov_b32 exec_lo, -1
    v_mul_f32 v5, {NLOG2E:#x}, v5
    v_exp_f32 v5, v5
    v_add_f32 v5, 1.0, v5
    v_rcp_f32 v5, v5
    v_cvt_pk_bf16_f32 v5, v5, v5
    v_lshlrev_b32 v10, 16, v5
    s_mov_b32 exec_hi, -1
    s_branch L_pub
    """)
    a.label("L_roleV")
    a(f"""v_cmp_eq_u32 vcc, 0, v3
    v_mov_b32 v7, 0x3f803f80
    v_cndmask_b32 v{TMP}, 0, v7, vcc""")
    for e in range(1, 4): a(f"v_mov_b32 v{TMP+e}, v{TMP}")
    for i in range(4): a(f"s_mov_b64 s[{MS+2*i}:{MS+1+2*i}], 0")
    a("s_mov_b64 s[54:55], 0xff")
    gemm("V")
    a("L_epi:\ns_cbranch_execz L_backK")
    for i in range(4):
        acc = (A0, A1)[i >> 1] + 8 * (i & 1)
        p = PK + 4 * i
        for e in (2, 3, 0, 1): a(f"v_cvt_pk_bf16_f32 v{p+e}, v{acc+2*e}, v{acc+2*e+1}")
        a(f"""s_mov_b64 exec, s[{MS+2*i}:{MS+1+2*i}]
        v_swap_b32 v{TMP}, v{p+2}
        v_swap_b32 v{TMP+1}, v{p+3}
        s_mov_b64 exec, -1
        buffer_store_dwordx4 {vr(p,4)}, v1, s[8:11], s52 offen offset:{1024*i} sc1""")
    a(f"s_mov_b64 exec, s[54:55]\nbuffer_store_dwordx4 {vr(TMP,4)}, v1, s[8:11], s53 offen sc1\ns_mov_b64 exec, -1")
    a.label("L_pub")
    st(a, 3)
    a(f"s_add_u32 s56, s{ROT}, {NQ1}\ns_cmp_ge_u32 s56, 7\ns_cselect_b32 s26, 7, 0\ns_sub_u32 s56, s56, s26")
    for i in range(NQ1, 7):
        a(f"""s_mul_i32 s26, s56, {64*2688}
        s_add_u32 m0, s63, {i*4096}
        s_add_u32 s26, s26, s62
        buffer_load_dwordx4 v{VWQ}, s[16:19], s26 offen lds""")
        if i < 6: next_chunk(a, 56)
    QO = Q + 8 * OWN
    SK = TMP
    a(f"""s_mov_b64 s[16:17], s[36:37]
    s_mov_b32 s18, {KVB}
    s_mov_b32 s57, 0""")
    def ldK(b, soff, base=None):
        r = KV + 16 * b if base is None else base
        return [f"buffer_load_dwordx4 {vr(r,4)}, v{VA}, s[16:19], {soff} offen sc1",
                f"buffer_load_dwordx4 {vr(r+4,4)}, v{VA+1}, s[16:19], {soff} offen sc1"]
    def ldV(b, soff):
        return [f"buffer_load_dwordx4 {vr(KV+16*b+8,4)}, v{VA+2}, s[16:19], {soff} offen sc1",
                f"buffer_load_dwordx4 {vr(KV+16*b+12,4)}, v{VA+3}, s[16:19], {soff} offen sc1"]
    def try_loads(block=False):
        d = uid("Ltl"); l = uid("Ltr"); g = uid("Ltg")
        a(f"s_cmp_eq_u32 s57, 2\ns_cbranch_scc1 {d}")
        if block: a(f"s_mov_b32 s60, {SPIN_LIMIT}\n{l}:\ns_sub_u32 s60, s60, 1\ns_cbranch_scc1 L_exit")
        a(f"""ds_read_b32 v4, v{VF} offset:{C_R}
        ds_read_b32 v5, v{VC} offset:{C_M}
        s_cmp_eq_u32 s57, 1
        s_waitcnt lgkmcnt(0)
        v_readfirstlane_b32 s56, v4
        s_cbranch_scc1 {g}
        v_readfirstlane_b32 s29, v5
        s_sub_u32 s29, s29, 1
        s_cbranch_scc1 {l if block else d}
        s_mov_b32 s57, 1""")
        for x in ldK(0, "s29", SK): a(x)
        a(f"""{g}:
        s_sub_u32 s27, s56, 1
        s_cbranch_scc1 {l if block else d}
        s_add_u32 s54, s56, {TS-1}
        s_add_u32 s55, s56, {2*TS-1}
        s_add_u32 s56, s56, {3*TS-1}
        s_mov_b32 s57, 2""")
        st(a, 6)
        for x in ldK(0, "s27") + ldV(0, "s27") + ldK(1, "s54") + ldV(1, "s54") + ldK(2, "s55") + ldV(2, "s55") + ldK(3, "s56"): a(x)
        a(f"{d}:")
    def qreads(k):
        f = WF + 4 * (k & 7)
        a(f"ds_read_b64_tr_b16 {vr(f,2)}, v{VQ} offset:{k*1024}\nds_read_b64_tr_b16 {vr(f+2,2)}, v{VQ} offset:{k*1024+256}")
    def publish():
        a(f"""s_mov_b32 s28, {WS_MB}
        v_readfirstlane_b32 s{T}, v11
        v_mov_b32 v6, v11
        s_mov_b64 exec, 1
        s_waitcnt vmcnt({7-NQ1})""")
        st(a, 4)
        a(f"""ds_add_rtn_u32 v4, v{VC}, v{V1} offset:{C_D}
        s_waitcnt lgkmcnt(0)
        v_cmp_eq_u32 vcc, 3, v4
        s_cbranch_vccz L_notlast
        s_mov_b64 exec, s[64:65]
        s_cbranch_execz L_notlast
        buffer_atomic_swap v6, v{VFS}, s[8:11], s28 offen sc1
        s_waitcnt vmcnt(1)
        s_branch L_published
        L_notlast:
        s_waitcnt vmcnt(0)
        s_cmp_lg_u32 s{RL}, 14
        s_cbranch_scc1 L_published
        s_mov_b32 s26, {WS_G}
        s_mov_b32 exec_lo, -1
        buffer_store_dwordx2 v[10:11], v9, s[8:11], s26 offen sc1
        L_published:""")
        a("s_mov_b64 exec, -1")
    def qgemm(lo, hi, cnt):
        spin_lds(a, VC, cnt, 4, 4)
        if not lo: a(f"ds_read_b32 v11, v{VC} offset:{C_T}")
        for k in range(lo, min(hi, lo + 6)): qreads(k)
        for k in range(lo, hi):
            if k + 6 < hi: qreads(k + 6)
            a(f"s_waitcnt lgkmcnt({2*(min(hi-1,k+6)-k)})")
            a(f"{MF} {vr(A0,16)}, {vr(WF+4*(k&7),4)}, {vr(XF+4*k,4)}, {'0' if k==0 else vr(A0,16)}")
    def qepi():
        for i in range(8): a(f"v_mov_b32 v{KV+56+i}, 0")
        a(f"""s_lshl_b32 s26, s{W}, 11
        s_add_u32 s26, s26, {QX}
        v_add_u32 v5, s26, v1
        s_mov_b32 s62, {QSCALE:#x}
        s_mov_b32 s63, {QSCALE:#x}""")
        for i in range(8): a(f"v_pk_mul_f32 {vr(A0+2*i,2)}, {vr(A0+2*i,2)}, s[62:63]")
        for i in range(8): a(f"v_cvt_pk_bf16_f32 v{QO+i}, v{A0+2*i}, v{A0+2*i+1}")
        a(f"""s_mov_b32 exec_lo, 0
        v_mov_b32 v{QO+6}, 0
        v_mov_b32 v{QO+7}, 0
        s_mov_b32 exec_lo, -1
        ds_write_b128 v5, {vr(QO,4)}
        ds_write_b128 v5, {vr(QO+4,4)} offset:1024""")
        lds_inc(a, VC, C_X, V1)
        for i in range(0, 48, 2): a(f"v_pk_mul_f32 {vr(O+i,2)}, {vr(KV+56,2)}, {vr(KV+56,2)}")
    qgemm(0, 4 * NQ1, C_Q1)
    if NQ1 == 7 and "qfirst" in EXP:
        st(a, 5)
        qepi(); publish(); try_loads()
    elif NQ1 == 7:
        st(a, 5)
        publish(); try_loads(); qepi()
    else:
        publish()
        lds_inc(a, VC, C_Q2, V1)
        try_loads()
        qgemm(4 * NQ1, 28, C_Q2)
        st(a, 5)
        try_loads()
        qepi()
    spin_lds(a, VC, C_X, 4, 4)
    for i in range(3):
        a(f"""s_add_u32 s26, s{W}, {i+1}
        s_and_b32 s26, s26, 3
        s_lshl_b32 s26, s26, 11
        s_add_u32 s26, s26, {QX}
        v_add_u32 v5, s26, v1
        ds_read_b128 {vr(Q+8*i,4)}, v5
        ds_read_b128 {vr(Q+8*i+4,4)}, v5 offset:1024""")
    for i in range(3):
        a(f"""s_add_u32 s26, s{W}, {i+1}
        s_and_b32 s26, s26, 3
        s_mul_i32 s26, s26, 12288
        s_add_u32 s26, s26, {CB + i*4096}
        v_add_u32 v{VX+i}, s26, v1""")
    a(f"s_mul_i32 s26, s{W}, 12288\ns_add_u32 s26, s26, {CB}\nv_add_u32 v2, s26, v1")
    try_loads(block=True)
    lds_inc(a, VC, C_L, V1)
    def QK(u, m):
        kt, qs = (u >> 2) & 3, u & 3
        s = S + 16 * (u & 1)
        c = "0" if m == 0 else vr(s, 16)
        return f"{MF} {vr(s,16)}, {vr(KV+16*kt+4*m,4)}, {vr(Q+8*qs+4*m,4)}, {c}"
    def PV(u, m):
        kt, qs = (u >> 2) & 3, u & 3
        return f"{MF} {vr(O+16*qs,16)}, {vr(KV+16*kt+8+4*m,4)}, {vr(P+8*(u&1)+4*m,4)}, {vr(O+16*qs,16)}"
    SS = [P, S + 16, S, O + 48]
    def samp(i, m): return f"{MF} {vr(SS[i],16)}, {vr(SK+4*m,4)}, {vr(Q+8*i+4*m,4)}, {'0' if m == 0 else vr(SS[i],16)}"
    def mx(i):
        for x in max16_list(4, SS[i]): a(x)
        a(f"s_mov_b32 exec_lo, 0\nv_cvt_pk_bf16_f32 v{Q+8*i+6}, -v4, 0\ns_mov_b32 exec_lo, -1")
    a("s_waitcnt vmcnt(14) lgkmcnt(0)")
    for i in (0, 2): a(samp(i, 0)); a(samp(i, 1))
    a(samp(1, 0)); a(samp(1, 1))
    mx(0)
    a(samp(3, 0)); a(samp(3, 1))
    mx(2)
    a("s_waitcnt vmcnt(12)")
    a(QK(0, 0)); a(QK(0, 1))
    mx(1)
    for i in range(0, 8, 2): a(f"v_pk_mul_f32 {vr(P+8+i,2)}, {vr(KV+56,2)}, {vr(KV+56,2)}")
    mx(3)
    for i in range(48, 64, 2): a(f"v_pk_mul_f32 {vr(O+i,2)}, {vr(KV+56,2)}, {vr(KV+56,2)}")
    st(a, 7)
    a("s_mov_b32 s57, 3")
    def substep(u, ex, last=False):
        s = S + 16 * (u & 1); p = P + 8 * (u & 1)
        e = lambda i: f"v_exp_f32 v{s+i}, v{s+i}"
        c = lambda i: f"v_cvt_pk_bf16_f32 v{p+i}, v{s+2*i}, v{s+2*i+1}"
        q0, q1 = ([], []) if last else ([QK(u+1, 0)], [QK(u+1, 1)])
        seq = q0 + ex[0] + [e(0), e(1), e(2), e(3), c(0), e(4),
               PV(u-1, 0)] + ex[1] + [e(5), c(1), e(6), e(7), c(2), e(8)] + q1 + ex[2] + [e(9), c(3), e(10), e(11), c(4), e(12),
               PV(u-1, 1)] + ex[3] + [e(13), c(5), e(14), e(15), c(6), c(7)]
        for x in seq: a(x)
    a(".p2align 6")
    a.label("L_loop")
    for u in range(16):
        kt, qs = u >> 2, u & 3
        ex = [[], [], [], []]
        if qs == 1:
            l = ldV((kt + 3) & 3, "s56")
            ex[0] = [l[0]]; ex[1] = [l[1]]; ex[2] = [f"s_add_u32 s56, s56, {TS}"]
        if u == 0: ex[0] = [f"ds_read_b32 v7, v{VF} offset:{C_R+4}"]
        if u == 1:
            ex[2] = ["s_waitcnt lgkmcnt(0)", "v_readfirstlane_b32 s56, v7"]
            ex[3] = ["s_sub_u32 s56, s56, 1"]
        if u == 2:
            ex[0] = ["s_cbranch_scc1 L_nextwait", "L_nextok:", f"v_add_u32 v{VF}, 4, v{VF}"]
        if qs == 2 and "nowait" not in EXP: ex[3] = ["s_waitcnt vmcnt(10)"]
        if qs == 0 and "nowait" not in EXP: ex[3] = ["s_waitcnt vmcnt(10)"]
        if qs == 3:
            l = ldK(kt, "s56")
            ex[0] = [l[0]]; ex[1] = [l[1]]
        if u == 12: ex[0] = [f"ds_read_b32 v7, v{VC} offset:{C_F}"]
        if u == 13: ex[3] = ["s_sub_u32 s57, s57, 1"]
        if "itst" in EXP and u in (0, 8):
            a("s_waitcnt lgkmcnt(0)")
            for i in range(1, 6): a(f"s_mov_b32 s{72+2*i}, s{72+2*i+2}")
            a("s_memtime s[84:85]")
        if "noload" in EXP: ex = [[y for y in x if "buffer_load" not in y] for x in ex]
        substep(u, ex)
        if u == 13: a("s_cbranch_scc1 L_tail")
    a("s_branch L_loop")
    a.label("L_tail")
    st(a, 8)
    if "deferA" in EXP or "deferB" in EXP: lds_inc(a, VC, C_L, V1)
    a(f"""s_waitcnt lgkmcnt(0)
    v_cmp_gt_u32 vcc, 4, v7
    s_cbranch_vccnz L_wait_ffn
    L_ffn_free:""")
    wr = lambda i, k: f"ds_write_b128 v{VX+i}, {vr(O+16*i+4*k,4)} offset:{k*1024}"
    substep(14, [[], [wr(0, 0)], [wr(0, 1)], [wr(0, 2)]])
    substep(15, [[wr(0, 3)], [wr(1, 0)], [wr(1, 1)], [wr(1, 2)]], last=True)
    a(PV(15, 0)); a(wr(1, 3)); a(PV(15, 1))
    for k in range(4): a(wr(2, k))
    lds_inc(a, VC, C_C, V1)
    srd(a, 20, 50, 2048 * 896)
    TT = S
    OO = O + 16 * OWN
    a(f"""s_lshl_b32 s28, s35, 4
    s_add_u32 s28, s28, s{H}
    s_lshr_b32 s56, s28, 2
    s_lshl_b32 s56, s56, 5
    s_and_b32 s26, s{H}, 3
    s_add_u32 s56, s56, s26
    s_lshl_b32 s56, s56, 2
    s_add_u32 s56, s56, {WS_OFL}
    s_lshl_b32 s52, s28, 11
    s_add_u32 s52, s52, {WS_O}
    s_mov_b32 s57, 0""")
    spin_lds(a, VC, C_C, 4, 7)
    for k in range(12): a(f"ds_read_b128 {vr(TT+4*k,4)}, v2 offset:{k*1024}")
    a(f"s_lshl_b32 s26, s{W}, 2\nv_add_u32 v7, s26, v{VC}\nds_write_b32 v7, v{V1} offset:{C_P}")
    for i in range(3):
        a(f"s_waitcnt lgkmcnt({9-4*i})")
        for k in (6, 7, 0, 1, 2, 3, 4, 5): a(f"v_pk_add_f32 {vr(OO+2*k,2)}, {vr(OO+2*k,2)}, {vr(TT+16*i+2*k,2)}")
    a.label("L_fin")
    a(f"""v_mov_b32 v5, v{OO+12}
    v_mov_b32 v4, v{OO+12}
    s_mov_b32 exec_lo, 0
    v_mov_b32 v{OO+12}, 0
    s_mov_b32 exec_lo, -1
    v_permlane32_swap_b32 v5, v4
    v_rcp_f32 v6, v4
    s_mov_b32 s28, 0x2b800000
    s_mov_b32 s29, 0x6c800000
    v_cmp_nle_f32 s[54:55], s28, v4
    v_cmp_nge_f32 s[62:63], s29, v4
    v_pk_add_f32 v[4:5], {vr(OO,2)}, {vr(OO+2,2)}""")
    for k in range(2, 8): a(f"v_pk_add_f32 v[4:5], v[4:5], {vr(OO+2*k,2)}")
    a(f"""v_add_f32 v4, v4, v5
    s_movk_i32 s28, 0x207
    v_cmp_class_f32 vcc, v4, s28
    s_or_b64 s[54:55], s[54:55], s[62:63]""")
    for k in range(8): a(f"v_pk_mul_f32 {vr(OO+2*k,2)}, {vr(OO+2*k,2)}, v[6:7] op_sel_hi:[1,0]")
    for k in range(8): a(f"v_cvt_pk_bf16_f32 v{Q+k}, v{OO+2*k}, v{OO+2*k+1}")
    a(f"""v_mov_b32 v6, s{T}
    s_or_b64 s[54:55], s[54:55], vcc
    s_cbranch_scc1 L_bad
    L_good:
    buffer_store_dwordx4 {vr(Q,4)}, v1, s[8:11], s52 offen sc1
    buffer_store_dwordx4 {vr(Q+4,4)}, v1, s[8:11], s52 offen offset:1024 sc1
    s_mov_b64 exec, 1
    {"s_waitcnt vmcnt(0)" if ("noclr" in EXP or "otouch" in EXP) else ""}
    buffer_atomic_swap v6, v{VZ}, s[8:11], s56 offen sc1
    s_mov_b64 exec, -1""")
    st(a, 9)
    a(f"""s_mov_b32 s26, {WS_G}
    buffer_load_dwordx2 {vr(GR,2)}, v{VGO}, s[8:11], s26 offen sc1
    buffer_load_dwordx4 {vr(XR,4)}, v{VXO}, s[12:15], s59 offen
    buffer_load_dwordx4 {vr(XR+4,4)}, v{VXO}, s[12:15], s59 offen offset:32""")
    WOF = 104; B = 232; ACC = 8; U = 40
    OSB = [40, 72]
    a(f"""v_bfe_u32 v4, v3, 2, 2
    v_lshl_add_u32 v4, v{VH}, 2, v4
    v_mul_u32_u24 v4, 224, v4
    v_bfe_u32 v5, v3, 4, 1
    v_lshl_add_u32 v4, v5, 5, v4
    v_and_b32 v5, 1, v3
    v_lshl_add_u32 v4, v5, 4, v4
    v_bfe_u32 v5, v3, 1, 1
    v_lshl_add_u32 v4, v5, 3, v4
    s_mul_i32 s28, s{W}, 56
    v_add_u32 v24, s28, v4
    v_add_u32 v25, {8*28*224}, v24
    v_add_u32 v26, {CB}, v1
    v_lshlrev_b32 v27, 2, v{VT}
    v_add_u32 v27, {UPDI}, v27
    s_mul_i32 s28, s{W}, 112
    s_add_u32 s28, s28, {UPD}
    v_lshl_add_u32 v28, v{VH}, 5, s28
    v_mov_b32 v29, {CNT}
    v_mov_b32 v30, 0
    v_mov_b32 v31, 0
    s_waitcnt vmcnt(6)""")
    spin_lds(a, 29, C_W, 2, 6)
    for k in range(32):
        hd, m = k >> 1, k & 1
        o = (28 * (hd & 7) + 16 * m) * 224
        b = 24 + (hd >> 3)
        a(f"ds_read_b64_tr_b16 {vr(WOF+4*k,2)}, v{b} offset:{o}\nds_read_b64_tr_b16 {vr(WOF+4*k+2,2)}, v{b} offset:{o+8*224}")
    for k in range(8): a(f"v_pk_mul_f32 {vr(ACC+2*k,2)}, v[30:31], v[30:31]")
    a("s_waitcnt vmcnt(0)")
    for k in range(8):
        a(f"v_lshlrev_b32 v{B+2*k}, 16, v{XR+k}\nv_and_b32 v{B+2*k+1}, 0xffff0000, v{XR+k}")
    a(f"""v_cmp_ne_u32 vcc, s{T}, v{GR+1}
    s_cbranch_vccnz L_gate
    L_gate_ok:
    v_sub_f32 v32, 1.0, v{GR}
    v_cvt_pk_bf16_f32 v32, v32, v32
    v_lshlrev_b32 v32, 16, v32
    s_mov_b32 s60, {SPIN_LIMIT}""")
    if "twait" not in EXP: st(a, 10)
    def stub(): pass
    def need(bit):
        l = uid("Lnd"); d = uid("Lndd")
        a(f"""s_bitcmp1_b32 s61, {bit}
        s_cbranch_scc1 {d}
        {l}:
        ds_read_b32 v6, v29 offset:{C_O}
        s_sub_u32 s60, s60, 1
        s_cbranch_scc1 L_exit
        s_waitcnt lgkmcnt(0)
        v_readfirstlane_b32 s61, v6
        s_bitcmp1_b32 s61, {bit}
        s_cbranch_scc0 {l}
        {d}:""")
    def rd(g):
        for k in range(8): a(f"ds_read_b128 {vr(OSB[g&1]+4*k,4)}, v26 offset:{g*12288+k*1024}")
    def mm(g, lo, hi):
        for k in range(lo, hi):
            a(f"{MF} {vr(ACC,16)}, {vr(WOF+32*g+4*k,4)}, {vr(OSB[g&1]+4*k,4)}, {vr(ACC,16)}")
    a(f"""ds_read_b32 v6, v29 offset:{C_O}
    s_mov_b32 s57, 0
    s_waitcnt lgkmcnt(0)
    v_readfirstlane_b32 s61, v6
    s_bitcmp1_b32 s61, 10
    s_cbranch_scc1 L_blkU
    s_mov_b32 s57, 1
    L_next0:""")
    need(0); rd(0)
    for g in range(4):
        if g < 3: a(f"ds_read_b32 v6, v29 offset:{C_O}")
        a("s_waitcnt lgkmcnt(0)")
        mm(g, 0, 2)
        if g < 3:
            a(f"v_readfirstlane_b32 s61, v6\ns_bitcmp1_b32 s61, {g+1}\ns_cbranch_scc0 L_late{g}")
            rd(g + 1)
        mm(g, 2, 8)
        a(f"L_back{g}:")
    a("s_cmp_lg_u32 s57, 0\ns_cbranch_scc1 L_lateU\nL_next1:")
    if "twait" not in EXP: st(a, 11)
    a("s_nop 9")
    for m in range(2):
        for e in range(4*m, 4*m+4):
            a(f"v_pk_fma_f32 {vr(B+2*e,2)}, {vr(ACC+2*e,2)}, {vr(GR,2)}, {vr(B+2*e,2)} op_sel_hi:[1,0,1]")
        for e in range(4*m, 4*m+4): a(f"v_cvt_pk_bf16_f32 v{40+e}, v{B+2*e}, v{B+2*e+1}")
        if m == 0:
            a(f"buffer_store_dwordx4 v[40:43], v{VXO}, s[20:23], s59 offen{OUTAUX}")
            stub()
        else:
            a(f"""s_mov_b32 exec_hi, 0
            buffer_store_dwordx4 v[44:47], v{VXO}, s[20:23], s59 offen offset:32{OUTAUX}
            s_mov_b64 exec, 0xffffffff
            s_not_b64 exec, exec
            buffer_store_dwordx2 v[44:45], v{VXO}, s[20:23], s59 offen offset:32{OUTAUX}""")
    st_end(a)
    diag_end(a)
    a("s_endpgm")
    for g in range(3):
        a(f"L_late{g}:")
        mm(g, 2, 8)
        need(g + 1); rd(g + 1)
        a(f"s_branch L_back{g}")
    a("L_lateU:")
    need(10)
    a(f"""L_blkU:
    ds_read_b32 v6, v27
    s_waitcnt lgkmcnt(0)
    v_cmp_le_i32 vcc, 0, v6
    s_cbranch_vccz L_noupd
    s_mov_b64 exec, vcc
    v_mul_u32_u24 v6, 448, v6
    v_add_u32 v28, v28, v6""")
    for k in range(4): a(f"ds_read_b128 {vr(U+4*k,4)}, v28 offset:{64*(k>>1)+16*(k&1)}")
    a("s_waitcnt lgkmcnt(0)")
    for k in range(8):
        a(f"""v_pk_add_f32 {vr(B+2*k,2)}, {vr(B+2*k,2)}, {vr(U+2*k,2)}
        v_cvt_pk_bf16_f32 v{B+2*k}, v{B+2*k}, v{B+2*k+1}
        v_and_b32 v{B+2*k+1}, 0xffff0000, v{B+2*k}
        v_lshlrev_b32 v{B+2*k}, 16, v{B+2*k}""")
    a("s_mov_b64 exec, -1\nL_noupd:")
    stub()
    for k in range(8): a(f"v_pk_mul_f32 {vr(B+2*k,2)}, {vr(B+2*k,2)}, v[32:33] op_sel_hi:[1,0]")
    a("s_cmp_lg_u32 s57, 0\ns_cbranch_scc1 L_next1\ns_branch L_next0")
    a("L_bad:\ns_cmp_eq_u32 s57, 0\ns_cbranch_scc1 L_slow")
    for k in range(8): a(f"v_min_u32 v{Q+k}, -2, v{Q+k}")
    a("s_branch L_good")
    a.label("L_wait_ffn")
    spin_lds(a, VC, C_F, 4, 7)
    a("s_branch L_ffn_free")
    a.label("L_nextwait")
    spin_lds(a, VF, C_R + 4, 1, 7)
    a("s_sub_u32 s56, s61, 1\ns_branch L_nextok")
    a(f"""L_gate:
    s_mov_b32 s26, {WS_G}
    s_mov_b32 s60, {SPIN_LIMIT}
    L_gate1:
    buffer_load_dwordx2 {vr(GR,2)}, v{VGO}, s[8:11], s26 offen sc1
    s_waitcnt vmcnt(0)
    v_cmp_ne_u32 vcc, s{T}, v{GR+1}
    s_cbranch_vccz L_gate_ok
    s_sub_u32 s60, s60, 1
    s_cbranch_scc0 L_gate1
    s_endpgm""")
    a.label("L_slow")
    a(f"""s_mov_b32 s57, 1
    s_mov_b32 s55, {KVB}
    s_mov_b32 s54, 0
    s_mov_b32 exec_lo, 0
    v_mov_b32 v{QO+6}, 0
    v_mov_b32 v{QO+7}, 0
    s_mov_b32 exec_lo, -1
    v_mov_b32 v4, 0xff800000
    L_slow1:
    {ldK(0, "s54")[0]}
    {ldK(0, "s54")[1]}
    s_waitcnt vmcnt(0)
    {MF} {vr(S,16)}, {vr(KV,4)}, {vr(QO,4)}, 0
    {MF} {vr(S,16)}, {vr(KV+4,4)}, {vr(QO+4,4)}, {vr(S,16)}""")
    for x in max16_list(4, S, init=True): a(x)
    a(f"""s_add_u32 s54, s54, {TS}
    s_cmp_lt_u32 s54, s55
    s_cbranch_scc1 L_slow1
    v_mov_b32 v5, v4
    v_permlane32_swap_b32 v4, v5
    v_max_f32 v4, v4, v5""")
    split_neg_max(a, 4, 5, 6, QO + 6, QO + 7)
    for i in range(16): a(f"v_mov_b32 v{OO+i}, 0")
    a(f"""s_mov_b32 s54, 0
    L_slow2:
    {ldK(0, "s54")[0]}
    {ldK(0, "s54")[1]}
    {ldV(0, "s54")[0]}
    {ldV(0, "s54")[1]}
    s_waitcnt vmcnt(0)
    {MF} {vr(S,16)}, {vr(KV,4)}, {vr(QO,4)}, 0
    {MF} {vr(S,16)}, {vr(KV+4,4)}, {vr(QO+4,4)}, {vr(S,16)}""")
    for i in range(16): a(f"v_exp_f32 v{S+i}, v{S+i}")
    for i in range(8): a(f"v_cvt_pk_bf16_f32 v{P+i}, v{S+2*i}, v{S+2*i+1}")
    a(f"""{MF} {vr(OO,16)}, {vr(KV+8,4)}, {vr(P,4)}, {vr(OO,16)}
    {MF} {vr(OO,16)}, {vr(KV+12,4)}, {vr(P+4,4)}, {vr(OO,16)}
    s_nop 7
    s_nop 7
    s_add_u32 s54, s54, {TS}
    s_cmp_lt_u32 s54, s55
    s_cbranch_scc1 L_slow2
    s_branch L_fin""")

def service_wave(a):
    a.label("L_service")
    a(f"""v_mov_b32 v14, {CNT}
    v_mov_b32 v15, 1
    v_mov_b32 v9, 0""")
    srd(a, 8, 36, (1 << 28) - WSBASE)
    a("s_waitcnt lgkmcnt(0)")
    tag(a)
    a(f"v_mov_b32 v4, s{T}\nds_write_b32 v14, v4 offset:{C_T}\ns_waitcnt vmcnt(0)")
    lds_inc(a, 14, C_Q1, 15)
    a(f"""v_and_b32 v32, 31, v3
    v_lshrrev_b32 v33, 5, v3
    v_lshlrev_b32 v219, 3, v1
    v_lshrrev_b32 v220, 2, v1
    v_and_b32 v4, 7, v3
    v_lshlrev_b32 v217, 3, v4
    s_lshr_b32 s58, s{H}, 2
    s_lshl2_add_u32 s58, s{J}, s58
    s_cmp_ge_u32 s{L}, 2
    s_cbranch_scc1 L_svcB""")
    def sel_load(lbl):
        a(f"""s_mov_b32 s26, {WS_SEL}
        s_mov_b32 s60, {SPIN_LIMIT}
        {lbl}:
        buffer_load_dwordx2 v[20:21], v217, s[8:11], s26 offen sc1
        s_waitcnt vmcnt(0)
        v_cmp_ne_u32 vcc, s{T}, v21
        s_cbranch_vccz {lbl}_ok
        s_sleep 4
        s_sub_u32 s60, s60, 1
        s_cbranch_scc0 {lbl}
        s_endpgm
        {lbl}_ok:""")
    a(f"""v_mov_b32 v6, {KEYS}
    s_lshl_b32 s28, s{L}, 8
    v_add3_u32 v7, v220, v6, s28
    s_lshl_b32 s27, s{J}, 6
    s_add_u32 s27, s27, {WS_R}
    s_cmp_eq_u32 s{RL}, 14
    s_cbranch_scc1 L_rank
    s_cmp_lg_u32 s2, {SELECTOR}
    s_cbranch_scc1 L_svcA
    s_lshl_b32 s26, s{L}, 9
    s_add_u32 s26, s26, {WS_R}
    s_mov_b32 s27, {WS_SEL}
    v_lshlrev_b32 v4, 3, v3
    v_mov_b32 v5, 2
    s_mov_b32 s60, {SPIN_LIMIT}
    L_keys:
    v_mov_b32 v20, 0
    v_mov_b32 v21, 0
    buffer_atomic_or_x2 v[20:21], v4, s[8:11], s26 offen sc0 sc1
    s_sub_u32 s60, s60, 1
    s_cbranch_scc1 L_exit
    s_waitcnt vmcnt(0)
    v_cmp_ne_u32 vcc, s{T}, v21
    s_cbranch_vccnz L_keys
    ds_write_b32 v7, v20""")
    lds_inc(a, 14, C_K, 5)
    a.label("L_rank")
    spin_lds(a, 14, C_K, 4, 8)
    st(a, 10)
    if STAMP: a("s_waitcnt lgkmcnt(0)")
    a(f"ds_read_b32 v20, v7\nv_mov_b32 v22, 0\nv_mov_b32 v21, s{T}\ns_mov_b32 s57, 0\nL_rk:")
    for k in range(8): a(f"ds_read_b128 {vr(40+4*k,4)}, v6 offset:{16*k}")
    a("v_add_u32 v6, 128, v6")
    CS = ["s[52:53]", "s[54:55]", "s[62:63]", "s[28:29]"]
    for k in range(8):
        a(f"s_waitcnt lgkmcnt({7-k})")
        for e in range(4): a(f"v_cmp_gt_u32 {CS[e]}, v{40+4*k+e}, v20")
        for e in range(4): a(f"v_addc_co_u32 v22, vcc, 0, v22, {CS[e]}")
    a(f"""s_add_u32 s57, s57, 1
    s_cmp_lt_u32 s57, 4
    s_cbranch_scc1 L_rk
    v_cmp_gt_u32 vcc, 8, v22
    v_lshlrev_b32 v22, 3, v22
    s_mov_b64 exec, vcc
    s_cbranch_execz L_rank_done
    buffer_atomic_swap_x2 v[20:21], v22, s[8:11], s27 offen sc1
    L_rank_done:
    s_mov_b64 exec, -1""")
    st(a, 11)
    a.label("L_svcA")
    GI = CB; DI = QX; HB = 101376
    FT, KS = 56, 59
    a(f"""s_cmp_ge_u32 s2, 196
    s_cbranch_scc1 L_nofn
    s_mul_i32 s{FT}, s2, 9363
    s_lshr_b32 s{FT}, s{FT}, 16
    s_mul_i32 s26, s{FT}, 7
    s_sub_u32 s{KS}, s2, s26
    v_lshrrev_b32 v4, 3, v3
    v_and_b32 v5, 2, v4
    v_lshlrev_b32 v5, 1, v5
    v_and_b32 v6, 7, v3
    v_xor_b32 v5, v5, v6
    v_mul_u32_u24 v6, 3584, v4
    v_lshl_add_u32 v34, v5, 4, v6
    v_add_u32 v35, {8*3584-1024}, v34
    v_add_u32 v36, {2*(8*3584-1024)}, v34
    v_add_u32 v37, {3*(8*3584-1024)}, v34
    v_lshrrev_b32 v6, 2, v3
    v_mul_u32_u24 v6, 896, v6
    v_and_b32 v5, 3, v3
    v_lshl_add_u32 v200, v5, 4, v6
    v_add_u32 v201, {16*896-1024}, v200
    v_add_u32 v202, {2*(16*896-1024)}, v200
    v_add_u32 v203, {3*(16*896-1024)}, v200
    ; transposing-read base: (8hh + r)*128 + ((r>>1)&1)*64 + colhalf*32 + c*8
    v_bfe_u32 v4, v3, 2, 2
    v_lshl_add_u32 v5, v33, 3, v4
    v_lshlrev_b32 v5, 7, v5
    v_lshrrev_b32 v4, 1, v4
    v_lshl_add_u32 v5, v4, 6, v5
    v_bfe_u32 v4, v3, 4, 1
    v_lshl_add_u32 v5, v4, 5, v5
    v_and_b32 v4, 3, v3
    v_lshl_add_u32 v5, v4, 3, v5
    s_lshl_b32 s54, s{L}, 13
    s_add_u32 s54, s54, {GI}
    v_lshrrev_b32 v6, 4, v3
    v_bfe_u32 v7, v3, 2, 2
    v_lshl_add_u32 v8, v6, 3, v7
    v_lshlrev_b32 v8, 7, v8
    v_lshrrev_b32 v7, 1, v7
    v_lshl_add_u32 v8, v7, 6, v8
    v_lshl_add_u32 v8, v4, 3, v8
    v_add_u32 v38, s54, v8
    v_xor_b32 v39, 64, v38
    v_lshlrev_b32 v213, 4, v6
    v_lshrrev_b32 v6, 7, v5
    v_and_b32 v5, 63, v5
    v_lshl_add_u32 v5, v6, 6, v5
    s_lshl_b32 s26, s{L}, 12
    s_add_u32 s26, s26, {DI}
    v_add_u32 v210, s26, v5
    ; partial-sum store offset 4hh*256 + col*4 ; h addresses ; y offsets
    v_lshlrev_b32 v212, 3, v213
    v_lshl_add_u32 v212, v217, 1, v212
    s_lshl_b32 s26, s{L}, 6
    s_add_u32 s26, s26, {HB}
    v_and_b32 v4, 56, v3
    v_lshl_add_u32 v214, v217, 4, s26
    v_add_u32 v214, v214, v4
    v_lshlrev_b32 v4, 4, v217
    v_lshl_add_u32 v4, v33, 4, v4
    v_add_u32 v218, {HB}, v4
    v_mul_u32_u24 v215, {4*1792}, v33
    v_lshl_add_u32 v215, v32, 2, v215
    v_add_u32 v216, {2*1792}, v215""")
    srd(a, 16, 42, 448 * 3584)
    a(f"""s_cmp_eq_u32 s{L}, 1
    s_cselect_b64 s[16:17], s[44:45], s[42:43]
    s_mul_i32 s52, s{KS}, {64*3584}
    s_lshl_b32 s28, s{FT}, 7
    s_add_u32 s52, s52, s28
    s_movk_i32 s29, 896""")
    spin_lds(a, 14, C_L, 8 if "deferA" in EXP else 4, 8, sleep=4)
    st(a, 3)
    NR = 2 if "fine" in EXP else 4
    XS_ = 40; FW = 56; AC = 104
    a("s_mov_b32 m0, s54\ns_nop 0")
    for k in range(8):
        if k == 4: a(f"s_add_u32 s52, s52, {32*3584}\ns_add_u32 m0, s54, 4096")
        if k and k % NR == 0: a("s_waitcnt vmcnt(0)")
        a(f"buffer_load_dwordx4 v{34+(k&3)}, s[16:19], s52 offen offset:{1024*(k&3)} lds")
    sel_load("L_sel1")
    a(f"""v_and_b32 v4, 0xffff, v20
    v_sub_u32 v4, 0xffff, v4
    v_mad_u32_u24 v4, v4, s29, v213
    s_lshl_b32 s26, s{KS}, 7
    s_mov_b32 exec_lo, 0x00ff00ff
    s_mov_b32 exec_hi, 0x00ff00ff
    buffer_load_dwordx4 {vr(XS_,4)}, v4, s[12:15], s26 offen
    buffer_load_dwordx4 {vr(XS_+4,4)}, v4, s[12:15], s26 offen offset:64
    s_mov_b64 exec, -1""")
    for k in range(2):
        for n in range(4):
            o = k * 4096 + (n & 1) * 32
            a(f"ds_read_b64_tr_b16 {vr(FW+16*k+4*n,2)}, v{38+(n>>1)} offset:{o}\nds_read_b64_tr_b16 {vr(FW+16*k+4*n+2,2)}, v{38+(n>>1)} offset:{o+512}")
    lds_inc(a, 14, C_F, 15)
    a(f"""s_mov_b64 s[16:17], s[46:47]
    s_mul_i32 s28, s{FT}, {64*896}
    s_add_u32 s28, s28, s26
    s_lshl_b32 s29, s{L}, 6
    s_add_u32 s28, s28, s29
    s_lshl_b32 s29, s{L}, 12
    s_add_u32 m0, s29, {DI}
    s_lshl1_add_u32 s26, s2, s{L}
    s_lshl_b32 s26, s26, 11
    s_add_u32 s26, s26, {WS_GP}
    s_waitcnt vmcnt(0) lgkmcnt(0)""")
    st(a, 4)
    for k in range(2):
        for n in range(4):
            a(f"v_mfma_f32_16x16x32_bf16 {vr(AC+4*n,4)}, {vr(FW+16*k+4*n,4)}, {vr(XS_+4*k,4)}, {'0' if k==0 else vr(AC+4*n,4)}")
    a("s_mov_b32 exec_lo, 0x00ff00ff\ns_mov_b32 exec_hi, 0x00ff00ff")
    for n in range(4):
        a(f"buffer_store_dwordx4 {vr(AC+4*n,4)}, v212, s[8:11], s26 offen offset:{512*n} sc1")
    a("s_mov_b64 exec, -1")
    for k in range(4): a(f"buffer_load_dwordx4 v{200+k}, s[16:19], s28 offen offset:{1024*k} lds")
    a(f"""s_lshl1_add_u32 s26, s{KS}, s{L}
    s_lshl_b32 s26, s26, 2
    s_mul_i32 s28, s{FT}, {7*128}
    s_add_u32 s26, s26, s28
    s_add_u32 s26, s26, {WS_F1}
    s_waitcnt vmcnt(4)""")
    signal(a, 5, 219, "s26", "0x7f")
    st(a, 5)
    a(f"s_lshl_b32 s26, s2, 7\ns_add_u32 s26, s26, {WS_F1}")
    poll_atomic(a, 5, 220, "s26", "0x3fff", 2)
    st(a, 6)
    GP = 40
    a(f"s_mul_i32 s26, s{FT}, {7*4096}\ns_lshl_b32 s28, s{L}, 10\ns_add_u32 s26, s26, s28\ns_add_u32 s26, s26, {WS_GP}")
    for k in range(7):
        a(f"""buffer_load_dwordx4 {vr(GP+8*k,4)}, v1, s[8:11], s26 offen sc1
        buffer_load_dwordx4 {vr(GP+8*k+4,4)}, v1, s[8:11], s26 offen offset:2048 sc1""")
        if k < 6: a("s_add_u32 s26, s26, 4096")
    DW = 120
    for k in range(4):
        a(f"ds_read_b64_tr_b16 {vr(DW+4*k,2)}, v210 offset:{k*1024}\nds_read_b64_tr_b16 {vr(DW+4*k+2,2)}, v210 offset:{k*1024+256}")
    a(f"s_mov_b32 s28, {NLOG2E:#x}\ns_mov_b32 s29, {NLOG2E:#x}\ns_waitcnt vmcnt(0)")
    for k in range(1, 7):
        for e in range(4):
            a(f"v_pk_add_f32 {vr(GP+2*e,2)}, {vr(GP+2*e,2)}, {vr(GP+8*k+2*e,2)}")
    for e in range(2): a(f"v_pk_mul_f32 {vr(22+2*e,2)}, {vr(GP+2*e,2)}, s[28:29]")
    for e in range(4): a(f"v_exp_f32 v{22+e}, v{22+e}")
    for e in range(2): a(f"v_pk_add_f32 {vr(22+2*e,2)}, {vr(22+2*e,2)}, 1.0 op_sel_hi:[1,0]")
    for e in range(4): a(f"v_rcp_f32 v{22+e}, v{22+e}")
    for e in range(2): a(f"v_pk_mul_f32 {vr(22+2*e,2)}, {vr(22+2*e,2)}, {vr(GP+2*e,2)}")
    for e in range(2): a(f"v_pk_mul_f32 {vr(22+2*e,2)}, {vr(22+2*e,2)}, {vr(GP+4+2*e,2)}")
    for e in range(2): a(f"v_cvt_pk_bf16_f32 v{28+e}, v{22+2*e}, v{23+2*e}")
    a("ds_write_b64 v214, v[28:29]")
    lds_inc(a, 14, C_S, 15)
    spin_lds(a, 14, C_S, 2, 8, sleep=1)
    for k in range(4):
        a(f"ds_read_b128 {vr(GP+4*k,4)}, v218 offset:{32*k}\ns_waitcnt lgkmcnt(0)\n{MF} {vr(AC,16)}, {vr(GP+4*k,4)}, {vr(DW+4*k,4)}, {'0' if k==0 else vr(AC,16)}")
    a(f"""s_mul_i32 s26, s{FT}, 14336
    s_lshl1_add_u32 s28, s{KS}, s{L}
    s_lshl_b32 s29, s28, 7
    s_add_u32 s26, s26, s29
    s_add_u32 s26, s26, {WS_YP}
    s_lshl2_add_u32 s28, s{FT}, s29
    s_add_u32 s28, s28, {WS_YFL}
    buffer_store_dword v{AC}, v215, s[8:11], s26 offen sc1
    buffer_store_dword v{AC+1}, v215, s[8:11], s26 offen offset:1792 sc1
    buffer_store_dword v{AC+2}, v216, s[8:11], s26 offen sc1
    buffer_store_dword v{AC+3}, v216, s[8:11], s26 offen offset:1792 sc1
    s_waitcnt vmcnt(0)""")
    signal(a, 5, 9, "s28", 1)
    st(a, 7)
    a("s_branch L_updA")
    a.label("L_nofn")
    lds_inc(a, 14, C_F, 15)
    spin_lds(a, 14, C_F, 4, 8, sleep=8)
    sel_load("L_sel2")
    a(f"""s_lshl2_add_u32 s26, s2, s{L}
    s_cmp_lg_u32 s26, {254*4}
    s_cbranch_scc1 L_updA""")
    a(f"s_mov_b32 s60, {SPIN_LIMIT}\nL_ep:")
    for k in range(4):
        a(f"s_mov_b32 s26, {WS_FL+8192*k}\nbuffer_load_dword v{24+k}, v219, s[8:11], s26 offen sc1")
    a(f"""s_sub_u32 s60, s60, 1
    s_cbranch_scc1 L_exit
    s_waitcnt vmcnt(0)
    v_xor_b32 v24, s{T}, v24
    v_bitop3_b32 v24, v24, v25, s{T} bitop3:0xf6
    v_bitop3_b32 v24, v24, v26, s{T} bitop3:0xf6
    v_bitop3_b32 v24, v24, v27, s{T} bitop3:0xf6
    v_cmp_ne_u32 vcc, 0, v24
    s_cbranch_vccnz L_ep
    s_mov_b32 s26, {WS_EP}""")
    flag_store(a, 5, 9, "s26")
    Y = 40
    a(f"""L_updA:
    s_and_b32 s53, s{H}, 3
    s_mul_i32 s53, s53, 224
    s_lshl_b32 s57, s{L}, 2
    s_lshr_b32 s26, s53, 6
    s_lshl_b32 s26, s26, 7
    s_add_u32 s62, s26, {WS_YFL}
    L_upd:
    v_readlane_b32 s52, v20, s57
    s_and_b32 s54, s52, 0xffff
    s_sub_u32 s54, 0xffff, s54
    s_lshr_b32 s26, s54, 5
    s_cmp_lg_u32 s26, s58
    s_cbranch_scc1 L_updn
    s_mov_b32 s60, {SPIN_LIMIT}
    s_mov_b32 exec_lo, 0x0fffffff
    s_mov_b32 exec_hi, 0x0fffffff
    L_yfl:
    v_mov_b32 v24, 0
    v_mov_b32 v25, 0
    buffer_atomic_or v24, v220, s[8:11], s62 offen sc0 sc1
    buffer_atomic_or v25, v220, s[8:11], s62 offen offset:256 sc0 sc1
    s_waitcnt vmcnt(0)
    v_xor_b32 v24, s{T}, v24
    v_bitop3_b32 v24, v24, v25, s{T} bitop3:0xf6
    v_cmp_ne_u32 vcc, 0, v24
    s_cbranch_vccz L_yok
    s_sub_u32 s60, s60, 1
    s_cbranch_scc0 L_yfl
    s_endpgm
    L_yok:
    v_mul_u32_u24 v4, {14*14336}, v33
    v_lshl_add_u32 v4, v32, 4, v4
    s_mul_i32 s26, s57, 1792
    s_lshl1_add_u32 s26, s53, s26
    s_add_u32 s26, s26, {WS_YP}""")
    for i in range(14):
        a(f"buffer_load_dwordx4 {vr(Y+4*i,4)}, v4, s[8:11], s26 offen sc1\ns_add_u32 s26, s26, 14336")
    a(f"""s_mov_b64 exec, -1
    s_lshr_b32 s26, s52, 16
    s_not_b32 s55, s26
    s_and_b32 s29, s26, 0x7fff
    s_bitcmp1_b32 s26, 15
    s_cselect_b32 s26, s29, s55
    s_lshl_b32 s26, s26, 16
    v_mov_b32 v6, {NLOG2E:#x}
    v_mul_f32 v6, s26, v6
    v_exp_f32 v6, v6
    v_add_f32 v6, 1.0, v6
    v_rcp_f32 v6, v6
    v_cvt_pk_bf16_f32 v6, v6, v6
    v_lshlrev_b32 v6, 16, v6
    s_mul_i32 s26, s57, 448
    s_add_u32 s26, s26, {UPD}
    v_lshl_add_u32 v7, v32, 4, s26
    s_waitcnt vmcnt(0)""")
    for i in range(1, 14):
        a(f"v_pk_add_f32 {vr(Y,2)}, {vr(Y,2)}, {vr(Y+4*i,2)}\nv_pk_add_f32 {vr(Y+2,2)}, {vr(Y+2,2)}, {vr(Y+4*i+2,2)}")
    for k in range(4): a(f"v_mov_b32 v{Y+4+k}, v{Y+k}")
    for k in range(4): a(f"v_permlane32_swap_b32 v{Y+k}, v{Y+4+k}")
    for k in range(4): a(f"v_add_f32 v{Y+k}, v{Y+k}, v{Y+4+k}")
    for k in range(0, 4, 2):
        a(f"""v_cvt_pk_bf16_f32 v{Y+k}, v{Y+k}, v{Y+k+1}
        v_and_b32 v{Y+k+1}, 0xffff0000, v{Y+k}
        v_lshlrev_b32 v{Y+k}, 16, v{Y+k}
        v_mul_f32 v{Y+k}, v{Y+k}, v6
        v_mul_f32 v{Y+k+1}, v{Y+k+1}, v6
        v_cvt_pk_bf16_f32 v{Y+k}, v{Y+k}, v{Y+k+1}
        v_and_b32 v{Y+k+1}, 0xffff0000, v{Y+k}
        v_lshlrev_b32 v{Y+k}, 16, v{Y+k}""")
    a(f"""s_and_b32 s54, s54, 31
    v_mov_b32 v5, s57
    s_lshl_b32 s26, s54, 2
    s_add_u32 s26, s26, {UPDI}
    v_mov_b32 v4, s26
    s_mov_b64 exec, 0x0fffffff
    ds_write_b128 v7, {vr(Y,4)}
    s_mov_b64 exec, 1
    ds_write_b32 v4, v5
    s_mov_b64 exec, -1
    L_updn:
    s_add_u32 s57, s57, 1
    s_and_b32 s26, s57, 3
    s_cbranch_scc1 L_upd
    v_mov_b32 v6, 512""")
    lds_inc(a, 14, C_O, 6)
    st(a, 9)
    a("s_branch L_ofetch")
    a.label("L_svcB")
    CLR = "buffer_store_dwordx4 v[24:27], v1, s[8:11], s59 offen sc1"
    if "noclr" in EXP: CLR = ""
    if "otouch" in EXP: CLR = "s_mov_b32 exec_lo, 0x0f0f0f0f\ns_mov_b32 exec_hi, 0x0f0f0f0f\nbuffer_store_dwordx4 v[24:27], v1, s[8:11], s59 offen sc1\ns_mov_b64 exec, -1"
    OUTT = ""
    if "outtouch" in EXP:
        OUTT = f"""s_cmp_lg_u32 s55, {42*1024}
        s_cbranch_scc1 L_noot
        s_mov_b32 s20, s50
        s_mov_b32 s21, s51
        s_mov_b32 s22, {2048*896}
        s_mov_b32 s23, 0x20000
        s_lshl_b32 s26, s58, 5
        v_add_u32 v4, s26, v32
        v_mul_u32_u24 v4, 896, v4
        s_add_u32 s26, s53, 127
        s_and_b32 s26, s26, 0xffffff80
        v_lshl_add_u32 v4, v33, 7, v4
        s_cmp_eq_u32 s53, 672
        s_cselect_b32 exec_hi, 0, -1
        buffer_store_dword v9, v4, s[20:23], s26 offen sc1
        s_mov_b64 exec, -1
        L_noot:"""
    WOPF = "s_mov_b32 exec_hi, 0x1ffff\nbuffer_load_dword v6, v219, s[16:19], s28 offen\ns_mov_b64 exec, -1" if "wopfS" not in EXP else ""
    for e in range(7):
        a(f"""v_add_u32 v4, {64*e}, v3
        v_mul_u32_u24 v5, 4682, v4
        v_lshrrev_b32 v5, 16, v5
        v_mul_u32_u24 v5, {896-224}, v5
        v_lshl_add_u32 v{200+e}, v4, 4, v5""")
    a(f"""v_mov_b32 v16, 0
    v_mov_b32 v17, 0
    v_mov_b32 v18, 0
    v_mov_b32 v19, 0
    v_add_u32 v209, {448*224}, v1
    s_cmp_eq_u32 s{L}, 2
    s_cbranch_scc1 L_svcB2
    v_lshrrev_b32 v4, 4, v3
    v_and_b32 v5, 15, v3
    v_lshlrev_b32 v5, 2, v5
    v_lshl_add_u32 v221, v4, 9, v5
    v_lshl_add_u32 v222, v4, 5, v14
    v_and_b32 v223, 48, v3
    v_and_b32 v5, 15, v3
    v_add_u32 v6, v5, v4
    v_mul_u32_u24 v224, {4*TS}, v6
    v_add_u32 v224, 1, v224
    v_bfm_b32 v225, v5, 0
    s_mul_i32 s26, s{H}, 28
    s_add_u32 s28, s26, 27
    s_xor_b32 s26, s26, s28
    s_mov_b32 s62, 0x55555555
    s_cmp_ge_u32 s26, 64
    s_cselect_b32 s62, -1, s62
    s_mov_b32 s63, s62
    s_lshr_b32 s28, s{J}, 2
    s_lshl4_add_u32 s26, s{H}, s28
    s_lshl_b32 s26, s26, 7
    s_add_u32 s26, s26, {WS_MB}""")
    spin_lds(a, 14, C_D, PCD, 8, sleep=1)
    at = lambda r: f"v_mov_b32 v{r}, 0\nbuffer_atomic_or v{r}, v221, s[8:11], s26 offen sc0 sc1"
    a(f"""s_mov_b32 s60, {SPIN_LIMIT}
    s_mov_b32 s52, 0x11111111
    s_mov_b32 s53, 0x11111111
    s_mov_b64 s[56:57], s[52:53]
    s_mov_b64 exec, s[62:63]""")
    for i in range(PD - 1): a(at(28 + i) + f"\ns_sleep {PG}")
    a("L_kv:")
    for i in range(PD):
        a(at(28 + (i + PD - 1) % PD))
        a(f"""s_waitcnt vmcnt({PD-1})
        v_cmp_ne_u32 vcc, s{T}, v{28+i}
        s_lshr_b64 s[28:29], vcc, 1
        s_or_b64 s[28:29], s[28:29], vcc
        s_andn2_b64 s[54:55], s[56:57], s[28:29]
        s_cbranch_scc0 L_kvs{i}
        s_ff1_i32_b64 s54, s[54:55]
        s_lshl_b64 exec, 1, s54
        ds_write_b32 v14, v224 offset:{C_M}
        s_mov_b64 exec, s[62:63]
        s_mov_b64 s[56:57], 0
        L_kvs{i}:
        s_lshr_b64 s[54:55], s[28:29], 2
        s_or_b64 s[28:29], s[28:29], s[54:55]
        s_andn2_b64 s[28:29], s[52:53], s[28:29]
        s_cbranch_scc0 L_kvn{i}
        s_andn2_b64 s[52:53], s[52:53], s[28:29]
        v_lshrrev_b64 v[4:5], v223, s[28:29]
        v_and_b32 v5, v225, v4
        v_bcnt_u32_b32 v5, v5, 0
        v_lshl_add_u32 v5, v5, 2, v222
        s_mov_b64 exec, s[28:29]
        ds_write_b32 v5, v224 offset:{C_R}
        s_mov_b64 exec, s[62:63]
        v_and_b32 v4, 0xffff, v4
        v_bcnt_u32_b32 v4, v4, 0
        v_lshl_add_u32 v222, v4, 2, v222
        s_cmp_eq_u64 s[52:53], 0
        s_cbranch_scc1 L_kvdone
        L_kvn{i}:""")
    a(f"""s_sub_u32 s60, s60, 1
    s_cbranch_scc0 L_kv
    s_endpgm
    L_kvdone:
    s_mov_b64 exec, -1
    L_svcB2:""")
    srd(a, 16, 38, 448 * 896)
    a(f"""s_and_b32 s53, s{H}, 3
    s_mul_i32 s53, s53, 224
    s_and_b32 s27, s{L}, 1
    s_mul_i32 s55, s27, {7*1024}
    s_mul_i32 s57, s27, {32*896}
    s_add_u32 s57, s57, s53
    s_lshl1_add_u32 s28, s25, s27
    s_mul_i32 s28, s28, {49*128}
    v_mov_b32 v24, -1
    v_mov_b32 v25, -1
    v_mov_b32 v26, -1
    v_mov_b32 v27, -1
    s_lshl_b32 s59, s{J}, 6
    s_add_u32 s59, s59, s{H}
    s_lshl1_add_u32 s59, s59, s27
    s_lshl_b32 s59, s59, 10
    s_add_u32 s59, s59, {WS_O}""")
    spin_lds(a, 14, C_L, 8 if "deferB" in EXP else 4, 8, sleep=4)
    st(a, 3)
    a(f"""ds_write_b128 v209, v[16:19]
    {WOPF}
    s_cmp_lg_u32 s{L}, 2
    s_cbranch_scc1 L_nofl
    s_lshl_b32 s26, s2, 7
    s_add_u32 s26, s26, {WS_FL}""")
    flag_store(a, 5, 9, "s26")
    a("L_nofl:\ns_waitcnt vmcnt(0)")
    if "wogate" in EXP: spin_lds(a, 14, C_F, 2, 8, sleep=4)
    a("L_wo:")
    for e in range(7):
        a(f"""s_add_u32 m0, s55, {e*1024}
        s_waitcnt vmcnt({WOP})
        buffer_load_dwordx4 v{200+e}, s[16:19], s57 offen lds""")
    a(f"""s_cmp_ge_u32 s55, {56*1024}
    s_cbranch_scc1 L_noclr
    {CLR}
    s_add_u32 s59, s59, {16*2048}
    L_noclr:
    {OUTT}
    s_sub_u32 s26, s55, {56*1024}
    s_cmp_ge_u32 s26, {14*1024}
    s_cbranch_scc1 L_noinc""")
    lds_inc(a, 14, C_F, 15)
    a(f"""L_noinc:
    s_add_u32 s55, s55, {14*1024}
    s_add_u32 s57, s57, {64*896}
    s_cmp_lt_u32 s55, {98*1024}
    s_cbranch_scc1 L_wo""")
    a("s_waitcnt vmcnt(0)")
    lds_inc(a, 14, C_W, 15)
    st(a, 8)
    a.label("L_ofetch")
    a(f"""s_lshl2_add_u32 s28, s58, s{L}
    s_lshl_b32 s29, s28, 13
    s_add_u32 s29, s29, {WS_O}
    s_add_u32 s27, s29, 4096
    s_lshl_b32 s28, s28, 7
    s_add_u32 s28, s28, {WS_OFL}
    s_mul_i32 s26, s{L}, 12288
    s_add_u32 s26, s26, {CB}
    v_add_u32 v7, s26, v1
    s_lshl_b32 s26, s{L}, 2
    v_add_u32 v6, s26, v14
    s_lshl_b32 s26, 1, s{L}
    v_mov_b32 v5, s26""")
    if False:
        a(f"s_cmp_lg_u32 s{L}, 1\ns_cbranch_scc1 L_walked\ns_mov_b64 exec, 0\ns_branch L_wk0\nL_walked:\ns_mov_b64 exec, -1")
    spin_lds(a, 6, C_P, 1, 8, sleep=4)
    poll_pipe(a, 28, 220, "s28", 15, D=PD, gap=PG)
    a("L_of:\nv_mov_b32 v4, 0")
    for k in range(8):
        a(f"buffer_load_dwordx4 {vr(40+4*k,4)}, v1, s[8:11], {'s29' if k < 4 else 's27'} offen offset:{(k&3)*1024} sc1")
    a("s_sub_u32 s60, s60, 1\ns_cbranch_scc1 L_exit")
    for k in range(8):
        a(f"""s_waitcnt vmcnt({7-k})
        ds_write_b128 v7, {vr(40+4*k,4)} offset:{k*1024}
        v_max3_u32 v4, v4, v{40+4*k}, v{41+4*k}
        v_max3_u32 v4, v4, v{42+4*k}, v{43+4*k}""")
    a("v_cmp_eq_u32 vcc, -1, v4\ns_cbranch_vccnz L_of")
    lds_inc(a, 14, C_O, 5)
    a("s_waitcnt vmcnt(0) lgkmcnt(0)")
    st_end(a)
    a("L_exit:\nL_code_end:\ns_endpgm")

def main(out):
    hdr = open("cdna_kernels/" + NAME + ".s.ref").read().split("; Override")[0]
    rep = []
    a = Asm()
    prologue_and_loader(a); main_wave(a); service_wave(a)
    t = hdr
    t += f"; @launch grid=(256,1,1) block=(512,1,1) lds={LDS_BYTES}\n"
    t += '.amdgcn_target "amdgcn-amd-amdhsa--gfx950"\n'
    t += kernel_text(NAME + "_kernel", a.l, 256, report=rep)
    open(out, "w").write(t)
    if "-v" in sys.argv: print("\n".join(rep))

if __name__ == "__main__":
    main(sys.argv[1])
```

```python
import sys, math, struct
from asmlib import *

NAME = "gated_mix__softmax_full_mha__moe_arch_mod__prompt"
STAMP = "-s" in sys.argv
EXP = set(x[2:] for x in sys.argv if x.startswith("-x"))
WS_KV = 0
BLK = 5120; TS = 14 * BLK; KVB = 64 * TS
WS_O = 0x480000
WS_R = 0x680000
WS_G = WS_R + 16384
WS_SEL = WS_R + 32768
WS_EP = WS_R + 40960
WS_FL = WS_R + 65536
WS_MB = WS_FL + 32768
WS_OFL = WS_MB + 32768
WS_YFL = WS_OFL + 32768
WS_F1 = WS_YFL + 4096
WS_YP = WS_R + (1 << 18)
WS_GP = 0x730000
WS_ST = 16 << 20
XS = 0; WT = 65536; WQ = 122880; QX = 151552; UPD = 159744
WO = 0; CB = 102400
UPDI = UPD + 3584
KEYS = UPD
RT = UPD + 1024
CAND = UPD + 512
SELECTOR = 223
CNT = 163840 - 192
C_M = 88
LDS_BYTES = 163840
C_Q1, C_Q2, C_X, C_L, C_S, C_D, C_C, C_O, C_W, C_F, C_K, C_T, C_P, C_R = 0, 4, 8, 12, 16, 20, 24, 28, 32, 36, 40, 44, 48, 64

def f32bits(x): return struct.unpack("<I", struct.pack("<f", x))[0]
QSCALE = f32bits(28 ** -0.5 * math.log2(math.e))
NLOG2E = f32bits(-math.log2(math.e))
MF = "v_mfma_f32_32x32x16_bf16"
ROLE = [0, 1, 2, 3, 14, 4, 5, 6, 7, 8, 9, 15, 10, 11, 12, 13]
ROLE_LO = sum(ROLE[i] << (4 * i) for i in range(8))
ROLE_HI = sum(ROLE[8 + i] << (4 * i) for i in range(8))
SPIN_LIMIT = 1 << 20
GA = ([int(x[2:]) for x in EXP if x.startswith("ga")] + [4])[0]
GB = ([int(x[2:]) for x in EXP if x.startswith("gb")] + [12])[0]
C_A, C_B, C_Z = 92, 120, 124
ZN = ([int(x[2:]) for x in EXP if x.startswith("zn")] + [2])[0]
ZU = ([int(x[2:]) for x in EXP if x.startswith("zu")] + [1])[0]
NEARLYWO = ([int(x[2:]) for x in EXP if x.startswith("ew")] + [0])[0]
NQ1 = ([int(x[2:]) for x in EXP if x.startswith("nq")] + [4])[0]
WSBASE = ([int(x[2:]) for x in sys.argv if x.startswith("-w")] + [0])[0] << 20
PD = 2 if "pd2" in EXP else 4
PG = 6 if "pd2" in EXP else 3
PCD = 4 if "pcd4" in EXP else (0 if "pcd0" in EXP else 1)
KVS = 4 if "kvs4" in EXP else (0 if "kvs0" in EXP else 2)
PQ2 = 4 if "pq4" in EXP else (0 if "pq0" in EXP else 1)
PF0 = 2 if "pf2" in EXP else 0
WOP = 1 if "wo1" in EXP else (3 if "wo3" in EXP else 2)
OUTAUX = " sc1" if "outsc1" in EXP else (" nt" if "outnt" in EXP else "")

T, H, J, W, RL, ROT = 30, 31, 32, 33, 34, 3
_uid = [0]
def uid(p):
    _uid[0] += 1
    return f"{p}_{_uid[0]}"

def srd(a, d, ptr, nbytes):
    a(f"s_mov_b32 s{d}, s{ptr}\ns_mov_b32 s{d+1}, s{ptr+1}\ns_mov_b32 s{d+2}, {nbytes:#x}\ns_mov_b32 s{d+3}, 0x20000")

NST = 12
DIAG = [tuple(int(y) for y in x[2:].split("-")) for x in sys.argv if x.startswith("-d")]
def st(a, i):
    if STAMP: a(f"s_{'memrealtime' if 'rt' in EXP else 'memtime'} s[{72+2*i}:{73+2*i}]")
    if DIAG and i in DIAG[0]: a(f"s_memrealtime s[{72+2*i}:{73+2*i}]\ns_waitcnt lgkmcnt(0)")
def st_begin(a):
    if STAMP: a("s_memrealtime s[68:69]\ns_memtime s[72:73]" if "rt" not in EXP else "s_memrealtime s[68:69]\ns_memrealtime s[72:73]")
    if DIAG: a("s_memrealtime s[72:73]")
ABS = [x[2:] for x in sys.argv if x.startswith("-a")]
REL = [tuple(int(y) for y in x[2:].split("-")) for x in sys.argv if x.startswith("-r")]
if ABS:
    DIAG = [(0, 0 if ABS[0] == "z" else int(ABS[0].lstrip("m")))]
if REL:
    ABS = ["r"]; DIAG = REL
def diag_start(a):
    if not ABS: return
    a(f"""s_load_dwordx2 s[98:99], s[0:1], 80
    s_waitcnt lgkmcnt(0)
    s_cmp_ge_u32 s2, 8
    s_cbranch_scc1 L_dg0
    s_cmp_lg_u32 s{W}, 0
    s_cbranch_scc1 L_dg0
    s_lshl_b32 s70, s2, 2
    v_mov_b32 v4, s70
    v_mov_b32 v6, s72
    global_store_dword v4, v6, s[98:99] sc1
    L_dg0:""")
def diag_end(a):
    if not DIAG: return
    p, q = DIAG[0]
    if ABS:
        a(f"""s_waitcnt vmcnt(0)
        s_memrealtime s[96:97]
        s_mov_b64 exec, -1
        v_mov_b32 v4, 0
        global_load_dwordx4 v[8:11], v4, s[98:99] sc1
        global_load_dwordx4 v[12:15], v4, s[98:99] offset:16 sc1
        s_waitcnt vmcnt(0) lgkmcnt(0)
        v_min3_u32 v8, v8, v9, v10
        v_min3_u32 v8, v8, v11, v12
        v_min3_u32 v8, v8, v13, v14
        v_min_u32 v8, v8, v15
        s_nop 1
        v_readfirstlane_b32 s69, v8
        s_sub_u32 s70, s{72+2*q}, s69""")
        if ABS[0] == "z": a("s_mov_b32 s70, 0")
        if REL: a(f"s_sub_u32 s70, s{72+2*q}, s{72+2*p}\ns_lshl_b32 s70, s70, {0 if 'k1' in EXP else 2}")
        if "onlynw" in EXP: a("s_cmp_ge_u32 s2, 196\ns_cselect_b32 s70, s70, 0")
        if "only23" in EXP: a(f"s_cmp_ge_u32 s{W}, 2\ns_cselect_b32 s70, s70, 0")
        if ABS[0].startswith("m"): a("s_sub_u32 s70, 2500, s70")
        a("s_add_u32 s70, s70, s69\ns_add_u32 s70, s70, 2500")
    else:
        a(f"""s_waitcnt vmcnt(0)
        s_memrealtime s[96:97]
        s_waitcnt lgkmcnt(0)
        s_sub_u32 s70, s{72+2*q}, s{72+2*p}
        s_add_u32 s70, s70, s96""")
    a(f"""L_diag:
    s_memrealtime s[68:69]
    s_waitcnt lgkmcnt(0)
    s_sub_u32 s71, s68, s70
    s_cmp_lt_i32 s71, 0
    s_cbranch_scc1 L_diag""")
def st_init(a):
    if STAMP:
        for i in range(1, NST): a(f"s_mov_b32 s{72+2*i}, s72")
def st_end(a):
    if not STAMP: return
    a(f"""s_waitcnt vmcnt(0)
    s_memrealtime s[70:71]
    s_{'memrealtime' if 'rt' in EXP else 'memtime'} s[{72+2*NST}:{73+2*NST}]
    s_getreg_b32 s66, hwreg(HW_REG_HW_ID)
    s_getreg_b32 s67, hwreg(HW_REG_XCC_ID)
    s_mov_b64 exec, -1
    s_lshl_b32 s65, s2, 3
    s_add_u32 s65, s65, s{W}
    s_lshl_b32 s65, s65, 6
    s_add_u32 s65, s65, {WS_ST}
    s_waitcnt lgkmcnt(0)
    v_mov_b32 v4, s68
    v_mov_b32 v5, s70
    v_mov_b32 v6, s66
    v_mov_b32 v7, s67""")
    for i in range(1, NST + 1):
        a(f"s_sub_u32 s64, s{72+2*i}, s72\nv_mov_b32 v{7+i}, s64")
    a("v_mov_b32 v2, 0\ns_mov_b64 exec, 1")
    for k in range(4):
        a(f"buffer_store_dwordx4 v[{4+4*k}:{7+4*k}], v2, s[8:11], s65 offen offset:{16*k}")

def poll_global(a, vdst, voff, soff, mask=None, sleep=1):
    l = uid("Lpoll"); d = uid("Lpd")
    a(f"s_mov_b32 s60, {SPIN_LIMIT}")
    if mask is not None: a(f"s_mov_b64 exec, {mask}")
    a(f"""{l}:
    buffer_load_dword v{vdst}, v{voff}, s[8:11], {soff} offen sc1
    s_waitcnt vmcnt(0)
    v_cmp_ne_u32 vcc, s{T}, v{vdst}
    s_cbranch_vccz {d}
    s_mov_b64 exec, vcc
    s_sleep {sleep}
    s_sub_u32 s60, s60, 1
    s_cbranch_scc0 {l}
    s_endpgm
    {d}:
    s_mov_b64 exec, -1""")

def poll_atomic(a, vdst, voff, soff, mask, sleep):
    l = uid("Lpa"); d = uid("Lpad")
    a(f"""s_mov_b32 s60, {SPIN_LIMIT}
    s_mov_b64 exec, {mask}
    {l}:
    v_mov_b32 v{vdst}, 0
    buffer_atomic_or v{vdst}, v{voff}, s[8:11], {soff} offen sc0 sc1
    s_waitcnt vmcnt(0)
    v_cmp_ne_u32 vcc, s{T}, v{vdst}
    s_cbranch_vccz {d}
    s_sleep {sleep}
    s_sub_u32 s60, s60, 1
    s_cbranch_scc0 {l}
    s_endpgm
    {d}:
    s_mov_b64 exec, -1""")

def poll_pipe(a, v0, voff, soff, mask, D=4, gap=3):
    l = uid("Lpp"); d = uid("Lppd")
    at = lambda r: f"v_mov_b32 v{r}, 0\nbuffer_atomic_or v{r}, v{voff}, s[8:11], {soff} offen sc0 sc1"
    a(f"s_mov_b32 s60, {SPIN_LIMIT}\ns_mov_b64 exec, {mask}")
    for i in range(D - 1): a(at(v0 + i) + f"\ns_sleep {gap}")
    a(f"{l}:")
    for i in range(D):
        a(at(v0 + (i + D - 1) % D))
        a(f"s_waitcnt vmcnt({D-1})\nv_cmp_ne_u32 vcc, s{T}, v{v0+i}\ns_cbranch_vccz {d}")
    a(f"""s_sub_u32 s60, s60, 1
    s_cbranch_scc0 {l}
    s_endpgm
    {d}:
    s_mov_b64 exec, -1""")

def signal(a, vt, voff, soff, mask):
    a(f"v_mov_b32 v{vt}, s{T}\ns_mov_b64 exec, {mask}\nbuffer_atomic_swap v{vt}, v{voff}, s[8:11], {soff} offen sc1\ns_mov_b64 exec, -1")

def spin_lds(a, vaddr, off, want, vt, sleep=0):
    l = uid("Lsp"); d = uid("Lsd")
    if not sleep:
        a(f"""s_mov_b32 s60, {SPIN_LIMIT}
        {l}:
        ds_read_b32 v{vt}, v{vaddr} offset:{off}
        s_sub_u32 s60, s60, 1
        s_cbranch_scc1 L_exit
        s_waitcnt lgkmcnt(0)
        v_readfirstlane_b32 s61, v{vt}
        s_cmp_ge_u32 s61, {want}
        s_cbranch_scc0 {l}""")
        return
    a(f"""s_mov_b32 s60, {SPIN_LIMIT}
    {l}:
    ds_read_b32 v{vt}, v{vaddr} offset:{off}
    s_waitcnt lgkmcnt(0)
    v_readfirstlane_b32 s61, v{vt}
    s_cmp_ge_u32 s61, {want}
    s_cbranch_scc1 {d}""")
    if sleep: a(f"s_sleep {sleep}")
    a(f"""s_sub_u32 s60, s60, 1
    s_cbranch_scc0 {l}
    s_endpgm
    {d}:""")

def lds_inc(a, vaddr, off, vone):
    a(f"s_mov_b64 exec, 1\nds_add_u32 v{vaddr}, v{vone} offset:{off}\ns_mov_b64 exec, -1")

def flag_store(a, vt, vz, soff):
    a(f"v_mov_b32 v{vt}, s{T}\ns_mov_b64 exec, 1\nbuffer_store_dword v{vt}, v{vz}, s[8:11], {soff} offen sc1\ns_mov_b64 exec, -1")

def split_neg_max(a, m, t0, t1, q6, q7):
    a(f"""v_sub_f32 v{m}, 0, v{m}
    v_cvt_pk_bf16_f32 v{t0}, v{m}, v{m}
    v_lshlrev_b32 v{t0}, 16, v{t0}
    v_sub_f32 v{t0}, v{m}, v{t0}
    v_cvt_pk_bf16_f32 v{t1}, v{m}, v{t0}
    v_and_b32 v{m}, 0xffff0000, v{t1}
    v_sub_f32 v{t0}, v{t0}, v{m}
    s_mov_b32 exec_lo, 0
    v_mov_b32 v{q6}, v{t1}
    v_cvt_pk_bf16_f32 v{q7}, v{t0}, 0
    s_mov_b32 exec_lo, -1""")

def max16_list(dst, S, init=False):
    if not init:
        return ([f"v_max3_f32 v{dst}, v{S}, v{S+1}, v{S+2}"] +
                [f"v_max3_f32 v{dst}, v{dst}, v{S+i}, v{S+i+1}" for i in range(3, 15, 2)] +
                [f"v_max_f32 v{dst}, v{dst}, v{S+15}"])
    return [f"v_max3_f32 v{dst}, v{dst}, v{S+i}, v{S+i+1}" for i in range(0, 16, 2)]

def wave_min_u32(a, v, full=True):
    for r in (1, 2, 4, 8):
        a(f"v_min_u32_dpp v{v}, v{v}, v{v} row_ror:{r} row_mask:0xf bank_mask:0xf")
    a(f"v_min_u32_dpp v{v}, v{v}, v{v} row_bcast:15 row_mask:0xa bank_mask:0xf")
    if full: a(f"v_min_u32_dpp v{v}, v{v}, v{v} row_bcast:31 row_mask:0xc bank_mask:0xf")

def rank_count(a, own, base, n, dst, t):
    a(f"v_mov_b32 v{dst}, 0\nv_mov_b32 v{t}, 0")
    for k in range(0, n, 4):
        a(f"s_waitcnt lgkmcnt({(n-k)//4-1})")
        for e in range(4): a(f"v_sub_u32 v{base+k+e}, v{own}, v{base+k+e}")
        for e in range(4):
            r = (dst, t)[e & 1]
            a(f"v_alignbit_b32 v{r}, v{r}, v{base+k+e}, 31")
    a(f"v_bcnt_u32_b32 v{dst}, v{dst}, 0\nv_bcnt_u32_b32 v{dst}, v{t}, v{dst}")

def tag(a):
    a(f"s_mul_i32 s{T}, s{T}, 0x9e3779b1\ns_add_u32 s{T}, s{T}, 0x7f4a7c15")

def next_chunk(a, s):
    a(f"s_add_u32 s{s}, s{s}, 1\ns_cmp_eq_u32 s{s}, 7\ns_cselect_b32 s{s}, 0, s{s}")

Q, O, KV, S, P = 8, 40, 104, 168, 200
XF = 104; A0, A1, WF = 40, 56, 72
VX = 216; VW = 220; VQ = 222; VC = 223; V1 = 224; VZ = 225; VT = 226; VH = 227
VA = 228; TMP = 232; XR = 240; GR = 248; VWQ = 250; VF = 251; VFS = 252; VXO = 253; VGO = 254
OWN = 3
L = 35

def prologue_and_loader(a):
    MAPCODE = ""
    if "map2" in EXP:
        MAPCODE = f"s_and_b32 s26, s25, 1\ns_lshl1_add_u32 s{H}, s24, s26\ns_lshr_b32 s{J}, s25, 1\ns_lshl1_add_u32 s{ROT}, s26, s{J}\ns_add_u32 s{ROT}, s{ROT}, s24\ns_and_b32 s{ROT}, s{ROT}, 3\ns_lshl_b32 s{ROT}, s{ROT}, 1"
        if "norot" in EXP: MAPCODE += f"\ns_mov_b32 s{ROT}, 0"
    TADDR = "v_lshl_add_u32 v8, v3, 7, s58"
    if "notouch" not in EXP: TADDR = "v_and_b32 v8, 60, v3\nv_lshl_add_u32 v8, v8, 4, s58\nv_add_u32 v8, v8, v1"
    if "rot7" in EXP:
        ROTCODE = f"s_lshl1_add_u32 s{ROT}, s27, s26\ns_cmp_ge_u32 s{ROT}, 7\ns_cselect_b32 s26, 7, 0\ns_sub_u32 s{ROT}, s{ROT}, s26"
    elif "rot2" not in EXP and "norot" not in EXP and "rot23" not in EXP:
        ROTCODE = f"s_add_u32 s{ROT}, s27, s26\ns_and_b32 s{ROT}, s{ROT}, 3\ns_lshl_b32 s{ROT}, s{ROT}, 1"
    elif "norot" in EXP:
        ROTCODE = f"s_mov_b32 s{ROT}, 0"
    elif "rot23" in EXP:
        ROTCODE = f"s_add_u32 s{ROT}, s27, s26\ns_and_b32 s{ROT}, s{ROT}, 1\ns_mul_i32 s{ROT}, s{ROT}, 3"
    else:
        ROTCODE = f"s_add_u32 s{ROT}, s27, s26\ns_and_b32 s{ROT}, s{ROT}, 1\ns_lshl_b32 s{ROT}, s{ROT}, 2"
    st_begin(a)
    a(f"""s_load_dwordx4 s[4:7], s[0:1], 0
    s_load_dwordx2 s[36:37], s[0:1], 88
    s_load_dwordx2 s[38:39], s[0:1], 16
    s_load_dwordx8 s[40:47], s[0:1], 32
    s_load_dwordx4 s[48:51], s[0:1], 64
    s_cmp_ge_u32 s2, 256
    s_cbranch_scc1 L_exit
    v_lshrrev_b32 v2, 6, v0
    v_and_b32 v3, 63, v0
    s_and_b32 s24, s2, 7
    s_lshr_b32 s25, s2, 3
    v_readfirstlane_b32 s{W}, v2
    s_and_b32 s{H}, s24, 1
    s_lshl_b32 s{H}, s{H}, 3
    s_and_b32 s26, s25, 7
    s_add_u32 s{H}, s{H}, s26
    s_lshr_b32 s27, s25, 3
    s_and_b32 s{J}, s24, 6
    s_lshl1_add_u32 s{J}, s{J}, s27
    {ROTCODE}
    {MAPCODE}
    s_mov_b32 s28, {ROLE_LO:#x}
    s_mov_b32 s29, {ROLE_HI:#x}
    s_lshl_b32 s27, s{H}, 2
    s_lshr_b64 s[28:29], s[28:29], s27
    s_and_b32 s{RL}, s28, 15
    v_lshlrev_b32 v1, 4, v3
    s_mov_b32 s27, {WS_EP}
    s_cmp_lt_u32 s{W}, 4
    s_cbranch_scc1 L_main
    """)
    a(f"""s_setprio 2
    s_sub_u32 s{L}, s{W}, 4
    v_lshrrev_b32 v4, 3, v3
    v_mul_u32_u24 v5, 896, v4
    v_and_b32 v6, 7, v3
    v_lshrrev_b32 v7, 4, v3
    v_xor_b32 v7, v6, v7
    v_lshl_add_u32 v10, v7, 4, v5
    v_xor_b32 v11, 64, v10
    v_add_u32 v12, {2*6144}, v10
    v_add_u32 v13, {3*6144}, v11
    v_add_u32 v11, 6144, v11
    v_mul_u32_u24 v5, 2688, v4
    v_and_b32 v4, 2, v4
    v_lshlrev_b32 v4, 1, v4
    v_xor_b32 v4, v4, v6
    v_lshl_add_u32 v14, v4, 4, v5
    v_add_u32 v15, {8*2688-1024}, v14
    s_lshl2_add_u32 s52, s{J}, s{L}
    s_mul_i32 s58, s52, 14
    s_add_u32 s58, s58, s{RL}
    s_mul_i32 s58, s58, {BLK}
    {TADDR}
    s_mul_i32 s52, s52, {32*896}
    s_lshl_b32 s53, s{RL}, 7
    s_mul_i32 s26, s{L}, {16*2688}
    s_add_u32 s53, s53, s26
    s_add_u32 s53, s53, 896
    s_lshl_b32 s54, s{L}, 12
    s_lshl_b32 s55, s{L}, 11
    s_add_u32 s55, s55, {WT}
    s_mov_b32 s56, s{ROT}
    s_mov_b32 s57, 0
    s_mov_b32 s14, {2048*896}
    s_mov_b32 s15, 0x20000
    s_cmp_ge_u32 s{RL}, 14
    s_cselect_b32 s18, 0, {448*2688}
    s_mov_b32 s19, 0x20000
    s_waitcnt lgkmcnt(0)
    s_mov_b64 s[12:13], s[4:5]
    s_mov_b64 s[16:17], s[6:7]
    s_load_dword s{T}, s[36:37], s27""")
    st_init(a); st(a, 1)
    if "notouch" not in EXP:
        if "notouch" not in EXP:
            a(f"""s_cbranch_scc1 L_tbl
            global_store_dwordx4 v8, v[10:13], s[36:37] sc1
            global_store_dwordx4 v8, v[10:13], s[36:37] offset:2048 sc1""")
        else: a(f"""s_cbranch_scc1 L_ld
        s_cmp_ge_u32 s{RL}, 7
        s_cselect_b32 exec_hi, 1, 0xff
        global_store_dword v8, v8, s[36:37] sc1
        s_mov_b32 exec_hi, -1""")
    a(f"""L_ld:
    s_mul_i32 s26, s56, {64*2688}
    s_mov_b32 m0, s55
    s_add_u32 s26, s26, s53
    s_lshl_b32 s28, s56, 7
    buffer_load_dwordx4 v14, s[16:19], s26 offen lds
    buffer_load_dwordx4 v15, s[16:19], s26 offen offset:1024 lds
    s_mov_b32 m0, s54
    s_add_u32 s28, s28, s52
    buffer_load_dwordx4 v10, s[12:15], s28 offen lds
    buffer_load_dwordx4 v11, s[12:15], s28 offen offset:1024 lds
    buffer_load_dwordx4 v12, s[12:15], s28 offen offset:2048 lds
    buffer_load_dwordx4 v13, s[12:15], s28 offen offset:3072 lds
    s_add_u32 s55, s55, 8192
    s_add_u32 s54, s54, 16384
    s_and_b32 s54, s54, 0xffff""")
    next_chunk(a, 56)
    if "tlb" in EXP:
        a(f"s_or_b32 s26, s57, s{L}\ns_cbranch_scc0 L_tlb\nL_tlb_done:")
    a(f"""s_add_u32 s57, s57, 1
    s_cmp_lt_u32 s57, 3
    s_cbranch_scc1 L_ld
    s_waitcnt vmcnt(12)
    s_barrier
    s_cmp_lt_u32 s57, 7
    s_cbranch_scc1 L_ld
    """)
    a(f"""v_lshrrev_b32 v4, 2, v3
    v_mul_u32_u24 v4, 2688, v4
    v_and_b32 v5, 3, v3
    v_lshl_add_u32 v16, v5, 4, v4
    s_mov_b32 s18, {448*2688}
    s_mul_i32 s53, s{H}, 56
    s_and_b32 s53, s53, 0xfffffff0
    s_mul_i32 s26, s{L}, {16*2688}
    s_add_u32 s53, s53, s26
    s_lshl_b32 s55, s{L}, 10
    s_add_u32 s55, s55, {WQ}""")
    for i in range(NQ1):
        a(f"""s_mul_i32 s26, s56, {64*2688}
        s_add_u32 m0, s55, {i*4096}
        s_add_u32 s26, s26, s53
        buffer_load_dwordx4 v16, s[16:19], s26 offen lds""")
        if i < NQ1 - 1: next_chunk(a, 56)
        if i == 1: a("s_waitcnt vmcnt(8)\ns_barrier")
        if i == 3: a("s_waitcnt vmcnt(4)\ns_barrier")
    st(a, 2)
    a("s_branch L_service")
    a(f"""L_tbl:
    s_bitcmp1_b32 s{L}, 0
    s_cselect_b64 s[20:21], s[48:49], s[40:41]
    s_cselect_b32 s26, 1024, 0
    s_movk_i32 s22, 896
    s_mov_b32 s23, 0x20000
    s_add_u32 m0, s26, {RT}
    s_lshl_b32 s28, s{ROT}, 7
    v_add_u32 v4, s28, v1
    v_subrev_u32 v6, 896, v4
    v_min_u32 v4, v4, v6
    buffer_load_dwordx4 v4, s[20:23], 0 offen lds
    s_branch L_ld""")
    if "tlb" in EXP:
        a("L_tlb:")
        if "tlbR" in EXP: a(f"s_cmp_lt_u32 s{RL}, 14\ns_cbranch_scc1 L_tlb_done")
        for off in (0, 2 << 20, 4 << 20):
            a(f"s_mov_b32 s26, {off + 4032}\ns_load_dword s66, s[36:37], s26")
        for p in (42, 44, 38, 46, 50):
            a(f"s_load_dword s66, s[{p}:{p+1}], 0")
        a("s_branch L_tlb_done")

def main_wave(a):
    a.label("L_main")
    diag_start(a)
    if "nocodepf" not in EXP:
        a(f"""s_cmp_lg_u32 s{W}, 0
        s_cbranch_scc1 L_nopf
        s_getpc_b64 s[28:29]
        L_pc:
        s_and_b32 s26, s25, 3
        s_lshl_b32 s26, s26, 13
        v_lshl_add_u32 v4, v3, 7, s26
        v_min_u32 v4, L_code_end-L_pc, v4
        global_load_dword v255, v4, s[28:29]
        L_nopf:""")
    a(f"""s_setprio 1
    v_and_b32 v{VT}, 31, v3
    v_lshrrev_b32 v{VH}, 5, v3
    v_mov_b32 v{V1}, 1
    v_mov_b32 v{VZ}, 0
    v_mov_b32 v{VC}, {CNT}
    v_lshrrev_b32 v4, 2, v1
    v_add_u32 v4, {UPDI}, v4
    v_mov_b32 v6, -1
    s_mov_b32 exec_hi, 0
    ds_write_b32 v4, v6
    v_and_b32 v6, 7, v3
    v_cmp_eq_u32 vcc, 4, v6
    v_mov_b32 v7, {KVB+1}
    v_cndmask_b32 v6, 0, v7, vcc
    ds_write_b32 v4, v6 offset:{CNT-UPDI+C_R}
    s_mov_b32 exec_lo, 0xffff
    ds_write_b32 v4, v{VZ} offset:{CNT-UPDI}
    s_mov_b64 exec, -1
    v_lshrrev_b32 v4, 1, v{VT}
    v_and_b32 v4, 7, v4
    v_xor_b32 v4, v4, v{VH}
    v_lshlrev_b32 v4, 4, v4
    v_lshl_add_u32 v4, v{VT}, 7, v4
    s_lshl_b32 s26, s{W}, 12
    v_add_u32 v{VX}, s26, v4
    v_xor_b32 v{VX+1}, 32, v{VX}
    v_xor_b32 v{VX+2}, 64, v{VX}
    v_xor_b32 v{VX+3}, 96, v{VX}
    v_bfe_u32 v4, v3, 2, 2
    v_lshl_add_u32 v12, v{VH}, 3, v4
    v_and_b32 v6, 3, v3
    v_and_b32 v7, 1, v3
    v_bfe_u32 v8, v3, 1, 1
    v_lshl_add_u32 v7, v7, 1, v8
    v_bfe_u32 v8, v3, 4, 1
    v_lshl_add_u32 v9, v8, 2, v7
    v_lshl_add_u32 v10, v8, 2, v6
    s_cmp_lt_u32 s{RL}, 7
    s_cselect_b64 vcc, -1, 0
    v_cndmask_b32 v10, v10, v9, vcc
    v_lshlrev_b32 v11, 7, v12
    v_lshl_add_u32 v11, v10, 3, v11
    v_lshrrev_b32 v4, 1, v4
    v_lshl_add_u32 v11, v4, 6, v11
    v_add_u32 v{VW}, {WT}, v11
    v_xor_b32 v{VW+1}, 64, v{VW}
    v_add_u32 v10, 2, v9
    v_sub_u32 v11, 7, v9
    v_cmp_gt_u32 vcc, 6, v9
    v_cndmask_b32 v10, v11, v10, vcc
    s_bitcmp1_b32 s{H}, 0
    s_cselect_b64 vcc, -1, 0
    v_cndmask_b32 v10, v9, v10, vcc
    v_lshlrev_b32 v11, 6, v12
    v_lshl_add_u32 v11, v10, 3, v11
    v_add_u32 v{VQ}, {WQ}, v11
    v_lshrrev_b32 v4, 2, v3
    v_mul_u32_u24 v4, 2688, v4
    v_lshl_add_u32 v{VWQ}, v6, 4, v4
    s_cmp_ge_u32 s{RL}, 7
    s_cselect_b32 s26, 7, 0
    s_cselect_b32 s29, 2, 0
    s_sub_u32 s26, s{RL}, s26
    s_mul_i32 s28, s26, {64*2341}
    s_lshr_b32 s28, s28, 16
    v_add_u32 v4, s28, v6
    v_mul_u32_u24 v7, 28, v4
    v_lshrrev_b32 v7, 6, v7
    v_cmp_ge_u32 s[64:65], s26, v7
    v_cmp_ne_u32 vcc, s26, v7
    s_and_b32 s28, s{J}, 12
    s_add_u32 s29, s28, s29
    v_mov_b32 v7, s29
    v_addc_co_u32 v7, vcc, 0, v7, vcc
    s_and_b32 s28, s{J}, 3
    v_lshl_add_u32 v4, v4, 2, s28
    v_bfe_u32 v8, v3, 2, 2
    v_lshl_add_u32 v4, v4, 2, v8
    v_lshlrev_b32 v4, 7, v4
    v_lshl_add_u32 v{VFS}, v7, 2, v4
    s_and_b32 s64, s64, 0xffff
    s_cmp_ge_u32 s{RL}, 14
    s_cselect_b32 s64, 0, s64
    s_mov_b32 s65, 0
    s_lshl_b32 s28, s{W}, 5
    v_add_u32 v{VF}, s28, v{VC}
    s_lshl_b32 s28, s{J}, 2
    s_lshr_b32 s58, s{H}, 2
    s_add_u32 s58, s58, s28
    s_and_b32 s59, s{H}, 3
    s_lshl2_add_u32 s59, s59, s{W}
    s_mul_i32 s59, s59, 56
    s_lshl_b32 s28, s58, 5
    v_add_u32 v4, s28, v{VT}
    v_mul_u32_u24 v{VXO}, 896, v4
    v_lshl_add_u32 v{VXO}, v{VH}, 4, v{VXO}
    v_lshlrev_b32 v{VGO}, 3, v4
    s_waitcnt lgkmcnt(0)
    """)
    st_init(a)
    srd(a, 8, 36, (1 << 28) - WSBASE)
    srd(a, 16, 6, 448 * 2688)
    srd(a, 12, 4, 2048 * 896)
    if "wqpf" in EXP:
        a(f"""s_cmp_lg_u32 s{W}, 1
        s_cbranch_scc1 L_nopf2
        v_lshrrev_b32 v4, 2, v3
        v_min_u32 v4, 13, v4
        v_mul_u32_u24 v4, 2688, v4
        v_and_b32 v6, 3, v3
        v_lshl_add_u32 v4, v6, 7, v4
        s_mul_i32 s26, s25, {14*2688}
        s_and_b32 s28, s24, 1
        s_mul_i32 s28, s28, 384
        s_add_u32 s26, s26, s28
        buffer_load_dword v5, v4, s[16:19], s26 offen
        L_nopf2:""")
    if "wopfS" in EXP:
        srd(a, 20, 38, 448 * 896)
        a(f"""s_cmp_lg_u32 s{W}, 2
        s_cbranch_scc1 L_nopf3
        s_mul_i32 s26, s2, {13*128}
        v_lshl_add_u32 v4, v3, 7, s26
        s_mov_b64 exec, 0x1fff
        buffer_load_dword v5, v4, s[20:23], 0 offen
        s_mov_b64 exec, -1
        L_nopf3:""")
    a(f"""s_mul_i32 s62, s{H}, 56
    s_and_b32 s62, s62, 0xfffffff0
    s_mul_i32 s26, s{W}, {16*2688}
    s_add_u32 s62, s62, s26
    s_lshl_b32 s63, s{W}, 10
    s_add_u32 s63, s63, {WQ}
    s_lshl2_add_u32 s35, s{J}, s{W}
    s_mul_i32 s52, s35, 14
    s_add_u32 s52, s52, s{RL}
    s_mul_i32 s52, s52, {BLK}
    s_add_u32 s53, s52, 4096
    s_lshr_b32 s26, s{H}, 1
    s_mul_i32 s26, s26, 7
    s_and_b32 s28, s{H}, 1
    s_lshl2_add_u32 s29, s28, s26
    v_add_u32 v4, s29, v{VH}
    v_lshrrev_b32 v6, 3, v4
    v_mul_u32_u24 v6, {BLK-4096}, v6
    v_lshl_add_u32 v6, v4, 9, v6
    v_lshl_add_u32 v{VA}, v{VT}, 4, v6
    v_add_u32 v4, 2, v4
    v_lshrrev_b32 v6, 3, v4
    v_mul_u32_u24 v6, {BLK-4096}, v6
    v_lshl_add_u32 v6, v4, 9, v6
    s_add_u32 s26, s26, 3
    s_lshr_b32 s29, s26, 3
    s_mul_i32 s29, s29, {BLK}
    s_and_b32 s26, s26, 1
    s_lshl_b32 s26, s26, 9
    s_add_u32 s29, s29, s26
    s_add_u32 s29, s29, 4096
    v_mov_b32 v7, s29
    v_and_b32 v4, s28, v{VH}
    v_cmp_eq_u32 vcc, 1, v4
    v_cndmask_b32 v6, v6, v7, vcc
    v_lshl_add_u32 v{VA+1}, v{VT}, 4, v6
    s_mul_i32 s26, s{H}, 28
    v_add_u32 v4, s26, v{VT}
    v_lshrrev_b32 v6, 6, v4
    v_mul_u32_u24 v6, {BLK}, v6
    v_bfe_u32 v7, v4, 5, 1
    v_lshl_add_u32 v6, v7, 11, v6
    v_and_b32 v4, 31, v4
    v_lshl_add_u32 v6, v4, 4, v6
    v_lshl_add_u32 v6, v{VH}, 9, v6
    v_add_u32 v6, {7*BLK}, v6
    v_add_u32 v8, 1024, v6
    s_lshr_b32 s26, s26, 6
    s_mul_i32 s26, s26, {BLK}
    s_add_u32 s26, s26, {7*BLK + 4096 - 28*16}
    v_lshl_add_u32 v7, v{VT}, 4, s26
    v_cmp_le_u32 vcc, 28, v{VT}
    v_cndmask_b32 v{VA+2}, v6, v7, vcc
    v_cndmask_b32 v{VA+3}, v8, v7, vcc
    s_cmp_ge_u32 s{RL}, 14
    s_cbranch_scc1 L_roleR
    s_cmp_ge_u32 s{RL}, 7
    s_cbranch_scc1 L_roleV""")

    def gemm(kind):
        if "twait" in EXP:
            st(a, 10); a("s_waitcnt vmcnt(0)"); st(a, 11)
        def reads(c, s):
            k = 4 * c + s
            a(f"ds_read_b128 {vr(XF+4*k,4)}, v{VX+s} offset:{(c&3)*16384}")
            f = WF + 8 * s
            if kind == "R":
                a(f"ds_read_b128 {vr(f,4)}, v{VW} offset:{k*32}")
            else:
                for n in range(2):
                    a(f"ds_read_b64_tr_b16 {vr(f+4*n,2)}, v{VW+n} offset:{k*2048}")
                    a(f"ds_read_b64_tr_b16 {vr(f+4*n+2,2)}, v{VW+n} offset:{k*2048+512}")
        def mfmas(c, s, ns=None):
            k = 4 * c + s
            f = WF + 8 * s
            for n in (ns or range(1 if kind == "R" else 2)):
                acc = (A0, A1)[n]
                cc = "0" if k == 0 else vr(acc, 16)
                if kind == "V": a(f"{MF} {vr(acc,16)}, {vr(XF+4*k,4)}, {vr(f+4*n,4)}, {cc}")
                else:           a(f"{MF} {vr(acc,16)}, {vr(f+4*n,4)}, {vr(XF+4*k,4)}, {cc}")
        per = 2 if kind == "R" else 5
        for c in range(7):
            a("s_barrier")
            if c == 0: st(a, 1)
            if c == 6: st(a, 2)
            if STAMP and c in (0, 6): a("s_waitcnt lgkmcnt(0)")
            reads(c, 0); reads(c, 1)
            for s in range(4):
                if s < 2: reads(c, s + 2)
                a(f"s_waitcnt lgkmcnt({min(3 - s, 2) * per})")
                if c == 6 and kind != "R" and s >= 2: mfmas(c, s, (0,))
                else: mfmas(c, s)
            if c == 6 and kind != "R":
                mfmas(c, 2, (1,)); mfmas(c, 3, (1,))

    PK = 8
    MS = 20
    a(f"""v_add_u32 v4, s{RL}, v{VH}""")
    for i in range(4):
        a(f"""v_cmp_eq_u32 vcc, {3-2*i}, v4
        v_cmp_eq_u32 s[{MS+2*i}:{MS+1+2*i}], {10-2*i}, v4
        s_or_b64 s[{MS+2*i}:{MS+1+2*i}], s[{MS+2*i}:{MS+1+2*i}], vcc""")
    for e in range(4): a(f"v_mov_b32 v{TMP+e}, 0x3f803f80")
    a(f"""s_or_b64 s[28:29], s[{MS}:{MS+1}], s[{MS+2}:{MS+3}]
    s_or_b64 s[54:55], s[{MS+4}:{MS+5}], s[{MS+6}:{MS+7}]
    s_or_b64 s[54:55], s[54:55], s[28:29]
    s_mov_b64 exec, 0
    s_branch L_epi
    L_backK:
    s_mov_b64 exec, -1""")
    gemm("K")
    a("s_branch L_epi")
    a.label("L_roleR")
    if "pfx" in EXP:
        C0 = 1 if "pf1" in EXP else 2
        a(f"""v_mul_u32_u24 v4, 896, v{VT}
        v_lshl_add_u32 v4, v{VH}, 7, v4
        s_mul_i32 s26, s35, {32*896}
        v_lshrrev_b32 v6, 3, v{VT}
        v_mul_u32_u24 v6, 2688, v6
        v_and_b32 v7, 7, v3
        v_min_u32 v7, 6, v7
        v_lshl_add_u32 v6, v7, 7, v6
        v_mul_u32_u24 v7, {64*2688}, v{VH}
        v_add_u32 v6, v6, v7
        s_and_b32 s28, s35, 15
        s_mul_i32 s28, s28, {4*2688}
        s_and_b32 s29, s24, 1
        s_mul_i32 s29, s29, 896
        s_add_u32 s28, s28, s29
        s_add_u32 s28, s28, {896 + C0*64*2688}""")
        for c in range(C0, 7, 2):
            if c == 6: a("s_mov_b32 exec_hi, 0")
            a(f"""buffer_load_dword v5, v4, s[12:15], s26 offen offset:{128*c}
            buffer_load_dword v5, v6, s[16:19], s28 offen
            s_add_u32 s28, s28, {128*2688}""")
        a("s_mov_b64 exec, -1")
    a(f"""v_and_b32 v4, 1, v3
    v_lshlrev_b32 v4, 10, v4
    v_lshl_add_u32 v4, v{VH}, 4, v4
    v_add_u32 v{VW}, {RT}, v4
    s_lshl_b32 s26, s{W}, 7
    s_add_u32 s26, s26, {KEYS}
    v_lshl_add_u32 v12, v{VT}, 2, s26
    v_lshl_add_u32 v13, v{VH}, 6, s26""")
    gemm("R")
    a(f"""s_cmp_lg_u32 s{RL}, 14
    s_cbranch_scc1 L_pub
    s_mov_b32 exec_hi, 0
    s_nop 9
    v_cvt_pk_bf16_f32 v4, v{A0}, v{A0+1}
    v_and_b32 v5, 0xffff0000, v4
    v_lshlrev_b32 v4, 16, v4
    v_ashrrev_i32 v6, 31, v4
    v_or_b32 v6, 0x80000000, v6
    v_xor_b32 v6, v6, v4
    v_lshrrev_b32 v6, 16, v6
    v_lshlrev_b32 v6, 11, v6
    v_cmp_u_f32 vcc, v4, v4
    v_cndmask_b32 v6, v6, 0, vcc
    s_lshl_b32 s26, s35, 5
    v_add_u32 v7, s26, v{VT}
    v_sub_u32 v8, 0x7ff, v7
    v_or_b32 v6, v6, v8
    v_lshlrev_b32 v9, 3, v7
    ds_write_b32 v12, v6
    s_mov_b32 exec_hi, -1
    ds_read_b32 v6, v12
    ds_read_b128 v[16:19], v13
    ds_read_b128 v[20:23], v13 offset:16
    ds_read_b128 v[24:27], v13 offset:32
    ds_read_b128 v[28:31], v13 offset:48""")
    rank_count(a, 6, 16, 16, 14, 15)
    a(f"""v_mov_b32 v15, v14
    s_lshl_b32 s26, s{W}, 5
    s_add_u32 s26, s26, {CAND}
    v_permlane32_swap_b32 v14, v15
    v_add_u32 v14, v14, v15
    v_cmp_gt_u32 vcc, 8, v14
    v_lshl_add_u32 v14, v14, 2, s26
    s_mov_b64 exec, vcc
    ds_write_b32 v14, v6
    s_mov_b64 exec, 1
    ds_add_u32 v{VC}, v{V1} offset:{C_K}
    s_mov_b32 exec_lo, -1
    v_mul_f32 v5, {NLOG2E:#x}, v5
    v_exp_f32 v5, v5
    v_add_f32 v5, 1.0, v5
    v_rcp_f32 v5, v5
    v_cvt_pk_bf16_f32 v5, v5, v5
    v_lshlrev_b32 v10, 16, v5
    s_mov_b32 exec_hi, -1
    s_branch L_pub
    """)
    a.label("L_roleV")
    a(f"""v_cmp_eq_u32 vcc, 0, v3
    v_mov_b32 v7, 0x3f803f80
    v_cndmask_b32 v{TMP}, 0, v7, vcc""")
    for e in range(1, 4): a(f"v_mov_b32 v{TMP+e}, v{TMP}")
    for i in range(4): a(f"s_mov_b64 s[{MS+2*i}:{MS+1+2*i}], 0")
    a("s_mov_b64 s[54:55], 0xff")
    gemm("V")
    a("L_epi:\ns_cbranch_execz L_backK")
    for i in range(4):
        acc = (A0, A1)[i >> 1] + 8 * (i & 1)
        p = PK + 4 * i
        for e in (2, 3, 0, 1): a(f"v_cvt_pk_bf16_f32 v{p+e}, v{acc+2*e}, v{acc+2*e+1}")
        a(f"""s_mov_b64 exec, s[{MS+2*i}:{MS+1+2*i}]
        v_swap_b32 v{TMP}, v{p+2}
        v_swap_b32 v{TMP+1}, v{p+3}
        s_mov_b64 exec, -1
        buffer_store_dwordx4 {vr(p,4)}, v1, s[8:11], s52 offen offset:{1024*i} sc1""")
    a(f"s_mov_b64 exec, s[54:55]\nbuffer_store_dwordx4 {vr(TMP,4)}, v1, s[8:11], s53 offen sc1\ns_mov_b64 exec, -1")
    a.label("L_pub")
    st(a, 3)
    a(f"s_add_u32 s56, s{ROT}, {NQ1}\ns_cmp_ge_u32 s56, 7\ns_cselect_b32 s26, 7, 0\ns_sub_u32 s56, s56, s26")
    for i in range(NQ1, 7):
        a(f"""s_mul_i32 s26, s56, {64*2688}
        s_add_u32 m0, s63, {i*4096}
        s_add_u32 s26, s26, s62
        buffer_load_dwordx4 v{VWQ}, s[16:19], s26 offen lds""")
        if i < 6: next_chunk(a, 56)
    QO = Q + 8 * OWN
    SK = TMP
    a(f"""s_mov_b64 s[16:17], s[36:37]
    s_mov_b32 s18, {KVB}
    s_mov_b32 s57, 0""")
    def ldK(b, soff, base=None):
        r = KV + 16 * b if base is None else base
        return [f"buffer_load_dwordx4 {vr(r,4)}, v{VA}, s[16:19], {soff} offen sc1",
                f"buffer_load_dwordx4 {vr(r+4,4)}, v{VA+1}, s[16:19], {soff} offen sc1"]
    def ldV(b, soff):
        return [f"buffer_load_dwordx4 {vr(KV+16*b+8,4)}, v{VA+2}, s[16:19], {soff} offen sc1",
                f"buffer_load_dwordx4 {vr(KV+16*b+12,4)}, v{VA+3}, s[16:19], {soff} offen sc1"]
    def try_loads(block=False):
        d = uid("Ltl"); l = uid("Ltr"); g = uid("Ltg")
        a(f"s_cmp_eq_u32 s57, 2\ns_cbranch_scc1 {d}")
        if block: a(f"s_mov_b32 s60, {SPIN_LIMIT}\n{l}:\ns_sub_u32 s60, s60, 1\ns_cbranch_scc1 L_exit")
        a(f"""ds_read_b32 v4, v{VF} offset:{C_R}
        ds_read_b32 v5, v{VC} offset:{C_M}
        s_cmp_eq_u32 s57, 1
        s_waitcnt lgkmcnt(0)
        v_readfirstlane_b32 s56, v4
        s_cbranch_scc1 {g}
        v_readfirstlane_b32 s29, v5
        s_sub_u32 s29, s29, 1
        s_cbranch_scc1 {l if block else d}
        s_mov_b32 s57, 1""")
        for x in ldK(0, "s29", SK): a(x)
        a(f"""{g}:
        s_sub_u32 s27, s56, 1
        s_cbranch_scc1 {l if block else d}
        s_add_u32 s54, s56, {TS-1}
        s_add_u32 s55, s56, {2*TS-1}
        s_add_u32 s56, s56, {3*TS-1}
        s_mov_b32 s57, 2""")
        st(a, 6)
        for x in ldK(0, "s27") + ldV(0, "s27") + ldK(1, "s54") + ldV(1, "s54") + ([] if "up4" not in EXP else ldK(2, "s55") + ldV(2, "s55") + ldK(3, "s56")): a(x)
        a(f"{d}:")
    def qreads(k):
        f = WF + 4 * (k & 7)
        a(f"ds_read_b64_tr_b16 {vr(f,2)}, v{VQ} offset:{k*1024}\nds_read_b64_tr_b16 {vr(f+2,2)}, v{VQ} offset:{k*1024+256}")
    def publish():
        a(f"""s_mov_b32 s28, {WS_MB}
        v_readfirstlane_b32 s{T}, v11
        v_mov_b32 v6, v11
        s_mov_b64 exec, 1
        s_waitcnt vmcnt({7-NQ1})""")
        st(a, 4)
        a(f"""ds_add_rtn_u32 v4, v{VC}, v{V1} offset:{C_D}
        s_waitcnt lgkmcnt(0)
        v_cmp_eq_u32 vcc, 3, v4
        s_cbranch_vccz L_notlast
        s_mov_b64 exec, s[64:65]
        s_cbranch_execz L_notlast
        buffer_atomic_swap v6, v{VFS}, s[8:11], s28 offen sc1
        s_waitcnt vmcnt(1)
        s_branch L_published
        L_notlast:
        s_waitcnt vmcnt(0)
        s_cmp_lg_u32 s{RL}, 14
        s_cbranch_scc1 L_published
        s_mov_b32 s26, {WS_G}
        s_mov_b32 exec_lo, -1
        buffer_store_dwordx2 v[10:11], v9, s[8:11], s26 offen sc1
        L_published:""")
        a("s_mov_b64 exec, -1")
    def qgemm(lo, hi, cnt):
        spin_lds(a, VC, cnt, 4, 4)
        if not lo: a(f"ds_read_b32 v11, v{VC} offset:{C_T}")
        for k in range(lo, min(hi, lo + 6)): qreads(k)
        for k in range(lo, hi):
            if k + 6 < hi: qreads(k + 6)
            a(f"s_waitcnt lgkmcnt({2*(min(hi-1,k+6)-k)})")
            a(f"{MF} {vr(A0,16)}, {vr(WF+4*(k&7),4)}, {vr(XF+4*k,4)}, {'0' if k==0 else vr(A0,16)}")
    def qepi():
        for i in range(8): a(f"v_mov_b32 v{KV+56+i}, 0")
        a(f"""s_lshl_b32 s26, s{W}, 11
        s_add_u32 s26, s26, {QX}
        v_add_u32 v5, s26, v1
        s_mov_b32 s62, {QSCALE:#x}
        s_mov_b32 s63, {QSCALE:#x}""")
        for i in range(8): a(f"v_pk_mul_f32 {vr(A0+2*i,2)}, {vr(A0+2*i,2)}, s[62:63]")
        for i in range(8): a(f"v_cvt_pk_bf16_f32 v{QO+i}, v{A0+2*i}, v{A0+2*i+1}")
        a(f"""s_mov_b32 exec_lo, 0
        v_mov_b32 v{QO+6}, 0
        v_mov_b32 v{QO+7}, 0
        s_mov_b32 exec_lo, -1
        ds_write_b128 v5, {vr(QO,4)}
        ds_write_b128 v5, {vr(QO+4,4)} offset:1024""")
        lds_inc(a, VC, C_X, V1)
        for i in range(0, 48, 2): a(f"v_pk_mul_f32 {vr(O+i,2)}, {vr(KV+56,2)}, {vr(KV+56,2)}")
    qgemm(0, 4 * NQ1, C_Q1)
    if NQ1 == 7 and "qfirst" in EXP:
        st(a, 5)
        qepi(); publish(); try_loads()
    elif NQ1 == 7:
        st(a, 5)
        publish(); try_loads(); qepi()
    else:
        publish()
        lds_inc(a, VC, C_Q2, V1)
        try_loads()
        qgemm(4 * NQ1, 28, C_Q2)
        st(a, 5)
        try_loads()
        qepi()
    spin_lds(a, VC, C_X, 4, 4)
    for i in range(3):
        a(f"""s_add_u32 s26, s{W}, {i+1}
        s_and_b32 s26, s26, 3
        s_lshl_b32 s26, s26, 11
        s_add_u32 s26, s26, {QX}
        v_add_u32 v5, s26, v1
        ds_read_b128 {vr(Q+8*i,4)}, v5
        ds_read_b128 {vr(Q+8*i+4,4)}, v5 offset:1024""")
    for i in range(3):
        a(f"""s_add_u32 s26, s{W}, {i+1}
        s_and_b32 s26, s26, 3
        s_mul_i32 s26, s26, 12288
        s_add_u32 s26, s26, {CB + i*4096}
        v_add_u32 v{VX+i}, s26, v1""")
    a(f"s_mul_i32 s26, s{W}, 12288\ns_add_u32 s26, s26, {CB}\nv_add_u32 v2, s26, v1")
    try_loads(block=True)
    def QK(u, m):
        kt, qs = (u >> 2) & 3, u & 3
        s = S + 16 * (u & 1)
        c = "0" if m == 0 else vr(s, 16)
        return f"{MF} {vr(s,16)}, {vr(KV+16*kt+4*m,4)}, {vr(Q+8*qs+4*m,4)}, {c}"
    def PV(u, m):
        kt, qs = (u >> 2) & 3, u & 3
        return f"{MF} {vr(O+16*qs,16)}, {vr(KV+16*kt+8+4*m,4)}, {vr(P+8*(u&1)+4*m,4)}, {vr(O+16*qs,16)}"
    SS = [P, S + 16, S, O + 48]
    def samp(i, m): return f"{MF} {vr(SS[i],16)}, {vr(SK+4*m,4)}, {vr(Q+8*i+4*m,4)}, {'0' if m == 0 else vr(SS[i],16)}"
    def mx(i):
        for x in max16_list(4, SS[i]): a(x)
        a(f"s_mov_b32 exec_lo, 0\nv_cvt_pk_bf16_f32 v{Q+8*i+6}, -v4, 0\ns_mov_b32 exec_lo, -1")
    a(f"s_waitcnt vmcnt({8 if 'up4' not in EXP else 14}) lgkmcnt(0)")
    for i in (0, 2): a(samp(i, 0)); a(samp(i, 1))
    a(samp(1, 0)); a(samp(1, 1))
    mx(0)
    a(samp(3, 0)); a(samp(3, 1))
    mx(2)
    a(f"s_waitcnt vmcnt({6 if 'up4' not in EXP else 12})")
    a(QK(0, 0)); a(QK(0, 1))
    if "up4" not in EXP:
        for x in ldK(2, "s55") + ldV(2, "s55") + ldK(3, "s56"): a(x)
    mx(1)
    for i in range(0, 8, 2): a(f"v_pk_mul_f32 {vr(P+8+i,2)}, {vr(KV+56,2)}, {vr(KV+56,2)}")
    mx(3)
    for i in range(48, 64, 2): a(f"v_pk_mul_f32 {vr(O+i,2)}, {vr(KV+56,2)}, {vr(KV+56,2)}")
    st(a, 7)
    a(f"s_mov_b32 s57, 2\ns_mov_b32 s53, {WS_G}")
    def substep(u, ex, last=False):
        s = S + 16 * (u & 1); p = P + 8 * (u & 1)
        e = lambda i: f"v_exp_f32 v{s+i}, v{s+i}"
        c = lambda i: f"v_cvt_pk_bf16_f32 v{p+i}, v{s+2*i}, v{s+2*i+1}"
        q0, q1 = ([], []) if last else ([QK(u+1, 0)], [QK(u+1, 1)])
        seq = q0 + ex[0] + [e(0), e(1), e(2), e(3), c(0), e(4),
               PV(u-1, 0)] + ex[1] + [e(5), c(1), e(6), e(7), c(2), e(8)] + q1 + ex[2] + [e(9), c(3), e(10), e(11), c(4), e(12),
               PV(u-1, 1)] + ex[3] + [e(13), c(5), e(14), e(15), c(6), c(7)]
        for x in seq: a(x)
    a(".p2align 6")
    a.label("L_loop")
    for u in range(16):
        kt, qs = u >> 2, u & 3
        ex = [[], [], [], []]
        if qs == 1:
            l = ldV((kt + 3) & 3, "s56")
            ex[0] = [l[0]]; ex[1] = [l[1]]; ex[2] = [f"s_add_u32 s56, s56, {TS}"]
        if u == 0: ex[0] = [f"ds_read_b32 v7, v{VF} offset:{C_R+4}"]
        if u == 1:
            ex[2] = ["s_waitcnt lgkmcnt(0)", "v_readfirstlane_b32 s56, v7"]
            ex[3] = ["s_sub_u32 s56, s56, 1"]
        if u == 2:
            ex[0] = ["s_cbranch_scc1 L_nextwait", "L_nextok:", f"v_add_u32 v{VF}, 4, v{VF}"]
        if qs == 2 and "nowait" not in EXP: ex[3] = ["s_waitcnt vmcnt(10)"]
        if qs == 0 and "nowait" not in EXP: ex[3] = ["s_waitcnt vmcnt(10)"]
        if qs == 3:
            l = ldK(kt, "s56")
            ex[0] = [l[0]]; ex[1] = [l[1]]
        if u == GA: ex[1] = ex[1] + [f"ds_add_u32 v{VC}, v{V1} offset:{C_A}"]
        if u == 15: ex[3] = ["s_sub_u32 s57, s57, 1"]
        if "itst" in EXP and u in (0, 8):
            a("s_waitcnt lgkmcnt(0)")
            for i in range(1, 6): a(f"s_mov_b32 s{72+2*i}, s{72+2*i+2}")
            a("s_memtime s[84:85]")
        if "noload" in EXP: ex = [[y for y in x if "buffer_load" not in y] for x in ex]
        substep(u, ex)
    a("s_cbranch_scc0 L_loop")
    for u in range(14):
        ex = [[], [], [], []]
        if u == 1:
            l = ldV(3, "s56"); ex[0] = [l[0]]; ex[1] = [l[1]]
        if u == ZU: ex[2] = [f"ds_add_u32 v{VC}, v{V1} offset:{C_Z}"]
        if u == 0:
            ex[0] = [f"buffer_load_dwordx2 {vr(GR,2)}, v{VGO}, s[8:11], s53 offen sc1"]
            ex[1] = [f"buffer_load_dwordx4 {vr(XR,4)}, v{VXO}, s[12:15], s59 offen"]
            ex[2] = [f"buffer_load_dwordx4 {vr(XR+4,4)}, v{VXO}, s[12:15], s59 offen offset:32"]
        if u % 2 == 0: ex[3] = [f"s_waitcnt vmcnt({min(13, 15 - u) if u < 12 else 0})"]
        if u == 12: ex[0] = [f"ds_read_b32 v7, v{VC} offset:{C_F}"]
        if u == 13:
            ex[0] = ["s_waitcnt lgkmcnt(0)", "v_cmp_gt_u32 vcc, 4, v7"]
            ex[1] = ["s_cbranch_vccnz L_wait_ffn", "L_ffn_free:"]
        substep(u, ex)
    st(a, 8)
    wr = lambda i, k: f"ds_write_b128 v{VX+i}, {vr(O+16*i+4*k,4)} offset:{k*1024}"
    substep(14, [[], [wr(0, 0)], [wr(0, 1)], [wr(0, 2)]])
    substep(15, [[wr(0, 3)], [wr(1, 0)], [wr(1, 1)], [wr(1, 2)]], last=True)
    a(PV(15, 0)); a(wr(1, 3)); a(PV(15, 1))
    for k in range(4): a(wr(2, k))
    lds_inc(a, VC, C_C, V1)
    srd(a, 20, 50, 2048 * 896)
    TT = S
    OO = O + 16 * OWN
    a(f"""s_lshl_b32 s28, s35, 4
    s_add_u32 s28, s28, s{H}
    s_lshr_b32 s56, s28, 2
    s_lshl_b32 s56, s56, 5
    s_and_b32 s26, s{H}, 3
    s_add_u32 s56, s56, s26
    s_lshl_b32 s56, s56, 2
    s_add_u32 s56, s56, {WS_OFL}
    s_lshl_b32 s52, s28, 11
    s_add_u32 s52, s52, {WS_O}
    s_mov_b32 s57, 0""")
    spin_lds(a, VC, C_C, 4, 7)
    for k in range(12): a(f"ds_read_b128 {vr(TT+4*k,4)}, v2 offset:{k*1024}")
    for i in range(3):
        a(f"s_waitcnt lgkmcnt({8-4*i})")
        for k in (6, 7, 0, 1, 2, 3, 4, 5): a(f"v_pk_add_f32 {vr(OO+2*k,2)}, {vr(OO+2*k,2)}, {vr(TT+16*i+2*k,2)}")
    a.label("L_fin")
    a(f"""v_mov_b32 v5, v{OO+12}
    v_mov_b32 v4, v{OO+12}
    s_mov_b32 exec_lo, 0
    v_mov_b32 v{OO+12}, 0
    s_mov_b32 exec_lo, -1
    v_permlane32_swap_b32 v5, v4
    v_rcp_f32 v6, v4
    s_mov_b32 s28, 0x2b800000
    s_mov_b32 s29, 0x6c800000
    v_cmp_nle_f32 s[54:55], s28, v4
    v_cmp_nge_f32 s[62:63], s29, v4
    v_pk_add_f32 v[4:5], {vr(OO,2)}, {vr(OO+2,2)}""")
    for k in range(2, 8): a(f"v_pk_add_f32 v[4:5], v[4:5], {vr(OO+2*k,2)}")
    a(f"""v_add_f32 v4, v4, v5
    s_movk_i32 s28, 0x207
    v_cmp_class_f32 vcc, v4, s28
    s_or_b64 s[54:55], s[54:55], s[62:63]""")
    for k in range(8): a(f"v_pk_mul_f32 {vr(OO+2*k,2)}, {vr(OO+2*k,2)}, v[6:7] op_sel_hi:[1,0]")
    for k in range(8): a(f"v_cvt_pk_bf16_f32 v{Q+k}, v{OO+2*k}, v{OO+2*k+1}")
    a(f"""v_mov_b32 v6, s{T}
    s_or_b64 s[54:55], s[54:55], vcc
    s_cbranch_scc1 L_bad
    L_good:
    buffer_store_dwordx4 {vr(Q,4)}, v1, s[8:11], s52 offen sc1
    buffer_store_dwordx4 {vr(Q+4,4)}, v1, s[8:11], s52 offen offset:1024 sc1
    s_mov_b64 exec, 1
    {"s_waitcnt vmcnt(0)" if ("noclr" in EXP or "otouch" in EXP) else ""}
    buffer_atomic_swap v6, v{VZ}, s[8:11], s56 offen sc1
    s_mov_b64 exec, -1""")
    st(a, 9)
    WOF = 104; B = 232; ACC = 8; U = 72
    OSB = [40, 72]
    PLR = 36
    a(f"""s_lshl2_add_u32 s28, s58, s{W}
    s_lshl_b32 s54, s28, 13
    s_add_u32 s54, s54, {WS_O}
    s_add_u32 s55, s54, 4096
    s_lshl_b32 s56, s28, 7
    s_add_u32 s56, s56, {WS_OFL}
    v_lshrrev_b32 v7, 2, v1
    v_bfe_u32 v4, v3, 2, 2
    v_lshl_add_u32 v4, v{VH}, 2, v4
    v_mul_u32_u24 v4, 224, v4
    v_bfe_u32 v5, v3, 4, 1
    v_lshl_add_u32 v4, v5, 5, v4
    v_and_b32 v5, 1, v3
    v_lshl_add_u32 v4, v5, 4, v4
    v_bfe_u32 v5, v3, 1, 1
    v_lshl_add_u32 v4, v5, 3, v4
    s_mul_i32 s28, s{W}, 56
    v_add_u32 v4, s28, v4""")
    for r in range(4):
        a(f"""s_add_u32 s26, s{W}, {r}
        s_and_b32 s26, s26, 3
        s_mul_i32 s28, s26, {4*28*224}
        v_add_u32 v{24+r}, s28, v4""")
        if r:
            a(f"s_mul_i32 s28, s26, 12288\ns_add_u32 s28, s28, {CB}\nv_add_u32 v{32+r}, s28, v1")
    a(f"""v_lshlrev_b32 v30, 2, v{VT}
    v_add_u32 v30, {UPDI}, v30
    s_mul_i32 s28, s{W}, 112
    s_add_u32 s28, s28, {UPD}
    v_lshl_add_u32 v28, v{VH}, 5, s28
    v_mov_b32 v29, {CNT}
    s_lshl_b32 s28, 0x11, s{W}
    v_mov_b32 v31, s28""")
    at = lambda r: f"v_mov_b32 v{r}, 0\ns_mov_b64 exec, 15\nbuffer_atomic_or v{r}, v7, s[8:11], s56 offen sc0 sc1\ns_mov_b64 exec, -1"
    a(at(PLR))
    spin_lds(a, 29, C_W, 2, 6)
    for k in range(32):
        o = (28 * ((k >> 1) & 3) + 16 * (k & 1)) * 224
        b = 24 + (k >> 3)
        a(f"ds_read_b64_tr_b16 {vr(WOF+4*k,2)}, v{b} offset:{o}\nds_read_b64_tr_b16 {vr(WOF+4*k+2,2)}, v{b} offset:{o+8*224}")
        if k in (9, 21): a(at(PLR + (1 if k == 9 else 2)))
    a(f"s_mov_b32 s60, {SPIN_LIMIT}\ns_mov_b64 exec, 15\nL_op:")
    for i in range(4):
        a(f"""v_mov_b32 v{PLR+(i+3)%4}, 0
        buffer_atomic_or v{PLR+(i+3)%4}, v7, s[8:11], s56 offen sc0 sc1
        s_waitcnt vmcnt(3)
        v_cmp_ne_u32 vcc, s{T}, v{PLR+i}
        s_cbranch_vccz L_of""")
    a(f"""s_sub_u32 s60, s60, 1
    s_cbranch_scc0 L_op
    s_endpgm
    L_of:
    s_mov_b64 exec, -1""")
    if "twait" not in EXP: st(a, 10)
    def oload():
        for k in range(8):
            a(f"buffer_load_dwordx4 {vr(OSB[0]+4*k,4)}, v1, s[8:11], {'s54' if k < 4 else 's55'} offen offset:{(k&3)*1024} sc1")
    oload()
    for k in range(8):
        a(f"v_lshlrev_b32 v{B+2*k}, 16, v{XR+k}\nv_and_b32 v{B+2*k+1}, 0xffff0000, v{XR+k}")
    a(f"""v_cmp_ne_u32 vcc, s{T}, v{GR+1}
    s_cbranch_vccnz L_gate
    L_gate_ok:
    v_sub_f32 v24, 1.0, v{GR}
    v_cvt_pk_bf16_f32 v24, v24, v24
    v_lshlrev_b32 v24, 16, v24""")
    def stub(): pass
    def need(bit):
        l = uid("Lnd")
        a(f"""{l}:
        ds_read_b32 v6, v29 offset:{C_O}
        s_sub_u32 s60, s60, 1
        s_cbranch_scc1 L_exit
        s_waitcnt lgkmcnt(0)
        v_readfirstlane_b32 s61, v6
        s_bitcmp1_b32 s61, {bit}
        s_cbranch_scc0 {l}""")
    def rd(g):
        for k in range(8): a(f"ds_read_b128 {vr(OSB[g&1]+4*k,4)}, v{32+g} offset:{k*1024}")
    def mm(g, lo, hi):
        for k in range(lo, hi):
            a(f"{MF} {vr(ACC,16)}, {vr(WOF+32*g+4*k,4)}, {vr(OSB[g&1]+4*k,4)}, {'0' if g == 0 and k == 0 else vr(ACC,16)}")
    a(f"""ds_read_b32 v6, v29 offset:{C_O}
    s_mov_b32 s57, 0
    s_waitcnt lgkmcnt(0)
    v_readfirstlane_b32 s61, v6
    s_bitcmp1_b32 s61, 10
    s_cbranch_scc1 L_blkU
    s_mov_b32 s57, 1
    L_next0:
    v_mov_b32 v4, 0""")
    for k in range(8):
        r = OSB[0] + 4 * k
        a(f"""s_waitcnt vmcnt({7-k})
        ds_write_b128 v2, {vr(r,4)} offset:{k*1024}
        v_max3_u32 v4, v4, v{r}, v{r+1}
        v_max3_u32 v4, v4, v{r+2}, v{r+3}""")
    a("v_cmp_eq_u32 vcc, -1, v4\ns_cbranch_vccnz L_again")
    lds_inc(a, 29, C_O, 31)
    a(f"s_mov_b32 s27, s{W}")
    for g in range(4):
        if g < 3: a(f"ds_read_b32 v6, v29 offset:{C_O}\ns_add_u32 s27, s27, 1")
        if g: a("s_waitcnt lgkmcnt(0)")
        mm(g, 0, 2 if g else 4)
        if g < 3:
            if not g: a("s_waitcnt lgkmcnt(0)")
            a(f"v_readfirstlane_b32 s61, v6\ns_bitcmp1_b32 s61, s27\ns_cbranch_scc0 L_late{g}")
            rd(g + 1)
        mm(g, 2 if g else 4, 8)
        a(f"L_back{g}:")
    a("s_cmp_lg_u32 s57, 0\ns_cbranch_scc1 L_lateU\nL_next1:")
    if "twait" not in EXP: st(a, 11)
    a("s_nop 9")
    for m in range(2):
        for e in range(4*m, 4*m+4):
            a(f"v_pk_fma_f32 {vr(B+2*e,2)}, {vr(ACC+2*e,2)}, {vr(GR,2)}, {vr(B+2*e,2)} op_sel_hi:[1,0,1]")
        for e in range(4*m, 4*m+4): a(f"v_cvt_pk_bf16_f32 v{40+e}, v{B+2*e}, v{B+2*e+1}")
        if m == 0:
            a(f"buffer_store_dwordx4 v[40:43], v{VXO}, s[20:23], s59 offen{OUTAUX}")
            stub()
        else:
            a(f"""s_mov_b32 exec_hi, 0
            buffer_store_dwordx4 v[44:47], v{VXO}, s[20:23], s59 offen offset:32{OUTAUX}
            s_mov_b64 exec, 0xffffffff
            s_not_b64 exec, exec
            buffer_store_dwordx2 v[44:45], v{VXO}, s[20:23], s59 offen offset:32{OUTAUX}""")
    st_end(a)
    diag_end(a)
    a("s_endpgm")
    for g in range(3):
        a(f"L_late{g}:")
        mm(g, 2 if g else 4, 8)
        need("s27"); rd(g + 1)
        a(f"s_branch L_back{g}")
    a("L_again:\ns_sub_u32 s60, s60, 1\ns_cbranch_scc1 L_exit\ns_waitcnt lgkmcnt(0)")
    oload()
    a("s_branch L_next0")
    a("L_lateU:")
    need(10)
    a(f"""L_blkU:
    ds_read_b32 v6, v30
    s_waitcnt lgkmcnt(0)
    v_cmp_le_i32 vcc, 0, v6
    s_cbranch_vccz L_noupd
    s_mov_b64 exec, vcc
    v_mul_u32_u24 v6, 448, v6
    v_add_u32 v28, v28, v6""")
    for k in range(4): a(f"ds_read_b128 {vr(U+4*k,4)}, v28 offset:{64*(k>>1)+16*(k&1)}")
    a("s_waitcnt lgkmcnt(0)")
    for k in range(8):
        a(f"""v_pk_add_f32 {vr(B+2*k,2)}, {vr(B+2*k,2)}, {vr(U+2*k,2)}
        v_cvt_pk_bf16_f32 v{B+2*k}, v{B+2*k}, v{B+2*k+1}
        v_and_b32 v{B+2*k+1}, 0xffff0000, v{B+2*k}
        v_lshlrev_b32 v{B+2*k}, 16, v{B+2*k}""")
    a("s_mov_b64 exec, -1\nL_noupd:")
    stub()
    for k in range(8): a(f"v_pk_mul_f32 {vr(B+2*k,2)}, {vr(B+2*k,2)}, v[24:25] op_sel_hi:[1,0]")
    a("s_cmp_lg_u32 s57, 0\ns_cbranch_scc1 L_next1\ns_branch L_next0")
    a("L_bad:\ns_cmp_eq_u32 s57, 0\ns_cbranch_scc1 L_slow")
    for k in range(8): a(f"v_min_u32 v{Q+k}, -2, v{Q+k}")
    a("s_branch L_good")
    a.label("L_wait_ffn")
    spin_lds(a, VC, C_F, 4, 7)
    a("s_branch L_ffn_free")
    a.label("L_nextwait")
    spin_lds(a, VF, C_R + 4, 1, 7)
    a("s_sub_u32 s56, s61, 1\ns_branch L_nextok")
    a(f"""L_gate:
    s_mov_b32 s26, {WS_G}
    s_mov_b32 s60, {SPIN_LIMIT}
    L_gate1:
    buffer_load_dwordx2 {vr(GR,2)}, v{VGO}, s[8:11], s26 offen sc1
    s_waitcnt vmcnt(0)
    v_cmp_ne_u32 vcc, s{T}, v{GR+1}
    s_cbranch_vccz L_gate_ok
    s_sub_u32 s60, s60, 1
    s_cbranch_scc0 L_gate1
    s_endpgm""")
    a.label("L_slow")
    a(f"""s_mov_b32 s57, 1
    s_mov_b32 s55, {KVB}
    s_mov_b32 s54, 0
    s_mov_b32 exec_lo, 0
    v_mov_b32 v{QO+6}, 0
    v_mov_b32 v{QO+7}, 0
    s_mov_b32 exec_lo, -1
    v_mov_b32 v4, 0xff800000
    L_slow1:
    {ldK(0, "s54")[0]}
    {ldK(0, "s54")[1]}
    s_waitcnt vmcnt(0)
    {MF} {vr(S,16)}, {vr(KV,4)}, {vr(QO,4)}, 0
    {MF} {vr(S,16)}, {vr(KV+4,4)}, {vr(QO+4,4)}, {vr(S,16)}""")
    for x in max16_list(4, S, init=True): a(x)
    a(f"""s_add_u32 s54, s54, {TS}
    s_cmp_lt_u32 s54, s55
    s_cbranch_scc1 L_slow1
    v_mov_b32 v5, v4
    v_permlane32_swap_b32 v4, v5
    v_max_f32 v4, v4, v5""")
    split_neg_max(a, 4, 5, 6, QO + 6, QO + 7)
    for i in range(16): a(f"v_mov_b32 v{OO+i}, 0")
    a(f"""s_mov_b32 s54, 0
    L_slow2:
    {ldK(0, "s54")[0]}
    {ldK(0, "s54")[1]}
    {ldV(0, "s54")[0]}
    {ldV(0, "s54")[1]}
    s_waitcnt vmcnt(0)
    {MF} {vr(S,16)}, {vr(KV,4)}, {vr(QO,4)}, 0
    {MF} {vr(S,16)}, {vr(KV+4,4)}, {vr(QO+4,4)}, {vr(S,16)}""")
    for i in range(16): a(f"v_exp_f32 v{S+i}, v{S+i}")
    for i in range(8): a(f"v_cvt_pk_bf16_f32 v{P+i}, v{S+2*i}, v{S+2*i+1}")
    a(f"""{MF} {vr(OO,16)}, {vr(KV+8,4)}, {vr(P,4)}, {vr(OO,16)}
    {MF} {vr(OO,16)}, {vr(KV+12,4)}, {vr(P+4,4)}, {vr(OO,16)}
    s_nop 7
    s_nop 7
    s_add_u32 s54, s54, {TS}
    s_cmp_lt_u32 s54, s55
    s_cbranch_scc1 L_slow2
    s_branch L_fin""")

GI = CB; DI = QX; HB = 101376
FT, KS = 66, 67
def service_wave(a):
    a.label("L_service")
    a(f"""v_mov_b32 v14, {CNT}
    v_mov_b32 v15, 1
    v_mov_b32 v9, 0""")
    srd(a, 8, 36, (1 << 28) - WSBASE)
    a("s_waitcnt lgkmcnt(0)")
    tag(a)
    a(f"v_mov_b32 v4, s{T}\nds_write_b32 v14, v4 offset:{C_T}\ns_waitcnt vmcnt(0)")
    lds_inc(a, 14, C_Q1, 15)
    a(f"""v_and_b32 v32, 31, v3
    v_lshrrev_b32 v33, 5, v3
    v_lshlrev_b32 v219, 3, v1
    v_lshrrev_b32 v220, 2, v1
    v_and_b32 v4, 7, v3
    v_lshlrev_b32 v217, 3, v4
    s_lshr_b32 s58, s{H}, 2
    s_lshl2_add_u32 s58, s{J}, s58
    v_lshlrev_b32 v211, 11, v33
    v_lshl_add_u32 v211, v32, 4, v211
    v_and_b32 v4, 24, v3
    v_lshl_add_u32 v4, v33, 2, v4
    v_lshl_add_u32 v4, v217, 4, v4
    s_lshl_b32 s26, s{L}, 5
    s_add_u32 s26, s26, {HB}
    v_add_u32 v214, s26, v4
    s_mul_i32 s{FT}, s2, 9363
    s_lshr_b32 s{FT}, s{FT}, 16
    s_mul_i32 s26, s{FT}, 7
    s_sub_u32 s{KS}, s2, s26
    s_cmp_ge_u32 s{L}, 2
    s_cbranch_scc1 L_svcB""")
    def sel_load(lbl):
        a(f"""s_mov_b32 s26, {WS_SEL}
        s_mov_b32 s60, {SPIN_LIMIT}
        {lbl}:
        buffer_load_dwordx2 v[20:21], v217, s[8:11], s26 offen sc1
        s_waitcnt vmcnt(0)
        v_cmp_ne_u32 vcc, s{T}, v21
        s_cbranch_vccz {lbl}_ok
        s_sleep 4
        s_sub_u32 s60, s60, 1
        s_cbranch_scc0 {lbl}
        s_endpgm
        {lbl}_ok:""")
    a(f"""s_lshl_b32 s27, s{J}, 6
    s_add_u32 s27, s27, {WS_R}
    s_cmp_eq_u32 s{RL}, 14
    s_cbranch_scc1 L_rank
    s_cmp_lg_u32 s2, {SELECTOR}
    s_cbranch_scc1 L_svcA
    s_lshl_b32 s28, s{L}, 8
    s_add_u32 s28, s28, {KEYS}
    v_add_u32 v7, s28, v220
    v_lshl_add_u32 v6, v33, 7, s28
    s_lshl_b32 s28, s{L}, 6
    s_add_u32 s28, s28, {CAND}
    v_lshl_add_u32 v10, v33, 5, s28
    s_lshl_b32 s26, s{L}, 9
    s_add_u32 s26, s26, {WS_R}
    s_mov_b32 s27, {WS_SEL}
    v_lshlrev_b32 v4, 3, v3
    v_mov_b32 v5, 2
    s_mov_b32 s60, {SPIN_LIMIT}
    L_keys:
    v_mov_b32 v20, 0
    v_mov_b32 v21, 0
    buffer_atomic_or_x2 v[20:21], v4, s[8:11], s26 offen sc0 sc1
    s_sub_u32 s60, s60, 1
    s_cbranch_scc1 L_exit
    s_waitcnt vmcnt(0)
    v_cmp_ne_u32 vcc, s{T}, v21
    s_cbranch_vccnz L_keys
    ds_write_b32 v7, v20""")
    for k in range(8): a(f"ds_read_b128 {vr(40+4*k,4)}, v6 offset:{16*k}")
    rank_count(a, 20, 40, 32, 22, 23)
    a(f"""v_cmp_gt_u32 vcc, 8, v22
    v_lshl_add_u32 v22, v22, 2, v10
    s_mov_b64 exec, vcc
    ds_write_b32 v22, v20""")
    lds_inc(a, 14, C_K, 5)
    a(f"""L_rank:
    s_cmp_lg_u32 s{L}, 0
    s_cbranch_scc1 L_svcA
    v_mov_b32 v6, {CAND}
    v_lshl_add_u32 v7, v32, 2, v6
    v_lshl_add_u32 v6, v33, 6, v6
    v_mov_b32 v21, s{T}""")
    spin_lds(a, 14, C_K, 4, 8)
    st(a, 10)
    if STAMP: a("s_waitcnt lgkmcnt(0)")
    a("ds_read_b32 v20, v7")
    for k in range(4): a(f"ds_read_b128 {vr(40+4*k,4)}, v6 offset:{16*k}")
    rank_count(a, 20, 40, 16, 22, 23)
    a(f"""v_mov_b32 v23, v22
    v_permlane32_swap_b32 v22, v23
    v_add_u32 v22, v22, v23
    v_cmp_gt_u32 vcc, 8, v22
    v_lshlrev_b32 v22, 3, v22
    s_mov_b32 exec_lo, vcc_lo
    s_mov_b32 exec_hi, 0
    buffer_atomic_swap_x2 v[20:21], v22, s[8:11], s27 offen sc1
    s_mov_b64 exec, -1""")
    st(a, 11)
    a.label("L_svcA")
    for r in (204, 205, 206, 215, 216): a(f"v_mov_b32 v{r}, 0")
    a(f"""v_mov_b32 v28, -1
    v_mov_b32 v29, -1
    v_mov_b32 v30, -1
    v_mov_b32 v31, -1
    s_lshl_b32 s59, s{J}, 6
    s_add_u32 s59, s59, s{H}
    s_lshl1_add_u32 s59, s59, s{L}
    s_lshl_b32 s59, s59, 10
    s_add_u32 s59, s59, {WS_O}
    s_cmp_ge_u32 s2, 196
    s_cbranch_scc1 L_nofn
    v_lshrrev_b32 v4, 3, v3
    v_and_b32 v5, 2, v4
    v_lshlrev_b32 v5, 1, v5
    v_and_b32 v6, 7, v3
    v_xor_b32 v5, v5, v6
    v_mul_u32_u24 v6, 3584, v4
    v_lshl_add_u32 v34, v5, 4, v6
    v_add_u32 v35, {8*3584-1024}, v34
    v_add_u32 v36, {2*(8*3584-1024)}, v34
    v_add_u32 v37, {3*(8*3584-1024)}, v34
    v_mul_u32_u24 v6, 896, v4
    v_lshl_add_u32 v200, v5, 4, v6
    v_add_u32 v201, {8*896-1024}, v200
    v_add_u32 v202, {2*(8*896-1024)}, v200
    v_add_u32 v203, {3*(8*896-1024)}, v200
    s_lshl_b32 s54, s{L}, 13
    s_add_u32 s54, s54, {GI}
    v_and_b32 v4, 3, v3
    v_lshrrev_b32 v6, 4, v3
    v_bfe_u32 v7, v3, 2, 2
    v_lshl_add_u32 v8, v6, 3, v7
    v_lshlrev_b32 v8, 7, v8
    v_lshrrev_b32 v7, 1, v7
    v_lshl_add_u32 v8, v7, 6, v8
    v_lshl_add_u32 v8, v4, 3, v8
    v_add_u32 v38, s54, v8
    v_xor_b32 v39, 64, v38
    v_lshlrev_b32 v213, 4, v6
    v_lshlrev_b32 v212, 3, v213
    v_lshl_add_u32 v212, v217, 1, v212""")
    srd(a, 16, 42, 448 * 3584)
    a(f"""s_cmp_eq_u32 s{L}, 1
    s_cselect_b64 s[16:17], s[44:45], s[42:43]
    s_mul_i32 s52, s{KS}, {64*3584}
    s_lshl_b32 s28, s{FT}, 7
    s_add_u32 s52, s52, s28
    s_movk_i32 s29, 896""")
    if GA >= 0: spin_lds(a, 14, C_A, 256, 8, sleep=4)
    else: spin_lds(a, 14, C_L, 8 if "deferA" in EXP else 4, 8, sleep=4)
    st(a, 3)
    NR = 2 if "fine" in EXP else 4
    XS_ = 40; FW = 56; AC = 104
    if "nogu" in EXP: a("s_mov_b32 s18, 0")
    a("s_mov_b32 m0, s54\ns_nop 0")
    for k in range(8):
        if k == 4: a(f"s_add_u32 s52, s52, {32*3584}\ns_add_u32 m0, s54, 4096")
        if k == 8 - NR: sel_load("L_sel1")
        elif k and k % NR == 0: a("s_waitcnt vmcnt(0)")
        a(f"buffer_load_dwordx4 v{34+(k&3)}, s[16:19], s52 offen offset:{1024*(k&3)} lds")
    a(f"""v_not_b32 v4, v20
    v_and_b32 v4, 0x7ff, v4
    v_mad_u32_u24 v4, v4, s29, v213
    s_lshl_b32 s26, s{KS}, 7
    s_mov_b32 exec_lo, 0x00ff00ff
    s_mov_b32 exec_hi, 0x00ff00ff
    buffer_load_dwordx4 {vr(XS_,4)}, v4, s[12:15], s26 offen
    buffer_load_dwordx4 {vr(XS_+4,4)}, v4, s[12:15], s26 offen offset:64
    s_mov_b64 exec, -1
    s_waitcnt vmcnt(2)""")
    for k in range(2):
        for n in range(4):
            o = k * 4096 + (n & 1) * 32
            a(f"ds_read_b64_tr_b16 {vr(FW+16*k+4*n,2)}, v{38+(n>>1)} offset:{o}\nds_read_b64_tr_b16 {vr(FW+16*k+4*n+2,2)}, v{38+(n>>1)} offset:{o+512}")
    lds_inc(a, 14, C_F, 15)
    a(f"""s_mov_b64 s[16:17], s[46:47]
    s_lshl1_add_u32 s28, s{FT}, s{L}
    s_mul_i32 s28, s28, {32*896}
    s_add_u32 s28, s28, s26
    s_lshl_b32 s29, s{L}, 12
    s_add_u32 m0, s29, {DI}
    s_lshl1_add_u32 s26, s2, s{L}
    s_lshl_b32 s26, s26, 11
    s_add_u32 s26, s26, {WS_GP}
    s_waitcnt vmcnt(0) lgkmcnt(0)""")
    st(a, 4)
    for k in range(2):
        for n in range(4):
            a(f"v_mfma_f32_16x16x32_bf16 {vr(AC+4*n,4)}, {vr(FW+16*k+4*n,4)}, {vr(XS_+4*k,4)}, {'0' if k==0 else vr(AC+4*n,4)}")
    a("s_mov_b32 exec_lo, 0x00ff00ff\ns_mov_b32 exec_hi, 0x00ff00ff")
    for n in range(4):
        a(f"buffer_store_dwordx4 {vr(AC+4*n,4)}, v212, s[8:11], s26 offen offset:{512*n} sc1")
    a("s_mov_b64 exec, -1")
    if "nowd" in EXP: a("s_mov_b32 s18, 0")
    for k in range(4): a(f"buffer_load_dwordx4 v{200+k}, s[16:19], s28 offen offset:{1024*k} lds")
    a(f"""s_lshl1_add_u32 s26, s{KS}, s{L}
    s_lshl_b32 s26, s26, 2
    s_mul_i32 s28, s{FT}, {7*128}
    s_add_u32 s26, s26, s28
    s_add_u32 s26, s26, {WS_F1}
    s_waitcnt vmcnt(4)""")
    signal(a, 5, 219, "s26", "0x7f")
    st(a, 5)
    a(f"s_cmp_lg_u32 s{L}, 0\ns_cbranch_scc1 L_st2w\ns_lshl_b32 s26, s2, 7\ns_add_u32 s26, s26, {WS_F1}")
    poll_atomic(a, 5, 220, "s26", "0x3fff", 2)
    lds_inc(a, 14, C_L, 15)
    a("L_st2w:")
    spin_lds(a, 14, C_L, 1, 8, sleep=3)
    st(a, 6)
    GP = 40; DW = 120
    a(f"s_mul_i32 s26, s{FT}, {7*4096}\ns_lshl_b32 s28, s{L}, 9\ns_add_u32 s26, s26, s28\ns_add_u32 s26, s26, {WS_GP}")
    for k in range(7):
        a(f"buffer_load_dwordx4 {vr(GP+4*k,4)}, v211, s[8:11], s26 offen sc1")
        if k < 6: a("s_add_u32 s26, s26, 4096")
    a(f"s_mov_b32 s28, {NLOG2E:#x}\ns_waitcnt vmcnt(0)")
    for k in range(1, 7):
        if "nopk" in EXP:
            for e in range(4): a(f"v_add_f32 v{GP+e}, v{GP+e}, v{GP+4*k+e}")
        else:
            for e in range(2): a(f"v_pk_add_f32 {vr(GP+2*e,2)}, {vr(GP+2*e,2)}, {vr(GP+4*k+2*e,2)}")
    a(f"""v_permlane32_swap_b32 v{GP}, v{GP+2}
    v_permlane32_swap_b32 v{GP+1}, v{GP+3}
    v_mul_f32 v22, s28, v{GP}
    v_mul_f32 v23, s28, v{GP+1}
    v_exp_f32 v22, v22
    v_exp_f32 v23, v23
    v_add_f32 v22, 1.0, v22
    v_add_f32 v23, 1.0, v23
    v_rcp_f32 v22, v22
    v_rcp_f32 v23, v23
    v_pk_mul_f32 v[22:23], v[22:23], {vr(GP,2)}
    v_pk_mul_f32 v[22:23], v[22:23], {vr(GP+2,2)}
    v_cvt_pk_bf16_f32 v22, v22, v23
    ds_write_b32 v214, v22""")
    lds_inc(a, 14, C_S, 15)
    a(f"s_cmp_ge_u32 s{L}, 2\ns_cbranch_scc1 L_st3\ns_branch L_clr")
    a.label("L_nofn")
    lds_inc(a, 14, C_F, 15)
    spin_lds(a, 14, C_A, 512, 8, sleep=8)
    srd(a, 16, 38, 448 * 896)
    a(f"""s_sub_u32 s26, s2, 196
    s_lshl1_add_u32 s26, s26, s{L}
    s_mul_i32 s26, s26, {27*128}
    s_min_u32 s26, s26, {(3136-27)*128}
    s_mov_b64 exec, 0x7ffffff
    buffer_load_dword v6, v219, s[16:19], s26 offen
    s_mov_b64 exec, -1""")
    sel_load("L_sel2")
    a(f"""s_lshl2_add_u32 s26, s2, s{L}
    s_cmp_lg_u32 s26, {254*4}
    s_cbranch_scc1 L_clr""")
    a(f"s_mov_b32 s60, {SPIN_LIMIT}\nL_ep:")
    for k in range(4):
        a(f"s_mov_b32 s26, {WS_FL+8192*k}\nbuffer_load_dword v{24+k}, v219, s[8:11], s26 offen sc1")
    a(f"""s_sub_u32 s60, s60, 1
    s_cbranch_scc1 L_exit
    s_waitcnt vmcnt(0)
    v_xor_b32 v24, s{T}, v24
    v_bitop3_b32 v24, v24, v25, s{T} bitop3:0xf6
    v_bitop3_b32 v24, v24, v26, s{T} bitop3:0xf6
    v_bitop3_b32 v24, v24, v27, s{T} bitop3:0xf6
    v_cmp_ne_u32 vcc, 0, v24
    s_cbranch_vccnz L_ep
    s_mov_b32 s26, {WS_EP}""")
    flag_store(a, 5, 9, "s26")
    a("L_clr:")
    for k in range(4):
        a(f"buffer_store_dwordx4 v[28:31], v1, s[8:11], s59 offen sc1\ns_add_u32 s59, s59, {16*2048}")
        if k & 1: a("s_waitcnt vmcnt(0)")
    lds_inc(a, 14, C_F, 15)
    st(a, 7)
    Y = 40
    a(f"""L_updA:
    s_and_b32 s53, s{H}, 3
    s_mul_i32 s53, s53, 224
    s_lshl_b32 s57, s{L}, 2
    s_lshr_b32 s26, s53, 6
    s_lshl_b32 s26, s26, 7
    s_add_u32 s62, s26, {WS_YFL}
    L_upd:
    v_readlane_b32 s52, v20, s57
    s_andn2_b32 s54, 0x7ff, s52
    s_lshr_b32 s26, s54, 5
    s_cmp_lg_u32 s26, s58
    s_cbranch_scc1 L_updn
    s_mov_b32 s60, {SPIN_LIMIT}
    s_mov_b32 exec_lo, 0x0fffffff
    s_mov_b32 exec_hi, 0x0fffffff
    L_yfl:
    v_mov_b32 v24, 0
    v_mov_b32 v25, 0
    buffer_atomic_or v24, v220, s[8:11], s62 offen sc0 sc1
    buffer_atomic_or v25, v220, s[8:11], s62 offen offset:256 sc0 sc1
    s_waitcnt vmcnt(0)
    v_xor_b32 v24, s{T}, v24
    v_bitop3_b32 v24, v24, v25, s{T} bitop3:0xf6
    v_cmp_ne_u32 vcc, 0, v24
    s_cbranch_vccz L_yok
    s_sub_u32 s60, s60, 1
    s_cbranch_scc0 L_yfl
    s_endpgm
    L_yok:
    v_mul_u32_u24 v4, {14*14336}, v33
    v_lshl_add_u32 v4, v32, 4, v4
    s_mul_i32 s26, s57, 1792
    s_lshl1_add_u32 s26, s53, s26
    s_add_u32 s26, s26, {WS_YP}""")
    for i in range(14):
        a(f"buffer_load_dwordx4 {vr(Y+4*i,4)}, v4, s[8:11], s26 offen sc1\ns_add_u32 s26, s26, 14336")
    a(f"""s_mov_b64 exec, -1
    s_lshr_b32 s26, s52, 11
    s_not_b32 s55, s26
    s_and_b32 s29, s26, 0x7fff
    s_bitcmp1_b32 s26, 15
    s_cselect_b32 s26, s29, s55
    s_lshl_b32 s26, s26, 16
    v_mov_b32 v6, {NLOG2E:#x}
    v_mul_f32 v6, s26, v6
    v_exp_f32 v6, v6
    v_add_f32 v6, 1.0, v6
    v_rcp_f32 v6, v6
    v_cvt_pk_bf16_f32 v6, v6, v6
    v_lshlrev_b32 v6, 16, v6
    s_mul_i32 s26, s57, 448
    s_add_u32 s26, s26, {UPD}
    v_lshl_add_u32 v7, v32, 4, s26
    s_waitcnt vmcnt(0)""")
    for i in range(1, 14):
        a(f"v_pk_add_f32 {vr(Y,2)}, {vr(Y,2)}, {vr(Y+4*i,2)}\nv_pk_add_f32 {vr(Y+2,2)}, {vr(Y+2,2)}, {vr(Y+4*i+2,2)}")
    for k in range(4): a(f"v_mov_b32 v{Y+4+k}, v{Y+k}")
    for k in range(4): a(f"v_permlane32_swap_b32 v{Y+k}, v{Y+4+k}")
    for k in range(4): a(f"v_add_f32 v{Y+k}, v{Y+k}, v{Y+4+k}")
    for k in range(0, 4, 2):
        a(f"""v_cvt_pk_bf16_f32 v{Y+k}, v{Y+k}, v{Y+k+1}
        v_and_b32 v{Y+k+1}, 0xffff0000, v{Y+k}
        v_lshlrev_b32 v{Y+k}, 16, v{Y+k}
        v_mul_f32 v{Y+k}, v{Y+k}, v6
        v_mul_f32 v{Y+k+1}, v{Y+k+1}, v6
        v_cvt_pk_bf16_f32 v{Y+k}, v{Y+k}, v{Y+k+1}
        v_and_b32 v{Y+k+1}, 0xffff0000, v{Y+k}
        v_lshlrev_b32 v{Y+k}, 16, v{Y+k}""")
    a(f"""s_and_b32 s54, s54, 31
    v_mov_b32 v5, s57
    s_lshl_b32 s26, s54, 2
    s_add_u32 s26, s26, {UPDI}
    v_mov_b32 v4, s26
    s_mov_b64 exec, 0x0fffffff
    ds_write_b128 v7, {vr(Y,4)}
    s_mov_b64 exec, 1
    ds_write_b32 v4, v5
    s_mov_b64 exec, -1
    L_updn:
    s_add_u32 s57, s57, 1
    s_and_b32 s26, s57, 3
    s_cbranch_scc1 L_upd
    v_mov_b32 v6, 512""")
    lds_inc(a, 14, C_O, 6)
    st(a, 9)
    a("s_branch L_ofetch")
    a.label("L_svcB")
    CLR = "buffer_store_dwordx4 v[24:27], v1, s[8:11], s59 offen sc1"
    if "noclr" in EXP: CLR = ""
    if "otouch" in EXP: CLR = "s_mov_b32 exec_lo, 0x0f0f0f0f\ns_mov_b32 exec_hi, 0x0f0f0f0f\nbuffer_store_dwordx4 v[24:27], v1, s[8:11], s59 offen sc1\ns_mov_b64 exec, -1"
    OUTT = ""
    if "outtouch" in EXP:
        OUTT = f"""s_cmp_lg_u32 s55, {42*1024}
        s_cbranch_scc1 L_noot
        s_mov_b32 s20, s50
        s_mov_b32 s21, s51
        s_mov_b32 s22, {2048*896}
        s_mov_b32 s23, 0x20000
        s_lshl_b32 s26, s58, 5
        v_add_u32 v4, s26, v32
        v_mul_u32_u24 v4, 896, v4
        s_add_u32 s26, s53, 127
        s_and_b32 s26, s26, 0xffffff80
        v_lshl_add_u32 v4, v33, 7, v4
        s_cmp_eq_u32 s53, 672
        s_cselect_b32 exec_hi, 0, -1
        buffer_store_dword v9, v4, s[20:23], s26 offen sc1
        s_mov_b64 exec, -1
        L_noot:"""
    WOPF = "s_mov_b32 exec_hi, 0x1ffff\nbuffer_load_dword v6, v219, s[16:19], s28 offen\ns_mov_b64 exec, -1" if "wopfS" not in EXP and "nowopf" not in EXP else ""
    for e in range(7):
        a(f"""v_add_u32 v4, {64*e}, v3
        v_mul_u32_u24 v5, 4682, v4
        v_lshrrev_b32 v5, 16, v5
        v_mul_u32_u24 v5, {896-224}, v5
        v_lshl_add_u32 v{200+e}, v4, 4, v5""")
    a(f"""v_mov_b32 v16, 0
    v_mov_b32 v17, 0
    v_mov_b32 v18, 0
    v_mov_b32 v19, 0
    v_add_u32 v209, {448*224}, v1
    v_bfe_u32 v7, v3, 2, 2
    v_lshl_add_u32 v5, v33, 3, v7
    v_lshlrev_b32 v5, 7, v5
    v_bfe_u32 v4, v3, 4, 1
    v_lshl_add_u32 v5, v4, 5, v5
    v_and_b32 v4, 3, v3
    v_lshl_add_u32 v5, v4, 3, v5
    v_lshrrev_b32 v7, 1, v7
    v_xor_b32 v7, s{L}, v7
    v_and_b32 v7, 1, v7
    v_lshl_add_u32 v5, v7, 6, v5
    v_add_u32 v210, {DI}, v5
    v_lshlrev_b32 v4, 4, v217
    v_lshl_add_u32 v4, v33, 4, v4
    v_add_u32 v218, {HB}, v4
    v_mul_u32_u24 v215, {4*1792}, v33
    v_lshl_add_u32 v215, v32, 2, v215
    v_add_u32 v216, {2*1792}, v215
    s_cmp_eq_u32 s{L}, 2
    s_cbranch_scc1 L_svcB2
    v_lshrrev_b32 v4, 4, v3
    v_and_b32 v5, 15, v3
    v_lshlrev_b32 v5, 2, v5
    v_lshl_add_u32 v221, v4, 9, v5
    v_lshl_add_u32 v222, v4, 5, v14
    v_and_b32 v223, 48, v3
    v_and_b32 v5, 15, v3
    v_add_u32 v6, v5, v4
    v_mul_u32_u24 v224, {4*TS}, v6
    v_add_u32 v224, 1, v224
    v_bfm_b32 v225, v5, 0
    s_mul_i32 s26, s{H}, 28
    s_add_u32 s28, s26, 27
    s_xor_b32 s26, s26, s28
    s_mov_b32 s62, 0x55555555
    s_cmp_ge_u32 s26, 64
    s_cselect_b32 s62, -1, s62
    s_mov_b32 s63, s62
    s_lshr_b32 s28, s{J}, 2
    s_lshl4_add_u32 s26, s{H}, s28
    s_lshl_b32 s26, s26, 7
    s_add_u32 s26, s26, {WS_MB}""")
    spin_lds(a, 14, C_D, PCD, 8, sleep=1)
    at = lambda r: f"v_mov_b32 v{r}, 0\nbuffer_atomic_or v{r}, v221, s[8:11], s26 offen sc0 sc1"
    a(f"""s_mov_b32 s60, {SPIN_LIMIT}
    s_mov_b32 s52, 0x11111111
    s_mov_b32 s53, 0x11111111
    s_mov_b64 s[56:57], s[52:53]
    s_mov_b64 exec, s[62:63]""")
    for i in range(PD - 1): a(at(28 + i) + f"\ns_sleep {PG}")
    a("L_kv:")
    for i in range(PD):
        a(at(28 + (i + PD - 1) % PD))
        a(f"""s_waitcnt vmcnt({PD-1})
        v_cmp_ne_u32 vcc, s{T}, v{28+i}
        s_lshr_b64 s[28:29], vcc, 1
        s_or_b64 s[28:29], s[28:29], vcc
        s_andn2_b64 s[54:55], s[56:57], s[28:29]
        s_cbranch_scc0 L_kvs{i}
        s_ff1_i32_b64 s54, s[54:55]
        s_lshl_b64 exec, 1, s54
        ds_write_b32 v14, v224 offset:{C_M}
        s_mov_b64 exec, s[62:63]
        s_mov_b64 s[56:57], 0
        L_kvs{i}:
        s_lshr_b64 s[54:55], s[28:29], 2
        s_or_b64 s[28:29], s[28:29], s[54:55]
        s_andn2_b64 s[28:29], s[52:53], s[28:29]
        s_cbranch_scc0 L_kvn{i}
        s_andn2_b64 s[52:53], s[52:53], s[28:29]
        v_lshrrev_b64 v[4:5], v223, s[28:29]
        v_and_b32 v5, v225, v4
        v_bcnt_u32_b32 v5, v5, 0
        v_lshl_add_u32 v5, v5, 2, v222
        s_mov_b64 exec, s[28:29]
        ds_write_b32 v5, v224 offset:{C_R}
        s_mov_b64 exec, s[62:63]
        v_and_b32 v4, 0xffff, v4
        v_bcnt_u32_b32 v4, v4, 0
        v_lshl_add_u32 v222, v4, 2, v222
        s_cmp_eq_u64 s[52:53], 0
        s_cbranch_scc1 L_kvdone
        L_kvn{i}:""")
    a(f"""s_sub_u32 s60, s60, 1
    s_cbranch_scc0 L_kv
    s_endpgm
    L_kvdone:
    s_mov_b64 exec, -1
    L_svcB2:""")
    srd(a, 16, 38, 448 * 896)
    a(f"""s_and_b32 s53, s{H}, 3
    s_mul_i32 s53, s53, 224
    s_and_b32 s27, s{L}, 1
    s_mul_i32 s55, s27, {7*1024}
    s_mul_i32 s57, s27, {32*896}
    s_add_u32 s57, s57, s53""")
    spin_lds(a, 14, C_A, 256, 8, sleep=4)
    st(a, 3)
    a(f"""ds_write_b128 v209, v[16:19]
    s_cmp_lg_u32 s{L}, 2
    s_cbranch_scc1 L_nofl
    s_lshl_b32 s26, s2, 7
    s_add_u32 s26, s26, {WS_FL}""")
    flag_store(a, 5, 9, "s26")
    a("L_nofl:\ns_cmp_lt_u32 s2, 196\ns_cbranch_scc1 L_st2w\ns_branch L_wo1")
    a("L_st3:")
    spin_lds(a, 14, C_S, 4, 8, sleep=1)
    for k in range(4):
        a(f"ds_read_b64_tr_b16 {vr(DW+4*k,2)}, v210 offset:{k*2048}\nds_read_b64_tr_b16 {vr(DW+4*k+2,2)}, v210 offset:{k*2048+512}")
    for k in range(4):
        a(f"ds_read_b128 {vr(GP+4*k,4)}, v218 offset:{32*k}\ns_waitcnt lgkmcnt(0)\n{MF} {vr(AC,16)}, {vr(GP+4*k,4)}, {vr(DW+4*k,4)}, {'0' if k==0 else vr(AC,16)}")
    a(f"""s_mul_i32 s26, s{FT}, 14336
    s_lshl1_add_u32 s28, s{KS}, s27
    s_lshl_b32 s29, s28, 7
    s_add_u32 s26, s26, s29
    s_add_u32 s26, s26, {WS_YP}
    s_lshl2_add_u32 s28, s{FT}, s29
    s_add_u32 s28, s28, {WS_YFL}
    buffer_store_dword v{AC}, v215, s[8:11], s26 offen sc1
    buffer_store_dword v{AC+1}, v215, s[8:11], s26 offen offset:1792 sc1
    buffer_store_dword v{AC+2}, v216, s[8:11], s26 offen sc1
    buffer_store_dword v{AC+3}, v216, s[8:11], s26 offen offset:1792 sc1
    s_waitcnt vmcnt(0)""")
    signal(a, 5, 9, "s28", 1)
    st(a, 7)
    a("L_wo1:")
    def wo_loop(lbl, depth, lim):
        a(f"{lbl}:")
        for e in range(7):
            a(f"""s_add_u32 m0, s55, {e*1024}
            s_waitcnt vmcnt({depth})
            buffer_load_dwordx4 v{200+e}, s[16:19], s57 offen lds""")
        a(f"""s_add_u32 s55, s55, {14*1024}
        s_add_u32 s57, s57, {64*896}
        s_cmp_lt_u32 s55, {lim*1024}
        s_cbranch_scc1 {lbl}""")
    if NEARLYWO: wo_loop("L_wo0", 1, 14 * NEARLYWO)
    spin_lds(a, 14, C_Z, 64 * ZN, 8, sleep=4)
    st(a, 4)
    wo_loop("L_wo", 14, 98)
    a("s_waitcnt vmcnt(0)")
    lds_inc(a, 14, C_W, 15)
    st(a, 8)
    a.label("L_ofetch")
    a("s_waitcnt vmcnt(0) lgkmcnt(0)")
    st_end(a)
    a("L_exit:\nL_code_end:\ns_endpgm")

def main(out):
    hdr = open("cdna_kernels/" + NAME + ".s.ref").read().split("; Override")[0]
    rep = []
    a = Asm()
    prologue_and_loader(a); main_wave(a); service_wave(a)
    t = hdr
    t += f"; @launch grid=(256,1,1) block=(512,1,1) lds={LDS_BYTES}\n"
    t += '.amdgcn_target "amdgcn-amd-amdhsa--gfx950"\n'
    t += kernel_text(NAME + "_kernel", a.l, 256, report=rep)
    open(out, "w").write(t)
    if "-v" in sys.argv: print("\n".join(rep))

if __name__ == "__main__":
    main(sys.argv[1])
```

```python
import sys, math, struct
from asmlib import *

NAME = "gated_mix__softmax_full_mha__moe_arch_mod__prompt"
STAMP = "-s" in sys.argv
EXP = set(x[2:] for x in sys.argv if x.startswith("-x"))
WS_KV = 0
BLK = 5120; TS = 14 * BLK; KVB = 64 * TS
WS_O = 0x480000
WS_R = 0x680000
WS_G = WS_R + 16384
WS_SEL = WS_R + 32768
WS_EP = WS_R + 40960
WS_FL = WS_R + 65536
WS_MB = WS_FL + 32768
WS_OFL = WS_MB + 32768
WS_YFL = WS_OFL + 32768
WS_F1 = WS_YFL + 4096
WS_YP = WS_R + (1 << 18)
WS_GP = 0x730000
WS_ST = 16 << 20
XS = 0; WT = 65536; WQ = 122880; QX = 151552; UPD = 159744
CB = 0; WO = 49152
UPDI = UPD + 3584
KEYS = UPD
RT = UPD + 1024
CAND = UPD + 512
SELECTOR = 223
CNT = 163840 - 192
C_M = 88
LDS_BYTES = 163840
C_Q1, C_Q2, C_X, C_L, C_S, C_D, C_C, C_O, C_W, C_F, C_K, C_T, C_P, C_R = 0, 4, 8, 12, 16, 20, 24, 28, 32, 36, 40, 44, 48, 64

def f32bits(x): return struct.unpack("<I", struct.pack("<f", x))[0]
QSCALE = f32bits(28 ** -0.5 * math.log2(math.e))
NLOG2E = f32bits(-math.log2(math.e))
MF = "v_mfma_f32_32x32x16_bf16"
ROLE = [0, 1, 2, 3, 14, 4, 5, 6, 7, 8, 9, 15, 10, 11, 12, 13]
ROLE_LO = sum(ROLE[i] << (4 * i) for i in range(8))
ROLE_HI = sum(ROLE[8 + i] << (4 * i) for i in range(8))
SPIN_LIMIT = 1 << 20
GA = ([int(x[2:]) for x in EXP if x.startswith("ga")] + [4])[0]
GB = ([int(x[2:]) for x in EXP if x.startswith("gb")] + [12])[0]
C_A, C_B, C_Z = 92, 120, 124
ZN = ([int(x[2:]) for x in EXP if x.startswith("zn")] + [2])[0]
ZU = ([int(x[2:]) for x in EXP if x.startswith("zu")] + [1])[0]
NEARLYWO = ([int(x[2:]) for x in EXP if x.startswith("ew")] + [0])[0]
NQ1 = ([int(x[2:]) for x in EXP if x.startswith("nq")] + [4])[0]
WSBASE = ([int(x[2:]) for x in sys.argv if x.startswith("-w")] + [0])[0] << 20
PD = 2 if "pd2" in EXP else 4
PG = 6 if "pd2" in EXP else 3
PCD = 4 if "pcd4" in EXP else (0 if "pcd0" in EXP else 1)
KVS = 4 if "kvs4" in EXP else (0 if "kvs0" in EXP else 2)
PQ2 = 4 if "pq4" in EXP else (0 if "pq0" in EXP else 1)
PF0 = 2 if "pf2" in EXP else 0
WOP = 1 if "wo1" in EXP else (3 if "wo3" in EXP else 2)
OUTAUX = " sc1" if "outsc1" in EXP else (" nt" if "outnt" in EXP else "")

T, H, J, W, RL, ROT = 30, 31, 32, 33, 34, 3
_uid = [0]
def uid(p):
    _uid[0] += 1
    return f"{p}_{_uid[0]}"

def srd(a, d, ptr, nbytes):
    a(f"s_mov_b32 s{d}, s{ptr}\ns_mov_b32 s{d+1}, s{ptr+1}\ns_mov_b32 s{d+2}, {nbytes:#x}\ns_mov_b32 s{d+3}, 0x20000")

NST = 12
DIAG = [tuple(int(y) for y in x[2:].split("-")) for x in sys.argv if x.startswith("-d")]
def st(a, i):
    if STAMP: a(f"s_{'memrealtime' if 'rt' in EXP else 'memtime'} s[{72+2*i}:{73+2*i}]")
    if DIAG and i in DIAG[0]: a(f"s_memrealtime s[{72+2*i}:{73+2*i}]\ns_waitcnt lgkmcnt(0)")
def st_begin(a):
    if STAMP: a("s_memrealtime s[68:69]\ns_memtime s[72:73]" if "rt" not in EXP else "s_memrealtime s[68:69]\ns_memrealtime s[72:73]")
    if DIAG: a("s_memrealtime s[72:73]")
ABS = [x[2:] for x in sys.argv if x.startswith("-a")]
REL = [tuple(int(y) for y in x[2:].split("-")) for x in sys.argv if x.startswith("-r")]
if ABS:
    DIAG = [(0, 0 if ABS[0] == "z" else int(ABS[0].lstrip("m")))]
if REL:
    ABS = ["r"]; DIAG = REL
def diag_start(a):
    if not ABS: return
    a(f"""s_load_dwordx2 s[98:99], s[0:1], 80
    s_waitcnt lgkmcnt(0)
    s_cmp_ge_u32 s2, 8
    s_cbranch_scc1 L_dg0
    s_cmp_lg_u32 s{W}, 0
    s_cbranch_scc1 L_dg0
    s_lshl_b32 s70, s2, 2
    v_mov_b32 v4, s70
    v_mov_b32 v6, s72
    global_store_dword v4, v6, s[98:99] sc1
    L_dg0:""")
def diag_end(a):
    if not DIAG: return
    p, q = DIAG[0]
    if ABS:
        a(f"""s_waitcnt vmcnt(0)
        s_memrealtime s[96:97]
        s_mov_b64 exec, -1
        v_mov_b32 v4, 0
        global_load_dwordx4 v[8:11], v4, s[98:99] sc1
        global_load_dwordx4 v[12:15], v4, s[98:99] offset:16 sc1
        s_waitcnt vmcnt(0) lgkmcnt(0)
        v_min3_u32 v8, v8, v9, v10
        v_min3_u32 v8, v8, v11, v12
        v_min3_u32 v8, v8, v13, v14
        v_min_u32 v8, v8, v15
        s_nop 1
        v_readfirstlane_b32 s69, v8
        s_sub_u32 s70, s{72+2*q}, s69""")
        if ABS[0] == "z": a("s_mov_b32 s70, 0")
        if REL: a(f"s_sub_u32 s70, s{72+2*q}, s{72+2*p}\ns_lshl_b32 s70, s70, {0 if 'k1' in EXP else 2}")
        if "onlynw" in EXP: a("s_cmp_ge_u32 s2, 196\ns_cselect_b32 s70, s70, 0")
        if "only23" in EXP: a(f"s_cmp_ge_u32 s{W}, 2\ns_cselect_b32 s70, s70, 0")
        if ABS[0].startswith("m"): a("s_sub_u32 s70, 2500, s70")
        a("s_add_u32 s70, s70, s69\ns_add_u32 s70, s70, 2500")
    else:
        a(f"""s_waitcnt vmcnt(0)
        s_memrealtime s[96:97]
        s_waitcnt lgkmcnt(0)
        s_sub_u32 s70, s{72+2*q}, s{72+2*p}
        s_add_u32 s70, s70, s96""")
    a(f"""L_diag:
    s_memrealtime s[68:69]
    s_waitcnt lgkmcnt(0)
    s_sub_u32 s71, s68, s70
    s_cmp_lt_i32 s71, 0
    s_cbranch_scc1 L_diag""")
def st_init(a):
    if STAMP:
        for i in range(1, NST): a(f"s_mov_b32 s{72+2*i}, s72")
def st_end(a):
    if not STAMP: return
    a(f"""s_waitcnt vmcnt(0)
    s_memrealtime s[70:71]
    s_{'memrealtime' if 'rt' in EXP else 'memtime'} s[{72+2*NST}:{73+2*NST}]
    s_getreg_b32 s66, hwreg(HW_REG_HW_ID)
    s_getreg_b32 s67, hwreg(HW_REG_XCC_ID)
    s_mov_b64 exec, -1
    s_lshl_b32 s65, s2, 3
    s_add_u32 s65, s65, s{W}
    s_lshl_b32 s65, s65, 6
    s_add_u32 s65, s65, {WS_ST}
    s_waitcnt lgkmcnt(0)
    v_mov_b32 v4, s68
    v_mov_b32 v5, s70
    v_mov_b32 v6, s66
    v_mov_b32 v7, s67""")
    for i in range(1, NST + 1):
        a(f"s_sub_u32 s64, s{72+2*i}, s72\nv_mov_b32 v{7+i}, s64")
    a("v_mov_b32 v2, 0\ns_mov_b64 exec, 1")
    for k in range(4):
        a(f"buffer_store_dwordx4 v[{4+4*k}:{7+4*k}], v2, s[8:11], s65 offen offset:{16*k}")

def poll_global(a, vdst, voff, soff, mask=None, sleep=1):
    l = uid("Lpoll"); d = uid("Lpd")
    a(f"s_mov_b32 s60, {SPIN_LIMIT}")
    if mask is not None: a(f"s_mov_b64 exec, {mask}")
    a(f"""{l}:
    buffer_load_dword v{vdst}, v{voff}, s[8:11], {soff} offen sc1
    s_waitcnt vmcnt(0)
    v_cmp_ne_u32 vcc, s{T}, v{vdst}
    s_cbranch_vccz {d}
    s_mov_b64 exec, vcc
    s_sleep {sleep}
    s_sub_u32 s60, s60, 1
    s_cbranch_scc0 {l}
    s_endpgm
    {d}:
    s_mov_b64 exec, -1""")

def poll_atomic(a, vdst, voff, soff, mask, sleep):
    l = uid("Lpa"); d = uid("Lpad")
    a(f"""s_mov_b32 s60, {SPIN_LIMIT}
    s_mov_b64 exec, {mask}
    {l}:
    v_mov_b32 v{vdst}, 0
    buffer_atomic_or v{vdst}, v{voff}, s[8:11], {soff} offen sc0 sc1
    s_waitcnt vmcnt(0)
    v_cmp_ne_u32 vcc, s{T}, v{vdst}
    s_cbranch_vccz {d}
    s_sleep {sleep}
    s_sub_u32 s60, s60, 1
    s_cbranch_scc0 {l}
    s_endpgm
    {d}:
    s_mov_b64 exec, -1""")

def poll_pipe(a, v0, voff, soff, mask, D=4, gap=3):
    l = uid("Lpp"); d = uid("Lppd")
    at = lambda r: f"v_mov_b32 v{r}, 0\nbuffer_atomic_or v{r}, v{voff}, s[8:11], {soff} offen sc0 sc1"
    a(f"s_mov_b32 s60, {SPIN_LIMIT}\ns_mov_b64 exec, {mask}")
    for i in range(D - 1): a(at(v0 + i) + f"\ns_sleep {gap}")
    a(f"{l}:")
    for i in range(D):
        a(at(v0 + (i + D - 1) % D))
        a(f"s_waitcnt vmcnt({D-1})\nv_cmp_ne_u32 vcc, s{T}, v{v0+i}\ns_cbranch_vccz {d}")
    a(f"""s_sub_u32 s60, s60, 1
    s_cbranch_scc0 {l}
    s_endpgm
    {d}:
    s_mov_b64 exec, -1""")

def signal(a, vt, voff, soff, mask):
    a(f"v_mov_b32 v{vt}, s{T}\ns_mov_b64 exec, {mask}\nbuffer_atomic_swap v{vt}, v{voff}, s[8:11], {soff} offen sc1\ns_mov_b64 exec, -1")

def spin_lds(a, vaddr, off, want, vt, sleep=0):
    l = uid("Lsp"); d = uid("Lsd")
    if not sleep:
        a(f"""s_mov_b32 s60, {SPIN_LIMIT}
        {l}:
        ds_read_b32 v{vt}, v{vaddr} offset:{off}
        s_sub_u32 s60, s60, 1
        s_cbranch_scc1 L_exit
        s_waitcnt lgkmcnt(0)
        v_readfirstlane_b32 s61, v{vt}
        s_cmp_ge_u32 s61, {want}
        s_cbranch_scc0 {l}""")
        return
    a(f"""s_mov_b32 s60, {SPIN_LIMIT}
    {l}:
    ds_read_b32 v{vt}, v{vaddr} offset:{off}
    s_waitcnt lgkmcnt(0)
    v_readfirstlane_b32 s61, v{vt}
    s_cmp_ge_u32 s61, {want}
    s_cbranch_scc1 {d}""")
    if sleep: a(f"s_sleep {sleep}")
    a(f"""s_sub_u32 s60, s60, 1
    s_cbranch_scc0 {l}
    s_endpgm
    {d}:""")

def lds_inc(a, vaddr, off, vone):
    a(f"s_mov_b64 exec, 1\nds_add_u32 v{vaddr}, v{vone} offset:{off}\ns_mov_b64 exec, -1")

def flag_store(a, vt, vz, soff):
    a(f"v_mov_b32 v{vt}, s{T}\ns_mov_b64 exec, 1\nbuffer_store_dword v{vt}, v{vz}, s[8:11], {soff} offen sc1\ns_mov_b64 exec, -1")

def split_neg_max(a, m, t0, t1, q6, q7):
    a(f"""v_sub_f32 v{m}, 0, v{m}
    v_cvt_pk_bf16_f32 v{t0}, v{m}, v{m}
    v_lshlrev_b32 v{t0}, 16, v{t0}
    v_sub_f32 v{t0}, v{m}, v{t0}
    v_cvt_pk_bf16_f32 v{t1}, v{m}, v{t0}
    v_and_b32 v{m}, 0xffff0000, v{t1}
    v_sub_f32 v{t0}, v{t0}, v{m}
    s_mov_b32 exec_lo, 0
    v_mov_b32 v{q6}, v{t1}
    v_cvt_pk_bf16_f32 v{q7}, v{t0}, 0
    s_mov_b32 exec_lo, -1""")

def max16_list(dst, S, init=False):
    if not init:
        return ([f"v_max3_f32 v{dst}, v{S}, v{S+1}, v{S+2}"] +
                [f"v_max3_f32 v{dst}, v{dst}, v{S+i}, v{S+i+1}" for i in range(3, 15, 2)] +
                [f"v_max_f32 v{dst}, v{dst}, v{S+15}"])
    return [f"v_max3_f32 v{dst}, v{dst}, v{S+i}, v{S+i+1}" for i in range(0, 16, 2)]

def wave_min_u32(a, v, full=True):
    for r in (1, 2, 4, 8):
        a(f"v_min_u32_dpp v{v}, v{v}, v{v} row_ror:{r} row_mask:0xf bank_mask:0xf")
    a(f"v_min_u32_dpp v{v}, v{v}, v{v} row_bcast:15 row_mask:0xa bank_mask:0xf")
    if full: a(f"v_min_u32_dpp v{v}, v{v}, v{v} row_bcast:31 row_mask:0xc bank_mask:0xf")

def rank_count(a, own, base, n, dst, t):
    a(f"v_mov_b32 v{dst}, 0\nv_mov_b32 v{t}, 0")
    for k in range(0, n, 4):
        a(f"s_waitcnt lgkmcnt({(n-k)//4-1})")
        for e in range(4): a(f"v_sub_u32 v{base+k+e}, v{own}, v{base+k+e}")
        for e in range(4):
            r = (dst, t)[e & 1]
            a(f"v_alignbit_b32 v{r}, v{r}, v{base+k+e}, 31")
    a(f"v_bcnt_u32_b32 v{dst}, v{dst}, 0\nv_bcnt_u32_b32 v{dst}, v{t}, v{dst}")

def tag(a):
    a(f"s_mul_i32 s{T}, s{T}, 0x9e3779b1\ns_add_u32 s{T}, s{T}, 0x7f4a7c15")

def next_chunk(a, s):
    a(f"s_add_u32 s{s}, s{s}, 1\ns_cmp_eq_u32 s{s}, 7\ns_cselect_b32 s{s}, 0, s{s}")

Q, O, KV, S, P = 8, 40, 104, 168, 200
XF = 104; A0, A1, WF = 40, 56, 72
VX = 216; VW = 220; VQ = 222; VC = 223; V1 = 224; VZ = 225; VT = 226; VH = 227
VA = 228; TMP = 232; XR = 240; GR = 248; VWQ = 250; VF = 251; VFS = 252; VXO = 253; VGO = 254
OWN = 3
L = 35

def prologue_and_loader(a):
    MAPCODE = ""
    if "map2" in EXP:
        MAPCODE = f"s_and_b32 s26, s25, 1\ns_lshl1_add_u32 s{H}, s24, s26\ns_lshr_b32 s{J}, s25, 1\ns_lshl1_add_u32 s{ROT}, s26, s{J}\ns_add_u32 s{ROT}, s{ROT}, s24\ns_and_b32 s{ROT}, s{ROT}, 3\ns_lshl_b32 s{ROT}, s{ROT}, 1"
        if "norot" in EXP: MAPCODE += f"\ns_mov_b32 s{ROT}, 0"
    TADDR = "v_lshl_add_u32 v8, v3, 7, s58"
    if "notouch" not in EXP: TADDR = "v_and_b32 v8, 60, v3\nv_lshl_add_u32 v8, v8, 4, s58\nv_add_u32 v8, v8, v1"
    if "rot7" in EXP:
        ROTCODE = f"s_lshl1_add_u32 s{ROT}, s27, s26\ns_cmp_ge_u32 s{ROT}, 7\ns_cselect_b32 s26, 7, 0\ns_sub_u32 s{ROT}, s{ROT}, s26"
    elif "rot2" not in EXP and "norot" not in EXP and "rot23" not in EXP:
        ROTCODE = f"s_add_u32 s{ROT}, s27, s26\ns_and_b32 s{ROT}, s{ROT}, 3\ns_lshl_b32 s{ROT}, s{ROT}, 1"
    elif "norot" in EXP:
        ROTCODE = f"s_mov_b32 s{ROT}, 0"
    elif "rot23" in EXP:
        ROTCODE = f"s_add_u32 s{ROT}, s27, s26\ns_and_b32 s{ROT}, s{ROT}, 1\ns_mul_i32 s{ROT}, s{ROT}, 3"
    else:
        ROTCODE = f"s_add_u32 s{ROT}, s27, s26\ns_and_b32 s{ROT}, s{ROT}, 1\ns_lshl_b32 s{ROT}, s{ROT}, 2"
    st_begin(a)
    a(f"""s_load_dwordx4 s[4:7], s[0:1], 0
    s_load_dwordx2 s[36:37], s[0:1], 88
    s_load_dwordx2 s[38:39], s[0:1], 16
    s_load_dwordx8 s[40:47], s[0:1], 32
    s_load_dwordx4 s[48:51], s[0:1], 64
    s_cmp_ge_u32 s2, 256
    s_cbranch_scc1 L_exit
    v_lshrrev_b32 v2, 6, v0
    v_and_b32 v3, 63, v0
    s_and_b32 s24, s2, 7
    s_lshr_b32 s25, s2, 3
    v_readfirstlane_b32 s{W}, v2
    s_and_b32 s{H}, s24, 1
    s_lshl_b32 s{H}, s{H}, 3
    s_and_b32 s26, s25, 7
    s_add_u32 s{H}, s{H}, s26
    s_lshr_b32 s27, s25, 3
    s_and_b32 s{J}, s24, 6
    s_lshl1_add_u32 s{J}, s{J}, s27
    {ROTCODE}
    {MAPCODE}
    s_mov_b32 s28, {ROLE_LO:#x}
    s_mov_b32 s29, {ROLE_HI:#x}
    s_lshl_b32 s27, s{H}, 2
    s_lshr_b64 s[28:29], s[28:29], s27
    s_and_b32 s{RL}, s28, 15
    v_lshlrev_b32 v1, 4, v3
    s_mov_b32 s27, {WS_EP}
    s_cmp_lt_u32 s{W}, 4
    s_cbranch_scc1 L_main
    """)
    a(f"""s_setprio 2
    s_sub_u32 s{L}, s{W}, 4
    v_lshrrev_b32 v4, 3, v3
    v_mul_u32_u24 v5, 896, v4
    v_and_b32 v6, 7, v3
    v_lshrrev_b32 v7, 4, v3
    v_xor_b32 v7, v6, v7
    v_lshl_add_u32 v10, v7, 4, v5
    v_xor_b32 v11, 64, v10
    v_add_u32 v12, {2*6144}, v10
    v_add_u32 v13, {3*6144}, v11
    v_add_u32 v11, 6144, v11
    v_mul_u32_u24 v5, 2688, v4
    v_and_b32 v4, 2, v4
    v_lshlrev_b32 v4, 1, v4
    v_xor_b32 v4, v4, v6
    v_lshl_add_u32 v14, v4, 4, v5
    v_add_u32 v15, {8*2688-1024}, v14
    s_lshl2_add_u32 s52, s{J}, s{L}
    s_mul_i32 s58, s52, 14
    s_add_u32 s58, s58, s{RL}
    s_mul_i32 s58, s58, {BLK}
    {TADDR}
    s_mul_i32 s52, s52, {32*896}
    s_lshl_b32 s53, s{RL}, 7
    s_mul_i32 s26, s{L}, {16*2688}
    s_add_u32 s53, s53, s26
    s_add_u32 s53, s53, 896
    s_lshl_b32 s54, s{L}, 12
    s_lshl_b32 s55, s{L}, 11
    s_add_u32 s55, s55, {WT}
    s_mov_b32 s56, s{ROT}
    s_mov_b32 s57, 0
    s_mov_b32 s14, {2048*896}
    s_mov_b32 s15, 0x20000
    s_cmp_ge_u32 s{RL}, 14
    s_cselect_b32 s18, 0, {448*2688}
    s_mov_b32 s19, 0x20000
    s_waitcnt lgkmcnt(0)
    s_mov_b64 s[12:13], s[4:5]
    s_mov_b64 s[16:17], s[6:7]
    s_load_dword s{T}, s[36:37], s27""")
    st_init(a); st(a, 1)
    if "notouch" not in EXP:
        if "notouch" not in EXP:
            a(f"""s_cbranch_scc1 L_tbl
            global_store_dwordx4 v8, v[10:13], s[36:37] sc1
            global_store_dwordx4 v8, v[10:13], s[36:37] offset:2048 sc1""")
        else: a(f"""s_cbranch_scc1 L_ld
        s_cmp_ge_u32 s{RL}, 7
        s_cselect_b32 exec_hi, 1, 0xff
        global_store_dword v8, v8, s[36:37] sc1
        s_mov_b32 exec_hi, -1""")
    a(f"""L_ld:
    s_mul_i32 s26, s56, {64*2688}
    s_mov_b32 m0, s55
    s_add_u32 s26, s26, s53
    s_lshl_b32 s28, s56, 7
    buffer_load_dwordx4 v14, s[16:19], s26 offen lds
    buffer_load_dwordx4 v15, s[16:19], s26 offen offset:1024 lds
    s_mov_b32 m0, s54
    s_add_u32 s28, s28, s52
    buffer_load_dwordx4 v10, s[12:15], s28 offen lds
    buffer_load_dwordx4 v11, s[12:15], s28 offen offset:1024 lds
    buffer_load_dwordx4 v12, s[12:15], s28 offen offset:2048 lds
    buffer_load_dwordx4 v13, s[12:15], s28 offen offset:3072 lds
    s_add_u32 s55, s55, 8192
    s_add_u32 s54, s54, 16384
    s_and_b32 s54, s54, 0xffff""")
    next_chunk(a, 56)
    if "tlb" in EXP:
        a(f"s_or_b32 s26, s57, s{L}\ns_cbranch_scc0 L_tlb\nL_tlb_done:")
    a(f"""s_add_u32 s57, s57, 1
    s_cmp_lt_u32 s57, 3
    s_cbranch_scc1 L_ld
    s_waitcnt vmcnt(12)
    s_barrier
    s_cmp_lt_u32 s57, 7
    s_cbranch_scc1 L_ld
    """)
    a(f"""v_lshrrev_b32 v4, 2, v3
    v_mul_u32_u24 v4, 2688, v4
    v_and_b32 v5, 3, v3
    v_lshl_add_u32 v16, v5, 4, v4
    s_mov_b32 s18, {448*2688}
    s_mul_i32 s53, s{H}, 56
    s_and_b32 s53, s53, 0xfffffff0
    s_mul_i32 s26, s{L}, {16*2688}
    s_add_u32 s53, s53, s26
    s_lshl_b32 s55, s{L}, 10
    s_add_u32 s55, s55, {WQ}""")
    for i in range(NQ1):
        a(f"""s_mul_i32 s26, s56, {64*2688}
        s_add_u32 m0, s55, {i*4096}
        s_add_u32 s26, s26, s53
        buffer_load_dwordx4 v16, s[16:19], s26 offen lds""")
        if i < NQ1 - 1: next_chunk(a, 56)
        if i == 1: a("s_waitcnt vmcnt(8)\ns_barrier")
        if i == 3: a("s_waitcnt vmcnt(4)\ns_barrier")
    st(a, 2)
    a("s_branch L_service")
    a(f"""L_tbl:
    s_bitcmp1_b32 s{L}, 0
    s_cselect_b64 s[20:21], s[48:49], s[40:41]
    s_cselect_b32 s26, 1024, 0
    s_movk_i32 s22, 896
    s_mov_b32 s23, 0x20000
    s_add_u32 m0, s26, {RT}
    s_lshl_b32 s28, s{ROT}, 7
    v_add_u32 v4, s28, v1
    v_subrev_u32 v6, 896, v4
    v_min_u32 v4, v4, v6
    buffer_load_dwordx4 v4, s[20:23], 0 offen lds
    s_branch L_ld""")
    if "tlb" in EXP:
        a("L_tlb:")
        if "tlbR" in EXP: a(f"s_cmp_lt_u32 s{RL}, 14\ns_cbranch_scc1 L_tlb_done")
        for off in (0, 2 << 20, 4 << 20):
            a(f"s_mov_b32 s26, {off + 4032}\ns_load_dword s66, s[36:37], s26")
        for p in (42, 44, 38, 46, 50):
            a(f"s_load_dword s66, s[{p}:{p+1}], 0")
        a("s_branch L_tlb_done")

def main_wave(a):
    a.label("L_main")
    diag_start(a)
    if "nocodepf" not in EXP:
        a(f"""s_cmp_lg_u32 s{W}, 0
        s_cbranch_scc1 L_nopf
        s_getpc_b64 s[28:29]
        L_pc:
        s_and_b32 s26, s25, 3
        s_lshl_b32 s26, s26, 13
        v_lshl_add_u32 v4, v3, 7, s26
        v_min_u32 v4, L_code_end-L_pc, v4
        global_load_dword v255, v4, s[28:29]
        L_nopf:""")
    a(f"""s_setprio 1
    v_and_b32 v{VT}, 31, v3
    v_lshrrev_b32 v{VH}, 5, v3
    v_mov_b32 v{V1}, 1
    v_mov_b32 v{VZ}, 0
    v_mov_b32 v{VC}, {CNT}
    v_lshrrev_b32 v4, 2, v1
    v_add_u32 v4, {UPDI}, v4
    v_mov_b32 v6, -1
    s_mov_b32 exec_hi, 0
    ds_write_b32 v4, v6
    v_and_b32 v6, 7, v3
    v_cmp_eq_u32 vcc, 4, v6
    v_mov_b32 v7, {KVB+1}
    v_cndmask_b32 v6, 0, v7, vcc
    ds_write_b32 v4, v6 offset:{CNT-UPDI+C_R}
    s_mov_b32 exec_lo, 0xffff
    ds_write_b32 v4, v{VZ} offset:{CNT-UPDI}
    s_mov_b64 exec, -1
    v_lshrrev_b32 v4, 1, v{VT}
    v_and_b32 v4, 7, v4
    v_xor_b32 v4, v4, v{VH}
    v_lshlrev_b32 v4, 4, v4
    v_lshl_add_u32 v4, v{VT}, 7, v4
    s_lshl_b32 s26, s{W}, 12
    v_add_u32 v{VX}, s26, v4
    v_xor_b32 v{VX+1}, 32, v{VX}
    v_xor_b32 v{VX+2}, 64, v{VX}
    v_xor_b32 v{VX+3}, 96, v{VX}
    v_bfe_u32 v4, v3, 2, 2
    v_lshl_add_u32 v12, v{VH}, 3, v4
    v_and_b32 v6, 3, v3
    v_and_b32 v7, 1, v3
    v_bfe_u32 v8, v3, 1, 1
    v_lshl_add_u32 v7, v7, 1, v8
    v_bfe_u32 v8, v3, 4, 1
    v_lshl_add_u32 v9, v8, 2, v7
    v_lshl_add_u32 v10, v8, 2, v6
    s_cmp_lt_u32 s{RL}, 7
    s_cselect_b64 vcc, -1, 0
    v_cndmask_b32 v10, v10, v9, vcc
    v_lshlrev_b32 v11, 7, v12
    v_lshl_add_u32 v11, v10, 3, v11
    v_lshrrev_b32 v4, 1, v4
    v_lshl_add_u32 v11, v4, 6, v11
    v_add_u32 v{VW}, {WT}, v11
    v_xor_b32 v{VW+1}, 64, v{VW}
    v_add_u32 v10, 2, v9
    v_sub_u32 v11, 7, v9
    v_cmp_gt_u32 vcc, 6, v9
    v_cndmask_b32 v10, v11, v10, vcc
    s_bitcmp1_b32 s{H}, 0
    s_cselect_b64 vcc, -1, 0
    v_cndmask_b32 v10, v9, v10, vcc
    v_lshlrev_b32 v11, 6, v12
    v_lshl_add_u32 v11, v10, 3, v11
    v_add_u32 v{VQ}, {WQ}, v11
    v_lshrrev_b32 v4, 2, v3
    v_mul_u32_u24 v4, 2688, v4
    v_lshl_add_u32 v{VWQ}, v6, 4, v4
    s_cmp_ge_u32 s{RL}, 7
    s_cselect_b32 s26, 7, 0
    s_cselect_b32 s29, 2, 0
    s_sub_u32 s26, s{RL}, s26
    s_mul_i32 s28, s26, {64*2341}
    s_lshr_b32 s28, s28, 16
    v_add_u32 v4, s28, v6
    v_mul_u32_u24 v7, 28, v4
    v_lshrrev_b32 v7, 6, v7
    v_cmp_ge_u32 s[64:65], s26, v7
    v_cmp_ne_u32 vcc, s26, v7
    s_and_b32 s28, s{J}, 12
    s_add_u32 s29, s28, s29
    v_mov_b32 v7, s29
    v_addc_co_u32 v7, vcc, 0, v7, vcc
    s_and_b32 s28, s{J}, 3
    v_lshl_add_u32 v4, v4, 2, s28
    v_bfe_u32 v8, v3, 2, 2
    v_lshl_add_u32 v4, v4, 2, v8
    v_lshlrev_b32 v4, 7, v4
    v_lshl_add_u32 v{VFS}, v7, 2, v4
    s_and_b32 s64, s64, 0xffff
    s_cmp_ge_u32 s{RL}, 14
    s_cselect_b32 s64, 0, s64
    s_mov_b32 s65, 0
    s_lshl_b32 s28, s{W}, 5
    v_add_u32 v{VF}, s28, v{VC}
    s_lshl_b32 s28, s{J}, 2
    s_lshr_b32 s58, s{H}, 2
    s_add_u32 s58, s58, s28
    s_and_b32 s59, s{H}, 3
    s_lshl2_add_u32 s59, s59, s{W}
    s_mul_i32 s59, s59, 56
    s_lshl_b32 s28, s58, 5
    v_add_u32 v4, s28, v{VT}
    v_mul_u32_u24 v{VXO}, 896, v4
    v_lshl_add_u32 v{VXO}, v{VH}, 4, v{VXO}
    v_lshlrev_b32 v{VGO}, 3, v4
    s_waitcnt lgkmcnt(0)
    """)
    st_init(a)
    srd(a, 8, 36, (1 << 28) - WSBASE)
    srd(a, 16, 6, 448 * 2688)
    srd(a, 12, 4, 2048 * 896)
    if "wqpf" in EXP:
        a(f"""s_cmp_lg_u32 s{W}, 1
        s_cbranch_scc1 L_nopf2
        v_lshrrev_b32 v4, 2, v3
        v_min_u32 v4, 13, v4
        v_mul_u32_u24 v4, 2688, v4
        v_and_b32 v6, 3, v3
        v_lshl_add_u32 v4, v6, 7, v4
        s_mul_i32 s26, s25, {14*2688}
        s_and_b32 s28, s24, 1
        s_mul_i32 s28, s28, 384
        s_add_u32 s26, s26, s28
        buffer_load_dword v5, v4, s[16:19], s26 offen
        L_nopf2:""")
    if "wopfS" in EXP:
        srd(a, 20, 38, 448 * 896)
        a(f"""s_cmp_lg_u32 s{W}, 2
        s_cbranch_scc1 L_nopf3
        s_mul_i32 s26, s2, {13*128}
        v_lshl_add_u32 v4, v3, 7, s26
        s_mov_b64 exec, 0x1fff
        buffer_load_dword v5, v4, s[20:23], 0 offen
        s_mov_b64 exec, -1
        L_nopf3:""")
    a(f"""s_mul_i32 s62, s{H}, 56
    s_and_b32 s62, s62, 0xfffffff0
    s_mul_i32 s26, s{W}, {16*2688}
    s_add_u32 s62, s62, s26
    s_lshl_b32 s63, s{W}, 10
    s_add_u32 s63, s63, {WQ}
    s_lshl2_add_u32 s35, s{J}, s{W}
    s_mul_i32 s52, s35, 14
    s_add_u32 s52, s52, s{RL}
    s_mul_i32 s52, s52, {BLK}
    s_add_u32 s53, s52, 4096
    s_lshr_b32 s26, s{H}, 1
    s_mul_i32 s26, s26, 7
    s_and_b32 s28, s{H}, 1
    s_lshl2_add_u32 s29, s28, s26
    v_add_u32 v4, s29, v{VH}
    v_lshrrev_b32 v6, 3, v4
    v_mul_u32_u24 v6, {BLK-4096}, v6
    v_lshl_add_u32 v6, v4, 9, v6
    v_lshl_add_u32 v{VA}, v{VT}, 4, v6
    v_add_u32 v4, 2, v4
    v_lshrrev_b32 v6, 3, v4
    v_mul_u32_u24 v6, {BLK-4096}, v6
    v_lshl_add_u32 v6, v4, 9, v6
    s_add_u32 s26, s26, 3
    s_lshr_b32 s29, s26, 3
    s_mul_i32 s29, s29, {BLK}
    s_and_b32 s26, s26, 1
    s_lshl_b32 s26, s26, 9
    s_add_u32 s29, s29, s26
    s_add_u32 s29, s29, 4096
    v_mov_b32 v7, s29
    v_and_b32 v4, s28, v{VH}
    v_cmp_eq_u32 vcc, 1, v4
    v_cndmask_b32 v6, v6, v7, vcc
    v_lshl_add_u32 v{VA+1}, v{VT}, 4, v6
    s_mul_i32 s26, s{H}, 28
    v_add_u32 v4, s26, v{VT}
    v_lshrrev_b32 v6, 6, v4
    v_mul_u32_u24 v6, {BLK}, v6
    v_bfe_u32 v7, v4, 5, 1
    v_lshl_add_u32 v6, v7, 11, v6
    v_and_b32 v4, 31, v4
    v_lshl_add_u32 v6, v4, 4, v6
    v_lshl_add_u32 v6, v{VH}, 9, v6
    v_add_u32 v6, {7*BLK}, v6
    v_add_u32 v8, 1024, v6
    s_lshr_b32 s26, s26, 6
    s_mul_i32 s26, s26, {BLK}
    s_add_u32 s26, s26, {7*BLK + 4096 - 28*16}
    v_lshl_add_u32 v7, v{VT}, 4, s26
    v_cmp_le_u32 vcc, 28, v{VT}
    v_cndmask_b32 v{VA+2}, v6, v7, vcc
    v_cndmask_b32 v{VA+3}, v8, v7, vcc
    s_cmp_ge_u32 s{RL}, 14
    s_cbranch_scc1 L_roleR
    s_cmp_ge_u32 s{RL}, 7
    s_cbranch_scc1 L_roleV""")

    def gemm(kind):
        if "twait" in EXP:
            st(a, 10); a("s_waitcnt vmcnt(0)"); st(a, 11)
        def reads(c, s):
            k = 4 * c + s
            a(f"ds_read_b128 {vr(XF+4*k,4)}, v{VX+s} offset:{(c&3)*16384}")
            f = WF + 8 * s
            if kind == "R":
                a(f"ds_read_b128 {vr(f,4)}, v{VW} offset:{k*32}")
            else:
                for n in range(2):
                    a(f"ds_read_b64_tr_b16 {vr(f+4*n,2)}, v{VW+n} offset:{k*2048}")
                    a(f"ds_read_b64_tr_b16 {vr(f+4*n+2,2)}, v{VW+n} offset:{k*2048+512}")
        def mfmas(c, s, ns=None):
            k = 4 * c + s
            f = WF + 8 * s
            for n in (ns or range(1 if kind == "R" else 2)):
                acc = (A0, A1)[n]
                cc = "0" if k == 0 else vr(acc, 16)
                if kind == "V": a(f"{MF} {vr(acc,16)}, {vr(XF+4*k,4)}, {vr(f+4*n,4)}, {cc}")
                else:           a(f"{MF} {vr(acc,16)}, {vr(f+4*n,4)}, {vr(XF+4*k,4)}, {cc}")
        per = 2 if kind == "R" else 5
        for c in range(7):
            a("s_barrier")
            if c == 0: st(a, 1)
            if c == 6: st(a, 2)
            if STAMP and c in (0, 6): a("s_waitcnt lgkmcnt(0)")
            reads(c, 0); reads(c, 1)
            for s in range(4):
                if s < 2: reads(c, s + 2)
                a(f"s_waitcnt lgkmcnt({min(3 - s, 2) * per})")
                if c == 6 and kind != "R" and s >= 2: mfmas(c, s, (0,))
                else: mfmas(c, s)
            if c == 6 and kind != "R":
                mfmas(c, 2, (1,)); mfmas(c, 3, (1,))

    PK = 8
    MS = 20
    a(f"""v_add_u32 v4, s{RL}, v{VH}""")
    for i in range(4):
        a(f"""v_cmp_eq_u32 vcc, {3-2*i}, v4
        v_cmp_eq_u32 s[{MS+2*i}:{MS+1+2*i}], {10-2*i}, v4
        s_or_b64 s[{MS+2*i}:{MS+1+2*i}], s[{MS+2*i}:{MS+1+2*i}], vcc""")
    for e in range(4): a(f"v_mov_b32 v{TMP+e}, 0x3f803f80")
    a(f"""s_or_b64 s[28:29], s[{MS}:{MS+1}], s[{MS+2}:{MS+3}]
    s_or_b64 s[54:55], s[{MS+4}:{MS+5}], s[{MS+6}:{MS+7}]
    s_or_b64 s[54:55], s[54:55], s[28:29]
    s_mov_b64 exec, 0
    s_branch L_epi
    L_backK:
    s_mov_b64 exec, -1""")
    gemm("K")
    a("s_branch L_epi")
    a.label("L_roleR")
    if "pfx" in EXP:
        C0 = 1 if "pf1" in EXP else 2
        a(f"""v_mul_u32_u24 v4, 896, v{VT}
        v_lshl_add_u32 v4, v{VH}, 7, v4
        s_mul_i32 s26, s35, {32*896}
        v_lshrrev_b32 v6, 3, v{VT}
        v_mul_u32_u24 v6, 2688, v6
        v_and_b32 v7, 7, v3
        v_min_u32 v7, 6, v7
        v_lshl_add_u32 v6, v7, 7, v6
        v_mul_u32_u24 v7, {64*2688}, v{VH}
        v_add_u32 v6, v6, v7
        s_and_b32 s28, s35, 15
        s_mul_i32 s28, s28, {4*2688}
        s_and_b32 s29, s24, 1
        s_mul_i32 s29, s29, 896
        s_add_u32 s28, s28, s29
        s_add_u32 s28, s28, {896 + C0*64*2688}""")
        for c in range(C0, 7, 2):
            if c == 6: a("s_mov_b32 exec_hi, 0")
            a(f"""buffer_load_dword v5, v4, s[12:15], s26 offen offset:{128*c}
            buffer_load_dword v5, v6, s[16:19], s28 offen
            s_add_u32 s28, s28, {128*2688}""")
        a("s_mov_b64 exec, -1")
    a(f"""v_and_b32 v4, 1, v3
    v_lshlrev_b32 v4, 10, v4
    v_lshl_add_u32 v4, v{VH}, 4, v4
    v_add_u32 v{VW}, {RT}, v4
    s_lshl_b32 s26, s{W}, 7
    s_add_u32 s26, s26, {KEYS}
    v_lshl_add_u32 v12, v{VT}, 2, s26
    v_lshl_add_u32 v13, v{VH}, 6, s26""")
    gemm("R")
    a(f"""s_cmp_lg_u32 s{RL}, 14
    s_cbranch_scc1 L_pub
    s_mov_b32 exec_hi, 0
    s_nop 9
    v_cvt_pk_bf16_f32 v4, v{A0}, v{A0+1}
    v_and_b32 v5, 0xffff0000, v4
    v_lshlrev_b32 v4, 16, v4
    v_ashrrev_i32 v6, 31, v4
    v_or_b32 v6, 0x80000000, v6
    v_xor_b32 v6, v6, v4
    v_lshrrev_b32 v6, 16, v6
    v_lshlrev_b32 v6, 11, v6
    v_cmp_u_f32 vcc, v4, v4
    v_cndmask_b32 v6, v6, 0, vcc
    s_lshl_b32 s26, s35, 5
    v_add_u32 v7, s26, v{VT}
    v_sub_u32 v8, 0x7ff, v7
    v_or_b32 v6, v6, v8
    v_lshlrev_b32 v9, 3, v7
    ds_write_b32 v12, v6
    s_mov_b32 exec_hi, -1
    ds_read_b32 v6, v12
    ds_read_b128 v[16:19], v13
    ds_read_b128 v[20:23], v13 offset:16
    ds_read_b128 v[24:27], v13 offset:32
    ds_read_b128 v[28:31], v13 offset:48""")
    rank_count(a, 6, 16, 16, 14, 15)
    a(f"""v_mov_b32 v15, v14
    s_lshl_b32 s26, s{W}, 5
    s_add_u32 s26, s26, {CAND}
    v_permlane32_swap_b32 v14, v15
    v_add_u32 v14, v14, v15
    v_cmp_gt_u32 vcc, 8, v14
    v_lshl_add_u32 v14, v14, 2, s26
    s_mov_b64 exec, vcc
    ds_write_b32 v14, v6
    s_mov_b64 exec, 1
    ds_add_u32 v{VC}, v{V1} offset:{C_K}
    s_mov_b32 exec_lo, -1
    v_mul_f32 v5, {NLOG2E:#x}, v5
    v_exp_f32 v5, v5
    v_add_f32 v5, 1.0, v5
    v_rcp_f32 v5, v5
    v_cvt_pk_bf16_f32 v5, v5, v5
    v_lshlrev_b32 v10, 16, v5
    s_mov_b32 exec_hi, -1
    s_branch L_pub
    """)
    a.label("L_roleV")
    a(f"""v_cmp_eq_u32 vcc, 0, v3
    v_mov_b32 v7, 0x3f803f80
    v_cndmask_b32 v{TMP}, 0, v7, vcc""")
    for e in range(1, 4): a(f"v_mov_b32 v{TMP+e}, v{TMP}")
    for i in range(4): a(f"s_mov_b64 s[{MS+2*i}:{MS+1+2*i}], 0")
    a("s_mov_b64 s[54:55], 0xff")
    gemm("V")
    a("L_epi:\ns_cbranch_execz L_backK")
    for i in range(4):
        acc = (A0, A1)[i >> 1] + 8 * (i & 1)
        p = PK + 4 * i
        for e in (2, 3, 0, 1): a(f"v_cvt_pk_bf16_f32 v{p+e}, v{acc+2*e}, v{acc+2*e+1}")
        a(f"""s_mov_b64 exec, s[{MS+2*i}:{MS+1+2*i}]
        v_swap_b32 v{TMP}, v{p+2}
        v_swap_b32 v{TMP+1}, v{p+3}
        s_mov_b64 exec, -1
        buffer_store_dwordx4 {vr(p,4)}, v1, s[8:11], s52 offen offset:{1024*i} sc1""")
    a(f"s_mov_b64 exec, s[54:55]\nbuffer_store_dwordx4 {vr(TMP,4)}, v1, s[8:11], s53 offen sc1\ns_mov_b64 exec, -1")
    a.label("L_pub")
    st(a, 3)
    a(f"s_add_u32 s56, s{ROT}, {NQ1}\ns_cmp_ge_u32 s56, 7\ns_cselect_b32 s26, 7, 0\ns_sub_u32 s56, s56, s26")
    for i in range(NQ1, 7):
        a(f"""s_mul_i32 s26, s56, {64*2688}
        s_add_u32 m0, s63, {i*4096}
        s_add_u32 s26, s26, s62
        buffer_load_dwordx4 v{VWQ}, s[16:19], s26 offen lds""")
        if i < 6: next_chunk(a, 56)
    QO = Q + 8 * OWN
    SK = TMP
    a(f"""s_mov_b64 s[16:17], s[36:37]
    s_mov_b32 s18, {KVB}
    s_mov_b32 s57, 0""")
    def ldK(b, soff, base=None):
        r = KV + 16 * b if base is None else base
        return [f"buffer_load_dwordx4 {vr(r,4)}, v{VA}, s[16:19], {soff} offen sc1",
                f"buffer_load_dwordx4 {vr(r+4,4)}, v{VA+1}, s[16:19], {soff} offen sc1"]
    def ldV(b, soff):
        return [f"buffer_load_dwordx4 {vr(KV+16*b+8,4)}, v{VA+2}, s[16:19], {soff} offen sc1",
                f"buffer_load_dwordx4 {vr(KV+16*b+12,4)}, v{VA+3}, s[16:19], {soff} offen sc1"]
    def try_loads(block=False):
        d = uid("Ltl"); l = uid("Ltr"); g = uid("Ltg")
        a(f"s_cmp_eq_u32 s57, 2\ns_cbranch_scc1 {d}")
        if block: a(f"s_mov_b32 s60, {SPIN_LIMIT}\n{l}:\ns_sub_u32 s60, s60, 1\ns_cbranch_scc1 L_exit")
        a(f"""ds_read_b32 v4, v{VF} offset:{C_R}
        ds_read_b32 v5, v{VC} offset:{C_M}
        s_cmp_eq_u32 s57, 1
        s_waitcnt lgkmcnt(0)
        v_readfirstlane_b32 s56, v4
        s_cbranch_scc1 {g}
        v_readfirstlane_b32 s29, v5
        s_sub_u32 s29, s29, 1
        s_cbranch_scc1 {l if block else d}
        s_mov_b32 s57, 1""")
        for x in ldK(0, "s29", SK): a(x)
        a(f"""{g}:
        s_sub_u32 s27, s56, 1
        s_cbranch_scc1 {l if block else d}
        s_add_u32 s54, s56, {TS-1}
        s_add_u32 s55, s56, {2*TS-1}
        s_add_u32 s56, s56, {3*TS-1}
        s_mov_b32 s57, 2""")
        st(a, 6)
        for x in ldK(0, "s27") + ldV(0, "s27") + ldK(1, "s54") + ldV(1, "s54") + ([] if "up4" not in EXP else ldK(2, "s55") + ldV(2, "s55") + ldK(3, "s56")): a(x)
        a(f"{d}:")
    def qreads(k):
        f = WF + 4 * (k & 7)
        a(f"ds_read_b64_tr_b16 {vr(f,2)}, v{VQ} offset:{k*1024}\nds_read_b64_tr_b16 {vr(f+2,2)}, v{VQ} offset:{k*1024+256}")
    def publish():
        a(f"""s_mov_b32 s28, {WS_MB}
        v_readfirstlane_b32 s{T}, v11
        v_mov_b32 v6, v11
        s_mov_b64 exec, 1
        s_waitcnt vmcnt({7-NQ1})""")
        st(a, 4)
        a(f"""ds_add_rtn_u32 v4, v{VC}, v{V1} offset:{C_D}
        s_waitcnt lgkmcnt(0)
        v_cmp_eq_u32 vcc, 3, v4
        s_cbranch_vccz L_notlast
        s_mov_b64 exec, s[64:65]
        s_cbranch_execz L_notlast
        buffer_atomic_swap v6, v{VFS}, s[8:11], s28 offen sc1
        s_waitcnt vmcnt(1)
        s_branch L_published
        L_notlast:
        s_waitcnt vmcnt(0)
        s_cmp_lg_u32 s{RL}, 14
        s_cbranch_scc1 L_published
        s_mov_b32 s26, {WS_G}
        s_mov_b32 exec_lo, -1
        buffer_store_dwordx2 v[10:11], v9, s[8:11], s26 offen sc1
        L_published:""")
        a("s_mov_b64 exec, -1")
    def qgemm(lo, hi, cnt):
        spin_lds(a, VC, cnt, 4, 4)
        if not lo: a(f"ds_read_b32 v11, v{VC} offset:{C_T}")
        for k in range(lo, min(hi, lo + 6)): qreads(k)
        for k in range(lo, hi):
            if k + 6 < hi: qreads(k + 6)
            a(f"s_waitcnt lgkmcnt({2*(min(hi-1,k+6)-k)})")
            a(f"{MF} {vr(A0,16)}, {vr(WF+4*(k&7),4)}, {vr(XF+4*k,4)}, {'0' if k==0 else vr(A0,16)}")
    def qepi():
        for i in range(8): a(f"v_mov_b32 v{KV+56+i}, 0")
        a(f"""s_lshl_b32 s26, s{W}, 11
        s_add_u32 s26, s26, {QX}
        v_add_u32 v5, s26, v1
        s_mov_b32 s62, {QSCALE:#x}
        s_mov_b32 s63, {QSCALE:#x}""")
        for i in range(8): a(f"v_pk_mul_f32 {vr(A0+2*i,2)}, {vr(A0+2*i,2)}, s[62:63]")
        for i in range(8): a(f"v_cvt_pk_bf16_f32 v{QO+i}, v{A0+2*i}, v{A0+2*i+1}")
        a(f"""s_mov_b32 exec_lo, 0
        v_mov_b32 v{QO+6}, 0
        v_mov_b32 v{QO+7}, 0
        s_mov_b32 exec_lo, -1
        ds_write_b128 v5, {vr(QO,4)}
        ds_write_b128 v5, {vr(QO+4,4)} offset:1024""")
        lds_inc(a, VC, C_X, V1)
        for i in range(0, 48, 2): a(f"v_pk_mul_f32 {vr(O+i,2)}, {vr(KV+56,2)}, {vr(KV+56,2)}")
    qgemm(0, 4 * NQ1, C_Q1)
    if NQ1 == 7 and "qfirst" in EXP:
        st(a, 5)
        qepi(); publish(); try_loads()
    elif NQ1 == 7:
        st(a, 5)
        publish(); try_loads(); qepi()
    else:
        publish()
        lds_inc(a, VC, C_Q2, V1)
        try_loads()
        qgemm(4 * NQ1, 28, C_Q2)
        st(a, 5)
        try_loads()
        qepi()
    spin_lds(a, VC, C_X, 4, 4)
    for i in range(3):
        a(f"""s_add_u32 s26, s{W}, {i+1}
        s_and_b32 s26, s26, 3
        s_lshl_b32 s26, s26, 11
        s_add_u32 s26, s26, {QX}
        v_add_u32 v5, s26, v1
        ds_read_b128 {vr(Q+8*i,4)}, v5
        ds_read_b128 {vr(Q+8*i+4,4)}, v5 offset:1024""")
    for i in range(3):
        a(f"""s_add_u32 s26, s{W}, {i+1}
        s_and_b32 s26, s26, 3
        s_mul_i32 s26, s26, 12288
        s_add_u32 s{62+i}, s26, {CB + i*4096}""")
    a(f"s_mul_i32 s26, s{W}, 12288\ns_add_u32 s26, s26, {CB}\nv_add_u32 v2, s26, v1\nv_lshl_add_u32 v{VX}, v3, 2, s26")
    try_loads(block=True)
    ORD = [None]
    def tq(u):
        if ORD[0] is not None and 0 <= u < 16: return ORD[0][u]
        return (u >> 2) & 3, u & 3
    def QK(u, m):
        kt, qs = tq(u)
        s = S + 16 * (u & 1)
        c = "0" if m == 0 else vr(s, 16)
        return f"{MF} {vr(s,16)}, {vr(KV+16*kt+4*m,4)}, {vr(Q+8*qs+4*m,4)}, {c}"
    def PV(u, m):
        kt, qs = tq(u)
        return f"{MF} {vr(O+16*qs,16)}, {vr(KV+16*kt+8+4*m,4)}, {vr(P+8*(u&1)+4*m,4)}, {vr(O+16*qs,16)}"
    SS = [P, S + 16, S, O + 48]
    def samp(i, m): return f"{MF} {vr(SS[i],16)}, {vr(SK+4*m,4)}, {vr(Q+8*i+4*m,4)}, {'0' if m == 0 else vr(SS[i],16)}"
    def mx(i):
        for x in max16_list(4, SS[i]): a(x)
        a(f"s_mov_b32 exec_lo, 0\nv_cvt_pk_bf16_f32 v{Q+8*i+6}, -v4, 0\ns_mov_b32 exec_lo, -1")
    a(f"s_waitcnt vmcnt({8 if 'up4' not in EXP else 14}) lgkmcnt(0)")
    for i in (0, 2): a(samp(i, 0)); a(samp(i, 1))
    a(samp(1, 0)); a(samp(1, 1))
    mx(0)
    a(samp(3, 0)); a(samp(3, 1))
    mx(2)
    a(f"s_waitcnt vmcnt({6 if 'up4' not in EXP else 12})")
    a(QK(0, 0)); a(QK(0, 1))
    if "up4" not in EXP:
        for x in ldK(2, "s55") + ldV(2, "s55") + ldK(3, "s56"): a(x)
    mx(1)
    for i in range(0, 8, 2): a(f"v_pk_mul_f32 {vr(P+8+i,2)}, {vr(KV+56,2)}, {vr(KV+56,2)}")
    mx(3)
    for i in range(48, 64, 2): a(f"v_pk_mul_f32 {vr(O+i,2)}, {vr(KV+56,2)}, {vr(KV+56,2)}")
    st(a, 7)
    a(f"s_mov_b32 s57, 2\ns_mov_b32 s53, {WS_G}")
    def substep(u, ex, last=False):
        s = S + 16 * (u & 1); p = P + 8 * (u & 1)
        e = lambda i: f"v_exp_f32 v{s+i}, v{s+i}"
        c = lambda i: f"v_cvt_pk_bf16_f32 v{p+i}, v{s+2*i}, v{s+2*i+1}"
        q0, q1 = ([], []) if last else ([QK(u+1, 0)], [QK(u+1, 1)])
        seq = q0 + ex[0] + [e(0), e(1), e(2), e(3), c(0), e(4),
               PV(u-1, 0)] + ex[1] + [e(5), c(1), e(6), e(7), c(2), e(8)] + q1 + ex[2] + [e(9), c(3), e(10), e(11), c(4), e(12),
               PV(u-1, 1)] + ex[3] + [e(13), c(5), e(14), e(15), c(6), c(7)]
        for x in seq: a(x)
    a(".p2align 6")
    a.label("L_loop")
    for u in range(16):
        kt, qs = u >> 2, u & 3
        ex = [[], [], [], []]
        if qs == 1:
            l = ldV((kt + 3) & 3, "s56")
            ex[0] = [l[0]]; ex[1] = [l[1]]; ex[2] = [f"s_add_u32 s56, s56, {TS}"]
        if u == 0: ex[0] = [f"ds_read_b32 v7, v{VF} offset:{C_R+4}"]
        if u == 1:
            ex[2] = ["s_waitcnt lgkmcnt(0)", "v_readfirstlane_b32 s56, v7"]
            ex[3] = ["s_sub_u32 s56, s56, 1"]
        if u == 2:
            ex[0] = ["s_cbranch_scc1 L_nextwait", "L_nextok:", f"v_add_u32 v{VF}, 4, v{VF}"]
        if qs == 2 and "nowait" not in EXP: ex[3] = ["s_waitcnt vmcnt(10)"]
        if qs == 0 and "nowait" not in EXP: ex[3] = ["s_waitcnt vmcnt(10)"]
        if qs == 3:
            l = ldK(kt, "s56")
            ex[0] = [l[0]]; ex[1] = [l[1]]
        if u == GA: ex[1] = ex[1] + [f"ds_add_u32 v{VC}, v{V1} offset:{C_A}"]
        if u == 15: ex[3] = ["s_sub_u32 s57, s57, 1"]
        if "itst" in EXP and u in (0, 8):
            a("s_waitcnt lgkmcnt(0)")
            for i in range(1, 6): a(f"s_mov_b32 s{72+2*i}, s{72+2*i+2}")
            a("s_memtime s[84:85]")
        if "noload" in EXP: ex = [[y for y in x if "buffer_load" not in y] for x in ex]
        substep(u, ex)
    a("s_cbranch_scc0 L_loop")
    ORD[0] = [(t, q) for t in range(4) for q in range(3)] + [(t, 3) for t in range(4)]
    OO = O + 16 * OWN
    wr = lambda i, k: [f"ds_write_addtid_b32 v{O+16*i+4*k+e} offset:{(4*k+e)*256}" for e in range(4)]
    rdp = lambda k: f"ds_read2st64_b32 {vr(O+2*k,2)}, v{VX} offset0:{2*k} offset1:{2*k+1}"
    VW_ = {0: 13, 1: 13, 3: 11, 4: 9, 6: 7, 7: 5, 9: 0}
    misc = f"""s_mov_b64 s[20:21], s[50:51]
    s_mov_b32 s22, {2048*896}
    s_mov_b32 s23, 0x20000
    s_lshl4_add_u32 s28, s35, s{H}
    s_lshr_b32 s56, s28, 2
    s_lshl_b32 s56, s56, 5
    s_and_b32 s26, s{H}, 3
    s_add_u32 s56, s56, s26
    s_lshl_b32 s56, s56, 2
    s_add_u32 s56, s56, {WS_OFL}
    s_lshl_b32 s52, s28, 11
    s_add_u32 s52, s52, {WS_O}
    s_mov_b32 s57, 0""".split("\n")
    for u in range(16):
        ex = [[], [], [], []]
        if u == 0:
            ex[0] = [f"buffer_load_dwordx2 {vr(GR,2)}, v{VGO}, s[8:11], s53 offen sc1"]
            ex[1] = [f"buffer_load_dwordx4 {vr(XR,4)}, v{VXO}, s[12:15], s59 offen"]
            ex[2] = [f"buffer_load_dwordx4 {vr(XR+4,4)}, v{VXO}, s[12:15], s59 offen offset:32"]
        if u == 1:
            l = ldV(3, "s56"); ex[0] = [l[0]]; ex[1] = [l[1]]
            ex[2] = [f"ds_add_u32 v{VC}, v{V1} offset:{C_Z}"]
        if u in VW_: ex[3] = [f"s_waitcnt vmcnt({VW_[u]})"]
        if 2 <= u < 8:
            for k in range(3):
                if misc: ex[k] = [misc.pop(0)]
        if u in (11, 12, 13):
            for k in range(3): ex[k + 1] = wr(u - 11, k)
        if u in (12, 13, 14): ex[0] = wr(u - 12, 3)
        if u in (11, 12, 13): ex[0] = ex[0] + [f"s_mov_b32 m0, s{62+u-11}"]
        if u == 14:
            st(a, 8)
            ex[1] = [f"ds_add_u32 v{VC}, v{V1} offset:{C_C}"]
            ex[3] = [f"ds_read2_b32 v[4:5], v{VC} offset0:{C_C//4} offset1:{C_F//4}"]
        if u == 15:
            ex[1] = ["s_waitcnt lgkmcnt(0)", "v_lshl_add_u32 v4, v5, 7, v4", "v_cmp_gt_u32 vcc, 0x200, v4",
                     "s_cbranch_vccnz L_wait_ffn", "L_ffn_free:"] + [rdp(k) for k in range(8)]
            ex[2] = [rdp(k) for k in range(8, 16)]
            ex[3] = [rdp(k) for k in range(16, 24)]
        substep(u, ex, last=(u == 15))
    a(PV(15, 0))
    a("s_waitcnt lgkmcnt(8)")
    for k in range(4): a(f"v_pk_add_f32 {vr(O+2*k,2)}, {vr(O+2*k,2)}, {vr(O+16+2*k,2)}")
    a(PV(15, 1))
    for k in range(4, 8): a(f"v_pk_add_f32 {vr(O+2*k,2)}, {vr(O+2*k,2)}, {vr(O+16+2*k,2)}")
    a("s_waitcnt lgkmcnt(0)")
    for k in range(8): a(f"v_pk_add_f32 {vr(O+2*k,2)}, {vr(O+2*k,2)}, {vr(O+32+2*k,2)}")
    for k in (6, 7, 0, 1, 2, 3, 4, 5): a(f"v_pk_add_f32 {vr(OO+2*k,2)}, {vr(OO+2*k,2)}, {vr(O+2*k,2)}")
    a.label("L_fin")
    a(f"""v_mov_b32 v5, v{OO+12}
    v_mov_b32 v4, v{OO+12}
    s_mov_b32 exec_lo, 0
    v_mov_b32 v{OO+12}, 0
    s_mov_b32 exec_lo, -1
    v_permlane32_swap_b32 v5, v4
    v_rcp_f32 v6, v4
    s_mov_b32 s28, 0x2b800000
    s_mov_b32 s29, 0x6c800000
    v_cmp_nle_f32 s[54:55], s28, v4
    v_cmp_nge_f32 s[62:63], s29, v4
    v_pk_add_f32 v[4:5], {vr(OO,2)}, {vr(OO+2,2)}""")
    for k in range(2, 8): a(f"v_pk_add_f32 v[4:5], v[4:5], {vr(OO+2*k,2)}")
    a(f"""v_add_f32 v4, v4, v5
    s_movk_i32 s28, 0x207
    v_cmp_class_f32 vcc, v4, s28
    s_or_b64 s[54:55], s[54:55], s[62:63]""")
    for k in range(8): a(f"v_pk_mul_f32 {vr(OO+2*k,2)}, {vr(OO+2*k,2)}, v[6:7] op_sel_hi:[1,0]")
    for k in range(8): a(f"v_cvt_pk_bf16_f32 v{Q+k}, v{OO+2*k}, v{OO+2*k+1}")
    a(f"""v_mov_b32 v6, s{T}
    s_or_b64 s[54:55], s[54:55], vcc
    s_cbranch_scc1 L_bad
    L_good:
    buffer_store_dwordx4 {vr(Q,4)}, v1, s[8:11], s52 offen sc1
    buffer_store_dwordx4 {vr(Q+4,4)}, v1, s[8:11], s52 offen offset:1024 sc1
    s_mov_b64 exec, 1
    {"s_waitcnt vmcnt(0)" if ("noclr" in EXP or "otouch" in EXP) else ""}
    buffer_atomic_swap v6, v{VZ}, s[8:11], s56 offen sc1
    s_mov_b64 exec, -1""")
    st(a, 9)
    WOF = 104; B = 232; ACC = 8; U = 72
    OSB = [40, 72]
    PLR = 36
    a(f"""s_lshl2_add_u32 s28, s58, s{W}
    s_lshl_b32 s54, s28, 13
    s_add_u32 s54, s54, {WS_O}
    s_add_u32 s55, s54, 4096
    s_lshl_b32 s56, s28, 7
    s_add_u32 s56, s56, {WS_OFL}
    v_lshrrev_b32 v7, 2, v1
    v_bfe_u32 v4, v3, 2, 2
    v_lshl_add_u32 v4, v{VH}, 2, v4
    v_mul_u32_u24 v4, 224, v4
    v_bfe_u32 v5, v3, 4, 1
    v_lshl_add_u32 v4, v5, 5, v4
    v_and_b32 v5, 1, v3
    v_lshl_add_u32 v4, v5, 4, v4
    v_bfe_u32 v5, v3, 1, 1
    v_lshl_add_u32 v4, v5, 3, v4
    s_mul_i32 s28, s{W}, 56
    s_add_u32 s28, s28, {WO}
    v_add_u32 v4, s28, v4""")
    for r in range(4):
        a(f"""s_add_u32 s26, s{W}, {r}
        s_and_b32 s26, s26, 3
        s_mul_i32 s28, s26, {4*28*224}
        v_add_u32 v{24+r}, s28, v4""")
        if r:
            a(f"s_mul_i32 s28, s26, 12288\ns_add_u32 s28, s28, {CB}\nv_add_u32 v{32+r}, s28, v1")
    a(f"""v_lshlrev_b32 v30, 2, v{VT}
    v_add_u32 v30, {UPDI}, v30
    s_mul_i32 s28, s{W}, 112
    s_add_u32 s28, s28, {UPD}
    v_lshl_add_u32 v28, v{VH}, 5, s28
    v_mov_b32 v29, {CNT}
    s_lshl_b32 s28, 0x11, s{W}
    v_mov_b32 v31, s28""")
    at = lambda r: f"v_mov_b32 v{r}, 0\ns_mov_b64 exec, 15\nbuffer_atomic_or v{r}, v7, s[8:11], s56 offen sc0 sc1\ns_mov_b64 exec, -1"
    a(at(PLR))
    spin_lds(a, 29, C_W, 2, 6)
    for k in range(32):
        o = (28 * ((k >> 1) & 3) + 16 * (k & 1)) * 224
        b = 24 + (k >> 3)
        a(f"ds_read_b64_tr_b16 {vr(WOF+4*k,2)}, v{b} offset:{o}\nds_read_b64_tr_b16 {vr(WOF+4*k+2,2)}, v{b} offset:{o+8*224}")
        if k in (9, 21): a(at(PLR + (1 if k == 9 else 2)))
    a(f"s_mov_b32 s60, {SPIN_LIMIT}\ns_mov_b64 exec, 15\nL_op:")
    for i in range(4):
        a(f"""v_mov_b32 v{PLR+(i+3)%4}, 0
        buffer_atomic_or v{PLR+(i+3)%4}, v7, s[8:11], s56 offen sc0 sc1
        s_waitcnt vmcnt(3)
        v_cmp_ne_u32 vcc, s{T}, v{PLR+i}
        s_cbranch_vccz L_of""")
    a(f"""s_sub_u32 s60, s60, 1
    s_cbranch_scc0 L_op
    s_endpgm
    L_of:
    s_mov_b64 exec, -1""")
    if "twait" not in EXP: st(a, 10)
    def oload():
        for k in range(8):
            a(f"buffer_load_dwordx4 {vr(OSB[0]+4*k,4)}, v1, s[8:11], {'s54' if k < 4 else 's55'} offen offset:{(k&3)*1024} sc1")
    oload()
    for k in range(8):
        a(f"v_lshlrev_b32 v{B+2*k}, 16, v{XR+k}\nv_and_b32 v{B+2*k+1}, 0xffff0000, v{XR+k}")
    a(f"""v_cmp_ne_u32 vcc, s{T}, v{GR+1}
    s_cbranch_vccnz L_gate
    L_gate_ok:
    v_sub_f32 v24, 1.0, v{GR}
    v_cvt_pk_bf16_f32 v24, v24, v24
    v_lshlrev_b32 v24, 16, v24""")
    def stub(): pass
    def need(bit):
        l = uid("Lnd")
        a(f"""{l}:
        ds_read_b32 v6, v29 offset:{C_O}
        s_sub_u32 s60, s60, 1
        s_cbranch_scc1 L_exit
        s_waitcnt lgkmcnt(0)
        v_readfirstlane_b32 s61, v6
        s_bitcmp1_b32 s61, {bit}
        s_cbranch_scc0 {l}""")
    def rd(g):
        for k in range(8): a(f"ds_read_b128 {vr(OSB[g&1]+4*k,4)}, v{32+g} offset:{k*1024}")
    def mm(g, lo, hi):
        for k in range(lo, hi):
            a(f"{MF} {vr(ACC,16)}, {vr(WOF+32*g+4*k,4)}, {vr(OSB[g&1]+4*k,4)}, {'0' if g == 0 and k == 0 else vr(ACC,16)}")
    a(f"""ds_read_b32 v6, v29 offset:{C_O}
    s_mov_b32 s57, 0
    s_waitcnt lgkmcnt(0)
    v_readfirstlane_b32 s61, v6
    s_bitcmp1_b32 s61, 10
    s_cbranch_scc1 L_blkU
    s_mov_b32 s57, 1
    L_next0:
    v_mov_b32 v4, 0""")
    for k in range(8):
        r = OSB[0] + 4 * k
        a(f"""s_waitcnt vmcnt({7-k})
        ds_write_b128 v2, {vr(r,4)} offset:{k*1024}""")
        if k < 6: mm(0, k, k + 1)
        a(f"""v_max3_u32 v4, v4, v{r}, v{r+1}
        v_max3_u32 v4, v4, v{r+2}, v{r+3}""")
    a("v_cmp_eq_u32 vcc, -1, v4\ns_cbranch_vccnz L_again")
    lds_inc(a, 29, C_O, 31)
    a(f"s_mov_b32 s27, s{W}")
    for g in range(4):
        if g < 3: a(f"ds_read_b32 v6, v29 offset:{C_O}\ns_add_u32 s27, s27, 1")
        if g: a("s_waitcnt lgkmcnt(0)")
        mm(g, 0 if g else 6, 2 if g else 8)
        if g < 3:
            if not g: a("s_waitcnt lgkmcnt(0)")
            a(f"v_readfirstlane_b32 s61, v6\ns_bitcmp1_b32 s61, s27\ns_cbranch_scc0 L_late{g}")
            rd(g + 1)
        mm(g, 2 if g else 8, 8)
        a(f"L_back{g}:")
    a("s_cmp_lg_u32 s57, 0\ns_cbranch_scc1 L_lateU\nL_next1:")
    if "twait" not in EXP: st(a, 11)
    a("s_nop 9")
    for m in range(2):
        for e in range(4*m, 4*m+4):
            a(f"v_pk_fma_f32 {vr(B+2*e,2)}, {vr(ACC+2*e,2)}, {vr(GR,2)}, {vr(B+2*e,2)} op_sel_hi:[1,0,1]")
        for e in range(4*m, 4*m+4): a(f"v_cvt_pk_bf16_f32 v{40+e}, v{B+2*e}, v{B+2*e+1}")
        if m == 0:
            a(f"buffer_store_dwordx4 v[40:43], v{VXO}, s[20:23], s59 offen{OUTAUX}")
            stub()
        else:
            a(f"""s_mov_b32 exec_hi, 0
            buffer_store_dwordx4 v[44:47], v{VXO}, s[20:23], s59 offen offset:32{OUTAUX}
            s_mov_b64 exec, 0xffffffff
            s_not_b64 exec, exec
            buffer_store_dwordx2 v[44:45], v{VXO}, s[20:23], s59 offen offset:32{OUTAUX}""")
    st_end(a)
    diag_end(a)
    a("s_endpgm")
    for g in range(3):
        a(f"L_late{g}:")
        mm(g, 2 if g else 8, 8)
        need("s27"); rd(g + 1)
        a(f"s_branch L_back{g}")
    a("L_again:\ns_sub_u32 s60, s60, 1\ns_cbranch_scc1 L_exit\ns_waitcnt lgkmcnt(0)")
    oload()
    a("s_branch L_next0")
    a("L_lateU:")
    need(10)
    a(f"""L_blkU:
    ds_read_b32 v6, v30
    s_waitcnt lgkmcnt(0)
    v_cmp_le_i32 vcc, 0, v6
    s_cbranch_vccz L_noupd
    s_mov_b64 exec, vcc
    v_mul_u32_u24 v6, 448, v6
    v_add_u32 v28, v28, v6""")
    for k in range(4): a(f"ds_read_b128 {vr(U+4*k,4)}, v28 offset:{64*(k>>1)+16*(k&1)}")
    a("s_waitcnt lgkmcnt(0)")
    for k in range(8):
        a(f"""v_pk_add_f32 {vr(B+2*k,2)}, {vr(B+2*k,2)}, {vr(U+2*k,2)}
        v_cvt_pk_bf16_f32 v{B+2*k}, v{B+2*k}, v{B+2*k+1}
        v_and_b32 v{B+2*k+1}, 0xffff0000, v{B+2*k}
        v_lshlrev_b32 v{B+2*k}, 16, v{B+2*k}""")
    a("s_mov_b64 exec, -1\nL_noupd:")
    stub()
    for k in range(8): a(f"v_pk_mul_f32 {vr(B+2*k,2)}, {vr(B+2*k,2)}, v[24:25] op_sel_hi:[1,0]")
    a("s_cmp_lg_u32 s57, 0\ns_cbranch_scc1 L_next1\ns_branch L_next0")
    a("L_bad:\ns_cmp_eq_u32 s57, 0\ns_cbranch_scc1 L_slow")
    for k in range(8): a(f"v_min_u32 v{Q+k}, -2, v{Q+k}")
    a("s_branch L_good")
    a.label("L_wait_ffn")
    spin_lds(a, VC, C_C, 256, 7)
    spin_lds(a, VC, C_F, 2, 7)
    a("s_branch L_ffn_free")
    a.label("L_nextwait")
    spin_lds(a, VF, C_R + 4, 1, 7)
    a("s_sub_u32 s56, s61, 1\ns_branch L_nextok")
    a(f"""L_gate:
    s_mov_b32 s26, {WS_G}
    s_mov_b32 s60, {SPIN_LIMIT}
    L_gate1:
    buffer_load_dwordx2 {vr(GR,2)}, v{VGO}, s[8:11], s26 offen sc1
    s_waitcnt vmcnt(0)
    v_cmp_ne_u32 vcc, s{T}, v{GR+1}
    s_cbranch_vccz L_gate_ok
    s_sub_u32 s60, s60, 1
    s_cbranch_scc0 L_gate1
    s_endpgm""")
    a.label("L_slow")
    a(f"""s_mov_b32 s57, 1
    s_mov_b32 s55, {KVB}
    s_mov_b32 s54, 0
    s_mov_b32 exec_lo, 0
    v_mov_b32 v{QO+6}, 0
    v_mov_b32 v{QO+7}, 0
    s_mov_b32 exec_lo, -1
    v_mov_b32 v4, 0xff800000
    L_slow1:
    {ldK(0, "s54")[0]}
    {ldK(0, "s54")[1]}
    s_waitcnt vmcnt(0)
    {MF} {vr(S,16)}, {vr(KV,4)}, {vr(QO,4)}, 0
    {MF} {vr(S,16)}, {vr(KV+4,4)}, {vr(QO+4,4)}, {vr(S,16)}""")
    for x in max16_list(4, S, init=True): a(x)
    a(f"""s_add_u32 s54, s54, {TS}
    s_cmp_lt_u32 s54, s55
    s_cbranch_scc1 L_slow1
    v_mov_b32 v5, v4
    v_permlane32_swap_b32 v4, v5
    v_max_f32 v4, v4, v5""")
    split_neg_max(a, 4, 5, 6, QO + 6, QO + 7)
    for i in range(16): a(f"v_mov_b32 v{OO+i}, 0")
    a(f"""s_mov_b32 s54, 0
    L_slow2:
    {ldK(0, "s54")[0]}
    {ldK(0, "s54")[1]}
    {ldV(0, "s54")[0]}
    {ldV(0, "s54")[1]}
    s_waitcnt vmcnt(0)
    {MF} {vr(S,16)}, {vr(KV,4)}, {vr(QO,4)}, 0
    {MF} {vr(S,16)}, {vr(KV+4,4)}, {vr(QO+4,4)}, {vr(S,16)}""")
    for i in range(16): a(f"v_exp_f32 v{S+i}, v{S+i}")
    for i in range(8): a(f"v_cvt_pk_bf16_f32 v{P+i}, v{S+2*i}, v{S+2*i+1}")
    a(f"""{MF} {vr(OO,16)}, {vr(KV+8,4)}, {vr(P,4)}, {vr(OO,16)}
    {MF} {vr(OO,16)}, {vr(KV+12,4)}, {vr(P+4,4)}, {vr(OO,16)}
    s_nop 7
    s_nop 7
    s_add_u32 s54, s54, {TS}
    s_cmp_lt_u32 s54, s55
    s_cbranch_scc1 L_slow2
    s_branch L_fin""")

GI = WO; DI = QX; HB = WO + 101376
FT, KS = 66, 67
def service_wave(a):
    a.label("L_service")
    a(f"""v_mov_b32 v14, {CNT}
    v_mov_b32 v15, 1
    v_mov_b32 v9, 0""")
    srd(a, 8, 36, (1 << 28) - WSBASE)
    a("s_waitcnt lgkmcnt(0)")
    tag(a)
    a(f"v_mov_b32 v4, s{T}\nds_write_b32 v14, v4 offset:{C_T}\ns_waitcnt vmcnt(0)")
    lds_inc(a, 14, C_Q1, 15)
    a(f"""v_and_b32 v32, 31, v3
    v_lshrrev_b32 v33, 5, v3
    v_lshlrev_b32 v219, 3, v1
    v_lshrrev_b32 v220, 2, v1
    v_and_b32 v4, 7, v3
    v_lshlrev_b32 v217, 3, v4
    s_lshr_b32 s58, s{H}, 2
    s_lshl2_add_u32 s58, s{J}, s58
    v_lshlrev_b32 v211, 11, v33
    v_lshl_add_u32 v211, v32, 4, v211
    v_and_b32 v4, 24, v3
    v_lshl_add_u32 v4, v33, 2, v4
    v_lshl_add_u32 v4, v217, 4, v4
    s_lshl_b32 s26, s{L}, 5
    s_add_u32 s26, s26, {HB}
    v_add_u32 v214, s26, v4
    s_mul_i32 s{FT}, s2, 9363
    s_lshr_b32 s{FT}, s{FT}, 16
    s_mul_i32 s26, s{FT}, 7
    s_sub_u32 s{KS}, s2, s26
    s_cmp_ge_u32 s{L}, 2
    s_cbranch_scc1 L_svcB""")
    def sel_load(lbl):
        a(f"""s_mov_b32 s26, {WS_SEL}
        s_mov_b32 s60, {SPIN_LIMIT}
        {lbl}:
        buffer_load_dwordx2 v[20:21], v217, s[8:11], s26 offen sc1
        s_waitcnt vmcnt(0)
        v_cmp_ne_u32 vcc, s{T}, v21
        s_cbranch_vccz {lbl}_ok
        s_sleep 4
        s_sub_u32 s60, s60, 1
        s_cbranch_scc0 {lbl}
        s_endpgm
        {lbl}_ok:""")
    a(f"""s_lshl_b32 s27, s{J}, 6
    s_add_u32 s27, s27, {WS_R}
    s_cmp_eq_u32 s{RL}, 14
    s_cbranch_scc1 L_rank
    s_cmp_lg_u32 s2, {SELECTOR}
    s_cbranch_scc1 L_svcA
    s_lshl_b32 s28, s{L}, 8
    s_add_u32 s28, s28, {KEYS}
    v_add_u32 v7, s28, v220
    v_lshl_add_u32 v6, v33, 7, s28
    s_lshl_b32 s28, s{L}, 6
    s_add_u32 s28, s28, {CAND}
    v_lshl_add_u32 v10, v33, 5, s28
    s_lshl_b32 s26, s{L}, 9
    s_add_u32 s26, s26, {WS_R}
    s_mov_b32 s27, {WS_SEL}
    v_lshlrev_b32 v4, 3, v3
    v_mov_b32 v5, 2
    s_mov_b32 s60, {SPIN_LIMIT}
    L_keys:
    v_mov_b32 v20, 0
    v_mov_b32 v21, 0
    buffer_atomic_or_x2 v[20:21], v4, s[8:11], s26 offen sc0 sc1
    s_sub_u32 s60, s60, 1
    s_cbranch_scc1 L_exit
    s_waitcnt vmcnt(0)
    v_cmp_ne_u32 vcc, s{T}, v21
    s_cbranch_vccnz L_keys
    ds_write_b32 v7, v20""")
    for k in range(8): a(f"ds_read_b128 {vr(40+4*k,4)}, v6 offset:{16*k}")
    rank_count(a, 20, 40, 32, 22, 23)
    a(f"""v_cmp_gt_u32 vcc, 8, v22
    v_lshl_add_u32 v22, v22, 2, v10
    s_mov_b64 exec, vcc
    ds_write_b32 v22, v20""")
    lds_inc(a, 14, C_K, 5)
    a(f"""L_rank:
    s_cmp_lg_u32 s{L}, 0
    s_cbranch_scc1 L_svcA
    v_mov_b32 v6, {CAND}
    v_lshl_add_u32 v7, v32, 2, v6
    v_lshl_add_u32 v6, v33, 6, v6
    v_mov_b32 v21, s{T}""")
    spin_lds(a, 14, C_K, 4, 8)
    st(a, 10)
    if STAMP: a("s_waitcnt lgkmcnt(0)")
    a("ds_read_b32 v20, v7")
    for k in range(4): a(f"ds_read_b128 {vr(40+4*k,4)}, v6 offset:{16*k}")
    rank_count(a, 20, 40, 16, 22, 23)
    a(f"""v_mov_b32 v23, v22
    v_permlane32_swap_b32 v22, v23
    v_add_u32 v22, v22, v23
    v_cmp_gt_u32 vcc, 8, v22
    v_lshlrev_b32 v22, 3, v22
    s_mov_b32 exec_lo, vcc_lo
    s_mov_b32 exec_hi, 0
    buffer_atomic_swap_x2 v[20:21], v22, s[8:11], s27 offen sc1
    s_mov_b64 exec, -1""")
    st(a, 11)
    a.label("L_svcA")
    for r in (204, 205, 206, 215, 216): a(f"v_mov_b32 v{r}, 0")
    a(f"""v_mov_b32 v28, -1
    v_mov_b32 v29, -1
    v_mov_b32 v30, -1
    v_mov_b32 v31, -1
    s_lshl_b32 s59, s{J}, 6
    s_add_u32 s59, s59, s{H}
    s_lshl1_add_u32 s59, s59, s{L}
    s_lshl_b32 s59, s59, 10
    s_add_u32 s59, s59, {WS_O}
    s_cmp_ge_u32 s2, 196
    s_cbranch_scc1 L_nofn
    v_lshrrev_b32 v4, 3, v3
    v_and_b32 v5, 2, v4
    v_lshlrev_b32 v5, 1, v5
    v_and_b32 v6, 7, v3
    v_xor_b32 v5, v5, v6
    v_mul_u32_u24 v6, 3584, v4
    v_lshl_add_u32 v34, v5, 4, v6
    v_add_u32 v35, {8*3584-1024}, v34
    v_add_u32 v36, {2*(8*3584-1024)}, v34
    v_add_u32 v37, {3*(8*3584-1024)}, v34
    v_mul_u32_u24 v6, 896, v4
    v_lshl_add_u32 v200, v5, 4, v6
    v_add_u32 v201, {8*896-1024}, v200
    v_add_u32 v202, {2*(8*896-1024)}, v200
    v_add_u32 v203, {3*(8*896-1024)}, v200
    s_lshl_b32 s54, s{L}, 13
    s_add_u32 s54, s54, {GI}
    v_and_b32 v4, 3, v3
    v_lshrrev_b32 v6, 4, v3
    v_bfe_u32 v7, v3, 2, 2
    v_lshl_add_u32 v8, v6, 3, v7
    v_lshlrev_b32 v8, 7, v8
    v_lshrrev_b32 v7, 1, v7
    v_lshl_add_u32 v8, v7, 6, v8
    v_lshl_add_u32 v8, v4, 3, v8
    v_add_u32 v38, s54, v8
    v_xor_b32 v39, 64, v38
    v_lshlrev_b32 v213, 4, v6
    v_lshlrev_b32 v212, 3, v213
    v_lshl_add_u32 v212, v217, 1, v212""")
    srd(a, 16, 42, 448 * 3584)
    a(f"""s_cmp_eq_u32 s{L}, 1
    s_cselect_b64 s[16:17], s[44:45], s[42:43]
    s_mul_i32 s52, s{KS}, {64*3584}
    s_lshl_b32 s28, s{FT}, 7
    s_add_u32 s52, s52, s28
    s_movk_i32 s29, 896""")
    if GA >= 0: spin_lds(a, 14, C_A, 256, 8, sleep=4)
    else: spin_lds(a, 14, C_L, 8 if "deferA" in EXP else 4, 8, sleep=4)
    st(a, 3)
    NR = 2 if "fine" in EXP else 4
    XS_ = 40; FW = 56; AC = 104
    if "nogu" in EXP: a("s_mov_b32 s18, 0")
    a("s_mov_b32 m0, s54\ns_nop 0")
    for k in range(8):
        if k == 4: a(f"s_add_u32 s52, s52, {32*3584}\ns_add_u32 m0, s54, 4096")
        if k == 8 - NR: sel_load("L_sel1")
        elif k and k % NR == 0: a("s_waitcnt vmcnt(0)")
        a(f"buffer_load_dwordx4 v{34+(k&3)}, s[16:19], s52 offen offset:{1024*(k&3)} lds")
    a(f"""v_not_b32 v4, v20
    v_and_b32 v4, 0x7ff, v4
    v_mad_u32_u24 v4, v4, s29, v213
    s_lshl_b32 s26, s{KS}, 7
    s_mov_b32 exec_lo, 0x00ff00ff
    s_mov_b32 exec_hi, 0x00ff00ff
    buffer_load_dwordx4 {vr(XS_,4)}, v4, s[12:15], s26 offen
    buffer_load_dwordx4 {vr(XS_+4,4)}, v4, s[12:15], s26 offen offset:64
    s_mov_b64 exec, -1
    s_waitcnt vmcnt(2)""")
    for k in range(2):
        for n in range(4):
            o = k * 4096 + (n & 1) * 32
            a(f"ds_read_b64_tr_b16 {vr(FW+16*k+4*n,2)}, v{38+(n>>1)} offset:{o}\nds_read_b64_tr_b16 {vr(FW+16*k+4*n+2,2)}, v{38+(n>>1)} offset:{o+512}")
    a(f"""s_mov_b64 s[16:17], s[46:47]
    s_lshl1_add_u32 s28, s{FT}, s{L}
    s_mul_i32 s28, s28, {32*896}
    s_add_u32 s28, s28, s26
    s_lshl_b32 s29, s{L}, 12
    s_add_u32 m0, s29, {DI}
    s_lshl1_add_u32 s26, s2, s{L}
    s_lshl_b32 s26, s26, 11
    s_add_u32 s26, s26, {WS_GP}
    s_waitcnt vmcnt(0) lgkmcnt(0)""")
    st(a, 4)
    for k in range(2):
        for n in range(4):
            a(f"v_mfma_f32_16x16x32_bf16 {vr(AC+4*n,4)}, {vr(FW+16*k+4*n,4)}, {vr(XS_+4*k,4)}, {'0' if k==0 else vr(AC+4*n,4)}")
    a("s_mov_b32 exec_lo, 0x00ff00ff\ns_mov_b32 exec_hi, 0x00ff00ff")
    for n in range(4):
        a(f"buffer_store_dwordx4 {vr(AC+4*n,4)}, v212, s[8:11], s26 offen offset:{512*n} sc1")
    a("s_mov_b64 exec, -1")
    if "nowd" in EXP: a("s_mov_b32 s18, 0")
    for k in range(4): a(f"buffer_load_dwordx4 v{200+k}, s[16:19], s28 offen offset:{1024*k} lds")
    a(f"""s_lshl1_add_u32 s26, s{KS}, s{L}
    s_lshl_b32 s26, s26, 2
    s_mul_i32 s28, s{FT}, {7*128}
    s_add_u32 s26, s26, s28
    s_add_u32 s26, s26, {WS_F1}
    s_waitcnt vmcnt(4)""")
    signal(a, 5, 219, "s26", "0x7f")
    st(a, 5)
    a(f"s_cmp_lg_u32 s{L}, 0\ns_cbranch_scc1 L_st2w\ns_lshl_b32 s26, s2, 7\ns_add_u32 s26, s26, {WS_F1}")
    poll_atomic(a, 5, 220, "s26", "0x3fff", 2)
    lds_inc(a, 14, C_L, 15)
    a("L_st2w:")
    spin_lds(a, 14, C_L, 1, 8, sleep=3)
    st(a, 6)
    GP = 40; DW = 120
    a(f"s_mul_i32 s26, s{FT}, {7*4096}\ns_lshl_b32 s28, s{L}, 9\ns_add_u32 s26, s26, s28\ns_add_u32 s26, s26, {WS_GP}")
    for k in range(7):
        a(f"buffer_load_dwordx4 {vr(GP+4*k,4)}, v211, s[8:11], s26 offen sc1")
        if k < 6: a("s_add_u32 s26, s26, 4096")
    a(f"s_mov_b32 s28, {NLOG2E:#x}\ns_waitcnt vmcnt(0)")
    for k in range(1, 7):
        if "nopk" in EXP:
            for e in range(4): a(f"v_add_f32 v{GP+e}, v{GP+e}, v{GP+4*k+e}")
        else:
            for e in range(2): a(f"v_pk_add_f32 {vr(GP+2*e,2)}, {vr(GP+2*e,2)}, {vr(GP+4*k+2*e,2)}")
    a(f"""v_permlane32_swap_b32 v{GP}, v{GP+2}
    v_permlane32_swap_b32 v{GP+1}, v{GP+3}
    v_mul_f32 v22, s28, v{GP}
    v_mul_f32 v23, s28, v{GP+1}
    v_exp_f32 v22, v22
    v_exp_f32 v23, v23
    v_add_f32 v22, 1.0, v22
    v_add_f32 v23, 1.0, v23
    v_rcp_f32 v22, v22
    v_rcp_f32 v23, v23
    v_pk_mul_f32 v[22:23], v[22:23], {vr(GP,2)}
    v_pk_mul_f32 v[22:23], v[22:23], {vr(GP+2,2)}
    v_cvt_pk_bf16_f32 v22, v22, v23
    ds_write_b32 v214, v22""")
    lds_inc(a, 14, C_S, 15)
    a(f"s_cmp_ge_u32 s{L}, 2\ns_cbranch_scc1 L_st3\ns_branch L_clr")
    a.label("L_nofn")
    spin_lds(a, 14, C_A, 512, 8, sleep=8)
    srd(a, 16, 38, 448 * 896)
    a(f"""s_sub_u32 s26, s2, 196
    s_lshl1_add_u32 s26, s26, s{L}
    s_mul_i32 s26, s26, {27*128}
    s_min_u32 s26, s26, {(3136-27)*128}
    s_mov_b64 exec, 0x7ffffff
    buffer_load_dword v6, v219, s[16:19], s26 offen
    s_mov_b64 exec, -1""")
    sel_load("L_sel2")
    a(f"""s_lshl2_add_u32 s26, s2, s{L}
    s_cmp_lg_u32 s26, {254*4}
    s_cbranch_scc1 L_clr""")
    a(f"s_mov_b32 s60, {SPIN_LIMIT}\nL_ep:")
    for k in range(4):
        a(f"s_mov_b32 s26, {WS_FL+8192*k}\nbuffer_load_dword v{24+k}, v219, s[8:11], s26 offen sc1")
    a(f"""s_sub_u32 s60, s60, 1
    s_cbranch_scc1 L_exit
    s_waitcnt vmcnt(0)
    v_xor_b32 v24, s{T}, v24
    v_bitop3_b32 v24, v24, v25, s{T} bitop3:0xf6
    v_bitop3_b32 v24, v24, v26, s{T} bitop3:0xf6
    v_bitop3_b32 v24, v24, v27, s{T} bitop3:0xf6
    v_cmp_ne_u32 vcc, 0, v24
    s_cbranch_vccnz L_ep
    s_mov_b32 s26, {WS_EP}""")
    flag_store(a, 5, 9, "s26")
    a("L_clr:")
    for k in range(4):
        a(f"buffer_store_dwordx4 v[28:31], v1, s[8:11], s59 offen sc1\ns_add_u32 s59, s59, {16*2048}")
        if k & 1: a("s_waitcnt vmcnt(0)")
    lds_inc(a, 14, C_F, 15)
    st(a, 7)
    Y = 40
    a(f"""L_updA:
    s_and_b32 s53, s{H}, 3
    s_mul_i32 s53, s53, 224
    s_lshl_b32 s57, s{L}, 2
    s_lshr_b32 s26, s53, 6
    s_lshl_b32 s26, s26, 7
    s_add_u32 s62, s26, {WS_YFL}
    L_upd:
    v_readlane_b32 s52, v20, s57
    s_andn2_b32 s54, 0x7ff, s52
    s_lshr_b32 s26, s54, 5
    s_cmp_lg_u32 s26, s58
    s_cbranch_scc1 L_updn
    s_mov_b32 s60, {SPIN_LIMIT}
    s_mov_b32 exec_lo, 0x0fffffff
    s_mov_b32 exec_hi, 0x0fffffff
    L_yfl:
    v_mov_b32 v24, 0
    v_mov_b32 v25, 0
    buffer_atomic_or v24, v220, s[8:11], s62 offen sc0 sc1
    buffer_atomic_or v25, v220, s[8:11], s62 offen offset:256 sc0 sc1
    s_waitcnt vmcnt(0)
    v_xor_b32 v24, s{T}, v24
    v_bitop3_b32 v24, v24, v25, s{T} bitop3:0xf6
    v_cmp_ne_u32 vcc, 0, v24
    s_cbranch_vccz L_yok
    s_sub_u32 s60, s60, 1
    s_cbranch_scc0 L_yfl
    s_endpgm
    L_yok:
    v_mul_u32_u24 v4, {14*14336}, v33
    v_lshl_add_u32 v4, v32, 4, v4
    s_mul_i32 s26, s57, 1792
    s_lshl1_add_u32 s26, s53, s26
    s_add_u32 s26, s26, {WS_YP}""")
    for i in range(14):
        a(f"buffer_load_dwordx4 {vr(Y+4*i,4)}, v4, s[8:11], s26 offen sc1\ns_add_u32 s26, s26, 14336")
    a(f"""s_mov_b64 exec, -1
    s_lshr_b32 s26, s52, 11
    s_not_b32 s55, s26
    s_and_b32 s29, s26, 0x7fff
    s_bitcmp1_b32 s26, 15
    s_cselect_b32 s26, s29, s55
    s_lshl_b32 s26, s26, 16
    v_mov_b32 v6, {NLOG2E:#x}
    v_mul_f32 v6, s26, v6
    v_exp_f32 v6, v6
    v_add_f32 v6, 1.0, v6
    v_rcp_f32 v6, v6
    v_cvt_pk_bf16_f32 v6, v6, v6
    v_lshlrev_b32 v6, 16, v6
    s_mul_i32 s26, s57, 448
    s_add_u32 s26, s26, {UPD}
    v_lshl_add_u32 v7, v32, 4, s26
    s_waitcnt vmcnt(0)""")
    for i in range(1, 14):
        a(f"v_pk_add_f32 {vr(Y,2)}, {vr(Y,2)}, {vr(Y+4*i,2)}\nv_pk_add_f32 {vr(Y+2,2)}, {vr(Y+2,2)}, {vr(Y+4*i+2,2)}")
    for k in range(4): a(f"v_mov_b32 v{Y+4+k}, v{Y+k}")
    for k in range(4): a(f"v_permlane32_swap_b32 v{Y+k}, v{Y+4+k}")
    for k in range(4): a(f"v_add_f32 v{Y+k}, v{Y+k}, v{Y+4+k}")
    for k in range(0, 4, 2):
        a(f"""v_cvt_pk_bf16_f32 v{Y+k}, v{Y+k}, v{Y+k+1}
        v_and_b32 v{Y+k+1}, 0xffff0000, v{Y+k}
        v_lshlrev_b32 v{Y+k}, 16, v{Y+k}
        v_mul_f32 v{Y+k}, v{Y+k}, v6
        v_mul_f32 v{Y+k+1}, v{Y+k+1}, v6
        v_cvt_pk_bf16_f32 v{Y+k}, v{Y+k}, v{Y+k+1}
        v_and_b32 v{Y+k+1}, 0xffff0000, v{Y+k}
        v_lshlrev_b32 v{Y+k}, 16, v{Y+k}""")
    a(f"""s_and_b32 s54, s54, 31
    v_mov_b32 v5, s57
    s_lshl_b32 s26, s54, 2
    s_add_u32 s26, s26, {UPDI}
    v_mov_b32 v4, s26
    s_mov_b64 exec, 0x0fffffff
    ds_write_b128 v7, {vr(Y,4)}
    s_mov_b64 exec, 1
    ds_write_b32 v4, v5
    s_mov_b64 exec, -1
    L_updn:
    s_add_u32 s57, s57, 1
    s_and_b32 s26, s57, 3
    s_cbranch_scc1 L_upd
    v_mov_b32 v6, 512""")
    lds_inc(a, 14, C_O, 6)
    st(a, 9)
    a("s_branch L_ofetch")
    a.label("L_svcB")
    CLR = "buffer_store_dwordx4 v[24:27], v1, s[8:11], s59 offen sc1"
    if "noclr" in EXP: CLR = ""
    if "otouch" in EXP: CLR = "s_mov_b32 exec_lo, 0x0f0f0f0f\ns_mov_b32 exec_hi, 0x0f0f0f0f\nbuffer_store_dwordx4 v[24:27], v1, s[8:11], s59 offen sc1\ns_mov_b64 exec, -1"
    OUTT = ""
    if "outtouch" in EXP:
        OUTT = f"""s_cmp_lg_u32 s55, {42*1024}
        s_cbranch_scc1 L_noot
        s_mov_b32 s20, s50
        s_mov_b32 s21, s51
        s_mov_b32 s22, {2048*896}
        s_mov_b32 s23, 0x20000
        s_lshl_b32 s26, s58, 5
        v_add_u32 v4, s26, v32
        v_mul_u32_u24 v4, 896, v4
        s_add_u32 s26, s53, 127
        s_and_b32 s26, s26, 0xffffff80
        v_lshl_add_u32 v4, v33, 7, v4
        s_cmp_eq_u32 s53, 672
        s_cselect_b32 exec_hi, 0, -1
        buffer_store_dword v9, v4, s[20:23], s26 offen sc1
        s_mov_b64 exec, -1
        L_noot:"""
    WOPF = "s_mov_b32 exec_hi, 0x1ffff\nbuffer_load_dword v6, v219, s[16:19], s28 offen\ns_mov_b64 exec, -1" if "wopfS" not in EXP and "nowopf" not in EXP else ""
    for e in range(7):
        a(f"""v_add_u32 v4, {64*e}, v3
        v_mul_u32_u24 v5, 4682, v4
        v_lshrrev_b32 v5, 16, v5
        v_mul_u32_u24 v5, {896-224}, v5
        v_lshl_add_u32 v{200+e}, v4, 4, v5""")
    a(f"""v_mov_b32 v16, 0
    v_mov_b32 v17, 0
    v_mov_b32 v18, 0
    v_mov_b32 v19, 0
    v_add_u32 v209, {WO+448*224}, v1
    v_bfe_u32 v7, v3, 2, 2
    v_lshl_add_u32 v5, v33, 3, v7
    v_lshlrev_b32 v5, 7, v5
    v_bfe_u32 v4, v3, 4, 1
    v_lshl_add_u32 v5, v4, 5, v5
    v_and_b32 v4, 3, v3
    v_lshl_add_u32 v5, v4, 3, v5
    v_lshrrev_b32 v7, 1, v7
    v_xor_b32 v7, s{L}, v7
    v_and_b32 v7, 1, v7
    v_lshl_add_u32 v5, v7, 6, v5
    v_add_u32 v210, {DI}, v5
    v_lshlrev_b32 v4, 4, v217
    v_lshl_add_u32 v4, v33, 4, v4
    v_add_u32 v218, {HB}, v4
    v_mul_u32_u24 v215, {4*1792}, v33
    v_lshl_add_u32 v215, v32, 2, v215
    v_add_u32 v216, {2*1792}, v215
    s_cmp_eq_u32 s{L}, 2
    s_cbranch_scc1 L_svcB2
    v_lshrrev_b32 v4, 4, v3
    v_and_b32 v5, 15, v3
    v_lshlrev_b32 v5, 2, v5
    v_lshl_add_u32 v221, v4, 9, v5
    v_lshl_add_u32 v222, v4, 5, v14
    v_and_b32 v223, 48, v3
    v_and_b32 v5, 15, v3
    v_add_u32 v6, v5, v4
    v_mul_u32_u24 v224, {4*TS}, v6
    v_add_u32 v224, 1, v224
    v_bfm_b32 v225, v5, 0
    s_mul_i32 s26, s{H}, 28
    s_add_u32 s28, s26, 27
    s_xor_b32 s26, s26, s28
    s_mov_b32 s62, 0x55555555
    s_cmp_ge_u32 s26, 64
    s_cselect_b32 s62, -1, s62
    s_mov_b32 s63, s62
    s_lshr_b32 s28, s{J}, 2
    s_lshl4_add_u32 s26, s{H}, s28
    s_lshl_b32 s26, s26, 7
    s_add_u32 s26, s26, {WS_MB}""")
    spin_lds(a, 14, C_D, PCD, 8, sleep=1)
    at = lambda r: f"v_mov_b32 v{r}, 0\nbuffer_atomic_or v{r}, v221, s[8:11], s26 offen sc0 sc1"
    a(f"""s_mov_b32 s60, {SPIN_LIMIT}
    s_mov_b32 s52, 0x11111111
    s_mov_b32 s53, 0x11111111
    s_mov_b64 s[56:57], s[52:53]
    s_mov_b64 exec, s[62:63]""")
    for i in range(PD - 1): a(at(28 + i) + f"\ns_sleep {PG}")
    a("L_kv:")
    for i in range(PD):
        a(at(28 + (i + PD - 1) % PD))
        a(f"""s_waitcnt vmcnt({PD-1})
        v_cmp_ne_u32 vcc, s{T}, v{28+i}
        s_lshr_b64 s[28:29], vcc, 1
        s_or_b64 s[28:29], s[28:29], vcc
        s_andn2_b64 s[54:55], s[56:57], s[28:29]
        s_cbranch_scc0 L_kvs{i}
        s_ff1_i32_b64 s54, s[54:55]
        s_lshl_b64 exec, 1, s54
        ds_write_b32 v14, v224 offset:{C_M}
        s_mov_b64 exec, s[62:63]
        s_mov_b64 s[56:57], 0
        L_kvs{i}:
        s_lshr_b64 s[54:55], s[28:29], 2
        s_or_b64 s[28:29], s[28:29], s[54:55]
        s_andn2_b64 s[28:29], s[52:53], s[28:29]
        s_cbranch_scc0 L_kvn{i}
        s_andn2_b64 s[52:53], s[52:53], s[28:29]
        v_lshrrev_b64 v[4:5], v223, s[28:29]
        v_and_b32 v5, v225, v4
        v_bcnt_u32_b32 v5, v5, 0
        v_lshl_add_u32 v5, v5, 2, v222
        s_mov_b64 exec, s[28:29]
        ds_write_b32 v5, v224 offset:{C_R}
        s_mov_b64 exec, s[62:63]
        v_and_b32 v4, 0xffff, v4
        v_bcnt_u32_b32 v4, v4, 0
        v_lshl_add_u32 v222, v4, 2, v222
        s_cmp_eq_u64 s[52:53], 0
        s_cbranch_scc1 L_kvdone
        L_kvn{i}:""")
    a(f"""s_sub_u32 s60, s60, 1
    s_cbranch_scc0 L_kv
    s_endpgm
    L_kvdone:
    s_mov_b64 exec, -1
    L_svcB2:""")
    srd(a, 16, 38, 448 * 896)
    a(f"""s_and_b32 s53, s{H}, 3
    s_mul_i32 s53, s53, 224
    s_and_b32 s27, s{L}, 1
    s_mul_i32 s55, s27, {7*1024}
    s_mul_i32 s57, s27, {32*896}
    s_add_u32 s57, s57, s53""")
    spin_lds(a, 14, C_A, 256, 8, sleep=4)
    st(a, 3)
    a(f"""ds_write_b128 v209, v[16:19]
    s_cmp_lg_u32 s{L}, 2
    s_cbranch_scc1 L_nofl
    s_lshl_b32 s26, s2, 7
    s_add_u32 s26, s26, {WS_FL}""")
    flag_store(a, 5, 9, "s26")
    a("L_nofl:\ns_cmp_lt_u32 s2, 196\ns_cbranch_scc1 L_st2w\ns_branch L_wo1")
    a("L_st3:")
    spin_lds(a, 14, C_S, 4, 8, sleep=1)
    for k in range(4):
        a(f"ds_read_b64_tr_b16 {vr(DW+4*k,2)}, v210 offset:{k*2048}\nds_read_b64_tr_b16 {vr(DW+4*k+2,2)}, v210 offset:{k*2048+512}")
    for k in range(4):
        a(f"ds_read_b128 {vr(GP+4*k,4)}, v218 offset:{32*k}\ns_waitcnt lgkmcnt(0)\n{MF} {vr(AC,16)}, {vr(GP+4*k,4)}, {vr(DW+4*k,4)}, {'0' if k==0 else vr(AC,16)}")
    a(f"""s_mul_i32 s26, s{FT}, 14336
    s_lshl1_add_u32 s28, s{KS}, s27
    s_lshl_b32 s29, s28, 7
    s_add_u32 s26, s26, s29
    s_add_u32 s26, s26, {WS_YP}
    s_lshl2_add_u32 s28, s{FT}, s29
    s_add_u32 s28, s28, {WS_YFL}
    buffer_store_dword v{AC}, v215, s[8:11], s26 offen sc1
    buffer_store_dword v{AC+1}, v215, s[8:11], s26 offen offset:1792 sc1
    buffer_store_dword v{AC+2}, v216, s[8:11], s26 offen sc1
    buffer_store_dword v{AC+3}, v216, s[8:11], s26 offen offset:1792 sc1
    s_waitcnt vmcnt(0)""")
    signal(a, 5, 9, "s28", 1)
    st(a, 7)
    a("L_wo1:")
    def wo_loop(lbl, depth, lim):
        a(f"{lbl}:")
        for e in range(7):
            a(f"""s_add_u32 m0, s55, {WO+e*1024}
            s_waitcnt vmcnt({depth})
            buffer_load_dwordx4 v{200+e}, s[16:19], s57 offen lds""")
        a(f"""s_add_u32 s55, s55, {14*1024}
        s_add_u32 s57, s57, {64*896}
        s_cmp_lt_u32 s55, {lim*1024}
        s_cbranch_scc1 {lbl}""")
    if NEARLYWO: wo_loop("L_wo0", 1, 14 * NEARLYWO)
    spin_lds(a, 14, C_Z, 64 * ZN, 8, sleep=4)
    st(a, 4)
    wo_loop("L_wo", 14, 98)
    a("s_waitcnt vmcnt(0)")
    lds_inc(a, 14, C_W, 15)
    st(a, 8)
    a.label("L_ofetch")
    a("s_waitcnt vmcnt(0) lgkmcnt(0)")
    st_end(a)
    a("L_exit:\nL_code_end:\ns_endpgm")

def main(out):
    hdr = open("cdna_kernels/" + NAME + ".s.ref").read().split("; Override")[0]
    rep = []
    a = Asm()
    prologue_and_loader(a); main_wave(a); service_wave(a)
    t = hdr
    t += f"; @launch grid=(256,1,1) block=(512,1,1) lds={LDS_BYTES}\n"
    t += '.amdgcn_target "amdgcn-amd-amdhsa--gfx950"\n'
    t += kernel_text(NAME + "_kernel", a.l, 256, report=rep)
    open(out, "w").write(t)
    if "-v" in sys.argv: print("\n".join(rep))

if __name__ == "__main__":
    main(sys.argv[1])
```

```python
import sys, math, struct
from asmlib import *

NAME = "gated_mix__softmax_full_mha__moe_arch_mod__prompt"
STAMP = "-s" in sys.argv
EXP = set(x[2:] for x in sys.argv if x.startswith("-x"))
WS_KV = 0
BLK = 5120; TS = 14 * BLK; KVB = 64 * TS
WS_O = 0x480000
WS_R = 0x680000
WS_G = WS_R + 16384
WS_SEL = WS_R + 32768
WS_EP = WS_R + 40960
WS_FL = WS_R + 65536
WS_MB = WS_FL + 32768
WS_OFL = WS_MB + 32768
WS_YFL = WS_OFL + 32768
WS_F1 = WS_YFL + 4096
WS_YP = WS_R + (1 << 18)
WS_GP = 0x730000
WS_ST = 16 << 20
XS = 0; WT = 65536; WQ = 122880; QX = 151552; UPD = 159744
WO = 0; CB = 102400
UPDI = UPD + 3584
KEYS = UPD
RT = UPD + 1024
CAND = UPD + 512
SELECTOR = 223
CNT = 163840 - 192
C_M = 88
LDS_BYTES = 163840
C_Q1, C_Q2, C_X, C_L, C_S, C_D, C_C, C_O, C_W, C_F, C_K, C_T, C_P, C_R = 0, 4, 8, 12, 16, 20, 24, 28, 32, 36, 40, 44, 48, 64

def f32bits(x): return struct.unpack("<I", struct.pack("<f", x))[0]
QSCALE = f32bits(28 ** -0.5 * math.log2(math.e))
NLOG2E = f32bits(-math.log2(math.e))
MF = "v_mfma_f32_32x32x16_bf16"
ROLE = [0, 1, 2, 3, 14, 4, 5, 6, 7, 8, 9, 15, 10, 11, 12, 13]
ROLE_LO = sum(ROLE[i] << (4 * i) for i in range(8))
ROLE_HI = sum(ROLE[8 + i] << (4 * i) for i in range(8))
SPIN_LIMIT = 1 << 20
WD = ([int(x[2:]) for x in EXP if x.startswith("wd")] + [14])[0]
GA = ([int(x[2:]) for x in EXP if x.startswith("ga")] + [4])[0]
GB = ([int(x[2:]) for x in EXP if x.startswith("gb")] + [12])[0]
C_A, C_B, C_Z = 92, 120, 124
ZN = ([int(x[2:]) for x in EXP if x.startswith("zn")] + [2])[0]
ZU = ([int(x[2:]) for x in EXP if x.startswith("zu")] + [1])[0]
NEARLYWO = ([int(x[2:]) for x in EXP if x.startswith("ew")] + [0])[0]
NQ1 = ([int(x[2:]) for x in EXP if x.startswith("nq")] + [4])[0]
WSBASE = ([int(x[2:]) for x in sys.argv if x.startswith("-w")] + [0])[0] << 20
PD = 2 if "pd2" in EXP else 4
PG = 6 if "pd2" in EXP else 3
PCD = 4 if "pcd4" in EXP else (0 if "pcd0" in EXP else 1)
KVS = 4 if "kvs4" in EXP else (0 if "kvs0" in EXP else 2)
PQ2 = 4 if "pq4" in EXP else (0 if "pq0" in EXP else 1)
PF0 = 2 if "pf2" in EXP else 0
WOP = 1 if "wo1" in EXP else (3 if "wo3" in EXP else 2)
OUTAUX = " sc1" if "outsc1" in EXP else (" nt" if "outnt" in EXP else "")

T, H, J, W, RL, ROT = 30, 31, 32, 33, 34, 3
_uid = [0]
def uid(p):
    _uid[0] += 1
    return f"{p}_{_uid[0]}"

def srd(a, d, ptr, nbytes):
    a(f"s_mov_b32 s{d}, s{ptr}\ns_mov_b32 s{d+1}, s{ptr+1}\ns_mov_b32 s{d+2}, {nbytes:#x}\ns_mov_b32 s{d+3}, 0x20000")

NST = 12
DIAG = [tuple(int(y) for y in x[2:].split("-")) for x in sys.argv if x.startswith("-d")]
def st(a, i):
    if STAMP: a(f"s_{'memrealtime' if 'rt' in EXP else 'memtime'} s[{72+2*i}:{73+2*i}]")
    if DIAG and i in DIAG[0]: a(f"s_memrealtime s[{72+2*i}:{73+2*i}]\ns_waitcnt lgkmcnt(0)")
def st_begin(a):
    if STAMP: a("s_memrealtime s[68:69]\ns_memtime s[72:73]" if "rt" not in EXP else "s_memrealtime s[68:69]\ns_memrealtime s[72:73]")
    if DIAG: a("s_memrealtime s[72:73]")
ABS = [x[2:] for x in sys.argv if x.startswith("-a")]
REL = [tuple(int(y) for y in x[2:].split("-")) for x in sys.argv if x.startswith("-r")]
if ABS:
    DIAG = [(0, 0 if ABS[0] == "z" else int(ABS[0].lstrip("m")))]
if REL:
    ABS = ["r"]; DIAG = REL
def diag_start(a):
    if not ABS: return
    a(f"""s_load_dwordx2 s[98:99], s[0:1], 80
    s_waitcnt lgkmcnt(0)
    s_cmp_ge_u32 s2, 8
    s_cbranch_scc1 L_dg0
    s_cmp_lg_u32 s{W}, 0
    s_cbranch_scc1 L_dg0
    s_lshl_b32 s70, s2, 2
    v_mov_b32 v4, s70
    v_mov_b32 v6, s72
    global_store_dword v4, v6, s[98:99] sc1
    L_dg0:""")
def diag_end(a):
    if not DIAG: return
    p, q = DIAG[0]
    if ABS:
        a(f"""s_waitcnt vmcnt(0)
        s_memrealtime s[96:97]
        s_mov_b64 exec, -1
        v_mov_b32 v4, 0
        global_load_dwordx4 v[8:11], v4, s[98:99] sc1
        global_load_dwordx4 v[12:15], v4, s[98:99] offset:16 sc1
        s_waitcnt vmcnt(0) lgkmcnt(0)
        v_min3_u32 v8, v8, v9, v10
        v_min3_u32 v8, v8, v11, v12
        v_min3_u32 v8, v8, v13, v14
        v_min_u32 v8, v8, v15
        s_nop 1
        v_readfirstlane_b32 s69, v8
        s_sub_u32 s70, s{72+2*q}, s69""")
        if ABS[0] == "z": a("s_mov_b32 s70, 0")
        if REL: a(f"s_sub_u32 s70, s{72+2*q}, s{72+2*p}\ns_lshl_b32 s70, s70, {0 if 'k1' in EXP else 2}")
        for x in EXP:
            if x.startswith("hm"): a(f"s_mov_b32 s71, 0x{x[2:]}\ns_bitcmp1_b32 s71, s{H}\ns_cselect_b32 s70, s70, 0")
            if x.startswith("jm"): a(f"s_mov_b32 s71, 0x{x[2:]}\ns_bitcmp1_b32 s71, s{J}\ns_cselect_b32 s70, s70, 0")
        if "onlynw" in EXP: a("s_cmp_ge_u32 s2, 196\ns_cselect_b32 s70, s70, 0")
        if "only23" in EXP: a(f"s_cmp_ge_u32 s{W}, 2\ns_cselect_b32 s70, s70, 0")
        if ABS[0].startswith("m"): a("s_sub_u32 s70, 2500, s70")
        a("s_add_u32 s70, s70, s69\ns_add_u32 s70, s70, 2500")
    else:
        a(f"""s_waitcnt vmcnt(0)
        s_memrealtime s[96:97]
        s_waitcnt lgkmcnt(0)
        s_sub_u32 s70, s{72+2*q}, s{72+2*p}
        s_add_u32 s70, s70, s96""")
    a(f"""L_diag:
    s_memrealtime s[68:69]
    s_waitcnt lgkmcnt(0)
    s_sub_u32 s71, s68, s70
    s_cmp_lt_i32 s71, 0
    s_cbranch_scc1 L_diag""")
def st_init(a):
    if STAMP:
        for i in range(1, NST): a(f"s_mov_b32 s{72+2*i}, s72")
def st_end(a):
    if not STAMP: return
    a(f"""s_waitcnt vmcnt(0)
    s_memrealtime s[70:71]
    s_{'memrealtime' if 'rt' in EXP else 'memtime'} s[{72+2*NST}:{73+2*NST}]
    s_getreg_b32 s66, hwreg(HW_REG_HW_ID)
    s_getreg_b32 s67, hwreg(HW_REG_XCC_ID)
    s_mov_b64 exec, -1
    s_lshl_b32 s65, s2, 3
    s_add_u32 s65, s65, s{W}
    s_lshl_b32 s65, s65, 6
    s_add_u32 s65, s65, {WS_ST}
    s_waitcnt lgkmcnt(0)
    v_mov_b32 v4, s68
    v_mov_b32 v5, s70
    v_mov_b32 v6, s66
    v_mov_b32 v7, s67""")
    for i in range(1, NST + 1):
        a(f"s_sub_u32 s64, s{72+2*i}, s72\nv_mov_b32 v{7+i}, s64")
    a("v_mov_b32 v2, 0\ns_mov_b64 exec, 1")
    for k in range(4):
        a(f"buffer_store_dwordx4 v[{4+4*k}:{7+4*k}], v2, s[8:11], s65 offen offset:{16*k}")

def poll_global(a, vdst, voff, soff, mask=None, sleep=1):
    l = uid("Lpoll"); d = uid("Lpd")
    a(f"s_mov_b32 s60, {SPIN_LIMIT}")
    if mask is not None: a(f"s_mov_b64 exec, {mask}")
    a(f"""{l}:
    buffer_load_dword v{vdst}, v{voff}, s[8:11], {soff} offen sc1
    s_waitcnt vmcnt(0)
    v_cmp_ne_u32 vcc, s{T}, v{vdst}
    s_cbranch_vccz {d}
    s_mov_b64 exec, vcc
    s_sleep {sleep}
    s_sub_u32 s60, s60, 1
    s_cbranch_scc0 {l}
    s_endpgm
    {d}:
    s_mov_b64 exec, -1""")

def poll_atomic(a, vdst, voff, soff, mask, sleep):
    l = uid("Lpa"); d = uid("Lpad")
    a(f"""s_mov_b32 s60, {SPIN_LIMIT}
    s_mov_b64 exec, {mask}
    {l}:
    v_mov_b32 v{vdst}, 0
    buffer_atomic_or v{vdst}, v{voff}, s[8:11], {soff} offen sc0 sc1
    s_waitcnt vmcnt(0)
    v_cmp_ne_u32 vcc, s{T}, v{vdst}
    s_cbranch_vccz {d}
    s_sleep {sleep}
    s_sub_u32 s60, s60, 1
    s_cbranch_scc0 {l}
    s_endpgm
    {d}:
    s_mov_b64 exec, -1""")

def poll_pipe(a, v0, voff, soff, mask, D=4, gap=3):
    l = uid("Lpp"); d = uid("Lppd")
    at = lambda r: f"v_mov_b32 v{r}, 0\nbuffer_atomic_or v{r}, v{voff}, s[8:11], {soff} offen sc0 sc1"
    a(f"s_mov_b32 s60, {SPIN_LIMIT}\ns_mov_b64 exec, {mask}")
    for i in range(D - 1): a(at(v0 + i) + f"\ns_sleep {gap}")
    a(f"{l}:")
    for i in range(D):
        a(at(v0 + (i + D - 1) % D))
        a(f"s_waitcnt vmcnt({D-1})\nv_cmp_ne_u32 vcc, s{T}, v{v0+i}\ns_cbranch_vccz {d}")
    a(f"""s_sub_u32 s60, s60, 1
    s_cbranch_scc0 {l}
    s_endpgm
    {d}:
    s_mov_b64 exec, -1""")

def signal(a, vt, voff, soff, mask):
    a(f"v_mov_b32 v{vt}, s{T}\ns_mov_b64 exec, {mask}\nbuffer_atomic_swap v{vt}, v{voff}, s[8:11], {soff} offen sc1\ns_mov_b64 exec, -1")

def spin_lds(a, vaddr, off, want, vt, sleep=0):
    l = uid("Lsp"); d = uid("Lsd")
    if not sleep:
        a(f"""s_mov_b32 s60, {SPIN_LIMIT}
        {l}:
        ds_read_b32 v{vt}, v{vaddr} offset:{off}
        s_sub_u32 s60, s60, 1
        s_cbranch_scc1 L_exit
        s_waitcnt lgkmcnt(0)
        v_readfirstlane_b32 s61, v{vt}
        s_cmp_ge_u32 s61, {want}
        s_cbranch_scc0 {l}""")
        return
    a(f"""s_mov_b32 s60, {SPIN_LIMIT}
    {l}:
    ds_read_b32 v{vt}, v{vaddr} offset:{off}
    s_waitcnt lgkmcnt(0)
    v_readfirstlane_b32 s61, v{vt}
    s_cmp_ge_u32 s61, {want}
    s_cbranch_scc1 {d}""")
    if sleep: a(f"s_sleep {sleep}")
    a(f"""s_sub_u32 s60, s60, 1
    s_cbranch_scc0 {l}
    s_endpgm
    {d}:""")

def lds_inc(a, vaddr, off, vone):
    a(f"s_mov_b64 exec, 1\nds_add_u32 v{vaddr}, v{vone} offset:{off}\ns_mov_b64 exec, -1")

def flag_store(a, vt, vz, soff):
    a(f"v_mov_b32 v{vt}, s{T}\ns_mov_b64 exec, 1\nbuffer_store_dword v{vt}, v{vz}, s[8:11], {soff} offen sc1\ns_mov_b64 exec, -1")

def split_neg_max(a, m, t0, t1, q6, q7):
    a(f"""v_sub_f32 v{m}, 0, v{m}
    v_cvt_pk_bf16_f32 v{t0}, v{m}, v{m}
    v_lshlrev_b32 v{t0}, 16, v{t0}
    v_sub_f32 v{t0}, v{m}, v{t0}
    v_cvt_pk_bf16_f32 v{t1}, v{m}, v{t0}
    v_and_b32 v{m}, 0xffff0000, v{t1}
    v_sub_f32 v{t0}, v{t0}, v{m}
    s_mov_b32 exec_lo, 0
    v_mov_b32 v{q6}, v{t1}
    v_cvt_pk_bf16_f32 v{q7}, v{t0}, 0
    s_mov_b32 exec_lo, -1""")

def max16_list(dst, S, init=False):
    if not init:
        return ([f"v_max3_f32 v{dst}, v{S}, v{S+1}, v{S+2}"] +
                [f"v_max3_f32 v{dst}, v{dst}, v{S+i}, v{S+i+1}" for i in range(3, 15, 2)] +
                [f"v_max_f32 v{dst}, v{dst}, v{S+15}"])
    return [f"v_max3_f32 v{dst}, v{dst}, v{S+i}, v{S+i+1}" for i in range(0, 16, 2)]

def wave_min_u32(a, v, full=True):
    for r in (1, 2, 4, 8):
        a(f"v_min_u32_dpp v{v}, v{v}, v{v} row_ror:{r} row_mask:0xf bank_mask:0xf")
    a(f"v_min_u32_dpp v{v}, v{v}, v{v} row_bcast:15 row_mask:0xa bank_mask:0xf")
    if full: a(f"v_min_u32_dpp v{v}, v{v}, v{v} row_bcast:31 row_mask:0xc bank_mask:0xf")

def rank_count(a, own, base, n, dst, t):
    a(f"v_mov_b32 v{dst}, 0\nv_mov_b32 v{t}, 0")
    for k in range(0, n, 4):
        a(f"s_waitcnt lgkmcnt({(n-k)//4-1})")
        for e in range(4): a(f"v_sub_u32 v{base+k+e}, v{own}, v{base+k+e}")
        for e in range(4):
            r = (dst, t)[e & 1]
            a(f"v_alignbit_b32 v{r}, v{r}, v{base+k+e}, 31")
    a(f"v_bcnt_u32_b32 v{dst}, v{dst}, 0\nv_bcnt_u32_b32 v{dst}, v{t}, v{dst}")

def tag(a):
    a(f"s_mul_i32 s{T}, s{T}, 0x9e3779b1\ns_add_u32 s{T}, s{T}, 0x7f4a7c15")

def next_chunk(a, s):
    a(f"s_add_u32 s{s}, s{s}, 1\ns_cmp_eq_u32 s{s}, 7\ns_cselect_b32 s{s}, 0, s{s}")

Q, O, KV, S, P = 8, 40, 104, 168, 200
XF = 104; A0, A1, WF = 40, 56, 72
VX = 216; VW = 220; VQ = 222; VC = 223; V1 = 224; VZ = 225; VT = 226; VH = 227
VA = 228; TMP = 232; XR = 240; GR = 248; VWQ = 250; VF = 251; VFS = 252; VXO = 253; VGO = 254
OWN = 3
L = 35

def prologue_and_loader(a):
    MAPCODE = ""
    if "map2" in EXP:
        MAPCODE = f"s_and_b32 s26, s25, 1\ns_lshl1_add_u32 s{H}, s24, s26\ns_lshr_b32 s{J}, s25, 1\ns_lshl1_add_u32 s{ROT}, s26, s{J}\ns_add_u32 s{ROT}, s{ROT}, s24\ns_and_b32 s{ROT}, s{ROT}, 3\ns_lshl_b32 s{ROT}, s{ROT}, 1"
        if "norot" in EXP: MAPCODE += f"\ns_mov_b32 s{ROT}, 0"
    TADDR = "v_lshl_add_u32 v8, v3, 7, s58"
    TADDR = "v_and_b32 v8, 60, v3\nv_lshl_add_u32 v8, v8, 4, s58\nv_add_u32 v8, v8, v1"
    if "rot7" in EXP:
        ROTCODE = f"s_lshl1_add_u32 s{ROT}, s27, s26\ns_cmp_ge_u32 s{ROT}, 7\ns_cselect_b32 s26, 7, 0\ns_sub_u32 s{ROT}, s{ROT}, s26"
    elif "rot2" not in EXP and "norot" not in EXP and "rot23" not in EXP:
        ROTCODE = f"s_add_u32 s{ROT}, s27, s26\ns_and_b32 s{ROT}, s{ROT}, 3\ns_lshl_b32 s{ROT}, s{ROT}, 1"
    elif "norot" in EXP:
        ROTCODE = f"s_mov_b32 s{ROT}, 0"
    elif "rot23" in EXP:
        ROTCODE = f"s_add_u32 s{ROT}, s27, s26\ns_and_b32 s{ROT}, s{ROT}, 1\ns_mul_i32 s{ROT}, s{ROT}, 3"
    else:
        ROTCODE = f"s_add_u32 s{ROT}, s27, s26\ns_and_b32 s{ROT}, s{ROT}, 1\ns_lshl_b32 s{ROT}, s{ROT}, 2"
    st_begin(a)
    a(f"""s_load_dwordx4 s[4:7], s[0:1], 0
    s_load_dwordx2 s[36:37], s[0:1], 88
    s_load_dwordx2 s[38:39], s[0:1], 16
    s_load_dwordx8 s[40:47], s[0:1], 32
    s_load_dwordx4 s[48:51], s[0:1], 64
    s_cmp_ge_u32 s2, 256
    s_cbranch_scc1 L_exit
    v_lshrrev_b32 v2, 6, v0
    v_and_b32 v3, 63, v0
    s_and_b32 s24, s2, 7
    s_lshr_b32 s25, s2, 3
    v_readfirstlane_b32 s{W}, v2
    s_and_b32 s{H}, s24, 1
    s_lshl_b32 s{H}, s{H}, 3
    s_and_b32 s26, s25, 7
    s_add_u32 s{H}, s{H}, s26
    s_lshr_b32 s27, s25, 3
    s_and_b32 s{J}, s24, 6
    s_lshl1_add_u32 s{J}, s{J}, s27
    {ROTCODE}
    {MAPCODE}
    s_mov_b32 s28, {ROLE_LO:#x}
    s_mov_b32 s29, {ROLE_HI:#x}
    s_lshl_b32 s27, s{H}, 2
    s_lshr_b64 s[28:29], s[28:29], s27
    s_and_b32 s{RL}, s28, 15
    v_lshlrev_b32 v1, 4, v3
    s_mov_b32 s27, {WS_EP}
    s_cmp_lt_u32 s{W}, 4
    s_cbranch_scc1 L_main
    """)
    a(f"""s_setprio 2
    s_sub_u32 s{L}, s{W}, 4
    v_lshrrev_b32 v4, 3, v3
    v_mul_u32_u24 v5, 896, v4
    v_and_b32 v6, 7, v3
    v_lshrrev_b32 v7, 4, v3
    v_xor_b32 v7, v6, v7
    v_lshl_add_u32 v10, v7, 4, v5
    v_xor_b32 v11, 64, v10
    v_add_u32 v12, {2*6144}, v10
    v_add_u32 v13, {3*6144}, v11
    v_add_u32 v11, 6144, v11
    v_mul_u32_u24 v5, 2688, v4
    v_and_b32 v4, 2, v4
    v_lshlrev_b32 v4, 1, v4
    v_xor_b32 v4, v4, v6
    v_lshl_add_u32 v14, v4, 4, v5
    v_add_u32 v15, {8*2688-1024}, v14
    s_lshl2_add_u32 s52, s{J}, s{L}
    s_mul_i32 s58, s52, 14
    s_add_u32 s58, s58, s{RL}
    s_mul_i32 s58, s58, {BLK}
    {TADDR}
    s_mul_i32 s52, s52, {32*896}
    s_lshl_b32 s53, s{RL}, 7
    s_mul_i32 s26, s{L}, {16*2688}
    s_add_u32 s53, s53, s26
    s_add_u32 s53, s53, 896
    s_lshl_b32 s54, s{L}, 12
    s_lshl_b32 s55, s{L}, 11
    s_add_u32 s55, s55, {WT}
    s_mov_b32 s56, s{ROT}
    s_mov_b32 s57, 0
    s_mov_b32 s14, {2048*896}
    s_mov_b32 s15, 0x20000
    s_cmp_ge_u32 s{RL}, 14
    s_cselect_b32 s18, 0, {448*2688}
    s_mov_b32 s19, 0x20000
    s_waitcnt lgkmcnt(0)
    s_mov_b64 s[12:13], s[4:5]
    s_mov_b64 s[16:17], s[6:7]
    s_load_dword s{T}, s[36:37], s27""")
    st_init(a); st(a, 1)
    TPOS = ([int(x[2:]) for x in EXP if x.startswith("tp")] + [0])[0]
    TOUCH = "global_store_dwordx4 v8, v[10:13], s[36:37] sc1\nglobal_store_dwordx4 v8, v[10:13], s[36:37] offset:2048 sc1"
    if "notouch" in EXP: TOUCH = ""
    a("s_cbranch_scc1 L_tbl")
    if TPOS == 0: a(TOUCH)
    a(f"""L_ld:
    s_mul_i32 s26, s56, {64*2688}
    s_mov_b32 m0, s55
    s_add_u32 s26, s26, s53
    s_lshl_b32 s28, s56, 7
    buffer_load_dwordx4 v14, s[16:19], s26 offen lds
    buffer_load_dwordx4 v15, s[16:19], s26 offen offset:1024 lds
    s_mov_b32 m0, s54
    s_add_u32 s28, s28, s52
    buffer_load_dwordx4 v10, s[12:15], s28 offen lds
    buffer_load_dwordx4 v11, s[12:15], s28 offen offset:1024 lds
    buffer_load_dwordx4 v12, s[12:15], s28 offen offset:2048 lds
    buffer_load_dwordx4 v13, s[12:15], s28 offen offset:3072 lds
    s_add_u32 s55, s55, 8192
    s_add_u32 s54, s54, 16384
    s_and_b32 s54, s54, 0xffff""")
    next_chunk(a, 56)
    if "tlb" in EXP:
        a(f"s_or_b32 s26, s57, s{L}\ns_cbranch_scc0 L_tlb\nL_tlb_done:")
    if TPOS:
        a(f"s_cmp_lg_u32 s57, {TPOS-1}\ns_cbranch_scc1 L_nt\ns_cmp_eq_u32 s18, 0\ns_cbranch_scc1 L_nt\n{TOUCH}\nL_nt:")
    a(f"""s_add_u32 s57, s57, 1
    s_cmp_lt_u32 s57, 3
    s_cbranch_scc1 L_ld
    s_waitcnt vmcnt(12)
    s_barrier
    s_cmp_lt_u32 s57, 7
    s_cbranch_scc1 L_ld
    """)
    a(f"""v_lshrrev_b32 v4, 2, v3
    v_mul_u32_u24 v4, 2688, v4
    v_and_b32 v5, 3, v3
    v_lshl_add_u32 v16, v5, 4, v4
    s_mov_b32 s18, {448*2688}
    s_mul_i32 s53, s{H}, 56
    s_and_b32 s53, s53, 0xfffffff0
    s_mul_i32 s26, s{L}, {16*2688}
    s_add_u32 s53, s53, s26
    s_lshl_b32 s55, s{L}, 10
    s_add_u32 s55, s55, {WQ}""")
    for i in range(NQ1):
        a(f"""s_mul_i32 s26, s56, {64*2688}
        s_add_u32 m0, s55, {i*4096}
        s_add_u32 s26, s26, s53
        buffer_load_dwordx4 v16, s[16:19], s26 offen lds""")
        if i < NQ1 - 1: next_chunk(a, 56)
        if i == 1: a("s_waitcnt vmcnt(8)\ns_barrier")
        if i == 3: a("s_waitcnt vmcnt(4)\ns_barrier")
    st(a, 2)
    a("s_branch L_service")
    a(f"""L_tbl:
    s_bitcmp1_b32 s{L}, 0
    s_cselect_b64 s[20:21], s[48:49], s[40:41]
    s_cselect_b32 s26, 1024, 0
    s_movk_i32 s22, 896
    s_mov_b32 s23, 0x20000
    s_add_u32 m0, s26, {RT}
    s_lshl_b32 s28, s{ROT}, 7
    v_add_u32 v4, s28, v1
    v_subrev_u32 v6, 896, v4
    v_min_u32 v4, v4, v6
    buffer_load_dwordx4 v4, s[20:23], 0 offen lds
    s_branch L_ld""")
    if "tlb" in EXP:
        a("L_tlb:")
        if "tlbR" in EXP: a(f"s_cmp_lt_u32 s{RL}, 14\ns_cbranch_scc1 L_tlb_done")
        for off in (0, 2 << 20, 4 << 20):
            a(f"s_mov_b32 s26, {off + 4032}\ns_load_dword s66, s[36:37], s26")
        for p in (42, 44, 38, 46, 50):
            a(f"s_load_dword s66, s[{p}:{p+1}], 0")
        a("s_branch L_tlb_done")

def main_wave(a):
    a.label("L_main")
    if "twait" in EXP: st(a, 11)
    if "nocodepf" not in EXP:
        a(f"""s_cmp_lg_u32 s{W}, 0
        s_cbranch_scc1 L_nopf
        s_getpc_b64 s[28:29]
        L_pc:
        s_and_b32 s26, s25, 3
        s_lshl_b32 s26, s26, 13
        v_lshl_add_u32 v4, v3, 7, s26
        v_min_u32 v4, L_code_end-L_pc, v4
        global_load_dword v255, v4, s[28:29]
        L_nopf:""")
    a(f"""s_setprio 1
    v_and_b32 v{VT}, 31, v3
    v_lshrrev_b32 v{VH}, 5, v3
    v_mov_b32 v{V1}, 1
    v_mov_b32 v{VZ}, 0
    v_mov_b32 v{VC}, {CNT}
    v_lshrrev_b32 v4, 2, v1
    v_add_u32 v4, {UPDI}, v4
    v_mov_b32 v6, -1
    s_mov_b32 exec_hi, 0
    ds_write_b32 v4, v6
    v_and_b32 v6, 7, v3
    v_cmp_eq_u32 vcc, 4, v6
    v_mov_b32 v7, {KVB+1}
    v_cndmask_b32 v6, 0, v7, vcc
    ds_write_b32 v4, v6 offset:{CNT-UPDI+C_R}
    s_mov_b32 exec_lo, 0xffff
    ds_write_b32 v4, v{VZ} offset:{CNT-UPDI}
    s_mov_b64 exec, -1
    v_lshrrev_b32 v4, 1, v{VT}
    v_and_b32 v4, 7, v4
    v_xor_b32 v4, v4, v{VH}
    v_lshlrev_b32 v4, 4, v4
    v_lshl_add_u32 v4, v{VT}, 7, v4
    s_lshl_b32 s26, s{W}, 12
    v_add_u32 v{VX}, s26, v4
    v_xor_b32 v{VX+1}, 32, v{VX}
    v_xor_b32 v{VX+2}, 64, v{VX}
    v_xor_b32 v{VX+3}, 96, v{VX}
    v_bfe_u32 v4, v3, 2, 2
    v_lshl_add_u32 v12, v{VH}, 3, v4
    v_and_b32 v6, 3, v3
    v_and_b32 v7, 1, v3
    v_bfe_u32 v8, v3, 1, 1
    v_lshl_add_u32 v7, v7, 1, v8
    v_bfe_u32 v8, v3, 4, 1
    v_lshl_add_u32 v9, v8, 2, v7
    v_lshl_add_u32 v10, v8, 2, v6
    s_cmp_lt_u32 s{RL}, 7
    s_cselect_b64 vcc, -1, 0
    v_cndmask_b32 v10, v10, v9, vcc
    v_lshlrev_b32 v11, 7, v12
    v_lshl_add_u32 v11, v10, 3, v11
    v_lshrrev_b32 v4, 1, v4
    v_lshl_add_u32 v11, v4, 6, v11
    v_add_u32 v{VW}, {WT}, v11
    v_xor_b32 v{VW+1}, 64, v{VW}
    v_add_u32 v10, 2, v9
    v_sub_u32 v11, 7, v9
    v_cmp_gt_u32 vcc, 6, v9
    v_cndmask_b32 v10, v11, v10, vcc
    s_bitcmp1_b32 s{H}, 0
    s_cselect_b64 vcc, -1, 0
    v_cndmask_b32 v10, v9, v10, vcc
    v_lshlrev_b32 v11, 6, v12
    v_lshl_add_u32 v11, v10, 3, v11
    v_add_u32 v{VQ}, {WQ}, v11
    v_lshrrev_b32 v4, 2, v3
    v_mul_u32_u24 v4, 2688, v4
    v_lshl_add_u32 v{VWQ}, v6, 4, v4
    s_cmp_ge_u32 s{RL}, 7
    s_cselect_b32 s26, 7, 0
    s_cselect_b32 s29, 2, 0
    s_sub_u32 s26, s{RL}, s26
    s_mul_i32 s28, s26, {64*2341}
    s_lshr_b32 s28, s28, 16
    v_add_u32 v4, s28, v6
    v_mul_u32_u24 v7, 28, v4
    v_lshrrev_b32 v7, 6, v7
    v_cmp_ge_u32 s[64:65], s26, v7
    v_cmp_ne_u32 vcc, s26, v7
    s_and_b32 s28, s{J}, 12
    s_add_u32 s29, s28, s29
    v_mov_b32 v7, s29
    v_addc_co_u32 v7, vcc, 0, v7, vcc
    s_and_b32 s28, s{J}, 3
    v_lshl_add_u32 v4, v4, 2, s28
    v_bfe_u32 v8, v3, 2, 2
    v_lshl_add_u32 v4, v4, 2, v8
    v_lshlrev_b32 v4, 7, v4
    v_lshl_add_u32 v{VFS}, v7, 2, v4
    s_and_b32 s64, s64, 0xffff
    s_cmp_ge_u32 s{RL}, 14
    s_cselect_b32 s64, 0, s64
    s_mov_b32 s65, 0
    s_lshl_b32 s28, s{W}, 5
    v_add_u32 v{VF}, s28, v{VC}
    s_lshl_b32 s28, s{J}, 2
    ; output tile: qb3 = 4j + (h>>2) ; byte col = (4*(h&3) + w)*56
    s_lshr_b32 s58, s{H}, 2
    s_add_u32 s58, s58, s28
    s_and_b32 s59, s{H}, 3
    s_lshl2_add_u32 s59, s59, s{W}
    s_mul_i32 s59, s59, 56
    s_lshl_b32 s28, s58, 5
    v_add_u32 v4, s28, v{VT}
    v_mul_u32_u24 v{VXO}, 896, v4
    v_lshl_add_u32 v{VXO}, v{VH}, 4, v{VXO}
    v_lshlrev_b32 v{VGO}, 3, v4
    s_waitcnt lgkmcnt(0)
    """)
    st_init(a)
    srd(a, 8, 36, (1 << 28) - WSBASE)
    srd(a, 16, 6, 448 * 2688)
    srd(a, 12, 4, 2048 * 896)
    if "wqpf" in EXP:
        a(f"""s_cmp_lg_u32 s{W}, 1
        s_cbranch_scc1 L_nopf2
        v_lshrrev_b32 v4, 2, v3
        v_min_u32 v4, 13, v4
        v_mul_u32_u24 v4, 2688, v4
        v_and_b32 v6, 3, v3
        v_lshl_add_u32 v4, v6, 7, v4
        s_mul_i32 s26, s25, {14*2688}
        s_and_b32 s28, s24, 1
        s_mul_i32 s28, s28, 384
        s_add_u32 s26, s26, s28
        buffer_load_dword v5, v4, s[16:19], s26 offen
        L_nopf2:""")
    if "wopfS" in EXP:
        srd(a, 20, 38, 448 * 896)
        a(f"""s_cmp_lg_u32 s{W}, 2
        s_cbranch_scc1 L_nopf3
        s_mul_i32 s26, s2, {13*128}
        v_lshl_add_u32 v4, v3, 7, s26
        s_mov_b64 exec, 0x1fff
        buffer_load_dword v5, v4, s[20:23], 0 offen
        s_mov_b64 exec, -1
        L_nopf3:""")
    a(f"""s_mul_i32 s62, s{H}, 56
    s_and_b32 s62, s62, 0xfffffff0
    s_mul_i32 s26, s{W}, {16*2688}
    s_add_u32 s62, s62, s26
    s_lshl_b32 s63, s{W}, 10
    s_add_u32 s63, s63, {WQ}
    s_lshl2_add_u32 s35, s{J}, s{W}
    s_mul_i32 s52, s35, 14
    s_add_u32 s52, s52, s{RL}
    s_mul_i32 s52, s52, {BLK}
    s_add_u32 s53, s52, 4096
    s_lshr_b32 s26, s{H}, 1
    s_mul_i32 s26, s26, 7
    s_and_b32 s28, s{H}, 1
    s_lshl2_add_u32 s29, s28, s26
    v_add_u32 v4, s29, v{VH}
    v_lshrrev_b32 v6, 3, v4
    v_mul_u32_u24 v6, {BLK-4096}, v6
    v_lshl_add_u32 v6, v4, 9, v6
    v_lshl_add_u32 v{VA}, v{VT}, 4, v6
    v_add_u32 v4, 2, v4
    v_lshrrev_b32 v6, 3, v4
    v_mul_u32_u24 v6, {BLK-4096}, v6
    v_lshl_add_u32 v6, v4, 9, v6
    s_add_u32 s26, s26, 3
    s_lshr_b32 s29, s26, 3
    s_mul_i32 s29, s29, {BLK}
    s_and_b32 s26, s26, 1
    s_lshl_b32 s26, s26, 9
    s_add_u32 s29, s29, s26
    s_add_u32 s29, s29, 4096
    v_mov_b32 v7, s29
    v_and_b32 v4, s28, v{VH}
    v_cmp_eq_u32 vcc, 1, v4
    v_cndmask_b32 v6, v6, v7, vcc
    v_lshl_add_u32 v{VA+1}, v{VT}, 4, v6
    s_mul_i32 s26, s{H}, 28
    v_add_u32 v4, s26, v{VT}
    v_lshrrev_b32 v6, 6, v4
    v_mul_u32_u24 v6, {BLK}, v6
    v_bfe_u32 v7, v4, 5, 1
    v_lshl_add_u32 v6, v7, 11, v6
    v_and_b32 v4, 31, v4
    v_lshl_add_u32 v6, v4, 4, v6
    v_lshl_add_u32 v6, v{VH}, 9, v6
    v_add_u32 v6, {7*BLK}, v6
    v_add_u32 v8, 1024, v6
    s_lshr_b32 s26, s26, 6
    s_mul_i32 s26, s26, {BLK}
    s_add_u32 s26, s26, {7*BLK + 4096 - 28*16}
    v_lshl_add_u32 v7, v{VT}, 4, s26
    v_cmp_le_u32 vcc, 28, v{VT}
    v_cndmask_b32 v{VA+2}, v6, v7, vcc
    v_cndmask_b32 v{VA+3}, v8, v7, vcc
    s_cmp_ge_u32 s{RL}, 14
    s_cbranch_scc1 L_roleR
    s_cmp_ge_u32 s{RL}, 7
    s_cbranch_scc1 L_roleV""")

    def gemm(kind):
        if "twait" in EXP:
            st(a, 10)
        def reads(c, s):
            k = 4 * c + s
            a(f"ds_read_b128 {vr(XF+4*k,4)}, v{VX+s} offset:{(c&3)*16384}")
            f = WF + 8 * s
            if kind == "R":
                a(f"ds_read_b128 {vr(f,4)}, v{VW} offset:{k*32}")
            else:
                for n in range(2):
                    a(f"ds_read_b64_tr_b16 {vr(f+4*n,2)}, v{VW+n} offset:{k*2048}")
                    a(f"ds_read_b64_tr_b16 {vr(f+4*n+2,2)}, v{VW+n} offset:{k*2048+512}")
        def mfmas(c, s, ns=None):
            k = 4 * c + s
            f = WF + 8 * s
            for n in (ns or range(1 if kind == "R" else 2)):
                acc = (A0, A1)[n]
                cc = "0" if k == 0 else vr(acc, 16)
                if kind == "V": a(f"{MF} {vr(acc,16)}, {vr(XF+4*k,4)}, {vr(f+4*n,4)}, {cc}")
                else:           a(f"{MF} {vr(acc,16)}, {vr(f+4*n,4)}, {vr(XF+4*k,4)}, {cc}")
        per = 2 if kind == "R" else 5
        for c in range(7):
            a("s_barrier")
            if c == 0: st(a, 1)
            if c == 6: st(a, 2)
            if STAMP and c in (0, 6): a("s_waitcnt lgkmcnt(0)")
            reads(c, 0); reads(c, 1)
            for s in range(4):
                if s < 2: reads(c, s + 2)
                a(f"s_waitcnt lgkmcnt({min(3 - s, 2) * per})")
                if c == 6 and kind != "R" and s >= 2: mfmas(c, s, (0,))
                else: mfmas(c, s)
            if c == 6 and kind != "R":
                mfmas(c, 2, (1,)); mfmas(c, 3, (1,))

    PK = 8
    MS = 20
    a(f"""v_add_u32 v4, s{RL}, v{VH}""")
    for i in range(4):
        a(f"""v_cmp_eq_u32 vcc, {3-2*i}, v4
        v_cmp_eq_u32 s[{MS+2*i}:{MS+1+2*i}], {10-2*i}, v4
        s_or_b64 s[{MS+2*i}:{MS+1+2*i}], s[{MS+2*i}:{MS+1+2*i}], vcc""")
    for e in range(4): a(f"v_mov_b32 v{TMP+e}, 0x3f803f80")
    a(f"""s_or_b64 s[28:29], s[{MS}:{MS+1}], s[{MS+2}:{MS+3}]
    s_or_b64 s[54:55], s[{MS+4}:{MS+5}], s[{MS+6}:{MS+7}]
    s_or_b64 s[54:55], s[54:55], s[28:29]
    s_mov_b64 exec, 0
    s_branch L_epi
    L_backK:
    s_mov_b64 exec, -1""")
    gemm("K")
    a("s_branch L_epi")
    a.label("L_roleR")
    if "pfx" in EXP:
        C0 = 1 if "pf1" in EXP else 2
        a(f"""v_mul_u32_u24 v4, 896, v{VT}
        v_lshl_add_u32 v4, v{VH}, 7, v4
        s_mul_i32 s26, s35, {32*896}
        v_lshrrev_b32 v6, 3, v{VT}
        v_mul_u32_u24 v6, 2688, v6
        v_and_b32 v7, 7, v3
        v_min_u32 v7, 6, v7
        v_lshl_add_u32 v6, v7, 7, v6
        v_mul_u32_u24 v7, {64*2688}, v{VH}
        v_add_u32 v6, v6, v7
        s_and_b32 s28, s35, 15
        s_mul_i32 s28, s28, {4*2688}
        s_and_b32 s29, s24, 1
        s_mul_i32 s29, s29, 896
        s_add_u32 s28, s28, s29
        s_add_u32 s28, s28, {896 + C0*64*2688}""")
        for c in range(C0, 7, 2):
            if c == 6: a("s_mov_b32 exec_hi, 0")
            a(f"""buffer_load_dword v5, v4, s[12:15], s26 offen offset:{128*c}
            buffer_load_dword v5, v6, s[16:19], s28 offen
            s_add_u32 s28, s28, {128*2688}""")
        a("s_mov_b64 exec, -1")
    a(f"""v_and_b32 v4, 1, v3
    v_lshlrev_b32 v4, 10, v4
    v_lshl_add_u32 v4, v{VH}, 4, v4
    v_add_u32 v{VW}, {RT}, v4
    s_lshl_b32 s26, s{W}, 7
    s_add_u32 s26, s26, {KEYS}
    v_lshl_add_u32 v12, v{VT}, 2, s26
    v_lshl_add_u32 v13, v{VH}, 6, s26""")
    gemm("R")
    a(f"""s_cmp_lg_u32 s{RL}, 14
    s_cbranch_scc1 L_pub
    s_mov_b32 exec_hi, 0
    s_nop 9
    v_cvt_pk_bf16_f32 v4, v{A0}, v{A0+1}
    v_and_b32 v5, 0xffff0000, v4
    v_lshlrev_b32 v4, 16, v4
    v_ashrrev_i32 v6, 31, v4
    v_or_b32 v6, 0x80000000, v6
    v_xor_b32 v6, v6, v4
    v_lshrrev_b32 v6, 16, v6
    v_lshlrev_b32 v6, 11, v6
    v_cmp_u_f32 vcc, v4, v4
    v_cndmask_b32 v6, v6, 0, vcc
    s_lshl_b32 s26, s35, 5
    v_add_u32 v7, s26, v{VT}
    v_sub_u32 v8, 0x7ff, v7
    v_or_b32 v6, v6, v8
    v_lshlrev_b32 v9, 3, v7
    ds_write_b32 v12, v6
    s_mov_b32 exec_hi, -1
    ds_read_b32 v6, v12
    ds_read_b128 v[16:19], v13
    ds_read_b128 v[20:23], v13 offset:16
    ds_read_b128 v[24:27], v13 offset:32
    ds_read_b128 v[28:31], v13 offset:48""")
    rank_count(a, 6, 16, 16, 14, 15)
    a(f"""v_mov_b32 v15, v14
    s_lshl_b32 s26, s{W}, 5
    s_add_u32 s26, s26, {CAND}
    v_permlane32_swap_b32 v14, v15
    v_add_u32 v14, v14, v15
    v_cmp_gt_u32 vcc, 8, v14
    v_lshl_add_u32 v14, v14, 2, s26
    s_mov_b64 exec, vcc
    ds_write_b32 v14, v6
    s_mov_b64 exec, 1
    ds_add_u32 v{VC}, v{V1} offset:{C_K}
    s_mov_b32 exec_lo, -1
    v_mul_f32 v5, {NLOG2E:#x}, v5
    v_exp_f32 v5, v5
    v_add_f32 v5, 1.0, v5
    v_rcp_f32 v5, v5
    v_cvt_pk_bf16_f32 v5, v5, v5
    v_lshlrev_b32 v10, 16, v5
    s_mov_b32 exec_hi, -1
    s_branch L_pub
    """)
    a.label("L_roleV")
    a(f"""v_cmp_eq_u32 vcc, 0, v3
    v_mov_b32 v7, 0x3f803f80
    v_cndmask_b32 v{TMP}, 0, v7, vcc""")
    for e in range(1, 4): a(f"v_mov_b32 v{TMP+e}, v{TMP}")
    for i in range(4): a(f"s_mov_b64 s[{MS+2*i}:{MS+1+2*i}], 0")
    a("s_mov_b64 s[54:55], 0xff")
    gemm("V")
    a("L_epi:\ns_cbranch_execz L_backK")
    for i in range(4):
        acc = (A0, A1)[i >> 1] + 8 * (i & 1)
        p = PK + 4 * i
        for e in (2, 3, 0, 1): a(f"v_cvt_pk_bf16_f32 v{p+e}, v{acc+2*e}, v{acc+2*e+1}")
        a(f"""s_mov_b64 exec, s[{MS+2*i}:{MS+1+2*i}]
        v_swap_b32 v{TMP}, v{p+2}
        v_swap_b32 v{TMP+1}, v{p+3}
        s_mov_b64 exec, -1
        buffer_store_dwordx4 {vr(p,4)}, v1, s[8:11], s52 offen offset:{1024*i} sc1""")
    a(f"s_mov_b64 exec, s[54:55]\nbuffer_store_dwordx4 {vr(TMP,4)}, v1, s[8:11], s53 offen sc1\ns_mov_b64 exec, -1")
    a.label("L_pub")
    diag_start(a)
    st(a, 3)
    a(f"s_add_u32 s56, s{ROT}, {NQ1}\ns_cmp_ge_u32 s56, 7\ns_cselect_b32 s26, 7, 0\ns_sub_u32 s56, s56, s26")
    for i in range(NQ1, 7):
        a(f"""s_mul_i32 s26, s56, {64*2688}
        s_add_u32 m0, s63, {i*4096}
        s_add_u32 s26, s26, s62
        buffer_load_dwordx4 v{VWQ}, s[16:19], s26 offen lds""")
        if i < 6: next_chunk(a, 56)
    QO = Q + 8 * OWN
    SK = TMP
    a(f"""s_mov_b64 s[16:17], s[36:37]
    s_mov_b32 s18, {KVB}
    s_mov_b32 s57, 0""")
    def ldK(b, soff, base=None):
        r = KV + 16 * b if base is None else base
        return [f"buffer_load_dwordx4 {vr(r,4)}, v{VA}, s[16:19], {soff} offen sc1",
                f"buffer_load_dwordx4 {vr(r+4,4)}, v{VA+1}, s[16:19], {soff} offen sc1"]
    def ldV(b, soff):
        return [f"buffer_load_dwordx4 {vr(KV+16*b+8,4)}, v{VA+2}, s[16:19], {soff} offen sc1",
                f"buffer_load_dwordx4 {vr(KV+16*b+12,4)}, v{VA+3}, s[16:19], {soff} offen sc1"]
    def try_loads(block=False):
        d = uid("Ltl"); l = uid("Ltr"); g = uid("Ltg")
        a(f"s_cmp_eq_u32 s57, 2\ns_cbranch_scc1 {d}")
        if block: a(f"s_mov_b32 s60, {SPIN_LIMIT}\n{l}:\ns_sub_u32 s60, s60, 1\ns_cbranch_scc1 L_exit")
        a(f"""ds_read_b32 v4, v{VF} offset:{C_R}
        ds_read_b32 v5, v{VC} offset:{C_M}
        s_cmp_eq_u32 s57, 1
        s_waitcnt lgkmcnt(0)
        v_readfirstlane_b32 s56, v4
        s_cbranch_scc1 {g}
        v_readfirstlane_b32 s29, v5
        s_sub_u32 s29, s29, 1
        s_cbranch_scc1 {l if block else d}
        s_mov_b32 s57, 1""")
        for x in ldK(0, "s29", SK): a(x)
        a(f"""{g}:
        s_sub_u32 s27, s56, 1
        s_cbranch_scc1 {l if block else d}
        s_add_u32 s54, s56, {TS-1}
        s_add_u32 s55, s56, {2*TS-1}
        s_add_u32 s56, s56, {3*TS-1}
        s_mov_b32 s57, 2""")
        st(a, 6)
        for x in ldK(0, "s27") + ldV(0, "s27") + ldK(1, "s54") + ldV(1, "s54") + ([] if "up4" not in EXP else ldK(2, "s55") + ldV(2, "s55") + ldK(3, "s56")): a(x)
        a(f"{d}:")
    def qreads(k):
        f = WF + 4 * (k & 7)
        a(f"ds_read_b64_tr_b16 {vr(f,2)}, v{VQ} offset:{k*1024}\nds_read_b64_tr_b16 {vr(f+2,2)}, v{VQ} offset:{k*1024+256}")
    def publish():
        a(f"""s_mov_b32 s28, {WS_MB}
        v_readfirstlane_b32 s{T}, v11
        v_mov_b32 v6, v11
        s_mov_b64 exec, 1
        s_waitcnt vmcnt({7-NQ1})""")
        st(a, 4)
        a(f"""ds_add_rtn_u32 v4, v{VC}, v{V1} offset:{C_D}
        s_waitcnt lgkmcnt(0)
        v_cmp_eq_u32 vcc, 3, v4
        s_cbranch_vccz L_notlast
        s_mov_b64 exec, s[64:65]
        s_cbranch_execz L_notlast
        buffer_atomic_swap v6, v{VFS}, s[8:11], s28 offen sc1
        s_waitcnt vmcnt(1)
        s_branch L_published
        L_notlast:
        s_waitcnt vmcnt(0)
        s_cmp_lg_u32 s{RL}, 14
        s_cbranch_scc1 L_published
        s_mov_b32 s26, {WS_G}
        s_mov_b32 exec_lo, -1
        buffer_store_dwordx2 v[10:11], v9, s[8:11], s26 offen sc1
        L_published:""")
        a("s_mov_b64 exec, -1")
    def qgemm(lo, hi, cnt):
        spin_lds(a, VC, cnt, 4, 4)
        if not lo: a(f"ds_read_b32 v11, v{VC} offset:{C_T}")
        for k in range(lo, min(hi, lo + 6)): qreads(k)
        for k in range(lo, hi):
            if k + 6 < hi: qreads(k + 6)
            a(f"s_waitcnt lgkmcnt({2*(min(hi-1,k+6)-k)})")
            a(f"{MF} {vr(A0,16)}, {vr(WF+4*(k&7),4)}, {vr(XF+4*k,4)}, {'0' if k==0 else vr(A0,16)}")
    def qepi():
        for i in range(8): a(f"v_mov_b32 v{KV+56+i}, 0")
        a(f"""s_lshl_b32 s26, s{W}, 11
        s_add_u32 s26, s26, {QX}
        v_add_u32 v5, s26, v1
        s_mov_b32 s62, {QSCALE:#x}
        s_mov_b32 s63, {QSCALE:#x}""")
        for i in range(8): a(f"v_pk_mul_f32 {vr(A0+2*i,2)}, {vr(A0+2*i,2)}, s[62:63]")
        for i in range(8): a(f"v_cvt_pk_bf16_f32 v{QO+i}, v{A0+2*i}, v{A0+2*i+1}")
        a(f"""s_mov_b32 exec_lo, 0
        v_mov_b32 v{QO+6}, 0
        v_mov_b32 v{QO+7}, 0
        s_mov_b32 exec_lo, -1
        ds_write_b128 v5, {vr(QO,4)}
        ds_write_b128 v5, {vr(QO+4,4)} offset:1024""")
        lds_inc(a, VC, C_X, V1)
        for i in range(0, 48, 2): a(f"v_pk_mul_f32 {vr(O+i,2)}, {vr(KV+56,2)}, {vr(KV+56,2)}")
    qgemm(0, 4 * NQ1, C_Q1)
    if NQ1 == 7 and "qfirst" in EXP:
        st(a, 5)
        qepi(); publish(); try_loads()
    elif NQ1 == 7:
        st(a, 5)
        publish(); try_loads(); qepi()
    else:
        publish()
        lds_inc(a, VC, C_Q2, V1)
        try_loads()
        qgemm(4 * NQ1, 28, C_Q2)
        st(a, 5)
        try_loads()
        qepi()
    spin_lds(a, VC, C_X, 4, 4)
    for i in range(3):
        a(f"""s_add_u32 s26, s{W}, {i+1}
        s_and_b32 s26, s26, 3
        s_lshl_b32 s26, s26, 11
        s_add_u32 s26, s26, {QX}
        v_add_u32 v5, s26, v1
        ds_read_b128 {vr(Q+8*i,4)}, v5
        ds_read_b128 {vr(Q+8*i+4,4)}, v5 offset:1024""")
    for i in range(3):
        a(f"""s_add_u32 s26, s{W}, {i+1}
        s_and_b32 s26, s26, 3
        s_mul_i32 s26, s26, 12288
        s_add_u32 s26, s26, {CB + i*4096}
        v_add_u32 v{VX+i}, s26, v1""")
    a(f"s_mul_i32 s26, s{W}, 12288\ns_add_u32 s26, s26, {CB}\nv_add_u32 v2, s26, v1")
    try_loads(block=True)
    def QK(u, m):
        kt, qs = (u >> 2) & 3, u & 3
        s = S + 16 * (u & 1)
        c = "0" if m == 0 else vr(s, 16)
        return f"{MF} {vr(s,16)}, {vr(KV+16*kt+4*m,4)}, {vr(Q+8*qs+4*m,4)}, {c}"
    def PV(u, m):
        kt, qs = (u >> 2) & 3, u & 3
        return f"{MF} {vr(O+16*qs,16)}, {vr(KV+16*kt+8+4*m,4)}, {vr(P+8*(u&1)+4*m,4)}, {vr(O+16*qs,16)}"
    SS = [P, S + 16, S, O + 48]
    def samp(i, m): return f"{MF} {vr(SS[i],16)}, {vr(SK+4*m,4)}, {vr(Q+8*i+4*m,4)}, {'0' if m == 0 else vr(SS[i],16)}"
    def mx(i):
        for x in max16_list(4, SS[i]): a(x)
        a(f"s_mov_b32 exec_lo, 0\nv_cvt_pk_bf16_f32 v{Q+8*i+6}, -v4, 0\ns_mov_b32 exec_lo, -1")
    a(f"s_waitcnt vmcnt({8 if 'up4' not in EXP else 14}) lgkmcnt(0)")
    for i in (0, 2): a(samp(i, 0)); a(samp(i, 1))
    a(samp(1, 0)); a(samp(1, 1))
    mx(0)
    a(samp(3, 0)); a(samp(3, 1))
    mx(2)
    a(f"s_waitcnt vmcnt({6 if 'up4' not in EXP else 12})")
    a(QK(0, 0)); a(QK(0, 1))
    if "up4" not in EXP:
        for x in ldK(2, "s55") + ldV(2, "s55") + ldK(3, "s56"): a(x)
    mx(1)
    for i in range(0, 8, 2): a(f"v_pk_mul_f32 {vr(P+8+i,2)}, {vr(KV+56,2)}, {vr(KV+56,2)}")
    mx(3)
    for i in range(48, 64, 2): a(f"v_pk_mul_f32 {vr(O+i,2)}, {vr(KV+56,2)}, {vr(KV+56,2)}")
    st(a, 7)
    a(f"s_mov_b32 s57, 2\ns_mov_b32 s53, {WS_G}")
    def substep(u, ex, last=False):
        s = S + 16 * (u & 1); p = P + 8 * (u & 1)
        e = lambda i: f"v_exp_f32 v{s+i}, v{s+i}"
        c = lambda i: f"v_cvt_pk_bf16_f32 v{p+i}, v{s+2*i}, v{s+2*i+1}"
        q0, q1 = ([], []) if last else ([QK(u+1, 0)], [QK(u+1, 1)])
        seq = q0 + ex[0] + [e(0), e(1), e(2), e(3), c(0), e(4),
               PV(u-1, 0)] + ex[1] + [e(5), c(1), e(6), e(7), c(2), e(8)] + q1 + ex[2] + [e(9), c(3), e(10), e(11), c(4), e(12),
               PV(u-1, 1)] + ex[3] + [e(13), c(5), e(14), e(15), c(6), c(7)]
        for x in seq: a(x)
    a(".p2align 6")
    a.label("L_loop")
    for u in range(16):
        kt, qs = u >> 2, u & 3
        ex = [[], [], [], []]
        if qs == 1:
            l = ldV((kt + 3) & 3, "s56")
            ex[0] = [l[0]]; ex[1] = [l[1]]; ex[2] = [f"s_add_u32 s56, s56, {TS}"]
        if u == 0: ex[0] = [f"ds_read_b32 v7, v{VF} offset:{C_R+4}"]
        if u == 1:
            ex[2] = ["s_waitcnt lgkmcnt(0)", "v_readfirstlane_b32 s56, v7"]
            ex[3] = ["s_sub_u32 s56, s56, 1"]
        if u == 2:
            ex[0] = ["s_cbranch_scc1 L_nextwait", "L_nextok:", f"v_add_u32 v{VF}, 4, v{VF}"]
        if qs == 2 and "nowait" not in EXP: ex[3] = ["s_waitcnt vmcnt(10)"]
        if qs == 0 and "nowait" not in EXP: ex[3] = ["s_waitcnt vmcnt(10)"]
        if qs == 3:
            l = ldK(kt, "s56")
            ex[0] = [l[0]]; ex[1] = [l[1]]
        if u == GA: ex[1] = ex[1] + [f"ds_add_u32 v{VC}, v{V1} offset:{C_A}"]
        if u == 15: ex[3] = ["s_sub_u32 s57, s57, 1"]
        if "itst" in EXP and u in (0, 8):
            a("s_waitcnt lgkmcnt(0)")
            for i in range(1, 6): a(f"s_mov_b32 s{72+2*i}, s{72+2*i+2}")
            a("s_memtime s[84:85]")
        if "noload" in EXP: ex = [[y for y in x if "buffer_load" not in y] for x in ex]
        substep(u, ex)
    a("s_cbranch_scc0 L_loop")
    for u in range(14):
        ex = [[], [], [], []]
        if u == 1:
            l = ldV(3, "s56"); ex[0] = [l[0]]; ex[1] = [l[1]]
        if u == ZU: ex[2] = [f"ds_add_u32 v{VC}, v{V1} offset:{C_Z}"]
        if u == 0:
            ex[0] = [f"buffer_load_dwordx2 {vr(GR,2)}, v{VGO}, s[8:11], s53 offen sc1"]
            ex[1] = [f"buffer_load_dwordx4 {vr(XR,4)}, v{VXO}, s[12:15], s59 offen"]
            ex[2] = [f"buffer_load_dwordx4 {vr(XR+4,4)}, v{VXO}, s[12:15], s59 offen offset:32"]
        if u % 2 == 0: ex[3] = [f"s_waitcnt vmcnt({min(13, 15 - u) if u < 12 else 0})"]
        if u == 12: ex[0] = [f"ds_read_b32 v7, v{VC} offset:{C_F}"]
        if u == 13:
            ex[0] = ["s_waitcnt lgkmcnt(0)", "v_cmp_gt_u32 vcc, 4, v7"]
            ex[1] = ["s_cbranch_vccnz L_wait_ffn", "L_ffn_free:"]
        substep(u, ex)
    st(a, 8)
    wr = lambda i, k: f"ds_write_b128 v{VX+i}, {vr(O+16*i+4*k,4)} offset:{k*1024}"
    substep(14, [[], [wr(0, 0)], [wr(0, 1)], [wr(0, 2)]])
    substep(15, [[wr(0, 3)], [wr(1, 0)], [wr(1, 1)], [wr(1, 2)]], last=True)
    a(PV(15, 0)); a(wr(1, 3)); a(PV(15, 1))
    for k in range(4): a(wr(2, k))
    lds_inc(a, VC, C_C, V1)
    srd(a, 20, 50, 2048 * 896)
    TT = S
    OO = O + 16 * OWN
    a(f"""s_lshl_b32 s28, s35, 4
    s_add_u32 s28, s28, s{H}
    s_lshr_b32 s56, s28, 2
    s_lshl_b32 s56, s56, 5
    s_and_b32 s26, s{H}, 3
    s_add_u32 s56, s56, s26
    s_lshl_b32 s56, s56, 2
    s_add_u32 s56, s56, {WS_OFL}
    s_lshl_b32 s52, s28, 11
    s_add_u32 s52, s52, {WS_O}
    s_mov_b32 s57, 0""")
    spin_lds(a, VC, C_C, 4, 7)
    for k in range(12): a(f"ds_read_b128 {vr(TT+4*k,4)}, v2 offset:{k*1024}")
    for i in range(3):
        a(f"s_waitcnt lgkmcnt({8-4*i})")
        for k in (6, 7, 0, 1, 2, 3, 4, 5): a(f"v_pk_add_f32 {vr(OO+2*k,2)}, {vr(OO+2*k,2)}, {vr(TT+16*i+2*k,2)}")
    a.label("L_fin")
    a(f"""v_mov_b32 v5, v{OO+12}
    v_mov_b32 v4, v{OO+12}
    s_mov_b32 exec_lo, 0
    v_mov_b32 v{OO+12}, 0
    s_mov_b32 exec_lo, -1
    v_permlane32_swap_b32 v5, v4
    v_rcp_f32 v6, v4
    s_mov_b32 s28, 0x2b800000
    s_mov_b32 s29, 0x6c800000
    v_cmp_nle_f32 s[54:55], s28, v4
    v_cmp_nge_f32 s[62:63], s29, v4
    v_pk_add_f32 v[4:5], {vr(OO,2)}, {vr(OO+2,2)}""")
    for k in range(2, 8): a(f"v_pk_add_f32 v[4:5], v[4:5], {vr(OO+2*k,2)}")
    a(f"""v_add_f32 v4, v4, v5
    s_movk_i32 s28, 0x207
    v_cmp_class_f32 vcc, v4, s28
    s_or_b64 s[54:55], s[54:55], s[62:63]""")
    for k in range(8): a(f"v_pk_mul_f32 {vr(OO+2*k,2)}, {vr(OO+2*k,2)}, v[6:7] op_sel_hi:[1,0]")
    for k in range(8): a(f"v_cvt_pk_bf16_f32 v{Q+k}, v{OO+2*k}, v{OO+2*k+1}")
    a(f"""v_mov_b32 v6, s{T}
    s_or_b64 s[54:55], s[54:55], vcc
    s_cbranch_scc1 L_bad
    L_good:
    buffer_store_dwordx4 {vr(Q,4)}, v1, s[8:11], s52 offen sc1
    buffer_store_dwordx4 {vr(Q+4,4)}, v1, s[8:11], s52 offen offset:1024 sc1
    s_mov_b64 exec, 1
    {"s_waitcnt vmcnt(0)" if ("noclr" in EXP or "otouch" in EXP) else ""}
    buffer_atomic_swap v6, v{VZ}, s[8:11], s56 offen sc1
    s_mov_b64 exec, -1""")
    st(a, 9)
    WOF = 104; B = 232; ACC = 8; U = 72
    OSB = [40, 72]
    PLR = 36
    a(f"""s_lshl2_add_u32 s28, s58, s{W}
    s_lshl_b32 s54, s28, 13
    s_add_u32 s54, s54, {WS_O}
    s_add_u32 s55, s54, 4096
    s_lshl_b32 s56, s28, 7
    s_add_u32 s56, s56, {WS_OFL}
    v_lshrrev_b32 v7, 2, v1
    v_bfe_u32 v4, v3, 2, 2
    v_lshl_add_u32 v4, v{VH}, 2, v4
    v_mul_u32_u24 v4, 224, v4
    v_bfe_u32 v5, v3, 4, 1
    v_lshl_add_u32 v4, v5, 5, v4
    v_and_b32 v5, 1, v3
    v_lshl_add_u32 v4, v5, 4, v4
    v_bfe_u32 v5, v3, 1, 1
    v_lshl_add_u32 v4, v5, 3, v4
    s_mul_i32 s28, s{W}, 56
    v_add_u32 v4, s28, v4""")
    for r in range(4):
        a(f"""s_add_u32 s26, s{W}, {r}
        s_and_b32 s26, s26, 3
        s_mul_i32 s28, s26, {4*28*224}
        v_add_u32 v{24+r}, s28, v4""")
        if r:
            a(f"s_mul_i32 s28, s26, 12288\ns_add_u32 s28, s28, {CB}\nv_add_u32 v{32+r}, s28, v1")
    a(f"""v_lshlrev_b32 v30, 2, v{VT}
    v_add_u32 v30, {UPDI}, v30
    s_mul_i32 s28, s{W}, 112
    s_add_u32 s28, s28, {UPD}
    v_lshl_add_u32 v28, v{VH}, 5, s28
    v_mov_b32 v29, {CNT}
    s_lshl_b32 s28, 0x11, s{W}
    v_mov_b32 v31, s28""")
    at = lambda r: f"v_mov_b32 v{r}, 0\ns_mov_b64 exec, 15\nbuffer_atomic_or v{r}, v7, s[8:11], s56 offen sc0 sc1\ns_mov_b64 exec, -1"
    a(at(PLR))
    spin_lds(a, 29, C_W, 2, 6)
    for k in range(32):
        o = (28 * ((k >> 1) & 3) + 16 * (k & 1)) * 224
        b = 24 + (k >> 3)
        a(f"ds_read_b64_tr_b16 {vr(WOF+4*k,2)}, v{b} offset:{o}\nds_read_b64_tr_b16 {vr(WOF+4*k+2,2)}, v{b} offset:{o+8*224}")
        if k in (9, 21): a(at(PLR + (1 if k == 9 else 2)))
    a(f"s_mov_b32 s60, {SPIN_LIMIT}\ns_mov_b64 exec, 15\nL_op:")
    for i in range(4):
        a(f"""v_mov_b32 v{PLR+(i+3)%4}, 0
        buffer_atomic_or v{PLR+(i+3)%4}, v7, s[8:11], s56 offen sc0 sc1
        s_waitcnt vmcnt(3)
        v_cmp_ne_u32 vcc, s{T}, v{PLR+i}
        s_cbranch_vccz L_of""")
    a(f"""s_sub_u32 s60, s60, 1
    s_cbranch_scc0 L_op
    s_endpgm
    L_of:
    s_mov_b64 exec, -1""")
    if "twait" not in EXP: st(a, 10)
    def oload():
        for k in range(8):
            a(f"buffer_load_dwordx4 {vr(OSB[0]+4*k,4)}, v1, s[8:11], {'s54' if k < 4 else 's55'} offen offset:{(k&3)*1024} sc1")
    oload()
    for k in range(8):
        a(f"v_lshlrev_b32 v{B+2*k}, 16, v{XR+k}\nv_and_b32 v{B+2*k+1}, 0xffff0000, v{XR+k}")
    a(f"""v_cmp_ne_u32 vcc, s{T}, v{GR+1}
    s_cbranch_vccnz L_gate
    L_gate_ok:
    v_sub_f32 v24, 1.0, v{GR}
    v_cvt_pk_bf16_f32 v24, v24, v24
    v_lshlrev_b32 v24, 16, v24""")
    def stub(): pass
    def need(bit):
        l = uid("Lnd")
        a(f"""{l}:
        ds_read_b32 v6, v29 offset:{C_O}
        s_sub_u32 s60, s60, 1
        s_cbranch_scc1 L_exit
        s_waitcnt lgkmcnt(0)
        v_readfirstlane_b32 s61, v6
        s_bitcmp1_b32 s61, {bit}
        s_cbranch_scc0 {l}""")
    def rd(g):
        for k in range(8): a(f"ds_read_b128 {vr(OSB[g&1]+4*k,4)}, v{32+g} offset:{k*1024}")
    def mm(g, lo, hi):
        for k in range(lo, hi):
            a(f"{MF} {vr(ACC,16)}, {vr(WOF+32*g+4*k,4)}, {vr(OSB[g&1]+4*k,4)}, {'0' if g == 0 and k == 0 else vr(ACC,16)}")
    a(f"""ds_read_b32 v6, v29 offset:{C_O}
    s_mov_b32 s57, 0
    s_waitcnt lgkmcnt(0)
    v_readfirstlane_b32 s61, v6
    s_bitcmp1_b32 s61, 10
    s_cbranch_scc1 L_blkU
    s_mov_b32 s57, 1
    L_next0:
    v_mov_b32 v4, 0""")
    for k in range(8):
        r = OSB[0] + 4 * k
        a(f"""s_waitcnt vmcnt({7-k})
        ds_write_b128 v2, {vr(r,4)} offset:{k*1024}
        v_max3_u32 v4, v4, v{r}, v{r+1}
        v_max3_u32 v4, v4, v{r+2}, v{r+3}""")
    a("v_cmp_eq_u32 vcc, -1, v4\ns_cbranch_vccnz L_again")
    lds_inc(a, 29, C_O, 31)
    a(f"s_mov_b32 s27, s{W}")
    for g in range(4):
        if g < 3: a(f"ds_read_b32 v6, v29 offset:{C_O}\ns_add_u32 s27, s27, 1")
        if g: a("s_waitcnt lgkmcnt(0)")
        mm(g, 0, 2 if g else 4)
        if g < 3:
            if not g: a("s_waitcnt lgkmcnt(0)")
            a(f"v_readfirstlane_b32 s61, v6\ns_bitcmp1_b32 s61, s27\ns_cbranch_scc0 L_late{g}")
            rd(g + 1)
        mm(g, 2 if g else 4, 8)
        a(f"L_back{g}:")
    a("s_cmp_lg_u32 s57, 0\ns_cbranch_scc1 L_lateU\nL_next1:")
    if "twait" not in EXP: st(a, 11)
    a("s_nop 9")
    for m in range(2):
        for e in range(4*m, 4*m+4):
            a(f"v_pk_fma_f32 {vr(B+2*e,2)}, {vr(ACC+2*e,2)}, {vr(GR,2)}, {vr(B+2*e,2)} op_sel_hi:[1,0,1]")
        for e in range(4*m, 4*m+4): a(f"v_cvt_pk_bf16_f32 v{40+e}, v{B+2*e}, v{B+2*e+1}")
        if m == 0:
            a(f"buffer_store_dwordx4 v[40:43], v{VXO}, s[20:23], s59 offen{OUTAUX}")
            stub()
        else:
            a(f"""s_mov_b32 exec_hi, 0
            buffer_store_dwordx4 v[44:47], v{VXO}, s[20:23], s59 offen offset:32{OUTAUX}
            s_mov_b64 exec, 0xffffffff
            s_not_b64 exec, exec
            buffer_store_dwordx2 v[44:45], v{VXO}, s[20:23], s59 offen offset:32{OUTAUX}""")
    st_end(a)
    diag_end(a)
    a("s_endpgm")
    for g in range(3):
        a(f"L_late{g}:")
        mm(g, 2 if g else 4, 8)
        need("s27"); rd(g + 1)
        a(f"s_branch L_back{g}")
    a("L_again:\ns_sub_u32 s60, s60, 1\ns_cbranch_scc1 L_exit\ns_waitcnt lgkmcnt(0)")
    oload()
    a("s_branch L_next0")
    a("L_lateU:")
    need(10)
    a(f"""L_blkU:
    ds_read_b32 v6, v30
    s_waitcnt lgkmcnt(0)
    v_cmp_le_i32 vcc, 0, v6
    s_cbranch_vccz L_noupd
    s_mov_b64 exec, vcc
    v_mul_u32_u24 v6, 448, v6
    v_add_u32 v28, v28, v6""")
    for k in range(4): a(f"ds_read_b128 {vr(U+4*k,4)}, v28 offset:{64*(k>>1)+16*(k&1)}")
    a("s_waitcnt lgkmcnt(0)")
    for k in range(8):
        a(f"""v_pk_add_f32 {vr(B+2*k,2)}, {vr(B+2*k,2)}, {vr(U+2*k,2)}
        v_cvt_pk_bf16_f32 v{B+2*k}, v{B+2*k}, v{B+2*k+1}
        v_and_b32 v{B+2*k+1}, 0xffff0000, v{B+2*k}
        v_lshlrev_b32 v{B+2*k}, 16, v{B+2*k}""")
    a("s_mov_b64 exec, -1\nL_noupd:")
    stub()
    for k in range(8): a(f"v_pk_mul_f32 {vr(B+2*k,2)}, {vr(B+2*k,2)}, v[24:25] op_sel_hi:[1,0]")
    a("s_cmp_lg_u32 s57, 0\ns_cbranch_scc1 L_next1\ns_branch L_next0")
    a("L_bad:\ns_cmp_eq_u32 s57, 0\ns_cbranch_scc1 L_slow")
    for k in range(8): a(f"v_min_u32 v{Q+k}, -2, v{Q+k}")
    a("s_branch L_good")
    a.label("L_wait_ffn")
    spin_lds(a, VC, C_F, 4, 7)
    a("s_branch L_ffn_free")
    a.label("L_nextwait")
    spin_lds(a, VF, C_R + 4, 1, 7)
    a("s_sub_u32 s56, s61, 1\ns_branch L_nextok")
    a(f"""L_gate:
    s_mov_b32 s26, {WS_G}
    s_mov_b32 s60, {SPIN_LIMIT}
    L_gate1:
    buffer_load_dwordx2 {vr(GR,2)}, v{VGO}, s[8:11], s26 offen sc1
    s_waitcnt vmcnt(0)
    v_cmp_ne_u32 vcc, s{T}, v{GR+1}
    s_cbranch_vccz L_gate_ok
    s_sub_u32 s60, s60, 1
    s_cbranch_scc0 L_gate1
    s_endpgm""")
    a.label("L_slow")
    a(f"""s_mov_b32 s57, 1
    s_mov_b32 s55, {KVB}
    s_mov_b32 s54, 0
    s_mov_b32 exec_lo, 0
    v_mov_b32 v{QO+6}, 0
    v_mov_b32 v{QO+7}, 0
    s_mov_b32 exec_lo, -1
    v_mov_b32 v4, 0xff800000
    L_slow1:
    {ldK(0, "s54")[0]}
    {ldK(0, "s54")[1]}
    s_waitcnt vmcnt(0)
    {MF} {vr(S,16)}, {vr(KV,4)}, {vr(QO,4)}, 0
    {MF} {vr(S,16)}, {vr(KV+4,4)}, {vr(QO+4,4)}, {vr(S,16)}""")
    for x in max16_list(4, S, init=True): a(x)
    a(f"""s_add_u32 s54, s54, {TS}
    s_cmp_lt_u32 s54, s55
    s_cbranch_scc1 L_slow1
    v_mov_b32 v5, v4
    v_permlane32_swap_b32 v4, v5
    v_max_f32 v4, v4, v5""")
    split_neg_max(a, 4, 5, 6, QO + 6, QO + 7)
    for i in range(16): a(f"v_mov_b32 v{OO+i}, 0")
    a(f"""s_mov_b32 s54, 0
    L_slow2:
    {ldK(0, "s54")[0]}
    {ldK(0, "s54")[1]}
    {ldV(0, "s54")[0]}
    {ldV(0, "s54")[1]}
    s_waitcnt vmcnt(0)
    {MF} {vr(S,16)}, {vr(KV,4)}, {vr(QO,4)}, 0
    {MF} {vr(S,16)}, {vr(KV+4,4)}, {vr(QO+4,4)}, {vr(S,16)}""")
    for i in range(16): a(f"v_exp_f32 v{S+i}, v{S+i}")
    for i in range(8): a(f"v_cvt_pk_bf16_f32 v{P+i}, v{S+2*i}, v{S+2*i+1}")
    a(f"""{MF} {vr(OO,16)}, {vr(KV+8,4)}, {vr(P,4)}, {vr(OO,16)}
    {MF} {vr(OO,16)}, {vr(KV+12,4)}, {vr(P+4,4)}, {vr(OO,16)}
    s_nop 7
    s_nop 7
    s_add_u32 s54, s54, {TS}
    s_cmp_lt_u32 s54, s55
    s_cbranch_scc1 L_slow2
    s_branch L_fin""")

GI = CB; DI = QX; HB = 101376
FT, KS = 66, 67
def service_wave(a):
    a.label("L_service")
    a(f"""v_mov_b32 v14, {CNT}
    v_mov_b32 v15, 1
    v_mov_b32 v9, 0""")
    srd(a, 8, 36, (1 << 28) - WSBASE)
    a("s_waitcnt lgkmcnt(0)")
    tag(a)
    a(f"v_mov_b32 v4, s{T}\nds_write_b32 v14, v4 offset:{C_T}\ns_waitcnt vmcnt(0)")
    lds_inc(a, 14, C_Q1, 15)
    a(f"""v_and_b32 v32, 31, v3
    v_lshrrev_b32 v33, 5, v3
    v_lshlrev_b32 v219, 3, v1
    v_lshrrev_b32 v220, 2, v1
    v_and_b32 v4, 7, v3
    v_lshlrev_b32 v217, 3, v4
    s_lshr_b32 s58, s{H}, 2
    s_lshl2_add_u32 s58, s{J}, s58
    v_lshlrev_b32 v211, 11, v33
    v_lshl_add_u32 v211, v32, 4, v211
    v_and_b32 v4, 24, v3
    v_lshl_add_u32 v4, v33, 2, v4
    v_lshl_add_u32 v4, v217, 4, v4
    s_lshl_b32 s26, s{L}, 5
    s_add_u32 s26, s26, {HB}
    v_add_u32 v214, s26, v4
    s_mul_i32 s{FT}, s2, 9363
    s_lshr_b32 s{FT}, s{FT}, 16
    s_mul_i32 s26, s{FT}, 7
    s_sub_u32 s{KS}, s2, s26
    s_cmp_ge_u32 s{L}, 2
    s_cbranch_scc1 L_svcB""")
    def sel_load(lbl):
        a(f"""s_mov_b32 s26, {WS_SEL}
        s_mov_b32 s60, {SPIN_LIMIT}
        {lbl}:
        buffer_load_dwordx2 v[20:21], v217, s[8:11], s26 offen sc1
        s_waitcnt vmcnt(0)
        v_cmp_ne_u32 vcc, s{T}, v21
        s_cbranch_vccz {lbl}_ok
        s_sleep 4
        s_sub_u32 s60, s60, 1
        s_cbranch_scc0 {lbl}
        s_endpgm
        {lbl}_ok:""")
    a(f"""s_lshl_b32 s27, s{J}, 6
    s_add_u32 s27, s27, {WS_R}
    s_cmp_eq_u32 s{RL}, 14
    s_cbranch_scc1 L_rank
    s_cmp_lg_u32 s2, {SELECTOR}
    s_cbranch_scc1 L_svcA
    s_lshl_b32 s28, s{L}, 8
    s_add_u32 s28, s28, {KEYS}
    v_add_u32 v7, s28, v220
    v_lshl_add_u32 v6, v33, 7, s28
    s_lshl_b32 s28, s{L}, 6
    s_add_u32 s28, s28, {CAND}
    v_lshl_add_u32 v10, v33, 5, s28
    s_lshl_b32 s26, s{L}, 9
    s_add_u32 s26, s26, {WS_R}
    s_mov_b32 s27, {WS_SEL}
    v_lshlrev_b32 v4, 3, v3
    v_mov_b32 v5, 2
    s_mov_b32 s60, {SPIN_LIMIT}
    L_keys:
    v_mov_b32 v20, 0
    v_mov_b32 v21, 0
    buffer_atomic_or_x2 v[20:21], v4, s[8:11], s26 offen sc0 sc1
    s_sub_u32 s60, s60, 1
    s_cbranch_scc1 L_exit
    s_waitcnt vmcnt(0)
    v_cmp_ne_u32 vcc, s{T}, v21
    s_cbranch_vccnz L_keys
    ds_write_b32 v7, v20""")
    for k in range(8): a(f"ds_read_b128 {vr(40+4*k,4)}, v6 offset:{16*k}")
    rank_count(a, 20, 40, 32, 22, 23)
    a(f"""v_cmp_gt_u32 vcc, 8, v22
    v_lshl_add_u32 v22, v22, 2, v10
    s_mov_b64 exec, vcc
    ds_write_b32 v22, v20""")
    lds_inc(a, 14, C_K, 5)
    a(f"""L_rank:
    s_cmp_lg_u32 s{L}, 0
    s_cbranch_scc1 L_svcA
    v_mov_b32 v6, {CAND}
    v_lshl_add_u32 v7, v32, 2, v6
    v_lshl_add_u32 v6, v33, 6, v6
    v_mov_b32 v21, s{T}""")
    spin_lds(a, 14, C_K, 4, 8)
    st(a, 10)
    if STAMP: a("s_waitcnt lgkmcnt(0)")
    a("ds_read_b32 v20, v7")
    for k in range(4): a(f"ds_read_b128 {vr(40+4*k,4)}, v6 offset:{16*k}")
    rank_count(a, 20, 40, 16, 22, 23)
    a(f"""v_mov_b32 v23, v22
    v_permlane32_swap_b32 v22, v23
    v_add_u32 v22, v22, v23
    v_cmp_gt_u32 vcc, 8, v22
    v_lshlrev_b32 v22, 3, v22
    s_mov_b32 exec_lo, vcc_lo
    s_mov_b32 exec_hi, 0
    buffer_atomic_swap_x2 v[20:21], v22, s[8:11], s27 offen sc1
    s_mov_b64 exec, -1""")
    st(a, 11)
    a.label("L_svcA")
    for r in (204, 205, 206, 215, 216): a(f"v_mov_b32 v{r}, 0")
    a(f"""v_mov_b32 v28, -1
    v_mov_b32 v29, -1
    v_mov_b32 v30, -1
    v_mov_b32 v31, -1
    s_lshl_b32 s59, s{J}, 6
    s_add_u32 s59, s59, s{H}
    s_lshl1_add_u32 s59, s59, s{L}
    s_lshl_b32 s59, s59, 10
    s_add_u32 s59, s59, {WS_O}
    s_cmp_ge_u32 s2, 196
    s_cbranch_scc1 L_nofn
    v_lshrrev_b32 v4, 3, v3
    v_and_b32 v5, 2, v4
    v_lshlrev_b32 v5, 1, v5
    v_and_b32 v6, 7, v3
    v_xor_b32 v5, v5, v6
    v_mul_u32_u24 v6, 3584, v4
    v_lshl_add_u32 v34, v5, 4, v6
    v_add_u32 v35, {8*3584-1024}, v34
    v_add_u32 v36, {2*(8*3584-1024)}, v34
    v_add_u32 v37, {3*(8*3584-1024)}, v34
    v_mul_u32_u24 v6, 896, v4
    v_lshl_add_u32 v200, v5, 4, v6
    v_add_u32 v201, {8*896-1024}, v200
    v_add_u32 v202, {2*(8*896-1024)}, v200
    v_add_u32 v203, {3*(8*896-1024)}, v200
    s_lshl_b32 s54, s{L}, 13
    s_add_u32 s54, s54, {GI}
    v_and_b32 v4, 3, v3
    v_lshrrev_b32 v6, 4, v3
    v_bfe_u32 v7, v3, 2, 2
    v_lshl_add_u32 v8, v6, 3, v7
    v_lshlrev_b32 v8, 7, v8
    v_lshrrev_b32 v7, 1, v7
    v_lshl_add_u32 v8, v7, 6, v8
    v_lshl_add_u32 v8, v4, 3, v8
    v_add_u32 v38, s54, v8
    v_xor_b32 v39, 64, v38
    v_lshlrev_b32 v213, 4, v6
    v_lshlrev_b32 v212, 3, v213
    v_lshl_add_u32 v212, v217, 1, v212""")
    srd(a, 16, 42, 448 * 3584)
    a(f"""s_cmp_eq_u32 s{L}, 1
    s_cselect_b64 s[16:17], s[44:45], s[42:43]
    s_mul_i32 s52, s{KS}, {64*3584}
    s_lshl_b32 s28, s{FT}, 7
    s_add_u32 s52, s52, s28
    s_movk_i32 s29, 896""")
    if GA >= 0: spin_lds(a, 14, C_A, 256, 8, sleep=4)
    else: spin_lds(a, 14, C_L, 8 if "deferA" in EXP else 4, 8, sleep=4)
    st(a, 3)
    NR = 2 if "fine" in EXP else 4
    XS_ = 40; FW = 56; AC = 104
    if "nogu" in EXP: a("s_mov_b32 s18, 0")
    a("s_mov_b32 m0, s54\ns_nop 0")
    for k in range(8):
        if k == 4: a(f"s_add_u32 s52, s52, {32*3584}\ns_add_u32 m0, s54, 4096")
        if k == 8 - NR: sel_load("L_sel1")
        elif k and k % NR == 0: a("s_waitcnt vmcnt(0)")
        a(f"buffer_load_dwordx4 v{34+(k&3)}, s[16:19], s52 offen offset:{1024*(k&3)} lds")
    a(f"""v_not_b32 v4, v20
    v_and_b32 v4, 0x7ff, v4
    v_mad_u32_u24 v4, v4, s29, v213
    s_lshl_b32 s26, s{KS}, 7
    s_mov_b32 exec_lo, 0x00ff00ff
    s_mov_b32 exec_hi, 0x00ff00ff
    buffer_load_dwordx4 {vr(XS_,4)}, v4, s[12:15], s26 offen
    buffer_load_dwordx4 {vr(XS_+4,4)}, v4, s[12:15], s26 offen offset:64
    s_mov_b64 exec, -1
    s_waitcnt vmcnt(2)""")
    for k in range(2):
        for n in range(4):
            o = k * 4096 + (n & 1) * 32
            a(f"ds_read_b64_tr_b16 {vr(FW+16*k+4*n,2)}, v{38+(n>>1)} offset:{o}\nds_read_b64_tr_b16 {vr(FW+16*k+4*n+2,2)}, v{38+(n>>1)} offset:{o+512}")
    lds_inc(a, 14, C_F, 15)
    a(f"""s_mov_b64 s[16:17], s[46:47]
    s_lshl1_add_u32 s28, s{FT}, s{L}
    s_mul_i32 s28, s28, {32*896}
    s_add_u32 s28, s28, s26
    s_lshl_b32 s29, s{L}, 12
    s_add_u32 m0, s29, {DI}
    s_lshl1_add_u32 s26, s2, s{L}
    s_lshl_b32 s26, s26, 11
    s_add_u32 s26, s26, {WS_GP}
    s_waitcnt vmcnt(0) lgkmcnt(0)""")
    st(a, 4)
    for k in range(2):
        for n in range(4):
            a(f"v_mfma_f32_16x16x32_bf16 {vr(AC+4*n,4)}, {vr(FW+16*k+4*n,4)}, {vr(XS_+4*k,4)}, {'0' if k==0 else vr(AC+4*n,4)}")
    a("s_mov_b32 exec_lo, 0x00ff00ff\ns_mov_b32 exec_hi, 0x00ff00ff")
    for n in range(4):
        a(f"buffer_store_dwordx4 {vr(AC+4*n,4)}, v212, s[8:11], s26 offen offset:{512*n} sc1")
    a("s_mov_b64 exec, -1")
    if "nowd" in EXP: a("s_mov_b32 s18, 0")
    for k in range(4): a(f"buffer_load_dwordx4 v{200+k}, s[16:19], s28 offen offset:{1024*k} lds")
    a(f"""s_lshl1_add_u32 s26, s{KS}, s{L}
    s_lshl_b32 s26, s26, 2
    s_mul_i32 s28, s{FT}, {7*128}
    s_add_u32 s26, s26, s28
    s_add_u32 s26, s26, {WS_F1}
    s_waitcnt vmcnt(4)""")
    signal(a, 5, 219, "s26", "0x7f")
    st(a, 5)
    a(f"s_cmp_lg_u32 s{L}, 0\ns_cbranch_scc1 L_st2w\ns_lshl_b32 s26, s2, 7\ns_add_u32 s26, s26, {WS_F1}")
    poll_atomic(a, 5, 220, "s26", "0x3fff", 2)
    lds_inc(a, 14, C_L, 15)
    a("L_st2w:")
    spin_lds(a, 14, C_L, 1, 8, sleep=3)
    st(a, 6)
    GP = 40; DW = 120
    a(f"s_mul_i32 s26, s{FT}, {7*4096}\ns_lshl_b32 s28, s{L}, 9\ns_add_u32 s26, s26, s28\ns_add_u32 s26, s26, {WS_GP}")
    for k in range(7):
        a(f"buffer_load_dwordx4 {vr(GP+4*k,4)}, v211, s[8:11], s26 offen sc1")
        if k < 6: a("s_add_u32 s26, s26, 4096")
    a(f"s_mov_b32 s28, {NLOG2E:#x}\ns_waitcnt vmcnt(0)")
    for k in range(1, 7):
        if "nopk" in EXP:
            for e in range(4): a(f"v_add_f32 v{GP+e}, v{GP+e}, v{GP+4*k+e}")
        else:
            for e in range(2): a(f"v_pk_add_f32 {vr(GP+2*e,2)}, {vr(GP+2*e,2)}, {vr(GP+4*k+2*e,2)}")
    a(f"""v_permlane32_swap_b32 v{GP}, v{GP+2}
    v_permlane32_swap_b32 v{GP+1}, v{GP+3}
    v_mul_f32 v22, s28, v{GP}
    v_mul_f32 v23, s28, v{GP+1}
    v_exp_f32 v22, v22
    v_exp_f32 v23, v23
    v_add_f32 v22, 1.0, v22
    v_add_f32 v23, 1.0, v23
    v_rcp_f32 v22, v22
    v_rcp_f32 v23, v23
    v_pk_mul_f32 v[22:23], v[22:23], {vr(GP,2)}
    v_pk_mul_f32 v[22:23], v[22:23], {vr(GP+2,2)}
    v_cvt_pk_bf16_f32 v22, v22, v23
    ds_write_b32 v214, v22""")
    lds_inc(a, 14, C_S, 15)
    a(f"s_cmp_ge_u32 s{L}, 2\ns_cbranch_scc1 L_st3\ns_branch L_clr")
    a.label("L_nofn")
    lds_inc(a, 14, C_F, 15)
    spin_lds(a, 14, C_A, 512, 8, sleep=8)
    srd(a, 16, 38, 448 * 896)
    a(f"""s_sub_u32 s26, s2, 196
    s_lshl1_add_u32 s26, s26, s{L}
    s_mul_i32 s26, s26, {27*128}
    s_min_u32 s26, s26, {(3136-27)*128}
    s_mov_b64 exec, 0x7ffffff
    buffer_load_dword v6, v219, s[16:19], s26 offen
    s_mov_b64 exec, -1""")
    sel_load("L_sel2")
    a(f"""s_lshl2_add_u32 s26, s2, s{L}
    s_cmp_lg_u32 s26, {254*4}
    s_cbranch_scc1 L_clr""")
    a(f"s_mov_b32 s60, {SPIN_LIMIT}\nL_ep:")
    for k in range(4):
        a(f"s_mov_b32 s26, {WS_FL+8192*k}\nbuffer_load_dword v{24+k}, v219, s[8:11], s26 offen sc1")
    a(f"""s_sub_u32 s60, s60, 1
    s_cbranch_scc1 L_exit
    s_waitcnt vmcnt(0)
    v_xor_b32 v24, s{T}, v24
    v_bitop3_b32 v24, v24, v25, s{T} bitop3:0xf6
    v_bitop3_b32 v24, v24, v26, s{T} bitop3:0xf6
    v_bitop3_b32 v24, v24, v27, s{T} bitop3:0xf6
    v_cmp_ne_u32 vcc, 0, v24
    s_cbranch_vccnz L_ep
    s_mov_b32 s26, {WS_EP}""")
    flag_store(a, 5, 9, "s26")
    a("L_clr:")
    for k in range(4):
        a(f"buffer_store_dwordx4 v[28:31], v1, s[8:11], s59 offen sc1\ns_add_u32 s59, s59, {16*2048}")
        if k & 1: a("s_waitcnt vmcnt(0)")
    lds_inc(a, 14, C_F, 15)
    st(a, 7)
    Y = 40
    a(f"""L_updA:
    s_and_b32 s53, s{H}, 3
    s_mul_i32 s53, s53, 224
    s_lshl_b32 s57, s{L}, 2
    s_lshr_b32 s26, s53, 6
    s_lshl_b32 s26, s26, 7
    s_add_u32 s62, s26, {WS_YFL}
    L_upd:
    v_readlane_b32 s52, v20, s57
    s_andn2_b32 s54, 0x7ff, s52
    s_lshr_b32 s26, s54, 5
    s_cmp_lg_u32 s26, s58
    s_cbranch_scc1 L_updn
    s_mov_b32 s60, {SPIN_LIMIT}
    s_mov_b32 exec_lo, 0x0fffffff
    s_mov_b32 exec_hi, 0x0fffffff
    L_yfl:
    v_mov_b32 v24, 0
    v_mov_b32 v25, 0
    buffer_atomic_or v24, v220, s[8:11], s62 offen sc0 sc1
    buffer_atomic_or v25, v220, s[8:11], s62 offen offset:256 sc0 sc1
    s_waitcnt vmcnt(0)
    v_xor_b32 v24, s{T}, v24
    v_bitop3_b32 v24, v24, v25, s{T} bitop3:0xf6
    v_cmp_ne_u32 vcc, 0, v24
    s_cbranch_vccz L_yok
    s_sub_u32 s60, s60, 1
    s_cbranch_scc0 L_yfl
    s_endpgm
    L_yok:
    v_mul_u32_u24 v4, {14*14336}, v33
    v_lshl_add_u32 v4, v32, 4, v4
    s_mul_i32 s26, s57, 1792
    s_lshl1_add_u32 s26, s53, s26
    s_add_u32 s26, s26, {WS_YP}""")
    for i in range(14):
        a(f"buffer_load_dwordx4 {vr(Y+4*i,4)}, v4, s[8:11], s26 offen sc1\ns_add_u32 s26, s26, 14336")
    a(f"""s_mov_b64 exec, -1
    s_lshr_b32 s26, s52, 11
    s_not_b32 s55, s26
    s_and_b32 s29, s26, 0x7fff
    s_bitcmp1_b32 s26, 15
    s_cselect_b32 s26, s29, s55
    s_lshl_b32 s26, s26, 16
    v_mov_b32 v6, {NLOG2E:#x}
    v_mul_f32 v6, s26, v6
    v_exp_f32 v6, v6
    v_add_f32 v6, 1.0, v6
    v_rcp_f32 v6, v6
    v_cvt_pk_bf16_f32 v6, v6, v6
    v_lshlrev_b32 v6, 16, v6
    s_mul_i32 s26, s57, 448
    s_add_u32 s26, s26, {UPD}
    v_lshl_add_u32 v7, v32, 4, s26
    s_waitcnt vmcnt(0)""")
    for i in range(1, 14):
        a(f"v_pk_add_f32 {vr(Y,2)}, {vr(Y,2)}, {vr(Y+4*i,2)}\nv_pk_add_f32 {vr(Y+2,2)}, {vr(Y+2,2)}, {vr(Y+4*i+2,2)}")
    for k in range(4): a(f"v_mov_b32 v{Y+4+k}, v{Y+k}")
    for k in range(4): a(f"v_permlane32_swap_b32 v{Y+k}, v{Y+4+k}")
    for k in range(4): a(f"v_add_f32 v{Y+k}, v{Y+k}, v{Y+4+k}")
    for k in range(0, 4, 2):
        a(f"""v_cvt_pk_bf16_f32 v{Y+k}, v{Y+k}, v{Y+k+1}
        v_and_b32 v{Y+k+1}, 0xffff0000, v{Y+k}
        v_lshlrev_b32 v{Y+k}, 16, v{Y+k}
        v_mul_f32 v{Y+k}, v{Y+k}, v6
        v_mul_f32 v{Y+k+1}, v{Y+k+1}, v6
        v_cvt_pk_bf16_f32 v{Y+k}, v{Y+k}, v{Y+k+1}
        v_and_b32 v{Y+k+1}, 0xffff0000, v{Y+k}
        v_lshlrev_b32 v{Y+k}, 16, v{Y+k}""")
    a(f"""s_and_b32 s54, s54, 31
    v_mov_b32 v5, s57
    s_lshl_b32 s26, s54, 2
    s_add_u32 s26, s26, {UPDI}
    v_mov_b32 v4, s26
    s_mov_b64 exec, 0x0fffffff
    ds_write_b128 v7, {vr(Y,4)}
    s_mov_b64 exec, 1
    ds_write_b32 v4, v5
    s_mov_b64 exec, -1
    L_updn:
    s_add_u32 s57, s57, 1
    s_and_b32 s26, s57, 3
    s_cbranch_scc1 L_upd
    v_mov_b32 v6, 512""")
    lds_inc(a, 14, C_O, 6)
    st(a, 9)
    a("s_branch L_ofetch")
    a.label("L_svcB")
    CLR = "buffer_store_dwordx4 v[24:27], v1, s[8:11], s59 offen sc1"
    if "noclr" in EXP: CLR = ""
    if "otouch" in EXP: CLR = "s_mov_b32 exec_lo, 0x0f0f0f0f\ns_mov_b32 exec_hi, 0x0f0f0f0f\nbuffer_store_dwordx4 v[24:27], v1, s[8:11], s59 offen sc1\ns_mov_b64 exec, -1"
    OUTT = ""
    if "outtouch" in EXP:
        OUTT = f"""s_cmp_lg_u32 s55, {42*1024}
        s_cbranch_scc1 L_noot
        s_mov_b32 s20, s50
        s_mov_b32 s21, s51
        s_mov_b32 s22, {2048*896}
        s_mov_b32 s23, 0x20000
        s_lshl_b32 s26, s58, 5
        v_add_u32 v4, s26, v32
        v_mul_u32_u24 v4, 896, v4
        s_add_u32 s26, s53, 127
        s_and_b32 s26, s26, 0xffffff80
        v_lshl_add_u32 v4, v33, 7, v4
        s_cmp_eq_u32 s53, 672
        s_cselect_b32 exec_hi, 0, -1
        buffer_store_dword v9, v4, s[20:23], s26 offen sc1
        s_mov_b64 exec, -1
        L_noot:"""
    WOPF = "s_mov_b32 exec_hi, 0x1ffff\nbuffer_load_dword v6, v219, s[16:19], s28 offen\ns_mov_b64 exec, -1" if "wopfS" not in EXP and "nowopf" not in EXP else ""
    for e in range(7):
        a(f"""v_add_u32 v4, {64*e}, v3
        v_mul_u32_u24 v5, 4682, v4
        v_lshrrev_b32 v5, 16, v5
        v_mul_u32_u24 v5, {896-224}, v5
        v_lshl_add_u32 v{200+e}, v4, 4, v5""")
    a(f"""v_mov_b32 v16, 0
    v_mov_b32 v17, 0
    v_mov_b32 v18, 0
    v_mov_b32 v19, 0
    v_add_u32 v209, {448*224}, v1
    v_bfe_u32 v7, v3, 2, 2
    v_lshl_add_u32 v5, v33, 3, v7
    v_lshlrev_b32 v5, 7, v5
    v_bfe_u32 v4, v3, 4, 1
    v_lshl_add_u32 v5, v4, 5, v5
    v_and_b32 v4, 3, v3
    v_lshl_add_u32 v5, v4, 3, v5
    v_lshrrev_b32 v7, 1, v7
    v_xor_b32 v7, s{L}, v7
    v_and_b32 v7, 1, v7
    v_lshl_add_u32 v5, v7, 6, v5
    v_add_u32 v210, {DI}, v5
    v_lshlrev_b32 v4, 4, v217
    v_lshl_add_u32 v4, v33, 4, v4
    v_add_u32 v218, {HB}, v4
    v_mul_u32_u24 v215, {4*1792}, v33
    v_lshl_add_u32 v215, v32, 2, v215
    v_add_u32 v216, {2*1792}, v215
    s_cmp_eq_u32 s{L}, 2
    s_cbranch_scc1 L_svcB2
    v_lshrrev_b32 v4, 4, v3
    v_and_b32 v5, 15, v3
    v_lshlrev_b32 v5, 2, v5
    v_lshl_add_u32 v221, v4, 9, v5
    v_lshl_add_u32 v222, v4, 5, v14
    v_and_b32 v223, 48, v3
    v_and_b32 v5, 15, v3
    v_add_u32 v6, v5, v4
    v_mul_u32_u24 v224, {4*TS}, v6
    v_add_u32 v224, 1, v224
    v_bfm_b32 v225, v5, 0
    s_mul_i32 s26, s{H}, 28
    s_add_u32 s28, s26, 27
    s_xor_b32 s26, s26, s28
    s_mov_b32 s62, 0x55555555
    s_cmp_ge_u32 s26, 64
    s_cselect_b32 s62, -1, s62
    s_mov_b32 s63, s62
    s_lshr_b32 s28, s{J}, 2
    s_lshl4_add_u32 s26, s{H}, s28
    s_lshl_b32 s26, s26, 7
    s_add_u32 s26, s26, {WS_MB}""")
    spin_lds(a, 14, C_D, PCD, 8, sleep=1)
    at = lambda r: f"v_mov_b32 v{r}, 0\nbuffer_atomic_or v{r}, v221, s[8:11], s26 offen sc0 sc1"
    a(f"""s_mov_b32 s60, {SPIN_LIMIT}
    s_mov_b32 s52, 0x11111111
    s_mov_b32 s53, 0x11111111
    s_mov_b64 s[56:57], s[52:53]
    s_mov_b64 exec, s[62:63]""")
    for i in range(PD - 1): a(at(28 + i) + f"\ns_sleep {PG}")
    a("L_kv:")
    for i in range(PD):
        a(at(28 + (i + PD - 1) % PD))
        a(f"""s_waitcnt vmcnt({PD-1})
        v_cmp_ne_u32 vcc, s{T}, v{28+i}
        s_lshr_b64 s[28:29], vcc, 1
        s_or_b64 s[28:29], s[28:29], vcc
        s_andn2_b64 s[54:55], s[56:57], s[28:29]
        s_cbranch_scc0 L_kvs{i}
        s_ff1_i32_b64 s54, s[54:55]
        s_lshl_b64 exec, 1, s54
        ds_write_b32 v14, v224 offset:{C_M}
        s_mov_b64 exec, s[62:63]
        s_mov_b64 s[56:57], 0
        L_kvs{i}:
        s_lshr_b64 s[54:55], s[28:29], 2
        s_or_b64 s[28:29], s[28:29], s[54:55]
        s_andn2_b64 s[28:29], s[52:53], s[28:29]
        s_cbranch_scc0 L_kvn{i}
        s_andn2_b64 s[52:53], s[52:53], s[28:29]
        v_lshrrev_b64 v[4:5], v223, s[28:29]
        v_and_b32 v5, v225, v4
        v_bcnt_u32_b32 v5, v5, 0
        v_lshl_add_u32 v5, v5, 2, v222
        s_mov_b64 exec, s[28:29]
        ds_write_b32 v5, v224 offset:{C_R}
        s_mov_b64 exec, s[62:63]
        v_and_b32 v4, 0xffff, v4
        v_bcnt_u32_b32 v4, v4, 0
        v_lshl_add_u32 v222, v4, 2, v222
        s_cmp_eq_u64 s[52:53], 0
        s_cbranch_scc1 L_kvdone
        L_kvn{i}:""")
    a(f"""s_sub_u32 s60, s60, 1
    s_cbranch_scc0 L_kv
    s_endpgm
    L_kvdone:
    s_mov_b64 exec, -1
    L_svcB2:""")
    srd(a, 16, 38, 448 * 896)
    a(f"""s_and_b32 s53, s{H}, 3
    s_mul_i32 s53, s53, 224
    s_and_b32 s27, s{L}, 1
    s_mul_i32 s55, s27, {7*1024}
    s_mul_i32 s57, s27, {32*896}
    s_add_u32 s57, s57, s53""")
    spin_lds(a, 14, C_A, 256, 8, sleep=4)
    st(a, 3)
    a(f"""ds_write_b128 v209, v[16:19]
    s_cmp_lg_u32 s{L}, 2
    s_cbranch_scc1 L_nofl
    s_lshl_b32 s26, s2, 7
    s_add_u32 s26, s26, {WS_FL}""")
    flag_store(a, 5, 9, "s26")
    a("L_nofl:\ns_cmp_lt_u32 s2, 196\ns_cbranch_scc1 L_st2w\ns_branch L_wo1")
    a("L_st3:")
    spin_lds(a, 14, C_S, 4, 8, sleep=1)
    for k in range(4):
        a(f"ds_read_b64_tr_b16 {vr(DW+4*k,2)}, v210 offset:{k*2048}\nds_read_b64_tr_b16 {vr(DW+4*k+2,2)}, v210 offset:{k*2048+512}")
    for k in range(4):
        a(f"ds_read_b128 {vr(GP+4*k,4)}, v218 offset:{32*k}\ns_waitcnt lgkmcnt(0)\n{MF} {vr(AC,16)}, {vr(GP+4*k,4)}, {vr(DW+4*k,4)}, {'0' if k==0 else vr(AC,16)}")
    a(f"""s_mul_i32 s26, s{FT}, 14336
    s_lshl1_add_u32 s28, s{KS}, s27
    s_lshl_b32 s29, s28, 7
    s_add_u32 s26, s26, s29
    s_add_u32 s26, s26, {WS_YP}
    s_lshl2_add_u32 s28, s{FT}, s29
    s_add_u32 s28, s28, {WS_YFL}
    buffer_store_dword v{AC}, v215, s[8:11], s26 offen sc1
    buffer_store_dword v{AC+1}, v215, s[8:11], s26 offen offset:1792 sc1
    buffer_store_dword v{AC+2}, v216, s[8:11], s26 offen sc1
    buffer_store_dword v{AC+3}, v216, s[8:11], s26 offen offset:1792 sc1
    s_waitcnt vmcnt(0)""")
    signal(a, 5, 9, "s28", 1)
    st(a, 7)
    a("L_wo1:")
    def wo_loop(lbl, depth, lim):
        a(f"{lbl}:")
        for e in range(7):
            a(f"""s_add_u32 m0, s55, {e*1024}
            s_waitcnt vmcnt({depth})
            buffer_load_dwordx4 v{200+e}, s[16:19], s57 offen lds""")
        a(f"""s_add_u32 s55, s55, {14*1024}
        s_add_u32 s57, s57, {64*896}
        s_cmp_lt_u32 s55, {lim*1024}
        s_cbranch_scc1 {lbl}""")
    if NEARLYWO: wo_loop("L_wo0", 1, 14 * NEARLYWO)
    spin_lds(a, 14, C_Z, 64 * ZN, 8, sleep=4)
    st(a, 4)
    wo_loop("L_wo", WD, 98)
    a("s_waitcnt vmcnt(0)")
    lds_inc(a, 14, C_W, 15)
    st(a, 8)
    a.label("L_ofetch")
    a("s_waitcnt vmcnt(0) lgkmcnt(0)")
    st_end(a)
    a("L_exit:\nL_code_end:\ns_endpgm")

def main(out):
    hdr = open("cdna_kernels/" + NAME + ".s.ref").read().split("; Override")[0]
    rep = []
    a = Asm()
    prologue_and_loader(a); main_wave(a); service_wave(a)
    t = hdr
    t += f"; @launch grid=(256,1,1) block=(512,1,1) lds={LDS_BYTES}\n"
    t += '.amdgcn_target "amdgcn-amd-amdhsa--gfx950"\n'
    t += kernel_text(NAME + "_kernel", a.l, 256, report=rep)
    open(out, "w").write(t)
    if "-v" in sys.argv: print("\n".join(rep))

if __name__ == "__main__":
    main(sys.argv[1])
```

```python
import sys, math, struct
from asmlib import *

NAME = "gated_mix__softmax_full_mha__moe_arch_mod__prompt"
STAMP = "-s" in sys.argv
EXP = set(x[2:] for x in sys.argv if x.startswith("-x"))
WS_KV = 0
BLK = 5120; TS = 14 * BLK; KVB = 64 * TS
WS_O = 0x480000
WS_R = 0x680000
WS_G = WS_R + 16384
WS_SEL = WS_R + 32768
WS_EP = WS_R + 40960
WS_FL = WS_R + 65536
WS_MB = WS_FL + 32768
WS_OFL = WS_MB + 32768
WS_YFL = WS_OFL + 32768
WS_F1 = WS_YFL + 4096
WS_YP = WS_R + (1 << 18)
WS_GP = 0x730000
WS_ST = 16 << 20
XS = 0; WT = 65536; WQ = 122880; QX = 151552; UPD = 159744
WO = 0; CB = 102400
UPDI = UPD + 3584
KEYS = UPD
RT = UPD + 1024
CAND = UPD + 512
SELECTOR = 223
CNT = 163840 - 192
C_M = 88
LDS_BYTES = 163840
C_Q1, C_Q2, C_X, C_L, C_S, C_D, C_C, C_O, C_W, C_F, C_K, C_T, C_P, C_R = 0, 4, 8, 12, 16, 20, 24, 28, 32, 36, 40, 44, 48, 64

def f32bits(x): return struct.unpack("<I", struct.pack("<f", x))[0]
QSCALE = f32bits(28 ** -0.5 * math.log2(math.e))
NLOG2E = f32bits(-math.log2(math.e))
MF = "v_mfma_f32_32x32x16_bf16"
ROLE = [0, 1, 2, 3, 14, 4, 5, 6, 7, 8, 9, 15, 10, 11, 12, 13]
ROLE_LO = sum(ROLE[i] << (4 * i) for i in range(8))
ROLE_HI = sum(ROLE[8 + i] << (4 * i) for i in range(8))
SPIN_LIMIT = 1 << 20
NW1 = ([int(x[2:]) for x in EXP if x.startswith("nw")] + [14])[0]
WD = ([int(x[2:]) for x in EXP if x.startswith("wd")] + [14])[0]
GA = ([int(x[2:]) for x in EXP if x.startswith("ga")] + [4])[0]
GB = ([int(x[2:]) for x in EXP if x.startswith("gb")] + [12])[0]
C_A, C_B, C_Z = 92, 120, 124
ZN = ([int(x[2:]) for x in EXP if x.startswith("zn")] + [2])[0]
ZU = ([int(x[2:]) for x in EXP if x.startswith("zu")] + [1])[0]
NEARLYWO = ([int(x[2:]) for x in EXP if x.startswith("ew")] + [0])[0]
NQ1 = ([int(x[2:]) for x in EXP if x.startswith("nq")] + [4])[0]
WSBASE = ([int(x[2:]) for x in sys.argv if x.startswith("-w")] + [0])[0] << 20
PD = 2 if "pd2" in EXP else 4
PG = 6 if "pd2" in EXP else 3
PCD = 4 if "pcd4" in EXP else (0 if "pcd0" in EXP else 1)
KVS = 4 if "kvs4" in EXP else (0 if "kvs0" in EXP else 2)
PQ2 = 4 if "pq4" in EXP else (0 if "pq0" in EXP else 1)
PF0 = 2 if "pf2" in EXP else 0
WOP = 1 if "wo1" in EXP else (3 if "wo3" in EXP else 2)
OUTAUX = " sc1" if "outsc1" in EXP else (" nt" if "outnt" in EXP else "")

T, H, J, W, RL, ROT = 30, 31, 32, 33, 34, 3
_uid = [0]
def uid(p):
    _uid[0] += 1
    return f"{p}_{_uid[0]}"

def srd(a, d, ptr, nbytes):
    a(f"s_mov_b32 s{d}, s{ptr}\ns_mov_b32 s{d+1}, s{ptr+1}\ns_mov_b32 s{d+2}, {nbytes:#x}\ns_mov_b32 s{d+3}, 0x20000")

NST = 12
DIAG = [tuple(int(y) for y in x[2:].split("-")) for x in sys.argv if x.startswith("-d")]
def st(a, i):
    if STAMP: a(f"s_{'memrealtime' if 'rt' in EXP else 'memtime'} s[{72+2*i}:{73+2*i}]")
    if DIAG and i in DIAG[0]: a(f"s_memrealtime s[{72+2*i}:{73+2*i}]\ns_waitcnt lgkmcnt(0)")
def st_begin(a):
    if STAMP: a("s_memrealtime s[68:69]\ns_memtime s[72:73]" if "rt" not in EXP else "s_memrealtime s[68:69]\ns_memrealtime s[72:73]")
    if DIAG: a("s_memrealtime s[72:73]")
ABS = [x[2:] for x in sys.argv if x.startswith("-a")]
REL = [tuple(int(y) for y in x[2:].split("-")) for x in sys.argv if x.startswith("-r")]
if ABS:
    DIAG = [(0, 0 if ABS[0] == "z" else int(ABS[0].lstrip("m")))]
if REL:
    ABS = ["r"]; DIAG = REL
def diag_start(a):
    if not ABS: return
    a(f"""s_load_dwordx2 s[98:99], s[0:1], 80
    s_waitcnt lgkmcnt(0)
    s_cmp_ge_u32 s2, 8
    s_cbranch_scc1 L_dg0
    s_cmp_lg_u32 s{W}, 0
    s_cbranch_scc1 L_dg0
    s_lshl_b32 s70, s2, 2
    v_mov_b32 v4, s70
    v_mov_b32 v6, s72
    global_store_dword v4, v6, s[98:99] sc1
    L_dg0:""")
def diag_end(a):
    if not DIAG: return
    p, q = DIAG[0]
    if ABS:
        a(f"""s_waitcnt vmcnt(0)
        s_memrealtime s[96:97]
        s_mov_b64 exec, -1
        v_mov_b32 v4, 0
        global_load_dwordx4 v[8:11], v4, s[98:99] sc1
        global_load_dwordx4 v[12:15], v4, s[98:99] offset:16 sc1
        s_waitcnt vmcnt(0) lgkmcnt(0)
        v_min3_u32 v8, v8, v9, v10
        v_min3_u32 v8, v8, v11, v12
        v_min3_u32 v8, v8, v13, v14
        v_min_u32 v8, v8, v15
        s_nop 1
        v_readfirstlane_b32 s69, v8
        s_sub_u32 s70, s{72+2*q}, s69""")
        if ABS[0] == "z": a("s_mov_b32 s70, 0")
        if REL: a(f"s_sub_u32 s70, s{72+2*q}, s{72+2*p}\ns_lshl_b32 s70, s70, {0 if 'k1' in EXP else 2}")
        for x in EXP:
            if x.startswith("hm"): a(f"s_mov_b32 s71, 0x{x[2:]}\ns_bitcmp1_b32 s71, s{H}\ns_cselect_b32 s70, s70, 0")
            if x.startswith("jm"): a(f"s_mov_b32 s71, 0x{x[2:]}\ns_bitcmp1_b32 s71, s{J}\ns_cselect_b32 s70, s70, 0")
        if "onlynw" in EXP: a("s_cmp_ge_u32 s2, 196\ns_cselect_b32 s70, s70, 0")
        if "only23" in EXP: a(f"s_cmp_ge_u32 s{W}, 2\ns_cselect_b32 s70, s70, 0")
        if ABS[0].startswith("m"): a("s_sub_u32 s70, 2500, s70")
        a("s_add_u32 s70, s70, s69\ns_add_u32 s70, s70, 2500")
    else:
        a(f"""s_waitcnt vmcnt(0)
        s_memrealtime s[96:97]
        s_waitcnt lgkmcnt(0)
        s_sub_u32 s70, s{72+2*q}, s{72+2*p}
        s_add_u32 s70, s70, s96""")
    a(f"""L_diag:
    s_memrealtime s[68:69]
    s_waitcnt lgkmcnt(0)
    s_sub_u32 s71, s68, s70
    s_cmp_lt_i32 s71, 0
    s_cbranch_scc1 L_diag""")
def st_init(a):
    if STAMP:
        for i in range(1, NST): a(f"s_mov_b32 s{72+2*i}, s72")
def st_end(a):
    if not STAMP: return
    a(f"""s_waitcnt vmcnt(0)
    s_memrealtime s[70:71]
    s_{'memrealtime' if 'rt' in EXP else 'memtime'} s[{72+2*NST}:{73+2*NST}]
    s_getreg_b32 s66, hwreg(HW_REG_HW_ID)
    s_getreg_b32 s67, hwreg(HW_REG_XCC_ID)
    s_mov_b64 exec, -1
    s_lshl_b32 s65, s2, 3
    s_add_u32 s65, s65, s{W}
    s_lshl_b32 s65, s65, 6
    s_add_u32 s65, s65, {WS_ST}
    s_waitcnt lgkmcnt(0)
    v_mov_b32 v4, s68
    v_mov_b32 v5, s70
    v_mov_b32 v6, s66
    v_mov_b32 v7, s67""")
    for i in range(1, NST + 1):
        a(f"s_sub_u32 s64, s{72+2*i}, s72\nv_mov_b32 v{7+i}, s64")
    a("v_mov_b32 v2, 0\ns_mov_b64 exec, 1")
    for k in range(4):
        a(f"buffer_store_dwordx4 v[{4+4*k}:{7+4*k}], v2, s[8:11], s65 offen offset:{16*k}")

def poll_global(a, vdst, voff, soff, mask=None, sleep=1):
    l = uid("Lpoll"); d = uid("Lpd")
    a(f"s_mov_b32 s60, {SPIN_LIMIT}")
    if mask is not None: a(f"s_mov_b64 exec, {mask}")
    a(f"""{l}:
    buffer_load_dword v{vdst}, v{voff}, s[8:11], {soff} offen sc1
    s_waitcnt vmcnt(0)
    v_cmp_ne_u32 vcc, s{T}, v{vdst}
    s_cbranch_vccz {d}
    s_mov_b64 exec, vcc
    s_sleep {sleep}
    s_sub_u32 s60, s60, 1
    s_cbranch_scc0 {l}
    s_endpgm
    {d}:
    s_mov_b64 exec, -1""")

def poll_atomic(a, vdst, voff, soff, mask, sleep):
    l = uid("Lpa"); d = uid("Lpad")
    a(f"""s_mov_b32 s60, {SPIN_LIMIT}
    s_mov_b64 exec, {mask}
    {l}:
    v_mov_b32 v{vdst}, 0
    buffer_atomic_or v{vdst}, v{voff}, s[8:11], {soff} offen sc0 sc1
    s_waitcnt vmcnt(0)
    v_cmp_ne_u32 vcc, s{T}, v{vdst}
    s_cbranch_vccz {d}
    s_sleep {sleep}
    s_sub_u32 s60, s60, 1
    s_cbranch_scc0 {l}
    s_endpgm
    {d}:
    s_mov_b64 exec, -1""")

def poll_pipe(a, v0, voff, soff, mask, D=4, gap=3):
    l = uid("Lpp"); d = uid("Lppd")
    at = lambda r: f"v_mov_b32 v{r}, 0\nbuffer_atomic_or v{r}, v{voff}, s[8:11], {soff} offen sc0 sc1"
    a(f"s_mov_b32 s60, {SPIN_LIMIT}\ns_mov_b64 exec, {mask}")
    for i in range(D - 1): a(at(v0 + i) + f"\ns_sleep {gap}")
    a(f"{l}:")
    for i in range(D):
        a(at(v0 + (i + D - 1) % D))
        a(f"s_waitcnt vmcnt({D-1})\nv_cmp_ne_u32 vcc, s{T}, v{v0+i}\ns_cbranch_vccz {d}")
    a(f"""s_sub_u32 s60, s60, 1
    s_cbranch_scc0 {l}
    s_endpgm
    {d}:
    s_mov_b64 exec, -1""")

def signal(a, vt, voff, soff, mask):
    a(f"v_mov_b32 v{vt}, s{T}\ns_mov_b64 exec, {mask}\nbuffer_atomic_swap v{vt}, v{voff}, s[8:11], {soff} offen sc1\ns_mov_b64 exec, -1")

def spin_lds(a, vaddr, off, want, vt, sleep=0):
    l = uid("Lsp"); d = uid("Lsd")
    if not sleep:
        a(f"""s_mov_b32 s60, {SPIN_LIMIT}
        {l}:
        ds_read_b32 v{vt}, v{vaddr} offset:{off}
        s_sub_u32 s60, s60, 1
        s_cbranch_scc1 L_exit
        s_waitcnt lgkmcnt(0)
        v_readfirstlane_b32 s61, v{vt}
        s_cmp_ge_u32 s61, {want}
        s_cbranch_scc0 {l}""")
        return
    a(f"""s_mov_b32 s60, {SPIN_LIMIT}
    {l}:
    ds_read_b32 v{vt}, v{vaddr} offset:{off}
    s_waitcnt lgkmcnt(0)
    v_readfirstlane_b32 s61, v{vt}
    s_cmp_ge_u32 s61, {want}
    s_cbranch_scc1 {d}""")
    if sleep: a(f"s_sleep {sleep}")
    a(f"""s_sub_u32 s60, s60, 1
    s_cbranch_scc0 {l}
    s_endpgm
    {d}:""")

def lds_inc(a, vaddr, off, vone):
    a(f"s_mov_b64 exec, 1\nds_add_u32 v{vaddr}, v{vone} offset:{off}\ns_mov_b64 exec, -1")

def flag_store(a, vt, vz, soff):
    a(f"v_mov_b32 v{vt}, s{T}\ns_mov_b64 exec, 1\nbuffer_store_dword v{vt}, v{vz}, s[8:11], {soff} offen sc1\ns_mov_b64 exec, -1")

def split_neg_max(a, m, t0, t1, q6, q7):
    a(f"""v_sub_f32 v{m}, 0, v{m}
    v_cvt_pk_bf16_f32 v{t0}, v{m}, v{m}
    v_lshlrev_b32 v{t0}, 16, v{t0}
    v_sub_f32 v{t0}, v{m}, v{t0}
    v_cvt_pk_bf16_f32 v{t1}, v{m}, v{t0}
    v_and_b32 v{m}, 0xffff0000, v{t1}
    v_sub_f32 v{t0}, v{t0}, v{m}
    s_mov_b32 exec_lo, 0
    v_mov_b32 v{q6}, v{t1}
    v_cvt_pk_bf16_f32 v{q7}, v{t0}, 0
    s_mov_b32 exec_lo, -1""")

def max16_list(dst, S, init=False):
    if not init:
        return ([f"v_max3_f32 v{dst}, v{S}, v{S+1}, v{S+2}"] +
                [f"v_max3_f32 v{dst}, v{dst}, v{S+i}, v{S+i+1}" for i in range(3, 15, 2)] +
                [f"v_max_f32 v{dst}, v{dst}, v{S+15}"])
    return [f"v_max3_f32 v{dst}, v{dst}, v{S+i}, v{S+i+1}" for i in range(0, 16, 2)]

def wave_min_u32(a, v, full=True):
    for r in (1, 2, 4, 8):
        a(f"v_min_u32_dpp v{v}, v{v}, v{v} row_ror:{r} row_mask:0xf bank_mask:0xf")
    a(f"v_min_u32_dpp v{v}, v{v}, v{v} row_bcast:15 row_mask:0xa bank_mask:0xf")
    if full: a(f"v_min_u32_dpp v{v}, v{v}, v{v} row_bcast:31 row_mask:0xc bank_mask:0xf")

def rank_count(a, own, base, n, dst, t):
    a(f"v_mov_b32 v{dst}, 0\nv_mov_b32 v{t}, 0")
    for k in range(0, n, 4):
        a(f"s_waitcnt lgkmcnt({(n-k)//4-1})")
        for e in range(4): a(f"v_sub_u32 v{base+k+e}, v{own}, v{base+k+e}")
        for e in range(4):
            r = (dst, t)[e & 1]
            a(f"v_alignbit_b32 v{r}, v{r}, v{base+k+e}, 31")
    a(f"v_bcnt_u32_b32 v{dst}, v{dst}, 0\nv_bcnt_u32_b32 v{dst}, v{t}, v{dst}")

def tag(a):
    a(f"s_mul_i32 s{T}, s{T}, 0x9e3779b1\ns_add_u32 s{T}, s{T}, 0x7f4a7c15")

def next_chunk(a, s):
    a(f"s_add_u32 s{s}, s{s}, 1\ns_cmp_eq_u32 s{s}, 7\ns_cselect_b32 s{s}, 0, s{s}")

Q, O, KV, S, P = 8, 40, 104, 168, 200
XF = 104; A0, A1, WF = 40, 56, 72
VX = 216; VW = 220; VQ = 222; VC = 223; V1 = 224; VZ = 225; VT = 226; VH = 227
VA = 228; TMP = 232; XR = 240; GR = 248; VWQ = 250; VF = 251; VFS = 252; VXO = 253; VGO = 254
OWN = 3
L = 35

def prologue_and_loader(a):
    MAPCODE = ""
    if "map2" in EXP:
        MAPCODE = f"s_and_b32 s26, s25, 1\ns_lshl1_add_u32 s{H}, s24, s26\ns_lshr_b32 s{J}, s25, 1\ns_lshl1_add_u32 s{ROT}, s26, s{J}\ns_add_u32 s{ROT}, s{ROT}, s24\ns_and_b32 s{ROT}, s{ROT}, 3\ns_lshl_b32 s{ROT}, s{ROT}, 1"
        if "norot" in EXP: MAPCODE += f"\ns_mov_b32 s{ROT}, 0"
    TADDR = "v_lshl_add_u32 v8, v3, 7, s58"
    TADDR = "v_and_b32 v8, 60, v3\nv_lshl_add_u32 v8, v8, 4, s58\nv_add_u32 v8, v8, v1"
    if "rot7" in EXP:
        ROTCODE = f"s_lshl1_add_u32 s{ROT}, s27, s26\ns_cmp_ge_u32 s{ROT}, 7\ns_cselect_b32 s26, 7, 0\ns_sub_u32 s{ROT}, s{ROT}, s26"
    elif "rot2" not in EXP and "norot" not in EXP and "rot23" not in EXP:
        ROTCODE = f"s_add_u32 s{ROT}, s27, s26\ns_and_b32 s{ROT}, s{ROT}, 3\ns_lshl_b32 s{ROT}, s{ROT}, 1"
    elif "norot" in EXP:
        ROTCODE = f"s_mov_b32 s{ROT}, 0"
    elif "rot23" in EXP:
        ROTCODE = f"s_add_u32 s{ROT}, s27, s26\ns_and_b32 s{ROT}, s{ROT}, 1\ns_mul_i32 s{ROT}, s{ROT}, 3"
    else:
        ROTCODE = f"s_add_u32 s{ROT}, s27, s26\ns_and_b32 s{ROT}, s{ROT}, 1\ns_lshl_b32 s{ROT}, s{ROT}, 2"
    st_begin(a)
    a(f"""s_load_dwordx4 s[4:7], s[0:1], 0
    s_load_dwordx2 s[36:37], s[0:1], 88
    s_load_dwordx2 s[38:39], s[0:1], 16
    s_load_dwordx8 s[40:47], s[0:1], 32
    s_load_dwordx4 s[48:51], s[0:1], 64
    s_cmp_ge_u32 s2, 256
    s_cbranch_scc1 L_exit
    v_lshrrev_b32 v2, 6, v0
    v_and_b32 v3, 63, v0
    s_and_b32 s24, s2, 7
    s_lshr_b32 s25, s2, 3
    v_readfirstlane_b32 s{W}, v2
    s_and_b32 s{H}, s24, 1
    s_lshl_b32 s{H}, s{H}, 3
    s_and_b32 s26, s25, 7
    s_add_u32 s{H}, s{H}, s26
    s_lshr_b32 s27, s25, 3
    s_and_b32 s{J}, s24, 6
    s_lshl1_add_u32 s{J}, s{J}, s27
    {ROTCODE}
    {MAPCODE}
    s_mov_b32 s28, {ROLE_LO:#x}
    s_mov_b32 s29, {ROLE_HI:#x}
    s_lshl_b32 s27, s{H}, 2
    s_lshr_b64 s[28:29], s[28:29], s27
    s_and_b32 s{RL}, s28, 15
    v_lshlrev_b32 v1, 4, v3
    s_mov_b32 s27, {WS_EP}
    s_cmp_lt_u32 s{W}, 4
    s_cbranch_scc1 L_main
    """)
    a(f"""s_setprio 2
    s_sub_u32 s{L}, s{W}, 4
    v_lshrrev_b32 v4, 3, v3
    v_mul_u32_u24 v5, 896, v4
    v_and_b32 v6, 7, v3
    v_lshrrev_b32 v7, 4, v3
    v_xor_b32 v7, v6, v7
    v_lshl_add_u32 v10, v7, 4, v5
    v_xor_b32 v11, 64, v10
    v_add_u32 v12, {2*6144}, v10
    v_add_u32 v13, {3*6144}, v11
    v_add_u32 v11, 6144, v11
    v_mul_u32_u24 v5, 2688, v4
    v_and_b32 v4, 2, v4
    v_lshlrev_b32 v4, 1, v4
    v_xor_b32 v4, v4, v6
    v_lshl_add_u32 v14, v4, 4, v5
    v_add_u32 v15, {8*2688-1024}, v14
    s_lshl2_add_u32 s52, s{J}, s{L}
    s_mul_i32 s58, s52, 14
    s_add_u32 s58, s58, s{RL}
    s_mul_i32 s58, s58, {BLK}
    {TADDR}
    s_mul_i32 s52, s52, {32*896}
    s_lshl_b32 s53, s{RL}, 7
    s_mul_i32 s26, s{L}, {16*2688}
    s_add_u32 s53, s53, s26
    s_add_u32 s53, s53, 896
    s_lshl_b32 s54, s{L}, 12
    s_lshl_b32 s55, s{L}, 11
    s_add_u32 s55, s55, {WT}
    s_mov_b32 s56, s{ROT}
    s_mov_b32 s57, 0
    s_mov_b32 s14, {2048*896}
    s_mov_b32 s15, 0x20000
    s_cmp_ge_u32 s{RL}, 14
    s_cselect_b32 s18, 0, {448*2688}
    s_mov_b32 s19, 0x20000
    s_waitcnt lgkmcnt(0)
    s_mov_b64 s[12:13], s[4:5]
    s_mov_b64 s[16:17], s[6:7]
    s_load_dword s{T}, s[36:37], s27""")
    st_init(a); st(a, 1)
    TPOS = ([int(x[2:]) for x in EXP if x.startswith("tp")] + [0])[0]
    TOUCH = "global_store_dwordx4 v8, v[10:13], s[36:37] sc1\nglobal_store_dwordx4 v8, v[10:13], s[36:37] offset:2048 sc1"
    if "notouch" in EXP: TOUCH = ""
    a("s_cbranch_scc1 L_tbl")
    if TPOS == 0: a(TOUCH)
    a(f"""L_ld:
    s_mul_i32 s26, s56, {64*2688}
    s_mov_b32 m0, s55
    s_add_u32 s26, s26, s53
    s_lshl_b32 s28, s56, 7
    buffer_load_dwordx4 v14, s[16:19], s26 offen lds
    buffer_load_dwordx4 v15, s[16:19], s26 offen offset:1024 lds
    s_mov_b32 m0, s54
    s_add_u32 s28, s28, s52
    buffer_load_dwordx4 v10, s[12:15], s28 offen lds
    buffer_load_dwordx4 v11, s[12:15], s28 offen offset:1024 lds
    buffer_load_dwordx4 v12, s[12:15], s28 offen offset:2048 lds
    buffer_load_dwordx4 v13, s[12:15], s28 offen offset:3072 lds
    s_add_u32 s55, s55, 8192
    s_add_u32 s54, s54, 16384
    s_and_b32 s54, s54, 0xffff""")
    next_chunk(a, 56)
    if "tlb" in EXP:
        a(f"s_or_b32 s26, s57, s{L}\ns_cbranch_scc0 L_tlb\nL_tlb_done:")
    if TPOS:
        a(f"s_cmp_lg_u32 s57, {TPOS-1}\ns_cbranch_scc1 L_nt\ns_cmp_eq_u32 s18, 0\ns_cbranch_scc1 L_nt\n{TOUCH}\nL_nt:")
    a(f"""s_add_u32 s57, s57, 1
    s_cmp_lt_u32 s57, 3
    s_cbranch_scc1 L_ld
    s_waitcnt vmcnt(12)
    s_barrier
    s_cmp_lt_u32 s57, 7
    s_cbranch_scc1 L_ld
    """)
    a(f"""v_lshrrev_b32 v4, 2, v3
    v_mul_u32_u24 v4, 2688, v4
    v_and_b32 v5, 3, v3
    v_lshl_add_u32 v16, v5, 4, v4
    s_mov_b32 s18, {448*2688}
    s_mul_i32 s53, s{H}, 56
    s_and_b32 s53, s53, 0xfffffff0
    s_mul_i32 s26, s{L}, {16*2688}
    s_add_u32 s53, s53, s26
    s_lshl_b32 s55, s{L}, 10
    s_add_u32 s55, s55, {WQ}""")
    for i in range(NQ1):
        a(f"""s_mul_i32 s26, s56, {64*2688}
        s_add_u32 m0, s55, {i*4096}
        s_add_u32 s26, s26, s53
        buffer_load_dwordx4 v16, s[16:19], s26 offen lds""")
        if i < NQ1 - 1: next_chunk(a, 56)
        if i == 1: a("s_waitcnt vmcnt(8)\ns_barrier")
        if i == 3: a("s_waitcnt vmcnt(4)\ns_barrier")
    st(a, 2)
    a("s_branch L_service")
    a(f"""L_tbl:
    s_bitcmp1_b32 s{L}, 0
    s_cselect_b64 s[20:21], s[48:49], s[40:41]
    s_cselect_b32 s26, 1024, 0
    s_movk_i32 s22, 896
    s_mov_b32 s23, 0x20000
    s_add_u32 m0, s26, {RT}
    s_lshl_b32 s28, s{ROT}, 7
    v_add_u32 v4, s28, v1
    v_subrev_u32 v6, 896, v4
    v_min_u32 v4, v4, v6
    buffer_load_dwordx4 v4, s[20:23], 0 offen lds
    s_branch L_ld""")
    if "tlb" in EXP:
        a("L_tlb:")
        if "tlbR" in EXP: a(f"s_cmp_lt_u32 s{RL}, 14\ns_cbranch_scc1 L_tlb_done")
        for off in (0, 2 << 20, 4 << 20):
            a(f"s_mov_b32 s26, {off + 4032}\ns_load_dword s66, s[36:37], s26")
        for p in (42, 44, 38, 46, 50):
            a(f"s_load_dword s66, s[{p}:{p+1}], 0")
        a("s_branch L_tlb_done")

def main_wave(a):
    a.label("L_main")
    if "twait" in EXP: st(a, 11)
    if "nocodepf" not in EXP:
        a(f"""s_cmp_lg_u32 s{W}, 0
        s_cbranch_scc1 L_nopf
        s_getpc_b64 s[28:29]
        L_pc:
        s_and_b32 s26, s25, 3
        s_lshl_b32 s26, s26, 13
        v_lshl_add_u32 v4, v3, 7, s26
        v_min_u32 v4, L_code_end-L_pc, v4
        global_load_dword v255, v4, s[28:29]
        L_nopf:""")
    a(f"""s_setprio 1
    v_and_b32 v{VT}, 31, v3
    v_lshrrev_b32 v{VH}, 5, v3
    v_mov_b32 v{V1}, 1
    v_mov_b32 v{VZ}, 0
    v_mov_b32 v{VC}, {CNT}
    v_lshrrev_b32 v4, 2, v1
    v_add_u32 v4, {UPDI}, v4
    v_mov_b32 v6, -1
    s_mov_b32 exec_hi, 0
    ds_write_b32 v4, v6
    v_and_b32 v6, 7, v3
    v_cmp_eq_u32 vcc, 4, v6
    v_mov_b32 v7, {KVB+1}
    v_cndmask_b32 v6, 0, v7, vcc
    ds_write_b32 v4, v6 offset:{CNT-UPDI+C_R}
    s_mov_b32 exec_lo, 0xffff
    ds_write_b32 v4, v{VZ} offset:{CNT-UPDI}
    s_mov_b64 exec, -1
    v_lshrrev_b32 v4, 1, v{VT}
    v_and_b32 v4, 7, v4
    v_xor_b32 v4, v4, v{VH}
    v_lshlrev_b32 v4, 4, v4
    v_lshl_add_u32 v4, v{VT}, 7, v4
    s_lshl_b32 s26, s{W}, 12
    v_add_u32 v{VX}, s26, v4
    v_xor_b32 v{VX+1}, 32, v{VX}
    v_xor_b32 v{VX+2}, 64, v{VX}
    v_xor_b32 v{VX+3}, 96, v{VX}
    v_bfe_u32 v4, v3, 2, 2
    v_lshl_add_u32 v12, v{VH}, 3, v4
    v_and_b32 v6, 3, v3
    v_and_b32 v7, 1, v3
    v_bfe_u32 v8, v3, 1, 1
    v_lshl_add_u32 v7, v7, 1, v8
    v_bfe_u32 v8, v3, 4, 1
    v_lshl_add_u32 v9, v8, 2, v7
    v_lshl_add_u32 v10, v8, 2, v6
    s_cmp_lt_u32 s{RL}, 7
    s_cselect_b64 vcc, -1, 0
    v_cndmask_b32 v10, v10, v9, vcc
    v_lshlrev_b32 v11, 7, v12
    v_lshl_add_u32 v11, v10, 3, v11
    v_lshrrev_b32 v4, 1, v4
    v_lshl_add_u32 v11, v4, 6, v11
    v_add_u32 v{VW}, {WT}, v11
    v_xor_b32 v{VW+1}, 64, v{VW}
    v_add_u32 v10, 2, v9
    v_sub_u32 v11, 7, v9
    v_cmp_gt_u32 vcc, 6, v9
    v_cndmask_b32 v10, v11, v10, vcc
    s_bitcmp1_b32 s{H}, 0
    s_cselect_b64 vcc, -1, 0
    v_cndmask_b32 v10, v9, v10, vcc
    v_lshlrev_b32 v11, 6, v12
    v_lshl_add_u32 v11, v10, 3, v11
    v_add_u32 v{VQ}, {WQ}, v11
    v_lshrrev_b32 v4, 2, v3
    v_mul_u32_u24 v4, 2688, v4
    v_lshl_add_u32 v{VWQ}, v6, 4, v4
    s_cmp_ge_u32 s{RL}, 7
    s_cselect_b32 s26, 7, 0
    s_cselect_b32 s29, 2, 0
    s_sub_u32 s26, s{RL}, s26
    s_mul_i32 s28, s26, {64*2341}
    s_lshr_b32 s28, s28, 16
    v_add_u32 v4, s28, v6
    v_mul_u32_u24 v7, 28, v4
    v_lshrrev_b32 v7, 6, v7
    v_cmp_ge_u32 s[64:65], s26, v7
    v_cmp_ne_u32 vcc, s26, v7
    s_and_b32 s28, s{J}, 12
    s_add_u32 s29, s28, s29
    v_mov_b32 v7, s29
    v_addc_co_u32 v7, vcc, 0, v7, vcc
    s_and_b32 s28, s{J}, 3
    v_lshl_add_u32 v4, v4, 2, s28
    v_bfe_u32 v8, v3, 2, 2
    v_lshl_add_u32 v4, v4, 2, v8
    v_lshlrev_b32 v4, 7, v4
    v_lshl_add_u32 v{VFS}, v7, 2, v4
    s_and_b32 s64, s64, 0xffff
    s_cmp_ge_u32 s{RL}, 14
    s_cselect_b32 s64, 0, s64
    s_mov_b32 s65, 0
    s_lshl_b32 s28, s{W}, 5
    v_add_u32 v{VF}, s28, v{VC}
    s_lshl_b32 s28, s{J}, 2
    ; output tile: qb3 = 4j + (h>>2) ; byte col = (4*(h&3) + w)*56
    s_lshr_b32 s58, s{H}, 2
    s_add_u32 s58, s58, s28
    s_and_b32 s59, s{H}, 3
    s_lshl2_add_u32 s59, s59, s{W}
    s_mul_i32 s59, s59, 56
    s_lshl_b32 s28, s58, 5
    v_add_u32 v4, s28, v{VT}
    v_mul_u32_u24 v{VXO}, 896, v4
    v_lshl_add_u32 v{VXO}, v{VH}, 4, v{VXO}
    v_lshlrev_b32 v{VGO}, 3, v4
    s_waitcnt lgkmcnt(0)
    """)
    st_init(a)
    srd(a, 8, 36, (1 << 28) - WSBASE)
    srd(a, 16, 6, 448 * 2688)
    srd(a, 12, 4, 2048 * 896)
    if "wqpf" in EXP:
        a(f"""s_cmp_lg_u32 s{W}, 1
        s_cbranch_scc1 L_nopf2
        v_lshrrev_b32 v4, 2, v3
        v_min_u32 v4, 13, v4
        v_mul_u32_u24 v4, 2688, v4
        v_and_b32 v6, 3, v3
        v_lshl_add_u32 v4, v6, 7, v4
        s_mul_i32 s26, s25, {14*2688}
        s_and_b32 s28, s24, 1
        s_mul_i32 s28, s28, 384
        s_add_u32 s26, s26, s28
        buffer_load_dword v5, v4, s[16:19], s26 offen
        L_nopf2:""")
    if "wopfS" in EXP:
        srd(a, 20, 38, 448 * 896)
        a(f"""s_cmp_lg_u32 s{W}, 2
        s_cbranch_scc1 L_nopf3
        s_mul_i32 s26, s2, {13*128}
        v_lshl_add_u32 v4, v3, 7, s26
        s_mov_b64 exec, 0x1fff
        buffer_load_dword v5, v4, s[20:23], 0 offen
        s_mov_b64 exec, -1
        L_nopf3:""")
    a(f"""s_mul_i32 s62, s{H}, 56
    s_and_b32 s62, s62, 0xfffffff0
    s_mul_i32 s26, s{W}, {16*2688}
    s_add_u32 s62, s62, s26
    s_lshl_b32 s63, s{W}, 10
    s_add_u32 s63, s63, {WQ}
    s_lshl2_add_u32 s35, s{J}, s{W}
    s_mul_i32 s52, s35, 14
    s_add_u32 s52, s52, s{RL}
    s_mul_i32 s52, s52, {BLK}
    s_add_u32 s53, s52, 4096
    s_lshr_b32 s26, s{H}, 1
    s_mul_i32 s26, s26, 7
    s_and_b32 s28, s{H}, 1
    s_lshl2_add_u32 s29, s28, s26
    v_add_u32 v4, s29, v{VH}
    v_lshrrev_b32 v6, 3, v4
    v_mul_u32_u24 v6, {BLK-4096}, v6
    v_lshl_add_u32 v6, v4, 9, v6
    v_lshl_add_u32 v{VA}, v{VT}, 4, v6
    v_add_u32 v4, 2, v4
    v_lshrrev_b32 v6, 3, v4
    v_mul_u32_u24 v6, {BLK-4096}, v6
    v_lshl_add_u32 v6, v4, 9, v6
    s_add_u32 s26, s26, 3
    s_lshr_b32 s29, s26, 3
    s_mul_i32 s29, s29, {BLK}
    s_and_b32 s26, s26, 1
    s_lshl_b32 s26, s26, 9
    s_add_u32 s29, s29, s26
    s_add_u32 s29, s29, 4096
    v_mov_b32 v7, s29
    v_and_b32 v4, s28, v{VH}
    v_cmp_eq_u32 vcc, 1, v4
    v_cndmask_b32 v6, v6, v7, vcc
    v_lshl_add_u32 v{VA+1}, v{VT}, 4, v6
    s_mul_i32 s26, s{H}, 28
    v_add_u32 v4, s26, v{VT}
    v_lshrrev_b32 v6, 6, v4
    v_mul_u32_u24 v6, {BLK}, v6
    v_bfe_u32 v7, v4, 5, 1
    v_lshl_add_u32 v6, v7, 11, v6
    v_and_b32 v4, 31, v4
    v_lshl_add_u32 v6, v4, 4, v6
    v_lshl_add_u32 v6, v{VH}, 9, v6
    v_add_u32 v6, {7*BLK}, v6
    v_add_u32 v8, 1024, v6
    s_lshr_b32 s26, s26, 6
    s_mul_i32 s26, s26, {BLK}
    s_add_u32 s26, s26, {7*BLK + 4096 - 28*16}
    v_lshl_add_u32 v7, v{VT}, 4, s26
    v_cmp_le_u32 vcc, 28, v{VT}
    v_cndmask_b32 v{VA+2}, v6, v7, vcc
    v_cndmask_b32 v{VA+3}, v8, v7, vcc
    s_cmp_ge_u32 s{RL}, 14
    s_cbranch_scc1 L_roleR
    s_cmp_ge_u32 s{RL}, 7
    s_cbranch_scc1 L_roleV""")

    def gemm(kind):
        if "twait" in EXP:
            st(a, 10)
        def reads(c, s):
            k = 4 * c + s
            a(f"ds_read_b128 {vr(XF+4*k,4)}, v{VX+s} offset:{(c&3)*16384}")
            f = WF + 8 * s
            if kind == "R":
                a(f"ds_read_b128 {vr(f,4)}, v{VW} offset:{k*32}")
            else:
                for n in range(2):
                    a(f"ds_read_b64_tr_b16 {vr(f+4*n,2)}, v{VW+n} offset:{k*2048}")
                    a(f"ds_read_b64_tr_b16 {vr(f+4*n+2,2)}, v{VW+n} offset:{k*2048+512}")
        def mfmas(c, s, ns=None):
            k = 4 * c + s
            f = WF + 8 * s
            for n in (ns or range(1 if kind == "R" else 2)):
                acc = (A0, A1)[n]
                cc = "0" if k == 0 else vr(acc, 16)
                if kind == "V": a(f"{MF} {vr(acc,16)}, {vr(XF+4*k,4)}, {vr(f+4*n,4)}, {cc}")
                else:           a(f"{MF} {vr(acc,16)}, {vr(f+4*n,4)}, {vr(XF+4*k,4)}, {cc}")
        per = 2 if kind == "R" else 5
        for c in range(7):
            a("s_barrier")
            if c == 0: st(a, 1)
            if c == 6: st(a, 2)
            if STAMP and c in (0, 6): a("s_waitcnt lgkmcnt(0)")
            reads(c, 0); reads(c, 1)
            for s in range(4):
                if s < 2: reads(c, s + 2)
                a(f"s_waitcnt lgkmcnt({min(3 - s, 2) * per})")
                if c == 6 and kind != "R" and s >= 2: mfmas(c, s, (0,))
                else: mfmas(c, s)
            if c == 6 and kind != "R":
                mfmas(c, 2, (1,)); mfmas(c, 3, (1,))

    PK = 8
    MS = 20
    a(f"""v_add_u32 v4, s{RL}, v{VH}""")
    for i in range(4):
        a(f"""v_cmp_eq_u32 vcc, {3-2*i}, v4
        v_cmp_eq_u32 s[{MS+2*i}:{MS+1+2*i}], {10-2*i}, v4
        s_or_b64 s[{MS+2*i}:{MS+1+2*i}], s[{MS+2*i}:{MS+1+2*i}], vcc""")
    for e in range(4): a(f"v_mov_b32 v{TMP+e}, 0x3f803f80")
    a(f"""s_or_b64 s[28:29], s[{MS}:{MS+1}], s[{MS+2}:{MS+3}]
    s_or_b64 s[54:55], s[{MS+4}:{MS+5}], s[{MS+6}:{MS+7}]
    s_or_b64 s[54:55], s[54:55], s[28:29]
    s_mov_b64 exec, 0
    s_branch L_epi
    L_backK:
    s_mov_b64 exec, -1""")
    gemm("K")
    a("s_branch L_epi")
    a.label("L_roleR")
    if "pfx" in EXP:
        C0 = 1 if "pf1" in EXP else 2
        a(f"""v_mul_u32_u24 v4, 896, v{VT}
        v_lshl_add_u32 v4, v{VH}, 7, v4
        s_mul_i32 s26, s35, {32*896}
        v_lshrrev_b32 v6, 3, v{VT}
        v_mul_u32_u24 v6, 2688, v6
        v_and_b32 v7, 7, v3
        v_min_u32 v7, 6, v7
        v_lshl_add_u32 v6, v7, 7, v6
        v_mul_u32_u24 v7, {64*2688}, v{VH}
        v_add_u32 v6, v6, v7
        s_and_b32 s28, s35, 15
        s_mul_i32 s28, s28, {4*2688}
        s_and_b32 s29, s24, 1
        s_mul_i32 s29, s29, 896
        s_add_u32 s28, s28, s29
        s_add_u32 s28, s28, {896 + C0*64*2688}""")
        for c in range(C0, 7, 2):
            if c == 6: a("s_mov_b32 exec_hi, 0")
            a(f"""buffer_load_dword v5, v4, s[12:15], s26 offen offset:{128*c}
            buffer_load_dword v5, v6, s[16:19], s28 offen
            s_add_u32 s28, s28, {128*2688}""")
        a("s_mov_b64 exec, -1")
    a(f"""v_and_b32 v4, 1, v3
    v_lshlrev_b32 v4, 10, v4
    v_lshl_add_u32 v4, v{VH}, 4, v4
    v_add_u32 v{VW}, {RT}, v4
    s_lshl_b32 s26, s{W}, 7
    s_add_u32 s26, s26, {KEYS}
    v_lshl_add_u32 v12, v{VT}, 2, s26
    v_lshl_add_u32 v13, v{VH}, 6, s26""")
    gemm("R")
    a(f"""s_cmp_lg_u32 s{RL}, 14
    s_cbranch_scc1 L_pub
    s_mov_b32 exec_hi, 0
    s_nop 9
    v_cvt_pk_bf16_f32 v4, v{A0}, v{A0+1}
    v_and_b32 v5, 0xffff0000, v4
    v_lshlrev_b32 v4, 16, v4
    v_ashrrev_i32 v6, 31, v4
    v_or_b32 v6, 0x80000000, v6
    v_xor_b32 v6, v6, v4
    v_lshrrev_b32 v6, 16, v6
    v_lshlrev_b32 v6, 11, v6
    v_cmp_u_f32 vcc, v4, v4
    v_cndmask_b32 v6, v6, 0, vcc
    s_lshl_b32 s26, s35, 5
    v_add_u32 v7, s26, v{VT}
    v_sub_u32 v8, 0x7ff, v7
    v_or_b32 v6, v6, v8
    v_lshlrev_b32 v9, 3, v7
    ds_write_b32 v12, v6
    s_mov_b32 exec_hi, -1
    ds_read_b32 v6, v12
    ds_read_b128 v[16:19], v13
    ds_read_b128 v[20:23], v13 offset:16
    ds_read_b128 v[24:27], v13 offset:32
    ds_read_b128 v[28:31], v13 offset:48""")
    rank_count(a, 6, 16, 16, 14, 15)
    a(f"""v_mov_b32 v15, v14
    s_lshl_b32 s26, s{W}, 5
    s_add_u32 s26, s26, {CAND}
    v_permlane32_swap_b32 v14, v15
    v_add_u32 v14, v14, v15
    v_cmp_gt_u32 vcc, 8, v14
    v_lshl_add_u32 v14, v14, 2, s26
    s_mov_b64 exec, vcc
    ds_write_b32 v14, v6
    s_mov_b64 exec, 1
    ds_add_u32 v{VC}, v{V1} offset:{C_K}
    s_mov_b32 exec_lo, -1
    v_mul_f32 v5, {NLOG2E:#x}, v5
    v_exp_f32 v5, v5
    v_add_f32 v5, 1.0, v5
    v_rcp_f32 v5, v5
    v_cvt_pk_bf16_f32 v5, v5, v5
    v_lshlrev_b32 v10, 16, v5
    s_mov_b32 exec_hi, -1
    s_branch L_pub
    """)
    a.label("L_roleV")
    a(f"""v_cmp_eq_u32 vcc, 0, v3
    v_mov_b32 v7, 0x3f803f80
    v_cndmask_b32 v{TMP}, 0, v7, vcc""")
    for e in range(1, 4): a(f"v_mov_b32 v{TMP+e}, v{TMP}")
    for i in range(4): a(f"s_mov_b64 s[{MS+2*i}:{MS+1+2*i}], 0")
    a("s_mov_b64 s[54:55], 0xff")
    gemm("V")
    a("L_epi:\ns_cbranch_execz L_backK")
    for i in range(4):
        acc = (A0, A1)[i >> 1] + 8 * (i & 1)
        p = PK + 4 * i
        for e in (2, 3, 0, 1): a(f"v_cvt_pk_bf16_f32 v{p+e}, v{acc+2*e}, v{acc+2*e+1}")
        a(f"""s_mov_b64 exec, s[{MS+2*i}:{MS+1+2*i}]
        v_swap_b32 v{TMP}, v{p+2}
        v_swap_b32 v{TMP+1}, v{p+3}
        s_mov_b64 exec, -1
        buffer_store_dwordx4 {vr(p,4)}, v1, s[8:11], s52 offen offset:{1024*i} sc1""")
    a(f"s_mov_b64 exec, s[54:55]\nbuffer_store_dwordx4 {vr(TMP,4)}, v1, s[8:11], s53 offen sc1\ns_mov_b64 exec, -1")
    a.label("L_pub")
    diag_start(a)
    st(a, 3)
    a(f"s_add_u32 s56, s{ROT}, {NQ1}\ns_cmp_ge_u32 s56, 7\ns_cselect_b32 s26, 7, 0\ns_sub_u32 s56, s56, s26")
    for i in range(NQ1, 7):
        a(f"""s_mul_i32 s26, s56, {64*2688}
        s_add_u32 m0, s63, {i*4096}
        s_add_u32 s26, s26, s62
        buffer_load_dwordx4 v{VWQ}, s[16:19], s26 offen lds""")
        if i < 6: next_chunk(a, 56)
    QO = Q + 8 * OWN
    SK = TMP
    a(f"""s_mov_b64 s[16:17], s[36:37]
    s_mov_b32 s18, {KVB}
    s_mov_b32 s57, 0""")
    def ldK(b, soff, base=None):
        r = KV + 16 * b if base is None else base
        return [f"buffer_load_dwordx4 {vr(r,4)}, v{VA}, s[16:19], {soff} offen sc1",
                f"buffer_load_dwordx4 {vr(r+4,4)}, v{VA+1}, s[16:19], {soff} offen sc1"]
    def ldV(b, soff):
        return [f"buffer_load_dwordx4 {vr(KV+16*b+8,4)}, v{VA+2}, s[16:19], {soff} offen sc1",
                f"buffer_load_dwordx4 {vr(KV+16*b+12,4)}, v{VA+3}, s[16:19], {soff} offen sc1"]
    def try_loads(block=False):
        d = uid("Ltl"); l = uid("Ltr"); g = uid("Ltg")
        a(f"s_cmp_eq_u32 s57, 2\ns_cbranch_scc1 {d}")
        if block: a(f"s_mov_b32 s60, {SPIN_LIMIT}\n{l}:\ns_sub_u32 s60, s60, 1\ns_cbranch_scc1 L_exit")
        a(f"""ds_read_b32 v4, v{VF} offset:{C_R}
        ds_read_b32 v5, v{VC} offset:{C_M}
        s_cmp_eq_u32 s57, 1
        s_waitcnt lgkmcnt(0)
        v_readfirstlane_b32 s56, v4
        s_cbranch_scc1 {g}
        v_readfirstlane_b32 s29, v5
        s_sub_u32 s29, s29, 1
        s_cbranch_scc1 {l if block else d}
        s_mov_b32 s57, 1""")
        for x in ldK(0, "s29", SK): a(x)
        a(f"""{g}:
        s_sub_u32 s27, s56, 1
        s_cbranch_scc1 {l if block else d}
        s_add_u32 s54, s56, {TS-1}
        s_add_u32 s55, s56, {2*TS-1}
        s_add_u32 s56, s56, {3*TS-1}
        s_mov_b32 s57, 2""")
        st(a, 6)
        for x in ldK(0, "s27") + ldV(0, "s27") + ldK(1, "s54") + ldV(1, "s54") + ([] if "up4" not in EXP else ldK(2, "s55") + ldV(2, "s55") + ldK(3, "s56")): a(x)
        a(f"{d}:")
    def qreads(k):
        f = WF + 4 * (k & 7)
        a(f"ds_read_b64_tr_b16 {vr(f,2)}, v{VQ} offset:{k*1024}\nds_read_b64_tr_b16 {vr(f+2,2)}, v{VQ} offset:{k*1024+256}")
    def publish():
        a(f"""s_mov_b32 s28, {WS_MB}
        v_readfirstlane_b32 s{T}, v11
        v_mov_b32 v6, v11
        s_mov_b64 exec, 1
        s_waitcnt vmcnt({7-NQ1})""")
        st(a, 4)
        a(f"""ds_add_rtn_u32 v4, v{VC}, v{V1} offset:{C_D}
        s_waitcnt lgkmcnt(0)
        v_cmp_eq_u32 vcc, 3, v4
        s_cbranch_vccz L_notlast
        s_mov_b64 exec, s[64:65]
        s_cbranch_execz L_notlast
        buffer_atomic_swap v6, v{VFS}, s[8:11], s28 offen sc1
        s_waitcnt vmcnt(1)
        s_branch L_published
        L_notlast:
        s_waitcnt vmcnt(0)
        s_cmp_lg_u32 s{RL}, 14
        s_cbranch_scc1 L_published
        s_mov_b32 s26, {WS_G}
        s_mov_b32 exec_lo, -1
        buffer_store_dwordx2 v[10:11], v9, s[8:11], s26 offen sc1
        L_published:""")
        a("s_mov_b64 exec, -1")
    def qgemm(lo, hi, cnt):
        spin_lds(a, VC, cnt, 4, 4)
        if not lo: a(f"ds_read_b32 v11, v{VC} offset:{C_T}")
        for k in range(lo, min(hi, lo + 6)): qreads(k)
        for k in range(lo, hi):
            if k + 6 < hi: qreads(k + 6)
            a(f"s_waitcnt lgkmcnt({2*(min(hi-1,k+6)-k)})")
            a(f"{MF} {vr(A0,16)}, {vr(WF+4*(k&7),4)}, {vr(XF+4*k,4)}, {'0' if k==0 else vr(A0,16)}")
    def qepi():
        for i in range(8): a(f"v_mov_b32 v{KV+56+i}, 0")
        a(f"""s_lshl_b32 s26, s{W}, 11
        s_add_u32 s26, s26, {QX}
        v_add_u32 v5, s26, v1
        s_mov_b32 s62, {QSCALE:#x}
        s_mov_b32 s63, {QSCALE:#x}""")
        for i in range(8): a(f"v_pk_mul_f32 {vr(A0+2*i,2)}, {vr(A0+2*i,2)}, s[62:63]")
        for i in range(8): a(f"v_cvt_pk_bf16_f32 v{QO+i}, v{A0+2*i}, v{A0+2*i+1}")
        a(f"""s_mov_b32 exec_lo, 0
        v_mov_b32 v{QO+6}, 0
        v_mov_b32 v{QO+7}, 0
        s_mov_b32 exec_lo, -1
        ds_write_b128 v5, {vr(QO,4)}
        ds_write_b128 v5, {vr(QO+4,4)} offset:1024""")
        lds_inc(a, VC, C_X, V1)
        for i in range(0, 48, 2): a(f"v_pk_mul_f32 {vr(O+i,2)}, {vr(KV+56,2)}, {vr(KV+56,2)}")
    qgemm(0, 4 * NQ1, C_Q1)
    if NQ1 == 7 and "qfirst" in EXP:
        st(a, 5)
        qepi(); publish(); try_loads()
    elif NQ1 == 7:
        st(a, 5)
        publish(); try_loads(); qepi()
    else:
        publish()
        lds_inc(a, VC, C_Q2, V1)
        try_loads()
        qgemm(4 * NQ1, 28, C_Q2)
        st(a, 5)
        try_loads()
        qepi()
    spin_lds(a, VC, C_X, 4, 4)
    for i in range(3):
        a(f"""s_add_u32 s26, s{W}, {i+1}
        s_and_b32 s26, s26, 3
        s_lshl_b32 s26, s26, 11
        s_add_u32 s26, s26, {QX}
        v_add_u32 v5, s26, v1
        ds_read_b128 {vr(Q+8*i,4)}, v5
        ds_read_b128 {vr(Q+8*i+4,4)}, v5 offset:1024""")
    for i in range(3):
        a(f"""s_add_u32 s26, s{W}, {i+1}
        s_and_b32 s26, s26, 3
        s_mul_i32 s26, s26, 12288
        s_add_u32 s26, s26, {CB + i*4096}
        v_add_u32 v{VX+i}, s26, v1""")
    a(f"s_mul_i32 s26, s{W}, 12288\ns_add_u32 s26, s26, {CB}\nv_add_u32 v2, s26, v1")
    try_loads(block=True)
    def QK(u, m):
        kt, qs = (u >> 2) & 3, u & 3
        s = S + 16 * (u & 1)
        c = "0" if m == 0 else vr(s, 16)
        return f"{MF} {vr(s,16)}, {vr(KV+16*kt+4*m,4)}, {vr(Q+8*qs+4*m,4)}, {c}"
    def PV(u, m):
        kt, qs = (u >> 2) & 3, u & 3
        return f"{MF} {vr(O+16*qs,16)}, {vr(KV+16*kt+8+4*m,4)}, {vr(P+8*(u&1)+4*m,4)}, {vr(O+16*qs,16)}"
    SS = [P, S + 16, S, O + 48]
    def samp(i, m): return f"{MF} {vr(SS[i],16)}, {vr(SK+4*m,4)}, {vr(Q+8*i+4*m,4)}, {'0' if m == 0 else vr(SS[i],16)}"
    def mx(i):
        for x in max16_list(4, SS[i]): a(x)
        a(f"s_mov_b32 exec_lo, 0\nv_cvt_pk_bf16_f32 v{Q+8*i+6}, -v4, 0\ns_mov_b32 exec_lo, -1")
    a(f"s_waitcnt vmcnt({8 if 'up4' not in EXP else 14}) lgkmcnt(0)")
    for i in (0, 2): a(samp(i, 0)); a(samp(i, 1))
    a(samp(1, 0)); a(samp(1, 1))
    mx(0)
    a(samp(3, 0)); a(samp(3, 1))
    mx(2)
    a(f"s_waitcnt vmcnt({6 if 'up4' not in EXP else 12})")
    a(QK(0, 0)); a(QK(0, 1))
    if "up4" not in EXP:
        for x in ldK(2, "s55") + ldV(2, "s55") + ldK(3, "s56"): a(x)
    mx(1)
    for i in range(0, 8, 2): a(f"v_pk_mul_f32 {vr(P+8+i,2)}, {vr(KV+56,2)}, {vr(KV+56,2)}")
    mx(3)
    for i in range(48, 64, 2): a(f"v_pk_mul_f32 {vr(O+i,2)}, {vr(KV+56,2)}, {vr(KV+56,2)}")
    st(a, 7)
    a(f"s_mov_b32 s57, 2\ns_mov_b32 s53, {WS_G}")
    def substep(u, ex, last=False):
        s = S + 16 * (u & 1); p = P + 8 * (u & 1)
        e = lambda i: f"v_exp_f32 v{s+i}, v{s+i}"
        c = lambda i: f"v_cvt_pk_bf16_f32 v{p+i}, v{s+2*i}, v{s+2*i+1}"
        q0, q1 = ([], []) if last else ([QK(u+1, 0)], [QK(u+1, 1)])
        seq = q0 + ex[0] + [e(0), e(1), e(2), e(3), c(0), e(4),
               PV(u-1, 0)] + ex[1] + [e(5), c(1), e(6), e(7), c(2), e(8)] + q1 + ex[2] + [e(9), c(3), e(10), e(11), c(4), e(12),
               PV(u-1, 1)] + ex[3] + [e(13), c(5), e(14), e(15), c(6), c(7)]
        for x in seq: a(x)
    a(".p2align 6")
    a.label("L_loop")
    for u in range(16):
        kt, qs = u >> 2, u & 3
        ex = [[], [], [], []]
        if qs == 1:
            l = ldV((kt + 3) & 3, "s56")
            ex[0] = [l[0]]; ex[1] = [l[1]]; ex[2] = [f"s_add_u32 s56, s56, {TS}"]
        if u == 0: ex[0] = [f"ds_read_b32 v7, v{VF} offset:{C_R+4}"]
        if u == 1:
            ex[2] = ["s_waitcnt lgkmcnt(0)", "v_readfirstlane_b32 s56, v7"]
            ex[3] = ["s_sub_u32 s56, s56, 1"]
        if u == 2:
            ex[0] = ["s_cbranch_scc1 L_nextwait", "L_nextok:", f"v_add_u32 v{VF}, 4, v{VF}"]
        if qs == 2 and "nowait" not in EXP: ex[3] = ["s_waitcnt vmcnt(10)"]
        if qs == 0 and "nowait" not in EXP: ex[3] = ["s_waitcnt vmcnt(10)"]
        if qs == 3:
            l = ldK(kt, "s56")
            ex[0] = [l[0]]; ex[1] = [l[1]]
        if u == GA: ex[1] = ex[1] + [f"ds_add_u32 v{VC}, v{V1} offset:{C_A}"]
        if u == 15: ex[3] = ["s_sub_u32 s57, s57, 1"]
        if "itst" in EXP and u in (0, 8):
            a("s_waitcnt lgkmcnt(0)")
            for i in range(1, 6): a(f"s_mov_b32 s{72+2*i}, s{72+2*i+2}")
            a("s_memtime s[84:85]")
        if "noload" in EXP: ex = [[y for y in x if "buffer_load" not in y] for x in ex]
        substep(u, ex)
    a("s_cbranch_scc0 L_loop")
    for u in range(14):
        ex = [[], [], [], []]
        if u == 1:
            l = ldV(3, "s56"); ex[0] = [l[0]]; ex[1] = [l[1]]
        if u == ZU: ex[2] = [f"ds_add_u32 v{VC}, v{V1} offset:{C_Z}"]
        if u == 0:
            ex[0] = [f"buffer_load_dwordx2 {vr(GR,2)}, v{VGO}, s[8:11], s53 offen sc1"]
            ex[1] = [f"buffer_load_dwordx4 {vr(XR,4)}, v{VXO}, s[12:15], s59 offen"]
            ex[2] = [f"buffer_load_dwordx4 {vr(XR+4,4)}, v{VXO}, s[12:15], s59 offen offset:32"]
        if u % 2 == 0: ex[3] = [f"s_waitcnt vmcnt({min(13, 15 - u) if u < 12 else 0})"]
        if u == 12: ex[0] = [f"ds_read_b32 v7, v{VC} offset:{C_F}"]
        if u == 13:
            ex[0] = ["s_waitcnt lgkmcnt(0)", "v_cmp_gt_u32 vcc, 4, v7"]
            ex[1] = ["s_cbranch_vccnz L_wait_ffn", "L_ffn_free:"]
        substep(u, ex)
    st(a, 8)
    wr = lambda i, k: f"ds_write_b128 v{VX+i}, {vr(O+16*i+4*k,4)} offset:{k*1024}"
    substep(14, [[], [wr(0, 0)], [wr(0, 1)], [wr(0, 2)]])
    substep(15, [[wr(0, 3)], [wr(1, 0)], [wr(1, 1)], [wr(1, 2)]], last=True)
    a(PV(15, 0)); a(wr(1, 3)); a(PV(15, 1))
    for k in range(4): a(wr(2, k))
    lds_inc(a, VC, C_C, V1)
    srd(a, 20, 50, 2048 * 896)
    TT = S
    OO = O + 16 * OWN
    a(f"""s_lshl_b32 s28, s35, 4
    s_add_u32 s28, s28, s{H}
    s_lshr_b32 s56, s28, 2
    s_lshl_b32 s56, s56, 5
    s_and_b32 s26, s{H}, 3
    s_add_u32 s56, s56, s26
    s_lshl_b32 s56, s56, 2
    s_add_u32 s56, s56, {WS_OFL}
    s_lshl_b32 s52, s28, 11
    s_add_u32 s52, s52, {WS_O}
    s_mov_b32 s57, 0""")
    spin_lds(a, VC, C_C, 4, 7)
    for k in range(12): a(f"ds_read_b128 {vr(TT+4*k,4)}, v2 offset:{k*1024}")
    for i in range(3):
        a(f"s_waitcnt lgkmcnt({8-4*i})")
        for k in (6, 7, 0, 1, 2, 3, 4, 5): a(f"v_pk_add_f32 {vr(OO+2*k,2)}, {vr(OO+2*k,2)}, {vr(TT+16*i+2*k,2)}")
    a.label("L_fin")
    a(f"""v_mov_b32 v5, v{OO+12}
    v_mov_b32 v4, v{OO+12}
    s_mov_b32 exec_lo, 0
    v_mov_b32 v{OO+12}, 0
    s_mov_b32 exec_lo, -1
    v_permlane32_swap_b32 v5, v4
    v_rcp_f32 v6, v4
    s_mov_b32 s28, 0x2b800000
    s_mov_b32 s29, 0x6c800000
    v_cmp_nle_f32 s[54:55], s28, v4
    v_cmp_nge_f32 s[62:63], s29, v4
    v_pk_add_f32 v[4:5], {vr(OO,2)}, {vr(OO+2,2)}""")
    for k in range(2, 8): a(f"v_pk_add_f32 v[4:5], v[4:5], {vr(OO+2*k,2)}")
    a(f"""v_add_f32 v4, v4, v5
    s_movk_i32 s28, 0x207
    v_cmp_class_f32 vcc, v4, s28
    s_or_b64 s[54:55], s[54:55], s[62:63]""")
    for k in range(8): a(f"v_pk_mul_f32 {vr(OO+2*k,2)}, {vr(OO+2*k,2)}, v[6:7] op_sel_hi:[1,0]")
    for k in range(8): a(f"v_cvt_pk_bf16_f32 v{Q+k}, v{OO+2*k}, v{OO+2*k+1}")
    a(f"""v_mov_b32 v6, s{T}
    s_or_b64 s[54:55], s[54:55], vcc
    s_cbranch_scc1 L_bad
    L_good:
    buffer_store_dwordx4 {vr(Q,4)}, v1, s[8:11], s52 offen sc1
    buffer_store_dwordx4 {vr(Q+4,4)}, v1, s[8:11], s52 offen offset:1024 sc1
    s_mov_b64 exec, 1
    {"s_waitcnt vmcnt(0)" if ("noclr" in EXP or "otouch" in EXP) else ""}
    buffer_atomic_swap v6, v{VZ}, s[8:11], s56 offen sc1
    s_mov_b64 exec, -1""")
    st(a, 9)
    WOF = 104; B = 232; ACC = 8; U = 72
    OSB = [40, 72]
    PLR = 36
    at = lambda r: f"v_mov_b32 v{r}, 0\ns_mov_b64 exec, 15\nbuffer_atomic_or v{r}, v7, s[8:11], s56 offen sc0 sc1\ns_mov_b64 exec, -1"
    a(f"""s_lshl2_add_u32 s28, s58, s{W}
    s_lshl_b32 s54, s28, 13
    s_add_u32 s54, s54, {WS_O}
    s_add_u32 s55, s54, 4096
    s_lshl_b32 s56, s28, 7
    s_add_u32 s56, s56, {WS_OFL}
    v_lshrrev_b32 v7, 2, v1
    {at(PLR)}
    v_bfe_u32 v4, v3, 2, 2
    v_lshl_add_u32 v4, v{VH}, 2, v4
    v_mul_u32_u24 v4, 224, v4
    v_bfe_u32 v5, v3, 4, 1
    v_lshl_add_u32 v4, v5, 5, v4
    v_and_b32 v5, 1, v3
    v_lshl_add_u32 v4, v5, 4, v4
    v_bfe_u32 v5, v3, 1, 1
    v_lshl_add_u32 v4, v5, 3, v4
    s_mul_i32 s28, s{W}, 56
    v_add_u32 v4, s28, v4""")
    for r in range(4):
        a(f"""s_add_u32 s26, s{W}, {r}
        s_and_b32 s26, s26, 3
        s_mul_i32 s28, s26, {4*28*224}
        v_add_u32 v{24+r}, s28, v4""")
        if r:
            a(f"s_mul_i32 s28, s26, 12288\ns_add_u32 s28, s28, {CB}\nv_add_u32 v{32+r}, s28, v1")
    a(f"""v_lshlrev_b32 v30, 2, v{VT}
    v_add_u32 v30, {UPDI}, v30
    s_mul_i32 s28, s{W}, 112
    s_add_u32 s28, s28, {UPD}
    v_lshl_add_u32 v28, v{VH}, 5, s28
    v_mov_b32 v29, {CNT}
    s_lshl_b32 s28, 0x11, s{W}
    v_mov_b32 v31, s28""")
    spin_lds(a, 29, C_W, 16, 6)
    def word(k):
        o = (28 * ((k >> 1) & 3) + 16 * (k & 1)) * 224
        b = 24 + (k >> 3)
        a(f"ds_read_b64_tr_b16 {vr(WOF+4*k,2)}, v{b} offset:{o}\nds_read_b64_tr_b16 {vr(WOF+4*k+2,2)}, v{b} offset:{o+8*224}")
    a(at(PLR + 1))
    for k in range(NW1):
        word(k)
        if k == NW1 // 2 - 1: a(at(PLR + 2))
    a(f"s_mov_b32 s60, {SPIN_LIMIT}\ns_mov_b64 exec, 15\nL_op:")
    for i in range(4):
        a(f"""v_mov_b32 v{PLR+(i+3)%4}, 0
        buffer_atomic_or v{PLR+(i+3)%4}, v7, s[8:11], s56 offen sc0 sc1
        s_waitcnt vmcnt(3)
        v_cmp_ne_u32 vcc, s{T}, v{PLR+i}
        s_cbranch_vccz L_of""")
    a(f"""s_sub_u32 s60, s60, 1
    s_cbranch_scc0 L_op
    s_endpgm
    L_of:
    s_mov_b64 exec, -1""")
    if "twait" not in EXP: st(a, 10)
    def oload():
        for k in range(8):
            a(f"buffer_load_dwordx4 {vr(OSB[0]+4*k,4)}, v1, s[8:11], {'s54' if k < 4 else 's55'} offen offset:{(k&3)*1024} sc1")
    oload()
    for k in range(NW1, 32): word(k)
    for k in range(8):
        a(f"v_lshlrev_b32 v{B+2*k}, 16, v{XR+k}\nv_and_b32 v{B+2*k+1}, 0xffff0000, v{XR+k}")
    a(f"""v_cmp_ne_u32 vcc, s{T}, v{GR+1}
    s_cbranch_vccnz L_gate
    L_gate_ok:
    v_sub_f32 v24, 1.0, v{GR}
    v_cvt_pk_bf16_f32 v24, v24, v24
    v_lshlrev_b32 v24, 16, v24""")
    def stub(): pass
    def need(bit):
        l = uid("Lnd")
        a(f"""{l}:
        ds_read_b32 v6, v29 offset:{C_O}
        s_sub_u32 s60, s60, 1
        s_cbranch_scc1 L_exit
        s_waitcnt lgkmcnt(0)
        v_readfirstlane_b32 s61, v6
        s_bitcmp1_b32 s61, {bit}
        s_cbranch_scc0 {l}""")
    def rd(g):
        for k in range(8): a(f"ds_read_b128 {vr(OSB[g&1]+4*k,4)}, v{32+g} offset:{k*1024}")
    def mm(g, lo, hi):
        for k in range(lo, hi):
            a(f"{MF} {vr(ACC,16)}, {vr(WOF+32*g+4*k,4)}, {vr(OSB[g&1]+4*k,4)}, {'0' if g == 0 and k == 0 else vr(ACC,16)}")
    a(f"""ds_read_b32 v6, v29 offset:{C_O}
    s_mov_b32 s57, 0
    s_waitcnt lgkmcnt(0)
    v_readfirstlane_b32 s61, v6
    s_bitcmp1_b32 s61, 10
    s_cbranch_scc1 L_blkU
    s_mov_b32 s57, 1
    L_next0:
    v_mov_b32 v4, 0""")
    for k in range(8):
        r = OSB[0] + 4 * k
        a(f"""s_waitcnt vmcnt({7-k})
        ds_write_b128 v2, {vr(r,4)} offset:{k*1024}""")
        if k < 6: mm(0, k, k + 1)
        a(f"""v_max3_u32 v4, v4, v{r}, v{r+1}
        v_max3_u32 v4, v4, v{r+2}, v{r+3}""")
    a("v_cmp_eq_u32 vcc, -1, v4\ns_cbranch_vccnz L_again")
    lds_inc(a, 29, C_O, 31)
    a(f"s_mov_b32 s27, s{W}")
    for g in range(4):
        if g < 3: a(f"ds_read_b32 v6, v29 offset:{C_O}\ns_add_u32 s27, s27, 1")
        if g: a("s_waitcnt lgkmcnt(0)")
        mm(g, 0 if g else 6, 2 if g else 8)
        if g < 3:
            if not g: a("s_waitcnt lgkmcnt(0)")
            a(f"v_readfirstlane_b32 s61, v6\ns_bitcmp1_b32 s61, s27\ns_cbranch_scc0 L_late{g}")
            rd(g + 1)
        mm(g, 2 if g else 8, 8)
        a(f"L_back{g}:")
    a("s_cmp_lg_u32 s57, 0\ns_cbranch_scc1 L_lateU\nL_next1:")
    if "twait" not in EXP: st(a, 11)
    a("s_nop 9")
    for m in range(2):
        for e in range(4*m, 4*m+4):
            a(f"v_pk_fma_f32 {vr(B+2*e,2)}, {vr(ACC+2*e,2)}, {vr(GR,2)}, {vr(B+2*e,2)} op_sel_hi:[1,0,1]")
        for e in range(4*m, 4*m+4): a(f"v_cvt_pk_bf16_f32 v{40+e}, v{B+2*e}, v{B+2*e+1}")
        if m == 0:
            a(f"buffer_store_dwordx4 v[40:43], v{VXO}, s[20:23], s59 offen{OUTAUX}")
            stub()
        else:
            a(f"""s_mov_b32 exec_hi, 0
            buffer_store_dwordx4 v[44:47], v{VXO}, s[20:23], s59 offen offset:32{OUTAUX}
            s_mov_b64 exec, 0xffffffff
            s_not_b64 exec, exec
            buffer_store_dwordx2 v[44:45], v{VXO}, s[20:23], s59 offen offset:32{OUTAUX}""")
    st_end(a)
    diag_end(a)
    a("s_endpgm")
    for g in range(3):
        a(f"L_late{g}:")
        mm(g, 2 if g else 8, 8)
        need("s27"); rd(g + 1)
        a(f"s_branch L_back{g}")
    a("L_again:\ns_sub_u32 s60, s60, 1\ns_cbranch_scc1 L_exit\ns_waitcnt lgkmcnt(0)")
    oload()
    a("s_branch L_next0")
    a("L_lateU:")
    need(10)
    a(f"""L_blkU:
    ds_read_b32 v6, v30
    s_waitcnt lgkmcnt(0)
    v_cmp_le_i32 vcc, 0, v6
    s_cbranch_vccz L_noupd
    s_mov_b64 exec, vcc
    v_mul_u32_u24 v6, 448, v6
    v_add_u32 v28, v28, v6""")
    for k in range(4): a(f"ds_read_b128 {vr(U+4*k,4)}, v28 offset:{64*(k>>1)+16*(k&1)}")
    a("s_waitcnt lgkmcnt(0)")
    for k in range(8):
        a(f"""v_pk_add_f32 {vr(B+2*k,2)}, {vr(B+2*k,2)}, {vr(U+2*k,2)}
        v_cvt_pk_bf16_f32 v{B+2*k}, v{B+2*k}, v{B+2*k+1}
        v_and_b32 v{B+2*k+1}, 0xffff0000, v{B+2*k}
        v_lshlrev_b32 v{B+2*k}, 16, v{B+2*k}""")
    a("s_mov_b64 exec, -1\nL_noupd:")
    stub()
    for k in range(8): a(f"v_pk_mul_f32 {vr(B+2*k,2)}, {vr(B+2*k,2)}, v[24:25] op_sel_hi:[1,0]")
    a("s_cmp_lg_u32 s57, 0\ns_cbranch_scc1 L_next1\ns_branch L_next0")
    a("L_bad:\ns_cmp_eq_u32 s57, 0\ns_cbranch_scc1 L_slow")
    for k in range(8): a(f"v_min_u32 v{Q+k}, -2, v{Q+k}")
    a("s_branch L_good")
    a.label("L_wait_ffn")
    spin_lds(a, VC, C_F, 4, 7)
    a("s_branch L_ffn_free")
    a.label("L_nextwait")
    spin_lds(a, VF, C_R + 4, 1, 7)
    a("s_sub_u32 s56, s61, 1\ns_branch L_nextok")
    a(f"""L_gate:
    s_mov_b32 s26, {WS_G}
    s_mov_b32 s60, {SPIN_LIMIT}
    L_gate1:
    buffer_load_dwordx2 {vr(GR,2)}, v{VGO}, s[8:11], s26 offen sc1
    s_waitcnt vmcnt(0)
    v_cmp_ne_u32 vcc, s{T}, v{GR+1}
    s_cbranch_vccz L_gate_ok
    s_sub_u32 s60, s60, 1
    s_cbranch_scc0 L_gate1
    s_endpgm""")
    a.label("L_slow")
    a(f"""s_mov_b32 s57, 1
    s_mov_b32 s55, {KVB}
    s_mov_b32 s54, 0
    s_mov_b32 exec_lo, 0
    v_mov_b32 v{QO+6}, 0
    v_mov_b32 v{QO+7}, 0
    s_mov_b32 exec_lo, -1
    v_mov_b32 v4, 0xff800000
    L_slow1:
    {ldK(0, "s54")[0]}
    {ldK(0, "s54")[1]}
    s_waitcnt vmcnt(0)
    {MF} {vr(S,16)}, {vr(KV,4)}, {vr(QO,4)}, 0
    {MF} {vr(S,16)}, {vr(KV+4,4)}, {vr(QO+4,4)}, {vr(S,16)}""")
    for x in max16_list(4, S, init=True): a(x)
    a(f"""s_add_u32 s54, s54, {TS}
    s_cmp_lt_u32 s54, s55
    s_cbranch_scc1 L_slow1
    v_mov_b32 v5, v4
    v_permlane32_swap_b32 v4, v5
    v_max_f32 v4, v4, v5""")
    split_neg_max(a, 4, 5, 6, QO + 6, QO + 7)
    for i in range(16): a(f"v_mov_b32 v{OO+i}, 0")
    a(f"""s_mov_b32 s54, 0
    L_slow2:
    {ldK(0, "s54")[0]}
    {ldK(0, "s54")[1]}
    {ldV(0, "s54")[0]}
    {ldV(0, "s54")[1]}
    s_waitcnt vmcnt(0)
    {MF} {vr(S,16)}, {vr(KV,4)}, {vr(QO,4)}, 0
    {MF} {vr(S,16)}, {vr(KV+4,4)}, {vr(QO+4,4)}, {vr(S,16)}""")
    for i in range(16): a(f"v_exp_f32 v{S+i}, v{S+i}")
    for i in range(8): a(f"v_cvt_pk_bf16_f32 v{P+i}, v{S+2*i}, v{S+2*i+1}")
    a(f"""{MF} {vr(OO,16)}, {vr(KV+8,4)}, {vr(P,4)}, {vr(OO,16)}
    {MF} {vr(OO,16)}, {vr(KV+12,4)}, {vr(P+4,4)}, {vr(OO,16)}
    s_nop 7
    s_nop 7
    s_add_u32 s54, s54, {TS}
    s_cmp_lt_u32 s54, s55
    s_cbranch_scc1 L_slow2
    s_branch L_fin""")

GI = CB; DI = QX; HB = 101376
FT, KS = 66, 67
def service_wave(a):
    a.label("L_service")
    a(f"""v_mov_b32 v14, {CNT}
    v_mov_b32 v15, 1
    v_mov_b32 v9, 0""")
    srd(a, 8, 36, (1 << 28) - WSBASE)
    a("s_waitcnt lgkmcnt(0)")
    tag(a)
    a(f"v_mov_b32 v4, s{T}\nds_write_b32 v14, v4 offset:{C_T}\ns_waitcnt vmcnt(0)")
    lds_inc(a, 14, C_Q1, 15)
    a(f"""v_and_b32 v32, 31, v3
    v_lshrrev_b32 v33, 5, v3
    v_lshlrev_b32 v219, 3, v1
    v_lshrrev_b32 v220, 2, v1
    v_and_b32 v4, 7, v3
    v_lshlrev_b32 v217, 3, v4
    s_lshr_b32 s58, s{H}, 2
    s_lshl2_add_u32 s58, s{J}, s58
    v_lshlrev_b32 v211, 11, v33
    v_lshl_add_u32 v211, v32, 4, v211
    v_and_b32 v4, 24, v3
    v_lshl_add_u32 v4, v33, 2, v4
    v_lshl_add_u32 v4, v217, 4, v4
    s_lshl_b32 s26, s{L}, 5
    s_add_u32 s26, s26, {HB}
    v_add_u32 v214, s26, v4
    s_mul_i32 s{FT}, s2, 9363
    s_lshr_b32 s{FT}, s{FT}, 16
    s_mul_i32 s26, s{FT}, 7
    s_sub_u32 s{KS}, s2, s26
    s_cmp_ge_u32 s{L}, 2
    s_cbranch_scc1 L_svcB""")
    def sel_load(lbl):
        a(f"""s_mov_b32 s26, {WS_SEL}
        s_mov_b32 s60, {SPIN_LIMIT}
        {lbl}:
        buffer_load_dwordx2 v[20:21], v217, s[8:11], s26 offen sc1
        s_waitcnt vmcnt(0)
        v_cmp_ne_u32 vcc, s{T}, v21
        s_cbranch_vccz {lbl}_ok
        s_sleep 4
        s_sub_u32 s60, s60, 1
        s_cbranch_scc0 {lbl}
        s_endpgm
        {lbl}_ok:""")
    a(f"""s_lshl_b32 s27, s{J}, 6
    s_add_u32 s27, s27, {WS_R}
    s_cmp_eq_u32 s{RL}, 14
    s_cbranch_scc1 L_rank
    s_cmp_lg_u32 s2, {SELECTOR}
    s_cbranch_scc1 L_svcA
    s_lshl_b32 s28, s{L}, 8
    s_add_u32 s28, s28, {KEYS}
    v_add_u32 v7, s28, v220
    v_lshl_add_u32 v6, v33, 7, s28
    s_lshl_b32 s28, s{L}, 6
    s_add_u32 s28, s28, {CAND}
    v_lshl_add_u32 v10, v33, 5, s28
    s_lshl_b32 s26, s{L}, 9
    s_add_u32 s26, s26, {WS_R}
    s_mov_b32 s27, {WS_SEL}
    v_lshlrev_b32 v4, 3, v3
    v_mov_b32 v5, 2
    s_mov_b32 s60, {SPIN_LIMIT}
    L_keys:
    v_mov_b32 v20, 0
    v_mov_b32 v21, 0
    buffer_atomic_or_x2 v[20:21], v4, s[8:11], s26 offen sc0 sc1
    s_sub_u32 s60, s60, 1
    s_cbranch_scc1 L_exit
    s_waitcnt vmcnt(0)
    v_cmp_ne_u32 vcc, s{T}, v21
    s_cbranch_vccnz L_keys
    ds_write_b32 v7, v20""")
    for k in range(8): a(f"ds_read_b128 {vr(40+4*k,4)}, v6 offset:{16*k}")
    rank_count(a, 20, 40, 32, 22, 23)
    a(f"""v_cmp_gt_u32 vcc, 8, v22
    v_lshl_add_u32 v22, v22, 2, v10
    s_mov_b64 exec, vcc
    ds_write_b32 v22, v20""")
    lds_inc(a, 14, C_K, 5)
    a(f"""L_rank:
    s_cmp_lg_u32 s{L}, 0
    s_cbranch_scc1 L_svcA
    v_mov_b32 v6, {CAND}
    v_lshl_add_u32 v7, v32, 2, v6
    v_lshl_add_u32 v6, v33, 6, v6
    v_mov_b32 v21, s{T}""")
    spin_lds(a, 14, C_K, 4, 8)
    st(a, 10)
    if STAMP: a("s_waitcnt lgkmcnt(0)")
    a("ds_read_b32 v20, v7")
    for k in range(4): a(f"ds_read_b128 {vr(40+4*k,4)}, v6 offset:{16*k}")
    rank_count(a, 20, 40, 16, 22, 23)
    a(f"""v_mov_b32 v23, v22
    v_permlane32_swap_b32 v22, v23
    v_add_u32 v22, v22, v23
    v_cmp_gt_u32 vcc, 8, v22
    v_lshlrev_b32 v22, 3, v22
    s_mov_b32 exec_lo, vcc_lo
    s_mov_b32 exec_hi, 0
    buffer_atomic_swap_x2 v[20:21], v22, s[8:11], s27 offen sc1
    s_mov_b64 exec, -1""")
    st(a, 11)
    a.label("L_svcA")
    for e in range(7):
        a(f"""v_add_u32 v4, {64*e}, v3
        v_mul_u32_u24 v5, 4682, v4
        v_lshrrev_b32 v5, 16, v5
        v_mul_u32_u24 v5, {896-224}, v5
        v_lshl_add_u32 v{200+e}, v4, 4, v5""")
    for r in (215, 216): a(f"v_mov_b32 v{r}, 0")
    a(f"""v_mov_b32 v28, -1
    v_mov_b32 v29, -1
    v_mov_b32 v30, -1
    v_mov_b32 v31, -1
    s_lshl_b32 s59, s{J}, 6
    s_add_u32 s59, s59, s{H}
    s_lshl1_add_u32 s59, s59, s{L}
    s_lshl_b32 s59, s59, 10
    s_add_u32 s59, s59, {WS_O}
    s_cmp_ge_u32 s2, 196
    s_cbranch_scc1 L_nofn
    v_lshrrev_b32 v4, 3, v3
    v_and_b32 v5, 2, v4
    v_lshlrev_b32 v5, 1, v5
    v_and_b32 v6, 7, v3
    v_xor_b32 v5, v5, v6
    v_mul_u32_u24 v6, 3584, v4
    v_lshl_add_u32 v34, v5, 4, v6
    v_add_u32 v35, {8*3584-1024}, v34
    v_add_u32 v36, {2*(8*3584-1024)}, v34
    v_add_u32 v37, {3*(8*3584-1024)}, v34
    v_mul_u32_u24 v6, 896, v4
    v_lshl_add_u32 v240, v5, 4, v6
    v_add_u32 v241, {8*896-1024}, v240
    v_add_u32 v242, {2*(8*896-1024)}, v240
    v_add_u32 v243, {3*(8*896-1024)}, v240
    s_lshl_b32 s54, s{L}, 13
    s_add_u32 s54, s54, {GI}
    v_and_b32 v4, 3, v3
    v_lshrrev_b32 v6, 4, v3
    v_bfe_u32 v7, v3, 2, 2
    v_lshl_add_u32 v8, v6, 3, v7
    v_lshlrev_b32 v8, 7, v8
    v_lshrrev_b32 v7, 1, v7
    v_lshl_add_u32 v8, v7, 6, v8
    v_lshl_add_u32 v8, v4, 3, v8
    v_add_u32 v38, s54, v8
    v_xor_b32 v39, 64, v38
    v_lshlrev_b32 v213, 4, v6
    v_lshlrev_b32 v212, 3, v213
    v_lshl_add_u32 v212, v217, 1, v212""")
    srd(a, 16, 42, 448 * 3584)
    a(f"""s_cmp_eq_u32 s{L}, 1
    s_cselect_b64 s[16:17], s[44:45], s[42:43]
    s_mul_i32 s52, s{KS}, {64*3584}
    s_lshl_b32 s28, s{FT}, 7
    s_add_u32 s52, s52, s28
    s_movk_i32 s29, 896""")
    if GA >= 0: spin_lds(a, 14, C_A, 256, 8, sleep=4)
    else: spin_lds(a, 14, C_L, 8 if "deferA" in EXP else 4, 8, sleep=4)
    st(a, 3)
    NR = 2 if "fine" in EXP else 4
    XS_ = 40; FW = 56; AC = 104
    if "nogu" in EXP: a("s_mov_b32 s18, 0")
    a("s_mov_b32 m0, s54\ns_nop 0")
    for k in range(8):
        if k == 4: a(f"s_add_u32 s52, s52, {32*3584}\ns_add_u32 m0, s54, 4096")
        if k == 8 - NR: sel_load("L_sel1")
        elif k and k % NR == 0: a("s_waitcnt vmcnt(0)")
        a(f"buffer_load_dwordx4 v{34+(k&3)}, s[16:19], s52 offen offset:{1024*(k&3)} lds")
    a(f"""v_not_b32 v4, v20
    v_and_b32 v4, 0x7ff, v4
    v_mad_u32_u24 v4, v4, s29, v213
    s_lshl_b32 s26, s{KS}, 7
    s_mov_b32 exec_lo, 0x00ff00ff
    s_mov_b32 exec_hi, 0x00ff00ff
    buffer_load_dwordx4 {vr(XS_,4)}, v4, s[12:15], s26 offen
    buffer_load_dwordx4 {vr(XS_+4,4)}, v4, s[12:15], s26 offen offset:64
    s_mov_b64 exec, -1
    s_waitcnt vmcnt(2)""")
    for k in range(2):
        for n in range(4):
            o = k * 4096 + (n & 1) * 32
            a(f"ds_read_b64_tr_b16 {vr(FW+16*k+4*n,2)}, v{38+(n>>1)} offset:{o}\nds_read_b64_tr_b16 {vr(FW+16*k+4*n+2,2)}, v{38+(n>>1)} offset:{o+512}")
    lds_inc(a, 14, C_F, 15)
    a(f"""s_mov_b64 s[16:17], s[46:47]
    s_lshl1_add_u32 s28, s{FT}, s{L}
    s_mul_i32 s28, s28, {32*896}
    s_add_u32 s28, s28, s26
    s_lshl_b32 s29, s{L}, 12
    s_add_u32 m0, s29, {DI}
    s_lshl1_add_u32 s26, s2, s{L}
    s_lshl_b32 s26, s26, 11
    s_add_u32 s26, s26, {WS_GP}
    s_waitcnt vmcnt(0) lgkmcnt(0)""")
    st(a, 4)
    for k in range(2):
        for n in range(4):
            a(f"v_mfma_f32_16x16x32_bf16 {vr(AC+4*n,4)}, {vr(FW+16*k+4*n,4)}, {vr(XS_+4*k,4)}, {'0' if k==0 else vr(AC+4*n,4)}")
    a("s_mov_b32 exec_lo, 0x00ff00ff\ns_mov_b32 exec_hi, 0x00ff00ff")
    for n in range(4):
        a(f"buffer_store_dwordx4 {vr(AC+4*n,4)}, v212, s[8:11], s26 offen offset:{512*n} sc1")
    a("s_mov_b64 exec, -1")
    if "nowd" in EXP: a("s_mov_b32 s18, 0")
    for k in range(4): a(f"buffer_load_dwordx4 v{240+k}, s[16:19], s28 offen offset:{1024*k} lds")
    a(f"""s_lshl1_add_u32 s26, s{KS}, s{L}
    s_lshl_b32 s26, s26, 2
    s_mul_i32 s28, s{FT}, {7*128}
    s_add_u32 s26, s26, s28
    s_add_u32 s26, s26, {WS_F1}
    s_waitcnt vmcnt(4)""")
    signal(a, 5, 219, "s26", "0x7f")
    st(a, 5)
    a(f"s_cmp_lg_u32 s{L}, 0\ns_cbranch_scc1 L_st2w\ns_lshl_b32 s26, s2, 7\ns_add_u32 s26, s26, {WS_F1}")
    poll_atomic(a, 5, 220, "s26", "0x3fff", 2)
    lds_inc(a, 14, C_L, 15)
    a("L_st2w:")
    spin_lds(a, 14, C_L, 1, 8, sleep=3)
    st(a, 6)
    GP = 40; DW = 120
    a(f"s_mul_i32 s26, s{FT}, {7*4096}\ns_lshl_b32 s28, s{L}, 9\ns_add_u32 s26, s26, s28\ns_add_u32 s26, s26, {WS_GP}")
    for k in range(7):
        a(f"buffer_load_dwordx4 {vr(GP+4*k,4)}, v211, s[8:11], s26 offen sc1")
        if k < 6: a("s_add_u32 s26, s26, 4096")
    a(f"s_mov_b32 s28, {NLOG2E:#x}\ns_waitcnt vmcnt(0)")
    for k in range(1, 7):
        if "nopk" in EXP:
            for e in range(4): a(f"v_add_f32 v{GP+e}, v{GP+e}, v{GP+4*k+e}")
        else:
            for e in range(2): a(f"v_pk_add_f32 {vr(GP+2*e,2)}, {vr(GP+2*e,2)}, {vr(GP+4*k+2*e,2)}")
    a(f"""v_permlane32_swap_b32 v{GP}, v{GP+2}
    v_permlane32_swap_b32 v{GP+1}, v{GP+3}
    v_mul_f32 v22, s28, v{GP}
    v_mul_f32 v23, s28, v{GP+1}
    v_exp_f32 v22, v22
    v_exp_f32 v23, v23
    v_add_f32 v22, 1.0, v22
    v_add_f32 v23, 1.0, v23
    v_rcp_f32 v22, v22
    v_rcp_f32 v23, v23
    v_pk_mul_f32 v[22:23], v[22:23], {vr(GP,2)}
    v_pk_mul_f32 v[22:23], v[22:23], {vr(GP+2,2)}
    v_cvt_pk_bf16_f32 v22, v22, v23
    ds_write_b32 v214, v22""")
    lds_inc(a, 14, C_S, 15)
    a(f"s_cmp_ge_u32 s{L}, 2\ns_cbranch_scc1 L_st3\ns_branch L_clr")
    a.label("L_nofn")
    lds_inc(a, 14, C_F, 15)
    spin_lds(a, 14, C_A, 512, 8, sleep=8)
    srd(a, 16, 38, 448 * 896)
    a(f"""s_sub_u32 s26, s2, 196
    s_lshl1_add_u32 s26, s26, s{L}
    s_mul_i32 s26, s26, {27*128}
    s_min_u32 s26, s26, {(3136-27)*128}
    s_mov_b64 exec, 0x7ffffff
    buffer_load_dword v6, v219, s[16:19], s26 offen
    s_mov_b64 exec, -1""")
    sel_load("L_sel2")
    a(f"""s_lshl2_add_u32 s26, s2, s{L}
    s_cmp_lg_u32 s26, {254*4}
    s_cbranch_scc1 L_clr""")
    a(f"s_mov_b32 s60, {SPIN_LIMIT}\nL_ep:")
    for k in range(4):
        a(f"s_mov_b32 s26, {WS_FL+8192*k}\nbuffer_load_dword v{24+k}, v219, s[8:11], s26 offen sc1")
    a(f"""s_sub_u32 s60, s60, 1
    s_cbranch_scc1 L_exit
    s_waitcnt vmcnt(0)
    v_xor_b32 v24, s{T}, v24
    v_bitop3_b32 v24, v24, v25, s{T} bitop3:0xf6
    v_bitop3_b32 v24, v24, v26, s{T} bitop3:0xf6
    v_bitop3_b32 v24, v24, v27, s{T} bitop3:0xf6
    v_cmp_ne_u32 vcc, 0, v24
    s_cbranch_vccnz L_ep
    s_mov_b32 s26, {WS_EP}""")
    flag_store(a, 5, 9, "s26")
    a("L_clr:")
    for k in range(4):
        a(f"buffer_store_dwordx4 v[28:31], v1, s[8:11], s59 offen sc1\ns_add_u32 s59, s59, {16*2048}")
        if k == 3 or (k & 1 and "clr2" in EXP): a("s_waitcnt vmcnt(0)")
    lds_inc(a, 14, C_F, 15)
    st(a, 7)
    Y = 40
    a(f"""L_updA:
    s_and_b32 s53, s{H}, 3
    s_mul_i32 s53, s53, 224
    s_lshl_b32 s57, s{L}, 2
    s_lshr_b32 s26, s53, 6
    s_lshl_b32 s26, s26, 7
    s_add_u32 s62, s26, {WS_YFL}
    L_upd:
    v_readlane_b32 s52, v20, s57
    s_andn2_b32 s54, 0x7ff, s52
    s_lshr_b32 s26, s54, 5
    s_cmp_lg_u32 s26, s58
    s_cbranch_scc1 L_updn
    s_mov_b32 s60, {SPIN_LIMIT}
    s_mov_b32 exec_lo, 0x0fffffff
    s_mov_b32 exec_hi, 0x0fffffff
    L_yfl:
    v_mov_b32 v24, 0
    v_mov_b32 v25, 0
    buffer_atomic_or v24, v220, s[8:11], s62 offen sc0 sc1
    buffer_atomic_or v25, v220, s[8:11], s62 offen offset:256 sc0 sc1
    s_waitcnt vmcnt(0)
    v_xor_b32 v24, s{T}, v24
    v_bitop3_b32 v24, v24, v25, s{T} bitop3:0xf6
    v_cmp_ne_u32 vcc, 0, v24
    s_cbranch_vccz L_yok
    s_sub_u32 s60, s60, 1
    s_cbranch_scc0 L_yfl
    s_endpgm
    L_yok:
    v_mul_u32_u24 v4, {14*14336}, v33
    v_lshl_add_u32 v4, v32, 4, v4
    s_mul_i32 s26, s57, 1792
    s_lshl1_add_u32 s26, s53, s26
    s_add_u32 s26, s26, {WS_YP}""")
    for i in range(14):
        a(f"buffer_load_dwordx4 {vr(Y+4*i,4)}, v4, s[8:11], s26 offen sc1\ns_add_u32 s26, s26, 14336")
    a(f"""s_mov_b64 exec, -1
    s_lshr_b32 s26, s52, 11
    s_not_b32 s55, s26
    s_and_b32 s29, s26, 0x7fff
    s_bitcmp1_b32 s26, 15
    s_cselect_b32 s26, s29, s55
    s_lshl_b32 s26, s26, 16
    v_mov_b32 v6, {NLOG2E:#x}
    v_mul_f32 v6, s26, v6
    v_exp_f32 v6, v6
    v_add_f32 v6, 1.0, v6
    v_rcp_f32 v6, v6
    v_cvt_pk_bf16_f32 v6, v6, v6
    v_lshlrev_b32 v6, 16, v6
    s_mul_i32 s26, s57, 448
    s_add_u32 s26, s26, {UPD}
    v_lshl_add_u32 v7, v32, 4, s26
    s_waitcnt vmcnt(0)""")
    for i in range(1, 14):
        a(f"v_pk_add_f32 {vr(Y,2)}, {vr(Y,2)}, {vr(Y+4*i,2)}\nv_pk_add_f32 {vr(Y+2,2)}, {vr(Y+2,2)}, {vr(Y+4*i+2,2)}")
    for k in range(4): a(f"v_mov_b32 v{Y+4+k}, v{Y+k}")
    for k in range(4): a(f"v_permlane32_swap_b32 v{Y+k}, v{Y+4+k}")
    for k in range(4): a(f"v_add_f32 v{Y+k}, v{Y+k}, v{Y+4+k}")
    for k in range(0, 4, 2):
        a(f"""v_cvt_pk_bf16_f32 v{Y+k}, v{Y+k}, v{Y+k+1}
        v_and_b32 v{Y+k+1}, 0xffff0000, v{Y+k}
        v_lshlrev_b32 v{Y+k}, 16, v{Y+k}
        v_mul_f32 v{Y+k}, v{Y+k}, v6
        v_mul_f32 v{Y+k+1}, v{Y+k+1}, v6
        v_cvt_pk_bf16_f32 v{Y+k}, v{Y+k}, v{Y+k+1}
        v_and_b32 v{Y+k+1}, 0xffff0000, v{Y+k}
        v_lshlrev_b32 v{Y+k}, 16, v{Y+k}""")
    a(f"""s_and_b32 s54, s54, 31
    v_mov_b32 v5, s57
    s_lshl_b32 s26, s54, 2
    s_add_u32 s26, s26, {UPDI}
    v_mov_b32 v4, s26
    s_mov_b64 exec, 0x0fffffff
    ds_write_b128 v7, {vr(Y,4)}
    s_mov_b64 exec, 1
    ds_write_b32 v4, v5
    s_mov_b64 exec, -1
    L_updn:
    s_add_u32 s57, s57, 1
    s_and_b32 s26, s57, 3
    s_cbranch_scc1 L_upd
    v_mov_b32 v6, 512""")
    lds_inc(a, 14, C_O, 6)
    st(a, 9)
    a("s_branch L_wo1")
    a.label("L_svcB")
    CLR = "buffer_store_dwordx4 v[24:27], v1, s[8:11], s59 offen sc1"
    if "noclr" in EXP: CLR = ""
    if "otouch" in EXP: CLR = "s_mov_b32 exec_lo, 0x0f0f0f0f\ns_mov_b32 exec_hi, 0x0f0f0f0f\nbuffer_store_dwordx4 v[24:27], v1, s[8:11], s59 offen sc1\ns_mov_b64 exec, -1"
    OUTT = ""
    if "outtouch" in EXP:
        OUTT = f"""s_cmp_lg_u32 s55, {42*1024}
        s_cbranch_scc1 L_noot
        s_mov_b32 s20, s50
        s_mov_b32 s21, s51
        s_mov_b32 s22, {2048*896}
        s_mov_b32 s23, 0x20000
        s_lshl_b32 s26, s58, 5
        v_add_u32 v4, s26, v32
        v_mul_u32_u24 v4, 896, v4
        s_add_u32 s26, s53, 127
        s_and_b32 s26, s26, 0xffffff80
        v_lshl_add_u32 v4, v33, 7, v4
        s_cmp_eq_u32 s53, 672
        s_cselect_b32 exec_hi, 0, -1
        buffer_store_dword v9, v4, s[20:23], s26 offen sc1
        s_mov_b64 exec, -1
        L_noot:"""
    WOPF = "s_mov_b32 exec_hi, 0x1ffff\nbuffer_load_dword v6, v219, s[16:19], s28 offen\ns_mov_b64 exec, -1" if "wopfS" not in EXP and "nowopf" not in EXP else ""
    for e in range(7):
        a(f"""v_add_u32 v4, {64*e}, v3
        v_mul_u32_u24 v5, 4682, v4
        v_lshrrev_b32 v5, 16, v5
        v_mul_u32_u24 v5, {896-224}, v5
        v_lshl_add_u32 v{200+e}, v4, 4, v5""")
    a(f"""v_mov_b32 v16, 0
    v_mov_b32 v17, 0
    v_mov_b32 v18, 0
    v_mov_b32 v19, 0
    v_add_u32 v209, {448*224}, v1
    v_bfe_u32 v7, v3, 2, 2
    v_lshl_add_u32 v5, v33, 3, v7
    v_lshlrev_b32 v5, 7, v5
    v_bfe_u32 v4, v3, 4, 1
    v_lshl_add_u32 v5, v4, 5, v5
    v_and_b32 v4, 3, v3
    v_lshl_add_u32 v5, v4, 3, v5
    v_lshrrev_b32 v7, 1, v7
    v_xor_b32 v7, s{L}, v7
    v_and_b32 v7, 1, v7
    v_lshl_add_u32 v5, v7, 6, v5
    v_add_u32 v210, {DI}, v5
    v_lshlrev_b32 v4, 4, v217
    v_lshl_add_u32 v4, v33, 4, v4
    v_add_u32 v218, {HB}, v4
    v_mul_u32_u24 v215, {4*1792}, v33
    v_lshl_add_u32 v215, v32, 2, v215
    v_add_u32 v216, {2*1792}, v215
    s_cmp_eq_u32 s{L}, 2
    s_cbranch_scc1 L_svcB2
    v_lshrrev_b32 v4, 4, v3
    v_and_b32 v5, 15, v3
    v_lshlrev_b32 v5, 2, v5
    v_lshl_add_u32 v221, v4, 9, v5
    v_lshl_add_u32 v222, v4, 5, v14
    v_and_b32 v223, 48, v3
    v_and_b32 v5, 15, v3
    v_add_u32 v6, v5, v4
    v_mul_u32_u24 v224, {4*TS}, v6
    v_add_u32 v224, 1, v224
    v_bfm_b32 v225, v5, 0
    s_mul_i32 s26, s{H}, 28
    s_add_u32 s28, s26, 27
    s_xor_b32 s26, s26, s28
    s_mov_b32 s62, 0x55555555
    s_cmp_ge_u32 s26, 64
    s_cselect_b32 s62, -1, s62
    s_mov_b32 s63, s62
    s_lshr_b32 s28, s{J}, 2
    s_lshl4_add_u32 s26, s{H}, s28
    s_lshl_b32 s26, s26, 7
    s_add_u32 s26, s26, {WS_MB}""")
    spin_lds(a, 14, C_D, PCD, 8, sleep=1)
    at = lambda r: f"v_mov_b32 v{r}, 0\nbuffer_atomic_or v{r}, v221, s[8:11], s26 offen sc0 sc1"
    a(f"""s_mov_b32 s60, {SPIN_LIMIT}
    s_mov_b32 s52, 0x11111111
    s_mov_b32 s53, 0x11111111
    s_mov_b64 s[56:57], s[52:53]
    s_mov_b64 exec, s[62:63]""")
    for i in range(PD - 1): a(at(28 + i) + f"\ns_sleep {PG}")
    a("L_kv:")
    for i in range(PD):
        a(at(28 + (i + PD - 1) % PD))
        a(f"""s_waitcnt vmcnt({PD-1})
        v_cmp_ne_u32 vcc, s{T}, v{28+i}
        s_lshr_b64 s[28:29], vcc, 1
        s_or_b64 s[28:29], s[28:29], vcc
        s_andn2_b64 s[54:55], s[56:57], s[28:29]
        s_cbranch_scc0 L_kvs{i}
        s_ff1_i32_b64 s54, s[54:55]
        s_lshl_b64 exec, 1, s54
        ds_write_b32 v14, v224 offset:{C_M}
        s_mov_b64 exec, s[62:63]
        s_mov_b64 s[56:57], 0
        L_kvs{i}:
        s_lshr_b64 s[54:55], s[28:29], 2
        s_or_b64 s[28:29], s[28:29], s[54:55]
        s_andn2_b64 s[28:29], s[52:53], s[28:29]
        s_cbranch_scc0 L_kvn{i}
        s_andn2_b64 s[52:53], s[52:53], s[28:29]
        v_lshrrev_b64 v[4:5], v223, s[28:29]
        v_and_b32 v5, v225, v4
        v_bcnt_u32_b32 v5, v5, 0
        v_lshl_add_u32 v5, v5, 2, v222
        s_mov_b64 exec, s[28:29]
        ds_write_b32 v5, v224 offset:{C_R}
        s_mov_b64 exec, s[62:63]
        v_and_b32 v4, 0xffff, v4
        v_bcnt_u32_b32 v4, v4, 0
        v_lshl_add_u32 v222, v4, 2, v222
        s_cmp_eq_u64 s[52:53], 0
        s_cbranch_scc1 L_kvdone
        L_kvn{i}:""")
    a(f"""s_sub_u32 s60, s60, 1
    s_cbranch_scc0 L_kv
    s_endpgm
    L_kvdone:
    s_mov_b64 exec, -1
    L_svcB2:""")
    srd(a, 16, 38, 448 * 896)
    a(f"""s_and_b32 s53, s{H}, 3
    s_mul_i32 s53, s53, 224
    s_and_b32 s27, s{L}, 1
    s_mul_i32 s55, s27, {7*1024}
    s_mul_i32 s57, s27, {32*896}
    s_add_u32 s57, s57, s53""")
    spin_lds(a, 14, C_A, 256, 8, sleep=4)
    st(a, 3)
    a("ds_write_b128 v209, v[16:19]")
    lds_inc(a, 14, C_W, 15)
    a(f"""    s_cmp_lg_u32 s{L}, 2
    s_cbranch_scc1 L_nofl
    s_lshl_b32 s26, s2, 7
    s_add_u32 s26, s26, {WS_FL}""")
    flag_store(a, 5, 9, "s26")
    a("L_nofl:\ns_cmp_lt_u32 s2, 196\ns_cbranch_scc1 L_st2w\ns_branch L_wo1")
    a("L_st3:")
    spin_lds(a, 14, C_S, 4, 8, sleep=1)
    for k in range(4):
        a(f"ds_read_b64_tr_b16 {vr(DW+4*k,2)}, v210 offset:{k*2048}\nds_read_b64_tr_b16 {vr(DW+4*k+2,2)}, v210 offset:{k*2048+512}")
    for k in range(4):
        a(f"ds_read_b128 {vr(GP+4*k,4)}, v218 offset:{32*k}\ns_waitcnt lgkmcnt(0)\n{MF} {vr(AC,16)}, {vr(GP+4*k,4)}, {vr(DW+4*k,4)}, {'0' if k==0 else vr(AC,16)}")
    a(f"""s_mul_i32 s26, s{FT}, 14336
    s_lshl1_add_u32 s28, s{KS}, s27
    s_lshl_b32 s29, s28, 7
    s_add_u32 s26, s26, s29
    s_add_u32 s26, s26, {WS_YP}
    s_lshl2_add_u32 s28, s{FT}, s29
    s_add_u32 s28, s28, {WS_YFL}
    buffer_store_dword v{AC}, v215, s[8:11], s26 offen sc1
    buffer_store_dword v{AC+1}, v215, s[8:11], s26 offen offset:1792 sc1
    buffer_store_dword v{AC+2}, v216, s[8:11], s26 offen sc1
    buffer_store_dword v{AC+3}, v216, s[8:11], s26 offen offset:1792 sc1
    s_waitcnt vmcnt(0)""")
    signal(a, 5, 9, "s28", 1)
    st(a, 7)
    a("L_wo1:")
    srd(a, 16, 38, 448 * 896)
    a("s_mov_b32 s27, 0")
    spin_lds(a, 14, C_Z, 64 * ZN, 8, sleep=4)
    st(a, 4)
    a(f"""L_wo:
    s_mov_b64 exec, 1
    ds_add_rtn_u32 v8, v14, v15 offset:{C_B}
    s_mov_b64 exec, -1
    s_waitcnt lgkmcnt(0)
    v_readfirstlane_b32 s26, v8
    s_cmp_ge_u32 s26, 14
    s_cbranch_scc1 L_wodone
    s_add_u32 s27, s27, 1
    s_mul_i32 s55, s26, {7*1024}
    s_mul_i32 s57, s26, {32*896}
    s_add_u32 s57, s57, s53""")
    for e in range(7):
        a(f"""s_add_u32 m0, s55, {e*1024}
        s_waitcnt vmcnt({WD})
        buffer_load_dwordx4 v{200+e}, s[16:19], s57 offen lds""")
    a(f"""s_branch L_wo
    L_wodone:
    v_mov_b32 v5, s27
    s_waitcnt vmcnt(0)""")
    lds_inc(a, 14, C_W, 5)
    st(a, 8)
    a.label("L_ofetch")
    a("s_waitcnt vmcnt(0) lgkmcnt(0)")
    st_end(a)
    a("L_exit:\nL_code_end:\ns_endpgm")

def main(out):
    hdr = open("cdna_kernels/" + NAME + ".s.ref").read().split("; Override")[0]
    rep = []
    a = Asm()
    prologue_and_loader(a); main_wave(a); service_wave(a)
    t = hdr
    t += f"; @launch grid=(256,1,1) block=(512,1,1) lds={LDS_BYTES}\n"
    t += '.amdgcn_target "amdgcn-amd-amdhsa--gfx950"\n'
    t += kernel_text(NAME + "_kernel", a.l, 256, report=rep)
    open(out, "w").write(t)
    if "-v" in sys.argv: print("\n".join(rep))

if __name__ == "__main__":
    main(sys.argv[1])
```

```python
import sys, math, struct
from asmlib import *

NAME = "gated_mix__softmax_full_mha__moe_arch_mod__prompt"
STAMP = "-s" in sys.argv
EXP = set(x[2:] for x in sys.argv if x.startswith("-x"))
WS_KV = 0
BLK = 5120; TS = 14 * BLK; KVB = 64 * TS
WS_O = 0x480000
WS_R = 0x680000
WS_G = WS_R + 16384
WS_SEL = WS_R + 32768
WS_EP = WS_R + 40960
WS_FL = WS_R + 65536
WS_MB = WS_FL + 32768
WS_OFL = WS_MB + 32768
WS_YFL = WS_OFL + 32768
WS_F1 = WS_YFL + 4096
WS_YP = WS_R + (1 << 18)
WS_GP = 0x730000
WS_ST = 16 << 20
XS = 0; WT = 65536; WQ = 122880; QX = 151552; UPD = 159744
WO = 0; CB = 102400
UPDI = UPD + 3584
KEYS = UPD
RT = UPD + 1024
CAND = UPD + 512
SELECTOR = 223
CNT = 163840 - 192
C_M = 88
LDS_BYTES = 163840
C_Q1, C_Q2, C_X, C_L, C_S, C_D, C_C, C_O, C_W, C_F, C_K, C_T, C_P, C_R = 0, 4, 8, 12, 16, 20, 24, 28, 32, 36, 40, 44, 48, 64

def f32bits(x): return struct.unpack("<I", struct.pack("<f", x))[0]
QSCALE = f32bits(28 ** -0.5 * math.log2(math.e))
NLOG2E = f32bits(-math.log2(math.e))
MF = "v_mfma_f32_32x32x16_bf16"
ROLE = [0, 1, 2, 3, 14, 4, 5, 6, 7, 8, 9, 15, 10, 11, 12, 13]
ROLE_LO = sum(ROLE[i] << (4 * i) for i in range(8))
ROLE_HI = sum(ROLE[8 + i] << (4 * i) for i in range(8))
SPIN_LIMIT = 1 << 20
NW1 = ([int(x[2:]) for x in EXP if x.startswith("nw")] + [14])[0]
WD = ([int(x[2:]) for x in EXP if x.startswith("wd")] + [14])[0]
GA = ([int(x[2:]) for x in EXP if x.startswith("ga")] + [2])[0]
GB = ([int(x[2:]) for x in EXP if x.startswith("gb")] + [12])[0]
C_A, C_B, C_Z = 92, 120, 124
ZN = ([int(x[2:]) for x in EXP if x.startswith("zn")] + [2])[0]
ZU = ([int(x[2:]) for x in EXP if x.startswith("zu")] + [1])[0]
NEARLYWO = ([int(x[2:]) for x in EXP if x.startswith("ew")] + [0])[0]
NQ1 = ([int(x[2:]) for x in EXP if x.startswith("nq")] + [4])[0]
WSBASE = ([int(x[2:]) for x in sys.argv if x.startswith("-w")] + [0])[0] << 20
PD = 2 if "pd2" in EXP else 4
PG = 6 if "pd2" in EXP else 3
PCD = 4 if "pcd4" in EXP else (0 if "pcd0" in EXP else 1)
KVS = 4 if "kvs4" in EXP else (0 if "kvs0" in EXP else 2)
PQ2 = 4 if "pq4" in EXP else (0 if "pq0" in EXP else 1)
PF0 = 2 if "pf2" in EXP else 0
WOP = 1 if "wo1" in EXP else (3 if "wo3" in EXP else 2)
OUTAUX = " sc1" if "outsc1" in EXP else (" nt" if "outnt" in EXP else "")

T, H, J, W, RL, ROT = 30, 31, 32, 33, 34, 3
_uid = [0]
def uid(p):
    _uid[0] += 1
    return f"{p}_{_uid[0]}"

def srd(a, d, ptr, nbytes):
    a(f"s_mov_b32 s{d}, s{ptr}\ns_mov_b32 s{d+1}, s{ptr+1}\ns_mov_b32 s{d+2}, {nbytes:#x}\ns_mov_b32 s{d+3}, 0x20000")

NST = 12
DIAG = [tuple(int(y) for y in x[2:].split("-")) for x in sys.argv if x.startswith("-d")]
def st(a, i):
    if STAMP: a(f"s_{'memrealtime' if 'rt' in EXP else 'memtime'} s[{72+2*i}:{73+2*i}]")
    if DIAG and i in DIAG[0]: a(f"s_memrealtime s[{72+2*i}:{73+2*i}]\ns_waitcnt lgkmcnt(0)")
def st_begin(a):
    if STAMP: a("s_memrealtime s[68:69]\ns_memtime s[72:73]" if "rt" not in EXP else "s_memrealtime s[68:69]\ns_memrealtime s[72:73]")
    if DIAG: a("s_memrealtime s[72:73]")
ABS = [x[2:] for x in sys.argv if x.startswith("-a")]
REL = [tuple(int(y) for y in x[2:].split("-")) for x in sys.argv if x.startswith("-r")]
if ABS:
    DIAG = [(0, 0 if ABS[0] == "z" else int(ABS[0].lstrip("m")))]
if REL:
    ABS = ["r"]; DIAG = REL
def diag_start(a):
    if not ABS: return
    a(f"""s_load_dwordx2 s[98:99], s[0:1], 80
    s_waitcnt lgkmcnt(0)
    s_cmp_ge_u32 s2, 8
    s_cbranch_scc1 L_dg0
    s_cmp_lg_u32 s{W}, 0
    s_cbranch_scc1 L_dg0
    s_lshl_b32 s70, s2, 2
    v_mov_b32 v4, s70
    v_mov_b32 v6, s72
    global_store_dword v4, v6, s[98:99] sc1
    L_dg0:""")
def diag_end(a):
    if not DIAG: return
    p, q = DIAG[0]
    if ABS:
        a(f"""s_waitcnt vmcnt(0)
        s_memrealtime s[96:97]
        s_mov_b64 exec, -1
        v_mov_b32 v4, 0
        global_load_dwordx4 v[8:11], v4, s[98:99] sc1
        global_load_dwordx4 v[12:15], v4, s[98:99] offset:16 sc1
        s_waitcnt vmcnt(0) lgkmcnt(0)
        v_min3_u32 v8, v8, v9, v10
        v_min3_u32 v8, v8, v11, v12
        v_min3_u32 v8, v8, v13, v14
        v_min_u32 v8, v8, v15
        s_nop 1
        v_readfirstlane_b32 s69, v8
        s_sub_u32 s70, s{72+2*q}, s69""")
        if ABS[0] == "z": a("s_mov_b32 s70, 0")
        if REL: a(f"s_sub_u32 s70, s{72+2*q}, s{72+2*p}\ns_lshl_b32 s70, s70, {0 if 'k1' in EXP else 2}")
        for x in EXP:
            if x.startswith("hm"): a(f"s_mov_b32 s71, 0x{x[2:]}\ns_bitcmp1_b32 s71, s{H}\ns_cselect_b32 s70, s70, 0")
            if x.startswith("jm"): a(f"s_mov_b32 s71, 0x{x[2:]}\ns_bitcmp1_b32 s71, s{J}\ns_cselect_b32 s70, s70, 0")
        if "onlynw" in EXP: a("s_cmp_ge_u32 s2, 196\ns_cselect_b32 s70, s70, 0")
        if "only23" in EXP: a(f"s_cmp_ge_u32 s{W}, 2\ns_cselect_b32 s70, s70, 0")
        if ABS[0].startswith("m"): a("s_sub_u32 s70, 2500, s70")
        a("s_add_u32 s70, s70, s69\ns_add_u32 s70, s70, 2500")
    else:
        a(f"""s_waitcnt vmcnt(0)
        s_memrealtime s[96:97]
        s_waitcnt lgkmcnt(0)
        s_sub_u32 s70, s{72+2*q}, s{72+2*p}
        s_add_u32 s70, s70, s96""")
    a(f"""L_diag:
    s_memrealtime s[68:69]
    s_waitcnt lgkmcnt(0)
    s_sub_u32 s71, s68, s70
    s_cmp_lt_i32 s71, 0
    s_cbranch_scc1 L_diag""")
def st_init(a):
    if STAMP:
        for i in range(1, NST): a(f"s_mov_b32 s{72+2*i}, s72")
def st_end(a):
    if not STAMP: return
    a(f"""s_waitcnt vmcnt(0)
    s_memrealtime s[70:71]
    s_{'memrealtime' if 'rt' in EXP else 'memtime'} s[{72+2*NST}:{73+2*NST}]
    s_getreg_b32 s66, hwreg(HW_REG_HW_ID)
    s_getreg_b32 s67, hwreg(HW_REG_XCC_ID)
    s_mov_b64 exec, -1
    s_lshl_b32 s65, s2, 3
    s_add_u32 s65, s65, s{W}
    s_lshl_b32 s65, s65, 6
    s_add_u32 s65, s65, {WS_ST}
    s_waitcnt lgkmcnt(0)
    v_mov_b32 v4, s68
    v_mov_b32 v5, s70
    v_mov_b32 v6, s66
    v_mov_b32 v7, s67""")
    for i in range(1, NST + 1):
        a(f"s_sub_u32 s64, s{72+2*i}, s72\nv_mov_b32 v{7+i}, s64")
    a("v_mov_b32 v2, 0\ns_mov_b64 exec, 1")
    for k in range(4):
        a(f"buffer_store_dwordx4 v[{4+4*k}:{7+4*k}], v2, s[8:11], s65 offen offset:{16*k}")

def poll_global(a, vdst, voff, soff, mask=None, sleep=1):
    l = uid("Lpoll"); d = uid("Lpd")
    a(f"s_mov_b32 s60, {SPIN_LIMIT}")
    if mask is not None: a(f"s_mov_b64 exec, {mask}")
    a(f"""{l}:
    buffer_load_dword v{vdst}, v{voff}, s[8:11], {soff} offen sc1
    s_waitcnt vmcnt(0)
    v_cmp_ne_u32 vcc, s{T}, v{vdst}
    s_cbranch_vccz {d}
    s_mov_b64 exec, vcc
    s_sleep {sleep}
    s_sub_u32 s60, s60, 1
    s_cbranch_scc0 {l}
    s_endpgm
    {d}:
    s_mov_b64 exec, -1""")

def poll_atomic(a, vdst, voff, soff, mask, sleep):
    l = uid("Lpa"); d = uid("Lpad")
    a(f"""s_mov_b32 s60, {SPIN_LIMIT}
    s_mov_b64 exec, {mask}
    {l}:
    v_mov_b32 v{vdst}, 0
    buffer_atomic_or v{vdst}, v{voff}, s[8:11], {soff} offen sc0 sc1
    s_waitcnt vmcnt(0)
    v_cmp_ne_u32 vcc, s{T}, v{vdst}
    s_cbranch_vccz {d}
    s_sleep {sleep}
    s_sub_u32 s60, s60, 1
    s_cbranch_scc0 {l}
    s_endpgm
    {d}:
    s_mov_b64 exec, -1""")

def poll_pipe(a, v0, voff, soff, mask, D=4, gap=3):
    l = uid("Lpp"); d = uid("Lppd")
    at = lambda r: f"v_mov_b32 v{r}, 0\nbuffer_atomic_or v{r}, v{voff}, s[8:11], {soff} offen sc0 sc1"
    a(f"s_mov_b32 s60, {SPIN_LIMIT}\ns_mov_b64 exec, {mask}")
    for i in range(D - 1): a(at(v0 + i) + f"\ns_sleep {gap}")
    a(f"{l}:")
    for i in range(D):
        a(at(v0 + (i + D - 1) % D))
        a(f"s_waitcnt vmcnt({D-1})\nv_cmp_ne_u32 vcc, s{T}, v{v0+i}\ns_cbranch_vccz {d}")
    a(f"""s_sub_u32 s60, s60, 1
    s_cbranch_scc0 {l}
    s_endpgm
    {d}:
    s_mov_b64 exec, -1""")

def signal(a, vt, voff, soff, mask):
    a(f"v_mov_b32 v{vt}, s{T}\ns_mov_b64 exec, {mask}\nbuffer_atomic_swap v{vt}, v{voff}, s[8:11], {soff} offen sc1\ns_mov_b64 exec, -1")

def spin_lds(a, vaddr, off, want, vt, sleep=0):
    l = uid("Lsp"); d = uid("Lsd")
    if not sleep:
        a(f"""s_mov_b32 s60, {SPIN_LIMIT}
        {l}:
        ds_read_b32 v{vt}, v{vaddr} offset:{off}
        s_sub_u32 s60, s60, 1
        s_cbranch_scc1 L_exit
        s_waitcnt lgkmcnt(0)
        v_readfirstlane_b32 s61, v{vt}
        s_cmp_ge_u32 s61, {want}
        s_cbranch_scc0 {l}""")
        return
    a(f"""s_mov_b32 s60, {SPIN_LIMIT}
    {l}:
    ds_read_b32 v{vt}, v{vaddr} offset:{off}
    s_waitcnt lgkmcnt(0)
    v_readfirstlane_b32 s61, v{vt}
    s_cmp_ge_u32 s61, {want}
    s_cbranch_scc1 {d}""")
    if sleep: a(f"s_sleep {sleep}")
    a(f"""s_sub_u32 s60, s60, 1
    s_cbranch_scc0 {l}
    s_endpgm
    {d}:""")

def lds_inc(a, vaddr, off, vone):
    a(f"s_mov_b64 exec, 1\nds_add_u32 v{vaddr}, v{vone} offset:{off}\ns_mov_b64 exec, -1")

def flag_store(a, vt, vz, soff):
    a(f"v_mov_b32 v{vt}, s{T}\ns_mov_b64 exec, 1\nbuffer_store_dword v{vt}, v{vz}, s[8:11], {soff} offen sc1\ns_mov_b64 exec, -1")

def split_neg_max(a, m, t0, t1, q6, q7):
    a(f"""v_sub_f32 v{m}, 0, v{m}
    v_cvt_pk_bf16_f32 v{t0}, v{m}, v{m}
    v_lshlrev_b32 v{t0}, 16, v{t0}
    v_sub_f32 v{t0}, v{m}, v{t0}
    v_cvt_pk_bf16_f32 v{t1}, v{m}, v{t0}
    v_and_b32 v{m}, 0xffff0000, v{t1}
    v_sub_f32 v{t0}, v{t0}, v{m}
    s_mov_b32 exec_lo, 0
    v_mov_b32 v{q6}, v{t1}
    v_cvt_pk_bf16_f32 v{q7}, v{t0}, 0
    s_mov_b32 exec_lo, -1""")

def max16_list(dst, S, init=False):
    if not init:
        return ([f"v_max3_f32 v{dst}, v{S}, v{S+1}, v{S+2}"] +
                [f"v_max3_f32 v{dst}, v{dst}, v{S+i}, v{S+i+1}" for i in range(3, 15, 2)] +
                [f"v_max_f32 v{dst}, v{dst}, v{S+15}"])
    return [f"v_max3_f32 v{dst}, v{dst}, v{S+i}, v{S+i+1}" for i in range(0, 16, 2)]

def wave_min_u32(a, v, full=True):
    for r in (1, 2, 4, 8):
        a(f"v_min_u32_dpp v{v}, v{v}, v{v} row_ror:{r} row_mask:0xf bank_mask:0xf")
    a(f"v_min_u32_dpp v{v}, v{v}, v{v} row_bcast:15 row_mask:0xa bank_mask:0xf")
    if full: a(f"v_min_u32_dpp v{v}, v{v}, v{v} row_bcast:31 row_mask:0xc bank_mask:0xf")

def rank_count(a, own, base, n, dst, t):
    a(f"v_mov_b32 v{dst}, 0\nv_mov_b32 v{t}, 0")
    for k in range(0, n, 4):
        a(f"s_waitcnt lgkmcnt({(n-k)//4-1})")
        for e in range(4): a(f"v_sub_u32 v{base+k+e}, v{own}, v{base+k+e}")
        for e in range(4):
            r = (dst, t)[e & 1]
            a(f"v_alignbit_b32 v{r}, v{r}, v{base+k+e}, 31")
    a(f"v_bcnt_u32_b32 v{dst}, v{dst}, 0\nv_bcnt_u32_b32 v{dst}, v{t}, v{dst}")

def tag(a):
    a(f"s_mul_i32 s{T}, s{T}, 0x9e3779b1\ns_add_u32 s{T}, s{T}, 0x7f4a7c15")

def next_chunk(a, s):
    a(f"s_add_u32 s{s}, s{s}, 1\ns_cmp_eq_u32 s{s}, 7\ns_cselect_b32 s{s}, 0, s{s}")

Q, O, KV, S, P = 8, 40, 104, 168, 200
XF = 104; A0, A1, WF = 40, 56, 72
VX = 216; VW = 220; VQ = 222; VC = 223; V1 = 224; VZ = 225; VT = 226; VH = 227
VA = 228; TMP = 232; XR = 240; GR = 248; VWQ = 250; VF = 251; VFS = 252; VXO = 253; VGO = 254
OWN = 3
L = 35

def prologue_and_loader(a):
    MAPCODE = ""
    if "map2" in EXP:
        MAPCODE = f"s_and_b32 s26, s25, 1\ns_lshl1_add_u32 s{H}, s24, s26\ns_lshr_b32 s{J}, s25, 1\ns_lshl1_add_u32 s{ROT}, s26, s{J}\ns_add_u32 s{ROT}, s{ROT}, s24\ns_and_b32 s{ROT}, s{ROT}, 3\ns_lshl_b32 s{ROT}, s{ROT}, 1"
        if "norot" in EXP: MAPCODE += f"\ns_mov_b32 s{ROT}, 0"
    TADDR = "v_lshl_add_u32 v8, v3, 7, s58"
    TADDR = "v_and_b32 v8, 60, v3\nv_lshl_add_u32 v8, v8, 4, s58\nv_add_u32 v8, v8, v1"
    if "rot7" in EXP:
        ROTCODE = f"s_lshl1_add_u32 s{ROT}, s27, s26\ns_cmp_ge_u32 s{ROT}, 7\ns_cselect_b32 s26, 7, 0\ns_sub_u32 s{ROT}, s{ROT}, s26"
    elif "rot2" not in EXP and "norot" not in EXP and "rot23" not in EXP:
        ROTCODE = f"s_add_u32 s{ROT}, s27, s26\ns_and_b32 s{ROT}, s{ROT}, 3\ns_lshl_b32 s{ROT}, s{ROT}, 1"
    elif "norot" in EXP:
        ROTCODE = f"s_mov_b32 s{ROT}, 0"
    elif "rot23" in EXP:
        ROTCODE = f"s_add_u32 s{ROT}, s27, s26\ns_and_b32 s{ROT}, s{ROT}, 1\ns_mul_i32 s{ROT}, s{ROT}, 3"
    else:
        ROTCODE = f"s_add_u32 s{ROT}, s27, s26\ns_and_b32 s{ROT}, s{ROT}, 1\ns_lshl_b32 s{ROT}, s{ROT}, 2"
    st_begin(a)
    a(f"""s_load_dwordx4 s[4:7], s[0:1], 0
    s_load_dwordx2 s[36:37], s[0:1], 88
    s_load_dwordx2 s[38:39], s[0:1], 16
    s_load_dwordx8 s[40:47], s[0:1], 32
    s_load_dwordx4 s[48:51], s[0:1], 64
    s_cmp_ge_u32 s2, 256
    s_cbranch_scc1 L_exit
    v_lshrrev_b32 v2, 6, v0
    v_and_b32 v3, 63, v0
    s_and_b32 s24, s2, 7
    s_lshr_b32 s25, s2, 3
    v_readfirstlane_b32 s{W}, v2
    s_and_b32 s{H}, s24, 1
    s_lshl_b32 s{H}, s{H}, 3
    s_and_b32 s26, s25, 7
    s_add_u32 s{H}, s{H}, s26
    s_lshr_b32 s27, s25, 3
    s_and_b32 s{J}, s24, 6
    s_lshl1_add_u32 s{J}, s{J}, s27
    {ROTCODE}
    {MAPCODE}
    s_mov_b32 s28, {ROLE_LO:#x}
    s_mov_b32 s29, {ROLE_HI:#x}
    s_lshl_b32 s27, s{H}, 2
    s_lshr_b64 s[28:29], s[28:29], s27
    s_and_b32 s{RL}, s28, 15
    v_lshlrev_b32 v1, 4, v3
    s_mov_b32 s27, {WS_EP}
    s_cmp_lt_u32 s{W}, 4
    s_cbranch_scc1 L_main
    """)
    a(f"""s_setprio 2
    s_sub_u32 s{L}, s{W}, 4
    v_lshrrev_b32 v4, 3, v3
    v_mul_u32_u24 v5, 896, v4
    v_and_b32 v6, 7, v3
    v_lshrrev_b32 v7, 4, v3
    v_xor_b32 v7, v6, v7
    v_lshl_add_u32 v10, v7, 4, v5
    v_xor_b32 v11, 64, v10
    v_add_u32 v12, {2*6144}, v10
    v_add_u32 v13, {3*6144}, v11
    v_add_u32 v11, 6144, v11
    v_mul_u32_u24 v5, 2688, v4
    v_and_b32 v4, 2, v4
    v_lshlrev_b32 v4, 1, v4
    v_xor_b32 v4, v4, v6
    v_lshl_add_u32 v14, v4, 4, v5
    v_add_u32 v15, {8*2688-1024}, v14
    s_lshl2_add_u32 s52, s{J}, s{L}
    s_mul_i32 s58, s52, 14
    s_add_u32 s58, s58, s{RL}
    s_mul_i32 s58, s58, {BLK}
    {TADDR}
    s_mul_i32 s52, s52, {32*896}
    s_lshl_b32 s53, s{RL}, 7
    s_mul_i32 s26, s{L}, {16*2688}
    s_add_u32 s53, s53, s26
    s_add_u32 s53, s53, 896
    s_lshl_b32 s54, s{L}, 12
    s_lshl_b32 s55, s{L}, 11
    s_add_u32 s55, s55, {WT}
    s_mov_b32 s56, s{ROT}
    s_mov_b32 s57, 0
    s_mov_b32 s14, {2048*896}
    s_mov_b32 s15, 0x20000
    s_cmp_ge_u32 s{RL}, 14
    s_cselect_b32 s18, 0, {448*2688}
    s_mov_b32 s19, 0x20000
    s_waitcnt lgkmcnt(0)
    s_mov_b64 s[12:13], s[4:5]
    s_mov_b64 s[16:17], s[6:7]
    s_load_dword s{T}, s[36:37], s27""")
    st_init(a); st(a, 1)
    TPOS = ([int(x[2:]) for x in EXP if x.startswith("tp")] + [0])[0]
    TOUCH = "global_store_dwordx4 v8, v[10:13], s[36:37] sc1\nglobal_store_dwordx4 v8, v[10:13], s[36:37] offset:2048 sc1"
    if "notouch" in EXP: TOUCH = ""
    a("s_cbranch_scc1 L_tbl")
    if TPOS == 0: a(TOUCH)
    a(f"""L_ld:
    s_mul_i32 s26, s56, {64*2688}
    s_mov_b32 m0, s55
    s_add_u32 s26, s26, s53
    s_lshl_b32 s28, s56, 7
    buffer_load_dwordx4 v14, s[16:19], s26 offen lds
    buffer_load_dwordx4 v15, s[16:19], s26 offen offset:1024 lds
    s_mov_b32 m0, s54
    s_add_u32 s28, s28, s52
    buffer_load_dwordx4 v10, s[12:15], s28 offen lds
    buffer_load_dwordx4 v11, s[12:15], s28 offen offset:1024 lds
    buffer_load_dwordx4 v12, s[12:15], s28 offen offset:2048 lds
    buffer_load_dwordx4 v13, s[12:15], s28 offen offset:3072 lds
    s_add_u32 s55, s55, 8192
    s_add_u32 s54, s54, 16384
    s_and_b32 s54, s54, 0xffff""")
    next_chunk(a, 56)
    if "tlb" in EXP:
        a(f"s_or_b32 s26, s57, s{L}\ns_cbranch_scc0 L_tlb\nL_tlb_done:")
    if TPOS:
        a(f"s_cmp_lg_u32 s57, {TPOS-1}\ns_cbranch_scc1 L_nt\ns_cmp_eq_u32 s18, 0\ns_cbranch_scc1 L_nt\n{TOUCH}\nL_nt:")
    a(f"""s_add_u32 s57, s57, 1
    s_cmp_lt_u32 s57, 3
    s_cbranch_scc1 L_ld
    s_waitcnt vmcnt(12)
    s_barrier
    s_cmp_lt_u32 s57, 7
    s_cbranch_scc1 L_ld
    """)
    a(f"""v_lshrrev_b32 v4, 2, v3
    v_mul_u32_u24 v4, 2688, v4
    v_and_b32 v5, 3, v3
    v_lshl_add_u32 v16, v5, 4, v4
    s_mov_b32 s18, {448*2688}
    s_mul_i32 s53, s{H}, 56
    s_and_b32 s53, s53, 0xfffffff0
    s_mul_i32 s26, s{L}, {16*2688}
    s_add_u32 s53, s53, s26
    s_lshl_b32 s55, s{L}, 10
    s_add_u32 s55, s55, {WQ}""")
    for i in range(NQ1):
        a(f"""s_mul_i32 s26, s56, {64*2688}
        s_add_u32 m0, s55, {i*4096}
        s_add_u32 s26, s26, s53
        buffer_load_dwordx4 v16, s[16:19], s26 offen lds""")
        if i < NQ1 - 1: next_chunk(a, 56)
        if i == 1: a("s_waitcnt vmcnt(8)\ns_barrier")
        if i == 3: a("s_waitcnt vmcnt(4)\ns_barrier")
    st(a, 2)
    a("s_branch L_service")
    a(f"""L_tbl:
    s_bitcmp1_b32 s{L}, 0
    s_cselect_b64 s[20:21], s[48:49], s[40:41]
    s_cselect_b32 s26, 1024, 0
    s_movk_i32 s22, 896
    s_mov_b32 s23, 0x20000
    s_add_u32 m0, s26, {RT}
    s_lshl_b32 s28, s{ROT}, 7
    v_add_u32 v4, s28, v1
    v_subrev_u32 v6, 896, v4
    v_min_u32 v4, v4, v6
    buffer_load_dwordx4 v4, s[20:23], 0 offen lds
    s_branch L_ld""")
    if "tlb" in EXP:
        a("L_tlb:")
        if "tlbR" in EXP: a(f"s_cmp_lt_u32 s{RL}, 14\ns_cbranch_scc1 L_tlb_done")
        for off in (0, 2 << 20, 4 << 20):
            a(f"s_mov_b32 s26, {off + 4032}\ns_load_dword s66, s[36:37], s26")
        for p in (42, 44, 38, 46, 50):
            a(f"s_load_dword s66, s[{p}:{p+1}], 0")
        a("s_branch L_tlb_done")

def main_wave(a):
    a.label("L_main")
    if "twait" in EXP: st(a, 11)
    if "nocodepf" not in EXP:
        a(f"""s_cmp_lg_u32 s{W}, 0
        s_cbranch_scc1 L_nopf
        s_getpc_b64 s[28:29]
        L_pc:
        s_and_b32 s26, s25, 3
        s_lshl_b32 s26, s26, 13
        v_lshl_add_u32 v4, v3, 7, s26
        v_min_u32 v4, L_code_end-L_pc, v4
        global_load_dword v255, v4, s[28:29]
        L_nopf:""")
    a(f"""s_setprio 1
    v_and_b32 v{VT}, 31, v3
    v_lshrrev_b32 v{VH}, 5, v3
    v_mov_b32 v{V1}, 1
    v_mov_b32 v{VZ}, 0
    v_mov_b32 v{VC}, {CNT}
    v_lshrrev_b32 v4, 2, v1
    v_add_u32 v4, {UPDI}, v4
    v_mov_b32 v6, -1
    s_mov_b32 exec_hi, 0
    ds_write_b32 v4, v6
    v_and_b32 v6, 7, v3
    v_cmp_eq_u32 vcc, 4, v6
    v_mov_b32 v7, {KVB+1}
    v_cndmask_b32 v6, 0, v7, vcc
    ds_write_b32 v4, v6 offset:{CNT-UPDI+C_R}
    s_mov_b32 exec_lo, 0xffff
    ds_write_b32 v4, v{VZ} offset:{CNT-UPDI}
    s_mov_b64 exec, -1
    v_lshrrev_b32 v4, 1, v{VT}
    v_and_b32 v4, 7, v4
    v_xor_b32 v4, v4, v{VH}
    v_lshlrev_b32 v4, 4, v4
    v_lshl_add_u32 v4, v{VT}, 7, v4
    s_lshl_b32 s26, s{W}, 12
    v_add_u32 v{VX}, s26, v4
    v_xor_b32 v{VX+1}, 32, v{VX}
    v_xor_b32 v{VX+2}, 64, v{VX}
    v_xor_b32 v{VX+3}, 96, v{VX}
    v_bfe_u32 v4, v3, 2, 2
    v_lshl_add_u32 v12, v{VH}, 3, v4
    v_and_b32 v6, 3, v3
    v_and_b32 v7, 1, v3
    v_bfe_u32 v8, v3, 1, 1
    v_lshl_add_u32 v7, v7, 1, v8
    v_bfe_u32 v8, v3, 4, 1
    v_lshl_add_u32 v9, v8, 2, v7
    v_lshl_add_u32 v10, v8, 2, v6
    s_cmp_lt_u32 s{RL}, 7
    s_cselect_b64 vcc, -1, 0
    v_cndmask_b32 v10, v10, v9, vcc
    v_lshlrev_b32 v11, 7, v12
    v_lshl_add_u32 v11, v10, 3, v11
    v_lshrrev_b32 v4, 1, v4
    v_lshl_add_u32 v11, v4, 6, v11
    v_add_u32 v{VW}, {WT}, v11
    v_xor_b32 v{VW+1}, 64, v{VW}
    v_add_u32 v10, 2, v9
    v_sub_u32 v11, 7, v9
    v_cmp_gt_u32 vcc, 6, v9
    v_cndmask_b32 v10, v11, v10, vcc
    s_bitcmp1_b32 s{H}, 0
    s_cselect_b64 vcc, -1, 0
    v_cndmask_b32 v10, v9, v10, vcc
    v_lshlrev_b32 v11, 6, v12
    v_lshl_add_u32 v11, v10, 3, v11
    v_add_u32 v{VQ}, {WQ}, v11
    v_lshrrev_b32 v4, 2, v3
    v_mul_u32_u24 v4, 2688, v4
    v_lshl_add_u32 v{VWQ}, v6, 4, v4
    s_cmp_ge_u32 s{RL}, 7
    s_cselect_b32 s26, 7, 0
    s_cselect_b32 s29, 2, 0
    s_sub_u32 s26, s{RL}, s26
    s_mul_i32 s28, s26, {64*2341}
    s_lshr_b32 s28, s28, 16
    v_add_u32 v4, s28, v6
    v_mul_u32_u24 v7, 28, v4
    v_lshrrev_b32 v7, 6, v7
    v_cmp_ge_u32 s[64:65], s26, v7
    v_cmp_ne_u32 vcc, s26, v7
    s_and_b32 s28, s{J}, 12
    s_add_u32 s29, s28, s29
    v_mov_b32 v7, s29
    v_addc_co_u32 v7, vcc, 0, v7, vcc
    s_and_b32 s28, s{J}, 3
    v_lshl_add_u32 v4, v4, 2, s28
    v_bfe_u32 v8, v3, 2, 2
    v_lshl_add_u32 v4, v4, 2, v8
    v_lshlrev_b32 v4, 7, v4
    v_lshl_add_u32 v{VFS}, v7, 2, v4
    s_and_b32 s64, s64, 0xffff
    s_cmp_ge_u32 s{RL}, 14
    s_cselect_b32 s64, 0, s64
    s_mov_b32 s65, 0
    s_lshl_b32 s28, s{W}, 5
    v_add_u32 v{VF}, s28, v{VC}
    s_lshl_b32 s28, s{J}, 2
    ; output tile: qb3 = 4j + (h>>2) ; byte col = (4*(h&3) + w)*56
    s_lshr_b32 s58, s{H}, 2
    s_add_u32 s58, s58, s28
    s_and_b32 s59, s{H}, 3
    s_lshl2_add_u32 s59, s59, s{W}
    s_mul_i32 s59, s59, 56
    s_lshl_b32 s28, s58, 5
    v_add_u32 v4, s28, v{VT}
    v_mul_u32_u24 v{VXO}, 896, v4
    v_lshl_add_u32 v{VXO}, v{VH}, 4, v{VXO}
    v_lshlrev_b32 v{VGO}, 3, v4
    s_waitcnt lgkmcnt(0)
    """)
    st_init(a)
    srd(a, 8, 36, (1 << 28) - WSBASE)
    srd(a, 16, 6, 448 * 2688)
    srd(a, 12, 4, 2048 * 896)
    if "wqpf" in EXP:
        a(f"""s_cmp_lg_u32 s{W}, 1
        s_cbranch_scc1 L_nopf2
        v_lshrrev_b32 v4, 2, v3
        v_min_u32 v4, 13, v4
        v_mul_u32_u24 v4, 2688, v4
        v_and_b32 v6, 3, v3
        v_lshl_add_u32 v4, v6, 7, v4
        s_mul_i32 s26, s25, {14*2688}
        s_and_b32 s28, s24, 1
        s_mul_i32 s28, s28, 384
        s_add_u32 s26, s26, s28
        buffer_load_dword v5, v4, s[16:19], s26 offen
        L_nopf2:""")
    if "wopfS" in EXP:
        srd(a, 20, 38, 448 * 896)
        a(f"""s_cmp_lg_u32 s{W}, 2
        s_cbranch_scc1 L_nopf3
        s_mul_i32 s26, s2, {13*128}
        v_lshl_add_u32 v4, v3, 7, s26
        s_mov_b64 exec, 0x1fff
        buffer_load_dword v5, v4, s[20:23], 0 offen
        s_mov_b64 exec, -1
        L_nopf3:""")
    a(f"""s_mul_i32 s62, s{H}, 56
    s_and_b32 s62, s62, 0xfffffff0
    s_mul_i32 s26, s{W}, {16*2688}
    s_add_u32 s62, s62, s26
    s_lshl_b32 s63, s{W}, 10
    s_add_u32 s63, s63, {WQ}
    s_lshl2_add_u32 s35, s{J}, s{W}
    s_mul_i32 s52, s35, 14
    s_add_u32 s52, s52, s{RL}
    s_mul_i32 s52, s52, {BLK}
    s_add_u32 s53, s52, 4096
    s_lshr_b32 s26, s{H}, 1
    s_mul_i32 s26, s26, 7
    s_and_b32 s28, s{H}, 1
    s_lshl2_add_u32 s29, s28, s26
    v_add_u32 v4, s29, v{VH}
    v_lshrrev_b32 v6, 3, v4
    v_mul_u32_u24 v6, {BLK-4096}, v6
    v_lshl_add_u32 v6, v4, 9, v6
    v_lshl_add_u32 v{VA}, v{VT}, 4, v6
    v_add_u32 v4, 2, v4
    v_lshrrev_b32 v6, 3, v4
    v_mul_u32_u24 v6, {BLK-4096}, v6
    v_lshl_add_u32 v6, v4, 9, v6
    s_add_u32 s26, s26, 3
    s_lshr_b32 s29, s26, 3
    s_mul_i32 s29, s29, {BLK}
    s_and_b32 s26, s26, 1
    s_lshl_b32 s26, s26, 9
    s_add_u32 s29, s29, s26
    s_add_u32 s29, s29, 4096
    v_mov_b32 v7, s29
    v_and_b32 v4, s28, v{VH}
    v_cmp_eq_u32 vcc, 1, v4
    v_cndmask_b32 v6, v6, v7, vcc
    v_lshl_add_u32 v{VA+1}, v{VT}, 4, v6
    s_mul_i32 s26, s{H}, 28
    v_add_u32 v4, s26, v{VT}
    v_lshrrev_b32 v6, 6, v4
    v_mul_u32_u24 v6, {BLK}, v6
    v_bfe_u32 v7, v4, 5, 1
    v_lshl_add_u32 v6, v7, 11, v6
    v_and_b32 v4, 31, v4
    v_lshl_add_u32 v6, v4, 4, v6
    v_lshl_add_u32 v6, v{VH}, 9, v6
    v_add_u32 v6, {7*BLK}, v6
    v_add_u32 v8, 1024, v6
    s_lshr_b32 s26, s26, 6
    s_mul_i32 s26, s26, {BLK}
    s_add_u32 s26, s26, {7*BLK + 4096 - 28*16}
    v_lshl_add_u32 v7, v{VT}, 4, s26
    v_cmp_le_u32 vcc, 28, v{VT}
    v_cndmask_b32 v{VA+2}, v6, v7, vcc
    v_cndmask_b32 v{VA+3}, v8, v7, vcc
    s_cmp_ge_u32 s{RL}, 14
    s_cbranch_scc1 L_roleR
    s_cmp_ge_u32 s{RL}, 7
    s_cbranch_scc1 L_roleV""")

    def gemm(kind):
        if "twait" in EXP:
            st(a, 10)
        def reads(c, s):
            k = 4 * c + s
            a(f"ds_read_b128 {vr(XF+4*k,4)}, v{VX+s} offset:{(c&3)*16384}")
            f = WF + 8 * s
            if kind == "R":
                a(f"ds_read_b128 {vr(f,4)}, v{VW} offset:{k*32}")
            else:
                for n in range(2):
                    a(f"ds_read_b64_tr_b16 {vr(f+4*n,2)}, v{VW+n} offset:{k*2048}")
                    a(f"ds_read_b64_tr_b16 {vr(f+4*n+2,2)}, v{VW+n} offset:{k*2048+512}")
        def mfmas(c, s, ns=None):
            k = 4 * c + s
            f = WF + 8 * s
            for n in (ns or range(1 if kind == "R" else 2)):
                acc = (A0, A1)[n]
                cc = "0" if k == 0 else vr(acc, 16)
                if kind == "V": a(f"{MF} {vr(acc,16)}, {vr(XF+4*k,4)}, {vr(f+4*n,4)}, {cc}")
                else:           a(f"{MF} {vr(acc,16)}, {vr(f+4*n,4)}, {vr(XF+4*k,4)}, {cc}")
        per = 2 if kind == "R" else 5
        for c in range(7):
            a("s_barrier")
            if c == 0: st(a, 1)
            if c == 6: st(a, 2)
            if STAMP and c in (0, 6): a("s_waitcnt lgkmcnt(0)")
            reads(c, 0); reads(c, 1)
            for s in range(4):
                if s < 2: reads(c, s + 2)
                a(f"s_waitcnt lgkmcnt({min(3 - s, 2) * per})")
                if c == 6 and kind != "R" and s >= 2: mfmas(c, s, (0,))
                else: mfmas(c, s)
            if c == 6 and kind != "R":
                mfmas(c, 2, (1,)); mfmas(c, 3, (1,))

    PK = 8
    MS = 20
    a(f"""v_add_u32 v4, s{RL}, v{VH}""")
    for i in range(4):
        a(f"""v_cmp_eq_u32 vcc, {3-2*i}, v4
        v_cmp_eq_u32 s[{MS+2*i}:{MS+1+2*i}], {10-2*i}, v4
        s_or_b64 s[{MS+2*i}:{MS+1+2*i}], s[{MS+2*i}:{MS+1+2*i}], vcc""")
    for e in range(4): a(f"v_mov_b32 v{TMP+e}, 0x3f803f80")
    a(f"""s_or_b64 s[28:29], s[{MS}:{MS+1}], s[{MS+2}:{MS+3}]
    s_or_b64 s[54:55], s[{MS+4}:{MS+5}], s[{MS+6}:{MS+7}]
    s_or_b64 s[54:55], s[54:55], s[28:29]
    s_mov_b64 exec, 0
    s_branch L_epi
    L_backK:
    s_mov_b64 exec, -1""")
    gemm("K")
    a("s_branch L_epi")
    a.label("L_roleR")
    if "pfx" in EXP:
        C0 = 1 if "pf1" in EXP else 2
        a(f"""v_mul_u32_u24 v4, 896, v{VT}
        v_lshl_add_u32 v4, v{VH}, 7, v4
        s_mul_i32 s26, s35, {32*896}
        v_lshrrev_b32 v6, 3, v{VT}
        v_mul_u32_u24 v6, 2688, v6
        v_and_b32 v7, 7, v3
        v_min_u32 v7, 6, v7
        v_lshl_add_u32 v6, v7, 7, v6
        v_mul_u32_u24 v7, {64*2688}, v{VH}
        v_add_u32 v6, v6, v7
        s_and_b32 s28, s35, 15
        s_mul_i32 s28, s28, {4*2688}
        s_and_b32 s29, s24, 1
        s_mul_i32 s29, s29, 896
        s_add_u32 s28, s28, s29
        s_add_u32 s28, s28, {896 + C0*64*2688}""")
        for c in range(C0, 7, 2):
            if c == 6: a("s_mov_b32 exec_hi, 0")
            a(f"""buffer_load_dword v5, v4, s[12:15], s26 offen offset:{128*c}
            buffer_load_dword v5, v6, s[16:19], s28 offen
            s_add_u32 s28, s28, {128*2688}""")
        a("s_mov_b64 exec, -1")
    a(f"""v_and_b32 v4, 1, v3
    v_lshlrev_b32 v4, 10, v4
    v_lshl_add_u32 v4, v{VH}, 4, v4
    v_add_u32 v{VW}, {RT}, v4
    s_lshl_b32 s26, s{W}, 7
    s_add_u32 s26, s26, {KEYS}
    v_lshl_add_u32 v12, v{VT}, 2, s26
    v_lshl_add_u32 v13, v{VH}, 6, s26""")
    gemm("R")
    a(f"""s_cmp_lg_u32 s{RL}, 14
    s_cbranch_scc1 L_pub
    s_mov_b32 exec_hi, 0
    s_nop 9
    v_cvt_pk_bf16_f32 v4, v{A0}, v{A0+1}
    v_and_b32 v5, 0xffff0000, v4
    v_lshlrev_b32 v4, 16, v4
    v_ashrrev_i32 v6, 31, v4
    v_or_b32 v6, 0x80000000, v6
    v_xor_b32 v6, v6, v4
    v_lshrrev_b32 v6, 16, v6
    v_lshlrev_b32 v6, 11, v6
    v_cmp_u_f32 vcc, v4, v4
    v_cndmask_b32 v6, v6, 0, vcc
    s_lshl_b32 s26, s35, 5
    v_add_u32 v7, s26, v{VT}
    v_sub_u32 v8, 0x7ff, v7
    v_or_b32 v6, v6, v8
    v_lshlrev_b32 v9, 3, v7
    ds_write_b32 v12, v6
    s_mov_b32 exec_hi, -1
    ds_read_b32 v6, v12
    ds_read_b128 v[16:19], v13
    ds_read_b128 v[20:23], v13 offset:16
    ds_read_b128 v[24:27], v13 offset:32
    ds_read_b128 v[28:31], v13 offset:48""")
    rank_count(a, 6, 16, 16, 14, 15)
    a(f"""v_mov_b32 v15, v14
    s_lshl_b32 s26, s{W}, 5
    s_add_u32 s26, s26, {CAND}
    v_permlane32_swap_b32 v14, v15
    v_add_u32 v14, v14, v15
    v_cmp_gt_u32 vcc, 8, v14
    v_lshl_add_u32 v14, v14, 2, s26
    s_mov_b64 exec, vcc
    ds_write_b32 v14, v6
    s_mov_b64 exec, 1
    ds_add_u32 v{VC}, v{V1} offset:{C_K}
    s_mov_b32 exec_lo, -1
    v_mul_f32 v5, {NLOG2E:#x}, v5
    v_exp_f32 v5, v5
    v_add_f32 v5, 1.0, v5
    v_rcp_f32 v5, v5
    v_cvt_pk_bf16_f32 v5, v5, v5
    v_lshlrev_b32 v10, 16, v5
    s_mov_b32 exec_hi, -1
    s_branch L_pub
    """)
    a.label("L_roleV")
    a(f"""v_cmp_eq_u32 vcc, 0, v3
    v_mov_b32 v7, 0x3f803f80
    v_cndmask_b32 v{TMP}, 0, v7, vcc""")
    for e in range(1, 4): a(f"v_mov_b32 v{TMP+e}, v{TMP}")
    for i in range(4): a(f"s_mov_b64 s[{MS+2*i}:{MS+1+2*i}], 0")
    a("s_mov_b64 s[54:55], 0xff")
    gemm("V")
    a("L_epi:\ns_cbranch_execz L_backK")
    for i in range(4):
        acc = (A0, A1)[i >> 1] + 8 * (i & 1)
        p = PK + 4 * i
        for e in (2, 3, 0, 1): a(f"v_cvt_pk_bf16_f32 v{p+e}, v{acc+2*e}, v{acc+2*e+1}")
        a(f"""s_mov_b64 exec, s[{MS+2*i}:{MS+1+2*i}]
        v_swap_b32 v{TMP}, v{p+2}
        v_swap_b32 v{TMP+1}, v{p+3}
        s_mov_b64 exec, -1
        buffer_store_dwordx4 {vr(p,4)}, v1, s[8:11], s52 offen offset:{1024*i} sc1""")
    a(f"s_mov_b64 exec, s[54:55]\nbuffer_store_dwordx4 {vr(TMP,4)}, v1, s[8:11], s53 offen sc1\ns_mov_b64 exec, -1")
    a.label("L_pub")
    diag_start(a)
    st(a, 3)
    a(f"s_add_u32 s56, s{ROT}, {NQ1}\ns_cmp_ge_u32 s56, 7\ns_cselect_b32 s26, 7, 0\ns_sub_u32 s56, s56, s26")
    for i in range(NQ1, 7):
        a(f"""s_mul_i32 s26, s56, {64*2688}
        s_add_u32 m0, s63, {i*4096}
        s_add_u32 s26, s26, s62
        buffer_load_dwordx4 v{VWQ}, s[16:19], s26 offen lds""")
        if i < 6: next_chunk(a, 56)
    QO = Q + 8 * OWN
    SK = TMP
    a(f"""s_mov_b64 s[16:17], s[36:37]
    s_mov_b32 s18, {KVB}
    s_mov_b32 s57, 0""")
    def ldK(b, soff, base=None):
        r = KV + 16 * b if base is None else base
        return [f"buffer_load_dwordx4 {vr(r,4)}, v{VA}, s[16:19], {soff} offen sc1",
                f"buffer_load_dwordx4 {vr(r+4,4)}, v{VA+1}, s[16:19], {soff} offen sc1"]
    def ldV(b, soff):
        return [f"buffer_load_dwordx4 {vr(KV+16*b+8,4)}, v{VA+2}, s[16:19], {soff} offen sc1",
                f"buffer_load_dwordx4 {vr(KV+16*b+12,4)}, v{VA+3}, s[16:19], {soff} offen sc1"]
    def try_loads(block=False):
        d = uid("Ltl"); l = uid("Ltr"); g = uid("Ltg")
        a(f"s_cmp_eq_u32 s57, 2\ns_cbranch_scc1 {d}")
        if block: a(f"s_mov_b32 s60, {SPIN_LIMIT}\n{l}:\ns_sub_u32 s60, s60, 1\ns_cbranch_scc1 L_exit")
        a(f"""ds_read_b32 v4, v{VF} offset:{C_R}
        ds_read_b32 v5, v{VC} offset:{C_M}
        s_cmp_eq_u32 s57, 1
        s_waitcnt lgkmcnt(0)
        v_readfirstlane_b32 s56, v4
        s_cbranch_scc1 {g}
        v_readfirstlane_b32 s29, v5
        s_sub_u32 s29, s29, 1
        s_cbranch_scc1 {l if block else d}
        s_mov_b32 s57, 1""")
        for x in ldK(0, "s29", SK): a(x)
        a(f"""{g}:
        s_sub_u32 s27, s56, 1
        s_cbranch_scc1 {l if block else d}
        s_add_u32 s54, s56, {TS-1}
        s_add_u32 s55, s56, {2*TS-1}
        s_add_u32 s56, s56, {3*TS-1}
        s_mov_b32 s57, 2""")
        st(a, 6)
        for x in ldK(0, "s27") + ldV(0, "s27") + ldK(1, "s54") + ldV(1, "s54") + ([] if "up4" not in EXP else ldK(2, "s55") + ldV(2, "s55") + ldK(3, "s56")): a(x)
        a(f"{d}:")
    def qreads(k):
        f = WF + 4 * (k & 7)
        a(f"ds_read_b64_tr_b16 {vr(f,2)}, v{VQ} offset:{k*1024}\nds_read_b64_tr_b16 {vr(f+2,2)}, v{VQ} offset:{k*1024+256}")
    def publish():
        a(f"""s_mov_b32 s28, {WS_MB}
        v_readfirstlane_b32 s{T}, v11
        v_mov_b32 v6, v11
        s_mov_b64 exec, 1
        s_waitcnt vmcnt({7-NQ1})""")
        st(a, 4)
        a(f"""ds_add_rtn_u32 v4, v{VC}, v{V1} offset:{C_D}
        s_waitcnt lgkmcnt(0)
        v_cmp_eq_u32 vcc, 3, v4
        s_cbranch_vccz L_notlast
        s_mov_b64 exec, s[64:65]
        s_cbranch_execz L_notlast
        buffer_atomic_swap v6, v{VFS}, s[8:11], s28 offen sc1
        s_waitcnt vmcnt(1)
        s_branch L_published
        L_notlast:
        s_waitcnt vmcnt(0)
        s_cmp_lg_u32 s{RL}, 14
        s_cbranch_scc1 L_published
        s_mov_b32 s26, {WS_G}
        s_mov_b32 exec_lo, -1
        buffer_store_dwordx2 v[10:11], v9, s[8:11], s26 offen sc1
        L_published:""")
        a("s_mov_b64 exec, -1")
    def qgemm(lo, hi, cnt):
        spin_lds(a, VC, cnt, 4, 4)
        if not lo: a(f"ds_read_b32 v11, v{VC} offset:{C_T}")
        for k in range(lo, min(hi, lo + 6)): qreads(k)
        for k in range(lo, hi):
            if k + 6 < hi: qreads(k + 6)
            a(f"s_waitcnt lgkmcnt({2*(min(hi-1,k+6)-k)})")
            a(f"{MF} {vr(A0,16)}, {vr(WF+4*(k&7),4)}, {vr(XF+4*k,4)}, {'0' if k==0 else vr(A0,16)}")
    def qepi():
        for i in range(8): a(f"v_mov_b32 v{KV+56+i}, 0")
        a(f"""s_lshl_b32 s26, s{W}, 11
        s_add_u32 s26, s26, {QX}
        v_add_u32 v5, s26, v1
        s_mov_b32 s62, {QSCALE:#x}
        s_mov_b32 s63, {QSCALE:#x}""")
        for i in range(8): a(f"v_pk_mul_f32 {vr(A0+2*i,2)}, {vr(A0+2*i,2)}, s[62:63]")
        for i in range(8): a(f"v_cvt_pk_bf16_f32 v{QO+i}, v{A0+2*i}, v{A0+2*i+1}")
        a(f"""s_mov_b32 exec_lo, 0
        v_mov_b32 v{QO+6}, 0
        v_mov_b32 v{QO+7}, 0
        s_mov_b32 exec_lo, -1
        ds_write_b128 v5, {vr(QO,4)}
        ds_write_b128 v5, {vr(QO+4,4)} offset:1024""")
        lds_inc(a, VC, C_X, V1)
        for i in range(0, 48, 2): a(f"v_pk_mul_f32 {vr(O+i,2)}, {vr(KV+56,2)}, {vr(KV+56,2)}")
    qgemm(0, 4 * NQ1, C_Q1)
    if NQ1 == 7 and "qfirst" in EXP:
        st(a, 5)
        qepi(); publish(); try_loads()
    elif NQ1 == 7:
        st(a, 5)
        publish(); try_loads(); qepi()
    else:
        publish()
        lds_inc(a, VC, C_Q2, V1)
        try_loads()
        qgemm(4 * NQ1, 28, C_Q2)
        st(a, 5)
        try_loads()
        qepi()
    spin_lds(a, VC, C_X, 4, 4)
    for i in range(3):
        a(f"""s_add_u32 s26, s{W}, {i+1}
        s_and_b32 s26, s26, 3
        s_lshl_b32 s26, s26, 11
        s_add_u32 s26, s26, {QX}
        v_add_u32 v5, s26, v1
        ds_read_b128 {vr(Q+8*i,4)}, v5
        ds_read_b128 {vr(Q+8*i+4,4)}, v5 offset:1024""")
    for i in range(3):
        a(f"""s_add_u32 s26, s{W}, {i+1}
        s_and_b32 s26, s26, 3
        s_mul_i32 s26, s26, 12288
        s_add_u32 s26, s26, {CB + i*4096}
        v_add_u32 v{VX+i}, s26, v1""")
    a(f"s_mul_i32 s26, s{W}, 12288\ns_add_u32 s26, s26, {CB}\nv_add_u32 v2, s26, v1")
    try_loads(block=True)
    def QK(u, m):
        kt, qs = (u >> 2) & 3, u & 3
        s = S + 16 * (u & 1)
        c = "0" if m == 0 else vr(s, 16)
        return f"{MF} {vr(s,16)}, {vr(KV+16*kt+4*m,4)}, {vr(Q+8*qs+4*m,4)}, {c}"
    def PV(u, m):
        kt, qs = (u >> 2) & 3, u & 3
        return f"{MF} {vr(O+16*qs,16)}, {vr(KV+16*kt+8+4*m,4)}, {vr(P+8*(u&1)+4*m,4)}, {vr(O+16*qs,16)}"
    SS = [P, S + 16, S, O + 48]
    def samp(i, m): return f"{MF} {vr(SS[i],16)}, {vr(SK+4*m,4)}, {vr(Q+8*i+4*m,4)}, {'0' if m == 0 else vr(SS[i],16)}"
    def mx(i):
        for x in max16_list(4, SS[i]): a(x)
        a(f"s_mov_b32 exec_lo, 0\nv_cvt_pk_bf16_f32 v{Q+8*i+6}, -v4, 0\ns_mov_b32 exec_lo, -1")
    a(f"s_waitcnt vmcnt({8 if 'up4' not in EXP else 14}) lgkmcnt(0)")
    for i in (0, 2): a(samp(i, 0)); a(samp(i, 1))
    a(samp(1, 0)); a(samp(1, 1))
    mx(0)
    a(samp(3, 0)); a(samp(3, 1))
    mx(2)
    a(f"s_waitcnt vmcnt({6 if 'up4' not in EXP else 12})")
    a(QK(0, 0)); a(QK(0, 1))
    if "up4" not in EXP:
        for x in ldK(2, "s55") + ldV(2, "s55") + ldK(3, "s56"): a(x)
    mx(1)
    for i in range(0, 8, 2): a(f"v_pk_mul_f32 {vr(P+8+i,2)}, {vr(KV+56,2)}, {vr(KV+56,2)}")
    mx(3)
    for i in range(48, 64, 2): a(f"v_pk_mul_f32 {vr(O+i,2)}, {vr(KV+56,2)}, {vr(KV+56,2)}")
    st(a, 7)
    a(f"s_mov_b32 s57, 2\ns_mov_b32 s53, {WS_G}")
    def substep(u, ex, last=False):
        s = S + 16 * (u & 1); p = P + 8 * (u & 1)
        e = lambda i: f"v_exp_f32 v{s+i}, v{s+i}"
        c = lambda i: f"v_cvt_pk_bf16_f32 v{p+i}, v{s+2*i}, v{s+2*i+1}"
        q0, q1 = ([], []) if last else ([QK(u+1, 0)], [QK(u+1, 1)])
        seq = q0 + ex[0] + [e(0), e(1), e(2), e(3), c(0), e(4),
               PV(u-1, 0)] + ex[1] + [e(5), c(1), e(6), e(7), c(2), e(8)] + q1 + ex[2] + [e(9), c(3), e(10), e(11), c(4), e(12),
               PV(u-1, 1)] + ex[3] + [e(13), c(5), e(14), e(15), c(6), c(7)]
        for x in seq: a(x)
    a(".p2align 6")
    a.label("L_loop")
    for u in range(16):
        kt, qs = u >> 2, u & 3
        ex = [[], [], [], []]
        if qs == 1:
            l = ldV((kt + 3) & 3, "s56")
            ex[0] = [l[0]]; ex[1] = [l[1]]; ex[2] = [f"s_add_u32 s56, s56, {TS}"]
        if u == 0: ex[0] = [f"ds_read_b32 v7, v{VF} offset:{C_R+4}"]
        if u == 1:
            ex[2] = ["s_waitcnt lgkmcnt(0)", "v_readfirstlane_b32 s56, v7"]
            ex[3] = ["s_sub_u32 s56, s56, 1"]
        if u == 2:
            ex[0] = ["s_cbranch_scc1 L_nextwait", "L_nextok:", f"v_add_u32 v{VF}, 4, v{VF}"]
        if qs == 2 and "nowait" not in EXP: ex[3] = ["s_waitcnt vmcnt(10)"]
        if qs == 0 and "nowait" not in EXP: ex[3] = ["s_waitcnt vmcnt(10)"]
        if qs == 3:
            l = ldK(kt, "s56")
            ex[0] = [l[0]]; ex[1] = [l[1]]
        if u == GA: ex[1] = ex[1] + [f"ds_add_u32 v{VC}, v{V1} offset:{C_A}"]
        if u == 15: ex[3] = ["s_sub_u32 s57, s57, 1"]
        if "itst" in EXP and u in (0, 8):
            a("s_waitcnt lgkmcnt(0)")
            for i in range(1, 6): a(f"s_mov_b32 s{72+2*i}, s{72+2*i+2}")
            a("s_memtime s[84:85]")
        if "noload" in EXP: ex = [[y for y in x if "buffer_load" not in y] for x in ex]
        substep(u, ex)
    a("s_cbranch_scc0 L_loop")
    for u in range(14):
        ex = [[], [], [], []]
        if u == 1:
            l = ldV(3, "s56"); ex[0] = [l[0]]; ex[1] = [l[1]]
        if u == ZU: ex[2] = [f"ds_add_u32 v{VC}, v{V1} offset:{C_Z}"]
        if u == 0:
            ex[0] = [f"buffer_load_dwordx2 {vr(GR,2)}, v{VGO}, s[8:11], s53 offen sc1"]
            ex[1] = [f"buffer_load_dwordx4 {vr(XR,4)}, v{VXO}, s[12:15], s59 offen"]
            ex[2] = [f"buffer_load_dwordx4 {vr(XR+4,4)}, v{VXO}, s[12:15], s59 offen offset:32"]
        if u % 2 == 0: ex[3] = [f"s_waitcnt vmcnt({min(13, 15 - u) if u < 12 else 0})"]
        if u == 12: ex[0] = [f"ds_read_b32 v7, v{VC} offset:{C_F}"]
        if u == 13:
            ex[0] = ["s_waitcnt lgkmcnt(0)", "v_cmp_gt_u32 vcc, 4, v7"]
            ex[1] = ["s_cbranch_vccnz L_wait_ffn", "L_ffn_free:"]
        substep(u, ex)
    st(a, 8)
    wr = lambda i, k: f"ds_write_b128 v{VX+i}, {vr(O+16*i+4*k,4)} offset:{k*1024}"
    substep(14, [[], [wr(0, 0)], [wr(0, 1)], [wr(0, 2)]])
    substep(15, [[wr(0, 3)], [wr(1, 0)], [wr(1, 1)], [wr(1, 2)]], last=True)
    a(PV(15, 0)); a(wr(1, 3)); a(PV(15, 1))
    for k in range(4): a(wr(2, k))
    lds_inc(a, VC, C_C, V1)
    srd(a, 20, 50, 2048 * 896)
    TT = S
    OO = O + 16 * OWN
    a(f"""s_lshl_b32 s28, s35, 4
    s_add_u32 s28, s28, s{H}
    s_lshr_b32 s56, s28, 2
    s_lshl_b32 s56, s56, 5
    s_and_b32 s26, s{H}, 3
    s_add_u32 s56, s56, s26
    s_lshl_b32 s56, s56, 2
    s_add_u32 s56, s56, {WS_OFL}
    s_lshl_b32 s52, s28, 11
    s_add_u32 s52, s52, {WS_O}
    s_mov_b32 s57, 0""")
    spin_lds(a, VC, C_C, 4, 7)
    for k in range(12): a(f"ds_read_b128 {vr(TT+4*k,4)}, v2 offset:{k*1024}")
    for i in range(3):
        a(f"s_waitcnt lgkmcnt({8-4*i})")
        for k in (6, 7, 0, 1, 2, 3, 4, 5): a(f"v_pk_add_f32 {vr(OO+2*k,2)}, {vr(OO+2*k,2)}, {vr(TT+16*i+2*k,2)}")
    a.label("L_fin")
    a(f"""v_mov_b32 v5, v{OO+12}
    v_mov_b32 v4, v{OO+12}
    s_mov_b32 exec_lo, 0
    v_mov_b32 v{OO+12}, 0
    s_mov_b32 exec_lo, -1
    v_permlane32_swap_b32 v5, v4
    v_rcp_f32 v6, v4
    s_mov_b32 s28, 0x2b800000
    s_mov_b32 s29, 0x6c800000
    v_cmp_nle_f32 s[54:55], s28, v4
    v_cmp_nge_f32 s[62:63], s29, v4
    v_pk_add_f32 v[4:5], {vr(OO,2)}, {vr(OO+2,2)}""")
    for k in range(2, 8): a(f"v_pk_add_f32 v[4:5], v[4:5], {vr(OO+2*k,2)}")
    a(f"""v_add_f32 v4, v4, v5
    s_movk_i32 s28, 0x207
    v_cmp_class_f32 vcc, v4, s28
    s_or_b64 s[54:55], s[54:55], s[62:63]""")
    for k in range(8): a(f"v_pk_mul_f32 {vr(OO+2*k,2)}, {vr(OO+2*k,2)}, v[6:7] op_sel_hi:[1,0]")
    for k in range(8): a(f"v_cvt_pk_bf16_f32 v{Q+k}, v{OO+2*k}, v{OO+2*k+1}")
    a(f"""v_mov_b32 v6, s{T}
    s_or_b64 s[54:55], s[54:55], vcc
    s_cbranch_scc1 L_bad
    L_good:
    buffer_store_dwordx4 {vr(Q,4)}, v1, s[8:11], s52 offen sc1
    buffer_store_dwordx4 {vr(Q+4,4)}, v1, s[8:11], s52 offen offset:1024 sc1
    s_mov_b64 exec, 1
    {"s_waitcnt vmcnt(0)" if ("noclr" in EXP or "otouch" in EXP) else ""}
    buffer_atomic_swap v6, v{VZ}, s[8:11], s56 offen sc1
    s_mov_b64 exec, -1""")
    st(a, 9)
    WOF = 104; B = 232; ACC = 8; U = 72
    OSB = [40, 72]
    PLR = 36
    at = lambda r: f"v_mov_b32 v{r}, 0\ns_mov_b64 exec, 15\nbuffer_atomic_or v{r}, v7, s[8:11], s56 offen sc0 sc1\ns_mov_b64 exec, -1"
    a(f"""s_lshl2_add_u32 s28, s58, s{W}
    s_lshl_b32 s54, s28, 13
    s_add_u32 s54, s54, {WS_O}
    s_add_u32 s55, s54, 4096
    s_lshl_b32 s56, s28, 7
    s_add_u32 s56, s56, {WS_OFL}
    v_lshrrev_b32 v7, 2, v1
    {at(PLR)}
    v_bfe_u32 v4, v3, 2, 2
    v_lshl_add_u32 v4, v{VH}, 2, v4
    v_mul_u32_u24 v4, 224, v4
    v_bfe_u32 v5, v3, 4, 1
    v_lshl_add_u32 v4, v5, 5, v4
    v_and_b32 v5, 1, v3
    v_lshl_add_u32 v4, v5, 4, v4
    v_bfe_u32 v5, v3, 1, 1
    v_lshl_add_u32 v4, v5, 3, v4
    s_mul_i32 s28, s{W}, 56
    v_add_u32 v4, s28, v4""")
    for r in range(4):
        a(f"""s_add_u32 s26, s{W}, {r}
        s_and_b32 s26, s26, 3
        s_mul_i32 s28, s26, {4*28*224}
        v_add_u32 v{24+r}, s28, v4""")
        if r:
            a(f"s_mul_i32 s28, s26, 12288\ns_add_u32 s28, s28, {CB}\nv_add_u32 v{32+r}, s28, v1")
    a(f"""v_lshlrev_b32 v30, 2, v{VT}
    v_add_u32 v30, {UPDI}, v30
    s_mul_i32 s28, s{W}, 112
    s_add_u32 s28, s28, {UPD}
    v_lshl_add_u32 v28, v{VH}, 5, s28
    v_mov_b32 v29, {CNT}
    s_lshl_b32 s28, 0x11, s{W}
    v_mov_b32 v31, s28""")
    spin_lds(a, 29, C_W, 16, 6)
    def word(k):
        o = (28 * ((k >> 1) & 3) + 16 * (k & 1)) * 224
        b = 24 + (k >> 3)
        a(f"ds_read_b64_tr_b16 {vr(WOF+4*k,2)}, v{b} offset:{o}\nds_read_b64_tr_b16 {vr(WOF+4*k+2,2)}, v{b} offset:{o+8*224}")
    a(at(PLR + 1))
    for k in range(NW1):
        word(k)
        if k == NW1 // 2 - 1: a(at(PLR + 2))
    a(f"s_mov_b32 s60, {SPIN_LIMIT}\ns_mov_b64 exec, 15\nL_op:")
    for i in range(4):
        a(f"""v_mov_b32 v{PLR+(i+3)%4}, 0
        buffer_atomic_or v{PLR+(i+3)%4}, v7, s[8:11], s56 offen sc0 sc1
        s_waitcnt vmcnt(3)
        v_cmp_ne_u32 vcc, s{T}, v{PLR+i}
        s_cbranch_vccz L_of""")
    a(f"""s_sub_u32 s60, s60, 1
    s_cbranch_scc0 L_op
    s_endpgm
    L_of:
    s_mov_b64 exec, -1""")
    if "twait" not in EXP: st(a, 10)
    def oload():
        for k in range(8):
            a(f"buffer_load_dwordx4 {vr(OSB[0]+4*k,4)}, v1, s[8:11], {'s54' if k < 4 else 's55'} offen offset:{(k&3)*1024} sc1")
    a(f"s_mul_i32 s28, s{W}, 12288\ns_add_u32 m0, s28, {CB}")
    for k in range(8):
        if k == 4: a(f"s_add_u32 m0, s28, {CB+4096}")
        a(f"buffer_load_dwordx4 v1, s[8:11], {'s54' if k < 4 else 's55'} offen offset:{(k&3)*1024} sc1 lds")
    for k in range(NW1, 32): word(k)
    for k in range(8):
        a(f"v_lshlrev_b32 v{B+2*k}, 16, v{XR+k}\nv_and_b32 v{B+2*k+1}, 0xffff0000, v{XR+k}")
    a(f"""v_cmp_ne_u32 vcc, s{T}, v{GR+1}
    s_cbranch_vccnz L_gate
    L_gate_ok:
    v_sub_f32 v24, 1.0, v{GR}
    v_cvt_pk_bf16_f32 v24, v24, v24
    v_lshlrev_b32 v24, 16, v24""")
    def stub(): pass
    def need(bit):
        l = uid("Lnd")
        a(f"""{l}:
        ds_read_b32 v6, v29 offset:{C_O}
        s_sub_u32 s60, s60, 1
        s_cbranch_scc1 L_exit
        s_waitcnt lgkmcnt(0)
        v_readfirstlane_b32 s61, v6
        s_bitcmp1_b32 s61, {bit}
        s_cbranch_scc0 {l}""")
    def rd(g):
        for k in range(8): a(f"ds_read_b128 {vr(OSB[g&1]+4*k,4)}, v{32+g} offset:{k*1024}")
    def mm(g, lo, hi):
        for k in range(lo, hi):
            a(f"{MF} {vr(ACC,16)}, {vr(WOF+32*g+4*k,4)}, {vr(OSB[g&1]+4*k,4)}, {'0' if g == 0 and k == 0 else vr(ACC,16)}")
    a(f"""ds_read_b32 v6, v29 offset:{C_O}
    s_mov_b32 s57, 0
    s_waitcnt lgkmcnt(0)
    v_readfirstlane_b32 s61, v6
    s_bitcmp1_b32 s61, 10
    s_cbranch_scc1 L_blkU
    s_mov_b32 s57, 1
    L_next0:
    v_mov_b32 v32, v2
    s_mov_b32 s27, s{W}
    s_mov_b64 exec, 1
    s_waitcnt vmcnt(0)
    ds_add_u32 v29, v31 offset:{C_O}
    s_mov_b64 exec, -1""")
    rd(0)
    for g in range(4):
        if g < 3: a(f"ds_read_b32 v6, v29 offset:{C_O}\ns_add_u32 s27, s27, 1")
        a("s_waitcnt lgkmcnt(0)")
        mm(g, 0, 2)
        if g < 3:
            a(f"v_readfirstlane_b32 s61, v6\ns_bitcmp1_b32 s61, s27\ns_cbranch_scc0 L_late{g}")
            rd(g + 1)
        mm(g, 2, 8)
        a(f"L_back{g}:")
    a("s_cmp_lg_u32 s57, 0\ns_cbranch_scc1 L_lateU\nL_next1:")
    if "twait" not in EXP: st(a, 11)
    a(f"s_nop 9\nv_cmp_{'o' if 'forceagain' in EXP else 'u'}_f32 vcc, v{ACC}, v{ACC}\ns_cbranch_vccnz L_again\nL_checked:")
    for m in range(2):
        for e in range(4*m, 4*m+4):
            a(f"v_pk_fma_f32 {vr(B+2*e,2)}, {vr(ACC+2*e,2)}, {vr(GR,2)}, {vr(B+2*e,2)} op_sel_hi:[1,0,1]")
        for e in range(4*m, 4*m+4): a(f"v_cvt_pk_bf16_f32 v{40+e}, v{B+2*e}, v{B+2*e+1}")
        if m == 0:
            a(f"buffer_store_dwordx4 v[40:43], v{VXO}, s[20:23], s59 offen{OUTAUX}")
            stub()
        else:
            a(f"""s_mov_b32 exec_hi, 0
            buffer_store_dwordx4 v[44:47], v{VXO}, s[20:23], s59 offen offset:32{OUTAUX}
            s_mov_b64 exec, 0xffffffff
            s_not_b64 exec, exec
            buffer_store_dwordx2 v[44:45], v{VXO}, s[20:23], s59 offen offset:32{OUTAUX}""")
    st_end(a)
    diag_end(a)
    a("s_endpgm")
    for g in range(3):
        a(f"L_late{g}:")
        mm(g, 2, 8)
        need("s27"); rd(g + 1)
        a(f"s_branch L_back{g}")
    a(f"L_again:\ns_lshl_b32 s29, s58, 15\ns_add_u32 s29, s29, {WS_O}")
    for g in range(4):
        a(f"""s_add_u32 s26, s{W}, {g}
        s_and_b32 s26, s26, 3
        s_lshl_b32 s26, s26, 13
        s_add_u32 s54, s29, s26
        s_add_u32 s55, s54, 4096
        L_ag{g}:""")
        for k in range(8):
            a(f"buffer_load_dwordx4 {vr(OSB[g&1]+4*k,4)}, v1, s[8:11], {'s54' if k < 4 else 's55'} offen offset:{(k&3)*1024} sc1")
        a("s_sub_u32 s60, s60, 1\ns_cbranch_scc1 L_exit\nv_mov_b32 v4, 0\ns_waitcnt vmcnt(0)")
        for k in range(16): a(f"v_max3_u32 v4, v4, v{OSB[g&1]+2*k}, v{OSB[g&1]+2*k+1}")
        a(f"v_cmp_eq_u32 vcc, -1, v4\ns_cbranch_vccnz L_ag{g}")
        mm(g, 0, 8)
    a("s_nop 11\ns_branch L_checked")
    a("L_lateU:")
    need(10)
    a(f"""L_blkU:
    ds_read_b32 v6, v30
    s_waitcnt lgkmcnt(0)
    v_cmp_le_i32 vcc, 0, v6
    s_cbranch_vccz L_noupd
    s_mov_b64 exec, vcc
    v_mul_u32_u24 v6, 448, v6
    v_add_u32 v28, v28, v6""")
    for k in range(4): a(f"ds_read_b128 {vr(U+4*k,4)}, v28 offset:{64*(k>>1)+16*(k&1)}")
    a("s_waitcnt lgkmcnt(0)")
    for k in range(8):
        a(f"""v_pk_add_f32 {vr(B+2*k,2)}, {vr(B+2*k,2)}, {vr(U+2*k,2)}
        v_cvt_pk_bf16_f32 v{B+2*k}, v{B+2*k}, v{B+2*k+1}
        v_and_b32 v{B+2*k+1}, 0xffff0000, v{B+2*k}
        v_lshlrev_b32 v{B+2*k}, 16, v{B+2*k}""")
    a("s_mov_b64 exec, -1\nL_noupd:")
    stub()
    for k in range(8): a(f"v_pk_mul_f32 {vr(B+2*k,2)}, {vr(B+2*k,2)}, v[24:25] op_sel_hi:[1,0]")
    a("s_cmp_lg_u32 s57, 0\ns_cbranch_scc1 L_next1\ns_branch L_next0")
    a("L_bad:\ns_cmp_eq_u32 s57, 0\ns_cbranch_scc1 L_slow")
    for k in range(8): a(f"v_min_u32 v{Q+k}, -2, v{Q+k}")
    a("s_branch L_good")
    a.label("L_wait_ffn")
    spin_lds(a, VC, C_F, 4, 7)
    a("s_branch L_ffn_free")
    a.label("L_nextwait")
    spin_lds(a, VF, C_R + 4, 1, 7)
    a("s_sub_u32 s56, s61, 1\ns_branch L_nextok")
    a(f"""L_gate:
    s_mov_b32 s26, {WS_G}
    s_mov_b32 s60, {SPIN_LIMIT}
    L_gate1:
    buffer_load_dwordx2 {vr(GR,2)}, v{VGO}, s[8:11], s26 offen sc1
    s_waitcnt vmcnt(0)
    v_cmp_ne_u32 vcc, s{T}, v{GR+1}
    s_cbranch_vccz L_gate_ok
    s_sub_u32 s60, s60, 1
    s_cbranch_scc0 L_gate1
    s_endpgm""")
    a.label("L_slow")
    a(f"""s_mov_b32 s57, 1
    s_mov_b32 s55, {KVB}
    s_mov_b32 s54, 0
    s_mov_b32 exec_lo, 0
    v_mov_b32 v{QO+6}, 0
    v_mov_b32 v{QO+7}, 0
    s_mov_b32 exec_lo, -1
    v_mov_b32 v4, 0xff800000
    L_slow1:
    {ldK(0, "s54")[0]}
    {ldK(0, "s54")[1]}
    s_waitcnt vmcnt(0)
    {MF} {vr(S,16)}, {vr(KV,4)}, {vr(QO,4)}, 0
    {MF} {vr(S,16)}, {vr(KV+4,4)}, {vr(QO+4,4)}, {vr(S,16)}""")
    for x in max16_list(4, S, init=True): a(x)
    a(f"""s_add_u32 s54, s54, {TS}
    s_cmp_lt_u32 s54, s55
    s_cbranch_scc1 L_slow1
    v_mov_b32 v5, v4
    v_permlane32_swap_b32 v4, v5
    v_max_f32 v4, v4, v5""")
    split_neg_max(a, 4, 5, 6, QO + 6, QO + 7)
    for i in range(16): a(f"v_mov_b32 v{OO+i}, 0")
    a(f"""s_mov_b32 s54, 0
    L_slow2:
    {ldK(0, "s54")[0]}
    {ldK(0, "s54")[1]}
    {ldV(0, "s54")[0]}
    {ldV(0, "s54")[1]}
    s_waitcnt vmcnt(0)
    {MF} {vr(S,16)}, {vr(KV,4)}, {vr(QO,4)}, 0
    {MF} {vr(S,16)}, {vr(KV+4,4)}, {vr(QO+4,4)}, {vr(S,16)}""")
    for i in range(16): a(f"v_exp_f32 v{S+i}, v{S+i}")
    for i in range(8): a(f"v_cvt_pk_bf16_f32 v{P+i}, v{S+2*i}, v{S+2*i+1}")
    a(f"""{MF} {vr(OO,16)}, {vr(KV+8,4)}, {vr(P,4)}, {vr(OO,16)}
    {MF} {vr(OO,16)}, {vr(KV+12,4)}, {vr(P+4,4)}, {vr(OO,16)}
    s_nop 7
    s_nop 7
    s_add_u32 s54, s54, {TS}
    s_cmp_lt_u32 s54, s55
    s_cbranch_scc1 L_slow2
    s_branch L_fin""")

GI = CB; DI = QX; HB = 101376
FT, KS = 66, 67
def service_wave(a):
    a.label("L_service")
    a(f"""v_mov_b32 v14, {CNT}
    v_mov_b32 v15, 1
    v_mov_b32 v9, 0""")
    srd(a, 8, 36, (1 << 28) - WSBASE)
    a("s_waitcnt lgkmcnt(0)")
    tag(a)
    a(f"v_mov_b32 v4, s{T}\nds_write_b32 v14, v4 offset:{C_T}\ns_waitcnt vmcnt(0)")
    lds_inc(a, 14, C_Q1, 15)
    a(f"""v_and_b32 v32, 31, v3
    v_lshrrev_b32 v33, 5, v3
    v_lshlrev_b32 v219, 3, v1
    v_lshrrev_b32 v220, 2, v1
    v_and_b32 v4, 7, v3
    v_lshlrev_b32 v217, 3, v4
    s_lshr_b32 s58, s{H}, 2
    s_lshl2_add_u32 s58, s{J}, s58
    v_lshlrev_b32 v211, 11, v33
    v_lshl_add_u32 v211, v32, 4, v211
    v_and_b32 v4, 24, v3
    v_lshl_add_u32 v4, v33, 2, v4
    v_lshl_add_u32 v4, v217, 4, v4
    s_lshl_b32 s26, s{L}, 5
    s_add_u32 s26, s26, {HB}
    v_add_u32 v214, s26, v4
    s_mul_i32 s{FT}, s2, 9363
    s_lshr_b32 s{FT}, s{FT}, 16
    s_mul_i32 s26, s{FT}, 7
    s_sub_u32 s{KS}, s2, s26
    s_cmp_ge_u32 s{L}, 2
    s_cbranch_scc1 L_svcB""")
    def sel_load(lbl):
        a(f"""s_mov_b32 s26, {WS_SEL}
        s_mov_b32 s60, {SPIN_LIMIT}
        {lbl}:
        buffer_load_dwordx2 v[20:21], v217, s[8:11], s26 offen sc1
        s_waitcnt vmcnt(0)
        v_cmp_ne_u32 vcc, s{T}, v21
        s_cbranch_vccz {lbl}_ok
        s_sleep 4
        s_sub_u32 s60, s60, 1
        s_cbranch_scc0 {lbl}
        s_endpgm
        {lbl}_ok:""")
    a(f"""s_lshl_b32 s27, s{J}, 6
    s_add_u32 s27, s27, {WS_R}
    s_cmp_eq_u32 s{RL}, 14
    s_cbranch_scc1 L_rank
    s_cmp_lg_u32 s2, {SELECTOR}
    s_cbranch_scc1 L_svcA
    s_lshl_b32 s28, s{L}, 8
    s_add_u32 s28, s28, {KEYS}
    v_add_u32 v7, s28, v220
    v_lshl_add_u32 v6, v33, 7, s28
    s_lshl_b32 s28, s{L}, 6
    s_add_u32 s28, s28, {CAND}
    v_lshl_add_u32 v10, v33, 5, s28
    s_lshl_b32 s26, s{L}, 9
    s_add_u32 s26, s26, {WS_R}
    s_mov_b32 s27, {WS_SEL}
    v_lshlrev_b32 v4, 3, v3
    v_mov_b32 v5, 2
    s_mov_b32 s60, {SPIN_LIMIT}
    L_keys:
    v_mov_b32 v20, 0
    v_mov_b32 v21, 0
    buffer_atomic_or_x2 v[20:21], v4, s[8:11], s26 offen sc0 sc1
    s_sub_u32 s60, s60, 1
    s_cbranch_scc1 L_exit
    s_waitcnt vmcnt(0)
    v_cmp_ne_u32 vcc, s{T}, v21
    s_cbranch_vccnz L_keys
    ds_write_b32 v7, v20""")
    for k in range(8): a(f"ds_read_b128 {vr(40+4*k,4)}, v6 offset:{16*k}")
    rank_count(a, 20, 40, 32, 22, 23)
    a(f"""v_cmp_gt_u32 vcc, 8, v22
    v_lshl_add_u32 v22, v22, 2, v10
    s_mov_b64 exec, vcc
    ds_write_b32 v22, v20""")
    lds_inc(a, 14, C_K, 5)
    a(f"""L_rank:
    s_cmp_lg_u32 s{L}, 0
    s_cbranch_scc1 L_svcA
    v_mov_b32 v6, {CAND}
    v_lshl_add_u32 v7, v32, 2, v6
    v_lshl_add_u32 v6, v33, 6, v6
    v_mov_b32 v21, s{T}""")
    spin_lds(a, 14, C_K, 4, 8)
    st(a, 10)
    if STAMP: a("s_waitcnt lgkmcnt(0)")
    a("ds_read_b32 v20, v7")
    for k in range(4): a(f"ds_read_b128 {vr(40+4*k,4)}, v6 offset:{16*k}")
    rank_count(a, 20, 40, 16, 22, 23)
    a(f"""v_mov_b32 v23, v22
    v_permlane32_swap_b32 v22, v23
    v_add_u32 v22, v22, v23
    v_cmp_gt_u32 vcc, 8, v22
    v_lshlrev_b32 v22, 3, v22
    s_mov_b32 exec_lo, vcc_lo
    s_mov_b32 exec_hi, 0
    buffer_atomic_swap_x2 v[20:21], v22, s[8:11], s27 offen sc1
    s_mov_b64 exec, -1""")
    st(a, 11)
    a.label("L_svcA")
    for e in range(7):
        a(f"""v_add_u32 v4, {64*e}, v3
        v_mul_u32_u24 v5, 4682, v4
        v_lshrrev_b32 v5, 16, v5
        v_mul_u32_u24 v5, {896-224}, v5
        v_lshl_add_u32 v{200+e}, v4, 4, v5""")
    for r in (215, 216): a(f"v_mov_b32 v{r}, 0")
    a(f"""v_mov_b32 v28, -1
    v_mov_b32 v29, -1
    v_mov_b32 v30, -1
    v_mov_b32 v31, -1
    s_lshl_b32 s59, s{J}, 6
    s_add_u32 s59, s59, s{H}
    s_lshl1_add_u32 s59, s59, s{L}
    s_lshl_b32 s59, s59, 10
    s_add_u32 s59, s59, {WS_O}
    s_cmp_ge_u32 s2, 196
    s_cbranch_scc1 L_nofn
    v_lshrrev_b32 v4, 3, v3
    v_and_b32 v5, 2, v4
    v_lshlrev_b32 v5, 1, v5
    v_and_b32 v6, 7, v3
    v_xor_b32 v5, v5, v6
    v_mul_u32_u24 v6, 3584, v4
    v_lshl_add_u32 v34, v5, 4, v6
    v_add_u32 v35, {8*3584-1024}, v34
    v_add_u32 v36, {2*(8*3584-1024)}, v34
    v_add_u32 v37, {3*(8*3584-1024)}, v34
    v_mul_u32_u24 v6, 896, v4
    v_lshl_add_u32 v240, v5, 4, v6
    v_add_u32 v241, {8*896-1024}, v240
    v_add_u32 v242, {2*(8*896-1024)}, v240
    v_add_u32 v243, {3*(8*896-1024)}, v240
    s_lshl_b32 s54, s{L}, 13
    s_add_u32 s54, s54, {GI}
    v_and_b32 v4, 3, v3
    v_lshrrev_b32 v6, 4, v3
    v_bfe_u32 v7, v3, 2, 2
    v_lshl_add_u32 v8, v6, 3, v7
    v_lshlrev_b32 v8, 7, v8
    v_lshrrev_b32 v7, 1, v7
    v_lshl_add_u32 v8, v7, 6, v8
    v_lshl_add_u32 v8, v4, 3, v8
    v_add_u32 v38, s54, v8
    v_xor_b32 v39, 64, v38
    v_lshlrev_b32 v213, 4, v6
    v_lshlrev_b32 v212, 3, v213
    v_lshl_add_u32 v212, v217, 1, v212""")
    srd(a, 16, 42, 448 * 3584)
    a(f"""s_cmp_eq_u32 s{L}, 1
    s_cselect_b64 s[16:17], s[44:45], s[42:43]
    s_mul_i32 s52, s{KS}, {64*3584}
    s_lshl_b32 s28, s{FT}, 7
    s_add_u32 s52, s52, s28
    s_movk_i32 s29, 896""")
    if GA >= 0: spin_lds(a, 14, C_A, 256, 8, sleep=4)
    else: spin_lds(a, 14, C_L, 8 if "deferA" in EXP else 4, 8, sleep=4)
    st(a, 3)
    NR = 2 if "fine" in EXP else 4
    XS_ = 40; FW = 56; AC = 104
    if "nogu" in EXP: a("s_mov_b32 s18, 0")
    a("s_mov_b32 m0, s54\ns_nop 0")
    for k in range(8):
        if k == 4: a(f"s_add_u32 s52, s52, {32*3584}\ns_add_u32 m0, s54, 4096")
        if k == 8 - NR: sel_load("L_sel1")
        elif k and k % NR == 0: a("s_waitcnt vmcnt(0)")
        a(f"buffer_load_dwordx4 v{34+(k&3)}, s[16:19], s52 offen offset:{1024*(k&3)} lds")
    a(f"""v_not_b32 v4, v20
    v_and_b32 v4, 0x7ff, v4
    v_mad_u32_u24 v4, v4, s29, v213
    s_lshl_b32 s26, s{KS}, 7
    s_mov_b32 exec_lo, 0x00ff00ff
    s_mov_b32 exec_hi, 0x00ff00ff
    buffer_load_dwordx4 {vr(XS_,4)}, v4, s[12:15], s26 offen
    buffer_load_dwordx4 {vr(XS_+4,4)}, v4, s[12:15], s26 offen offset:64
    s_mov_b64 exec, -1
    s_waitcnt vmcnt(2)""")
    for k in range(2):
        for n in range(4):
            o = k * 4096 + (n & 1) * 32
            a(f"ds_read_b64_tr_b16 {vr(FW+16*k+4*n,2)}, v{38+(n>>1)} offset:{o}\nds_read_b64_tr_b16 {vr(FW+16*k+4*n+2,2)}, v{38+(n>>1)} offset:{o+512}")
    lds_inc(a, 14, C_F, 15)
    a(f"""s_mov_b64 s[16:17], s[46:47]
    s_lshl1_add_u32 s28, s{FT}, s{L}
    s_mul_i32 s28, s28, {32*896}
    s_add_u32 s28, s28, s26
    s_lshl_b32 s29, s{L}, 12
    s_add_u32 m0, s29, {DI}
    s_lshl1_add_u32 s26, s2, s{L}
    s_lshl_b32 s26, s26, 11
    s_add_u32 s26, s26, {WS_GP}
    s_waitcnt vmcnt(0) lgkmcnt(0)""")
    st(a, 4)
    for k in range(2):
        for n in range(4):
            a(f"v_mfma_f32_16x16x32_bf16 {vr(AC+4*n,4)}, {vr(FW+16*k+4*n,4)}, {vr(XS_+4*k,4)}, {'0' if k==0 else vr(AC+4*n,4)}")
    a("s_mov_b32 exec_lo, 0x00ff00ff\ns_mov_b32 exec_hi, 0x00ff00ff")
    for n in range(4):
        a(f"buffer_store_dwordx4 {vr(AC+4*n,4)}, v212, s[8:11], s26 offen offset:{512*n} sc1")
    a("s_mov_b64 exec, -1")
    if "nowd" in EXP: a("s_mov_b32 s18, 0")
    for k in range(4): a(f"buffer_load_dwordx4 v{240+k}, s[16:19], s28 offen offset:{1024*k} lds")
    a(f"""s_lshl1_add_u32 s26, s{KS}, s{L}
    s_lshl_b32 s26, s26, 2
    s_mul_i32 s28, s{FT}, {7*128}
    s_add_u32 s26, s26, s28
    s_add_u32 s26, s26, {WS_F1}
    s_waitcnt vmcnt(4)""")
    signal(a, 5, 219, "s26", "0x7f")
    st(a, 5)
    a(f"s_cmp_lg_u32 s{L}, 0\ns_cbranch_scc1 L_st2w\ns_lshl_b32 s26, s2, 7\ns_add_u32 s26, s26, {WS_F1}")
    poll_atomic(a, 5, 220, "s26", "0x3fff", 2)
    lds_inc(a, 14, C_L, 15)
    a("L_st2w:")
    spin_lds(a, 14, C_L, 1, 8, sleep=3)
    st(a, 6)
    GP = 40; DW = 120
    a(f"s_mul_i32 s26, s{FT}, {7*4096}\ns_lshl_b32 s28, s{L}, 9\ns_add_u32 s26, s26, s28\ns_add_u32 s26, s26, {WS_GP}")
    for k in range(7):
        a(f"buffer_load_dwordx4 {vr(GP+4*k,4)}, v211, s[8:11], s26 offen sc1")
        if k < 6: a("s_add_u32 s26, s26, 4096")
    a(f"s_mov_b32 s28, {NLOG2E:#x}\ns_waitcnt vmcnt(0)")
    for k in range(1, 7):
        if "nopk" in EXP:
            for e in range(4): a(f"v_add_f32 v{GP+e}, v{GP+e}, v{GP+4*k+e}")
        else:
            for e in range(2): a(f"v_pk_add_f32 {vr(GP+2*e,2)}, {vr(GP+2*e,2)}, {vr(GP+4*k+2*e,2)}")
    a(f"""v_permlane32_swap_b32 v{GP}, v{GP+2}
    v_permlane32_swap_b32 v{GP+1}, v{GP+3}
    v_mul_f32 v22, s28, v{GP}
    v_mul_f32 v23, s28, v{GP+1}
    v_exp_f32 v22, v22
    v_exp_f32 v23, v23
    v_add_f32 v22, 1.0, v22
    v_add_f32 v23, 1.0, v23
    v_rcp_f32 v22, v22
    v_rcp_f32 v23, v23
    v_pk_mul_f32 v[22:23], v[22:23], {vr(GP,2)}
    v_pk_mul_f32 v[22:23], v[22:23], {vr(GP+2,2)}
    v_cvt_pk_bf16_f32 v22, v22, v23
    ds_write_b32 v214, v22""")
    lds_inc(a, 14, C_S, 15)
    a(f"s_cmp_ge_u32 s{L}, 2\ns_cbranch_scc1 L_st3\ns_branch L_clr")
    a.label("L_nofn")
    lds_inc(a, 14, C_F, 15)
    spin_lds(a, 14, C_A, 512, 8, sleep=8)
    srd(a, 16, 38, 448 * 896)
    a(f"""s_sub_u32 s26, s2, 196
    s_lshl1_add_u32 s26, s26, s{L}
    s_mul_i32 s26, s26, {27*128}
    s_min_u32 s26, s26, {(3136-27)*128}
    s_mov_b64 exec, 0x7ffffff
    buffer_load_dword v6, v219, s[16:19], s26 offen
    s_mov_b64 exec, -1""")
    sel_load("L_sel2")
    a(f"""s_lshl2_add_u32 s26, s2, s{L}
    s_cmp_lg_u32 s26, {254*4}
    s_cbranch_scc1 L_clr""")
    a(f"s_mov_b32 s60, {SPIN_LIMIT}\nL_ep:")
    for k in range(4):
        a(f"s_mov_b32 s26, {WS_FL+8192*k}\nbuffer_load_dword v{24+k}, v219, s[8:11], s26 offen sc1")
    a(f"""s_sub_u32 s60, s60, 1
    s_cbranch_scc1 L_exit
    s_waitcnt vmcnt(0)
    v_xor_b32 v24, s{T}, v24
    v_bitop3_b32 v24, v24, v25, s{T} bitop3:0xf6
    v_bitop3_b32 v24, v24, v26, s{T} bitop3:0xf6
    v_bitop3_b32 v24, v24, v27, s{T} bitop3:0xf6
    v_cmp_ne_u32 vcc, 0, v24
    s_cbranch_vccnz L_ep
    s_mov_b32 s26, {WS_EP}""")
    flag_store(a, 5, 9, "s26")
    a("L_clr:")
    for k in range(4):
        a(f"buffer_store_dwordx4 v[28:31], v1, s[8:11], s59 offen sc1\ns_add_u32 s59, s59, {16*2048}")
        if k == 3 or (k & 1 and "clr2" in EXP): a("s_waitcnt vmcnt(0)")
    lds_inc(a, 14, C_F, 15)
    st(a, 7)
    Y = 40
    a(f"""L_updA:
    s_and_b32 s53, s{H}, 3
    s_mul_i32 s53, s53, 224
    s_lshl_b32 s57, s{L}, 2
    s_lshr_b32 s26, s53, 6
    s_lshl_b32 s26, s26, 7
    s_add_u32 s62, s26, {WS_YFL}
    L_upd:
    v_readlane_b32 s52, v20, s57
    s_andn2_b32 s54, 0x7ff, s52
    s_lshr_b32 s26, s54, 5
    s_cmp_lg_u32 s26, s58
    s_cbranch_scc1 L_updn
    s_mov_b32 s60, {SPIN_LIMIT}
    s_mov_b32 exec_lo, 0x0fffffff
    s_mov_b32 exec_hi, 0x0fffffff
    L_yfl:
    v_mov_b32 v24, 0
    v_mov_b32 v25, 0
    buffer_atomic_or v24, v220, s[8:11], s62 offen sc0 sc1
    buffer_atomic_or v25, v220, s[8:11], s62 offen offset:256 sc0 sc1
    s_waitcnt vmcnt(0)
    v_xor_b32 v24, s{T}, v24
    v_bitop3_b32 v24, v24, v25, s{T} bitop3:0xf6
    v_cmp_ne_u32 vcc, 0, v24
    s_cbranch_vccz L_yok
    s_sleep 6
    s_sub_u32 s60, s60, 1
    s_cbranch_scc0 L_yfl
    s_endpgm
    L_yok:
    v_mul_u32_u24 v4, {14*14336}, v33
    v_lshl_add_u32 v4, v32, 4, v4
    s_mul_i32 s26, s57, 1792
    s_lshl1_add_u32 s26, s53, s26
    s_add_u32 s26, s26, {WS_YP}""")
    for i in range(14):
        a(f"buffer_load_dwordx4 {vr(Y+4*i,4)}, v4, s[8:11], s26 offen sc1\ns_add_u32 s26, s26, 14336")
    a(f"""s_mov_b64 exec, -1
    s_lshr_b32 s26, s52, 11
    s_not_b32 s55, s26
    s_and_b32 s29, s26, 0x7fff
    s_bitcmp1_b32 s26, 15
    s_cselect_b32 s26, s29, s55
    s_lshl_b32 s26, s26, 16
    v_mov_b32 v6, {NLOG2E:#x}
    v_mul_f32 v6, s26, v6
    v_exp_f32 v6, v6
    v_add_f32 v6, 1.0, v6
    v_rcp_f32 v6, v6
    v_cvt_pk_bf16_f32 v6, v6, v6
    v_lshlrev_b32 v6, 16, v6
    s_mul_i32 s26, s57, 448
    s_add_u32 s26, s26, {UPD}
    v_lshl_add_u32 v7, v32, 4, s26
    s_waitcnt vmcnt(0)""")
    for i in range(1, 14):
        a(f"v_pk_add_f32 {vr(Y,2)}, {vr(Y,2)}, {vr(Y+4*i,2)}\nv_pk_add_f32 {vr(Y+2,2)}, {vr(Y+2,2)}, {vr(Y+4*i+2,2)}")
    for k in range(4): a(f"v_mov_b32 v{Y+4+k}, v{Y+k}")
    for k in range(4): a(f"v_permlane32_swap_b32 v{Y+k}, v{Y+4+k}")
    for k in range(4): a(f"v_add_f32 v{Y+k}, v{Y+k}, v{Y+4+k}")
    for k in range(0, 4, 2):
        a(f"""v_cvt_pk_bf16_f32 v{Y+k}, v{Y+k}, v{Y+k+1}
        v_and_b32 v{Y+k+1}, 0xffff0000, v{Y+k}
        v_lshlrev_b32 v{Y+k}, 16, v{Y+k}
        v_mul_f32 v{Y+k}, v{Y+k}, v6
        v_mul_f32 v{Y+k+1}, v{Y+k+1}, v6
        v_cvt_pk_bf16_f32 v{Y+k}, v{Y+k}, v{Y+k+1}
        v_and_b32 v{Y+k+1}, 0xffff0000, v{Y+k}
        v_lshlrev_b32 v{Y+k}, 16, v{Y+k}""")
    a(f"""s_and_b32 s54, s54, 31
    v_mov_b32 v5, s57
    s_lshl_b32 s26, s54, 2
    s_add_u32 s26, s26, {UPDI}
    v_mov_b32 v4, s26
    s_mov_b64 exec, 0x0fffffff
    ds_write_b128 v7, {vr(Y,4)}
    s_mov_b64 exec, 1
    ds_write_b32 v4, v5
    s_mov_b64 exec, -1
    L_updn:
    s_add_u32 s57, s57, 1
    s_and_b32 s26, s57, 3
    s_cbranch_scc1 L_upd
    v_mov_b32 v6, 512""")
    lds_inc(a, 14, C_O, 6)
    st(a, 9)
    a("s_branch L_wo1")
    a.label("L_svcB")
    CLR = "buffer_store_dwordx4 v[24:27], v1, s[8:11], s59 offen sc1"
    if "noclr" in EXP: CLR = ""
    if "otouch" in EXP: CLR = "s_mov_b32 exec_lo, 0x0f0f0f0f\ns_mov_b32 exec_hi, 0x0f0f0f0f\nbuffer_store_dwordx4 v[24:27], v1, s[8:11], s59 offen sc1\ns_mov_b64 exec, -1"
    OUTT = ""
    if "outtouch" in EXP:
        OUTT = f"""s_cmp_lg_u32 s55, {42*1024}
        s_cbranch_scc1 L_noot
        s_mov_b32 s20, s50
        s_mov_b32 s21, s51
        s_mov_b32 s22, {2048*896}
        s_mov_b32 s23, 0x20000
        s_lshl_b32 s26, s58, 5
        v_add_u32 v4, s26, v32
        v_mul_u32_u24 v4, 896, v4
        s_add_u32 s26, s53, 127
        s_and_b32 s26, s26, 0xffffff80
        v_lshl_add_u32 v4, v33, 7, v4
        s_cmp_eq_u32 s53, 672
        s_cselect_b32 exec_hi, 0, -1
        buffer_store_dword v9, v4, s[20:23], s26 offen sc1
        s_mov_b64 exec, -1
        L_noot:"""
    WOPF = "s_mov_b32 exec_hi, 0x1ffff\nbuffer_load_dword v6, v219, s[16:19], s28 offen\ns_mov_b64 exec, -1" if "wopfS" not in EXP and "nowopf" not in EXP else ""
    for e in range(7):
        a(f"""v_add_u32 v4, {64*e}, v3
        v_mul_u32_u24 v5, 4682, v4
        v_lshrrev_b32 v5, 16, v5
        v_mul_u32_u24 v5, {896-224}, v5
        v_lshl_add_u32 v{200+e}, v4, 4, v5""")
    a(f"""v_mov_b32 v16, 0
    v_mov_b32 v17, 0
    v_mov_b32 v18, 0
    v_mov_b32 v19, 0
    v_add_u32 v209, {448*224}, v1
    v_bfe_u32 v7, v3, 2, 2
    v_lshl_add_u32 v5, v33, 3, v7
    v_lshlrev_b32 v5, 7, v5
    v_bfe_u32 v4, v3, 4, 1
    v_lshl_add_u32 v5, v4, 5, v5
    v_and_b32 v4, 3, v3
    v_lshl_add_u32 v5, v4, 3, v5
    v_lshrrev_b32 v7, 1, v7
    v_xor_b32 v7, s{L}, v7
    v_and_b32 v7, 1, v7
    v_lshl_add_u32 v5, v7, 6, v5
    v_add_u32 v210, {DI}, v5
    v_lshlrev_b32 v4, 4, v217
    v_lshl_add_u32 v4, v33, 4, v4
    v_add_u32 v218, {HB}, v4
    v_mul_u32_u24 v215, {4*1792}, v33
    v_lshl_add_u32 v215, v32, 2, v215
    v_add_u32 v216, {2*1792}, v215
    s_cmp_eq_u32 s{L}, 2
    s_cbranch_scc1 L_svcB2
    v_lshrrev_b32 v4, 4, v3
    v_and_b32 v5, 15, v3
    v_lshlrev_b32 v5, 2, v5
    v_lshl_add_u32 v221, v4, 9, v5
    v_lshl_add_u32 v222, v4, 5, v14
    v_and_b32 v223, 48, v3
    v_and_b32 v5, 15, v3
    v_add_u32 v6, v5, v4
    v_mul_u32_u24 v224, {4*TS}, v6
    v_add_u32 v224, 1, v224
    v_bfm_b32 v225, v5, 0
    s_mul_i32 s26, s{H}, 28
    s_add_u32 s28, s26, 27
    s_xor_b32 s26, s26, s28
    s_mov_b32 s62, 0x55555555
    s_cmp_ge_u32 s26, 64
    s_cselect_b32 s62, -1, s62
    s_mov_b32 s63, s62
    s_lshr_b32 s28, s{J}, 2
    s_lshl4_add_u32 s26, s{H}, s28
    s_lshl_b32 s26, s26, 7
    s_add_u32 s26, s26, {WS_MB}""")
    spin_lds(a, 14, C_D, PCD, 8, sleep=1)
    at = lambda r: f"v_mov_b32 v{r}, 0\nbuffer_atomic_or v{r}, v221, s[8:11], s26 offen sc0 sc1"
    a(f"""s_mov_b32 s60, {SPIN_LIMIT}
    s_mov_b32 s52, 0x11111111
    s_mov_b32 s53, 0x11111111
    s_mov_b64 s[56:57], s[52:53]
    s_mov_b64 exec, s[62:63]""")
    for i in range(PD - 1): a(at(28 + i) + f"\ns_sleep {PG}")
    a("L_kv:")
    for i in range(PD):
        a(at(28 + (i + PD - 1) % PD))
        a(f"""s_waitcnt vmcnt({PD-1})
        v_cmp_ne_u32 vcc, s{T}, v{28+i}
        s_lshr_b64 s[28:29], vcc, 1
        s_or_b64 s[28:29], s[28:29], vcc
        s_andn2_b64 s[54:55], s[56:57], s[28:29]
        s_cbranch_scc0 L_kvs{i}
        s_ff1_i32_b64 s54, s[54:55]
        s_lshl_b64 exec, 1, s54
        ds_write_b32 v14, v224 offset:{C_M}
        s_mov_b64 exec, s[62:63]
        s_mov_b64 s[56:57], 0
        L_kvs{i}:
        s_lshr_b64 s[54:55], s[28:29], 2
        s_or_b64 s[28:29], s[28:29], s[54:55]
        s_andn2_b64 s[28:29], s[52:53], s[28:29]
        s_cbranch_scc0 L_kvn{i}
        s_andn2_b64 s[52:53], s[52:53], s[28:29]
        v_lshrrev_b64 v[4:5], v223, s[28:29]
        v_and_b32 v5, v225, v4
        v_bcnt_u32_b32 v5, v5, 0
        v_lshl_add_u32 v5, v5, 2, v222
        s_mov_b64 exec, s[28:29]
        ds_write_b32 v5, v224 offset:{C_R}
        s_mov_b64 exec, s[62:63]
        v_and_b32 v4, 0xffff, v4
        v_bcnt_u32_b32 v4, v4, 0
        v_lshl_add_u32 v222, v4, 2, v222
        s_cmp_eq_u64 s[52:53], 0
        s_cbranch_scc1 L_kvdone
        L_kvn{i}:""")
    a(f"""s_sub_u32 s60, s60, 1
    s_cbranch_scc0 L_kv
    s_endpgm
    L_kvdone:
    s_mov_b64 exec, -1
    L_svcB2:""")
    srd(a, 16, 38, 448 * 896)
    a(f"""s_and_b32 s53, s{H}, 3
    s_mul_i32 s53, s53, 224
    s_and_b32 s27, s{L}, 1
    s_mul_i32 s55, s27, {7*1024}
    s_mul_i32 s57, s27, {32*896}
    s_add_u32 s57, s57, s53""")
    spin_lds(a, 14, C_A, 256, 8, sleep=4)
    st(a, 3)
    a("ds_write_b128 v209, v[16:19]")
    lds_inc(a, 14, C_W, 15)
    a(f"""    s_cmp_lg_u32 s{L}, 2
    s_cbranch_scc1 L_nofl
    s_lshl_b32 s26, s2, 7
    s_add_u32 s26, s26, {WS_FL}""")
    flag_store(a, 5, 9, "s26")
    a("L_nofl:\ns_cmp_lt_u32 s2, 196\ns_cbranch_scc1 L_st2w\ns_branch L_wo1")
    a("L_st3:")
    spin_lds(a, 14, C_S, 4, 8, sleep=1)
    for k in range(4):
        a(f"ds_read_b64_tr_b16 {vr(DW+4*k,2)}, v210 offset:{k*2048}\nds_read_b64_tr_b16 {vr(DW+4*k+2,2)}, v210 offset:{k*2048+512}")
    for k in range(4):
        a(f"ds_read_b128 {vr(GP+4*k,4)}, v218 offset:{32*k}\ns_waitcnt lgkmcnt(0)\n{MF} {vr(AC,16)}, {vr(GP+4*k,4)}, {vr(DW+4*k,4)}, {'0' if k==0 else vr(AC,16)}")
    a(f"""s_mul_i32 s26, s{FT}, 14336
    s_lshl1_add_u32 s28, s{KS}, s27
    s_lshl_b32 s29, s28, 7
    s_add_u32 s26, s26, s29
    s_add_u32 s26, s26, {WS_YP}
    s_lshl2_add_u32 s28, s{FT}, s29
    s_add_u32 s28, s28, {WS_YFL}
    buffer_store_dword v{AC}, v215, s[8:11], s26 offen sc1
    buffer_store_dword v{AC+1}, v215, s[8:11], s26 offen offset:1792 sc1
    buffer_store_dword v{AC+2}, v216, s[8:11], s26 offen sc1
    buffer_store_dword v{AC+3}, v216, s[8:11], s26 offen offset:1792 sc1
    s_waitcnt vmcnt(0)""")
    signal(a, 5, 9, "s28", 1)
    st(a, 7)
    a("L_wo1:")
    srd(a, 16, 38, 448 * 896)
    a("s_mov_b32 s27, 0")
    spin_lds(a, 14, C_Z, 64 * ZN, 8, sleep=4)
    st(a, 4)
    a(f"""L_wo:
    s_mov_b64 exec, 1
    ds_add_rtn_u32 v8, v14, v15 offset:{C_B}
    s_mov_b64 exec, -1
    s_waitcnt lgkmcnt(0)
    v_readfirstlane_b32 s26, v8
    s_cmp_ge_u32 s26, 14
    s_cbranch_scc1 L_wodone
    s_add_u32 s27, s27, 1
    s_mul_i32 s55, s26, {7*1024}
    s_mul_i32 s57, s26, {32*896}
    s_add_u32 s57, s57, s53""")
    for e in range(7):
        a(f"""s_add_u32 m0, s55, {e*1024}
        s_waitcnt vmcnt({WD})
        buffer_load_dwordx4 v{200+e}, s[16:19], s57 offen lds""")
    a(f"""s_branch L_wo
    L_wodone:
    v_mov_b32 v5, s27
    s_waitcnt vmcnt(0)""")
    lds_inc(a, 14, C_W, 5)
    st(a, 8)
    a.label("L_ofetch")
    a("s_waitcnt vmcnt(0) lgkmcnt(0)")
    st_end(a)
    a("L_exit:\nL_code_end:\ns_endpgm")

def main(out):
    hdr = open("cdna_kernels/" + NAME + ".s.ref").read().split("; Override")[0]
    rep = []
    a = Asm()
    prologue_and_loader(a); main_wave(a); service_wave(a)
    t = hdr
    t += f"; @launch grid=(256,1,1) block=(512,1,1) lds={LDS_BYTES}\n"
    t += '.amdgcn_target "amdgcn-amd-amdhsa--gfx950"\n'
    t += kernel_text(NAME + "_kernel", a.l, 256, report=rep)
    open(out, "w").write(t)
    if "-v" in sys.argv: print("\n".join(rep))

if __name__ == "__main__":
    main(sys.argv[1])
```

```python
import sys, math, struct
from asmlib import *

NAME = "gated_mix__softmax_full_mha__moe_arch_mod__prompt"
STAMP = "-s" in sys.argv
EXP = set(x[2:] for x in sys.argv if x.startswith("-x"))
WS_KV = 0
BLK = 5120; TS = 14 * BLK; KVB = 64 * TS
WS_O = 0x480000
WS_R = 0x680000
WS_G = WS_R + 16384
WS_SEL = WS_R + 32768
WS_EP = WS_R + 40960
WS_FL = WS_R + 65536
WS_MB = WS_FL + 32768
WS_OFL = WS_MB + 32768
WS_YFL = WS_OFL + 32768
WS_F1 = WS_YFL + 4096
WS_YP = WS_R + (1 << 18)
WS_GP = 0x730000
WS_ST = 16 << 20
XS = 0; WT = 65536; WQ = 122880; QX = 151552; UPD = 159744
WO = 0; CB = 102400
UPDI = UPD + 3584
KEYS = UPD
RT = UPD + 1024
CAND = UPD + 512
SELECTOR = 223
CNT = 163840 - 192
C_M = 88
LDS_BYTES = 163840
C_Q1, C_Q2, C_X, C_L, C_S, C_D, C_C, C_O, C_W, C_F, C_K, C_T, C_P, C_R = 0, 4, 8, 12, 16, 20, 24, 28, 32, 36, 40, 44, 48, 64

def f32bits(x): return struct.unpack("<I", struct.pack("<f", x))[0]
QSCALE = f32bits(28 ** -0.5 * math.log2(math.e))
NLOG2E = f32bits(-math.log2(math.e))
MF = "v_mfma_f32_32x32x16_bf16"
ROLE = [0, 1, 2, 3, 14, 4, 5, 6, 7, 8, 9, 15, 10, 11, 12, 13]
ROLE_LO = sum(ROLE[i] << (4 * i) for i in range(8))
ROLE_HI = sum(ROLE[8 + i] << (4 * i) for i in range(8))
SPIN_LIMIT = 1 << 20
NW1 = ([int(x[2:]) for x in EXP if x.startswith("nw")] + [14])[0]
WD = ([int(x[2:]) for x in EXP if x.startswith("wd")] + [14])[0]
GA = ([int(x[2:]) for x in EXP if x.startswith("ga")] + [4])[0]
GB = ([int(x[2:]) for x in EXP if x.startswith("gb")] + [12])[0]
C_A, C_B, C_Z = 92, 120, 124
ZN = ([int(x[2:]) for x in EXP if x.startswith("zn")] + [2])[0]
ZU = ([int(x[2:]) for x in EXP if x.startswith("zu")] + [1])[0]
NEARLYWO = ([int(x[2:]) for x in EXP if x.startswith("ew")] + [0])[0]
NQ1 = ([int(x[2:]) for x in EXP if x.startswith("nq")] + [4])[0]
WSBASE = ([int(x[2:]) for x in sys.argv if x.startswith("-w")] + [0])[0] << 20
PD = 2 if "pd2" in EXP else 4
PG = 6 if "pd2" in EXP else 3
PCD = 4 if "pcd4" in EXP else (0 if "pcd0" in EXP else 1)
KVS = 4 if "kvs4" in EXP else (0 if "kvs0" in EXP else 2)
PQ2 = 4 if "pq4" in EXP else (0 if "pq0" in EXP else 1)
PF0 = 2 if "pf2" in EXP else 0
WOP = 1 if "wo1" in EXP else (3 if "wo3" in EXP else 2)
OUTAUX = " sc1" if "outsc1" in EXP else (" nt" if "outnt" in EXP else "")

T, H, J, W, RL, ROT = 30, 31, 32, 33, 34, 3
_uid = [0]
def uid(p):
    _uid[0] += 1
    return f"{p}_{_uid[0]}"

def srd(a, d, ptr, nbytes):
    a(f"s_mov_b32 s{d}, s{ptr}\ns_mov_b32 s{d+1}, s{ptr+1}\ns_mov_b32 s{d+2}, {nbytes:#x}\ns_mov_b32 s{d+3}, 0x20000")

NST = 12
DIAG = [tuple(int(y) for y in x[2:].split("-")) for x in sys.argv if x.startswith("-d")]
def st(a, i):
    if STAMP: a(f"s_{'memrealtime' if 'rt' in EXP else 'memtime'} s[{72+2*i}:{73+2*i}]")
    if DIAG and i in DIAG[0]: a(f"s_memrealtime s[{72+2*i}:{73+2*i}]\ns_waitcnt lgkmcnt(0)")
def st_begin(a):
    if STAMP: a("s_memrealtime s[68:69]\ns_memtime s[72:73]" if "rt" not in EXP else "s_memrealtime s[68:69]\ns_memrealtime s[72:73]")
    if DIAG: a("s_memrealtime s[72:73]")
ABS = [x[2:] for x in sys.argv if x.startswith("-a")]
REL = [tuple(int(y) for y in x[2:].split("-")) for x in sys.argv if x.startswith("-r")]
if ABS:
    DIAG = [(0, 0 if ABS[0] == "z" else int(ABS[0].lstrip("m")))]
if REL:
    ABS = ["r"]; DIAG = REL
def diag_start(a):
    if not ABS: return
    a(f"""s_load_dwordx2 s[98:99], s[0:1], 80
    s_waitcnt lgkmcnt(0)
    s_cmp_ge_u32 s2, 8
    s_cbranch_scc1 L_dg0
    s_cmp_lg_u32 s{W}, 0
    s_cbranch_scc1 L_dg0
    s_lshl_b32 s70, s2, 2
    v_mov_b32 v4, s70
    v_mov_b32 v6, s72
    global_store_dword v4, v6, s[98:99] sc1
    L_dg0:""")
def diag_end(a):
    if not DIAG: return
    p, q = DIAG[0]
    if ABS:
        a(f"""s_waitcnt vmcnt(0)
        s_memrealtime s[96:97]
        s_mov_b64 exec, -1
        v_mov_b32 v4, 0
        global_load_dwordx4 v[8:11], v4, s[98:99] sc1
        global_load_dwordx4 v[12:15], v4, s[98:99] offset:16 sc1
        s_waitcnt vmcnt(0) lgkmcnt(0)
        v_min3_u32 v8, v8, v9, v10
        v_min3_u32 v8, v8, v11, v12
        v_min3_u32 v8, v8, v13, v14
        v_min_u32 v8, v8, v15
        s_nop 1
        v_readfirstlane_b32 s69, v8
        s_sub_u32 s70, s{72+2*q}, s69""")
        if ABS[0] == "z": a("s_mov_b32 s70, 0")
        if REL: a(f"s_sub_u32 s70, s{72+2*q}, s{72+2*p}\ns_lshl_b32 s70, s70, {0 if 'k1' in EXP else 2}")
        for x in EXP:
            if x.startswith("hm"): a(f"s_mov_b32 s71, 0x{x[2:]}\ns_bitcmp1_b32 s71, s{H}\ns_cselect_b32 s70, s70, 0")
            if x.startswith("jm"): a(f"s_mov_b32 s71, 0x{x[2:]}\ns_bitcmp1_b32 s71, s{J}\ns_cselect_b32 s70, s70, 0")
        if "onlynw" in EXP: a("s_cmp_ge_u32 s2, 196\ns_cselect_b32 s70, s70, 0")
        if "only23" in EXP: a(f"s_cmp_ge_u32 s{W}, 2\ns_cselect_b32 s70, s70, 0")
        if ABS[0].startswith("m"): a("s_sub_u32 s70, 2500, s70")
        a("s_add_u32 s70, s70, s69\ns_add_u32 s70, s70, 2500")
    else:
        a(f"""s_waitcnt vmcnt(0)
        s_memrealtime s[96:97]
        s_waitcnt lgkmcnt(0)
        s_sub_u32 s70, s{72+2*q}, s{72+2*p}
        s_add_u32 s70, s70, s96""")
    a(f"""L_diag:
    s_memrealtime s[68:69]
    s_waitcnt lgkmcnt(0)
    s_sub_u32 s71, s68, s70
    s_cmp_lt_i32 s71, 0
    s_cbranch_scc1 L_diag""")
def st_init(a):
    if STAMP:
        for i in range(1, NST): a(f"s_mov_b32 s{72+2*i}, s72")
def st_end(a):
    if not STAMP: return
    a(f"""s_waitcnt vmcnt(0)
    s_memrealtime s[70:71]
    s_{'memrealtime' if 'rt' in EXP else 'memtime'} s[{72+2*NST}:{73+2*NST}]
    s_getreg_b32 s66, hwreg(HW_REG_HW_ID)
    s_getreg_b32 s67, hwreg(HW_REG_XCC_ID)
    s_mov_b64 exec, -1
    s_lshl_b32 s65, s2, 3
    s_add_u32 s65, s65, s{W}
    s_lshl_b32 s65, s65, 6
    s_add_u32 s65, s65, {WS_ST}
    s_waitcnt lgkmcnt(0)
    v_mov_b32 v4, s68
    v_mov_b32 v5, s70
    v_mov_b32 v6, s66
    v_mov_b32 v7, s67""")
    for i in range(1, NST + 1):
        a(f"s_sub_u32 s64, s{72+2*i}, s72\nv_mov_b32 v{7+i}, s64")
    a("v_mov_b32 v2, 0\ns_mov_b64 exec, 1")
    for k in range(4):
        a(f"buffer_store_dwordx4 v[{4+4*k}:{7+4*k}], v2, s[8:11], s65 offen offset:{16*k}")

def poll_global(a, vdst, voff, soff, mask=None, sleep=1):
    l = uid("Lpoll"); d = uid("Lpd")
    a(f"s_mov_b32 s60, {SPIN_LIMIT}")
    if mask is not None: a(f"s_mov_b64 exec, {mask}")
    a(f"""{l}:
    buffer_load_dword v{vdst}, v{voff}, s[8:11], {soff} offen sc1
    s_waitcnt vmcnt(0)
    v_cmp_ne_u32 vcc, s{T}, v{vdst}
    s_cbranch_vccz {d}
    s_mov_b64 exec, vcc
    s_sleep {sleep}
    s_sub_u32 s60, s60, 1
    s_cbranch_scc0 {l}
    s_endpgm
    {d}:
    s_mov_b64 exec, -1""")

def poll_atomic(a, vdst, voff, soff, mask, sleep):
    l = uid("Lpa"); d = uid("Lpad")
    a(f"""s_mov_b32 s60, {SPIN_LIMIT}
    s_mov_b64 exec, {mask}
    {l}:
    v_mov_b32 v{vdst}, 0
    buffer_atomic_or v{vdst}, v{voff}, s[8:11], {soff} offen sc0 sc1
    s_waitcnt vmcnt(0)
    v_cmp_ne_u32 vcc, s{T}, v{vdst}
    s_cbranch_vccz {d}
    s_sleep {sleep}
    s_sub_u32 s60, s60, 1
    s_cbranch_scc0 {l}
    s_endpgm
    {d}:
    s_mov_b64 exec, -1""")

def poll_pipe(a, v0, voff, soff, mask, D=4, gap=3):
    l = uid("Lpp"); d = uid("Lppd")
    at = lambda r: f"v_mov_b32 v{r}, 0\nbuffer_atomic_or v{r}, v{voff}, s[8:11], {soff} offen sc0 sc1"
    a(f"s_mov_b32 s60, {SPIN_LIMIT}\ns_mov_b64 exec, {mask}")
    for i in range(D - 1): a(at(v0 + i) + f"\ns_sleep {gap}")
    a(f"{l}:")
    for i in range(D):
        a(at(v0 + (i + D - 1) % D))
        a(f"s_waitcnt vmcnt({D-1})\nv_cmp_ne_u32 vcc, s{T}, v{v0+i}\ns_cbranch_vccz {d}")
    a(f"""s_sub_u32 s60, s60, 1
    s_cbranch_scc0 {l}
    s_endpgm
    {d}:
    s_mov_b64 exec, -1""")

def signal(a, vt, voff, soff, mask):
    a(f"v_mov_b32 v{vt}, s{T}\ns_mov_b64 exec, {mask}\nbuffer_atomic_swap v{vt}, v{voff}, s[8:11], {soff} offen sc1\ns_mov_b64 exec, -1")

def spin_lds(a, vaddr, off, want, vt, sleep=0):
    l = uid("Lsp"); d = uid("Lsd")
    if not sleep:
        a(f"""s_mov_b32 s60, {SPIN_LIMIT}
        {l}:
        ds_read_b32 v{vt}, v{vaddr} offset:{off}
        s_sub_u32 s60, s60, 1
        s_cbranch_scc1 L_exit
        s_waitcnt lgkmcnt(0)
        v_readfirstlane_b32 s61, v{vt}
        s_cmp_ge_u32 s61, {want}
        s_cbranch_scc0 {l}""")
        return
    a(f"""s_mov_b32 s60, {SPIN_LIMIT}
    {l}:
    ds_read_b32 v{vt}, v{vaddr} offset:{off}
    s_waitcnt lgkmcnt(0)
    v_readfirstlane_b32 s61, v{vt}
    s_cmp_ge_u32 s61, {want}
    s_cbranch_scc1 {d}""")
    if sleep: a(f"s_sleep {sleep}")
    a(f"""s_sub_u32 s60, s60, 1
    s_cbranch_scc0 {l}
    s_endpgm
    {d}:""")

def lds_inc(a, vaddr, off, vone):
    a(f"s_mov_b64 exec, 1\nds_add_u32 v{vaddr}, v{vone} offset:{off}\ns_mov_b64 exec, -1")

def flag_store(a, vt, vz, soff):
    a(f"v_mov_b32 v{vt}, s{T}\ns_mov_b64 exec, 1\nbuffer_store_dword v{vt}, v{vz}, s[8:11], {soff} offen sc1\ns_mov_b64 exec, -1")

def split_neg_max(a, m, t0, t1, q6, q7):
    a(f"""v_sub_f32 v{m}, 0, v{m}
    v_cvt_pk_bf16_f32 v{t0}, v{m}, v{m}
    v_lshlrev_b32 v{t0}, 16, v{t0}
    v_sub_f32 v{t0}, v{m}, v{t0}
    v_cvt_pk_bf16_f32 v{t1}, v{m}, v{t0}
    v_and_b32 v{m}, 0xffff0000, v{t1}
    v_sub_f32 v{t0}, v{t0}, v{m}
    s_mov_b32 exec_lo, 0
    v_mov_b32 v{q6}, v{t1}
    v_cvt_pk_bf16_f32 v{q7}, v{t0}, 0
    s_mov_b32 exec_lo, -1""")

def max16_list(dst, S, init=False):
    if not init:
        return ([f"v_max3_f32 v{dst}, v{S}, v{S+1}, v{S+2}"] +
                [f"v_max3_f32 v{dst}, v{dst}, v{S+i}, v{S+i+1}" for i in range(3, 15, 2)] +
                [f"v_max_f32 v{dst}, v{dst}, v{S+15}"])
    return [f"v_max3_f32 v{dst}, v{dst}, v{S+i}, v{S+i+1}" for i in range(0, 16, 2)]

def wave_min_u32(a, v, full=True):
    for r in (1, 2, 4, 8):
        a(f"v_min_u32_dpp v{v}, v{v}, v{v} row_ror:{r} row_mask:0xf bank_mask:0xf")
    a(f"v_min_u32_dpp v{v}, v{v}, v{v} row_bcast:15 row_mask:0xa bank_mask:0xf")
    if full: a(f"v_min_u32_dpp v{v}, v{v}, v{v} row_bcast:31 row_mask:0xc bank_mask:0xf")

def rank_count(a, own, base, n, dst, t):
    a(f"v_mov_b32 v{dst}, 0\nv_mov_b32 v{t}, 0")
    for k in range(0, n, 4):
        a(f"s_waitcnt lgkmcnt({(n-k)//4-1})")
        for e in range(4): a(f"v_sub_u32 v{base+k+e}, v{own}, v{base+k+e}")
        for e in range(4):
            r = (dst, t)[e & 1]
            a(f"v_alignbit_b32 v{r}, v{r}, v{base+k+e}, 31")
    a(f"v_bcnt_u32_b32 v{dst}, v{dst}, 0\nv_bcnt_u32_b32 v{dst}, v{t}, v{dst}")

def tag(a):
    a(f"s_mul_i32 s{T}, s{T}, 0x9e3779b1\ns_add_u32 s{T}, s{T}, 0x7f4a7c15")

def next_chunk(a, s):
    a(f"s_add_u32 s{s}, s{s}, 1\ns_cmp_eq_u32 s{s}, 7\ns_cselect_b32 s{s}, 0, s{s}")

Q, O, KV, S, P = 8, 40, 104, 168, 200
XF = 104; A0, A1, WF = 40, 56, 72
VX = 216; VW = 220; VQ = 222; VC = 223; V1 = 224; VZ = 225; VT = 226; VH = 227
VA = 228; TMP = 232; XR = 240; GR = 248; VWQ = 250; VF = 251; VFS = 252; VXO = 253; VGO = 254
OWN = 3
L = 35

def prologue_and_loader(a):
    MAPCODE = ""
    if "map2" in EXP:
        MAPCODE = f"s_and_b32 s26, s25, 1\ns_lshl1_add_u32 s{H}, s24, s26\ns_lshr_b32 s{J}, s25, 1\ns_lshl1_add_u32 s{ROT}, s26, s{J}\ns_add_u32 s{ROT}, s{ROT}, s24\ns_and_b32 s{ROT}, s{ROT}, 3\ns_lshl_b32 s{ROT}, s{ROT}, 1"
        if "norot" in EXP: MAPCODE += f"\ns_mov_b32 s{ROT}, 0"
    TADDR = "v_lshl_add_u32 v8, v3, 7, s58"
    if "tfull" in EXP: TADDR = "s_add_u32 s58, s58, 2048\nv_add_u32 v8, s58, v1"
    elif "t32" in EXP: TADDR = "v_and_b32 v8, 62, v3\nv_mul_u32_u24 v8, 48, v8\nv_add3_u32 v8, v8, v1, s58"
    else: TADDR = "v_and_b32 v8, 60, v3\nv_lshl_add_u32 v8, v8, 4, s58\nv_add_u32 v8, v8, v1"
    if "rot7" in EXP:
        ROTCODE = f"s_lshl1_add_u32 s{ROT}, s27, s26\ns_cmp_ge_u32 s{ROT}, 7\ns_cselect_b32 s26, 7, 0\ns_sub_u32 s{ROT}, s{ROT}, s26"
    elif "rot2" not in EXP and "norot" not in EXP and "rot23" not in EXP:
        ROTCODE = f"s_add_u32 s{ROT}, s27, s26\ns_and_b32 s{ROT}, s{ROT}, 3\ns_lshl_b32 s{ROT}, s{ROT}, 1"
    elif "norot" in EXP:
        ROTCODE = f"s_mov_b32 s{ROT}, 0"
    elif "rot23" in EXP:
        ROTCODE = f"s_add_u32 s{ROT}, s27, s26\ns_and_b32 s{ROT}, s{ROT}, 1\ns_mul_i32 s{ROT}, s{ROT}, 3"
    else:
        ROTCODE = f"s_add_u32 s{ROT}, s27, s26\ns_and_b32 s{ROT}, s{ROT}, 1\ns_lshl_b32 s{ROT}, s{ROT}, 2"
    st_begin(a)
    a(f"""s_load_dwordx4 s[4:7], s[0:1], 0
    s_load_dwordx2 s[36:37], s[0:1], 88
    s_load_dwordx2 s[38:39], s[0:1], 16
    s_load_dwordx8 s[40:47], s[0:1], 32
    s_load_dwordx4 s[48:51], s[0:1], 64
    s_cmp_ge_u32 s2, 256
    s_cbranch_scc1 L_exit
    v_lshrrev_b32 v2, 6, v0
    v_and_b32 v3, 63, v0
    s_and_b32 s24, s2, 7
    s_lshr_b32 s25, s2, 3
    v_readfirstlane_b32 s{W}, v2
    s_and_b32 s{H}, s24, 1
    s_lshl_b32 s{H}, s{H}, 3
    s_and_b32 s26, s25, 7
    s_add_u32 s{H}, s{H}, s26
    s_lshr_b32 s27, s25, 3
    s_and_b32 s{J}, s24, 6
    s_lshl1_add_u32 s{J}, s{J}, s27
    {ROTCODE}
    {MAPCODE}
    s_mov_b32 s28, {ROLE_LO:#x}
    s_mov_b32 s29, {ROLE_HI:#x}
    s_lshl_b32 s27, s{H}, 2
    s_lshr_b64 s[28:29], s[28:29], s27
    s_and_b32 s{RL}, s28, 15
    v_lshlrev_b32 v1, 4, v3
    s_mov_b32 s27, {WS_EP}
    s_cmp_lt_u32 s{W}, 4
    s_cbranch_scc1 L_main
    """)
    a(f"""s_setprio 2
    s_sub_u32 s{L}, s{W}, 4
    v_lshrrev_b32 v4, 3, v3
    v_mul_u32_u24 v5, 896, v4
    v_and_b32 v6, 7, v3
    v_lshrrev_b32 v7, 4, v3
    v_xor_b32 v7, v6, v7
    v_lshl_add_u32 v10, v7, 4, v5
    v_xor_b32 v11, 64, v10
    v_add_u32 v12, {2*6144}, v10
    v_add_u32 v13, {3*6144}, v11
    v_add_u32 v11, 6144, v11
    v_mul_u32_u24 v5, 2688, v4
    v_and_b32 v4, 2, v4
    v_lshlrev_b32 v4, 1, v4
    v_xor_b32 v4, v4, v6
    v_lshl_add_u32 v14, v4, 4, v5
    v_add_u32 v15, {8*2688-1024}, v14
    s_lshl2_add_u32 s52, s{J}, s{L}
    s_mul_i32 s58, s52, 14
    s_add_u32 s58, s58, s{RL}
    s_mul_i32 s58, s58, {BLK}
    {TADDR}
    s_mul_i32 s52, s52, {32*896}
    s_lshl_b32 s53, s{RL}, 7
    s_mul_i32 s26, s{L}, {16*2688}
    s_add_u32 s53, s53, s26
    s_add_u32 s53, s53, 896
    s_lshl_b32 s54, s{L}, 12
    s_lshl_b32 s55, s{L}, 11
    s_add_u32 s55, s55, {WT}
    s_mov_b32 s56, s{ROT}
    s_mov_b32 s57, 0
    s_mov_b32 s14, {2048*896}
    s_mov_b32 s15, 0x20000
    s_cmp_ge_u32 s{RL}, 14
    s_cselect_b32 s18, 0, {448*2688}
    s_mov_b32 s19, 0x20000
    s_waitcnt lgkmcnt(0)
    s_mov_b64 s[12:13], s[4:5]
    s_mov_b64 s[16:17], s[6:7]
    s_load_dword s{T}, s[36:37], s27""")
    st_init(a); st(a, 1)
    TPOS = ([int(x[2:]) for x in EXP if x.startswith("tp")] + [4])[0]
    TOUCH = "global_store_dwordx4 v8, v[10:13], s[36:37] sc1\nglobal_store_dwordx4 v8, v[10:13], s[36:37] offset:2048 sc1"
    if "tfull" in EXP:
        TOUCH = "\n".join(f"global_store_dwordx4 v8, v[10:13], s[36:37] offset:{1024*k-2048} sc1" for k in range(5))
    if "t32" in EXP: TOUCH = "global_store_dwordx4 v8, v[10:13], s[36:37] sc1"
    if "notouch" in EXP: TOUCH = ""
    a("s_cbranch_scc1 L_tbl")
    if TPOS == 0: a(TOUCH)
    a(f"""L_ld:
    s_mul_i32 s26, s56, {64*2688}
    s_mov_b32 m0, s55
    s_add_u32 s26, s26, s53
    s_lshl_b32 s28, s56, 7
    buffer_load_dwordx4 v14, s[16:19], s26 offen lds
    buffer_load_dwordx4 v15, s[16:19], s26 offen offset:1024 lds
    s_mov_b32 m0, s54
    s_add_u32 s28, s28, s52
    buffer_load_dwordx4 v10, s[12:15], s28 offen lds
    buffer_load_dwordx4 v11, s[12:15], s28 offen offset:1024 lds
    buffer_load_dwordx4 v12, s[12:15], s28 offen offset:2048 lds
    buffer_load_dwordx4 v13, s[12:15], s28 offen offset:3072 lds
    s_add_u32 s55, s55, 8192
    s_add_u32 s54, s54, 16384
    s_and_b32 s54, s54, 0xffff""")
    next_chunk(a, 56)
    if "tlb" in EXP:
        a(f"s_or_b32 s26, s57, s{L}\ns_cbranch_scc0 L_tlb\nL_tlb_done:")
    if "tsplit" in EXP:
        a(f"s_sub_u32 s26, s57, {TPOS-1}\ns_cmp_ge_u32 s26, 2\ns_cbranch_scc1 L_nt\ns_cmp_eq_u32 s18, 0\ns_cbranch_scc1 L_nt\nglobal_store_dwordx4 v8, v[10:13], s[36:37] sc1\nv_add_u32 v8, 2048, v8\nL_nt:")
    elif TPOS:
        a(f"s_cmp_lg_u32 s57, {TPOS-1}\ns_cbranch_scc1 L_nt")
        if "nombt" not in EXP:
            a(f"""s_lshl2_add_u32 s26, s{H}, s{L}
            s_lshr_b32 s28, s{J}, 2
            s_lshl2_add_u32 s26, s26, s28
            s_lshl_b32 s26, s26, 7
            s_add_u32 s26, s26, {WS_MB}
            v_mov_b32 v4, s26
            v_mov_b32 v5, 0
            s_mov_b64 exec, 1
            global_atomic_or v4, v5, s[36:37] sc1
            s_mov_b64 exec, -1""")
        a(f"s_cmp_eq_u32 s18, 0\ns_cbranch_scc1 L_nt\n{TOUCH}\nL_nt:")
    a(f"""s_add_u32 s57, s57, 1
    s_cmp_lt_u32 s57, 3
    s_cbranch_scc1 L_ld
    s_waitcnt vmcnt(12)
    s_barrier
    s_cmp_lt_u32 s57, 7
    s_cbranch_scc1 L_ld
    """)
    a(f"""v_lshrrev_b32 v4, 2, v3
    v_mul_u32_u24 v4, 2688, v4
    v_and_b32 v5, 3, v3
    v_lshl_add_u32 v16, v5, 4, v4
    s_mov_b32 s18, {448*2688}
    s_mul_i32 s53, s{H}, 56
    s_and_b32 s53, s53, 0xfffffff0
    s_mul_i32 s26, s{L}, {16*2688}
    s_add_u32 s53, s53, s26
    s_lshl_b32 s55, s{L}, 10
    s_add_u32 s55, s55, {WQ}""")
    for i in range(NQ1):
        a(f"""s_mul_i32 s26, s56, {64*2688}
        s_add_u32 m0, s55, {i*4096}
        s_add_u32 s26, s26, s53
        buffer_load_dwordx4 v16, s[16:19], s26 offen lds""")
        if i < NQ1 - 1: next_chunk(a, 56)
        if i == 1: a("s_waitcnt vmcnt(8)\ns_barrier")
        if i == 3: a("s_waitcnt vmcnt(4)\ns_barrier")
    st(a, 2)
    a("s_branch L_service")
    a(f"""L_tbl:
    s_bitcmp1_b32 s{L}, 0
    s_cselect_b64 s[20:21], s[48:49], s[40:41]
    s_cselect_b32 s26, 1024, 0
    s_movk_i32 s22, 896
    s_mov_b32 s23, 0x20000
    s_add_u32 m0, s26, {RT}
    s_lshl_b32 s28, s{ROT}, 7
    v_add_u32 v4, s28, v1
    v_subrev_u32 v6, 896, v4
    v_min_u32 v4, v4, v6
    buffer_load_dwordx4 v4, s[20:23], 0 offen lds
    s_branch L_ld""")
    if "tlb" in EXP:
        a("L_tlb:")
        if "tlbR" in EXP: a(f"s_cmp_lt_u32 s{RL}, 14\ns_cbranch_scc1 L_tlb_done")
        for off in (0, 2 << 20, 4 << 20):
            a(f"s_mov_b32 s26, {off + 4032}\ns_load_dword s66, s[36:37], s26")
        for p in (42, 44, 38, 46, 50):
            a(f"s_load_dword s66, s[{p}:{p+1}], 0")
        a("s_branch L_tlb_done")

def main_wave(a):
    a.label("L_main")
    if "twait" in EXP: st(a, 11)
    if "nocodepf" not in EXP:
        a(f"""s_cmp_lg_u32 s{W}, 0
        s_cbranch_scc1 L_nopf
        s_getpc_b64 s[28:29]
        L_pc:
        s_and_b32 s26, s25, 3
        s_lshl_b32 s26, s26, 13
        v_lshl_add_u32 v4, v3, 7, s26
        v_min_u32 v4, L_code_end-L_pc, v4
        global_load_dword v255, v4, s[28:29]
        L_nopf:""")
    a(f"""s_setprio 1
    v_and_b32 v{VT}, 31, v3
    v_lshrrev_b32 v{VH}, 5, v3
    v_mov_b32 v{V1}, 1
    v_mov_b32 v{VZ}, 0
    v_mov_b32 v{VC}, {CNT}
    v_lshrrev_b32 v4, 2, v1
    v_add_u32 v4, {UPDI}, v4
    v_mov_b32 v6, -1
    s_mov_b32 exec_hi, 0
    ds_write_b32 v4, v6
    v_and_b32 v6, 7, v3
    v_cmp_eq_u32 vcc, 4, v6
    v_mov_b32 v7, {KVB+1}
    v_cndmask_b32 v6, 0, v7, vcc
    ds_write_b32 v4, v6 offset:{CNT-UPDI+C_R}
    s_mov_b32 exec_lo, 0xffff
    ds_write_b32 v4, v{VZ} offset:{CNT-UPDI}
    s_mov_b64 exec, -1
    v_lshrrev_b32 v4, 1, v{VT}
    v_and_b32 v4, 7, v4
    v_xor_b32 v4, v4, v{VH}
    v_lshlrev_b32 v4, 4, v4
    v_lshl_add_u32 v4, v{VT}, 7, v4
    s_lshl_b32 s26, s{W}, 12
    v_add_u32 v{VX}, s26, v4
    v_xor_b32 v{VX+1}, 32, v{VX}
    v_xor_b32 v{VX+2}, 64, v{VX}
    v_xor_b32 v{VX+3}, 96, v{VX}
    v_bfe_u32 v4, v3, 2, 2
    v_lshl_add_u32 v12, v{VH}, 3, v4
    v_and_b32 v6, 3, v3
    v_and_b32 v7, 1, v3
    v_bfe_u32 v8, v3, 1, 1
    v_lshl_add_u32 v7, v7, 1, v8
    v_bfe_u32 v8, v3, 4, 1
    v_lshl_add_u32 v9, v8, 2, v7
    v_lshl_add_u32 v10, v8, 2, v6
    s_cmp_lt_u32 s{RL}, 7
    s_cselect_b64 vcc, -1, 0
    v_cndmask_b32 v10, v10, v9, vcc
    v_lshlrev_b32 v11, 7, v12
    v_lshl_add_u32 v11, v10, 3, v11
    v_lshrrev_b32 v4, 1, v4
    v_lshl_add_u32 v11, v4, 6, v11
    v_add_u32 v{VW}, {WT}, v11
    v_xor_b32 v{VW+1}, 64, v{VW}
    v_add_u32 v10, 2, v9
    v_sub_u32 v11, 7, v9
    v_cmp_gt_u32 vcc, 6, v9
    v_cndmask_b32 v10, v11, v10, vcc
    s_bitcmp1_b32 s{H}, 0
    s_cselect_b64 vcc, -1, 0
    v_cndmask_b32 v10, v9, v10, vcc
    v_lshlrev_b32 v11, 6, v12
    v_lshl_add_u32 v11, v10, 3, v11
    v_add_u32 v{VQ}, {WQ}, v11
    v_lshrrev_b32 v4, 2, v3
    v_mul_u32_u24 v4, 2688, v4
    v_lshl_add_u32 v{VWQ}, v6, 4, v4
    s_cmp_ge_u32 s{RL}, 7
    s_cselect_b32 s26, 7, 0
    s_cselect_b32 s29, 2, 0
    s_sub_u32 s26, s{RL}, s26
    s_mul_i32 s28, s26, {64*2341}
    s_lshr_b32 s28, s28, 16
    v_add_u32 v4, s28, v6
    v_mul_u32_u24 v7, 28, v4
    v_lshrrev_b32 v7, 6, v7
    v_cmp_ge_u32 s[64:65], s26, v7
    v_cmp_ne_u32 vcc, s26, v7
    s_and_b32 s28, s{J}, 12
    s_add_u32 s29, s28, s29
    v_mov_b32 v7, s29
    v_addc_co_u32 v7, vcc, 0, v7, vcc
    s_and_b32 s28, s{J}, 3
    v_lshl_add_u32 v4, v4, 2, s28
    v_bfe_u32 v8, v3, 2, 2
    v_lshl_add_u32 v4, v4, 2, v8
    v_lshlrev_b32 v4, 7, v4
    v_lshl_add_u32 v{VFS}, v7, 2, v4
    s_and_b32 s64, s64, 0xffff
    s_cmp_ge_u32 s{RL}, 14
    s_cselect_b32 s64, 0, s64
    s_mov_b32 s65, 0
    s_lshl_b32 s28, s{W}, 5
    v_add_u32 v{VF}, s28, v{VC}
    s_lshl_b32 s28, s{J}, 2
    ; output tile: qb3 = 4j + (h>>2) ; byte col = (4*(h&3) + w)*56
    s_lshr_b32 s58, s{H}, 2
    s_add_u32 s58, s58, s28
    s_and_b32 s59, s{H}, 3
    s_lshl2_add_u32 s59, s59, s{W}
    s_mul_i32 s59, s59, 56
    s_lshl_b32 s28, s58, 5
    v_add_u32 v4, s28, v{VT}
    v_mul_u32_u24 v{VXO}, 896, v4
    v_lshl_add_u32 v{VXO}, v{VH}, 4, v{VXO}
    v_lshlrev_b32 v{VGO}, 3, v4
    s_waitcnt lgkmcnt(0)
    """)
    st_init(a)
    srd(a, 8, 36, (1 << 28) - WSBASE)
    srd(a, 16, 6, 448 * 2688)
    srd(a, 12, 4, 2048 * 896)
    if "wqpf" in EXP:
        a(f"""s_cmp_lg_u32 s{W}, 1
        s_cbranch_scc1 L_nopf2
        v_lshrrev_b32 v4, 2, v3
        v_min_u32 v4, 13, v4
        v_mul_u32_u24 v4, 2688, v4
        v_and_b32 v6, 3, v3
        v_lshl_add_u32 v4, v6, 7, v4
        s_mul_i32 s26, s25, {14*2688}
        s_and_b32 s28, s24, 1
        s_mul_i32 s28, s28, 384
        s_add_u32 s26, s26, s28
        buffer_load_dword v5, v4, s[16:19], s26 offen
        L_nopf2:""")
    if "wopfS" in EXP:
        srd(a, 20, 38, 448 * 896)
        a(f"""s_cmp_lg_u32 s{W}, 2
        s_cbranch_scc1 L_nopf3
        s_mul_i32 s26, s2, {13*128}
        v_lshl_add_u32 v4, v3, 7, s26
        s_mov_b64 exec, 0x1fff
        buffer_load_dword v5, v4, s[20:23], 0 offen
        s_mov_b64 exec, -1
        L_nopf3:""")
    a(f"""s_mul_i32 s62, s{H}, 56
    s_and_b32 s62, s62, 0xfffffff0
    s_mul_i32 s26, s{W}, {16*2688}
    s_add_u32 s62, s62, s26
    s_lshl_b32 s63, s{W}, 10
    s_add_u32 s63, s63, {WQ}
    s_lshl2_add_u32 s35, s{J}, s{W}
    s_mul_i32 s52, s35, 14
    s_add_u32 s52, s52, s{RL}
    s_mul_i32 s52, s52, {BLK}
    s_add_u32 s53, s52, 4096
    s_lshr_b32 s26, s{H}, 1
    s_mul_i32 s26, s26, 7
    s_and_b32 s28, s{H}, 1
    s_lshl2_add_u32 s29, s28, s26
    v_add_u32 v4, s29, v{VH}
    v_lshrrev_b32 v6, 3, v4
    v_mul_u32_u24 v6, {BLK-4096}, v6
    v_lshl_add_u32 v6, v4, 9, v6
    v_lshl_add_u32 v{VA}, v{VT}, 4, v6
    v_add_u32 v4, 2, v4
    v_lshrrev_b32 v6, 3, v4
    v_mul_u32_u24 v6, {BLK-4096}, v6
    v_lshl_add_u32 v6, v4, 9, v6
    s_add_u32 s26, s26, 3
    s_lshr_b32 s29, s26, 3
    s_mul_i32 s29, s29, {BLK}
    s_and_b32 s26, s26, 1
    s_lshl_b32 s26, s26, 9
    s_add_u32 s29, s29, s26
    s_add_u32 s29, s29, 4096
    v_mov_b32 v7, s29
    v_and_b32 v4, s28, v{VH}
    v_cmp_eq_u32 vcc, 1, v4
    v_cndmask_b32 v6, v6, v7, vcc
    v_lshl_add_u32 v{VA+1}, v{VT}, 4, v6
    s_mul_i32 s26, s{H}, 28
    v_add_u32 v4, s26, v{VT}
    v_lshrrev_b32 v6, 6, v4
    v_mul_u32_u24 v6, {BLK}, v6
    v_bfe_u32 v7, v4, 5, 1
    v_lshl_add_u32 v6, v7, 11, v6
    v_and_b32 v4, 31, v4
    v_lshl_add_u32 v6, v4, 4, v6
    v_lshl_add_u32 v6, v{VH}, 9, v6
    v_add_u32 v6, {7*BLK}, v6
    v_add_u32 v8, 1024, v6
    s_lshr_b32 s26, s26, 6
    s_mul_i32 s26, s26, {BLK}
    s_add_u32 s26, s26, {7*BLK + 4096 - 28*16}
    v_lshl_add_u32 v7, v{VT}, 4, s26
    v_cmp_le_u32 vcc, 28, v{VT}
    v_cndmask_b32 v{VA+2}, v6, v7, vcc
    v_cndmask_b32 v{VA+3}, v8, v7, vcc
    s_cmp_ge_u32 s{RL}, 14
    s_cbranch_scc1 L_roleR
    s_cmp_ge_u32 s{RL}, 7
    s_cbranch_scc1 L_roleV""")

    def gemm(kind):
        if "twait" in EXP:
            st(a, 10)
        def reads(c, s):
            k = 4 * c + s
            a(f"ds_read_b128 {vr(XF+4*k,4)}, v{VX+s} offset:{(c&3)*16384}")
            f = WF + 8 * s
            if kind == "R":
                a(f"ds_read_b128 {vr(f,4)}, v{VW} offset:{k*32}")
            else:
                for n in range(2):
                    a(f"ds_read_b64_tr_b16 {vr(f+4*n,2)}, v{VW+n} offset:{k*2048}")
                    a(f"ds_read_b64_tr_b16 {vr(f+4*n+2,2)}, v{VW+n} offset:{k*2048+512}")
        def mfmas(c, s, ns=None):
            k = 4 * c + s
            f = WF + 8 * s
            for n in (ns or range(1 if kind == "R" else 2)):
                acc = (A0, A1)[n]
                cc = "0" if k == 0 else vr(acc, 16)
                if kind == "V": a(f"{MF} {vr(acc,16)}, {vr(XF+4*k,4)}, {vr(f+4*n,4)}, {cc}")
                else:           a(f"{MF} {vr(acc,16)}, {vr(f+4*n,4)}, {vr(XF+4*k,4)}, {cc}")
        per = 2 if kind == "R" else 5
        for c in range(7):
            a("s_barrier")
            if c == 0: st(a, 1)
            if c == 6: st(a, 2)
            if STAMP and c in (0, 6): a("s_waitcnt lgkmcnt(0)")
            reads(c, 0); reads(c, 1)
            for s in range(4):
                if s < 2: reads(c, s + 2)
                a(f"s_waitcnt lgkmcnt({min(3 - s, 2) * per})")
                if c == 6 and kind != "R" and s >= 2: mfmas(c, s, (0,))
                else: mfmas(c, s)
            if c == 6 and kind != "R":
                mfmas(c, 2, (1,)); mfmas(c, 3, (1,))

    PK = 8
    MS = 20
    a(f"""v_add_u32 v4, s{RL}, v{VH}""")
    for i in range(4):
        a(f"""v_cmp_eq_u32 vcc, {3-2*i}, v4
        v_cmp_eq_u32 s[{MS+2*i}:{MS+1+2*i}], {10-2*i}, v4
        s_or_b64 s[{MS+2*i}:{MS+1+2*i}], s[{MS+2*i}:{MS+1+2*i}], vcc""")
    for e in range(4): a(f"v_mov_b32 v{TMP+e}, 0x3f803f80")
    a(f"""s_or_b64 s[28:29], s[{MS}:{MS+1}], s[{MS+2}:{MS+3}]
    s_or_b64 s[54:55], s[{MS+4}:{MS+5}], s[{MS+6}:{MS+7}]
    s_or_b64 s[54:55], s[54:55], s[28:29]
    s_mov_b64 exec, 0
    s_branch L_epi
    L_backK:
    s_mov_b64 exec, -1""")
    gemm("K")
    a("s_branch L_epi")
    a.label("L_roleR")
    if "pfx" in EXP:
        C0 = 1 if "pf1" in EXP else 2
        a(f"""v_mul_u32_u24 v4, 896, v{VT}
        v_lshl_add_u32 v4, v{VH}, 7, v4
        s_mul_i32 s26, s35, {32*896}
        v_lshrrev_b32 v6, 3, v{VT}
        v_mul_u32_u24 v6, 2688, v6
        v_and_b32 v7, 7, v3
        v_min_u32 v7, 6, v7
        v_lshl_add_u32 v6, v7, 7, v6
        v_mul_u32_u24 v7, {64*2688}, v{VH}
        v_add_u32 v6, v6, v7
        s_and_b32 s28, s35, 15
        s_mul_i32 s28, s28, {4*2688}
        s_and_b32 s29, s24, 1
        s_mul_i32 s29, s29, 896
        s_add_u32 s28, s28, s29
        s_add_u32 s28, s28, {896 + C0*64*2688}""")
        for c in range(C0, 7, 2):
            if c == 6: a("s_mov_b32 exec_hi, 0")
            a(f"""buffer_load_dword v5, v4, s[12:15], s26 offen offset:{128*c}
            buffer_load_dword v5, v6, s[16:19], s28 offen
            s_add_u32 s28, s28, {128*2688}""")
        a("s_mov_b64 exec, -1")
    a(f"""v_and_b32 v4, 1, v3
    v_lshlrev_b32 v4, 10, v4
    v_lshl_add_u32 v4, v{VH}, 4, v4
    v_add_u32 v{VW}, {RT}, v4
    s_lshl_b32 s26, s{W}, 7
    s_add_u32 s26, s26, {KEYS}
    v_lshl_add_u32 v12, v{VT}, 2, s26
    v_lshl_add_u32 v13, v{VH}, 6, s26""")
    gemm("R")
    a(f"""s_cmp_lg_u32 s{RL}, 14
    s_cbranch_scc1 L_pub
    s_mov_b32 exec_hi, 0
    s_nop 9
    v_cvt_pk_bf16_f32 v4, v{A0}, v{A0+1}
    v_and_b32 v5, 0xffff0000, v4
    v_lshlrev_b32 v4, 16, v4
    v_ashrrev_i32 v6, 31, v4
    v_or_b32 v6, 0x80000000, v6
    v_xor_b32 v6, v6, v4
    v_lshrrev_b32 v6, 16, v6
    v_lshlrev_b32 v6, 11, v6
    v_cmp_u_f32 vcc, v4, v4
    v_cndmask_b32 v6, v6, 0, vcc
    s_lshl_b32 s26, s35, 5
    v_add_u32 v7, s26, v{VT}
    v_sub_u32 v8, 0x7ff, v7
    v_or_b32 v6, v6, v8
    v_lshlrev_b32 v9, 3, v7
    ds_write_b32 v12, v6
    s_mov_b32 exec_hi, -1
    ds_read_b32 v6, v12
    ds_read_b128 v[16:19], v13
    ds_read_b128 v[20:23], v13 offset:16
    ds_read_b128 v[24:27], v13 offset:32
    ds_read_b128 v[28:31], v13 offset:48""")
    rank_count(a, 6, 16, 16, 14, 15)
    a(f"""v_mov_b32 v15, v14
    s_lshl_b32 s26, s{W}, 5
    s_add_u32 s26, s26, {CAND}
    v_permlane32_swap_b32 v14, v15
    v_add_u32 v14, v14, v15
    v_cmp_gt_u32 vcc, 8, v14
    v_lshl_add_u32 v14, v14, 2, s26
    s_mov_b64 exec, vcc
    ds_write_b32 v14, v6
    s_mov_b64 exec, 1
    ds_add_u32 v{VC}, v{V1} offset:{C_K}
    s_mov_b32 exec_lo, -1
    v_mul_f32 v5, {NLOG2E:#x}, v5
    v_exp_f32 v5, v5
    v_add_f32 v5, 1.0, v5
    v_rcp_f32 v5, v5
    v_cvt_pk_bf16_f32 v5, v5, v5
    v_lshlrev_b32 v10, 16, v5
    s_mov_b32 exec_hi, -1
    s_branch L_pub
    """)
    a.label("L_roleV")
    a(f"""v_cmp_eq_u32 vcc, 0, v3
    v_mov_b32 v7, 0x3f803f80
    v_cndmask_b32 v{TMP}, 0, v7, vcc""")
    for e in range(1, 4): a(f"v_mov_b32 v{TMP+e}, v{TMP}")
    for i in range(4): a(f"s_mov_b64 s[{MS+2*i}:{MS+1+2*i}], 0")
    a("s_mov_b64 s[54:55], 0xff")
    gemm("V")
    a("L_epi:\ns_cbranch_execz L_backK")
    for i in range(4):
        acc = (A0, A1)[i >> 1] + 8 * (i & 1)
        p = PK + 4 * i
        for e in (2, 3, 0, 1): a(f"v_cvt_pk_bf16_f32 v{p+e}, v{acc+2*e}, v{acc+2*e+1}")
        a(f"""s_mov_b64 exec, s[{MS+2*i}:{MS+1+2*i}]
        v_swap_b32 v{TMP}, v{p+2}
        v_swap_b32 v{TMP+1}, v{p+3}
        s_mov_b64 exec, -1
        buffer_store_dwordx4 {vr(p,4)}, v1, s[8:11], s52 offen offset:{1024*i} sc1""")
    a(f"s_mov_b64 exec, s[54:55]\nbuffer_store_dwordx4 {vr(TMP,4)}, v1, s[8:11], s53 offen sc1\ns_mov_b64 exec, -1")
    a.label("L_pub")
    diag_start(a)
    st(a, 3)
    a(f"s_add_u32 s56, s{ROT}, {NQ1}\ns_cmp_ge_u32 s56, 7\ns_cselect_b32 s26, 7, 0\ns_sub_u32 s56, s56, s26")
    for i in range(NQ1, 7):
        a(f"""s_mul_i32 s26, s56, {64*2688}
        s_add_u32 m0, s63, {i*4096}
        s_add_u32 s26, s26, s62
        buffer_load_dwordx4 v{VWQ}, s[16:19], s26 offen lds""")
        if i < 6: next_chunk(a, 56)
    QO = Q + 8 * OWN
    SK = TMP
    a(f"""s_mov_b64 s[16:17], s[36:37]
    s_mov_b32 s18, {KVB}
    s_mov_b32 s57, 0""")
    def ldK(b, soff, base=None):
        r = KV + 16 * b if base is None else base
        return [f"buffer_load_dwordx4 {vr(r,4)}, v{VA}, s[16:19], {soff} offen sc1",
                f"buffer_load_dwordx4 {vr(r+4,4)}, v{VA+1}, s[16:19], {soff} offen sc1"]
    def ldV(b, soff):
        return [f"buffer_load_dwordx4 {vr(KV+16*b+8,4)}, v{VA+2}, s[16:19], {soff} offen sc1",
                f"buffer_load_dwordx4 {vr(KV+16*b+12,4)}, v{VA+3}, s[16:19], {soff} offen sc1"]
    def try_loads(block=False):
        d = uid("Ltl"); l = uid("Ltr"); g = uid("Ltg")
        a(f"s_cmp_eq_u32 s57, 2\ns_cbranch_scc1 {d}")
        if block: a(f"s_mov_b32 s60, {SPIN_LIMIT}\n{l}:\ns_sub_u32 s60, s60, 1\ns_cbranch_scc1 L_exit")
        a(f"""ds_read_b32 v4, v{VF} offset:{C_R}
        ds_read_b32 v5, v{VC} offset:{C_M}
        s_cmp_eq_u32 s57, 1
        s_waitcnt lgkmcnt(0)
        v_readfirstlane_b32 s56, v4
        s_cbranch_scc1 {g}
        v_readfirstlane_b32 s29, v5
        s_sub_u32 s29, s29, 1
        s_cbranch_scc1 {l if block else d}
        s_mov_b32 s57, 1""")
        for x in ldK(0, "s29", SK): a(x)
        a(f"""{g}:
        s_sub_u32 s27, s56, 1
        s_cbranch_scc1 {l if block else d}
        s_add_u32 s54, s56, {TS-1}
        s_add_u32 s55, s56, {2*TS-1}
        s_add_u32 s56, s56, {3*TS-1}
        s_mov_b32 s57, 2""")
        st(a, 6)
        for x in ldK(0, "s27") + ldV(0, "s27") + ldK(1, "s54") + ldV(1, "s54") + ([] if "up4" not in EXP else ldK(2, "s55") + ldV(2, "s55") + ldK(3, "s56")): a(x)
        a(f"{d}:")
    def qreads(k):
        f = WF + 4 * (k & 7)
        a(f"ds_read_b64_tr_b16 {vr(f,2)}, v{VQ} offset:{k*1024}\nds_read_b64_tr_b16 {vr(f+2,2)}, v{VQ} offset:{k*1024+256}")
    def publish():
        a(f"""s_mov_b32 s28, {WS_MB}
        v_readfirstlane_b32 s{T}, v11
        v_mov_b32 v6, v11
        s_mov_b64 exec, 1
        s_waitcnt vmcnt({7-NQ1})""")
        st(a, 4)
        a(f"""ds_add_rtn_u32 v4, v{VC}, v{V1} offset:{C_D}
        s_waitcnt lgkmcnt(0)
        v_cmp_eq_u32 vcc, 3, v4
        s_cbranch_vccz L_notlast
        s_mov_b64 exec, s[64:65]
        s_cbranch_execz L_notlast
        buffer_atomic_swap v6, v{VFS}, s[8:11], s28 offen sc1
        s_waitcnt vmcnt(1)
        s_branch L_published
        L_notlast:
        s_waitcnt vmcnt(0)
        s_cmp_lg_u32 s{RL}, 14
        s_cbranch_scc1 L_published
        s_mov_b32 s26, {WS_G}
        s_mov_b32 exec_lo, -1
        buffer_store_dwordx2 v[10:11], v9, s[8:11], s26 offen sc1
        L_published:""")
        a("s_mov_b64 exec, -1")
    def qgemm(lo, hi, cnt):
        spin_lds(a, VC, cnt, 4, 4)
        if not lo: a(f"ds_read_b32 v11, v{VC} offset:{C_T}")
        for k in range(lo, min(hi, lo + 6)): qreads(k)
        for k in range(lo, hi):
            if k + 6 < hi: qreads(k + 6)
            a(f"s_waitcnt lgkmcnt({2*(min(hi-1,k+6)-k)})")
            a(f"{MF} {vr(A0,16)}, {vr(WF+4*(k&7),4)}, {vr(XF+4*k,4)}, {'0' if k==0 else vr(A0,16)}")
    def qepi():
        for i in range(8): a(f"v_mov_b32 v{KV+56+i}, 0")
        a(f"""s_lshl_b32 s26, s{W}, 11
        s_add_u32 s26, s26, {QX}
        v_add_u32 v5, s26, v1
        s_mov_b32 s62, {QSCALE:#x}
        s_mov_b32 s63, {QSCALE:#x}""")
        for i in range(8): a(f"v_pk_mul_f32 {vr(A0+2*i,2)}, {vr(A0+2*i,2)}, s[62:63]")
        for i in range(8): a(f"v_cvt_pk_bf16_f32 v{QO+i}, v{A0+2*i}, v{A0+2*i+1}")
        a(f"""s_mov_b32 exec_lo, 0
        v_mov_b32 v{QO+6}, 0
        v_mov_b32 v{QO+7}, 0
        s_mov_b32 exec_lo, -1
        ds_write_b128 v5, {vr(QO,4)}
        ds_write_b128 v5, {vr(QO+4,4)} offset:1024""")
        lds_inc(a, VC, C_X, V1)
        for i in range(0, 48, 2): a(f"v_pk_mul_f32 {vr(O+i,2)}, {vr(KV+56,2)}, {vr(KV+56,2)}")
    qgemm(0, 4 * NQ1, C_Q1)
    if NQ1 == 7 and "qfirst" in EXP:
        st(a, 5)
        qepi(); publish(); try_loads()
    elif NQ1 == 7:
        st(a, 5)
        publish(); try_loads(); qepi()
    else:
        publish()
        lds_inc(a, VC, C_Q2, V1)
        try_loads()
        qgemm(4 * NQ1, 28, C_Q2)
        st(a, 5)
        try_loads()
        qepi()
    spin_lds(a, VC, C_X, 4, 4)
    for i in range(3):
        a(f"""s_add_u32 s26, s{W}, {i+1}
        s_and_b32 s26, s26, 3
        s_lshl_b32 s26, s26, 11
        s_add_u32 s26, s26, {QX}
        v_add_u32 v5, s26, v1
        ds_read_b128 {vr(Q+8*i,4)}, v5
        ds_read_b128 {vr(Q+8*i+4,4)}, v5 offset:1024""")
    for i in range(3):
        a(f"""s_add_u32 s26, s{W}, {i+1}
        s_and_b32 s26, s26, 3
        s_mul_i32 s26, s26, 12288
        s_add_u32 s26, s26, {CB + i*4096}
        v_add_u32 v{VX+i}, s26, v1""")
    a(f"s_mul_i32 s26, s{W}, 12288\ns_add_u32 s26, s26, {CB}\nv_add_u32 v2, s26, v1")
    try_loads(block=True)
    def QK(u, m):
        kt, qs = (u >> 2) & 3, u & 3
        s = S + 16 * (u & 1)
        c = "0" if m == 0 else vr(s, 16)
        return f"{MF} {vr(s,16)}, {vr(KV+16*kt+4*m,4)}, {vr(Q+8*qs+4*m,4)}, {c}"
    def PV(u, m):
        kt, qs = (u >> 2) & 3, u & 3
        return f"{MF} {vr(O+16*qs,16)}, {vr(KV+16*kt+8+4*m,4)}, {vr(P+8*(u&1)+4*m,4)}, {vr(O+16*qs,16)}"
    SS = [P, S + 16, S, O + 48]
    def samp(i, m): return f"{MF} {vr(SS[i],16)}, {vr(SK+4*m,4)}, {vr(Q+8*i+4*m,4)}, {'0' if m == 0 else vr(SS[i],16)}"
    def mx(i):
        for x in max16_list(4, SS[i]): a(x)
        a(f"s_mov_b32 exec_lo, 0\nv_cvt_pk_bf16_f32 v{Q+8*i+6}, -v4, 0\ns_mov_b32 exec_lo, -1")
    a(f"s_waitcnt vmcnt({8 if 'up4' not in EXP else 14}) lgkmcnt(0)")
    for i in (0, 2): a(samp(i, 0)); a(samp(i, 1))
    a(samp(1, 0)); a(samp(1, 1))
    mx(0)
    a(samp(3, 0)); a(samp(3, 1))
    mx(2)
    a(f"s_waitcnt vmcnt({6 if 'up4' not in EXP else 12})")
    a(QK(0, 0)); a(QK(0, 1))
    if "up4" not in EXP:
        for x in ldK(2, "s55") + ldV(2, "s55") + ldK(3, "s56"): a(x)
    mx(1)
    for i in range(0, 8, 2): a(f"v_pk_mul_f32 {vr(P+8+i,2)}, {vr(KV+56,2)}, {vr(KV+56,2)}")
    mx(3)
    for i in range(48, 64, 2): a(f"v_pk_mul_f32 {vr(O+i,2)}, {vr(KV+56,2)}, {vr(KV+56,2)}")
    st(a, 7)
    a(f"s_mov_b32 s57, 2\ns_mov_b32 s53, {WS_G}")
    def substep(u, ex, last=False):
        s = S + 16 * (u & 1); p = P + 8 * (u & 1)
        e = lambda i: f"v_exp_f32 v{s+i}, v{s+i}"
        c = lambda i: f"v_cvt_pk_bf16_f32 v{p+i}, v{s+2*i}, v{s+2*i+1}"
        q0, q1 = ([], []) if last else ([QK(u+1, 0)], [QK(u+1, 1)])
        seq = q0 + ex[0] + [e(0), e(1), e(2), e(3), c(0), e(4),
               PV(u-1, 0)] + ex[1] + [e(5), c(1), e(6), e(7), c(2), e(8)] + q1 + ex[2] + [e(9), c(3), e(10), e(11), c(4), e(12),
               PV(u-1, 1)] + ex[3] + [e(13), c(5), e(14), e(15), c(6), c(7)]
        for x in seq: a(x)
    a(".p2align 6")
    a.label("L_loop")
    for u in range(16):
        kt, qs = u >> 2, u & 3
        ex = [[], [], [], []]
        if qs == 1:
            l = ldV((kt + 3) & 3, "s56")
            ex[0] = [l[0]]; ex[1] = [l[1]]; ex[2] = [f"s_add_u32 s56, s56, {TS}"]
        if u == 0: ex[0] = [f"ds_read_b32 v7, v{VF} offset:{C_R+4}"]
        if u == 1:
            ex[2] = ["s_waitcnt lgkmcnt(0)", "v_readfirstlane_b32 s56, v7"]
            ex[3] = ["s_sub_u32 s56, s56, 1"]
        if u == 2:
            ex[0] = ["s_cbranch_scc1 L_nextwait", "L_nextok:", f"v_add_u32 v{VF}, 4, v{VF}"]
        if qs == 2 and "nowait" not in EXP: ex[3] = ["s_waitcnt vmcnt(10)"]
        if qs == 0 and "nowait" not in EXP: ex[3] = ["s_waitcnt vmcnt(10)"]
        if qs == 3:
            l = ldK(kt, "s56")
            ex[0] = [l[0]]; ex[1] = [l[1]]
        if u == GA: ex[1] = ex[1] + [f"ds_add_u32 v{VC}, v{V1} offset:{C_A}"]
        if u == 15: ex[3] = ["s_sub_u32 s57, s57, 1"]
        if "itst" in EXP and u in (0, 8):
            a("s_waitcnt lgkmcnt(0)")
            for i in range(1, 6): a(f"s_mov_b32 s{72+2*i}, s{72+2*i+2}")
            a("s_memtime s[84:85]")
        if "noload" in EXP: ex = [[y for y in x if "buffer_load" not in y] for x in ex]
        substep(u, ex)
    a("s_cbranch_scc0 L_loop")
    for u in range(14):
        ex = [[], [], [], []]
        if u == 1:
            l = ldV(3, "s56"); ex[0] = [l[0]]; ex[1] = [l[1]]
        if u == ZU: ex[2] = [f"ds_add_u32 v{VC}, v{V1} offset:{C_Z}"]
        if u == 0:
            ex[0] = [f"buffer_load_dwordx2 {vr(GR,2)}, v{VGO}, s[8:11], s53 offen sc1"]
            ex[1] = [f"buffer_load_dwordx4 {vr(XR,4)}, v{VXO}, s[12:15], s59 offen"]
            ex[2] = [f"buffer_load_dwordx4 {vr(XR+4,4)}, v{VXO}, s[12:15], s59 offen offset:32"]
        if u % 2 == 0: ex[3] = [f"s_waitcnt vmcnt({min(13, 15 - u) if u < 12 else 0})"]
        if u == 12: ex[0] = [f"ds_read_b32 v7, v{VC} offset:{C_F}"]
        if u == 13:
            ex[0] = ["s_waitcnt lgkmcnt(0)", "v_cmp_gt_u32 vcc, 4, v7"]
            ex[1] = ["s_cbranch_vccnz L_wait_ffn", "L_ffn_free:"]
        substep(u, ex)
    st(a, 8)
    wr = lambda i, k: f"ds_write_b128 v{VX+i}, {vr(O+16*i+4*k,4)} offset:{k*1024}"
    substep(14, [[], [wr(0, 0)], [wr(0, 1)], [wr(0, 2)]])
    substep(15, [[wr(0, 3)], [wr(1, 0)], [wr(1, 1)], [wr(1, 2)]], last=True)
    a(PV(15, 0)); a(wr(1, 3)); a(PV(15, 1))
    for k in range(4): a(wr(2, k))
    lds_inc(a, VC, C_C, V1)
    srd(a, 20, 50, 2048 * 896)
    TT = S
    OO = O + 16 * OWN
    a(f"""s_lshl_b32 s28, s35, 4
    s_add_u32 s28, s28, s{H}
    s_lshr_b32 s56, s28, 2
    s_lshl_b32 s56, s56, 5
    s_and_b32 s26, s{H}, 3
    s_add_u32 s56, s56, s26
    s_lshl_b32 s56, s56, 2
    s_add_u32 s56, s56, {WS_OFL}
    s_lshl_b32 s52, s28, 11
    s_add_u32 s52, s52, {WS_O}
    s_mov_b32 s57, 0""")
    spin_lds(a, VC, C_C, 4, 7)
    for k in range(12): a(f"ds_read_b128 {vr(TT+4*k,4)}, v2 offset:{k*1024}")
    for i in range(3):
        a(f"s_waitcnt lgkmcnt({8-4*i})")
        for k in (6, 7, 0, 1, 2, 3, 4, 5): a(f"v_pk_add_f32 {vr(OO+2*k,2)}, {vr(OO+2*k,2)}, {vr(TT+16*i+2*k,2)}")
    a.label("L_fin")
    a(f"""v_mov_b32 v5, v{OO+12}
    v_mov_b32 v4, v{OO+12}
    s_mov_b32 exec_lo, 0
    v_mov_b32 v{OO+12}, 0
    s_mov_b32 exec_lo, -1
    v_permlane32_swap_b32 v5, v4
    v_rcp_f32 v6, v4
    s_mov_b32 s28, 0x2b800000
    s_mov_b32 s29, 0x6c800000
    v_cmp_nle_f32 s[54:55], s28, v4
    v_cmp_nge_f32 s[62:63], s29, v4
    v_pk_add_f32 v[4:5], {vr(OO,2)}, {vr(OO+2,2)}""")
    for k in range(2, 8): a(f"v_pk_add_f32 v[4:5], v[4:5], {vr(OO+2*k,2)}")
    a(f"""v_add_f32 v4, v4, v5
    s_movk_i32 s28, 0x207
    v_cmp_class_f32 vcc, v4, s28
    s_or_b64 s[54:55], s[54:55], s[62:63]""")
    for k in range(8): a(f"v_pk_mul_f32 {vr(OO+2*k,2)}, {vr(OO+2*k,2)}, v[6:7] op_sel_hi:[1,0]")
    for k in range(8): a(f"v_cvt_pk_bf16_f32 v{Q+k}, v{OO+2*k}, v{OO+2*k+1}")
    a(f"""v_mov_b32 v6, s{T}
    s_or_b64 s[54:55], s[54:55], vcc
    s_cbranch_scc1 L_bad
    L_good:
    buffer_store_dwordx4 {vr(Q,4)}, v1, s[8:11], s52 offen sc1
    buffer_store_dwordx4 {vr(Q+4,4)}, v1, s[8:11], s52 offen offset:1024 sc1
    s_mov_b64 exec, 1
    {"s_waitcnt vmcnt(0)" if ("noclr" in EXP or "otouch" in EXP) else ""}
    buffer_atomic_swap v6, v{VZ}, s[8:11], s56 offen sc1
    s_mov_b64 exec, -1""")
    st(a, 9)
    WOF = 104; B = 232; ACC = 8; U = 72
    OSB = [40, 72]
    PLR = 36
    at = lambda r: f"v_mov_b32 v{r}, 0\ns_mov_b64 exec, 15\nbuffer_atomic_or v{r}, v7, s[8:11], s56 offen sc0 sc1\ns_mov_b64 exec, -1"
    a(f"""s_lshl2_add_u32 s28, s58, s{W}
    s_lshl_b32 s54, s28, 13
    s_add_u32 s54, s54, {WS_O}
    s_add_u32 s55, s54, 4096
    s_lshl_b32 s56, s28, 7
    s_add_u32 s56, s56, {WS_OFL}
    v_lshrrev_b32 v7, 2, v1
    {at(PLR)}
    v_bfe_u32 v4, v3, 2, 2
    v_lshl_add_u32 v4, v{VH}, 2, v4
    v_mul_u32_u24 v4, 224, v4
    v_bfe_u32 v5, v3, 4, 1
    v_lshl_add_u32 v4, v5, 5, v4
    v_and_b32 v5, 1, v3
    v_lshl_add_u32 v4, v5, 4, v4
    v_bfe_u32 v5, v3, 1, 1
    v_lshl_add_u32 v4, v5, 3, v4
    s_mul_i32 s28, s{W}, 56
    v_add_u32 v4, s28, v4""")
    for r in range(4):
        a(f"""s_add_u32 s26, s{W}, {r}
        s_and_b32 s26, s26, 3
        s_mul_i32 s28, s26, {4*28*224}
        v_add_u32 v{24+r}, s28, v4""")
        if r:
            a(f"s_mul_i32 s28, s26, 12288\ns_add_u32 s28, s28, {CB}\nv_add_u32 v{32+r}, s28, v1")
    a(f"""v_lshlrev_b32 v30, 2, v{VT}
    v_add_u32 v30, {UPDI}, v30
    s_mul_i32 s28, s{W}, 112
    s_add_u32 s28, s28, {UPD}
    v_lshl_add_u32 v28, v{VH}, 5, s28
    v_mov_b32 v29, {CNT}
    s_lshl_b32 s28, 0x11, s{W}
    v_mov_b32 v31, s28""")
    spin_lds(a, 29, C_W, 16, 6)
    def word(k):
        o = (28 * ((k >> 1) & 3) + 16 * (k & 1)) * 224
        b = 24 + (k >> 3)
        a(f"ds_read_b64_tr_b16 {vr(WOF+4*k,2)}, v{b} offset:{o}\nds_read_b64_tr_b16 {vr(WOF+4*k+2,2)}, v{b} offset:{o+8*224}")
    a(at(PLR + 1))
    for k in range(NW1):
        word(k)
        if k == NW1 // 2 - 1: a(at(PLR + 2))
    a(f"s_mov_b32 s60, {SPIN_LIMIT}\ns_mov_b64 exec, 15\nL_op:")
    for i in range(4):
        a(f"""v_mov_b32 v{PLR+(i+3)%4}, 0
        buffer_atomic_or v{PLR+(i+3)%4}, v7, s[8:11], s56 offen sc0 sc1
        s_waitcnt vmcnt(3)
        v_cmp_ne_u32 vcc, s{T}, v{PLR+i}
        s_cbranch_vccz L_of""")
    a(f"""s_sub_u32 s60, s60, 1
    s_cbranch_scc0 L_op
    s_endpgm
    L_of:
    s_mov_b64 exec, -1""")
    if "twait" not in EXP: st(a, 10)
    def oload():
        for k in range(8):
            a(f"buffer_load_dwordx4 {vr(OSB[0]+4*k,4)}, v1, s[8:11], {'s54' if k < 4 else 's55'} offen offset:{(k&3)*1024} sc1")
    oload()
    for k in range(NW1, 32): word(k)
    for k in range(8):
        a(f"v_lshlrev_b32 v{B+2*k}, 16, v{XR+k}\nv_and_b32 v{B+2*k+1}, 0xffff0000, v{XR+k}")
    a(f"""v_cmp_ne_u32 vcc, s{T}, v{GR+1}
    s_cbranch_vccnz L_gate
    L_gate_ok:
    v_sub_f32 v24, 1.0, v{GR}
    v_cvt_pk_bf16_f32 v24, v24, v24
    v_lshlrev_b32 v24, 16, v24""")
    def stub(): pass
    def need(bit):
        l = uid("Lnd")
        a(f"""{l}:
        ds_read_b32 v6, v29 offset:{C_O}
        s_sub_u32 s60, s60, 1
        s_cbranch_scc1 L_exit
        s_waitcnt lgkmcnt(0)
        v_readfirstlane_b32 s61, v6
        s_bitcmp1_b32 s61, {bit}
        s_cbranch_scc0 {l}""")
    def rd(g):
        for k in range(8): a(f"ds_read_b128 {vr(OSB[g&1]+4*k,4)}, v{32+g} offset:{k*1024}")
    def mm(g, lo, hi):
        for k in range(lo, hi):
            a(f"{MF} {vr(ACC,16)}, {vr(WOF+32*g+4*k,4)}, {vr(OSB[g&1]+4*k,4)}, {'0' if g == 0 and k == 0 else vr(ACC,16)}")
    a(f"""ds_read_b32 v6, v29 offset:{C_O}
    s_mov_b32 s57, 0
    s_waitcnt lgkmcnt(0)
    v_readfirstlane_b32 s61, v6
    s_bitcmp1_b32 s61, 10
    s_cbranch_scc1 L_blkU
    s_mov_b32 s57, 1
    L_next0:
    v_mov_b32 v4, 0""")
    for k in range(8):
        r = OSB[0] + 4 * k
        a(f"""s_waitcnt vmcnt({7-k})
        ds_write_b128 v2, {vr(r,4)} offset:{k*1024}""")
        if k < 6: mm(0, k, k + 1)
        a(f"""v_max3_u32 v4, v4, v{r}, v{r+1}
        v_max3_u32 v4, v4, v{r+2}, v{r+3}""")
    a("v_cmp_eq_u32 vcc, -1, v4\ns_cbranch_vccnz L_again")
    lds_inc(a, 29, C_O, 31)
    a(f"s_mov_b32 s27, s{W}")
    for g in range(4):
        if g < 3: a(f"ds_read_b32 v6, v29 offset:{C_O}\ns_add_u32 s27, s27, 1")
        if g: a("s_waitcnt lgkmcnt(0)")
        mm(g, 0 if g else 6, 2 if g else 8)
        if g < 3:
            if not g: a("s_waitcnt lgkmcnt(0)")
            a(f"v_readfirstlane_b32 s61, v6\ns_bitcmp1_b32 s61, s27\ns_cbranch_scc0 L_late{g}")
            rd(g + 1)
        mm(g, 2 if g else 8, 8)
        a(f"L_back{g}:")
    a("s_cmp_lg_u32 s57, 0\ns_cbranch_scc1 L_lateU\nL_next1:")
    if "twait" not in EXP: st(a, 11)
    a("s_nop 9")
    for m in range(2):
        for e in range(4*m, 4*m+4):
            a(f"v_pk_fma_f32 {vr(B+2*e,2)}, {vr(ACC+2*e,2)}, {vr(GR,2)}, {vr(B+2*e,2)} op_sel_hi:[1,0,1]")
        for e in range(4*m, 4*m+4): a(f"v_cvt_pk_bf16_f32 v{40+e}, v{B+2*e}, v{B+2*e+1}")
        if m == 0:
            a(f"buffer_store_dwordx4 v[40:43], v{VXO}, s[20:23], s59 offen{OUTAUX}")
            stub()
        else:
            a(f"""s_mov_b32 exec_hi, 0
            buffer_store_dwordx4 v[44:47], v{VXO}, s[20:23], s59 offen offset:32{OUTAUX}
            s_mov_b64 exec, 0xffffffff
            s_not_b64 exec, exec
            buffer_store_dwordx2 v[44:45], v{VXO}, s[20:23], s59 offen offset:32{OUTAUX}""")
    st_end(a)
    diag_end(a)
    a("s_endpgm")
    for g in range(3):
        a(f"L_late{g}:")
        mm(g, 2 if g else 8, 8)
        need("s27"); rd(g + 1)
        a(f"s_branch L_back{g}")
    a("L_again:\ns_sub_u32 s60, s60, 1\ns_cbranch_scc1 L_exit\ns_waitcnt lgkmcnt(0)")
    oload()
    a("s_branch L_next0")
    a("L_lateU:")
    need(10)
    a(f"""L_blkU:
    ds_read_b32 v6, v30
    s_waitcnt lgkmcnt(0)
    v_cmp_le_i32 vcc, 0, v6
    s_cbranch_vccz L_noupd
    s_mov_b64 exec, vcc
    v_mul_u32_u24 v6, 448, v6
    v_add_u32 v28, v28, v6""")
    for k in range(4): a(f"ds_read_b128 {vr(U+4*k,4)}, v28 offset:{64*(k>>1)+16*(k&1)}")
    a("s_waitcnt lgkmcnt(0)")
    for k in range(8):
        a(f"""v_pk_add_f32 {vr(B+2*k,2)}, {vr(B+2*k,2)}, {vr(U+2*k,2)}
        v_cvt_pk_bf16_f32 v{B+2*k}, v{B+2*k}, v{B+2*k+1}
        v_and_b32 v{B+2*k+1}, 0xffff0000, v{B+2*k}
        v_lshlrev_b32 v{B+2*k}, 16, v{B+2*k}""")
    a("s_mov_b64 exec, -1\nL_noupd:")
    stub()
    for k in range(8): a(f"v_pk_mul_f32 {vr(B+2*k,2)}, {vr(B+2*k,2)}, v[24:25] op_sel_hi:[1,0]")
    a("s_cmp_lg_u32 s57, 0\ns_cbranch_scc1 L_next1\ns_branch L_next0")
    a("L_bad:\ns_cmp_eq_u32 s57, 0\ns_cbranch_scc1 L_slow")
    for k in range(8): a(f"v_min_u32 v{Q+k}, -2, v{Q+k}")
    a("s_branch L_good")
    a.label("L_wait_ffn")
    spin_lds(a, VC, C_F, 4, 7)
    a("s_branch L_ffn_free")
    a.label("L_nextwait")
    spin_lds(a, VF, C_R + 4, 1, 7)
    a("s_sub_u32 s56, s61, 1\ns_branch L_nextok")
    a(f"""L_gate:
    s_mov_b32 s26, {WS_G}
    s_mov_b32 s60, {SPIN_LIMIT}
    L_gate1:
    buffer_load_dwordx2 {vr(GR,2)}, v{VGO}, s[8:11], s26 offen sc1
    s_waitcnt vmcnt(0)
    v_cmp_ne_u32 vcc, s{T}, v{GR+1}
    s_cbranch_vccz L_gate_ok
    s_sub_u32 s60, s60, 1
    s_cbranch_scc0 L_gate1
    s_endpgm""")
    a.label("L_slow")
    a(f"""s_mov_b32 s57, 1
    s_mov_b32 s55, {KVB}
    s_mov_b32 s54, 0
    s_mov_b32 exec_lo, 0
    v_mov_b32 v{QO+6}, 0
    v_mov_b32 v{QO+7}, 0
    s_mov_b32 exec_lo, -1
    v_mov_b32 v4, 0xff800000
    L_slow1:
    {ldK(0, "s54")[0]}
    {ldK(0, "s54")[1]}
    s_waitcnt vmcnt(0)
    {MF} {vr(S,16)}, {vr(KV,4)}, {vr(QO,4)}, 0
    {MF} {vr(S,16)}, {vr(KV+4,4)}, {vr(QO+4,4)}, {vr(S,16)}""")
    for x in max16_list(4, S, init=True): a(x)
    a(f"""s_add_u32 s54, s54, {TS}
    s_cmp_lt_u32 s54, s55
    s_cbranch_scc1 L_slow1
    v_mov_b32 v5, v4
    v_permlane32_swap_b32 v4, v5
    v_max_f32 v4, v4, v5""")
    split_neg_max(a, 4, 5, 6, QO + 6, QO + 7)
    for i in range(16): a(f"v_mov_b32 v{OO+i}, 0")
    a(f"""s_mov_b32 s54, 0
    L_slow2:
    {ldK(0, "s54")[0]}
    {ldK(0, "s54")[1]}
    {ldV(0, "s54")[0]}
    {ldV(0, "s54")[1]}
    s_waitcnt vmcnt(0)
    {MF} {vr(S,16)}, {vr(KV,4)}, {vr(QO,4)}, 0
    {MF} {vr(S,16)}, {vr(KV+4,4)}, {vr(QO+4,4)}, {vr(S,16)}""")
    for i in range(16): a(f"v_exp_f32 v{S+i}, v{S+i}")
    for i in range(8): a(f"v_cvt_pk_bf16_f32 v{P+i}, v{S+2*i}, v{S+2*i+1}")
    a(f"""{MF} {vr(OO,16)}, {vr(KV+8,4)}, {vr(P,4)}, {vr(OO,16)}
    {MF} {vr(OO,16)}, {vr(KV+12,4)}, {vr(P+4,4)}, {vr(OO,16)}
    s_nop 7
    s_nop 7
    s_add_u32 s54, s54, {TS}
    s_cmp_lt_u32 s54, s55
    s_cbranch_scc1 L_slow2
    s_branch L_fin""")

GI = CB; DI = QX; HB = 101376
FT, KS = 66, 67
def service_wave(a):
    a.label("L_service")
    a(f"""v_mov_b32 v14, {CNT}
    v_mov_b32 v15, 1
    v_mov_b32 v9, 0""")
    srd(a, 8, 36, (1 << 28) - WSBASE)
    a("s_waitcnt lgkmcnt(0)")
    tag(a)
    a(f"v_mov_b32 v4, s{T}\nds_write_b32 v14, v4 offset:{C_T}\ns_waitcnt vmcnt(0)")
    lds_inc(a, 14, C_Q1, 15)
    a(f"""v_and_b32 v32, 31, v3
    v_lshrrev_b32 v33, 5, v3
    v_lshlrev_b32 v219, 3, v1
    v_lshrrev_b32 v220, 2, v1
    v_and_b32 v4, 7, v3
    v_lshlrev_b32 v217, 3, v4
    s_lshr_b32 s58, s{H}, 2
    s_lshl2_add_u32 s58, s{J}, s58
    v_lshlrev_b32 v211, 11, v33
    v_lshl_add_u32 v211, v32, 4, v211
    v_and_b32 v4, 24, v3
    v_lshl_add_u32 v4, v33, 2, v4
    v_lshl_add_u32 v4, v217, 4, v4
    s_lshl_b32 s26, s{L}, 5
    s_add_u32 s26, s26, {HB}
    v_add_u32 v214, s26, v4
    s_mul_i32 s{FT}, s2, 9363
    s_lshr_b32 s{FT}, s{FT}, 16
    s_mul_i32 s26, s{FT}, 7
    s_sub_u32 s{KS}, s2, s26
    s_cmp_ge_u32 s{L}, 2
    s_cbranch_scc1 L_svcB""")
    def sel_load(lbl):
        a(f"""s_mov_b32 s26, {WS_SEL}
        s_mov_b32 s60, {SPIN_LIMIT}
        {lbl}:
        buffer_load_dwordx2 v[20:21], v217, s[8:11], s26 offen sc1
        s_waitcnt vmcnt(0)
        v_cmp_ne_u32 vcc, s{T}, v21
        s_cbranch_vccz {lbl}_ok
        s_sleep 4
        s_sub_u32 s60, s60, 1
        s_cbranch_scc0 {lbl}
        s_endpgm
        {lbl}_ok:""")
    a(f"""s_lshl_b32 s27, s{J}, 6
    s_add_u32 s27, s27, {WS_R}
    s_cmp_eq_u32 s{RL}, 14
    s_cbranch_scc1 L_rank
    s_cmp_lg_u32 s2, {SELECTOR}
    s_cbranch_scc1 L_svcA
    s_lshl_b32 s28, s{L}, 8
    s_add_u32 s28, s28, {KEYS}
    v_add_u32 v7, s28, v220
    v_lshl_add_u32 v6, v33, 7, s28
    s_lshl_b32 s28, s{L}, 6
    s_add_u32 s28, s28, {CAND}
    v_lshl_add_u32 v10, v33, 5, s28
    s_lshl_b32 s26, s{L}, 9
    s_add_u32 s26, s26, {WS_R}
    s_mov_b32 s27, {WS_SEL}
    v_lshlrev_b32 v4, 3, v3
    v_mov_b32 v5, 2
    s_mov_b32 s60, {SPIN_LIMIT}
    L_keys:
    v_mov_b32 v20, 0
    v_mov_b32 v21, 0
    buffer_atomic_or_x2 v[20:21], v4, s[8:11], s26 offen sc0 sc1
    s_sub_u32 s60, s60, 1
    s_cbranch_scc1 L_exit
    s_waitcnt vmcnt(0)
    v_cmp_ne_u32 vcc, s{T}, v21
    s_cbranch_vccnz L_keys
    ds_write_b32 v7, v20""")
    for k in range(8): a(f"ds_read_b128 {vr(40+4*k,4)}, v6 offset:{16*k}")
    rank_count(a, 20, 40, 32, 22, 23)
    a(f"""v_cmp_gt_u32 vcc, 8, v22
    v_lshl_add_u32 v22, v22, 2, v10
    s_mov_b64 exec, vcc
    ds_write_b32 v22, v20""")
    lds_inc(a, 14, C_K, 5)
    a(f"""L_rank:
    s_cmp_lg_u32 s{L}, 0
    s_cbranch_scc1 L_svcA
    v_mov_b32 v6, {CAND}
    v_lshl_add_u32 v7, v32, 2, v6
    v_lshl_add_u32 v6, v33, 6, v6
    v_mov_b32 v21, s{T}""")
    spin_lds(a, 14, C_K, 4, 8)
    st(a, 10)
    if STAMP: a("s_waitcnt lgkmcnt(0)")
    a("ds_read_b32 v20, v7")
    for k in range(4): a(f"ds_read_b128 {vr(40+4*k,4)}, v6 offset:{16*k}")
    rank_count(a, 20, 40, 16, 22, 23)
    a(f"""v_mov_b32 v23, v22
    v_permlane32_swap_b32 v22, v23
    v_add_u32 v22, v22, v23
    v_cmp_gt_u32 vcc, 8, v22
    v_lshlrev_b32 v22, 3, v22
    s_mov_b32 exec_lo, vcc_lo
    s_mov_b32 exec_hi, 0
    buffer_atomic_swap_x2 v[20:21], v22, s[8:11], s27 offen sc1
    s_mov_b64 exec, -1""")
    st(a, 11)
    a.label("L_svcA")
    for e in range(7):
        a(f"""v_add_u32 v4, {64*e}, v3
        v_mul_u32_u24 v5, 4682, v4
        v_lshrrev_b32 v5, 16, v5
        v_mul_u32_u24 v5, {896-224}, v5
        v_lshl_add_u32 v{200+e}, v4, 4, v5""")
    for r in (215, 216): a(f"v_mov_b32 v{r}, 0")
    a(f"""v_mov_b32 v28, -1
    v_mov_b32 v29, -1
    v_mov_b32 v30, -1
    v_mov_b32 v31, -1
    s_lshl_b32 s59, s{J}, 6
    s_add_u32 s59, s59, s{H}
    s_lshl1_add_u32 s59, s59, s{L}
    s_lshl_b32 s59, s59, 10
    s_add_u32 s59, s59, {WS_O}
    s_cmp_ge_u32 s2, 196
    s_cbranch_scc1 L_nofn
    v_lshrrev_b32 v4, 3, v3
    v_and_b32 v5, 2, v4
    v_lshlrev_b32 v5, 1, v5
    v_and_b32 v6, 7, v3
    v_xor_b32 v5, v5, v6
    v_mul_u32_u24 v6, 3584, v4
    v_lshl_add_u32 v34, v5, 4, v6
    v_add_u32 v35, {8*3584-1024}, v34
    v_add_u32 v36, {2*(8*3584-1024)}, v34
    v_add_u32 v37, {3*(8*3584-1024)}, v34
    v_mul_u32_u24 v6, 896, v4
    v_lshl_add_u32 v240, v5, 4, v6
    v_add_u32 v241, {8*896-1024}, v240
    v_add_u32 v242, {2*(8*896-1024)}, v240
    v_add_u32 v243, {3*(8*896-1024)}, v240
    s_lshl_b32 s54, s{L}, 13
    s_add_u32 s54, s54, {GI}
    v_and_b32 v4, 3, v3
    v_lshrrev_b32 v6, 4, v3
    v_bfe_u32 v7, v3, 2, 2
    v_lshl_add_u32 v8, v6, 3, v7
    v_lshlrev_b32 v8, 7, v8
    v_lshrrev_b32 v7, 1, v7
    v_lshl_add_u32 v8, v7, 6, v8
    v_lshl_add_u32 v8, v4, 3, v8
    v_add_u32 v38, s54, v8
    v_xor_b32 v39, 64, v38
    v_lshlrev_b32 v213, 4, v6
    v_lshlrev_b32 v212, 3, v213
    v_lshl_add_u32 v212, v217, 1, v212""")
    srd(a, 16, 42, 448 * 3584)
    a(f"""s_cmp_eq_u32 s{L}, 1
    s_cselect_b64 s[16:17], s[44:45], s[42:43]
    s_mul_i32 s52, s{KS}, {64*3584}
    s_lshl_b32 s28, s{FT}, 7
    s_add_u32 s52, s52, s28
    s_movk_i32 s29, 896""")
    if GA >= 0: spin_lds(a, 14, C_A, 256, 8, sleep=4)
    else: spin_lds(a, 14, C_L, 8 if "deferA" in EXP else 4, 8, sleep=4)
    st(a, 3)
    NR = 2 if "fine" in EXP else 4
    XS_ = 40; FW = 56; AC = 104
    if "nogu" in EXP: a("s_mov_b32 s18, 0")
    a("s_mov_b32 m0, s54\ns_nop 0")
    for k in range(8):
        if k == 4: a(f"s_add_u32 s52, s52, {32*3584}\ns_add_u32 m0, s54, 4096")
        if k == 8 - NR: sel_load("L_sel1")
        elif k and k % NR == 0: a("s_waitcnt vmcnt(0)")
        a(f"buffer_load_dwordx4 v{34+(k&3)}, s[16:19], s52 offen offset:{1024*(k&3)} lds")
    a(f"""v_not_b32 v4, v20
    v_and_b32 v4, 0x7ff, v4
    v_mad_u32_u24 v4, v4, s29, v213
    s_lshl_b32 s26, s{KS}, 7
    s_mov_b32 exec_lo, 0x00ff00ff
    s_mov_b32 exec_hi, 0x00ff00ff
    buffer_load_dwordx4 {vr(XS_,4)}, v4, s[12:15], s26 offen
    buffer_load_dwordx4 {vr(XS_+4,4)}, v4, s[12:15], s26 offen offset:64
    s_mov_b64 exec, -1
    s_waitcnt vmcnt(2)""")
    for k in range(2):
        for n in range(4):
            o = k * 4096 + (n & 1) * 32
            a(f"ds_read_b64_tr_b16 {vr(FW+16*k+4*n,2)}, v{38+(n>>1)} offset:{o}\nds_read_b64_tr_b16 {vr(FW+16*k+4*n+2,2)}, v{38+(n>>1)} offset:{o+512}")
    lds_inc(a, 14, C_F, 15)
    a(f"""s_mov_b64 s[16:17], s[46:47]
    s_lshl1_add_u32 s28, s{FT}, s{L}
    s_mul_i32 s28, s28, {32*896}
    s_add_u32 s28, s28, s26
    s_lshl_b32 s29, s{L}, 12
    s_add_u32 m0, s29, {DI}
    s_lshl1_add_u32 s26, s2, s{L}
    s_lshl_b32 s26, s26, 11
    s_add_u32 s26, s26, {WS_GP}
    s_waitcnt vmcnt(0) lgkmcnt(0)""")
    st(a, 4)
    for k in range(2):
        for n in range(4):
            a(f"v_mfma_f32_16x16x32_bf16 {vr(AC+4*n,4)}, {vr(FW+16*k+4*n,4)}, {vr(XS_+4*k,4)}, {'0' if k==0 else vr(AC+4*n,4)}")
    a("s_mov_b32 exec_lo, 0x00ff00ff\ns_mov_b32 exec_hi, 0x00ff00ff")
    for n in range(4):
        a(f"buffer_store_dwordx4 {vr(AC+4*n,4)}, v212, s[8:11], s26 offen offset:{512*n} sc1")
    a("s_mov_b64 exec, -1")
    if "nowd" in EXP: a("s_mov_b32 s18, 0")
    for k in range(4): a(f"buffer_load_dwordx4 v{240+k}, s[16:19], s28 offen offset:{1024*k} lds")
    a(f"""s_lshl1_add_u32 s26, s{KS}, s{L}
    s_lshl_b32 s26, s26, 2
    s_mul_i32 s28, s{FT}, {7*128}
    s_add_u32 s26, s26, s28
    s_add_u32 s26, s26, {WS_F1}
    s_waitcnt vmcnt(4)""")
    signal(a, 5, 219, "s26", "0x7f")
    st(a, 5)
    a(f"s_cmp_lg_u32 s{L}, 0\ns_cbranch_scc1 L_st2w\ns_lshl_b32 s26, s2, 7\ns_add_u32 s26, s26, {WS_F1}")
    poll_atomic(a, 5, 220, "s26", "0x3fff", 2)
    lds_inc(a, 14, C_L, 15)
    a("L_st2w:")
    spin_lds(a, 14, C_L, 1, 8, sleep=3)
    st(a, 6)
    GP = 40; DW = 120
    a(f"s_mul_i32 s26, s{FT}, {7*4096}\ns_lshl_b32 s28, s{L}, 9\ns_add_u32 s26, s26, s28\ns_add_u32 s26, s26, {WS_GP}")
    for k in range(7):
        a(f"buffer_load_dwordx4 {vr(GP+4*k,4)}, v211, s[8:11], s26 offen sc1")
        if k < 6: a("s_add_u32 s26, s26, 4096")
    a(f"s_mov_b32 s28, {NLOG2E:#x}\ns_waitcnt vmcnt(0)")
    for k in range(1, 7):
        if "nopk" in EXP:
            for e in range(4): a(f"v_add_f32 v{GP+e}, v{GP+e}, v{GP+4*k+e}")
        else:
            for e in range(2): a(f"v_pk_add_f32 {vr(GP+2*e,2)}, {vr(GP+2*e,2)}, {vr(GP+4*k+2*e,2)}")
    a(f"""v_permlane32_swap_b32 v{GP}, v{GP+2}
    v_permlane32_swap_b32 v{GP+1}, v{GP+3}
    v_mul_f32 v22, s28, v{GP}
    v_mul_f32 v23, s28, v{GP+1}
    v_exp_f32 v22, v22
    v_exp_f32 v23, v23
    v_add_f32 v22, 1.0, v22
    v_add_f32 v23, 1.0, v23
    v_rcp_f32 v22, v22
    v_rcp_f32 v23, v23
    v_pk_mul_f32 v[22:23], v[22:23], {vr(GP,2)}
    v_pk_mul_f32 v[22:23], v[22:23], {vr(GP+2,2)}
    v_cvt_pk_bf16_f32 v22, v22, v23
    ds_write_b32 v214, v22""")
    lds_inc(a, 14, C_S, 15)
    a(f"s_cmp_ge_u32 s{L}, 2\ns_cbranch_scc1 L_st3\ns_branch L_clr")
    a.label("L_nofn")
    lds_inc(a, 14, C_F, 15)
    spin_lds(a, 14, C_A, 512, 8, sleep=8)
    srd(a, 16, 38, 448 * 896)
    a(f"""s_sub_u32 s26, s2, 196
    s_lshl1_add_u32 s26, s26, s{L}
    s_mul_i32 s26, s26, {27*128}
    s_min_u32 s26, s26, {(3136-27)*128}
    s_mov_b64 exec, 0x7ffffff
    buffer_load_dword v6, v219, s[16:19], s26 offen
    s_mov_b64 exec, -1""")
    sel_load("L_sel2")
    a(f"""s_lshl2_add_u32 s26, s2, s{L}
    s_cmp_lg_u32 s26, {254*4}
    s_cbranch_scc1 L_clr""")
    a(f"s_mov_b32 s60, {SPIN_LIMIT}\nL_ep:")
    for k in range(4):
        a(f"s_mov_b32 s26, {WS_FL+8192*k}\nbuffer_load_dword v{24+k}, v219, s[8:11], s26 offen sc1")
    a(f"""s_sub_u32 s60, s60, 1
    s_cbranch_scc1 L_exit
    s_waitcnt vmcnt(0)
    v_xor_b32 v24, s{T}, v24
    v_bitop3_b32 v24, v24, v25, s{T} bitop3:0xf6
    v_bitop3_b32 v24, v24, v26, s{T} bitop3:0xf6
    v_bitop3_b32 v24, v24, v27, s{T} bitop3:0xf6
    v_cmp_ne_u32 vcc, 0, v24
    s_cbranch_vccnz L_ep
    s_mov_b32 s26, {WS_EP}""")
    flag_store(a, 5, 9, "s26")
    a("L_clr:")
    if "noobt" not in EXP:
        a(f"""s_lshl1_add_u32 s26, s58, s{L}
        s_lshl_b32 s26, s26, 8
        s_add_u32 s26, s26, {WS_OFL}
        s_mov_b64 exec, 3
        buffer_atomic_or v9, v219, s[8:11], s26 offen sc1
        s_mov_b64 exec, -1""")
    for k in range(4):
        a(f"buffer_store_dwordx4 v[28:31], v1, s[8:11], s59 offen sc1\ns_add_u32 s59, s59, {16*2048}")
        if k == 3 or (k & 1 and "clr2" in EXP): a("s_waitcnt vmcnt(0)")
    lds_inc(a, 14, C_F, 15)
    st(a, 7)
    Y = 40
    a(f"""L_updA:
    s_and_b32 s53, s{H}, 3
    s_mul_i32 s53, s53, 224
    s_lshl_b32 s57, s{L}, 2
    s_lshr_b32 s26, s53, 6
    s_lshl_b32 s26, s26, 7
    s_add_u32 s62, s26, {WS_YFL}
    L_upd:
    v_readlane_b32 s52, v20, s57
    s_andn2_b32 s54, 0x7ff, s52
    s_lshr_b32 s26, s54, 5
    s_cmp_lg_u32 s26, s58
    s_cbranch_scc1 L_updn
    s_mov_b32 s60, {SPIN_LIMIT}
    s_mov_b32 exec_lo, 0x0fffffff
    s_mov_b32 exec_hi, 0x0fffffff
    L_yfl:
    v_mov_b32 v24, 0
    v_mov_b32 v25, 0
    buffer_atomic_or v24, v220, s[8:11], s62 offen sc0 sc1
    buffer_atomic_or v25, v220, s[8:11], s62 offen offset:256 sc0 sc1
    s_waitcnt vmcnt(0)
    v_xor_b32 v24, s{T}, v24
    v_bitop3_b32 v24, v24, v25, s{T} bitop3:0xf6
    v_cmp_ne_u32 vcc, 0, v24
    s_cbranch_vccz L_yok
    s_sub_u32 s60, s60, 1
    s_cbranch_scc0 L_yfl
    s_endpgm
    L_yok:
    v_mul_u32_u24 v4, {14*14336}, v33
    v_lshl_add_u32 v4, v32, 4, v4
    s_mul_i32 s26, s57, 1792
    s_lshl1_add_u32 s26, s53, s26
    s_add_u32 s26, s26, {WS_YP}""")
    for i in range(14):
        a(f"buffer_load_dwordx4 {vr(Y+4*i,4)}, v4, s[8:11], s26 offen sc1\ns_add_u32 s26, s26, 14336")
    a(f"""s_mov_b64 exec, -1
    s_lshr_b32 s26, s52, 11
    s_not_b32 s55, s26
    s_and_b32 s29, s26, 0x7fff
    s_bitcmp1_b32 s26, 15
    s_cselect_b32 s26, s29, s55
    s_lshl_b32 s26, s26, 16
    v_mov_b32 v6, {NLOG2E:#x}
    v_mul_f32 v6, s26, v6
    v_exp_f32 v6, v6
    v_add_f32 v6, 1.0, v6
    v_rcp_f32 v6, v6
    v_cvt_pk_bf16_f32 v6, v6, v6
    v_lshlrev_b32 v6, 16, v6
    s_mul_i32 s26, s57, 448
    s_add_u32 s26, s26, {UPD}
    v_lshl_add_u32 v7, v32, 4, s26
    s_waitcnt vmcnt(0)""")
    for i in range(1, 14):
        a(f"v_pk_add_f32 {vr(Y,2)}, {vr(Y,2)}, {vr(Y+4*i,2)}\nv_pk_add_f32 {vr(Y+2,2)}, {vr(Y+2,2)}, {vr(Y+4*i+2,2)}")
    for k in range(4): a(f"v_mov_b32 v{Y+4+k}, v{Y+k}")
    for k in range(4): a(f"v_permlane32_swap_b32 v{Y+k}, v{Y+4+k}")
    for k in range(4): a(f"v_add_f32 v{Y+k}, v{Y+k}, v{Y+4+k}")
    for k in range(0, 4, 2):
        a(f"""v_cvt_pk_bf16_f32 v{Y+k}, v{Y+k}, v{Y+k+1}
        v_and_b32 v{Y+k+1}, 0xffff0000, v{Y+k}
        v_lshlrev_b32 v{Y+k}, 16, v{Y+k}
        v_mul_f32 v{Y+k}, v{Y+k}, v6
        v_mul_f32 v{Y+k+1}, v{Y+k+1}, v6
        v_cvt_pk_bf16_f32 v{Y+k}, v{Y+k}, v{Y+k+1}
        v_and_b32 v{Y+k+1}, 0xffff0000, v{Y+k}
        v_lshlrev_b32 v{Y+k}, 16, v{Y+k}""")
    a(f"""s_and_b32 s54, s54, 31
    v_mov_b32 v5, s57
    s_lshl_b32 s26, s54, 2
    s_add_u32 s26, s26, {UPDI}
    v_mov_b32 v4, s26
    s_mov_b64 exec, 0x0fffffff
    ds_write_b128 v7, {vr(Y,4)}
    s_mov_b64 exec, 1
    ds_write_b32 v4, v5
    s_mov_b64 exec, -1
    L_updn:
    s_add_u32 s57, s57, 1
    s_and_b32 s26, s57, 3
    s_cbranch_scc1 L_upd
    v_mov_b32 v6, 512""")
    lds_inc(a, 14, C_O, 6)
    st(a, 9)
    a("s_branch L_wo1")
    a.label("L_svcB")
    CLR = "buffer_store_dwordx4 v[24:27], v1, s[8:11], s59 offen sc1"
    if "noclr" in EXP: CLR = ""
    if "otouch" in EXP: CLR = "s_mov_b32 exec_lo, 0x0f0f0f0f\ns_mov_b32 exec_hi, 0x0f0f0f0f\nbuffer_store_dwordx4 v[24:27], v1, s[8:11], s59 offen sc1\ns_mov_b64 exec, -1"
    OUTT = ""
    if "outtouch" in EXP:
        OUTT = f"""s_cmp_lg_u32 s55, {42*1024}
        s_cbranch_scc1 L_noot
        s_mov_b32 s20, s50
        s_mov_b32 s21, s51
        s_mov_b32 s22, {2048*896}
        s_mov_b32 s23, 0x20000
        s_lshl_b32 s26, s58, 5
        v_add_u32 v4, s26, v32
        v_mul_u32_u24 v4, 896, v4
        s_add_u32 s26, s53, 127
        s_and_b32 s26, s26, 0xffffff80
        v_lshl_add_u32 v4, v33, 7, v4
        s_cmp_eq_u32 s53, 672
        s_cselect_b32 exec_hi, 0, -1
        buffer_store_dword v9, v4, s[20:23], s26 offen sc1
        s_mov_b64 exec, -1
        L_noot:"""
    WOPF = "s_mov_b32 exec_hi, 0x1ffff\nbuffer_load_dword v6, v219, s[16:19], s28 offen\ns_mov_b64 exec, -1" if "wopfS" not in EXP and "nowopf" not in EXP else ""
    for e in range(7):
        a(f"""v_add_u32 v4, {64*e}, v3
        v_mul_u32_u24 v5, 4682, v4
        v_lshrrev_b32 v5, 16, v5
        v_mul_u32_u24 v5, {896-224}, v5
        v_lshl_add_u32 v{200+e}, v4, 4, v5""")
    a(f"""v_mov_b32 v16, 0
    v_mov_b32 v17, 0
    v_mov_b32 v18, 0
    v_mov_b32 v19, 0
    v_add_u32 v209, {448*224}, v1
    v_bfe_u32 v7, v3, 2, 2
    v_lshl_add_u32 v5, v33, 3, v7
    v_lshlrev_b32 v5, 7, v5
    v_bfe_u32 v4, v3, 4, 1
    v_lshl_add_u32 v5, v4, 5, v5
    v_and_b32 v4, 3, v3
    v_lshl_add_u32 v5, v4, 3, v5
    v_lshrrev_b32 v7, 1, v7
    v_xor_b32 v7, s{L}, v7
    v_and_b32 v7, 1, v7
    v_lshl_add_u32 v5, v7, 6, v5
    v_add_u32 v210, {DI}, v5
    v_lshlrev_b32 v4, 4, v217
    v_lshl_add_u32 v4, v33, 4, v4
    v_add_u32 v218, {HB}, v4
    v_mul_u32_u24 v215, {4*1792}, v33
    v_lshl_add_u32 v215, v32, 2, v215
    v_add_u32 v216, {2*1792}, v215
    s_cmp_eq_u32 s{L}, 2
    s_cbranch_scc1 L_svcB2
    v_lshrrev_b32 v4, 4, v3
    v_and_b32 v5, 15, v3
    v_lshlrev_b32 v5, 2, v5
    v_lshl_add_u32 v221, v4, 9, v5
    v_lshl_add_u32 v222, v4, 5, v14
    v_and_b32 v223, 48, v3
    v_and_b32 v5, 15, v3
    v_add_u32 v6, v5, v4
    v_mul_u32_u24 v224, {4*TS}, v6
    v_add_u32 v224, 1, v224
    v_bfm_b32 v225, v5, 0
    s_mul_i32 s26, s{H}, 28
    s_add_u32 s28, s26, 27
    s_xor_b32 s26, s26, s28
    s_mov_b32 s62, 0x55555555
    s_cmp_ge_u32 s26, 64
    s_cselect_b32 s62, -1, s62
    s_mov_b32 s63, s62
    s_lshr_b32 s28, s{J}, 2
    s_lshl4_add_u32 s26, s{H}, s28
    s_lshl_b32 s26, s26, 7
    s_add_u32 s26, s26, {WS_MB}""")
    spin_lds(a, 14, C_D, PCD, 8, sleep=1)
    at = lambda r: f"v_mov_b32 v{r}, 0\nbuffer_atomic_or v{r}, v221, s[8:11], s26 offen sc0 sc1"
    a(f"""s_mov_b32 s60, {SPIN_LIMIT}
    s_mov_b32 s52, 0x11111111
    s_mov_b32 s53, 0x11111111
    s_mov_b64 s[56:57], s[52:53]
    s_mov_b64 exec, s[62:63]""")
    for i in range(PD - 1): a(at(28 + i) + f"\ns_sleep {PG}")
    a("L_kv:")
    for i in range(PD):
        a(at(28 + (i + PD - 1) % PD))
        a(f"""s_waitcnt vmcnt({PD-1})
        v_cmp_ne_u32 vcc, s{T}, v{28+i}
        s_lshr_b64 s[28:29], vcc, 1
        s_or_b64 s[28:29], s[28:29], vcc
        s_andn2_b64 s[54:55], s[56:57], s[28:29]
        s_cbranch_scc0 L_kvs{i}
        s_ff1_i32_b64 s54, s[54:55]
        s_lshl_b64 exec, 1, s54
        ds_write_b32 v14, v224 offset:{C_M}
        s_mov_b64 exec, s[62:63]
        s_mov_b64 s[56:57], 0
        L_kvs{i}:
        s_lshr_b64 s[54:55], s[28:29], 2
        s_or_b64 s[28:29], s[28:29], s[54:55]
        s_andn2_b64 s[28:29], s[52:53], s[28:29]
        s_cbranch_scc0 L_kvn{i}
        s_andn2_b64 s[52:53], s[52:53], s[28:29]
        v_lshrrev_b64 v[4:5], v223, s[28:29]
        v_and_b32 v5, v225, v4
        v_bcnt_u32_b32 v5, v5, 0
        v_lshl_add_u32 v5, v5, 2, v222
        s_mov_b64 exec, s[28:29]
        ds_write_b32 v5, v224 offset:{C_R}
        s_mov_b64 exec, s[62:63]
        v_and_b32 v4, 0xffff, v4
        v_bcnt_u32_b32 v4, v4, 0
        v_lshl_add_u32 v222, v4, 2, v222
        s_cmp_eq_u64 s[52:53], 0
        s_cbranch_scc1 L_kvdone
        L_kvn{i}:""")
    a(f"""s_sub_u32 s60, s60, 1
    s_cbranch_scc0 L_kv
    s_endpgm
    L_kvdone:
    s_mov_b64 exec, -1
    L_svcB2:""")
    srd(a, 16, 38, 448 * 896)
    a(f"""s_and_b32 s53, s{H}, 3
    s_mul_i32 s53, s53, 224
    s_and_b32 s27, s{L}, 1
    s_mul_i32 s55, s27, {7*1024}
    s_mul_i32 s57, s27, {32*896}
    s_add_u32 s57, s57, s53""")
    spin_lds(a, 14, C_A, 256, 8, sleep=4)
    st(a, 3)
    a("ds_write_b128 v209, v[16:19]")
    lds_inc(a, 14, C_W, 15)
    a(f"""    s_cmp_lg_u32 s{L}, 2
    s_cbranch_scc1 L_nofl
    s_lshl_b32 s26, s2, 7
    s_add_u32 s26, s26, {WS_FL}""")
    flag_store(a, 5, 9, "s26")
    a("L_nofl:\ns_cmp_lt_u32 s2, 196\ns_cbranch_scc1 L_st2w\ns_branch L_wo1")
    a("L_st3:")
    spin_lds(a, 14, C_S, 4, 8, sleep=1)
    for k in range(4):
        a(f"ds_read_b64_tr_b16 {vr(DW+4*k,2)}, v210 offset:{k*2048}\nds_read_b64_tr_b16 {vr(DW+4*k+2,2)}, v210 offset:{k*2048+512}")
    for k in range(4):
        a(f"ds_read_b128 {vr(GP+4*k,4)}, v218 offset:{32*k}\ns_waitcnt lgkmcnt(0)\n{MF} {vr(AC,16)}, {vr(GP+4*k,4)}, {vr(DW+4*k,4)}, {'0' if k==0 else vr(AC,16)}")
    a(f"""s_mul_i32 s26, s{FT}, 14336
    s_lshl1_add_u32 s28, s{KS}, s27
    s_lshl_b32 s29, s28, 7
    s_add_u32 s26, s26, s29
    s_add_u32 s26, s26, {WS_YP}
    s_lshl2_add_u32 s28, s{FT}, s29
    s_add_u32 s28, s28, {WS_YFL}
    buffer_store_dword v{AC}, v215, s[8:11], s26 offen sc1
    buffer_store_dword v{AC+1}, v215, s[8:11], s26 offen offset:1792 sc1
    buffer_store_dword v{AC+2}, v216, s[8:11], s26 offen sc1
    buffer_store_dword v{AC+3}, v216, s[8:11], s26 offen offset:1792 sc1
    s_waitcnt vmcnt(0)""")
    signal(a, 5, 9, "s28", 1)
    st(a, 7)
    a("L_wo1:")
    srd(a, 16, 38, 448 * 896)
    a("s_mov_b32 s27, 0")
    spin_lds(a, 14, C_Z, 64 * ZN, 8, sleep=4)
    st(a, 4)
    a(f"""L_wo:
    s_mov_b64 exec, 1
    ds_add_rtn_u32 v8, v14, v15 offset:{C_B}
    s_mov_b64 exec, -1
    s_waitcnt lgkmcnt(0)
    v_readfirstlane_b32 s26, v8
    s_cmp_ge_u32 s26, 14
    s_cbranch_scc1 L_wodone
    s_add_u32 s27, s27, 1
    s_mul_i32 s55, s26, {7*1024}
    s_mul_i32 s57, s26, {32*896}
    s_add_u32 s57, s57, s53""")
    for e in range(7):
        a(f"""s_add_u32 m0, s55, {e*1024}
        s_waitcnt vmcnt({WD})
        buffer_load_dwordx4 v{200+e}, s[16:19], s57 offen lds""")
    a(f"""s_branch L_wo
    L_wodone:
    v_mov_b32 v5, s27
    s_waitcnt vmcnt(0)""")
    lds_inc(a, 14, C_W, 5)
    st(a, 8)
    a.label("L_ofetch")
    a("s_waitcnt vmcnt(0) lgkmcnt(0)")
    st_end(a)
    a("L_exit:\nL_code_end:\ns_endpgm")

def main(out):
    hdr = open("cdna_kernels/" + NAME + ".s.ref").read().split("; Override")[0]
    rep = []
    a = Asm()
    prologue_and_loader(a); main_wave(a); service_wave(a)
    t = hdr
    t += f"; @launch grid=(256,1,1) block=(512,1,1) lds={LDS_BYTES}\n"
    t += '.amdgcn_target "amdgcn-amd-amdhsa--gfx950"\n'
    t += kernel_text(NAME + "_kernel", a.l, 256, report=rep)
    open(out, "w").write(t)
    if "-v" in sys.argv: print("\n".join(rep))

if __name__ == "__main__":
    main(sys.argv[1])
```

```python
import re

TRANS = ("v_exp_f32", "v_log_f32", "v_rcp_f32", "v_rsq_f32", "v_sqrt_f32", "v_sin_f32", "v_cos_f32",
         "v_rcp_iflag_f32", "v_exp_f16", "v_rcp_f16")

def regs_of(tok):
    tok = tok.strip()
    tok = tok.lstrip('-')
    m = re.fullmatch(r"abs\((.*)\)", tok)
    if m: tok = m.group(1)
    m = re.fullmatch(r"\|(.*)\|", tok)
    if m: tok = m.group(1)
    m = re.fullmatch(r"([vas])(\d+)", tok)
    if m: return [(m.group(1), int(m.group(2)))]
    m = re.fullmatch(r"([vas])\[(\d+):(\d+)\]", tok)
    if m: return [(m.group(1), i) for i in range(int(m.group(2)), int(m.group(3)) + 1)]
    if tok == "vcc": return [("s", "vcc")]
    if tok in ("vcc_lo", "vcc_hi"): return [("s", "vcc")]
    if tok == "exec": return [("s", "exec")]
    if tok == "m0": return [("s", "m0")]
    return []

class Ins:
    def __init__(self, text):
        self.text = text
        t = text.split(";")[0].strip()
        self.is_label = t.endswith(":")
        self.is_dir = t.startswith(".") and not self.is_label
        self.op = ""
        self.dst = []; self.src = []
        self.srcA = []; self.srcC = []
        self.kind = "none"
        if not t or self.is_label or self.is_dir:
            return
        parts = t.split(None, 1)
        self.op = op = parts[0]
        rest = parts[1] if len(parts) > 1 else ""
        ops = []; depth = 0; cur = ""
        for ch in rest:
            if ch == "[": depth += 1
            if ch == "]": depth -= 1
            if ch == "," and depth == 0:
                ops.append(cur); cur = ""
            else:
                cur += ch
        ops.append(cur)
        last = ops[-1].strip().split()
        mods = last[1:] if last else []
        if last: ops[-1] = last[0]
        ops = [o.strip() for o in ops]
        self.mods = " ".join(mods)
        R = [regs_of(o) for o in ops]
        flat = lambda xs: [r for x in xs for r in x]
        self.dpp = "_dpp" in op or "row_" in self.mods or "quad_perm" in self.mods
        if op.startswith("v_mfma"):
            self.kind = "mfma"; self.dst = R[0]; self.srcA = R[1] + R[2]; self.srcC = R[3]
            self.src = self.srcA + self.srcC
            self.passes = 8 if "32x32x16" in op else 4
        elif op.startswith("v_smfmac"):
            self.kind = "mfma"; self.dst = R[0]; self.srcA = R[1] + R[2] + R[3]; self.srcC = R[0]
            self.src = self.srcA + self.srcC
            self.passes = 8 if "32x32" in op else 4
        elif op.startswith("v_"):
            self.kind = "valu"
            base = op.replace("_e32", "").replace("_e64", "").replace("_dpp", "").replace("_sdwa", "")
            self.base = base
            if base.startswith("v_cmp"):
                self.dst = R[0]; self.src = flat(R[1:])
                if base.startswith("v_cmpx"): self.dst = self.dst + [("s", "exec")]
            elif (base.startswith("v_permlane") and "swap" in base) or base == "v_swap_b32":
                self.dst = R[0] + R[1]; self.src = R[0] + R[1]
            elif base in ("v_add_co_u32", "v_sub_co_u32", "v_subrev_co_u32"):
                self.dst = R[0] + R[1]; self.src = flat(R[2:])
            elif base in ("v_addc_co_u32", "v_subb_co_u32"):
                self.dst = R[0] + R[1]; self.src = flat(R[2:])
            elif base == "v_nop":
                pass
            else:
                self.dst = R[0]; self.src = flat(R[1:])
                if base in ("v_fmac_f32", "v_dot2c_f32_bf16", "v_writelane_b32") or self.dpp or "_sdwa" in op:
                    self.src = self.src + R[0]
            self.trans = base in TRANS
        elif op.startswith("ds_"):
            self.kind = "ds"
            if op.startswith("ds_read") or op.startswith("ds_bpermute") or op.startswith("ds_swizzle") or "_rtn" in op:
                self.dst = R[0]; self.src = flat(R[1:])
            else:
                self.src = flat(R)
        elif op.startswith("buffer_") or op.startswith("global_"):
            self.kind = "vmem"
            lds = " lds" in (" " + self.mods) or "_lds_" in op
            self.lds = lds
            if op in ("buffer_inv", "buffer_wbl2"):
                pass
            elif "load" in op and not lds:
                self.dst = R[0]; self.src = flat(R[1:])
            elif "atomic" in op and "sc0" in self.mods:
                if op.startswith("global"):
                    self.dst = R[0]; self.src = flat(R[1:])
                else:
                    self.dst = R[0]; self.src = flat(R)
            else:
                self.src = flat(R)
            self.wide_store = ("store" in op and ("x3" in op or "x4" in op))
            if self.wide_store:
                self.store_data = R[0] if op.startswith("buffer") else R[1]
        elif op.startswith("s_"):
            self.kind = "salu"
            if op.startswith(("s_cmp", "s_cbranch", "s_branch", "s_waitcnt", "s_nop", "s_barrier", "s_endpgm",
                              "s_setprio", "s_sleep", "s_bitcmp", "s_setpc")):
                self.src = flat(R)
            else:
                self.dst = R[0]; self.src = flat(R[1:])
                if "saveexec" in op: self.dst = self.dst + [("s", "exec")]
    def states(self):
        if self.kind == "none": return 0
        if self.op == "s_nop":
            return int(self.text.split(";")[0].split()[1], 0) + 1
        return 1

def slots(i, prev, cur):
    if prev.kind == "mfma":
        if i.kind == "valu" and i.trans: return 2
        if i.kind == "mfma" and cur.kind in ("valu", "mfma"): return 2
    return i.states()

def need(prev, cur):
    n = 0
    pd = set(prev.dst); cs = set(cur.src); cd = set(cur.dst)
    vp = lambda S: {r for r in S if r[0] in "va"}
    sp = lambda S: {r for r in S if r[0] == "s"}
    if prev.kind == "mfma":
        p = prev.passes
        if cur.kind == "mfma":
            if pd & set(cur.srcA): n = max(n, p + 4)
            if pd & set(cur.srcC):
                if not (set(cur.srcC) == pd and cur.passes == p): n = max(n, p + 2)
            elif pd & cd:
                n = max(n, p + 2)
        elif cur.kind in ("valu", "ds", "vmem"):
            if pd & (cs | cd): n = max(n, p + 4)
            if cur.kind == "valu" and set(prev.srcC) & cd: n = max(n, p - 1)
    if prev.kind == "valu":
        if cur.kind == "mfma":
            if vp(pd) & cs: n = max(n, 2)
            if ("s", "exec") in pd: n = max(n, 4)
        if cur.kind == "valu":
            if prev.trans and vp(pd) & (cs) and not cur.trans: n = max(n, 1)
            if prev.trans and vp(pd) & cs and cur.trans: n = max(n, 1)
            if cur.dpp and vp(pd) & cs: n = max(n, 2)
            if cur.dpp and ("s", "exec") in pd: n = max(n, 5)
            if cur.base.startswith("v_permlane") and vp(pd) & cs: n = max(n, 2)
            if cur.base in ("v_readlane_b32", "v_readfirstlane_b32") and vp(pd) & cs: n = max(n, 1)
            if sp(pd) & cs:
                n = max(n, 4 if cur.base in ("v_readlane_b32", "v_writelane_b32") else 2)
            if ("s", "exec") in pd and cur.base in ("v_readlane_b32", "v_readfirstlane_b32", "v_writelane_b32"): n = max(n, 4)
            if ("_sdwa" in prev.op or "op_sel" in prev.mods) and vp(pd) & (cs | cd): n = max(n, 1)
            if prev.base.startswith("v_dot") and vp(pd) & (cs | cd):
                if not (cur.base == prev.base): n = max(n, 3)
        if cur.kind == "vmem" and sp(pd) & cs: n = max(n, 5)
        if prev.base.startswith("v_dot") and cur.kind in ("vmem", "ds") and vp(pd) & cs: n = max(n, 3)
        if prev.trans and cur.kind in ("vmem", "ds") and vp(pd) & cs: n = max(n, 1)
    if prev.kind == "salu":
        if ("s", "m0") in pd and cur.kind == "vmem" and cur.lds: n = max(n, 1)
    if prev.kind == "vmem" and getattr(prev, "wide_store", False):
        if set(prev.store_data) & cd: n = max(n, 2)
    return n

def fix_hazards(lines, report=None, wrap_loops=True):
    ins = [Ins(l) for l in lines]
    out = []
    for cur in ins:
        if cur.kind != "none":
            dist = 0; worst = 0; why = None; between = []
            for prev in reversed(out):
                if prev.kind == "none": continue
                r = need(prev, cur) - sum(slots(b, prev, cur) for b in between)
                if r > worst: worst = r; why = prev
                between.append(prev)
                dist += prev.states()
                if dist > 24: break
            if worst > 0:
                if report is not None: report.append(f"nop {worst}: [{why.text.strip()}] -> [{cur.text.strip()}]")
                w = worst
                while w > 0:
                    k = min(w, 16)
                    out.append(Ins(f"    s_nop {k-1}"))
                    w -= k
        out.append(cur)
    labels = {i.text.split(";")[0].strip()[:-1]: k for k, i in enumerate(out) if i.is_label}
    probs = []
    for k, i in enumerate(out):
        if i.op.startswith(("s_cbranch", "s_branch")):
            tgt = i.text.split(";")[0].split()[1]
            if tgt not in labels or tgt.startswith("L_wk"): continue
            before = [x for x in out[max(0, k - 40):k + 1] if x.kind != "none"]
            after = [x for x in out[labels[tgt]:labels[tgt] + 40] if x.kind != "none"]
            d_after = 0; aft = []
            for c in after:
                dist = d_after; between = list(aft)
                for p in reversed(before):
                    have = sum(slots(b, p, c) for b in between)
                    if need(p, c) > have:
                        probs.append(f"BRANCH-EDGE hazard via {tgt}: [{p.text.strip()}] -> [{c.text.strip()}] need {need(p,c)} have {have}")
                    between.append(p)
                    dist += p.states()
                    if dist > 24: break
                aft.append(c)
                d_after += c.states()
                if d_after > 24: break
                if c.op in ("s_branch", "s_endpgm"): break
    return [i.text for i in out], probs

class Asm:
    def __init__(self):
        self.l = []
    def __call__(self, s):
        for line in s.split("\n"):
            line = line.strip()
            if not line: continue
            if line.endswith(":") or line.startswith("."):
                self.l.append(line)
            else:
                self.l.append("    " + line)
    def label(self, s): self.l.append(s + ":")

def vr(b, n=1):
    return f"v{b}" if n == 1 else f"v[{b}:{b+n-1}]"
def sr(b, n=1):
    return f"s{b}" if n == 1 else f"s[{b}:{b+n-1}]"

def kernel_text(name, body_lines, vgpr, sgpr=102, agpr=0, report=None):
    lines, probs = fix_hazards(body_lines, report)
    for p in probs: print("WARNING", name, p)
    acc = (vgpr + 3) // 4 * 4
    nfv = acc + agpr if agpr else vgpr
    t = f".text\n.globl {name}\n.p2align 8\n.type {name},@function\n{name}:\n" + "\n".join(lines) + "\n"
    t += f""".section .rodata,"a"
.p2align 6
.amdhsa_kernel {name}
  .amdhsa_next_free_vgpr {nfv}
  .amdhsa_next_free_sgpr {sgpr}
  .amdhsa_accum_offset {acc}
  .amdhsa_group_segment_fixed_size 0
  .amdhsa_kernarg_size 96
  .amdhsa_user_sgpr_count 2
  .amdhsa_user_sgpr_kernarg_segment_ptr 1
  .amdhsa_system_sgpr_workgroup_id_x 1
  .amdhsa_float_denorm_mode_32 3
.end_amdhsa_kernel
"""
    return t
```

```python
import sys, math, struct
from asmlib import *

NAME = "gated_mix__softmax_full_mha__moe_arch_mod__prompt"
STAMP = "-s" in sys.argv
EXP = set(x[2:] for x in sys.argv if x.startswith("-x"))
WS_KV = 0
BLK = 5120; TS = 14 * BLK; KVB = 64 * TS
WS_O = 0x480000
WS_R = 0x680000
WS_G = WS_R + 16384
WS_SEL = WS_R + 32768
WS_EP = WS_R + 40960
WS_FL = WS_R + 65536
WS_MB = WS_FL + 32768
WS_OFL = WS_MB + 32768
WS_YFL = WS_OFL + 32768
WS_F1 = WS_YFL + 4096
WS_YP = WS_R + (1 << 18)
WS_GP = 0x730000
WS_ST = 16 << 20
XS = 0; WT = 65536; WQ = 122880; QX = 151552; UPD = 159744
WO = 0; CB = 102400
UPDI = UPD + 3584
KEYS = UPD
RT = UPD + 1024
CAND = UPD + 512
SELECTOR = 223
CNT = 163840 - 192
C_M = 88
LDS_BYTES = 163840
C_Q1, C_Q2, C_X, C_L, C_S, C_D, C_C, C_O, C_W, C_F, C_K, C_T, C_P, C_R = 0, 4, 8, 12, 16, 20, 24, 28, 32, 36, 40, 44, 48, 64

def f32bits(x): return struct.unpack("<I", struct.pack("<f", x))[0]
QSCALE = f32bits(28 ** -0.5 * math.log2(math.e))
NLOG2E = f32bits(-math.log2(math.e))
MF = "v_mfma_f32_32x32x16_bf16"
ROLE = [0, 1, 2, 3, 14, 4, 5, 6, 7, 8, 9, 15, 10, 11, 12, 13]
ROLE_LO = sum(ROLE[i] << (4 * i) for i in range(8))
ROLE_HI = sum(ROLE[8 + i] << (4 * i) for i in range(8))
SPIN_LIMIT = 1 << 20
NW1 = ([int(x[2:]) for x in EXP if x.startswith("nw")] + [14])[0]
WD = ([int(x[2:]) for x in EXP if x.startswith("wd")] + [14])[0]
GA = ([int(x[2:]) for x in EXP if x.startswith("ga")] + [0])[0]
GB = ([int(x[2:]) for x in EXP if x.startswith("gb")] + [12])[0]
C_A, C_B, C_Z = 92, 120, 124
ZN = ([int(x[2:]) for x in EXP if x.startswith("zn")] + [2])[0]
ZU = ([int(x[2:]) for x in EXP if x.startswith("zu")] + [1])[0]
NEARLYWO = ([int(x[2:]) for x in EXP if x.startswith("ew")] + [0])[0]
NQ1 = ([int(x[2:]) for x in EXP if x.startswith("nq")] + [4])[0]
WSBASE = ([int(x[2:]) for x in sys.argv if x.startswith("-w")] + [0])[0] << 20
PD = 2 if "pd2" in EXP else 4
PG = 6 if "pd2" in EXP else 3
PCD = 4 if "pcd4" in EXP else (0 if "pcd0" in EXP else 1)
KVS = 4 if "kvs4" in EXP else (0 if "kvs0" in EXP else 2)
PQ2 = 4 if "pq4" in EXP else (0 if "pq0" in EXP else 1)
PF0 = 2 if "pf2" in EXP else 0
WOP = 1 if "wo1" in EXP else (3 if "wo3" in EXP else 2)
OUTAUX = " sc1" if "outsc1" in EXP else (" nt" if "outnt" in EXP else "")

T, H, J, W, RL, ROT = 30, 31, 32, 33, 34, 3
_uid = [0]
def uid(p):
    _uid[0] += 1
    return f"{p}_{_uid[0]}"

def srd(a, d, ptr, nbytes):
    a(f"s_mov_b32 s{d}, s{ptr}\ns_mov_b32 s{d+1}, s{ptr+1}\ns_mov_b32 s{d+2}, {nbytes:#x}\ns_mov_b32 s{d+3}, 0x20000")

NST = 12
DIAG = [tuple(int(y) for y in x[2:].split("-")) for x in sys.argv if x.startswith("-d")]
def st(a, i):
    if STAMP: a(f"s_{'memrealtime' if 'rt' in EXP else 'memtime'} s[{72+2*i}:{73+2*i}]")
    if DIAG and i in DIAG[0]: a(f"s_memrealtime s[{72+2*i}:{73+2*i}]\ns_waitcnt lgkmcnt(0)")
def st_begin(a):
    if STAMP: a("s_memrealtime s[68:69]\ns_memtime s[72:73]" if "rt" not in EXP else "s_memrealtime s[68:69]\ns_memrealtime s[72:73]")
    if DIAG: a("s_memrealtime s[72:73]")
ABS = [x[2:] for x in sys.argv if x.startswith("-a")]
REL = [tuple(int(y) for y in x[2:].split("-")) for x in sys.argv if x.startswith("-r")]
if ABS:
    DIAG = [(0, 0 if ABS[0] == "z" else int(ABS[0].lstrip("m")))]
if REL:
    ABS = ["r"]; DIAG = REL
def diag_start(a):
    if not ABS: return
    a(f"""s_load_dwordx2 s[98:99], s[0:1], 80
    s_waitcnt lgkmcnt(0)
    s_cmp_ge_u32 s2, 8
    s_cbranch_scc1 L_dg0
    s_cmp_lg_u32 s{W}, 0
    s_cbranch_scc1 L_dg0
    s_lshl_b32 s70, s2, 2
    v_mov_b32 v4, s70
    v_mov_b32 v6, s72
    global_store_dword v4, v6, s[98:99] sc1
    L_dg0:""")
def diag_end(a):
    if not DIAG: return
    p, q = DIAG[0]
    if ABS:
        a(f"""s_waitcnt vmcnt(0)
        s_memrealtime s[96:97]
        s_mov_b64 exec, -1
        v_mov_b32 v4, 0
        global_load_dwordx4 v[8:11], v4, s[98:99] sc1
        global_load_dwordx4 v[12:15], v4, s[98:99] offset:16 sc1
        s_waitcnt vmcnt(0) lgkmcnt(0)
        v_min3_u32 v8, v8, v9, v10
        v_min3_u32 v8, v8, v11, v12
        v_min3_u32 v8, v8, v13, v14
        v_min_u32 v8, v8, v15
        s_nop 1
        v_readfirstlane_b32 s69, v8
        s_sub_u32 s70, s{72+2*q}, s69""")
        if ABS[0] == "z": a("s_mov_b32 s70, 0")
        if REL: a(f"s_sub_u32 s70, s{72+2*q}, s{72+2*p}\ns_lshl_b32 s70, s70, {0 if 'k1' in EXP else 2}")
        for x in EXP:
            if x.startswith("hm"): a(f"s_mov_b32 s71, 0x{x[2:]}\ns_bitcmp1_b32 s71, s{H}\ns_cselect_b32 s70, s70, 0")
            if x.startswith("jm"): a(f"s_mov_b32 s71, 0x{x[2:]}\ns_bitcmp1_b32 s71, s{J}\ns_cselect_b32 s70, s70, 0")
        if "onlynw" in EXP: a("s_cmp_ge_u32 s2, 196\ns_cselect_b32 s70, s70, 0")
        if "only23" in EXP: a(f"s_cmp_ge_u32 s{W}, 2\ns_cselect_b32 s70, s70, 0")
        if ABS[0].startswith("m"): a("s_sub_u32 s70, 2500, s70")
        a("s_add_u32 s70, s70, s69\ns_add_u32 s70, s70, 2500")
    else:
        a(f"""s_waitcnt vmcnt(0)
        s_memrealtime s[96:97]
        s_waitcnt lgkmcnt(0)
        s_sub_u32 s70, s{72+2*q}, s{72+2*p}
        s_add_u32 s70, s70, s96""")
    a(f"""L_diag:
    s_memrealtime s[68:69]
    s_waitcnt lgkmcnt(0)
    s_sub_u32 s71, s68, s70
    s_cmp_lt_i32 s71, 0
    s_cbranch_scc1 L_diag""")
def st_init(a):
    if STAMP:
        for i in range(1, NST): a(f"s_mov_b32 s{72+2*i}, s72")
def st_end(a):
    if not STAMP: return
    a(f"""s_waitcnt vmcnt(0)
    s_memrealtime s[70:71]
    s_{'memrealtime' if 'rt' in EXP else 'memtime'} s[{72+2*NST}:{73+2*NST}]
    s_getreg_b32 s66, hwreg(HW_REG_HW_ID)
    s_getreg_b32 s67, hwreg(HW_REG_XCC_ID)
    s_mov_b64 exec, -1
    s_lshl_b32 s65, s2, 3
    s_add_u32 s65, s65, s{W}
    s_lshl_b32 s65, s65, 6
    s_add_u32 s65, s65, {WS_ST}
    s_waitcnt lgkmcnt(0)
    v_mov_b32 v4, s68
    v_mov_b32 v5, s70
    v_mov_b32 v6, s66
    v_mov_b32 v7, s67""")
    for i in range(1, NST + 1):
        a(f"s_sub_u32 s64, s{72+2*i}, s72\nv_mov_b32 v{7+i}, s64")
    a("v_mov_b32 v2, 0\ns_mov_b64 exec, 1")
    for k in range(4):
        a(f"buffer_store_dwordx4 v[{4+4*k}:{7+4*k}], v2, s[8:11], s65 offen offset:{16*k}")

def poll_global(a, vdst, voff, soff, mask=None, sleep=1):
    l = uid("Lpoll"); d = uid("Lpd")
    a(f"s_mov_b32 s60, {SPIN_LIMIT}")
    if mask is not None: a(f"s_mov_b64 exec, {mask}")
    a(f"""{l}:
    buffer_load_dword v{vdst}, v{voff}, s[8:11], {soff} offen sc1
    s_waitcnt vmcnt(0)
    v_cmp_ne_u32 vcc, s{T}, v{vdst}
    s_cbranch_vccz {d}
    s_mov_b64 exec, vcc
    s_sleep {sleep}
    s_sub_u32 s60, s60, 1
    s_cbranch_scc0 {l}
    s_endpgm
    {d}:
    s_mov_b64 exec, -1""")

def poll_atomic(a, vdst, voff, soff, mask, sleep):
    l = uid("Lpa"); d = uid("Lpad")
    a(f"""s_mov_b32 s60, {SPIN_LIMIT}
    s_mov_b64 exec, {mask}
    {l}:
    v_mov_b32 v{vdst}, 0
    buffer_atomic_or v{vdst}, v{voff}, s[8:11], {soff} offen sc0 sc1
    s_waitcnt vmcnt(0)
    v_cmp_ne_u32 vcc, s{T}, v{vdst}
    s_cbranch_vccz {d}
    s_sleep {sleep}
    s_sub_u32 s60, s60, 1
    s_cbranch_scc0 {l}
    s_endpgm
    {d}:
    s_mov_b64 exec, -1""")

def poll_pipe(a, v0, voff, soff, mask, D=4, gap=3):
    l = uid("Lpp"); d = uid("Lppd")
    at = lambda r: f"v_mov_b32 v{r}, 0\nbuffer_atomic_or v{r}, v{voff}, s[8:11], {soff} offen sc0 sc1"
    a(f"s_mov_b32 s60, {SPIN_LIMIT}\ns_mov_b64 exec, {mask}")
    for i in range(D - 1): a(at(v0 + i) + f"\ns_sleep {gap}")
    a(f"{l}:")
    for i in range(D):
        a(at(v0 + (i + D - 1) % D))
        a(f"s_waitcnt vmcnt({D-1})\nv_cmp_ne_u32 vcc, s{T}, v{v0+i}\ns_cbranch_vccz {d}")
    a(f"""s_sub_u32 s60, s60, 1
    s_cbranch_scc0 {l}
    s_endpgm
    {d}:
    s_mov_b64 exec, -1""")

def signal(a, vt, voff, soff, mask):
    a(f"v_mov_b32 v{vt}, s{T}\ns_mov_b64 exec, {mask}\nbuffer_atomic_swap v{vt}, v{voff}, s[8:11], {soff} offen sc1\ns_mov_b64 exec, -1")

def spin_lds(a, vaddr, off, want, vt, sleep=0):
    l = uid("Lsp"); d = uid("Lsd")
    if not sleep:
        a(f"""s_mov_b32 s60, {SPIN_LIMIT}
        {l}:
        ds_read_b32 v{vt}, v{vaddr} offset:{off}
        s_sub_u32 s60, s60, 1
        s_cbranch_scc1 L_exit
        s_waitcnt lgkmcnt(0)
        v_readfirstlane_b32 s61, v{vt}
        s_cmp_ge_u32 s61, {want}
        s_cbranch_scc0 {l}""")
        return
    a(f"""s_mov_b32 s60, {SPIN_LIMIT}
    {l}:
    ds_read_b32 v{vt}, v{vaddr} offset:{off}
    s_waitcnt lgkmcnt(0)
    v_readfirstlane_b32 s61, v{vt}
    s_cmp_ge_u32 s61, {want}
    s_cbranch_scc1 {d}""")
    if sleep: a(f"s_sleep {sleep}")
    a(f"""s_sub_u32 s60, s60, 1
    s_cbranch_scc0 {l}
    s_endpgm
    {d}:""")

def lds_inc(a, vaddr, off, vone):
    a(f"s_mov_b64 exec, 1\nds_add_u32 v{vaddr}, v{vone} offset:{off}\ns_mov_b64 exec, -1")

def flag_store(a, vt, vz, soff):
    a(f"v_mov_b32 v{vt}, s{T}\ns_mov_b64 exec, 1\nbuffer_store_dword v{vt}, v{vz}, s[8:11], {soff} offen sc1\ns_mov_b64 exec, -1")

def split_neg_max(a, m, t0, t1, q6, q7):
    a(f"""v_sub_f32 v{m}, 0, v{m}
    v_cvt_pk_bf16_f32 v{t0}, v{m}, v{m}
    v_lshlrev_b32 v{t0}, 16, v{t0}
    v_sub_f32 v{t0}, v{m}, v{t0}
    v_cvt_pk_bf16_f32 v{t1}, v{m}, v{t0}
    v_and_b32 v{m}, 0xffff0000, v{t1}
    v_sub_f32 v{t0}, v{t0}, v{m}
    s_mov_b32 exec_lo, 0
    v_mov_b32 v{q6}, v{t1}
    v_cvt_pk_bf16_f32 v{q7}, v{t0}, 0
    s_mov_b32 exec_lo, -1""")

def max16_list(dst, S, init=False):
    if not init:
        return ([f"v_max3_f32 v{dst}, v{S}, v{S+1}, v{S+2}"] +
                [f"v_max3_f32 v{dst}, v{dst}, v{S+i}, v{S+i+1}" for i in range(3, 15, 2)] +
                [f"v_max_f32 v{dst}, v{dst}, v{S+15}"])
    return [f"v_max3_f32 v{dst}, v{dst}, v{S+i}, v{S+i+1}" for i in range(0, 16, 2)]

def wave_min_u32(a, v, full=True):
    for r in (1, 2, 4, 8):
        a(f"v_min_u32_dpp v{v}, v{v}, v{v} row_ror:{r} row_mask:0xf bank_mask:0xf")
    a(f"v_min_u32_dpp v{v}, v{v}, v{v} row_bcast:15 row_mask:0xa bank_mask:0xf")
    if full: a(f"v_min_u32_dpp v{v}, v{v}, v{v} row_bcast:31 row_mask:0xc bank_mask:0xf")

def rank_count(a, own, base, n, dst, t):
    a(f"v_mov_b32 v{dst}, 0\nv_mov_b32 v{t}, 0")
    for k in range(0, n, 4):
        a(f"s_waitcnt lgkmcnt({(n-k)//4-1})")
        for e in range(4): a(f"v_sub_u32 v{base+k+e}, v{own}, v{base+k+e}")
        for e in range(4):
            r = (dst, t)[e & 1]
            a(f"v_alignbit_b32 v{r}, v{r}, v{base+k+e}, 31")
    a(f"v_bcnt_u32_b32 v{dst}, v{dst}, 0\nv_bcnt_u32_b32 v{dst}, v{t}, v{dst}")

def tag(a):
    a(f"s_mul_i32 s{T}, s{T}, 0x9e3779b1\ns_add_u32 s{T}, s{T}, 0x7f4a7c15")

def next_chunk(a, s):
    a(f"s_add_u32 s{s}, s{s}, 1\ns_cmp_eq_u32 s{s}, 7\ns_cselect_b32 s{s}, 0, s{s}")

Q, O, KV, S, P = 8, 40, 104, 168, 200
XF = 104; A0, A1, WF = 40, 56, 72
VX = 216; VW = 220; VQ = 222; VC = 223; V1 = 224; VZ = 225; VT = 226; VH = 227
VA = 228; TMP = 232; XR = 240; GR = 248; VWQ = 250; VF = 251; VFS = 252; VXO = 253; VGO = 254
VI = 219
SM = "v_smfmac_f32_32x32x32_bf16"
OWN = 3
L = 35

def prologue_and_loader(a):
    MAPCODE = ""
    if "map2" in EXP:
        MAPCODE = f"s_and_b32 s26, s25, 1\ns_lshl1_add_u32 s{H}, s24, s26\ns_lshr_b32 s{J}, s25, 1\ns_lshl1_add_u32 s{ROT}, s26, s{J}\ns_add_u32 s{ROT}, s{ROT}, s24\ns_and_b32 s{ROT}, s{ROT}, 3\ns_lshl_b32 s{ROT}, s{ROT}, 1"
        if "norot" in EXP: MAPCODE += f"\ns_mov_b32 s{ROT}, 0"
    TADDR = "v_lshl_add_u32 v8, v3, 7, s58"
    if "tfull" in EXP: TADDR = "s_add_u32 s58, s58, 2048\nv_add_u32 v8, s58, v1"
    elif "t32" in EXP: TADDR = "v_and_b32 v8, 62, v3\nv_mul_u32_u24 v8, 48, v8\nv_add3_u32 v8, v8, v1, s58"
    else: TADDR = "v_and_b32 v8, 60, v3\nv_lshl_add_u32 v8, v8, 4, s58\nv_add_u32 v8, v8, v1"
    if "rot7" in EXP:
        ROTCODE = f"s_lshl1_add_u32 s{ROT}, s27, s26\ns_cmp_ge_u32 s{ROT}, 7\ns_cselect_b32 s26, 7, 0\ns_sub_u32 s{ROT}, s{ROT}, s26"
    elif "rot2" not in EXP and "norot" not in EXP and "rot23" not in EXP:
        ROTCODE = f"s_add_u32 s{ROT}, s27, s26\ns_and_b32 s{ROT}, s{ROT}, 3\ns_lshl_b32 s{ROT}, s{ROT}, 1"
    elif "norot" in EXP:
        ROTCODE = f"s_mov_b32 s{ROT}, 0"
    elif "rot23" in EXP:
        ROTCODE = f"s_add_u32 s{ROT}, s27, s26\ns_and_b32 s{ROT}, s{ROT}, 1\ns_mul_i32 s{ROT}, s{ROT}, 3"
    else:
        ROTCODE = f"s_add_u32 s{ROT}, s27, s26\ns_and_b32 s{ROT}, s{ROT}, 1\ns_lshl_b32 s{ROT}, s{ROT}, 2"
    st_begin(a)
    a(f"""s_load_dwordx4 s[4:7], s[0:1], 0
    s_load_dwordx2 s[36:37], s[0:1], 88
    s_load_dwordx2 s[38:39], s[0:1], 16
    s_load_dwordx8 s[40:47], s[0:1], 32
    s_load_dwordx4 s[48:51], s[0:1], 64
    s_cmp_ge_u32 s2, 256
    s_cbranch_scc1 L_exit
    v_lshrrev_b32 v2, 6, v0
    v_and_b32 v3, 63, v0
    s_and_b32 s24, s2, 7
    s_lshr_b32 s25, s2, 3
    v_readfirstlane_b32 s{W}, v2
    s_and_b32 s{H}, s24, 1
    s_lshl_b32 s{H}, s{H}, 3
    s_and_b32 s26, s25, 7
    s_add_u32 s{H}, s{H}, s26
    s_lshr_b32 s27, s25, 3
    s_and_b32 s{J}, s24, 6
    s_lshl1_add_u32 s{J}, s{J}, s27
    {ROTCODE}
    {MAPCODE}
    s_mov_b32 s28, {ROLE_LO:#x}
    s_mov_b32 s29, {ROLE_HI:#x}
    s_lshl_b32 s27, s{H}, 2
    s_lshr_b64 s[28:29], s[28:29], s27
    s_and_b32 s{RL}, s28, 15
    v_lshlrev_b32 v1, 4, v3
    s_mov_b32 s27, {WS_EP}
    s_cmp_lt_u32 s{W}, 4
    s_cbranch_scc1 L_main
    """)
    a(f"""s_setprio 2
    s_sub_u32 s{L}, s{W}, 4
    v_lshrrev_b32 v4, 3, v3
    v_mul_u32_u24 v5, 896, v4
    v_and_b32 v6, 7, v3
    v_lshrrev_b32 v7, 4, v3
    v_xor_b32 v7, v6, v7
    v_lshl_add_u32 v10, v7, 4, v5
    v_xor_b32 v11, 64, v10
    v_add_u32 v12, {2*6144}, v10
    v_add_u32 v13, {3*6144}, v11
    v_add_u32 v11, 6144, v11
    v_mul_u32_u24 v5, 2688, v4
    v_and_b32 v4, 2, v4
    v_lshlrev_b32 v4, 1, v4
    v_xor_b32 v4, v4, v6
    v_lshl_add_u32 v14, v4, 4, v5
    v_add_u32 v15, {8*2688-1024}, v14
    s_lshl2_add_u32 s52, s{J}, s{L}
    s_mul_i32 s58, s52, 14
    s_add_u32 s58, s58, s{RL}
    s_mul_i32 s58, s58, {BLK}
    {TADDR}
    s_mul_i32 s52, s52, {32*896}
    s_lshl_b32 s53, s{RL}, 7
    s_mul_i32 s26, s{L}, {16*2688}
    s_add_u32 s53, s53, s26
    s_add_u32 s53, s53, 896
    s_lshl_b32 s54, s{L}, 12
    s_lshl_b32 s55, s{L}, 11
    s_add_u32 s55, s55, {WT}
    s_mov_b32 s56, s{ROT}
    s_mov_b32 s57, 0
    s_mov_b32 s14, {2048*896}
    s_mov_b32 s15, 0x20000
    s_cmp_ge_u32 s{RL}, 14
    s_cselect_b32 s18, 0, {448*2688}
    s_mov_b32 s19, 0x20000
    s_waitcnt lgkmcnt(0)
    s_mov_b64 s[12:13], s[4:5]
    s_mov_b64 s[16:17], s[6:7]
    s_load_dword s{T}, s[36:37], s27""")
    st_init(a); st(a, 1)
    TPOS = ([int(x[2:]) for x in EXP if x.startswith("tp")] + [4])[0]
    TOUCH = "global_store_dwordx4 v8, v[10:13], s[36:37] sc1\nglobal_store_dwordx4 v8, v[10:13], s[36:37] offset:2048 sc1"
    if "tfull" in EXP:
        TOUCH = "\n".join(f"global_store_dwordx4 v8, v[10:13], s[36:37] offset:{1024*k-2048} sc1" for k in range(5))
    if "t32" in EXP: TOUCH = "global_store_dwordx4 v8, v[10:13], s[36:37] sc1"
    if "notouch" in EXP: TOUCH = ""
    a("s_cbranch_scc1 L_tbl")
    if TPOS == 0: a(TOUCH)
    a(f"""L_ld:
    s_mul_i32 s26, s56, {64*2688}
    s_mov_b32 m0, s55
    s_add_u32 s26, s26, s53
    s_lshl_b32 s28, s56, 7
    buffer_load_dwordx4 v14, s[16:19], s26 offen lds
    buffer_load_dwordx4 v15, s[16:19], s26 offen offset:1024 lds
    s_mov_b32 m0, s54
    s_add_u32 s28, s28, s52
    buffer_load_dwordx4 v10, s[12:15], s28 offen lds
    buffer_load_dwordx4 v11, s[12:15], s28 offen offset:1024 lds
    buffer_load_dwordx4 v12, s[12:15], s28 offen offset:2048 lds
    buffer_load_dwordx4 v13, s[12:15], s28 offen offset:3072 lds
    s_add_u32 s55, s55, 8192
    s_add_u32 s54, s54, 16384
    s_and_b32 s54, s54, 0xffff""")
    next_chunk(a, 56)
    if "tlb" in EXP:
        a(f"s_or_b32 s26, s57, s{L}\ns_cbranch_scc0 L_tlb\nL_tlb_done:")
    if "tsplit" in EXP:
        a(f"s_sub_u32 s26, s57, {TPOS-1}\ns_cmp_ge_u32 s26, 2\ns_cbranch_scc1 L_nt\ns_cmp_eq_u32 s18, 0\ns_cbranch_scc1 L_nt\nglobal_store_dwordx4 v8, v[10:13], s[36:37] sc1\nv_add_u32 v8, 2048, v8\nL_nt:")
    elif TPOS:
        a(f"s_cmp_lg_u32 s57, {TPOS-1}\ns_cbranch_scc1 L_nt")
        if "mbt" in EXP:
            a(f"""s_lshl2_add_u32 s26, s{H}, s{L}
            s_lshr_b32 s28, s{J}, 2
            s_lshl2_add_u32 s26, s26, s28
            s_lshl_b32 s26, s26, 7
            s_add_u32 s26, s26, {WS_MB}
            v_mov_b32 v4, s26
            v_mov_b32 v5, 0
            s_mov_b64 exec, 1
            global_atomic_or v4, v5, s[36:37] sc1
            s_mov_b64 exec, -1""")
        a(f"s_cmp_eq_u32 s18, 0\ns_cbranch_scc1 L_nt\n{TOUCH}\nL_nt:")
    a(f"""s_add_u32 s57, s57, 1
    s_cmp_lt_u32 s57, 3
    s_cbranch_scc1 L_ld
    s_waitcnt vmcnt(12)
    s_barrier
    s_cmp_lt_u32 s57, 7
    s_cbranch_scc1 L_ld
    """)
    a(f"""v_lshrrev_b32 v4, 2, v3
    v_mul_u32_u24 v4, 2688, v4
    v_and_b32 v5, 3, v3
    v_lshl_add_u32 v16, v5, 4, v4
    s_mov_b32 s18, {448*2688}
    s_mul_i32 s53, s{H}, 56
    s_and_b32 s53, s53, 0xfffffff0
    s_mul_i32 s26, s{L}, {16*2688}
    s_add_u32 s53, s53, s26
    s_lshl_b32 s55, s{L}, 10
    s_add_u32 s55, s55, {WQ}""")
    for i in range(NQ1):
        a(f"""s_mul_i32 s26, s56, {64*2688}
        s_add_u32 m0, s55, {i*4096}
        s_add_u32 s26, s26, s53
        buffer_load_dwordx4 v16, s[16:19], s26 offen lds""")
        if i < NQ1 - 1: next_chunk(a, 56)
        if i == 1: a("s_waitcnt vmcnt(8)\ns_barrier")
        if i == 3: a("s_waitcnt vmcnt(4)\ns_barrier")
    st(a, 2)
    a("s_branch L_service")
    a(f"""L_tbl:
    s_bitcmp1_b32 s{L}, 0
    s_cselect_b64 s[20:21], s[48:49], s[40:41]
    s_cselect_b32 s26, 1024, 0
    s_movk_i32 s22, 896
    s_mov_b32 s23, 0x20000
    s_add_u32 m0, s26, {RT}
    s_lshl_b32 s28, s{ROT}, 7
    v_add_u32 v4, s28, v1
    v_subrev_u32 v6, 896, v4
    v_min_u32 v4, v4, v6
    buffer_load_dwordx4 v4, s[20:23], 0 offen lds
    s_branch L_ld""")
    if "tlb" in EXP:
        a("L_tlb:")
        if "tlbR" in EXP: a(f"s_cmp_lt_u32 s{RL}, 14\ns_cbranch_scc1 L_tlb_done")
        for off in (0, 2 << 20, 4 << 20):
            a(f"s_mov_b32 s26, {off + 4032}\ns_load_dword s66, s[36:37], s26")
        for p in (42, 44, 38, 46, 50):
            a(f"s_load_dword s66, s[{p}:{p+1}], 0")
        a("s_branch L_tlb_done")

def main_wave(a):
    a.label("L_main")
    if "twait" in EXP: st(a, 11)
    if "nocodepf" not in EXP:
        a(f"""s_cmp_lg_u32 s{W}, 0
        s_cbranch_scc1 L_nopf
        s_getpc_b64 s[28:29]
        L_pc:
        s_and_b32 s26, s25, 3
        s_lshl_b32 s26, s26, 13
        v_lshl_add_u32 v4, v3, 7, s26
        v_min_u32 v4, L_code_end-L_pc, v4
        global_load_dword v255, v4, s[28:29]
        L_nopf:""")
    a(f"""s_setprio 1
    v_and_b32 v{VT}, 31, v3
    v_lshrrev_b32 v{VH}, 5, v3
    v_mov_b32 v{V1}, 1
    v_mov_b32 v{VZ}, 0
    v_mov_b32 v{VC}, {CNT}
    v_lshrrev_b32 v4, 2, v1
    v_add_u32 v4, {UPDI}, v4
    v_mov_b32 v6, -1
    s_mov_b32 exec_hi, 0
    ds_write_b32 v4, v6
    v_and_b32 v6, 7, v3
    v_cmp_eq_u32 vcc, 4, v6
    v_mov_b32 v7, {KVB+1}
    v_cndmask_b32 v6, 0, v7, vcc
    ds_write_b32 v4, v6 offset:{CNT-UPDI+C_R}
    s_mov_b32 exec_lo, 0xffff
    ds_write_b32 v4, v{VZ} offset:{CNT-UPDI}
    s_mov_b64 exec, -1
    v_lshrrev_b32 v4, 1, v{VT}
    v_and_b32 v4, 7, v4
    v_xor_b32 v4, v4, v{VH}
    v_lshlrev_b32 v4, 4, v4
    v_lshl_add_u32 v4, v{VT}, 7, v4
    s_lshl_b32 s26, s{W}, 12
    v_add_u32 v{VX}, s26, v4
    v_xor_b32 v{VX+1}, 32, v{VX}
    v_xor_b32 v{VX+2}, 64, v{VX}
    v_xor_b32 v{VX+3}, 96, v{VX}
    v_bfe_u32 v4, v3, 2, 2
    v_lshl_add_u32 v12, v{VH}, 3, v4
    v_and_b32 v6, 3, v3
    v_and_b32 v7, 1, v3
    v_bfe_u32 v8, v3, 1, 1
    v_lshl_add_u32 v7, v7, 1, v8
    v_bfe_u32 v8, v3, 4, 1
    v_lshl_add_u32 v9, v8, 2, v7
    v_lshl_add_u32 v10, v8, 2, v6
    s_cmp_lt_u32 s{RL}, 7
    s_cselect_b64 vcc, -1, 0
    v_cndmask_b32 v10, v10, v9, vcc
    v_lshlrev_b32 v11, 7, v12
    v_lshl_add_u32 v11, v10, 3, v11
    v_lshrrev_b32 v4, 1, v4
    v_lshl_add_u32 v11, v4, 6, v11
    v_add_u32 v{VW}, {WT}, v11
    v_xor_b32 v{VW+1}, 64, v{VW}
    ; Wq piece: even h: u ; odd h: u<6 ? u+2 : 7-u
    v_add_u32 v10, 2, v9
    v_sub_u32 v11, 7, v9
    v_cmp_gt_u32 vcc, 6, v9
    v_cndmask_b32 v10, v11, v10, vcc
    s_bitcmp1_b32 s{H}, 0
    s_cselect_b64 vcc, -1, 0
    v_cndmask_b32 v10, v9, v10, vcc
    v_lshlrev_b32 v11, 6, v12
    v_lshl_add_u32 v11, v10, 3, v11
    v_add_u32 v{VQ}, {WQ}, v11
    v_lshrrev_b32 v4, 2, v3
    v_mul_u32_u24 v4, 2688, v4
    v_lshl_add_u32 v{VWQ}, v6, 4, v4
    s_cmp_ge_u32 s{RL}, 7
    s_cselect_b32 s26, 7, 0
    s_cselect_b32 s29, 2, 0
    s_sub_u32 s26, s{RL}, s26
    s_mul_i32 s28, s26, {64*2341}
    s_lshr_b32 s28, s28, 16
    v_add_u32 v4, s28, v6
    v_mul_u32_u24 v7, 28, v4
    v_lshrrev_b32 v7, 6, v7
    v_cmp_ge_u32 s[64:65], s26, v7
    v_cmp_ne_u32 vcc, s26, v7
    s_and_b32 s28, s{J}, 12
    s_add_u32 s29, s28, s29
    v_mov_b32 v7, s29
    v_addc_co_u32 v7, vcc, 0, v7, vcc
    s_and_b32 s28, s{J}, 3
    v_lshl_add_u32 v4, v4, 2, s28
    v_bfe_u32 v8, v3, 2, 2
    v_lshl_add_u32 v4, v4, 2, v8
    v_lshlrev_b32 v4, 7, v4
    v_lshl_add_u32 v{VFS}, v7, 2, v4
    s_and_b32 s64, s64, 0xffff
    s_cmp_ge_u32 s{RL}, 14
    s_cselect_b32 s64, 0, s64
    s_mov_b32 s65, 0
    s_lshl_b32 s28, s{W}, 5
    v_add_u32 v{VF}, s28, v{VC}
    s_lshl_b32 s28, s{J}, 2
    ; output tile: qb3 = 4j + (h>>2) ; byte col = (4*(h&3) + w)*56
    s_lshr_b32 s58, s{H}, 2
    s_add_u32 s58, s58, s28
    s_and_b32 s59, s{H}, 3
    s_lshl2_add_u32 s59, s59, s{W}
    s_mul_i32 s59, s59, 56
    s_lshl_b32 s28, s58, 5
    v_add_u32 v4, s28, v{VT}
    v_mul_u32_u24 v{VXO}, 896, v4
    v_lshl_add_u32 v{VXO}, v{VH}, 4, v{VXO}
    v_lshlrev_b32 v{VGO}, 3, v4
    s_waitcnt lgkmcnt(0)
    """)
    st_init(a)
    srd(a, 8, 36, (1 << 28) - WSBASE)
    srd(a, 16, 6, 448 * 2688)
    srd(a, 12, 4, 2048 * 896)
    if "wqpf" in EXP:
        a(f"""s_cmp_lg_u32 s{W}, 1
        s_cbranch_scc1 L_nopf2
        v_lshrrev_b32 v4, 2, v3
        v_min_u32 v4, 13, v4
        v_mul_u32_u24 v4, 2688, v4
        v_and_b32 v6, 3, v3
        v_lshl_add_u32 v4, v6, 7, v4
        s_mul_i32 s26, s25, {14*2688}
        s_and_b32 s28, s24, 1
        s_mul_i32 s28, s28, 384
        s_add_u32 s26, s26, s28
        buffer_load_dword v5, v4, s[16:19], s26 offen
        L_nopf2:""")
    if "wopfS" in EXP:
        srd(a, 20, 38, 448 * 896)
        a(f"""s_cmp_lg_u32 s{W}, 2
        s_cbranch_scc1 L_nopf3
        s_mul_i32 s26, s2, {13*128}
        v_lshl_add_u32 v4, v3, 7, s26
        s_mov_b64 exec, 0x1fff
        buffer_load_dword v5, v4, s[20:23], 0 offen
        s_mov_b64 exec, -1
        L_nopf3:""")
    a(f"""s_mul_i32 s62, s{H}, 56
    s_and_b32 s62, s62, 0xfffffff0
    s_mul_i32 s26, s{W}, {16*2688}
    s_add_u32 s62, s62, s26
    s_lshl_b32 s63, s{W}, 10
    s_add_u32 s63, s63, {WQ}
    s_lshl2_add_u32 s35, s{J}, s{W}
    s_mul_i32 s52, s35, 14
    s_add_u32 s52, s52, s{RL}
    s_mul_i32 s52, s52, {BLK}
    s_add_u32 s53, s52, 4096
    v_and_b32 v9, 19, v{VT}
    v_bfe_u32 v4, v{VT}, 2, 1
    v_lshl_add_u32 v9, v4, 3, v9
    v_bfe_u32 v4, v{VT}, 3, 1
    v_lshl_add_u32 v9, v4, 2, v9
    s_lshr_b32 s26, s{H}, 1
    s_mul_i32 s26, s26, 7
    s_and_b32 s28, s{H}, 1
    s_lshl2_add_u32 s29, s28, s26
    v_add_u32 v4, s29, v{VH}
    v_lshrrev_b32 v6, 3, v4
    v_mul_u32_u24 v6, {BLK-4096}, v6
    v_lshl_add_u32 v6, v4, 9, v6
    v_lshl_add_u32 v{VA}, v9, 4, v6
    v_add_u32 v4, 2, v4
    v_lshrrev_b32 v6, 3, v4
    v_mul_u32_u24 v6, {BLK-4096}, v6
    v_lshl_add_u32 v6, v4, 9, v6
    s_add_u32 s26, s26, 3
    s_lshr_b32 s29, s26, 3
    s_mul_i32 s29, s29, {BLK}
    s_and_b32 s26, s26, 1
    s_lshl_b32 s26, s26, 9
    s_add_u32 s29, s29, s26
    s_add_u32 s29, s29, 4096
    v_mov_b32 v7, s29
    v_and_b32 v4, s28, v{VH}
    v_cmp_eq_u32 vcc, 1, v4
    v_cndmask_b32 v6, v6, v7, vcc
    v_lshl_add_u32 v{VA+1}, v9, 4, v6
    s_mul_i32 s26, s{H}, 28
    v_add_u32 v4, s26, v{VT}
    v_lshrrev_b32 v6, 6, v4
    v_mul_u32_u24 v6, {BLK}, v6
    v_bfe_u32 v7, v4, 5, 1
    v_lshl_add_u32 v6, v7, 11, v6
    v_and_b32 v4, 31, v4
    v_lshl_add_u32 v6, v4, 4, v6
    v_lshl_add_u32 v6, v{VH}, 9, v6
    v_add_u32 v6, {7*BLK}, v6
    v_add_u32 v8, 1024, v6
    s_lshr_b32 s26, s26, 6
    s_mul_i32 s26, s26, {BLK}
    s_add_u32 s26, s26, {7*BLK + 4096 - 28*16}
    v_lshl_add_u32 v7, v{VT}, 4, s26
    v_cmp_le_u32 vcc, 28, v{VT}
    v_cndmask_b32 v{VA+2}, v6, v7, vcc
    v_cndmask_b32 v{VA+3}, v8, v7, vcc
    s_cmp_ge_u32 s{RL}, 14
    s_cbranch_scc1 L_roleR
    s_cmp_ge_u32 s{RL}, 7
    s_cbranch_scc1 L_roleV""")

    def gemm(kind):
        if "twait" in EXP:
            st(a, 10)
        def reads(c, s):
            k = 4 * c + s
            a(f"ds_read_b128 {vr(XF+4*k,4)}, v{VX+s} offset:{(c&3)*16384}")
            f = WF + 8 * s
            if kind == "R":
                a(f"ds_read_b128 {vr(f,4)}, v{VW} offset:{k*32}")
            else:
                for n in range(2):
                    a(f"ds_read_b64_tr_b16 {vr(f+4*n,2)}, v{VW+n} offset:{k*2048}")
                    a(f"ds_read_b64_tr_b16 {vr(f+4*n+2,2)}, v{VW+n} offset:{k*2048+512}")
        def mfmas(c, s, ns=None):
            k = 4 * c + s
            f = WF + 8 * s
            for n in (ns or range(1 if kind == "R" else 2)):
                acc = (A0, A1)[n]
                cc = "0" if k == 0 else vr(acc, 16)
                if kind == "V": a(f"{MF} {vr(acc,16)}, {vr(XF+4*k,4)}, {vr(f+4*n,4)}, {cc}")
                else:           a(f"{MF} {vr(acc,16)}, {vr(f+4*n,4)}, {vr(XF+4*k,4)}, {cc}")
        per = 2 if kind == "R" else 5
        for c in range(7):
            a("s_barrier")
            if c == 0: st(a, 1)
            if c == 6: st(a, 2)
            if STAMP and c in (0, 6): a("s_waitcnt lgkmcnt(0)")
            reads(c, 0); reads(c, 1)
            for s in range(4):
                if s < 2: reads(c, s + 2)
                a(f"s_waitcnt lgkmcnt({min(3 - s, 2) * per})")
                if c == 6 and kind != "R" and s >= 2: mfmas(c, s, (0,))
                else: mfmas(c, s)
            if c == 6 and kind != "R":
                mfmas(c, 2, (1,)); mfmas(c, 3, (1,))

    PK = 8
    MS = 20
    a(f"""v_add_u32 v4, s{RL}, v{VH}""")
    for i in range(4):
        a(f"""v_cmp_eq_u32 vcc, {3-2*i}, v4
        v_cmp_eq_u32 s[{MS+2*i}:{MS+1+2*i}], {10-2*i}, v4
        s_or_b64 s[{MS+2*i}:{MS+1+2*i}], s[{MS+2*i}:{MS+1+2*i}], vcc""")
    for e in range(4): a(f"v_mov_b32 v{TMP+e}, 0x3f803f80")
    a(f"""s_or_b64 s[28:29], s[{MS}:{MS+1}], s[{MS+2}:{MS+3}]
    s_or_b64 s[54:55], s[{MS+4}:{MS+5}], s[{MS+6}:{MS+7}]
    s_or_b64 s[54:55], s[54:55], s[28:29]
    s_mov_b64 exec, 0
    s_branch L_epi
    L_backK:
    s_mov_b64 exec, -1""")
    gemm("K")
    a("s_branch L_epi")
    a.label("L_roleR")
    if "pfx" in EXP:
        C0 = 1 if "pf1" in EXP else 2
        a(f"""v_mul_u32_u24 v4, 896, v{VT}
        v_lshl_add_u32 v4, v{VH}, 7, v4
        s_mul_i32 s26, s35, {32*896}
        v_lshrrev_b32 v6, 3, v{VT}
        v_mul_u32_u24 v6, 2688, v6
        v_and_b32 v7, 7, v3
        v_min_u32 v7, 6, v7
        v_lshl_add_u32 v6, v7, 7, v6
        v_mul_u32_u24 v7, {64*2688}, v{VH}
        v_add_u32 v6, v6, v7
        s_and_b32 s28, s35, 15
        s_mul_i32 s28, s28, {4*2688}
        s_and_b32 s29, s24, 1
        s_mul_i32 s29, s29, 896
        s_add_u32 s28, s28, s29
        s_add_u32 s28, s28, {896 + C0*64*2688}""")
        for c in range(C0, 7, 2):
            if c == 6: a("s_mov_b32 exec_hi, 0")
            a(f"""buffer_load_dword v5, v4, s[12:15], s26 offen offset:{128*c}
            buffer_load_dword v5, v6, s[16:19], s28 offen
            s_add_u32 s28, s28, {128*2688}""")
        a("s_mov_b64 exec, -1")
    a(f"""v_and_b32 v4, 1, v3
    v_lshlrev_b32 v4, 10, v4
    v_lshl_add_u32 v4, v{VH}, 4, v4
    v_add_u32 v{VW}, {RT}, v4
    s_lshl_b32 s26, s{W}, 7
    s_add_u32 s26, s26, {KEYS}
    v_lshl_add_u32 v12, v{VT}, 2, s26
    v_lshl_add_u32 v13, v{VH}, 6, s26""")
    gemm("R")
    a(f"""s_cmp_lg_u32 s{RL}, 14
    s_cbranch_scc1 L_pub
    s_mov_b32 exec_hi, 0
    s_nop 9
    v_cvt_pk_bf16_f32 v4, v{A0}, v{A0+1}
    v_and_b32 v5, 0xffff0000, v4
    v_lshlrev_b32 v4, 16, v4
    v_ashrrev_i32 v6, 31, v4
    v_or_b32 v6, 0x80000000, v6
    v_xor_b32 v6, v6, v4
    v_lshrrev_b32 v6, 16, v6
    v_lshlrev_b32 v6, 11, v6
    v_cmp_u_f32 vcc, v4, v4
    v_cndmask_b32 v6, v6, 0, vcc
    s_lshl_b32 s26, s35, 5
    v_add_u32 v7, s26, v{VT}
    v_sub_u32 v8, 0x7ff, v7
    v_or_b32 v6, v6, v8
    v_lshlrev_b32 v9, 3, v7
    ds_write_b32 v12, v6
    s_mov_b32 exec_hi, -1
    ds_read_b32 v6, v12
    ds_read_b128 v[16:19], v13
    ds_read_b128 v[20:23], v13 offset:16
    ds_read_b128 v[24:27], v13 offset:32
    ds_read_b128 v[28:31], v13 offset:48""")
    rank_count(a, 6, 16, 16, 14, 15)
    a(f"""v_mov_b32 v15, v14
    s_lshl_b32 s26, s{W}, 5
    s_add_u32 s26, s26, {CAND}
    v_permlane32_swap_b32 v14, v15
    v_add_u32 v14, v14, v15
    v_cmp_gt_u32 vcc, 8, v14
    v_lshl_add_u32 v14, v14, 2, s26
    s_mov_b64 exec, vcc
    ds_write_b32 v14, v6
    s_mov_b64 exec, 1
    ds_add_u32 v{VC}, v{V1} offset:{C_K}
    s_mov_b32 exec_lo, -1
    v_mul_f32 v5, {NLOG2E:#x}, v5
    v_exp_f32 v5, v5
    v_add_f32 v5, 1.0, v5
    v_rcp_f32 v5, v5
    v_cvt_pk_bf16_f32 v5, v5, v5
    v_lshlrev_b32 v10, 16, v5
    s_mov_b32 exec_hi, -1
    s_branch L_pub
    """)
    a.label("L_roleV")
    a(f"""v_cmp_eq_u32 vcc, 0, v3
    v_mov_b32 v7, 0x3f803f80
    v_cndmask_b32 v{TMP}, 0, v7, vcc""")
    for e in range(1, 4): a(f"v_mov_b32 v{TMP+e}, v{TMP}")
    for i in range(4): a(f"s_mov_b64 s[{MS+2*i}:{MS+1+2*i}], 0")
    a("s_mov_b64 s[54:55], 0xff")
    gemm("V")
    a("L_epi:\ns_cbranch_execz L_backK")
    for i in range(4):
        acc = (A0, A1)[i >> 1] + 8 * (i & 1)
        p = PK + 4 * i
        for e in (2, 3, 0, 1): a(f"v_cvt_pk_bf16_f32 v{p+e}, v{acc+2*e}, v{acc+2*e+1}")
        a(f"""s_mov_b64 exec, s[{MS+2*i}:{MS+1+2*i}]
        v_swap_b32 v{TMP}, v{p+2}
        v_swap_b32 v{TMP+1}, v{p+3}
        s_mov_b64 exec, -1
        buffer_store_dwordx4 {vr(p,4)}, v1, s[8:11], s52 offen offset:{1024*i} sc1""")
    a(f"s_mov_b64 exec, s[54:55]\nbuffer_store_dwordx4 {vr(TMP,4)}, v1, s[8:11], s53 offen sc1\ns_mov_b64 exec, -1")
    a.label("L_pub")
    diag_start(a)
    st(a, 3)
    a(f"s_add_u32 s56, s{ROT}, {NQ1}\ns_cmp_ge_u32 s56, 7\ns_cselect_b32 s26, 7, 0\ns_sub_u32 s56, s56, s26")
    for i in range(NQ1, 7):
        a(f"""s_mul_i32 s26, s56, {64*2688}
        s_add_u32 m0, s63, {i*4096}
        s_add_u32 s26, s26, s62
        buffer_load_dwordx4 v{VWQ}, s[16:19], s26 offen lds""")
        if i < 6: next_chunk(a, 56)
    QO = Q + 8 * OWN
    SK = TMP
    a(f"""s_mov_b64 s[16:17], s[36:37]
    s_mov_b32 s18, {KVB}
    s_mov_b32 s57, 0""")
    def ldK(b, soff, base=None):
        r = KV + 16 * b if base is None else base
        return [f"buffer_load_dwordx4 {vr(r,4)}, v{VA}, s[16:19], {soff} offen sc1",
                f"buffer_load_dwordx4 {vr(r+4,4)}, v{VA+1}, s[16:19], {soff} offen sc1"]
    def ldV(b, soff):
        return [f"buffer_load_dwordx4 {vr(KV+16*b+8,4)}, v{VA+2}, s[16:19], {soff} offen sc1",
                f"buffer_load_dwordx4 {vr(KV+16*b+12,4)}, v{VA+3}, s[16:19], {soff} offen sc1"]
    def try_loads(block=False):
        d = uid("Ltl"); l = uid("Ltr"); g = uid("Ltg")
        a(f"s_cmp_eq_u32 s57, 2\ns_cbranch_scc1 {d}")
        if block: a(f"s_mov_b32 s60, {SPIN_LIMIT}\n{l}:\ns_sub_u32 s60, s60, 1\ns_cbranch_scc1 L_exit")
        a(f"""ds_read_b32 v4, v{VF} offset:{C_R}
        ds_read_b32 v5, v{VC} offset:{C_M}
        s_cmp_eq_u32 s57, 1
        s_waitcnt lgkmcnt(0)
        v_readfirstlane_b32 s56, v4
        s_cbranch_scc1 {g}
        v_readfirstlane_b32 s29, v5
        s_sub_u32 s29, s29, 1
        s_cbranch_scc1 {l if block else d}
        s_mov_b32 s57, 1""")
        for x in ldK(0, "s29", SK): a(x)
        a(f"""{g}:
        s_sub_u32 s27, s56, 1
        s_cbranch_scc1 {l if block else d}
        s_add_u32 s54, s56, {TS-1}
        s_add_u32 s55, s56, {2*TS-1}
        s_add_u32 s56, s56, {3*TS-1}
        s_mov_b32 s57, 2""")
        st(a, 6)
        for x in ldK(0, "s27") + ldV(0, "s27") + ldK(1, "s54") + ldV(1, "s54") + ([] if "up4" not in EXP else ldK(2, "s55") + ldV(2, "s55") + ldK(3, "s56")): a(x)
        a(f"{d}:")
    def qreads(k):
        f = WF + 4 * (k & 7)
        a(f"ds_read_b64_tr_b16 {vr(f,2)}, v{VQ} offset:{k*1024}\nds_read_b64_tr_b16 {vr(f+2,2)}, v{VQ} offset:{k*1024+256}")
    def publish():
        a(f"""s_mov_b32 s28, {WS_MB}
        v_readfirstlane_b32 s{T}, v11
        v_mov_b32 v6, v11
        s_mov_b64 exec, 1
        s_waitcnt vmcnt({7-NQ1})""")
        st(a, 4)
        a(f"""ds_add_rtn_u32 v4, v{VC}, v{V1} offset:{C_D}
        s_waitcnt lgkmcnt(0)
        v_cmp_eq_u32 vcc, 3, v4
        s_cbranch_vccz L_notlast
        s_mov_b64 exec, s[64:65]
        s_cbranch_execz L_notlast
        buffer_atomic_swap v6, v{VFS}, s[8:11], s28 offen sc1
        s_waitcnt vmcnt(1)
        s_branch L_published
        L_notlast:
        s_waitcnt vmcnt(0)
        s_cmp_lg_u32 s{RL}, 14
        s_cbranch_scc1 L_published
        s_mov_b32 s26, {WS_G}
        s_mov_b32 exec_lo, -1
        buffer_store_dwordx2 v[10:11], v9, s[8:11], s26 offen sc1
        L_published:""")
        a("s_mov_b64 exec, -1")
    def qgemm(lo, hi, cnt):
        spin_lds(a, VC, cnt, 4, 4)
        if not lo: a(f"ds_read_b32 v11, v{VC} offset:{C_T}")
        for k in range(lo, min(hi, lo + 6)): qreads(k)
        for k in range(lo, hi):
            if k + 6 < hi: qreads(k + 6)
            a(f"s_waitcnt lgkmcnt({2*(min(hi-1,k+6)-k)})")
            a(f"{MF} {vr(A0,16)}, {vr(WF+4*(k&7),4)}, {vr(XF+4*k,4)}, {'0' if k==0 else vr(A0,16)}")
    def qepi():
        for i in range(8): a(f"v_mov_b32 v{KV+56+i}, 0")
        a(f"""s_lshl_b32 s26, s{W}, 11
        s_add_u32 s26, s26, {QX}
        v_add_u32 v5, s26, v1
        s_mov_b32 s62, {QSCALE:#x}
        s_mov_b32 s63, {QSCALE:#x}""")
        for i in range(8): a(f"v_pk_mul_f32 {vr(A0+2*i,2)}, {vr(A0+2*i,2)}, s[62:63]")
        for i in range(8): a(f"v_cvt_pk_bf16_f32 v{QO+i}, v{A0+2*i}, v{A0+2*i+1}")
        a(f"""s_mov_b32 exec_lo, 0
        v_mov_b32 v{QO+6}, 0
        v_mov_b32 v{QO+7}, 0
        s_mov_b32 exec_lo, -1
        ds_write_b128 v5, {vr(QO,4)}
        ds_write_b128 v5, {vr(QO+4,4)} offset:1024""")
        lds_inc(a, VC, C_X, V1)
        for i in range(0, 48, 2): a(f"v_pk_mul_f32 {vr(O+i,2)}, {vr(KV+56,2)}, {vr(KV+56,2)}")
    qgemm(0, 4 * NQ1, C_Q1)
    if NQ1 == 7 and "qfirst" in EXP:
        st(a, 5)
        qepi(); publish(); try_loads()
    elif NQ1 == 7:
        st(a, 5)
        publish(); try_loads(); qepi()
    else:
        publish()
        lds_inc(a, VC, C_Q2, V1)
        try_loads()
        qgemm(4 * NQ1, 28, C_Q2)
        st(a, 5)
        try_loads()
        qepi()
    spin_lds(a, VC, C_X, 4, 4)
    for i in range(3):
        a(f"""s_add_u32 s26, s{W}, {i+1}
        s_and_b32 s26, s26, 3
        s_lshl_b32 s26, s26, 11
        s_add_u32 s26, s26, {QX}
        v_add_u32 v5, s26, v1
        ds_read_b128 {vr(Q+8*i,4)}, v5
        ds_read_b128 {vr(Q+8*i+4,4)}, v5 offset:1024""")
    for i in range(3):
        a(f"""s_add_u32 s26, s{W}, {i+1}
        s_and_b32 s26, s26, 3
        s_mul_i32 s26, s26, 12288
        s_add_u32 s26, s26, {CB + i*4096}
        v_add_u32 v{VX+i}, s26, v1""")
    a(f"s_mul_i32 s26, s{W}, 12288\ns_add_u32 s26, s26, {CB}\nv_add_u32 v2, s26, v1")
    a(f"v_mov_b32 v{VI}, 0xdddddddd")
    try_loads(block=True)
    def QK(u, m):
        kt, qs = (u >> 2) & 3, u & 3
        s = S + 16 * (u & 1)
        c = "0" if m == 0 else vr(s, 16)
        return f"{MF} {vr(s,16)}, {vr(KV+16*kt+4*m,4)}, {vr(Q+8*qs+4*m,4)}, {c}"
    def PV(u, m):
        kt, qs = (u >> 2) & 3, u & 3
        return f"{SM} {vr(O+16*qs,16)}, {vr(KV+16*kt+8+4*m,4)}, {vr(S+16*(u&1)+8*m,8)}, v{VI}"
    SS = [P, S + 16, S, O + 48]
    def samp(i, m): return f"{MF} {vr(SS[i],16)}, {vr(SK+4*m,4)}, {vr(Q+8*i+4*m,4)}, {'0' if m == 0 else vr(SS[i],16)}"
    def mx(i):
        for x in max16_list(4, SS[i]): a(x)
        a(f"s_mov_b32 exec_lo, 0\nv_cvt_pk_bf16_f32 v{Q+8*i+6}, -v4, 0\ns_mov_b32 exec_lo, -1")
    a(f"s_waitcnt vmcnt({8 if 'up4' not in EXP else 14}) lgkmcnt(0)")
    for i in (0, 2): a(samp(i, 0)); a(samp(i, 1))
    a(samp(1, 0)); a(samp(1, 1))
    mx(0)
    a(samp(3, 0)); a(samp(3, 1))
    mx(2)
    a(f"s_waitcnt vmcnt({6 if 'up4' not in EXP else 12})")
    a(QK(0, 0)); a(QK(0, 1))
    if "up4" not in EXP:
        for x in ldK(2, "s55") + ldV(2, "s55") + ldK(3, "s56"): a(x)
    mx(1)
    for i in range(0, 8, 2): a(f"v_pk_mul_f32 {vr(S+24+i,2)}, {vr(KV+56,2)}, {vr(KV+56,2)}")
    mx(3)
    for i in range(48, 64, 2): a(f"v_pk_mul_f32 {vr(O+i,2)}, {vr(KV+56,2)}, {vr(KV+56,2)}")
    st(a, 7)
    a(f"s_mov_b32 s57, 2\ns_mov_b32 s53, {WS_G}\ns_waitcnt vmcnt(10)")
    def substep(u, ex, last=False):
        s = S + 16 * (u & 1)
        e = lambda lo, hi: [f"v_exp_f32 v{s+i}, v{s+i}" for i in range(lo, hi)]
        q0, q1 = ([], []) if last else ([QK(u+1, 0)], [QK(u+1, 1)])
        c = (2, 6, 10, 14) if "even" in EXP else (2, 5, 8, 14)
        seq = (e(0, c[0]) + [PV(u-1, 1)] + ex[0] + e(c[0], c[1]) + q0 + ex[1] + e(c[1], c[2]) + q1 + ex[2] +
               e(c[2], c[3]) + [PV(u, 0)] + ex[3] + e(c[3], 16))
        for x in seq: a(x)
    a(".p2align 6")
    a.label("L_loop")
    for u in range(16):
        kt, qs = u >> 2, u & 3
        ex = [[], [], [], []]
        if qs == 0:
            l = ldV((kt + 3) & 3, "s56")
            ex[0] = [l[0]]; ex[3] = [l[1]]
        if qs == 1: ex[1] = [f"s_add_u32 s56, s56, {TS}"]
        if u == 0: ex[1] = [f"ds_read_b32 v7, v{VF} offset:{C_R+4}"]
        if u == 1:
            ex[0] = ["s_waitcnt lgkmcnt(0)", "v_readfirstlane_b32 s56, v7"]
            ex[1] = ["s_sub_u32 s56, s56, 1"]
            ex[2] = ["s_cbranch_scc1 L_nextwait", "L_nextok:", f"v_add_u32 v{VF}, 4, v{VF}"]
        if qs == 2: ex[3] = ["s_waitcnt vmcnt(10)"]
        if qs == 3:
            l = ldK(kt, "s56")
            ex[0] = [l[0]]; ex[3] = [l[1], "s_waitcnt vmcnt(10)"]
        if u == GA: ex[2] = ex[2] + [f"ds_add_u32 v{VC}, v{V1} offset:{C_A}"]
        if u == 15: ex[2] = ["s_sub_u32 s57, s57, 1"]
        substep(u, ex)
    a("s_cbranch_scc0 L_loop")
    wr = lambda i, k: f"ds_write_b128 v{VX+i}, {vr(O+16*i+4*k,4)} offset:{k*1024}"
    for u in range(16):
        ex = [[], [], [], []]
        if u == 0:
            l = ldV(3, "s56"); ex[0] = [l[0]]; ex[3] = [l[1]]
        if u == 1:
            ex[0] = [f"buffer_load_dwordx2 {vr(GR,2)}, v{VGO}, s[8:11], s53 offen sc1"]
            ex[1] = [f"buffer_load_dwordx4 {vr(XR,4)}, v{VXO}, s[12:15], s59 offen"]
            ex[2] = [f"ds_add_u32 v{VC}, v{V1} offset:{C_Z}"]
            ex[3] = [f"buffer_load_dwordx4 {vr(XR+4,4)}, v{VXO}, s[12:15], s59 offen offset:32"]
        w_ = {2: 13, 3: 11, 6: 9, 7: 7, 10: 5, 11: 0}
        if u in w_: ex[3] = [f"s_waitcnt vmcnt({w_[u]})"]
        if u == 13: ex[2] = [wr(0, 0)]; ex[3] = [wr(0, 1)]
        if u == 14:
            st(a, 8)
            ex = [[wr(0, 2)], [wr(0, 3)], [wr(1, 0)], [wr(1, 1)]]
        if u == 15: ex = [[wr(1, 2)], [wr(1, 3)], [], [wr(2, 0)]]
        substep(u, ex, last=(u == 15))
    a(wr(2, 1)); a(PV(15, 1)); a(wr(2, 2)); a(wr(2, 3))
    lds_inc(a, VC, C_C, V1)
    srd(a, 20, 50, 2048 * 896)
    TT = S
    OO = O + 16 * OWN
    a(f"""s_lshl_b32 s28, s35, 4
    s_add_u32 s28, s28, s{H}
    s_lshr_b32 s56, s28, 2
    s_lshl_b32 s56, s56, 5
    s_and_b32 s26, s{H}, 3
    s_add_u32 s56, s56, s26
    s_lshl_b32 s56, s56, 2
    s_add_u32 s56, s56, {WS_OFL}
    s_lshl_b32 s52, s28, 11
    s_add_u32 s52, s52, {WS_O}
    s_mov_b32 s57, 0""")
    spin_lds(a, VC, C_C, 6, 7)
    for k in range(12): a(f"ds_read_b128 {vr(TT+4*k,4)}, v2 offset:{k*1024}")
    for i in range(3):
        a(f"s_waitcnt lgkmcnt({8-4*i})")
        for k in (6, 7, 0, 1, 2, 3, 4, 5): a(f"v_pk_add_f32 {vr(OO+2*k,2)}, {vr(OO+2*k,2)}, {vr(TT+16*i+2*k,2)}")
    a.label("L_fin")
    a(f"""v_mov_b32 v5, v{OO+12}
    v_mov_b32 v4, v{OO+12}
    s_mov_b32 exec_lo, 0
    v_mov_b32 v{OO+12}, 0
    s_mov_b32 exec_lo, -1
    v_permlane32_swap_b32 v5, v4
    v_rcp_f32 v6, v4
    s_mov_b32 s28, 0x2b800000
    s_mov_b32 s29, 0x6c800000
    v_cmp_nle_f32 s[54:55], s28, v4
    v_cmp_nge_f32 s[62:63], s29, v4
    v_pk_add_f32 v[4:5], {vr(OO,2)}, {vr(OO+2,2)}""")
    for k in range(2, 8): a(f"v_pk_add_f32 v[4:5], v[4:5], {vr(OO+2*k,2)}")
    a(f"""v_add_f32 v4, v4, v5
    s_movk_i32 s28, 0x207
    v_cmp_class_f32 vcc, v4, s28
    s_or_b64 s[54:55], s[54:55], s[62:63]""")
    for k in range(8): a(f"v_pk_mul_f32 {vr(OO+2*k,2)}, {vr(OO+2*k,2)}, v[6:7] op_sel_hi:[1,0]")
    for k in range(8): a(f"v_cvt_pk_bf16_f32 v{Q+k}, v{OO+2*k}, v{OO+2*k+1}")
    a(f"""v_mov_b32 v6, s{T}
    s_or_b64 s[54:55], s[54:55], vcc
    s_cbranch_scc1 L_bad
    L_good:
    buffer_store_dwordx4 {vr(Q,4)}, v1, s[8:11], s52 offen sc1
    buffer_store_dwordx4 {vr(Q+4,4)}, v1, s[8:11], s52 offen offset:1024 sc1
    s_mov_b64 exec, 1
    {"s_waitcnt vmcnt(0)" if ("noclr" in EXP or "otouch" in EXP) else ""}
    buffer_atomic_swap v6, v{VZ}, s[8:11], s56 offen sc1
    s_mov_b64 exec, -1""")
    st(a, 9)
    WOF = 104; B = 232; ACC = 8; U = 72
    OSB = [40, 72]
    PLR = 36
    at = lambda r: f"v_mov_b32 v{r}, 0\ns_mov_b64 exec, 15\nbuffer_atomic_or v{r}, v7, s[8:11], s56 offen sc0 sc1\ns_mov_b64 exec, -1"
    a(f"""s_lshl2_add_u32 s28, s58, s{W}
    s_lshl_b32 s54, s28, 13
    s_add_u32 s54, s54, {WS_O}
    s_add_u32 s55, s54, 4096
    s_lshl_b32 s56, s28, 7
    s_add_u32 s56, s56, {WS_OFL}
    v_lshrrev_b32 v7, 2, v1
    {at(PLR)}
    v_bfe_u32 v4, v3, 2, 2
    v_lshl_add_u32 v4, v{VH}, 2, v4
    v_mul_u32_u24 v4, 224, v4
    v_bfe_u32 v5, v3, 4, 1
    v_lshl_add_u32 v4, v5, 5, v4
    v_and_b32 v5, 1, v3
    v_lshl_add_u32 v4, v5, 4, v4
    v_bfe_u32 v5, v3, 1, 1
    v_lshl_add_u32 v4, v5, 3, v4
    s_mul_i32 s28, s{W}, 56
    v_add_u32 v4, s28, v4""")
    for r in range(4):
        a(f"""s_add_u32 s26, s{W}, {r}
        s_and_b32 s26, s26, 3
        s_mul_i32 s28, s26, {4*28*224}
        v_add_u32 v{24+r}, s28, v4""")
        if r:
            a(f"s_mul_i32 s28, s26, 12288\ns_add_u32 s28, s28, {CB}\nv_add_u32 v{32+r}, s28, v1")
    a(f"""v_lshlrev_b32 v30, 2, v{VT}
    v_add_u32 v30, {UPDI}, v30
    s_mul_i32 s28, s{W}, 112
    s_add_u32 s28, s28, {UPD}
    v_lshl_add_u32 v28, v{VH}, 5, s28
    v_mov_b32 v29, {CNT}
    s_lshl_b32 s28, 0x11, s{W}
    v_mov_b32 v31, s28""")
    spin_lds(a, 29, C_W, 16, 6)
    def word(k):
        o = (28 * ((k >> 1) & 3) + 16 * (k & 1)) * 224
        b = 24 + (k >> 3)
        a(f"ds_read_b64_tr_b16 {vr(WOF+4*k,2)}, v{b} offset:{o}\nds_read_b64_tr_b16 {vr(WOF+4*k+2,2)}, v{b} offset:{o+8*224}")
    a(at(PLR + 1))
    for k in range(NW1):
        word(k)
        if k == NW1 // 2 - 1: a(at(PLR + 2))
    a(f"s_mov_b32 s60, {SPIN_LIMIT}\ns_mov_b64 exec, 15\nL_op:")
    for i in range(4):
        a(f"""v_mov_b32 v{PLR+(i+3)%4}, 0
        buffer_atomic_or v{PLR+(i+3)%4}, v7, s[8:11], s56 offen sc0 sc1
        s_waitcnt vmcnt(3)
        v_cmp_ne_u32 vcc, s{T}, v{PLR+i}
        s_cbranch_vccz L_of""")
    a(f"""s_sub_u32 s60, s60, 1
    s_cbranch_scc0 L_op
    s_endpgm
    L_of:
    s_mov_b64 exec, -1""")
    if "twait" not in EXP: st(a, 10)
    def oload():
        for k in range(8):
            a(f"buffer_load_dwordx4 {vr(OSB[0]+4*k,4)}, v1, s[8:11], {'s54' if k < 4 else 's55'} offen offset:{(k&3)*1024} sc1")
    oload()
    for k in range(NW1, 32): word(k)
    for k in range(8):
        a(f"v_lshlrev_b32 v{B+2*k}, 16, v{XR+k}\nv_and_b32 v{B+2*k+1}, 0xffff0000, v{XR+k}")
    a(f"""v_cmp_ne_u32 vcc, s{T}, v{GR+1}
    s_cbranch_vccnz L_gate
    L_gate_ok:
    v_sub_f32 v24, 1.0, v{GR}
    v_cvt_pk_bf16_f32 v24, v24, v24
    v_lshlrev_b32 v24, 16, v24""")
    def stub(): pass
    def need(bit):
        l = uid("Lnd")
        a(f"""{l}:
        ds_read_b32 v6, v29 offset:{C_O}
        s_sub_u32 s60, s60, 1
        s_cbranch_scc1 L_exit
        s_waitcnt lgkmcnt(0)
        v_readfirstlane_b32 s61, v6
        s_bitcmp1_b32 s61, {bit}
        s_cbranch_scc0 {l}""")
    def rd(g):
        for k in range(8): a(f"ds_read_b128 {vr(OSB[g&1]+4*k,4)}, v{32+g} offset:{k*1024}")
    def mm(g, lo, hi):
        for k in range(lo, hi):
            a(f"{MF} {vr(ACC,16)}, {vr(WOF+32*g+4*k,4)}, {vr(OSB[g&1]+4*k,4)}, {'0' if g == 0 and k == 0 else vr(ACC,16)}")
    a(f"""ds_read_b32 v6, v29 offset:{C_O}
    s_mov_b32 s57, 0
    s_waitcnt lgkmcnt(0)
    v_readfirstlane_b32 s61, v6
    s_bitcmp1_b32 s61, 10
    s_cbranch_scc1 L_blkU
    s_mov_b32 s57, 1
    L_next0:
    v_mov_b32 v4, 0""")
    for k in range(8):
        r = OSB[0] + 4 * k
        a(f"""s_waitcnt vmcnt({7-k})
        ds_write_b128 v2, {vr(r,4)} offset:{k*1024}""")
        if k < 6: mm(0, k, k + 1)
        a(f"""v_max3_u32 v4, v4, v{r}, v{r+1}
        v_max3_u32 v4, v4, v{r+2}, v{r+3}""")
    a("v_cmp_eq_u32 vcc, -1, v4\ns_cbranch_vccnz L_again")
    lds_inc(a, 29, C_O, 31)
    a(f"s_mov_b32 s27, s{W}")
    for g in range(4):
        if g < 3: a(f"ds_read_b32 v6, v29 offset:{C_O}\ns_add_u32 s27, s27, 1")
        if g: a("s_waitcnt lgkmcnt(0)")
        mm(g, 0 if g else 6, 2 if g else 8)
        if g < 3:
            if not g: a("s_waitcnt lgkmcnt(0)")
            a(f"v_readfirstlane_b32 s61, v6\ns_bitcmp1_b32 s61, s27\ns_cbranch_scc0 L_late{g}")
            rd(g + 1)
        mm(g, 2 if g else 8, 8)
        a(f"L_back{g}:")
    a("s_cmp_lg_u32 s57, 0\ns_cbranch_scc1 L_lateU\nL_next1:")
    if "twait" not in EXP: st(a, 11)
    a("s_nop 9")
    for x in EXP:
        if x.startswith("err"):
            a(f"s_or_b32 s26, s2, s{W}\ns_cmp_eq_u32 s26, 0\ns_cselect_b64 exec, 1, 0\nv_add_f32 v{B}, {f32bits(float(x[3:])):#x}, v{B}\ns_mov_b64 exec, -1")
        if x.startswith("all"):
            for k in range(16): a(f"v_add_f32 v{B+k}, {f32bits(float(x[3:])):#x}, v{B+k}")
    for m in range(2):
        for e in range(4*m, 4*m+4):
            a(f"v_pk_fma_f32 {vr(B+2*e,2)}, {vr(ACC+2*e,2)}, {vr(GR,2)}, {vr(B+2*e,2)} op_sel_hi:[1,0,1]")
        for e in range(4*m, 4*m+4): a(f"v_cvt_pk_bf16_f32 v{40+e}, v{B+2*e}, v{B+2*e+1}")
        if m == 0:
            a(f"buffer_store_dwordx4 v[40:43], v{VXO}, s[20:23], s59 offen{OUTAUX}")
            stub()
        else:
            a(f"""s_mov_b32 exec_hi, 0
            buffer_store_dwordx4 v[44:47], v{VXO}, s[20:23], s59 offen offset:32{OUTAUX}
            s_mov_b64 exec, 0xffffffff
            s_not_b64 exec, exec
            buffer_store_dwordx2 v[44:45], v{VXO}, s[20:23], s59 offen offset:32{OUTAUX}""")
    st_end(a)
    diag_end(a)
    a("s_endpgm")
    for g in range(3):
        a(f"L_late{g}:")
        mm(g, 2 if g else 8, 8)
        need("s27"); rd(g + 1)
        a(f"s_branch L_back{g}")
    a("L_again:\ns_sub_u32 s60, s60, 1\ns_cbranch_scc1 L_exit\ns_waitcnt lgkmcnt(0)")
    oload()
    a("s_branch L_next0")
    a("L_lateU:")
    need(10)
    a(f"""L_blkU:
    ds_read_b32 v6, v30
    s_waitcnt lgkmcnt(0)
    v_cmp_le_i32 vcc, 0, v6
    s_cbranch_vccz L_noupd
    s_mov_b64 exec, vcc
    v_mul_u32_u24 v6, 448, v6
    v_add_u32 v28, v28, v6""")
    for k in range(4): a(f"ds_read_b128 {vr(U+4*k,4)}, v28 offset:{64*(k>>1)+16*(k&1)}")
    a("s_waitcnt lgkmcnt(0)")
    for k in range(8):
        a(f"""v_pk_add_f32 {vr(B+2*k,2)}, {vr(B+2*k,2)}, {vr(U+2*k,2)}
        v_cvt_pk_bf16_f32 v{B+2*k}, v{B+2*k}, v{B+2*k+1}
        v_and_b32 v{B+2*k+1}, 0xffff0000, v{B+2*k}
        v_lshlrev_b32 v{B+2*k}, 16, v{B+2*k}""")
    a("s_mov_b64 exec, -1\nL_noupd:")
    stub()
    for k in range(8): a(f"v_pk_mul_f32 {vr(B+2*k,2)}, {vr(B+2*k,2)}, v[24:25] op_sel_hi:[1,0]")
    a("s_cmp_lg_u32 s57, 0\ns_cbranch_scc1 L_next1\ns_branch L_next0")
    a("L_bad:\ns_cmp_eq_u32 s57, 0\ns_cbranch_scc1 L_slow")
    for k in range(8): a(f"v_min_u32 v{Q+k}, -2, v{Q+k}")
    a("s_branch L_good")
    a.label("L_nextwait")
    spin_lds(a, VF, C_R + 4, 1, 7)
    a("s_sub_u32 s56, s61, 1\ns_branch L_nextok")
    a(f"""L_gate:
    s_mov_b32 s26, {WS_G}
    s_mov_b32 s60, {SPIN_LIMIT}
    L_gate1:
    buffer_load_dwordx2 {vr(GR,2)}, v{VGO}, s[8:11], s26 offen sc1
    s_waitcnt vmcnt(0)
    v_cmp_ne_u32 vcc, s{T}, v{GR+1}
    s_cbranch_vccz L_gate_ok
    s_sub_u32 s60, s60, 1
    s_cbranch_scc0 L_gate1
    s_endpgm""")
    a.label("L_slow")
    a(f"""s_mov_b32 s57, 1
    s_mov_b32 s55, {KVB}
    s_mov_b32 s54, 0
    s_mov_b32 exec_lo, 0
    v_mov_b32 v{QO+6}, 0
    v_mov_b32 v{QO+7}, 0
    s_mov_b32 exec_lo, -1
    v_mov_b32 v4, 0xff800000
    L_slow1:
    {ldK(0, "s54")[0]}
    {ldK(0, "s54")[1]}
    s_waitcnt vmcnt(0)
    {MF} {vr(S,16)}, {vr(KV,4)}, {vr(QO,4)}, 0
    {MF} {vr(S,16)}, {vr(KV+4,4)}, {vr(QO+4,4)}, {vr(S,16)}""")
    for x in max16_list(4, S, init=True): a(x)
    a(f"""s_add_u32 s54, s54, {TS}
    s_cmp_lt_u32 s54, s55
    s_cbranch_scc1 L_slow1
    v_mov_b32 v5, v4
    v_permlane32_swap_b32 v4, v5
    v_max_f32 v4, v4, v5""")
    split_neg_max(a, 4, 5, 6, QO + 6, QO + 7)
    for i in range(16): a(f"v_mov_b32 v{OO+i}, 0")
    a(f"""s_mov_b32 s54, 0
    L_slow2:
    {ldK(0, "s54")[0]}
    {ldK(0, "s54")[1]}
    {ldV(0, "s54")[0]}
    {ldV(0, "s54")[1]}
    s_waitcnt vmcnt(0)
    {MF} {vr(S,16)}, {vr(KV,4)}, {vr(QO,4)}, 0
    {MF} {vr(S,16)}, {vr(KV+4,4)}, {vr(QO+4,4)}, {vr(S,16)}""")
    for i in range(16): a(f"v_exp_f32 v{S+i}, v{S+i}")
    a(f"""{SM} {vr(OO,16)}, {vr(KV+8,4)}, {vr(S,8)}, v{VI}
    {SM} {vr(OO,16)}, {vr(KV+12,4)}, {vr(S+8,8)}, v{VI}
    s_nop 7
    s_nop 7
    s_add_u32 s54, s54, {TS}
    s_cmp_lt_u32 s54, s55
    s_cbranch_scc1 L_slow2
    s_branch L_fin""")

GI = 0; DI = QX; HB = 101376
FT, KS = 66, 67
def service_wave(a):
    a.label("L_service")
    a(f"""v_mov_b32 v14, {CNT}
    v_mov_b32 v15, 1
    v_mov_b32 v12, 0
    v_mov_b32 v9, 0""")
    srd(a, 8, 36, (1 << 28) - WSBASE)
    a("s_waitcnt lgkmcnt(0)")
    tag(a)
    a(f"v_mov_b32 v4, s{T}\nds_write_b32 v14, v4 offset:{C_T}\ns_waitcnt vmcnt(0)")
    lds_inc(a, 14, C_Q1, 15)
    a(f"""v_and_b32 v32, 31, v3
    v_lshrrev_b32 v33, 5, v3
    v_lshlrev_b32 v219, 3, v1
    v_lshrrev_b32 v220, 2, v1
    v_and_b32 v4, 7, v3
    v_lshlrev_b32 v217, 3, v4
    s_lshr_b32 s58, s{H}, 2
    s_lshl2_add_u32 s58, s{J}, s58
    v_lshlrev_b32 v211, 11, v33
    v_lshl_add_u32 v211, v32, 4, v211
    v_and_b32 v4, 24, v3
    v_lshl_add_u32 v4, v33, 2, v4
    v_lshl_add_u32 v4, v217, 4, v4
    s_lshl_b32 s26, s{L}, 5
    s_add_u32 s26, s26, {HB}
    v_add_u32 v214, s26, v4
    s_mul_i32 s{FT}, s2, 9363
    s_lshr_b32 s{FT}, s{FT}, 16
    s_mul_i32 s26, s{FT}, 7
    s_sub_u32 s{KS}, s2, s26
    s_cmp_ge_u32 s{L}, 2
    s_cbranch_scc1 L_svcB""")
    def sel_load(lbl):
        a(f"""s_mov_b32 s26, {WS_SEL}
        s_mov_b32 s60, {SPIN_LIMIT}
        {lbl}:
        buffer_load_dwordx2 v[20:21], v217, s[8:11], s26 offen sc1
        s_waitcnt vmcnt(0)
        v_cmp_ne_u32 vcc, s{T}, v21
        s_cbranch_vccz {lbl}_ok
        s_sleep 4
        s_sub_u32 s60, s60, 1
        s_cbranch_scc0 {lbl}
        s_endpgm
        {lbl}_ok:""")
    a(f"""s_lshl_b32 s27, s{J}, 6
    s_add_u32 s27, s27, {WS_R}
    s_cmp_eq_u32 s{RL}, 14
    s_cbranch_scc1 L_rank
    s_cmp_lg_u32 s2, {SELECTOR}
    s_cbranch_scc1 L_svcA
    s_lshl_b32 s28, s{L}, 8
    s_add_u32 s28, s28, {KEYS}
    v_add_u32 v7, s28, v220
    v_lshl_add_u32 v6, v33, 7, s28
    s_lshl_b32 s28, s{L}, 6
    s_add_u32 s28, s28, {CAND}
    v_lshl_add_u32 v10, v33, 5, s28
    s_lshl_b32 s26, s{L}, 9
    s_add_u32 s26, s26, {WS_R}
    s_mov_b32 s27, {WS_SEL}
    v_lshlrev_b32 v4, 3, v3
    v_mov_b32 v5, 2
    s_mov_b32 s60, {SPIN_LIMIT}
    L_keys:
    v_mov_b32 v20, 0
    v_mov_b32 v21, 0
    buffer_atomic_or_x2 v[20:21], v4, s[8:11], s26 offen sc0 sc1
    s_sub_u32 s60, s60, 1
    s_cbranch_scc1 L_exit
    s_waitcnt vmcnt(0)
    v_cmp_ne_u32 vcc, s{T}, v21
    s_cbranch_vccnz L_keys
    ds_write_b32 v7, v20""")
    for k in range(8): a(f"ds_read_b128 {vr(40+4*k,4)}, v6 offset:{16*k}")
    rank_count(a, 20, 40, 32, 22, 23)
    a(f"""v_cmp_gt_u32 vcc, 8, v22
    v_lshl_add_u32 v22, v22, 2, v10
    s_mov_b64 exec, vcc
    ds_write_b32 v22, v20""")
    lds_inc(a, 14, C_K, 5)
    a(f"""L_rank:
    s_cmp_lg_u32 s{L}, 0
    s_cbranch_scc1 L_svcA
    v_mov_b32 v6, {CAND}
    v_lshl_add_u32 v7, v32, 2, v6
    v_lshl_add_u32 v6, v33, 6, v6
    v_mov_b32 v21, s{T}""")
    spin_lds(a, 14, C_K, 4, 8)
    st(a, 10)
    if STAMP: a("s_waitcnt lgkmcnt(0)")
    a("ds_read_b32 v20, v7")
    for k in range(4): a(f"ds_read_b128 {vr(40+4*k,4)}, v6 offset:{16*k}")
    rank_count(a, 20, 40, 16, 22, 23)
    a(f"""v_mov_b32 v23, v22
    v_permlane32_swap_b32 v22, v23
    v_add_u32 v22, v22, v23
    v_cmp_gt_u32 vcc, 8, v22
    v_lshlrev_b32 v22, 3, v22
    s_mov_b32 exec_lo, vcc_lo
    s_mov_b32 exec_hi, 0
    buffer_atomic_swap_x2 v[20:21], v22, s[8:11], s27 offen sc1
    s_mov_b64 exec, -1""")
    st(a, 11)
    a.label("L_svcA")
    for e in range(7):
        a(f"""v_add_u32 v4, {64*e}, v3
        v_mul_u32_u24 v5, 4682, v4
        v_lshrrev_b32 v5, 16, v5
        v_mul_u32_u24 v5, {896-224}, v5
        v_lshl_add_u32 v{200+e}, v4, 4, v5""")
    for r in (215, 216): a(f"v_mov_b32 v{r}, 0")
    a(f"""v_mov_b32 v28, -1
    v_mov_b32 v29, -1
    v_mov_b32 v30, -1
    v_mov_b32 v31, -1
    s_lshl_b32 s59, s{J}, 6
    s_add_u32 s59, s59, s{H}
    s_lshl1_add_u32 s59, s59, s{L}
    s_lshl_b32 s59, s59, 10
    s_add_u32 s59, s59, {WS_O}
    s_cmp_ge_u32 s2, 196
    s_cbranch_scc1 L_nofn
    v_lshrrev_b32 v4, 3, v3
    v_and_b32 v5, 2, v4
    v_lshlrev_b32 v5, 1, v5
    v_and_b32 v6, 7, v3
    v_xor_b32 v5, v5, v6
    v_mul_u32_u24 v6, 3584, v4
    v_lshl_add_u32 v34, v5, 4, v6
    v_add_u32 v35, {8*3584-1024}, v34
    v_add_u32 v36, {2*(8*3584-1024)}, v34
    v_add_u32 v37, {3*(8*3584-1024)}, v34
    v_mul_u32_u24 v6, 896, v4
    v_lshl_add_u32 v240, v5, 4, v6
    v_add_u32 v241, {8*896-1024}, v240
    v_add_u32 v242, {2*(8*896-1024)}, v240
    v_add_u32 v243, {3*(8*896-1024)}, v240
    s_lshl_b32 s54, s{L}, 13
    s_add_u32 s54, s54, {GI}
    v_and_b32 v4, 3, v3
    v_lshrrev_b32 v6, 4, v3
    v_bfe_u32 v7, v3, 2, 2
    v_lshl_add_u32 v8, v6, 3, v7
    v_lshlrev_b32 v8, 7, v8
    v_lshrrev_b32 v7, 1, v7
    v_lshl_add_u32 v8, v7, 6, v8
    v_lshl_add_u32 v8, v4, 3, v8
    v_add_u32 v38, s54, v8
    v_xor_b32 v39, 64, v38
    v_lshlrev_b32 v213, 4, v6
    v_lshlrev_b32 v212, 3, v213
    v_lshl_add_u32 v212, v217, 1, v212""")
    srd(a, 16, 42, 448 * 3584)
    a(f"""s_cmp_eq_u32 s{L}, 1
    s_cselect_b64 s[16:17], s[44:45], s[42:43]
    s_mul_i32 s52, s{KS}, {64*3584}
    s_lshl_b32 s28, s{FT}, 7
    s_add_u32 s52, s52, s28
    s_movk_i32 s29, 896""")
    if GA >= 0: spin_lds(a, 14, C_A, 256, 8, sleep=4)
    else: spin_lds(a, 14, C_L, 8 if "deferA" in EXP else 4, 8, sleep=4)
    st(a, 3)
    NR = 2 if "fine" in EXP else 4
    XS_ = 40; FW = 56; AC = 104
    if "nogu" in EXP: a("s_mov_b32 s18, 0")
    a("s_mov_b32 m0, s54\ns_nop 0")
    for k in range(8):
        if k == 4: a(f"s_add_u32 s52, s52, {32*3584}\ns_add_u32 m0, s54, 4096")
        if k == 8 - NR: sel_load("L_sel1")
        elif k and k % NR == 0: a("s_waitcnt vmcnt(0)")
        a(f"buffer_load_dwordx4 v{34+(k&3)}, s[16:19], s52 offen offset:{1024*(k&3)} lds")
    a(f"""v_not_b32 v4, v20
    v_and_b32 v4, 0x7ff, v4
    v_mad_u32_u24 v4, v4, s29, v213
    s_lshl_b32 s26, s{KS}, 7
    s_mov_b32 exec_lo, 0x00ff00ff
    s_mov_b32 exec_hi, 0x00ff00ff
    buffer_load_dwordx4 {vr(XS_,4)}, v4, s[12:15], s26 offen
    buffer_load_dwordx4 {vr(XS_+4,4)}, v4, s[12:15], s26 offen offset:64
    s_mov_b64 exec, -1
    s_waitcnt vmcnt(2)""")
    for k in range(2):
        for n in range(4):
            o = k * 4096 + (n & 1) * 32
            a(f"ds_read_b64_tr_b16 {vr(FW+16*k+4*n,2)}, v{38+(n>>1)} offset:{o}\nds_read_b64_tr_b16 {vr(FW+16*k+4*n+2,2)}, v{38+(n>>1)} offset:{o+512}")
    a(f"""s_mov_b64 s[16:17], s[46:47]
    s_lshl1_add_u32 s28, s{FT}, s{L}
    s_mul_i32 s28, s28, {32*896}
    s_add_u32 s28, s28, s26
    s_lshl_b32 s29, s{L}, 12
    s_add_u32 m0, s29, {DI}
    s_lshl1_add_u32 s26, s2, s{L}
    s_lshl_b32 s26, s26, 11
    s_add_u32 s26, s26, {WS_GP}
    s_waitcnt vmcnt(0) lgkmcnt(0)""")
    st(a, 4)
    for k in range(2):
        for n in range(4):
            a(f"v_mfma_f32_16x16x32_bf16 {vr(AC+4*n,4)}, {vr(FW+16*k+4*n,4)}, {vr(XS_+4*k,4)}, {'0' if k==0 else vr(AC+4*n,4)}")
    a("s_mov_b32 exec_lo, 0x00ff00ff\ns_mov_b32 exec_hi, 0x00ff00ff")
    for n in range(4):
        a(f"buffer_store_dwordx4 {vr(AC+4*n,4)}, v212, s[8:11], s26 offen offset:{512*n} sc1")
    a("s_mov_b64 exec, -1")
    if "nowd" in EXP: a("s_mov_b32 s18, 0")
    for k in range(4): a(f"buffer_load_dwordx4 v{240+k}, s[16:19], s28 offen offset:{1024*k} lds")
    a(f"""s_lshl1_add_u32 s26, s{KS}, s{L}
    s_lshl_b32 s26, s26, 2
    s_mul_i32 s28, s{FT}, {7*128}
    s_add_u32 s26, s26, s28
    s_add_u32 s26, s26, {WS_F1}
    s_waitcnt vmcnt(4)""")
    signal(a, 5, 219, "s26", "0x7f")
    st(a, 5)
    a(f"s_cmp_lg_u32 s{L}, 0\ns_cbranch_scc1 L_st2w\ns_lshl_b32 s26, s2, 7\ns_add_u32 s26, s26, {WS_F1}")
    poll_atomic(a, 5, 220, "s26", "0x3fff", 2)
    lds_inc(a, 14, C_L, 15)
    a("L_st2w:")
    spin_lds(a, 14, C_L, 1, 8, sleep=3)
    st(a, 6)
    GP = 40; DW = 120
    a(f"s_mul_i32 s26, s{FT}, {7*4096}\ns_lshl_b32 s28, s{L}, 9\ns_add_u32 s26, s26, s28\ns_add_u32 s26, s26, {WS_GP}")
    for k in range(7):
        a(f"buffer_load_dwordx4 {vr(GP+4*k,4)}, v211, s[8:11], s26 offen sc1")
        if k < 6: a("s_add_u32 s26, s26, 4096")
    a(f"s_mov_b32 s28, {NLOG2E:#x}\ns_waitcnt vmcnt(0)")
    for k in range(1, 7):
        if "nopk" in EXP:
            for e in range(4): a(f"v_add_f32 v{GP+e}, v{GP+e}, v{GP+4*k+e}")
        else:
            for e in range(2): a(f"v_pk_add_f32 {vr(GP+2*e,2)}, {vr(GP+2*e,2)}, {vr(GP+4*k+2*e,2)}")
    a(f"""v_permlane32_swap_b32 v{GP}, v{GP+2}
    v_permlane32_swap_b32 v{GP+1}, v{GP+3}
    v_mul_f32 v22, s28, v{GP}
    v_mul_f32 v23, s28, v{GP+1}
    v_exp_f32 v22, v22
    v_exp_f32 v23, v23
    v_add_f32 v22, 1.0, v22
    v_add_f32 v23, 1.0, v23
    v_rcp_f32 v22, v22
    v_rcp_f32 v23, v23
    v_pk_mul_f32 v[22:23], v[22:23], {vr(GP,2)}
    v_pk_mul_f32 v[22:23], v[22:23], {vr(GP+2,2)}
    v_cvt_pk_bf16_f32 v22, v22, v23
    ds_write_b32 v214, v22""")
    lds_inc(a, 14, C_S, 15)
    a(f"s_cmp_ge_u32 s{L}, 2\ns_cbranch_scc1 L_st3\ns_branch L_clr")
    a.label("L_nofn")
    spin_lds(a, 14, C_A, 512, 8, sleep=8)
    srd(a, 16, 38, 448 * 896)
    a(f"""s_sub_u32 s26, s2, 196
    s_lshl1_add_u32 s26, s26, s{L}
    s_mul_i32 s26, s26, {27*128}
    s_min_u32 s26, s26, {(3136-27)*128}
    s_mov_b64 exec, 0x7ffffff
    buffer_load_dword v6, v219, s[16:19], s26 offen
    s_mov_b64 exec, -1""")
    sel_load("L_sel2")
    a(f"""s_lshl2_add_u32 s26, s2, s{L}
    s_cmp_lg_u32 s26, {254*4}
    s_cbranch_scc1 L_clr""")
    a(f"s_mov_b32 s60, {SPIN_LIMIT}\nL_ep:")
    for k in range(4):
        a(f"s_mov_b32 s26, {WS_FL+8192*k}\nbuffer_load_dword v{24+k}, v219, s[8:11], s26 offen sc1")
    a(f"""s_sub_u32 s60, s60, 1
    s_cbranch_scc1 L_exit
    s_waitcnt vmcnt(0)
    v_xor_b32 v24, s{T}, v24
    v_bitop3_b32 v24, v24, v25, s{T} bitop3:0xf6
    v_bitop3_b32 v24, v24, v26, s{T} bitop3:0xf6
    v_bitop3_b32 v24, v24, v27, s{T} bitop3:0xf6
    v_cmp_ne_u32 vcc, 0, v24
    s_cbranch_vccnz L_ep
    s_mov_b32 s26, {WS_EP}""")
    flag_store(a, 5, 9, "s26")
    a("L_clr:")
    if "noobt" not in EXP:
        a(f"""s_lshl1_add_u32 s26, s58, s{L}
        s_lshl_b32 s26, s26, 8
        s_add_u32 s26, s26, {WS_OFL}
        s_mov_b64 exec, 3
        buffer_atomic_or v9, v219, s[8:11], s26 offen sc1
        s_mov_b64 exec, -1""")
    for k in range(4):
        a(f"buffer_store_dwordx4 v[28:31], v1, s[8:11], s59 offen sc1\ns_add_u32 s59, s59, {16*2048}")
    a("v_mov_b32 v12, 1")
    st(a, 7)
    Y = 40
    a(f"""L_updA:
    s_and_b32 s53, s{H}, 3
    s_mul_i32 s53, s53, 224
    s_lshl_b32 s57, s{L}, 2
    s_lshr_b32 s26, s53, 6
    s_lshl_b32 s26, s26, 7
    s_add_u32 s62, s26, {WS_YFL}
    L_upd:
    v_readlane_b32 s52, v20, s57
    s_andn2_b32 s54, 0x7ff, s52
    s_lshr_b32 s26, s54, 5
    s_cmp_lg_u32 s26, s58
    s_cbranch_scc1 L_updn
    s_mov_b32 s60, {SPIN_LIMIT}
    s_mov_b32 exec_lo, 0x0fffffff
    s_mov_b32 exec_hi, 0x0fffffff
    L_yfl:
    v_mov_b32 v24, 0
    v_mov_b32 v25, 0
    buffer_atomic_or v24, v220, s[8:11], s62 offen sc0 sc1
    buffer_atomic_or v25, v220, s[8:11], s62 offen offset:256 sc0 sc1
    s_waitcnt vmcnt(0)
    v_xor_b32 v24, s{T}, v24
    v_bitop3_b32 v24, v24, v25, s{T} bitop3:0xf6
    v_cmp_ne_u32 vcc, 0, v24
    s_mov_b64 s[28:29], exec
    s_mov_b64 exec, 1
    ds_add_u32 v14, v12 offset:{C_C}
    v_mov_b32 v12, 0
    s_mov_b64 exec, s[28:29]
    s_cbranch_vccz L_yok
    s_sleep 3
    s_sub_u32 s60, s60, 1
    s_cbranch_scc0 L_yfl
    s_endpgm
    L_yok:
    v_mul_u32_u24 v4, {14*14336}, v33
    v_lshl_add_u32 v4, v32, 4, v4
    s_mul_i32 s26, s57, 1792
    s_lshl1_add_u32 s26, s53, s26
    s_add_u32 s26, s26, {WS_YP}""")
    for i in range(14):
        a(f"buffer_load_dwordx4 {vr(Y+4*i,4)}, v4, s[8:11], s26 offen sc1\ns_add_u32 s26, s26, 14336")
    a(f"""s_mov_b64 exec, -1
    s_lshr_b32 s26, s52, 11
    s_not_b32 s55, s26
    s_and_b32 s29, s26, 0x7fff
    s_bitcmp1_b32 s26, 15
    s_cselect_b32 s26, s29, s55
    s_lshl_b32 s26, s26, 16
    v_mov_b32 v6, {NLOG2E:#x}
    v_mul_f32 v6, s26, v6
    v_exp_f32 v6, v6
    v_add_f32 v6, 1.0, v6
    v_rcp_f32 v6, v6
    v_cvt_pk_bf16_f32 v6, v6, v6
    v_lshlrev_b32 v6, 16, v6
    s_mul_i32 s26, s57, 448
    s_add_u32 s26, s26, {UPD}
    v_lshl_add_u32 v7, v32, 4, s26
    s_waitcnt vmcnt(0)""")
    for i in range(1, 14):
        a(f"v_pk_add_f32 {vr(Y,2)}, {vr(Y,2)}, {vr(Y+4*i,2)}\nv_pk_add_f32 {vr(Y+2,2)}, {vr(Y+2,2)}, {vr(Y+4*i+2,2)}")
    for k in range(4): a(f"v_mov_b32 v{Y+4+k}, v{Y+k}")
    for k in range(4): a(f"v_permlane32_swap_b32 v{Y+k}, v{Y+4+k}")
    for k in range(4): a(f"v_add_f32 v{Y+k}, v{Y+k}, v{Y+4+k}")
    for k in range(0, 4, 2):
        a(f"""v_cvt_pk_bf16_f32 v{Y+k}, v{Y+k}, v{Y+k+1}
        v_and_b32 v{Y+k+1}, 0xffff0000, v{Y+k}
        v_lshlrev_b32 v{Y+k}, 16, v{Y+k}
        v_mul_f32 v{Y+k}, v{Y+k}, v6
        v_mul_f32 v{Y+k+1}, v{Y+k+1}, v6
        v_cvt_pk_bf16_f32 v{Y+k}, v{Y+k}, v{Y+k+1}
        v_and_b32 v{Y+k+1}, 0xffff0000, v{Y+k}
        v_lshlrev_b32 v{Y+k}, 16, v{Y+k}""")
    a(f"""s_and_b32 s54, s54, 31
    v_mov_b32 v5, s57
    s_lshl_b32 s26, s54, 2
    s_add_u32 s26, s26, {UPDI}
    v_mov_b32 v4, s26
    s_mov_b64 exec, 0x0fffffff
    ds_write_b128 v7, {vr(Y,4)}
    s_mov_b64 exec, 1
    ds_write_b32 v4, v5
    s_mov_b64 exec, -1
    L_updn:
    s_add_u32 s57, s57, 1
    s_and_b32 s26, s57, 3
    s_cbranch_scc1 L_upd
    v_mov_b32 v6, 512""")
    lds_inc(a, 14, C_O, 6)
    st(a, 9)
    a("s_branch L_wo1")
    a.label("L_svcB")
    CLR = "buffer_store_dwordx4 v[24:27], v1, s[8:11], s59 offen sc1"
    if "noclr" in EXP: CLR = ""
    if "otouch" in EXP: CLR = "s_mov_b32 exec_lo, 0x0f0f0f0f\ns_mov_b32 exec_hi, 0x0f0f0f0f\nbuffer_store_dwordx4 v[24:27], v1, s[8:11], s59 offen sc1\ns_mov_b64 exec, -1"
    OUTT = ""
    if "outtouch" in EXP:
        OUTT = f"""s_cmp_lg_u32 s55, {42*1024}
        s_cbranch_scc1 L_noot
        s_mov_b32 s20, s50
        s_mov_b32 s21, s51
        s_mov_b32 s22, {2048*896}
        s_mov_b32 s23, 0x20000
        s_lshl_b32 s26, s58, 5
        v_add_u32 v4, s26, v32
        v_mul_u32_u24 v4, 896, v4
        s_add_u32 s26, s53, 127
        s_and_b32 s26, s26, 0xffffff80
        v_lshl_add_u32 v4, v33, 7, v4
        s_cmp_eq_u32 s53, 672
        s_cselect_b32 exec_hi, 0, -1
        buffer_store_dword v9, v4, s[20:23], s26 offen sc1
        s_mov_b64 exec, -1
        L_noot:"""
    WOPF = "s_mov_b32 exec_hi, 0x1ffff\nbuffer_load_dword v6, v219, s[16:19], s28 offen\ns_mov_b64 exec, -1" if "wopfS" not in EXP and "nowopf" not in EXP else ""
    for e in range(7):
        a(f"""v_add_u32 v4, {64*e}, v3
        v_mul_u32_u24 v5, 4682, v4
        v_lshrrev_b32 v5, 16, v5
        v_mul_u32_u24 v5, {896-224}, v5
        v_lshl_add_u32 v{200+e}, v4, 4, v5""")
    a(f"""v_mov_b32 v16, 0
    v_mov_b32 v17, 0
    v_mov_b32 v18, 0
    v_mov_b32 v19, 0
    v_add_u32 v209, {448*224}, v1
    v_bfe_u32 v7, v3, 2, 2
    v_lshl_add_u32 v5, v33, 3, v7
    v_lshlrev_b32 v5, 7, v5
    v_bfe_u32 v4, v3, 4, 1
    v_lshl_add_u32 v5, v4, 5, v5
    v_and_b32 v4, 3, v3
    v_lshl_add_u32 v5, v4, 3, v5
    v_lshrrev_b32 v7, 1, v7
    v_xor_b32 v7, s{L}, v7
    v_and_b32 v7, 1, v7
    v_lshl_add_u32 v5, v7, 6, v5
    v_add_u32 v210, {DI}, v5
    v_lshlrev_b32 v4, 4, v217
    v_lshl_add_u32 v4, v33, 4, v4
    v_add_u32 v218, {HB}, v4
    v_mul_u32_u24 v215, {4*1792}, v33
    v_lshl_add_u32 v215, v32, 2, v215
    v_add_u32 v216, {2*1792}, v215
    s_cmp_eq_u32 s{L}, 2
    s_cbranch_scc1 L_svcB2
    v_lshrrev_b32 v4, 4, v3
    v_and_b32 v5, 15, v3
    v_lshlrev_b32 v5, 2, v5
    v_lshl_add_u32 v221, v4, 9, v5
    v_lshl_add_u32 v222, v4, 5, v14
    v_and_b32 v223, 48, v3
    v_and_b32 v5, 15, v3
    v_add_u32 v6, v5, v4
    v_mul_u32_u24 v224, {4*TS}, v6
    v_add_u32 v224, 1, v224
    v_bfm_b32 v225, v5, 0
    s_mul_i32 s26, s{H}, 28
    s_add_u32 s28, s26, 27
    s_xor_b32 s26, s26, s28
    s_mov_b32 s62, 0x55555555
    s_cmp_ge_u32 s26, 64
    s_cselect_b32 s62, -1, s62
    s_mov_b32 s63, s62
    s_lshr_b32 s28, s{J}, 2
    s_lshl4_add_u32 s26, s{H}, s28
    s_lshl_b32 s26, s26, 7
    s_add_u32 s26, s26, {WS_MB}""")
    spin_lds(a, 14, C_D, PCD, 8, sleep=1)
    at = lambda r: f"v_mov_b32 v{r}, 0\nbuffer_atomic_or v{r}, v221, s[8:11], s26 offen sc0 sc1"
    a(f"""s_mov_b32 s60, {SPIN_LIMIT}
    s_mov_b32 s52, 0x11111111
    s_mov_b32 s53, 0x11111111
    s_mov_b64 s[56:57], s[52:53]
    s_mov_b64 exec, s[62:63]""")
    for i in range(PD - 1): a(at(28 + i) + f"\ns_sleep {PG}")
    a("L_kv:")
    for i in range(PD):
        a(at(28 + (i + PD - 1) % PD))
        a(f"""s_waitcnt vmcnt({PD-1})
        v_cmp_ne_u32 vcc, s{T}, v{28+i}
        s_lshr_b64 s[28:29], vcc, 1
        s_or_b64 s[28:29], s[28:29], vcc
        s_andn2_b64 s[54:55], s[56:57], s[28:29]
        s_cbranch_scc0 L_kvs{i}
        s_ff1_i32_b64 s54, s[54:55]
        s_lshl_b64 exec, 1, s54
        ds_write_b32 v14, v224 offset:{C_M}
        s_mov_b64 exec, s[62:63]
        s_mov_b64 s[56:57], 0
        L_kvs{i}:
        s_lshr_b64 s[54:55], s[28:29], 2
        s_or_b64 s[28:29], s[28:29], s[54:55]
        s_andn2_b64 s[28:29], s[52:53], s[28:29]
        s_cbranch_scc0 L_kvn{i}
        s_andn2_b64 s[52:53], s[52:53], s[28:29]
        v_lshrrev_b64 v[4:5], v223, s[28:29]
        v_and_b32 v5, v225, v4
        v_bcnt_u32_b32 v5, v5, 0
        v_lshl_add_u32 v5, v5, 2, v222
        s_mov_b64 exec, s[28:29]
        ds_write_b32 v5, v224 offset:{C_R}
        s_mov_b64 exec, s[62:63]
        v_and_b32 v4, 0xffff, v4
        v_bcnt_u32_b32 v4, v4, 0
        v_lshl_add_u32 v222, v4, 2, v222
        s_cmp_eq_u64 s[52:53], 0
        s_cbranch_scc1 L_kvdone
        L_kvn{i}:""")
    a(f"""s_sub_u32 s60, s60, 1
    s_cbranch_scc0 L_kv
    s_endpgm
    L_kvdone:
    s_mov_b64 exec, -1
    L_svcB2:""")
    srd(a, 16, 38, 448 * 896)
    a(f"""s_and_b32 s53, s{H}, 3
    s_mul_i32 s53, s53, 224
    s_and_b32 s27, s{L}, 1
    s_mul_i32 s55, s27, {7*1024}
    s_mul_i32 s57, s27, {32*896}
    s_add_u32 s57, s57, s53""")
    spin_lds(a, 14, C_A, 256, 8, sleep=4)
    st(a, 3)
    a("ds_write_b128 v209, v[16:19]")
    lds_inc(a, 14, C_W, 15)
    a(f"""    s_cmp_lg_u32 s{L}, 2
    s_cbranch_scc1 L_nofl
    s_lshl_b32 s26, s2, 7
    s_add_u32 s26, s26, {WS_FL}""")
    flag_store(a, 5, 9, "s26")
    a("L_nofl:\ns_cmp_lt_u32 s2, 196\ns_cbranch_scc1 L_st2w\ns_branch L_wo1")
    a("L_st3:")
    spin_lds(a, 14, C_S, 4, 8, sleep=1)
    for k in range(4):
        a(f"ds_read_b64_tr_b16 {vr(DW+4*k,2)}, v210 offset:{k*2048}\nds_read_b64_tr_b16 {vr(DW+4*k+2,2)}, v210 offset:{k*2048+512}")
    for k in range(4):
        a(f"ds_read_b128 {vr(GP+4*k,4)}, v218 offset:{32*k}\ns_waitcnt lgkmcnt(0)\n{MF} {vr(AC,16)}, {vr(GP+4*k,4)}, {vr(DW+4*k,4)}, {'0' if k==0 else vr(AC,16)}")
    a(f"""s_mul_i32 s26, s{FT}, 14336
    s_lshl1_add_u32 s28, s{KS}, s27
    s_lshl_b32 s29, s28, 7
    s_add_u32 s26, s26, s29
    s_add_u32 s26, s26, {WS_YP}
    s_lshl2_add_u32 s28, s{FT}, s29
    s_add_u32 s28, s28, {WS_YFL}
    buffer_store_dword v{AC}, v215, s[8:11], s26 offen sc1
    buffer_store_dword v{AC+1}, v215, s[8:11], s26 offen offset:1792 sc1
    buffer_store_dword v{AC+2}, v216, s[8:11], s26 offen sc1
    buffer_store_dword v{AC+3}, v216, s[8:11], s26 offen offset:1792 sc1
    s_waitcnt vmcnt(0)""")
    signal(a, 5, 9, "s28", 1)
    st(a, 7)
    a("L_wo1:")
    srd(a, 16, 38, 448 * 896)
    a("s_mov_b32 s27, 0")
    spin_lds(a, 14, C_Z, 64 * ZN, 8, sleep=4)
    st(a, 4)
    a(f"""L_wo:
    s_mov_b64 exec, 1
    ds_add_rtn_u32 v8, v14, v15 offset:{C_B}
    s_mov_b64 exec, -1
    s_waitcnt lgkmcnt(0)
    v_readfirstlane_b32 s26, v8
    s_cmp_ge_u32 s26, 14
    s_cbranch_scc1 L_wodone
    s_add_u32 s27, s27, 1
    s_mul_i32 s55, s26, {7*1024}
    s_mul_i32 s57, s26, {32*896}
    s_add_u32 s57, s57, s53""")
    for e in range(7):
        a(f"""s_add_u32 m0, s55, {e*1024}
        s_waitcnt vmcnt({WD})
        buffer_load_dwordx4 v{200+e}, s[16:19], s57 offen lds""")
    a(f"""s_waitcnt vmcnt(7)
    s_mov_b64 exec, 1
    ds_add_u32 v14, v12 offset:{C_C}
    v_mov_b32 v12, 0
    s_branch L_wo
    L_wodone:
    v_mov_b32 v5, s27
    s_waitcnt vmcnt(0)""")
    lds_inc(a, 14, C_C, 12)
    lds_inc(a, 14, C_W, 5)
    st(a, 8)
    a.label("L_ofetch")
    a("s_waitcnt vmcnt(0) lgkmcnt(0)")
    st_end(a)
    a("L_exit:\nL_code_end:\ns_endpgm")

def main(out):
    hdr = open("cdna_kernels/" + NAME + ".s.ref").read().split("; Override")[0]
    rep = []
    a = Asm()
    prologue_and_loader(a); main_wave(a); service_wave(a)
    t = hdr
    t += f"; @launch grid=(256,1,1) block=(512,1,1) lds={LDS_BYTES}\n"
    t += '.amdgcn_target "amdgcn-amd-amdhsa--gfx950"\n'
    t += kernel_text(NAME + "_kernel", a.l, 256, report=rep)
    open(out, "w").write(t)
    if "-v" in sys.argv: print("\n".join(rep))

if __name__ == "__main__":
    main(sys.argv[1])
```

```python
import sys, math, struct
from asmlib import *

NAME = "gated_mix__softmax_full_mha__moe_arch_mod__prompt"
STAMP = "-s" in sys.argv
EXP = set(x[2:] for x in sys.argv if x.startswith("-x"))
WS_KV = 0
BLK = 5120; TS = 14 * BLK; KVB = 64 * TS
WS_O = 0x480000
WS_R = 0x680000
WS_G = WS_R + 16384
WS_SEL = WS_R + 32768
WS_EP = WS_R + 40960
WS_FL = WS_R + 65536
WS_MB = WS_FL + 32768
WS_OFL = WS_MB + 32768
WS_YFL = WS_OFL + 32768
WS_F1 = WS_YFL + 4096
WS_YP = WS_R + (1 << 18)
WS_GP = 0x730000
WS_ST = 16 << 20
XS = 0; WT = 65536; WQ = 122880; QX = 151552; UPD = 159744
WO = 0; CB = 102400
UPDI = UPD + 3584
KEYS = UPD
RT = UPD + 1024
CAND = UPD + 512
SELECTOR = 223
CNT = 163840 - 192
C_M = 88
LDS_BYTES = 163840
C_Q1, C_Q2, C_X, C_L, C_S, C_D, C_C, C_O, C_W, C_F, C_K, C_T, C_P, C_R = 0, 4, 8, 12, 16, 20, 24, 28, 32, 36, 40, 44, 48, 64

def f32bits(x): return struct.unpack("<I", struct.pack("<f", x))[0]
QSCALE = f32bits(28 ** -0.5 * math.log2(math.e))
NLOG2E = f32bits(-math.log2(math.e))
MF = "v_mfma_f32_32x32x16_bf16"
ROLE = [0, 1, 2, 3, 14, 4, 5, 6, 7, 8, 9, 15, 10, 11, 12, 13]
ROLE_LO = sum(ROLE[i] << (4 * i) for i in range(8))
ROLE_HI = sum(ROLE[8 + i] << (4 * i) for i in range(8))
SPIN_LIMIT = 1 << 20
NW1 = ([int(x[2:]) for x in EXP if x.startswith("nw")] + [14])[0]
WD = ([int(x[2:]) for x in EXP if x.startswith("wd")] + [14])[0]
GA = ([int(x[2:]) for x in EXP if x.startswith("ga")] + [4])[0]
GB = ([int(x[2:]) for x in EXP if x.startswith("gb")] + [12])[0]
C_A, C_B, C_Z = 92, 120, 124
ZN = ([int(x[2:]) for x in EXP if x.startswith("zn")] + [2])[0]
ZU = ([int(x[2:]) for x in EXP if x.startswith("zu")] + [1])[0]
NEARLYWO = ([int(x[2:]) for x in EXP if x.startswith("ew")] + [0])[0]
NQ1 = ([int(x[2:]) for x in EXP if x.startswith("nq")] + [4])[0]
WSBASE = ([int(x[2:]) for x in sys.argv if x.startswith("-w")] + [0])[0] << 20
PD = 2 if "pd2" in EXP else 4
PG = 6 if "pd2" in EXP else 3
PCD = 4 if "pcd4" in EXP else (0 if "pcd0" in EXP else 1)
KVS = 4 if "kvs4" in EXP else (0 if "kvs0" in EXP else 2)
PQ2 = 4 if "pq4" in EXP else (0 if "pq0" in EXP else 1)
PF0 = 2 if "pf2" in EXP else 0
WOP = 1 if "wo1" in EXP else (3 if "wo3" in EXP else 2)
OUTAUX = " sc1" if "outsc1" in EXP else (" nt" if "outnt" in EXP else "")

T, H, J, W, RL, ROT = 30, 31, 32, 33, 34, 3
_uid = [0]
def uid(p):
    _uid[0] += 1
    return f"{p}_{_uid[0]}"

def srd(a, d, ptr, nbytes):
    a(f"s_mov_b32 s{d}, s{ptr}\ns_mov_b32 s{d+1}, s{ptr+1}\ns_mov_b32 s{d+2}, {nbytes:#x}\ns_mov_b32 s{d+3}, 0x20000")

NST = 12
DIAG = [tuple(int(y) for y in x[2:].split("-")) for x in sys.argv if x.startswith("-d")]
def st(a, i):
    if STAMP: a(f"s_{'memrealtime' if 'rt' in EXP else 'memtime'} s[{72+2*i}:{73+2*i}]")
    if DIAG and i in DIAG[0]: a(f"s_memrealtime s[{72+2*i}:{73+2*i}]\ns_waitcnt lgkmcnt(0)")
def st_begin(a):
    if STAMP: a("s_memrealtime s[68:69]\ns_memtime s[72:73]" if "rt" not in EXP else "s_memrealtime s[68:69]\ns_memrealtime s[72:73]")
    if DIAG: a("s_memrealtime s[72:73]")
ABS = [x[2:] for x in sys.argv if x.startswith("-a")]
REL = [tuple(int(y) for y in x[2:].split("-")) for x in sys.argv if x.startswith("-r")]
if ABS:
    DIAG = [(0, 0 if ABS[0] == "z" else int(ABS[0].lstrip("m")))]
if REL:
    ABS = ["r"]; DIAG = REL
def diag_start(a):
    if not ABS: return
    a(f"""s_load_dwordx2 s[98:99], s[0:1], 80
    s_waitcnt lgkmcnt(0)
    s_cmp_ge_u32 s2, 8
    s_cbranch_scc1 L_dg0
    s_cmp_lg_u32 s{W}, 0
    s_cbranch_scc1 L_dg0
    s_lshl_b32 s70, s2, 2
    v_mov_b32 v4, s70
    v_mov_b32 v6, s72
    global_store_dword v4, v6, s[98:99] sc1
    L_dg0:""")
def diag_end(a):
    if not DIAG: return
    p, q = DIAG[0]
    if ABS:
        a(f"""s_waitcnt vmcnt(0)
        s_memrealtime s[96:97]
        s_mov_b64 exec, -1
        v_mov_b32 v4, 0
        global_load_dwordx4 v[8:11], v4, s[98:99] sc1
        global_load_dwordx4 v[12:15], v4, s[98:99] offset:16 sc1
        s_waitcnt vmcnt(0) lgkmcnt(0)
        v_min3_u32 v8, v8, v9, v10
        v_min3_u32 v8, v8, v11, v12
        v_min3_u32 v8, v8, v13, v14
        v_min_u32 v8, v8, v15
        s_nop 1
        v_readfirstlane_b32 s69, v8
        s_sub_u32 s70, s{72+2*q}, s69""")
        if ABS[0] == "z": a("s_mov_b32 s70, 0")
        if REL: a(f"s_sub_u32 s70, s{72+2*q}, s{72+2*p}\ns_lshl_b32 s70, s70, {0 if 'k1' in EXP else 2}")
        for x in EXP:
            if x.startswith("hm"): a(f"s_mov_b32 s71, 0x{x[2:]}\ns_bitcmp1_b32 s71, s{H}\ns_cselect_b32 s70, s70, 0")
            if x.startswith("jm"): a(f"s_mov_b32 s71, 0x{x[2:]}\ns_bitcmp1_b32 s71, s{J}\ns_cselect_b32 s70, s70, 0")
        if "onlynw" in EXP: a("s_cmp_ge_u32 s2, 196\ns_cselect_b32 s70, s70, 0")
        if "only23" in EXP: a(f"s_cmp_ge_u32 s{W}, 2\ns_cselect_b32 s70, s70, 0")
        if ABS[0].startswith("m"): a("s_sub_u32 s70, 2500, s70")
        a("s_add_u32 s70, s70, s69\ns_add_u32 s70, s70, 2500")
    else:
        a(f"""s_waitcnt vmcnt(0)
        s_memrealtime s[96:97]
        s_waitcnt lgkmcnt(0)
        s_sub_u32 s70, s{72+2*q}, s{72+2*p}
        s_add_u32 s70, s70, s96""")
    a(f"""L_diag:
    s_memrealtime s[68:69]
    s_waitcnt lgkmcnt(0)
    s_sub_u32 s71, s68, s70
    s_cmp_lt_i32 s71, 0
    s_cbranch_scc1 L_diag""")
def st_init(a):
    if STAMP:
        for i in range(1, NST): a(f"s_mov_b32 s{72+2*i}, s72")
def st_end(a):
    if not STAMP: return
    a(f"""s_waitcnt vmcnt(0)
    s_memrealtime s[70:71]
    s_{'memrealtime' if 'rt' in EXP else 'memtime'} s[{72+2*NST}:{73+2*NST}]
    s_getreg_b32 s66, hwreg(HW_REG_HW_ID)
    s_getreg_b32 s67, hwreg(HW_REG_XCC_ID)
    s_mov_b64 exec, -1
    s_lshl_b32 s65, s2, 3
    s_add_u32 s65, s65, s{W}
    s_lshl_b32 s65, s65, 6
    s_add_u32 s65, s65, {WS_ST}
    s_waitcnt lgkmcnt(0)
    v_mov_b32 v4, s68
    v_mov_b32 v5, s70
    v_mov_b32 v6, s66
    v_mov_b32 v7, s67""")
    for i in range(1, NST + 1):
        a(f"s_sub_u32 s64, s{72+2*i}, s72\nv_mov_b32 v{7+i}, s64")
    a("v_mov_b32 v2, 0\ns_mov_b64 exec, 1")
    for k in range(4):
        a(f"buffer_store_dwordx4 v[{4+4*k}:{7+4*k}], v2, s[8:11], s65 offen offset:{16*k}")

def poll_global(a, vdst, voff, soff, mask=None, sleep=1):
    l = uid("Lpoll"); d = uid("Lpd")
    a(f"s_mov_b32 s60, {SPIN_LIMIT}")
    if mask is not None: a(f"s_mov_b64 exec, {mask}")
    a(f"""{l}:
    buffer_load_dword v{vdst}, v{voff}, s[8:11], {soff} offen sc1
    s_waitcnt vmcnt(0)
    v_cmp_ne_u32 vcc, s{T}, v{vdst}
    s_cbranch_vccz {d}
    s_mov_b64 exec, vcc
    s_sleep {sleep}
    s_sub_u32 s60, s60, 1
    s_cbranch_scc0 {l}
    s_endpgm
    {d}:
    s_mov_b64 exec, -1""")

def poll_atomic(a, vdst, voff, soff, mask, sleep):
    l = uid("Lpa"); d = uid("Lpad")
    a(f"""s_mov_b32 s60, {SPIN_LIMIT}
    s_mov_b64 exec, {mask}
    {l}:
    v_mov_b32 v{vdst}, 0
    buffer_atomic_or v{vdst}, v{voff}, s[8:11], {soff} offen sc0 sc1
    s_waitcnt vmcnt(0)
    v_cmp_ne_u32 vcc, s{T}, v{vdst}
    s_cbranch_vccz {d}
    s_sleep {sleep}
    s_sub_u32 s60, s60, 1
    s_cbranch_scc0 {l}
    s_endpgm
    {d}:
    s_mov_b64 exec, -1""")

def poll_pipe(a, v0, voff, soff, mask, D=4, gap=3):
    l = uid("Lpp"); d = uid("Lppd")
    at = lambda r: f"v_mov_b32 v{r}, 0\nbuffer_atomic_or v{r}, v{voff}, s[8:11], {soff} offen sc0 sc1"
    a(f"s_mov_b32 s60, {SPIN_LIMIT}\ns_mov_b64 exec, {mask}")
    for i in range(D - 1): a(at(v0 + i) + f"\ns_sleep {gap}")
    a(f"{l}:")
    for i in range(D):
        a(at(v0 + (i + D - 1) % D))
        a(f"s_waitcnt vmcnt({D-1})\nv_cmp_ne_u32 vcc, s{T}, v{v0+i}\ns_cbranch_vccz {d}")
    a(f"""s_sub_u32 s60, s60, 1
    s_cbranch_scc0 {l}
    s_endpgm
    {d}:
    s_mov_b64 exec, -1""")

def signal(a, vt, voff, soff, mask):
    a(f"v_mov_b32 v{vt}, s{T}\ns_mov_b64 exec, {mask}\nbuffer_atomic_swap v{vt}, v{voff}, s[8:11], {soff} offen sc1\ns_mov_b64 exec, -1")

def spin_lds(a, vaddr, off, want, vt, sleep=0):
    l = uid("Lsp"); d = uid("Lsd")
    if not sleep:
        a(f"""s_mov_b32 s60, {SPIN_LIMIT}
        {l}:
        ds_read_b32 v{vt}, v{vaddr} offset:{off}
        s_sub_u32 s60, s60, 1
        s_cbranch_scc1 L_exit
        s_waitcnt lgkmcnt(0)
        v_readfirstlane_b32 s61, v{vt}
        s_cmp_ge_u32 s61, {want}
        s_cbranch_scc0 {l}""")
        return
    a(f"""s_mov_b32 s60, {SPIN_LIMIT}
    {l}:
    ds_read_b32 v{vt}, v{vaddr} offset:{off}
    s_waitcnt lgkmcnt(0)
    v_readfirstlane_b32 s61, v{vt}
    s_cmp_ge_u32 s61, {want}
    s_cbranch_scc1 {d}""")
    if sleep: a(f"s_sleep {sleep}")
    a(f"""s_sub_u32 s60, s60, 1
    s_cbranch_scc0 {l}
    s_endpgm
    {d}:""")

def lds_inc(a, vaddr, off, vone):
    a(f"s_mov_b64 exec, 1\nds_add_u32 v{vaddr}, v{vone} offset:{off}\ns_mov_b64 exec, -1")

def flag_store(a, vt, vz, soff):
    a(f"v_mov_b32 v{vt}, s{T}\ns_mov_b64 exec, 1\nbuffer_store_dword v{vt}, v{vz}, s[8:11], {soff} offen sc1\ns_mov_b64 exec, -1")

def split_neg_max(a, m, t0, t1, q6, q7):
    a(f"""v_sub_f32 v{m}, 0, v{m}
    v_cvt_pk_bf16_f32 v{t0}, v{m}, v{m}
    v_lshlrev_b32 v{t0}, 16, v{t0}
    v_sub_f32 v{t0}, v{m}, v{t0}
    v_cvt_pk_bf16_f32 v{t1}, v{m}, v{t0}
    v_and_b32 v{m}, 0xffff0000, v{t1}
    v_sub_f32 v{t0}, v{t0}, v{m}
    s_mov_b32 exec_lo, 0
    v_mov_b32 v{q6}, v{t1}
    v_cvt_pk_bf16_f32 v{q7}, v{t0}, 0
    s_mov_b32 exec_lo, -1""")

def max16_list(dst, S, init=False):
    if not init:
        return ([f"v_max3_f32 v{dst}, v{S}, v{S+1}, v{S+2}"] +
                [f"v_max3_f32 v{dst}, v{dst}, v{S+i}, v{S+i+1}" for i in range(3, 15, 2)] +
                [f"v_max_f32 v{dst}, v{dst}, v{S+15}"])
    return [f"v_max3_f32 v{dst}, v{dst}, v{S+i}, v{S+i+1}" for i in range(0, 16, 2)]

def wave_min_u32(a, v, full=True):
    for r in (1, 2, 4, 8):
        a(f"v_min_u32_dpp v{v}, v{v}, v{v} row_ror:{r} row_mask:0xf bank_mask:0xf")
    a(f"v_min_u32_dpp v{v}, v{v}, v{v} row_bcast:15 row_mask:0xa bank_mask:0xf")
    if full: a(f"v_min_u32_dpp v{v}, v{v}, v{v} row_bcast:31 row_mask:0xc bank_mask:0xf")

def rank_count(a, own, base, n, dst, t):
    a(f"v_mov_b32 v{dst}, 0\nv_mov_b32 v{t}, 0")
    for k in range(0, n, 4):
        a(f"s_waitcnt lgkmcnt({(n-k)//4-1})")
        for e in range(4): a(f"v_sub_u32 v{base+k+e}, v{own}, v{base+k+e}")
        for e in range(4):
            r = (dst, t)[e & 1]
            a(f"v_alignbit_b32 v{r}, v{r}, v{base+k+e}, 31")
    a(f"v_bcnt_u32_b32 v{dst}, v{dst}, 0\nv_bcnt_u32_b32 v{dst}, v{t}, v{dst}")

def tag(a):
    a(f"s_mul_i32 s{T}, s{T}, 0x9e3779b1\ns_add_u32 s{T}, s{T}, 0x7f4a7c15")

def next_chunk(a, s):
    a(f"s_add_u32 s{s}, s{s}, 1\ns_cmp_eq_u32 s{s}, 7\ns_cselect_b32 s{s}, 0, s{s}")

Q, O, KV, S, P = 8, 40, 104, 168, 200
XF = 104; A0, A1, WF = 40, 56, 72
VX = 216; VW = 220; VQ = 222; VC = 223; V1 = 224; VZ = 225; VT = 226; VH = 227
VA = 228; TMP = 232; XR = 240; GR = 248; VWQ = 250; VF = 251; VFS = 252; VXO = 253; VGO = 254
OWN = 3
L = 35

def prologue_and_loader(a):
    MAPCODE = ""
    if "map2" in EXP:
        MAPCODE = f"s_and_b32 s26, s25, 1\ns_lshl1_add_u32 s{H}, s24, s26\ns_lshr_b32 s{J}, s25, 1\ns_lshl1_add_u32 s{ROT}, s26, s{J}\ns_add_u32 s{ROT}, s{ROT}, s24\ns_and_b32 s{ROT}, s{ROT}, 3\ns_lshl_b32 s{ROT}, s{ROT}, 1"
        if "norot" in EXP: MAPCODE += f"\ns_mov_b32 s{ROT}, 0"
    TADDR = "v_lshl_add_u32 v8, v3, 7, s58"
    if "tfull" in EXP: TADDR = "s_add_u32 s58, s58, 2048\nv_add_u32 v8, s58, v1"
    elif "t32" in EXP: TADDR = "v_and_b32 v8, 62, v3\nv_mul_u32_u24 v8, 48, v8\nv_add3_u32 v8, v8, v1, s58"
    else: TADDR = "v_and_b32 v8, 60, v3\nv_lshl_add_u32 v8, v8, 4, s58\nv_add_u32 v8, v8, v1"
    if "rot7" in EXP:
        ROTCODE = f"s_lshl1_add_u32 s{ROT}, s27, s26\ns_cmp_ge_u32 s{ROT}, 7\ns_cselect_b32 s26, 7, 0\ns_sub_u32 s{ROT}, s{ROT}, s26"
    elif "rot2" not in EXP and "norot" not in EXP and "rot23" not in EXP:
        ROTCODE = f"s_add_u32 s{ROT}, s27, s26\ns_and_b32 s{ROT}, s{ROT}, 3\ns_lshl_b32 s{ROT}, s{ROT}, 1"
    elif "norot" in EXP:
        ROTCODE = f"s_mov_b32 s{ROT}, 0"
    elif "rot23" in EXP:
        ROTCODE = f"s_add_u32 s{ROT}, s27, s26\ns_and_b32 s{ROT}, s{ROT}, 1\ns_mul_i32 s{ROT}, s{ROT}, 3"
    else:
        ROTCODE = f"s_add_u32 s{ROT}, s27, s26\ns_and_b32 s{ROT}, s{ROT}, 1\ns_lshl_b32 s{ROT}, s{ROT}, 2"
    st_begin(a)
    a(f"""s_load_dwordx4 s[4:7], s[0:1], 0
    s_load_dwordx2 s[36:37], s[0:1], 88
    s_load_dwordx2 s[38:39], s[0:1], 16
    s_load_dwordx8 s[40:47], s[0:1], 32
    s_load_dwordx4 s[48:51], s[0:1], 64
    s_cmp_ge_u32 s2, 256
    s_cbranch_scc1 L_exit
    v_lshrrev_b32 v2, 6, v0
    v_and_b32 v3, 63, v0
    s_and_b32 s24, s2, 7
    s_lshr_b32 s25, s2, 3
    v_readfirstlane_b32 s{W}, v2
    s_and_b32 s{H}, s24, 1
    s_lshl_b32 s{H}, s{H}, 3
    s_and_b32 s26, s25, 7
    s_add_u32 s{H}, s{H}, s26
    s_lshr_b32 s27, s25, 3
    s_and_b32 s{J}, s24, 6
    s_lshl1_add_u32 s{J}, s{J}, s27
    {ROTCODE}
    {MAPCODE}
    s_mov_b32 s28, {ROLE_LO:#x}
    s_mov_b32 s29, {ROLE_HI:#x}
    s_lshl_b32 s27, s{H}, 2
    s_lshr_b64 s[28:29], s[28:29], s27
    s_and_b32 s{RL}, s28, 15
    v_lshlrev_b32 v1, 4, v3
    s_mov_b32 s27, {WS_EP}
    s_cmp_lt_u32 s{W}, 4
    s_cbranch_scc1 L_main
    """)
    a(f"""s_setprio 2
    s_sub_u32 s{L}, s{W}, 4
    v_lshrrev_b32 v4, 3, v3
    v_mul_u32_u24 v5, 896, v4
    v_and_b32 v6, 7, v3
    v_lshrrev_b32 v7, 4, v3
    v_xor_b32 v7, v6, v7
    v_lshl_add_u32 v10, v7, 4, v5
    v_xor_b32 v11, 64, v10
    v_add_u32 v12, {2*6144}, v10
    v_add_u32 v13, {3*6144}, v11
    v_add_u32 v11, 6144, v11
    v_mul_u32_u24 v5, 2688, v4
    v_and_b32 v4, 2, v4
    v_lshlrev_b32 v4, 1, v4
    v_xor_b32 v4, v4, v6
    v_lshl_add_u32 v14, v4, 4, v5
    v_add_u32 v15, {8*2688-1024}, v14
    s_lshl2_add_u32 s52, s{J}, s{L}
    s_mul_i32 s58, s52, 14
    s_add_u32 s58, s58, s{RL}
    s_mul_i32 s58, s58, {BLK}
    {TADDR}
    s_mul_i32 s52, s52, {32*896}
    s_lshl_b32 s53, s{RL}, 7
    s_mul_i32 s26, s{L}, {16*2688}
    s_add_u32 s53, s53, s26
    s_add_u32 s53, s53, 896
    s_lshl_b32 s54, s{L}, 12
    s_lshl_b32 s55, s{L}, 11
    s_add_u32 s55, s55, {WT}
    s_mov_b32 s56, s{ROT}
    s_mov_b32 s57, 0
    s_mov_b32 s14, {2048*896}
    s_mov_b32 s15, 0x20000
    s_cmp_ge_u32 s{RL}, 14
    s_cselect_b32 s18, 0, {448*2688}
    s_mov_b32 s19, 0x20000
    s_waitcnt lgkmcnt(0)
    s_mov_b64 s[12:13], s[4:5]
    s_mov_b64 s[16:17], s[6:7]
    s_load_dword s{T}, s[36:37], s27""")
    st_init(a); st(a, 1)
    TPOS = ([int(x[2:]) for x in EXP if x.startswith("tp")] + [4])[0]
    TOUCH = "global_store_dwordx4 v8, v[10:13], s[36:37] sc1\nglobal_store_dwordx4 v8, v[10:13], s[36:37] offset:2048 sc1"
    if "tfull" in EXP:
        TOUCH = "\n".join(f"global_store_dwordx4 v8, v[10:13], s[36:37] offset:{1024*k-2048} sc1" for k in range(5))
    if "t32" in EXP: TOUCH = "global_store_dwordx4 v8, v[10:13], s[36:37] sc1"
    if "notouch" in EXP: TOUCH = ""
    a("s_cbranch_scc1 L_tbl")
    if TPOS == 0: a(TOUCH)
    a(f"""L_ld:
    s_mul_i32 s26, s56, {64*2688}
    s_mov_b32 m0, s55
    s_add_u32 s26, s26, s53
    s_lshl_b32 s28, s56, 7
    buffer_load_dwordx4 v14, s[16:19], s26 offen lds
    buffer_load_dwordx4 v15, s[16:19], s26 offen offset:1024 lds
    s_mov_b32 m0, s54
    s_add_u32 s28, s28, s52
    buffer_load_dwordx4 v10, s[12:15], s28 offen lds
    buffer_load_dwordx4 v11, s[12:15], s28 offen offset:1024 lds
    buffer_load_dwordx4 v12, s[12:15], s28 offen offset:2048 lds
    buffer_load_dwordx4 v13, s[12:15], s28 offen offset:3072 lds
    s_add_u32 s55, s55, 8192
    s_add_u32 s54, s54, 16384
    s_and_b32 s54, s54, 0xffff""")
    next_chunk(a, 56)
    if "tlb" in EXP:
        a(f"s_or_b32 s26, s57, s{L}\ns_cbranch_scc0 L_tlb\nL_tlb_done:")
    if "tsplit" in EXP:
        a(f"s_sub_u32 s26, s57, {TPOS-1}\ns_cmp_ge_u32 s26, 2\ns_cbranch_scc1 L_nt\ns_cmp_eq_u32 s18, 0\ns_cbranch_scc1 L_nt\nglobal_store_dwordx4 v8, v[10:13], s[36:37] sc1\nv_add_u32 v8, 2048, v8\nL_nt:")
    elif TPOS:
        a(f"s_cmp_lg_u32 s57, {TPOS-1}\ns_cbranch_scc1 L_nt")
        if "mbt" in EXP:
            a(f"""s_lshl2_add_u32 s26, s{H}, s{L}
            s_lshr_b32 s28, s{J}, 2
            s_lshl2_add_u32 s26, s26, s28
            s_lshl_b32 s26, s26, 7
            s_add_u32 s26, s26, {WS_MB}
            v_mov_b32 v4, s26
            v_mov_b32 v5, 0
            s_mov_b64 exec, 1
            global_atomic_or v4, v5, s[36:37] sc1
            s_mov_b64 exec, -1""")
        a(f"s_cmp_eq_u32 s18, 0\ns_cbranch_scc1 L_nt\n{TOUCH}\nL_nt:")
    a(f"""s_add_u32 s57, s57, 1
    s_cmp_lt_u32 s57, 3
    s_cbranch_scc1 L_ld
    s_waitcnt vmcnt(12)
    s_barrier
    s_cmp_lt_u32 s57, 7
    s_cbranch_scc1 L_ld
    """)
    a(f"""v_lshrrev_b32 v4, 2, v3
    v_mul_u32_u24 v4, 2688, v4
    v_and_b32 v5, 3, v3
    v_lshl_add_u32 v16, v5, 4, v4
    s_mov_b32 s18, {448*2688}
    s_mul_i32 s53, s{H}, 56
    s_and_b32 s53, s53, 0xfffffff0
    s_mul_i32 s26, s{L}, {16*2688}
    s_add_u32 s53, s53, s26
    s_lshl_b32 s55, s{L}, 10
    s_add_u32 s55, s55, {WQ}""")
    for i in range(NQ1):
        a(f"""s_mul_i32 s26, s56, {64*2688}
        s_add_u32 m0, s55, {i*4096}
        s_add_u32 s26, s26, s53
        buffer_load_dwordx4 v16, s[16:19], s26 offen lds""")
        if i < NQ1 - 1: next_chunk(a, 56)
        if i == 1: a("s_waitcnt vmcnt(8)\ns_barrier")
        if i == 3: a("s_waitcnt vmcnt(4)\ns_barrier")
    st(a, 2)
    a("s_branch L_service")
    a(f"""L_tbl:
    s_bitcmp1_b32 s{L}, 0
    s_cselect_b64 s[20:21], s[48:49], s[40:41]
    s_cselect_b32 s26, 1024, 0
    s_movk_i32 s22, 896
    s_mov_b32 s23, 0x20000
    s_add_u32 m0, s26, {RT}
    s_lshl_b32 s28, s{ROT}, 7
    v_add_u32 v4, s28, v1
    v_subrev_u32 v6, 896, v4
    v_min_u32 v4, v4, v6
    buffer_load_dwordx4 v4, s[20:23], 0 offen lds
    s_branch L_ld""")
    if "tlb" in EXP:
        a("L_tlb:")
        if "tlbR" in EXP: a(f"s_cmp_lt_u32 s{RL}, 14\ns_cbranch_scc1 L_tlb_done")
        for off in (0, 2 << 20, 4 << 20):
            a(f"s_mov_b32 s26, {off + 4032}\ns_load_dword s66, s[36:37], s26")
        for p in (42, 44, 38, 46, 50):
            a(f"s_load_dword s66, s[{p}:{p+1}], 0")
        a("s_branch L_tlb_done")

def main_wave(a):
    a.label("L_main")
    if "twait" in EXP: st(a, 11)
    if "nocodepf" not in EXP:
        a(f"""s_cmp_lg_u32 s{W}, 0
        s_cbranch_scc1 L_nopf
        s_getpc_b64 s[28:29]
        L_pc:
        s_and_b32 s26, s25, 3
        s_lshl_b32 s26, s26, 13
        v_lshl_add_u32 v4, v3, 7, s26
        v_min_u32 v4, L_code_end-L_pc, v4
        global_load_dword v255, v4, s[28:29]
        L_nopf:""")
    a(f"""s_setprio 1
    v_and_b32 v{VT}, 31, v3
    v_lshrrev_b32 v{VH}, 5, v3
    v_mov_b32 v{V1}, 1
    v_mov_b32 v{VZ}, 0
    v_mov_b32 v{VC}, {CNT}
    v_lshrrev_b32 v4, 2, v1
    v_add_u32 v4, {UPDI}, v4
    v_mov_b32 v6, -1
    s_mov_b32 exec_hi, 0
    ds_write_b32 v4, v6
    v_and_b32 v6, 7, v3
    v_cmp_eq_u32 vcc, 4, v6
    v_mov_b32 v7, {KVB+1}
    v_cndmask_b32 v6, 0, v7, vcc
    ds_write_b32 v4, v6 offset:{CNT-UPDI+C_R}
    s_mov_b32 exec_lo, 0xffff
    ds_write_b32 v4, v{VZ} offset:{CNT-UPDI}
    s_mov_b64 exec, -1
    v_lshrrev_b32 v4, 1, v{VT}
    v_and_b32 v4, 7, v4
    v_xor_b32 v4, v4, v{VH}
    v_lshlrev_b32 v4, 4, v4
    v_lshl_add_u32 v4, v{VT}, 7, v4
    s_lshl_b32 s26, s{W}, 12
    v_add_u32 v{VX}, s26, v4
    v_xor_b32 v{VX+1}, 32, v{VX}
    v_xor_b32 v{VX+2}, 64, v{VX}
    v_xor_b32 v{VX+3}, 96, v{VX}
    v_bfe_u32 v4, v3, 2, 2
    v_lshl_add_u32 v12, v{VH}, 3, v4
    v_and_b32 v6, 3, v3
    v_and_b32 v7, 1, v3
    v_bfe_u32 v8, v3, 1, 1
    v_lshl_add_u32 v7, v7, 1, v8
    v_bfe_u32 v8, v3, 4, 1
    v_lshl_add_u32 v9, v8, 2, v7
    v_lshl_add_u32 v10, v8, 2, v6
    s_cmp_lt_u32 s{RL}, 7
    s_cselect_b64 vcc, -1, 0
    v_cndmask_b32 v10, v10, v9, vcc
    v_lshlrev_b32 v11, 7, v12
    v_lshl_add_u32 v11, v10, 3, v11
    v_lshrrev_b32 v4, 1, v4
    v_lshl_add_u32 v11, v4, 6, v11
    v_add_u32 v{VW}, {WT}, v11
    v_xor_b32 v{VW+1}, 64, v{VW}
    v_add_u32 v10, 2, v9
    v_sub_u32 v11, 7, v9
    v_cmp_gt_u32 vcc, 6, v9
    v_cndmask_b32 v10, v11, v10, vcc
    s_bitcmp1_b32 s{H}, 0
    s_cselect_b64 vcc, -1, 0
    v_cndmask_b32 v10, v9, v10, vcc
    v_lshlrev_b32 v11, 6, v12
    v_lshl_add_u32 v11, v10, 3, v11
    v_add_u32 v{VQ}, {WQ}, v11
    v_lshrrev_b32 v4, 2, v3
    v_mul_u32_u24 v4, 2688, v4
    v_lshl_add_u32 v{VWQ}, v6, 4, v4
    s_cmp_ge_u32 s{RL}, 7
    s_cselect_b32 s26, 7, 0
    s_cselect_b32 s29, 2, 0
    s_sub_u32 s26, s{RL}, s26
    s_mul_i32 s28, s26, {64*2341}
    s_lshr_b32 s28, s28, 16
    v_add_u32 v4, s28, v6
    v_mul_u32_u24 v7, 28, v4
    v_lshrrev_b32 v7, 6, v7
    v_cmp_ge_u32 s[64:65], s26, v7
    v_cmp_ne_u32 vcc, s26, v7
    s_and_b32 s28, s{J}, 12
    s_add_u32 s29, s28, s29
    v_mov_b32 v7, s29
    v_addc_co_u32 v7, vcc, 0, v7, vcc
    s_and_b32 s28, s{J}, 3
    v_lshl_add_u32 v4, v4, 2, s28
    v_bfe_u32 v8, v3, 2, 2
    v_lshl_add_u32 v4, v4, 2, v8
    v_lshlrev_b32 v4, 7, v4
    v_lshl_add_u32 v{VFS}, v7, 2, v4
    s_and_b32 s64, s64, 0xffff
    s_cmp_ge_u32 s{RL}, 14
    s_cselect_b32 s64, 0, s64
    s_mov_b32 s65, 0
    s_lshl_b32 s28, s{W}, 5
    v_add_u32 v{VF}, s28, v{VC}
    s_lshl_b32 s28, s{J}, 2
    ; output tile: qb3 = 4j + (h>>2) ; byte col = (4*(h&3) + w)*56
    s_lshr_b32 s58, s{H}, 2
    s_add_u32 s58, s58, s28
    s_and_b32 s59, s{H}, 3
    s_lshl2_add_u32 s59, s59, s{W}
    s_mul_i32 s59, s59, 56
    s_lshl_b32 s28, s58, 5
    v_add_u32 v4, s28, v{VT}
    v_mul_u32_u24 v{VXO}, 896, v4
    v_lshl_add_u32 v{VXO}, v{VH}, 4, v{VXO}
    v_lshlrev_b32 v{VGO}, 3, v4
    s_waitcnt lgkmcnt(0)
    """)
    st_init(a)
    srd(a, 8, 36, (1 << 28) - WSBASE)
    srd(a, 16, 6, 448 * 2688)
    srd(a, 12, 4, 2048 * 896)
    if "wqpf" in EXP:
        a(f"""s_cmp_lg_u32 s{W}, 1
        s_cbranch_scc1 L_nopf2
        v_lshrrev_b32 v4, 2, v3
        v_min_u32 v4, 13, v4
        v_mul_u32_u24 v4, 2688, v4
        v_and_b32 v6, 3, v3
        v_lshl_add_u32 v4, v6, 7, v4
        s_mul_i32 s26, s25, {14*2688}
        s_and_b32 s28, s24, 1
        s_mul_i32 s28, s28, 384
        s_add_u32 s26, s26, s28
        buffer_load_dword v5, v4, s[16:19], s26 offen
        L_nopf2:""")
    if "wopfS" in EXP:
        srd(a, 20, 38, 448 * 896)
        a(f"""s_cmp_lg_u32 s{W}, 2
        s_cbranch_scc1 L_nopf3
        s_mul_i32 s26, s2, {13*128}
        v_lshl_add_u32 v4, v3, 7, s26
        s_mov_b64 exec, 0x1fff
        buffer_load_dword v5, v4, s[20:23], 0 offen
        s_mov_b64 exec, -1
        L_nopf3:""")
    a(f"""s_mul_i32 s62, s{H}, 56
    s_and_b32 s62, s62, 0xfffffff0
    s_mul_i32 s26, s{W}, {16*2688}
    s_add_u32 s62, s62, s26
    s_lshl_b32 s63, s{W}, 10
    s_add_u32 s63, s63, {WQ}
    s_lshl2_add_u32 s35, s{J}, s{W}
    s_mul_i32 s52, s35, 14
    s_add_u32 s52, s52, s{RL}
    s_mul_i32 s52, s52, {BLK}
    s_add_u32 s53, s52, 4096
    s_lshr_b32 s26, s{H}, 1
    s_mul_i32 s26, s26, 7
    s_and_b32 s28, s{H}, 1
    s_lshl2_add_u32 s29, s28, s26
    v_add_u32 v4, s29, v{VH}
    v_lshrrev_b32 v6, 3, v4
    v_mul_u32_u24 v6, {BLK-4096}, v6
    v_lshl_add_u32 v6, v4, 9, v6
    v_lshl_add_u32 v{VA}, v{VT}, 4, v6
    v_add_u32 v4, 2, v4
    v_lshrrev_b32 v6, 3, v4
    v_mul_u32_u24 v6, {BLK-4096}, v6
    v_lshl_add_u32 v6, v4, 9, v6
    s_add_u32 s26, s26, 3
    s_lshr_b32 s29, s26, 3
    s_mul_i32 s29, s29, {BLK}
    s_and_b32 s26, s26, 1
    s_lshl_b32 s26, s26, 9
    s_add_u32 s29, s29, s26
    s_add_u32 s29, s29, 4096
    v_mov_b32 v7, s29
    v_and_b32 v4, s28, v{VH}
    v_cmp_eq_u32 vcc, 1, v4
    v_cndmask_b32 v6, v6, v7, vcc
    v_lshl_add_u32 v{VA+1}, v{VT}, 4, v6
    s_mul_i32 s26, s{H}, 28
    v_add_u32 v4, s26, v{VT}
    v_lshrrev_b32 v6, 6, v4
    v_mul_u32_u24 v6, {BLK}, v6
    v_bfe_u32 v7, v4, 5, 1
    v_lshl_add_u32 v6, v7, 11, v6
    v_and_b32 v4, 31, v4
    v_lshl_add_u32 v6, v4, 4, v6
    v_lshl_add_u32 v6, v{VH}, 9, v6
    v_add_u32 v6, {7*BLK}, v6
    v_add_u32 v8, 1024, v6
    s_lshr_b32 s26, s26, 6
    s_mul_i32 s26, s26, {BLK}
    s_add_u32 s26, s26, {7*BLK + 4096 - 28*16}
    v_lshl_add_u32 v7, v{VT}, 4, s26
    v_cmp_le_u32 vcc, 28, v{VT}
    v_cndmask_b32 v{VA+2}, v6, v7, vcc
    v_cndmask_b32 v{VA+3}, v8, v7, vcc
    s_cmp_ge_u32 s{RL}, 14
    s_cbranch_scc1 L_roleR
    s_cmp_ge_u32 s{RL}, 7
    s_cbranch_scc1 L_roleV""")

    def gemm(kind):
        if "twait" in EXP:
            st(a, 10)
        def reads(c, s):
            k = 4 * c + s
            a(f"ds_read_b128 {vr(XF+4*k,4)}, v{VX+s} offset:{(c&3)*16384}")
            f = WF + 8 * s
            if kind == "R":
                a(f"ds_read_b128 {vr(f,4)}, v{VW} offset:{k*32}")
            else:
                for n in range(2):
                    a(f"ds_read_b64_tr_b16 {vr(f+4*n,2)}, v{VW+n} offset:{k*2048}")
                    a(f"ds_read_b64_tr_b16 {vr(f+4*n+2,2)}, v{VW+n} offset:{k*2048+512}")
        def mfmas(c, s, ns=None):
            k = 4 * c + s
            f = WF + 8 * s
            for n in (ns or range(1 if kind == "R" else 2)):
                acc = (A0, A1)[n]
                cc = "0" if k == 0 else vr(acc, 16)
                if kind == "V": a(f"{MF} {vr(acc,16)}, {vr(XF+4*k,4)}, {vr(f+4*n,4)}, {cc}")
                else:           a(f"{MF} {vr(acc,16)}, {vr(f+4*n,4)}, {vr(XF+4*k,4)}, {cc}")
        per = 2 if kind == "R" else 5
        for c in range(7):
            a("s_barrier")
            if c == 0: st(a, 1)
            if c == 6: st(a, 2)
            if STAMP and c in (0, 6): a("s_waitcnt lgkmcnt(0)")
            reads(c, 0); reads(c, 1)
            for s in range(4):
                if s < 2: reads(c, s + 2)
                a(f"s_waitcnt lgkmcnt({min(3 - s, 2) * per})")
                if c == 6 and kind != "R" and s >= 2: mfmas(c, s, (0,))
                else: mfmas(c, s)
            if c == 6 and kind != "R":
                mfmas(c, 2, (1,)); mfmas(c, 3, (1,))

    PK = 8
    MS = 20
    a(f"""v_add_u32 v4, s{RL}, v{VH}""")
    for i in range(4):
        a(f"""v_cmp_eq_u32 vcc, {3-2*i}, v4
        v_cmp_eq_u32 s[{MS+2*i}:{MS+1+2*i}], {10-2*i}, v4
        s_or_b64 s[{MS+2*i}:{MS+1+2*i}], s[{MS+2*i}:{MS+1+2*i}], vcc""")
    for e in range(4): a(f"v_mov_b32 v{TMP+e}, 0x3f803f80")
    a(f"""s_or_b64 s[28:29], s[{MS}:{MS+1}], s[{MS+2}:{MS+3}]
    s_or_b64 s[54:55], s[{MS+4}:{MS+5}], s[{MS+6}:{MS+7}]
    s_or_b64 s[54:55], s[54:55], s[28:29]
    s_mov_b64 exec, 0
    s_branch L_epi
    L_backK:
    s_mov_b64 exec, -1""")
    gemm("K")
    a("s_branch L_epi")
    a.label("L_roleR")
    if "pfx" in EXP:
        C0 = 1 if "pf1" in EXP else 2
        a(f"""v_mul_u32_u24 v4, 896, v{VT}
        v_lshl_add_u32 v4, v{VH}, 7, v4
        s_mul_i32 s26, s35, {32*896}
        v_lshrrev_b32 v6, 3, v{VT}
        v_mul_u32_u24 v6, 2688, v6
        v_and_b32 v7, 7, v3
        v_min_u32 v7, 6, v7
        v_lshl_add_u32 v6, v7, 7, v6
        v_mul_u32_u24 v7, {64*2688}, v{VH}
        v_add_u32 v6, v6, v7
        s_and_b32 s28, s35, 15
        s_mul_i32 s28, s28, {4*2688}
        s_and_b32 s29, s24, 1
        s_mul_i32 s29, s29, 896
        s_add_u32 s28, s28, s29
        s_add_u32 s28, s28, {896 + C0*64*2688}""")
        for c in range(C0, 7, 2):
            if c == 6: a("s_mov_b32 exec_hi, 0")
            a(f"""buffer_load_dword v5, v4, s[12:15], s26 offen offset:{128*c}
            buffer_load_dword v5, v6, s[16:19], s28 offen
            s_add_u32 s28, s28, {128*2688}""")
        a("s_mov_b64 exec, -1")
    a(f"""v_and_b32 v4, 1, v3
    v_lshlrev_b32 v4, 10, v4
    v_lshl_add_u32 v4, v{VH}, 4, v4
    v_add_u32 v{VW}, {RT}, v4
    s_lshl_b32 s26, s{W}, 7
    s_add_u32 s26, s26, {KEYS}
    v_lshl_add_u32 v12, v{VT}, 2, s26
    v_lshl_add_u32 v13, v{VH}, 6, s26""")
    gemm("R")
    a(f"""s_cmp_lg_u32 s{RL}, 14
    s_cbranch_scc1 L_pub
    s_mov_b32 exec_hi, 0
    s_nop 9
    v_cvt_pk_bf16_f32 v4, v{A0}, v{A0+1}
    v_and_b32 v5, 0xffff0000, v4
    v_lshlrev_b32 v4, 16, v4
    v_ashrrev_i32 v6, 31, v4
    v_or_b32 v6, 0x80000000, v6
    v_xor_b32 v6, v6, v4
    v_lshrrev_b32 v6, 16, v6
    v_lshlrev_b32 v6, 11, v6
    v_cmp_u_f32 vcc, v4, v4
    v_cndmask_b32 v6, v6, 0, vcc
    s_lshl_b32 s26, s35, 5
    v_add_u32 v7, s26, v{VT}
    v_sub_u32 v8, 0x7ff, v7
    v_or_b32 v6, v6, v8
    v_lshlrev_b32 v9, 3, v7
    ds_write_b32 v12, v6
    s_mov_b32 exec_hi, -1
    ds_read_b32 v6, v12
    ds_read_b128 v[16:19], v13
    ds_read_b128 v[20:23], v13 offset:16
    ds_read_b128 v[24:27], v13 offset:32
    ds_read_b128 v[28:31], v13 offset:48""")
    rank_count(a, 6, 16, 16, 14, 15)
    a(f"""v_mov_b32 v15, v14
    s_lshl_b32 s26, s{W}, 5
    s_add_u32 s26, s26, {CAND}
    v_permlane32_swap_b32 v14, v15
    v_add_u32 v14, v14, v15
    v_cmp_gt_u32 vcc, 8, v14
    v_lshl_add_u32 v14, v14, 2, s26
    s_mov_b64 exec, vcc
    ds_write_b32 v14, v6
    s_mov_b64 exec, 1
    ds_add_u32 v{VC}, v{V1} offset:{C_K}
    s_mov_b32 exec_lo, -1
    v_mul_f32 v5, {NLOG2E:#x}, v5
    v_exp_f32 v5, v5
    v_add_f32 v5, 1.0, v5
    v_rcp_f32 v5, v5
    v_cvt_pk_bf16_f32 v5, v5, v5
    v_lshlrev_b32 v10, 16, v5
    s_mov_b32 exec_hi, -1
    s_branch L_pub
    """)
    a.label("L_roleV")
    a(f"""v_cmp_eq_u32 vcc, 0, v3
    v_mov_b32 v7, 0x3f803f80
    v_cndmask_b32 v{TMP}, 0, v7, vcc""")
    for e in range(1, 4): a(f"v_mov_b32 v{TMP+e}, v{TMP}")
    for i in range(4): a(f"s_mov_b64 s[{MS+2*i}:{MS+1+2*i}], 0")
    a("s_mov_b64 s[54:55], 0xff")
    gemm("V")
    a("L_epi:\ns_cbranch_execz L_backK")
    for i in range(4):
        acc = (A0, A1)[i >> 1] + 8 * (i & 1)
        p = PK + 4 * i
        for e in (2, 3, 0, 1): a(f"v_cvt_pk_bf16_f32 v{p+e}, v{acc+2*e}, v{acc+2*e+1}")
        a(f"""s_mov_b64 exec, s[{MS+2*i}:{MS+1+2*i}]
        v_swap_b32 v{TMP}, v{p+2}
        v_swap_b32 v{TMP+1}, v{p+3}
        s_mov_b64 exec, -1
        buffer_store_dwordx4 {vr(p,4)}, v1, s[8:11], s52 offen offset:{1024*i} sc1""")
    a(f"s_mov_b64 exec, s[54:55]\nbuffer_store_dwordx4 {vr(TMP,4)}, v1, s[8:11], s53 offen sc1\ns_mov_b64 exec, -1")
    a.label("L_pub")
    diag_start(a)
    st(a, 3)
    a(f"s_add_u32 s56, s{ROT}, {NQ1}\ns_cmp_ge_u32 s56, 7\ns_cselect_b32 s26, 7, 0\ns_sub_u32 s56, s56, s26")
    for i in range(NQ1, 7):
        a(f"""s_mul_i32 s26, s56, {64*2688}
        s_add_u32 m0, s63, {i*4096}
        s_add_u32 s26, s26, s62
        buffer_load_dwordx4 v{VWQ}, s[16:19], s26 offen lds""")
        if i < 6: next_chunk(a, 56)
    QO = Q + 8 * OWN
    SK = TMP
    a(f"""s_mov_b64 s[16:17], s[36:37]
    s_mov_b32 s18, {KVB}
    s_mov_b32 s57, 0""")
    def ldK(b, soff, base=None):
        r = KV + 16 * b if base is None else base
        return [f"buffer_load_dwordx4 {vr(r,4)}, v{VA}, s[16:19], {soff} offen sc1",
                f"buffer_load_dwordx4 {vr(r+4,4)}, v{VA+1}, s[16:19], {soff} offen sc1"]
    def ldV(b, soff):
        return [f"buffer_load_dwordx4 {vr(KV+16*b+8,4)}, v{VA+2}, s[16:19], {soff} offen sc1",
                f"buffer_load_dwordx4 {vr(KV+16*b+12,4)}, v{VA+3}, s[16:19], {soff} offen sc1"]
    def try_loads(block=False):
        d = uid("Ltl"); l = uid("Ltr"); g = uid("Ltg")
        a(f"s_cmp_eq_u32 s57, 2\ns_cbranch_scc1 {d}")
        if block: a(f"s_mov_b32 s60, {SPIN_LIMIT}\n{l}:\ns_sub_u32 s60, s60, 1\ns_cbranch_scc1 L_exit")
        a(f"""ds_read_b32 v4, v{VF} offset:{C_R}
        ds_read_b32 v5, v{VC} offset:{C_M}
        s_cmp_eq_u32 s57, 1
        s_waitcnt lgkmcnt(0)
        v_readfirstlane_b32 s56, v4
        s_cbranch_scc1 {g}
        v_readfirstlane_b32 s29, v5
        s_sub_u32 s29, s29, 1
        s_cbranch_scc1 {l if block else d}
        s_mov_b32 s57, 1""")
        for x in ldK(0, "s29", SK): a(x)
        a(f"""{g}:
        s_sub_u32 s27, s56, 1
        s_cbranch_scc1 {l if block else d}
        s_add_u32 s54, s56, {TS-1}
        s_add_u32 s55, s56, {2*TS-1}
        s_add_u32 s56, s56, {3*TS-1}
        s_mov_b32 s57, 2""")
        st(a, 6)
        for x in ldK(0, "s27") + ldV(0, "s27") + ldK(1, "s54") + ldV(1, "s54") + ([] if "up4" not in EXP else ldK(2, "s55") + ldV(2, "s55") + ldK(3, "s56")): a(x)
        a(f"{d}:")
    def qreads(k):
        f = WF + 4 * (k & 7)
        a(f"ds_read_b64_tr_b16 {vr(f,2)}, v{VQ} offset:{k*1024}\nds_read_b64_tr_b16 {vr(f+2,2)}, v{VQ} offset:{k*1024+256}")
    def publish():
        a(f"""s_mov_b32 s28, {WS_MB}
        v_readfirstlane_b32 s{T}, v11
        v_mov_b32 v6, v11
        s_mov_b64 exec, 1
        s_waitcnt vmcnt({7-NQ1})""")
        st(a, 4)
        a(f"""ds_add_rtn_u32 v4, v{VC}, v{V1} offset:{C_D}
        s_waitcnt lgkmcnt(0)
        v_cmp_eq_u32 vcc, 3, v4
        s_cbranch_vccz L_notlast
        s_mov_b64 exec, s[64:65]
        s_cbranch_execz L_notlast
        buffer_atomic_swap v6, v{VFS}, s[8:11], s28 offen sc1
        s_waitcnt vmcnt(1)
        s_branch L_published
        L_notlast:
        s_waitcnt vmcnt(0)
        s_cmp_lg_u32 s{RL}, 14
        s_cbranch_scc1 L_published
        s_mov_b32 s26, {WS_G}
        s_mov_b32 exec_lo, -1
        buffer_store_dwordx2 v[10:11], v9, s[8:11], s26 offen sc1
        L_published:""")
        a("s_mov_b64 exec, -1")
    def qgemm(lo, hi, cnt):
        spin_lds(a, VC, cnt, 4, 4)
        if not lo: a(f"ds_read_b32 v11, v{VC} offset:{C_T}")
        for k in range(lo, min(hi, lo + 6)): qreads(k)
        for k in range(lo, hi):
            if k + 6 < hi: qreads(k + 6)
            a(f"s_waitcnt lgkmcnt({2*(min(hi-1,k+6)-k)})")
            a(f"{MF} {vr(A0,16)}, {vr(WF+4*(k&7),4)}, {vr(XF+4*k,4)}, {'0' if k==0 else vr(A0,16)}")
    def qepi():
        for i in range(8): a(f"v_mov_b32 v{KV+56+i}, 0")
        a(f"""s_lshl_b32 s26, s{W}, 11
        s_add_u32 s26, s26, {QX}
        v_add_u32 v5, s26, v1
        s_mov_b32 s62, {QSCALE:#x}
        s_mov_b32 s63, {QSCALE:#x}""")
        for i in range(8): a(f"v_pk_mul_f32 {vr(A0+2*i,2)}, {vr(A0+2*i,2)}, s[62:63]")
        for i in range(8): a(f"v_cvt_pk_bf16_f32 v{QO+i}, v{A0+2*i}, v{A0+2*i+1}")
        a(f"""s_mov_b32 exec_lo, 0
        v_mov_b32 v{QO+6}, 0
        v_mov_b32 v{QO+7}, 0
        s_mov_b32 exec_lo, -1
        ds_write_b128 v5, {vr(QO,4)}
        ds_write_b128 v5, {vr(QO+4,4)} offset:1024""")
        lds_inc(a, VC, C_X, V1)
        for i in range(0, 48, 2): a(f"v_pk_mul_f32 {vr(O+i,2)}, {vr(KV+56,2)}, {vr(KV+56,2)}")
    qgemm(0, 4 * NQ1, C_Q1)
    if NQ1 == 7 and "qfirst" in EXP:
        st(a, 5)
        qepi(); publish(); try_loads()
    elif NQ1 == 7:
        st(a, 5)
        publish(); try_loads(); qepi()
    else:
        publish()
        lds_inc(a, VC, C_Q2, V1)
        try_loads()
        qgemm(4 * NQ1, 28, C_Q2)
        st(a, 5)
        try_loads()
        qepi()
    spin_lds(a, VC, C_X, 4, 4)
    for i in range(3):
        a(f"""s_add_u32 s26, s{W}, {i+1}
        s_and_b32 s26, s26, 3
        s_lshl_b32 s26, s26, 11
        s_add_u32 s26, s26, {QX}
        v_add_u32 v5, s26, v1
        ds_read_b128 {vr(Q+8*i,4)}, v5
        ds_read_b128 {vr(Q+8*i+4,4)}, v5 offset:1024""")
    for i in range(3):
        a(f"""s_add_u32 s26, s{W}, {i+1}
        s_and_b32 s26, s26, 3
        s_mul_i32 s26, s26, 12288
        s_add_u32 s26, s26, {CB + i*4096}
        v_add_u32 v{VX+i}, s26, v1""")
    a(f"s_mul_i32 s26, s{W}, 12288\ns_add_u32 s26, s26, {CB}\nv_add_u32 v2, s26, v1")
    try_loads(block=True)
    def QK(u, m):
        kt, qs = (u >> 2) & 3, u & 3
        s = S + 16 * (u & 1)
        c = "0" if m == 0 else vr(s, 16)
        return f"{MF} {vr(s,16)}, {vr(KV+16*kt+4*m,4)}, {vr(Q+8*qs+4*m,4)}, {c}"
    def PV(u, m):
        kt, qs = (u >> 2) & 3, u & 3
        return f"{MF} {vr(O+16*qs,16)}, {vr(KV+16*kt+8+4*m,4)}, {vr(P+8*(u&1)+4*m,4)}, {vr(O+16*qs,16)}"
    SS = [P, S + 16, S, O + 48]
    def samp(i, m): return f"{MF} {vr(SS[i],16)}, {vr(SK+4*m,4)}, {vr(Q+8*i+4*m,4)}, {'0' if m == 0 else vr(SS[i],16)}"
    def mx(i):
        for x in max16_list(4, SS[i]): a(x)
        a(f"s_mov_b32 exec_lo, 0\nv_cvt_pk_bf16_f32 v{Q+8*i+6}, -v4, 0\ns_mov_b32 exec_lo, -1")
    a(f"s_waitcnt vmcnt({8 if 'up4' not in EXP else 14}) lgkmcnt(0)")
    for i in (0, 2): a(samp(i, 0)); a(samp(i, 1))
    a(samp(1, 0)); a(samp(1, 1))
    mx(0)
    a(samp(3, 0)); a(samp(3, 1))
    mx(2)
    a(f"s_waitcnt vmcnt({6 if 'up4' not in EXP else 12})")
    a(QK(0, 0)); a(QK(0, 1))
    if "up4" not in EXP:
        for x in ldK(2, "s55") + ldV(2, "s55") + ldK(3, "s56"): a(x)
    mx(1)
    for i in range(0, 8, 2): a(f"v_pk_mul_f32 {vr(P+8+i,2)}, {vr(KV+56,2)}, {vr(KV+56,2)}")
    mx(3)
    for i in range(48, 64, 2): a(f"v_pk_mul_f32 {vr(O+i,2)}, {vr(KV+56,2)}, {vr(KV+56,2)}")
    st(a, 7)
    a(f"s_mov_b32 s57, 2\ns_mov_b32 s53, {WS_G}")
    def substep(u, ex, last=False):
        s = S + 16 * (u & 1); p = P + 8 * (u & 1)
        e = lambda i: f"v_exp_f32 v{s+i}, v{s+i}"
        c = lambda i: f"v_cvt_pk_bf16_f32 v{p+i}, v{s+2*i}, v{s+2*i+1}"
        q0, q1 = ([], []) if last else ([QK(u+1, 0)], [QK(u+1, 1)])
        seq = q0 + ex[0] + [e(0), e(1), e(2), e(3), c(0), e(4),
               PV(u-1, 0)] + ex[1] + [e(5), c(1), e(6), e(7), c(2), e(8)] + q1 + ex[2] + [e(9), c(3), e(10), e(11), c(4), e(12),
               PV(u-1, 1)] + ex[3] + [e(13), c(5), e(14), e(15), c(6), c(7)]
        for x in seq: a(x)
    a(".p2align 6")
    a.label("L_loop")
    for u in range(16):
        kt, qs = u >> 2, u & 3
        ex = [[], [], [], []]
        if qs == 1:
            l = ldV((kt + 3) & 3, "s56")
            ex[0] = [l[0]]; ex[1] = [l[1]]; ex[2] = [f"s_add_u32 s56, s56, {TS}"]
        if u == 0: ex[0] = [f"ds_read_b32 v7, v{VF} offset:{C_R+4}"]
        if u == 1:
            ex[2] = ["s_waitcnt lgkmcnt(0)", "v_readfirstlane_b32 s56, v7"]
            ex[3] = ["s_sub_u32 s56, s56, 1"]
        if u == 2:
            ex[0] = ["s_cbranch_scc1 L_nextwait", "L_nextok:", f"v_add_u32 v{VF}, 4, v{VF}"]
        if qs == 2 and "nowait" not in EXP: ex[3] = ["s_waitcnt vmcnt(10)"]
        if qs == 0 and "nowait" not in EXP: ex[3] = ["s_waitcnt vmcnt(10)"]
        if qs == 3:
            l = ldK(kt, "s56")
            ex[0] = [l[0]]; ex[1] = [l[1]]
        if u == GA: ex[1] = ex[1] + [f"ds_add_u32 v{VC}, v{V1} offset:{C_A}"]
        if u == 15: ex[3] = ["s_sub_u32 s57, s57, 1"]
        if "itst" in EXP and u in (0, 8):
            a("s_waitcnt lgkmcnt(0)")
            for i in range(1, 6): a(f"s_mov_b32 s{72+2*i}, s{72+2*i+2}")
            a("s_memtime s[84:85]")
        if "noload" in EXP: ex = [[y for y in x if "buffer_load" not in y] for x in ex]
        substep(u, ex)
    a("s_cbranch_scc0 L_loop")
    for u in range(14):
        ex = [[], [], [], []]
        if u == 1:
            l = ldV(3, "s56"); ex[0] = [l[0]]; ex[1] = [l[1]]
        if u == ZU: ex[2] = [f"ds_add_u32 v{VC}, v{V1} offset:{C_Z}"]
        if u == 0:
            ex[0] = [f"buffer_load_dwordx2 {vr(GR,2)}, v{VGO}, s[8:11], s53 offen sc1"]
            ex[1] = [f"buffer_load_dwordx4 {vr(XR,4)}, v{VXO}, s[12:15], s59 offen"]
            ex[2] = [f"buffer_load_dwordx4 {vr(XR+4,4)}, v{VXO}, s[12:15], s59 offen offset:32"]
        if u % 2 == 0: ex[3] = [f"s_waitcnt vmcnt({min(13, 15 - u) if u < 12 else 0})"]
        if u == 12: ex[0] = [f"ds_read_b32 v7, v{VC} offset:{C_F}"]
        if u == 13:
            ex[0] = ["s_waitcnt lgkmcnt(0)", "v_cmp_gt_u32 vcc, 4, v7"]
            ex[1] = ["s_cbranch_vccnz L_wait_ffn", "L_ffn_free:"]
        substep(u, ex)
    st(a, 8)
    wr = lambda i, k: f"ds_write_b128 v{VX+i}, {vr(O+16*i+4*k,4)} offset:{k*1024}"
    substep(14, [[], [wr(0, 0)], [wr(0, 1)], [wr(0, 2)]])
    substep(15, [[wr(0, 3)], [wr(1, 0)], [wr(1, 1)], [wr(1, 2)]], last=True)
    a(PV(15, 0)); a(wr(1, 3)); a(PV(15, 1))
    for k in range(4): a(wr(2, k))
    lds_inc(a, VC, C_C, V1)
    srd(a, 20, 50, 2048 * 896)
    TT = S
    OO = O + 16 * OWN
    a(f"""s_lshl_b32 s28, s35, 4
    s_add_u32 s28, s28, s{H}
    s_lshr_b32 s56, s28, 2
    s_lshl_b32 s56, s56, 5
    s_and_b32 s26, s{H}, 3
    s_add_u32 s56, s56, s26
    s_lshl_b32 s56, s56, 2
    s_add_u32 s56, s56, {WS_OFL}
    s_lshl_b32 s52, s28, 11
    s_add_u32 s52, s52, {WS_O}
    s_mov_b32 s57, 0""")
    spin_lds(a, VC, C_C, 4, 7)
    for k in range(12): a(f"ds_read_b128 {vr(TT+4*k,4)}, v2 offset:{k*1024}")
    for i in range(3):
        a(f"s_waitcnt lgkmcnt({8-4*i})")
        for k in (6, 7, 0, 1, 2, 3, 4, 5): a(f"v_pk_add_f32 {vr(OO+2*k,2)}, {vr(OO+2*k,2)}, {vr(TT+16*i+2*k,2)}")
    a.label("L_fin")
    a(f"""v_mov_b32 v5, v{OO+12}
    v_mov_b32 v4, v{OO+12}
    s_mov_b32 exec_lo, 0
    v_mov_b32 v{OO+12}, 0
    s_mov_b32 exec_lo, -1
    v_permlane32_swap_b32 v5, v4
    v_rcp_f32 v6, v4
    s_mov_b32 s28, 0x2b800000
    s_mov_b32 s29, 0x6c800000
    v_cmp_nle_f32 s[54:55], s28, v4
    v_cmp_nge_f32 s[62:63], s29, v4
    v_pk_add_f32 v[4:5], {vr(OO,2)}, {vr(OO+2,2)}""")
    for k in range(2, 8): a(f"v_pk_add_f32 v[4:5], v[4:5], {vr(OO+2*k,2)}")
    a(f"""v_add_f32 v4, v4, v5
    s_movk_i32 s28, 0x207
    v_cmp_class_f32 vcc, v4, s28
    s_or_b64 s[54:55], s[54:55], s[62:63]""")
    for k in range(8): a(f"v_pk_mul_f32 {vr(OO+2*k,2)}, {vr(OO+2*k,2)}, v[6:7] op_sel_hi:[1,0]")
    for k in range(8): a(f"v_cvt_pk_bf16_f32 v{Q+k}, v{OO+2*k}, v{OO+2*k+1}")
    a(f"""v_mov_b32 v6, s{T}
    s_or_b64 s[54:55], s[54:55], vcc
    s_cbranch_scc1 L_bad
    L_good:
    buffer_store_dwordx4 {vr(Q,4)}, v1, s[8:11], s52 offen sc1
    buffer_store_dwordx4 {vr(Q+4,4)}, v1, s[8:11], s52 offen offset:1024 sc1
    s_mov_b64 exec, 1
    {"s_waitcnt vmcnt(0)" if ("noclr" in EXP or "otouch" in EXP) else ""}
    buffer_atomic_swap v6, v{VZ}, s[8:11], s56 offen sc1
    s_mov_b64 exec, -1""")
    st(a, 9)
    WOF = 104; B = 232; ACC = 8; U = 72
    OSB = [40, 72]
    PLR = 36
    at = lambda r: f"v_mov_b32 v{r}, 0\ns_mov_b64 exec, 15\nbuffer_atomic_or v{r}, v7, s[8:11], s56 offen sc0 sc1\ns_mov_b64 exec, -1"
    a(f"""s_lshl2_add_u32 s28, s58, s{W}
    s_lshl_b32 s54, s28, 13
    s_add_u32 s54, s54, {WS_O}
    s_add_u32 s55, s54, 4096
    s_lshl_b32 s56, s28, 7
    s_add_u32 s56, s56, {WS_OFL}
    v_lshrrev_b32 v7, 2, v1
    {at(PLR)}
    v_bfe_u32 v4, v3, 2, 2
    v_lshl_add_u32 v4, v{VH}, 2, v4
    v_mul_u32_u24 v4, 224, v4
    v_bfe_u32 v5, v3, 4, 1
    v_lshl_add_u32 v4, v5, 5, v4
    v_and_b32 v5, 1, v3
    v_lshl_add_u32 v4, v5, 4, v4
    v_bfe_u32 v5, v3, 1, 1
    v_lshl_add_u32 v4, v5, 3, v4
    s_mul_i32 s28, s{W}, 56
    v_add_u32 v4, s28, v4""")
    for r in range(4):
        a(f"""s_add_u32 s26, s{W}, {r}
        s_and_b32 s26, s26, 3
        s_mul_i32 s28, s26, {4*28*224}
        v_add_u32 v{24+r}, s28, v4""")
        if r:
            a(f"s_mul_i32 s28, s26, 12288\ns_add_u32 s28, s28, {CB}\nv_add_u32 v{32+r}, s28, v1")
    a(f"""v_lshlrev_b32 v30, 2, v{VT}
    v_add_u32 v30, {UPDI}, v30
    s_mul_i32 s28, s{W}, 112
    s_add_u32 s28, s28, {UPD}
    v_lshl_add_u32 v28, v{VH}, 5, s28
    v_mov_b32 v29, {CNT}
    s_lshl_b32 s28, 0x11, s{W}
    v_mov_b32 v31, s28""")
    spin_lds(a, 29, C_W, 16, 6)
    def word(k):
        o = (28 * ((k >> 1) & 3) + 16 * (k & 1)) * 224
        b = 24 + (k >> 3)
        a(f"ds_read_b64_tr_b16 {vr(WOF+4*k,2)}, v{b} offset:{o}\nds_read_b64_tr_b16 {vr(WOF+4*k+2,2)}, v{b} offset:{o+8*224}")
    a(at(PLR + 1))
    for k in range(NW1):
        word(k)
        if k == NW1 // 2 - 1: a(at(PLR + 2))
    a(f"s_mov_b32 s60, {SPIN_LIMIT}\ns_mov_b64 exec, 15\nL_op:")
    for i in range(4):
        a(f"""v_mov_b32 v{PLR+(i+3)%4}, 0
        buffer_atomic_or v{PLR+(i+3)%4}, v7, s[8:11], s56 offen sc0 sc1
        s_waitcnt vmcnt(3)
        v_cmp_ne_u32 vcc, s{T}, v{PLR+i}
        s_cbranch_vccz L_of""")
    a(f"""s_sub_u32 s60, s60, 1
    s_cbranch_scc0 L_op
    s_endpgm
    L_of:
    s_mov_b64 exec, -1""")
    if "twait" not in EXP: st(a, 10)
    def oload():
        for k in range(8):
            a(f"buffer_load_dwordx4 {vr(OSB[0]+4*k,4)}, v1, s[8:11], {'s54' if k < 4 else 's55'} offen offset:{(k&3)*1024} sc1")
    oload()
    for k in range(NW1, 32): word(k)
    for k in range(8):
        a(f"v_lshlrev_b32 v{B+2*k}, 16, v{XR+k}\nv_and_b32 v{B+2*k+1}, 0xffff0000, v{XR+k}")
    a(f"""v_cmp_ne_u32 vcc, s{T}, v{GR+1}
    s_cbranch_vccnz L_gate
    L_gate_ok:
    v_sub_f32 v24, 1.0, v{GR}
    v_cvt_pk_bf16_f32 v24, v24, v24
    v_lshlrev_b32 v24, 16, v24""")
    def stub(): pass
    def need(bit):
        l = uid("Lnd")
        a(f"""{l}:
        ds_read_b32 v6, v29 offset:{C_O}
        s_sub_u32 s60, s60, 1
        s_cbranch_scc1 L_exit
        s_waitcnt lgkmcnt(0)
        v_readfirstlane_b32 s61, v6
        s_bitcmp1_b32 s61, {bit}
        s_cbranch_scc0 {l}""")
    def rd(g):
        for k in range(8): a(f"ds_read_b128 {vr(OSB[g&1]+4*k,4)}, v{32+g} offset:{k*1024}")
    def mm(g, lo, hi):
        for k in range(lo, hi):
            a(f"{MF} {vr(ACC,16)}, {vr(WOF+32*g+4*k,4)}, {vr(OSB[g&1]+4*k,4)}, {'0' if g == 0 and k == 0 else vr(ACC,16)}")
    a(f"""ds_read_b32 v6, v29 offset:{C_O}
    s_mov_b32 s57, 0
    s_waitcnt lgkmcnt(0)
    v_readfirstlane_b32 s61, v6
    s_bitcmp1_b32 s61, 10
    s_cbranch_scc1 L_blkU
    s_mov_b32 s57, 1
    L_next0:
    v_mov_b32 v4, 0""")
    for k in range(8):
        r = OSB[0] + 4 * k
        a(f"""s_waitcnt vmcnt({7-k})
        ds_write_b128 v2, {vr(r,4)} offset:{k*1024}""")
        if k < 6: mm(0, k, k + 1)
        a(f"""v_max3_u32 v4, v4, v{r}, v{r+1}
        v_max3_u32 v4, v4, v{r+2}, v{r+3}""")
    a("v_cmp_eq_u32 vcc, -1, v4\ns_cbranch_vccnz L_again")
    lds_inc(a, 29, C_O, 31)
    a(f"s_mov_b32 s27, s{W}")
    for g in range(4):
        if g < 3: a(f"ds_read_b32 v6, v29 offset:{C_O}\ns_add_u32 s27, s27, 1")
        if g: a("s_waitcnt lgkmcnt(0)")
        mm(g, 0 if g else 6, 2 if g else 8)
        if g < 3:
            if not g: a("s_waitcnt lgkmcnt(0)")
            a(f"v_readfirstlane_b32 s61, v6\ns_bitcmp1_b32 s61, s27\ns_cbranch_scc0 L_late{g}")
            rd(g + 1)
        mm(g, 2 if g else 8, 8)
        a(f"L_back{g}:")
    a("s_cmp_lg_u32 s57, 0\ns_cbranch_scc1 L_lateU\nL_next1:")
    if "twait" not in EXP: st(a, 11)
    a("s_nop 9")
    for x in EXP:
        if x.startswith("err"):
            a(f"s_or_b32 s26, s2, s{W}\ns_cmp_eq_u32 s26, 0\ns_cselect_b64 exec, 1, 0\nv_add_f32 v{B}, {f32bits(float(x[3:])):#x}, v{B}\ns_mov_b64 exec, -1")
        if x.startswith("all"):
            for k in range(16): a(f"v_add_f32 v{B+k}, {f32bits(float(x[3:])):#x}, v{B+k}")
    for m in range(2):
        for e in range(4*m, 4*m+4):
            a(f"v_pk_fma_f32 {vr(B+2*e,2)}, {vr(ACC+2*e,2)}, {vr(GR,2)}, {vr(B+2*e,2)} op_sel_hi:[1,0,1]")
        for e in range(4*m, 4*m+4): a(f"v_cvt_pk_bf16_f32 v{40+e}, v{B+2*e}, v{B+2*e+1}")
        if m == 0:
            a(f"buffer_store_dwordx4 v[40:43], v{VXO}, s[20:23], s59 offen{OUTAUX}")
            stub()
        else:
            a(f"""s_mov_b32 exec_hi, 0
            buffer_store_dwordx4 v[44:47], v{VXO}, s[20:23], s59 offen offset:32{OUTAUX}
            s_mov_b64 exec, 0xffffffff
            s_not_b64 exec, exec
            buffer_store_dwordx2 v[44:45], v{VXO}, s[20:23], s59 offen offset:32{OUTAUX}""")
    st_end(a)
    diag_end(a)
    a("s_endpgm")
    for g in range(3):
        a(f"L_late{g}:")
        mm(g, 2 if g else 8, 8)
        need("s27"); rd(g + 1)
        a(f"s_branch L_back{g}")
    a("L_again:\ns_sub_u32 s60, s60, 1\ns_cbranch_scc1 L_exit\ns_waitcnt lgkmcnt(0)")
    oload()
    a("s_branch L_next0")
    a("L_lateU:")
    need(10)
    a(f"""L_blkU:
    ds_read_b32 v6, v30
    s_waitcnt lgkmcnt(0)
    v_cmp_le_i32 vcc, 0, v6
    s_cbranch_vccz L_noupd
    s_mov_b64 exec, vcc
    v_mul_u32_u24 v6, 448, v6
    v_add_u32 v28, v28, v6""")
    for k in range(4): a(f"ds_read_b128 {vr(U+4*k,4)}, v28 offset:{64*(k>>1)+16*(k&1)}")
    a("s_waitcnt lgkmcnt(0)")
    for k in range(8):
        a(f"""v_pk_add_f32 {vr(B+2*k,2)}, {vr(B+2*k,2)}, {vr(U+2*k,2)}
        v_cvt_pk_bf16_f32 v{B+2*k}, v{B+2*k}, v{B+2*k+1}
        v_and_b32 v{B+2*k+1}, 0xffff0000, v{B+2*k}
        v_lshlrev_b32 v{B+2*k}, 16, v{B+2*k}""")
    a("s_mov_b64 exec, -1\nL_noupd:")
    stub()
    for k in range(8): a(f"v_pk_mul_f32 {vr(B+2*k,2)}, {vr(B+2*k,2)}, v[24:25] op_sel_hi:[1,0]")
    a("s_cmp_lg_u32 s57, 0\ns_cbranch_scc1 L_next1\ns_branch L_next0")
    a("L_bad:\ns_cmp_eq_u32 s57, 0\ns_cbranch_scc1 L_slow")
    for k in range(8): a(f"v_min_u32 v{Q+k}, -2, v{Q+k}")
    a("s_branch L_good")
    a.label("L_wait_ffn")
    spin_lds(a, VC, C_F, 4, 7)
    a("s_branch L_ffn_free")
    a.label("L_nextwait")
    spin_lds(a, VF, C_R + 4, 1, 7)
    a("s_sub_u32 s56, s61, 1\ns_branch L_nextok")
    a(f"""L_gate:
    s_mov_b32 s26, {WS_G}
    s_mov_b32 s60, {SPIN_LIMIT}
    L_gate1:
    buffer_load_dwordx2 {vr(GR,2)}, v{VGO}, s[8:11], s26 offen sc1
    s_waitcnt vmcnt(0)
    v_cmp_ne_u32 vcc, s{T}, v{GR+1}
    s_cbranch_vccz L_gate_ok
    s_sub_u32 s60, s60, 1
    s_cbranch_scc0 L_gate1
    s_endpgm""")
    a.label("L_slow")
    a(f"""s_mov_b32 s57, 1
    s_mov_b32 s55, {KVB}
    s_mov_b32 s54, 0
    s_mov_b32 exec_lo, 0
    v_mov_b32 v{QO+6}, 0
    v_mov_b32 v{QO+7}, 0
    s_mov_b32 exec_lo, -1
    v_mov_b32 v4, 0xff800000
    L_slow1:
    {ldK(0, "s54")[0]}
    {ldK(0, "s54")[1]}
    s_waitcnt vmcnt(0)
    {MF} {vr(S,16)}, {vr(KV,4)}, {vr(QO,4)}, 0
    {MF} {vr(S,16)}, {vr(KV+4,4)}, {vr(QO+4,4)}, {vr(S,16)}""")
    for x in max16_list(4, S, init=True): a(x)
    a(f"""s_add_u32 s54, s54, {TS}
    s_cmp_lt_u32 s54, s55
    s_cbranch_scc1 L_slow1
    v_mov_b32 v5, v4
    v_permlane32_swap_b32 v4, v5
    v_max_f32 v4, v4, v5""")
    split_neg_max(a, 4, 5, 6, QO + 6, QO + 7)
    for i in range(16): a(f"v_mov_b32 v{OO+i}, 0")
    a(f"""s_mov_b32 s54, 0
    L_slow2:
    {ldK(0, "s54")[0]}
    {ldK(0, "s54")[1]}
    {ldV(0, "s54")[0]}
    {ldV(0, "s54")[1]}
    s_waitcnt vmcnt(0)
    {MF} {vr(S,16)}, {vr(KV,4)}, {vr(QO,4)}, 0
    {MF} {vr(S,16)}, {vr(KV+4,4)}, {vr(QO+4,4)}, {vr(S,16)}""")
    for i in range(16): a(f"v_exp_f32 v{S+i}, v{S+i}")
    for i in range(8): a(f"v_cvt_pk_bf16_f32 v{P+i}, v{S+2*i}, v{S+2*i+1}")
    a(f"""{MF} {vr(OO,16)}, {vr(KV+8,4)}, {vr(P,4)}, {vr(OO,16)}
    {MF} {vr(OO,16)}, {vr(KV+12,4)}, {vr(P+4,4)}, {vr(OO,16)}
    s_nop 7
    s_nop 7
    s_add_u32 s54, s54, {TS}
    s_cmp_lt_u32 s54, s55
    s_cbranch_scc1 L_slow2
    s_branch L_fin""")

GI = CB; DI = QX; HB = 101376
FT, KS = 66, 67
def service_wave(a):
    a.label("L_service")
    a(f"""v_mov_b32 v14, {CNT}
    v_mov_b32 v15, 1
    v_mov_b32 v9, 0""")
    srd(a, 8, 36, (1 << 28) - WSBASE)
    a("s_waitcnt lgkmcnt(0)")
    tag(a)
    a(f"v_mov_b32 v4, s{T}\nds_write_b32 v14, v4 offset:{C_T}\ns_waitcnt vmcnt(0)")
    lds_inc(a, 14, C_Q1, 15)
    a(f"""v_and_b32 v32, 31, v3
    v_lshrrev_b32 v33, 5, v3
    v_lshlrev_b32 v219, 3, v1
    v_lshrrev_b32 v220, 2, v1
    v_and_b32 v4, 7, v3
    v_lshlrev_b32 v217, 3, v4
    s_lshr_b32 s58, s{H}, 2
    s_lshl2_add_u32 s58, s{J}, s58
    v_lshlrev_b32 v211, 11, v33
    v_lshl_add_u32 v211, v32, 4, v211
    v_and_b32 v4, 24, v3
    v_lshl_add_u32 v4, v33, 2, v4
    v_lshl_add_u32 v4, v217, 4, v4
    s_lshl_b32 s26, s{L}, 5
    s_add_u32 s26, s26, {HB}
    v_add_u32 v214, s26, v4
    s_mul_i32 s{FT}, s2, 9363
    s_lshr_b32 s{FT}, s{FT}, 16
    s_mul_i32 s26, s{FT}, 7
    s_sub_u32 s{KS}, s2, s26
    s_cmp_ge_u32 s{L}, 2
    s_cbranch_scc1 L_svcB""")
    def sel_load(lbl):
        a(f"""s_mov_b32 s26, {WS_SEL}
        s_mov_b32 s60, {SPIN_LIMIT}
        {lbl}:
        buffer_load_dwordx2 v[20:21], v217, s[8:11], s26 offen sc1
        s_waitcnt vmcnt(0)
        v_cmp_ne_u32 vcc, s{T}, v21
        s_cbranch_vccz {lbl}_ok
        s_sleep 4
        s_sub_u32 s60, s60, 1
        s_cbranch_scc0 {lbl}
        s_endpgm
        {lbl}_ok:""")
    a(f"""s_lshl_b32 s27, s{J}, 6
    s_add_u32 s27, s27, {WS_R}
    s_cmp_eq_u32 s{RL}, 14
    s_cbranch_scc1 L_rank
    s_cmp_lg_u32 s2, {SELECTOR}
    s_cbranch_scc1 L_svcA
    s_lshl_b32 s28, s{L}, 8
    s_add_u32 s28, s28, {KEYS}
    v_add_u32 v7, s28, v220
    v_lshl_add_u32 v6, v33, 7, s28
    s_lshl_b32 s28, s{L}, 6
    s_add_u32 s28, s28, {CAND}
    v_lshl_add_u32 v10, v33, 5, s28
    s_lshl_b32 s26, s{L}, 9
    s_add_u32 s26, s26, {WS_R}
    s_mov_b32 s27, {WS_SEL}
    v_lshlrev_b32 v4, 3, v3
    v_mov_b32 v5, 2
    s_mov_b32 s60, {SPIN_LIMIT}
    L_keys:
    v_mov_b32 v20, 0
    v_mov_b32 v21, 0
    buffer_atomic_or_x2 v[20:21], v4, s[8:11], s26 offen sc0 sc1
    s_sub_u32 s60, s60, 1
    s_cbranch_scc1 L_exit
    s_waitcnt vmcnt(0)
    v_cmp_ne_u32 vcc, s{T}, v21
    s_cbranch_vccnz L_keys
    ds_write_b32 v7, v20""")
    for k in range(8): a(f"ds_read_b128 {vr(40+4*k,4)}, v6 offset:{16*k}")
    rank_count(a, 20, 40, 32, 22, 23)
    a(f"""v_cmp_gt_u32 vcc, 8, v22
    v_lshl_add_u32 v22, v22, 2, v10
    s_mov_b64 exec, vcc
    ds_write_b32 v22, v20""")
    lds_inc(a, 14, C_K, 5)
    a(f"""L_rank:
    s_cmp_lg_u32 s{L}, 0
    s_cbranch_scc1 L_svcA
    v_mov_b32 v6, {CAND}
    v_lshl_add_u32 v7, v32, 2, v6
    v_lshl_add_u32 v6, v33, 6, v6
    v_mov_b32 v21, s{T}""")
    spin_lds(a, 14, C_K, 4, 8)
    st(a, 10)
    if STAMP: a("s_waitcnt lgkmcnt(0)")
    a("ds_read_b32 v20, v7")
    for k in range(4): a(f"ds_read_b128 {vr(40+4*k,4)}, v6 offset:{16*k}")
    rank_count(a, 20, 40, 16, 22, 23)
    a(f"""v_mov_b32 v23, v22
    v_permlane32_swap_b32 v22, v23
    v_add_u32 v22, v22, v23
    v_cmp_gt_u32 vcc, 8, v22
    v_lshlrev_b32 v22, 3, v22
    s_mov_b32 exec_lo, vcc_lo
    s_mov_b32 exec_hi, 0
    buffer_atomic_swap_x2 v[20:21], v22, s[8:11], s27 offen sc1
    s_mov_b64 exec, -1""")
    st(a, 11)
    a.label("L_svcA")
    for e in range(7):
        a(f"""v_add_u32 v4, {64*e}, v3
        v_mul_u32_u24 v5, 4682, v4
        v_lshrrev_b32 v5, 16, v5
        v_mul_u32_u24 v5, {896-224}, v5
        v_lshl_add_u32 v{200+e}, v4, 4, v5""")
    for r in (215, 216): a(f"v_mov_b32 v{r}, 0")
    a(f"""v_mov_b32 v28, -1
    v_mov_b32 v29, -1
    v_mov_b32 v30, -1
    v_mov_b32 v31, -1
    s_lshl_b32 s59, s{J}, 6
    s_add_u32 s59, s59, s{H}
    s_lshl1_add_u32 s59, s59, s{L}
    s_lshl_b32 s59, s59, 10
    s_add_u32 s59, s59, {WS_O}
    s_cmp_ge_u32 s2, 196
    s_cbranch_scc1 L_nofn
    v_lshrrev_b32 v4, 3, v3
    v_and_b32 v5, 2, v4
    v_lshlrev_b32 v5, 1, v5
    v_and_b32 v6, 7, v3
    v_xor_b32 v5, v5, v6
    v_mul_u32_u24 v6, 3584, v4
    v_lshl_add_u32 v34, v5, 4, v6
    v_add_u32 v35, {8*3584-1024}, v34
    v_add_u32 v36, {2*(8*3584-1024)}, v34
    v_add_u32 v37, {3*(8*3584-1024)}, v34
    v_mul_u32_u24 v6, 896, v4
    v_lshl_add_u32 v240, v5, 4, v6
    v_add_u32 v241, {8*896-1024}, v240
    v_add_u32 v242, {2*(8*896-1024)}, v240
    v_add_u32 v243, {3*(8*896-1024)}, v240
    s_lshl_b32 s54, s{L}, 13
    s_add_u32 s54, s54, {GI}
    v_and_b32 v4, 3, v3
    v_lshrrev_b32 v6, 4, v3
    v_bfe_u32 v7, v3, 2, 2
    v_lshl_add_u32 v8, v6, 3, v7
    v_lshlrev_b32 v8, 7, v8
    v_lshrrev_b32 v7, 1, v7
    v_lshl_add_u32 v8, v7, 6, v8
    v_lshl_add_u32 v8, v4, 3, v8
    v_add_u32 v38, s54, v8
    v_xor_b32 v39, 64, v38
    v_lshlrev_b32 v213, 4, v6
    v_lshlrev_b32 v212, 3, v213
    v_lshl_add_u32 v212, v217, 1, v212""")
    srd(a, 16, 42, 448 * 3584)
    a(f"""s_cmp_eq_u32 s{L}, 1
    s_cselect_b64 s[16:17], s[44:45], s[42:43]
    s_mul_i32 s52, s{KS}, {64*3584}
    s_lshl_b32 s28, s{FT}, 7
    s_add_u32 s52, s52, s28
    s_movk_i32 s29, 896""")
    if GA >= 0: spin_lds(a, 14, C_A, 256, 8, sleep=4)
    else: spin_lds(a, 14, C_L, 8 if "deferA" in EXP else 4, 8, sleep=4)
    st(a, 3)
    NR = 2 if "fine" in EXP else 4
    XS_ = 40; FW = 56; AC = 104
    if "nogu" in EXP: a("s_mov_b32 s18, 0")
    a("s_mov_b32 m0, s54\ns_nop 0")
    for k in range(8):
        if k == 4: a(f"s_add_u32 s52, s52, {32*3584}\ns_add_u32 m0, s54, 4096")
        if k == 8 - NR: sel_load("L_sel1")
        elif k and k % NR == 0: a("s_waitcnt vmcnt(0)")
        a(f"buffer_load_dwordx4 v{34+(k&3)}, s[16:19], s52 offen offset:{1024*(k&3)} lds")
    a(f"""v_not_b32 v4, v20
    v_and_b32 v4, 0x7ff, v4
    v_mad_u32_u24 v4, v4, s29, v213
    s_lshl_b32 s26, s{KS}, 7
    s_mov_b32 exec_lo, 0x00ff00ff
    s_mov_b32 exec_hi, 0x00ff00ff
    buffer_load_dwordx4 {vr(XS_,4)}, v4, s[12:15], s26 offen
    buffer_load_dwordx4 {vr(XS_+4,4)}, v4, s[12:15], s26 offen offset:64
    s_mov_b64 exec, -1
    s_waitcnt vmcnt(2)""")
    for k in range(2):
        for n in range(4):
            o = k * 4096 + (n & 1) * 32
            a(f"ds_read_b64_tr_b16 {vr(FW+16*k+4*n,2)}, v{38+(n>>1)} offset:{o}\nds_read_b64_tr_b16 {vr(FW+16*k+4*n+2,2)}, v{38+(n>>1)} offset:{o+512}")
    lds_inc(a, 14, C_F, 15)
    a(f"""s_mov_b64 s[16:17], s[46:47]
    s_lshl1_add_u32 s28, s{FT}, s{L}
    s_mul_i32 s28, s28, {32*896}
    s_add_u32 s28, s28, s26
    s_lshl_b32 s29, s{L}, 12
    s_add_u32 m0, s29, {DI}
    s_lshl1_add_u32 s26, s2, s{L}
    s_lshl_b32 s26, s26, 11
    s_add_u32 s26, s26, {WS_GP}
    s_waitcnt vmcnt(0) lgkmcnt(0)""")
    st(a, 4)
    for k in range(2):
        for n in range(4):
            a(f"v_mfma_f32_16x16x32_bf16 {vr(AC+4*n,4)}, {vr(FW+16*k+4*n,4)}, {vr(XS_+4*k,4)}, {'0' if k==0 else vr(AC+4*n,4)}")
    a("s_mov_b32 exec_lo, 0x00ff00ff\ns_mov_b32 exec_hi, 0x00ff00ff")
    for n in range(4):
        a(f"buffer_store_dwordx4 {vr(AC+4*n,4)}, v212, s[8:11], s26 offen offset:{512*n} sc1")
    a("s_mov_b64 exec, -1")
    if "nowd" in EXP: a("s_mov_b32 s18, 0")
    for k in range(4): a(f"buffer_load_dwordx4 v{240+k}, s[16:19], s28 offen offset:{1024*k} lds")
    a(f"""s_lshl1_add_u32 s26, s{KS}, s{L}
    s_lshl_b32 s26, s26, 2
    s_mul_i32 s28, s{FT}, {7*128}
    s_add_u32 s26, s26, s28
    s_add_u32 s26, s26, {WS_F1}
    s_waitcnt vmcnt(4)""")
    signal(a, 5, 219, "s26", "0x7f")
    st(a, 5)
    a(f"s_cmp_lg_u32 s{L}, 0\ns_cbranch_scc1 L_st2w\ns_lshl_b32 s26, s2, 7\ns_add_u32 s26, s26, {WS_F1}")
    poll_atomic(a, 5, 220, "s26", "0x3fff", 2)
    lds_inc(a, 14, C_L, 15)
    a("L_st2w:")
    spin_lds(a, 14, C_L, 1, 8, sleep=3)
    st(a, 6)
    GP = 40; DW = 120
    a(f"s_mul_i32 s26, s{FT}, {7*4096}\ns_lshl_b32 s28, s{L}, 9\ns_add_u32 s26, s26, s28\ns_add_u32 s26, s26, {WS_GP}")
    for k in range(7):
        a(f"buffer_load_dwordx4 {vr(GP+4*k,4)}, v211, s[8:11], s26 offen sc1")
        if k < 6: a("s_add_u32 s26, s26, 4096")
    a(f"s_mov_b32 s28, {NLOG2E:#x}\ns_waitcnt vmcnt(0)")
    for k in range(1, 7):
        if "nopk" in EXP:
            for e in range(4): a(f"v_add_f32 v{GP+e}, v{GP+e}, v{GP+4*k+e}")
        else:
            for e in range(2): a(f"v_pk_add_f32 {vr(GP+2*e,2)}, {vr(GP+2*e,2)}, {vr(GP+4*k+2*e,2)}")
    a(f"""v_permlane32_swap_b32 v{GP}, v{GP+2}
    v_permlane32_swap_b32 v{GP+1}, v{GP+3}
    v_mul_f32 v22, s28, v{GP}
    v_mul_f32 v23, s28, v{GP+1}
    v_exp_f32 v22, v22
    v_exp_f32 v23, v23
    v_add_f32 v22, 1.0, v22
    v_add_f32 v23, 1.0, v23
    v_rcp_f32 v22, v22
    v_rcp_f32 v23, v23
    v_pk_mul_f32 v[22:23], v[22:23], {vr(GP,2)}
    v_pk_mul_f32 v[22:23], v[22:23], {vr(GP+2,2)}
    v_cvt_pk_bf16_f32 v22, v22, v23
    ds_write_b32 v214, v22""")
    lds_inc(a, 14, C_S, 15)
    a(f"s_cmp_ge_u32 s{L}, 2\ns_cbranch_scc1 L_st3\ns_branch L_clr")
    a.label("L_nofn")
    lds_inc(a, 14, C_F, 15)
    spin_lds(a, 14, C_A, 512, 8, sleep=8)
    srd(a, 16, 38, 448 * 896)
    a(f"""s_sub_u32 s26, s2, 196
    s_lshl1_add_u32 s26, s26, s{L}
    s_mul_i32 s26, s26, {27*128}
    s_min_u32 s26, s26, {(3136-27)*128}
    s_mov_b64 exec, 0x7ffffff
    buffer_load_dword v6, v219, s[16:19], s26 offen
    s_mov_b64 exec, -1""")
    sel_load("L_sel2")
    a(f"""s_lshl2_add_u32 s26, s2, s{L}
    s_cmp_lg_u32 s26, {254*4}
    s_cbranch_scc1 L_clr""")
    a(f"s_mov_b32 s60, {SPIN_LIMIT}\nL_ep:")
    for k in range(4):
        a(f"s_mov_b32 s26, {WS_FL+8192*k}\nbuffer_load_dword v{24+k}, v219, s[8:11], s26 offen sc1")
    a(f"""s_sub_u32 s60, s60, 1
    s_cbranch_scc1 L_exit
    s_waitcnt vmcnt(0)
    v_xor_b32 v24, s{T}, v24
    v_bitop3_b32 v24, v24, v25, s{T} bitop3:0xf6
    v_bitop3_b32 v24, v24, v26, s{T} bitop3:0xf6
    v_bitop3_b32 v24, v24, v27, s{T} bitop3:0xf6
    v_cmp_ne_u32 vcc, 0, v24
    s_cbranch_vccnz L_ep
    s_mov_b32 s26, {WS_EP}""")
    flag_store(a, 5, 9, "s26")
    a("L_clr:")
    if "noobt" not in EXP:
        a(f"""s_lshl1_add_u32 s26, s58, s{L}
        s_lshl_b32 s26, s26, 8
        s_add_u32 s26, s26, {WS_OFL}
        s_mov_b64 exec, 3
        buffer_atomic_or v9, v219, s[8:11], s26 offen sc1
        s_mov_b64 exec, -1""")
    for k in range(4):
        a(f"buffer_store_dwordx4 v[28:31], v1, s[8:11], s59 offen sc1\ns_add_u32 s59, s59, {16*2048}")
        if k == 3 or (k & 1 and "clr2" in EXP): a("s_waitcnt vmcnt(0)")
    lds_inc(a, 14, C_F, 15)
    st(a, 7)
    Y = 40
    a(f"""L_updA:
    s_and_b32 s53, s{H}, 3
    s_mul_i32 s53, s53, 224
    s_lshl_b32 s57, s{L}, 2
    s_lshr_b32 s26, s53, 6
    s_lshl_b32 s26, s26, 7
    s_add_u32 s62, s26, {WS_YFL}
    L_upd:
    v_readlane_b32 s52, v20, s57
    s_andn2_b32 s54, 0x7ff, s52
    s_lshr_b32 s26, s54, 5
    s_cmp_lg_u32 s26, s58
    s_cbranch_scc1 L_updn
    s_mov_b32 s60, {SPIN_LIMIT}
    s_mov_b32 exec_lo, 0x0fffffff
    s_mov_b32 exec_hi, 0x0fffffff
    L_yfl:
    v_mov_b32 v24, 0
    v_mov_b32 v25, 0
    buffer_atomic_or v24, v220, s[8:11], s62 offen sc0 sc1
    buffer_atomic_or v25, v220, s[8:11], s62 offen offset:256 sc0 sc1
    s_waitcnt vmcnt(0)
    v_xor_b32 v24, s{T}, v24
    v_bitop3_b32 v24, v24, v25, s{T} bitop3:0xf6
    v_cmp_ne_u32 vcc, 0, v24
    s_cbranch_vccz L_yok
    s_sub_u32 s60, s60, 1
    s_cbranch_scc0 L_yfl
    s_endpgm
    L_yok:
    v_mul_u32_u24 v4, {14*14336}, v33
    v_lshl_add_u32 v4, v32, 4, v4
    s_mul_i32 s26, s57, 1792
    s_lshl1_add_u32 s26, s53, s26
    s_add_u32 s26, s26, {WS_YP}""")
    for i in range(14):
        a(f"buffer_load_dwordx4 {vr(Y+4*i,4)}, v4, s[8:11], s26 offen sc1\ns_add_u32 s26, s26, 14336")
    a(f"""s_mov_b64 exec, -1
    s_lshr_b32 s26, s52, 11
    s_not_b32 s55, s26
    s_and_b32 s29, s26, 0x7fff
    s_bitcmp1_b32 s26, 15
    s_cselect_b32 s26, s29, s55
    s_lshl_b32 s26, s26, 16
    v_mov_b32 v6, {NLOG2E:#x}
    v_mul_f32 v6, s26, v6
    v_exp_f32 v6, v6
    v_add_f32 v6, 1.0, v6
    v_rcp_f32 v6, v6
    v_cvt_pk_bf16_f32 v6, v6, v6
    v_lshlrev_b32 v6, 16, v6
    s_mul_i32 s26, s57, 448
    s_add_u32 s26, s26, {UPD}
    v_lshl_add_u32 v7, v32, 4, s26
    s_waitcnt vmcnt(0)""")
    for i in range(1, 14):
        a(f"v_pk_add_f32 {vr(Y,2)}, {vr(Y,2)}, {vr(Y+4*i,2)}\nv_pk_add_f32 {vr(Y+2,2)}, {vr(Y+2,2)}, {vr(Y+4*i+2,2)}")
    for k in range(4): a(f"v_mov_b32 v{Y+4+k}, v{Y+k}")
    for k in range(4): a(f"v_permlane32_swap_b32 v{Y+k}, v{Y+4+k}")
    for k in range(4): a(f"v_add_f32 v{Y+k}, v{Y+k}, v{Y+4+k}")
    for k in range(0, 4, 2):
        a(f"""v_cvt_pk_bf16_f32 v{Y+k}, v{Y+k}, v{Y+k+1}
        v_and_b32 v{Y+k+1}, 0xffff0000, v{Y+k}
        v_lshlrev_b32 v{Y+k}, 16, v{Y+k}
        v_mul_f32 v{Y+k}, v{Y+k}, v6
        v_mul_f32 v{Y+k+1}, v{Y+k+1}, v6
        v_cvt_pk_bf16_f32 v{Y+k}, v{Y+k}, v{Y+k+1}
        v_and_b32 v{Y+k+1}, 0xffff0000, v{Y+k}
        v_lshlrev_b32 v{Y+k}, 16, v{Y+k}""")
    a(f"""s_and_b32 s54, s54, 31
    v_mov_b32 v5, s57
    s_lshl_b32 s26, s54, 2
    s_add_u32 s26, s26, {UPDI}
    v_mov_b32 v4, s26
    s_mov_b64 exec, 0x0fffffff
    ds_write_b128 v7, {vr(Y,4)}
    s_mov_b64 exec, 1
    ds_write_b32 v4, v5
    s_mov_b64 exec, -1
    L_updn:
    s_add_u32 s57, s57, 1
    s_and_b32 s26, s57, 3
    s_cbranch_scc1 L_upd
    v_mov_b32 v6, 512""")
    lds_inc(a, 14, C_O, 6)
    st(a, 9)
    a("s_branch L_wo1")
    a.label("L_svcB")
    CLR = "buffer_store_dwordx4 v[24:27], v1, s[8:11], s59 offen sc1"
    if "noclr" in EXP: CLR = ""
    if "otouch" in EXP: CLR = "s_mov_b32 exec_lo, 0x0f0f0f0f\ns_mov_b32 exec_hi, 0x0f0f0f0f\nbuffer_store_dwordx4 v[24:27], v1, s[8:11], s59 offen sc1\ns_mov_b64 exec, -1"
    OUTT = ""
    if "outtouch" in EXP:
        OUTT = f"""s_cmp_lg_u32 s55, {42*1024}
        s_cbranch_scc1 L_noot
        s_mov_b32 s20, s50
        s_mov_b32 s21, s51
        s_mov_b32 s22, {2048*896}
        s_mov_b32 s23, 0x20000
        s_lshl_b32 s26, s58, 5
        v_add_u32 v4, s26, v32
        v_mul_u32_u24 v4, 896, v4
        s_add_u32 s26, s53, 127
        s_and_b32 s26, s26, 0xffffff80
        v_lshl_add_u32 v4, v33, 7, v4
        s_cmp_eq_u32 s53, 672
        s_cselect_b32 exec_hi, 0, -1
        buffer_store_dword v9, v4, s[20:23], s26 offen sc1
        s_mov_b64 exec, -1
        L_noot:"""
    WOPF = "s_mov_b32 exec_hi, 0x1ffff\nbuffer_load_dword v6, v219, s[16:19], s28 offen\ns_mov_b64 exec, -1" if "wopfS" not in EXP and "nowopf" not in EXP else ""
    for e in range(7):
        a(f"""v_add_u32 v4, {64*e}, v3
        v_mul_u32_u24 v5, 4682, v4
        v_lshrrev_b32 v5, 16, v5
        v_mul_u32_u24 v5, {896-224}, v5
        v_lshl_add_u32 v{200+e}, v4, 4, v5""")
    a(f"""v_mov_b32 v16, 0
    v_mov_b32 v17, 0
    v_mov_b32 v18, 0
    v_mov_b32 v19, 0
    v_add_u32 v209, {448*224}, v1
    v_bfe_u32 v7, v3, 2, 2
    v_lshl_add_u32 v5, v33, 3, v7
    v_lshlrev_b32 v5, 7, v5
    v_bfe_u32 v4, v3, 4, 1
    v_lshl_add_u32 v5, v4, 5, v5
    v_and_b32 v4, 3, v3
    v_lshl_add_u32 v5, v4, 3, v5
    v_lshrrev_b32 v7, 1, v7
    v_xor_b32 v7, s{L}, v7
    v_and_b32 v7, 1, v7
    v_lshl_add_u32 v5, v7, 6, v5
    v_add_u32 v210, {DI}, v5
    v_lshlrev_b32 v4, 4, v217
    v_lshl_add_u32 v4, v33, 4, v4
    v_add_u32 v218, {HB}, v4
    v_mul_u32_u24 v215, {4*1792}, v33
    v_lshl_add_u32 v215, v32, 2, v215
    v_add_u32 v216, {2*1792}, v215
    s_cmp_eq_u32 s{L}, 2
    s_cbranch_scc1 L_svcB2
    v_lshrrev_b32 v4, 4, v3
    v_and_b32 v5, 15, v3
    v_lshlrev_b32 v5, 2, v5
    v_lshl_add_u32 v221, v4, 9, v5
    v_lshl_add_u32 v222, v4, 5, v14
    v_and_b32 v223, 48, v3
    v_and_b32 v5, 15, v3
    v_add_u32 v6, v5, v4
    v_mul_u32_u24 v224, {4*TS}, v6
    v_add_u32 v224, 1, v224
    v_bfm_b32 v225, v5, 0
    s_mul_i32 s26, s{H}, 28
    s_add_u32 s28, s26, 27
    s_xor_b32 s26, s26, s28
    s_mov_b32 s62, 0x55555555
    s_cmp_ge_u32 s26, 64
    s_cselect_b32 s62, -1, s62
    s_mov_b32 s63, s62
    s_lshr_b32 s28, s{J}, 2
    s_lshl4_add_u32 s26, s{H}, s28
    s_lshl_b32 s26, s26, 7
    s_add_u32 s26, s26, {WS_MB}""")
    spin_lds(a, 14, C_D, PCD, 8, sleep=1)
    at = lambda r: f"v_mov_b32 v{r}, 0\nbuffer_atomic_or v{r}, v221, s[8:11], s26 offen sc0 sc1"
    a(f"""s_mov_b32 s60, {SPIN_LIMIT}
    s_mov_b32 s52, 0x11111111
    s_mov_b32 s53, 0x11111111
    s_mov_b64 s[56:57], s[52:53]
    s_mov_b64 exec, s[62:63]""")
    for i in range(PD - 1): a(at(28 + i) + f"\ns_sleep {PG}")
    a("L_kv:")
    for i in range(PD):
        a(at(28 + (i + PD - 1) % PD))
        a(f"""s_waitcnt vmcnt({PD-1})
        v_cmp_ne_u32 vcc, s{T}, v{28+i}
        s_lshr_b64 s[28:29], vcc, 1
        s_or_b64 s[28:29], s[28:29], vcc
        s_andn2_b64 s[54:55], s[56:57], s[28:29]
        s_cbranch_scc0 L_kvs{i}
        s_ff1_i32_b64 s54, s[54:55]
        s_lshl_b64 exec, 1, s54
        ds_write_b32 v14, v224 offset:{C_M}
        s_mov_b64 exec, s[62:63]
        s_mov_b64 s[56:57], 0
        L_kvs{i}:
        s_lshr_b64 s[54:55], s[28:29], 2
        s_or_b64 s[28:29], s[28:29], s[54:55]
        s_andn2_b64 s[28:29], s[52:53], s[28:29]
        s_cbranch_scc0 L_kvn{i}
        s_andn2_b64 s[52:53], s[52:53], s[28:29]
        v_lshrrev_b64 v[4:5], v223, s[28:29]
        v_and_b32 v5, v225, v4
        v_bcnt_u32_b32 v5, v5, 0
        v_lshl_add_u32 v5, v5, 2, v222
        s_mov_b64 exec, s[28:29]
        ds_write_b32 v5, v224 offset:{C_R}
        s_mov_b64 exec, s[62:63]
        v_and_b32 v4, 0xffff, v4
        v_bcnt_u32_b32 v4, v4, 0
        v_lshl_add_u32 v222, v4, 2, v222
        s_cmp_eq_u64 s[52:53], 0
        s_cbranch_scc1 L_kvdone
        L_kvn{i}:""")
    a(f"""s_sub_u32 s60, s60, 1
    s_cbranch_scc0 L_kv
    s_endpgm
    L_kvdone:
    s_mov_b64 exec, -1
    L_svcB2:""")
    srd(a, 16, 38, 448 * 896)
    a(f"""s_and_b32 s53, s{H}, 3
    s_mul_i32 s53, s53, 224
    s_and_b32 s27, s{L}, 1
    s_mul_i32 s55, s27, {7*1024}
    s_mul_i32 s57, s27, {32*896}
    s_add_u32 s57, s57, s53""")
    spin_lds(a, 14, C_A, 256, 8, sleep=4)
    st(a, 3)
    a("ds_write_b128 v209, v[16:19]")
    lds_inc(a, 14, C_W, 15)
    a(f"""    s_cmp_lg_u32 s{L}, 2
    s_cbranch_scc1 L_nofl
    s_lshl_b32 s26, s2, 7
    s_add_u32 s26, s26, {WS_FL}""")
    flag_store(a, 5, 9, "s26")
    a("L_nofl:\ns_cmp_lt_u32 s2, 196\ns_cbranch_scc1 L_st2w\ns_branch L_wo1")
    a("L_st3:")
    spin_lds(a, 14, C_S, 4, 8, sleep=1)
    for k in range(4):
        a(f"ds_read_b64_tr_b16 {vr(DW+4*k,2)}, v210 offset:{k*2048}\nds_read_b64_tr_b16 {vr(DW+4*k+2,2)}, v210 offset:{k*2048+512}")
    for k in range(4):
        a(f"ds_read_b128 {vr(GP+4*k,4)}, v218 offset:{32*k}\ns_waitcnt lgkmcnt(0)\n{MF} {vr(AC,16)}, {vr(GP+4*k,4)}, {vr(DW+4*k,4)}, {'0' if k==0 else vr(AC,16)}")
    a(f"""s_mul_i32 s26, s{FT}, 14336
    s_lshl1_add_u32 s28, s{KS}, s27
    s_lshl_b32 s29, s28, 7
    s_add_u32 s26, s26, s29
    s_add_u32 s26, s26, {WS_YP}
    s_lshl2_add_u32 s28, s{FT}, s29
    s_add_u32 s28, s28, {WS_YFL}
    buffer_store_dword v{AC}, v215, s[8:11], s26 offen sc1
    buffer_store_dword v{AC+1}, v215, s[8:11], s26 offen offset:1792 sc1
    buffer_store_dword v{AC+2}, v216, s[8:11], s26 offen sc1
    buffer_store_dword v{AC+3}, v216, s[8:11], s26 offen offset:1792 sc1
    s_waitcnt vmcnt(0)""")
    signal(a, 5, 9, "s28", 1)
    st(a, 7)
    a("L_wo1:")
    srd(a, 16, 38, 448 * 896)
    a("s_mov_b32 s27, 0")
    spin_lds(a, 14, C_Z, 64 * ZN, 8, sleep=4)
    st(a, 4)
    a(f"""L_wo:
    s_mov_b64 exec, 1
    ds_add_rtn_u32 v8, v14, v15 offset:{C_B}
    s_mov_b64 exec, -1
    s_waitcnt lgkmcnt(0)
    v_readfirstlane_b32 s26, v8
    s_cmp_ge_u32 s26, 14
    s_cbranch_scc1 L_wodone
    s_add_u32 s27, s27, 1
    s_mul_i32 s55, s26, {7*1024}
    s_mul_i32 s57, s26, {32*896}
    s_add_u32 s57, s57, s53""")
    for e in range(7):
        a(f"""s_add_u32 m0, s55, {e*1024}
        s_waitcnt vmcnt({WD})
        buffer_load_dwordx4 v{200+e}, s[16:19], s57 offen lds""")
    a(f"""s_branch L_wo
    L_wodone:
    v_mov_b32 v5, s27
    s_waitcnt vmcnt(0)""")
    lds_inc(a, 14, C_W, 5)
    st(a, 8)
    a.label("L_ofetch")
    a("s_waitcnt vmcnt(0) lgkmcnt(0)")
    st_end(a)
    a("L_exit:\nL_code_end:\ns_endpgm")

def main(out):
    hdr = open("cdna_kernels/" + NAME + ".s.ref").read().split("; Override")[0]
    rep = []
    a = Asm()
    prologue_and_loader(a); main_wave(a); service_wave(a)
    t = hdr
    t += f"; @launch grid=(256,1,1) block=(512,1,1) lds={LDS_BYTES}\n"
    t += '.amdgcn_target "amdgcn-amd-amdhsa--gfx950"\n'
    t += kernel_text(NAME + "_kernel", a.l, 256, report=rep)
    open(out, "w").write(t)
    if "-v" in sys.argv: print("\n".join(rep))

if __name__ == "__main__":
    main(sys.argv[1])
```

```python
import sys, math, struct
from asmlib import *

NAME = "gated_mix__softmax_full_mha__moe_arch_mod__prompt"
STAMP = "-s" in sys.argv
EXP = set(x[2:] for x in sys.argv if x.startswith("-x"))
WS_KV = 0
BLK = 5120; TS = 14 * BLK; KVB = 64 * TS
WS_O = 0x480000
WS_R = 0x680000
WS_G = WS_R + 16384
WS_SEL = WS_R + 32768
WS_EP = WS_R + 40960
WS_FL = WS_R + 65536
WS_MB = WS_FL + 32768
WS_OFL = WS_MB + 32768
WS_YFL = WS_OFL + 32768
WS_F1 = WS_YFL + 4096
WS_YP = WS_R + (1 << 18)
WS_GP = 0x730000
WS_ST = 16 << 20
XS = 0; WT = 65536; WQ = 122880; QX = 151552; UPD = 159744
WO = 0; CB = 102400
UPDI = UPD + 3584
KEYS = UPD
RT = UPD + 1024
CAND = UPD + 512
SELECTOR = 223
CNT = 163840 - 192
C_M = 88
LDS_BYTES = 163840
C_Q1, C_Q2, C_X, C_L, C_S, C_D, C_C, C_O, C_W, C_F, C_K, C_T, C_P, C_R = 0, 4, 8, 12, 16, 20, 24, 28, 32, 36, 40, 44, 48, 64

def f32bits(x): return struct.unpack("<I", struct.pack("<f", x))[0]
QSCALE = f32bits(28 ** -0.5 * math.log2(math.e))
NLOG2E = f32bits(-math.log2(math.e))
MF = "v_mfma_f32_32x32x16_bf16"
ROLE = [0, 1, 2, 3, 14, 4, 5, 6, 7, 8, 9, 15, 10, 11, 12, 13]
ROLE_LO = sum(ROLE[i] << (4 * i) for i in range(8))
ROLE_HI = sum(ROLE[8 + i] << (4 * i) for i in range(8))
SPIN_LIMIT = 1 << 20
NW1 = ([int(x[2:]) for x in EXP if x.startswith("nw")] + [14])[0]
WD = ([int(x[2:]) for x in EXP if x.startswith("wd")] + [14])[0]
GA = ([int(x[2:]) for x in EXP if x.startswith("ga")] + [0])[0]
GB = ([int(x[2:]) for x in EXP if x.startswith("gb")] + [12])[0]
C_A, C_B, C_Z = 92, 120, 124
ZN = ([int(x[2:]) for x in EXP if x.startswith("zn")] + [2])[0]
ZU = ([int(x[2:]) for x in EXP if x.startswith("zu")] + [1])[0]
NEARLYWO = ([int(x[2:]) for x in EXP if x.startswith("ew")] + [0])[0]
NQ1 = ([int(x[2:]) for x in EXP if x.startswith("nq")] + [4])[0]
WSBASE = ([int(x[2:]) for x in sys.argv if x.startswith("-w")] + [0])[0] << 20
PD = 2 if "pd2" in EXP else 4
PG = 6 if "pd2" in EXP else 3
PCD = 4 if "pcd4" in EXP else (0 if "pcd0" in EXP else 1)
KVS = 4 if "kvs4" in EXP else (0 if "kvs0" in EXP else 2)
PQ2 = 4 if "pq4" in EXP else (0 if "pq0" in EXP else 1)
PF0 = 2 if "pf2" in EXP else 0
WOP = 1 if "wo1" in EXP else (3 if "wo3" in EXP else 2)
OUTAUX = " sc1" if "outsc1" in EXP else (" nt" if "outnt" in EXP else "")

T, H, J, W, RL, ROT = 30, 31, 32, 33, 34, 3
_uid = [0]
def uid(p):
    _uid[0] += 1
    return f"{p}_{_uid[0]}"

def srd(a, d, ptr, nbytes):
    a(f"s_mov_b32 s{d}, s{ptr}\ns_mov_b32 s{d+1}, s{ptr+1}\ns_mov_b32 s{d+2}, {nbytes:#x}\ns_mov_b32 s{d+3}, 0x20000")

NST = 12
DIAG = [tuple(int(y) for y in x[2:].split("-")) for x in sys.argv if x.startswith("-d")]
def st(a, i):
    if STAMP: a(f"s_{'memrealtime' if 'rt' in EXP else 'memtime'} s[{72+2*i}:{73+2*i}]")
    if DIAG and i in DIAG[0]: a(f"s_memrealtime s[{72+2*i}:{73+2*i}]\ns_waitcnt lgkmcnt(0)")
def st_begin(a):
    if STAMP: a("s_memrealtime s[68:69]\ns_memtime s[72:73]" if "rt" not in EXP else "s_memrealtime s[68:69]\ns_memrealtime s[72:73]")
    if DIAG: a("s_memrealtime s[72:73]")
ABS = [x[2:] for x in sys.argv if x.startswith("-a")]
REL = [tuple(int(y) for y in x[2:].split("-")) for x in sys.argv if x.startswith("-r")]
if ABS:
    DIAG = [(0, 0 if ABS[0] == "z" else int(ABS[0].lstrip("m")))]
if REL:
    ABS = ["r"]; DIAG = REL
def diag_start(a):
    if not ABS: return
    a(f"""s_load_dwordx2 s[98:99], s[0:1], 80
    s_waitcnt lgkmcnt(0)
    s_cmp_ge_u32 s2, 8
    s_cbranch_scc1 L_dg0
    s_cmp_lg_u32 s{W}, 0
    s_cbranch_scc1 L_dg0
    s_lshl_b32 s70, s2, 2
    v_mov_b32 v4, s70
    v_mov_b32 v6, s72
    global_store_dword v4, v6, s[98:99] sc1
    L_dg0:""")
def diag_end(a):
    if not DIAG: return
    p, q = DIAG[0]
    if ABS:
        a(f"""s_waitcnt vmcnt(0)
        s_memrealtime s[96:97]
        s_mov_b64 exec, -1
        v_mov_b32 v4, 0
        global_load_dwordx4 v[8:11], v4, s[98:99] sc1
        global_load_dwordx4 v[12:15], v4, s[98:99] offset:16 sc1
        s_waitcnt vmcnt(0) lgkmcnt(0)
        v_min3_u32 v8, v8, v9, v10
        v_min3_u32 v8, v8, v11, v12
        v_min3_u32 v8, v8, v13, v14
        v_min_u32 v8, v8, v15
        s_nop 1
        v_readfirstlane_b32 s69, v8
        s_sub_u32 s70, s{72+2*q}, s69""")
        if ABS[0] == "z": a("s_mov_b32 s70, 0")
        if REL: a(f"s_sub_u32 s70, s{72+2*q}, s{72+2*p}\ns_lshl_b32 s70, s70, {0 if 'k1' in EXP else 2}")
        for x in EXP:
            if x.startswith("hm"): a(f"s_mov_b32 s71, 0x{x[2:]}\ns_bitcmp1_b32 s71, s{H}\ns_cselect_b32 s70, s70, 0")
            if x.startswith("xm"): a(f"s_getreg_b32 s71, hwreg(HW_REG_XCC_ID)\ns_and_b32 s71, s71, 7\ns_mov_b32 s68, 0x{x[2:]}\ns_bitcmp1_b32 s68, s71\ns_cselect_b32 s70, s70, 0")
            if x.startswith("jm"): a(f"s_mov_b32 s71, 0x{x[2:]}\ns_bitcmp1_b32 s71, s{J}\ns_cselect_b32 s70, s70, 0")
        if "onlynw" in EXP: a("s_cmp_ge_u32 s2, 196\ns_cselect_b32 s70, s70, 0")
        if "only23" in EXP: a(f"s_cmp_ge_u32 s{W}, 2\ns_cselect_b32 s70, s70, 0")
        if ABS[0].startswith("m"): a("s_sub_u32 s70, 2500, s70")
        a("s_add_u32 s70, s70, s69\ns_add_u32 s70, s70, 2500")
    else:
        a(f"""s_waitcnt vmcnt(0)
        s_memrealtime s[96:97]
        s_waitcnt lgkmcnt(0)
        s_sub_u32 s70, s{72+2*q}, s{72+2*p}
        s_add_u32 s70, s70, s96""")
    a(f"""L_diag:
    s_memrealtime s[68:69]
    s_waitcnt lgkmcnt(0)
    s_sub_u32 s71, s68, s70
    s_cmp_lt_i32 s71, 0
    s_cbranch_scc1 L_diag""")
def st_init(a):
    if STAMP:
        for i in range(1, NST): a(f"s_mov_b32 s{72+2*i}, s72")
def st_end(a):
    if not STAMP: return
    a(f"""s_waitcnt vmcnt(0)
    s_memrealtime s[70:71]
    s_{'memrealtime' if 'rt' in EXP else 'memtime'} s[{72+2*NST}:{73+2*NST}]
    s_getreg_b32 s66, hwreg(HW_REG_HW_ID)
    s_getreg_b32 s67, hwreg(HW_REG_XCC_ID)
    s_mov_b64 exec, -1
    s_lshl_b32 s65, s2, 3
    s_add_u32 s65, s65, s{W}
    s_lshl_b32 s65, s65, 6
    s_add_u32 s65, s65, {WS_ST}
    s_waitcnt lgkmcnt(0)
    v_mov_b32 v4, s68
    v_mov_b32 v5, s70
    v_mov_b32 v6, s66
    v_mov_b32 v7, s67""")
    for i in range(1, NST + 1):
        a(f"s_sub_u32 s64, s{72+2*i}, s72\nv_mov_b32 v{7+i}, s64")
    a("v_mov_b32 v2, 0\ns_mov_b64 exec, 1")
    for k in range(4):
        a(f"buffer_store_dwordx4 v[{4+4*k}:{7+4*k}], v2, s[8:11], s65 offen offset:{16*k}")

def poll_global(a, vdst, voff, soff, mask=None, sleep=1):
    l = uid("Lpoll"); d = uid("Lpd")
    a(f"s_mov_b32 s60, {SPIN_LIMIT}")
    if mask is not None: a(f"s_mov_b64 exec, {mask}")
    a(f"""{l}:
    buffer_load_dword v{vdst}, v{voff}, s[8:11], {soff} offen sc1
    s_waitcnt vmcnt(0)
    v_cmp_ne_u32 vcc, s{T}, v{vdst}
    s_cbranch_vccz {d}
    s_mov_b64 exec, vcc
    s_sleep {sleep}
    s_sub_u32 s60, s60, 1
    s_cbranch_scc0 {l}
    s_endpgm
    {d}:
    s_mov_b64 exec, -1""")

def poll_atomic(a, vdst, voff, soff, mask, sleep):
    l = uid("Lpa"); d = uid("Lpad")
    a(f"""s_mov_b32 s60, {SPIN_LIMIT}
    s_mov_b64 exec, {mask}
    {l}:
    v_mov_b32 v{vdst}, 0
    buffer_atomic_or v{vdst}, v{voff}, s[8:11], {soff} offen sc0 sc1
    s_waitcnt vmcnt(0)
    v_cmp_ne_u32 vcc, s{T}, v{vdst}
    s_cbranch_vccz {d}
    s_sleep {sleep}
    s_sub_u32 s60, s60, 1
    s_cbranch_scc0 {l}
    s_endpgm
    {d}:
    s_mov_b64 exec, -1""")

def poll_pipe(a, v0, voff, soff, mask, D=4, gap=3):
    l = uid("Lpp"); d = uid("Lppd")
    at = lambda r: f"v_mov_b32 v{r}, 0\nbuffer_atomic_or v{r}, v{voff}, s[8:11], {soff} offen sc0 sc1"
    a(f"s_mov_b32 s60, {SPIN_LIMIT}\ns_mov_b64 exec, {mask}")
    for i in range(D - 1): a(at(v0 + i) + f"\ns_sleep {gap}")
    a(f"{l}:")
    for i in range(D):
        a(at(v0 + (i + D - 1) % D))
        a(f"s_waitcnt vmcnt({D-1})\nv_cmp_ne_u32 vcc, s{T}, v{v0+i}\ns_cbranch_vccz {d}")
    a(f"""s_sub_u32 s60, s60, 1
    s_cbranch_scc0 {l}
    s_endpgm
    {d}:
    s_mov_b64 exec, -1""")

def signal(a, vt, voff, soff, mask):
    a(f"v_mov_b32 v{vt}, s{T}\ns_mov_b64 exec, {mask}\nbuffer_atomic_swap v{vt}, v{voff}, s[8:11], {soff} offen sc1\ns_mov_b64 exec, -1")

def spin_lds(a, vaddr, off, want, vt, sleep=0):
    l = uid("Lsp"); d = uid("Lsd")
    if not sleep:
        a(f"""s_mov_b32 s60, {SPIN_LIMIT}
        {l}:
        ds_read_b32 v{vt}, v{vaddr} offset:{off}
        s_sub_u32 s60, s60, 1
        s_cbranch_scc1 L_exit
        s_waitcnt lgkmcnt(0)
        v_readfirstlane_b32 s61, v{vt}
        s_cmp_ge_u32 s61, {want}
        s_cbranch_scc0 {l}""")
        return
    a(f"""s_mov_b32 s60, {SPIN_LIMIT}
    {l}:
    ds_read_b32 v{vt}, v{vaddr} offset:{off}
    s_waitcnt lgkmcnt(0)
    v_readfirstlane_b32 s61, v{vt}
    s_cmp_ge_u32 s61, {want}
    s_cbranch_scc1 {d}""")
    if sleep: a(f"s_sleep {sleep}")
    a(f"""s_sub_u32 s60, s60, 1
    s_cbranch_scc0 {l}
    s_endpgm
    {d}:""")

def lds_inc(a, vaddr, off, vone):
    a(f"s_mov_b64 exec, 1\nds_add_u32 v{vaddr}, v{vone} offset:{off}\ns_mov_b64 exec, -1")

def flag_store(a, vt, vz, soff):
    a(f"v_mov_b32 v{vt}, s{T}\ns_mov_b64 exec, 1\nbuffer_store_dword v{vt}, v{vz}, s[8:11], {soff} offen sc1\ns_mov_b64 exec, -1")

def split_neg_max(a, m, t0, t1, q6, q7):
    a(f"""v_sub_f32 v{m}, 0, v{m}
    v_cvt_pk_bf16_f32 v{t0}, v{m}, v{m}
    v_lshlrev_b32 v{t0}, 16, v{t0}
    v_sub_f32 v{t0}, v{m}, v{t0}
    v_cvt_pk_bf16_f32 v{t1}, v{m}, v{t0}
    v_and_b32 v{m}, 0xffff0000, v{t1}
    v_sub_f32 v{t0}, v{t0}, v{m}
    s_mov_b32 exec_lo, 0
    v_mov_b32 v{q6}, v{t1}
    v_cvt_pk_bf16_f32 v{q7}, v{t0}, 0
    s_mov_b32 exec_lo, -1""")

def max16_list(dst, S, init=False):
    if not init:
        return ([f"v_max3_f32 v{dst}, v{S}, v{S+1}, v{S+2}"] +
                [f"v_max3_f32 v{dst}, v{dst}, v{S+i}, v{S+i+1}" for i in range(3, 15, 2)] +
                [f"v_max_f32 v{dst}, v{dst}, v{S+15}"])
    return [f"v_max3_f32 v{dst}, v{dst}, v{S+i}, v{S+i+1}" for i in range(0, 16, 2)]

def wave_min_u32(a, v, full=True):
    for r in (1, 2, 4, 8):
        a(f"v_min_u32_dpp v{v}, v{v}, v{v} row_ror:{r} row_mask:0xf bank_mask:0xf")
    a(f"v_min_u32_dpp v{v}, v{v}, v{v} row_bcast:15 row_mask:0xa bank_mask:0xf")
    if full: a(f"v_min_u32_dpp v{v}, v{v}, v{v} row_bcast:31 row_mask:0xc bank_mask:0xf")

def rank_count(a, own, base, n, dst, t):
    a(f"v_mov_b32 v{dst}, 0\nv_mov_b32 v{t}, 0")
    for k in range(0, n, 4):
        a(f"s_waitcnt lgkmcnt({(n-k)//4-1})")
        for e in range(4): a(f"v_sub_u32 v{base+k+e}, v{own}, v{base+k+e}")
        for e in range(4):
            r = (dst, t)[e & 1]
            a(f"v_alignbit_b32 v{r}, v{r}, v{base+k+e}, 31")
    a(f"v_bcnt_u32_b32 v{dst}, v{dst}, 0\nv_bcnt_u32_b32 v{dst}, v{t}, v{dst}")

def tag(a):
    a(f"s_mul_i32 s{T}, s{T}, 0x9e3779b1\ns_add_u32 s{T}, s{T}, 0x7f4a7c15")

def next_chunk(a, s):
    a(f"s_add_u32 s{s}, s{s}, 1\ns_cmp_eq_u32 s{s}, 7\ns_cselect_b32 s{s}, 0, s{s}")

Q, O, KV, S, P = 8, 40, 104, 168, 200
XF = 104; A0, A1, WF = 40, 56, 72
VX = 216; VW = 220; VQ = 222; VC = 223; V1 = 224; VZ = 225; VT = 226; VH = 227
VA = 228; TMP = 232; XR = 240; GR = 248; VWQ = 250; VF = 251; VFS = 252; VXO = 253; VGO = 254
VI = 219
SM = "v_smfmac_f32_32x32x32_bf16"
OWN = 3
L = 35

def prologue_and_loader(a):
    MAPCODE = ""
    if "map2" in EXP:
        MAPCODE = f"s_and_b32 s26, s25, 1\ns_lshl1_add_u32 s{H}, s24, s26\ns_lshr_b32 s{J}, s25, 1\ns_lshl1_add_u32 s{ROT}, s26, s{J}\ns_add_u32 s{ROT}, s{ROT}, s24\ns_and_b32 s{ROT}, s{ROT}, 3\ns_lshl_b32 s{ROT}, s{ROT}, 1"
        if "norot" in EXP: MAPCODE += f"\ns_mov_b32 s{ROT}, 0"
    TADDR = "v_lshl_add_u32 v8, v3, 7, s58"
    if "tfull" in EXP: TADDR = "s_add_u32 s58, s58, 2048\nv_add_u32 v8, s58, v1"
    elif "t32" in EXP: TADDR = "v_and_b32 v8, 62, v3\nv_mul_u32_u24 v8, 48, v8\nv_add3_u32 v8, v8, v1, s58"
    else: TADDR = "v_and_b32 v8, 60, v3\nv_lshl_add_u32 v8, v8, 4, s58\nv_add_u32 v8, v8, v1"
    if "rot7" in EXP:
        ROTCODE = f"s_lshl1_add_u32 s{ROT}, s27, s26\ns_cmp_ge_u32 s{ROT}, 7\ns_cselect_b32 s26, 7, 0\ns_sub_u32 s{ROT}, s{ROT}, s26"
    elif "rot2" not in EXP and "norot" not in EXP and "rot23" not in EXP:
        ROTCODE = f"s_add_u32 s{ROT}, s27, s26\ns_and_b32 s{ROT}, s{ROT}, 3\ns_lshl_b32 s{ROT}, s{ROT}, 1"
    elif "norot" in EXP:
        ROTCODE = f"s_mov_b32 s{ROT}, 0"
    elif "rot23" in EXP:
        ROTCODE = f"s_add_u32 s{ROT}, s27, s26\ns_and_b32 s{ROT}, s{ROT}, 1\ns_mul_i32 s{ROT}, s{ROT}, 3"
    else:
        ROTCODE = f"s_add_u32 s{ROT}, s27, s26\ns_and_b32 s{ROT}, s{ROT}, 1\ns_lshl_b32 s{ROT}, s{ROT}, 2"
    st_begin(a)
    a(f"""s_load_dwordx4 s[4:7], s[0:1], 0
    s_load_dwordx2 s[36:37], s[0:1], 88
    s_load_dwordx2 s[38:39], s[0:1], 16
    s_load_dwordx8 s[40:47], s[0:1], 32
    s_load_dwordx4 s[48:51], s[0:1], 64
    s_cmp_ge_u32 s2, 256
    s_cbranch_scc1 L_exit
    v_lshrrev_b32 v2, 6, v0
    v_and_b32 v3, 63, v0
    s_and_b32 s24, s2, 7
    s_lshr_b32 s25, s2, 3
    v_readfirstlane_b32 s{W}, v2
    s_and_b32 s{H}, s24, 1
    s_lshl_b32 s{H}, s{H}, 3
    s_and_b32 s26, s25, 7
    s_add_u32 s{H}, s{H}, s26
    s_lshr_b32 s27, s25, 3
    s_and_b32 s{J}, s24, 6
    s_lshl1_add_u32 s{J}, s{J}, s27
    {ROTCODE}
    {MAPCODE}
    s_mov_b32 s28, {ROLE_LO:#x}
    s_mov_b32 s29, {ROLE_HI:#x}
    s_lshl_b32 s27, s{H}, 2
    s_lshr_b64 s[28:29], s[28:29], s27
    s_and_b32 s{RL}, s28, 15
    v_lshlrev_b32 v1, 4, v3
    s_mov_b32 s27, {WS_EP}
    s_cmp_lt_u32 s{W}, 4
    s_cbranch_scc1 L_main
    """)
    a(f"""s_setprio 2
    s_sub_u32 s{L}, s{W}, 4
    v_lshrrev_b32 v4, 3, v3
    v_mul_u32_u24 v5, 896, v4
    v_and_b32 v6, 7, v3
    v_lshrrev_b32 v7, 4, v3
    v_xor_b32 v7, v6, v7
    v_lshl_add_u32 v10, v7, 4, v5
    v_xor_b32 v11, 64, v10
    v_add_u32 v12, {2*6144}, v10
    v_add_u32 v13, {3*6144}, v11
    v_add_u32 v11, 6144, v11
    v_mul_u32_u24 v5, 2688, v4
    v_and_b32 v4, 2, v4
    v_lshlrev_b32 v4, 1, v4
    v_xor_b32 v4, v4, v6
    v_lshl_add_u32 v14, v4, 4, v5
    v_add_u32 v15, {8*2688-1024}, v14
    s_lshl2_add_u32 s52, s{J}, s{L}
    s_mul_i32 s58, s52, 14
    s_add_u32 s58, s58, s{RL}
    s_mul_i32 s58, s58, {BLK}
    {TADDR}
    s_mul_i32 s52, s52, {32*896}
    s_lshl_b32 s53, s{RL}, 7
    s_mul_i32 s26, s{L}, {16*2688}
    s_add_u32 s53, s53, s26
    s_add_u32 s53, s53, 896
    s_lshl_b32 s54, s{L}, 12
    s_lshl_b32 s55, s{L}, 11
    s_add_u32 s55, s55, {WT}
    s_mov_b32 s56, s{ROT}
    s_mov_b32 s57, 0
    s_mov_b32 s14, {2048*896}
    s_mov_b32 s15, 0x20000
    s_cmp_ge_u32 s{RL}, 14
    s_cselect_b32 s18, 0, {448*2688}
    s_mov_b32 s19, 0x20000
    s_waitcnt lgkmcnt(0)
    s_mov_b64 s[12:13], s[4:5]
    s_mov_b64 s[16:17], s[6:7]
    s_load_dword s{T}, s[36:37], s27""")
    st_init(a); st(a, 1)
    TPOS = ([int(x[2:]) for x in EXP if x.startswith("tp")] + [4])[0]
    TOUCH = "global_store_dwordx4 v8, v[10:13], s[36:37] sc1\nglobal_store_dwordx4 v8, v[10:13], s[36:37] offset:2048 sc1"
    if "tfull" in EXP:
        TOUCH = "\n".join(f"global_store_dwordx4 v8, v[10:13], s[36:37] offset:{1024*k-2048} sc1" for k in range(5))
    if "t32" in EXP: TOUCH = "global_store_dwordx4 v8, v[10:13], s[36:37] sc1"
    if "notouch" in EXP: TOUCH = ""
    a("s_cbranch_scc1 L_tbl")
    if TPOS == 0: a(TOUCH)
    a(f"""L_ld:
    s_mul_i32 s26, s56, {64*2688}
    s_mov_b32 m0, s55
    s_add_u32 s26, s26, s53
    s_lshl_b32 s28, s56, 7
    buffer_load_dwordx4 v14, s[16:19], s26 offen lds
    buffer_load_dwordx4 v15, s[16:19], s26 offen offset:1024 lds
    s_mov_b32 m0, s54
    s_add_u32 s28, s28, s52
    buffer_load_dwordx4 v10, s[12:15], s28 offen lds
    buffer_load_dwordx4 v11, s[12:15], s28 offen offset:1024 lds
    buffer_load_dwordx4 v12, s[12:15], s28 offen offset:2048 lds
    buffer_load_dwordx4 v13, s[12:15], s28 offen offset:3072 lds
    s_add_u32 s55, s55, 8192
    s_add_u32 s54, s54, 16384
    s_and_b32 s54, s54, 0xffff""")
    next_chunk(a, 56)
    if "tlb" in EXP:
        a(f"s_or_b32 s26, s57, s{L}\ns_cbranch_scc0 L_tlb\nL_tlb_done:")
    if "tsplit" in EXP:
        a(f"s_sub_u32 s26, s57, {TPOS-1}\ns_cmp_ge_u32 s26, 2\ns_cbranch_scc1 L_nt\ns_cmp_eq_u32 s18, 0\ns_cbranch_scc1 L_nt\nglobal_store_dwordx4 v8, v[10:13], s[36:37] sc1\nv_add_u32 v8, 2048, v8\nL_nt:")
    elif TPOS:
        a(f"s_cmp_lg_u32 s57, {TPOS-1}\ns_cbranch_scc1 L_nt")
        if "mbt" in EXP:
            a(f"""s_lshl2_add_u32 s26, s{H}, s{L}
            s_lshr_b32 s28, s{J}, 2
            s_lshl2_add_u32 s26, s26, s28
            s_lshl_b32 s26, s26, 7
            s_add_u32 s26, s26, {WS_MB}
            v_mov_b32 v4, s26
            v_mov_b32 v5, 0
            s_mov_b64 exec, 1
            global_atomic_or v4, v5, s[36:37] sc1
            s_mov_b64 exec, -1""")
        a(f"s_cmp_eq_u32 s18, 0\ns_cbranch_scc1 L_nt\n{TOUCH}\nL_nt:")
    a(f"""s_add_u32 s57, s57, 1
    s_cmp_lt_u32 s57, 3
    s_cbranch_scc1 L_ld
    s_waitcnt vmcnt(12)
    s_barrier
    s_cmp_lt_u32 s57, 7
    s_cbranch_scc1 L_ld
    """)
    a(f"""v_lshrrev_b32 v4, 2, v3
    v_mul_u32_u24 v4, 2688, v4
    v_and_b32 v5, 3, v3
    v_lshl_add_u32 v16, v5, 4, v4
    s_mov_b32 s18, {448*2688}
    s_mul_i32 s53, s{H}, 56
    s_and_b32 s53, s53, 0xfffffff0
    s_mul_i32 s26, s{L}, {16*2688}
    s_add_u32 s53, s53, s26
    s_lshl_b32 s55, s{L}, 10
    s_add_u32 s55, s55, {WQ}""")
    for i in range(NQ1):
        a(f"""s_mul_i32 s26, s56, {64*2688}
        s_add_u32 m0, s55, {i*4096}
        s_add_u32 s26, s26, s53
        buffer_load_dwordx4 v16, s[16:19], s26 offen lds""")
        if i < NQ1 - 1: next_chunk(a, 56)
        if i == 1: a("s_waitcnt vmcnt(8)\ns_barrier")
        if i == 3: a("s_waitcnt vmcnt(4)\ns_barrier")
    st(a, 2)
    a("s_branch L_service")
    a(f"""L_tbl:
    s_bitcmp1_b32 s{L}, 0
    s_cselect_b64 s[20:21], s[48:49], s[40:41]
    s_cselect_b32 s26, 1024, 0
    s_movk_i32 s22, 896
    s_mov_b32 s23, 0x20000
    s_add_u32 m0, s26, {RT}
    s_lshl_b32 s28, s{ROT}, 7
    v_add_u32 v4, s28, v1
    v_subrev_u32 v6, 896, v4
    v_min_u32 v4, v4, v6
    buffer_load_dwordx4 v4, s[20:23], 0 offen lds
    s_branch L_ld""")
    if "tlb" in EXP:
        a("L_tlb:")
        if "tlbR" in EXP: a(f"s_cmp_lt_u32 s{RL}, 14\ns_cbranch_scc1 L_tlb_done")
        for off in (0, 2 << 20, 4 << 20):
            a(f"s_mov_b32 s26, {off + 4032}\ns_load_dword s66, s[36:37], s26")
        for p in (42, 44, 38, 46, 50):
            a(f"s_load_dword s66, s[{p}:{p+1}], 0")
        a("s_branch L_tlb_done")

def main_wave(a):
    a.label("L_main")
    if "twait" in EXP: st(a, 11)
    if "nocodepf" not in EXP:
        a(f"""s_cmp_lg_u32 s{W}, 0
        s_cbranch_scc1 L_nopf
        s_getpc_b64 s[28:29]
        L_pc:
        s_and_b32 s26, s25, 3
        s_lshl_b32 s26, s26, 13
        v_lshl_add_u32 v4, v3, 7, s26
        v_min_u32 v4, L_code_end-L_pc, v4
        global_load_dword v255, v4, s[28:29]
        L_nopf:""")
    a(f"""s_setprio 1
    v_and_b32 v{VT}, 31, v3
    v_lshrrev_b32 v{VH}, 5, v3
    v_mov_b32 v{V1}, 1
    v_mov_b32 v{VZ}, 0
    v_mov_b32 v{VC}, {CNT}
    v_lshrrev_b32 v4, 2, v1
    v_add_u32 v4, {UPDI}, v4
    v_mov_b32 v6, -1
    s_mov_b32 exec_hi, 0
    ds_write_b32 v4, v6
    v_and_b32 v6, 7, v3
    v_cmp_eq_u32 vcc, 4, v6
    v_mov_b32 v7, {KVB+1}
    v_cndmask_b32 v6, 0, v7, vcc
    ds_write_b32 v4, v6 offset:{CNT-UPDI+C_R}
    s_mov_b32 exec_lo, 0xffff
    ds_write_b32 v4, v{VZ} offset:{CNT-UPDI}
    s_mov_b64 exec, -1
    v_lshrrev_b32 v4, 1, v{VT}
    v_and_b32 v4, 7, v4
    v_xor_b32 v4, v4, v{VH}
    v_lshlrev_b32 v4, 4, v4
    v_lshl_add_u32 v4, v{VT}, 7, v4
    s_lshl_b32 s26, s{W}, 12
    v_add_u32 v{VX}, s26, v4
    v_xor_b32 v{VX+1}, 32, v{VX}
    v_xor_b32 v{VX+2}, 64, v{VX}
    v_xor_b32 v{VX+3}, 96, v{VX}
    v_bfe_u32 v4, v3, 2, 2
    v_lshl_add_u32 v12, v{VH}, 3, v4
    v_and_b32 v6, 3, v3
    v_and_b32 v7, 1, v3
    v_bfe_u32 v8, v3, 1, 1
    v_lshl_add_u32 v7, v7, 1, v8
    v_bfe_u32 v8, v3, 4, 1
    v_lshl_add_u32 v9, v8, 2, v7
    v_lshl_add_u32 v10, v8, 2, v6
    s_cmp_lt_u32 s{RL}, 7
    s_cselect_b64 vcc, -1, 0
    v_cndmask_b32 v10, v10, v9, vcc
    v_lshlrev_b32 v11, 7, v12
    v_lshl_add_u32 v11, v10, 3, v11
    v_lshrrev_b32 v4, 1, v4
    v_lshl_add_u32 v11, v4, 6, v11
    v_add_u32 v{VW}, {WT}, v11
    v_xor_b32 v{VW+1}, 64, v{VW}
    ; Wq piece: even h: u ; odd h: u<6 ? u+2 : 7-u
    v_add_u32 v10, 2, v9
    v_sub_u32 v11, 7, v9
    v_cmp_gt_u32 vcc, 6, v9
    v_cndmask_b32 v10, v11, v10, vcc
    s_bitcmp1_b32 s{H}, 0
    s_cselect_b64 vcc, -1, 0
    v_cndmask_b32 v10, v9, v10, vcc
    v_lshlrev_b32 v11, 6, v12
    v_lshl_add_u32 v11, v10, 3, v11
    v_add_u32 v{VQ}, {WQ}, v11
    v_lshrrev_b32 v4, 2, v3
    v_mul_u32_u24 v4, 2688, v4
    v_lshl_add_u32 v{VWQ}, v6, 4, v4
    s_cmp_ge_u32 s{RL}, 7
    s_cselect_b32 s26, 7, 0
    s_cselect_b32 s29, 2, 0
    s_sub_u32 s26, s{RL}, s26
    s_mul_i32 s28, s26, {64*2341}
    s_lshr_b32 s28, s28, 16
    v_add_u32 v4, s28, v6
    v_mul_u32_u24 v7, 28, v4
    v_lshrrev_b32 v7, 6, v7
    v_cmp_ge_u32 s[64:65], s26, v7
    v_cmp_ne_u32 vcc, s26, v7
    s_and_b32 s28, s{J}, 12
    s_add_u32 s29, s28, s29
    v_mov_b32 v7, s29
    v_addc_co_u32 v7, vcc, 0, v7, vcc
    s_and_b32 s28, s{J}, 3
    v_lshl_add_u32 v4, v4, 2, s28
    v_bfe_u32 v8, v3, 2, 2
    v_lshl_add_u32 v4, v4, 2, v8
    v_lshlrev_b32 v4, 7, v4
    v_lshl_add_u32 v{VFS}, v7, 2, v4
    s_and_b32 s64, s64, 0xffff
    s_cmp_ge_u32 s{RL}, 14
    s_cselect_b32 s64, 0, s64
    s_mov_b32 s65, 0
    s_lshl_b32 s28, s{W}, 5
    v_add_u32 v{VF}, s28, v{VC}
    s_lshl_b32 s28, s{J}, 2
    ; output tile: qb3 = 4j + (h>>2) ; byte col = (4*(h&3) + w)*56
    s_lshr_b32 s58, s{H}, 2
    s_add_u32 s58, s58, s28
    s_and_b32 s59, s{H}, 3
    s_lshl2_add_u32 s59, s59, s{W}
    s_mul_i32 s59, s59, 56
    s_lshl_b32 s28, s58, 5
    v_add_u32 v4, s28, v{VT}
    v_mul_u32_u24 v{VXO}, 896, v4
    v_lshl_add_u32 v{VXO}, v{VH}, 4, v{VXO}
    v_lshlrev_b32 v{VGO}, 3, v4
    s_waitcnt lgkmcnt(0)
    """)
    st_init(a)
    srd(a, 8, 36, (1 << 28) - WSBASE)
    srd(a, 16, 6, 448 * 2688)
    srd(a, 12, 4, 2048 * 896)
    if "wqpf" in EXP:
        a(f"""s_cmp_lg_u32 s{W}, 1
        s_cbranch_scc1 L_nopf2
        v_lshrrev_b32 v4, 2, v3
        v_min_u32 v4, 13, v4
        v_mul_u32_u24 v4, 2688, v4
        v_and_b32 v6, 3, v3
        v_lshl_add_u32 v4, v6, 7, v4
        s_mul_i32 s26, s25, {14*2688}
        s_and_b32 s28, s24, 1
        s_mul_i32 s28, s28, 384
        s_add_u32 s26, s26, s28
        buffer_load_dword v5, v4, s[16:19], s26 offen
        L_nopf2:""")
    if "wopfS" in EXP:
        srd(a, 20, 38, 448 * 896)
        a(f"""s_cmp_lg_u32 s{W}, 2
        s_cbranch_scc1 L_nopf3
        s_mul_i32 s26, s2, {13*128}
        v_lshl_add_u32 v4, v3, 7, s26
        s_mov_b64 exec, 0x1fff
        buffer_load_dword v5, v4, s[20:23], 0 offen
        s_mov_b64 exec, -1
        L_nopf3:""")
    a(f"""s_mul_i32 s62, s{H}, 56
    s_and_b32 s62, s62, 0xfffffff0
    s_mul_i32 s26, s{W}, {16*2688}
    s_add_u32 s62, s62, s26
    s_lshl_b32 s63, s{W}, 10
    s_add_u32 s63, s63, {WQ}
    s_lshl2_add_u32 s35, s{J}, s{W}
    s_mul_i32 s52, s35, 14
    s_add_u32 s52, s52, s{RL}
    s_mul_i32 s52, s52, {BLK}
    s_add_u32 s53, s52, 4096
    v_and_b32 v9, 19, v{VT}
    v_bfe_u32 v4, v{VT}, 2, 1
    v_lshl_add_u32 v9, v4, 3, v9
    v_bfe_u32 v4, v{VT}, 3, 1
    v_lshl_add_u32 v9, v4, 2, v9
    s_lshr_b32 s26, s{H}, 1
    s_mul_i32 s26, s26, 7
    s_and_b32 s28, s{H}, 1
    s_lshl2_add_u32 s29, s28, s26
    v_add_u32 v4, s29, v{VH}
    v_lshrrev_b32 v6, 3, v4
    v_mul_u32_u24 v6, {BLK-4096}, v6
    v_lshl_add_u32 v6, v4, 9, v6
    v_lshl_add_u32 v{VA}, v9, 4, v6
    v_add_u32 v4, 2, v4
    v_lshrrev_b32 v6, 3, v4
    v_mul_u32_u24 v6, {BLK-4096}, v6
    v_lshl_add_u32 v6, v4, 9, v6
    s_add_u32 s26, s26, 3
    s_lshr_b32 s29, s26, 3
    s_mul_i32 s29, s29, {BLK}
    s_and_b32 s26, s26, 1
    s_lshl_b32 s26, s26, 9
    s_add_u32 s29, s29, s26
    s_add_u32 s29, s29, 4096
    v_mov_b32 v7, s29
    v_and_b32 v4, s28, v{VH}
    v_cmp_eq_u32 vcc, 1, v4
    v_cndmask_b32 v6, v6, v7, vcc
    v_lshl_add_u32 v{VA+1}, v9, 4, v6
    s_mul_i32 s26, s{H}, 28
    v_add_u32 v4, s26, v{VT}
    v_lshrrev_b32 v6, 6, v4
    v_mul_u32_u24 v6, {BLK}, v6
    v_bfe_u32 v7, v4, 5, 1
    v_lshl_add_u32 v6, v7, 11, v6
    v_and_b32 v4, 31, v4
    v_lshl_add_u32 v6, v4, 4, v6
    v_lshl_add_u32 v6, v{VH}, 9, v6
    v_add_u32 v6, {7*BLK}, v6
    v_add_u32 v8, 1024, v6
    s_lshr_b32 s26, s26, 6
    s_mul_i32 s26, s26, {BLK}
    s_add_u32 s26, s26, {7*BLK + 4096 - 28*16}
    v_lshl_add_u32 v7, v{VT}, 4, s26
    v_cmp_le_u32 vcc, 28, v{VT}
    v_cndmask_b32 v{VA+2}, v6, v7, vcc
    v_cndmask_b32 v{VA+3}, v8, v7, vcc
    s_cmp_ge_u32 s{RL}, 14
    s_cbranch_scc1 L_roleR
    s_cmp_ge_u32 s{RL}, 7
    s_cbranch_scc1 L_roleV""")

    def gemm(kind):
        if "twait" in EXP:
            st(a, 10)
        def reads(c, s):
            k = 4 * c + s
            a(f"ds_read_b128 {vr(XF+4*k,4)}, v{VX+s} offset:{(c&3)*16384}")
            f = WF + 8 * s
            if kind == "R":
                a(f"ds_read_b128 {vr(f,4)}, v{VW} offset:{k*32}")
            else:
                for n in range(2):
                    a(f"ds_read_b64_tr_b16 {vr(f+4*n,2)}, v{VW+n} offset:{k*2048}")
                    a(f"ds_read_b64_tr_b16 {vr(f+4*n+2,2)}, v{VW+n} offset:{k*2048+512}")
        def mfmas(c, s, ns=None):
            k = 4 * c + s
            f = WF + 8 * s
            for n in (ns or range(1 if kind == "R" else 2)):
                acc = (A0, A1)[n]
                cc = "0" if k == 0 else vr(acc, 16)
                if kind == "V": a(f"{MF} {vr(acc,16)}, {vr(XF+4*k,4)}, {vr(f+4*n,4)}, {cc}")
                else:           a(f"{MF} {vr(acc,16)}, {vr(f+4*n,4)}, {vr(XF+4*k,4)}, {cc}")
        per = 2 if kind == "R" else 5
        for c in range(7):
            a("s_barrier")
            if c == 0: st(a, 1)
            if c == 6: st(a, 2)
            if STAMP and c in (0, 6): a("s_waitcnt lgkmcnt(0)")
            reads(c, 0); reads(c, 1)
            for s in range(4):
                if s < 2: reads(c, s + 2)
                a(f"s_waitcnt lgkmcnt({min(3 - s, 2) * per})")
                if c == 6 and kind != "R" and s >= 2: mfmas(c, s, (0,))
                else: mfmas(c, s)
            if c == 6 and kind != "R":
                mfmas(c, 2, (1,)); mfmas(c, 3, (1,))

    PK = 8
    MS = 20
    a(f"""v_add_u32 v4, s{RL}, v{VH}""")
    for i in range(4):
        a(f"""v_cmp_eq_u32 vcc, {3-2*i}, v4
        v_cmp_eq_u32 s[{MS+2*i}:{MS+1+2*i}], {10-2*i}, v4
        s_or_b64 s[{MS+2*i}:{MS+1+2*i}], s[{MS+2*i}:{MS+1+2*i}], vcc""")
    for e in range(4): a(f"v_mov_b32 v{TMP+e}, 0x3f803f80")
    a(f"""s_or_b64 s[28:29], s[{MS}:{MS+1}], s[{MS+2}:{MS+3}]
    s_or_b64 s[54:55], s[{MS+4}:{MS+5}], s[{MS+6}:{MS+7}]
    s_or_b64 s[54:55], s[54:55], s[28:29]
    s_mov_b64 exec, 0
    s_branch L_epi
    L_backK:
    s_mov_b64 exec, -1""")
    gemm("K")
    a("s_branch L_epi")
    a.label("L_roleR")
    if "pfx" in EXP:
        C0 = 1 if "pf1" in EXP else 2
        a(f"""v_mul_u32_u24 v4, 896, v{VT}
        v_lshl_add_u32 v4, v{VH}, 7, v4
        s_mul_i32 s26, s35, {32*896}
        v_lshrrev_b32 v6, 3, v{VT}
        v_mul_u32_u24 v6, 2688, v6
        v_and_b32 v7, 7, v3
        v_min_u32 v7, 6, v7
        v_lshl_add_u32 v6, v7, 7, v6
        v_mul_u32_u24 v7, {64*2688}, v{VH}
        v_add_u32 v6, v6, v7
        s_and_b32 s28, s35, 15
        s_mul_i32 s28, s28, {4*2688}
        s_and_b32 s29, s24, 1
        s_mul_i32 s29, s29, 896
        s_add_u32 s28, s28, s29
        s_add_u32 s28, s28, {896 + C0*64*2688}""")
        for c in range(C0, 7, 2):
            if c == 6: a("s_mov_b32 exec_hi, 0")
            a(f"""buffer_load_dword v5, v4, s[12:15], s26 offen offset:{128*c}
            buffer_load_dword v5, v6, s[16:19], s28 offen
            s_add_u32 s28, s28, {128*2688}""")
        a("s_mov_b64 exec, -1")
    a(f"""v_and_b32 v4, 1, v3
    v_lshlrev_b32 v4, 10, v4
    v_lshl_add_u32 v4, v{VH}, 4, v4
    v_add_u32 v{VW}, {RT}, v4
    s_lshl_b32 s26, s{W}, 7
    s_add_u32 s26, s26, {KEYS}
    v_lshl_add_u32 v12, v{VT}, 2, s26
    v_lshl_add_u32 v13, v{VH}, 6, s26""")
    gemm("R")
    a(f"""s_cmp_lg_u32 s{RL}, 14
    s_cbranch_scc1 L_pub
    s_mov_b32 exec_hi, 0
    s_nop 9
    v_cvt_pk_bf16_f32 v4, v{A0}, v{A0+1}
    v_and_b32 v5, 0xffff0000, v4
    v_lshlrev_b32 v4, 16, v4
    v_ashrrev_i32 v6, 31, v4
    v_or_b32 v6, 0x80000000, v6
    v_xor_b32 v6, v6, v4
    v_lshrrev_b32 v6, 16, v6
    v_lshlrev_b32 v6, 11, v6
    v_cmp_u_f32 vcc, v4, v4
    v_cndmask_b32 v6, v6, 0, vcc
    s_lshl_b32 s26, s35, 5
    v_add_u32 v7, s26, v{VT}
    v_sub_u32 v8, 0x7ff, v7
    v_or_b32 v6, v6, v8
    v_lshlrev_b32 v9, 3, v7
    ds_write_b32 v12, v6
    s_mov_b32 exec_hi, -1
    ds_read_b32 v6, v12
    ds_read_b128 v[16:19], v13
    ds_read_b128 v[20:23], v13 offset:16
    ds_read_b128 v[24:27], v13 offset:32
    ds_read_b128 v[28:31], v13 offset:48""")
    rank_count(a, 6, 16, 16, 14, 15)
    a(f"""v_mov_b32 v15, v14
    s_lshl_b32 s26, s{W}, 5
    s_add_u32 s26, s26, {CAND}
    v_permlane32_swap_b32 v14, v15
    v_add_u32 v14, v14, v15
    v_cmp_gt_u32 vcc, 8, v14
    v_lshl_add_u32 v14, v14, 2, s26
    s_mov_b64 exec, vcc
    ds_write_b32 v14, v6
    s_mov_b64 exec, 1
    ds_add_u32 v{VC}, v{V1} offset:{C_K}
    s_mov_b32 exec_lo, -1
    v_mul_f32 v5, {NLOG2E:#x}, v5
    v_exp_f32 v5, v5
    v_add_f32 v5, 1.0, v5
    v_rcp_f32 v5, v5
    v_cvt_pk_bf16_f32 v5, v5, v5
    v_lshlrev_b32 v10, 16, v5
    s_mov_b32 exec_hi, -1
    s_branch L_pub
    """)
    a.label("L_roleV")
    a(f"""v_cmp_eq_u32 vcc, 0, v3
    v_mov_b32 v7, 0x3f803f80
    v_cndmask_b32 v{TMP}, 0, v7, vcc""")
    for e in range(1, 4): a(f"v_mov_b32 v{TMP+e}, v{TMP}")
    for i in range(4): a(f"s_mov_b64 s[{MS+2*i}:{MS+1+2*i}], 0")
    a("s_mov_b64 s[54:55], 0xff")
    gemm("V")
    a("L_epi:\ns_cbranch_execz L_backK")
    for i in range(4):
        acc = (A0, A1)[i >> 1] + 8 * (i & 1)
        p = PK + 4 * i
        for e in (2, 3, 0, 1): a(f"v_cvt_pk_bf16_f32 v{p+e}, v{acc+2*e}, v{acc+2*e+1}")
        a(f"""s_mov_b64 exec, s[{MS+2*i}:{MS+1+2*i}]
        v_swap_b32 v{TMP}, v{p+2}
        v_swap_b32 v{TMP+1}, v{p+3}
        s_mov_b64 exec, -1
        buffer_store_dwordx4 {vr(p,4)}, v1, s[8:11], s52 offen offset:{1024*i} sc1""")
    a(f"s_mov_b64 exec, s[54:55]\nbuffer_store_dwordx4 {vr(TMP,4)}, v1, s[8:11], s53 offen sc1\ns_mov_b64 exec, -1")
    a.label("L_pub")
    diag_start(a)
    st(a, 3)
    a(f"s_add_u32 s56, s{ROT}, {NQ1}\ns_cmp_ge_u32 s56, 7\ns_cselect_b32 s26, 7, 0\ns_sub_u32 s56, s56, s26")
    for i in range(NQ1, 7):
        a(f"""s_mul_i32 s26, s56, {64*2688}
        s_add_u32 m0, s63, {i*4096}
        s_add_u32 s26, s26, s62
        buffer_load_dwordx4 v{VWQ}, s[16:19], s26 offen lds""")
        if i < 6: next_chunk(a, 56)
    QO = Q + 8 * OWN
    SK = TMP
    a(f"""s_mov_b64 s[16:17], s[36:37]
    s_mov_b32 s18, {KVB}
    s_mov_b32 s57, 0""")
    def ldK(b, soff, base=None):
        r = KV + 16 * b if base is None else base
        return [f"buffer_load_dwordx4 {vr(r,4)}, v{VA}, s[16:19], {soff} offen sc1",
                f"buffer_load_dwordx4 {vr(r+4,4)}, v{VA+1}, s[16:19], {soff} offen sc1"]
    def ldV(b, soff):
        return [f"buffer_load_dwordx4 {vr(KV+16*b+8,4)}, v{VA+2}, s[16:19], {soff} offen sc1",
                f"buffer_load_dwordx4 {vr(KV+16*b+12,4)}, v{VA+3}, s[16:19], {soff} offen sc1"]
    def try_loads(block=False):
        d = uid("Ltl"); l = uid("Ltr"); g = uid("Ltg")
        a(f"s_cmp_eq_u32 s57, 2\ns_cbranch_scc1 {d}")
        if block: a(f"s_mov_b32 s60, {SPIN_LIMIT}\n{l}:\ns_sub_u32 s60, s60, 1\ns_cbranch_scc1 L_exit")
        a(f"""ds_read_b32 v4, v{VF} offset:{C_R}
        ds_read_b32 v5, v{VC} offset:{C_M}
        s_cmp_eq_u32 s57, 1
        s_waitcnt lgkmcnt(0)
        v_readfirstlane_b32 s56, v4
        s_cbranch_scc1 {g}
        v_readfirstlane_b32 s29, v5
        s_sub_u32 s29, s29, 1
        s_cbranch_scc1 {l if block else d}
        s_mov_b32 s57, 1""")
        for x in ldK(0, "s29", SK): a(x)
        a(f"""{g}:
        s_sub_u32 s27, s56, 1
        s_cbranch_scc1 {l if block else d}
        s_add_u32 s54, s56, {TS-1}
        s_add_u32 s55, s56, {2*TS-1}
        s_add_u32 s56, s56, {3*TS-1}
        s_mov_b32 s57, 2""")
        st(a, 6)
        for x in ldK(0, "s27") + ldV(0, "s27") + ldK(1, "s54") + ldV(1, "s54") + ([] if "up4" not in EXP else ldK(2, "s55") + ldV(2, "s55") + ldK(3, "s56")): a(x)
        a(f"{d}:")
    def qreads(k):
        f = WF + 4 * (k & 7)
        a(f"ds_read_b64_tr_b16 {vr(f,2)}, v{VQ} offset:{k*1024}\nds_read_b64_tr_b16 {vr(f+2,2)}, v{VQ} offset:{k*1024+256}")
    def publish():
        a(f"""s_mov_b32 s28, {WS_MB}
        v_readfirstlane_b32 s{T}, v11
        v_mov_b32 v6, v11
        s_mov_b64 exec, 1
        s_waitcnt vmcnt({7-NQ1})""")
        st(a, 4)
        a(f"""ds_add_rtn_u32 v4, v{VC}, v{V1} offset:{C_D}
        s_waitcnt lgkmcnt(0)
        v_cmp_eq_u32 vcc, 3, v4
        s_cbranch_vccz L_notlast
        s_mov_b64 exec, s[64:65]
        s_cbranch_execz L_notlast
        buffer_atomic_swap v6, v{VFS}, s[8:11], s28 offen sc1
        s_waitcnt vmcnt(1)
        s_branch L_published
        L_notlast:
        s_waitcnt vmcnt(0)
        s_cmp_lg_u32 s{RL}, 14
        s_cbranch_scc1 L_published
        s_mov_b32 s26, {WS_G}
        s_mov_b32 exec_lo, -1
        buffer_store_dwordx2 v[10:11], v9, s[8:11], s26 offen sc1
        L_published:""")
        a("s_mov_b64 exec, -1")
    def qgemm(lo, hi, cnt):
        spin_lds(a, VC, cnt, 4, 4)
        if not lo: a(f"ds_read_b32 v11, v{VC} offset:{C_T}")
        for k in range(lo, min(hi, lo + 6)): qreads(k)
        for k in range(lo, hi):
            if k + 6 < hi: qreads(k + 6)
            a(f"s_waitcnt lgkmcnt({2*(min(hi-1,k+6)-k)})")
            a(f"{MF} {vr(A0,16)}, {vr(WF+4*(k&7),4)}, {vr(XF+4*k,4)}, {'0' if k==0 else vr(A0,16)}")
    def qepi():
        for i in range(8): a(f"v_mov_b32 v{KV+56+i}, 0")
        a(f"""s_lshl_b32 s26, s{W}, 11
        s_add_u32 s26, s26, {QX}
        v_add_u32 v5, s26, v1
        s_mov_b32 s62, {QSCALE:#x}
        s_mov_b32 s63, {QSCALE:#x}""")
        for i in range(8): a(f"v_pk_mul_f32 {vr(A0+2*i,2)}, {vr(A0+2*i,2)}, s[62:63]")
        for i in range(8): a(f"v_cvt_pk_bf16_f32 v{QO+i}, v{A0+2*i}, v{A0+2*i+1}")
        a(f"""s_mov_b32 exec_lo, 0
        v_mov_b32 v{QO+6}, 0
        v_mov_b32 v{QO+7}, 0
        s_mov_b32 exec_lo, -1
        ds_write_b128 v5, {vr(QO,4)}
        ds_write_b128 v5, {vr(QO+4,4)} offset:1024""")
        lds_inc(a, VC, C_X, V1)
        for i in range(0, 48, 2): a(f"v_pk_mul_f32 {vr(O+i,2)}, {vr(KV+56,2)}, {vr(KV+56,2)}")
    qgemm(0, 4 * NQ1, C_Q1)
    if NQ1 == 7 and "qfirst" in EXP:
        st(a, 5)
        qepi(); publish(); try_loads()
    elif NQ1 == 7:
        st(a, 5)
        publish(); try_loads(); qepi()
    else:
        publish()
        lds_inc(a, VC, C_Q2, V1)
        try_loads()
        qgemm(4 * NQ1, 28, C_Q2)
        st(a, 5)
        try_loads()
        qepi()
    spin_lds(a, VC, C_X, 4, 4)
    for i in range(3):
        a(f"""s_add_u32 s26, s{W}, {i+1}
        s_and_b32 s26, s26, 3
        s_lshl_b32 s26, s26, 11
        s_add_u32 s26, s26, {QX}
        v_add_u32 v5, s26, v1
        ds_read_b128 {vr(Q+8*i,4)}, v5
        ds_read_b128 {vr(Q+8*i+4,4)}, v5 offset:1024""")
    for i in range(3):
        a(f"""s_add_u32 s26, s{W}, {i+1}
        s_and_b32 s26, s26, 3
        s_mul_i32 s26, s26, 12288
        s_add_u32 s26, s26, {CB + i*4096}
        v_add_u32 v{VX+i}, s26, v1""")
    a(f"s_mul_i32 s26, s{W}, 12288\ns_add_u32 s26, s26, {CB}\nv_add_u32 v2, s26, v1")
    a(f"v_mov_b32 v{VI}, 0xdddddddd")
    try_loads(block=True)
    def QK(u, m):
        kt, qs = (u >> 2) & 3, u & 3
        s = S + 16 * (u & 1)
        c = "0" if m == 0 else vr(s, 16)
        return f"{MF} {vr(s,16)}, {vr(KV+16*kt+4*m,4)}, {vr(Q+8*qs+4*m,4)}, {c}"
    def PV(u, m):
        kt, qs = (u >> 2) & 3, u & 3
        return f"{SM} {vr(O+16*qs,16)}, {vr(KV+16*kt+8+4*m,4)}, {vr(S+16*(u&1)+8*m,8)}, v{VI}"
    SS = [P, S + 16, S, O + 48]
    def samp(i, m): return f"{MF} {vr(SS[i],16)}, {vr(SK+4*m,4)}, {vr(Q+8*i+4*m,4)}, {'0' if m == 0 else vr(SS[i],16)}"
    def mx(i):
        for x in max16_list(4, SS[i]): a(x)
        a(f"s_mov_b32 exec_lo, 0\nv_cvt_pk_bf16_f32 v{Q+8*i+6}, -v4, 0\ns_mov_b32 exec_lo, -1")
    a(f"s_waitcnt vmcnt({8 if 'up4' not in EXP else 14}) lgkmcnt(0)")
    for i in (0, 2): a(samp(i, 0)); a(samp(i, 1))
    a(samp(1, 0)); a(samp(1, 1))
    mx(0)
    a(samp(3, 0)); a(samp(3, 1))
    mx(2)
    a(f"s_waitcnt vmcnt({6 if 'up4' not in EXP else 12})")
    a(QK(0, 0)); a(QK(0, 1))
    if "up4" not in EXP:
        for x in ldK(2, "s55") + ldV(2, "s55") + ldK(3, "s56"): a(x)
    mx(1)
    for i in range(0, 8, 2): a(f"v_pk_mul_f32 {vr(S+24+i,2)}, {vr(KV+56,2)}, {vr(KV+56,2)}")
    mx(3)
    for i in range(48, 64, 2): a(f"v_pk_mul_f32 {vr(O+i,2)}, {vr(KV+56,2)}, {vr(KV+56,2)}")
    st(a, 7)
    a(f"s_mov_b32 s57, 2\ns_mov_b32 s53, {WS_G}\ns_waitcnt vmcnt(10)")
    def substep(u, ex, last=False):
        s = S + 16 * (u & 1)
        e = lambda lo, hi: [f"v_exp_f32 v{s+i}, v{s+i}" for i in range(lo, hi)]
        q0, q1 = ([], []) if last else ([QK(u+1, 0)], [QK(u+1, 1)])
        c = (2, 6, 10, 14) if "even" in EXP else (2, 5, 8, 14)
        seq = (e(0, c[0]) + [PV(u-1, 1)] + ex[0] + e(c[0], c[1]) + q0 + ex[1] + e(c[1], c[2]) + q1 + ex[2] +
               e(c[2], c[3]) + [PV(u, 0)] + ex[3] + e(c[3], 16))
        for x in seq: a(x)
    a(".p2align 6")
    a.label("L_loop")
    for u in range(16):
        kt, qs = u >> 2, u & 3
        ex = [[], [], [], []]
        if qs == 0:
            l = ldV((kt + 3) & 3, "s56")
            ex[0] = [l[0]]; ex[3] = [l[1]]
        if qs == 1: ex[1] = [f"s_add_u32 s56, s56, {TS}"]
        if u == 0: ex[1] = [f"ds_read_b32 v7, v{VF} offset:{C_R+4}"]
        if u == 1:
            ex[0] = ["s_waitcnt lgkmcnt(0)", "v_readfirstlane_b32 s56, v7"]
            ex[1] = ["s_sub_u32 s56, s56, 1"]
            ex[2] = ["s_cbranch_scc1 L_nextwait", "L_nextok:", f"v_add_u32 v{VF}, 4, v{VF}"]
        if qs == 2: ex[3] = ["s_waitcnt vmcnt(10)"]
        if qs == 3:
            l = ldK(kt, "s56")
            ex[0] = [l[0]]; ex[3] = [l[1], "s_waitcnt vmcnt(10)"]
        if u == GA and "defer" not in EXP: ex[2] = ex[2] + [f"ds_add_u32 v{VC}, v{V1} offset:{C_A}"]
        if u == 15: ex[2] = ["s_sub_u32 s57, s57, 1"]
        substep(u, ex)
    a("s_cbranch_scc0 L_loop")
    wr = lambda i, k: f"ds_write_b128 v{VX+i}, {vr(O+16*i+4*k,4)} offset:{k*1024}"
    for u in range(16):
        ex = [[], [], [], []]
        if u == 0:
            l = ldV(3, "s56"); ex[0] = [l[0]]; ex[3] = [l[1]]
        if u == 1:
            ex[0] = [f"buffer_load_dwordx2 {vr(GR,2)}, v{VGO}, s[8:11], s53 offen sc1"]
            ex[1] = [f"buffer_load_dwordx4 {vr(XR,4)}, v{VXO}, s[12:15], s59 offen"]
            if "defer" not in EXP: ex[2] = [f"ds_add_u32 v{VC}, v{V1} offset:{C_Z}"]
            ex[3] = [f"buffer_load_dwordx4 {vr(XR+4,4)}, v{VXO}, s[12:15], s59 offen offset:32"]
        w_ = {2: 13, 3: 11, 6: 9, 7: 7, 10: 5, 11: 0}
        if u in w_: ex[3] = [f"s_waitcnt vmcnt({w_[u]})"]
        if u == 13: ex[2] = [wr(0, 0)]; ex[3] = [wr(0, 1)]
        if u == 14:
            st(a, 8)
            if "defer" in EXP: a(f"ds_add_u32 v{VC}, v{V1} offset:{C_Z}\nds_add_u32 v{VC}, v{V1} offset:{C_A}\nds_add_u32 v{VC}, v{V1} offset:{C_A}")
            ex = [[wr(0, 2)], [wr(0, 3)], [wr(1, 0)], [wr(1, 1)]]
        if u == 15: ex = [[wr(1, 2)], [wr(1, 3)], [], [wr(2, 0)]]
        substep(u, ex, last=(u == 15))
    a(wr(2, 1)); a(PV(15, 1)); a(wr(2, 2)); a(wr(2, 3))
    lds_inc(a, VC, C_C, V1)
    srd(a, 20, 50, 2048 * 896)
    TT = S
    OO = O + 16 * OWN
    a(f"""s_lshl_b32 s28, s35, 4
    s_add_u32 s28, s28, s{H}
    s_lshr_b32 s56, s28, 2
    s_lshl_b32 s56, s56, 5
    s_and_b32 s26, s{H}, 3
    s_add_u32 s56, s56, s26
    s_lshl_b32 s56, s56, 2
    s_add_u32 s56, s56, {WS_OFL}
    s_lshl_b32 s52, s28, 11
    s_add_u32 s52, s52, {WS_O}
    s_mov_b32 s57, 0""")
    spin_lds(a, VC, C_C, 6, 7)
    for k in range(12): a(f"ds_read_b128 {vr(TT+4*k,4)}, v2 offset:{k*1024}")
    for i in range(3):
        a(f"s_waitcnt lgkmcnt({8-4*i})")
        for k in (6, 7, 0, 1, 2, 3, 4, 5): a(f"v_pk_add_f32 {vr(OO+2*k,2)}, {vr(OO+2*k,2)}, {vr(TT+16*i+2*k,2)}")
    a.label("L_fin")
    a(f"""v_mov_b32 v5, v{OO+12}
    v_mov_b32 v4, v{OO+12}
    s_mov_b32 exec_lo, 0
    v_mov_b32 v{OO+12}, 0
    s_mov_b32 exec_lo, -1
    v_permlane32_swap_b32 v5, v4
    v_rcp_f32 v6, v4
    s_mov_b32 s28, 0x2b800000
    s_mov_b32 s29, 0x6c800000
    v_cmp_nle_f32 s[54:55], s28, v4
    v_cmp_nge_f32 s[62:63], s29, v4
    v_pk_add_f32 v[4:5], {vr(OO,2)}, {vr(OO+2,2)}""")
    for k in range(2, 8): a(f"v_pk_add_f32 v[4:5], v[4:5], {vr(OO+2*k,2)}")
    a(f"""v_add_f32 v4, v4, v5
    s_movk_i32 s28, 0x207
    v_cmp_class_f32 vcc, v4, s28
    s_or_b64 s[54:55], s[54:55], s[62:63]""")
    for k in range(8): a(f"v_pk_mul_f32 {vr(OO+2*k,2)}, {vr(OO+2*k,2)}, v[6:7] op_sel_hi:[1,0]")
    for k in range(8): a(f"v_cvt_pk_bf16_f32 v{Q+k}, v{OO+2*k}, v{OO+2*k+1}")
    a(f"""v_mov_b32 v6, s{T}
    s_or_b64 s[54:55], s[54:55], vcc
    s_cbranch_scc1 L_bad
    L_good:
    buffer_store_dwordx4 {vr(Q,4)}, v1, s[8:11], s52 offen sc1
    buffer_store_dwordx4 {vr(Q+4,4)}, v1, s[8:11], s52 offen offset:1024 sc1
    s_mov_b64 exec, 1
    {"s_waitcnt vmcnt(0)" if ("noclr" in EXP or "otouch" in EXP) else ""}
    buffer_atomic_swap v6, v{VZ}, s[8:11], s56 offen sc1
    s_mov_b64 exec, -1""")
    st(a, 9)
    WOF = 104; B = 232; ACC = 8; U = 72
    OSB = [40, 72]
    PLR = 36
    at = lambda r: f"v_mov_b32 v{r}, 0\ns_mov_b64 exec, 15\nbuffer_atomic_or v{r}, v7, s[8:11], s56 offen sc0 sc1\ns_mov_b64 exec, -1"
    a(f"""s_lshl2_add_u32 s28, s58, s{W}
    s_lshl_b32 s54, s28, 13
    s_add_u32 s54, s54, {WS_O}
    s_add_u32 s55, s54, 4096
    s_lshl_b32 s56, s28, 7
    s_add_u32 s56, s56, {WS_OFL}
    v_lshrrev_b32 v7, 2, v1
    {at(PLR)}
    v_bfe_u32 v4, v3, 2, 2
    v_lshl_add_u32 v4, v{VH}, 2, v4
    v_mul_u32_u24 v4, 224, v4
    v_bfe_u32 v5, v3, 4, 1
    v_lshl_add_u32 v4, v5, 5, v4
    v_and_b32 v5, 1, v3
    v_lshl_add_u32 v4, v5, 4, v4
    v_bfe_u32 v5, v3, 1, 1
    v_lshl_add_u32 v4, v5, 3, v4
    s_mul_i32 s28, s{W}, 56
    v_add_u32 v4, s28, v4""")
    for r in range(4):
        a(f"""s_add_u32 s26, s{W}, {r}
        s_and_b32 s26, s26, 3
        s_mul_i32 s28, s26, {4*28*224}
        v_add_u32 v{24+r}, s28, v4""")
        if r:
            a(f"s_mul_i32 s28, s26, 12288\ns_add_u32 s28, s28, {CB}\nv_add_u32 v{32+r}, s28, v1")
    a(f"""v_lshlrev_b32 v30, 2, v{VT}
    v_add_u32 v30, {UPDI}, v30
    s_mul_i32 s28, s{W}, 112
    s_add_u32 s28, s28, {UPD}
    v_lshl_add_u32 v28, v{VH}, 5, s28
    v_mov_b32 v29, {CNT}
    s_lshl_b32 s28, 0x11, s{W}
    v_mov_b32 v31, s28""")
    spin_lds(a, 29, C_W, 16, 6)
    def word(k):
        o = (28 * ((k >> 1) & 3) + 16 * (k & 1)) * 224
        b = 24 + (k >> 3)
        a(f"ds_read_b64_tr_b16 {vr(WOF+4*k,2)}, v{b} offset:{o}\nds_read_b64_tr_b16 {vr(WOF+4*k+2,2)}, v{b} offset:{o+8*224}")
    a(at(PLR + 1))
    for k in range(NW1):
        word(k)
        if k == NW1 // 2 - 1: a(at(PLR + 2))
    a(f"s_mov_b32 s60, {SPIN_LIMIT}\ns_mov_b64 exec, 15\nL_op:")
    for i in range(4):
        a(f"""v_mov_b32 v{PLR+(i+3)%4}, 0
        buffer_atomic_or v{PLR+(i+3)%4}, v7, s[8:11], s56 offen sc0 sc1
        s_waitcnt vmcnt(3)
        v_cmp_ne_u32 vcc, s{T}, v{PLR+i}
        s_cbranch_vccz L_of""")
    a(f"""s_sub_u32 s60, s60, 1
    s_cbranch_scc0 L_op
    s_endpgm
    L_of:
    s_mov_b64 exec, -1""")
    if "twait" not in EXP: st(a, 10)
    def oload():
        for k in range(8):
            a(f"buffer_load_dwordx4 {vr(OSB[0]+4*k,4)}, v1, s[8:11], {'s54' if k < 4 else 's55'} offen offset:{(k&3)*1024} sc1")
    oload()
    for k in range(NW1, 32): word(k)
    for k in range(8):
        a(f"v_lshlrev_b32 v{B+2*k}, 16, v{XR+k}\nv_and_b32 v{B+2*k+1}, 0xffff0000, v{XR+k}")
    a(f"""v_cmp_ne_u32 vcc, s{T}, v{GR+1}
    s_cbranch_vccnz L_gate
    L_gate_ok:
    v_sub_f32 v24, 1.0, v{GR}
    v_cvt_pk_bf16_f32 v24, v24, v24
    v_lshlrev_b32 v24, 16, v24""")
    def stub(): pass
    def need(bit):
        l = uid("Lnd")
        a(f"""{l}:
        ds_read_b32 v6, v29 offset:{C_O}
        s_sub_u32 s60, s60, 1
        s_cbranch_scc1 L_exit
        s_waitcnt lgkmcnt(0)
        v_readfirstlane_b32 s61, v6
        s_bitcmp1_b32 s61, {bit}
        s_cbranch_scc0 {l}""")
    def rd(g):
        for k in range(8): a(f"ds_read_b128 {vr(OSB[g&1]+4*k,4)}, v{32+g} offset:{k*1024}")
    def mm(g, lo, hi):
        for k in range(lo, hi):
            a(f"{MF} {vr(ACC,16)}, {vr(WOF+32*g+4*k,4)}, {vr(OSB[g&1]+4*k,4)}, {'0' if g == 0 and k == 0 else vr(ACC,16)}")
    a(f"""ds_read_b32 v6, v29 offset:{C_O}
    s_mov_b32 s57, 0
    s_waitcnt lgkmcnt(0)
    v_readfirstlane_b32 s61, v6
    s_bitcmp1_b32 s61, 10
    s_cbranch_scc1 L_blkU
    s_mov_b32 s57, 1
    L_next0:
    v_mov_b32 v4, 0""")
    for k in range(8):
        r = OSB[0] + 4 * k
        a(f"""s_waitcnt vmcnt({7-k})
        ds_write_b128 v2, {vr(r,4)} offset:{k*1024}""")
        if k < 6: mm(0, k, k + 1)
        a(f"""v_max3_u32 v4, v4, v{r}, v{r+1}
        v_max3_u32 v4, v4, v{r+2}, v{r+3}""")
    a("v_cmp_eq_u32 vcc, -1, v4\ns_cbranch_vccnz L_again")
    lds_inc(a, 29, C_O, 31)
    a(f"s_mov_b32 s27, s{W}")
    for g in range(4):
        if g < 3: a(f"ds_read_b32 v6, v29 offset:{C_O}\ns_add_u32 s27, s27, 1")
        if g: a("s_waitcnt lgkmcnt(0)")
        mm(g, 0 if g else 6, 2 if g else 8)
        if g < 3:
            if not g: a("s_waitcnt lgkmcnt(0)")
            a(f"v_readfirstlane_b32 s61, v6\ns_bitcmp1_b32 s61, s27\ns_cbranch_scc0 L_late{g}")
            rd(g + 1)
        mm(g, 2 if g else 8, 8)
        a(f"L_back{g}:")
    a("s_cmp_lg_u32 s57, 0\ns_cbranch_scc1 L_lateU\nL_next1:")
    if "twait" not in EXP: st(a, 11)
    a("s_nop 9")
    for x in EXP:
        if x.startswith("err"):
            a(f"s_or_b32 s26, s2, s{W}\ns_cmp_eq_u32 s26, 0\ns_cselect_b64 exec, 1, 0\nv_add_f32 v{B}, {f32bits(float(x[3:])):#x}, v{B}\ns_mov_b64 exec, -1")
        if x.startswith("all"):
            for k in range(16): a(f"v_add_f32 v{B+k}, {f32bits(float(x[3:])):#x}, v{B+k}")
    for m in range(2):
        for e in range(4*m, 4*m+4):
            a(f"v_pk_fma_f32 {vr(B+2*e,2)}, {vr(ACC+2*e,2)}, {vr(GR,2)}, {vr(B+2*e,2)} op_sel_hi:[1,0,1]")
        for e in range(4*m, 4*m+4): a(f"v_cvt_pk_bf16_f32 v{40+e}, v{B+2*e}, v{B+2*e+1}")
        if m == 0:
            a(f"buffer_store_dwordx4 v[40:43], v{VXO}, s[20:23], s59 offen{OUTAUX}")
            stub()
        else:
            a(f"""s_mov_b32 exec_hi, 0
            buffer_store_dwordx4 v[44:47], v{VXO}, s[20:23], s59 offen offset:32{OUTAUX}
            s_mov_b64 exec, 0xffffffff
            s_not_b64 exec, exec
            buffer_store_dwordx2 v[44:45], v{VXO}, s[20:23], s59 offen offset:32{OUTAUX}""")
    st_end(a)
    diag_end(a)
    a("s_endpgm")
    for g in range(3):
        a(f"L_late{g}:")
        mm(g, 2 if g else 8, 8)
        need("s27"); rd(g + 1)
        a(f"s_branch L_back{g}")
    a("L_again:\ns_sub_u32 s60, s60, 1\ns_cbranch_scc1 L_exit\ns_waitcnt lgkmcnt(0)")
    oload()
    a("s_branch L_next0")
    a("L_lateU:")
    need(10)
    a(f"""L_blkU:
    ds_read_b32 v6, v30
    s_waitcnt lgkmcnt(0)
    v_cmp_le_i32 vcc, 0, v6
    s_cbranch_vccz L_noupd
    s_mov_b64 exec, vcc
    v_mul_u32_u24 v6, 448, v6
    v_add_u32 v28, v28, v6""")
    for k in range(4): a(f"ds_read_b128 {vr(U+4*k,4)}, v28 offset:{64*(k>>1)+16*(k&1)}")
    a("s_waitcnt lgkmcnt(0)")
    for k in range(8):
        a(f"""v_pk_add_f32 {vr(B+2*k,2)}, {vr(B+2*k,2)}, {vr(U+2*k,2)}
        v_cvt_pk_bf16_f32 v{B+2*k}, v{B+2*k}, v{B+2*k+1}
        v_and_b32 v{B+2*k+1}, 0xffff0000, v{B+2*k}
        v_lshlrev_b32 v{B+2*k}, 16, v{B+2*k}""")
    a("s_mov_b64 exec, -1\nL_noupd:")
    stub()
    for k in range(8): a(f"v_pk_mul_f32 {vr(B+2*k,2)}, {vr(B+2*k,2)}, v[24:25] op_sel_hi:[1,0]")
    a("s_cmp_lg_u32 s57, 0\ns_cbranch_scc1 L_next1\ns_branch L_next0")
    a("L_bad:\ns_cmp_eq_u32 s57, 0\ns_cbranch_scc1 L_slow")
    for k in range(8): a(f"v_min_u32 v{Q+k}, -2, v{Q+k}")
    a("s_branch L_good")
    a.label("L_nextwait")
    spin_lds(a, VF, C_R + 4, 1, 7)
    a("s_sub_u32 s56, s61, 1\ns_branch L_nextok")
    a(f"""L_gate:
    s_mov_b32 s26, {WS_G}
    s_mov_b32 s60, {SPIN_LIMIT}
    L_gate1:
    buffer_load_dwordx2 {vr(GR,2)}, v{VGO}, s[8:11], s26 offen sc1
    s_waitcnt vmcnt(0)
    v_cmp_ne_u32 vcc, s{T}, v{GR+1}
    s_cbranch_vccz L_gate_ok
    s_sub_u32 s60, s60, 1
    s_cbranch_scc0 L_gate1
    s_endpgm""")
    a.label("L_slow")
    a(f"""s_mov_b32 s57, 1
    s_mov_b32 s55, {KVB}
    s_mov_b32 s54, 0
    s_mov_b32 exec_lo, 0
    v_mov_b32 v{QO+6}, 0
    v_mov_b32 v{QO+7}, 0
    s_mov_b32 exec_lo, -1
    v_mov_b32 v4, 0xff800000
    L_slow1:
    {ldK(0, "s54")[0]}
    {ldK(0, "s54")[1]}
    s_waitcnt vmcnt(0)
    {MF} {vr(S,16)}, {vr(KV,4)}, {vr(QO,4)}, 0
    {MF} {vr(S,16)}, {vr(KV+4,4)}, {vr(QO+4,4)}, {vr(S,16)}""")
    for x in max16_list(4, S, init=True): a(x)
    a(f"""s_add_u32 s54, s54, {TS}
    s_cmp_lt_u32 s54, s55
    s_cbranch_scc1 L_slow1
    v_mov_b32 v5, v4
    v_permlane32_swap_b32 v4, v5
    v_max_f32 v4, v4, v5""")
    split_neg_max(a, 4, 5, 6, QO + 6, QO + 7)
    for i in range(16): a(f"v_mov_b32 v{OO+i}, 0")
    a(f"""s_mov_b32 s54, 0
    L_slow2:
    {ldK(0, "s54")[0]}
    {ldK(0, "s54")[1]}
    {ldV(0, "s54")[0]}
    {ldV(0, "s54")[1]}
    s_waitcnt vmcnt(0)
    {MF} {vr(S,16)}, {vr(KV,4)}, {vr(QO,4)}, 0
    {MF} {vr(S,16)}, {vr(KV+4,4)}, {vr(QO+4,4)}, {vr(S,16)}""")
    for i in range(16): a(f"v_exp_f32 v{S+i}, v{S+i}")
    a(f"""{SM} {vr(OO,16)}, {vr(KV+8,4)}, {vr(S,8)}, v{VI}
    {SM} {vr(OO,16)}, {vr(KV+12,4)}, {vr(S+8,8)}, v{VI}
    s_nop 7
    s_nop 7
    s_add_u32 s54, s54, {TS}
    s_cmp_lt_u32 s54, s55
    s_cbranch_scc1 L_slow2
    s_branch L_fin""")

GI = 0; DI = QX; HB = 101376
FT, KS = 66, 67
def service_wave(a):
    a.label("L_service")
    a(f"""v_mov_b32 v14, {CNT}
    v_mov_b32 v15, 1
    v_mov_b32 v12, 0
    v_mov_b32 v9, 0""")
    srd(a, 8, 36, (1 << 28) - WSBASE)
    a("s_waitcnt lgkmcnt(0)")
    tag(a)
    a(f"v_mov_b32 v4, s{T}\nds_write_b32 v14, v4 offset:{C_T}\ns_waitcnt vmcnt(0)")
    lds_inc(a, 14, C_Q1, 15)
    a(f"""v_and_b32 v32, 31, v3
    v_lshrrev_b32 v33, 5, v3
    v_lshlrev_b32 v219, 3, v1
    v_lshrrev_b32 v220, 2, v1
    v_and_b32 v4, 7, v3
    v_lshlrev_b32 v217, 3, v4
    s_lshr_b32 s58, s{H}, 2
    s_lshl2_add_u32 s58, s{J}, s58
    v_lshlrev_b32 v211, 11, v33
    v_lshl_add_u32 v211, v32, 4, v211
    v_and_b32 v4, 24, v3
    v_lshl_add_u32 v4, v33, 2, v4
    v_lshl_add_u32 v4, v217, 4, v4
    s_lshl_b32 s26, s{L}, 5
    s_add_u32 s26, s26, {HB}
    v_add_u32 v214, s26, v4
    s_mul_i32 s{FT}, s2, 9363
    s_lshr_b32 s{FT}, s{FT}, 16
    s_mul_i32 s26, s{FT}, 7
    s_sub_u32 s{KS}, s2, s26
    s_cmp_ge_u32 s{L}, 2
    s_cbranch_scc1 L_svcB""")
    def sel_load(lbl):
        a(f"""s_mov_b32 s26, {WS_SEL}
        s_mov_b32 s60, {SPIN_LIMIT}
        {lbl}:
        buffer_load_dwordx2 v[20:21], v217, s[8:11], s26 offen sc1
        s_waitcnt vmcnt(0)
        v_cmp_ne_u32 vcc, s{T}, v21
        s_cbranch_vccz {lbl}_ok
        s_sleep 4
        s_sub_u32 s60, s60, 1
        s_cbranch_scc0 {lbl}
        s_endpgm
        {lbl}_ok:""")
    a(f"""s_lshl_b32 s27, s{J}, 6
    s_add_u32 s27, s27, {WS_R}
    s_cmp_eq_u32 s{RL}, 14
    s_cbranch_scc1 L_rank
    s_cmp_lg_u32 s2, {SELECTOR}
    s_cbranch_scc1 L_svcA
    s_lshl_b32 s28, s{L}, 8
    s_add_u32 s28, s28, {KEYS}
    v_add_u32 v7, s28, v220
    v_lshl_add_u32 v6, v33, 7, s28
    s_lshl_b32 s28, s{L}, 6
    s_add_u32 s28, s28, {CAND}
    v_lshl_add_u32 v10, v33, 5, s28
    s_lshl_b32 s26, s{L}, 9
    s_add_u32 s26, s26, {WS_R}
    s_mov_b32 s27, {WS_SEL}
    v_lshlrev_b32 v4, 3, v3
    v_mov_b32 v5, 2
    s_mov_b32 s60, {SPIN_LIMIT}
    L_keys:
    v_mov_b32 v20, 0
    v_mov_b32 v21, 0
    buffer_atomic_or_x2 v[20:21], v4, s[8:11], s26 offen sc0 sc1
    s_sub_u32 s60, s60, 1
    s_cbranch_scc1 L_exit
    s_waitcnt vmcnt(0)
    v_cmp_ne_u32 vcc, s{T}, v21
    s_cbranch_vccnz L_keys
    ds_write_b32 v7, v20""")
    for k in range(8): a(f"ds_read_b128 {vr(40+4*k,4)}, v6 offset:{16*k}")
    rank_count(a, 20, 40, 32, 22, 23)
    a(f"""v_cmp_gt_u32 vcc, 8, v22
    v_lshl_add_u32 v22, v22, 2, v10
    s_mov_b64 exec, vcc
    ds_write_b32 v22, v20""")
    lds_inc(a, 14, C_K, 5)
    a(f"""L_rank:
    s_cmp_lg_u32 s{L}, 0
    s_cbranch_scc1 L_svcA
    v_mov_b32 v6, {CAND}
    v_lshl_add_u32 v7, v32, 2, v6
    v_lshl_add_u32 v6, v33, 6, v6
    v_mov_b32 v21, s{T}""")
    spin_lds(a, 14, C_K, 4, 8)
    st(a, 10)
    if STAMP: a("s_waitcnt lgkmcnt(0)")
    a("ds_read_b32 v20, v7")
    for k in range(4): a(f"ds_read_b128 {vr(40+4*k,4)}, v6 offset:{16*k}")
    rank_count(a, 20, 40, 16, 22, 23)
    a(f"""v_mov_b32 v23, v22
    v_permlane32_swap_b32 v22, v23
    v_add_u32 v22, v22, v23
    v_cmp_gt_u32 vcc, 8, v22
    v_lshlrev_b32 v22, 3, v22
    s_mov_b32 exec_lo, vcc_lo
    s_mov_b32 exec_hi, 0
    buffer_atomic_swap_x2 v[20:21], v22, s[8:11], s27 offen sc1
    s_mov_b64 exec, -1""")
    st(a, 11)
    a.label("L_svcA")
    for e in range(7):
        a(f"""v_add_u32 v4, {64*e}, v3
        v_mul_u32_u24 v5, 4682, v4
        v_lshrrev_b32 v5, 16, v5
        v_mul_u32_u24 v5, {896-224}, v5
        v_lshl_add_u32 v{200+e}, v4, 4, v5""")
    for r in (215, 216): a(f"v_mov_b32 v{r}, 0")
    a(f"""v_mov_b32 v28, -1
    v_mov_b32 v29, -1
    v_mov_b32 v30, -1
    v_mov_b32 v31, -1
    s_lshl_b32 s59, s{J}, 6
    s_add_u32 s59, s59, s{H}
    s_lshl1_add_u32 s59, s59, s{L}
    s_lshl_b32 s59, s59, 10
    s_add_u32 s59, s59, {WS_O}
    s_cmp_ge_u32 s2, 196
    s_cbranch_scc1 L_nofn
    v_lshrrev_b32 v4, 3, v3
    v_and_b32 v5, 2, v4
    v_lshlrev_b32 v5, 1, v5
    v_and_b32 v6, 7, v3
    v_xor_b32 v5, v5, v6
    v_mul_u32_u24 v6, 3584, v4
    v_lshl_add_u32 v34, v5, 4, v6
    v_add_u32 v35, {8*3584-1024}, v34
    v_add_u32 v36, {2*(8*3584-1024)}, v34
    v_add_u32 v37, {3*(8*3584-1024)}, v34
    v_mul_u32_u24 v6, 896, v4
    v_lshl_add_u32 v240, v5, 4, v6
    v_add_u32 v241, {8*896-1024}, v240
    v_add_u32 v242, {2*(8*896-1024)}, v240
    v_add_u32 v243, {3*(8*896-1024)}, v240
    s_lshl_b32 s54, s{L}, 13
    s_add_u32 s54, s54, {GI}
    v_and_b32 v4, 3, v3
    v_lshrrev_b32 v6, 4, v3
    v_bfe_u32 v7, v3, 2, 2
    v_lshl_add_u32 v8, v6, 3, v7
    v_lshlrev_b32 v8, 7, v8
    v_lshrrev_b32 v7, 1, v7
    v_lshl_add_u32 v8, v7, 6, v8
    v_lshl_add_u32 v8, v4, 3, v8
    v_add_u32 v38, s54, v8
    v_xor_b32 v39, 64, v38
    v_lshlrev_b32 v213, 4, v6
    v_lshlrev_b32 v212, 3, v213
    v_lshl_add_u32 v212, v217, 1, v212""")
    srd(a, 16, 42, 448 * 3584)
    a(f"""s_cmp_eq_u32 s{L}, 1
    s_cselect_b64 s[16:17], s[44:45], s[42:43]
    s_mul_i32 s52, s{KS}, {64*3584}
    s_lshl_b32 s28, s{FT}, 7
    s_add_u32 s52, s52, s28
    s_movk_i32 s29, 896""")
    if GA >= 0: spin_lds(a, 14, C_A, 256, 8, sleep=4)
    else: spin_lds(a, 14, C_L, 8 if "deferA" in EXP else 4, 8, sleep=4)
    st(a, 3)
    NR = 2 if "fine" in EXP else 4
    XS_ = 40; FW = 56; AC = 104
    if "nogu" in EXP: a("s_mov_b32 s18, 0")
    a("s_mov_b32 m0, s54\ns_nop 0")
    for k in range(8):
        if k == 4: a(f"s_add_u32 s52, s52, {32*3584}\ns_add_u32 m0, s54, 4096")
        if k == 8 - NR: sel_load("L_sel1")
        elif k and k % NR == 0: a("s_waitcnt vmcnt(0)")
        a(f"buffer_load_dwordx4 v{34+(k&3)}, s[16:19], s52 offen offset:{1024*(k&3)} lds")
    a(f"""v_not_b32 v4, v20
    v_and_b32 v4, 0x7ff, v4
    v_mad_u32_u24 v4, v4, s29, v213
    s_lshl_b32 s26, s{KS}, 7
    s_mov_b32 exec_lo, 0x00ff00ff
    s_mov_b32 exec_hi, 0x00ff00ff
    buffer_load_dwordx4 {vr(XS_,4)}, v4, s[12:15], s26 offen
    buffer_load_dwordx4 {vr(XS_+4,4)}, v4, s[12:15], s26 offen offset:64
    s_mov_b64 exec, -1
    s_waitcnt vmcnt(2)""")
    for k in range(2):
        for n in range(4):
            o = k * 4096 + (n & 1) * 32
            a(f"ds_read_b64_tr_b16 {vr(FW+16*k+4*n,2)}, v{38+(n>>1)} offset:{o}\nds_read_b64_tr_b16 {vr(FW+16*k+4*n+2,2)}, v{38+(n>>1)} offset:{o+512}")
    a(f"""s_mov_b64 s[16:17], s[46:47]
    s_lshl1_add_u32 s28, s{FT}, s{L}
    s_mul_i32 s28, s28, {32*896}
    s_add_u32 s28, s28, s26
    s_lshl_b32 s29, s{L}, 12
    s_add_u32 m0, s29, {DI}
    s_lshl1_add_u32 s26, s2, s{L}
    s_lshl_b32 s26, s26, 11
    s_add_u32 s26, s26, {WS_GP}
    s_waitcnt vmcnt(0) lgkmcnt(0)""")
    st(a, 4)
    for k in range(2):
        for n in range(4):
            a(f"v_mfma_f32_16x16x32_bf16 {vr(AC+4*n,4)}, {vr(FW+16*k+4*n,4)}, {vr(XS_+4*k,4)}, {'0' if k==0 else vr(AC+4*n,4)}")
    a("s_mov_b32 exec_lo, 0x00ff00ff\ns_mov_b32 exec_hi, 0x00ff00ff")
    for n in range(4):
        a(f"buffer_store_dwordx4 {vr(AC+4*n,4)}, v212, s[8:11], s26 offen offset:{512*n} sc1")
    a("s_mov_b64 exec, -1")
    if "nowd" in EXP: a("s_mov_b32 s18, 0")
    for k in range(4): a(f"buffer_load_dwordx4 v{240+k}, s[16:19], s28 offen offset:{1024*k} lds")
    a(f"""s_lshl1_add_u32 s26, s{KS}, s{L}
    s_lshl_b32 s26, s26, 2
    s_mul_i32 s28, s{FT}, {7*128}
    s_add_u32 s26, s26, s28
    s_add_u32 s26, s26, {WS_F1}
    s_waitcnt vmcnt(4)""")
    signal(a, 5, 219, "s26", "0x7f")
    st(a, 5)
    a(f"s_cmp_lg_u32 s{L}, 0\ns_cbranch_scc1 L_st2w\ns_lshl_b32 s26, s2, 7\ns_add_u32 s26, s26, {WS_F1}")
    poll_atomic(a, 5, 220, "s26", "0x3fff", 2)
    lds_inc(a, 14, C_L, 15)
    a("L_st2w:")
    spin_lds(a, 14, C_L, 1, 8, sleep=3)
    st(a, 6)
    GP = 40; DW = 120
    a(f"s_mul_i32 s26, s{FT}, {7*4096}\ns_lshl_b32 s28, s{L}, 9\ns_add_u32 s26, s26, s28\ns_add_u32 s26, s26, {WS_GP}")
    for k in range(7):
        a(f"buffer_load_dwordx4 {vr(GP+4*k,4)}, v211, s[8:11], s26 offen sc1")
        if k < 6: a("s_add_u32 s26, s26, 4096")
    a(f"s_mov_b32 s28, {NLOG2E:#x}\ns_waitcnt vmcnt(0)")
    for k in range(1, 7):
        if "nopk" in EXP:
            for e in range(4): a(f"v_add_f32 v{GP+e}, v{GP+e}, v{GP+4*k+e}")
        else:
            for e in range(2): a(f"v_pk_add_f32 {vr(GP+2*e,2)}, {vr(GP+2*e,2)}, {vr(GP+4*k+2*e,2)}")
    a(f"""v_permlane32_swap_b32 v{GP}, v{GP+2}
    v_permlane32_swap_b32 v{GP+1}, v{GP+3}
    v_mul_f32 v22, s28, v{GP}
    v_mul_f32 v23, s28, v{GP+1}
    v_exp_f32 v22, v22
    v_exp_f32 v23, v23
    v_add_f32 v22, 1.0, v22
    v_add_f32 v23, 1.0, v23
    v_rcp_f32 v22, v22
    v_rcp_f32 v23, v23
    v_pk_mul_f32 v[22:23], v[22:23], {vr(GP,2)}
    v_pk_mul_f32 v[22:23], v[22:23], {vr(GP+2,2)}
    v_cvt_pk_bf16_f32 v22, v22, v23
    ds_write_b32 v214, v22""")
    lds_inc(a, 14, C_S, 15)
    a(f"s_cmp_ge_u32 s{L}, 2\ns_cbranch_scc1 L_st3\ns_branch L_clr")
    a.label("L_nofn")
    spin_lds(a, 14, C_A, 512, 8, sleep=8)
    srd(a, 16, 38, 448 * 896)
    a(f"""s_sub_u32 s26, s2, 196
    s_lshl1_add_u32 s26, s26, s{L}
    s_mul_i32 s26, s26, {27*128}
    s_min_u32 s26, s26, {(3136-27)*128}
    s_mov_b64 exec, 0x7ffffff
    buffer_load_dword v6, v219, s[16:19], s26 offen
    s_mov_b64 exec, -1""")
    sel_load("L_sel2")
    a(f"""s_lshl2_add_u32 s26, s2, s{L}
    s_cmp_lg_u32 s26, {254*4}
    s_cbranch_scc1 L_clr""")
    a(f"s_mov_b32 s60, {SPIN_LIMIT}\nL_ep:")
    for k in range(4):
        a(f"s_mov_b32 s26, {WS_FL+8192*k}\nbuffer_load_dword v{24+k}, v219, s[8:11], s26 offen sc1")
    a(f"""s_sub_u32 s60, s60, 1
    s_cbranch_scc1 L_exit
    s_waitcnt vmcnt(0)
    v_xor_b32 v24, s{T}, v24
    v_bitop3_b32 v24, v24, v25, s{T} bitop3:0xf6
    v_bitop3_b32 v24, v24, v26, s{T} bitop3:0xf6
    v_bitop3_b32 v24, v24, v27, s{T} bitop3:0xf6
    v_cmp_ne_u32 vcc, 0, v24
    s_cbranch_vccnz L_ep
    s_mov_b32 s26, {WS_EP}""")
    flag_store(a, 5, 9, "s26")
    a("L_clr:")
    if "noobt" not in EXP:
        a(f"""s_lshl1_add_u32 s26, s58, s{L}
        s_lshl_b32 s26, s26, 8
        s_add_u32 s26, s26, {WS_OFL}
        s_mov_b64 exec, 3
        buffer_atomic_or v9, v219, s[8:11], s26 offen sc1
        s_mov_b64 exec, -1""")
    for k in range(4):
        a(f"buffer_store_dwordx4 v[28:31], v1, s[8:11], s59 offen sc1\ns_add_u32 s59, s59, {16*2048}")
    a("v_mov_b32 v12, 1")
    st(a, 7)
    Y = 40
    a(f"""L_updA:
    s_and_b32 s53, s{H}, 3
    s_mul_i32 s53, s53, 224
    s_lshl_b32 s57, s{L}, 2
    s_lshr_b32 s26, s53, 6
    s_lshl_b32 s26, s26, 7
    s_add_u32 s62, s26, {WS_YFL}
    L_upd:
    v_readlane_b32 s52, v20, s57
    s_andn2_b32 s54, 0x7ff, s52
    s_lshr_b32 s26, s54, 5
    s_cmp_lg_u32 s26, s58
    s_cbranch_scc1 L_updn
    s_mov_b32 s60, {SPIN_LIMIT}
    s_mov_b32 exec_lo, 0x0fffffff
    s_mov_b32 exec_hi, 0x0fffffff
    L_yfl:
    v_mov_b32 v24, 0
    v_mov_b32 v25, 0
    buffer_atomic_or v24, v220, s[8:11], s62 offen sc0 sc1
    buffer_atomic_or v25, v220, s[8:11], s62 offen offset:256 sc0 sc1
    s_waitcnt vmcnt(0)
    v_xor_b32 v24, s{T}, v24
    v_bitop3_b32 v24, v24, v25, s{T} bitop3:0xf6
    v_cmp_ne_u32 vcc, 0, v24
    s_mov_b64 s[28:29], exec
    s_mov_b64 exec, 1
    ds_add_u32 v14, v12 offset:{C_C}
    v_mov_b32 v12, 0
    s_mov_b64 exec, s[28:29]
    s_cbranch_vccz L_yok
    s_sleep 3
    s_sub_u32 s60, s60, 1
    s_cbranch_scc0 L_yfl
    s_endpgm
    L_yok:
    v_mul_u32_u24 v4, {14*14336}, v33
    v_lshl_add_u32 v4, v32, 4, v4
    s_mul_i32 s26, s57, 1792
    s_lshl1_add_u32 s26, s53, s26
    s_add_u32 s26, s26, {WS_YP}""")
    for i in range(14):
        a(f"buffer_load_dwordx4 {vr(Y+4*i,4)}, v4, s[8:11], s26 offen sc1\ns_add_u32 s26, s26, 14336")
    a(f"""s_mov_b64 exec, -1
    s_lshr_b32 s26, s52, 11
    s_not_b32 s55, s26
    s_and_b32 s29, s26, 0x7fff
    s_bitcmp1_b32 s26, 15
    s_cselect_b32 s26, s29, s55
    s_lshl_b32 s26, s26, 16
    v_mov_b32 v6, {NLOG2E:#x}
    v_mul_f32 v6, s26, v6
    v_exp_f32 v6, v6
    v_add_f32 v6, 1.0, v6
    v_rcp_f32 v6, v6
    v_cvt_pk_bf16_f32 v6, v6, v6
    v_lshlrev_b32 v6, 16, v6
    s_mul_i32 s26, s57, 448
    s_add_u32 s26, s26, {UPD}
    v_lshl_add_u32 v7, v32, 4, s26
    s_waitcnt vmcnt(0)""")
    for i in range(1, 14):
        a(f"v_pk_add_f32 {vr(Y,2)}, {vr(Y,2)}, {vr(Y+4*i,2)}\nv_pk_add_f32 {vr(Y+2,2)}, {vr(Y+2,2)}, {vr(Y+4*i+2,2)}")
    for k in range(4): a(f"v_mov_b32 v{Y+4+k}, v{Y+k}")
    for k in range(4): a(f"v_permlane32_swap_b32 v{Y+k}, v{Y+4+k}")
    for k in range(4): a(f"v_add_f32 v{Y+k}, v{Y+k}, v{Y+4+k}")
    for k in range(0, 4, 2):
        a(f"""v_cvt_pk_bf16_f32 v{Y+k}, v{Y+k}, v{Y+k+1}
        v_and_b32 v{Y+k+1}, 0xffff0000, v{Y+k}
        v_lshlrev_b32 v{Y+k}, 16, v{Y+k}
        v_mul_f32 v{Y+k}, v{Y+k}, v6
        v_mul_f32 v{Y+k+1}, v{Y+k+1}, v6
        v_cvt_pk_bf16_f32 v{Y+k}, v{Y+k}, v{Y+k+1}
        v_and_b32 v{Y+k+1}, 0xffff0000, v{Y+k}
        v_lshlrev_b32 v{Y+k}, 16, v{Y+k}""")
    a(f"""s_and_b32 s54, s54, 31
    v_mov_b32 v5, s57
    s_lshl_b32 s26, s54, 2
    s_add_u32 s26, s26, {UPDI}
    v_mov_b32 v4, s26
    s_mov_b64 exec, 0x0fffffff
    ds_write_b128 v7, {vr(Y,4)}
    s_mov_b64 exec, 1
    ds_write_b32 v4, v5
    s_mov_b64 exec, -1
    L_updn:
    s_add_u32 s57, s57, 1
    s_and_b32 s26, s57, 3
    s_cbranch_scc1 L_upd
    v_mov_b32 v6, 512""")
    lds_inc(a, 14, C_O, 6)
    st(a, 9)
    a("s_branch L_wo1")
    a.label("L_svcB")
    CLR = "buffer_store_dwordx4 v[24:27], v1, s[8:11], s59 offen sc1"
    if "noclr" in EXP: CLR = ""
    if "otouch" in EXP: CLR = "s_mov_b32 exec_lo, 0x0f0f0f0f\ns_mov_b32 exec_hi, 0x0f0f0f0f\nbuffer_store_dwordx4 v[24:27], v1, s[8:11], s59 offen sc1\ns_mov_b64 exec, -1"
    OUTT = ""
    if "outtouch" in EXP:
        OUTT = f"""s_cmp_lg_u32 s55, {42*1024}
        s_cbranch_scc1 L_noot
        s_mov_b32 s20, s50
        s_mov_b32 s21, s51
        s_mov_b32 s22, {2048*896}
        s_mov_b32 s23, 0x20000
        s_lshl_b32 s26, s58, 5
        v_add_u32 v4, s26, v32
        v_mul_u32_u24 v4, 896, v4
        s_add_u32 s26, s53, 127
        s_and_b32 s26, s26, 0xffffff80
        v_lshl_add_u32 v4, v33, 7, v4
        s_cmp_eq_u32 s53, 672
        s_cselect_b32 exec_hi, 0, -1
        buffer_store_dword v9, v4, s[20:23], s26 offen sc1
        s_mov_b64 exec, -1
        L_noot:"""
    WOPF = "s_mov_b32 exec_hi, 0x1ffff\nbuffer_load_dword v6, v219, s[16:19], s28 offen\ns_mov_b64 exec, -1" if "wopfS" not in EXP and "nowopf" not in EXP else ""
    for e in range(7):
        a(f"""v_add_u32 v4, {64*e}, v3
        v_mul_u32_u24 v5, 4682, v4
        v_lshrrev_b32 v5, 16, v5
        v_mul_u32_u24 v5, {896-224}, v5
        v_lshl_add_u32 v{200+e}, v4, 4, v5""")
    a(f"""v_mov_b32 v16, 0
    v_mov_b32 v17, 0
    v_mov_b32 v18, 0
    v_mov_b32 v19, 0
    v_add_u32 v209, {448*224}, v1
    v_bfe_u32 v7, v3, 2, 2
    v_lshl_add_u32 v5, v33, 3, v7
    v_lshlrev_b32 v5, 7, v5
    v_bfe_u32 v4, v3, 4, 1
    v_lshl_add_u32 v5, v4, 5, v5
    v_and_b32 v4, 3, v3
    v_lshl_add_u32 v5, v4, 3, v5
    v_lshrrev_b32 v7, 1, v7
    v_xor_b32 v7, s{L}, v7
    v_and_b32 v7, 1, v7
    v_lshl_add_u32 v5, v7, 6, v5
    v_add_u32 v210, {DI}, v5
    v_lshlrev_b32 v4, 4, v217
    v_lshl_add_u32 v4, v33, 4, v4
    v_add_u32 v218, {HB}, v4
    v_mul_u32_u24 v215, {4*1792}, v33
    v_lshl_add_u32 v215, v32, 2, v215
    v_add_u32 v216, {2*1792}, v215
    s_cmp_eq_u32 s{L}, 2
    s_cbranch_scc1 L_svcB2
    v_lshrrev_b32 v4, 4, v3
    v_and_b32 v5, 15, v3
    v_lshlrev_b32 v5, 2, v5
    v_lshl_add_u32 v221, v4, 9, v5
    v_lshl_add_u32 v222, v4, 5, v14
    v_and_b32 v223, 48, v3
    v_and_b32 v5, 15, v3
    v_add_u32 v6, v5, v4
    v_mul_u32_u24 v224, {4*TS}, v6
    v_add_u32 v224, 1, v224
    v_bfm_b32 v225, v5, 0
    s_mul_i32 s26, s{H}, 28
    s_add_u32 s28, s26, 27
    s_xor_b32 s26, s26, s28
    s_mov_b32 s62, 0x55555555
    s_cmp_ge_u32 s26, 64
    s_cselect_b32 s62, -1, s62
    s_mov_b32 s63, s62
    s_lshr_b32 s28, s{J}, 2
    s_lshl4_add_u32 s26, s{H}, s28
    s_lshl_b32 s26, s26, 7
    s_add_u32 s26, s26, {WS_MB}""")
    spin_lds(a, 14, C_D, PCD, 8, sleep=1)
    at = lambda r: f"v_mov_b32 v{r}, 0\nbuffer_atomic_or v{r}, v221, s[8:11], s26 offen sc0 sc1"
    a(f"""s_mov_b32 s60, {SPIN_LIMIT}
    s_mov_b32 s52, 0x11111111
    s_mov_b32 s53, 0x11111111
    s_mov_b64 s[56:57], s[52:53]
    s_mov_b64 exec, s[62:63]""")
    for i in range(PD - 1): a(at(28 + i) + f"\ns_sleep {PG}")
    a("L_kv:")
    for i in range(PD):
        a(at(28 + (i + PD - 1) % PD))
        a(f"""s_waitcnt vmcnt({PD-1})
        v_cmp_ne_u32 vcc, s{T}, v{28+i}
        s_lshr_b64 s[28:29], vcc, 1
        s_or_b64 s[28:29], s[28:29], vcc
        s_andn2_b64 s[54:55], s[56:57], s[28:29]
        s_cbranch_scc0 L_kvs{i}
        s_ff1_i32_b64 s54, s[54:55]
        s_lshl_b64 exec, 1, s54
        ds_write_b32 v14, v224 offset:{C_M}
        s_mov_b64 exec, s[62:63]
        s_mov_b64 s[56:57], 0
        L_kvs{i}:
        s_lshr_b64 s[54:55], s[28:29], 2
        s_or_b64 s[28:29], s[28:29], s[54:55]
        s_andn2_b64 s[28:29], s[52:53], s[28:29]
        s_cbranch_scc0 L_kvn{i}
        s_andn2_b64 s[52:53], s[52:53], s[28:29]
        v_lshrrev_b64 v[4:5], v223, s[28:29]
        v_and_b32 v5, v225, v4
        v_bcnt_u32_b32 v5, v5, 0
        v_lshl_add_u32 v5, v5, 2, v222
        s_mov_b64 exec, s[28:29]
        ds_write_b32 v5, v224 offset:{C_R}
        s_mov_b64 exec, s[62:63]
        v_and_b32 v4, 0xffff, v4
        v_bcnt_u32_b32 v4, v4, 0
        v_lshl_add_u32 v222, v4, 2, v222
        s_cmp_eq_u64 s[52:53], 0
        s_cbranch_scc1 L_kvdone
        L_kvn{i}:""")
    a(f"""s_sub_u32 s60, s60, 1
    s_cbranch_scc0 L_kv
    s_endpgm
    L_kvdone:
    s_mov_b64 exec, -1
    L_svcB2:""")
    srd(a, 16, 38, 448 * 896)
    a(f"""s_and_b32 s53, s{H}, 3
    s_mul_i32 s53, s53, 224
    s_and_b32 s27, s{L}, 1
    s_mul_i32 s55, s27, {7*1024}
    s_mul_i32 s57, s27, {32*896}
    s_add_u32 s57, s57, s53""")
    spin_lds(a, 14, C_A, 256, 8, sleep=4)
    st(a, 3)
    a("ds_write_b128 v209, v[16:19]")
    lds_inc(a, 14, C_W, 15)
    a(f"""    s_cmp_lg_u32 s{L}, 2
    s_cbranch_scc1 L_nofl
    s_lshl_b32 s26, s2, 7
    s_add_u32 s26, s26, {WS_FL}""")
    flag_store(a, 5, 9, "s26")
    a("L_nofl:\ns_cmp_lt_u32 s2, 196\ns_cbranch_scc1 L_st2w\ns_branch L_wo1")
    a("L_st3:")
    spin_lds(a, 14, C_S, 4, 8, sleep=1)
    for k in range(4):
        a(f"ds_read_b64_tr_b16 {vr(DW+4*k,2)}, v210 offset:{k*2048}\nds_read_b64_tr_b16 {vr(DW+4*k+2,2)}, v210 offset:{k*2048+512}")
    for k in range(4):
        a(f"ds_read_b128 {vr(GP+4*k,4)}, v218 offset:{32*k}\ns_waitcnt lgkmcnt(0)\n{MF} {vr(AC,16)}, {vr(GP+4*k,4)}, {vr(DW+4*k,4)}, {'0' if k==0 else vr(AC,16)}")
    a(f"""s_mul_i32 s26, s{FT}, 14336
    s_lshl1_add_u32 s28, s{KS}, s27
    s_lshl_b32 s29, s28, 7
    s_add_u32 s26, s26, s29
    s_add_u32 s26, s26, {WS_YP}
    s_lshl2_add_u32 s28, s{FT}, s29
    s_add_u32 s28, s28, {WS_YFL}
    buffer_store_dword v{AC}, v215, s[8:11], s26 offen sc1
    buffer_store_dword v{AC+1}, v215, s[8:11], s26 offen offset:1792 sc1
    buffer_store_dword v{AC+2}, v216, s[8:11], s26 offen sc1
    buffer_store_dword v{AC+3}, v216, s[8:11], s26 offen offset:1792 sc1
    s_waitcnt vmcnt(0)""")
    signal(a, 5, 9, "s28", 1)
    st(a, 7)
    a("L_wo1:")
    srd(a, 16, 38, 448 * 896)
    a("s_mov_b32 s27, 0")
    spin_lds(a, 14, C_Z, 64 * ZN, 8, sleep=4)
    st(a, 4)
    a(f"""L_wo:
    s_mov_b64 exec, 1
    ds_add_rtn_u32 v8, v14, v15 offset:{C_B}
    s_mov_b64 exec, -1
    s_waitcnt lgkmcnt(0)
    v_readfirstlane_b32 s26, v8
    s_cmp_ge_u32 s26, 14
    s_cbranch_scc1 L_wodone
    s_add_u32 s27, s27, 1
    s_mul_i32 s55, s26, {7*1024}
    s_mul_i32 s57, s26, {32*896}
    s_add_u32 s57, s57, s53""")
    for e in range(7):
        a(f"""s_add_u32 m0, s55, {e*1024}
        s_waitcnt vmcnt({WD})
        buffer_load_dwordx4 v{200+e}, s[16:19], s57 offen lds""")
    a(f"""s_waitcnt vmcnt(7)
    s_mov_b64 exec, 1
    ds_add_u32 v14, v12 offset:{C_C}
    v_mov_b32 v12, 0
    s_branch L_wo
    L_wodone:
    v_mov_b32 v5, s27
    s_waitcnt vmcnt(0)""")
    lds_inc(a, 14, C_C, 12)
    lds_inc(a, 14, C_W, 5)
    st(a, 8)
    a.label("L_ofetch")
    a("s_waitcnt vmcnt(0) lgkmcnt(0)")
    st_end(a)
    a("L_exit:\nL_code_end:\ns_endpgm")

def main(out):
    hdr = open("cdna_kernels/" + NAME + ".s.ref").read().split("; Override")[0]
    rep = []
    a = Asm()
    prologue_and_loader(a); main_wave(a); service_wave(a)
    t = hdr
    t += f"; @launch grid=(256,1,1) block=(512,1,1) lds={LDS_BYTES}\n"
    t += '.amdgcn_target "amdgcn-amd-amdhsa--gfx950"\n'
    t += kernel_text(NAME + "_kernel", a.l, 256, report=rep)
    open(out, "w").write(t)
    if "-v" in sys.argv: print("\n".join(rep))

if __name__ == "__main__":
    main(sys.argv[1])
```

```python
import sys, math, struct
from asmlib import *

NAME = "gated_mix__softmax_full_mha__moe_arch_mod__prompt"
STAMP = "-s" in sys.argv
EXP = set(x[2:] for x in sys.argv if x.startswith("-x"))
WS_KV = 0
BLK = 5120; TS = 14 * BLK; KVB = 64 * TS
WS_O = 0x480000
WS_R = 0x680000
WS_G = WS_R + 16384
WS_SEL = WS_R + 32768
WS_EP = WS_R + 40960
WS_FL = WS_R + 65536
WS_MB = WS_FL + 32768
WS_OFL = WS_MB + 32768
WS_YFL = WS_OFL + 32768
WS_F1 = WS_YFL + 4096
WS_YP = WS_R + (1 << 18)
WS_GP = 0x730000
WS_ST = 16 << 20
XS = 0; WT = 65536; WQ = 122880; QX = 151552; UPD = 159744
WO = 0; CB = 102400
UPDI = UPD + 3584
KEYS = UPD
RT = UPD + 1024
CAND = UPD + 512
SELECTOR = 223
CNT = 163840 - 192
C_M = 88
LDS_BYTES = 163840
C_Q1, C_Q2, C_X, C_L, C_S, C_D, C_C, C_O, C_W, C_F, C_K, C_T, C_P, C_R = 0, 4, 8, 12, 16, 20, 24, 28, 32, 36, 40, 44, 48, 64

def f32bits(x): return struct.unpack("<I", struct.pack("<f", x))[0]
QSCALE = f32bits(28 ** -0.5 * math.log2(math.e))
NLOG2E = f32bits(-math.log2(math.e))
MF = "v_mfma_f32_32x32x16_bf16"
ROLE = [0, 1, 2, 3, 14, 4, 5, 6, 7, 8, 9, 15, 10, 11, 12, 13]
ROLE_LO = sum(ROLE[i] << (4 * i) for i in range(8))
ROLE_HI = sum(ROLE[8 + i] << (4 * i) for i in range(8))
SPIN_LIMIT = 1 << 20
NW1 = ([int(x[2:]) for x in EXP if x.startswith("nw")] + [14])[0]
WD = ([int(x[2:]) for x in EXP if x.startswith("wd")] + [14])[0]
GA = ([int(x[2:]) for x in EXP if x.startswith("ga")] + [0])[0]
GB = ([int(x[2:]) for x in EXP if x.startswith("gb")] + [12])[0]
C_A, C_B, C_Z = 92, 120, 124
ZN = ([int(x[2:]) for x in EXP if x.startswith("zn")] + [2])[0]
ZU = ([int(x[2:]) for x in EXP if x.startswith("zu")] + [1])[0]
NEARLYWO = ([int(x[2:]) for x in EXP if x.startswith("ew")] + [0])[0]
NQ1 = ([int(x[2:]) for x in EXP if x.startswith("nq")] + [4])[0]
WSBASE = ([int(x[2:]) for x in sys.argv if x.startswith("-w")] + [0])[0] << 20
PD = 2 if "pd2" in EXP else 4
PG = 6 if "pd2" in EXP else 3
PCD = 4 if "pcd4" in EXP else (0 if "pcd0" in EXP else 1)
KVS = 4 if "kvs4" in EXP else (0 if "kvs0" in EXP else 2)
PQ2 = 4 if "pq4" in EXP else (0 if "pq0" in EXP else 1)
PF0 = 2 if "pf2" in EXP else 0
WOP = 1 if "wo1" in EXP else (3 if "wo3" in EXP else 2)
OUTAUX = " sc1" if "outsc1" in EXP else (" nt" if "outnt" in EXP else "")

T, H, J, W, RL, ROT = 30, 31, 32, 33, 34, 3
_uid = [0]
def uid(p):
    _uid[0] += 1
    return f"{p}_{_uid[0]}"

def srd(a, d, ptr, nbytes):
    a(f"s_mov_b32 s{d}, s{ptr}\ns_mov_b32 s{d+1}, s{ptr+1}\ns_mov_b32 s{d+2}, {nbytes:#x}\ns_mov_b32 s{d+3}, 0x20000")

NST = 12
DIAG = [tuple(int(y) for y in x[2:].split("-")) for x in sys.argv if x.startswith("-d")]
def st(a, i):
    if STAMP: a(f"s_{'memrealtime' if 'rt' in EXP else 'memtime'} s[{72+2*i}:{73+2*i}]")
    if DIAG and i in DIAG[0]: a(f"s_memrealtime s[{72+2*i}:{73+2*i}]\ns_waitcnt lgkmcnt(0)")
def st_begin(a):
    if STAMP: a("s_memrealtime s[68:69]\ns_memtime s[72:73]" if "rt" not in EXP else "s_memrealtime s[68:69]\ns_memrealtime s[72:73]")
    if DIAG: a("s_memrealtime s[72:73]")
ABS = [x[2:] for x in sys.argv if x.startswith("-a")]
REL = [tuple(int(y) for y in x[2:].split("-")) for x in sys.argv if x.startswith("-r")]
if ABS:
    DIAG = [(0, 0 if ABS[0] == "z" else int(ABS[0].lstrip("m")))]
if REL:
    ABS = ["r"]; DIAG = REL
def diag_start(a):
    if not ABS: return
    a(f"""s_load_dwordx2 s[98:99], s[0:1], 80
    s_waitcnt lgkmcnt(0)
    s_cmp_ge_u32 s2, 8
    s_cbranch_scc1 L_dg0
    s_cmp_lg_u32 s{W}, 0
    s_cbranch_scc1 L_dg0
    s_lshl_b32 s70, s2, 2
    v_mov_b32 v4, s70
    v_mov_b32 v6, s72
    global_store_dword v4, v6, s[98:99] sc1
    L_dg0:""")
def diag_end(a):
    if not DIAG: return
    p, q = DIAG[0]
    if ABS:
        a(f"""s_waitcnt vmcnt(0)
        s_memrealtime s[96:97]
        s_mov_b64 exec, -1
        v_mov_b32 v4, 0
        global_load_dwordx4 v[8:11], v4, s[98:99] sc1
        global_load_dwordx4 v[12:15], v4, s[98:99] offset:16 sc1
        s_waitcnt vmcnt(0) lgkmcnt(0)
        v_min3_u32 v8, v8, v9, v10
        v_min3_u32 v8, v8, v11, v12
        v_min3_u32 v8, v8, v13, v14
        v_min_u32 v8, v8, v15
        s_nop 1
        v_readfirstlane_b32 s69, v8
        s_sub_u32 s70, s{72+2*q}, s69""")
        if ABS[0] == "z": a("s_mov_b32 s70, 0")
        if REL: a(f"s_sub_u32 s70, s{72+2*q}, s{72+2*p}\ns_lshl_b32 s70, s70, {0 if 'k1' in EXP else 2}")
        for x in EXP:
            if x.startswith("hm"): a(f"s_mov_b32 s71, 0x{x[2:]}\ns_bitcmp1_b32 s71, s{H}\ns_cselect_b32 s70, s70, 0")
            if x.startswith("xm"): a(f"s_getreg_b32 s71, hwreg(HW_REG_XCC_ID)\ns_and_b32 s71, s71, 7\ns_mov_b32 s68, 0x{x[2:]}\ns_bitcmp1_b32 s68, s71\ns_cselect_b32 s70, s70, 0")
            if x.startswith("jm"): a(f"s_mov_b32 s71, 0x{x[2:]}\ns_bitcmp1_b32 s71, s{J}\ns_cselect_b32 s70, s70, 0")
        if "onlynw" in EXP: a("s_cmp_ge_u32 s2, 196\ns_cselect_b32 s70, s70, 0")
        if "only23" in EXP: a(f"s_cmp_ge_u32 s{W}, 2\ns_cselect_b32 s70, s70, 0")
        if ABS[0].startswith("m"): a("s_sub_u32 s70, 2500, s70")
        a("s_add_u32 s70, s70, s69\ns_add_u32 s70, s70, 2500")
    else:
        a(f"""s_waitcnt vmcnt(0)
        s_memrealtime s[96:97]
        s_waitcnt lgkmcnt(0)
        s_sub_u32 s70, s{72+2*q}, s{72+2*p}
        s_add_u32 s70, s70, s96""")
    a(f"""L_diag:
    s_memrealtime s[68:69]
    s_waitcnt lgkmcnt(0)
    s_sub_u32 s71, s68, s70
    s_cmp_lt_i32 s71, 0
    s_cbranch_scc1 L_diag""")
def st_init(a):
    if STAMP:
        for i in range(1, NST): a(f"s_mov_b32 s{72+2*i}, s72")
def st_end(a):
    if not STAMP: return
    a(f"""s_waitcnt vmcnt(0)
    s_memrealtime s[70:71]
    s_{'memrealtime' if 'rt' in EXP else 'memtime'} s[{72+2*NST}:{73+2*NST}]
    s_getreg_b32 s66, hwreg(HW_REG_HW_ID)
    s_getreg_b32 s67, hwreg(HW_REG_XCC_ID)
    s_mov_b64 exec, -1
    s_lshl_b32 s65, s2, 3
    s_add_u32 s65, s65, s{W}
    s_lshl_b32 s65, s65, 6
    s_add_u32 s65, s65, {WS_ST}
    s_waitcnt lgkmcnt(0)
    v_mov_b32 v4, s68
    v_mov_b32 v5, s70
    v_mov_b32 v6, s66
    v_mov_b32 v7, s67""")
    for i in range(1, NST + 1):
        a(f"s_sub_u32 s64, s{72+2*i}, s72\nv_mov_b32 v{7+i}, s64")
    a("v_mov_b32 v2, 0\ns_mov_b64 exec, 1")
    for k in range(4):
        a(f"buffer_store_dwordx4 v[{4+4*k}:{7+4*k}], v2, s[8:11], s65 offen offset:{16*k}")

def poll_global(a, vdst, voff, soff, mask=None, sleep=1):
    l = uid("Lpoll"); d = uid("Lpd")
    a(f"s_mov_b32 s60, {SPIN_LIMIT}")
    if mask is not None: a(f"s_mov_b64 exec, {mask}")
    a(f"""{l}:
    buffer_load_dword v{vdst}, v{voff}, s[8:11], {soff} offen sc1
    s_waitcnt vmcnt(0)
    v_cmp_ne_u32 vcc, s{T}, v{vdst}
    s_cbranch_vccz {d}
    s_mov_b64 exec, vcc
    s_sleep {sleep}
    s_sub_u32 s60, s60, 1
    s_cbranch_scc0 {l}
    s_endpgm
    {d}:
    s_mov_b64 exec, -1""")

def poll_atomic(a, vdst, voff, soff, mask, sleep):
    l = uid("Lpa"); d = uid("Lpad")
    a(f"""s_mov_b32 s60, {SPIN_LIMIT}
    s_mov_b64 exec, {mask}
    {l}:
    v_mov_b32 v{vdst}, 0
    buffer_atomic_or v{vdst}, v{voff}, s[8:11], {soff} offen sc0 sc1
    s_waitcnt vmcnt(0)
    v_cmp_ne_u32 vcc, s{T}, v{vdst}
    s_cbranch_vccz {d}
    s_sleep {sleep}
    s_sub_u32 s60, s60, 1
    s_cbranch_scc0 {l}
    s_endpgm
    {d}:
    s_mov_b64 exec, -1""")

def poll_pipe(a, v0, voff, soff, mask, D=4, gap=3):
    l = uid("Lpp"); d = uid("Lppd")
    at = lambda r: f"v_mov_b32 v{r}, 0\nbuffer_atomic_or v{r}, v{voff}, s[8:11], {soff} offen sc0 sc1"
    a(f"s_mov_b32 s60, {SPIN_LIMIT}\ns_mov_b64 exec, {mask}")
    for i in range(D - 1): a(at(v0 + i) + f"\ns_sleep {gap}")
    a(f"{l}:")
    for i in range(D):
        a(at(v0 + (i + D - 1) % D))
        a(f"s_waitcnt vmcnt({D-1})\nv_cmp_ne_u32 vcc, s{T}, v{v0+i}\ns_cbranch_vccz {d}")
    a(f"""s_sub_u32 s60, s60, 1
    s_cbranch_scc0 {l}
    s_endpgm
    {d}:
    s_mov_b64 exec, -1""")

def signal(a, vt, voff, soff, mask):
    a(f"v_mov_b32 v{vt}, s{T}\ns_mov_b64 exec, {mask}\nbuffer_atomic_swap v{vt}, v{voff}, s[8:11], {soff} offen sc1\ns_mov_b64 exec, -1")

def spin_lds(a, vaddr, off, want, vt, sleep=0):
    l = uid("Lsp"); d = uid("Lsd")
    if not sleep:
        a(f"""s_mov_b32 s60, {SPIN_LIMIT}
        {l}:
        ds_read_b32 v{vt}, v{vaddr} offset:{off}
        s_sub_u32 s60, s60, 1
        s_cbranch_scc1 L_exit
        s_waitcnt lgkmcnt(0)
        v_readfirstlane_b32 s61, v{vt}
        s_cmp_ge_u32 s61, {want}
        s_cbranch_scc0 {l}""")
        return
    a(f"""s_mov_b32 s60, {SPIN_LIMIT}
    {l}:
    ds_read_b32 v{vt}, v{vaddr} offset:{off}
    s_waitcnt lgkmcnt(0)
    v_readfirstlane_b32 s61, v{vt}
    s_cmp_ge_u32 s61, {want}
    s_cbranch_scc1 {d}""")
    if sleep: a(f"s_sleep {sleep}")
    a(f"""s_sub_u32 s60, s60, 1
    s_cbranch_scc0 {l}
    s_endpgm
    {d}:""")

def lds_inc(a, vaddr, off, vone):
    a(f"s_mov_b64 exec, 1\nds_add_u32 v{vaddr}, v{vone} offset:{off}\ns_mov_b64 exec, -1")

def flag_store(a, vt, vz, soff):
    a(f"v_mov_b32 v{vt}, s{T}\ns_mov_b64 exec, 1\nbuffer_store_dword v{vt}, v{vz}, s[8:11], {soff} offen sc1\ns_mov_b64 exec, -1")

def split_neg_max(a, m, t0, t1, q6, q7):
    a(f"""v_sub_f32 v{m}, 0, v{m}
    v_cvt_pk_bf16_f32 v{t0}, v{m}, v{m}
    v_lshlrev_b32 v{t0}, 16, v{t0}
    v_sub_f32 v{t0}, v{m}, v{t0}
    v_cvt_pk_bf16_f32 v{t1}, v{m}, v{t0}
    v_and_b32 v{m}, 0xffff0000, v{t1}
    v_sub_f32 v{t0}, v{t0}, v{m}
    s_mov_b32 exec_lo, 0
    v_mov_b32 v{q6}, v{t1}
    v_cvt_pk_bf16_f32 v{q7}, v{t0}, 0
    s_mov_b32 exec_lo, -1""")

def max16_list(dst, S, init=False):
    if not init:
        return ([f"v_max3_f32 v{dst}, v{S}, v{S+1}, v{S+2}"] +
                [f"v_max3_f32 v{dst}, v{dst}, v{S+i}, v{S+i+1}" for i in range(3, 15, 2)] +
                [f"v_max_f32 v{dst}, v{dst}, v{S+15}"])
    return [f"v_max3_f32 v{dst}, v{dst}, v{S+i}, v{S+i+1}" for i in range(0, 16, 2)]

def wave_min_u32(a, v, full=True):
    for r in (1, 2, 4, 8):
        a(f"v_min_u32_dpp v{v}, v{v}, v{v} row_ror:{r} row_mask:0xf bank_mask:0xf")
    a(f"v_min_u32_dpp v{v}, v{v}, v{v} row_bcast:15 row_mask:0xa bank_mask:0xf")
    if full: a(f"v_min_u32_dpp v{v}, v{v}, v{v} row_bcast:31 row_mask:0xc bank_mask:0xf")

def rank_count(a, own, base, n, dst, t):
    a(f"v_mov_b32 v{dst}, 0\nv_mov_b32 v{t}, 0")
    for k in range(0, n, 4):
        a(f"s_waitcnt lgkmcnt({(n-k)//4-1})")
        for e in range(4): a(f"v_sub_u32 v{base+k+e}, v{own}, v{base+k+e}")
        for e in range(4):
            r = (dst, t)[e & 1]
            a(f"v_alignbit_b32 v{r}, v{r}, v{base+k+e}, 31")
    a(f"v_bcnt_u32_b32 v{dst}, v{dst}, 0\nv_bcnt_u32_b32 v{dst}, v{t}, v{dst}")

def tag(a):
    a(f"s_mul_i32 s{T}, s{T}, 0x9e3779b1\ns_add_u32 s{T}, s{T}, 0x7f4a7c15")

def next_chunk(a, s):
    a(f"s_add_u32 s{s}, s{s}, 1\ns_cmp_eq_u32 s{s}, 7\ns_cselect_b32 s{s}, 0, s{s}")

Q, O, KV, S, P = 8, 40, 104, 168, 200
XF = 104; A0, A1, WF = 40, 56, 72
VX = 216; VW = 220; VQ = 222; VC = 223; V1 = 224; VZ = 225; VT = 226; VH = 227
VA = 228; TMP = 232; XR = 240; GR = 248; VWQ = 250; VF = 251; VFS = 252; VXO = 253; VGO = 254
VI = 219
SM = "v_smfmac_f32_32x32x32_bf16"
OWN = 3
L = 35

def prologue_and_loader(a):
    MAPCODE = ""
    if "map2" in EXP:
        MAPCODE = f"s_and_b32 s26, s25, 1\ns_lshl1_add_u32 s{H}, s24, s26\ns_lshr_b32 s{J}, s25, 1\ns_lshl1_add_u32 s{ROT}, s26, s{J}\ns_add_u32 s{ROT}, s{ROT}, s24\ns_and_b32 s{ROT}, s{ROT}, 3\ns_lshl_b32 s{ROT}, s{ROT}, 1"
        if "norot" in EXP: MAPCODE += f"\ns_mov_b32 s{ROT}, 0"
    TADDR = "v_lshl_add_u32 v8, v3, 7, s58"
    if "tfull" in EXP: TADDR = "s_add_u32 s58, s58, 2048\nv_add_u32 v8, s58, v1"
    elif "t32" in EXP: TADDR = "v_and_b32 v8, 62, v3\nv_mul_u32_u24 v8, 48, v8\nv_add3_u32 v8, v8, v1, s58"
    else: TADDR = "v_and_b32 v8, 60, v3\nv_lshl_add_u32 v8, v8, 4, s58\nv_add_u32 v8, v8, v1"
    if "rot7" in EXP:
        ROTCODE = f"s_lshl1_add_u32 s{ROT}, s27, s26\ns_cmp_ge_u32 s{ROT}, 7\ns_cselect_b32 s26, 7, 0\ns_sub_u32 s{ROT}, s{ROT}, s26"
    elif "rot2" not in EXP and "norot" not in EXP and "rot23" not in EXP:
        ROTCODE = f"s_add_u32 s{ROT}, s27, s26\ns_and_b32 s{ROT}, s{ROT}, 3\ns_lshl_b32 s{ROT}, s{ROT}, 1"
    elif "norot" in EXP:
        ROTCODE = f"s_mov_b32 s{ROT}, 0"
    elif "rot23" in EXP:
        ROTCODE = f"s_add_u32 s{ROT}, s27, s26\ns_and_b32 s{ROT}, s{ROT}, 1\ns_mul_i32 s{ROT}, s{ROT}, 3"
    else:
        ROTCODE = f"s_add_u32 s{ROT}, s27, s26\ns_and_b32 s{ROT}, s{ROT}, 1\ns_lshl_b32 s{ROT}, s{ROT}, 2"
    st_begin(a)
    a(f"""s_load_dwordx4 s[4:7], s[0:1], 0
    s_load_dwordx2 s[36:37], s[0:1], 88
    s_load_dwordx2 s[38:39], s[0:1], 16
    s_load_dwordx8 s[40:47], s[0:1], 32
    s_load_dwordx4 s[48:51], s[0:1], 64
    s_cmp_ge_u32 s2, 256
    s_cbranch_scc1 L_exit
    v_lshrrev_b32 v2, 6, v0
    v_and_b32 v3, 63, v0
    s_and_b32 s24, s2, 7
    s_lshr_b32 s25, s2, 3
    v_readfirstlane_b32 s{W}, v2
    s_and_b32 s{H}, s24, 1
    s_lshl_b32 s{H}, s{H}, 3
    s_and_b32 s26, s25, 7
    s_add_u32 s{H}, s{H}, s26
    s_lshr_b32 s27, s25, 3
    s_and_b32 s{J}, s24, 6
    s_lshl1_add_u32 s{J}, s{J}, s27
    {ROTCODE}
    {MAPCODE}
    s_mov_b32 s28, {ROLE_LO:#x}
    s_mov_b32 s29, {ROLE_HI:#x}
    s_lshl_b32 s27, s{H}, 2
    s_lshr_b64 s[28:29], s[28:29], s27
    s_and_b32 s{RL}, s28, 15
    v_lshlrev_b32 v1, 4, v3
    s_mov_b32 s27, {WS_EP}
    s_cmp_lt_u32 s{W}, 4
    s_cbranch_scc1 L_main
    """)
    a(f"""s_setprio 2
    s_sub_u32 s{L}, s{W}, 4
    v_lshrrev_b32 v4, 3, v3
    v_mul_u32_u24 v5, 896, v4
    v_and_b32 v6, 7, v3
    v_lshrrev_b32 v7, 4, v3
    v_xor_b32 v7, v6, v7
    v_lshl_add_u32 v10, v7, 4, v5
    v_xor_b32 v11, 64, v10
    v_add_u32 v12, {2*6144}, v10
    v_add_u32 v13, {3*6144}, v11
    v_add_u32 v11, 6144, v11
    v_mul_u32_u24 v5, 2688, v4
    v_and_b32 v4, 2, v4
    v_lshlrev_b32 v4, 1, v4
    v_xor_b32 v4, v4, v6
    v_lshl_add_u32 v14, v4, 4, v5
    v_add_u32 v15, {8*2688-1024}, v14
    s_lshl2_add_u32 s52, s{J}, s{L}
    s_mul_i32 s58, s52, 14
    s_add_u32 s58, s58, s{RL}
    s_mul_i32 s58, s58, {BLK}
    {TADDR}
    s_mul_i32 s52, s52, {32*896}
    s_lshl_b32 s53, s{RL}, 7
    s_mul_i32 s26, s{L}, {16*2688}
    s_add_u32 s53, s53, s26
    s_add_u32 s53, s53, 896
    s_lshl_b32 s54, s{L}, 12
    s_lshl_b32 s55, s{L}, 11
    s_add_u32 s55, s55, {WT}
    s_mov_b32 s56, s{ROT}
    s_mov_b32 s57, 0
    s_mov_b32 s14, {2048*896}
    s_mov_b32 s15, 0x20000
    s_cmp_ge_u32 s{RL}, 14
    s_cselect_b32 s18, 0, {448*2688}
    s_mov_b32 s19, 0x20000
    s_waitcnt lgkmcnt(0)
    s_mov_b64 s[12:13], s[4:5]
    s_mov_b64 s[16:17], s[6:7]
    s_load_dword s{T}, s[36:37], s27""")
    st_init(a); st(a, 1)
    TPOS = ([int(x[2:]) for x in EXP if x.startswith("tp")] + [4])[0]
    TOUCH = "global_store_dwordx4 v8, v[10:13], s[36:37] sc1\nglobal_store_dwordx4 v8, v[10:13], s[36:37] offset:2048 sc1"
    if "tfull" in EXP:
        TOUCH = "\n".join(f"global_store_dwordx4 v8, v[10:13], s[36:37] offset:{1024*k-2048} sc1" for k in range(5))
    if "t32" in EXP: TOUCH = "global_store_dwordx4 v8, v[10:13], s[36:37] sc1"
    if "notouch" in EXP: TOUCH = ""
    a("s_cbranch_scc1 L_tbl")
    if TPOS == 0: a(TOUCH)
    a(f"""L_ld:
    s_mul_i32 s26, s56, {64*2688}
    s_mov_b32 m0, s55
    s_add_u32 s26, s26, s53
    s_lshl_b32 s28, s56, 7
    buffer_load_dwordx4 v14, s[16:19], s26 offen lds
    buffer_load_dwordx4 v15, s[16:19], s26 offen offset:1024 lds
    s_mov_b32 m0, s54
    s_add_u32 s28, s28, s52
    buffer_load_dwordx4 v10, s[12:15], s28 offen lds
    buffer_load_dwordx4 v11, s[12:15], s28 offen offset:1024 lds
    buffer_load_dwordx4 v12, s[12:15], s28 offen offset:2048 lds
    buffer_load_dwordx4 v13, s[12:15], s28 offen offset:3072 lds
    s_add_u32 s55, s55, 8192
    s_add_u32 s54, s54, 16384
    s_and_b32 s54, s54, 0xffff""")
    next_chunk(a, 56)
    if "tlb" in EXP:
        a(f"s_or_b32 s26, s57, s{L}\ns_cbranch_scc0 L_tlb\nL_tlb_done:")
    if "tsplit" in EXP:
        a(f"s_sub_u32 s26, s57, {TPOS-1}\ns_cmp_ge_u32 s26, 2\ns_cbranch_scc1 L_nt\ns_cmp_eq_u32 s18, 0\ns_cbranch_scc1 L_nt\nglobal_store_dwordx4 v8, v[10:13], s[36:37] sc1\nv_add_u32 v8, 2048, v8\nL_nt:")
    elif TPOS:
        a(f"s_cmp_lg_u32 s57, {TPOS-1}\ns_cbranch_scc1 L_nt")
        if "mbt" in EXP:
            a(f"""s_lshl2_add_u32 s26, s{H}, s{L}
            s_lshr_b32 s28, s{J}, 2
            s_lshl2_add_u32 s26, s26, s28
            s_lshl_b32 s26, s26, 7
            s_add_u32 s26, s26, {WS_MB}
            v_mov_b32 v4, s26
            v_mov_b32 v5, 0
            s_mov_b64 exec, 1
            global_atomic_or v4, v5, s[36:37] sc1
            s_mov_b64 exec, -1""")
        a(f"s_cmp_eq_u32 s18, 0\ns_cbranch_scc1 L_nt\n{TOUCH}\nL_nt:")
    a(f"""s_add_u32 s57, s57, 1
    s_cmp_lt_u32 s57, 3
    s_cbranch_scc1 L_ld
    s_waitcnt vmcnt(12)
    s_barrier
    s_cmp_lt_u32 s57, 7
    s_cbranch_scc1 L_ld
    """)
    a(f"""v_lshrrev_b32 v4, 2, v3
    v_mul_u32_u24 v4, 2688, v4
    v_and_b32 v5, 3, v3
    v_lshl_add_u32 v16, v5, 4, v4
    s_mov_b32 s18, {448*2688}
    s_mul_i32 s53, s{H}, 56
    s_and_b32 s53, s53, 0xfffffff0
    s_mul_i32 s26, s{L}, {16*2688}
    s_add_u32 s53, s53, s26
    s_lshl_b32 s55, s{L}, 10
    s_add_u32 s55, s55, {WQ}""")
    for i in range(NQ1):
        a(f"""s_mul_i32 s26, s56, {64*2688}
        s_add_u32 m0, s55, {i*4096}
        s_add_u32 s26, s26, s53
        buffer_load_dwordx4 v16, s[16:19], s26 offen lds""")
        if i < NQ1 - 1: next_chunk(a, 56)
        if i == 1: a("s_waitcnt vmcnt(8)\ns_barrier")
        if i == 3: a("s_waitcnt vmcnt(4)\ns_barrier")
    st(a, 2)
    a("s_branch L_service")
    a(f"""L_tbl:
    s_bitcmp1_b32 s{L}, 0
    s_cselect_b64 s[20:21], s[48:49], s[40:41]
    s_cselect_b32 s26, 1024, 0
    s_movk_i32 s22, 896
    s_mov_b32 s23, 0x20000
    s_add_u32 m0, s26, {RT}
    s_lshl_b32 s28, s{ROT}, 7
    v_add_u32 v4, s28, v1
    v_subrev_u32 v6, 896, v4
    v_min_u32 v4, v4, v6
    buffer_load_dwordx4 v4, s[20:23], 0 offen lds
    s_branch L_ld""")
    if "tlb" in EXP:
        a("L_tlb:")
        if "tlbR" in EXP: a(f"s_cmp_lt_u32 s{RL}, 14\ns_cbranch_scc1 L_tlb_done")
        for off in (0, 2 << 20, 4 << 20):
            a(f"s_mov_b32 s26, {off + 4032}\ns_load_dword s66, s[36:37], s26")
        for p in (42, 44, 38, 46, 50):
            a(f"s_load_dword s66, s[{p}:{p+1}], 0")
        a("s_branch L_tlb_done")

def main_wave(a):
    a.label("L_main")
    if "twait" in EXP: st(a, 11)
    if "nocodepf" not in EXP:
        a(f"""s_cmp_lg_u32 s{W}, 0
        s_cbranch_scc1 L_nopf
        s_getpc_b64 s[28:29]
        L_pc:
        s_and_b32 s26, s25, 3
        s_lshl_b32 s26, s26, 13
        v_lshl_add_u32 v4, v3, 7, s26
        v_min_u32 v4, L_code_end-L_pc, v4
        global_load_dword v255, v4, s[28:29]
        L_nopf:""")
    a(f"""s_setprio 1
    v_and_b32 v{VT}, 31, v3
    v_lshrrev_b32 v{VH}, 5, v3
    v_mov_b32 v{V1}, 1
    v_mov_b32 v{VZ}, 0
    v_mov_b32 v{VC}, {CNT}
    v_lshrrev_b32 v4, 2, v1
    v_add_u32 v4, {UPDI}, v4
    v_mov_b32 v6, -1
    s_mov_b32 exec_hi, 0
    ds_write_b32 v4, v6
    v_and_b32 v6, 7, v3
    v_cmp_eq_u32 vcc, 4, v6
    v_mov_b32 v7, {KVB+1}
    v_cndmask_b32 v6, 0, v7, vcc
    ds_write_b32 v4, v6 offset:{CNT-UPDI+C_R}
    s_mov_b32 exec_lo, 0xffff
    ds_write_b32 v4, v{VZ} offset:{CNT-UPDI}
    s_mov_b64 exec, -1
    v_lshrrev_b32 v4, 1, v{VT}
    v_and_b32 v4, 7, v4
    v_xor_b32 v4, v4, v{VH}
    v_lshlrev_b32 v4, 4, v4
    v_lshl_add_u32 v4, v{VT}, 7, v4
    s_lshl_b32 s26, s{W}, 12
    v_add_u32 v{VX}, s26, v4
    v_xor_b32 v{VX+1}, 32, v{VX}
    v_xor_b32 v{VX+2}, 64, v{VX}
    v_xor_b32 v{VX+3}, 96, v{VX}
    v_bfe_u32 v4, v3, 2, 2
    v_lshl_add_u32 v12, v{VH}, 3, v4
    v_and_b32 v6, 3, v3
    v_and_b32 v7, 1, v3
    v_bfe_u32 v8, v3, 1, 1
    v_lshl_add_u32 v7, v7, 1, v8
    v_bfe_u32 v8, v3, 4, 1
    v_lshl_add_u32 v9, v8, 2, v7
    v_lshl_add_u32 v10, v8, 2, v6
    s_cmp_lt_u32 s{RL}, 7
    s_cselect_b64 vcc, -1, 0
    v_cndmask_b32 v10, v10, v9, vcc
    v_lshlrev_b32 v11, 7, v12
    v_lshl_add_u32 v11, v10, 3, v11
    v_lshrrev_b32 v4, 1, v4
    v_lshl_add_u32 v11, v4, 6, v11
    v_add_u32 v{VW}, {WT}, v11
    v_xor_b32 v{VW+1}, 64, v{VW}
    ; Wq piece: even h: u ; odd h: u<6 ? u+2 : 7-u
    v_add_u32 v10, 2, v9
    v_sub_u32 v11, 7, v9
    v_cmp_gt_u32 vcc, 6, v9
    v_cndmask_b32 v10, v11, v10, vcc
    s_bitcmp1_b32 s{H}, 0
    s_cselect_b64 vcc, -1, 0
    v_cndmask_b32 v10, v9, v10, vcc
    v_lshlrev_b32 v11, 6, v12
    v_lshl_add_u32 v11, v10, 3, v11
    v_add_u32 v{VQ}, {WQ}, v11
    v_lshrrev_b32 v4, 2, v3
    v_mul_u32_u24 v4, 2688, v4
    v_lshl_add_u32 v{VWQ}, v6, 4, v4
    s_cmp_ge_u32 s{RL}, 7
    s_cselect_b32 s26, 7, 0
    s_cselect_b32 s29, 2, 0
    s_sub_u32 s26, s{RL}, s26
    s_mul_i32 s28, s26, {64*2341}
    s_lshr_b32 s28, s28, 16
    v_add_u32 v4, s28, v6
    v_mul_u32_u24 v7, 28, v4
    v_lshrrev_b32 v7, 6, v7
    v_cmp_ge_u32 s[64:65], s26, v7
    v_cmp_ne_u32 vcc, s26, v7
    s_and_b32 s28, s{J}, 12
    s_add_u32 s29, s28, s29
    v_mov_b32 v7, s29
    v_addc_co_u32 v7, vcc, 0, v7, vcc
    s_and_b32 s28, s{J}, 3
    v_lshl_add_u32 v4, v4, 2, s28
    v_bfe_u32 v8, v3, 2, 2
    v_lshl_add_u32 v4, v4, 2, v8
    v_lshlrev_b32 v4, 7, v4
    v_lshl_add_u32 v{VFS}, v7, 2, v4
    s_and_b32 s64, s64, 0xffff
    s_cmp_ge_u32 s{RL}, 14
    s_cselect_b32 s64, 0, s64
    s_mov_b32 s65, 0
    s_lshl_b32 s28, s{W}, 5
    v_add_u32 v{VF}, s28, v{VC}
    s_lshl_b32 s28, s{J}, 2
    ; output tile: qb3 = 4j + (h>>2) ; byte col = (4*(h&3) + w)*56
    s_lshr_b32 s58, s{H}, 2
    s_add_u32 s58, s58, s28
    s_and_b32 s59, s{H}, 3
    s_lshl2_add_u32 s59, s59, s{W}
    s_mul_i32 s59, s59, 56
    s_lshl_b32 s28, s58, 5
    v_add_u32 v4, s28, v{VT}
    v_mul_u32_u24 v{VXO}, 896, v4
    v_lshl_add_u32 v{VXO}, v{VH}, 4, v{VXO}
    v_lshlrev_b32 v{VGO}, 3, v4
    s_waitcnt lgkmcnt(0)
    """)
    st_init(a)
    srd(a, 8, 36, (1 << 28) - WSBASE)
    srd(a, 16, 6, 448 * 2688)
    srd(a, 12, 4, 2048 * 896)
    if "wqpf" in EXP:
        a(f"""s_cmp_lg_u32 s{W}, 1
        s_cbranch_scc1 L_nopf2
        v_lshrrev_b32 v4, 2, v3
        v_min_u32 v4, 13, v4
        v_mul_u32_u24 v4, 2688, v4
        v_and_b32 v6, 3, v3
        v_lshl_add_u32 v4, v6, 7, v4
        s_mul_i32 s26, s25, {14*2688}
        s_and_b32 s28, s24, 1
        s_mul_i32 s28, s28, 384
        s_add_u32 s26, s26, s28
        buffer_load_dword v5, v4, s[16:19], s26 offen
        L_nopf2:""")
    if "wopfS" in EXP:
        srd(a, 20, 38, 448 * 896)
        a(f"""s_cmp_lg_u32 s{W}, 2
        s_cbranch_scc1 L_nopf3
        s_mul_i32 s26, s2, {13*128}
        v_lshl_add_u32 v4, v3, 7, s26
        s_mov_b64 exec, 0x1fff
        buffer_load_dword v5, v4, s[20:23], 0 offen
        s_mov_b64 exec, -1
        L_nopf3:""")
    a(f"""s_mul_i32 s62, s{H}, 56
    s_and_b32 s62, s62, 0xfffffff0
    s_mul_i32 s26, s{W}, {16*2688}
    s_add_u32 s62, s62, s26
    s_lshl_b32 s63, s{W}, 10
    s_add_u32 s63, s63, {WQ}
    s_lshl2_add_u32 s35, s{J}, s{W}
    s_mul_i32 s52, s35, 14
    s_add_u32 s52, s52, s{RL}
    s_mul_i32 s52, s52, {BLK}
    s_add_u32 s53, s52, 4096
    v_and_b32 v9, 19, v{VT}
    v_bfe_u32 v4, v{VT}, 2, 1
    v_lshl_add_u32 v9, v4, 3, v9
    v_bfe_u32 v4, v{VT}, 3, 1
    v_lshl_add_u32 v9, v4, 2, v9
    s_lshr_b32 s26, s{H}, 1
    s_mul_i32 s26, s26, 7
    s_and_b32 s28, s{H}, 1
    s_lshl2_add_u32 s29, s28, s26
    v_add_u32 v4, s29, v{VH}
    v_lshrrev_b32 v6, 3, v4
    v_mul_u32_u24 v6, {BLK-4096}, v6
    v_lshl_add_u32 v6, v4, 9, v6
    v_lshl_add_u32 v{VA}, v9, 4, v6
    v_add_u32 v4, 2, v4
    v_lshrrev_b32 v6, 3, v4
    v_mul_u32_u24 v6, {BLK-4096}, v6
    v_lshl_add_u32 v6, v4, 9, v6
    s_add_u32 s26, s26, 3
    s_lshr_b32 s29, s26, 3
    s_mul_i32 s29, s29, {BLK}
    s_and_b32 s26, s26, 1
    s_lshl_b32 s26, s26, 9
    s_add_u32 s29, s29, s26
    s_add_u32 s29, s29, 4096
    v_mov_b32 v7, s29
    v_and_b32 v4, s28, v{VH}
    v_cmp_eq_u32 vcc, 1, v4
    v_cndmask_b32 v6, v6, v7, vcc
    v_lshl_add_u32 v{VA+1}, v9, 4, v6
    s_mul_i32 s26, s{H}, 28
    v_add_u32 v4, s26, v{VT}
    v_lshrrev_b32 v6, 6, v4
    v_mul_u32_u24 v6, {BLK}, v6
    v_bfe_u32 v7, v4, 5, 1
    v_lshl_add_u32 v6, v7, 11, v6
    v_and_b32 v4, 31, v4
    v_lshl_add_u32 v6, v4, 4, v6
    v_lshl_add_u32 v6, v{VH}, 9, v6
    v_add_u32 v6, {7*BLK}, v6
    v_add_u32 v8, 1024, v6
    s_lshr_b32 s26, s26, 6
    s_mul_i32 s26, s26, {BLK}
    s_add_u32 s26, s26, {7*BLK + 4096 - 28*16}
    v_lshl_add_u32 v7, v{VT}, 4, s26
    v_cmp_le_u32 vcc, 28, v{VT}
    v_cndmask_b32 v{VA+2}, v6, v7, vcc
    v_cndmask_b32 v{VA+3}, v8, v7, vcc
    s_cmp_ge_u32 s{RL}, 14
    s_cbranch_scc1 L_roleR
    s_cmp_ge_u32 s{RL}, 7
    s_cbranch_scc1 L_roleV""")

    def gemm(kind):
        if "twait" in EXP:
            st(a, 10)
        def reads(c, s):
            k = 4 * c + s
            a(f"ds_read_b128 {vr(XF+4*k,4)}, v{VX+s} offset:{(c&3)*16384}")
            f = WF + 8 * s
            if kind == "R":
                a(f"ds_read_b128 {vr(f,4)}, v{VW} offset:{k*32}")
            else:
                for n in range(2):
                    a(f"ds_read_b64_tr_b16 {vr(f+4*n,2)}, v{VW+n} offset:{k*2048}")
                    a(f"ds_read_b64_tr_b16 {vr(f+4*n+2,2)}, v{VW+n} offset:{k*2048+512}")
        def mfmas(c, s, ns=None):
            k = 4 * c + s
            f = WF + 8 * s
            for n in (ns or range(1 if kind == "R" else 2)):
                acc = (A0, A1)[n]
                cc = "0" if k == 0 else vr(acc, 16)
                if kind == "V": a(f"{MF} {vr(acc,16)}, {vr(XF+4*k,4)}, {vr(f+4*n,4)}, {cc}")
                else:           a(f"{MF} {vr(acc,16)}, {vr(f+4*n,4)}, {vr(XF+4*k,4)}, {cc}")
        per = 2 if kind == "R" else 5
        for c in range(7):
            a("s_barrier")
            if c == 0: st(a, 1)
            if c == 6: st(a, 2)
            if STAMP and c in (0, 6): a("s_waitcnt lgkmcnt(0)")
            reads(c, 0); reads(c, 1)
            for s in range(4):
                if s < 2: reads(c, s + 2)
                a(f"s_waitcnt lgkmcnt({min(3 - s, 2) * per})")
                if c == 6 and kind != "R" and s >= 2: mfmas(c, s, (0,))
                else: mfmas(c, s)
            if c == 6 and kind != "R":
                mfmas(c, 2, (1,)); mfmas(c, 3, (1,))

    PK = 8
    MS = 20
    a(f"""v_add_u32 v4, s{RL}, v{VH}""")
    for i in range(4):
        a(f"""v_cmp_eq_u32 vcc, {3-2*i}, v4
        v_cmp_eq_u32 s[{MS+2*i}:{MS+1+2*i}], {10-2*i}, v4
        s_or_b64 s[{MS+2*i}:{MS+1+2*i}], s[{MS+2*i}:{MS+1+2*i}], vcc""")
    for e in range(4): a(f"v_mov_b32 v{TMP+e}, 0x3f803f80")
    a(f"""s_or_b64 s[28:29], s[{MS}:{MS+1}], s[{MS+2}:{MS+3}]
    s_or_b64 s[54:55], s[{MS+4}:{MS+5}], s[{MS+6}:{MS+7}]
    s_or_b64 s[54:55], s[54:55], s[28:29]
    s_mov_b64 exec, 0
    s_branch L_epi
    L_backK:
    s_mov_b64 exec, -1""")
    gemm("K")
    a("s_branch L_epi")
    a.label("L_roleR")
    if "pfx" in EXP:
        C0 = 1 if "pf1" in EXP else 2
        a(f"""v_mul_u32_u24 v4, 896, v{VT}
        v_lshl_add_u32 v4, v{VH}, 7, v4
        s_mul_i32 s26, s35, {32*896}
        v_lshrrev_b32 v6, 3, v{VT}
        v_mul_u32_u24 v6, 2688, v6
        v_and_b32 v7, 7, v3
        v_min_u32 v7, 6, v7
        v_lshl_add_u32 v6, v7, 7, v6
        v_mul_u32_u24 v7, {64*2688}, v{VH}
        v_add_u32 v6, v6, v7
        s_and_b32 s28, s35, 15
        s_mul_i32 s28, s28, {4*2688}
        s_and_b32 s29, s24, 1
        s_mul_i32 s29, s29, 896
        s_add_u32 s28, s28, s29
        s_add_u32 s28, s28, {896 + C0*64*2688}""")
        for c in range(C0, 7, 2):
            if c == 6: a("s_mov_b32 exec_hi, 0")
            a(f"""buffer_load_dword v5, v4, s[12:15], s26 offen offset:{128*c}
            buffer_load_dword v5, v6, s[16:19], s28 offen
            s_add_u32 s28, s28, {128*2688}""")
        a("s_mov_b64 exec, -1")
    a(f"""v_and_b32 v4, 1, v3
    v_lshlrev_b32 v4, 10, v4
    v_lshl_add_u32 v4, v{VH}, 4, v4
    v_add_u32 v{VW}, {RT}, v4
    s_lshl_b32 s26, s{W}, 7
    s_add_u32 s26, s26, {KEYS}
    v_lshl_add_u32 v12, v{VT}, 2, s26
    v_lshl_add_u32 v13, v{VH}, 6, s26""")
    gemm("R")
    a(f"""s_cmp_lg_u32 s{RL}, 14
    s_cbranch_scc1 L_pub
    s_mov_b32 exec_hi, 0
    s_nop 9
    v_cvt_pk_bf16_f32 v4, v{A0}, v{A0+1}
    v_and_b32 v5, 0xffff0000, v4
    v_lshlrev_b32 v4, 16, v4
    v_ashrrev_i32 v6, 31, v4
    v_or_b32 v6, 0x80000000, v6
    v_xor_b32 v6, v6, v4
    v_lshrrev_b32 v6, 16, v6
    v_lshlrev_b32 v6, 11, v6
    v_cmp_u_f32 vcc, v4, v4
    v_cndmask_b32 v6, v6, 0, vcc
    s_lshl_b32 s26, s35, 5
    v_add_u32 v7, s26, v{VT}
    v_sub_u32 v8, 0x7ff, v7
    v_or_b32 v6, v6, v8
    v_lshlrev_b32 v9, 3, v7
    ds_write_b32 v12, v6
    s_mov_b32 exec_hi, -1
    ds_read_b32 v6, v12
    ds_read_b128 v[16:19], v13
    ds_read_b128 v[20:23], v13 offset:16
    ds_read_b128 v[24:27], v13 offset:32
    ds_read_b128 v[28:31], v13 offset:48""")
    rank_count(a, 6, 16, 16, 14, 15)
    a(f"""v_mov_b32 v15, v14
    s_lshl_b32 s26, s{W}, 5
    s_add_u32 s26, s26, {CAND}
    v_permlane32_swap_b32 v14, v15
    v_add_u32 v14, v14, v15
    v_cmp_gt_u32 vcc, 8, v14
    v_lshl_add_u32 v14, v14, 2, s26
    s_mov_b64 exec, vcc
    ds_write_b32 v14, v6
    s_mov_b64 exec, 1
    ds_add_u32 v{VC}, v{V1} offset:{C_K}
    s_mov_b32 exec_lo, -1
    v_mul_f32 v5, {NLOG2E:#x}, v5
    v_exp_f32 v5, v5
    v_add_f32 v5, 1.0, v5
    v_rcp_f32 v5, v5
    v_cvt_pk_bf16_f32 v5, v5, v5
    v_lshlrev_b32 v10, 16, v5
    s_mov_b32 exec_hi, -1
    s_branch L_pub
    """)
    a.label("L_roleV")
    a(f"""v_cmp_eq_u32 vcc, 0, v3
    v_mov_b32 v7, 0x3f803f80
    v_cndmask_b32 v{TMP}, 0, v7, vcc""")
    for e in range(1, 4): a(f"v_mov_b32 v{TMP+e}, v{TMP}")
    for i in range(4): a(f"s_mov_b64 s[{MS+2*i}:{MS+1+2*i}], 0")
    a("s_mov_b64 s[54:55], 0xff")
    gemm("V")
    a("L_epi:\ns_cbranch_execz L_backK")
    for i in range(4):
        acc = (A0, A1)[i >> 1] + 8 * (i & 1)
        p = PK + 4 * i
        for e in (2, 3, 0, 1): a(f"v_cvt_pk_bf16_f32 v{p+e}, v{acc+2*e}, v{acc+2*e+1}")
        a(f"""s_mov_b64 exec, s[{MS+2*i}:{MS+1+2*i}]
        v_swap_b32 v{TMP}, v{p+2}
        v_swap_b32 v{TMP+1}, v{p+3}
        s_mov_b64 exec, -1
        buffer_store_dwordx4 {vr(p,4)}, v1, s[8:11], s52 offen offset:{1024*i} sc1""")
    a(f"s_mov_b64 exec, s[54:55]\nbuffer_store_dwordx4 {vr(TMP,4)}, v1, s[8:11], s53 offen sc1\ns_mov_b64 exec, -1")
    a.label("L_pub")
    diag_start(a)
    st(a, 3)
    a(f"s_add_u32 s56, s{ROT}, {NQ1}\ns_cmp_ge_u32 s56, 7\ns_cselect_b32 s26, 7, 0\ns_sub_u32 s56, s56, s26")
    for i in range(NQ1, 7):
        a(f"""s_mul_i32 s26, s56, {64*2688}
        s_add_u32 m0, s63, {i*4096}
        s_add_u32 s26, s26, s62
        buffer_load_dwordx4 v{VWQ}, s[16:19], s26 offen lds""")
        if i < 6: next_chunk(a, 56)
    QO = Q + 8 * OWN
    SK = TMP
    a(f"""s_mov_b64 s[16:17], s[36:37]
    s_mov_b32 s18, {KVB}
    s_mov_b32 s57, 0""")
    def ldK(b, soff, base=None):
        r = KV + 16 * b if base is None else base
        return [f"buffer_load_dwordx4 {vr(r,4)}, v{VA}, s[16:19], {soff} offen sc1",
                f"buffer_load_dwordx4 {vr(r+4,4)}, v{VA+1}, s[16:19], {soff} offen sc1"]
    def ldV(b, soff):
        return [f"buffer_load_dwordx4 {vr(KV+16*b+8,4)}, v{VA+2}, s[16:19], {soff} offen sc1",
                f"buffer_load_dwordx4 {vr(KV+16*b+12,4)}, v{VA+3}, s[16:19], {soff} offen sc1"]
    def try_loads(block=False):
        d = uid("Ltl"); l = uid("Ltr"); g = uid("Ltg")
        a(f"s_cmp_eq_u32 s57, 2\ns_cbranch_scc1 {d}")
        if block: a(f"s_mov_b32 s60, {SPIN_LIMIT}\n{l}:\ns_sub_u32 s60, s60, 1\ns_cbranch_scc1 L_exit")
        a(f"""ds_read_b32 v4, v{VF} offset:{C_R}
        ds_read_b32 v5, v{VC} offset:{C_M}
        s_cmp_eq_u32 s57, 1
        s_waitcnt lgkmcnt(0)
        v_readfirstlane_b32 s56, v4
        s_cbranch_scc1 {g}
        v_readfirstlane_b32 s29, v5
        s_sub_u32 s29, s29, 1
        s_cbranch_scc1 {l if block else d}
        s_mov_b32 s57, 1""")
        for x in ldK(0, "s29", SK): a(x)
        a(f"""{g}:
        s_sub_u32 s27, s56, 1
        s_cbranch_scc1 {l if block else d}
        s_add_u32 s54, s56, {TS-1}
        s_add_u32 s55, s56, {2*TS-1}
        s_add_u32 s56, s56, {3*TS-1}
        s_mov_b32 s57, 2""")
        st(a, 6)
        for x in ldK(0, "s27") + ldV(0, "s27") + ldK(1, "s54") + ldV(1, "s54") + ([] if "up4" not in EXP else ldK(2, "s55") + ldV(2, "s55") + ldK(3, "s56")): a(x)
        a(f"{d}:")
    def qreads(k):
        f = WF + 4 * (k & 7)
        a(f"ds_read_b64_tr_b16 {vr(f,2)}, v{VQ} offset:{k*1024}\nds_read_b64_tr_b16 {vr(f+2,2)}, v{VQ} offset:{k*1024+256}")
    def publish():
        a(f"""s_mov_b32 s28, {WS_MB}
        v_readfirstlane_b32 s{T}, v11
        v_mov_b32 v6, v11
        s_mov_b64 exec, 1
        s_waitcnt vmcnt({7-NQ1})""")
        st(a, 4)
        a(f"""ds_add_rtn_u32 v4, v{VC}, v{V1} offset:{C_D}
        s_waitcnt lgkmcnt(0)
        v_cmp_eq_u32 vcc, 3, v4
        s_cbranch_vccz L_notlast
        s_mov_b64 exec, s[64:65]
        s_cbranch_execz L_notlast
        buffer_atomic_swap v6, v{VFS}, s[8:11], s28 offen sc1
        s_waitcnt vmcnt(1)
        s_branch L_published
        L_notlast:
        s_waitcnt vmcnt(0)
        s_cmp_lg_u32 s{RL}, 14
        s_cbranch_scc1 L_published
        s_mov_b32 s26, {WS_G}
        s_mov_b32 exec_lo, -1
        buffer_store_dwordx2 v[10:11], v9, s[8:11], s26 offen sc1
        L_published:""")
        a("s_mov_b64 exec, -1")
    def qgemm(lo, hi, cnt):
        spin_lds(a, VC, cnt, 4, 4)
        if not lo: a(f"ds_read_b32 v11, v{VC} offset:{C_T}")
        for k in range(lo, min(hi, lo + 6)): qreads(k)
        for k in range(lo, hi):
            if k + 6 < hi: qreads(k + 6)
            a(f"s_waitcnt lgkmcnt({2*(min(hi-1,k+6)-k)})")
            a(f"{MF} {vr(A0,16)}, {vr(WF+4*(k&7),4)}, {vr(XF+4*k,4)}, {'0' if k==0 else vr(A0,16)}")
    def qepi():
        for i in range(8): a(f"v_mov_b32 v{KV+56+i}, 0")
        a(f"""s_lshl_b32 s26, s{W}, 11
        s_add_u32 s26, s26, {QX}
        v_add_u32 v5, s26, v1
        s_mov_b32 s62, {QSCALE:#x}
        s_mov_b32 s63, {QSCALE:#x}""")
        for i in range(8): a(f"v_pk_mul_f32 {vr(A0+2*i,2)}, {vr(A0+2*i,2)}, s[62:63]")
        for i in range(8): a(f"v_cvt_pk_bf16_f32 v{QO+i}, v{A0+2*i}, v{A0+2*i+1}")
        a(f"""s_mov_b32 exec_lo, 0
        v_mov_b32 v{QO+6}, 0
        v_mov_b32 v{QO+7}, 0
        s_mov_b32 exec_lo, -1
        ds_write_b128 v5, {vr(QO,4)}
        ds_write_b128 v5, {vr(QO+4,4)} offset:1024""")
        lds_inc(a, VC, C_X, V1)
        for i in range(0, 48, 2): a(f"v_pk_mul_f32 {vr(O+i,2)}, {vr(KV+56,2)}, {vr(KV+56,2)}")
    qgemm(0, 4 * NQ1, C_Q1)
    if NQ1 == 7 and "qfirst" in EXP:
        st(a, 5)
        qepi(); publish(); try_loads()
    elif NQ1 == 7:
        st(a, 5)
        publish(); try_loads(); qepi()
    else:
        publish()
        lds_inc(a, VC, C_Q2, V1)
        try_loads()
        qgemm(4 * NQ1, 28, C_Q2)
        st(a, 5)
        try_loads()
        qepi()
    spin_lds(a, VC, C_X, 4, 4)
    for i in range(3):
        a(f"""s_add_u32 s26, s{W}, {i+1}
        s_and_b32 s26, s26, 3
        s_lshl_b32 s26, s26, 11
        s_add_u32 s26, s26, {QX}
        v_add_u32 v5, s26, v1
        ds_read_b128 {vr(Q+8*i,4)}, v5
        ds_read_b128 {vr(Q+8*i+4,4)}, v5 offset:1024""")
    for i in range(3):
        a(f"""s_add_u32 s26, s{W}, {i+1}
        s_and_b32 s26, s26, 3
        s_mul_i32 s26, s26, 12288
        s_add_u32 s26, s26, {CB + i*4096}
        v_add_u32 v{VX+i}, s26, v1""")
    a(f"s_mul_i32 s26, s{W}, 12288\ns_add_u32 s26, s26, {CB}\nv_add_u32 v2, s26, v1")
    a(f"v_mov_b32 v{VI}, 0xdddddddd")
    try_loads(block=True)
    def QK(u, m):
        kt, qs = (u >> 2) & 3, u & 3
        s = S + 16 * (u & 1)
        c = "0" if m == 0 else vr(s, 16)
        return f"{MF} {vr(s,16)}, {vr(KV+16*kt+4*m,4)}, {vr(Q+8*qs+4*m,4)}, {c}"
    def PV(u, m):
        kt, qs = (u >> 2) & 3, u & 3
        return f"{SM} {vr(O+16*qs,16)}, {vr(KV+16*kt+8+4*m,4)}, {vr(S+16*(u&1)+8*m,8)}, v{VI}"
    SS = [P, S + 16, S, O + 48]
    def samp(i, m): return f"{MF} {vr(SS[i],16)}, {vr(SK+4*m,4)}, {vr(Q+8*i+4*m,4)}, {'0' if m == 0 else vr(SS[i],16)}"
    def mx(i):
        for x in max16_list(4, SS[i]): a(x)
        a(f"s_mov_b32 exec_lo, 0\nv_cvt_pk_bf16_f32 v{Q+8*i+6}, -v4, 0\ns_mov_b32 exec_lo, -1")
    a(f"s_waitcnt vmcnt({8 if 'up4' not in EXP else 14}) lgkmcnt(0)")
    for i in (0, 2): a(samp(i, 0)); a(samp(i, 1))
    a(samp(1, 0)); a(samp(1, 1))
    mx(0)
    a(samp(3, 0)); a(samp(3, 1))
    mx(2)
    a(f"s_waitcnt vmcnt({6 if 'up4' not in EXP else 12})")
    a(QK(0, 0)); a(QK(0, 1))
    if "up4" not in EXP:
        for x in ldK(2, "s55") + ldV(2, "s55") + ldK(3, "s56"): a(x)
    mx(1)
    for i in range(0, 8, 2): a(f"v_pk_mul_f32 {vr(S+24+i,2)}, {vr(KV+56,2)}, {vr(KV+56,2)}")
    mx(3)
    for i in range(48, 64, 2): a(f"v_pk_mul_f32 {vr(O+i,2)}, {vr(KV+56,2)}, {vr(KV+56,2)}")
    st(a, 7)
    a(f"s_mov_b32 s57, 2\ns_mov_b32 s53, {WS_G}\ns_waitcnt vmcnt(10)")
    def substep(u, ex, last=False):
        s = S + 16 * (u & 1)
        e = lambda lo, hi: [f"v_exp_f32 v{s+i}, v{s+i}" for i in range(lo, hi)]
        q0, q1 = ([], []) if last else ([QK(u+1, 0)], [QK(u+1, 1)])
        c = (2, 6, 10, 14) if "even" in EXP else (2, 5, 8, 14)
        seq = (e(0, c[0]) + [PV(u-1, 1)] + ex[0] + e(c[0], c[1]) + q0 + ex[1] + e(c[1], c[2]) + q1 + ex[2] +
               e(c[2], c[3]) + [PV(u, 0)] + ex[3] + e(c[3], 16))
        for x in seq: a(x)
    a(".p2align 6")
    a.label("L_loop")
    for u in range(16):
        kt, qs = u >> 2, u & 3
        ex = [[], [], [], []]
        if qs == 0:
            l = ldV((kt + 3) & 3, "s56")
            ex[0] = [l[0]]; ex[3] = [l[1]]
        if qs == 1: ex[1] = [f"s_add_u32 s56, s56, {TS}"]
        if u == 0: ex[1] = [f"ds_read_b32 v7, v{VF} offset:{C_R+4}"]
        if u == 1:
            ex[0] = ["s_waitcnt lgkmcnt(0)", "v_readfirstlane_b32 s56, v7"]
            ex[1] = ["s_sub_u32 s56, s56, 1"]
            ex[2] = ["s_cbranch_scc1 L_nextwait", "L_nextok:", f"v_add_u32 v{VF}, 4, v{VF}"]
        if qs == 2: ex[3] = ["s_waitcnt vmcnt(10)"]
        if qs == 3:
            l = ldK(kt, "s56")
            ex[0] = [l[0]]; ex[3] = [l[1], "s_waitcnt vmcnt(10)"]
        if u == GA and "defer" not in EXP: ex[2] = ex[2] + [f"ds_add_u32 v{VC}, v{V1} offset:{C_A}"]
        if u == 15: ex[2] = ["s_sub_u32 s57, s57, 1"]
        substep(u, ex)
    a("s_cbranch_scc0 L_loop")
    wr = lambda i, k: f"ds_write_b128 v{VX+i}, {vr(O+16*i+4*k,4)} offset:{k*1024}"
    for u in range(16):
        ex = [[], [], [], []]
        if u == 0:
            l = ldV(3, "s56"); ex[0] = [l[0]]; ex[3] = [l[1]]
        if u == 1:
            ex[0] = [f"buffer_load_dwordx2 {vr(GR,2)}, v{VGO}, s[8:11], s53 offen sc1"]
            ex[1] = [f"buffer_load_dwordx4 {vr(XR,4)}, v{VXO}, s[12:15], s59 offen"]
            if "defer" not in EXP: ex[2] = [f"ds_add_u32 v{VC}, v{V1} offset:{C_Z}"]
            ex[3] = [f"buffer_load_dwordx4 {vr(XR+4,4)}, v{VXO}, s[12:15], s59 offen offset:32"]
        w_ = {2: 13, 3: 11, 6: 9, 7: 7, 10: 5, 11: 0}
        if u in w_: ex[3] = [f"s_waitcnt vmcnt({w_[u]})"]
        if u == 13: ex[2] = [wr(0, 0)]; ex[3] = [wr(0, 1)]
        if u == 14:
            st(a, 8)
            if EXP & {"d1", "d2", "d3"}: a(f"ds_add_u32 v{VC}, v{V1} offset:{C_X}")
            if "defer" in EXP: a(f"ds_add_u32 v{VC}, v{V1} offset:{C_Z}\nds_add_u32 v{VC}, v{V1} offset:{C_A}\nds_add_u32 v{VC}, v{V1} offset:{C_A}")
            ex = [[wr(0, 2)], [wr(0, 3)], [wr(1, 0)], [wr(1, 1)]]
        if u == 15: ex = [[wr(1, 2)], [wr(1, 3)], [], [wr(2, 0)]]
        substep(u, ex, last=(u == 15))
    a(wr(2, 1)); a(PV(15, 1)); a(wr(2, 2)); a(wr(2, 3))
    lds_inc(a, VC, C_C, V1)
    srd(a, 20, 50, 2048 * 896)
    TT = S
    OO = O + 16 * OWN
    a(f"""s_lshl_b32 s28, s35, 4
    s_add_u32 s28, s28, s{H}
    s_lshr_b32 s56, s28, 2
    s_lshl_b32 s56, s56, 5
    s_and_b32 s26, s{H}, 3
    s_add_u32 s56, s56, s26
    s_lshl_b32 s56, s56, 2
    s_add_u32 s56, s56, {WS_OFL}
    s_lshl_b32 s52, s28, 11
    s_add_u32 s52, s52, {WS_O}
    s_mov_b32 s57, 0""")
    spin_lds(a, VC, C_C, 6, 7)
    for k in range(12): a(f"ds_read_b128 {vr(TT+4*k,4)}, v2 offset:{k*1024}")
    for i in range(3):
        a(f"s_waitcnt lgkmcnt({8-4*i})")
        for k in (6, 7, 0, 1, 2, 3, 4, 5): a(f"v_pk_add_f32 {vr(OO+2*k,2)}, {vr(OO+2*k,2)}, {vr(TT+16*i+2*k,2)}")
    a.label("L_fin")
    a(f"""v_mov_b32 v5, v{OO+12}
    v_mov_b32 v4, v{OO+12}
    s_mov_b32 exec_lo, 0
    v_mov_b32 v{OO+12}, 0
    s_mov_b32 exec_lo, -1
    v_permlane32_swap_b32 v5, v4
    v_rcp_f32 v6, v4
    s_mov_b32 s28, 0x2b800000
    s_mov_b32 s29, 0x6c800000
    v_cmp_nle_f32 s[54:55], s28, v4
    v_cmp_nge_f32 s[62:63], s29, v4
    v_pk_add_f32 v[4:5], {vr(OO,2)}, {vr(OO+2,2)}""")
    for k in range(2, 8): a(f"v_pk_add_f32 v[4:5], v[4:5], {vr(OO+2*k,2)}")
    a(f"""v_add_f32 v4, v4, v5
    s_movk_i32 s28, 0x207
    v_cmp_class_f32 vcc, v4, s28
    s_or_b64 s[54:55], s[54:55], s[62:63]""")
    for k in range(8): a(f"v_pk_mul_f32 {vr(OO+2*k,2)}, {vr(OO+2*k,2)}, v[6:7] op_sel_hi:[1,0]")
    for k in range(8): a(f"v_cvt_pk_bf16_f32 v{Q+k}, v{OO+2*k}, v{OO+2*k+1}")
    a(f"""v_mov_b32 v6, s{T}
    s_or_b64 s[54:55], s[54:55], vcc
    s_cbranch_scc1 L_bad
    L_good:
    buffer_store_dwordx4 {vr(Q,4)}, v1, s[8:11], s52 offen sc1
    buffer_store_dwordx4 {vr(Q+4,4)}, v1, s[8:11], s52 offen offset:1024 sc1
    s_mov_b64 exec, 1
    {"s_waitcnt vmcnt(0)" if ("noclr" in EXP or "otouch" in EXP) else ""}
    buffer_atomic_swap v6, v{VZ}, s[8:11], s56 offen sc1
    s_mov_b64 exec, -1""")
    st(a, 9)
    WOF = 104; B = 232; ACC = 8; U = 72
    OSB = [40, 72]
    PLR = 36
    at = lambda r: f"v_mov_b32 v{r}, 0\ns_mov_b64 exec, 15\nbuffer_atomic_or v{r}, v7, s[8:11], s56 offen sc0 sc1\ns_mov_b64 exec, -1"
    a(f"""s_lshl2_add_u32 s28, s58, s{W}
    s_lshl_b32 s54, s28, 13
    s_add_u32 s54, s54, {WS_O}
    s_add_u32 s55, s54, 4096
    s_lshl_b32 s56, s28, 7
    s_add_u32 s56, s56, {WS_OFL}
    v_lshrrev_b32 v7, 2, v1
    {at(PLR)}
    v_bfe_u32 v4, v3, 2, 2
    v_lshl_add_u32 v4, v{VH}, 2, v4
    v_mul_u32_u24 v4, 224, v4
    v_bfe_u32 v5, v3, 4, 1
    v_lshl_add_u32 v4, v5, 5, v4
    v_and_b32 v5, 1, v3
    v_lshl_add_u32 v4, v5, 4, v4
    v_bfe_u32 v5, v3, 1, 1
    v_lshl_add_u32 v4, v5, 3, v4
    s_mul_i32 s28, s{W}, 56
    v_add_u32 v4, s28, v4""")
    for r in range(4):
        a(f"""s_add_u32 s26, s{W}, {r}
        s_and_b32 s26, s26, 3
        s_mul_i32 s28, s26, {4*28*224}
        v_add_u32 v{24+r}, s28, v4""")
        if r:
            a(f"s_mul_i32 s28, s26, 12288\ns_add_u32 s28, s28, {CB}\nv_add_u32 v{32+r}, s28, v1")
    a(f"""v_lshlrev_b32 v30, 2, v{VT}
    v_add_u32 v30, {UPDI}, v30
    s_mul_i32 s28, s{W}, 112
    s_add_u32 s28, s28, {UPD}
    v_lshl_add_u32 v28, v{VH}, 5, s28
    v_mov_b32 v29, {CNT}
    s_lshl_b32 s28, 0x11, s{W}
    v_mov_b32 v31, s28""")
    spin_lds(a, 29, C_W, 16, 6)
    def word(k):
        o = (28 * ((k >> 1) & 3) + 16 * (k & 1)) * 224
        b = 24 + (k >> 3)
        a(f"ds_read_b64_tr_b16 {vr(WOF+4*k,2)}, v{b} offset:{o}\nds_read_b64_tr_b16 {vr(WOF+4*k+2,2)}, v{b} offset:{o+8*224}")
    a(at(PLR + 1))
    for k in range(NW1):
        word(k)
        if k == NW1 // 2 - 1: a(at(PLR + 2))
    a(f"s_mov_b32 s60, {SPIN_LIMIT}\ns_mov_b64 exec, 15\nL_op:")
    for i in range(4):
        a(f"""v_mov_b32 v{PLR+(i+3)%4}, 0
        buffer_atomic_or v{PLR+(i+3)%4}, v7, s[8:11], s56 offen sc0 sc1
        s_waitcnt vmcnt(3)
        v_cmp_ne_u32 vcc, s{T}, v{PLR+i}
        s_cbranch_vccz L_of""")
    a(f"""s_sub_u32 s60, s60, 1
    s_cbranch_scc0 L_op
    s_endpgm
    L_of:
    s_mov_b64 exec, -1""")
    if "twait" not in EXP: st(a, 10)
    def oload():
        for k in range(8):
            a(f"buffer_load_dwordx4 {vr(OSB[0]+4*k,4)}, v1, s[8:11], {'s54' if k < 4 else 's55'} offen offset:{(k&3)*1024} sc1")
    oload()
    for k in range(NW1, 32): word(k)
    for k in range(8):
        a(f"v_lshlrev_b32 v{B+2*k}, 16, v{XR+k}\nv_and_b32 v{B+2*k+1}, 0xffff0000, v{XR+k}")
    a(f"""v_cmp_ne_u32 vcc, s{T}, v{GR+1}
    s_cbranch_vccnz L_gate
    L_gate_ok:
    v_sub_f32 v24, 1.0, v{GR}
    v_cvt_pk_bf16_f32 v24, v24, v24
    v_lshlrev_b32 v24, 16, v24""")
    def stub(): pass
    def need(bit):
        l = uid("Lnd")
        a(f"""{l}:
        ds_read_b32 v6, v29 offset:{C_O}
        s_sub_u32 s60, s60, 1
        s_cbranch_scc1 L_exit
        s_waitcnt lgkmcnt(0)
        v_readfirstlane_b32 s61, v6
        s_bitcmp1_b32 s61, {bit}
        s_cbranch_scc0 {l}""")
    def rd(g):
        for k in range(8): a(f"ds_read_b128 {vr(OSB[g&1]+4*k,4)}, v{32+g} offset:{k*1024}")
    def mm(g, lo, hi):
        for k in range(lo, hi):
            a(f"{MF} {vr(ACC,16)}, {vr(WOF+32*g+4*k,4)}, {vr(OSB[g&1]+4*k,4)}, {'0' if g == 0 and k == 0 else vr(ACC,16)}")
    a(f"""ds_read_b32 v6, v29 offset:{C_O}
    s_mov_b32 s57, 0
    s_waitcnt lgkmcnt(0)
    v_readfirstlane_b32 s61, v6
    s_bitcmp1_b32 s61, 10
    s_cbranch_scc1 L_blkU
    s_mov_b32 s57, 1
    L_next0:
    v_mov_b32 v4, 0""")
    for k in range(8):
        r = OSB[0] + 4 * k
        a(f"""s_waitcnt vmcnt({7-k})
        ds_write_b128 v2, {vr(r,4)} offset:{k*1024}""")
        if k < 6: mm(0, k, k + 1)
        a(f"""v_max3_u32 v4, v4, v{r}, v{r+1}
        v_max3_u32 v4, v4, v{r+2}, v{r+3}""")
    a("v_cmp_eq_u32 vcc, -1, v4\ns_cbranch_vccnz L_again")
    lds_inc(a, 29, C_O, 31)
    a(f"s_mov_b32 s27, s{W}")
    for g in range(4):
        if g < 3: a(f"ds_read_b32 v6, v29 offset:{C_O}\ns_add_u32 s27, s27, 1")
        if g: a("s_waitcnt lgkmcnt(0)")
        mm(g, 0 if g else 6, 2 if g else 8)
        if g < 3:
            if not g: a("s_waitcnt lgkmcnt(0)")
            a(f"v_readfirstlane_b32 s61, v6\ns_bitcmp1_b32 s61, s27\ns_cbranch_scc0 L_late{g}")
            rd(g + 1)
        mm(g, 2 if g else 8, 8)
        a(f"L_back{g}:")
    a("s_cmp_lg_u32 s57, 0\ns_cbranch_scc1 L_lateU\nL_next1:")
    if "twait" not in EXP: st(a, 11)
    a("s_nop 9")
    for x in EXP:
        if x.startswith("err"):
            a(f"s_or_b32 s26, s2, s{W}\ns_cmp_eq_u32 s26, 0\ns_cselect_b64 exec, 1, 0\nv_add_f32 v{B}, {f32bits(float(x[3:])):#x}, v{B}\ns_mov_b64 exec, -1")
        if x.startswith("all"):
            for k in range(16): a(f"v_add_f32 v{B+k}, {f32bits(float(x[3:])):#x}, v{B+k}")
    for m in range(2):
        for e in range(4*m, 4*m+4):
            a(f"v_pk_fma_f32 {vr(B+2*e,2)}, {vr(ACC+2*e,2)}, {vr(GR,2)}, {vr(B+2*e,2)} op_sel_hi:[1,0,1]")
        for e in range(4*m, 4*m+4): a(f"v_cvt_pk_bf16_f32 v{40+e}, v{B+2*e}, v{B+2*e+1}")
        if m == 0:
            a(f"buffer_store_dwordx4 v[40:43], v{VXO}, s[20:23], s59 offen{OUTAUX}")
            stub()
        else:
            a(f"""s_mov_b32 exec_hi, 0
            buffer_store_dwordx4 v[44:47], v{VXO}, s[20:23], s59 offen offset:32{OUTAUX}
            s_mov_b64 exec, 0xffffffff
            s_not_b64 exec, exec
            buffer_store_dwordx2 v[44:45], v{VXO}, s[20:23], s59 offen offset:32{OUTAUX}""")
    st_end(a)
    diag_end(a)
    a("s_endpgm")
    for g in range(3):
        a(f"L_late{g}:")
        mm(g, 2 if g else 8, 8)
        need("s27"); rd(g + 1)
        a(f"s_branch L_back{g}")
    a("L_again:\ns_sub_u32 s60, s60, 1\ns_cbranch_scc1 L_exit\ns_waitcnt lgkmcnt(0)")
    oload()
    a("s_branch L_next0")
    a("L_lateU:")
    need(10)
    a(f"""L_blkU:
    ds_read_b32 v6, v30
    s_waitcnt lgkmcnt(0)
    v_cmp_le_i32 vcc, 0, v6
    s_cbranch_vccz L_noupd
    s_mov_b64 exec, vcc
    v_mul_u32_u24 v6, 448, v6
    v_add_u32 v28, v28, v6""")
    for k in range(4): a(f"ds_read_b128 {vr(U+4*k,4)}, v28 offset:{64*(k>>1)+16*(k&1)}")
    a("s_waitcnt lgkmcnt(0)")
    for k in range(8):
        a(f"""v_pk_add_f32 {vr(B+2*k,2)}, {vr(B+2*k,2)}, {vr(U+2*k,2)}
        v_cvt_pk_bf16_f32 v{B+2*k}, v{B+2*k}, v{B+2*k+1}
        v_and_b32 v{B+2*k+1}, 0xffff0000, v{B+2*k}
        v_lshlrev_b32 v{B+2*k}, 16, v{B+2*k}""")
    a("s_mov_b64 exec, -1\nL_noupd:")
    stub()
    for k in range(8): a(f"v_pk_mul_f32 {vr(B+2*k,2)}, {vr(B+2*k,2)}, v[24:25] op_sel_hi:[1,0]")
    a("s_cmp_lg_u32 s57, 0\ns_cbranch_scc1 L_next1\ns_branch L_next0")
    a("L_bad:\ns_cmp_eq_u32 s57, 0\ns_cbranch_scc1 L_slow")
    for k in range(8): a(f"v_min_u32 v{Q+k}, -2, v{Q+k}")
    a("s_branch L_good")
    a.label("L_nextwait")
    spin_lds(a, VF, C_R + 4, 1, 7)
    a("s_sub_u32 s56, s61, 1\ns_branch L_nextok")
    a(f"""L_gate:
    s_mov_b32 s26, {WS_G}
    s_mov_b32 s60, {SPIN_LIMIT}
    L_gate1:
    buffer_load_dwordx2 {vr(GR,2)}, v{VGO}, s[8:11], s26 offen sc1
    s_waitcnt vmcnt(0)
    v_cmp_ne_u32 vcc, s{T}, v{GR+1}
    s_cbranch_vccz L_gate_ok
    s_sub_u32 s60, s60, 1
    s_cbranch_scc0 L_gate1
    s_endpgm""")
    a.label("L_slow")
    a(f"""s_mov_b32 s57, 1
    s_mov_b32 s55, {KVB}
    s_mov_b32 s54, 0
    s_mov_b32 exec_lo, 0
    v_mov_b32 v{QO+6}, 0
    v_mov_b32 v{QO+7}, 0
    s_mov_b32 exec_lo, -1
    v_mov_b32 v4, 0xff800000
    L_slow1:
    {ldK(0, "s54")[0]}
    {ldK(0, "s54")[1]}
    s_waitcnt vmcnt(0)
    {MF} {vr(S,16)}, {vr(KV,4)}, {vr(QO,4)}, 0
    {MF} {vr(S,16)}, {vr(KV+4,4)}, {vr(QO+4,4)}, {vr(S,16)}""")
    for x in max16_list(4, S, init=True): a(x)
    a(f"""s_add_u32 s54, s54, {TS}
    s_cmp_lt_u32 s54, s55
    s_cbranch_scc1 L_slow1
    v_mov_b32 v5, v4
    v_permlane32_swap_b32 v4, v5
    v_max_f32 v4, v4, v5""")
    split_neg_max(a, 4, 5, 6, QO + 6, QO + 7)
    for i in range(16): a(f"v_mov_b32 v{OO+i}, 0")
    a(f"""s_mov_b32 s54, 0
    L_slow2:
    {ldK(0, "s54")[0]}
    {ldK(0, "s54")[1]}
    {ldV(0, "s54")[0]}
    {ldV(0, "s54")[1]}
    s_waitcnt vmcnt(0)
    {MF} {vr(S,16)}, {vr(KV,4)}, {vr(QO,4)}, 0
    {MF} {vr(S,16)}, {vr(KV+4,4)}, {vr(QO+4,4)}, {vr(S,16)}""")
    for i in range(16): a(f"v_exp_f32 v{S+i}, v{S+i}")
    a(f"""{SM} {vr(OO,16)}, {vr(KV+8,4)}, {vr(S,8)}, v{VI}
    {SM} {vr(OO,16)}, {vr(KV+12,4)}, {vr(S+8,8)}, v{VI}
    s_nop 7
    s_nop 7
    s_add_u32 s54, s54, {TS}
    s_cmp_lt_u32 s54, s55
    s_cbranch_scc1 L_slow2
    s_branch L_fin""")

GI = 0; DI = QX; HB = 101376
FT, KS = 66, 67
def service_wave(a):
    a.label("L_service")
    a(f"""v_mov_b32 v14, {CNT}
    v_mov_b32 v15, 1
    v_mov_b32 v12, 0
    v_mov_b32 v9, 0""")
    srd(a, 8, 36, (1 << 28) - WSBASE)
    a("s_waitcnt lgkmcnt(0)")
    tag(a)
    a(f"v_mov_b32 v4, s{T}\nds_write_b32 v14, v4 offset:{C_T}\ns_waitcnt vmcnt(0)")
    lds_inc(a, 14, C_Q1, 15)
    a(f"""v_and_b32 v32, 31, v3
    v_lshrrev_b32 v33, 5, v3
    v_lshlrev_b32 v219, 3, v1
    v_lshrrev_b32 v220, 2, v1
    v_and_b32 v4, 7, v3
    v_lshlrev_b32 v217, 3, v4
    s_lshr_b32 s58, s{H}, 2
    s_lshl2_add_u32 s58, s{J}, s58
    v_lshlrev_b32 v211, 11, v33
    v_lshl_add_u32 v211, v32, 4, v211
    v_and_b32 v4, 24, v3
    v_lshl_add_u32 v4, v33, 2, v4
    v_lshl_add_u32 v4, v217, 4, v4
    s_lshl_b32 s26, s{L}, 5
    s_add_u32 s26, s26, {HB}
    v_add_u32 v214, s26, v4
    s_mul_i32 s{FT}, s2, 9363
    s_lshr_b32 s{FT}, s{FT}, 16
    s_mul_i32 s26, s{FT}, 7
    s_sub_u32 s{KS}, s2, s26
    s_cmp_ge_u32 s{L}, 2
    s_cbranch_scc1 L_svcB""")
    def sel_load(lbl):
        a(f"""s_mov_b32 s26, {WS_SEL}
        s_mov_b32 s60, {SPIN_LIMIT}
        {lbl}:
        buffer_load_dwordx2 v[20:21], v217, s[8:11], s26 offen sc1
        s_waitcnt vmcnt(0)
        v_cmp_ne_u32 vcc, s{T}, v21
        s_cbranch_vccz {lbl}_ok
        s_sleep 4
        s_sub_u32 s60, s60, 1
        s_cbranch_scc0 {lbl}
        s_endpgm
        {lbl}_ok:""")
    a(f"""s_lshl_b32 s27, s{J}, 6
    s_add_u32 s27, s27, {WS_R}
    s_cmp_eq_u32 s{RL}, 14
    s_cbranch_scc1 L_rank
    s_cmp_lg_u32 s2, {SELECTOR}
    s_cbranch_scc1 L_svcA
    s_lshl_b32 s28, s{L}, 8
    s_add_u32 s28, s28, {KEYS}
    v_add_u32 v7, s28, v220
    v_lshl_add_u32 v6, v33, 7, s28
    s_lshl_b32 s28, s{L}, 6
    s_add_u32 s28, s28, {CAND}
    v_lshl_add_u32 v10, v33, 5, s28
    s_lshl_b32 s26, s{L}, 9
    s_add_u32 s26, s26, {WS_R}
    s_mov_b32 s27, {WS_SEL}
    v_lshlrev_b32 v4, 3, v3
    v_mov_b32 v5, 2
    s_mov_b32 s60, {SPIN_LIMIT}
    L_keys:
    v_mov_b32 v20, 0
    v_mov_b32 v21, 0
    buffer_atomic_or_x2 v[20:21], v4, s[8:11], s26 offen sc0 sc1
    s_sub_u32 s60, s60, 1
    s_cbranch_scc1 L_exit
    s_waitcnt vmcnt(0)
    v_cmp_ne_u32 vcc, s{T}, v21
    s_cbranch_vccnz L_keys
    ds_write_b32 v7, v20""")
    for k in range(8): a(f"ds_read_b128 {vr(40+4*k,4)}, v6 offset:{16*k}")
    rank_count(a, 20, 40, 32, 22, 23)
    a(f"""v_cmp_gt_u32 vcc, 8, v22
    v_lshl_add_u32 v22, v22, 2, v10
    s_mov_b64 exec, vcc
    ds_write_b32 v22, v20""")
    lds_inc(a, 14, C_K, 5)
    a(f"""L_rank:
    s_cmp_lg_u32 s{L}, 0
    s_cbranch_scc1 L_svcA
    v_mov_b32 v6, {CAND}
    v_lshl_add_u32 v7, v32, 2, v6
    v_lshl_add_u32 v6, v33, 6, v6
    v_mov_b32 v21, s{T}""")
    spin_lds(a, 14, C_K, 4, 8)
    st(a, 10)
    if STAMP: a("s_waitcnt lgkmcnt(0)")
    a("ds_read_b32 v20, v7")
    for k in range(4): a(f"ds_read_b128 {vr(40+4*k,4)}, v6 offset:{16*k}")
    rank_count(a, 20, 40, 16, 22, 23)
    a(f"""v_mov_b32 v23, v22
    v_permlane32_swap_b32 v22, v23
    v_add_u32 v22, v22, v23
    v_cmp_gt_u32 vcc, 8, v22
    v_lshlrev_b32 v22, 3, v22
    s_mov_b32 exec_lo, vcc_lo
    s_mov_b32 exec_hi, 0
    buffer_atomic_swap_x2 v[20:21], v22, s[8:11], s27 offen sc1
    s_mov_b64 exec, -1""")
    st(a, 11)
    a.label("L_svcA")
    for e in range(7):
        a(f"""v_add_u32 v4, {64*e}, v3
        v_mul_u32_u24 v5, 4682, v4
        v_lshrrev_b32 v5, 16, v5
        v_mul_u32_u24 v5, {896-224}, v5
        v_lshl_add_u32 v{200+e}, v4, 4, v5""")
    for r in (215, 216): a(f"v_mov_b32 v{r}, 0")
    a(f"""v_mov_b32 v28, -1
    v_mov_b32 v29, -1
    v_mov_b32 v30, -1
    v_mov_b32 v31, -1
    s_lshl_b32 s59, s{J}, 6
    s_add_u32 s59, s59, s{H}
    s_lshl1_add_u32 s59, s59, s{L}
    s_lshl_b32 s59, s59, 10
    s_add_u32 s59, s59, {WS_O}
    s_cmp_ge_u32 s2, 196
    s_cbranch_scc1 L_nofn
    v_lshrrev_b32 v4, 3, v3
    v_and_b32 v5, 2, v4
    v_lshlrev_b32 v5, 1, v5
    v_and_b32 v6, 7, v3
    v_xor_b32 v5, v5, v6
    v_mul_u32_u24 v6, 3584, v4
    v_lshl_add_u32 v34, v5, 4, v6
    v_add_u32 v35, {8*3584-1024}, v34
    v_add_u32 v36, {2*(8*3584-1024)}, v34
    v_add_u32 v37, {3*(8*3584-1024)}, v34
    v_mul_u32_u24 v6, 896, v4
    v_lshl_add_u32 v240, v5, 4, v6
    v_add_u32 v241, {8*896-1024}, v240
    v_add_u32 v242, {2*(8*896-1024)}, v240
    v_add_u32 v243, {3*(8*896-1024)}, v240
    s_lshl_b32 s54, s{L}, 13
    s_add_u32 s54, s54, {GI}
    v_and_b32 v4, 3, v3
    v_lshrrev_b32 v6, 4, v3
    v_bfe_u32 v7, v3, 2, 2
    v_lshl_add_u32 v8, v6, 3, v7
    v_lshlrev_b32 v8, 7, v8
    v_lshrrev_b32 v7, 1, v7
    v_lshl_add_u32 v8, v7, 6, v8
    v_lshl_add_u32 v8, v4, 3, v8
    v_add_u32 v38, s54, v8
    v_xor_b32 v39, 64, v38
    v_lshlrev_b32 v213, 4, v6
    v_lshlrev_b32 v212, 3, v213
    v_lshl_add_u32 v212, v217, 1, v212""")
    srd(a, 16, 42, 448 * 3584)
    a(f"""s_cmp_eq_u32 s{L}, 1
    s_cselect_b64 s[16:17], s[44:45], s[42:43]
    s_mul_i32 s52, s{KS}, {64*3584}
    s_lshl_b32 s28, s{FT}, 7
    s_add_u32 s52, s52, s28
    s_movk_i32 s29, 896""")
    if GA >= 0: spin_lds(a, 14, C_A, 256, 8, sleep=4)
    else: spin_lds(a, 14, C_L, 8 if "deferA" in EXP else 4, 8, sleep=4)
    st(a, 3)
    NR = 2 if "fine" in EXP else 4
    XS_ = 40; FW = 56; AC = 104
    if "nogu" in EXP: a("s_mov_b32 s18, 0")
    a("s_mov_b32 m0, s54\ns_nop 0")
    for k in range(8):
        if k == 4: a(f"s_add_u32 s52, s52, {32*3584}\ns_add_u32 m0, s54, 4096")
        if k == 8 - NR: sel_load("L_sel1")
        elif k and k % NR == 0: a("s_waitcnt vmcnt(0)")
        a(f"buffer_load_dwordx4 v{34+(k&3)}, s[16:19], s52 offen offset:{1024*(k&3)} lds")
    a(f"""v_not_b32 v4, v20
    v_and_b32 v4, 0x7ff, v4
    v_mad_u32_u24 v4, v4, s29, v213
    s_lshl_b32 s26, s{KS}, 7
    s_mov_b32 exec_lo, 0x00ff00ff
    s_mov_b32 exec_hi, 0x00ff00ff
    buffer_load_dwordx4 {vr(XS_,4)}, v4, s[12:15], s26 offen
    buffer_load_dwordx4 {vr(XS_+4,4)}, v4, s[12:15], s26 offen offset:64
    s_mov_b64 exec, -1
    s_waitcnt vmcnt(2)""")
    for k in range(2):
        for n in range(4):
            o = k * 4096 + (n & 1) * 32
            a(f"ds_read_b64_tr_b16 {vr(FW+16*k+4*n,2)}, v{38+(n>>1)} offset:{o}\nds_read_b64_tr_b16 {vr(FW+16*k+4*n+2,2)}, v{38+(n>>1)} offset:{o+512}")
    a(f"""s_mov_b64 s[16:17], s[46:47]
    s_lshl1_add_u32 s28, s{FT}, s{L}
    s_mul_i32 s28, s28, {32*896}
    s_add_u32 s28, s28, s26
    s_lshl_b32 s29, s{L}, 12
    s_add_u32 m0, s29, {DI}
    s_lshl1_add_u32 s26, s2, s{L}
    s_lshl_b32 s26, s26, 11
    s_add_u32 s26, s26, {WS_GP}
    s_waitcnt vmcnt(0) lgkmcnt(0)""")
    st(a, 4)
    if "d1" in EXP: spin_lds(a, 14, C_X, 260, 8, sleep=8)
    for k in range(2):
        for n in range(4):
            a(f"v_mfma_f32_16x16x32_bf16 {vr(AC+4*n,4)}, {vr(FW+16*k+4*n,4)}, {vr(XS_+4*k,4)}, {'0' if k==0 else vr(AC+4*n,4)}")
    a("s_mov_b32 exec_lo, 0x00ff00ff\ns_mov_b32 exec_hi, 0x00ff00ff")
    for n in range(4):
        a(f"buffer_store_dwordx4 {vr(AC+4*n,4)}, v212, s[8:11], s26 offen offset:{512*n} sc1")
    a("s_mov_b64 exec, -1")
    if "nowd" in EXP: a("s_mov_b32 s18, 0")
    for k in range(4): a(f"buffer_load_dwordx4 v{240+k}, s[16:19], s28 offen offset:{1024*k} lds")
    a(f"""s_lshl1_add_u32 s26, s{KS}, s{L}
    s_lshl_b32 s26, s26, 2
    s_mul_i32 s28, s{FT}, {7*128}
    s_add_u32 s26, s26, s28
    s_add_u32 s26, s26, {WS_F1}
    s_waitcnt vmcnt(4)""")
    signal(a, 5, 219, "s26", "0x7f")
    st(a, 5)
    a(f"s_cmp_lg_u32 s{L}, 0\ns_cbranch_scc1 L_st2w\ns_lshl_b32 s26, s2, 7\ns_add_u32 s26, s26, {WS_F1}")
    if "d2" in EXP: spin_lds(a, 14, C_X, 260, 8, sleep=8)
    poll_atomic(a, 5, 220, "s26", "0x3fff", 2)
    lds_inc(a, 14, C_L, 15)
    a("L_st2w:")
    spin_lds(a, 14, C_L, 1, 8, sleep=3)
    st(a, 6)
    GP = 40; DW = 120
    a(f"s_mul_i32 s26, s{FT}, {7*4096}\ns_lshl_b32 s28, s{L}, 9\ns_add_u32 s26, s26, s28\ns_add_u32 s26, s26, {WS_GP}")
    for k in range(7):
        a(f"buffer_load_dwordx4 {vr(GP+4*k,4)}, v211, s[8:11], s26 offen sc1")
        if k < 6: a("s_add_u32 s26, s26, 4096")
    a(f"s_mov_b32 s28, {NLOG2E:#x}\ns_waitcnt vmcnt(0)")
    for k in range(1, 7):
        if "nopk" in EXP:
            for e in range(4): a(f"v_add_f32 v{GP+e}, v{GP+e}, v{GP+4*k+e}")
        else:
            for e in range(2): a(f"v_pk_add_f32 {vr(GP+2*e,2)}, {vr(GP+2*e,2)}, {vr(GP+4*k+2*e,2)}")
    a(f"""v_permlane32_swap_b32 v{GP}, v{GP+2}
    v_permlane32_swap_b32 v{GP+1}, v{GP+3}
    v_mul_f32 v22, s28, v{GP}
    v_mul_f32 v23, s28, v{GP+1}
    v_exp_f32 v22, v22
    v_exp_f32 v23, v23
    v_add_f32 v22, 1.0, v22
    v_add_f32 v23, 1.0, v23
    v_rcp_f32 v22, v22
    v_rcp_f32 v23, v23
    v_pk_mul_f32 v[22:23], v[22:23], {vr(GP,2)}
    v_pk_mul_f32 v[22:23], v[22:23], {vr(GP+2,2)}
    v_cvt_pk_bf16_f32 v22, v22, v23
    ds_write_b32 v214, v22""")
    lds_inc(a, 14, C_S, 15)
    if "d3" in EXP: spin_lds(a, 14, C_X, 260, 8, sleep=8)
    a(f"s_cmp_ge_u32 s{L}, 2\ns_cbranch_scc1 L_st3\ns_branch L_clr")
    a.label("L_nofn")
    spin_lds(a, 14, C_A, 512, 8, sleep=8)
    srd(a, 16, 38, 448 * 896)
    a(f"""s_sub_u32 s26, s2, 196
    s_lshl1_add_u32 s26, s26, s{L}
    s_mul_i32 s26, s26, {27*128}
    s_min_u32 s26, s26, {(3136-27)*128}
    s_mov_b64 exec, 0x7ffffff
    buffer_load_dword v6, v219, s[16:19], s26 offen
    s_mov_b64 exec, -1""")
    sel_load("L_sel2")
    a(f"""s_lshl2_add_u32 s26, s2, s{L}
    s_cmp_lg_u32 s26, {254*4}
    s_cbranch_scc1 L_clr""")
    a(f"s_mov_b32 s60, {SPIN_LIMIT}\nL_ep:")
    for k in range(4):
        a(f"s_mov_b32 s26, {WS_FL+8192*k}\nbuffer_load_dword v{24+k}, v219, s[8:11], s26 offen sc1")
    a(f"""s_sub_u32 s60, s60, 1
    s_cbranch_scc1 L_exit
    s_waitcnt vmcnt(0)
    v_xor_b32 v24, s{T}, v24
    v_bitop3_b32 v24, v24, v25, s{T} bitop3:0xf6
    v_bitop3_b32 v24, v24, v26, s{T} bitop3:0xf6
    v_bitop3_b32 v24, v24, v27, s{T} bitop3:0xf6
    v_cmp_ne_u32 vcc, 0, v24
    s_cbranch_vccnz L_ep
    s_mov_b32 s26, {WS_EP}""")
    flag_store(a, 5, 9, "s26")
    a("L_clr:")
    if "noobt" not in EXP:
        a(f"""s_lshl1_add_u32 s26, s58, s{L}
        s_lshl_b32 s26, s26, 8
        s_add_u32 s26, s26, {WS_OFL}
        s_mov_b64 exec, 3
        buffer_atomic_or v9, v219, s[8:11], s26 offen sc1
        s_mov_b64 exec, -1""")
    for k in range(4):
        a(f"buffer_store_dwordx4 v[28:31], v1, s[8:11], s59 offen sc1\ns_add_u32 s59, s59, {16*2048}")
    a("v_mov_b32 v12, 1")
    st(a, 7)
    Y = 40
    a(f"""L_updA:
    s_and_b32 s53, s{H}, 3
    s_mul_i32 s53, s53, 224
    s_lshl_b32 s57, s{L}, 2
    s_lshr_b32 s26, s53, 6
    s_lshl_b32 s26, s26, 7
    s_add_u32 s62, s26, {WS_YFL}
    L_upd:
    v_readlane_b32 s52, v20, s57
    s_andn2_b32 s54, 0x7ff, s52
    s_lshr_b32 s26, s54, 5
    s_cmp_lg_u32 s26, s58
    s_cbranch_scc1 L_updn
    s_mov_b32 s60, {SPIN_LIMIT}
    s_mov_b32 exec_lo, 0x0fffffff
    s_mov_b32 exec_hi, 0x0fffffff
    L_yfl:
    v_mov_b32 v24, 0
    v_mov_b32 v25, 0
    buffer_atomic_or v24, v220, s[8:11], s62 offen sc0 sc1
    buffer_atomic_or v25, v220, s[8:11], s62 offen offset:256 sc0 sc1
    s_waitcnt vmcnt(0)
    v_xor_b32 v24, s{T}, v24
    v_bitop3_b32 v24, v24, v25, s{T} bitop3:0xf6
    v_cmp_ne_u32 vcc, 0, v24
    s_mov_b64 s[28:29], exec
    s_mov_b64 exec, 1
    ds_add_u32 v14, v12 offset:{C_C}
    v_mov_b32 v12, 0
    s_mov_b64 exec, s[28:29]
    s_cbranch_vccz L_yok
    s_sleep 3
    s_sub_u32 s60, s60, 1
    s_cbranch_scc0 L_yfl
    s_endpgm
    L_yok:
    v_mul_u32_u24 v4, {14*14336}, v33
    v_lshl_add_u32 v4, v32, 4, v4
    s_mul_i32 s26, s57, 1792
    s_lshl1_add_u32 s26, s53, s26
    s_add_u32 s26, s26, {WS_YP}""")
    for i in range(14):
        a(f"buffer_load_dwordx4 {vr(Y+4*i,4)}, v4, s[8:11], s26 offen sc1\ns_add_u32 s26, s26, 14336")
    a(f"""s_mov_b64 exec, -1
    s_lshr_b32 s26, s52, 11
    s_not_b32 s55, s26
    s_and_b32 s29, s26, 0x7fff
    s_bitcmp1_b32 s26, 15
    s_cselect_b32 s26, s29, s55
    s_lshl_b32 s26, s26, 16
    v_mov_b32 v6, {NLOG2E:#x}
    v_mul_f32 v6, s26, v6
    v_exp_f32 v6, v6
    v_add_f32 v6, 1.0, v6
    v_rcp_f32 v6, v6
    v_cvt_pk_bf16_f32 v6, v6, v6
    v_lshlrev_b32 v6, 16, v6
    s_mul_i32 s26, s57, 448
    s_add_u32 s26, s26, {UPD}
    v_lshl_add_u32 v7, v32, 4, s26
    s_waitcnt vmcnt(0)""")
    for i in range(1, 14):
        a(f"v_pk_add_f32 {vr(Y,2)}, {vr(Y,2)}, {vr(Y+4*i,2)}\nv_pk_add_f32 {vr(Y+2,2)}, {vr(Y+2,2)}, {vr(Y+4*i+2,2)}")
    for k in range(4): a(f"v_mov_b32 v{Y+4+k}, v{Y+k}")
    for k in range(4): a(f"v_permlane32_swap_b32 v{Y+k}, v{Y+4+k}")
    for k in range(4): a(f"v_add_f32 v{Y+k}, v{Y+k}, v{Y+4+k}")
    for k in range(0, 4, 2):
        a(f"""v_cvt_pk_bf16_f32 v{Y+k}, v{Y+k}, v{Y+k+1}
        v_and_b32 v{Y+k+1}, 0xffff0000, v{Y+k}
        v_lshlrev_b32 v{Y+k}, 16, v{Y+k}
        v_mul_f32 v{Y+k}, v{Y+k}, v6
        v_mul_f32 v{Y+k+1}, v{Y+k+1}, v6
        v_cvt_pk_bf16_f32 v{Y+k}, v{Y+k}, v{Y+k+1}
        v_and_b32 v{Y+k+1}, 0xffff0000, v{Y+k}
        v_lshlrev_b32 v{Y+k}, 16, v{Y+k}""")
    a(f"""s_and_b32 s54, s54, 31
    v_mov_b32 v5, s57
    s_lshl_b32 s26, s54, 2
    s_add_u32 s26, s26, {UPDI}
    v_mov_b32 v4, s26
    s_mov_b64 exec, 0x0fffffff
    ds_write_b128 v7, {vr(Y,4)}
    s_mov_b64 exec, 1
    ds_write_b32 v4, v5
    s_mov_b64 exec, -1
    L_updn:
    s_add_u32 s57, s57, 1
    s_and_b32 s26, s57, 3
    s_cbranch_scc1 L_upd
    v_mov_b32 v6, 512""")
    lds_inc(a, 14, C_O, 6)
    st(a, 9)
    a("s_branch L_wo1")
    a.label("L_svcB")
    CLR = "buffer_store_dwordx4 v[24:27], v1, s[8:11], s59 offen sc1"
    if "noclr" in EXP: CLR = ""
    if "otouch" in EXP: CLR = "s_mov_b32 exec_lo, 0x0f0f0f0f\ns_mov_b32 exec_hi, 0x0f0f0f0f\nbuffer_store_dwordx4 v[24:27], v1, s[8:11], s59 offen sc1\ns_mov_b64 exec, -1"
    OUTT = ""
    if "outtouch" in EXP:
        OUTT = f"""s_cmp_lg_u32 s55, {42*1024}
        s_cbranch_scc1 L_noot
        s_mov_b32 s20, s50
        s_mov_b32 s21, s51
        s_mov_b32 s22, {2048*896}
        s_mov_b32 s23, 0x20000
        s_lshl_b32 s26, s58, 5
        v_add_u32 v4, s26, v32
        v_mul_u32_u24 v4, 896, v4
        s_add_u32 s26, s53, 127
        s_and_b32 s26, s26, 0xffffff80
        v_lshl_add_u32 v4, v33, 7, v4
        s_cmp_eq_u32 s53, 672
        s_cselect_b32 exec_hi, 0, -1
        buffer_store_dword v9, v4, s[20:23], s26 offen sc1
        s_mov_b64 exec, -1
        L_noot:"""
    WOPF = "s_mov_b32 exec_hi, 0x1ffff\nbuffer_load_dword v6, v219, s[16:19], s28 offen\ns_mov_b64 exec, -1" if "wopfS" not in EXP and "nowopf" not in EXP else ""
    for e in range(7):
        a(f"""v_add_u32 v4, {64*e}, v3
        v_mul_u32_u24 v5, 4682, v4
        v_lshrrev_b32 v5, 16, v5
        v_mul_u32_u24 v5, {896-224}, v5
        v_lshl_add_u32 v{200+e}, v4, 4, v5""")
    a(f"""v_mov_b32 v16, 0
    v_mov_b32 v17, 0
    v_mov_b32 v18, 0
    v_mov_b32 v19, 0
    v_add_u32 v209, {448*224}, v1
    v_bfe_u32 v7, v3, 2, 2
    v_lshl_add_u32 v5, v33, 3, v7
    v_lshlrev_b32 v5, 7, v5
    v_bfe_u32 v4, v3, 4, 1
    v_lshl_add_u32 v5, v4, 5, v5
    v_and_b32 v4, 3, v3
    v_lshl_add_u32 v5, v4, 3, v5
    v_lshrrev_b32 v7, 1, v7
    v_xor_b32 v7, s{L}, v7
    v_and_b32 v7, 1, v7
    v_lshl_add_u32 v5, v7, 6, v5
    v_add_u32 v210, {DI}, v5
    v_lshlrev_b32 v4, 4, v217
    v_lshl_add_u32 v4, v33, 4, v4
    v_add_u32 v218, {HB}, v4
    v_mul_u32_u24 v215, {4*1792}, v33
    v_lshl_add_u32 v215, v32, 2, v215
    v_add_u32 v216, {2*1792}, v215
    s_cmp_eq_u32 s{L}, 2
    s_cbranch_scc1 L_svcB2
    v_lshrrev_b32 v4, 4, v3
    v_and_b32 v5, 15, v3
    v_lshlrev_b32 v5, 2, v5
    v_lshl_add_u32 v221, v4, 9, v5
    v_lshl_add_u32 v222, v4, 5, v14
    v_and_b32 v223, 48, v3
    v_and_b32 v5, 15, v3
    v_add_u32 v6, v5, v4
    v_mul_u32_u24 v224, {4*TS}, v6
    v_add_u32 v224, 1, v224
    v_bfm_b32 v225, v5, 0
    s_mul_i32 s26, s{H}, 28
    s_add_u32 s28, s26, 27
    s_xor_b32 s26, s26, s28
    s_mov_b32 s62, 0x55555555
    s_cmp_ge_u32 s26, 64
    s_cselect_b32 s62, -1, s62
    s_mov_b32 s63, s62
    s_lshr_b32 s28, s{J}, 2
    s_lshl4_add_u32 s26, s{H}, s28
    s_lshl_b32 s26, s26, 7
    s_add_u32 s26, s26, {WS_MB}""")
    spin_lds(a, 14, C_D, PCD, 8, sleep=1)
    at = lambda r: f"v_mov_b32 v{r}, 0\nbuffer_atomic_or v{r}, v221, s[8:11], s26 offen sc0 sc1"
    a(f"""s_mov_b32 s60, {SPIN_LIMIT}
    s_mov_b32 s52, 0x11111111
    s_mov_b32 s53, 0x11111111
    s_mov_b64 s[56:57], s[52:53]
    s_mov_b64 exec, s[62:63]""")
    for i in range(PD - 1): a(at(28 + i) + f"\ns_sleep {PG}")
    a("L_kv:")
    for i in range(PD):
        a(at(28 + (i + PD - 1) % PD))
        a(f"""s_waitcnt vmcnt({PD-1})
        v_cmp_ne_u32 vcc, s{T}, v{28+i}
        s_lshr_b64 s[28:29], vcc, 1
        s_or_b64 s[28:29], s[28:29], vcc
        s_andn2_b64 s[54:55], s[56:57], s[28:29]
        s_cbranch_scc0 L_kvs{i}
        s_ff1_i32_b64 s54, s[54:55]
        s_lshl_b64 exec, 1, s54
        ds_write_b32 v14, v224 offset:{C_M}
        s_mov_b64 exec, s[62:63]
        s_mov_b64 s[56:57], 0
        L_kvs{i}:
        s_lshr_b64 s[54:55], s[28:29], 2
        s_or_b64 s[28:29], s[28:29], s[54:55]
        s_andn2_b64 s[28:29], s[52:53], s[28:29]
        s_cbranch_scc0 L_kvn{i}
        s_andn2_b64 s[52:53], s[52:53], s[28:29]
        v_lshrrev_b64 v[4:5], v223, s[28:29]
        v_and_b32 v5, v225, v4
        v_bcnt_u32_b32 v5, v5, 0
        v_lshl_add_u32 v5, v5, 2, v222
        s_mov_b64 exec, s[28:29]
        ds_write_b32 v5, v224 offset:{C_R}
        s_mov_b64 exec, s[62:63]
        v_and_b32 v4, 0xffff, v4
        v_bcnt_u32_b32 v4, v4, 0
        v_lshl_add_u32 v222, v4, 2, v222
        s_cmp_eq_u64 s[52:53], 0
        s_cbranch_scc1 L_kvdone
        L_kvn{i}:""")
    a(f"""s_sub_u32 s60, s60, 1
    s_cbranch_scc0 L_kv
    s_endpgm
    L_kvdone:
    s_mov_b64 exec, -1
    L_svcB2:""")
    srd(a, 16, 38, 448 * 896)
    a(f"""s_and_b32 s53, s{H}, 3
    s_mul_i32 s53, s53, 224
    s_and_b32 s27, s{L}, 1
    s_mul_i32 s55, s27, {7*1024}
    s_mul_i32 s57, s27, {32*896}
    s_add_u32 s57, s57, s53""")
    spin_lds(a, 14, C_A, 256, 8, sleep=4)
    st(a, 3)
    a("ds_write_b128 v209, v[16:19]")
    lds_inc(a, 14, C_W, 15)
    a(f"""    s_cmp_lg_u32 s{L}, 2
    s_cbranch_scc1 L_nofl
    s_lshl_b32 s26, s2, 7
    s_add_u32 s26, s26, {WS_FL}""")
    flag_store(a, 5, 9, "s26")
    a("L_nofl:\ns_cmp_lt_u32 s2, 196\ns_cbranch_scc1 L_st2w\ns_branch L_wo1")
    a("L_st3:")
    spin_lds(a, 14, C_S, 4, 8, sleep=1)
    for k in range(4):
        a(f"ds_read_b64_tr_b16 {vr(DW+4*k,2)}, v210 offset:{k*2048}\nds_read_b64_tr_b16 {vr(DW+4*k+2,2)}, v210 offset:{k*2048+512}")
    for k in range(4):
        a(f"ds_read_b128 {vr(GP+4*k,4)}, v218 offset:{32*k}\ns_waitcnt lgkmcnt(0)\n{MF} {vr(AC,16)}, {vr(GP+4*k,4)}, {vr(DW+4*k,4)}, {'0' if k==0 else vr(AC,16)}")
    a(f"""s_mul_i32 s26, s{FT}, 14336
    s_lshl1_add_u32 s28, s{KS}, s27
    s_lshl_b32 s29, s28, 7
    s_add_u32 s26, s26, s29
    s_add_u32 s26, s26, {WS_YP}
    s_lshl2_add_u32 s28, s{FT}, s29
    s_add_u32 s28, s28, {WS_YFL}
    buffer_store_dword v{AC}, v215, s[8:11], s26 offen sc1
    buffer_store_dword v{AC+1}, v215, s[8:11], s26 offen offset:1792 sc1
    buffer_store_dword v{AC+2}, v216, s[8:11], s26 offen sc1
    buffer_store_dword v{AC+3}, v216, s[8:11], s26 offen offset:1792 sc1
    s_waitcnt vmcnt(0)""")
    signal(a, 5, 9, "s28", 1)
    st(a, 7)
    a("L_wo1:")
    srd(a, 16, 38, 448 * 896)
    a("s_mov_b32 s27, 0")
    spin_lds(a, 14, C_Z, 64 * ZN, 8, sleep=4)
    st(a, 4)
    a(f"""L_wo:
    s_mov_b64 exec, 1
    ds_add_rtn_u32 v8, v14, v15 offset:{C_B}
    s_mov_b64 exec, -1
    s_waitcnt lgkmcnt(0)
    v_readfirstlane_b32 s26, v8
    s_cmp_ge_u32 s26, 14
    s_cbranch_scc1 L_wodone
    s_add_u32 s27, s27, 1
    s_mul_i32 s55, s26, {7*1024}
    s_mul_i32 s57, s26, {32*896}
    s_add_u32 s57, s57, s53""")
    for e in range(7):
        a(f"""s_add_u32 m0, s55, {e*1024}
        s_waitcnt vmcnt({WD})
        buffer_load_dwordx4 v{200+e}, s[16:19], s57 offen lds""")
    a(f"""s_waitcnt vmcnt(7)
    s_mov_b64 exec, 1
    ds_add_u32 v14, v12 offset:{C_C}
    v_mov_b32 v12, 0
    s_branch L_wo
    L_wodone:
    v_mov_b32 v5, s27
    s_waitcnt vmcnt(0)""")
    lds_inc(a, 14, C_C, 12)
    lds_inc(a, 14, C_W, 5)
    st(a, 8)
    a.label("L_ofetch")
    a("s_waitcnt vmcnt(0) lgkmcnt(0)")
    st_end(a)
    a("L_exit:\nL_code_end:\ns_endpgm")

def main(out):
    hdr = open("cdna_kernels/" + NAME + ".s.ref").read().split("; Override")[0]
    rep = []
    a = Asm()
    prologue_and_loader(a); main_wave(a); service_wave(a)
    t = hdr
    t += f"; @launch grid=(256,1,1) block=(512,1,1) lds={LDS_BYTES}\n"
    t += '.amdgcn_target "amdgcn-amd-amdhsa--gfx950"\n'
    t += kernel_text(NAME + "_kernel", a.l, 256, report=rep)
    open(out, "w").write(t)
    if "-v" in sys.argv: print("\n".join(rep))

if __name__ == "__main__":
    main(sys.argv[1])
```

```python
import sys, math, struct
from asmlib import *

NAME = "gated_mix__softmax_full_mha__moe_arch_mod__prompt"
STAMP = "-s" in sys.argv
EXP = set(x[2:] for x in sys.argv if x.startswith("-x"))
WS_KV = 0
BLK = 5120; TS = 14 * BLK; KVB = 64 * TS
WS_O = 0x480000
WS_R = 0x680000
WS_G = WS_R + 16384
WS_SEL = WS_R + 32768
WS_EP = WS_R + 40960
WS_FL = WS_R + 65536
WS_MB = WS_FL + 32768
WS_OFL = WS_MB + 32768
WS_YFL = WS_OFL + 32768
WS_F1 = WS_YFL + 4096
WS_YP = WS_R + (1 << 18)
WS_GP = 0x730000
WS_ST = 16 << 20
XS = 0; WT = 65536; WQ = 122880; QX = 151552; UPD = 159744
WO = 0; CB = 102400
UPDI = UPD + 3584
KEYS = UPD
RT = UPD + 1024
CAND = UPD + 512
SELECTOR = 223
CNT = 163840 - 192
C_M = 88
LDS_BYTES = 163840
C_Q1, C_Q2, C_X, C_L, C_S, C_D, C_C, C_O, C_W, C_F, C_K, C_T, C_P, C_R = 0, 4, 8, 12, 16, 20, 24, 28, 32, 36, 40, 44, 48, 64

def f32bits(x): return struct.unpack("<I", struct.pack("<f", x))[0]
QSCALE = f32bits(28 ** -0.5 * math.log2(math.e))
NLOG2E = f32bits(-math.log2(math.e))
MF = "v_mfma_f32_32x32x16_bf16"
ROLE = [0, 1, 2, 3, 14, 4, 5, 6, 7, 8, 9, 15, 10, 11, 12, 13]
ROLE_LO = sum(ROLE[i] << (4 * i) for i in range(8))
ROLE_HI = sum(ROLE[8 + i] << (4 * i) for i in range(8))
SPIN_LIMIT = 1 << 20
NW1 = ([int(x[2:]) for x in EXP if x.startswith("nw")] + [14])[0]
WD = ([int(x[2:]) for x in EXP if x.startswith("wd")] + [14])[0]
GA = ([int(x[2:]) for x in EXP if x.startswith("ga")] + [2])[0]
GB = ([int(x[2:]) for x in EXP if x.startswith("gb")] + [12])[0]
C_A, C_B, C_Z = 92, 120, 124
ZN = ([int(x[2:]) for x in EXP if x.startswith("zn")] + [2])[0]
ZU = ([int(x[2:]) for x in EXP if x.startswith("zu")] + [1])[0]
NEARLYWO = ([int(x[2:]) for x in EXP if x.startswith("ew")] + [0])[0]
NQ1 = ([int(x[2:]) for x in EXP if x.startswith("nq")] + [4])[0]
WSBASE = ([int(x[2:]) for x in sys.argv if x.startswith("-w")] + [0])[0] << 20
PD = 2 if "pd2" in EXP else 4
PG = 6 if "pd2" in EXP else 3
PCD = 4 if "pcd4" in EXP else (0 if "pcd0" in EXP else 1)
KVS = 4 if "kvs4" in EXP else (0 if "kvs0" in EXP else 2)
PQ2 = 4 if "pq4" in EXP else (0 if "pq0" in EXP else 1)
PF0 = 2 if "pf2" in EXP else 0
WOP = 1 if "wo1" in EXP else (3 if "wo3" in EXP else 2)
OUTAUX = " sc1" if "outsc1" in EXP else (" nt" if "outnt" in EXP else "")

T, H, J, W, RL, ROT = 30, 31, 32, 33, 34, 3
_uid = [0]
def uid(p):
    _uid[0] += 1
    return f"{p}_{_uid[0]}"

def srd(a, d, ptr, nbytes):
    a(f"s_mov_b32 s{d}, s{ptr}\ns_mov_b32 s{d+1}, s{ptr+1}\ns_mov_b32 s{d+2}, {nbytes:#x}\ns_mov_b32 s{d+3}, 0x20000")

NST = 12
DIAG = [tuple(int(y) for y in x[2:].split("-")) for x in sys.argv if x.startswith("-d")]
def st(a, i):
    if STAMP: a(f"s_{'memrealtime' if 'rt' in EXP else 'memtime'} s[{72+2*i}:{73+2*i}]")
    if DIAG and i in DIAG[0]: a(f"s_memrealtime s[{72+2*i}:{73+2*i}]\ns_waitcnt lgkmcnt(0)")
def st_begin(a):
    if STAMP: a("s_memrealtime s[68:69]\ns_memtime s[72:73]" if "rt" not in EXP else "s_memrealtime s[68:69]\ns_memrealtime s[72:73]")
    if DIAG: a("s_memrealtime s[72:73]")
ABS = [x[2:] for x in sys.argv if x.startswith("-a")]
REL = [tuple(int(y) for y in x[2:].split("-")) for x in sys.argv if x.startswith("-r")]
if ABS:
    DIAG = [(0, 0 if ABS[0] == "z" else int(ABS[0].lstrip("m")))]
if REL:
    ABS = ["r"]; DIAG = REL
def diag_start(a):
    if not ABS: return
    a(f"""s_load_dwordx2 s[98:99], s[0:1], 80
    s_waitcnt lgkmcnt(0)
    s_cmp_ge_u32 s2, 8
    s_cbranch_scc1 L_dg0
    s_cmp_lg_u32 s{W}, 0
    s_cbranch_scc1 L_dg0
    s_lshl_b32 s70, s2, 2
    v_mov_b32 v4, s70
    v_mov_b32 v6, s72
    global_store_dword v4, v6, s[98:99] sc1
    L_dg0:""")
def diag_end(a):
    if not DIAG: return
    p, q = DIAG[0]
    if ABS:
        a(f"""s_waitcnt vmcnt(0)
        s_memrealtime s[96:97]
        s_mov_b64 exec, -1
        v_mov_b32 v4, 0
        global_load_dwordx4 v[8:11], v4, s[98:99] sc1
        global_load_dwordx4 v[12:15], v4, s[98:99] offset:16 sc1
        s_waitcnt vmcnt(0) lgkmcnt(0)
        v_min3_u32 v8, v8, v9, v10
        v_min3_u32 v8, v8, v11, v12
        v_min3_u32 v8, v8, v13, v14
        v_min_u32 v8, v8, v15
        s_nop 1
        v_readfirstlane_b32 s69, v8
        s_sub_u32 s70, s{72+2*q}, s69""")
        if ABS[0] == "z": a("s_mov_b32 s70, 0")
        if REL: a(f"s_sub_u32 s70, s{72+2*q}, s{72+2*p}\ns_lshl_b32 s70, s70, {0 if 'k1' in EXP else 2}")
        for x in EXP:
            if x.startswith("hm"): a(f"s_mov_b32 s71, 0x{x[2:]}\ns_bitcmp1_b32 s71, s{H}\ns_cselect_b32 s70, s70, 0")
            if x.startswith("xm"): a(f"s_getreg_b32 s71, hwreg(HW_REG_XCC_ID)\ns_and_b32 s71, s71, 7\ns_mov_b32 s68, 0x{x[2:]}\ns_bitcmp1_b32 s68, s71\ns_cselect_b32 s70, s70, 0")
            if x.startswith("jm"): a(f"s_mov_b32 s71, 0x{x[2:]}\ns_bitcmp1_b32 s71, s{J}\ns_cselect_b32 s70, s70, 0")
        if "onlynw" in EXP: a("s_cmp_ge_u32 s2, 196\ns_cselect_b32 s70, s70, 0")
        if "only23" in EXP: a(f"s_cmp_ge_u32 s{W}, 2\ns_cselect_b32 s70, s70, 0")
        if ABS[0].startswith("m"): a("s_sub_u32 s70, 2500, s70")
        a("s_add_u32 s70, s70, s69\ns_add_u32 s70, s70, 2500")
    else:
        a(f"""s_waitcnt vmcnt(0)
        s_memrealtime s[96:97]
        s_waitcnt lgkmcnt(0)
        s_sub_u32 s70, s{72+2*q}, s{72+2*p}
        s_add_u32 s70, s70, s96""")
    a(f"""L_diag:
    s_memrealtime s[68:69]
    s_waitcnt lgkmcnt(0)
    s_sub_u32 s71, s68, s70
    s_cmp_lt_i32 s71, 0
    s_cbranch_scc1 L_diag""")
def st_init(a):
    if STAMP:
        for i in range(1, NST): a(f"s_mov_b32 s{72+2*i}, s72")
def st_end(a):
    if not STAMP: return
    a(f"""s_waitcnt vmcnt(0)
    s_memrealtime s[70:71]
    s_{'memrealtime' if 'rt' in EXP else 'memtime'} s[{72+2*NST}:{73+2*NST}]
    s_getreg_b32 s66, hwreg(HW_REG_HW_ID)
    s_getreg_b32 s67, hwreg(HW_REG_XCC_ID)
    s_mov_b64 exec, -1
    s_lshl_b32 s65, s2, 3
    s_add_u32 s65, s65, s{W}
    s_lshl_b32 s65, s65, 6
    s_add_u32 s65, s65, {WS_ST}
    s_waitcnt lgkmcnt(0)
    v_mov_b32 v4, s68
    v_mov_b32 v5, s70
    v_mov_b32 v6, s66
    v_mov_b32 v7, s67""")
    for i in range(1, NST + 1):
        a(f"s_sub_u32 s64, s{72+2*i}, s72\nv_mov_b32 v{7+i}, s64")
    a("v_mov_b32 v2, 0\ns_mov_b64 exec, 1")
    for k in range(4):
        a(f"buffer_store_dwordx4 v[{4+4*k}:{7+4*k}], v2, s[8:11], s65 offen offset:{16*k}")

def poll_global(a, vdst, voff, soff, mask=None, sleep=1):
    l = uid("Lpoll"); d = uid("Lpd")
    a(f"s_mov_b32 s60, {SPIN_LIMIT}")
    if mask is not None: a(f"s_mov_b64 exec, {mask}")
    a(f"""{l}:
    buffer_load_dword v{vdst}, v{voff}, s[8:11], {soff} offen sc1
    s_waitcnt vmcnt(0)
    v_cmp_ne_u32 vcc, s{T}, v{vdst}
    s_cbranch_vccz {d}
    s_mov_b64 exec, vcc
    s_sleep {sleep}
    s_sub_u32 s60, s60, 1
    s_cbranch_scc0 {l}
    s_endpgm
    {d}:
    s_mov_b64 exec, -1""")

def poll_atomic(a, vdst, voff, soff, mask, sleep):
    l = uid("Lpa"); d = uid("Lpad")
    a(f"""s_mov_b32 s60, {SPIN_LIMIT}
    s_mov_b64 exec, {mask}
    {l}:
    v_mov_b32 v{vdst}, 0
    buffer_atomic_or v{vdst}, v{voff}, s[8:11], {soff} offen sc0 sc1
    s_waitcnt vmcnt(0)
    v_cmp_ne_u32 vcc, s{T}, v{vdst}
    s_cbranch_vccz {d}
    s_sleep {sleep}
    s_sub_u32 s60, s60, 1
    s_cbranch_scc0 {l}
    s_endpgm
    {d}:
    s_mov_b64 exec, -1""")

def poll_pipe(a, v0, voff, soff, mask, D=4, gap=3):
    l = uid("Lpp"); d = uid("Lppd")
    at = lambda r: f"v_mov_b32 v{r}, 0\nbuffer_atomic_or v{r}, v{voff}, s[8:11], {soff} offen sc0 sc1"
    a(f"s_mov_b32 s60, {SPIN_LIMIT}\ns_mov_b64 exec, {mask}")
    for i in range(D - 1): a(at(v0 + i) + f"\ns_sleep {gap}")
    a(f"{l}:")
    for i in range(D):
        a(at(v0 + (i + D - 1) % D))
        a(f"s_waitcnt vmcnt({D-1})\nv_cmp_ne_u32 vcc, s{T}, v{v0+i}\ns_cbranch_vccz {d}")
    a(f"""s_sub_u32 s60, s60, 1
    s_cbranch_scc0 {l}
    s_endpgm
    {d}:
    s_mov_b64 exec, -1""")

def signal(a, vt, voff, soff, mask):
    a(f"v_mov_b32 v{vt}, s{T}\ns_mov_b64 exec, {mask}\nbuffer_atomic_swap v{vt}, v{voff}, s[8:11], {soff} offen sc1\ns_mov_b64 exec, -1")

def spin_lds(a, vaddr, off, want, vt, sleep=0):
    l = uid("Lsp"); d = uid("Lsd")
    if not sleep:
        a(f"""s_mov_b32 s60, {SPIN_LIMIT}
        {l}:
        ds_read_b32 v{vt}, v{vaddr} offset:{off}
        s_sub_u32 s60, s60, 1
        s_cbranch_scc1 L_exit
        s_waitcnt lgkmcnt(0)
        v_readfirstlane_b32 s61, v{vt}
        s_cmp_ge_u32 s61, {want}
        s_cbranch_scc0 {l}""")
        return
    a(f"""s_mov_b32 s60, {SPIN_LIMIT}
    {l}:
    ds_read_b32 v{vt}, v{vaddr} offset:{off}
    s_waitcnt lgkmcnt(0)
    v_readfirstlane_b32 s61, v{vt}
    s_cmp_ge_u32 s61, {want}
    s_cbranch_scc1 {d}""")
    if sleep: a(f"s_sleep {sleep}")
    a(f"""s_sub_u32 s60, s60, 1
    s_cbranch_scc0 {l}
    s_endpgm
    {d}:""")

def lds_inc(a, vaddr, off, vone):
    a(f"s_mov_b64 exec, 1\nds_add_u32 v{vaddr}, v{vone} offset:{off}\ns_mov_b64 exec, -1")

def flag_store(a, vt, vz, soff):
    a(f"v_mov_b32 v{vt}, s{T}\ns_mov_b64 exec, 1\nbuffer_store_dword v{vt}, v{vz}, s[8:11], {soff} offen sc1\ns_mov_b64 exec, -1")

def split_neg_max(a, m, t0, t1, q6, q7):
    a(f"""v_sub_f32 v{m}, 0, v{m}
    v_cvt_pk_bf16_f32 v{t0}, v{m}, v{m}
    v_lshlrev_b32 v{t0}, 16, v{t0}
    v_sub_f32 v{t0}, v{m}, v{t0}
    v_cvt_pk_bf16_f32 v{t1}, v{m}, v{t0}
    v_and_b32 v{m}, 0xffff0000, v{t1}
    v_sub_f32 v{t0}, v{t0}, v{m}
    s_mov_b32 exec_lo, 0
    v_mov_b32 v{q6}, v{t1}
    v_cvt_pk_bf16_f32 v{q7}, v{t0}, 0
    s_mov_b32 exec_lo, -1""")

def max16_list(dst, S, init=False):
    if not init:
        return ([f"v_max3_f32 v{dst}, v{S}, v{S+1}, v{S+2}"] +
                [f"v_max3_f32 v{dst}, v{dst}, v{S+i}, v{S+i+1}" for i in range(3, 15, 2)] +
                [f"v_max_f32 v{dst}, v{dst}, v{S+15}"])
    return [f"v_max3_f32 v{dst}, v{dst}, v{S+i}, v{S+i+1}" for i in range(0, 16, 2)]

def wave_min_u32(a, v, full=True):
    for r in (1, 2, 4, 8):
        a(f"v_min_u32_dpp v{v}, v{v}, v{v} row_ror:{r} row_mask:0xf bank_mask:0xf")
    a(f"v_min_u32_dpp v{v}, v{v}, v{v} row_bcast:15 row_mask:0xa bank_mask:0xf")
    if full: a(f"v_min_u32_dpp v{v}, v{v}, v{v} row_bcast:31 row_mask:0xc bank_mask:0xf")

def rank_count(a, own, base, n, dst, t):
    a(f"v_mov_b32 v{dst}, 0\nv_mov_b32 v{t}, 0")
    for k in range(0, n, 4):
        a(f"s_waitcnt lgkmcnt({(n-k)//4-1})")
        for e in range(4): a(f"v_sub_u32 v{base+k+e}, v{own}, v{base+k+e}")
        for e in range(4):
            r = (dst, t)[e & 1]
            a(f"v_alignbit_b32 v{r}, v{r}, v{base+k+e}, 31")
    a(f"v_bcnt_u32_b32 v{dst}, v{dst}, 0\nv_bcnt_u32_b32 v{dst}, v{t}, v{dst}")

def tag(a):
    a(f"s_mul_i32 s{T}, s{T}, 0x9e3779b1\ns_add_u32 s{T}, s{T}, 0x7f4a7c15")

def next_chunk(a, s):
    a(f"s_add_u32 s{s}, s{s}, 1\ns_cmp_eq_u32 s{s}, 7\ns_cselect_b32 s{s}, 0, s{s}")

Q, O, KV, S, P = 8, 40, 104, 168, 200
XF = 104; A0, A1, WF = 40, 56, 72
VX = 216; VW = 220; VQ = 222; VC = 223; V1 = 224; VZ = 225; VT = 226; VH = 227
VA = 228; TMP = 232; XR = 240; GR = 248; VWQ = 250; VF = 251; VFS = 252; VXO = 253; VGO = 254
VI = 219
SM = "v_smfmac_f32_32x32x32_bf16"
OWN = 3
L = 35

def prologue_and_loader(a):
    MAPCODE = ""
    if "map2" in EXP:
        MAPCODE = f"s_and_b32 s26, s25, 1\ns_lshl1_add_u32 s{H}, s24, s26\ns_lshr_b32 s{J}, s25, 1\ns_lshl1_add_u32 s{ROT}, s26, s{J}\ns_add_u32 s{ROT}, s{ROT}, s24\ns_and_b32 s{ROT}, s{ROT}, 3\ns_lshl_b32 s{ROT}, s{ROT}, 1"
        if "norot" in EXP: MAPCODE += f"\ns_mov_b32 s{ROT}, 0"
    TADDR = "v_lshl_add_u32 v8, v3, 7, s58"
    if "tfull" in EXP: TADDR = "s_add_u32 s58, s58, 2048\nv_add_u32 v8, s58, v1"
    elif "t32" in EXP: TADDR = "v_and_b32 v8, 62, v3\nv_mul_u32_u24 v8, 48, v8\nv_add3_u32 v8, v8, v1, s58"
    else: TADDR = "v_and_b32 v8, 60, v3\nv_lshl_add_u32 v8, v8, 4, s58\nv_add_u32 v8, v8, v1"
    if "rot7" in EXP:
        ROTCODE = f"s_lshl1_add_u32 s{ROT}, s27, s26\ns_cmp_ge_u32 s{ROT}, 7\ns_cselect_b32 s26, 7, 0\ns_sub_u32 s{ROT}, s{ROT}, s26"
    elif "rot2" not in EXP and "norot" not in EXP and "rot23" not in EXP:
        ROTCODE = f"s_add_u32 s{ROT}, s27, s26\ns_and_b32 s{ROT}, s{ROT}, 3\ns_lshl_b32 s{ROT}, s{ROT}, 1"
    elif "norot" in EXP:
        ROTCODE = f"s_mov_b32 s{ROT}, 0"
    elif "rot23" in EXP:
        ROTCODE = f"s_add_u32 s{ROT}, s27, s26\ns_and_b32 s{ROT}, s{ROT}, 1\ns_mul_i32 s{ROT}, s{ROT}, 3"
    else:
        ROTCODE = f"s_add_u32 s{ROT}, s27, s26\ns_and_b32 s{ROT}, s{ROT}, 1\ns_lshl_b32 s{ROT}, s{ROT}, 2"
    st_begin(a)
    a(f"""s_load_dwordx4 s[4:7], s[0:1], 0
    s_load_dwordx2 s[36:37], s[0:1], 88
    s_load_dwordx2 s[38:39], s[0:1], 16
    s_load_dwordx8 s[40:47], s[0:1], 32
    s_load_dwordx4 s[48:51], s[0:1], 64
    s_cmp_ge_u32 s2, 256
    s_cbranch_scc1 L_exit
    v_lshrrev_b32 v2, 6, v0
    v_and_b32 v3, 63, v0
    s_and_b32 s24, s2, 7
    s_lshr_b32 s25, s2, 3
    v_readfirstlane_b32 s{W}, v2
    s_and_b32 s{H}, s24, 1
    s_lshl_b32 s{H}, s{H}, 3
    s_and_b32 s26, s25, 7
    s_add_u32 s{H}, s{H}, s26
    s_lshr_b32 s27, s25, 3
    s_and_b32 s{J}, s24, 6
    s_lshl1_add_u32 s{J}, s{J}, s27
    {ROTCODE}
    {MAPCODE}
    s_mov_b32 s28, {ROLE_LO:#x}
    s_mov_b32 s29, {ROLE_HI:#x}
    s_lshl_b32 s27, s{H}, 2
    s_lshr_b64 s[28:29], s[28:29], s27
    s_and_b32 s{RL}, s28, 15
    v_lshlrev_b32 v1, 4, v3
    s_mov_b32 s27, {WS_EP}
    s_cmp_lt_u32 s{W}, 4
    s_cbranch_scc1 L_main
    """)
    a(f"""s_setprio 2
    s_sub_u32 s{L}, s{W}, 4
    v_lshrrev_b32 v4, 3, v3
    v_mul_u32_u24 v5, 896, v4
    v_and_b32 v6, 7, v3
    v_lshrrev_b32 v7, 4, v3
    v_xor_b32 v7, v6, v7
    v_lshl_add_u32 v10, v7, 4, v5
    v_xor_b32 v11, 64, v10
    v_add_u32 v12, {2*6144}, v10
    v_add_u32 v13, {3*6144}, v11
    v_add_u32 v11, 6144, v11
    v_mul_u32_u24 v5, 2688, v4
    v_and_b32 v4, 2, v4
    v_lshlrev_b32 v4, 1, v4
    v_xor_b32 v4, v4, v6
    v_lshl_add_u32 v14, v4, 4, v5
    v_add_u32 v15, {8*2688-1024}, v14
    s_lshl2_add_u32 s52, s{J}, s{L}
    s_mul_i32 s58, s52, 14
    s_add_u32 s58, s58, s{RL}
    s_mul_i32 s58, s58, {BLK}
    {TADDR}
    s_mul_i32 s52, s52, {32*896}
    s_lshl_b32 s53, s{RL}, 7
    s_mul_i32 s26, s{L}, {16*2688}
    s_add_u32 s53, s53, s26
    s_add_u32 s53, s53, 896
    s_lshl_b32 s54, s{L}, 12
    s_lshl_b32 s55, s{L}, 11
    s_add_u32 s55, s55, {WT}
    s_mov_b32 s56, s{ROT}
    s_mov_b32 s57, 0
    s_mov_b32 s14, {2048*896}
    s_mov_b32 s15, 0x20000
    s_cmp_ge_u32 s{RL}, 14
    s_cselect_b32 s18, 0, {448*2688}
    s_mov_b32 s19, 0x20000
    s_waitcnt lgkmcnt(0)
    s_mov_b64 s[12:13], s[4:5]
    s_mov_b64 s[16:17], s[6:7]
    s_load_dword s{T}, s[36:37], s27""")
    st_init(a); st(a, 1)
    TPOS = ([int(x[2:]) for x in EXP if x.startswith("tp")] + [4])[0]
    TOUCH = "global_store_dwordx4 v8, v[10:13], s[36:37] sc1\nglobal_store_dwordx4 v8, v[10:13], s[36:37] offset:2048 sc1"
    if "tfull" in EXP:
        TOUCH = "\n".join(f"global_store_dwordx4 v8, v[10:13], s[36:37] offset:{1024*k-2048} sc1" for k in range(5))
    if "t32" in EXP: TOUCH = "global_store_dwordx4 v8, v[10:13], s[36:37] sc1"
    if "notouch" in EXP: TOUCH = ""
    a("s_cbranch_scc1 L_tbl")
    if TPOS == 0: a(TOUCH)
    a(f"""L_ld:
    s_mul_i32 s26, s56, {64*2688}
    s_mov_b32 m0, s55
    s_add_u32 s26, s26, s53
    s_lshl_b32 s28, s56, 7
    buffer_load_dwordx4 v14, s[16:19], s26 offen lds
    buffer_load_dwordx4 v15, s[16:19], s26 offen offset:1024 lds
    s_mov_b32 m0, s54
    s_add_u32 s28, s28, s52
    buffer_load_dwordx4 v10, s[12:15], s28 offen lds
    buffer_load_dwordx4 v11, s[12:15], s28 offen offset:1024 lds
    buffer_load_dwordx4 v12, s[12:15], s28 offen offset:2048 lds
    buffer_load_dwordx4 v13, s[12:15], s28 offen offset:3072 lds
    s_add_u32 s55, s55, 8192
    s_add_u32 s54, s54, 16384
    s_and_b32 s54, s54, 0xffff""")
    next_chunk(a, 56)
    if "tlb" in EXP:
        a(f"s_or_b32 s26, s57, s{L}\ns_cbranch_scc0 L_tlb\nL_tlb_done:")
    if "tsplit" in EXP:
        a(f"s_sub_u32 s26, s57, {TPOS-1}\ns_cmp_ge_u32 s26, 2\ns_cbranch_scc1 L_nt\ns_cmp_eq_u32 s18, 0\ns_cbranch_scc1 L_nt\nglobal_store_dwordx4 v8, v[10:13], s[36:37] sc1\nv_add_u32 v8, 2048, v8\nL_nt:")
    elif TPOS:
        a(f"s_cmp_lg_u32 s57, {TPOS-1}\ns_cbranch_scc1 L_nt")
        if "mbt" in EXP:
            a(f"""s_lshl2_add_u32 s26, s{H}, s{L}
            s_lshr_b32 s28, s{J}, 2
            s_lshl2_add_u32 s26, s26, s28
            s_lshl_b32 s26, s26, 7
            s_add_u32 s26, s26, {WS_MB}
            v_mov_b32 v4, s26
            v_mov_b32 v5, 0
            s_mov_b64 exec, 1
            global_atomic_or v4, v5, s[36:37] sc1
            s_mov_b64 exec, -1""")
        a(f"s_cmp_eq_u32 s18, 0\ns_cbranch_scc1 L_nt\n{TOUCH}\nL_nt:")
    a(f"""s_add_u32 s57, s57, 1
    s_cmp_lt_u32 s57, 3
    s_cbranch_scc1 L_ld
    s_waitcnt vmcnt(12)
    s_barrier
    s_cmp_lt_u32 s57, 7
    s_cbranch_scc1 L_ld
    """)
    a(f"""v_lshrrev_b32 v4, 2, v3
    v_mul_u32_u24 v4, 2688, v4
    v_and_b32 v5, 3, v3
    v_lshl_add_u32 v16, v5, 4, v4
    s_mov_b32 s18, {448*2688}
    s_mul_i32 s53, s{H}, 56
    s_and_b32 s53, s53, 0xfffffff0
    s_mul_i32 s26, s{L}, {16*2688}
    s_add_u32 s53, s53, s26
    s_lshl_b32 s55, s{L}, 10
    s_add_u32 s55, s55, {WQ}""")
    for i in range(NQ1):
        a(f"""s_mul_i32 s26, s56, {64*2688}
        s_add_u32 m0, s55, {i*4096}
        s_add_u32 s26, s26, s53
        buffer_load_dwordx4 v16, s[16:19], s26 offen lds""")
        if i < NQ1 - 1: next_chunk(a, 56)
        if i == 1: a("s_waitcnt vmcnt(8)\ns_barrier")
        if i == 3: a("s_waitcnt vmcnt(4)\ns_barrier")
    st(a, 2)
    a("s_branch L_service")
    a(f"""L_tbl:
    s_bitcmp1_b32 s{L}, 0
    s_cselect_b64 s[20:21], s[48:49], s[40:41]
    s_cselect_b32 s26, 1024, 0
    s_movk_i32 s22, 896
    s_mov_b32 s23, 0x20000
    s_add_u32 m0, s26, {RT}
    s_lshl_b32 s28, s{ROT}, 7
    v_add_u32 v4, s28, v1
    v_subrev_u32 v6, 896, v4
    v_min_u32 v4, v4, v6
    buffer_load_dwordx4 v4, s[20:23], 0 offen lds
    s_branch L_ld""")
    if "tlb" in EXP:
        a("L_tlb:")
        if "tlbR" in EXP: a(f"s_cmp_lt_u32 s{RL}, 14\ns_cbranch_scc1 L_tlb_done")
        for off in (0, 2 << 20, 4 << 20):
            a(f"s_mov_b32 s26, {off + 4032}\ns_load_dword s66, s[36:37], s26")
        for p in (42, 44, 38, 46, 50):
            a(f"s_load_dword s66, s[{p}:{p+1}], 0")
        a("s_branch L_tlb_done")

def main_wave(a):
    a.label("L_main")
    if "twait" in EXP: st(a, 11)
    if "nocodepf" not in EXP:
        a(f"""s_cmp_lg_u32 s{W}, 0
        s_cbranch_scc1 L_nopf
        s_getpc_b64 s[28:29]
        L_pc:
        s_and_b32 s26, s25, 3
        s_lshl_b32 s26, s26, 13
        v_lshl_add_u32 v4, v3, 7, s26
        v_min_u32 v4, L_code_end-L_pc, v4
        global_load_dword v255, v4, s[28:29]
        L_nopf:""")
    a(f"""s_setprio 1
    v_and_b32 v{VT}, 31, v3
    v_lshrrev_b32 v{VH}, 5, v3
    v_mov_b32 v{V1}, 1
    v_mov_b32 v{VZ}, 0
    v_mov_b32 v{VC}, {CNT}
    v_lshrrev_b32 v4, 2, v1
    v_add_u32 v4, {UPDI}, v4
    v_mov_b32 v6, -1
    s_mov_b32 exec_hi, 0
    ds_write_b32 v4, v6
    v_and_b32 v6, 7, v3
    v_cmp_eq_u32 vcc, 4, v6
    v_mov_b32 v7, {KVB+1}
    v_cndmask_b32 v6, 0, v7, vcc
    ds_write_b32 v4, v6 offset:{CNT-UPDI+C_R}
    s_mov_b32 exec_lo, 0xffff
    ds_write_b32 v4, v{VZ} offset:{CNT-UPDI}
    s_mov_b64 exec, -1
    v_lshrrev_b32 v4, 1, v{VT}
    v_and_b32 v4, 7, v4
    v_xor_b32 v4, v4, v{VH}
    v_lshlrev_b32 v4, 4, v4
    v_lshl_add_u32 v4, v{VT}, 7, v4
    s_lshl_b32 s26, s{W}, 12
    v_add_u32 v{VX}, s26, v4
    v_xor_b32 v{VX+1}, 32, v{VX}
    v_xor_b32 v{VX+2}, 64, v{VX}
    v_xor_b32 v{VX+3}, 96, v{VX}
    v_bfe_u32 v4, v3, 2, 2
    v_lshl_add_u32 v12, v{VH}, 3, v4
    v_and_b32 v6, 3, v3
    v_and_b32 v7, 1, v3
    v_bfe_u32 v8, v3, 1, 1
    v_lshl_add_u32 v7, v7, 1, v8
    v_bfe_u32 v8, v3, 4, 1
    v_lshl_add_u32 v9, v8, 2, v7
    v_lshl_add_u32 v10, v8, 2, v6
    s_cmp_lt_u32 s{RL}, 7
    s_cselect_b64 vcc, -1, 0
    v_cndmask_b32 v10, v10, v9, vcc
    v_lshlrev_b32 v11, 7, v12
    v_lshl_add_u32 v11, v10, 3, v11
    v_lshrrev_b32 v4, 1, v4
    v_lshl_add_u32 v11, v4, 6, v11
    v_add_u32 v{VW}, {WT}, v11
    v_xor_b32 v{VW+1}, 64, v{VW}
    ; Wq piece: even h: u ; odd h: u<6 ? u+2 : 7-u
    v_add_u32 v10, 2, v9
    v_sub_u32 v11, 7, v9
    v_cmp_gt_u32 vcc, 6, v9
    v_cndmask_b32 v10, v11, v10, vcc
    s_bitcmp1_b32 s{H}, 0
    s_cselect_b64 vcc, -1, 0
    v_cndmask_b32 v10, v9, v10, vcc
    v_lshlrev_b32 v11, 6, v12
    v_lshl_add_u32 v11, v10, 3, v11
    v_add_u32 v{VQ}, {WQ}, v11
    v_lshrrev_b32 v4, 2, v3
    v_mul_u32_u24 v4, 2688, v4
    v_lshl_add_u32 v{VWQ}, v6, 4, v4
    s_cmp_ge_u32 s{RL}, 7
    s_cselect_b32 s26, 7, 0
    s_cselect_b32 s29, 2, 0
    s_sub_u32 s26, s{RL}, s26
    s_mul_i32 s28, s26, {64*2341}
    s_lshr_b32 s28, s28, 16
    v_add_u32 v4, s28, v6
    v_mul_u32_u24 v7, 28, v4
    v_lshrrev_b32 v7, 6, v7
    v_cmp_ge_u32 s[64:65], s26, v7
    v_cmp_ne_u32 vcc, s26, v7
    s_and_b32 s28, s{J}, 12
    s_add_u32 s29, s28, s29
    v_mov_b32 v7, s29
    v_addc_co_u32 v7, vcc, 0, v7, vcc
    s_and_b32 s28, s{J}, 3
    v_lshl_add_u32 v4, v4, 2, s28
    v_bfe_u32 v8, v3, 2, 2
    v_lshl_add_u32 v4, v4, 2, v8
    v_lshlrev_b32 v4, 7, v4
    v_lshl_add_u32 v{VFS}, v7, 2, v4
    s_and_b32 s64, s64, 0xffff
    s_cmp_ge_u32 s{RL}, 14
    s_cselect_b32 s64, 0, s64
    s_mov_b32 s65, 0
    s_lshl_b32 s28, s{W}, 5
    v_add_u32 v{VF}, s28, v{VC}
    s_lshl_b32 s28, s{J}, 2
    ; output tile: qb3 = 4j + (h>>2) ; byte col = (4*(h&3) + w)*56
    s_lshr_b32 s58, s{H}, 2
    s_add_u32 s58, s58, s28
    s_and_b32 s59, s{H}, 3
    s_lshl2_add_u32 s59, s59, s{W}
    s_mul_i32 s59, s59, 56
    s_lshl_b32 s28, s58, 5
    v_add_u32 v4, s28, v{VT}
    v_mul_u32_u24 v{VXO}, 896, v4
    v_lshl_add_u32 v{VXO}, v{VH}, 4, v{VXO}
    v_lshlrev_b32 v{VGO}, 3, v4
    s_waitcnt lgkmcnt(0)
    """)
    st_init(a)
    srd(a, 8, 36, (1 << 28) - WSBASE)
    srd(a, 16, 6, 448 * 2688)
    srd(a, 12, 4, 2048 * 896)
    if "wqpf" in EXP:
        a(f"""s_cmp_lg_u32 s{W}, 1
        s_cbranch_scc1 L_nopf2
        v_lshrrev_b32 v4, 2, v3
        v_min_u32 v4, 13, v4
        v_mul_u32_u24 v4, 2688, v4
        v_and_b32 v6, 3, v3
        v_lshl_add_u32 v4, v6, 7, v4
        s_mul_i32 s26, s25, {14*2688}
        s_and_b32 s28, s24, 1
        s_mul_i32 s28, s28, 384
        s_add_u32 s26, s26, s28
        buffer_load_dword v5, v4, s[16:19], s26 offen
        L_nopf2:""")
    if "wopfS" in EXP:
        srd(a, 20, 38, 448 * 896)
        a(f"""s_cmp_lg_u32 s{W}, 2
        s_cbranch_scc1 L_nopf3
        s_mul_i32 s26, s2, {13*128}
        v_lshl_add_u32 v4, v3, 7, s26
        s_mov_b64 exec, 0x1fff
        buffer_load_dword v5, v4, s[20:23], 0 offen
        s_mov_b64 exec, -1
        L_nopf3:""")
    a(f"""s_mul_i32 s62, s{H}, 56
    s_and_b32 s62, s62, 0xfffffff0
    s_mul_i32 s26, s{W}, {16*2688}
    s_add_u32 s62, s62, s26
    s_lshl_b32 s63, s{W}, 10
    s_add_u32 s63, s63, {WQ}
    s_lshl2_add_u32 s35, s{J}, s{W}
    s_mul_i32 s52, s35, 14
    s_add_u32 s52, s52, s{RL}
    s_mul_i32 s52, s52, {BLK}
    s_add_u32 s53, s52, 4096
    v_and_b32 v9, 19, v{VT}
    v_bfe_u32 v4, v{VT}, 2, 1
    v_lshl_add_u32 v9, v4, 3, v9
    v_bfe_u32 v4, v{VT}, 3, 1
    v_lshl_add_u32 v9, v4, 2, v9
    s_lshr_b32 s26, s{H}, 1
    s_mul_i32 s26, s26, 7
    s_and_b32 s28, s{H}, 1
    s_lshl2_add_u32 s29, s28, s26
    v_add_u32 v4, s29, v{VH}
    v_lshrrev_b32 v6, 3, v4
    v_mul_u32_u24 v6, {BLK-4096}, v6
    v_lshl_add_u32 v6, v4, 9, v6
    v_lshl_add_u32 v{VA}, v9, 4, v6
    v_add_u32 v4, 2, v4
    v_lshrrev_b32 v6, 3, v4
    v_mul_u32_u24 v6, {BLK-4096}, v6
    v_lshl_add_u32 v6, v4, 9, v6
    s_add_u32 s26, s26, 3
    s_lshr_b32 s29, s26, 3
    s_mul_i32 s29, s29, {BLK}
    s_and_b32 s26, s26, 1
    s_lshl_b32 s26, s26, 9
    s_add_u32 s29, s29, s26
    s_add_u32 s29, s29, 4096
    v_mov_b32 v7, s29
    v_and_b32 v4, s28, v{VH}
    v_cmp_eq_u32 vcc, 1, v4
    v_cndmask_b32 v6, v6, v7, vcc
    v_lshl_add_u32 v{VA+1}, v9, 4, v6
    s_mul_i32 s26, s{H}, 28
    v_add_u32 v4, s26, v{VT}
    v_lshrrev_b32 v6, 6, v4
    v_mul_u32_u24 v6, {BLK}, v6
    v_bfe_u32 v7, v4, 5, 1
    v_lshl_add_u32 v6, v7, 11, v6
    v_and_b32 v4, 31, v4
    v_lshl_add_u32 v6, v4, 4, v6
    v_lshl_add_u32 v6, v{VH}, 9, v6
    v_add_u32 v6, {7*BLK}, v6
    v_add_u32 v8, 1024, v6
    s_lshr_b32 s26, s26, 6
    s_mul_i32 s26, s26, {BLK}
    s_add_u32 s26, s26, {7*BLK + 4096 - 28*16}
    v_lshl_add_u32 v7, v{VT}, 4, s26
    v_cmp_le_u32 vcc, 28, v{VT}
    v_cndmask_b32 v{VA+2}, v6, v7, vcc
    v_cndmask_b32 v{VA+3}, v8, v7, vcc
    s_cmp_ge_u32 s{RL}, 14
    s_cbranch_scc1 L_roleR
    s_cmp_ge_u32 s{RL}, 7
    s_cbranch_scc1 L_roleV""")

    def gemm(kind):
        if "twait" in EXP:
            st(a, 10)
        def reads(c, s):
            k = 4 * c + s
            a(f"ds_read_b128 {vr(XF+4*k,4)}, v{VX+s} offset:{(c&3)*16384}")
            f = WF + 8 * s
            if kind == "R":
                a(f"ds_read_b128 {vr(f,4)}, v{VW} offset:{k*32}")
            else:
                for n in range(2):
                    a(f"ds_read_b64_tr_b16 {vr(f+4*n,2)}, v{VW+n} offset:{k*2048}")
                    a(f"ds_read_b64_tr_b16 {vr(f+4*n+2,2)}, v{VW+n} offset:{k*2048+512}")
        def mfmas(c, s, ns=None):
            k = 4 * c + s
            f = WF + 8 * s
            for n in (ns or range(1 if kind == "R" else 2)):
                acc = (A0, A1)[n]
                cc = "0" if k == 0 else vr(acc, 16)
                if kind == "V": a(f"{MF} {vr(acc,16)}, {vr(XF+4*k,4)}, {vr(f+4*n,4)}, {cc}")
                else:           a(f"{MF} {vr(acc,16)}, {vr(f+4*n,4)}, {vr(XF+4*k,4)}, {cc}")
        per = 2 if kind == "R" else 5
        for c in range(7):
            a("s_barrier")
            if c == 0: st(a, 1)
            if c == 6: st(a, 2)
            if STAMP and c in (0, 6): a("s_waitcnt lgkmcnt(0)")
            reads(c, 0); reads(c, 1)
            for s in range(4):
                if s < 2: reads(c, s + 2)
                a(f"s_waitcnt lgkmcnt({min(3 - s, 2) * per})")
                if c == 6 and kind != "R" and s >= 2: mfmas(c, s, (0,))
                else: mfmas(c, s)
            if c == 6 and kind != "R":
                mfmas(c, 2, (1,)); mfmas(c, 3, (1,))

    PK = 8
    MS = 20
    a(f"""v_add_u32 v4, s{RL}, v{VH}""")
    for i in range(4):
        a(f"""v_cmp_eq_u32 vcc, {3-2*i}, v4
        v_cmp_eq_u32 s[{MS+2*i}:{MS+1+2*i}], {10-2*i}, v4
        s_or_b64 s[{MS+2*i}:{MS+1+2*i}], s[{MS+2*i}:{MS+1+2*i}], vcc""")
    for e in range(4): a(f"v_mov_b32 v{TMP+e}, 0x3f803f80")
    a(f"""s_or_b64 s[28:29], s[{MS}:{MS+1}], s[{MS+2}:{MS+3}]
    s_or_b64 s[54:55], s[{MS+4}:{MS+5}], s[{MS+6}:{MS+7}]
    s_or_b64 s[54:55], s[54:55], s[28:29]
    s_mov_b64 exec, 0
    s_branch L_epi
    L_backK:
    s_mov_b64 exec, -1""")
    gemm("K")
    a("s_branch L_epi")
    a.label("L_roleR")
    if "pfx" in EXP:
        C0 = 1 if "pf1" in EXP else 2
        a(f"""v_mul_u32_u24 v4, 896, v{VT}
        v_lshl_add_u32 v4, v{VH}, 7, v4
        s_mul_i32 s26, s35, {32*896}
        v_lshrrev_b32 v6, 3, v{VT}
        v_mul_u32_u24 v6, 2688, v6
        v_and_b32 v7, 7, v3
        v_min_u32 v7, 6, v7
        v_lshl_add_u32 v6, v7, 7, v6
        v_mul_u32_u24 v7, {64*2688}, v{VH}
        v_add_u32 v6, v6, v7
        s_and_b32 s28, s35, 15
        s_mul_i32 s28, s28, {4*2688}
        s_and_b32 s29, s24, 1
        s_mul_i32 s29, s29, 896
        s_add_u32 s28, s28, s29
        s_add_u32 s28, s28, {896 + C0*64*2688}""")
        for c in range(C0, 7, 2):
            if c == 6: a("s_mov_b32 exec_hi, 0")
            a(f"""buffer_load_dword v5, v4, s[12:15], s26 offen offset:{128*c}
            buffer_load_dword v5, v6, s[16:19], s28 offen
            s_add_u32 s28, s28, {128*2688}""")
        a("s_mov_b64 exec, -1")
    a(f"""v_and_b32 v4, 1, v3
    v_lshlrev_b32 v4, 10, v4
    v_lshl_add_u32 v4, v{VH}, 4, v4
    v_add_u32 v{VW}, {RT}, v4
    s_lshl_b32 s26, s{W}, 7
    s_add_u32 s26, s26, {KEYS}
    v_lshl_add_u32 v12, v{VT}, 2, s26
    v_lshl_add_u32 v13, v{VH}, 6, s26""")
    gemm("R")
    a(f"""s_cmp_lg_u32 s{RL}, 14
    s_cbranch_scc1 L_pub
    s_mov_b32 exec_hi, 0
    s_nop 9
    v_cvt_pk_bf16_f32 v4, v{A0}, v{A0+1}
    v_and_b32 v5, 0xffff0000, v4
    v_lshlrev_b32 v4, 16, v4
    v_ashrrev_i32 v6, 31, v4
    v_or_b32 v6, 0x80000000, v6
    v_xor_b32 v6, v6, v4
    v_lshrrev_b32 v6, 16, v6
    v_lshlrev_b32 v6, 11, v6
    v_cmp_u_f32 vcc, v4, v4
    v_cndmask_b32 v6, v6, 0, vcc
    s_lshl_b32 s26, s35, 5
    v_add_u32 v7, s26, v{VT}
    v_sub_u32 v8, 0x7ff, v7
    v_or_b32 v6, v6, v8
    v_lshlrev_b32 v9, 3, v7
    ds_write_b32 v12, v6
    s_mov_b32 exec_hi, -1
    ds_read_b32 v6, v12
    ds_read_b128 v[16:19], v13
    ds_read_b128 v[20:23], v13 offset:16
    ds_read_b128 v[24:27], v13 offset:32
    ds_read_b128 v[28:31], v13 offset:48""")
    rank_count(a, 6, 16, 16, 14, 15)
    a(f"""v_mov_b32 v15, v14
    s_lshl_b32 s26, s{W}, 5
    s_add_u32 s26, s26, {CAND}
    v_permlane32_swap_b32 v14, v15
    v_add_u32 v14, v14, v15
    v_cmp_gt_u32 vcc, 8, v14
    v_lshl_add_u32 v14, v14, 2, s26
    s_mov_b64 exec, vcc
    ds_write_b32 v14, v6
    s_mov_b64 exec, 1
    ds_add_u32 v{VC}, v{V1} offset:{C_K}
    s_mov_b32 exec_lo, -1
    v_mul_f32 v5, {NLOG2E:#x}, v5
    v_exp_f32 v5, v5
    v_add_f32 v5, 1.0, v5
    v_rcp_f32 v5, v5
    v_cvt_pk_bf16_f32 v5, v5, v5
    v_lshlrev_b32 v10, 16, v5
    s_mov_b32 exec_hi, -1
    s_branch L_pub
    """)
    a.label("L_roleV")
    a(f"""v_cmp_eq_u32 vcc, 0, v3
    v_mov_b32 v7, 0x3f803f80
    v_cndmask_b32 v{TMP}, 0, v7, vcc""")
    for e in range(1, 4): a(f"v_mov_b32 v{TMP+e}, v{TMP}")
    for i in range(4): a(f"s_mov_b64 s[{MS+2*i}:{MS+1+2*i}], 0")
    a("s_mov_b64 s[54:55], 0xff")
    gemm("V")
    a("L_epi:\ns_cbranch_execz L_backK")
    for i in range(4):
        acc = (A0, A1)[i >> 1] + 8 * (i & 1)
        p = PK + 4 * i
        for e in (2, 3, 0, 1): a(f"v_cvt_pk_bf16_f32 v{p+e}, v{acc+2*e}, v{acc+2*e+1}")
        a(f"""s_mov_b64 exec, s[{MS+2*i}:{MS+1+2*i}]
        v_swap_b32 v{TMP}, v{p+2}
        v_swap_b32 v{TMP+1}, v{p+3}
        s_mov_b64 exec, -1
        buffer_store_dwordx4 {vr(p,4)}, v1, s[8:11], s52 offen offset:{1024*i} sc1""")
    a(f"s_mov_b64 exec, s[54:55]\nbuffer_store_dwordx4 {vr(TMP,4)}, v1, s[8:11], s53 offen sc1\ns_mov_b64 exec, -1")
    a.label("L_pub")
    diag_start(a)
    st(a, 3)
    a(f"s_add_u32 s56, s{ROT}, {NQ1}\ns_cmp_ge_u32 s56, 7\ns_cselect_b32 s26, 7, 0\ns_sub_u32 s56, s56, s26")
    for i in range(NQ1, 7):
        a(f"""s_mul_i32 s26, s56, {64*2688}
        s_add_u32 m0, s63, {i*4096}
        s_add_u32 s26, s26, s62
        buffer_load_dwordx4 v{VWQ}, s[16:19], s26 offen lds""")
        if i < 6: next_chunk(a, 56)
    QO = Q + 8 * OWN
    SK = TMP
    a(f"""s_mov_b64 s[16:17], s[36:37]
    s_mov_b32 s18, {KVB}
    s_mov_b32 s57, 0""")
    def ldK(b, soff, base=None):
        r = KV + 16 * b if base is None else base
        return [f"buffer_load_dwordx4 {vr(r,4)}, v{VA}, s[16:19], {soff} offen sc1",
                f"buffer_load_dwordx4 {vr(r+4,4)}, v{VA+1}, s[16:19], {soff} offen sc1"]
    def ldV(b, soff):
        return [f"buffer_load_dwordx4 {vr(KV+16*b+8,4)}, v{VA+2}, s[16:19], {soff} offen sc1",
                f"buffer_load_dwordx4 {vr(KV+16*b+12,4)}, v{VA+3}, s[16:19], {soff} offen sc1"]
    def try_loads(block=False):
        d = uid("Ltl"); l = uid("Ltr"); g = uid("Ltg")
        a(f"s_cmp_eq_u32 s57, 2\ns_cbranch_scc1 {d}")
        if block: a(f"s_mov_b32 s60, {SPIN_LIMIT}\n{l}:\ns_sub_u32 s60, s60, 1\ns_cbranch_scc1 L_exit")
        a(f"""ds_read_b32 v4, v{VF} offset:{C_R}
        ds_read_b32 v5, v{VC} offset:{C_M}
        s_cmp_eq_u32 s57, 1
        s_waitcnt lgkmcnt(0)
        v_readfirstlane_b32 s56, v4
        s_cbranch_scc1 {g}
        v_readfirstlane_b32 s29, v5
        s_sub_u32 s29, s29, 1
        s_cbranch_scc1 {l if block else d}
        s_mov_b32 s57, 1""")
        for x in ldK(0, "s29", SK): a(x)
        a(f"""{g}:
        s_sub_u32 s27, s56, 1
        s_cbranch_scc1 {l if block else d}
        s_add_u32 s54, s56, {TS-1}
        s_add_u32 s55, s56, {2*TS-1}
        s_add_u32 s56, s56, {3*TS-1}
        s_mov_b32 s57, 2""")
        st(a, 6)
        for x in ldK(0, "s27") + ldV(0, "s27") + ldK(1, "s54") + ldV(1, "s54") + ([] if "up4" not in EXP else ldK(2, "s55") + ldV(2, "s55") + ldK(3, "s56")): a(x)
        a(f"{d}:")
    def qreads(k):
        f = WF + 4 * (k & 7)
        a(f"ds_read_b64_tr_b16 {vr(f,2)}, v{VQ} offset:{k*1024}\nds_read_b64_tr_b16 {vr(f+2,2)}, v{VQ} offset:{k*1024+256}")
    def publish():
        a(f"""s_mov_b32 s28, {WS_MB}
        v_readfirstlane_b32 s{T}, v11
        v_mov_b32 v6, v11
        s_mov_b64 exec, 1
        s_waitcnt vmcnt({7-NQ1})""")
        st(a, 4)
        a(f"""ds_add_rtn_u32 v4, v{VC}, v{V1} offset:{C_D}
        s_waitcnt lgkmcnt(0)
        v_cmp_eq_u32 vcc, 3, v4
        s_cbranch_vccz L_notlast
        s_mov_b64 exec, s[64:65]
        s_cbranch_execz L_notlast
        buffer_atomic_swap v6, v{VFS}, s[8:11], s28 offen sc1
        s_waitcnt vmcnt(1)
        s_branch L_published
        L_notlast:
        s_waitcnt vmcnt(0)
        s_cmp_lg_u32 s{RL}, 14
        s_cbranch_scc1 L_published
        s_mov_b32 s26, {WS_G}
        s_mov_b32 exec_lo, -1
        buffer_store_dwordx2 v[10:11], v9, s[8:11], s26 offen sc1
        L_published:""")
        a("s_mov_b64 exec, -1")
    def qgemm(lo, hi, cnt):
        spin_lds(a, VC, cnt, 4, 4)
        if not lo: a(f"ds_read_b32 v11, v{VC} offset:{C_T}")
        for k in range(lo, min(hi, lo + 6)): qreads(k)
        for k in range(lo, hi):
            if k + 6 < hi: qreads(k + 6)
            a(f"s_waitcnt lgkmcnt({2*(min(hi-1,k+6)-k)})")
            a(f"{MF} {vr(A0,16)}, {vr(WF+4*(k&7),4)}, {vr(XF+4*k,4)}, {'0' if k==0 else vr(A0,16)}")
    def qepi():
        for i in range(8): a(f"v_mov_b32 v{KV+56+i}, 0")
        a(f"""s_lshl_b32 s26, s{W}, 11
        s_add_u32 s26, s26, {QX}
        v_add_u32 v5, s26, v1
        s_mov_b32 s62, {QSCALE:#x}
        s_mov_b32 s63, {QSCALE:#x}""")
        for i in range(8): a(f"v_pk_mul_f32 {vr(A0+2*i,2)}, {vr(A0+2*i,2)}, s[62:63]")
        for i in range(8): a(f"v_cvt_pk_bf16_f32 v{QO+i}, v{A0+2*i}, v{A0+2*i+1}")
        a(f"""s_mov_b32 exec_lo, 0
        v_mov_b32 v{QO+6}, 0
        v_mov_b32 v{QO+7}, 0
        s_mov_b32 exec_lo, -1
        ds_write_b128 v5, {vr(QO,4)}
        ds_write_b128 v5, {vr(QO+4,4)} offset:1024""")
        lds_inc(a, VC, C_X, V1)
        for i in range(0, 48, 2): a(f"v_pk_mul_f32 {vr(O+i,2)}, {vr(KV+56,2)}, {vr(KV+56,2)}")
    qgemm(0, 4 * NQ1, C_Q1)
    if NQ1 == 7 and "qfirst" in EXP:
        st(a, 5)
        qepi(); publish(); try_loads()
    elif NQ1 == 7:
        st(a, 5)
        publish(); try_loads(); qepi()
    else:
        publish()
        lds_inc(a, VC, C_Q2, V1)
        try_loads()
        qgemm(4 * NQ1, 28, C_Q2)
        st(a, 5)
        try_loads()
        qepi()
    spin_lds(a, VC, C_X, 4, 4)
    for i in range(3):
        a(f"""s_add_u32 s26, s{W}, {i+1}
        s_and_b32 s26, s26, 3
        s_lshl_b32 s26, s26, 11
        s_add_u32 s26, s26, {QX}
        v_add_u32 v5, s26, v1
        ds_read_b128 {vr(Q+8*i,4)}, v5
        ds_read_b128 {vr(Q+8*i+4,4)}, v5 offset:1024""")
    for i in range(3):
        a(f"""s_add_u32 s26, s{W}, {i+1}
        s_and_b32 s26, s26, 3
        s_mul_i32 s26, s26, 12288
        s_add_u32 s26, s26, {CB + i*4096}
        v_add_u32 v{VX+i}, s26, v1""")
    a(f"s_mul_i32 s26, s{W}, 12288\ns_add_u32 s26, s26, {CB}\nv_add_u32 v2, s26, v1")
    a(f"v_mov_b32 v{VI}, 0xdddddddd")
    try_loads(block=True)
    def QK(u, m):
        kt, qs = (u >> 2) & 3, u & 3
        s = S + 16 * (u & 1)
        c = "0" if m == 0 else vr(s, 16)
        return f"{MF} {vr(s,16)}, {vr(KV+16*kt+4*m,4)}, {vr(Q+8*qs+4*m,4)}, {c}"
    def PV(u, m):
        kt, qs = (u >> 2) & 3, u & 3
        return f"{SM} {vr(O+16*qs,16)}, {vr(KV+16*kt+8+4*m,4)}, {vr(S+16*(u&1)+8*m,8)}, v{VI}"
    SS = [P, S + 16, S, O + 48]
    def samp(i, m): return f"{MF} {vr(SS[i],16)}, {vr(SK+4*m,4)}, {vr(Q+8*i+4*m,4)}, {'0' if m == 0 else vr(SS[i],16)}"
    def mx(i):
        for x in max16_list(4, SS[i]): a(x)
        a(f"s_mov_b32 exec_lo, 0\nv_cvt_pk_bf16_f32 v{Q+8*i+6}, -v4, 0\ns_mov_b32 exec_lo, -1")
    a(f"s_waitcnt vmcnt({8 if 'up4' not in EXP else 14}) lgkmcnt(0)")
    for i in (0, 2): a(samp(i, 0)); a(samp(i, 1))
    a(samp(1, 0)); a(samp(1, 1))
    mx(0)
    a(samp(3, 0)); a(samp(3, 1))
    mx(2)
    a(f"s_waitcnt vmcnt({6 if 'up4' not in EXP else 12})")
    a(QK(0, 0)); a(QK(0, 1))
    if "up4" not in EXP:
        for x in ldK(2, "s55") + ldV(2, "s55") + ldK(3, "s56"): a(x)
    mx(1)
    for i in range(0, 8, 2): a(f"v_pk_mul_f32 {vr(S+24+i,2)}, {vr(KV+56,2)}, {vr(KV+56,2)}")
    mx(3)
    for i in range(48, 64, 2): a(f"v_pk_mul_f32 {vr(O+i,2)}, {vr(KV+56,2)}, {vr(KV+56,2)}")
    st(a, 7)
    a(f"s_mov_b32 s57, 2\ns_mov_b32 s53, {WS_G}\ns_waitcnt vmcnt(10)")
    def substep(u, ex, last=False):
        s = S + 16 * (u & 1)
        e = lambda lo, hi: [f"v_exp_f32 v{s+i}, v{s+i}" for i in range(lo, hi)]
        q0, q1 = ([], []) if last else ([QK(u+1, 0)], [QK(u+1, 1)])
        c = (2, 6, 10, 14) if "even" in EXP else (2, 5, 8, 14)
        seq = (e(0, c[0]) + [PV(u-1, 1)] + ex[0] + e(c[0], c[1]) + q0 + ex[1] + e(c[1], c[2]) + q1 + ex[2] +
               e(c[2], c[3]) + [PV(u, 0)] + ex[3] + e(c[3], 16))
        for x in seq: a(x)
    a(".p2align 6")
    a.label("L_loop")
    for u in range(16):
        kt, qs = u >> 2, u & 3
        ex = [[], [], [], []]
        if qs == 0:
            l = ldV((kt + 3) & 3, "s56")
            ex[0] = [l[0]]; ex[3] = [l[1]]
        if qs == 1: ex[1] = [f"s_add_u32 s56, s56, {TS}"]
        if u == 0: ex[1] = [f"ds_read_b32 v7, v{VF} offset:{C_R+4}"]
        if u == 1:
            ex[0] = ["s_waitcnt lgkmcnt(0)", "v_readfirstlane_b32 s56, v7"]
            ex[1] = ["s_sub_u32 s56, s56, 1"]
            ex[2] = ["s_cbranch_scc1 L_nextwait", "L_nextok:", f"v_add_u32 v{VF}, 4, v{VF}"]
        if qs == 2: ex[3] = ["s_waitcnt vmcnt(10)"]
        if qs == 3:
            l = ldK(kt, "s56")
            ex[0] = [l[0]]; ex[3] = [l[1], "s_waitcnt vmcnt(10)"]
        if u == GA and "defer" not in EXP: ex[2] = ex[2] + [f"ds_add_u32 v{VC}, v{V1} offset:{C_A}"]
        if u == 15: ex[2] = ["s_sub_u32 s57, s57, 1"]
        substep(u, ex)
    a("s_cbranch_scc0 L_loop")
    wr = lambda i, k: f"ds_write_b128 v{VX+i}, {vr(O+16*i+4*k,4)} offset:{k*1024}"
    for u in range(16):
        ex = [[], [], [], []]
        if u == 0:
            l = ldV(3, "s56"); ex[0] = [l[0]]; ex[3] = [l[1]]
        if u == 1:
            ex[0] = [f"buffer_load_dwordx2 {vr(GR,2)}, v{VGO}, s[8:11], s53 offen sc1"]
            ex[1] = [f"buffer_load_dwordx4 {vr(XR,4)}, v{VXO}, s[12:15], s59 offen"]
            pass
            ex[3] = [f"buffer_load_dwordx4 {vr(XR+4,4)}, v{VXO}, s[12:15], s59 offen offset:32"]
        if u == ZU and "defer" not in EXP: ex[2] = [f"ds_add_u32 v{VC}, v{V1} offset:{C_Z}"]
        w_ = {2: 13, 3: 11, 6: 9, 7: 7, 10: 5, 11: 0}
        if u in w_: ex[3] = [f"s_waitcnt vmcnt({w_[u]})"]
        if u == 13: ex[2] = [wr(0, 0)]; ex[3] = [wr(0, 1)]
        if u == 14:
            st(a, 8)
            if EXP & {"d1", "d2", "d3"}: a(f"ds_add_u32 v{VC}, v{V1} offset:{C_X}")
            if "defer" in EXP: a(f"ds_add_u32 v{VC}, v{V1} offset:{C_Z}\nds_add_u32 v{VC}, v{V1} offset:{C_A}\nds_add_u32 v{VC}, v{V1} offset:{C_A}")
            ex = [[wr(0, 2)], [wr(0, 3)], [wr(1, 0)], [wr(1, 1)]]
        if u == 15: ex = [[wr(1, 2)], [wr(1, 3)], [], [wr(2, 0)]]
        substep(u, ex, last=(u == 15))
    a(wr(2, 1)); a(PV(15, 1)); a(wr(2, 2)); a(wr(2, 3))
    lds_inc(a, VC, C_C, V1)
    srd(a, 20, 50, 2048 * 896)
    TT = S
    OO = O + 16 * OWN
    a(f"""s_lshl_b32 s28, s35, 4
    s_add_u32 s28, s28, s{H}
    s_lshr_b32 s56, s28, 2
    s_lshl_b32 s56, s56, 5
    s_and_b32 s26, s{H}, 3
    s_add_u32 s56, s56, s26
    s_lshl_b32 s56, s56, 2
    s_add_u32 s56, s56, {WS_OFL}
    s_lshl_b32 s52, s28, 11
    s_add_u32 s52, s52, {WS_O}
    s_mov_b32 s57, 0""")
    spin_lds(a, VC, C_C, 6, 7)
    for k in range(12): a(f"ds_read_b128 {vr(TT+4*k,4)}, v2 offset:{k*1024}")
    for i in range(3):
        a(f"s_waitcnt lgkmcnt({8-4*i})")
        for k in (6, 7, 0, 1, 2, 3, 4, 5): a(f"v_pk_add_f32 {vr(OO+2*k,2)}, {vr(OO+2*k,2)}, {vr(TT+16*i+2*k,2)}")
    a.label("L_fin")
    a(f"""v_mov_b32 v5, v{OO+12}
    v_mov_b32 v4, v{OO+12}
    s_mov_b32 exec_lo, 0
    v_mov_b32 v{OO+12}, 0
    s_mov_b32 exec_lo, -1
    v_permlane32_swap_b32 v5, v4
    v_rcp_f32 v6, v4
    s_mov_b32 s28, 0x2b800000
    s_mov_b32 s29, 0x6c800000
    v_cmp_nle_f32 s[54:55], s28, v4
    v_cmp_nge_f32 s[62:63], s29, v4
    v_pk_add_f32 v[4:5], {vr(OO,2)}, {vr(OO+2,2)}""")
    for k in range(2, 8): a(f"v_pk_add_f32 v[4:5], v[4:5], {vr(OO+2*k,2)}")
    a(f"""v_add_f32 v4, v4, v5
    s_movk_i32 s28, 0x207
    v_cmp_class_f32 vcc, v4, s28
    s_or_b64 s[54:55], s[54:55], s[62:63]""")
    for k in range(8): a(f"v_pk_mul_f32 {vr(OO+2*k,2)}, {vr(OO+2*k,2)}, v[6:7] op_sel_hi:[1,0]")
    for k in range(8): a(f"v_cvt_pk_bf16_f32 v{Q+k}, v{OO+2*k}, v{OO+2*k+1}")
    a(f"""v_mov_b32 v6, s{T}
    s_or_b64 s[54:55], s[54:55], vcc
    s_cbranch_scc1 L_bad
    L_good:
    buffer_store_dwordx4 {vr(Q,4)}, v1, s[8:11], s52 offen sc1
    buffer_store_dwordx4 {vr(Q+4,4)}, v1, s[8:11], s52 offen offset:1024 sc1
    s_mov_b64 exec, 1
    {"s_waitcnt vmcnt(0)" if ("noclr" in EXP or "otouch" in EXP) else ""}
    buffer_atomic_swap v6, v{VZ}, s[8:11], s56 offen sc1
    s_mov_b64 exec, -1""")
    st(a, 9)
    WOF = 104; B = 232; ACC = 8; U = 72
    OSB = [40, 72]
    PLR = 36
    at = lambda r: f"v_mov_b32 v{r}, 0\ns_mov_b64 exec, 15\nbuffer_atomic_or v{r}, v7, s[8:11], s56 offen sc0 sc1\ns_mov_b64 exec, -1"
    a(f"""s_lshl2_add_u32 s28, s58, s{W}
    s_lshl_b32 s54, s28, 13
    s_add_u32 s54, s54, {WS_O}
    s_add_u32 s55, s54, 4096
    s_lshl_b32 s56, s28, 7
    s_add_u32 s56, s56, {WS_OFL}
    v_lshrrev_b32 v7, 2, v1
    {at(PLR)}
    v_bfe_u32 v4, v3, 2, 2
    v_lshl_add_u32 v4, v{VH}, 2, v4
    v_mul_u32_u24 v4, 224, v4
    v_bfe_u32 v5, v3, 4, 1
    v_lshl_add_u32 v4, v5, 5, v4
    v_and_b32 v5, 1, v3
    v_lshl_add_u32 v4, v5, 4, v4
    v_bfe_u32 v5, v3, 1, 1
    v_lshl_add_u32 v4, v5, 3, v4
    s_mul_i32 s28, s{W}, 56
    v_add_u32 v4, s28, v4""")
    for r in range(4):
        a(f"""s_add_u32 s26, s{W}, {r}
        s_and_b32 s26, s26, 3
        s_mul_i32 s28, s26, {4*28*224}
        v_add_u32 v{24+r}, s28, v4""")
        if r:
            a(f"s_mul_i32 s28, s26, 12288\ns_add_u32 s28, s28, {CB}\nv_add_u32 v{32+r}, s28, v1")
    a(f"""v_lshlrev_b32 v30, 2, v{VT}
    v_add_u32 v30, {UPDI}, v30
    s_mul_i32 s28, s{W}, 112
    s_add_u32 s28, s28, {UPD}
    v_lshl_add_u32 v28, v{VH}, 5, s28
    v_mov_b32 v29, {CNT}
    s_lshl_b32 s28, 0x11, s{W}
    v_mov_b32 v31, s28""")
    spin_lds(a, 29, C_W, 16, 6)
    def word(k):
        o = (28 * ((k >> 1) & 3) + 16 * (k & 1)) * 224
        b = 24 + (k >> 3)
        a(f"ds_read_b64_tr_b16 {vr(WOF+4*k,2)}, v{b} offset:{o}\nds_read_b64_tr_b16 {vr(WOF+4*k+2,2)}, v{b} offset:{o+8*224}")
    a(at(PLR + 1))
    for k in range(NW1):
        word(k)
        if k == NW1 // 2 - 1: a(at(PLR + 2))
    a(f"s_mov_b32 s60, {SPIN_LIMIT}\ns_mov_b64 exec, 15\nL_op:")
    for i in range(4):
        a(f"""v_mov_b32 v{PLR+(i+3)%4}, 0
        buffer_atomic_or v{PLR+(i+3)%4}, v7, s[8:11], s56 offen sc0 sc1
        s_waitcnt vmcnt(3)
        v_cmp_ne_u32 vcc, s{T}, v{PLR+i}
        s_cbranch_vccz L_of""")
    a(f"""s_sub_u32 s60, s60, 1
    s_cbranch_scc0 L_op
    s_endpgm
    L_of:
    s_mov_b64 exec, -1""")
    if "twait" not in EXP: st(a, 10)
    def oload():
        for k in range(8):
            a(f"buffer_load_dwordx4 {vr(OSB[0]+4*k,4)}, v1, s[8:11], {'s54' if k < 4 else 's55'} offen offset:{(k&3)*1024} sc1")
    oload()
    for k in range(NW1, 32): word(k)
    for k in range(8):
        a(f"v_lshlrev_b32 v{B+2*k}, 16, v{XR+k}\nv_and_b32 v{B+2*k+1}, 0xffff0000, v{XR+k}")
    a(f"""v_cmp_ne_u32 vcc, s{T}, v{GR+1}
    s_cbranch_vccnz L_gate
    L_gate_ok:
    v_sub_f32 v24, 1.0, v{GR}
    v_cvt_pk_bf16_f32 v24, v24, v24
    v_lshlrev_b32 v24, 16, v24""")
    def stub(): pass
    def need(bit):
        l = uid("Lnd")
        a(f"""{l}:
        ds_read_b32 v6, v29 offset:{C_O}
        s_sub_u32 s60, s60, 1
        s_cbranch_scc1 L_exit
        s_waitcnt lgkmcnt(0)
        v_readfirstlane_b32 s61, v6
        s_bitcmp1_b32 s61, {bit}
        s_cbranch_scc0 {l}""")
    def rd(g):
        for k in range(8): a(f"ds_read_b128 {vr(OSB[g&1]+4*k,4)}, v{32+g} offset:{k*1024}")
    def mm(g, lo, hi):
        for k in range(lo, hi):
            a(f"{MF} {vr(ACC,16)}, {vr(WOF+32*g+4*k,4)}, {vr(OSB[g&1]+4*k,4)}, {'0' if g == 0 and k == 0 else vr(ACC,16)}")
    a(f"""ds_read_b32 v6, v29 offset:{C_O}
    s_mov_b32 s57, 0
    s_waitcnt lgkmcnt(0)
    v_readfirstlane_b32 s61, v6
    s_bitcmp1_b32 s61, 10
    s_cbranch_scc1 L_blkU
    s_mov_b32 s57, 1
    L_next0:
    v_mov_b32 v4, 0""")
    for k in range(8):
        r = OSB[0] + 4 * k
        a(f"""s_waitcnt vmcnt({7-k})
        ds_write_b128 v2, {vr(r,4)} offset:{k*1024}""")
        if k < 6: mm(0, k, k + 1)
        a(f"""v_max3_u32 v4, v4, v{r}, v{r+1}
        v_max3_u32 v4, v4, v{r+2}, v{r+3}""")
    a("v_cmp_eq_u32 vcc, -1, v4\ns_cbranch_vccnz L_again")
    lds_inc(a, 29, C_O, 31)
    a(f"s_mov_b32 s27, s{W}")
    for g in range(4):
        if g < 3: a(f"ds_read_b32 v6, v29 offset:{C_O}\ns_add_u32 s27, s27, 1")
        if g: a("s_waitcnt lgkmcnt(0)")
        mm(g, 0 if g else 6, 2 if g else 8)
        if g < 3:
            if not g: a("s_waitcnt lgkmcnt(0)")
            a(f"v_readfirstlane_b32 s61, v6\ns_bitcmp1_b32 s61, s27\ns_cbranch_scc0 L_late{g}")
            rd(g + 1)
        mm(g, 2 if g else 8, 8)
        a(f"L_back{g}:")
    a("s_cmp_lg_u32 s57, 0\ns_cbranch_scc1 L_lateU\nL_next1:")
    if "twait" not in EXP: st(a, 11)
    a("s_nop 9")
    for x in EXP:
        if x.startswith("err"):
            a(f"s_or_b32 s26, s2, s{W}\ns_cmp_eq_u32 s26, 0\ns_cselect_b64 exec, 1, 0\nv_add_f32 v{B}, {f32bits(float(x[3:])):#x}, v{B}\ns_mov_b64 exec, -1")
        if x.startswith("all"):
            for k in range(16): a(f"v_add_f32 v{B+k}, {f32bits(float(x[3:])):#x}, v{B+k}")
    for m in range(2):
        for e in range(4*m, 4*m+4):
            a(f"v_pk_fma_f32 {vr(B+2*e,2)}, {vr(ACC+2*e,2)}, {vr(GR,2)}, {vr(B+2*e,2)} op_sel_hi:[1,0,1]")
        for e in range(4*m, 4*m+4): a(f"v_cvt_pk_bf16_f32 v{40+e}, v{B+2*e}, v{B+2*e+1}")
        if m == 0:
            a(f"buffer_store_dwordx4 v[40:43], v{VXO}, s[20:23], s59 offen{OUTAUX}")
            stub()
        else:
            a(f"""s_mov_b32 exec_hi, 0
            buffer_store_dwordx4 v[44:47], v{VXO}, s[20:23], s59 offen offset:32{OUTAUX}
            s_mov_b64 exec, 0xffffffff
            s_not_b64 exec, exec
            buffer_store_dwordx2 v[44:45], v{VXO}, s[20:23], s59 offen offset:32{OUTAUX}""")
    st_end(a)
    diag_end(a)
    a("s_endpgm")
    for g in range(3):
        a(f"L_late{g}:")
        mm(g, 2 if g else 8, 8)
        need("s27"); rd(g + 1)
        a(f"s_branch L_back{g}")
    a("L_again:\ns_sub_u32 s60, s60, 1\ns_cbranch_scc1 L_exit\ns_waitcnt lgkmcnt(0)")
    oload()
    a("s_branch L_next0")
    a("L_lateU:")
    need(10)
    a(f"""L_blkU:
    ds_read_b32 v6, v30
    s_waitcnt lgkmcnt(0)
    v_cmp_le_i32 vcc, 0, v6
    s_cbranch_vccz L_noupd
    s_mov_b64 exec, vcc
    v_mul_u32_u24 v6, 448, v6
    v_add_u32 v28, v28, v6""")
    for k in range(4): a(f"ds_read_b128 {vr(U+4*k,4)}, v28 offset:{64*(k>>1)+16*(k&1)}")
    a("s_waitcnt lgkmcnt(0)")
    for k in range(8):
        a(f"""v_pk_add_f32 {vr(B+2*k,2)}, {vr(B+2*k,2)}, {vr(U+2*k,2)}
        v_cvt_pk_bf16_f32 v{B+2*k}, v{B+2*k}, v{B+2*k+1}
        v_and_b32 v{B+2*k+1}, 0xffff0000, v{B+2*k}
        v_lshlrev_b32 v{B+2*k}, 16, v{B+2*k}""")
    a("s_mov_b64 exec, -1\nL_noupd:")
    stub()
    for k in range(8): a(f"v_pk_mul_f32 {vr(B+2*k,2)}, {vr(B+2*k,2)}, v[24:25] op_sel_hi:[1,0]")
    a("s_cmp_lg_u32 s57, 0\ns_cbranch_scc1 L_next1\ns_branch L_next0")
    a("L_bad:\ns_cmp_eq_u32 s57, 0\ns_cbranch_scc1 L_slow")
    for k in range(8): a(f"v_min_u32 v{Q+k}, -2, v{Q+k}")
    a("s_branch L_good")
    a.label("L_nextwait")
    spin_lds(a, VF, C_R + 4, 1, 7)
    a("s_sub_u32 s56, s61, 1\ns_branch L_nextok")
    a(f"""L_gate:
    s_mov_b32 s26, {WS_G}
    s_mov_b32 s60, {SPIN_LIMIT}
    L_gate1:
    buffer_load_dwordx2 {vr(GR,2)}, v{VGO}, s[8:11], s26 offen sc1
    s_waitcnt vmcnt(0)
    v_cmp_ne_u32 vcc, s{T}, v{GR+1}
    s_cbranch_vccz L_gate_ok
    s_sub_u32 s60, s60, 1
    s_cbranch_scc0 L_gate1
    s_endpgm""")
    a.label("L_slow")
    a(f"""s_mov_b32 s57, 1
    s_mov_b32 s55, {KVB}
    s_mov_b32 s54, 0
    s_mov_b32 exec_lo, 0
    v_mov_b32 v{QO+6}, 0
    v_mov_b32 v{QO+7}, 0
    s_mov_b32 exec_lo, -1
    v_mov_b32 v4, 0xff800000
    L_slow1:
    {ldK(0, "s54")[0]}
    {ldK(0, "s54")[1]}
    s_waitcnt vmcnt(0)
    {MF} {vr(S,16)}, {vr(KV,4)}, {vr(QO,4)}, 0
    {MF} {vr(S,16)}, {vr(KV+4,4)}, {vr(QO+4,4)}, {vr(S,16)}""")
    for x in max16_list(4, S, init=True): a(x)
    a(f"""s_add_u32 s54, s54, {TS}
    s_cmp_lt_u32 s54, s55
    s_cbranch_scc1 L_slow1
    v_mov_b32 v5, v4
    v_permlane32_swap_b32 v4, v5
    v_max_f32 v4, v4, v5""")
    split_neg_max(a, 4, 5, 6, QO + 6, QO + 7)
    for i in range(16): a(f"v_mov_b32 v{OO+i}, 0")
    a(f"""s_mov_b32 s54, 0
    L_slow2:
    {ldK(0, "s54")[0]}
    {ldK(0, "s54")[1]}
    {ldV(0, "s54")[0]}
    {ldV(0, "s54")[1]}
    s_waitcnt vmcnt(0)
    {MF} {vr(S,16)}, {vr(KV,4)}, {vr(QO,4)}, 0
    {MF} {vr(S,16)}, {vr(KV+4,4)}, {vr(QO+4,4)}, {vr(S,16)}""")
    for i in range(16): a(f"v_exp_f32 v{S+i}, v{S+i}")
    a(f"""{SM} {vr(OO,16)}, {vr(KV+8,4)}, {vr(S,8)}, v{VI}
    {SM} {vr(OO,16)}, {vr(KV+12,4)}, {vr(S+8,8)}, v{VI}
    s_nop 7
    s_nop 7
    s_add_u32 s54, s54, {TS}
    s_cmp_lt_u32 s54, s55
    s_cbranch_scc1 L_slow2
    s_branch L_fin""")

GI = 0; DI = QX; HB = 101376
FT, KS = 66, 67
def service_wave(a):
    a.label("L_service")
    a(f"""v_mov_b32 v14, {CNT}
    v_mov_b32 v15, 1
    v_mov_b32 v12, 0
    v_mov_b32 v9, 0""")
    srd(a, 8, 36, (1 << 28) - WSBASE)
    a("s_waitcnt lgkmcnt(0)")
    tag(a)
    a(f"v_mov_b32 v4, s{T}\nds_write_b32 v14, v4 offset:{C_T}\ns_waitcnt vmcnt(0)")
    lds_inc(a, 14, C_Q1, 15)
    a(f"""v_and_b32 v32, 31, v3
    v_lshrrev_b32 v33, 5, v3
    v_lshlrev_b32 v219, 3, v1
    v_lshrrev_b32 v220, 2, v1
    v_and_b32 v4, 7, v3
    v_lshlrev_b32 v217, 3, v4
    s_lshr_b32 s58, s{H}, 2
    s_lshl2_add_u32 s58, s{J}, s58
    v_lshlrev_b32 v211, 11, v33
    v_lshl_add_u32 v211, v32, 4, v211
    v_and_b32 v4, 24, v3
    v_lshl_add_u32 v4, v33, 2, v4
    v_lshl_add_u32 v4, v217, 4, v4
    s_lshl_b32 s26, s{L}, 5
    s_add_u32 s26, s26, {HB}
    v_add_u32 v214, s26, v4
    s_mul_i32 s{FT}, s2, 9363
    s_lshr_b32 s{FT}, s{FT}, 16
    s_mul_i32 s26, s{FT}, 7
    s_sub_u32 s{KS}, s2, s26
    s_cmp_ge_u32 s{L}, 2
    s_cbranch_scc1 L_svcB""")
    def sel_load(lbl):
        a(f"""s_mov_b32 s26, {WS_SEL}
        s_mov_b32 s60, {SPIN_LIMIT}
        {lbl}:
        buffer_load_dwordx2 v[20:21], v217, s[8:11], s26 offen sc1
        s_waitcnt vmcnt(0)
        v_cmp_ne_u32 vcc, s{T}, v21
        s_cbranch_vccz {lbl}_ok
        s_sleep 4
        s_sub_u32 s60, s60, 1
        s_cbranch_scc0 {lbl}
        s_endpgm
        {lbl}_ok:""")
    a(f"""s_lshl_b32 s27, s{J}, 6
    s_add_u32 s27, s27, {WS_R}
    s_cmp_eq_u32 s{RL}, 14
    s_cbranch_scc1 L_rank
    s_cmp_lg_u32 s2, {SELECTOR}
    s_cbranch_scc1 L_svcA
    s_lshl_b32 s28, s{L}, 8
    s_add_u32 s28, s28, {KEYS}
    v_add_u32 v7, s28, v220
    v_lshl_add_u32 v6, v33, 7, s28
    s_lshl_b32 s28, s{L}, 6
    s_add_u32 s28, s28, {CAND}
    v_lshl_add_u32 v10, v33, 5, s28
    s_lshl_b32 s26, s{L}, 9
    s_add_u32 s26, s26, {WS_R}
    s_mov_b32 s27, {WS_SEL}
    v_lshlrev_b32 v4, 3, v3
    v_mov_b32 v5, 2
    s_mov_b32 s60, {SPIN_LIMIT}
    L_keys:
    v_mov_b32 v20, 0
    v_mov_b32 v21, 0
    buffer_atomic_or_x2 v[20:21], v4, s[8:11], s26 offen sc0 sc1
    s_sub_u32 s60, s60, 1
    s_cbranch_scc1 L_exit
    s_waitcnt vmcnt(0)
    v_cmp_ne_u32 vcc, s{T}, v21
    s_cbranch_vccnz L_keys
    ds_write_b32 v7, v20""")
    for k in range(8): a(f"ds_read_b128 {vr(40+4*k,4)}, v6 offset:{16*k}")
    rank_count(a, 20, 40, 32, 22, 23)
    a(f"""v_cmp_gt_u32 vcc, 8, v22
    v_lshl_add_u32 v22, v22, 2, v10
    s_mov_b64 exec, vcc
    ds_write_b32 v22, v20""")
    lds_inc(a, 14, C_K, 5)
    a(f"""L_rank:
    s_cmp_lg_u32 s{L}, 0
    s_cbranch_scc1 L_svcA
    v_mov_b32 v6, {CAND}
    v_lshl_add_u32 v7, v32, 2, v6
    v_lshl_add_u32 v6, v33, 6, v6
    v_mov_b32 v21, s{T}""")
    spin_lds(a, 14, C_K, 4, 8)
    st(a, 10)
    if STAMP: a("s_waitcnt lgkmcnt(0)")
    a("ds_read_b32 v20, v7")
    for k in range(4): a(f"ds_read_b128 {vr(40+4*k,4)}, v6 offset:{16*k}")
    rank_count(a, 20, 40, 16, 22, 23)
    a(f"""v_mov_b32 v23, v22
    v_permlane32_swap_b32 v22, v23
    v_add_u32 v22, v22, v23
    v_cmp_gt_u32 vcc, 8, v22
    v_lshlrev_b32 v22, 3, v22
    s_mov_b32 exec_lo, vcc_lo
    s_mov_b32 exec_hi, 0
    buffer_atomic_swap_x2 v[20:21], v22, s[8:11], s27 offen sc1
    s_mov_b64 exec, -1""")
    st(a, 11)
    a.label("L_svcA")
    for e in range(7):
        a(f"""v_add_u32 v4, {64*e}, v3
        v_mul_u32_u24 v5, 4682, v4
        v_lshrrev_b32 v5, 16, v5
        v_mul_u32_u24 v5, {896-224}, v5
        v_lshl_add_u32 v{200+e}, v4, 4, v5""")
    for r in (215, 216): a(f"v_mov_b32 v{r}, 0")
    a(f"""v_mov_b32 v28, -1
    v_mov_b32 v29, -1
    v_mov_b32 v30, -1
    v_mov_b32 v31, -1
    s_lshl_b32 s59, s{J}, 6
    s_add_u32 s59, s59, s{H}
    s_lshl1_add_u32 s59, s59, s{L}
    s_lshl_b32 s59, s59, 10
    s_add_u32 s59, s59, {WS_O}
    s_cmp_ge_u32 s2, 196
    s_cbranch_scc1 L_nofn
    v_lshrrev_b32 v4, 3, v3
    v_and_b32 v5, 2, v4
    v_lshlrev_b32 v5, 1, v5
    v_and_b32 v6, 7, v3
    v_xor_b32 v5, v5, v6
    v_mul_u32_u24 v6, 3584, v4
    v_lshl_add_u32 v34, v5, 4, v6
    v_add_u32 v35, {8*3584-1024}, v34
    v_add_u32 v36, {2*(8*3584-1024)}, v34
    v_add_u32 v37, {3*(8*3584-1024)}, v34
    v_mul_u32_u24 v6, 896, v4
    v_lshl_add_u32 v240, v5, 4, v6
    v_add_u32 v241, {8*896-1024}, v240
    v_add_u32 v242, {2*(8*896-1024)}, v240
    v_add_u32 v243, {3*(8*896-1024)}, v240
    s_lshl_b32 s54, s{L}, 13
    s_add_u32 s54, s54, {GI}
    v_and_b32 v4, 3, v3
    v_lshrrev_b32 v6, 4, v3
    v_bfe_u32 v7, v3, 2, 2
    v_lshl_add_u32 v8, v6, 3, v7
    v_lshlrev_b32 v8, 7, v8
    v_lshrrev_b32 v7, 1, v7
    v_lshl_add_u32 v8, v7, 6, v8
    v_lshl_add_u32 v8, v4, 3, v8
    v_add_u32 v38, s54, v8
    v_xor_b32 v39, 64, v38
    v_lshlrev_b32 v213, 4, v6
    v_lshlrev_b32 v212, 3, v213
    v_lshl_add_u32 v212, v217, 1, v212""")
    srd(a, 16, 42, 448 * 3584)
    a(f"""s_cmp_eq_u32 s{L}, 1
    s_cselect_b64 s[16:17], s[44:45], s[42:43]
    s_mul_i32 s52, s{KS}, {64*3584}
    s_lshl_b32 s28, s{FT}, 7
    s_add_u32 s52, s52, s28
    s_movk_i32 s29, 896""")
    if GA >= 0: spin_lds(a, 14, C_A, 256, 8, sleep=4)
    else: spin_lds(a, 14, C_L, 8 if "deferA" in EXP else 4, 8, sleep=4)
    st(a, 3)
    NR = 2 if "fine" in EXP else 4
    XS_ = 40; FW = 56; AC = 104
    if "nogu" in EXP: a("s_mov_b32 s18, 0")
    a("s_mov_b32 m0, s54\ns_nop 0")
    for k in range(8):
        if k == 4: a(f"s_add_u32 s52, s52, {32*3584}\ns_add_u32 m0, s54, 4096")
        if k == 8 - NR: sel_load("L_sel1")
        elif k and k % NR == 0: a("s_waitcnt vmcnt(0)")
        a(f"buffer_load_dwordx4 v{34+(k&3)}, s[16:19], s52 offen offset:{1024*(k&3)} lds")
    a(f"""v_not_b32 v4, v20
    v_and_b32 v4, 0x7ff, v4
    v_mad_u32_u24 v4, v4, s29, v213
    s_lshl_b32 s26, s{KS}, 7
    s_mov_b32 exec_lo, 0x00ff00ff
    s_mov_b32 exec_hi, 0x00ff00ff
    buffer_load_dwordx4 {vr(XS_,4)}, v4, s[12:15], s26 offen
    buffer_load_dwordx4 {vr(XS_+4,4)}, v4, s[12:15], s26 offen offset:64
    s_mov_b64 exec, -1
    s_waitcnt vmcnt(2)""")
    for k in range(2):
        for n in range(4):
            o = k * 4096 + (n & 1) * 32
            a(f"ds_read_b64_tr_b16 {vr(FW+16*k+4*n,2)}, v{38+(n>>1)} offset:{o}\nds_read_b64_tr_b16 {vr(FW+16*k+4*n+2,2)}, v{38+(n>>1)} offset:{o+512}")
    a(f"""s_mov_b64 s[16:17], s[46:47]
    s_lshl1_add_u32 s28, s{FT}, s{L}
    s_mul_i32 s28, s28, {32*896}
    s_add_u32 s28, s28, s26
    s_lshl_b32 s29, s{L}, 12
    s_add_u32 m0, s29, {DI}
    s_lshl1_add_u32 s26, s2, s{L}
    s_lshl_b32 s26, s26, 11
    s_add_u32 s26, s26, {WS_GP}
    s_waitcnt vmcnt(0) lgkmcnt(0)""")
    st(a, 4)
    if "d1" in EXP: spin_lds(a, 14, C_X, 260, 8, sleep=8)
    for k in range(2):
        for n in range(4):
            a(f"v_mfma_f32_16x16x32_bf16 {vr(AC+4*n,4)}, {vr(FW+16*k+4*n,4)}, {vr(XS_+4*k,4)}, {'0' if k==0 else vr(AC+4*n,4)}")
    a("s_mov_b32 exec_lo, 0x00ff00ff\ns_mov_b32 exec_hi, 0x00ff00ff")
    for n in range(4):
        a(f"buffer_store_dwordx4 {vr(AC+4*n,4)}, v212, s[8:11], s26 offen offset:{512*n} sc1")
    a("s_mov_b64 exec, -1")
    if "nowd" in EXP: a("s_mov_b32 s18, 0")
    for k in range(4): a(f"buffer_load_dwordx4 v{240+k}, s[16:19], s28 offen offset:{1024*k} lds")
    a(f"""s_lshl1_add_u32 s26, s{KS}, s{L}
    s_lshl_b32 s26, s26, 2
    s_mul_i32 s28, s{FT}, {7*128}
    s_add_u32 s26, s26, s28
    s_add_u32 s26, s26, {WS_F1}
    s_waitcnt vmcnt(4)""")
    signal(a, 5, 219, "s26", "0x7f")
    st(a, 5)
    a(f"s_cmp_lg_u32 s{L}, 0\ns_cbranch_scc1 L_st2w\ns_lshl_b32 s26, s2, 7\ns_add_u32 s26, s26, {WS_F1}")
    if "d2" in EXP: spin_lds(a, 14, C_X, 260, 8, sleep=8)
    poll_atomic(a, 5, 220, "s26", "0x3fff", 2)
    lds_inc(a, 14, C_L, 15)
    a("L_st2w:")
    spin_lds(a, 14, C_L, 1, 8, sleep=3)
    st(a, 6)
    GP = 40; DW = 120
    a(f"s_mul_i32 s26, s{FT}, {7*4096}\ns_lshl_b32 s28, s{L}, 9\ns_add_u32 s26, s26, s28\ns_add_u32 s26, s26, {WS_GP}")
    for k in range(7):
        a(f"buffer_load_dwordx4 {vr(GP+4*k,4)}, v211, s[8:11], s26 offen sc1")
        if k < 6: a("s_add_u32 s26, s26, 4096")
    a(f"s_mov_b32 s28, {NLOG2E:#x}\ns_waitcnt vmcnt(0)")
    for k in range(1, 7):
        if "nopk" in EXP:
            for e in range(4): a(f"v_add_f32 v{GP+e}, v{GP+e}, v{GP+4*k+e}")
        else:
            for e in range(2): a(f"v_pk_add_f32 {vr(GP+2*e,2)}, {vr(GP+2*e,2)}, {vr(GP+4*k+2*e,2)}")
    a(f"""v_permlane32_swap_b32 v{GP}, v{GP+2}
    v_permlane32_swap_b32 v{GP+1}, v{GP+3}
    v_mul_f32 v22, s28, v{GP}
    v_mul_f32 v23, s28, v{GP+1}
    v_exp_f32 v22, v22
    v_exp_f32 v23, v23
    v_add_f32 v22, 1.0, v22
    v_add_f32 v23, 1.0, v23
    v_rcp_f32 v22, v22
    v_rcp_f32 v23, v23
    v_pk_mul_f32 v[22:23], v[22:23], {vr(GP,2)}
    v_pk_mul_f32 v[22:23], v[22:23], {vr(GP+2,2)}
    v_cvt_pk_bf16_f32 v22, v22, v23
    ds_write_b32 v214, v22""")
    lds_inc(a, 14, C_S, 15)
    if "d3" in EXP: spin_lds(a, 14, C_X, 260, 8, sleep=8)
    a(f"s_cmp_ge_u32 s{L}, 2\ns_cbranch_scc1 L_st3\ns_branch L_clr")
    a.label("L_nofn")
    spin_lds(a, 14, C_A, 512, 8, sleep=8)
    srd(a, 16, 38, 448 * 896)
    a(f"""s_sub_u32 s26, s2, 196
    s_lshl1_add_u32 s26, s26, s{L}
    s_mul_i32 s26, s26, {27*128}
    s_min_u32 s26, s26, {(3136-27)*128}
    s_mov_b64 exec, 0x7ffffff
    buffer_load_dword v6, v219, s[16:19], s26 offen
    s_mov_b64 exec, -1""")
    sel_load("L_sel2")
    a(f"""s_lshl2_add_u32 s26, s2, s{L}
    s_cmp_lg_u32 s26, {254*4}
    s_cbranch_scc1 L_clr""")
    a(f"s_mov_b32 s60, {SPIN_LIMIT}\nL_ep:")
    for k in range(4):
        a(f"s_mov_b32 s26, {WS_FL+8192*k}\nbuffer_load_dword v{24+k}, v219, s[8:11], s26 offen sc1")
    a(f"""s_sub_u32 s60, s60, 1
    s_cbranch_scc1 L_exit
    s_waitcnt vmcnt(0)
    v_xor_b32 v24, s{T}, v24
    v_bitop3_b32 v24, v24, v25, s{T} bitop3:0xf6
    v_bitop3_b32 v24, v24, v26, s{T} bitop3:0xf6
    v_bitop3_b32 v24, v24, v27, s{T} bitop3:0xf6
    v_cmp_ne_u32 vcc, 0, v24
    s_cbranch_vccnz L_ep
    s_mov_b32 s26, {WS_EP}""")
    flag_store(a, 5, 9, "s26")
    a("L_clr:")
    if "clrz" in EXP: spin_lds(a, 14, C_Z, 64 * ZN, 8, sleep=4)
    if "noobt" not in EXP:
        a(f"""s_lshl1_add_u32 s26, s58, s{L}
        s_lshl_b32 s26, s26, 8
        s_add_u32 s26, s26, {WS_OFL}
        s_mov_b64 exec, 3
        buffer_atomic_or v9, v219, s[8:11], s26 offen sc1
        s_mov_b64 exec, -1""")
    for k in range(4):
        if "noclr" in EXP: continue
        if "otouch" in EXP: a("s_mov_b32 exec_lo, 0x0f0f0f0f\ns_mov_b32 exec_hi, 0x0f0f0f0f")
        a(f"buffer_store_dwordx4 v[28:31], v1, s[8:11], s59 offen sc1\ns_add_u32 s59, s59, {16*2048}")
        if "otouch" in EXP: a("s_mov_b64 exec, -1")
        if "clr1" in EXP and k < 3: a("s_waitcnt vmcnt(0)")
    a("v_mov_b32 v12, 1")
    st(a, 7)
    Y = 40
    a(f"""s_and_b32 s53, s{H}, 3
    s_mul_i32 s53, s53, 224
    s_branch L_wo1
    L_updA:
    s_lshl_b32 s57, s{L}, 2
    s_lshr_b32 s26, s53, 6
    s_lshl_b32 s26, s26, 7
    s_add_u32 s62, s26, {WS_YFL}
    L_upd:
    v_readlane_b32 s52, v20, s57
    s_andn2_b32 s54, 0x7ff, s52
    s_lshr_b32 s26, s54, 5
    s_cmp_lg_u32 s26, s58
    s_cbranch_scc1 L_updn
    s_mov_b32 s60, {SPIN_LIMIT}
    s_mov_b32 exec_lo, 0x0fffffff
    s_mov_b32 exec_hi, 0x0fffffff
    L_yfl:
    v_mov_b32 v24, 0
    v_mov_b32 v25, 0
    buffer_atomic_or v24, v220, s[8:11], s62 offen sc0 sc1
    buffer_atomic_or v25, v220, s[8:11], s62 offen offset:256 sc0 sc1
    s_waitcnt vmcnt(0)
    v_xor_b32 v24, s{T}, v24
    v_bitop3_b32 v24, v24, v25, s{T} bitop3:0xf6
    v_cmp_ne_u32 vcc, 0, v24
    s_cbranch_vccz L_yok
    s_sleep 3
    s_sub_u32 s60, s60, 1
    s_cbranch_scc0 L_yfl
    s_endpgm
    L_yok:
    v_mul_u32_u24 v4, {14*14336}, v33
    v_lshl_add_u32 v4, v32, 4, v4
    s_mul_i32 s26, s57, 1792
    s_lshl1_add_u32 s26, s53, s26
    s_add_u32 s26, s26, {WS_YP}""")
    for i in range(14):
        a(f"buffer_load_dwordx4 {vr(Y+4*i,4)}, v4, s[8:11], s26 offen sc1\ns_add_u32 s26, s26, 14336")
    a(f"""s_mov_b64 exec, -1
    s_lshr_b32 s26, s52, 11
    s_not_b32 s55, s26
    s_and_b32 s29, s26, 0x7fff
    s_bitcmp1_b32 s26, 15
    s_cselect_b32 s26, s29, s55
    s_lshl_b32 s26, s26, 16
    v_mov_b32 v6, {NLOG2E:#x}
    v_mul_f32 v6, s26, v6
    v_exp_f32 v6, v6
    v_add_f32 v6, 1.0, v6
    v_rcp_f32 v6, v6
    v_cvt_pk_bf16_f32 v6, v6, v6
    v_lshlrev_b32 v6, 16, v6
    s_mul_i32 s26, s57, 448
    s_add_u32 s26, s26, {UPD}
    v_lshl_add_u32 v7, v32, 4, s26
    s_waitcnt vmcnt(0)""")
    for i in range(1, 14):
        a(f"v_pk_add_f32 {vr(Y,2)}, {vr(Y,2)}, {vr(Y+4*i,2)}\nv_pk_add_f32 {vr(Y+2,2)}, {vr(Y+2,2)}, {vr(Y+4*i+2,2)}")
    for k in range(4): a(f"v_mov_b32 v{Y+4+k}, v{Y+k}")
    for k in range(4): a(f"v_permlane32_swap_b32 v{Y+k}, v{Y+4+k}")
    for k in range(4): a(f"v_add_f32 v{Y+k}, v{Y+k}, v{Y+4+k}")
    for k in range(0, 4, 2):
        a(f"""v_cvt_pk_bf16_f32 v{Y+k}, v{Y+k}, v{Y+k+1}
        v_and_b32 v{Y+k+1}, 0xffff0000, v{Y+k}
        v_lshlrev_b32 v{Y+k}, 16, v{Y+k}
        v_mul_f32 v{Y+k}, v{Y+k}, v6
        v_mul_f32 v{Y+k+1}, v{Y+k+1}, v6
        v_cvt_pk_bf16_f32 v{Y+k}, v{Y+k}, v{Y+k+1}
        v_and_b32 v{Y+k+1}, 0xffff0000, v{Y+k}
        v_lshlrev_b32 v{Y+k}, 16, v{Y+k}""")
    a(f"""s_and_b32 s54, s54, 31
    v_mov_b32 v5, s57
    s_lshl_b32 s26, s54, 2
    s_add_u32 s26, s26, {UPDI}
    v_mov_b32 v4, s26
    s_mov_b64 exec, 0x0fffffff
    ds_write_b128 v7, {vr(Y,4)}
    s_mov_b64 exec, 1
    ds_write_b32 v4, v5
    s_mov_b64 exec, -1
    L_updn:
    s_add_u32 s57, s57, 1
    s_and_b32 s26, s57, 3
    s_cbranch_scc1 L_upd
    v_mov_b32 v6, 512""")
    lds_inc(a, 14, C_O, 6)
    st(a, 9)
    a("s_branch L_ofetch")
    a.label("L_svcB")
    CLR = "buffer_store_dwordx4 v[24:27], v1, s[8:11], s59 offen sc1"
    if "noclr" in EXP: CLR = ""
    if "otouch" in EXP: CLR = "s_mov_b32 exec_lo, 0x0f0f0f0f\ns_mov_b32 exec_hi, 0x0f0f0f0f\nbuffer_store_dwordx4 v[24:27], v1, s[8:11], s59 offen sc1\ns_mov_b64 exec, -1"
    OUTT = ""
    if "outtouch" in EXP:
        OUTT = f"""s_cmp_lg_u32 s55, {42*1024}
        s_cbranch_scc1 L_noot
        s_mov_b32 s20, s50
        s_mov_b32 s21, s51
        s_mov_b32 s22, {2048*896}
        s_mov_b32 s23, 0x20000
        s_lshl_b32 s26, s58, 5
        v_add_u32 v4, s26, v32
        v_mul_u32_u24 v4, 896, v4
        s_add_u32 s26, s53, 127
        s_and_b32 s26, s26, 0xffffff80
        v_lshl_add_u32 v4, v33, 7, v4
        s_cmp_eq_u32 s53, 672
        s_cselect_b32 exec_hi, 0, -1
        buffer_store_dword v9, v4, s[20:23], s26 offen sc1
        s_mov_b64 exec, -1
        L_noot:"""
    WOPF = "s_mov_b32 exec_hi, 0x1ffff\nbuffer_load_dword v6, v219, s[16:19], s28 offen\ns_mov_b64 exec, -1" if "wopfS" not in EXP and "nowopf" not in EXP else ""
    for e in range(7):
        a(f"""v_add_u32 v4, {64*e}, v3
        v_mul_u32_u24 v5, 4682, v4
        v_lshrrev_b32 v5, 16, v5
        v_mul_u32_u24 v5, {896-224}, v5
        v_lshl_add_u32 v{200+e}, v4, 4, v5""")
    a(f"""v_mov_b32 v16, 0
    v_mov_b32 v17, 0
    v_mov_b32 v18, 0
    v_mov_b32 v19, 0
    v_add_u32 v209, {448*224}, v1
    v_bfe_u32 v7, v3, 2, 2
    v_lshl_add_u32 v5, v33, 3, v7
    v_lshlrev_b32 v5, 7, v5
    v_bfe_u32 v4, v3, 4, 1
    v_lshl_add_u32 v5, v4, 5, v5
    v_and_b32 v4, 3, v3
    v_lshl_add_u32 v5, v4, 3, v5
    v_lshrrev_b32 v7, 1, v7
    v_xor_b32 v7, s{L}, v7
    v_and_b32 v7, 1, v7
    v_lshl_add_u32 v5, v7, 6, v5
    v_add_u32 v210, {DI}, v5
    v_lshlrev_b32 v4, 4, v217
    v_lshl_add_u32 v4, v33, 4, v4
    v_add_u32 v218, {HB}, v4
    v_mul_u32_u24 v215, {4*1792}, v33
    v_lshl_add_u32 v215, v32, 2, v215
    v_add_u32 v216, {2*1792}, v215
    s_cmp_eq_u32 s{L}, 2
    s_cbranch_scc1 L_svcB2
    v_lshrrev_b32 v4, 4, v3
    v_and_b32 v5, 15, v3
    v_lshlrev_b32 v5, 2, v5
    v_lshl_add_u32 v221, v4, 9, v5
    v_lshl_add_u32 v222, v4, 5, v14
    v_and_b32 v223, 48, v3
    v_and_b32 v5, 15, v3
    v_add_u32 v6, v5, v4
    v_mul_u32_u24 v224, {4*TS}, v6
    v_add_u32 v224, 1, v224
    v_bfm_b32 v225, v5, 0
    s_mul_i32 s26, s{H}, 28
    s_add_u32 s28, s26, 27
    s_xor_b32 s26, s26, s28
    s_mov_b32 s62, 0x55555555
    s_cmp_ge_u32 s26, 64
    s_cselect_b32 s62, -1, s62
    s_mov_b32 s63, s62
    s_lshr_b32 s28, s{J}, 2
    s_lshl4_add_u32 s26, s{H}, s28
    s_lshl_b32 s26, s26, 7
    s_add_u32 s26, s26, {WS_MB}""")
    spin_lds(a, 14, C_D, PCD, 8, sleep=1)
    at = lambda r: f"v_mov_b32 v{r}, 0\nbuffer_atomic_or v{r}, v221, s[8:11], s26 offen sc0 sc1"
    a(f"""s_mov_b32 s60, {SPIN_LIMIT}
    s_mov_b32 s52, 0x11111111
    s_mov_b32 s53, 0x11111111
    s_mov_b64 s[56:57], s[52:53]
    s_mov_b64 exec, s[62:63]""")
    for i in range(PD - 1): a(at(28 + i) + f"\ns_sleep {PG}")
    a("L_kv:")
    for i in range(PD):
        a(at(28 + (i + PD - 1) % PD))
        a(f"""s_waitcnt vmcnt({PD-1})
        v_cmp_ne_u32 vcc, s{T}, v{28+i}
        s_lshr_b64 s[28:29], vcc, 1
        s_or_b64 s[28:29], s[28:29], vcc
        s_andn2_b64 s[54:55], s[56:57], s[28:29]
        s_cbranch_scc0 L_kvs{i}
        s_ff1_i32_b64 s54, s[54:55]
        s_lshl_b64 exec, 1, s54
        ds_write_b32 v14, v224 offset:{C_M}
        s_mov_b64 exec, s[62:63]
        s_mov_b64 s[56:57], 0
        L_kvs{i}:
        s_lshr_b64 s[54:55], s[28:29], 2
        s_or_b64 s[28:29], s[28:29], s[54:55]
        s_andn2_b64 s[28:29], s[52:53], s[28:29]
        s_cbranch_scc0 L_kvn{i}
        s_andn2_b64 s[52:53], s[52:53], s[28:29]
        v_lshrrev_b64 v[4:5], v223, s[28:29]
        v_and_b32 v5, v225, v4
        v_bcnt_u32_b32 v5, v5, 0
        v_lshl_add_u32 v5, v5, 2, v222
        s_mov_b64 exec, s[28:29]
        ds_write_b32 v5, v224 offset:{C_R}
        s_mov_b64 exec, s[62:63]
        v_and_b32 v4, 0xffff, v4
        v_bcnt_u32_b32 v4, v4, 0
        v_lshl_add_u32 v222, v4, 2, v222
        s_cmp_eq_u64 s[52:53], 0
        s_cbranch_scc1 L_kvdone
        L_kvn{i}:""")
    a(f"""s_sub_u32 s60, s60, 1
    s_cbranch_scc0 L_kv
    s_endpgm
    L_kvdone:
    s_mov_b64 exec, -1
    L_svcB2:""")
    srd(a, 16, 38, 448 * 896)
    a(f"""s_and_b32 s53, s{H}, 3
    s_mul_i32 s53, s53, 224
    s_and_b32 s27, s{L}, 1
    s_mul_i32 s55, s27, {7*1024}
    s_mul_i32 s57, s27, {32*896}
    s_add_u32 s57, s57, s53""")
    spin_lds(a, 14, C_A, 256, 8, sleep=4)
    st(a, 3)
    a("ds_write_b128 v209, v[16:19]")
    lds_inc(a, 14, C_W, 15)
    a(f"""    s_cmp_lg_u32 s{L}, 2
    s_cbranch_scc1 L_nofl
    s_lshl_b32 s26, s2, 7
    s_add_u32 s26, s26, {WS_FL}""")
    flag_store(a, 5, 9, "s26")
    a("L_nofl:\ns_cmp_lt_u32 s2, 196\ns_cbranch_scc1 L_st2w\ns_branch L_wo1")
    a("L_st3:")
    spin_lds(a, 14, C_S, 4, 8, sleep=1)
    for k in range(4):
        a(f"ds_read_b64_tr_b16 {vr(DW+4*k,2)}, v210 offset:{k*2048}\nds_read_b64_tr_b16 {vr(DW+4*k+2,2)}, v210 offset:{k*2048+512}")
    for k in range(4):
        a(f"ds_read_b128 {vr(GP+4*k,4)}, v218 offset:{32*k}\ns_waitcnt lgkmcnt(0)\n{MF} {vr(AC,16)}, {vr(GP+4*k,4)}, {vr(DW+4*k,4)}, {'0' if k==0 else vr(AC,16)}")
    a(f"""s_mul_i32 s26, s{FT}, 14336
    s_lshl1_add_u32 s28, s{KS}, s27
    s_lshl_b32 s29, s28, 7
    s_add_u32 s26, s26, s29
    s_add_u32 s26, s26, {WS_YP}
    s_lshl2_add_u32 s28, s{FT}, s29
    s_add_u32 s28, s28, {WS_YFL}
    buffer_store_dword v{AC}, v215, s[8:11], s26 offen sc1
    buffer_store_dword v{AC+1}, v215, s[8:11], s26 offen offset:1792 sc1
    buffer_store_dword v{AC+2}, v216, s[8:11], s26 offen sc1
    buffer_store_dword v{AC+3}, v216, s[8:11], s26 offen offset:1792 sc1
    s_waitcnt vmcnt(0)""")
    signal(a, 5, 9, "s28", 1)
    st(a, 7)
    a("L_wo1:")
    srd(a, 16, 38, 448 * 896)
    a("s_mov_b32 s27, 0")
    spin_lds(a, 14, C_Z, 64 * ZN, 8, sleep=4)
    st(a, 4)
    a(f"""L_wo:
    s_mov_b64 exec, 1
    ds_add_rtn_u32 v8, v14, v15 offset:{C_B}
    s_mov_b64 exec, -1
    s_waitcnt lgkmcnt(0)
    v_readfirstlane_b32 s26, v8
    s_cmp_ge_u32 s26, 14
    s_cbranch_scc1 L_wodone
    s_add_u32 s27, s27, 1
    s_mul_i32 s55, s26, {7*1024}
    s_mul_i32 s57, s26, {32*896}
    s_add_u32 s57, s57, s53""")
    for e in range(7):
        a(f"""s_add_u32 m0, s55, {e*1024}
        s_waitcnt vmcnt({WD})
        buffer_load_dwordx4 v{200+e}, s[16:19], s57 offen lds""")
    a(f"""s_waitcnt vmcnt(7)
    s_mov_b64 exec, 1
    ds_add_u32 v14, v12 offset:{C_C}
    v_mov_b32 v12, 0
    s_branch L_wo
    L_wodone:
    v_mov_b32 v5, s27
    s_waitcnt vmcnt(0)""")
    lds_inc(a, 14, C_C, 12)
    lds_inc(a, 14, C_W, 5)
    st(a, 8)
    a(f"s_cmp_lt_u32 s{L}, 2\ns_cbranch_scc1 L_updA")
    a.label("L_ofetch")
    a("s_waitcnt vmcnt(0) lgkmcnt(0)")
    st_end(a)
    a("L_exit:\nL_code_end:\ns_endpgm")

def main(out):
    hdr = open("cdna_kernels/" + NAME + ".s.ref").read().split("; Override")[0]
    rep = []
    a = Asm()
    prologue_and_loader(a); main_wave(a); service_wave(a)
    t = hdr
    t += f"; @launch grid=(256,1,1) block=(512,1,1) lds={LDS_BYTES}\n"
    t += '.amdgcn_target "amdgcn-amd-amdhsa--gfx950"\n'
    t += kernel_text(NAME + "_kernel", a.l, 256, report=rep)
    open(out, "w").write(t)
    if "-v" in sys.argv: print("\n".join(rep))

if __name__ == "__main__":
    main(sys.argv[1])
```
